```python
import torch

def _softmax(x, axis=-1):
    return torch.softmax(x, dim=axis)
def _gelu(x):
    return torch.nn.functional.gelu(x, approximate="tanh")
def _silu(x):
    return torch.nn.functional.silu(x)
def _sigmoid(x):
    return torch.sigmoid(x)
def _layernorm(x, axis=-1, eps=1e-5):
    m = x.mean(dim=axis, keepdim=True)
    v = x.var(dim=axis, keepdim=True, unbiased=False)
    return (x - m) / torch.sqrt(v + eps)
def _scatter_add(tgt, idx, src, axis=0):
    return tgt.clone().index_add_(axis, idx, src)
def _segment_sum(src, seg, n):
    out = torch.zeros((n,) + src.shape[1:], dtype=src.dtype)
    return out.index_add_(0, seg, src)
def _pad(x, pw):
    flat = tuple(v for pair in reversed(pw) for v in pair)
    return torch.nn.functional.pad(x, flat)

kernel_name = 'concat_heads__ssm_conv_s5__linear_kernel_hedgehog__prompt'

def setup_inputs():

    _w = (lambda a: (lambda t: t.to(torch.bfloat16) if t.is_floating_point() else t)(torch.as_tensor(a)))
    def _A_setup():
        B, S, D = 1, 2048, 512
        P = D
        Lambda_re = -0.5 * (lambda _x: torch.exp(torch.as_tensor(_x)))((lambda *s: torch.randn(*s, dtype=torch.bfloat16) * 0.8)(P))
        Lambda_im = (lambda *s: torch.randn(*s, dtype=torch.bfloat16) * 0.8)(P) * 1.0
        B_re = (lambda *s: torch.randn(*s, dtype=torch.bfloat16) * 0.8)(P, D) * (D ** -0.5)
        B_im = (lambda *s: torch.randn(*s, dtype=torch.bfloat16) * 0.8)(P, D) * (D ** -0.5)
        C_re = (lambda *s: torch.randn(*s, dtype=torch.bfloat16) * 0.8)(D, P) * (P ** -0.5)
        C_im = (lambda *s: torch.randn(*s, dtype=torch.bfloat16) * 0.8)(D, P) * (P ** -0.5)
        log_dt = (lambda *s: torch.randn(*s, dtype=torch.bfloat16) * 0.8)(P) * 0.3 - 2.0
        Dskip = (lambda *s: torch.randn(*s, dtype=torch.bfloat16) * 0.8)(D)
        return {
            "x": _w((lambda *s: torch.randn(*s, dtype=torch.bfloat16) * 0.05)(B, S, D)),
            "Lambda_re": _w(Lambda_re),
            "Lambda_im": _w(Lambda_im),
            "B_re": _w(B_re),
            "B_im": _w(B_im),
            "C_re": _w(C_re),
            "C_im": _w(C_im),
            "log_dt": _w(log_dt),
            "Dskip": _w(Dskip),
        }
    _A_in = _A_setup()

    def _B_setup():
        B, S, D, H = 1, 2048, 512, 32
        Dh = D // H
        return {
            "x": _w((lambda *s: torch.randn(*s, dtype=torch.bfloat16) * 0.4)(B, S, D)),
            "wqkv": _w((lambda *s: torch.randn(*s, dtype=torch.bfloat16) * 0.4)(D, 3 * D)),
            "w_phi": _w((lambda *s: torch.randn(*s, dtype=torch.bfloat16) * 0.4)(H, Dh, Dh) * (Dh ** -0.5)),
            "wo": _w((lambda *s: torch.randn(*s, dtype=torch.bfloat16) * 0.05)(D, D)),
        }
    _B_in = _B_setup()

    return {
        "A_x": _A_in["x"],
        "A_Lambda_re": _A_in["Lambda_re"],
        "A_Lambda_im": _A_in["Lambda_im"],
        "A_B_re": _A_in["B_re"],
        "A_B_im": _A_in["B_im"],
        "A_C_re": _A_in["C_re"],
        "A_C_im": _A_in["C_im"],
        "A_log_dt": _A_in["log_dt"],
        "A_Dskip": _A_in["Dskip"],
        "B_x": _B_in["x"],
        "B_wqkv": _B_in["wqkv"],
        "B_w_phi": _B_in["w_phi"],
        "B_wo": _B_in["wo"],
    }

def reference(A_x, A_Lambda_re, A_Lambda_im, A_B_re, A_B_im, A_C_re, A_C_im, A_log_dt, A_Dskip, B_x, B_wqkv, B_w_phi, B_wo):
    def _A_ref(x, Lambda_re, Lambda_im, B_re, B_im, C_re, C_im, log_dt, Dskip):
        Bsz, L, H = x.shape
        Lam = Lambda_re + 1j * Lambda_im
        Bmat = B_re + 1j * B_im
        Cmat = C_re + 1j * C_im
        dt = torch.exp(log_dt)
        Lam_bar = torch.exp(dt * Lam)
        B_bar = ((Lam_bar - 1.0) / Lam)[:, None] * Bmat
        Bu = torch.einsum("bld,pd->blp", x + 0j, B_bar)
        h = torch.zeros_like(Bu[:, 0, :])
        hs = []
        for t in range(L):
            h = Lam_bar[None, :] * h + Bu[:, t, :]
            hs.append(h)
        hseq = torch.stack(hs, 1)
        y = 2.0 * torch.einsum("blp,dp->bld", hseq, Cmat).real + x * Dskip[None, None, :]
        return y

    def _B_ref(x, wqkv, w_phi, wo):
        B, S, D = x.shape
        H = 32; Dh = D // H
        qkv = (lambda x, *d: x.permute(*d))((x @ wqkv).reshape(B, S, 3, H, Dh), 2, 0, 3, 1, 4)
        q, k, v = qkv[0], qkv[1], qkv[2]
        pq = torch.einsum("bhsd,hdf->bhsf", q, w_phi)
        pk = torch.einsum("bhsd,hdf->bhsf", k, w_phi)
        phi_q = torch.concatenate([_softmax(pq, axis=-1), _softmax(-pq, axis=-1)], axis=-1)
        phi_k = torch.concatenate([_softmax(pk, axis=-1), _softmax(-pk, axis=-1)], axis=-1)
        kv = torch.einsum("bhsf,bhsd->bhfd", phi_k, v)
        z  = torch.einsum("bhsf->bhf", phi_k)
        num = torch.einsum("bhqf,bhfd->bhqd", phi_q, kv)
        den = torch.einsum("bhqf,bhf->bhq", phi_q, z)[..., None] + 1e-6
        o = num / den
        return (lambda x, *d: x.permute(*d))(o, 0, 2, 1, 3).reshape(B, S, D) @ wo

    a = _A_ref(A_x, A_Lambda_re, A_Lambda_im, A_B_re, A_B_im, A_C_re, A_C_im, A_log_dt, A_Dskip)
    b = _B_ref(B_x, B_wqkv, B_w_phi, B_wo)
    return torch.concatenate([a, b], axis=-1)
```

```python
import re

TRANS = ("v_exp_f32", "v_log_f32", "v_rcp_f32", "v_rsq_f32", "v_sqrt_f32", "v_sin_f32", "v_cos_f32")
_reg = re.compile(r"^(-|abs\()?([vas])(?:(\d+)|\[(\d+):(\d+)\])\)?$")

def regs_of(tok):
    tok = tok.strip()
    if tok in ("vcc", "exec"):
        return {("s", tok)}
    if tok == "m0":
        return {("s", "m0")}
    m = _reg.match(tok)
    if not m:
        return set()
    k = m.group(2)
    if m.group(3) is not None:
        return {(k, int(m.group(3)))}
    return {(k, i) for i in range(int(m.group(4)), int(m.group(5)) + 1)}

def vr(a, n=1, k="v"):
    return f"{k}{a}" if n == 1 else f"{k}[{a}:{a+n-1}]"
def ar(a, n=1): return vr(a, n, "a")
def sr(a, n=1): return vr(a, n, "s")

class Ins:
    __slots__ = ("text", "op", "kind", "w", "r", "srcc", "srcab", "slots", "dpp", "wide_store")

class Asm:
    def __init__(self):
        self.out = []
        self.hist = []
        self.vm = 0
        self.lg = 0
        self.nnop = 0

    def raw(self, t):
        self.out.append(t)

    def label(self, name):
        self.out.append(name + ":")

    def comment(self, t):
        self.out.append("; " + t)

    def _parse(self, text):
        ins = Ins()
        ins.text = text
        parts = text.split(None, 1)
        op = parts[0]
        ins.op = op
        rest = parts[1] if len(parts) > 1 else ""
        ops, depth, cur = [], 0, ""
        for chh in rest:
            if chh == "[": depth += 1
            if chh == "]": depth -= 1
            if chh == "," and depth == 0:
                ops.append(cur.strip()); cur = ""
            else:
                cur += chh
        if cur.strip(): ops.append(cur.strip())
        mods = ""
        if ops:
            last = ops[-1].split(None, 1)
            ops[-1] = last[0]
            mods = last[1] if len(last) > 1 else ""
        R = [regs_of(o) for o in ops]
        ins.w, ins.r, ins.srcc, ins.srcab = set(), set(), set(), set()
        ins.slots = 1
        ins.dpp = ("_dpp" in op) or ("row_" in mods) or ("quad_perm" in mods)
        ins.wide_store = set()
        base = op.replace("_e32", "").replace("_e64", "").replace("_dpp", "")
        if op.startswith("v_mfma"):
            ins.kind = "mfma"; ins.w = R[0]; ins.srcab = R[1] | R[2]; ins.srcc = R[3]; ins.r = ins.srcab | ins.srcc
        elif op.startswith("v_"):
            ins.kind = "trans" if base in TRANS else "valu"
            if op.startswith("v_permlane") and "swap" in op:
                ins.w = R[0] | R[1]; ins.r = R[0] | R[1]; ins.kind = "permlane"
            elif base in ("v_add_co_u32", "v_addc_co_u32", "v_sub_co_u32", "v_subb_co_u32"):
                ins.w = R[0] | R[1]; ins.r = set().union(*R[2:])
            else:
                ins.w = R[0]; ins.r = set().union(*R[1:]) if len(R) > 1 else set()
                if base in ("v_fmac_f32", "v_pk_fmac_f16") or "d16" in op: ins.r |= R[0]
                if base in ("v_readfirstlane_b32", "v_readlane_b32"): ins.kind = "readlane"
        elif op.startswith("ds_"):
            ins.kind = "ds"
            if op.startswith("ds_read") or op.startswith("ds_bpermute") or op.startswith("ds_swizzle"):
                ins.w = R[0]; ins.r = set().union(*R[1:])
            else:
                ins.r = set().union(*R)
        elif op.startswith("buffer_") or op.startswith("global_"):
            ins.kind = "vmem"
            is_lds = bool(re.search(r"\blds\b", mods))
            if "_load" in op and not is_lds:
                ins.w = R[0]; ins.r = set().union(*R[1:])
            else:
                ins.r = set().union(*R) if R else set()
                if is_lds: ins.r |= {("s", "m0")}; ins.kind = "dma"
                if "store" in op and ("x4" in op or "x3" in op):
                    ins.wide_store = R[0] if op.startswith("buffer_") else R[1]
        elif op == "s_nop":
            ins.kind = "nop"; ins.slots = int(ops[0], 0) + 1
        elif op.startswith("s_"):
            ins.kind = "salu"
            if op.startswith("s_cmp") or op.startswith("s_cbranch") or op in ("s_branch", "s_barrier", "s_waitcnt", "s_endpgm", "s_sleep", "s_setprio", "s_setpc_b64"):
                ins.r = set().union(*R) if R else set()
            else:
                ins.w = R[0] if R else set(); ins.r = set().union(*R[1:]) if len(R) > 1 else set()
        else:
            raise ValueError("unknown op " + text)
        return ins

    def _need(self, p, c):
        VAL = ("valu", "trans", "permlane", "readlane")
        n = 0
        pv = p.kind in VAL
        cv = c.kind in VAL
        pw_v = {x for x in p.w if x[0] != "s"}
        pw_s = {x for x in p.w if x[0] == "s"}
        if pv and c.kind == "mfma" and (pw_v & c.r): n = max(n, 2)
        if p.kind == "mfma":
            if c.kind == "mfma":
                if p.w & c.srcab: n = max(n, 12)
                if (p.w & c.srcc) and p.w != c.srcc: n = max(n, 10)
                if (p.w & c.w) and not (p.w == c.w and c.srcc == c.w): n = max(n, 12)
            elif c.kind != "salu" and c.kind != "nop":
                if p.w & (c.r | c.w): n = max(n, 12)
            if cv and (p.srcc & c.w): n = max(n, 7)
        if p.kind == "trans" and c.kind not in ("salu", "nop", "trans") and (pw_v & c.r): n = max(n, 1)
        if pv and pw_s:
            if cv and (pw_s & c.r): n = max(n, 4 if c.kind == "readlane" else 2)
            if c.kind in ("vmem", "dma") and (pw_s & c.r): n = max(n, 5)
            if c.kind == "salu" and (pw_s & c.r): n = max(n, 1)
        if pv and c.kind == "readlane" and (pw_v & c.r): n = max(n, 1)
        if pv and (c.dpp or c.kind == "permlane") and (pw_v & c.r): n = max(n, 2)
        if p.kind == "salu" and ("s", "m0") in p.w and c.kind == "dma": n = max(n, 1)
        if p.wide_store and (p.wide_store & c.w): n = max(n, 2)
        return n

    def __call__(self, text):
        for t in text.split("\n"):
            t = t.strip()
            if t: self._emit(t)

    def _emit(self, text):
        ins = self._parse(text)
        dist, pad = 0, 0
        for p in reversed(self.hist):
            need = self._need(p, ins)
            if need > dist: pad = max(pad, need - dist)
            dist += p.slots
            if dist >= 14: break
        if pad:
            self.nnop += 1
            nop = self._parse(f"s_nop {pad-1}")
            self.hist.append(nop); self.out.append("    " + nop.text)
        self.hist.append(ins)
        if len(self.hist) > 40: self.hist = self.hist[-20:]
        self.out.append("    " + text)
        if ins.kind in ("vmem", "dma"): self.vm += 1
        if ins.kind == "ds": self.lg += 1
        return ins

    def wait_vm(self, tok):
        n = self.vm - tok
        assert n >= 0
        self(f"s_waitcnt vmcnt({min(n, 63)})")
    def wait_lg(self, tok):
        n = self.lg - tok
        assert 0 <= n
        self(f"s_waitcnt lgkmcnt({min(n, 15)})")
    def wait_both(self, vtok, ltok):
        self(f"s_waitcnt vmcnt({min(self.vm - vtok, 63)}) lgkmcnt({min(self.lg - ltok, 15)})")

    def text(self):
        return "\n".join(self.out)
```

```python
import sys
from dsl import Asm, vr, ar, sr

NAME = "concat_heads__ssm_conv_s5__linear_kernel_hedgehog__prompt"
OPT = dict(stamps=False)
for a_ in sys.argv[2:]:
    k_, _, v_ = a_.partition("=")
    OPT[k_] = int(v_) if v_ else True

WS_TAGA, WS_TAGB = 0x0, 0x80
WS_FLAG = 0x2000
WS_SA = 0x10000
WS_P1 = 0x100000
WS_P2 = 0x300000
WS_H = 0x400000
WS_O = 0x800000
WS_STAMP = 0xA00000
OOB = 0x40000000
SPIN_LIMIT = 1 << 14
LOG2E = 0x3FB8AA3B
INV2PI = 0x3E22F983

S_WAVE, S_CHUNK, S_CG, S_ROT, S_TAG = 3, 4, 5, 6, 7
SX, SW, SW2, SWS, SOUT = 8, 12, 16, 20, 24
S_RH, S_CH, S_SLOT, S_GRP = 28, 29, 30, 31
ST = 32
S_M0W = 48
S_MG = 50
S_MRH = 52
S_L2E = 54
S_CNT = 56
S_FAIL = 58
S_M16 = 60
KA = 64
K_AX, K_LRE, K_LIM, K_BRE, K_BIM, K_CRE, K_CIM, K_LDT, K_DSK, K_BX, K_WQKV, K_WPHI, K_WO, K_OUT, K_DBG, K_WS = [KA + 2 * i for i in range(16)]
S_STAMP = 96

A = Asm()
nstamp = [0]

def srd(dst, ptr, nbytes):
    A(f"s_mov_b32 s{dst}, s{ptr}")
    A(f"s_mov_b32 s{dst+1}, s{ptr+1}")
    A(f"s_mov_b32 s{dst+2}, {nbytes:#x}")
    A(f"s_mov_b32 s{dst+3}, 0x20000")

V_STAMP = 254
def stamp(idx):
    if not OPT["stamps"]: return
    A(f"s_memtime s[{S_STAMP}:{S_STAMP+1}]")
    A("s_waitcnt lgkmcnt(0)")
    A(f"s_sub_u32 s{S_STAMP}, s{S_STAMP}, s98")
    A(f"v_writelane_b32 v255, s{S_STAMP}, {idx}")

def stamp_flush():
    if not OPT["stamps"]: return
    A(f"s_lshl_b32 s{ST}, s2, 2")
    A(f"s_add_u32 s{ST}, s{ST}, s{S_WAVE}")
    A(f"s_lshl_b32 s{ST}, s{ST}, 8")
    A(f"s_add_u32 s{ST}, s{ST}, {WS_STAMP:#x}")
    A(f"v_lshlrev_b32 v{V_STAMP}, 2, v1")
    A(f"buffer_store_dword v255, v{V_STAMP}, s[{SWS}:{SWS+3}], s{ST} offen")

def mfma(d, a, b, c):
    A(f"v_mfma_f32_32x32x16_bf16 {d}, {a}, {b}, {c}")

def pin(n):
    nstamp[0] += 1
    return f"L_{n}_{nstamp[0]}"

def poll(loads, check):
    top, done = pin("poll"), pin("ok")
    A(f"s_mov_b32 s{S_CNT}, {SPIN_LIMIT}")
    A.label(top)
    A("s_nop 4")
    loads()
    A("s_waitcnt vmcnt(0)")
    check()
    A(f"s_cmp_eq_u64 s[{S_FAIL}:{S_FAIL+1}], 0")
    A(f"s_cbranch_scc1 {done}")
    A(f"s_sub_u32 s{S_CNT}, s{S_CNT}, 1")
    A(f"s_cbranch_scc0 {top}")
    A.label(done)

def cfma(d, a, b, c, t):
    A(f"v_pk_fma_f32 {vr(t,2)}, {vr(a,2)}, {vr(b,2)}, {vr(c,2)} op_sel:[1,1,0] op_sel_hi:[1,0,1] neg_lo:[1,0,0]")
    A(f"v_pk_fma_f32 {vr(d,2)}, {vr(a,2)}, {vr(b,2)}, {vr(t,2)} op_sel:[0,0,0] op_sel_hi:[0,1,1]")
def cmul(d, a, b, t):
    A(f"v_pk_mul_f32 {vr(t,2)}, {vr(a,2)}, {vr(b,2)} op_sel:[1,1] op_sel_hi:[1,0] neg_lo:[1,0]")
    A(f"v_pk_fma_f32 {vr(d,2)}, {vr(a,2)}, {vr(b,2)}, {vr(t,2)} op_sel:[0,0,0] op_sel_hi:[0,1,1]")

SLOT = 32768
V_OX, V_OW = 16, 20

def dma4(voff, srdreg, soff, ldsoff, flags=""):
    A(f"s_add_u32 m0, s{S_M0W}, {ldsoff:#x}")
    for p in range(4):
        A(f"buffer_load_dwordx4 v{voff+p}, s[{srdreg}:{srdreg+3}], s{soff} offen offset:{p*1024} {flags}lds")

def prologue():
    if OPT["stamps"]:
        A("s_memtime s[98:99]")
    A("s_cmp_ge_u32 s2, 256")
    A("s_cbranch_scc1 L_end")
    A(f"s_load_dwordx16 s[{KA}:{KA+15}], s[0:1], 0")
    A(f"s_load_dwordx16 s[{KA+16}:{KA+31}], s[0:1], 64")
    A("v_and_b32 v1, 63, v0")
    A("v_lshrrev_b32 v2, 6, v0")
    A(f"v_readfirstlane_b32 s{S_WAVE}, v2")
    A(f"s_lshr_b32 s{S_SLOT}, s2, 3")
    A(f"s_and_b32 s{ST}, s2, 3")
    A(f"s_lshl_b32 s{S_CHUNK}, s{ST}, 2")
    A(f"s_lshr_b32 s{ST+1}, s{S_SLOT}, 3")
    A(f"s_add_u32 s{S_CHUNK}, s{S_CHUNK}, s{ST+1}")
    A(f"s_and_b32 s{S_CG}, s{S_SLOT}, 7")
    A(f"s_lshl_b32 s{S_ROT}, s{ST+1}, 1")
    A(f"s_add_u32 s{S_ROT}, s{S_ROT}, s{S_CG}")
    A(f"s_and_b32 s{S_ROT}, s{S_ROT}, 7")
    A(f"s_lshr_b32 s{S_RH}, s{S_WAVE}, 1")
    A(f"s_and_b32 s{S_CH}, s{S_WAVE}, 1")
    A(f"s_lshl_b32 s{S_M0W}, s{S_WAVE}, 12")
    A(f"s_mov_b32 s{S_MG}, 0")
    A(f"s_mov_b32 s{S_MG+1}, -1")
    A(f"s_sub_u32 s{S_MRH}, 0, s{S_RH}")
    A(f"s_mov_b32 s{S_MRH+1}, s{S_MRH}")
    A(f"s_mov_b32 s{S_L2E}, {LOG2E:#x}")
    A(f"s_mov_b32 s{S_L2E+1}, {LOG2E:#x}")
    A(f"s_mov_b32 s{S_M16}, 0xffff0000")
    A(f"s_mov_b32 s{S_M16+1}, 0xffff0000")
    if OPT["stamps"]:
        A("v_mov_b32 v255, 0")
    A("v_lshrrev_b32 v3, 3, v1")
    A("v_and_b32 v4, 7, v1")
    A("v_and_b32 v5, 31, v1")
    A("v_lshrrev_b32 v6, 5, v1")
    A(f"s_lshl_b32 s{ST+2}, s{S_SLOT}, 2")
    A(f"s_add_u32 s{ST+2}, s{ST+2}, s{S_WAVE}")
    A(f"s_lshl_b32 s{ST+2}, s{ST+2}, 7")
    A(f"v_mov_b32 v7, s{ST+2}")
    A("s_bitcmp1_b32 s2, 2")
    A("s_cbranch_scc1 L_roleB")

def code_prefetch(label):
    A(f"s_getpc_b64 s[{ST+4}:{ST+5}]")
    A(f"global_load_dword v8, v7, s[{ST+4}:{ST+5}]")

def lds_b128_addrs(base_reg, wave_off_sreg, const):
    A("v_bfe_u32 v9, v5, 1, 3")
    A("v_xor_b32 v9, v9, v6")
    A("v_lshlrev_b32 v9, 4, v9")
    A("v_lshl_add_u32 v9, v5, 7, v9")
    A(f"v_add_u32 v9, s{wave_off_sreg}, v9")
    if const: A(f"v_add_u32 v9, {const:#x}, v9")
    for ks in range(4):
        A(f"v_xor_b32 v{base_reg+ks}, {32*ks}, v9")

def rot_soff(dst, add, shift=None, mul=None, extra_sreg=None):
    A(f"s_add_u32 s{dst}, s{S_ROT}, {add}")
    if extra_sreg is not None: A(f"s_add_u32 s{dst}, s{dst}, s{extra_sreg}")
    A(f"s_and_b32 s{dst}, s{dst}, 7")
    if shift is not None: A(f"s_lshl_b32 s{dst}, s{dst}, {shift}")
    else: A(f"s_mul_i32 s{dst}, s{dst}, {mul}")

def handoff_flag_and_poll(role):
    A("s_waitcnt vmcnt(0)")
    A(f"s_lshl_b32 s{ST}, s{S_GRP}, 7")
    A(f"s_add_u32 s{ST}, s{ST}, {WS_FLAG:#x}")
    A(f"s_lshl_b32 s{ST+1}, s{S_CG}, 2")
    A(f"s_add_u32 s{ST+1}, s{ST+1}, s{S_WAVE}")
    A(f"s_lshl_b32 s{ST+1}, s{ST+1}, 2")
    A(f"s_add_u32 s{ST+1}, s{ST+1}, s{ST}")
    A(f"v_mov_b32 v10, {OOB:#x}")
    A("v_cmp_eq_u32 vcc, 0, v1")
    A("v_cndmask_b32 v10, v10, 0, vcc" if False else "v_cndmask_b32_e64 v10, v10, 0, vcc")
    A(f"v_mov_b32 v11, s{S_TAG}")
    A(f"buffer_store_dword v11, v10, s[{SWS}:{SWS+3}], s{ST+1} offen sc1")
    A("v_lshlrev_b32 v12, 2, v5")
    def loads():
        A(f"buffer_load_dword v13, v12, s[{SWS}:{SWS+3}], s{ST} offen sc1")
    def check():
        A(f"v_cmp_ne_u32 s[{S_FAIL}:{S_FAIL+1}], s{S_TAG}, v13")
    return loads, check

def tag_update(role):
    skip = pin("notag")
    want_chunk = 15 if role == "A" else 0
    A(f"s_lshl_b32 s{ST+2}, s{S_CHUNK}, 8")
    A(f"s_lshl_b32 s{ST+3}, s{S_CG}, 4")
    A(f"s_add_u32 s{ST+2}, s{ST+2}, s{ST+3}")
    A(f"s_add_u32 s{ST+2}, s{ST+2}, s{S_WAVE}")
    A(f"s_cmp_eq_u32 s{ST+2}, {want_chunk << 8}")
    A(f"s_cbranch_scc0 {skip}")
    A(f"buffer_store_dword v11, v10, s[{SWS}:{SWS+3}], 0 offen offset:{WS_TAGA if role == 'A' else WS_TAGB} sc1")
    A.vm -= 1
    A("s_waitcnt vmcnt(0)")
    A.label(skip)

def out_stores(acc, colbase):
    A(f"s_lshl_b32 s{ST}, s{S_CHUNK}, 19")
    A(f"s_lshl_b32 s{ST+1}, s{S_RH}, 18")
    A(f"s_add_u32 s{ST}, s{ST}, s{ST+1}")
    A(f"s_lshl_b32 s{ST+1}, s{S_CG}, 8")
    A(f"s_add_u32 s{ST}, s{ST}, s{ST+1}")
    A(f"s_lshl_b32 s{ST+1}, s{S_CH}, 7")
    A(f"s_add_u32 s{ST}, s{ST}, s{ST+1}")
    if colbase: A(f"s_add_u32 s{ST}, s{ST}, {colbase*4}")
    A("v_lshlrev_b32 v9, 14, v6")
    A("v_lshl_add_u32 v9, v5, 2, v9")
    for m in range(2):
        for r in range(16):
            row = 32 * m + 8 * (r >> 2) + (r & 3)
            A(f"s_add_u32 s{ST+1}, s{ST}, {row*4096}")
            A(f"buffer_store_dword v{acc+16*m+r}, v9, s[{SOUT}:{SOUT+3}], s{ST+1} offen sc1")

def role_A():
    V_AX, V_AW = 24, 36
    V_XF, V_WF = 48, 64
    URE, UIM = 80, 112
    ACC2 = 144
    HP = 176
    C_LAM, C_M1, C_M2, C_L, C_MQ, C_LQ, C_C2 = 208, 210, 212, 214, 216, 218, 220
    C_DSK = 222
    T0 = 224
    code_prefetch("A")
    A(f"s_mov_b32 s{S_GRP}, s{S_CHUNK}")
    A("v_lshrrev_b32 v9, 1, v3")
    A("v_xor_b32 v9, v9, v4")
    A("v_lshlrev_b32 v9, 4, v9")
    A("v_lshrrev_b32 v10, 2, v3")
    A("v_lshlrev_b32 v10, 5, v10")
    A("v_and_b32 v11, 1, v3")
    A("v_lshl_add_u32 v10, v11, 4, v10")
    A("v_bfe_u32 v11, v3, 1, 1")
    A("v_add_u32 v10, v10, v11")
    A("v_lshl_add_u32 v10, v10, 10, v9")
    A(f"s_lshl_b32 s{ST}, s{S_CHUNK}, 17")
    A(f"s_lshl_b32 s{ST+1}, s{S_RH}, 16")
    A(f"s_add_u32 s{ST}, s{ST}, s{ST+1}")
    A(f"s_lshl_b32 s{ST+1}, s{S_CH}, 13")
    A(f"s_add_u32 s{ST}, s{ST}, s{ST+1}")
    A(f"v_add_u32 v10, s{ST}, v10")
    for p in range(4):
        if p & 1:
            A(f"v_xor_b32 v{V_OX+p}, 64, v10")
            A(f"v_add_u32 v{V_OX+p}, {p*1024}, v{V_OX+p}")
        else:
            A(f"v_add_u32 v{V_OX+p}, {p*1024}, v10")
    A("v_lshl_add_u32 v10, v3, 10, v9")
    A(f"s_lshl_b32 s{ST}, s{S_CG}, 16")
    A(f"s_lshl_b32 s{ST+1}, s{S_CH}, 15")
    A(f"s_add_u32 s{ST}, s{ST}, s{ST+1}")
    A(f"v_add_u32 v10, s{ST}, v10")
    for p in range(4):
        if p & 1:
            A(f"v_xor_b32 v{V_OW+p}, 64, v10")
            A(f"v_add_u32 v{V_OW+p}, {p*7168}, v{V_OW+p}")
        else:
            A(f"v_add_u32 v{V_OW+p}, {p*7168}, v10")
    A(f"s_lshl_b32 s{ST}, s{S_CG}, 7")
    A(f"s_lshl_b32 s{ST+1}, s{S_CH}, 6")
    A(f"s_add_u32 s{ST}, s{ST}, s{ST+1}")
    A(f"v_lshl_add_u32 v14, v5, 1, s{ST}")
    A("s_waitcnt lgkmcnt(0)")
    stamp(1)
    A(f"s_load_dword s{S_TAG}, s[{K_WS}:{K_WS+1}], {WS_TAGA}")
    srd(SX, K_AX, 0x200000)
    A(f"s_cmp_eq_u32 s{S_RH}, 0")
    A(f"s_cselect_b32 s{SW}, s{K_BRE}, s{K_BIM}")
    A(f"s_cselect_b32 s{SW+1}, s{K_BRE+1}, s{K_BIM+1}")
    A(f"s_mov_b32 s{SW+2}, 0x80000")
    A(f"s_mov_b32 s{SW+3}, 0x20000")
    A(f"s_cselect_b32 s{SW2}, s{K_CRE}, s{K_CIM}")
    A(f"s_cselect_b32 s{SW2+1}, s{K_CRE+1}, s{K_CIM+1}")
    A(f"s_mov_b32 s{SW2+2}, 0x80000")
    A(f"s_mov_b32 s{SW2+3}, 0x20000")
    A(f"global_load_ushort v{T0}, v14, s[{K_LRE}:{K_LRE+1}]")
    A(f"global_load_ushort v{T0+1}, v14, s[{K_LIM}:{K_LIM+1}]")
    A(f"global_load_ushort v{T0+2}, v14, s[{K_LDT}:{K_LDT+1}]")
    A(f"global_load_ushort v{C_DSK}, v14, s[{K_DSK}:{K_DSK+1}]")
    tok_small = A.vm
    tok = {}
    def g1_issue(i, half):
        slot = i & 3
        if half == 0:
            rot_soff(ST + 8, i, shift=7)
            dma4(V_OW, SW, ST + 8, slot * SLOT)
        else:
            dma4(V_OX, SX, ST + 8, slot * SLOT + 16384)
            tok[i] = A.vm
    CSLOT = [4, 0, 1, 2]
    def c_issue(st):
        rot_soff(ST + 9, st, shift=7)
        dma4(V_OW, SW2, ST + 9, CSLOT[st >> 1] * SLOT + (st & 1) * 16384)
        tok[("c", st)] = A.vm
    for i in range(4):
        g1_issue(i, 0); g1_issue(i, 1)
    stamp(2)
    srd(SWS, K_WS, 0x10000000)
    srd(SOUT, K_OUT, 0x800000)
    A(f"s_lshl_b32 s{ST}, s{S_RH}, 13")
    lds_b128_addrs(V_AX, ST, 16384)
    for ks in range(4): A(f"v_add_u32 v{V_AX+4+ks}, 0x10000, v{V_AX+ks}")
    A(f"s_lshl_b32 s{ST}, s{S_CH}, 12")
    lds_b128_addrs(V_AW, ST, 0)
    for ks in range(4): A(f"v_add_u32 v{V_AW+4+ks}, 0x10000, v{V_AW+ks}")
    for ks in range(4): A(f"v_add_u32 v{V_AW+8+ks}, 0x20000, v{V_AW+ks}")
    A.wait_vm(tok_small)
    lre, lim, ldt = T0, T0 + 1, T0 + 2
    for r in (lre, lim, ldt, C_DSK): A(f"v_lshlrev_b32 v{r}, 16, v{r}")
    A(f"v_mul_f32 v{ldt}, s{S_L2E}, v{ldt}")
    A(f"v_exp_f32 v{ldt}, v{ldt}")
    A(f"v_cvt_pk_bf16_f32 v{ldt}, v{ldt}, v{ldt}")
    A(f"v_lshlrev_b32 v{ldt}, 16, v{ldt}")
    A(f"v_mul_f32 v{T0+4}, v{ldt}, v{lre}")
    A(f"v_mul_f32 v{T0+5}, v{ldt}, v{lim}")
    A(f"v_mul_f32 v{T0+4}, s{S_L2E}, v{T0+4}")
    A(f"v_exp_f32 v{T0+4}, v{T0+4}")
    A(f"v_mul_f32 v{T0+5}, {INV2PI:#x}, v{T0+5}")
    A(f"v_rndne_f32 v{T0+6}, v{T0+5}")
    A(f"v_sub_f32 v{T0+5}, v{T0+5}, v{T0+6}")
    A(f"v_cos_f32 v{T0+6}, v{T0+5}")
    A(f"v_sin_f32 v{T0+7}, v{T0+5}")
    A(f"v_mul_f32 v{C_LAM}, v{T0+4}, v{T0+6}")
    A(f"v_mul_f32 v{C_LAM+1}, v{T0+4}, v{T0+7}")
    A(f"v_add_f32 v{T0+4}, -1.0, v{C_LAM}")
    A(f"v_mul_f32 v{T0+5}, v{lre}, v{lre}")
    A(f"v_fmac_f32 v{T0+5}, v{lim}, v{lim}")
    A(f"v_rcp_f32 v{T0+5}, v{T0+5}")
    A(f"v_mul_f32 v{T0+6}, v{T0+4}, v{lre}")
    A(f"v_fmac_f32 v{T0+6}, v{C_LAM+1}, v{lim}")
    A(f"v_mul_f32 v{T0+7}, v{C_LAM+1}, v{lre}")
    A(f"v_fma_f32 v{T0+7}, -v{T0+4}, v{lim}, v{T0+7}")
    A(f"v_add_f32 v{T0+5}, v{T0+5}, v{T0+5}")
    A(f"v_mul_f32 v{C_C2}, v{T0+6}, v{T0+5}")
    A(f"v_mul_f32 v{C_C2+1}, v{T0+7}, v{T0+5}")
    pa, pb, tt = T0 + 8, T0 + 10, T0 + 12
    cmul(pa, C_LAM, C_LAM, tt)
    cmul(pb, pa, pa, tt)
    cmul(pa, pb, pb, tt)
    cmul(C_M1, pa, pa, tt)
    cmul(C_M2, C_M1, C_M1, tt)
    cmul(pa, C_M2, C_M2, tt)
    cmul(C_L, pa, pa, tt)
    def sel_pair(dst, src, mask):
        A(f"v_cndmask_b32_e64 v{dst}, 1.0, v{src}, s[{mask}:{mask+1}]")
        A(f"v_cndmask_b32_e64 v{dst+1}, 0, v{src+1}, s[{mask}:{mask+1}]")
    sel_pair(T0 + 14, C_M2, S_MG)
    sel_pair(T0 + 16, pa, S_MRH)
    cmul(C_MQ, T0 + 14, T0 + 16, tt)
    cmul(pa, C_L, C_L, tt)
    cmul(pb, pa, pa, tt)
    cmul(pa, pb, pb, tt)
    sel_pair(T0 + 14, pb, S_MG)
    sel_pair(T0 + 16, pa, S_MRH)
    cmul(C_LQ, T0 + 14, T0 + 16, tt)
    stamp(3)
    def rd(n):
        i, ks = n >> 2, n & 3
        slot, buf = i & 3, n & 1
        s2_, off = slot >> 1, (slot & 1) * SLOT
        for m in range(2):
            A(f"ds_read_b128 {vr(V_XF+buf*8+m*4,4)}, v{V_AX+4*s2_+ks} offset:{off+m*4096}")
        for ri in range(2):
            A(f"ds_read_b128 {vr(V_WF+buf*8+ri*4,4)}, v{V_AW+4*s2_+ks} offset:{off+ri*8192}")
    def mm(n, extra=None):
        buf = n & 1
        k = 0
        for m in range(2):
            for ri in range(2):
                d = vr((URE, UIM)[ri] + 16 * m, 16)
                mfma(d, vr(V_XF + buf * 8 + m * 4, 4), vr(V_WF + buf * 8 + ri * 4, 4), d if n else "0")
                if extra and k == 0: extra()
                k += 1
    A.wait_vm(tok[0])
    A("s_waitcnt lgkmcnt(0)")
    A(f"s_add_u32 s{S_TAG}, s{S_TAG}, 1")
    A("s_barrier")
    stamp(4)
    rd(0)
    pend = []
    for n in range(32):
        i, ks = n >> 2, n & 3
        if n == 31:
            A("s_waitcnt lgkmcnt(0)")
            A("s_barrier")
        elif ks == 3:
            A.wait_both(tok[i + 1], A.lg)
            A("s_barrier")
            rd(n + 1)
            if i + 4 < 8:
                pend += [lambda i=i: g1_issue(i + 4, 0), lambda i=i: g1_issue(i + 4, 1)]
                if i == 3: pend += [lambda: c_issue(0), lambda: c_issue(1)]
        else:
            t = A.lg
            rd(n + 1)
            A.wait_lg(t)
        mm(n, pend.pop(0) if pend else None)
    assert not pend
    stamp(5)
    P = [T0, T0 + 4]
    def lam_bc(hi):
        return f"op_sel:[{hi},0,0] op_sel_hi:[{hi},1,1]"
    cur_re, cur_im = URE, UIM
    for s in range(1, 16):
        d = P[s & 1]
        A(f"v_pk_fma_f32 {vr(d,2)}, {vr(C_LAM,2)}, {vr(cur_im,2)}, {vr(URE+2*s,2)} {lam_bc(1)} neg_lo:[1,0,0] neg_hi:[1,0,0]")
        A(f"v_pk_fma_f32 {vr(d+2,2)}, {vr(C_LAM,2)}, {vr(cur_re,2)}, {vr(UIM+2*s,2)} {lam_bc(1)}")
        A(f"v_pk_fma_f32 {vr(d,2)}, {vr(C_LAM,2)}, {vr(cur_re,2)}, {vr(d,2)} {lam_bc(0)}")
        A(f"v_pk_fma_f32 {vr(d+2,2)}, {vr(C_LAM,2)}, {vr(cur_im,2)}, {vr(d+2,2)} {lam_bc(0)}")
        cur_re, cur_im = d, d + 2
    A0, BQ = T0 + 8, T0 + 10
    A(f"v_mov_b32 v{A0}, v{cur_re}")
    A(f"v_mov_b32 v{A0+1}, v{cur_im}")
    A(f"v_fma_f32 v{BQ}, v{C_M1}, v{cur_re}, v{cur_re+1}")
    A(f"v_fma_f32 v{BQ+1}, v{C_M1}, v{cur_im}, v{cur_im+1}")
    A(f"v_fma_f32 v{BQ}, -v{C_M1+1}, v{cur_im}, v{BQ}")
    A(f"v_fma_f32 v{BQ+1}, v{C_M1+1}, v{cur_re}, v{BQ+1}")
    SCR = 3 * SLOT
    A(f"s_lshl_b32 s{ST}, s{S_CH}, 8")
    A(f"s_add_u32 s{ST}, s{ST}, {SCR:#x}")
    A(f"v_lshl_add_u32 v9, v5, 3, s{ST}")
    A(f"s_lshl_b32 s{ST}, s{S_RH}, 10")
    A("v_lshl_add_u32 v10, v6, 9, v9")
    A(f"v_add_u32 v10, s{ST}, v10")
    A(f"ds_write_b64 v10, {vr(BQ,2)}")
    A("s_waitcnt lgkmcnt(0)")
    A("s_barrier")
    B0 = T0 + 12
    for q in range(4):
        A(f"ds_read_b64 {vr(B0+2*q,2)}, v9 offset:{q*512}")
    A(f"s_lshl_b32 s{ST}, s{S_CG}, 14")
    A(f"s_add_u32 s{ST}, s{ST}, {WS_SA:#x}")
    A(f"s_lshl_b32 s{ST+1}, s{S_CH}, 9")
    A(f"s_add_u32 s{ST}, s{ST}, s{ST+1}")
    A(f"s_lshl_b32 s{ST+1}, s{S_CHUNK}, 10")
    A(f"s_add_u32 s{ST+1}, s{ST+1}, s{ST}")
    A("v_lshlrev_b32 v11, 4, v5")
    A(f"v_mov_b32 v12, {OOB:#x}")
    A(f"s_or_b64 s[{ST+2}:{ST+3}], s[{S_MG}:{S_MG+1}], s[{S_MRH}:{S_MRH+1}]")
    A(f"v_cndmask_b32_e64 v12, v11, v12, s[{ST+2}:{ST+3}]")
    A("s_waitcnt lgkmcnt(0)")
    P2, P3, SS, tt = T0 + 20, T0 + 22, T0 + 24, T0 + 28
    cfma(P2, C_M2, B0, B0 + 2, tt)
    cfma(P3, C_M2, P2, B0 + 4, tt)
    cfma(tt, C_M2, P3, B0 + 6, tt)
    A(f"v_mov_b32 v{SS}, v{tt}")
    A(f"v_mov_b32 v{SS+1}, s{S_TAG}")
    A(f"v_mov_b32 v{SS+2}, v{tt+1}")
    A(f"v_mov_b32 v{SS+3}, s{S_TAG}")
    A(f"buffer_store_dwordx4 {vr(SS,4)}, v12, s[{SWS}:{SWS+3}], s{ST+1} offen sc1")
    stamp(6)
    LOC = T0 + 0
    for e in range(2):
        A(f"v_cndmask_b32_e64 v{T0+2+e}, 0, v{B0+e}, s[{S_MG}:{S_MG+1}]")
        A(f"v_cndmask_b32_e64 v{T0+4+e}, v{P2+e}, v{P3+e}, s[{S_MG}:{S_MG+1}]")
        A(f"v_cndmask_b32_e64 v{LOC+e}, v{T0+2+e}, v{T0+4+e}, s[{S_MRH}:{S_MRH+1}]")
    A(f"s_lshl_b32 s{ST+4}, s{S_CHUNK}, 17")
    A(f"s_lshl_b32 s{ST+5}, s{S_RH}, 16")
    A(f"s_add_u32 s{ST+4}, s{ST+4}, s{ST+5}")
    A("v_lshl_add_u32 v13, v6, 12, v14")
    for m in range(2):
        for j in range(4):
            A(f"s_add_u32 s{ST+5}, s{ST+4}, {(32*m+8*j)*1024}")
            for e in range(4):
                A(f"buffer_load_ushort v{HP+16*m+4*j+e}, v13, s[{SX}:{SX+3}], s{ST+5} offen offset:{e*1024}")
    def c2_bc(hi, n=3):
        return f"op_sel:[{hi},0,0] op_sel_hi:[{hi},1,1]" if n == 3 else f"op_sel:[{hi},0] op_sel_hi:[{hi},1]"
    for s in range(16):
        re, im, t = URE + 2 * s, UIM + 2 * s, T0 + 2 + 2 * (s & 1)
        A(f"v_pk_mul_f32 {vr(t,2)}, {vr(C_C2,2)}, {vr(re,2)} {c2_bc(1,2)} neg_lo:[1,0] neg_hi:[1,0]")
        A(f"v_pk_mul_f32 {vr(re,2)}, {vr(C_C2,2)}, {vr(re,2)} {c2_bc(0,2)}")
        A(f"v_pk_fma_f32 {vr(re,2)}, {vr(C_C2,2)}, {vr(im,2)}, {vr(re,2)} {c2_bc(1)} neg_lo:[1,0,0] neg_hi:[1,0,0]")
        A(f"v_pk_fma_f32 {vr(im,2)}, {vr(C_C2,2)}, {vr(im,2)}, {vr(t,2)} {c2_bc(0)} neg_lo:[1,0,0] neg_hi:[1,0,0]")
    GO, GE, GD = 48, 52, 56
    A(f"s_lshl_b32 s{ST+4}, s{S_RH}, 3")
    A(f"s_sub_u32 s{ST+4}, s{S_CHUNK}, s{ST+4}")
    A(f"s_sub_u32 s{ST+4}, s{ST+4}, 1")
    A("v_lshlrev_b32 v12, 2, v6")
    A(f"v_sub_u32 v12, s{ST+4}, v12")
    A(f"v_mov_b32 v15, {OOB:#x}")
    A(f"v_mov_b32 v8, s{S_TAG}")
    for i in range(4):
        A(f"v_subrev_u32 v13, {i}, v12")
        A("v_cmp_gt_i32 vcc, 0, v13")
        A(f"v_lshl_add_u32 v13, v13, 10, v11")
        A(f"v_cndmask_b32 v{GO+i}, v13, v15, vcc")
        A(f"v_cndmask_b32_e64 v{GE+i}, v8, 0, vcc")
    stamp(7)
    def loads():
        for i in range(4):
            A(f"buffer_load_dwordx4 {vr(GD+4*i,4)}, v{GO+i}, s[{SWS}:{SWS+3}], s{ST} offen sc1")
    def check():
        for i in range(4):
            A(f"v_xor_b32 v{GD+4*i+1}, v{GD+4*i+1}, v{GE+i}")
            A(f"v_xor_b32 v{GD+4*i+3}, v{GD+4*i+3}, v{GE+i}")
        A(f"v_or3_b32 v12, v{GD+1}, v{GD+3}, v{GD+5}")
        A(f"v_or3_b32 v12, v12, v{GD+7}, v{GD+9}")
        A(f"v_or3_b32 v12, v12, v{GD+11}, v{GD+13}")
        A(f"v_or_b32 v12, v12, v{GD+15}")
        A(f"v_cmp_ne_u32 s[{S_FAIL}:{S_FAIL+1}], 0, v12")
    poll(loads, check)
    stamp(8)
    for st in range(2, 8): c_issue(st)
    for i in range(4):
        A(f"v_mov_b32 v{GD+4*i+1}, v{GD+4*i+2}")
    h1, h2 = T0 + 20, T0 + 22
    cfma(h1, C_L, GD + 12, GD + 8, tt)
    cfma(h2, C_L, h1, GD + 4, tt)
    cfma(h1, C_L, h2, GD + 0, tt)
    cmul(h2, C_LQ, h1, tt)
    A(f"ds_write_b64 v10, {vr(h2,2)} offset:2048")
    for r in range(32):
        A(f"v_lshlrev_b32 v{HP+r}, 16, v{HP+r}")
        A(f"v_mul_f32 v{HP+r}, v{HP+r}, v{C_DSK}")
    A("s_waitcnt lgkmcnt(0)")
    A("s_barrier")
    for q in range(4):
        A(f"ds_read_b64 {vr(B0+2*q,2)}, v9 offset:{2048+q*512}")
    tq = A.lg
    def c_read(st):
        slot = CSLOT[st >> 1]
        s2_, off = slot >> 1, (slot & 1) * SLOT + (st & 1) * 16384
        for ks in range(4):
            for ri in range(2):
                kap = (ks >> 1) * 4 + ri * 2 + (ks & 1)
                A(f"ds_read_b128 {ar((st*8+kap)*4,4)}, v{V_AW+4*s2_+ks} offset:{off+ri*8192}")
    for r in range(0, 32, 2):
        A(f"v_cvt_pk_bf16_f32 v{HP+r}, v{HP+r}, v{HP+r+1}")
        A(f"v_and_b32 v{ACC2+r+1}, 0xffff0000, v{HP+r}")
        A(f"v_lshlrev_b32 v{ACC2+r}, 16, v{HP+r}")
    A.wait_lg(tq)
    c_read(0)
    A(f"v_pk_add_f32 {vr(B0,2)}, {vr(B0,2)}, {vr(B0+2,2)}")
    A(f"v_pk_add_f32 {vr(B0+4,2)}, {vr(B0+4,2)}, {vr(B0+6,2)}")
    A(f"v_pk_add_f32 {vr(B0,2)}, {vr(B0,2)}, {vr(B0+4,2)}")
    K0, K1 = T0 + 20, T0 + 22
    cfma(K0, C_MQ, B0, LOC, tt)
    cfma(K1, C_M1, K0, A0, tt)
    cmul(T0 + 12, C_C2, K0, tt)
    cmul(T0 + 14, C_C2, K1, tt)
    HR, HI = T0 + 16, T0 + 18
    A(f"v_mov_b32 v{HR}, v{T0+12}")
    A(f"v_mov_b32 v{HR+1}, v{T0+14}")
    A(f"v_sub_f32 v{HI}, 0, v{T0+13}")
    A(f"v_sub_f32 v{HI+1}, 0, v{T0+15}")
    pr, pi_ = HR, HI
    for s in range(16):
        re, im = URE + 2 * s, UIM + 2 * s
        A(f"v_pk_fma_f32 {vr(re,2)}, {vr(C_LAM,2)}, {vr(pi_,2)}, {vr(re,2)} {lam_bc(1)}")
        A(f"v_pk_fma_f32 {vr(im,2)}, {vr(C_LAM,2)}, {vr(pr,2)}, {vr(im,2)} {lam_bc(1)} neg_lo:[1,0,0] neg_hi:[1,0,0]")
        A(f"v_pk_fma_f32 {vr(re,2)}, {vr(C_LAM,2)}, {vr(pr,2)}, {vr(re,2)} {lam_bc(0)}")
        A(f"v_pk_fma_f32 {vr(im,2)}, {vr(C_LAM,2)}, {vr(pi_,2)}, {vr(im,2)} {lam_bc(0)}")
        pr, pi_ = re, im
        if s == 4: c_read(1)
    A(f"s_lshl_b32 s{ST}, s{S_CHUNK}, 18")
    A(f"s_lshl_b32 s{ST+1}, s{S_CG}, 15")
    A(f"s_add_u32 s{ST}, s{ST}, s{ST+1}")
    A(f"s_lshl_b32 s{ST+1}, s{S_WAVE}, 13")
    A(f"s_add_u32 s{ST}, s{ST}, s{ST+1}")
    A(f"s_add_u32 s{ST}, s{ST}, {WS_H:#x}")
    A(f"s_add_u32 s{ST+1}, s{ST}, 4096")
    A("v_lshlrev_b32 v9, 4, v1")
    for o in range(4):
        A(f"v_xor_b32 v{GO+o}, {o*64}, v9")
    for ri in range(2):
        U = (URE, UIM)[ri]
        for z in range(2):
            for hf in range(2):
                o = 2 * z + hf
                d = HP + (ri * 4 + o) * 4
                for u in range(4):
                    s0 = 8 * hf + 2 * u
                    A(f"v_cvt_pk_bf16_f32 v{d+u}, v{U+2*s0+z}, v{U+2*s0+2+z}")
                A(f"buffer_store_dwordx4 {vr(d,4)}, v{GO+o}, s[{SWS}:{SWS+3}], s{ST+ri} offen offset:{o*1024} sc1")
    stamp(9)
    loads, check = handoff_flag_and_poll("A")
    stamp(10)
    A("s_barrier")
    for st in range(2, 8):
        c_read(st)
        if st & 1: A("s_waitcnt lgkmcnt(0)")
    V_AH = V_AX
    A("v_bfe_u32 v9, v1, 4, 1")
    A("v_bfe_u32 v11, v1, 1, 1")
    A("v_lshl_add_u32 v9, v9, 1, v11")
    A("v_bfe_u32 v11, v1, 2, 2")
    A("v_lshl_add_u32 v11, v6, 3, v11")
    A("v_lshlrev_b32 v13, 2, v9")
    A("v_xor_b32 v11, v11, v13")
    A("v_lshlrev_b32 v11, 4, v11")
    A("v_lshl_add_u32 v11, v9, 10, v11")
    A("v_and_b32 v13, 1, v1")
    A("v_lshl_add_u32 v11, v13, 3, v11")
    A(f"s_lshl_b32 s{ST+2}, s{S_RH}, 14")
    A(f"v_add_u32 v{V_AH}, s{ST+2}, v11")
    A(f"v_xor_b32 v{V_AH+1}, 64, v{V_AH}")
    A(f"v_add_u32 v{V_AH+2}, 0x10000, v{V_AH}")
    A(f"v_add_u32 v{V_AH+3}, 0x10000, v{V_AH+1}")
    A(f"v_mov_b32 v11, s{S_TAG}")
    A("v_lshlrev_b32 v9, 4, v1")
    A("s_barrier")
    stamp(11)
    poll(loads, check)
    stamp(12)
    tag_update("A")
    A(f"s_lshl_b32 s{ST+4}, s{S_CHUNK}, 18")
    A(f"s_lshl_b32 s{ST+5}, s{S_WAVE}, 13")
    A(f"s_add_u32 s{ST+4}, s{ST+4}, s{ST+5}")
    A(f"s_add_u32 s{ST+4}, s{ST+4}, {WS_H:#x}")
    A(f"s_lshl_b32 s{ST+6}, s{S_WAVE}, 13")
    def h_issue(i, half):
        slot = i & 3
        if half == 0:
            rot_soff(ST + 8, i, shift=15)
            A(f"s_add_u32 s{ST+8}, s{ST+8}, s{ST+4}")
        else:
            A(f"s_add_u32 s{ST+8}, s{ST+8}, 4096")
        A(f"s_add_u32 m0, s{ST+6}, {slot*SLOT+half*4096:#x}")
        for p in range(4):
            A(f"buffer_load_dwordx4 v9, s[{SWS}:{SWS+3}], s{ST+8} offen offset:{p*1024} sc1 lds")
        if half: tok[("h", i)] = A.vm
    for i in range(4):
        h_issue(i, 0); h_issue(i, 1)
    HF = 48
    def rd2(n):
        i, kap = n >> 3, n & 7
        slot, buf = i & 3, n & 1
        s2_ = slot >> 1
        off = (slot & 1) * SLOT + (kap >> 2) * 8192 + ((kap >> 1) & 1) * 4096 + (kap & 1) * 256
        for m in range(2):
            for j in range(2):
                A(f"ds_read_b64_tr_b16 {vr(HF+buf*8+m*4+2*j,2)}, v{V_AH+2*s2_+j} offset:{off+m*512}")
    A.wait_vm(tok[("h", 0)])
    A("s_barrier")
    stamp(13)
    rd2(0)
    pend = []
    for n in range(64):
        i, kap = n >> 3, n & 7
        if n == 63:
            A("s_waitcnt lgkmcnt(0)")
        elif kap == 7:
            A.wait_both(tok[("h", i + 1)], A.lg)
            A("s_barrier")
            rd2(n + 1)
            if i + 4 < 8:
                pend += [lambda i=i: h_issue(i + 4, 0), None, lambda i=i: h_issue(i + 4, 1)]
        else:
            t = A.lg
            rd2(n + 1)
            A.wait_lg(t)
        buf = n & 1
        for m in range(2):
            d = vr(ACC2 + 16 * m, 16)
            mfma(d, vr(HF + buf * 8 + m * 4, 4), ar(n * 4, 4), d)
            if m == 0 and pend:
                f = pend.pop(0)
                if f: f()
    stamp(14)
    out_stores(ACC2, 0)
    stamp(15)
    stamp_flush()
    A("s_endpgm")

def role_B():
    V_OO = 24
    V_AX, V_AT = 28, 36
    V_WF = 48
    KACC, VACC, PK, KV, WPH = 64, 96, 128, 192, 224
    T0 = 232
    code_prefetch("B")
    A(f"s_add_u32 s{S_GRP}, s{S_CHUNK}, 16")
    A("v_lshrrev_b32 v9, 1, v3")
    A("v_xor_b32 v9, v9, v4")
    A("v_lshlrev_b32 v9, 4, v9")
    A("v_lshl_add_u32 v10, v3, 10, v9")
    A(f"s_lshl_b32 s{ST}, s{S_CHUNK}, 17")
    A(f"s_lshl_b32 s{ST+1}, s{S_WAVE}, 15")
    A(f"s_add_u32 s{ST}, s{ST}, s{ST+1}")
    A(f"v_add_u32 v10, s{ST}, v10")
    for p in range(4):
        if p & 1:
            A(f"v_xor_b32 v{V_OX+p}, 64, v10")
            A(f"v_add_u32 v{V_OX+p}, {p*7168}, v{V_OX+p}")
        else:
            A(f"v_add_u32 v{V_OX+p}, {p*7168}, v10")
    A("v_bfe_u32 v9, v3, 1, 1")
    A("v_lshlrev_b32 v9, 2, v9")
    A("v_xor_b32 v9, v9, v4")
    A("v_lshlrev_b32 v9, 4, v9")
    A(f"s_lshl_b32 s{ST}, s{S_CG}, 7")
    A(f"v_add_u32 v9, s{ST}, v9")
    A(f"s_lshl_b32 s{ST+1}, s{S_CH}, 5")
    A(f"v_add_u32 v10, s{ST+1}, v3")
    A("v_mul_u32_u24 v11, 3072, v10")
    A("v_add_u32 v11, v11, v9")
    for p in range(4): A(f"v_add_u32 v{V_OW+p}, {p*(8*3072-1024)}, v11")
    A("v_lshl_add_u32 v11, v10, 10, v9")
    for p in range(4): A(f"v_add_u32 v{V_OO+p}, {p*7168}, v11")
    A("v_lshrrev_b32 v9, 3, v5")
    A("v_and_b32 v10, 3, v5")
    A("v_lshl_add_u32 v9, v9, 2, v10")
    A("v_lshlrev_b32 v9, 1, v9")
    A("v_lshl_add_u32 v9, v6, 7, v9")
    A(f"s_lshl_b32 s{ST}, s{S_CG}, 11")
    A(f"s_lshl_b32 s{ST+1}, s{S_CH}, 10")
    A(f"s_add_u32 s{ST}, s{ST}, s{ST+1}")
    A(f"v_add_u32 v14, s{ST}, v9")
    A(f"s_add_u32 s{ST+10}, s{S_RH}, 1")
    A(f"s_lshl_b32 s{ST+10}, s{ST+10}, 10")
    A("s_waitcnt lgkmcnt(0)")
    stamp(1)
    A(f"s_load_dword s{S_TAG}, s[{K_WS}:{K_WS+1}], {WS_TAGB}")
    srd(SX, K_BX, 0x200000)
    srd(SW, K_WQKV, 0x180000)
    tok = {}
    def g1_issue(i, half):
        slot = i & 3
        if half == 0:
            rot_soff(ST + 8, i, mul=196608)
            A(f"s_add_u32 s{ST+8}, s{ST+8}, s{ST+10}")
            dma4(V_OW, SW, ST + 8, slot * SLOT)
        else:
            rot_soff(ST + 8, i, shift=7)
            dma4(V_OX, SX, ST + 8, slot * SLOT + 16384)
            tok[i] = A.vm
    QSLOT = [4, 0]; OSLOT = [1, 2]
    def q_issue(st):
        rot_soff(ST + 9, 2 * st, mul=196608, extra_sreg=S_RH)
        dma4(V_OW, SW, ST + 9, QSLOT[st >> 1] * SLOT + (st & 1) * 16384)
        tok[("q", st)] = A.vm
    def o_issue(st):
        rot_soff(ST + 9, 2 * st, shift=16, extra_sreg=S_RH)
        dma4(V_OO, SW2, ST + 9, OSLOT[st >> 1] * SLOT + (st & 1) * 16384)
        tok[("o", st)] = A.vm
    g1_issue(0, 0); g1_issue(0, 1)
    for hh in range(2):
        for u in range(4):
            d0 = (0, 2, 8, 10)[u]
            A(f"global_load_ushort v{WPH+4*hh+u}, v14, s[{K_WPHI}:{K_WPHI+1}] offset:{hh*512+d0*32}")
            A(f"global_load_ushort v{T0+8+4*hh+u}, v14, s[{K_WPHI}:{K_WPHI+1}] offset:{hh*512+(d0+1)*32}")
    for i in range(1, 4):
        g1_issue(i, 0); g1_issue(i, 1)
    stamp(2)
    srd(SW2, K_WO, 0x80000)
    srd(SWS, K_WS, 0x10000000)
    srd(SOUT, K_OUT, 0x800000)
    A(f"s_lshl_b32 s{ST}, s{S_RH}, 13")
    lds_b128_addrs(V_AX, ST, 16384)
    for ks in range(4): A(f"v_add_u32 v{V_AX+4+ks}, 0x10000, v{V_AX+ks}")
    A("v_bfe_u32 v9, v1, 4, 1")
    A("v_bfe_u32 v10, v1, 1, 1")
    A("v_lshl_add_u32 v9, v9, 1, v10")
    A("v_bfe_u32 v10, v1, 3, 1")
    A(f"v_xor_b32 v10, s{S_CH}, v10")
    A("v_lshl_add_u32 v9, v10, 2, v9")
    A("v_lshlrev_b32 v9, 4, v9")
    A("v_and_b32 v10, 1, v1")
    A("v_lshl_add_u32 v9, v10, 3, v9")
    A("v_bfe_u32 v10, v1, 2, 2")
    A("v_lshl_add_u32 v10, v6, 3, v10")
    A(f"v_lshl_add_u32 v{V_AT}, v10, 7, v9")
    A(f"v_add_u32 v{V_AT+1}, 0x10000, v{V_AT}")
    A(f"v_add_u32 v{V_AT+2}, 0x20000, v{V_AT}")
    stamp(3)
    def trfrag(dst, ldsoff, kind="v"):
        s_, off = ldsoff >> 16, ldsoff & 0xffff
        for j in range(2):
            A(f"ds_read_b64_tr_b16 {vr(dst+2*j,2,kind)}, v{V_AT+s_} offset:{off+j*512}")
    def rd(n):
        i, ks = n >> 2, n & 3
        slot, buf = i & 3, n & 1
        s2_, off = slot >> 1, (slot & 1) * SLOT
        for m in range(2):
            A(f"ds_read_b128 {ar(n*8+m*4,4)}, v{V_AX+4*s2_+ks} offset:{off+m*4096}")
        for part in range(2):
            trfrag(V_WF + buf * 8 + part * 4, slot * SLOT + part * 8192 + ks * 2048)
    def mm(n, extra=None):
        buf = n & 1
        for m in range(2):
            d = vr(KACC + 16 * m, 16)
            mfma(d, vr(V_WF + buf * 8, 4), ar(n * 8 + m * 4, 4), d if n else "0")
            if extra and m == 0: extra()
            d = vr(VACC + 16 * m, 16)
            mfma(d, ar(n * 8 + m * 4, 4), vr(V_WF + buf * 8 + 4, 4), d if n else "0")
    A.wait_vm(tok[0])
    A("s_waitcnt lgkmcnt(0)")
    A(f"s_add_u32 s{S_TAG}, s{S_TAG}, 1")
    A("s_barrier")
    stamp(4)
    rd(0)
    pend = []
    for n in range(32):
        i, ks = n >> 2, n & 3
        if n == 31:
            A("s_waitcnt lgkmcnt(0)")
            A("s_barrier")
        elif ks == 3:
            A.wait_both(tok[i + 1], A.lg)
            A("s_barrier")
            rd(n + 1)
            if i + 4 < 8:
                pend += [lambda i=i: g1_issue(i + 4, 0), lambda i=i: g1_issue(i + 4, 1)]
                if i == 3: pend += [lambda: q_issue(0), lambda: q_issue(1)]
        else:
            t = A.lg
            rd(n + 1)
            A.wait_lg(t)
        mm(n, pend.pop(0) if pend else None)
    assert not pend
    stamp(5)
    q_issue(2); q_issue(3)
    A("v_bfe_u32 v9, v1, 2, 1")
    A("v_mul_u32_u24 v9, 0x8000, v9")
    A("v_lshl_or_b32 v9, v9, 16, v9")
    for r in range(8):
        A(f"v_lshl_or_b32 v{WPH+r}, v{T0+8+r}, 16, v{WPH+r}")
        A(f"v_xor_b32 v{WPH+r}, v9, v{WPH+r}")
    def feat(acc):
        for m in range(2):
            for u in range(8):
                A(f"v_cvt_pk_bf16_f32 v{acc+16*m+u}, v{acc+16*m+2*u}, v{acc+16*m+2*u+1}")
        for m in range(2):
            for hh in range(2):
                mfma(vr(PK + (m * 2 + hh) * 16, 16), vr(WPH + 4 * hh, 4), vr(acc + 16 * m + 4 * hh, 4), "0")
    def softmax(x, dst):
        mx, sm = T0, T0 + 2
        A(f"v_max3_f32 v{mx}, v{x}, v{x+1}, v{x+2}")
        for u in range(3, 15, 2):
            A(f"v_max3_f32 v{mx}, v{mx}, v{x+u}, v{x+u+1}")
        A(f"v_max_f32 v{mx}, v{mx}, v{x+15}")
        A(f"v_mul_f32 v{mx}, s{S_L2E}, v{mx}")
        for u in range(8):
            A(f"v_pk_fma_f32 {vr(x+2*u,2)}, {vr(x+2*u,2)}, s[{S_L2E}:{S_L2E+1}], {vr(mx,2)} op_sel_hi:[1,1,0] neg_lo:[0,0,1] neg_hi:[0,0,1]")
        for u in range(16):
            A(f"v_exp_f32 v{x+u}, v{x+u}")
        A(f"v_pk_add_f32 {vr(sm,2)}, {vr(x,2)}, {vr(x+2,2)}")
        for u in range(2, 8):
            A(f"v_pk_add_f32 {vr(sm,2)}, {vr(sm,2)}, {vr(x+2*u,2)}")
        A(f"v_add_f32 v{sm}, v{sm}, v{sm+1}")
        A(f"v_rcp_f32 v{sm}, v{sm}")
        for u in range(8):
            A(f"v_pk_mul_f32 {vr(x+2*u,2)}, {vr(x+2*u,2)}, {vr(sm,2)} op_sel_hi:[1,0]")
        for u in range(8):
            A(f"v_cvt_pk_bf16_f32 v{dst+u}, v{x+2*u}, v{x+2*u+1}")
    feat(KACC)
    SCR = 3 * SLOT
    for m in range(2):
        for u in range(8):
            A(f"v_cvt_pk_bf16_f32 v{VACC+16*m+u}, v{VACC+16*m+2*u}, v{VACC+16*m+2*u+1}")
    A("v_mov_b32 v15, 0x3f803f80")
    for m in range(2):
        for u in range(8):
            A(f"v_cndmask_b32_e64 v{VACC+16*m+8+u}, v15, v{VACC+16*m+u}, s[{S_M16}:{S_M16+1}]")
            A(f"v_cndmask_b32_e64 v{VACC+16*m+u}, v{VACC+16*m+u}, v15, s[{S_M16}:{S_M16+1}]")
    A(f"s_lshl_b32 s{ST}, s{S_WAVE}, 13")
    A(f"s_add_u32 s{ST}, s{ST}, {SCR:#x}")
    A("v_mul_u32_u24 v9, 1152, v6")
    A("v_lshl_add_u32 v9, v5, 4, v9")
    A(f"v_add_u32 v9, s{ST}, v9")
    A("v_bfe_u32 v10, v1, 4, 1")
    A("v_bfe_u32 v11, v1, 1, 1")
    A("v_lshl_add_u32 v10, v10, 1, v11")
    A("v_mul_u32_u24 v10, 576, v10")
    A("v_bfe_u32 v11, v1, 2, 2")
    A("v_lshl_add_u32 v11, v6, 2, v11")
    A("v_lshl_add_u32 v10, v11, 4, v10")
    A("v_and_b32 v11, 1, v1")
    A("v_lshl_add_u32 v10, v11, 3, v10")
    A(f"v_add_u32 v10, s{ST}, v10")
    PH = KACC + 8
    PT = [KACC + 24, V_WF]
    prev = None
    def kvmm(blk):
        m, hh = blk >> 1, blk & 1
        for mm_ in range(2):
            d = vr(KV + 16 * hh, 16)
            mfma(d, vr(PT[blk & 1] + 4 * mm_, 4), vr(VACC + 16 * m + 8 * hh + 4 * mm_, 4), d if (m or mm_) else "0")
    for blk in range(4):
        softmax(PK + blk * 16, PH)
        bo = (blk & 1) * 2304
        if prev is not None:
            A("s_waitcnt lgkmcnt(0)")
            kvmm(prev)
        A(f"ds_write_b128 v9, {vr(PH,4)} offset:{bo}")
        A(f"ds_write_b128 v9, {vr(PH+4,4)} offset:{bo+576}")
        A("s_waitcnt lgkmcnt(0)")
        for mm_ in range(2):
            for j in range(2):
                A(f"ds_read_b64_tr_b16 {vr(PT[blk&1]+4*mm_+2*j,2)}, v10 offset:{bo+(16*mm_+8*j)*16}")
        prev = blk
    A("s_waitcnt lgkmcnt(0)")
    kvmm(prev)
    A("v_lshlrev_b32 v11, 4, v1")
    A(f"v_add_u32 v12, s{ST}, v11")
    A(f"s_xor_b32 s{ST+1}, s{S_WAVE}, 2")
    A(f"s_lshl_b32 s{ST+1}, s{ST+1}, 13")
    A(f"s_add_u32 s{ST+1}, s{ST+1}, {SCR:#x}")
    A(f"v_add_u32 v13, s{ST+1}, v11")
    KEEP, SEND = PK, PK + 16
    for hh in range(2):
        for u in range(8):
            A(f"v_cndmask_b32_e64 v{KEEP+8*hh+u}, v{KV+16*hh+u}, v{KV+16*hh+8+u}, s[{S_MRH}:{S_MRH+1}]")
            A(f"v_cndmask_b32_e64 v{SEND+8*hh+u}, v{KV+16*hh+8+u}, v{KV+16*hh+u}, s[{S_MRH}:{S_MRH+1}]")
    for u in range(4):
        A(f"ds_write_b128 v12, {vr(SEND+4*u,4)} offset:{u*1024}")
    A(f"s_lshl_b32 s{ST+2}, s{S_CG}, 4")
    A(f"s_lshl_b32 s{ST+3}, s{S_CH}, 3")
    A(f"s_add_u32 s{ST+2}, s{ST+2}, s{ST+3}")
    A(f"s_lshl_b32 s{ST+3}, s{S_RH}, 1")
    A(f"s_add_u32 s{ST+2}, s{ST+2}, s{ST+3}")
    A(f"s_lshl_b32 s{ST+2}, s{ST+2}, 4")
    A(f"s_add_u32 s{ST+2}, s{ST+2}, s{S_CHUNK}")
    A(f"s_mul_i32 s{ST+2}, s{ST+2}, 640")
    A(f"s_add_u32 s{ST+2}, s{ST+2}, {WS_P1:#x}")
    A("v_and_b32 v11, 15, v1")
    A("v_cmp_eq_u32 vcc, 0, v11")
    A("v_lshl_add_u32 v11, v11, 1, v6")
    A("v_lshlrev_b32 v11, 4, v11")
    A("v_lshlrev_b32 v12, 4, v6")
    A("v_add_u32 v12, 512, v12")
    A(f"v_mov_b32 v15, {OOB:#x}")
    A("v_cndmask_b32 v12, v15, v12, vcc")
    A(f"v_cndmask_b32_e64 v{T0+4}, v11, v12, s[{S_M16}:{S_M16+1}]")
    A(f"v_cndmask_b32_e64 v{T0+5}, v12, v11, s[{S_M16}:{S_M16+1}]")
    A(f"s_and_b32 s{ST+11}, s{S_TAG}, 0xff")
    A(f"s_mov_b32 s{ST+12}, 0xffffff00")
    A(f"v_mov_b32 v8, s{ST+11}")
    A("s_waitcnt lgkmcnt(0)")
    A("s_barrier")
    for u in range(4):
        A(f"ds_read_b128 {vr(SEND+4*u,4)}, v13 offset:{u*1024}")
    A("s_waitcnt lgkmcnt(0)")
    for u in range(8):
        A(f"v_pk_add_f32 {vr(KEEP+2*u,2)}, {vr(KEEP+2*u,2)}, {vr(SEND+2*u,2)}")
    for hh in range(2):
        for jj in range(2):
            r = KEEP + 8 * hh + 4 * jj
            for e in range(4):
                A(f"v_and_or_b32 v{r+e}, v{r+e}, s{ST+12}, v8")
            A(f"s_add_u32 s{ST+3}, s{ST+2}, {(hh*4+jj)*16*640}")
            A(f"buffer_store_dwordx4 {vr(r,4)}, v{T0+4+hh}, s[{SWS}:{SWS+3}], s{ST+3} offen sc1")
    stamp(6)
    QACC = KACC
    def qaddr(n):
        i, ks = n >> 2, n & 3
        return QSLOT[i >> 2] * SLOT + (i & 3) * 8192 + ks * 2048
    A.wait_vm(tok[("q", 1)])
    A("s_barrier")
    trfrag(V_WF, qaddr(0))
    pend = [lambda: o_issue(0), None, lambda: o_issue(1), None, None, None, lambda: o_issue(2), None, lambda: o_issue(3)]
    for n in range(32):
        if n == 31:
            A("s_waitcnt lgkmcnt(0)")
        elif n == 15:
            A.wait_both(tok[("q", 3)], A.lg)
            A("s_barrier")
            trfrag(V_WF + ((n + 1) & 1) * 4, qaddr(n + 1))
        else:
            t = A.lg
            trfrag(V_WF + ((n + 1) & 1) * 4, qaddr(n + 1))
            A.wait_lg(t)
        for m in range(2):
            d = vr(QACC + 16 * m, 16)
            mfma(d, vr(V_WF + (n & 1) * 4, 4), ar(n * 8 + m * 4, 4), d if n else "0")
            if m == 0 and n >= 16 and pend:
                f = pend.pop(0)
                if f: f()
    assert not pend
    stamp(7)
    GD = VACC
    A(f"s_lshl_b32 s{ST+2}, s{S_CG}, 4")
    A(f"s_add_u32 s{ST+2}, s{ST+2}, s{S_CHUNK}")
    A(f"s_mul_i32 s{ST+4}, s{ST+2}, 640")
    A(f"s_add_u32 s{ST+4}, s{ST+4}, {WS_P2:#x}")
    A(f"s_mul_i32 s{ST+2}, s{ST+2}, {16*640}")
    A(f"s_add_u32 s{ST+2}, s{ST+2}, {WS_P1:#x}")
    A(f"s_add_u32 s{ST+3}, s{ST+2}, {6*640}")
    A(f"s_add_u32 s{ST+5}, s{ST+2}, {12*640}")
    A(f"s_mul_i32 s{ST+6}, s{S_WAVE}, 136")
    A(f"v_lshl_add_u32 v11, v1, 2, s{ST+6}")
    A("v_cmp_gt_u32 vcc, 34, v1")
    A("v_cndmask_b32 v11, v15, v11, vcc")
    A("v_cndmask_b32 v12, 0, v8, vcc")
    feat(QACC)
    def loads():
        for s in range(16):
            A(f"buffer_load_dword v{GD+s}, v11, s[{SWS}:{SWS+3}], s{(ST+2, ST+3, ST+5)[s//6]} offen offset:{(s%6)*640} sc1")
    def check():
        A(f"v_xor_b32 v13, v{GD}, v12")
        for s in range(1, 16):
            A(f"v_xor_b32 v{T0+6}, v{GD+s}, v12")
            A(f"v_or_b32 v13, v13, v{T0+6}")
        A("v_and_b32 v13, 0xff, v13")
        A(f"v_cmp_ne_u32 s[{S_FAIL}:{S_FAIL+1}], 0, v13")
    poll(loads, check)
    for st in (8, 4, 2):
        for u in range(0, st, 2):
            A(f"v_pk_add_f32 {vr(GD+u,2)}, {vr(GD+u,2)}, {vr(GD+st+u,2)}")
    A(f"v_add_f32 v{GD}, v{GD}, v{GD+1}")
    A(f"v_and_or_b32 v{GD}, v{GD}, s{ST+12}, v8")
    A(f"buffer_store_dword v{GD}, v11, s[{SWS}:{SWS+3}], s{ST+4} offen sc1")
    stamp(8)
    A("s_barrier")
    PHQ = KV
    def wo_read(lo, hi):
        for n in range(lo, hi):
            i, ks = n >> 2, n & 3
            trfrag(n * 4, OSLOT[i >> 2] * SLOT + (i & 3) * 8192 + ks * 2048, "a")
    for blk in range(4):
        wo_read(blk * 8, blk * 8 + 6)
        softmax(PK + blk * 16, PHQ + 8 * blk)
        wo_read(blk * 8 + 6, blk * 8 + 8)
        if blk < 3: A("s_waitcnt lgkmcnt(0)")
    stamp(9)
    A("v_bfe_u32 v11, v5, 2, 1")
    A("v_lshlrev_b32 v11, 3, v11")
    A("v_bfe_u32 v12, v5, 3, 1")
    A("v_lshl_add_u32 v11, v12, 2, v11")
    A("v_and_b32 v12, 3, v5")
    A("v_add_u32 v11, v11, v12")
    A(f"v_cndmask_b32_e64 v11, v11, 16, s[{S_M16}:{S_M16+1}]")
    A("v_lshlrev_b32 v11, 5, v11")
    A("v_mul_u32_u24 v12, 1280, v6")
    A("v_add_u32 v11, v11, v12")
    A(f"s_lshl_b32 s{ST+2}, s{S_CG}, 4")
    A(f"s_lshl_b32 s{ST+3}, s{S_CH}, 3")
    A(f"s_add_u32 s{ST+2}, s{ST+2}, s{ST+3}")
    A(f"s_mul_i32 s{ST+2}, s{ST+2}, 640")
    A(f"s_add_u32 s{ST+2}, s{ST+2}, {WS_P2:#x}")
    FD = PK
    def loads2():
        for hh in range(2):
            for jp in range(2):
                r = FD + (hh * 2 + jp) * 8
                off = (hh * 4 + jp) * 640
                A(f"buffer_load_dwordx4 {vr(r,4)}, v11, s[{SWS}:{SWS+3}], s{ST+2} offen offset:{off} sc1")
                A(f"buffer_load_dwordx4 {vr(r+4,4)}, v11, s[{SWS}:{SWS+3}], s{ST+2} offen offset:{off+16} sc1")
    def check2():
        A(f"v_xor_b32 v13, v{FD}, v8")
        for s in range(1, 32):
            A(f"v_xor_b32 v{T0+6}, v{FD+s}, v8")
            A(f"v_or_b32 v13, v13, v{T0+6}")
        A("v_and_b32 v13, 0xff, v13")
        A(f"v_cmp_ne_u32 s[{S_FAIL}:{S_FAIL+1}], 0, v13")
    poll(loads2, check2)
    stamp(10)
    KVF = VACC
    for q in range(4):
        for u in range(4):
            A(f"v_cvt_pk_bf16_f32 v{KVF+4*q+u}, v{FD+8*q+2*u}, v{FD+8*q+2*u+1}")
    OD = PK
    for blk in range(4):
        hh = blk & 1
        d = vr(OD + 16 * blk, 16)
        for jp in range(2):
            mfma(d, vr(KVF + (hh * 2 + jp) * 4, 4), vr(PHQ + 8 * blk + 4 * jp, 4), d if jp else "0")
    A(f"s_lshl_b32 s{ST}, s{S_CHUNK}, 17")
    A(f"s_lshl_b32 s{ST+1}, s{S_CG}, 14")
    A(f"s_add_u32 s{ST}, s{ST}, s{ST+1}")
    A(f"s_lshl_b32 s{ST+1}, s{S_RH}, 13")
    A(f"s_add_u32 s{ST}, s{ST}, s{ST+1}")
    A(f"s_lshl_b32 s{ST+1}, s{S_CH}, 11")
    A(f"s_add_u32 s{ST}, s{ST}, s{ST+1}")
    A(f"s_add_u32 s{ST}, s{ST}, {WS_O:#x}")
    A(f"s_add_u32 s{ST+1}, s{ST}, 4096")
    A("v_lshlrev_b32 v9, 4, v1")
    for blk in range(4):
        m, hh = blk >> 1, blk & 1
        o = OD + 16 * blk
        A(f"v_add_f32 v{o+8}, 0x358637bd, v{o+8}")
        A(f"v_rcp_f32 v{o+8}, v{o+8}")
        for u in range(4):
            A(f"v_pk_mul_f32 {vr(o+2*u,2)}, {vr(o+2*u,2)}, {vr(o+8,2)} op_sel_hi:[1,0]")
        for u in range(4):
            A(f"v_cvt_pk_bf16_f32 v{o+12+u}, v{o+2*u}, v{o+2*u+1}")
        A(f"buffer_store_dwordx4 {vr(o+12,4)}, v9, s[{SWS}:{SWS+3}], s{ST+m} offen offset:{hh*1024} sc1")
    loads, check = handoff_flag_and_poll("B")
    A("s_waitcnt lgkmcnt(0)")
    A("s_barrier")
    stamp(11)
    poll(loads, check)
    stamp(12)
    tag_update("B")
    A(f"s_lshl_b32 s{ST+4}, s{S_CHUNK}, 17")
    A(f"s_add_u32 s{ST+4}, s{ST+4}, s{S_M0W}")
    A(f"s_add_u32 s{ST+4}, s{ST+4}, {WS_O:#x}")
    for i in range(8):
        rot_soff(ST + 8, i, shift=14)
        A(f"s_add_u32 s{ST+8}, s{ST+8}, s{ST+4}")
        A(f"s_add_u32 m0, s{S_M0W}, {i*16384:#x}")
        for p in range(4):
            A(f"buffer_load_dwordx4 v9, s[{SWS}:{SWS+3}], s{ST+8} offen offset:{p*1024} sc1 lds")
        tok[("of", i)] = A.vm
    A(f"s_lshl_b32 s{ST+5}, s{S_RH}, 13")
    A(f"v_add_u32 v{V_AX}, s{ST+5}, v9")
    A(f"v_add_u32 v{V_AX+1}, 0x10000, v{V_AX}")
    OF = V_WF
    OACC = KACC
    def rd4(n):
        i, ks = n >> 2, n & 3
        for m in range(2):
            A(f"ds_read_b128 {vr(OF+(n&1)*8+m*4,4)}, v{V_AX+(i>>2)} offset:{(i&3)*16384+m*4096+ks*1024}")
    A.wait_vm(tok[("of", 1)])
    A("s_barrier")
    stamp(13)
    rd4(0)
    for n in range(32):
        if n == 31:
            A("s_waitcnt lgkmcnt(0)")
        elif (n & 7) == 7:
            A.wait_both(tok[("of", (n >> 2) + 2)], A.lg)
            A("s_barrier")
            rd4(n + 1)
        else:
            t = A.lg
            rd4(n + 1)
            A.wait_lg(t)
        for m in range(2):
            d = vr(OACC + 16 * m, 16)
            mfma(d, vr(OF + (n & 1) * 8 + m * 4, 4), ar(n * 4, 4), d if n else "0")
    stamp(14)
    out_stores(OACC, 512)
    stamp(15)
    stamp_flush()

prologue()
vm0, lg0 = A.vm, A.lg
role_A()
A.label("L_roleB")
A.vm, A.lg = vm0, lg0
A.hist = []
role_B()
A.label("L_end")
A("s_endpgm")

HEAD = open("cdna_kernels/" + NAME + ".s.ref").read().split("; Override launch geometry")[0]
src = HEAD + f"""; @launch grid=(256,1,1) block=(256,1,1) lds=163840
.amdgcn_target "amdgcn-amd-amdhsa--gfx950"
.text
.globl {NAME}_kernel
.p2align 8
.type {NAME}_kernel,@function
{NAME}_kernel:
{A.text()}
.fill 4096, 4, 0xBF810000
.section .rodata,"a"
.p2align 6
.amdhsa_kernel {NAME}_kernel
  .amdhsa_next_free_vgpr 512
  .amdhsa_next_free_sgpr 102
  .amdhsa_accum_offset 256
  .amdhsa_group_segment_fixed_size 0
  .amdhsa_kernarg_size 128
  .amdhsa_user_sgpr_count 2
  .amdhsa_user_sgpr_kernarg_segment_ptr 1
  .amdhsa_system_sgpr_workgroup_id_x 1
.end_amdhsa_kernel
"""
open(sys.argv[1], "w").write(src)
print("nops inserted:", A.nnop, "lines:", len(A.out))
```

```python
import sys
from dsl import Asm, vr, ar, sr
from align import align

NAME = "concat_heads__ssm_conv_s5__linear_kernel_hedgehog__prompt"
OPT = dict(stamps=False, dist=2, rotmode=8, fast=1, align=1, xnt=0)
for a_ in sys.argv[2:]:
    k_, _, v_ = a_.partition("=")
    OPT[k_] = int(v_) if v_ else True

WS_TAGA, WS_TAGB = 0x0, 0x80
WS_XCC = 0x1000
WS_FLAG = 0x2000
WS_SA = 0x10000
WS_P1 = 0x100000
WS_P2 = 0x300000
WS_H = 0x400000
WS_O = 0x800000
WS_STAMP = 0xA00000
OOB = 0x40000000
SPIN_LIMIT = 1 << 14
LOG2E = 0x3FB8AA3B
INV2PI = 0x3E22F983

S_WAVE, S_CHUNK, S_CG, S_ROT, S_TAG = 3, 4, 5, 6, 7
SX, SW, SW2, SWS, SOUT = 8, 12, 16, 20, 24
S_RH, S_CH, S_SLOT, S_GRP = 28, 29, 30, 31
ST = 32
S_M0W, S_M0W2 = 48, 49
S_MG = 50
S_MRH = 52
S_L2E = 54
S_CNT = 56
S_FAIL = 58
S_M16 = 60
S_XW, S_SLOW = 62, 63
KA = 64
K_AX, K_LRE, K_LIM, K_BRE, K_BIM, K_CRE, K_CIM, K_LDT, K_DSK, K_BX, K_WQKV, K_WPHI, K_WO, K_OUT, K_DBG, K_WS = [KA + 2 * i for i in range(16)]
P_FLAGB, P_FLAGO, P_XCCB, P_TAGSEL, P_OUT, P_OUT2, P_ACTR, P_ACTR2 = range(64, 72)
P_ACTW, P_ACTW2, S_MF = 88, 89, 90
P0 = 72
S_STAMP = 96
V_LANE, V_OUTO, V_N, V_G, V_LIN, V_TAG, V_L0, V_FPO, V_XPO = 1, 2, 5, 6, 7, 8, 10, 12, 15
V_OX, V_OW = 16, 20
SLOT = 32768

A = Asm()
nlab = [0]

def srd(dst, ptr, nbytes):
    A(f"s_mov_b32 s{dst}, s{ptr}")
    A(f"s_mov_b32 s{dst+1}, s{ptr+1}")
    A(f"s_mov_b32 s{dst+2}, {nbytes:#x}")
    A(f"s_mov_b32 s{dst+3}, 0x20000")

def slin(dst, const, *terms):
    first = True
    for reg, mul in terms:
        t = dst if first else ST + 15
        if mul == 1:
            if first: A(f"s_mov_b32 s{dst}, s{reg}")
            else: t = reg
        elif mul & (mul - 1) == 0: A(f"s_lshl_b32 s{t}, s{reg}, {mul.bit_length()-1}")
        else: A(f"s_mul_i32 s{t}, s{reg}, {mul}")
        if not first: A(f"s_add_u32 s{dst}, s{dst}, s{t}")
        first = False
    if const: A(f"s_add_u32 s{dst}, s{dst}, {const:#x}")

def stamp(idx):
    if not OPT["stamps"]: return
    A(f"s_memtime s[{S_STAMP}:{S_STAMP+1}]")
    A("s_waitcnt lgkmcnt(0)")
    A(f"s_sub_u32 s{S_STAMP}, s{S_STAMP}, s98")
    A(f"v_writelane_b32 v255, s{S_STAMP}, {idx}")

def lab(n):
    nlab[0] += 1
    return f"L_{n}_{nlab[0]}"

def finish():
    if OPT.get("fixrt"):
        l = lab("rt")
        A.label(l)
        A("s_memrealtime s[96:97]")
        A("s_waitcnt lgkmcnt(0)")
        A("s_sub_u32 s96, s96, s100")
        A(f"s_cmp_lt_u32 s96, {OPT['fixrt']}")
        A(f"s_cbranch_scc1 {l}")
    if OPT["stamps"]:
        A("s_waitcnt vmcnt(0)")
        stamp(16)
        slin(ST, WS_STAMP, (2, 1024), (S_WAVE, 256))
        A(f"v_lshlrev_b32 v254, 2, v{V_LANE}")
        A(f"buffer_store_dword v255, v254, s[{SWS}:{SWS+3}], s{ST} offen")
    A("s_endpgm")

def mf(d, a, b, c):
    return f"v_mfma_f32_32x32x16_bf16 {d}, {a}, {b}, {c}"

def poll(loads, check):
    top, done = lab("poll"), lab("ok")
    A(f"s_mov_b32 s{S_CNT}, {SPIN_LIMIT}")
    A.label(top)
    loads()
    A("s_waitcnt vmcnt(0)")
    check()
    A(f"s_cmp_eq_u64 s[{S_FAIL}:{S_FAIL+1}], 0")
    A(f"s_cbranch_scc1 {done}")
    A(f"s_sub_u32 s{S_CNT}, s{S_CNT}, 1")
    A(f"s_cbranch_scc0 {top}")
    A.label(done)

def poll_pre(loads, check):
    top, done = lab("poll"), lab("ok")
    A(f"s_mov_b32 s{S_CNT}, {SPIN_LIMIT}")
    A.label(top)
    A("s_waitcnt vmcnt(0)")
    check()
    A(f"s_cmp_eq_u64 s[{S_FAIL}:{S_FAIL+1}], 0")
    A(f"s_cbranch_scc1 {done}")
    loads()
    A(f"s_sub_u32 s{S_CNT}, s{S_CNT}, 1")
    A(f"s_cbranch_scc0 {top}")
    A("s_waitcnt vmcnt(0)")
    A.label(done)

def cfma_l(d, a, b, c, t):
    return [f"v_pk_fma_f32 {vr(t,2)}, {vr(a,2)}, {vr(b,2)}, {vr(c,2)} op_sel:[1,1,0] op_sel_hi:[1,0,1] neg_lo:[1,0,0]",
            f"v_pk_fma_f32 {vr(d,2)}, {vr(a,2)}, {vr(b,2)}, {vr(t,2)} op_sel:[0,0,0] op_sel_hi:[0,1,1]"]
def cmul_l(d, a, b, t):
    return [f"v_pk_mul_f32 {vr(t,2)}, {vr(a,2)}, {vr(b,2)} op_sel:[1,1] op_sel_hi:[1,0] neg_lo:[1,0]",
            f"v_pk_fma_f32 {vr(d,2)}, {vr(a,2)}, {vr(b,2)}, {vr(t,2)} op_sel:[0,0,0] op_sel_hi:[0,1,1]"]
def emit(l):
    for x in l: A(x)
def cfma(*a): emit(cfma_l(*a))
def cmul(*a): emit(cmul_l(*a))

def weave(main, fillers, every, start=0):
    for i, x in enumerate(main):
        A(x)
        if i >= start and (i - start) % every == every - 1 and fillers:
            f = fillers.pop(0)
            if isinstance(f, str): A(f)
            elif f: f()

def gemm_loop(nsteps, reads, mfmas, boundary, split, fill_gaps, fillers, on_step=None, end_barrier=False, first_reads=True):
    if first_reads:
        for r in reads(0): A(r)
    for n in range(nsteps):
        if on_step: on_step(n)
        last = n == nsteps - 1
        b = None if last else boundary(n + 1)
        if b is not None: A.wait_both(b, A.lg)
        else: A("s_waitcnt lgkmcnt(0)")
        rs = [] if last else list(reads(n + 1))
        ms = mfmas(n)
        for g in range(4):
            A(ms[g])
            if g == 0 and (b is not None or (last and end_barrier)): A("s_barrier")
            for _ in range(split[g]):
                if rs: A(rs.pop(0))
            if g in (fill_gaps(n) if callable(fill_gaps) else fill_gaps) and fillers:
                f = fillers.pop(0)
                if isinstance(f, str): A(f)
                elif f: f()
        assert not rs

def dma_pieces(voff, srdreg, soff, ldsoff, pre=None, post=None, flags="", m0reg=S_M0W, same_v=False):
    def mk(p):
        def f():
            if p == 0:
                A(f"s_add_u32 m0, s{m0reg}, {ldsoff:#x}")
                if pre: pre()
            A(f"buffer_load_dwordx4 v{voff if same_v else voff+p}, s[{srdreg}:{srdreg+3}], s{soff} offen offset:{p*1024} {flags}lds")
            if p == 3 and post: post()
        return f
    return [mk(p) for p in range(4)]

def run(fs):
    for f in fs:
        if isinstance(f, str): A(f)
        else: f()

def rot_soff(dst, add, shift=None, mul=None, extra_sreg=None, plus=None):
    A(f"s_add_u32 s{dst}, s{S_ROT}, {add}")
    if extra_sreg is not None: A(f"s_add_u32 s{dst}, s{dst}, s{extra_sreg}")
    A(f"s_and_b32 s{dst}, s{dst}, 7")
    if shift is not None: A(f"s_lshl_b32 s{dst}, s{dst}, {shift}")
    else: A(f"s_mul_i32 s{dst}, s{dst}, {mul}")
    if plus is not None: A(f"s_add_u32 s{dst}, s{dst}, s{plus}")

def prologue():
    if OPT["stamps"]: A("s_memtime s[98:99]")
    if OPT.get("fixrt"): A("s_memrealtime s[100:101]")
    A("s_cmp_ge_u32 s2, 256")
    A("s_cbranch_scc1 L_end")
    A(f"s_load_dwordx16 s[{KA}:{KA+15}], s[0:1], 0")
    A(f"s_load_dwordx16 s[{KA+16}:{KA+31}], s[0:1], 64")
    A("v_and_b32 v1, 63, v0")
    A("v_lshrrev_b32 v2, 6, v0")
    A(f"s_lshr_b32 s{S_SLOT}, s2, 3")
    A(f"v_readfirstlane_b32 s{S_WAVE}, v2")
    A(f"s_and_b32 s{ST}, s2, 3")
    A(f"s_lshl_b32 s{S_CHUNK}, s{ST}, 2")
    A(f"s_lshr_b32 s{ST+1}, s{S_SLOT}, 3")
    A(f"s_add_u32 s{S_CHUNK}, s{S_CHUNK}, s{ST+1}")
    A(f"s_and_b32 s{S_CG}, s{S_SLOT}, 7")
    if OPT["rotmode"] == 8:
        A(f"s_lshl_b32 s{S_ROT}, s{ST+1}, 1")
        A(f"s_add_u32 s{S_ROT}, s{S_ROT}, s{S_CG}")
        A(f"s_and_b32 s{S_ROT}, s{S_ROT}, 7")
    elif OPT["rotmode"] == 2:
        A(f"s_add_u32 s{S_ROT}, s{S_CG}, s{ST+1}")
        A(f"s_and_b32 s{S_ROT}, s{S_ROT}, 1")
        A(f"s_lshl_b32 s{S_ROT}, s{S_ROT}, 2")
    elif OPT["rotmode"] == 4:
        A(f"s_add_u32 s{S_ROT}, s{S_CG}, s{ST+1}")
        A(f"s_and_b32 s{S_ROT}, s{S_ROT}, 3")
        A(f"s_lshl_b32 s{S_ROT}, s{S_ROT}, 1")
    A(f"s_lshr_b32 s{S_RH}, s{S_WAVE}, 1")
    A(f"s_and_b32 s{S_CH}, s{S_WAVE}, 1")
    A(f"s_lshl_b32 s{S_M0W}, s{S_WAVE}, 12")
    slin(ST + 2, 0, (S_SLOT, 512), (S_WAVE, 128))
    A(f"v_mov_b32 v7, s{ST+2}")
    A("v_lshrrev_b32 v3, 3, v1")
    A("v_and_b32 v4, 7, v1")
    A(f"v_and_b32 v{V_N}, 31, v1")
    A(f"v_lshrrev_b32 v{V_G}, 5, v1")
    if OPT["stamps"]: A("v_mov_b32 v255, 0")
    A("s_bitcmp1_b32 s2, 2")
    A("s_cbranch_scc1 L_roleB")

def code_prefetch():
    A(f"s_getpc_b64 s[{ST+4}:{ST+5}]")
    A(f"global_load_dword v254, v7, s[{ST+4}:{ST+5}]")

def common_setup(role):
    srd(SWS, K_WS, 0x10000000)
    srd(SOUT, K_OUT, 0x800000)
    A(f"s_lshl_b32 s{S_M0W2}, s{S_WAVE}, 13")
    A(f"s_mov_b32 s{S_MG}, 0")
    A(f"s_mov_b32 s{S_MG+1}, -1")
    A(f"s_sub_u32 s{S_MRH}, 0, s{S_RH}")
    A(f"s_mov_b32 s{S_MRH+1}, s{S_MRH}")
    A(f"s_mov_b32 s{S_L2E}, {LOG2E:#x}")
    A(f"s_mov_b32 s{S_L2E+1}, {LOG2E:#x}")
    A(f"s_mov_b32 s{S_M16}, 0xffff0000")
    A(f"s_mov_b32 s{S_M16+1}, 0xffff0000")
    A(f"s_add_u32 s{S_GRP}, s{S_CHUNK}, {0 if role == 'A' else 16}")
    slin(P_FLAGB, WS_FLAG, (S_GRP, 128))
    slin(P_FLAGO, 0, (S_CG, 16), (S_WAVE, 4), (P_FLAGB, 1))
    slin(P_XCCB, WS_XCC, (S_GRP, 128))
    A(f"s_and_b32 s{S_MF}, s{S_CG}, 1")
    slin(P_OUT, 0 if role == "A" else 2048, (S_CHUNK, 1 << 19), (S_RH, 1 << 18), (S_CG, 256), (S_CH, 128), (S_MF, 1 << 17))
    A(f"s_xor_b32 s{P_OUT2}, s{P_OUT}, {1 << 17:#x}")
    slin(P_TAGSEL, 0, (S_CHUNK, 256), (S_CG, 16), (S_WAVE, 1))
    A(f"v_lshlrev_b32 v{V_LIN}, 4, v{V_LANE}")
    A(f"v_mov_b32 v{V_L0}, {OOB:#x}")
    A(f"v_cmp_eq_u32 vcc, 0, v{V_LANE}")
    A(f"v_lshlrev_b32 v{V_FPO}, 2, v{V_N}")
    A(f"v_lshlrev_b32 v{V_XPO}, 2, v4")
    A(f"v_cndmask_b32_e64 v{V_L0}, v{V_L0}, 0, vcc")
    A(f"v_lshlrev_b32 v{V_OUTO}, 14, v{V_G}")
    A(f"v_lshl_add_u32 v{V_OUTO}, v{V_N}, 2, v{V_OUTO}")
    A(f"s_getreg_b32 s{S_XW}, hwreg(HW_REG_XCC_ID, 0, 4)")
    A("s_waitcnt lgkmcnt(0)")
    A(f"s_add_u32 s{S_TAG}, s{S_TAG}, 1")
    A(f"s_lshl_b32 s{ST}, s{S_TAG}, 4")
    A(f"s_or_b32 s{S_XW}, s{S_XW}, s{ST}")
    A(f"v_mov_b32 v9, s{S_XW}")
    slin(ST, 0, (S_CG, 4), (P_XCCB, 1))
    A(f"buffer_store_dword v9, v{V_L0}, s[{SWS}:{SWS+3}], s{ST} offen sc1")

def lds_b128_addrs(base_reg, wave_off_sreg, const, nsets):
    A(f"v_bfe_u32 v9, v{V_N}, 1, 3")
    A(f"v_xor_b32 v9, v9, v{V_G}")
    A("v_lshlrev_b32 v9, 4, v9")
    A(f"v_lshl_add_u32 v9, v{V_N}, 7, v9")
    A(f"v_add_u32 v9, s{wave_off_sreg}, v9")
    if const: A(f"v_add_u32 v9, {const:#x}, v9")
    for ks in range(4):
        A(f"v_xor_b32 v{base_reg+ks}, {32*ks}, v9")
    for st in range(1, nsets):
        for ks in range(4): A(f"v_add_u32 v{base_reg+4*st+ks}, {st*0x10000:#x}, v{base_reg+ks}")

def xcc_load(reg):
    A(f"buffer_load_dword v9, v{V_FPO}, s[{SWS}:{SWS+3}], s{P_FLAGB} offen sc1")
    A(f"buffer_load_dword v{reg}, v{V_XPO}, s[{SWS}:{SWS+3}], s{P_XCCB} offen sc1")
def xcc_decide(reg):
    if OPT["fast"]:
        A(f"v_cmp_ne_u32 vcc, 0, v{reg}")
        A(f"s_cmp_lg_u64 vcc, 0")
        A(f"s_cselect_b32 s{S_SLOW}, 1, 0")
    else:
        A(f"s_mov_b32 s{S_SLOW}, 1")

def two_ways(body):
    slow, join = lab("slow"), lab("join")
    A(f"s_cmp_lg_u32 s{S_SLOW}, 0")
    A(f"s_cbranch_scc1 {slow}")
    vm, lg, hist = A.vm, A.lg, list(A.hist)
    body("")
    A(f"s_branch {join}")
    return slow, join, (vm, lg, hist)

DEFER = []
def two_ways_inline_fast(body):
    slow, join = lab("slow"), lab("join")
    A(f"s_cmp_lg_u32 s{S_SLOW}, 0")
    A(f"s_cbranch_scc1 {slow}")
    hist = list(A.hist)
    body("")
    A.label(join)
    def later():
        A.label(slow)
        A.hist = list(hist)
        body(" sc1")
        A("s_nop 7")
        A(f"s_branch {join}")
    DEFER.append(later)

def flag_store(tok):
    A.wait_vm(tok)
    two_ways_inline_fast(lambda fl: A(f"buffer_store_dword v11, v{V_L0}, s[{SWS}:{SWS+3}], s{P_FLAGO} offen{fl}"))

def flag_poll(role):
    def loads():
        A(f"buffer_load_dword v13, v{V_FPO}, s[{SWS}:{SWS+3}], s{P_FLAGB} offen sc1")
    def check():
        A(f"v_cmp_ne_u32 s[{S_FAIL}:{S_FAIL+1}], s{S_TAG}, v13")
    poll(loads, check)

def tag_update(role):
    skip = lab("notag")
    A(f"s_cmp_eq_u32 s{P_TAGSEL}, {(15 if role == 'A' else 0) << 8}")
    A(f"s_cbranch_scc0 {skip}")
    A(f"buffer_store_dword v11, v{V_L0}, s[{SWS}:{SWS+3}], 0 offen offset:{WS_TAGA if role == 'A' else WS_TAGB} sc1")
    A.label(skip)

def out_stores(acc, ph):
    def mk(r):
        def f():
            row = 8 * (r >> 2) + (r & 3)
            A(f"s_add_u32 s{ST+1}, s{P_OUT+ph}, {row*4096}")
            A(f"buffer_store_dword v{acc+16*ph+r}, v{V_OUTO}, s[{SOUT}:{SOUT+3}], s{ST+1} offen sc1")
        return f
    return [mk(r) for r in range(16)]

XF = "nt " if OPT["xnt"] else ""
PLF = {0: "sc1 ", 1: "", 2: "sc0 ", 3: "nt "}[OPT.get("plf", 0)]

def role_A():
    V_AX, V_AW = 24, 32
    V_GO, V_SCW = 44, 3
    V_XF, V_WF = 48, 64
    URE, UIM = 80, 112
    ACC2 = 144
    HP = 176
    XS, DG, V_GE = 176, 192, 200
    V_PUB, V_XSO = 204, 205
    C_LAM, C_M1, C_M2, C_L, C_MQ, C_LQ, C_C2 = 208, 210, 212, 214, 216, 218, 220
    C_DSK = 222
    T0 = 224
    P_SAB, P_SAO, P_XS0, P_XS1 = P0, P0 + 1, P0 + 2, P0 + 3
    D = OPT["dist"]
    code_prefetch()
    A("v_lshrrev_b32 v9, 1, v3")
    A("v_xor_b32 v9, v9, v4")
    A("v_lshlrev_b32 v9, 4, v9")
    A("v_lshrrev_b32 v10, 2, v3")
    A("v_lshlrev_b32 v10, 5, v10")
    A("v_and_b32 v11, 1, v3")
    A("v_lshl_add_u32 v10, v11, 4, v10")
    A("v_bfe_u32 v11, v3, 1, 1")
    A("v_add_u32 v10, v10, v11")
    A("v_lshl_add_u32 v10, v10, 10, v9")
    slin(ST, 0, (S_CHUNK, 1 << 17), (S_RH, 1 << 16), (S_CH, 1 << 13))
    A(f"v_add_u32 v{V_OX}, s{ST}, v10")
    A(f"v_xor_b32 v11, 64, v{V_OX}")
    A(f"v_add_u32 v{V_OX+1}, 1024, v11")
    A(f"v_add_u32 v{V_OX+2}, 2048, v{V_OX}")
    A(f"v_add_u32 v{V_OX+3}, 3072, v11")
    A("v_lshl_add_u32 v10, v3, 10, v9")
    slin(ST, 0, (S_CG, 1 << 16), (S_CH, 1 << 15))
    A(f"v_add_u32 v{V_OW}, s{ST}, v10")
    A(f"v_xor_b32 v11, 64, v{V_OW}")
    A(f"v_add_u32 v{V_OW+1}, 7168, v11")
    A(f"v_add_u32 v{V_OW+2}, {2*7168}, v{V_OW}")
    A(f"v_add_u32 v{V_OW+3}, {3*7168}, v11")
    slin(ST, 0, (S_CG, 128), (S_CH, 64))
    A(f"v_lshl_add_u32 v14, v{V_N}, 1, s{ST}")
    A(f"s_cmp_eq_u32 s{S_RH}, 0")
    A("s_waitcnt lgkmcnt(0)")
    A(f"s_cselect_b32 s{SW}, s{K_BRE}, s{K_BIM}")
    A(f"s_cselect_b32 s{SW+1}, s{K_BRE+1}, s{K_BIM+1}")
    A(f"s_cselect_b32 s{SW2}, s{K_CRE}, s{K_CIM}")
    A(f"s_cselect_b32 s{SW2+1}, s{K_CRE+1}, s{K_CIM+1}")
    A(f"s_mov_b32 s{SW+2}, 0x80000")
    A(f"s_mov_b32 s{SW+3}, 0x20000")
    stamp(1)
    A(f"s_load_dword s{S_TAG}, s[{K_WS}:{K_WS+1}], {WS_TAGA}")
    srd(SX, K_AX, 0x200000)
    tok = {}
    def g1_pieces(i):
        slot = i & 3
        return (dma_pieces(V_OW, SW, ST + 8, slot * SLOT, pre=lambda: rot_soff(ST + 8, i, shift=7)) +
                dma_pieces(V_OX, SX, ST + 8, slot * SLOT + 16384, post=lambda: tok.__setitem__(i, A.vm), flags=XF))
    CSLOT = [4, 0, 1, 2]
    def c_pieces(st):
        return dma_pieces(V_OW, SW2, ST + 9, CSLOT[st >> 1] * SLOT + (st & 1) * 16384, pre=lambda: rot_soff(ST + 9, st, shift=7))
    A(f"global_load_ushort v{T0}, v14, s[{K_LRE}:{K_LRE+1}]")
    A(f"global_load_ushort v{T0+1}, v14, s[{K_LIM}:{K_LIM+1}]")
    A(f"global_load_ushort v{T0+2}, v14, s[{K_LDT}:{K_LDT+1}]")
    A(f"global_load_ushort v{C_DSK}, v14, s[{K_DSK}:{K_DSK+1}]")
    tok_small = A.vm
    run(g1_pieces(0))
    A(f"s_mov_b32 s{SW2+2}, 0x80000")
    A(f"s_mov_b32 s{SW2+3}, 0x20000")
    for i in range(1, D): run(g1_pieces(i))
    stamp(2)
    common_setup("A")
    slin(P_SAB, WS_SA, (S_CG, 1 << 14), (S_CH, 512))
    slin(P_SAO, 0, (S_CHUNK, 1024), (P_SAB, 1))
    slin(P_XS0, 0, (S_CHUNK, 1 << 17), (S_RH, 1 << 16), (S_CG, 128), (S_CH, 64), (S_MF, 32768))
    A(f"s_xor_b32 s{P_XS1}, s{P_XS0}, 32768")
    slin(P_ACTW, WS_H, (S_CHUNK, 1 << 18), (S_CG, 1 << 15), (S_WAVE, 4096))
    slin(P_ACTR, WS_H, (S_CHUNK, 1 << 18), (S_WAVE, 4096), (S_MF, 16384))
    A(f"s_xor_b32 s{P_ACTR2}, s{P_ACTR}, 16384")
    A(f"v_mov_b32 v{V_TAG}, s{S_TAG}")
    A(f"v_mov_b32 v11, s{S_TAG}")
    A(f"s_lshl_b32 s{ST}, s{S_RH}, 13")
    lds_b128_addrs(V_AX, ST, 16384, 2)
    A(f"s_lshl_b32 s{ST}, s{S_CH}, 12")
    lds_b128_addrs(V_AW, ST, 0, 3)
    A(f"v_lshlrev_b32 v{V_XSO}, 10, v{V_N}")
    A(f"v_lshl_add_u32 v{V_XSO}, v{V_G}, 5, v{V_XSO}")
    SCR = 3 * SLOT
    slin(ST, SCR, (S_CH, 256))
    A(f"v_lshl_add_u32 v4, v{V_N}, 3, s{ST}")
    A(f"s_lshl_b32 s{ST}, s{S_RH}, 10")
    A(f"v_lshl_add_u32 v3, v{V_G}, 9, v4")
    A(f"v_add_u32 v3, s{ST}, v3")
    A(f"v_lshlrev_b32 v13, 4, v{V_N}")
    A(f"v_mov_b32 v14, {OOB:#x}")
    A(f"s_or_b64 s[{ST+2}:{ST+3}], s[{S_MG}:{S_MG+1}], s[{S_MRH}:{S_MRH+1}]")
    A(f"v_cndmask_b32_e64 v{V_PUB}, v13, v14, s[{ST+2}:{ST+3}]")
    A(f"s_lshl_b32 s{ST+4}, s{S_RH}, 3")
    A(f"s_sub_u32 s{ST+4}, s{S_CHUNK}, s{ST+4}")
    A(f"s_sub_u32 s{ST+4}, s{ST+4}, 1")
    A(f"v_lshlrev_b32 v9, 2, v{V_G}")
    A(f"v_sub_u32 v9, s{ST+4}, v9")
    for i in range(4):
        A(f"v_subrev_u32 v{V_GO+i}, {i}, v9")
        A(f"v_cmp_gt_i32 vcc, 0, v{V_GO+i}")
        A(f"v_lshl_add_u32 v{V_GO+i}, v{V_GO+i}, 10, v13")
        A(f"v_cndmask_b32_e64 v{V_GE+i}, v{V_TAG}, 0, vcc")
        A(f"v_cndmask_b32 v{V_GO+i}, v{V_GO+i}, v14, vcc")
    A.wait_vm(tok_small)
    lre, lim, ldt = T0, T0 + 1, T0 + 2
    A(f"v_and_b32 v9, 1, v{V_N}")
    A("v_lshlrev_b32 v9, 4, v9")
    A(f"v_lshlrev_b32 v{C_DSK}, v9, v{C_DSK}")
    A(f"v_lshrrev_b32 v9, 1, v{V_N}")
    A(f"v_lshlrev_b32 v13, 3, v{V_G}")
    A("v_sub_u32 v9, v9, v13")
    for q in range(8):
        A(f"v_cmp_eq_u32 vcc, {q}, v9")
        A(f"v_cndmask_b32_e64 v{DG+q}, 0, v{C_DSK}, vcc")
    for r in (lre, lim, ldt): A(f"v_lshlrev_b32 v{r}, 16, v{r}")
    A(f"v_mul_f32 v{ldt}, s{S_L2E}, v{ldt}")
    A(f"v_exp_f32 v{ldt}, v{ldt}")
    A(f"v_cvt_pk_bf16_f32 v{ldt}, v{ldt}, v{ldt}")
    A(f"v_lshlrev_b32 v{ldt}, 16, v{ldt}")
    A(f"v_mul_f32 v{T0+4}, v{ldt}, v{lre}")
    A(f"v_mul_f32 v{T0+5}, v{ldt}, v{lim}")
    A(f"v_mul_f32 v{T0+4}, s{S_L2E}, v{T0+4}")
    A(f"v_exp_f32 v{T0+4}, v{T0+4}")
    A(f"v_mul_f32 v{T0+5}, {INV2PI:#x}, v{T0+5}")
    A(f"v_rndne_f32 v{T0+6}, v{T0+5}")
    A(f"v_sub_f32 v{T0+5}, v{T0+5}, v{T0+6}")
    A(f"v_cos_f32 v{T0+6}, v{T0+5}")
    A(f"v_sin_f32 v{T0+7}, v{T0+5}")
    A(f"v_mul_f32 v{C_LAM}, v{T0+4}, v{T0+6}")
    A(f"v_mul_f32 v{C_LAM+1}, v{T0+4}, v{T0+7}")
    A(f"v_add_f32 v{T0+4}, -1.0, v{C_LAM}")
    A(f"v_mul_f32 v{T0+5}, v{lre}, v{lre}")
    A(f"v_fmac_f32 v{T0+5}, v{lim}, v{lim}")
    A(f"v_rcp_f32 v{T0+5}, v{T0+5}")
    A(f"v_mul_f32 v{T0+6}, v{T0+4}, v{lre}")
    A(f"v_fmac_f32 v{T0+6}, v{C_LAM+1}, v{lim}")
    A(f"v_mul_f32 v{T0+7}, v{C_LAM+1}, v{lre}")
    A(f"v_fma_f32 v{T0+7}, -v{T0+4}, v{lim}, v{T0+7}")
    A(f"v_add_f32 v{T0+5}, v{T0+5}, v{T0+5}")
    A(f"v_mul_f32 v{C_C2}, v{T0+6}, v{T0+5}")
    A(f"v_mul_f32 v{C_C2+1}, v{T0+7}, v{T0+5}")
    pa, pb, tt = T0 + 8, T0 + 10, T0 + 12
    cmul(pa, C_LAM, C_LAM, tt)
    cmul(pb, pa, pa, tt)
    cmul(pa, pb, pb, tt)
    cmul(C_M1, pa, pa, tt)
    cmul(C_M2, C_M1, C_M1, tt)
    cmul(pa, C_M2, C_M2, tt)
    cmul(C_L, pa, pa, tt)
    def sel_pair(dst, src, mask):
        A(f"v_cndmask_b32_e64 v{dst}, 1.0, v{src}, s[{mask}:{mask+1}]")
        A(f"v_cndmask_b32_e64 v{dst+1}, 0, v{src+1}, s[{mask}:{mask+1}]")
    sel_pair(T0 + 14, C_M2, S_MG)
    sel_pair(T0 + 16, pa, S_MRH)
    cmul(C_MQ, T0 + 14, T0 + 16, tt)
    cmul(pa, C_L, C_L, tt)
    cmul(pb, pa, pa, tt)
    cmul(pa, pb, pb, tt)
    sel_pair(T0 + 14, pb, S_MG)
    sel_pair(T0 + 16, pa, S_MRH)
    cmul(C_LQ, T0 + 14, T0 + 16, tt)
    stamp(3)
    def rd(n):
        i, ks = n >> 2, n & 3
        slot, buf = i & 3, n & 1
        s2_, off = slot >> 1, (slot & 1) * SLOT
        x = [f"ds_read_b128 {vr(V_XF+buf*8+m*4,4)}, v{V_AX+4*s2_+ks} offset:{off+m*4096}" for m in range(2)]
        w = [f"ds_read_b128 {vr(V_WF+buf*8+ri*4,4)}, v{V_AW+4*s2_+ks} offset:{off+ri*8192}" for ri in range(2)]
        return [x[0], w[0], w[1], x[1]]
    def mm(n):
        buf = n & 1
        r = []
        for m, ri in ((0, 0), (0, 1), (1, 1), (1, 0)):
            d = vr((URE, UIM)[ri] + 16 * m, 16)
            r.append(mf(d, vr(V_XF + buf * 8 + m * 4, 4), vr(V_WF + buf * 8 + ri * 4, 4), d if n else "0"))
        return r
    fill = []
    def xs_load(m, s):
        return lambda: A(f"buffer_load_dwordx4 {vr(XS+8*m+4*s,4)}, v{V_XSO}, s[{SX}:{SX+3}], s{P_XS0+m} offen offset:{16*s}")
    def on_step(n):
        i, ks = n >> 2, n & 3
        if ks == 0:
            if i + D < 8: fill.extend(g1_pieces(i + D))
            elif i + D == 8:
                fill.extend([xs_load(m, s) for m in range(2) for s in range(2)])
                if not OPT.get("clate"): fill.extend(c_pieces(0) + c_pieces(1))
    A.wait_vm(tok[0])
    A("s_barrier")
    stamp(4)
    gemm_loop(32, rd, mm, lambda n: tok[n >> 2] if (n & 3) == 0 else None, (2, 2, 0, 0), (2, 3), fill, on_step, end_barrier=True)
    assert not fill
    stamp(5)
    P = [T0, T0 + 4]
    def lam_bc(hi): return f"op_sel:[{hi},0,0] op_sel_hi:[{hi},1,1]"
    NEG = "neg_lo:[1,0,0] neg_hi:[1,0,0]"
    cur_re, cur_im = URE, UIM
    for s in range(1, 16):
        d = P[s & 1]
        A(f"v_pk_fma_f32 {vr(d,2)}, {vr(C_LAM,2)}, {vr(cur_im,2)}, {vr(URE+2*s,2)} {lam_bc(1)} {NEG}")
        A(f"v_pk_fma_f32 {vr(d+2,2)}, {vr(C_LAM,2)}, {vr(cur_re,2)}, {vr(UIM+2*s,2)} {lam_bc(1)}")
        A(f"v_pk_fma_f32 {vr(d,2)}, {vr(C_LAM,2)}, {vr(cur_re,2)}, {vr(d,2)} {lam_bc(0)}")
        A(f"v_pk_fma_f32 {vr(d+2,2)}, {vr(C_LAM,2)}, {vr(cur_im,2)}, {vr(d+2,2)} {lam_bc(0)}")
        cur_re, cur_im = d, d + 2
    A0, BQ = T0 + 8, T0 + 10
    A(f"v_fma_f32 v{BQ}, v{C_M1}, v{cur_re}, v{cur_re+1}")
    A(f"v_fma_f32 v{BQ+1}, v{C_M1}, v{cur_im}, v{cur_im+1}")
    A(f"v_fma_f32 v{BQ}, -v{C_M1+1}, v{cur_im}, v{BQ}")
    A(f"v_fma_f32 v{BQ+1}, v{C_M1+1}, v{cur_re}, v{BQ+1}")
    A(f"ds_write_b64 v3, {vr(BQ,2)}")
    A(f"v_mov_b32 v{A0}, v{cur_re}")
    A(f"v_mov_b32 v{A0+1}, v{cur_im}")
    P2, P3, SS, tt = T0 + 20, T0 + 22, T0 + 24, T0 + 28
    A(f"v_mov_b32 v{SS+1}, s{S_TAG}")
    A(f"v_mov_b32 v{SS+3}, s{S_TAG}")
    def c2_bc(hi, n=3):
        return f"op_sel:[{hi},0,0] op_sel_hi:[{hi},1,1]" if n == 3 else f"op_sel:[{hi},0] op_sel_hi:[{hi},1]"
    cm = []
    for s in range(16):
        re, im, t = URE + 2 * s, UIM + 2 * s, T0 + 2 + 2 * (s & 1)
        cm += [f"v_pk_mul_f32 {vr(t,2)}, {vr(C_C2,2)}, {vr(re,2)} {c2_bc(1,2)} neg_lo:[1,0] neg_hi:[1,0]",
               f"v_pk_mul_f32 {vr(re,2)}, {vr(C_C2,2)}, {vr(re,2)} {c2_bc(0,2)}",
               f"v_pk_fma_f32 {vr(re,2)}, {vr(C_C2,2)}, {vr(im,2)}, {vr(re,2)} {c2_bc(1)} {NEG}",
               f"v_pk_fma_f32 {vr(im,2)}, {vr(C_C2,2)}, {vr(im,2)}, {vr(t,2)} {c2_bc(0)} {NEG}"]
    emit(cm[:8])
    A("s_waitcnt lgkmcnt(0)")
    A("s_barrier")
    B0 = T0 + 12
    for q in range(4):
        A(f"ds_read_b64 {vr(B0+2*q,2)}, v4 offset:{q*512}")
    emit(cm[8:24])
    A("s_waitcnt lgkmcnt(0)")
    cfma(P2, C_M2, B0, B0 + 2, tt)
    cfma(P3, C_M2, P2, B0 + 4, tt)
    cfma(tt, C_M2, P3, B0 + 6, tt)
    A(f"v_mov_b32 v{SS}, v{tt}")
    A(f"v_mov_b32 v{SS+2}, v{tt+1}")
    A(f"buffer_store_dwordx4 {vr(SS,4)}, v{V_PUB}, s[{SWS}:{SWS+3}], s{P_SAO} offen sc1")
    stamp(6)
    emit(cm[24:])
    LOC = T0 + 0
    for e in range(2):
        A(f"v_cndmask_b32_e64 v{T0+2+e}, 0, v{B0+e}, s[{S_MG}:{S_MG+1}]")
        A(f"v_cndmask_b32_e64 v{T0+4+e}, v{P2+e}, v{P3+e}, s[{S_MG}:{S_MG+1}]")
        A(f"v_cndmask_b32_e64 v{LOC+e}, v{T0+2+e}, v{T0+4+e}, s[{S_MRH}:{S_MRH+1}]")
    E0, F0, E1, F1 = T0 + 12, T0 + 14, T0 + 16, T0 + 18
    cfma(P2, C_M1, LOC, A0, tt)
    cmul(F1, C_C2, P2, tt)
    cmul(F0, C_C2, LOC, tt)
    cmul(E0, C_C2, C_MQ, tt)
    cmul(E1, E0, C_M1, tt)
    V_AH = V_AX
    A(f"v_bfe_u32 v9, v{V_LANE}, 4, 1")
    A(f"v_bfe_u32 v13, v{V_LANE}, 1, 1")
    A("v_lshl_add_u32 v9, v9, 1, v13")
    A(f"v_bfe_u32 v13, v{V_LANE}, 2, 2")
    A(f"v_lshl_add_u32 v13, v{V_G}, 3, v13")
    A("v_lshlrev_b32 v14, 2, v9")
    A("v_xor_b32 v13, v13, v14")
    A("v_lshlrev_b32 v13, 4, v13")
    A("v_lshl_add_u32 v13, v9, 9, v13")
    A(f"v_and_b32 v14, 1, v{V_LANE}")
    A("v_lshl_add_u32 v13, v14, 3, v13")
    A(f"s_lshl_b32 s{ST+2}, s{S_RH}, 13")
    A(f"v_add_u32 v{V_AH}, s{ST+2}, v13")
    A(f"v_xor_b32 v{V_AH+1}, 64, v{V_AH}")
    for st in (1, 2):
        A(f"v_add_u32 v{V_AH+2*st}, {st*0x10000:#x}, v{V_AH}")
        A(f"v_add_u32 v{V_AH+2*st+1}, {st*0x10000:#x}, v{V_AH+1}")
    stamp(7)
    GD = 48
    def loads():
        for i in range(4):
            A(f"buffer_load_dwordx4 {vr(GD+4*i,4)}, v{V_GO+i}, s[{SWS}:{SWS+3}], s{P_SAB} offen sc1")
        xcc_load(14)
    def check():
        A(f"v_xor_b32 v14, s{S_XW}, v14")
        A(f"v_lshrrev_b32 v13, 4, v14")
        for i in range(4):
            A(f"v_xor_b32 v{GD+4*i+1}, v{GD+4*i+1}, v{V_GE+i}")
            A(f"v_xor_b32 v{GD+4*i+3}, v{GD+4*i+3}, v{V_GE+i}")
            A(f"v_or3_b32 v13, v13, v{GD+4*i+1}, v{GD+4*i+3}")
        A(f"v_cmp_ne_u32 s[{S_FAIL}:{S_FAIL+1}], 0, v13")
    poll(loads, check)
    stamp(8)
    for i in range(4):
        A(f"v_mov_b32 v{GD+4*i+1}, v{GD+4*i+2}")
    h1, h2 = T0 + 20, T0 + 22
    cfma(h1, C_L, GD + 12, GD + 8, tt)
    cfma(h2, C_L, h1, GD + 4, tt)
    cfma(h1, C_L, h2, GD + 0, tt)
    cmul(h2, C_LQ, h1, tt)
    A(f"ds_write_b64 v3, {vr(h2,2)} offset:2048")
    for m in range(2):
        d = vr(ACC2 + 16 * m, 16)
        for s in range(2):
            A(mf(d, vr(XS + 8 * m + 4 * s, 4), vr(DG + 4 * s, 4), d if s else "0"))
    CL = bool(OPT.get("clate"))
    cfill = []
    for st in range(0 if CL else 2, 8): cfill += c_pieces(st)
    run(cfill[:4]); cfill = cfill[4:]
    xcc_decide(14)
    A(f"v_lshlrev_b32 v9, 14, v{V_G}")
    A(f"v_lshl_add_u32 v{V_GO}, v{V_N}, 4, v9")
    for o in range(1, 4):
        A(f"v_xor_b32 v{V_GO+o}, {o*64}, v{V_GO}")
    A("s_waitcnt lgkmcnt(0)")
    A("s_barrier")
    CQ = GD
    for q in range(4):
        A(f"ds_read_b64 {vr(CQ+2*q,2)}, v4 offset:{2048+q*512}")
    tq = A.lg
    def c_reads(st):
        slot = CSLOT[st >> 1]
        s2_, off = slot >> 1, (slot & 1) * SLOT + (st & 1) * 16384
        r = [None] * 8
        for ks in range(4):
            for ri in range(2):
                kap = (ks >> 1) * 4 + ri * 2 + (ks & 1)
                r[kap] = f"ds_read_b128 {ar((st*8+kap)*4,4)}, v{V_AW+4*s2_+ks} offset:{off+ri*8192}"
        return r
    run(cfill[:4]); cfill = cfill[4:]
    A.wait_lg(tq)
    A(f"v_pk_add_f32 {vr(CQ,2)}, {vr(CQ,2)}, {vr(CQ+2,2)}")
    A(f"v_pk_add_f32 {vr(CQ+4,2)}, {vr(CQ+4,2)}, {vr(CQ+6,2)}")
    A(f"v_pk_add_f32 {vr(CQ,2)}, {vr(CQ,2)}, {vr(CQ+4,2)}")
    HR, HI = T0 + 20, T0 + 22
    A(f"v_fma_f32 v{HR}, v{E0}, v{CQ}, v{F0}")
    A(f"v_fma_f32 v{HR+1}, v{E1}, v{CQ}, v{F1}")
    A(f"v_fma_f32 v{HI}, -v{E0}, v{CQ+1}, -v{F0+1}")
    A(f"v_fma_f32 v{HI+1}, -v{E1}, v{CQ+1}, -v{F1+1}")
    A(f"v_fma_f32 v{HR}, -v{E0+1}, v{CQ+1}, v{HR}")
    A(f"v_fma_f32 v{HR+1}, -v{E1+1}, v{CQ+1}, v{HR+1}")
    A(f"v_fma_f32 v{HI}, -v{E0+1}, v{CQ}, v{HI}")
    A(f"v_fma_f32 v{HI+1}, -v{E1+1}, v{CQ}, v{HI+1}")
    pr, pi_ = HR, HI
    for hf in range(2):
        for s in range(8 * hf, 8 * hf + 8):
            re, im = URE + 2 * s, UIM + 2 * s
            emit([f"v_pk_fma_f32 {vr(re,2)}, {vr(C_LAM,2)}, {vr(pi_,2)}, {vr(re,2)} {lam_bc(1)}",
                  f"v_pk_fma_f32 {vr(im,2)}, {vr(C_LAM,2)}, {vr(pr,2)}, {vr(im,2)} {lam_bc(1)} {NEG}",
                  f"v_pk_fma_f32 {vr(re,2)}, {vr(C_LAM,2)}, {vr(pr,2)}, {vr(re,2)} {lam_bc(0)}",
                  f"v_pk_fma_f32 {vr(im,2)}, {vr(C_LAM,2)}, {vr(pi_,2)}, {vr(im,2)} {lam_bc(0)}"])
            pr, pi_ = re, im
        for ri in range(2):
            U = (URE, UIM)[ri]
            for z in range(2):
                o = 2 * z + hf
                d = HP + (ri * 4 + o) * 4
                for u in range(4):
                    s0 = 8 * hf + 2 * u
                    A(f"v_cvt_pk_bf16_f32 v{d+u}, v{U+2*s0+z}, v{U+2*s0+2+z}")
                A(f"buffer_store_dwordx4 {vr(d,4)}, v{V_GO+o}, s[{SWS}:{SWS+3}], s{P_ACTW} offen offset:{(ri*4+o)*512} sc1")
    tok_h = A.vm
    stamp(9)
    if not CL:
        weave(c_reads(0) + c_reads(1), cfill, 1)
        run(cfill)
        flag_store(tok_h)
        stamp(10)
        A("s_waitcnt lgkmcnt(0)")
        A("s_barrier")
        emit(c_reads(2) + c_reads(3))
    else:
        run(cfill[:8]); cfill = cfill[8:]
        tok_c3 = A.vm
        flag_store(tok_h)
        run(cfill)
        stamp(10)
        A.wait_vm(tok_c3)
        A("s_barrier")
        emit(c_reads(0) + c_reads(1) + c_reads(2) + c_reads(3))
        A("s_waitcnt lgkmcnt(0)")
        A("s_barrier")
    flag_poll("A")
    stamp(11)
    HS = [3, 4, 0, 3, 4, 0, 3, 4]
    def h_pieces(G):
        r = []
        for sub in range(2):
            r += dma_pieces(V_LIN, SWS, ST + 8, HS[G] * SLOT + sub * 16384,
                            pre=lambda sub=sub: rot_soff(ST + 8, 2 * (G & 3) + sub, shift=15, plus=P_ACTR + (G >> 2)),
                            post=(lambda: tok.__setitem__(("h", G), A.vm)) if sub else None, flags=PLF, same_v=True)
        return r
    run(h_pieces(0) + h_pieces(1))
    stamp(12)
    HF = 48
    cin = c_reads(4) + c_reads(5) + c_reads(6) + c_reads(7)
    def rd2(n):
        G, q = n >> 2, n & 3
        slot, buf = HS[G], n & 1
        r = []
        for h in range(4):
            kap = 4 * (q & 1) + h
            off = (slot & 1) * SLOT + (q >> 1) * 16384 + (kap >> 2) * 4096 + ((kap >> 1) & 1) * 2048 + (kap & 1) * 256
            for j in range(2):
                r.append(f"ds_read_b64_tr_b16 {vr(HF+buf*16+h*4+2*j,2)}, v{V_AH+2*(slot>>1)+j} offset:{off}")
        return r
    def mm2(n):
        buf = n & 1
        d = vr(ACC2 + 16 * (n >> 4), 16)
        return [mf(d, vr(HF + buf * 16 + h * 4, 4), ar((4 * (n & 15) + h) * 4, 4), d) for h in range(4)]
    fill = []
    def both(a, b):
        return lambda: (A(a), b())
    def on_step2(n):
        G, q = n >> 2, n & 3
        if q == 0:
            hp = h_pieces(G + 2) if G + 2 < 8 else []
            if G < 2:
                for k in range(4):
                    c = [cin.pop(0) for _ in range(4)]
                    fill.extend([c[0], c[1], both(c[2], hp.pop(0)), both(c[3], hp.pop(0))])
            elif G == 6: fill.extend(out_stores(ACC2, 0))
            else: fill.extend(hp)
    A.wait_both(tok[("h", 0)], A.lg)
    A("s_barrier")
    stamp(13)
    gemm_loop(32, rd2, mm2, lambda n: tok[("h", n >> 2)] if (n & 3) == 0 else None, (3, 3, 2, 0),
              lambda n: (0, 1, 2, 3) if n < 8 else (2, 3), fill, on_step2)
    assert not fill
    stamp(14)
    run(out_stores(ACC2, 1))
    tag_update("A")
    stamp(15)
    finish()

def role_B():
    V_OO = 24
    V_AX, V_AT = 28, 36
    V_SW, V_SR, V_SO, V_SP, V_PB0, V_PB1, V_G1, V_GE1, V_G2 = 39, 40, 41, 42, 43, 44, 45, 46, 47
    V_WF = 48
    KACC, VACC, PK, KV, WPH = 64, 96, 128, 192, 224
    T0 = 232
    P_KVP, P_P1O, P_P1G, P_P2O, P_P2G, P_MSK = P0, P0 + 1, P0 + 2, P0 + 5, P0 + 6, P0 + 7
    S_PART = 57
    D = OPT["dist"]
    code_prefetch()
    A("v_lshrrev_b32 v9, 1, v3")
    A("v_xor_b32 v9, v9, v4")
    A("v_lshlrev_b32 v9, 4, v9")
    A("v_lshl_add_u32 v10, v3, 10, v9")
    slin(ST, 0, (S_CHUNK, 1 << 17), (S_WAVE, 1 << 15))
    A(f"v_add_u32 v{V_OX}, s{ST}, v10")
    A(f"v_xor_b32 v11, 64, v{V_OX}")
    A(f"v_add_u32 v{V_OX+1}, 7168, v11")
    A(f"v_add_u32 v{V_OX+2}, {2*7168}, v{V_OX}")
    A(f"v_add_u32 v{V_OX+3}, {3*7168}, v11")
    A("v_bfe_u32 v9, v3, 1, 1")
    A("v_lshlrev_b32 v9, 2, v9")
    A("v_xor_b32 v9, v9, v4")
    A("v_lshlrev_b32 v9, 4, v9")
    A(f"s_lshl_b32 s{ST}, s{S_CG}, 7")
    A(f"v_add_u32 v9, s{ST}, v9")
    A(f"s_lshl_b32 s{ST+1}, s{S_CH}, 5")
    A(f"v_add_u32 v10, s{ST+1}, v3")
    A("v_mul_u32_u24 v11, 3072, v10")
    A(f"v_add_u32 v{V_OW}, v11, v9")
    for p in range(1, 4): A(f"v_add_u32 v{V_OW+p}, {p*(8*3072-1024)}, v{V_OW}")
    A(f"v_lshl_add_u32 v{V_OO}, v10, 10, v9")
    A(f"v_lshrrev_b32 v9, 3, v{V_N}")
    A(f"v_and_b32 v10, 3, v{V_N}")
    A("v_lshl_add_u32 v9, v9, 2, v10")
    A("v_lshlrev_b32 v9, 1, v9")
    A(f"v_lshl_add_u32 v9, v{V_G}, 7, v9")
    slin(ST, 0, (S_CG, 2048), (S_CH, 1024))
    A(f"v_add_u32 v14, s{ST}, v9")
    slin(S_PART, 1024, (S_RH, 1024))
    A("s_waitcnt lgkmcnt(0)")
    srd(SW, K_WQKV, 0x180000)
    stamp(1)
    A(f"s_load_dword s{S_TAG}, s[{K_WS}:{K_WS+1}], {WS_TAGB}")
    srd(SX, K_BX, 0x200000)
    tok = {}
    def g1_pieces(i):
        slot = i & 3
        return (dma_pieces(V_OW, SW, ST + 8, slot * SLOT, pre=lambda: rot_soff(ST + 8, i, mul=196608, plus=S_PART)) +
                dma_pieces(V_OX, SX, ST + 10, slot * SLOT + 16384, pre=lambda: rot_soff(ST + 10, i, shift=7),
                           post=lambda: tok.__setitem__(i, A.vm), flags=XF))
    QSLOT = [4, 0]; OSLOT = [1, 2]
    def q_pieces(st):
        return dma_pieces(V_OW, SW, ST + 9, QSLOT[st >> 1] * SLOT + (st & 1) * 16384,
                          pre=lambda: rot_soff(ST + 9, 2 * st, mul=196608, extra_sreg=S_RH), post=lambda: tok.__setitem__(("q", st), A.vm))
    def o_pieces(st):
        return dma_pieces(V_OO, SW2, ST + 9, OSLOT[st >> 1] * SLOT + (st & 1) * 16384,
                          pre=lambda: rot_soff(ST + 9, 2 * st, shift=16, extra_sreg=S_RH))
    run(g1_pieces(0))
    for hh in range(2):
        for u in range(4):
            d0 = (0, 2, 8, 10)[u]
            A(f"global_load_ushort v{WPH+4*hh+u}, v14, s[{K_WPHI}:{K_WPHI+1}] offset:{hh*512+d0*32}")
            A(f"global_load_ushort v{T0+8+4*hh+u}, v14, s[{K_WPHI}:{K_WPHI+1}] offset:{hh*512+(d0+1)*32}")
    tok_small = A.vm
    srd(SW2, K_WO, 0x80000)
    for i in range(1, D): run(g1_pieces(i))
    stamp(2)
    common_setup("B")
    for p in range(1, 4): A(f"v_add_u32 v{V_OO+p}, {p*7168}, v{V_OO}")
    slin(ST, 0, (S_CG, 256), (S_CH, 128), (S_RH, 32), (S_CHUNK, 1))
    slin(P_P1O, WS_P1, (ST, 640))
    slin(ST, 0, (S_CG, 16), (S_CHUNK, 1))
    slin(P_P2O, WS_P2, (ST, 640))
    slin(P_P1G, WS_P1, (ST, 16 * 640))
    A(f"s_add_u32 s{P_P1G+1}, s{P_P1G}, {6*640}")
    A(f"s_add_u32 s{P_P1G+2}, s{P_P1G}, {12*640}")
    slin(ST, 0, (S_CG, 16), (S_CH, 8))
    slin(P_P2G, WS_P2, (ST, 640))
    A(f"s_mov_b32 s{P_MSK}, 0xffffff00")
    slin(P_ACTW, WS_O, (S_CHUNK, 1 << 17), (S_CG, 1 << 14), (S_RH, 1 << 12), (S_CH, 1 << 11))
    A(f"s_add_u32 s{P_ACTW2}, s{P_ACTW}, 8192")
    slin(P_ACTR, WS_O, (S_CHUNK, 1 << 17), (S_MF, 8192))
    A(f"s_xor_b32 s{P_ACTR2}, s{P_ACTR}, 8192")
    A(f"s_and_b32 s{ST}, s{S_TAG}, 0xff")
    A(f"v_mov_b32 v{V_TAG}, s{ST}")
    A(f"v_mov_b32 v11, s{S_TAG}")
    A(f"s_lshl_b32 s{ST}, s{S_RH}, 13")
    lds_b128_addrs(V_AX, ST, 16384, 2)
    A(f"v_bfe_u32 v9, v{V_LANE}, 4, 1")
    A(f"v_bfe_u32 v13, v{V_LANE}, 1, 1")
    A("v_lshl_add_u32 v3, v9, 1, v13")
    A(f"v_bfe_u32 v13, v{V_LANE}, 3, 1")
    A(f"v_xor_b32 v13, s{S_CH}, v13")
    A("v_lshl_add_u32 v9, v13, 2, v3")
    A("v_lshlrev_b32 v9, 4, v9")
    A(f"v_and_b32 v4, 1, v{V_LANE}")
    A("v_lshl_add_u32 v9, v4, 3, v9")
    A(f"v_bfe_u32 v14, v{V_LANE}, 2, 2")
    A(f"v_lshl_add_u32 v13, v{V_G}, 3, v14")
    A(f"v_lshl_add_u32 v{V_AT}, v13, 7, v9")
    A(f"v_add_u32 v{V_AT+1}, 0x10000, v{V_AT}")
    A(f"v_add_u32 v{V_AT+2}, 0x20000, v{V_AT}")
    SCR = 3 * SLOT
    slin(ST, SCR, (S_WAVE, 8192))
    A(f"v_mul_u32_u24 v9, 1152, v{V_G}")
    A(f"v_lshl_add_u32 v9, v{V_N}, 4, v9")
    A(f"v_add_u32 v{V_SW}, s{ST}, v9")
    A("v_mul_u32_u24 v9, 576, v3")
    A(f"v_lshl_add_u32 v13, v{V_G}, 2, v14")
    A("v_lshl_add_u32 v9, v13, 4, v9")
    A("v_lshl_add_u32 v9, v4, 3, v9")
    A(f"v_add_u32 v{V_SR}, s{ST}, v9")
    A(f"v_add_u32 v{V_SO}, s{ST}, v{V_LIN}")
    A(f"v_xor_b32 v{V_SP}, 0x4000, v{V_SO}")
    A(f"v_and_b32 v9, 15, v{V_LANE}")
    A("v_cmp_eq_u32 vcc, 0, v9")
    A(f"v_lshl_add_u32 v9, v9, 1, v{V_G}")
    A("v_lshlrev_b32 v9, 4, v9")
    A(f"v_lshlrev_b32 v13, 4, v{V_G}")
    A("v_add_u32 v13, 512, v13")
    A(f"v_mov_b32 v14, {OOB:#x}")
    A("v_cndmask_b32 v13, v14, v13, vcc")
    A(f"v_cndmask_b32_e64 v{V_PB0}, v9, v13, s[{S_M16}:{S_M16+1}]")
    A(f"v_cndmask_b32_e64 v{V_PB1}, v13, v9, s[{S_M16}:{S_M16+1}]")
    A(f"s_mul_i32 s{ST}, s{S_WAVE}, 136")
    A(f"v_lshl_add_u32 v9, v{V_LANE}, 2, s{ST}")
    A(f"v_cmp_gt_u32 vcc, 34, v{V_LANE}")
    A(f"v_cndmask_b32 v{V_G1}, v14, v9, vcc")
    A(f"v_cndmask_b32 v{V_GE1}, 0, v{V_TAG}, vcc")
    A(f"v_bfe_u32 v9, v{V_N}, 2, 1")
    A("v_lshlrev_b32 v9, 3, v9")
    A(f"v_bfe_u32 v13, v{V_N}, 3, 1")
    A("v_lshl_add_u32 v9, v13, 2, v9")
    A(f"v_and_b32 v13, 3, v{V_N}")
    A("v_add_u32 v9, v9, v13")
    A(f"v_cndmask_b32_e64 v9, v9, 16, s[{S_M16}:{S_M16+1}]")
    A("v_lshlrev_b32 v9, 5, v9")
    A(f"v_mul_u32_u24 v13, 1280, v{V_G}")
    A(f"v_add_u32 v{V_G2}, v9, v13")
    A("v_mov_b32 v3, 0x3f803f80")
    A(f"v_bfe_u32 v4, v{V_LANE}, 2, 1")
    A("v_mul_u32_u24 v4, 0x8000, v4")
    A("v_lshl_or_b32 v4, v4, 16, v4")
    stamp(3)
    def trfrag(dst, ldsoff, kind="v"):
        s_, off = ldsoff >> 16, ldsoff & 0xffff
        return [f"ds_read_b64_tr_b16 {vr(dst+2*j,2,kind)}, v{V_AT+s_} offset:{off+j*512}" for j in range(2)]
    def rd(n):
        i, ks = n >> 2, n & 3
        slot, buf = i & 3, n & 1
        s2_, off = slot >> 1, (slot & 1) * SLOT
        x = [f"ds_read_b128 {ar(n*8+m*4,4)}, v{V_AX+4*s2_+ks} offset:{off+m*4096}" for m in range(2)]
        w = [trfrag(V_WF + buf * 8 + part * 4, slot * SLOT + part * 8192 + ks * 2048) for part in range(2)]
        return [x[0]] + w[0] + [x[1]] + w[1]
    def mm(n):
        buf = n & 1
        r = []
        for part, m in ((0, 0), (0, 1), (1, 0), (1, 1)):
            x, w = ar(n * 8 + m * 4, 4), vr(V_WF + buf * 8 + part * 4, 4)
            d = vr((KACC, VACC)[part] + 16 * m, 16)
            r.append(mf(d, w, x, d if n else "0") if part == 0 else mf(d, x, w, d if n else "0"))
        return r
    fill = []
    def on_step(n):
        i, ks = n >> 2, n & 3
        if ks == 0:
            if i + D < 8: fill.extend(g1_pieces(i + D))
            elif i + D == 8: fill.extend(q_pieces(0) + q_pieces(1))
            elif i + D == 9:
                for r in range(8):
                    fill.append(lambda r=r: (A(f"v_lshl_or_b32 v{WPH+r}, v{T0+8+r}, 16, v{WPH+r}"), A(f"v_xor_b32 v{WPH+r}, v4, v{WPH+r}")))
    A.wait_vm(tok[0])
    A("s_barrier")
    stamp(4)
    gemm_loop(32, rd, mm, lambda n: tok[n >> 2] if (n & 3) == 0 else None, (3, 3, 0, 0), (2, 3), fill, on_step, end_barrier=True)
    assert not fill
    stamp(5)
    def feat(acc):
        for m in range(2):
            for u in range(8):
                A(f"v_cvt_pk_bf16_f32 v{acc+16*m+u}, v{acc+16*m+2*u}, v{acc+16*m+2*u+1}")
            for hh in range(2):
                A(mf(vr(PK + (m * 2 + hh) * 16, 16), vr(WPH + 4 * hh, 4), vr(acc + 16 * m + 4 * hh, 4), "0"))
    def softmax_l(x, dst):
        mx, sm = T0, T0 + 2
        l = [f"v_max3_f32 v{mx}, v{x}, v{x+1}, v{x+2}"]
        for u in range(3, 15, 2):
            l.append(f"v_max3_f32 v{mx}, v{mx}, v{x+u}, v{x+u+1}")
        l.append(f"v_max_f32 v{mx}, v{mx}, v{x+15}")
        l.append(f"v_mul_f32 v{mx}, s{S_L2E}, v{mx}")
        for u in range(8):
            l.append(f"v_pk_fma_f32 {vr(x+2*u,2)}, {vr(x+2*u,2)}, s[{S_L2E}:{S_L2E+1}], {vr(mx,2)} op_sel_hi:[1,1,0] neg_lo:[0,0,1] neg_hi:[0,0,1]")
        for u in range(16):
            l.append(f"v_exp_f32 v{x+u}, v{x+u}")
        l.append(f"v_pk_add_f32 {vr(sm,2)}, {vr(x,2)}, {vr(x+2,2)}")
        for u in range(2, 8):
            l.append(f"v_pk_add_f32 {vr(sm,2)}, {vr(sm,2)}, {vr(x+2*u,2)}")
        l.append(f"v_add_f32 v{sm}, v{sm}, v{sm+1}")
        l.append(f"v_rcp_f32 v{sm}, v{sm}")
        for u in range(8):
            l.append(f"v_pk_mul_f32 {vr(x+2*u,2)}, {vr(x+2*u,2)}, {vr(sm,2)} op_sel_hi:[1,0]")
        for u in range(8):
            l.append(f"v_cvt_pk_bf16_f32 v{dst+u}, v{x+2*u}, v{x+2*u+1}")
        return l
    feat(KACC)
    stamp(17)
    for m in range(2):
        for u in range(8):
            A(f"v_cvt_pk_bf16_f32 v{VACC+16*m+u}, v{VACC+16*m+2*u}, v{VACC+16*m+2*u+1}")
    for m in range(2):
        for u in range(8):
            A(f"v_cndmask_b32_e64 v{VACC+16*m+8+u}, v3, v{VACC+16*m+u}, s[{S_M16}:{S_M16+1}]")
            A(f"v_cndmask_b32_e64 v{VACC+16*m+u}, v{VACC+16*m+u}, v3, s[{S_M16}:{S_M16+1}]")
    stamp(18)
    PH = [KACC + 8, V_WF + 8]
    PT = [KACC + 24, V_WF]
    def kvmm(blk):
        m, hh = blk >> 1, blk & 1
        d = vr(KV + 16 * hh, 16)
        return [mf(d, vr(PT[blk & 1] + 4 * mm_, 4), vr(VACC + 16 * m + 8 * hh + 4 * mm_, 4), d if (m or mm_) else "0") for mm_ in range(2)]
    for blk in range(4):
        l = softmax_l(PK + blk * 16, PH[blk & 1])
        if blk:
            l = l[:20] + ["s_waitcnt lgkmcnt(0)"] + kvmm(blk - 1) + l[20:]
        emit(l)
        bo = (blk & 1) * 2304
        A(f"ds_write_b128 v{V_SW}, {vr(PH[blk&1],4)} offset:{bo}")
        A(f"ds_write_b128 v{V_SW}, {vr(PH[blk&1]+4,4)} offset:{bo+576}")
        for mm_ in range(2):
            for j in range(2):
                A(f"ds_read_b64_tr_b16 {vr(PT[blk&1]+4*mm_+2*j,2)}, v{V_SR} offset:{bo+(16*mm_+8*j)*16}")
        stamp(19 + blk)
    KEEP, SEND = PK, PK + 16
    for u in range(8):
        A(f"v_cndmask_b32_e64 v{SEND+u}, v{KV+8+u}, v{KV+u}, s[{S_MRH}:{S_MRH+1}]")
        A(f"v_cndmask_b32_e64 v{KEEP+u}, v{KV+u}, v{KV+8+u}, s[{S_MRH}:{S_MRH+1}]")
    A("s_waitcnt lgkmcnt(0)")
    emit(kvmm(3))
    for u in range(2):
        A(f"ds_write_b128 v{V_SO}, {vr(SEND+4*u,4)} offset:{u*1024}")
    for u in range(8):
        A(f"v_cndmask_b32_e64 v{SEND+8+u}, v{KV+24+u}, v{KV+16+u}, s[{S_MRH}:{S_MRH+1}]")
    for u in range(2):
        A(f"ds_write_b128 v{V_SO}, {vr(SEND+8+4*u,4)} offset:{(2+u)*1024}")
    for u in range(8):
        A(f"v_cndmask_b32_e64 v{KEEP+8+u}, v{KV+16+u}, v{KV+24+u}, s[{S_MRH}:{S_MRH+1}]")
    A("s_waitcnt lgkmcnt(0)")
    stamp(23)
    A("s_barrier")
    stamp(24)
    for u in range(4):
        A(f"ds_read_b128 {vr(SEND+4*u,4)}, v{V_SP} offset:{u*1024}")
    tq = A.lg
    QACC = KACC
    def qaddr(n):
        i, ks = n >> 2, n & 3
        return QSLOT[i >> 2] * SLOT + (i & 3) * 8192 + ks * 2048
    def rdq(n):
        return trfrag(V_WF + (n & 1) * 8, qaddr(2 * n)) + trfrag(V_WF + (n & 1) * 8 + 4, qaddr(2 * n + 1))
    def mmq(n):
        r = []
        for h in range(2):
            for m in range(2):
                d = vr(QACC + 16 * m, 16)
                r.append(mf(d, vr(V_WF + (n & 1) * 8 + 4 * h, 4), ar((2 * n + h) * 8 + m * 4, 4), d if (n or h) else "0"))
        return r
    A.wait_lg(tq)
    for hh in range(2):
        for jj in range(2):
            r = KEEP + 8 * hh + 4 * jj
            for u in range(2):
                A(f"v_pk_add_f32 {vr(r+2*u,2)}, {vr(r+2*u,2)}, {vr(r+16+2*u,2)}")
            for e in range(4):
                A(f"v_and_or_b32 v{r+e}, v{r+e}, s{P_MSK}, v{V_TAG}")
            A(f"s_add_u32 s{ST+3}, s{P_P1O}, {(hh*4+jj)*16*640}")
            A(f"buffer_store_dwordx4 {vr(r,4)}, v{V_PB0+hh}, s[{SWS}:{SWS+3}], s{ST+3} offen sc1")
    stamp(6)
    run(q_pieces(2) + q_pieces(3))
    GD = VACC
    g1l = [f"buffer_load_dword v{GD+s}, v{V_G1}, s[{SWS}:{SWS+3}], s{P_P1G+s//6} offen offset:{(s%6)*640} sc1" for s in range(16)]
    fill = []
    def on_stepq(n):
        if n == 0: fill.extend(o_pieces(0) + o_pieces(1) + o_pieces(2) + o_pieces(3))
        if n == 12: fill.extend(g1l)
    stamp(25)
    A.wait_vm(tok[("q", 1)])
    A("s_barrier")
    stamp(26)
    gemm_loop(16, rdq, mmq, lambda n: tok[("q", 3)] if n == 8 else None, (2, 2, 0, 0),
              lambda n: (0, 1, 2, 3) if n >= 12 else (2, 3), fill, on_stepq)
    assert not fill
    stamp(7)
    def check():
        A(f"v_xor_b32 v13, v{GD}, v{V_GE1}")
        for s in range(1, 16):
            A(f"v_bitop3_b32 v13, v{GD+s}, v{V_GE1}, v13 bitop3:0xbe")
        A("v_and_b32 v13, 0xff, v13")
        A(f"v_cmp_ne_u32 s[{S_FAIL}:{S_FAIL+1}], 0, v13")
    feat(QACC)
    poll_pre(lambda: emit(g1l), check)
    for st in (8, 4, 2):
        for u in range(0, st, 2):
            A(f"v_pk_add_f32 {vr(GD+u,2)}, {vr(GD+u,2)}, {vr(GD+st+u,2)}")
    A(f"v_add_f32 v{GD}, v{GD}, v{GD+1}")
    A(f"v_and_or_b32 v{GD}, v{GD}, s{P_MSK}, v{V_TAG}")
    A(f"buffer_store_dword v{GD}, v{V_G1}, s[{SWS}:{SWS+3}], s{P_P2O} offen sc1")
    stamp(8)
    PHQ = KV
    FD = PK
    def loads2():
        for hh in range(2):
            for jp in range(2):
                r = FD + (hh * 2 + jp) * 8
                off = (hh * 4 + jp) * 640
                A(f"buffer_load_dwordx4 {vr(r,4)}, v{V_G2}, s[{SWS}:{SWS+3}], s{P_P2G} offen offset:{off} sc1")
                A(f"buffer_load_dwordx4 {vr(r+4,4)}, v{V_G2}, s[{SWS}:{SWS+3}], s{P_P2G} offen offset:{off+16} sc1")
        xcc_load(14)
    def check2():
        A(f"v_xor_b32 v13, v{FD}, v{V_TAG}")
        for s in range(1, 32):
            A(f"v_bitop3_b32 v13, v{FD+s}, v{V_TAG}, v13 bitop3:0xbe")
        A(f"v_xor_b32 v14, s{S_XW}, v14")
        A("v_and_b32 v13, 0xff, v13")
        A("v_lshrrev_b32 v9, 4, v14")
        A("v_or_b32 v13, v13, v9")
        A(f"v_cmp_ne_u32 s[{S_FAIL}:{S_FAIL+1}], 0, v13")
    for blk in range(4):
        if blk == 3: loads2()
        emit(softmax_l(PK + blk * 16, PHQ + 8 * blk))
    stamp(9)
    poll_pre(loads2, check2)
    stamp(10)
    KVF = VACC
    ODR = [KACC, KACC + 16, PK + 32, PK + 48]
    for hh in range(2):
        for q in (2 * hh, 2 * hh + 1):
            for u in range(4):
                A(f"v_cvt_pk_bf16_f32 v{KVF+4*q+u}, v{FD+8*q+2*u}, v{FD+8*q+2*u+1}")
        for m in range(2):
            blk = 2 * m + hh
            d = vr(ODR[blk], 16)
            for jp in range(2):
                A(mf(d, vr(KVF + (hh * 2 + jp) * 4, 4), vr(PHQ + 8 * blk + 4 * jp, 4), d if jp else "0"))
    xcc_decide(14)
    for blk in (0, 2, 1, 3):
        m, hh = blk >> 1, blk & 1
        o = ODR[blk]
        A(f"v_add_f32 v{o+8}, 0x358637bd, v{o+8}")
        A(f"v_rcp_f32 v{o+8}, v{o+8}")
        for u in range(4):
            A(f"v_pk_mul_f32 {vr(o+2*u,2)}, {vr(o+2*u,2)}, {vr(o+8,2)} op_sel_hi:[1,0]")
        for u in range(4):
            A(f"v_cvt_pk_bf16_f32 v{o+12+u}, v{o+2*u}, v{o+2*u+1}")
        A(f"buffer_store_dwordx4 {vr(o+12,4)}, v{V_LIN}, s[{SWS}:{SWS+3}], s{P_ACTW+m} offen offset:{hh*1024} sc1")
    tok_o = A.vm
    A(f"s_lshl_b32 s{ST+5}, s{S_RH}, 12")
    A(f"v_add_u32 v{V_AX}, s{ST+5}, v{V_LIN}")
    A(f"v_add_u32 v{V_AX+1}, 0x10000, v{V_AX}")
    A(f"v_add_u32 v{V_AX+2}, 0x20000, v{V_AX}")
    A("s_barrier")
    flag_store(tok_o)
    stamp(11)
    flag_poll("B")
    stamp(12)
    OS = [3, 4, 0, 3]
    def of_pieces(G):
        return (dma_pieces(V_LIN, SWS, ST + 8, OS[G] * SLOT, m0reg=S_M0W2, same_v=True, flags=PLF,
                           pre=lambda: rot_soff(ST + 8, 4 * (G & 1), shift=14, extra_sreg=S_WAVE, plus=P_ACTR + (G >> 1))) +
                dma_pieces(V_LIN, SWS, ST + 8, OS[G] * SLOT + 4096, m0reg=S_M0W2, same_v=True, flags=PLF,
                           pre=lambda: A(f"s_add_u32 s{ST+8}, s{ST+8}, 4096"), post=lambda: tok.__setitem__(("of", G), A.vm)))
    run(of_pieces(0) + of_pieces(1))
    OF = PK
    OACC = VACC
    def rd4(n):
        G, q = n >> 2, n & 3
        slot = OS[G]
        r = []
        for h in range(4):
            r.append(f"ds_read_b128 {vr(OF+(n&1)*16+h*4,4)}, v{V_AX+(slot>>1)} offset:{(slot&1)*SLOT+q*8192+h*1024}")
            if n < 8:
                r += trfrag((4 * n + h) * 4, OSLOT[n >> 2] * SLOT + (n & 3) * 8192 + h * 2048, "a")
        return r
    def mm4(n):
        d = vr(OACC + 16 * (n >> 3), 16)
        return [mf(d, vr(OF + (n & 1) * 16 + h * 4, 4), ar((4 * (n & 7) + h) * 4, 4), d if ((n & 7) or h) else "0") for h in range(4)]
    fill = []
    def on_step4(n):
        if n in (0, 4): fill.extend(of_pieces((n >> 2) + 2))
        if n == 9: fill.extend(out_stores(OACC, 0))
    A.wait_vm(tok[("of", 0)])
    A("s_barrier")
    stamp(13)
    gemm_loop(16, rd4, mm4, lambda n: tok[("of", n >> 2)] if (n & 3) == 0 else None, (4, 4, 3, 1),
              lambda n: (1, 2, 3) if n >= 9 else (2, 3), fill, on_step4)
    assert not fill
    stamp(14)
    run(out_stores(OACC, 1))
    tag_update("B")
    stamp(15)
    finish()

prologue()
vm0, lg0 = A.vm, A.lg
role_A()
for f in DEFER: f()
DEFER.clear()
A.label("L_roleB")
A.vm, A.lg = vm0, lg0
A.hist = []
role_B()
for f in DEFER: f()
A.label("L_end")
A("s_endpgm")

lines = A.out
if OPT["align"]:
    lines, nw, nn = align(lines)
    print("align: widened", nw, "nops", nn)
HEAD = open("cdna_kernels/" + NAME + ".s.ref").read().split("; Override launch geometry")[0]
src = HEAD + f"""; @launch grid=(256,1,1) block=(256,1,1) lds=163840
.amdgcn_target "amdgcn-amd-amdhsa--gfx950"
.text
.globl {NAME}_kernel
.p2align 8
.type {NAME}_kernel,@function
{NAME}_kernel:
""" + "\n".join(lines) + f"""
.fill 4096, 4, 0xBF810000
.section .rodata,"a"
.p2align 6
.amdhsa_kernel {NAME}_kernel
  .amdhsa_next_free_vgpr 512
  .amdhsa_next_free_sgpr 102
  .amdhsa_accum_offset 256
  .amdhsa_group_segment_fixed_size 0
  .amdhsa_kernarg_size 128
  .amdhsa_user_sgpr_count 2
  .amdhsa_user_sgpr_kernarg_segment_ptr 1
  .amdhsa_system_sgpr_workgroup_id_x 1
.end_amdhsa_kernel
"""
open(sys.argv[1], "w").write(src)
print("hazard nops:", A.nnop, "lines:", len(lines))
```

```python
import sys
from dsl import Asm, vr, ar, sr
from align import align

NAME = "concat_heads__ssm_conv_s5__linear_kernel_hedgehog__prompt"
OPT = dict(stamps=False, dist=2, rotmode=8, fast=1, align=1, xnt=0)
for a_ in sys.argv[2:]:
    k_, _, v_ = a_.partition("=")
    OPT[k_] = int(v_) if v_ else True

WS_TAGA, WS_TAGB = 0x0, 0x80
WS_XCC = 0x1000
WS_FLAG = 0x2000
WS_SA = 0x10000
WS_P1 = 0x100000
WS_P2 = 0x300000
WS_H = 0x400000
WS_O = 0x800000
WS_STAMP = 0xA00000
OOB = 0x40000000
SPIN_LIMIT = 1 << 14
LOG2E = 0x3FB8AA3B
INV2PI = 0x3E22F983

S_WAVE, S_CHUNK, S_CG, S_ROT, S_TAG = 3, 4, 5, 6, 7
SX, SW, SW2, SWS, SOUT = 8, 12, 16, 20, 24
S_RH, S_CH, S_SLOT, S_GRP = 28, 29, 30, 31
ST = 32
S_M0W, S_M0W2 = 48, 49
S_MG = 50
S_MRH = 52
S_L2E = 54
S_CNT = 56
S_FAIL = 58
S_M16 = 60
S_XW, S_SLOW = 62, 63
KA = 64
K_AX, K_LRE, K_LIM, K_BRE, K_BIM, K_CRE, K_CIM, K_LDT, K_DSK, K_BX, K_WQKV, K_WPHI, K_WO, K_OUT, K_DBG, K_WS = [KA + 2 * i for i in range(16)]
P_FLAGB, P_FLAGO, P_XCCB, P_TAGSEL, P_OUT, P_OUT2, P_ACTR, P_ACTR2 = range(64, 72)
P_ACTW, P_ACTW2, S_MF = 88, 89, 90
P0 = 72
S_STAMP = 96
V_LANE, V_OUTO, V_N, V_G, V_LIN, V_TAG, V_L0, V_FPO, V_XPO = 1, 2, 5, 6, 7, 8, 10, 12, 15
V_OX, V_OW = 16, 20
SLOT = 32768

A = Asm()
nlab = [0]

def srd(dst, ptr, nbytes):
    A(f"s_mov_b32 s{dst}, s{ptr}")
    A(f"s_mov_b32 s{dst+1}, s{ptr+1}")
    A(f"s_mov_b32 s{dst+2}, {nbytes:#x}")
    A(f"s_mov_b32 s{dst+3}, 0x20000")

def slin(dst, const, *terms):
    first = True
    for reg, mul in terms:
        t = dst if first else ST + 15
        if mul == 1:
            if first: A(f"s_mov_b32 s{dst}, s{reg}")
            else: t = reg
        elif mul & (mul - 1) == 0: A(f"s_lshl_b32 s{t}, s{reg}, {mul.bit_length()-1}")
        else: A(f"s_mul_i32 s{t}, s{reg}, {mul}")
        if not first: A(f"s_add_u32 s{dst}, s{dst}, s{t}")
        first = False
    if const: A(f"s_add_u32 s{dst}, s{dst}, {const:#x}")

ROLE = ["A"]
def stamp(idx):
    if OPT.get("probe") == idx + (0 if ROLE[0] == "A" else 100):
        A("s_memrealtime s[96:97]")
        A("s_waitcnt lgkmcnt(0)")
        A("s_sub_u32 s99, s96, s100")
    if not OPT["stamps"]: return
    A(f"s_memtime s[{S_STAMP}:{S_STAMP+1}]")
    A("s_waitcnt lgkmcnt(0)")
    A(f"s_sub_u32 s{S_STAMP}, s{S_STAMP}, s98")
    A(f"v_writelane_b32 v255, s{S_STAMP}, {idx}")

def lab(n):
    nlab[0] += 1
    return f"L_{n}_{nlab[0]}"

def finish():
    if OPT.get("probe") and (OPT["probe"] >= 100) == (ROLE[0] == "B"):
        if OPT["probe"] % 100 == 16:
            A("s_waitcnt vmcnt(0)")
            stamp(16)
        l = lab("pr")
        A("s_lshl_b32 s99, s99, 1")
        A("s_add_u32 s99, s99, 2500")
        A.label(l)
        A("s_memrealtime s[96:97]")
        A("s_waitcnt lgkmcnt(0)")
        A("s_sub_u32 s96, s96, s100")
        A("s_cmp_lt_u32 s96, s99")
        A(f"s_cbranch_scc1 {l}")
    if OPT.get("fixrt"):
        l = lab("rt")
        A.label(l)
        A("s_memrealtime s[96:97]")
        A("s_waitcnt lgkmcnt(0)")
        A("s_sub_u32 s96, s96, s100")
        A(f"s_cmp_lt_u32 s96, {OPT['fixrt']}")
        A(f"s_cbranch_scc1 {l}")
    if OPT["stamps"]:
        A("s_waitcnt vmcnt(0)")
        stamp(16)
        slin(ST, WS_STAMP, (2, 1024), (S_WAVE, 256))
        A(f"v_lshlrev_b32 v254, 2, v{V_LANE}")
        A(f"buffer_store_dword v255, v254, s[{SWS}:{SWS+3}], s{ST} offen")
    A("s_endpgm")

def mf(d, a, b, c):
    return f"v_mfma_f32_32x32x16_bf16 {d}, {a}, {b}, {c}"

def poll(loads, check):
    top, done = lab("poll"), lab("ok")
    A(f"s_mov_b32 s{S_CNT}, {SPIN_LIMIT}")
    A.label(top)
    loads()
    A("s_waitcnt vmcnt(0)")
    check()
    A(f"s_cmp_eq_u64 s[{S_FAIL}:{S_FAIL+1}], 0")
    A(f"s_cbranch_scc1 {done}")
    A(f"s_sub_u32 s{S_CNT}, s{S_CNT}, 1")
    A(f"s_cbranch_scc0 {top}")
    A.label(done)

def poll_pre(loads, check):
    top, done = lab("poll"), lab("ok")
    A(f"s_mov_b32 s{S_CNT}, {SPIN_LIMIT}")
    A.label(top)
    A("s_waitcnt vmcnt(0)")
    check()
    A(f"s_cmp_eq_u64 s[{S_FAIL}:{S_FAIL+1}], 0")
    A(f"s_cbranch_scc1 {done}")
    loads()
    A(f"s_sub_u32 s{S_CNT}, s{S_CNT}, 1")
    A(f"s_cbranch_scc0 {top}")
    A("s_waitcnt vmcnt(0)")
    A.label(done)

def cfma_l(d, a, b, c, t):
    return [f"v_pk_fma_f32 {vr(t,2)}, {vr(a,2)}, {vr(b,2)}, {vr(c,2)} op_sel:[1,1,0] op_sel_hi:[1,0,1] neg_lo:[1,0,0]",
            f"v_pk_fma_f32 {vr(d,2)}, {vr(a,2)}, {vr(b,2)}, {vr(t,2)} op_sel:[0,0,0] op_sel_hi:[0,1,1]"]
def cmul_l(d, a, b, t):
    return [f"v_pk_mul_f32 {vr(t,2)}, {vr(a,2)}, {vr(b,2)} op_sel:[1,1] op_sel_hi:[1,0] neg_lo:[1,0]",
            f"v_pk_fma_f32 {vr(d,2)}, {vr(a,2)}, {vr(b,2)}, {vr(t,2)} op_sel:[0,0,0] op_sel_hi:[0,1,1]"]
def emit(l):
    for x in l: A(x)
def cfma(*a): emit(cfma_l(*a))
def cmul(*a): emit(cmul_l(*a))

def weave(main, fillers, every, start=0):
    for i, x in enumerate(main):
        A(x)
        if i >= start and (i - start) % every == every - 1 and fillers:
            f = fillers.pop(0)
            if isinstance(f, str): A(f)
            elif f: f()

def gemm_loop(nsteps, reads, mfmas, boundary, split, fill_gaps, fillers, on_step=None, end_barrier=False, first_reads=True):
    if first_reads:
        for r in reads(0): A(r)
    for n in range(nsteps):
        if on_step: on_step(n)
        last = n == nsteps - 1
        b = None if last else boundary(n + 1)
        if b is not None: A.wait_both(b, A.lg)
        else: A("s_waitcnt lgkmcnt(0)")
        rs = [] if last else list(reads(n + 1))
        ms = mfmas(n)
        for g in range(4):
            A(ms[g])
            if g == 0 and (b is not None or (last and end_barrier)): A("s_barrier")
            for _ in range(split[g]):
                if rs: A(rs.pop(0))
            if g in (fill_gaps(n) if callable(fill_gaps) else fill_gaps) and fillers:
                f = fillers.pop(0)
                if isinstance(f, str): A(f)
                elif f: f()
        assert not rs

def dma_pieces(voff, srdreg, soff, ldsoff, pre=None, post=None, flags="", m0reg=S_M0W, same_v=False):
    def mk(p):
        def f():
            if p == 0:
                A(f"s_add_u32 m0, s{m0reg}, {ldsoff:#x}")
                if pre: pre()
            A(f"buffer_load_dwordx4 v{voff if same_v else voff+p}, s[{srdreg}:{srdreg+3}], s{soff} offen offset:{p*1024} {flags}lds")
            if p == 3 and post: post()
        return f
    return [mk(p) for p in range(4)]

def run(fs):
    for f in fs:
        if isinstance(f, str): A(f)
        else: f()

def rot_soff(dst, add, shift=None, mul=None, extra_sreg=None, plus=None):
    A(f"s_add_u32 s{dst}, s{S_ROT}, {add}")
    if extra_sreg is not None: A(f"s_add_u32 s{dst}, s{dst}, s{extra_sreg}")
    A(f"s_and_b32 s{dst}, s{dst}, 7")
    if shift is not None: A(f"s_lshl_b32 s{dst}, s{dst}, {shift}")
    else: A(f"s_mul_i32 s{dst}, s{dst}, {mul}")
    if plus is not None: A(f"s_add_u32 s{dst}, s{dst}, s{plus}")

def prologue():
    if OPT["stamps"]: A("s_memtime s[98:99]")
    if OPT.get("fixrt") or OPT.get("probe"): A("s_memrealtime s[100:101]")
    A("s_cmp_ge_u32 s2, 256")
    A("s_cbranch_scc1 L_end")
    A(f"s_load_dwordx16 s[{KA}:{KA+15}], s[0:1], 0")
    A(f"s_load_dwordx16 s[{KA+16}:{KA+31}], s[0:1], 64")
    A("v_and_b32 v1, 63, v0")
    A("v_lshrrev_b32 v2, 6, v0")
    A(f"s_lshr_b32 s{S_SLOT}, s2, 3")
    A(f"v_readfirstlane_b32 s{S_WAVE}, v2")
    A(f"s_and_b32 s{ST}, s2, 3")
    A(f"s_lshl_b32 s{S_CHUNK}, s{ST}, 2")
    A(f"s_lshr_b32 s{ST+1}, s{S_SLOT}, 3")
    A(f"s_add_u32 s{S_CHUNK}, s{S_CHUNK}, s{ST+1}")
    A(f"s_and_b32 s{S_CG}, s{S_SLOT}, 7")
    if OPT["rotmode"] == 8:
        A(f"s_lshl_b32 s{S_ROT}, s{ST+1}, 1")
        A(f"s_add_u32 s{S_ROT}, s{S_ROT}, s{S_CG}")
        A(f"s_and_b32 s{S_ROT}, s{S_ROT}, 7")
    elif OPT["rotmode"] == 2:
        A(f"s_add_u32 s{S_ROT}, s{S_CG}, s{ST+1}")
        A(f"s_and_b32 s{S_ROT}, s{S_ROT}, 1")
        A(f"s_lshl_b32 s{S_ROT}, s{S_ROT}, 2")
    elif OPT["rotmode"] == 4:
        A(f"s_add_u32 s{S_ROT}, s{S_CG}, s{ST+1}")
        A(f"s_and_b32 s{S_ROT}, s{S_ROT}, 3")
        A(f"s_lshl_b32 s{S_ROT}, s{S_ROT}, 1")
    A(f"s_lshr_b32 s{S_RH}, s{S_WAVE}, 1")
    A(f"s_and_b32 s{S_CH}, s{S_WAVE}, 1")
    A(f"s_lshl_b32 s{S_M0W}, s{S_WAVE}, 12")
    slin(ST + 2, 0, (S_SLOT, 512), (S_WAVE, 128))
    A(f"v_mov_b32 v7, s{ST+2}")
    A("v_lshrrev_b32 v3, 3, v1")
    A("v_and_b32 v4, 7, v1")
    A(f"v_and_b32 v{V_N}, 31, v1")
    A(f"v_lshrrev_b32 v{V_G}, 5, v1")
    if OPT["stamps"]: A("v_mov_b32 v255, 0")
    A("s_bitcmp1_b32 s2, 2")
    A("s_cbranch_scc1 L_roleB")

def code_prefetch():
    A(f"s_getpc_b64 s[{ST+4}:{ST+5}]")
    A(f"global_load_dword v254, v7, s[{ST+4}:{ST+5}]")

def common_setup(role):
    srd(SWS, K_WS, 0x10000000)
    srd(SOUT, K_OUT, 0x800000)
    A(f"s_lshl_b32 s{S_M0W2}, s{S_WAVE}, 13")
    A(f"s_mov_b32 s{S_MG}, 0")
    A(f"s_mov_b32 s{S_MG+1}, -1")
    A(f"s_sub_u32 s{S_MRH}, 0, s{S_RH}")
    A(f"s_mov_b32 s{S_MRH+1}, s{S_MRH}")
    A(f"s_mov_b32 s{S_L2E}, {LOG2E:#x}")
    A(f"s_mov_b32 s{S_L2E+1}, {LOG2E:#x}")
    A(f"s_mov_b32 s{S_M16}, 0xffff0000")
    A(f"s_mov_b32 s{S_M16+1}, 0xffff0000")
    A(f"s_add_u32 s{S_GRP}, s{S_CHUNK}, {0 if role == 'A' else 16}")
    slin(P_FLAGB, WS_FLAG, (S_GRP, 128))
    slin(P_FLAGO, 0, (S_CG, 16), (S_WAVE, 4), (P_FLAGB, 1))
    slin(P_XCCB, WS_XCC, (S_GRP, 128))
    A(f"s_and_b32 s{S_MF}, s{S_CG}, 1")
    slin(P_OUT, 0 if role == "A" else 2048, (S_CHUNK, 1 << 19), (S_RH, 1 << 18), (S_CG, 256), (S_CH, 128), (S_MF, 1 << 17))
    A(f"s_xor_b32 s{P_OUT2}, s{P_OUT}, {1 << 17:#x}")
    slin(P_TAGSEL, 0, (S_CHUNK, 256), (S_CG, 16), (S_WAVE, 1))
    A(f"v_lshlrev_b32 v{V_LIN}, 4, v{V_LANE}")
    A(f"v_mov_b32 v{V_L0}, {OOB:#x}")
    A(f"v_cmp_eq_u32 vcc, 0, v{V_LANE}")
    A(f"v_lshlrev_b32 v{V_FPO}, 2, v{V_N}")
    A(f"v_lshlrev_b32 v{V_XPO}, 2, v4")
    A(f"v_cndmask_b32_e64 v{V_L0}, v{V_L0}, 0, vcc")
    A(f"v_lshlrev_b32 v{V_OUTO}, 14, v{V_G}")
    A(f"v_lshl_add_u32 v{V_OUTO}, v{V_N}, 2, v{V_OUTO}")
    A(f"s_getreg_b32 s{S_XW}, hwreg(HW_REG_XCC_ID, 0, 4)")
    A("s_waitcnt lgkmcnt(0)")
    A(f"s_add_u32 s{S_TAG}, s{S_TAG}, 1")
    A(f"s_lshl_b32 s{ST}, s{S_TAG}, 4")
    A(f"s_or_b32 s{S_XW}, s{S_XW}, s{ST}")
    A(f"v_mov_b32 v9, s{S_XW}")
    slin(ST, 0, (S_CG, 4), (P_XCCB, 1))
    A(f"buffer_store_dword v9, v{V_L0}, s[{SWS}:{SWS+3}], s{ST} offen sc1")

def lds_b128_addrs(base_reg, wave_off_sreg, const, nsets):
    A(f"v_bfe_u32 v9, v{V_N}, 1, 3")
    A(f"v_xor_b32 v9, v9, v{V_G}")
    A("v_lshlrev_b32 v9, 4, v9")
    A(f"v_lshl_add_u32 v9, v{V_N}, 7, v9")
    A(f"v_add_u32 v9, s{wave_off_sreg}, v9")
    if const: A(f"v_add_u32 v9, {const:#x}, v9")
    for ks in range(4):
        A(f"v_xor_b32 v{base_reg+ks}, {32*ks}, v9")
    for st in range(1, nsets):
        for ks in range(4): A(f"v_add_u32 v{base_reg+4*st+ks}, {st*0x10000:#x}, v{base_reg+ks}")

def xcc_load(reg):
    A(f"buffer_load_dword v9, v{V_FPO}, s[{SWS}:{SWS+3}], s{P_FLAGB} offen sc1")
    A(f"buffer_load_dword v{reg}, v{V_XPO}, s[{SWS}:{SWS+3}], s{P_XCCB} offen sc1")
def xcc_decide(reg):
    if OPT["fast"]:
        A(f"v_cmp_ne_u32 vcc, 0, v{reg}")
        A(f"s_cmp_lg_u64 vcc, 0")
        A(f"s_cselect_b32 s{S_SLOW}, 1, 0")
    else:
        A(f"s_mov_b32 s{S_SLOW}, 1")

def two_ways(body):
    slow, join = lab("slow"), lab("join")
    A(f"s_cmp_lg_u32 s{S_SLOW}, 0")
    A(f"s_cbranch_scc1 {slow}")
    vm, lg, hist = A.vm, A.lg, list(A.hist)
    body("")
    A(f"s_branch {join}")
    return slow, join, (vm, lg, hist)

DEFER = []
def two_ways_inline_fast(body):
    slow, join = lab("slow"), lab("join")
    A(f"s_cmp_lg_u32 s{S_SLOW}, 0")
    A(f"s_cbranch_scc1 {slow}")
    hist = list(A.hist)
    body("")
    A.label(join)
    def later():
        A.label(slow)
        A.hist = list(hist)
        body(" sc1")
        A("s_nop 7")
        A(f"s_branch {join}")
    DEFER.append(later)

def flag_store(tok):
    A.wait_vm(tok)
    two_ways_inline_fast(lambda fl: A(f"buffer_store_dword v11, v{V_L0}, s[{SWS}:{SWS+3}], s{P_FLAGO} offen{fl}"))

def flag_poll(role):
    def loads():
        A(f"buffer_load_dword v13, v{V_FPO}, s[{SWS}:{SWS+3}], s{P_FLAGB} offen sc1")
    def check():
        A(f"v_cmp_ne_u32 s[{S_FAIL}:{S_FAIL+1}], s{S_TAG}, v13")
    poll(loads, check)

def tag_update(role):
    skip = lab("notag")
    A(f"s_cmp_eq_u32 s{P_TAGSEL}, {(15 if role == 'A' else 0) << 8}")
    A(f"s_cbranch_scc0 {skip}")
    A(f"buffer_store_dword v11, v{V_L0}, s[{SWS}:{SWS+3}], 0 offen offset:{WS_TAGA if role == 'A' else WS_TAGB} sc1")
    A.label(skip)

def out_stores(acc, ph):
    def mk(r):
        def f():
            row = 8 * (r >> 2) + (r & 3)
            A(f"s_add_u32 s{ST+1}, s{P_OUT+ph}, {row*4096}")
            A(f"buffer_store_dword v{acc+16*ph+r}, v{V_OUTO}, s[{SOUT}:{SOUT+3}], s{ST+1} offen sc1")
        return f
    return [mk(r) for r in range(16)]

XF = "nt " if OPT["xnt"] else ""
PLF = {0: "sc1 ", 1: "", 2: "sc0 ", 3: "nt "}[OPT.get("plf", 0)]

def role_A():
    V_AX, V_AW = 24, 32
    V_GO, V_SCW = 44, 3
    V_XF, V_WF = 48, 64
    URE, UIM = 80, 112
    ACC2 = 144
    HP = 176
    XS, DG, V_GE = 176, 192, 200
    V_PUB, V_XSO = 204, 205
    C_LAM, C_M1, C_M2, C_L, C_MQ, C_LQ, C_C2 = 208, 210, 212, 214, 216, 218, 220
    C_DSK = 222
    T0 = 224
    P_SAB, P_SAO, P_XS0, P_XS1 = P0, P0 + 1, P0 + 2, P0 + 3
    D = OPT["dist"]
    code_prefetch()
    A("v_lshrrev_b32 v9, 1, v3")
    A("v_xor_b32 v9, v9, v4")
    A("v_lshlrev_b32 v9, 4, v9")
    A("v_lshrrev_b32 v10, 2, v3")
    A("v_lshlrev_b32 v10, 5, v10")
    A("v_and_b32 v11, 1, v3")
    A("v_lshl_add_u32 v10, v11, 4, v10")
    A("v_bfe_u32 v11, v3, 1, 1")
    A("v_add_u32 v10, v10, v11")
    A("v_lshl_add_u32 v10, v10, 10, v9")
    slin(ST, 0, (S_CHUNK, 1 << 17), (S_RH, 1 << 16), (S_CH, 1 << 13))
    A(f"v_add_u32 v{V_OX}, s{ST}, v10")
    A(f"v_xor_b32 v11, 64, v{V_OX}")
    A(f"v_add_u32 v{V_OX+1}, 1024, v11")
    A(f"v_add_u32 v{V_OX+2}, 2048, v{V_OX}")
    A(f"v_add_u32 v{V_OX+3}, 3072, v11")
    A("v_lshl_add_u32 v10, v3, 10, v9")
    slin(ST, 0, (S_CG, 1 << 16), (S_CH, 1 << 15))
    A(f"v_add_u32 v{V_OW}, s{ST}, v10")
    A(f"v_xor_b32 v11, 64, v{V_OW}")
    A(f"v_add_u32 v{V_OW+1}, 7168, v11")
    A(f"v_add_u32 v{V_OW+2}, {2*7168}, v{V_OW}")
    A(f"v_add_u32 v{V_OW+3}, {3*7168}, v11")
    slin(ST, 0, (S_CG, 128), (S_CH, 64))
    A(f"v_lshl_add_u32 v14, v{V_N}, 1, s{ST}")
    A(f"s_cmp_eq_u32 s{S_RH}, 0")
    A("s_waitcnt lgkmcnt(0)")
    A(f"s_cselect_b32 s{SW}, s{K_BRE}, s{K_BIM}")
    A(f"s_cselect_b32 s{SW+1}, s{K_BRE+1}, s{K_BIM+1}")
    A(f"s_cselect_b32 s{SW2}, s{K_CRE}, s{K_CIM}")
    A(f"s_cselect_b32 s{SW2+1}, s{K_CRE+1}, s{K_CIM+1}")
    A(f"s_mov_b32 s{SW+2}, 0x80000")
    A(f"s_mov_b32 s{SW+3}, 0x20000")
    stamp(1)
    A(f"s_load_dword s{S_TAG}, s[{K_WS}:{K_WS+1}], {WS_TAGA}")
    srd(SX, K_AX, 0x200000)
    tok = {}
    def g1_pieces(i):
        slot = i & 3
        return (dma_pieces(V_OW, SW, ST + 8, slot * SLOT, pre=lambda: rot_soff(ST + 8, i, shift=7)) +
                dma_pieces(V_OX, SX, ST + 8, slot * SLOT + 16384, post=lambda: tok.__setitem__(i, A.vm), flags=XF))
    CSLOT = [4, 0, 1, 2]
    def c_pieces(st):
        return dma_pieces(V_OW, SW2, ST + 9, CSLOT[st >> 1] * SLOT + (st & 1) * 16384, pre=lambda: rot_soff(ST + 9, st, shift=7))
    A(f"global_load_ushort v{T0}, v14, s[{K_LRE}:{K_LRE+1}]")
    A(f"global_load_ushort v{T0+1}, v14, s[{K_LIM}:{K_LIM+1}]")
    A(f"global_load_ushort v{T0+2}, v14, s[{K_LDT}:{K_LDT+1}]")
    A(f"global_load_ushort v{C_DSK}, v14, s[{K_DSK}:{K_DSK+1}]")
    tok_small = A.vm
    run(g1_pieces(0))
    A(f"s_mov_b32 s{SW2+2}, 0x80000")
    A(f"s_mov_b32 s{SW2+3}, 0x20000")
    for i in range(1, D): run(g1_pieces(i))
    stamp(2)
    common_setup("A")
    slin(P_SAB, WS_SA, (S_CG, 1 << 14), (S_CH, 512))
    slin(P_SAO, 0, (S_CHUNK, 1024), (P_SAB, 1))
    slin(P_XS0, 0, (S_CHUNK, 1 << 17), (S_RH, 1 << 16), (S_CG, 128), (S_CH, 64), (S_MF, 32768))
    A(f"s_xor_b32 s{P_XS1}, s{P_XS0}, 32768")
    slin(P_ACTW, WS_H, (S_CHUNK, 1 << 18), (S_CG, 1 << 15), (S_WAVE, 4096))
    slin(P_ACTR, WS_H, (S_CHUNK, 1 << 18), (S_WAVE, 4096), (S_MF, 16384))
    A(f"s_xor_b32 s{P_ACTR2}, s{P_ACTR}, 16384")
    A(f"v_mov_b32 v{V_TAG}, s{S_TAG}")
    A(f"v_mov_b32 v11, s{S_TAG}")
    A(f"s_lshl_b32 s{ST}, s{S_RH}, 13")
    lds_b128_addrs(V_AX, ST, 16384, 2)
    A(f"s_lshl_b32 s{ST}, s{S_CH}, 12")
    lds_b128_addrs(V_AW, ST, 0, 3)
    A(f"v_lshlrev_b32 v{V_XSO}, 10, v{V_N}")
    A(f"v_lshl_add_u32 v{V_XSO}, v{V_G}, 5, v{V_XSO}")
    SCR = 3 * SLOT
    slin(ST, SCR, (S_CH, 256))
    A(f"v_lshl_add_u32 v4, v{V_N}, 3, s{ST}")
    A(f"s_lshl_b32 s{ST}, s{S_RH}, 10")
    A(f"v_lshl_add_u32 v3, v{V_G}, 9, v4")
    A(f"v_add_u32 v3, s{ST}, v3")
    A(f"v_lshlrev_b32 v13, 4, v{V_N}")
    A(f"v_mov_b32 v14, {OOB:#x}")
    A(f"s_or_b64 s[{ST+2}:{ST+3}], s[{S_MG}:{S_MG+1}], s[{S_MRH}:{S_MRH+1}]")
    A(f"v_cndmask_b32_e64 v{V_PUB}, v13, v14, s[{ST+2}:{ST+3}]")
    A(f"s_lshl_b32 s{ST+4}, s{S_RH}, 3")
    A(f"s_sub_u32 s{ST+4}, s{S_CHUNK}, s{ST+4}")
    A(f"s_sub_u32 s{ST+4}, s{ST+4}, 1")
    A(f"v_lshlrev_b32 v9, 2, v{V_G}")
    A(f"v_sub_u32 v9, s{ST+4}, v9")
    for i in range(4):
        A(f"v_subrev_u32 v{V_GO+i}, {i}, v9")
        A(f"v_cmp_gt_i32 vcc, 0, v{V_GO+i}")
        A(f"v_lshl_add_u32 v{V_GO+i}, v{V_GO+i}, 10, v13")
        A(f"v_cndmask_b32_e64 v{V_GE+i}, v{V_TAG}, 0, vcc")
        A(f"v_cndmask_b32 v{V_GO+i}, v{V_GO+i}, v14, vcc")
    A.wait_vm(tok_small)
    lre, lim, ldt = T0, T0 + 1, T0 + 2
    A(f"v_and_b32 v9, 1, v{V_N}")
    A("v_lshlrev_b32 v9, 4, v9")
    A(f"v_lshlrev_b32 v{C_DSK}, v9, v{C_DSK}")
    A(f"v_lshrrev_b32 v9, 1, v{V_N}")
    A(f"v_lshlrev_b32 v13, 3, v{V_G}")
    A("v_sub_u32 v9, v9, v13")
    for q in range(8):
        A(f"v_cmp_eq_u32 vcc, {q}, v9")
        A(f"v_cndmask_b32_e64 v{DG+q}, 0, v{C_DSK}, vcc")
    for r in (lre, lim, ldt): A(f"v_lshlrev_b32 v{r}, 16, v{r}")
    A(f"v_mul_f32 v{ldt}, s{S_L2E}, v{ldt}")
    A(f"v_exp_f32 v{ldt}, v{ldt}")
    A(f"v_cvt_pk_bf16_f32 v{ldt}, v{ldt}, v{ldt}")
    A(f"v_lshlrev_b32 v{ldt}, 16, v{ldt}")
    A(f"v_mul_f32 v{T0+4}, v{ldt}, v{lre}")
    A(f"v_mul_f32 v{T0+5}, v{ldt}, v{lim}")
    A(f"v_mul_f32 v{T0+4}, s{S_L2E}, v{T0+4}")
    A(f"v_exp_f32 v{T0+4}, v{T0+4}")
    A(f"v_mul_f32 v{T0+5}, {INV2PI:#x}, v{T0+5}")
    A(f"v_rndne_f32 v{T0+6}, v{T0+5}")
    A(f"v_sub_f32 v{T0+5}, v{T0+5}, v{T0+6}")
    A(f"v_cos_f32 v{T0+6}, v{T0+5}")
    A(f"v_sin_f32 v{T0+7}, v{T0+5}")
    A(f"v_mul_f32 v{C_LAM}, v{T0+4}, v{T0+6}")
    A(f"v_mul_f32 v{C_LAM+1}, v{T0+4}, v{T0+7}")
    A(f"v_add_f32 v{T0+4}, -1.0, v{C_LAM}")
    A(f"v_mul_f32 v{T0+5}, v{lre}, v{lre}")
    A(f"v_fmac_f32 v{T0+5}, v{lim}, v{lim}")
    A(f"v_rcp_f32 v{T0+5}, v{T0+5}")
    A(f"v_mul_f32 v{T0+6}, v{T0+4}, v{lre}")
    A(f"v_fmac_f32 v{T0+6}, v{C_LAM+1}, v{lim}")
    A(f"v_mul_f32 v{T0+7}, v{C_LAM+1}, v{lre}")
    A(f"v_fma_f32 v{T0+7}, -v{T0+4}, v{lim}, v{T0+7}")
    A(f"v_add_f32 v{T0+5}, v{T0+5}, v{T0+5}")
    A(f"v_mul_f32 v{C_C2}, v{T0+6}, v{T0+5}")
    A(f"v_mul_f32 v{C_C2+1}, v{T0+7}, v{T0+5}")
    pa, pb, tt = T0 + 8, T0 + 10, T0 + 12
    cmul(pa, C_LAM, C_LAM, tt)
    cmul(pb, pa, pa, tt)
    cmul(pa, pb, pb, tt)
    cmul(C_M1, pa, pa, tt)
    cmul(C_M2, C_M1, C_M1, tt)
    cmul(pa, C_M2, C_M2, tt)
    cmul(C_L, pa, pa, tt)
    def sel_pair(dst, src, mask):
        A(f"v_cndmask_b32_e64 v{dst}, 1.0, v{src}, s[{mask}:{mask+1}]")
        A(f"v_cndmask_b32_e64 v{dst+1}, 0, v{src+1}, s[{mask}:{mask+1}]")
    sel_pair(T0 + 14, C_M2, S_MG)
    sel_pair(T0 + 16, pa, S_MRH)
    cmul(C_MQ, T0 + 14, T0 + 16, tt)
    cmul(pa, C_L, C_L, tt)
    cmul(pb, pa, pa, tt)
    cmul(pa, pb, pb, tt)
    sel_pair(T0 + 14, pb, S_MG)
    sel_pair(T0 + 16, pa, S_MRH)
    cmul(C_LQ, T0 + 14, T0 + 16, tt)
    stamp(3)
    def rd(n):
        i, ks = n >> 2, n & 3
        slot, buf = i & 3, n & 1
        s2_, off = slot >> 1, (slot & 1) * SLOT
        x = [f"ds_read_b128 {vr(V_XF+buf*8+m*4,4)}, v{V_AX+4*s2_+ks} offset:{off+m*4096}" for m in range(2)]
        w = [f"ds_read_b128 {vr(V_WF+buf*8+ri*4,4)}, v{V_AW+4*s2_+ks} offset:{off+ri*8192}" for ri in range(2)]
        return [x[0], w[0], w[1], x[1]]
    def mm(n):
        buf = n & 1
        r = []
        for m, ri in ((0, 0), (0, 1), (1, 1), (1, 0)):
            d = vr((URE, UIM)[ri] + 16 * m, 16)
            r.append(mf(d, vr(V_XF + buf * 8 + m * 4, 4), vr(V_WF + buf * 8 + ri * 4, 4), d if n else "0"))
        return r
    fill = []
    def xs_load(m, s):
        return lambda: A(f"buffer_load_dwordx4 {vr(XS+8*m+4*s,4)}, v{V_XSO}, s[{SX}:{SX+3}], s{P_XS0+m} offen offset:{16*s}")
    def on_step(n):
        i, ks = n >> 2, n & 3
        if ks == 0:
            if i + D < 8: fill.extend(g1_pieces(i + D))
            elif i + D == 8:
                fill.extend([xs_load(m, s) for m in range(2) for s in range(2)])
                if not OPT.get("clate"): fill.extend(c_pieces(0) + c_pieces(1))
    A.wait_vm(tok[0])
    A("s_barrier")
    stamp(4)
    gemm_loop(32, rd, mm, lambda n: tok[n >> 2] if (n & 3) == 0 else None, (2, 2, 0, 0), (2, 3), fill, on_step, end_barrier=True)
    assert not fill
    stamp(5)
    P = [T0, T0 + 4]
    def lam_bc(hi): return f"op_sel:[{hi},0,0] op_sel_hi:[{hi},1,1]"
    NEG = "neg_lo:[1,0,0] neg_hi:[1,0,0]"
    cur_re, cur_im = URE, UIM
    for s in range(1, 16):
        d = P[s & 1]
        A(f"v_pk_fma_f32 {vr(d,2)}, {vr(C_LAM,2)}, {vr(cur_im,2)}, {vr(URE+2*s,2)} {lam_bc(1)} {NEG}")
        A(f"v_pk_fma_f32 {vr(d+2,2)}, {vr(C_LAM,2)}, {vr(cur_re,2)}, {vr(UIM+2*s,2)} {lam_bc(1)}")
        A(f"v_pk_fma_f32 {vr(d,2)}, {vr(C_LAM,2)}, {vr(cur_re,2)}, {vr(d,2)} {lam_bc(0)}")
        A(f"v_pk_fma_f32 {vr(d+2,2)}, {vr(C_LAM,2)}, {vr(cur_im,2)}, {vr(d+2,2)} {lam_bc(0)}")
        cur_re, cur_im = d, d + 2
    A0, BQ = T0 + 8, T0 + 10
    A(f"v_fma_f32 v{BQ}, v{C_M1}, v{cur_re}, v{cur_re+1}")
    A(f"v_fma_f32 v{BQ+1}, v{C_M1}, v{cur_im}, v{cur_im+1}")
    A(f"v_fma_f32 v{BQ}, -v{C_M1+1}, v{cur_im}, v{BQ}")
    A(f"v_fma_f32 v{BQ+1}, v{C_M1+1}, v{cur_re}, v{BQ+1}")
    A(f"ds_write_b64 v3, {vr(BQ,2)}")
    A(f"v_mov_b32 v{A0}, v{cur_re}")
    A(f"v_mov_b32 v{A0+1}, v{cur_im}")
    P2, P3, SS, tt = T0 + 20, T0 + 22, T0 + 24, T0 + 28
    A(f"v_mov_b32 v{SS+1}, s{S_TAG}")
    A(f"v_mov_b32 v{SS+3}, s{S_TAG}")
    def c2_bc(hi, n=3):
        return f"op_sel:[{hi},0,0] op_sel_hi:[{hi},1,1]" if n == 3 else f"op_sel:[{hi},0] op_sel_hi:[{hi},1]"
    cm = []
    for s in range(16):
        re, im, t = URE + 2 * s, UIM + 2 * s, T0 + 2 + 2 * (s & 1)
        cm += [f"v_pk_mul_f32 {vr(t,2)}, {vr(C_C2,2)}, {vr(re,2)} {c2_bc(1,2)} neg_lo:[1,0] neg_hi:[1,0]",
               f"v_pk_mul_f32 {vr(re,2)}, {vr(C_C2,2)}, {vr(re,2)} {c2_bc(0,2)}",
               f"v_pk_fma_f32 {vr(re,2)}, {vr(C_C2,2)}, {vr(im,2)}, {vr(re,2)} {c2_bc(1)} {NEG}",
               f"v_pk_fma_f32 {vr(im,2)}, {vr(C_C2,2)}, {vr(im,2)}, {vr(t,2)} {c2_bc(0)} {NEG}"]
    emit(cm[:8])
    A("s_waitcnt lgkmcnt(0)")
    A("s_barrier")
    B0 = T0 + 12
    for q in range(4):
        A(f"ds_read_b64 {vr(B0+2*q,2)}, v4 offset:{q*512}")
    emit(cm[8:24])
    A("s_waitcnt lgkmcnt(0)")
    cfma(P2, C_M2, B0, B0 + 2, tt)
    cfma(P3, C_M2, P2, B0 + 4, tt)
    cfma(tt, C_M2, P3, B0 + 6, tt)
    A(f"v_mov_b32 v{SS}, v{tt}")
    A(f"v_mov_b32 v{SS+2}, v{tt+1}")
    A(f"buffer_store_dwordx4 {vr(SS,4)}, v{V_PUB}, s[{SWS}:{SWS+3}], s{P_SAO} offen sc1")
    stamp(6)
    emit(cm[24:])
    LOC = T0 + 0
    for e in range(2):
        A(f"v_cndmask_b32_e64 v{T0+2+e}, 0, v{B0+e}, s[{S_MG}:{S_MG+1}]")
        A(f"v_cndmask_b32_e64 v{T0+4+e}, v{P2+e}, v{P3+e}, s[{S_MG}:{S_MG+1}]")
        A(f"v_cndmask_b32_e64 v{LOC+e}, v{T0+2+e}, v{T0+4+e}, s[{S_MRH}:{S_MRH+1}]")
    E0, F0, E1, F1 = T0 + 12, T0 + 14, T0 + 16, T0 + 18
    cfma(P2, C_M1, LOC, A0, tt)
    cmul(F1, C_C2, P2, tt)
    cmul(F0, C_C2, LOC, tt)
    cmul(E0, C_C2, C_MQ, tt)
    cmul(E1, E0, C_M1, tt)
    V_AH = V_AX
    A(f"v_bfe_u32 v9, v{V_LANE}, 4, 1")
    A(f"v_bfe_u32 v13, v{V_LANE}, 1, 1")
    A("v_lshl_add_u32 v9, v9, 1, v13")
    A(f"v_bfe_u32 v13, v{V_LANE}, 2, 2")
    A(f"v_lshl_add_u32 v13, v{V_G}, 3, v13")
    A("v_lshlrev_b32 v14, 2, v9")
    A("v_xor_b32 v13, v13, v14")
    A("v_lshlrev_b32 v13, 4, v13")
    A("v_lshl_add_u32 v13, v9, 9, v13")
    A(f"v_and_b32 v14, 1, v{V_LANE}")
    A("v_lshl_add_u32 v13, v14, 3, v13")
    A(f"s_lshl_b32 s{ST+2}, s{S_RH}, 13")
    A(f"v_add_u32 v{V_AH}, s{ST+2}, v13")
    A(f"v_xor_b32 v{V_AH+1}, 64, v{V_AH}")
    for st in (1, 2):
        A(f"v_add_u32 v{V_AH+2*st}, {st*0x10000:#x}, v{V_AH}")
        A(f"v_add_u32 v{V_AH+2*st+1}, {st*0x10000:#x}, v{V_AH+1}")
    stamp(7)
    GD = 48
    def loads():
        for i in range(4):
            A(f"buffer_load_dwordx4 {vr(GD+4*i,4)}, v{V_GO+i}, s[{SWS}:{SWS+3}], s{P_SAB} offen sc1")
        xcc_load(14)
    def check():
        A(f"v_xor_b32 v14, s{S_XW}, v14")
        A(f"v_lshrrev_b32 v13, 4, v14")
        for i in range(4):
            A(f"v_xor_b32 v{GD+4*i+1}, v{GD+4*i+1}, v{V_GE+i}")
            A(f"v_xor_b32 v{GD+4*i+3}, v{GD+4*i+3}, v{V_GE+i}")
            A(f"v_or3_b32 v13, v13, v{GD+4*i+1}, v{GD+4*i+3}")
        A(f"v_cmp_ne_u32 s[{S_FAIL}:{S_FAIL+1}], 0, v13")
    poll(loads, check)
    stamp(8)
    for i in range(4):
        A(f"v_mov_b32 v{GD+4*i+1}, v{GD+4*i+2}")
    h1, h2 = T0 + 20, T0 + 22
    cfma(h1, C_L, GD + 12, GD + 8, tt)
    cfma(h2, C_L, h1, GD + 4, tt)
    cfma(h1, C_L, h2, GD + 0, tt)
    cmul(h2, C_LQ, h1, tt)
    A(f"ds_write_b64 v3, {vr(h2,2)} offset:2048")
    for m in range(2):
        d = vr(ACC2 + 16 * m, 16)
        for s in range(2):
            A(mf(d, vr(XS + 8 * m + 4 * s, 4), vr(DG + 4 * s, 4), d if s else "0"))
    CL = bool(OPT.get("clate"))
    cfill = []
    for st in range(0 if CL else 2, 8): cfill += c_pieces(st)
    run(cfill[:4]); cfill = cfill[4:]
    xcc_decide(14)
    A(f"v_lshlrev_b32 v9, 14, v{V_G}")
    A(f"v_lshl_add_u32 v{V_GO}, v{V_N}, 4, v9")
    for o in range(1, 4):
        A(f"v_xor_b32 v{V_GO+o}, {o*64}, v{V_GO}")
    A("s_waitcnt lgkmcnt(0)")
    A("s_barrier")
    CQ = GD
    for q in range(4):
        A(f"ds_read_b64 {vr(CQ+2*q,2)}, v4 offset:{2048+q*512}")
    tq = A.lg
    def c_reads(st):
        slot = CSLOT[st >> 1]
        s2_, off = slot >> 1, (slot & 1) * SLOT + (st & 1) * 16384
        r = [None] * 8
        for ks in range(4):
            for ri in range(2):
                kap = (ks >> 1) * 4 + ri * 2 + (ks & 1)
                r[kap] = f"ds_read_b128 {ar((st*8+kap)*4,4)}, v{V_AW+4*s2_+ks} offset:{off+ri*8192}"
        return r
    run(cfill[:4]); cfill = cfill[4:]
    A.wait_lg(tq)
    A(f"v_pk_add_f32 {vr(CQ,2)}, {vr(CQ,2)}, {vr(CQ+2,2)}")
    A(f"v_pk_add_f32 {vr(CQ+4,2)}, {vr(CQ+4,2)}, {vr(CQ+6,2)}")
    A(f"v_pk_add_f32 {vr(CQ,2)}, {vr(CQ,2)}, {vr(CQ+4,2)}")
    HR, HI = T0 + 20, T0 + 22
    A(f"v_fma_f32 v{HR}, v{E0}, v{CQ}, v{F0}")
    A(f"v_fma_f32 v{HR+1}, v{E1}, v{CQ}, v{F1}")
    A(f"v_fma_f32 v{HI}, -v{E0}, v{CQ+1}, -v{F0+1}")
    A(f"v_fma_f32 v{HI+1}, -v{E1}, v{CQ+1}, -v{F1+1}")
    A(f"v_fma_f32 v{HR}, -v{E0+1}, v{CQ+1}, v{HR}")
    A(f"v_fma_f32 v{HR+1}, -v{E1+1}, v{CQ+1}, v{HR+1}")
    A(f"v_fma_f32 v{HI}, -v{E0+1}, v{CQ}, v{HI}")
    A(f"v_fma_f32 v{HI+1}, -v{E1+1}, v{CQ}, v{HI+1}")
    pr, pi_ = HR, HI
    for hf in range(2):
        for s in range(8 * hf, 8 * hf + 8):
            re, im = URE + 2 * s, UIM + 2 * s
            emit([f"v_pk_fma_f32 {vr(re,2)}, {vr(C_LAM,2)}, {vr(pi_,2)}, {vr(re,2)} {lam_bc(1)}",
                  f"v_pk_fma_f32 {vr(im,2)}, {vr(C_LAM,2)}, {vr(pr,2)}, {vr(im,2)} {lam_bc(1)} {NEG}",
                  f"v_pk_fma_f32 {vr(re,2)}, {vr(C_LAM,2)}, {vr(pr,2)}, {vr(re,2)} {lam_bc(0)}",
                  f"v_pk_fma_f32 {vr(im,2)}, {vr(C_LAM,2)}, {vr(pi_,2)}, {vr(im,2)} {lam_bc(0)}"])
            pr, pi_ = re, im
        for ri in range(2):
            U = (URE, UIM)[ri]
            for z in range(2):
                o = 2 * z + hf
                d = HP + (ri * 4 + o) * 4
                for u in range(4):
                    s0 = 8 * hf + 2 * u
                    A(f"v_cvt_pk_bf16_f32 v{d+u}, v{U+2*s0+z}, v{U+2*s0+2+z}")
                A(f"buffer_store_dwordx4 {vr(d,4)}, v{V_GO+o}, s[{SWS}:{SWS+3}], s{P_ACTW} offen offset:{(ri*4+o)*512} sc1")
    tok_h = A.vm
    stamp(9)
    if not CL:
        weave(c_reads(0) + c_reads(1), cfill, 1)
        run(cfill)
        flag_store(tok_h)
        stamp(10)
        A("s_waitcnt lgkmcnt(0)")
        A("s_barrier")
        emit(c_reads(2) + c_reads(3))
    else:
        run(cfill[:8]); cfill = cfill[8:]
        tok_c3 = A.vm
        flag_store(tok_h)
        run(cfill)
        stamp(10)
        A.wait_vm(tok_c3)
        A("s_barrier")
        emit(c_reads(0) + c_reads(1) + c_reads(2) + c_reads(3))
        A("s_waitcnt lgkmcnt(0)")
        A("s_barrier")
    flag_poll("A")
    stamp(11)
    HS = [3, 4, 0, 3, 4, 0, 3, 4]
    def h_pieces(G):
        r = []
        for sub in range(2):
            r += dma_pieces(V_LIN, SWS, ST + 8, HS[G] * SLOT + sub * 16384,
                            pre=lambda sub=sub: rot_soff(ST + 8, 2 * (G & 3) + sub, shift=15, plus=P_ACTR + (G >> 2)),
                            post=(lambda: tok.__setitem__(("h", G), A.vm)) if sub else None, flags=PLF, same_v=True)
        return r
    run(h_pieces(0) + h_pieces(1))
    stamp(12)
    HF = 48
    cin = c_reads(4) + c_reads(5) + c_reads(6) + c_reads(7)
    def rd2(n):
        G, q = n >> 2, n & 3
        slot, buf = HS[G], n & 1
        r = []
        for h in range(4):
            kap = 4 * (q & 1) + h
            off = (slot & 1) * SLOT + (q >> 1) * 16384 + (kap >> 2) * 4096 + ((kap >> 1) & 1) * 2048 + (kap & 1) * 256
            for j in range(2):
                r.append(f"ds_read_b64_tr_b16 {vr(HF+buf*16+h*4+2*j,2)}, v{V_AH+2*(slot>>1)+j} offset:{off}")
        return r
    def mm2(n):
        buf = n & 1
        d = vr(ACC2 + 16 * (n >> 4), 16)
        return [mf(d, vr(HF + buf * 16 + h * 4, 4), ar((4 * (n & 15) + h) * 4, 4), d) for h in range(4)]
    fill = []
    def both(a, b):
        return lambda: (A(a), b())
    def on_step2(n):
        G, q = n >> 2, n & 3
        if q == 0:
            hp = h_pieces(G + 2) if G + 2 < 8 else []
            if G < 2:
                for k in range(4):
                    c = [cin.pop(0) for _ in range(4)]
                    fill.extend([c[0], c[1], both(c[2], hp.pop(0)), both(c[3], hp.pop(0))])
            elif G == 6: fill.extend(out_stores(ACC2, 0))
            else: fill.extend(hp)
    A.wait_both(tok[("h", 0)], A.lg)
    A("s_barrier")
    stamp(13)
    gemm_loop(32, rd2, mm2, lambda n: tok[("h", n >> 2)] if (n & 3) == 0 else None, (3, 3, 2, 0),
              lambda n: (0, 1, 2, 3) if n < 8 else (2, 3), fill, on_step2)
    assert not fill
    stamp(14)
    run(out_stores(ACC2, 1))
    tag_update("A")
    stamp(15)
    finish()

def role_B():
    V_OO = 24
    V_AX, V_AT = 28, 36
    V_SW, V_SR, V_SO, V_SP, V_PB0, V_PB1, V_G1, V_GE1, V_G2 = 39, 40, 41, 42, 43, 44, 45, 46, 47
    V_WF = 48
    KACC, VACC, PK, KV, WPH = 64, 96, 128, 192, 224
    T0 = 232
    P_KVP, P_P1O, P_P1G, P_P2O, P_P2G, P_MSK = P0, P0 + 1, P0 + 2, P0 + 5, P0 + 6, P0 + 7
    S_PART = 57
    D = OPT["dist"]
    code_prefetch()
    A("v_lshrrev_b32 v9, 1, v3")
    A("v_xor_b32 v9, v9, v4")
    A("v_lshlrev_b32 v9, 4, v9")
    A("v_lshl_add_u32 v10, v3, 10, v9")
    slin(ST, 0, (S_CHUNK, 1 << 17), (S_WAVE, 1 << 15))
    A(f"v_add_u32 v{V_OX}, s{ST}, v10")
    A(f"v_xor_b32 v11, 64, v{V_OX}")
    A(f"v_add_u32 v{V_OX+1}, 7168, v11")
    A(f"v_add_u32 v{V_OX+2}, {2*7168}, v{V_OX}")
    A(f"v_add_u32 v{V_OX+3}, {3*7168}, v11")
    A("v_bfe_u32 v9, v3, 1, 1")
    A("v_lshlrev_b32 v9, 2, v9")
    A("v_xor_b32 v9, v9, v4")
    A("v_lshlrev_b32 v9, 4, v9")
    A(f"s_lshl_b32 s{ST}, s{S_CG}, 7")
    A(f"v_add_u32 v9, s{ST}, v9")
    A(f"s_lshl_b32 s{ST+1}, s{S_CH}, 5")
    A(f"v_add_u32 v10, s{ST+1}, v3")
    A("v_mul_u32_u24 v11, 3072, v10")
    A(f"v_add_u32 v{V_OW}, v11, v9")
    for p in range(1, 4): A(f"v_add_u32 v{V_OW+p}, {p*(8*3072-1024)}, v{V_OW}")
    A(f"v_lshl_add_u32 v{V_OO}, v10, 10, v9")
    A(f"v_lshrrev_b32 v9, 3, v{V_N}")
    A(f"v_and_b32 v10, 3, v{V_N}")
    A("v_lshl_add_u32 v9, v9, 2, v10")
    A("v_lshlrev_b32 v9, 1, v9")
    A(f"v_lshl_add_u32 v9, v{V_G}, 7, v9")
    slin(ST, 0, (S_CG, 2048), (S_CH, 1024))
    A(f"v_add_u32 v14, s{ST}, v9")
    slin(S_PART, 1024, (S_RH, 1024))
    A("s_waitcnt lgkmcnt(0)")
    srd(SW, K_WQKV, 0x180000)
    stamp(1)
    A(f"s_load_dword s{S_TAG}, s[{K_WS}:{K_WS+1}], {WS_TAGB}")
    srd(SX, K_BX, 0x200000)
    tok = {}
    def g1_pieces(i):
        slot = i & 3
        return (dma_pieces(V_OW, SW, ST + 8, slot * SLOT, pre=lambda: rot_soff(ST + 8, i, mul=196608, plus=S_PART)) +
                dma_pieces(V_OX, SX, ST + 10, slot * SLOT + 16384, pre=lambda: rot_soff(ST + 10, i, shift=7),
                           post=lambda: tok.__setitem__(i, A.vm), flags=XF))
    QSLOT = [4, 0]; OSLOT = [1, 2]
    def q_pieces(st):
        return dma_pieces(V_OW, SW, ST + 9, QSLOT[st >> 1] * SLOT + (st & 1) * 16384,
                          pre=lambda: rot_soff(ST + 9, 2 * st, mul=196608, extra_sreg=S_RH), post=lambda: tok.__setitem__(("q", st), A.vm))
    def o_pieces(st):
        return dma_pieces(V_OO, SW2, ST + 9, OSLOT[st >> 1] * SLOT + (st & 1) * 16384,
                          pre=lambda: rot_soff(ST + 9, 2 * st, shift=16, extra_sreg=S_RH))
    run(g1_pieces(0))
    for hh in range(2):
        for u in range(4):
            d0 = (0, 2, 8, 10)[u]
            A(f"global_load_ushort v{WPH+4*hh+u}, v14, s[{K_WPHI}:{K_WPHI+1}] offset:{hh*512+d0*32}")
            A(f"global_load_ushort v{T0+8+4*hh+u}, v14, s[{K_WPHI}:{K_WPHI+1}] offset:{hh*512+(d0+1)*32}")
    tok_small = A.vm
    srd(SW2, K_WO, 0x80000)
    for i in range(1, D): run(g1_pieces(i))
    stamp(2)
    common_setup("B")
    for p in range(1, 4): A(f"v_add_u32 v{V_OO+p}, {p*7168}, v{V_OO}")
    slin(ST, 0, (S_CG, 256), (S_CH, 128), (S_RH, 32), (S_CHUNK, 1))
    slin(P_P1O, WS_P1, (ST, 640))
    slin(ST, 0, (S_CG, 16), (S_CHUNK, 1))
    slin(P_P2O, WS_P2, (ST, 640))
    slin(P_P1G, WS_P1, (ST, 16 * 640))
    A(f"s_add_u32 s{P_P1G+1}, s{P_P1G}, {6*640}")
    A(f"s_add_u32 s{P_P1G+2}, s{P_P1G}, {12*640}")
    slin(ST, 0, (S_CG, 16), (S_CH, 8))
    slin(P_P2G, WS_P2, (ST, 640))
    A(f"s_mov_b32 s{P_MSK}, 0xffffff00")
    slin(P_ACTW, WS_O, (S_CHUNK, 1 << 17), (S_CG, 1 << 14), (S_RH, 1 << 12), (S_CH, 1 << 11))
    A(f"s_add_u32 s{P_ACTW2}, s{P_ACTW}, 8192")
    slin(P_ACTR, WS_O, (S_CHUNK, 1 << 17), (S_MF, 8192))
    A(f"s_xor_b32 s{P_ACTR2}, s{P_ACTR}, 8192")
    A(f"s_and_b32 s{ST}, s{S_TAG}, 0xff")
    A(f"v_mov_b32 v{V_TAG}, s{ST}")
    A(f"v_mov_b32 v11, s{S_TAG}")
    A(f"s_lshl_b32 s{ST}, s{S_RH}, 13")
    lds_b128_addrs(V_AX, ST, 16384, 2)
    A(f"v_bfe_u32 v9, v{V_LANE}, 4, 1")
    A(f"v_bfe_u32 v13, v{V_LANE}, 1, 1")
    A("v_lshl_add_u32 v3, v9, 1, v13")
    A(f"v_bfe_u32 v13, v{V_LANE}, 3, 1")
    A(f"v_xor_b32 v13, s{S_CH}, v13")
    A("v_lshl_add_u32 v9, v13, 2, v3")
    A("v_lshlrev_b32 v9, 4, v9")
    A(f"v_and_b32 v4, 1, v{V_LANE}")
    A("v_lshl_add_u32 v9, v4, 3, v9")
    A(f"v_bfe_u32 v14, v{V_LANE}, 2, 2")
    A(f"v_lshl_add_u32 v13, v{V_G}, 3, v14")
    A(f"v_lshl_add_u32 v{V_AT}, v13, 7, v9")
    A(f"v_add_u32 v{V_AT+1}, 0x10000, v{V_AT}")
    A(f"v_add_u32 v{V_AT+2}, 0x20000, v{V_AT}")
    SCR = 3 * SLOT
    slin(ST, SCR, (S_WAVE, 8192))
    A(f"v_mul_u32_u24 v9, 1152, v{V_G}")
    A(f"v_lshl_add_u32 v9, v{V_N}, 4, v9")
    A(f"v_add_u32 v{V_SW}, s{ST}, v9")
    A("v_mul_u32_u24 v9, 576, v3")
    A(f"v_lshl_add_u32 v13, v{V_G}, 2, v14")
    A("v_lshl_add_u32 v9, v13, 4, v9")
    A("v_lshl_add_u32 v9, v4, 3, v9")
    A(f"v_add_u32 v{V_SR}, s{ST}, v9")
    A(f"v_add_u32 v{V_SO}, s{ST}, v{V_LIN}")
    A(f"v_xor_b32 v{V_SP}, 0x4000, v{V_SO}")
    A(f"v_and_b32 v9, 15, v{V_LANE}")
    A("v_cmp_eq_u32 vcc, 0, v9")
    A(f"v_lshl_add_u32 v9, v9, 1, v{V_G}")
    A("v_lshlrev_b32 v9, 4, v9")
    A(f"v_lshlrev_b32 v13, 4, v{V_G}")
    A("v_add_u32 v13, 512, v13")
    A(f"v_mov_b32 v14, {OOB:#x}")
    A("v_cndmask_b32 v13, v14, v13, vcc")
    A(f"v_cndmask_b32_e64 v{V_PB0}, v9, v13, s[{S_M16}:{S_M16+1}]")
    A(f"v_cndmask_b32_e64 v{V_PB1}, v13, v9, s[{S_M16}:{S_M16+1}]")
    A(f"s_mul_i32 s{ST}, s{S_WAVE}, 136")
    A(f"v_lshl_add_u32 v9, v{V_LANE}, 2, s{ST}")
    A(f"v_cmp_gt_u32 vcc, 34, v{V_LANE}")
    A(f"v_cndmask_b32 v{V_G1}, v14, v9, vcc")
    A(f"v_cndmask_b32 v{V_GE1}, 0, v{V_TAG}, vcc")
    A(f"v_bfe_u32 v9, v{V_N}, 2, 1")
    A("v_lshlrev_b32 v9, 3, v9")
    A(f"v_bfe_u32 v13, v{V_N}, 3, 1")
    A("v_lshl_add_u32 v9, v13, 2, v9")
    A(f"v_and_b32 v13, 3, v{V_N}")
    A("v_add_u32 v9, v9, v13")
    A(f"v_cndmask_b32_e64 v9, v9, 16, s[{S_M16}:{S_M16+1}]")
    A("v_lshlrev_b32 v9, 5, v9")
    A(f"v_mul_u32_u24 v13, 1280, v{V_G}")
    A(f"v_add_u32 v{V_G2}, v9, v13")
    A("v_mov_b32 v3, 0x3f803f80")
    A(f"v_bfe_u32 v4, v{V_LANE}, 2, 1")
    A("v_mul_u32_u24 v4, 0x8000, v4")
    A("v_lshl_or_b32 v4, v4, 16, v4")
    stamp(3)
    def trfrag(dst, ldsoff, kind="v"):
        s_, off = ldsoff >> 16, ldsoff & 0xffff
        return [f"ds_read_b64_tr_b16 {vr(dst+2*j,2,kind)}, v{V_AT+s_} offset:{off+j*512}" for j in range(2)]
    def rd(n):
        i, ks = n >> 2, n & 3
        slot, buf = i & 3, n & 1
        s2_, off = slot >> 1, (slot & 1) * SLOT
        x = [f"ds_read_b128 {ar(n*8+m*4,4)}, v{V_AX+4*s2_+ks} offset:{off+m*4096}" for m in range(2)]
        w = [trfrag(V_WF + buf * 8 + part * 4, slot * SLOT + part * 8192 + ks * 2048) for part in range(2)]
        return [x[0]] + w[0] + [x[1]] + w[1]
    def mm(n):
        buf = n & 1
        r = []
        for part, m in ((0, 0), (0, 1), (1, 0), (1, 1)):
            x, w = ar(n * 8 + m * 4, 4), vr(V_WF + buf * 8 + part * 4, 4)
            d = vr((KACC, VACC)[part] + 16 * m, 16)
            r.append(mf(d, w, x, d if n else "0") if part == 0 else mf(d, x, w, d if n else "0"))
        return r
    fill = []
    def on_step(n):
        i, ks = n >> 2, n & 3
        if ks == 0:
            if i + D < 8: fill.extend(g1_pieces(i + D))
            elif i + D == 8: fill.extend(q_pieces(0) + q_pieces(1))
            elif i + D == 9:
                for r in range(8):
                    fill.append(lambda r=r: (A(f"v_lshl_or_b32 v{WPH+r}, v{T0+8+r}, 16, v{WPH+r}"), A(f"v_xor_b32 v{WPH+r}, v4, v{WPH+r}")))
    A.wait_vm(tok[0])
    A("s_barrier")
    stamp(4)
    gemm_loop(32, rd, mm, lambda n: tok[n >> 2] if (n & 3) == 0 else None, (3, 3, 0, 0), (2, 3), fill, on_step, end_barrier=True)
    assert not fill
    stamp(5)
    def feat(acc):
        for m in range(2):
            for u in range(8):
                A(f"v_cvt_pk_bf16_f32 v{acc+16*m+u}, v{acc+16*m+2*u}, v{acc+16*m+2*u+1}")
            for hh in range(2):
                A(mf(vr(PK + (m * 2 + hh) * 16, 16), vr(WPH + 4 * hh, 4), vr(acc + 16 * m + 4 * hh, 4), "0"))
    def softmax_l(x, dst):
        mx, sm = T0, T0 + 2
        l = [f"v_max3_f32 v{mx}, v{x}, v{x+1}, v{x+2}"]
        for u in range(3, 15, 2):
            l.append(f"v_max3_f32 v{mx}, v{mx}, v{x+u}, v{x+u+1}")
        l.append(f"v_max_f32 v{mx}, v{mx}, v{x+15}")
        l.append(f"v_mul_f32 v{mx}, s{S_L2E}, v{mx}")
        for u in range(8):
            l.append(f"v_pk_fma_f32 {vr(x+2*u,2)}, {vr(x+2*u,2)}, s[{S_L2E}:{S_L2E+1}], {vr(mx,2)} op_sel_hi:[1,1,0] neg_lo:[0,0,1] neg_hi:[0,0,1]")
        for u in range(16):
            l.append(f"v_exp_f32 v{x+u}, v{x+u}")
        l.append(f"v_pk_add_f32 {vr(sm,2)}, {vr(x,2)}, {vr(x+2,2)}")
        for u in range(2, 8):
            l.append(f"v_pk_add_f32 {vr(sm,2)}, {vr(sm,2)}, {vr(x+2*u,2)}")
        l.append(f"v_add_f32 v{sm}, v{sm}, v{sm+1}")
        l.append(f"v_rcp_f32 v{sm}, v{sm}")
        for u in range(8):
            l.append(f"v_pk_mul_f32 {vr(x+2*u,2)}, {vr(x+2*u,2)}, {vr(sm,2)} op_sel_hi:[1,0]")
        for u in range(8):
            l.append(f"v_cvt_pk_bf16_f32 v{dst+u}, v{x+2*u}, v{x+2*u+1}")
        return l
    feat(KACC)
    stamp(17)
    for m in range(2):
        for u in range(8):
            A(f"v_cvt_pk_bf16_f32 v{VACC+16*m+u}, v{VACC+16*m+2*u}, v{VACC+16*m+2*u+1}")
    for m in range(2):
        for u in range(8):
            A(f"v_cndmask_b32_e64 v{VACC+16*m+8+u}, v3, v{VACC+16*m+u}, s[{S_M16}:{S_M16+1}]")
            A(f"v_cndmask_b32_e64 v{VACC+16*m+u}, v{VACC+16*m+u}, v3, s[{S_M16}:{S_M16+1}]")
    stamp(18)
    PH = [KACC + 8, V_WF + 8]
    PT = [KACC + 24, V_WF]
    def kvmm(blk):
        m, hh = blk >> 1, blk & 1
        d = vr(KV + 16 * hh, 16)
        return [mf(d, vr(PT[blk & 1] + 4 * mm_, 4), vr(VACC + 16 * m + 8 * hh + 4 * mm_, 4), d if (m or mm_) else "0") for mm_ in range(2)]
    for blk in range(4):
        l = softmax_l(PK + blk * 16, PH[blk & 1])
        if blk:
            l = l[:20] + ["s_waitcnt lgkmcnt(0)"] + kvmm(blk - 1) + l[20:]
        emit(l)
        bo = (blk & 1) * 2304
        A(f"ds_write_b128 v{V_SW}, {vr(PH[blk&1],4)} offset:{bo}")
        A(f"ds_write_b128 v{V_SW}, {vr(PH[blk&1]+4,4)} offset:{bo+576}")
        for mm_ in range(2):
            for j in range(2):
                A(f"ds_read_b64_tr_b16 {vr(PT[blk&1]+4*mm_+2*j,2)}, v{V_SR} offset:{bo+(16*mm_+8*j)*16}")
        stamp(19 + blk)
    KEEP, SEND = PK, PK + 16
    for u in range(8):
        A(f"v_cndmask_b32_e64 v{SEND+u}, v{KV+8+u}, v{KV+u}, s[{S_MRH}:{S_MRH+1}]")
        A(f"v_cndmask_b32_e64 v{KEEP+u}, v{KV+u}, v{KV+8+u}, s[{S_MRH}:{S_MRH+1}]")
    A("s_waitcnt lgkmcnt(0)")
    emit(kvmm(3))
    for u in range(2):
        A(f"ds_write_b128 v{V_SO}, {vr(SEND+4*u,4)} offset:{u*1024}")
    for u in range(8):
        A(f"v_cndmask_b32_e64 v{SEND+8+u}, v{KV+24+u}, v{KV+16+u}, s[{S_MRH}:{S_MRH+1}]")
    for u in range(2):
        A(f"ds_write_b128 v{V_SO}, {vr(SEND+8+4*u,4)} offset:{(2+u)*1024}")
    for u in range(8):
        A(f"v_cndmask_b32_e64 v{KEEP+8+u}, v{KV+16+u}, v{KV+24+u}, s[{S_MRH}:{S_MRH+1}]")
    A("s_waitcnt lgkmcnt(0)")
    stamp(23)
    A("s_barrier")
    stamp(24)
    for u in range(4):
        A(f"ds_read_b128 {vr(SEND+4*u,4)}, v{V_SP} offset:{u*1024}")
    tq = A.lg
    QACC = KACC
    def qaddr(n):
        i, ks = n >> 2, n & 3
        return QSLOT[i >> 2] * SLOT + (i & 3) * 8192 + ks * 2048
    def rdq(n):
        return trfrag(V_WF + (n & 1) * 8, qaddr(2 * n)) + trfrag(V_WF + (n & 1) * 8 + 4, qaddr(2 * n + 1))
    def mmq(n):
        r = []
        for h in range(2):
            for m in range(2):
                d = vr(QACC + 16 * m, 16)
                r.append(mf(d, vr(V_WF + (n & 1) * 8 + 4 * h, 4), ar((2 * n + h) * 8 + m * 4, 4), d if (n or h) else "0"))
        return r
    A.wait_lg(tq)
    for hh in range(2):
        for jj in range(2):
            r = KEEP + 8 * hh + 4 * jj
            for u in range(2):
                A(f"v_pk_add_f32 {vr(r+2*u,2)}, {vr(r+2*u,2)}, {vr(r+16+2*u,2)}")
            for e in range(4):
                A(f"v_and_or_b32 v{r+e}, v{r+e}, s{P_MSK}, v{V_TAG}")
            A(f"s_add_u32 s{ST+3}, s{P_P1O}, {(hh*4+jj)*16*640}")
            A(f"buffer_store_dwordx4 {vr(r,4)}, v{V_PB0+hh}, s[{SWS}:{SWS+3}], s{ST+3} offen sc1")
    stamp(6)
    run(q_pieces(2) + q_pieces(3))
    GD = VACC
    g1l = [f"buffer_load_dword v{GD+s}, v{V_G1}, s[{SWS}:{SWS+3}], s{P_P1G+s//6} offen offset:{(s%6)*640} sc1" for s in range(16)]
    fill = []
    def on_stepq(n):
        if n == 0: fill.extend(o_pieces(0) + o_pieces(1) + o_pieces(2) + o_pieces(3))
        if n == 12: fill.extend(g1l)
    stamp(25)
    A.wait_vm(tok[("q", 1)])
    A("s_barrier")
    stamp(26)
    gemm_loop(16, rdq, mmq, lambda n: tok[("q", 3)] if n == 8 else None, (2, 2, 0, 0),
              lambda n: (0, 1, 2, 3) if n >= 12 else (2, 3), fill, on_stepq)
    assert not fill
    stamp(7)
    def check():
        A(f"v_xor_b32 v13, v{GD}, v{V_GE1}")
        for s in range(1, 16):
            A(f"v_bitop3_b32 v13, v{GD+s}, v{V_GE1}, v13 bitop3:0xbe")
        A("v_and_b32 v13, 0xff, v13")
        A(f"v_cmp_ne_u32 s[{S_FAIL}:{S_FAIL+1}], 0, v13")
    feat(QACC)
    poll_pre(lambda: emit(g1l), check)
    for st in (8, 4, 2):
        for u in range(0, st, 2):
            A(f"v_pk_add_f32 {vr(GD+u,2)}, {vr(GD+u,2)}, {vr(GD+st+u,2)}")
    A(f"v_add_f32 v{GD}, v{GD}, v{GD+1}")
    A(f"v_and_or_b32 v{GD}, v{GD}, s{P_MSK}, v{V_TAG}")
    A(f"buffer_store_dword v{GD}, v{V_G1}, s[{SWS}:{SWS+3}], s{P_P2O} offen sc1")
    stamp(8)
    PHQ = KV
    FD = PK
    def loads2():
        for hh in range(2):
            for jp in range(2):
                r = FD + (hh * 2 + jp) * 8
                off = (hh * 4 + jp) * 640
                A(f"buffer_load_dwordx4 {vr(r,4)}, v{V_G2}, s[{SWS}:{SWS+3}], s{P_P2G} offen offset:{off} sc1")
                A(f"buffer_load_dwordx4 {vr(r+4,4)}, v{V_G2}, s[{SWS}:{SWS+3}], s{P_P2G} offen offset:{off+16} sc1")
        xcc_load(14)
    def check2():
        A(f"v_xor_b32 v13, v{FD}, v{V_TAG}")
        for s in range(1, 32):
            A(f"v_bitop3_b32 v13, v{FD+s}, v{V_TAG}, v13 bitop3:0xbe")
        A(f"v_xor_b32 v14, s{S_XW}, v14")
        A("v_and_b32 v13, 0xff, v13")
        A("v_lshrrev_b32 v9, 4, v14")
        A("v_or_b32 v13, v13, v9")
        A(f"v_cmp_ne_u32 s[{S_FAIL}:{S_FAIL+1}], 0, v13")
    for blk in range(4):
        if blk == 3: loads2()
        emit(softmax_l(PK + blk * 16, PHQ + 8 * blk))
    stamp(9)
    poll_pre(loads2, check2)
    stamp(10)
    KVF = VACC
    ODR = [KACC, KACC + 16, PK + 32, PK + 48]
    for hh in range(2):
        for q in (2 * hh, 2 * hh + 1):
            for u in range(4):
                A(f"v_cvt_pk_bf16_f32 v{KVF+4*q+u}, v{FD+8*q+2*u}, v{FD+8*q+2*u+1}")
        for m in range(2):
            blk = 2 * m + hh
            d = vr(ODR[blk], 16)
            for jp in range(2):
                A(mf(d, vr(KVF + (hh * 2 + jp) * 4, 4), vr(PHQ + 8 * blk + 4 * jp, 4), d if jp else "0"))
    xcc_decide(14)
    for blk in (0, 2, 1, 3):
        m, hh = blk >> 1, blk & 1
        o = ODR[blk]
        A(f"v_add_f32 v{o+8}, 0x358637bd, v{o+8}")
        A(f"v_rcp_f32 v{o+8}, v{o+8}")
        for u in range(4):
            A(f"v_pk_mul_f32 {vr(o+2*u,2)}, {vr(o+2*u,2)}, {vr(o+8,2)} op_sel_hi:[1,0]")
        for u in range(4):
            A(f"v_cvt_pk_bf16_f32 v{o+12+u}, v{o+2*u}, v{o+2*u+1}")
        A(f"buffer_store_dwordx4 {vr(o+12,4)}, v{V_LIN}, s[{SWS}:{SWS+3}], s{P_ACTW+m} offen offset:{hh*1024} sc1")
    tok_o = A.vm
    A(f"s_lshl_b32 s{ST+5}, s{S_RH}, 12")
    A(f"v_add_u32 v{V_AX}, s{ST+5}, v{V_LIN}")
    A(f"v_add_u32 v{V_AX+1}, 0x10000, v{V_AX}")
    A(f"v_add_u32 v{V_AX+2}, 0x20000, v{V_AX}")
    A("s_barrier")
    flag_store(tok_o)
    stamp(11)
    flag_poll("B")
    stamp(12)
    OS = [3, 4, 0, 3]
    def of_pieces(G):
        return (dma_pieces(V_LIN, SWS, ST + 8, OS[G] * SLOT, m0reg=S_M0W2, same_v=True, flags=PLF,
                           pre=lambda: rot_soff(ST + 8, 4 * (G & 1), shift=14, extra_sreg=S_WAVE, plus=P_ACTR + (G >> 1))) +
                dma_pieces(V_LIN, SWS, ST + 8, OS[G] * SLOT + 4096, m0reg=S_M0W2, same_v=True, flags=PLF,
                           pre=lambda: A(f"s_add_u32 s{ST+8}, s{ST+8}, 4096"), post=lambda: tok.__setitem__(("of", G), A.vm)))
    run(of_pieces(0) + of_pieces(1))
    OF = PK
    OACC = VACC
    def rd4(n):
        G, q = n >> 2, n & 3
        slot = OS[G]
        r = []
        for h in range(4):
            r.append(f"ds_read_b128 {vr(OF+(n&1)*16+h*4,4)}, v{V_AX+(slot>>1)} offset:{(slot&1)*SLOT+q*8192+h*1024}")
            if n < 8:
                r += trfrag((4 * n + h) * 4, OSLOT[n >> 2] * SLOT + (n & 3) * 8192 + h * 2048, "a")
        return r
    def mm4(n):
        d = vr(OACC + 16 * (n >> 3), 16)
        return [mf(d, vr(OF + (n & 1) * 16 + h * 4, 4), ar((4 * (n & 7) + h) * 4, 4), d if ((n & 7) or h) else "0") for h in range(4)]
    fill = []
    def on_step4(n):
        if n in (0, 4): fill.extend(of_pieces((n >> 2) + 2))
        if n == 9: fill.extend(out_stores(OACC, 0))
    A.wait_vm(tok[("of", 0)])
    A("s_barrier")
    stamp(13)
    gemm_loop(16, rd4, mm4, lambda n: tok[("of", n >> 2)] if (n & 3) == 0 else None, (4, 4, 3, 1),
              lambda n: (1, 2, 3) if n >= 9 else (2, 3), fill, on_step4)
    assert not fill
    stamp(14)
    run(out_stores(OACC, 1))
    tag_update("B")
    stamp(15)
    finish()

prologue()
vm0, lg0 = A.vm, A.lg
role_A()
for f in DEFER: f()
DEFER.clear()
A.label("L_roleB")
ROLE[0] = "B"
A.vm, A.lg = vm0, lg0
A.hist = []
role_B()
for f in DEFER: f()
A.label("L_end")
A("s_endpgm")

lines = A.out
if OPT["align"]:
    lines, nw, nn = align(lines)
    print("align: widened", nw, "nops", nn)
HEAD = open("cdna_kernels/" + NAME + ".s.ref").read().split("; Override launch geometry")[0]
src = HEAD + f"""; @launch grid=(256,1,1) block=(256,1,1) lds=163840
.amdgcn_target "amdgcn-amd-amdhsa--gfx950"
.text
.globl {NAME}_kernel
.p2align 8
.type {NAME}_kernel,@function
{NAME}_kernel:
""" + "\n".join(lines) + f"""
.fill 4096, 4, 0xBF810000
.section .rodata,"a"
.p2align 6
.amdhsa_kernel {NAME}_kernel
  .amdhsa_next_free_vgpr 512
  .amdhsa_next_free_sgpr 102
  .amdhsa_accum_offset 256
  .amdhsa_group_segment_fixed_size 0
  .amdhsa_kernarg_size 128
  .amdhsa_user_sgpr_count 2
  .amdhsa_user_sgpr_kernarg_segment_ptr 1
  .amdhsa_system_sgpr_workgroup_id_x 1
.end_amdhsa_kernel
"""
open(sys.argv[1], "w").write(src)
print("hazard nops:", A.nnop, "lines:", len(lines))
```

```python
import sys
from dsl import Asm, vr, ar, sr
from align import align

NAME = "concat_heads__ssm_conv_s5__linear_kernel_hedgehog__prompt"
OPT = dict(stamps=False, rotmode=2, align=1, xnt=0, hwait=8, owait=4, hand=0)
for a_ in sys.argv[2:]:
    k_, _, v_ = a_.partition("=")
    OPT[k_] = int(v_) if v_ else True

WS_TAGA, WS_TAGB = 0x0, 0x80
WS_XCC = 0x1000
WS_FLAG = 0x2000
WS_SA = 0x10000
WS_P1 = 0x100000
WS_P2 = 0x3C0000
WS_H = 0x400000
WS_O = 0x800000
WS_STAMP = 0xA00000
OOB = 0x40000000
SPIN_LIMIT = 1 << 14
LOG2E = 0x3FB8AA3B
INV2PI = 0x3E22F983

S_WAVE, S_CHUNK, S_CG, S_ROT, S_TAG = 3, 4, 5, 6, 7
SX, SW, SW2, SWS, SOUT = 8, 12, 16, 20, 24
S_RH, S_CH, S_SLOT, S_GRP = 28, 29, 30, 31
ST = 32
S_M0W, S_M0W2 = 48, 49
S_MG = 50
S_MRH = 52
S_L2E = 54
S_CNT = 56
S_FAIL = 58
S_M16 = 60
S_SM0, S_RS = 62, 63
S_XW, S_SLOW, P_FLW = 91, 92, 93
S_ROT1 = 47
HAND = OPT['hand']
KA = 64
K_AX, K_LRE, K_LIM, K_BRE, K_BIM, K_CRE, K_CIM, K_LDT, K_DSK, K_BX, K_WQKV, K_WPHI, K_WO, K_OUT, K_DBG, K_WS = [KA + 2 * i for i in range(16)]
P_FLAGB, P_FLAGO, P_XCCB, P_TAGSEL, P_OUT, P_OUT2, P_ACTR, P_ACTR2 = range(64, 72)
P_ACTW, P_ACTW2, S_MF = 88, 89, 90
P0 = 72
S_STAMP = 96
V_LANE, V_OUTO, V_N, V_G, V_LIN, V_TAG, V_L0, V_CHK, V_XPO = 1, 2, 5, 6, 7, 8, 10, 12, 15
V_OX, V_OW = 16, 20
SLOT = 32768

A = Asm()
nlab = [0]

def srd(dst, ptr, nbytes):
    A(f"s_mov_b32 s{dst}, s{ptr}")
    A(f"s_mov_b32 s{dst+1}, s{ptr+1}")
    A(f"s_mov_b32 s{dst+2}, {nbytes:#x}")
    A(f"s_mov_b32 s{dst+3}, 0x20000")

def slin(dst, const, *terms):
    first = True
    for reg, mul in terms:
        t = dst if first else ST + 14
        if mul == 1:
            if first: A(f"s_mov_b32 s{dst}, s{reg}")
            else: t = reg
        elif mul & (mul - 1) == 0: A(f"s_lshl_b32 s{t}, s{reg}, {mul.bit_length()-1}")
        else: A(f"s_mul_i32 s{t}, s{reg}, {mul}")
        if not first: A(f"s_add_u32 s{dst}, s{dst}, s{t}")
        first = False
    if const: A(f"s_add_u32 s{dst}, s{dst}, {const:#x}")

ROLE = ["A"]
def stamp(idx):
    if OPT.get("probe") == idx + (0 if ROLE[0] == "A" else 100):
        A("s_memrealtime s[96:97]")
        A("s_waitcnt lgkmcnt(0)")
        A("s_sub_u32 s99, s96, s100")
    if not OPT["stamps"]: return
    A(f"s_memtime s[{S_STAMP}:{S_STAMP+1}]")
    A("s_waitcnt lgkmcnt(0)")
    A(f"s_sub_u32 s{S_STAMP}, s{S_STAMP}, s98")
    A(f"v_writelane_b32 v255, s{S_STAMP}, {idx}")
    if OPT.get("rt") and idx <= 16:
        A(f"s_memrealtime s[{S_STAMP}:{S_STAMP+1}]")
        A("s_waitcnt lgkmcnt(0)")
        A(f"s_sub_u32 s{S_STAMP}, s{S_STAMP}, s100")
        A(f"v_writelane_b32 v255, s{S_STAMP}, {idx+44}")

def lab(n):
    nlab[0] += 1
    return f"L_{n}_{nlab[0]}"

def finish():
    if OPT.get("probe") and (OPT["probe"] >= 100) == (ROLE[0] == "B"):
        if OPT["probe"] % 100 == 16:
            A("s_waitcnt vmcnt(0)")
            stamp(16)
        l = lab("pr")
        A("s_lshl_b32 s99, s99, 1")
        A("s_add_u32 s99, s99, 2500")
        A.label(l)
        A("s_memrealtime s[96:97]")
        A("s_waitcnt lgkmcnt(0)")
        A("s_sub_u32 s96, s96, s100")
        A("s_cmp_lt_u32 s96, s99")
        A(f"s_cbranch_scc1 {l}")
    if OPT.get("fixrt"):
        l = lab("rt")
        A.label(l)
        A("s_memrealtime s[96:97]")
        A("s_waitcnt lgkmcnt(0)")
        A("s_sub_u32 s96, s96, s100")
        A(f"s_cmp_lt_u32 s96, {OPT['fixrt']}")
        A(f"s_cbranch_scc1 {l}")
    if OPT["stamps"]:
        A("s_waitcnt vmcnt(0)")
        stamp(16)
        A("v_writelane_b32 v255, s99, 30")
        A("s_memrealtime s[96:97]")
        A("v_writelane_b32 v255, s100, 40")
        A("s_waitcnt lgkmcnt(0)")
        A("v_writelane_b32 v255, s96, 41")
        slin(ST, WS_STAMP, (2, 1024), (S_WAVE, 256))
        A(f"v_lshlrev_b32 v254, 2, v{V_LANE}")
        A(f"buffer_store_dword v255, v254, s[{SWS}:{SWS+3}], s{ST} offen")
    A("s_endpgm")

def mf(d, a, b, c):
    return f"v_mfma_f32_32x32x16_bf16 {d}, {a}, {b}, {c}"

def poll(loads, check):
    top, done = lab("poll"), lab("ok")
    A(f"s_mov_b32 s{S_CNT}, {SPIN_LIMIT}")
    A.label(top)
    loads()
    A("s_waitcnt vmcnt(0)")
    check()
    A(f"s_cmp_eq_u64 s[{S_FAIL}:{S_FAIL+1}], 0")
    A(f"s_cbranch_scc1 {done}")
    A(f"s_sub_u32 s{S_CNT}, s{S_CNT}, 1")
    A(f"s_cbranch_scc0 {top}")
    A.label(done)

def poll_pre(loads, check):
    top, done = lab("poll"), lab("ok")
    A(f"s_mov_b32 s{S_CNT}, {SPIN_LIMIT}")
    A.label(top)
    A("s_waitcnt vmcnt(0)")
    check()
    A(f"s_cmp_eq_u64 s[{S_FAIL}:{S_FAIL+1}], 0")
    A(f"s_cbranch_scc1 {done}")
    loads()
    A(f"s_sub_u32 s{S_CNT}, s{S_CNT}, 1")
    A(f"s_cbranch_scc0 {top}")
    A("s_waitcnt vmcnt(0)")
    A.label(done)

def cfma_l(d, a, b, c, t):
    return [f"v_pk_fma_f32 {vr(t,2)}, {vr(a,2)}, {vr(b,2)}, {vr(c,2)} op_sel:[1,1,0] op_sel_hi:[1,0,1] neg_lo:[1,0,0]",
            f"v_pk_fma_f32 {vr(d,2)}, {vr(a,2)}, {vr(b,2)}, {vr(t,2)} op_sel:[0,0,0] op_sel_hi:[0,1,1]"]
def cmul_l(d, a, b, t):
    return [f"v_pk_mul_f32 {vr(t,2)}, {vr(a,2)}, {vr(b,2)} op_sel:[1,1] op_sel_hi:[1,0] neg_lo:[1,0]",
            f"v_pk_fma_f32 {vr(d,2)}, {vr(a,2)}, {vr(b,2)}, {vr(t,2)} op_sel:[0,0,0] op_sel_hi:[0,1,1]"]
def emit(l):
    for x in l: A(x)
def cfma(*a): emit(cfma_l(*a))
def cmul(*a): emit(cmul_l(*a))

def weave(main, fillers, every, start=0):
    for i, x in enumerate(main):
        A(x)
        if i >= start and (i - start) % every == every - 1 and fillers:
            f = fillers.pop(0)
            if isinstance(f, str): A(f)
            elif f: f()

def gemm_loop(nsteps, reads, mfmas, boundary, split, fill_gaps, fillers, on_step=None, end_barrier=False, verify=None):
    for r in reads(0): A(r)
    for n in range(nsteps):
        if on_step: on_step(n)
        last = n == nsteps - 1
        b = None if last else boundary(n + 1)
        b2 = boundary(n + 2) if (verify and n + 2 < nsteps) else None
        if b2 is not None: A.wait_both(b2, A.lg)
        elif b is not None and not verify: A.wait_both(b, A.lg)
        else: A("s_waitcnt lgkmcnt(0)")
        if b is not None and verify: verify(n + 1)[1]()
        rs = [] if last else list(reads(n + 1))
        ms = mfmas(n)
        for g in range(4):
            A(ms[g])
            if g == 0 and b2 is not None: verify(n + 2)[0]()
            if g == 0 and b is not None and verify: verify(n + 1)[2]()
            if g == 0 and (b is not None or (last and end_barrier)): A("s_barrier")
            for _ in range(split[g]):
                if rs: A(rs.pop(0))
            if g in (fill_gaps(n) if callable(fill_gaps) else fill_gaps) and fillers:
                f = fillers.pop(0)
                if isinstance(f, str): A(f)
                elif f: f()
        assert not rs

def dma_pieces(voff, srdreg, soff, ldsoff, pre=None, post=None, flags="", m0reg=S_M0W, same_v=False):
    def mk(p):
        def f():
            if p == 0:
                A(f"s_add_u32 m0, s{m0reg}, {ldsoff:#x}")
                if pre: pre()
            A(f"buffer_load_dwordx4 v{voff if same_v else voff+p}, s[{srdreg}:{srdreg+3}], s{soff} offen offset:{p*1024} {flags}lds")
            if p == 3 and post: post()
        return f
    return [mk(p) for p in range(4)]

def run(fs):
    for f in fs:
        if isinstance(f, str): A(f)
        else: f()

def rot_soff(dst, add, shift=None, mul=None, extra_sreg=None, plus=None, rot=S_ROT):
    A(f"s_add_u32 s{dst}, s{rot}, {add}")
    if extra_sreg is not None: A(f"s_add_u32 s{dst}, s{dst}, s{extra_sreg}")
    A(f"s_and_b32 s{dst}, s{dst}, 7")
    if shift is not None: A(f"s_lshl_b32 s{dst}, s{dst}, {shift}")
    else: A(f"s_mul_i32 s{dst}, s{dst}, {mul}")
    if plus is not None: A(f"s_add_u32 s{dst}, s{dst}, s{plus}")

def prologue():
    if OPT["stamps"]: A("s_memtime s[98:99]")
    if OPT.get("fixrt") or OPT.get("probe") or OPT["stamps"]: A("s_memrealtime s[100:101]")
    A("s_cmp_ge_u32 s2, 256")
    A("s_cbranch_scc1 L_end")
    A(f"s_load_dwordx16 s[{KA}:{KA+15}], s[0:1], 0")
    A(f"s_load_dwordx16 s[{KA+16}:{KA+31}], s[0:1], 64")
    A("v_and_b32 v1, 63, v0")
    A("v_lshrrev_b32 v2, 6, v0")
    A(f"s_lshr_b32 s{S_SLOT}, s2, 3")
    A(f"v_readfirstlane_b32 s{S_WAVE}, v2")
    A(f"s_and_b32 s{ST}, s2, 3")
    A(f"s_lshl_b32 s{S_CHUNK}, s{ST}, 2")
    A(f"s_lshr_b32 s{ST+1}, s{S_SLOT}, 3")
    A(f"s_add_u32 s{S_CHUNK}, s{S_CHUNK}, s{ST+1}")
    A(f"s_and_b32 s{S_CG}, s{S_SLOT}, 7")
    A(f"s_lshl_b32 s{S_ROT}, s{ST+1}, 1")
    A(f"s_add_u32 s{S_ROT}, s{S_ROT}, s{S_CG}")
    A(f"s_and_b32 s{S_ROT}, s{S_ROT}, 7")
    rm = OPT["rotmode"]
    if rm == 8: A(f"s_mov_b32 s{S_ROT1}, s{S_ROT}")
    elif rm == 1: A(f"s_mov_b32 s{S_ROT1}, 0")
    elif rm == 3:
        A(f"s_add_u32 s{S_ROT1}, s{S_CG}, s{ST+1}")
        A(f"s_and_b32 s{S_ROT1}, s{S_ROT1}, 3")
        A(f"s_mul_i32 s{S_ROT1}, s{S_ROT1}, 3")
    else:
        A(f"s_add_u32 s{S_ROT1}, s{S_CG}, s{ST+1}")
        A(f"s_and_b32 s{S_ROT1}, s{S_ROT1}, {rm-1}")
        A(f"s_lshl_b32 s{S_ROT1}, s{S_ROT1}, {2 if rm == 2 else 1}")
    A(f"s_lshr_b32 s{S_RH}, s{S_WAVE}, 1")
    A(f"s_and_b32 s{S_CH}, s{S_WAVE}, 1")
    A(f"s_lshl_b32 s{S_M0W}, s{S_WAVE}, 12")
    slin(ST + 2, 0, (S_SLOT, 512), (S_WAVE, 128))
    A("v_and_b32 v7, 1, v0")
    A(f"v_lshl_add_u32 v7, v7, 14, s{ST+2}")
    A("v_lshrrev_b32 v3, 3, v1")
    A("v_and_b32 v4, 7, v1")
    A(f"v_and_b32 v{V_N}, 31, v1")
    A(f"v_lshrrev_b32 v{V_G}, 5, v1")
    if OPT["stamps"]: A("v_mov_b32 v255, 0")
    A("s_bitcmp1_b32 s2, 2")
    A("s_cbranch_scc1 L_roleB")

def code_prefetch():
    A(f"s_getpc_b64 s[{ST+4}:{ST+5}]")
    A(f"global_load_dword v254, v7, s[{ST+4}:{ST+5}]")

def common_setup(role):
    srd(SWS, K_WS, 0x10000000)
    srd(SOUT, K_OUT, 0x800000)
    A(f"s_lshl_b32 s{S_M0W2}, s{S_WAVE}, 13")
    A(f"s_mov_b32 s{S_MG}, 0")
    A(f"s_mov_b32 s{S_MG+1}, -1")
    A(f"s_sub_u32 s{S_MRH}, 0, s{S_RH}")
    A(f"s_mov_b32 s{S_MRH+1}, s{S_MRH}")
    A(f"s_mov_b32 s{S_L2E}, {LOG2E:#x}")
    A(f"s_mov_b32 s{S_L2E+1}, {LOG2E:#x}")
    A(f"s_mov_b32 s{S_M16}, 0xffff0000")
    A(f"s_mov_b32 s{S_M16+1}, 0xffff0000")
    A(f"s_add_u32 s{S_GRP}, s{S_CHUNK}, {0 if role == 'A' else 16}")
    slin(P_XCCB, WS_XCC, (S_GRP, 128))
    A(f"s_and_b32 s{S_MF}, s{S_CG}, 1")
    slin(P_OUT, 0 if role == "A" else 2048, (S_CHUNK, 1 << 19), (S_RH, 1 << 18), (S_CG, 256), (S_CH, 128), (S_MF, 1 << 17))
    A(f"s_xor_b32 s{P_OUT2}, s{P_OUT}, {1 << 17:#x}")
    slin(P_TAGSEL, 0, (S_CHUNK, 256), (S_CG, 16), (S_WAVE, 1))
    if OPT.get("tlb", 0):
        A(f"v_and_b32 v9, 15, v{V_LANE}")
        A("v_lshlrev_b32 v9, 20, v9")
        A(f"buffer_load_dword v254, v9, s[{SWS}:{SWS+3}], 0 offen offset:2048")
        A(f"buffer_load_dword v254, v9, s[{SOUT}:{SOUT+3}], 0 offen")
        A(f"buffer_load_dword v254, v9, s[{SW2}:{SW2+3}], 0 offen")
    A(f"v_lshlrev_b32 v{V_LIN}, 4, v{V_LANE}")
    A(f"v_mov_b32 v{V_L0}, {OOB:#x}")
    A(f"v_cmp_eq_u32 vcc, 0, v{V_LANE}")
    A(f"v_bfe_u32 v9, v{V_LANE}, 1, 4")
    A("v_lshlrev_b32 v9, 2, v9")
    A(f"v_lshl_add_u32 v9, v{V_LANE}, 6, v9")
    A(f"v_add_u32 v{V_CHK}, s{S_M0W if role == 'A' else S_M0W2}, v9")
    if not HAND:
        A(f"v_lshlrev_b32 v{V_CHK}, 2, v{V_N}")
        slin(P_FLAGB, WS_FLAG, (S_GRP, 128))
        slin(P_FLW, 0, (S_CG, 16), (S_WAVE, 4), (P_FLAGB, 1))
        A(f"s_getreg_b32 s{S_XW}, hwreg(HW_REG_XCC_ID, 0, 4)")
    A(f"v_lshlrev_b32 v{V_XPO}, 2, v4")
    A(f"v_cndmask_b32_e64 v{V_L0}, v{V_L0}, 0, vcc")
    A(f"v_lshlrev_b32 v{V_OUTO}, 14, v{V_G}")
    A(f"v_lshl_add_u32 v{V_OUTO}, v{V_N}, 2, v{V_OUTO}")
    slin(P_FLAGO, 0, (S_CG, 4), (P_XCCB, 1))
    A("s_waitcnt lgkmcnt(0)")
    A(f"s_add_u32 s{S_TAG}, s{S_TAG}, 1")
    if OPT["stamps"]: A("s_mov_b32 s99, 0")
    if not HAND:
        A(f"s_lshl_b32 s{ST}, s{S_TAG}, 4")
        A(f"s_or_b32 s{S_XW}, s{S_XW}, s{ST}")
        A(f"v_mov_b32 v9, s{S_XW}")
        A(f"buffer_store_dword v9, v{V_L0}, s[{SWS}:{SWS+3}], s{P_FLAGO} offen sc1")

def lds_b128_addrs(base_reg, wave_off_sreg, const, nsets):
    A(f"v_bfe_u32 v9, v{V_N}, 1, 3")
    A(f"v_xor_b32 v9, v9, v{V_G}")
    A("v_lshlrev_b32 v9, 4, v9")
    A(f"v_lshl_add_u32 v9, v{V_N}, 7, v9")
    A(f"v_add_u32 v9, s{wave_off_sreg}, v9")
    if const: A(f"v_add_u32 v9, {const:#x}, v9")
    for ks in range(4):
        A(f"v_xor_b32 v{base_reg+ks}, {32*ks}, v9")
    for st in range(1, nsets):
        for ks in range(4): A(f"v_add_u32 v{base_reg+4*st+ks}, {st*0x10000:#x}, v{base_reg+ks}")

def rdy_load(reg, dummy=9):
    if not HAND: A(f"buffer_load_dword v{dummy}, v{V_CHK}, s[{SWS}:{SWS+3}], s{P_FLAGB} offen sc1")
    A(f"buffer_load_dword v{reg}, v{V_XPO}, s[{SWS}:{SWS+3}], s{P_XCCB} offen sc1")
def rdy_check(dst, reg):
    if HAND: A(f"v_xor_b32 v{dst}, s{S_TAG}, v{reg}")
    else:
        A(f"v_xor_b32 v{reg}, s{S_XW}, v{reg}")
        A(f"v_lshrrev_b32 v{dst}, 4, v{reg}")
def rdy_store():
    if HAND: A(f"buffer_store_dword v11, v{V_L0}, s[{SWS}:{SWS+3}], s{P_FLAGO} offen sc1")
def xcc_decide(reg):
    if HAND: return
    A(f"v_cmp_ne_u32 vcc, 0, v{reg}")
    A("s_cmp_lg_u64 vcc, 0")
    A(f"s_cselect_b32 s{S_SLOW}, 1, 0")
def flag_store():
    slow, join = lab("slow"), lab("join")
    A(f"s_cmp_lg_u32 s{S_SLOW}, 0")
    A(f"s_cbranch_scc1 {slow}")
    A(f"buffer_store_dword v11, v{V_L0}, s[{SWS}:{SWS+3}], s{P_FLW} offen")
    A.label(join)
    def later():
        A.label(slow)
        A(f"buffer_store_dword v11, v{V_L0}, s[{SWS}:{SWS+3}], s{P_FLW} offen sc1")
        A(f"s_branch {join}")
    DEFER.append(later)
def flag_poll():
    poll(lambda: A(f"buffer_load_dword v13, v{V_CHK}, s[{SWS}:{SWS+3}], s{P_FLAGB} offen sc1"),
         lambda: A(f"v_cmp_ne_u32 s[{S_FAIL}:{S_FAIL+1}], s{S_TAG}, v13"))

DEFER = []
def make_verify(pieces, slot, second):
    retry, back = lab("retry"), lab("back")
    def reads():
        A(f"v_add_u32 v9, {slot*SLOT:#x}, v{V_CHK}")
        A("ds_read_b32 v13, v9")
        A(f"ds_read_b32 v14, v9 offset:{second}")
    def cmp():
        A("v_max_u32 v13, v13, v14")
        A("v_cmp_eq_u32 vcc, -1, v13")
    def branch():
        A("s_cmp_lg_u64 vcc, 0")
        A(f"s_cbranch_scc1 {retry}")
        A.label(back)
    def later():
        top, done = lab("rl"), lab("rd")
        A.label(retry)
        A.hist = []
        A(f"s_mov_b32 s{S_SM0}, m0")
        A(f"s_mov_b32 s{S_CNT}, {SPIN_LIMIT}")
        A.label(top)
        run(pieces(S_RS))
        A("s_waitcnt vmcnt(0)")
        A("ds_read_b32 v13, v9")
        A(f"ds_read_b32 v14, v9 offset:{second}")
        A("s_waitcnt lgkmcnt(0)")
        cmp()
        A("s_cmp_eq_u64 vcc, 0")
        A(f"s_cbranch_scc1 {done}")
        A(f"s_sub_u32 s{S_CNT}, s{S_CNT}, 1")
        A(f"s_cbranch_scc0 {top}")
        A.label(done)
        if OPT["stamps"]:
            A(f"s_sub_u32 s{S_CNT}, {SPIN_LIMIT + 1}, s{S_CNT}")
            A(f"s_add_u32 s99, s99, s{S_CNT}")
        A(f"s_mov_b32 m0, s{S_SM0}")
        A(f"s_branch {back}")
    DEFER.append(later)
    return reads, cmp, branch

def tag_update(role):
    skip = lab("notag")
    A(f"s_cmp_eq_u32 s{P_TAGSEL}, {(15 if role == 'A' else 0) << 8}")
    A(f"s_cbranch_scc0 {skip}")
    A(f"buffer_store_dword v11, v{V_L0}, s[{SWS}:{SWS+3}], 0 offen offset:{WS_TAGA if role == 'A' else WS_TAGB} sc1")
    A.label(skip)

def out_stores(acc, ph):
    def mk(r):
        def f():
            row = 8 * (r >> 2) + (r & 3)
            A(f"s_add_u32 s{ST+1}, s{P_OUT+ph}, {row*4096}")
            A(f"buffer_store_dword v{acc+16*ph+r}, v{V_OUTO}, s[{SOUT}:{SOUT+3}], s{ST+1} offen sc1")
        return f
    return [mk(r) for r in range(16)]

CST = OPT.get("cst", 2)
XF = "nt " if OPT["xnt"] else ""
PLF = {0: "sc1 ", 1: "", 2: "sc0 ", 3: "nt "}[OPT.get("plf", 0)]

def role_A():
    V_AX, V_AW = 24, 32
    V_GO, V_SCW = 44, 3
    V_XF, V_WF = 48, 64
    URE, UIM = 80, 112
    ACC2 = 144
    HP = 176
    XS, DG, V_GE = 176, 192, 200
    V_PUB, V_XSO, V_HSO = 204, 205, 223
    C_LAM, C_M1, C_M2, C_L, C_MQ, C_LQ, C_C2 = 208, 210, 212, 214, 216, 218, 220
    C_DSK = 222
    T0 = 224
    P_SAB, P_SAO, P_XS0, P_XS1 = P0, P0 + 1, P0 + 2, P0 + 3
    code_prefetch()
    A("v_lshrrev_b32 v9, 1, v3")
    A("v_xor_b32 v9, v9, v4")
    A("v_lshlrev_b32 v9, 4, v9")
    A("v_lshrrev_b32 v10, 2, v3")
    A("v_lshlrev_b32 v10, 5, v10")
    A("v_and_b32 v11, 1, v3")
    A("v_lshl_add_u32 v10, v11, 4, v10")
    A("v_bfe_u32 v11, v3, 1, 1")
    A("v_add_u32 v10, v10, v11")
    A("v_lshl_add_u32 v10, v10, 10, v9")
    slin(ST, 0, (S_CHUNK, 1 << 17), (S_RH, 1 << 16), (S_CH, 1 << 13))
    A(f"v_add_u32 v{V_OX}, s{ST}, v10")
    A(f"v_xor_b32 v11, 64, v{V_OX}")
    A(f"v_add_u32 v{V_OX+1}, 1024, v11")
    A(f"v_add_u32 v{V_OX+2}, 2048, v{V_OX}")
    A(f"v_add_u32 v{V_OX+3}, 3072, v11")
    A("v_lshl_add_u32 v10, v3, 10, v9")
    slin(ST, 0, (S_CG, 1 << 16), (S_CH, 1 << 15))
    A(f"v_add_u32 v{V_OW}, s{ST}, v10")
    A(f"v_xor_b32 v11, 64, v{V_OW}")
    A(f"v_add_u32 v{V_OW+1}, 7168, v11")
    A(f"v_add_u32 v{V_OW+2}, {2*7168}, v{V_OW}")
    A(f"v_add_u32 v{V_OW+3}, {3*7168}, v11")
    slin(ST, 0, (S_CG, 128), (S_CH, 64))
    A(f"v_lshl_add_u32 v14, v{V_N}, 1, s{ST}")
    A(f"s_cmp_eq_u32 s{S_RH}, 0")
    A("s_waitcnt lgkmcnt(0)")
    A(f"s_cselect_b32 s{SW}, s{K_BRE}, s{K_BIM}")
    A(f"s_cselect_b32 s{SW+1}, s{K_BRE+1}, s{K_BIM+1}")
    A(f"s_cselect_b32 s{SW2}, s{K_CRE}, s{K_CIM}")
    A(f"s_cselect_b32 s{SW2+1}, s{K_CRE+1}, s{K_CIM+1}")
    A(f"s_mov_b32 s{SW+2}, 0x80000")
    A(f"s_mov_b32 s{SW+3}, 0x20000")
    stamp(1)
    A(f"s_load_dword s{S_TAG}, s[{K_WS}:{K_WS+1}], {WS_TAGA}")
    srd(SX, K_AX, 0x200000)
    tok = {}
    def g1_pieces(i):
        slot = i & 3
        return (dma_pieces(V_OW, SW, ST + 8, slot * SLOT, pre=lambda: rot_soff(ST + 8, i, shift=7, rot=S_ROT1)) +
                dma_pieces(V_OX, SX, ST + 8, slot * SLOT + 16384, post=lambda: tok.__setitem__(i, A.vm), flags=XF))
    CSLOT = [4, 0, 1, 2]
    def c_pieces(st):
        return dma_pieces(V_OW, SW2, ST + 9, CSLOT[st >> 1] * SLOT + (st & 1) * 16384, pre=lambda: rot_soff(ST + 9, st, shift=7))
    A(f"global_load_ushort v{T0}, v14, s[{K_LRE}:{K_LRE+1}]")
    A(f"global_load_ushort v{T0+1}, v14, s[{K_LIM}:{K_LIM+1}]")
    A(f"global_load_ushort v{T0+2}, v14, s[{K_LDT}:{K_LDT+1}]")
    A(f"global_load_ushort v{C_DSK}, v14, s[{K_DSK}:{K_DSK+1}]")
    tok_small = A.vm
    run(g1_pieces(0))
    A(f"s_mov_b32 s{SW2+2}, 0x80000")
    A(f"s_mov_b32 s{SW2+3}, 0x20000")
    run(g1_pieces(1))
    if OPT.get("wtouch", 0):
        slin(ST, 0, (S_CG, 1 << 16), (S_CHUNK, 4096), (S_CH, 2048))
        A(f"v_and_b32 v9, 15, v{V_LANE}")
        A("v_lshlrev_b32 v9, 7, v9")
        A(f"buffer_load_dword v254, v9, s[{SW2}:{SW2+3}], s{ST} offen")
    stamp(2)
    common_setup("A")
    slin(P_SAB, WS_SA, (S_CG, 1 << 14), (S_CH, 512))
    slin(P_SAO, 0, (S_CHUNK, 1024), (P_SAB, 1))
    slin(P_XS0, 0, (S_CHUNK, 1 << 17), (S_RH, 1 << 16), (S_CG, 128), (S_CH, 64), (S_MF, 32768))
    A(f"s_xor_b32 s{P_XS1}, s{P_XS0}, 32768")
    slin(P_ACTW, WS_H, (S_CHUNK, 1 << 18), (S_CG, 1 << 15), (S_WAVE, 4096))
    slin(P_ACTR, WS_H, (S_CHUNK, 1 << 18), (S_WAVE, 4096), (S_MF, 16384))
    A(f"s_xor_b32 s{P_ACTR2}, s{P_ACTR}, 16384")
    A(f"v_lshlrev_b32 v9, 14, v{V_G}")
    A(f"v_lshl_add_u32 v{V_HSO}, v{V_N}, 4, v9")
    for r in range(4): A(f"v_mov_b32 v{T0+24+r}, -1")
    clears = [f"buffer_store_dwordx4 {vr(T0+24,4)}, v{V_HSO}, s[{SWS}:{SWS+3}], s{P_ACTW} offen offset:{k*512} sc1" for k in range(8)]
    A(f"v_mov_b32 v{V_TAG}, s{S_TAG}")
    A(f"v_mov_b32 v11, s{S_TAG}")
    A(f"s_lshl_b32 s{ST}, s{S_RH}, 13")
    lds_b128_addrs(V_AX, ST, 16384, 2)
    A(f"s_lshl_b32 s{ST}, s{S_CH}, 12")
    lds_b128_addrs(V_AW, ST, 0, 3)
    A(f"v_lshlrev_b32 v{V_XSO}, 10, v{V_N}")
    A(f"v_lshl_add_u32 v{V_XSO}, v{V_G}, 5, v{V_XSO}")
    SCR = 3 * SLOT
    slin(ST, SCR, (S_CH, 256))
    A(f"v_lshl_add_u32 v4, v{V_N}, 3, s{ST}")
    A(f"s_lshl_b32 s{ST}, s{S_RH}, 10")
    A(f"v_lshl_add_u32 v3, v{V_G}, 9, v4")
    A(f"v_add_u32 v3, s{ST}, v3")
    A(f"v_lshlrev_b32 v13, 4, v{V_N}")
    A(f"v_mov_b32 v14, {OOB:#x}")
    A(f"s_or_b64 s[{ST+2}:{ST+3}], s[{S_MG}:{S_MG+1}], s[{S_MRH}:{S_MRH+1}]")
    A(f"v_cndmask_b32_e64 v{V_PUB}, v13, v14, s[{ST+2}:{ST+3}]")
    if OPT.get("prew", 1):
        for r in range(4): A(f"v_subrev_u32 v{T0+20+r}, 1, v{V_TAG}")
        A(f"buffer_store_dwordx4 {vr(T0+20,4)}, v{V_PUB}, s[{SWS}:{SWS+3}], s{P_SAO} offen sc1")
    A(f"s_lshl_b32 s{ST+4}, s{S_RH}, 3")
    A(f"s_sub_u32 s{ST+4}, s{S_CHUNK}, s{ST+4}")
    A(f"s_sub_u32 s{ST+4}, s{ST+4}, 1")
    A(f"v_lshlrev_b32 v9, 2, v{V_G}")
    A(f"v_sub_u32 v9, s{ST+4}, v9")
    for i in range(4):
        A(f"v_subrev_u32 v{V_GO+i}, {i}, v9")
        A(f"v_cmp_gt_i32 vcc, 0, v{V_GO+i}")
        A(f"v_lshl_add_u32 v{V_GO+i}, v{V_GO+i}, 10, v13")
        A(f"v_cndmask_b32_e64 v{V_GE+i}, v{V_TAG}, 0, vcc")
        A(f"v_cndmask_b32 v{V_GO+i}, v{V_GO+i}, v14, vcc")
    A.wait_vm(tok_small)
    lre, lim, ldt = T0, T0 + 1, T0 + 2
    A(f"v_and_b32 v9, 1, v{V_N}")
    A("v_lshlrev_b32 v9, 4, v9")
    A(f"v_lshlrev_b32 v{C_DSK}, v9, v{C_DSK}")
    A(f"v_lshrrev_b32 v9, 1, v{V_N}")
    A(f"v_lshlrev_b32 v13, 3, v{V_G}")
    A("v_sub_u32 v9, v9, v13")
    for q in range(8):
        A(f"v_cmp_eq_u32 vcc, {q}, v9")
        A(f"v_cndmask_b32_e64 v{DG+q}, 0, v{C_DSK}, vcc")
    for r in (lre, lim, ldt): A(f"v_lshlrev_b32 v{r}, 16, v{r}")
    A(f"v_mul_f32 v{ldt}, s{S_L2E}, v{ldt}")
    A(f"v_exp_f32 v{ldt}, v{ldt}")
    A(f"v_cvt_pk_bf16_f32 v{ldt}, v{ldt}, v{ldt}")
    A(f"v_lshlrev_b32 v{ldt}, 16, v{ldt}")
    A(f"v_mul_f32 v{T0+4}, v{ldt}, v{lre}")
    A(f"v_mul_f32 v{T0+5}, v{ldt}, v{lim}")
    A(f"v_mul_f32 v{T0+4}, s{S_L2E}, v{T0+4}")
    A(f"v_exp_f32 v{T0+4}, v{T0+4}")
    A(f"v_mul_f32 v{T0+5}, {INV2PI:#x}, v{T0+5}")
    A(f"v_rndne_f32 v{T0+6}, v{T0+5}")
    A(f"v_sub_f32 v{T0+5}, v{T0+5}, v{T0+6}")
    A(f"v_cos_f32 v{T0+6}, v{T0+5}")
    A(f"v_sin_f32 v{T0+7}, v{T0+5}")
    A(f"v_mul_f32 v{C_LAM}, v{T0+4}, v{T0+6}")
    A(f"v_mul_f32 v{C_LAM+1}, v{T0+4}, v{T0+7}")
    A(f"v_add_f32 v{T0+4}, -1.0, v{C_LAM}")
    A(f"v_mul_f32 v{T0+5}, v{lre}, v{lre}")
    A(f"v_fmac_f32 v{T0+5}, v{lim}, v{lim}")
    A(f"v_rcp_f32 v{T0+5}, v{T0+5}")
    A(f"v_mul_f32 v{T0+6}, v{T0+4}, v{lre}")
    A(f"v_fmac_f32 v{T0+6}, v{C_LAM+1}, v{lim}")
    A(f"v_mul_f32 v{T0+7}, v{C_LAM+1}, v{lre}")
    A(f"v_fma_f32 v{T0+7}, -v{T0+4}, v{lim}, v{T0+7}")
    A(f"v_add_f32 v{T0+5}, v{T0+5}, v{T0+5}")
    A(f"v_mul_f32 v{C_C2}, v{T0+6}, v{T0+5}")
    A(f"v_mul_f32 v{C_C2+1}, v{T0+7}, v{T0+5}")
    pa, pb, tt = T0 + 8, T0 + 10, T0 + 12
    cmul(pa, C_LAM, C_LAM, tt)
    cmul(pb, pa, pa, tt)
    cmul(pa, pb, pb, tt)
    cmul(C_M1, pa, pa, tt)
    cmul(C_M2, C_M1, C_M1, tt)
    cmul(pa, C_M2, C_M2, tt)
    cmul(C_L, pa, pa, tt)
    def sel_pair(dst, src, mask):
        A(f"v_cndmask_b32_e64 v{dst}, 1.0, v{src}, s[{mask}:{mask+1}]")
        A(f"v_cndmask_b32_e64 v{dst+1}, 0, v{src+1}, s[{mask}:{mask+1}]")
    sel_pair(T0 + 14, C_M2, S_MG)
    sel_pair(T0 + 16, pa, S_MRH)
    cmul(C_MQ, T0 + 14, T0 + 16, tt)
    cmul(pa, C_L, C_L, tt)
    cmul(pb, pa, pa, tt)
    cmul(pa, pb, pb, tt)
    sel_pair(T0 + 14, pb, S_MG)
    sel_pair(T0 + 16, pa, S_MRH)
    cmul(C_LQ, T0 + 14, T0 + 16, tt)
    stamp(3)
    def rd(n):
        i, ks = n >> 2, n & 3
        slot, buf = i & 3, n & 1
        s2_, off = slot >> 1, (slot & 1) * SLOT
        x = [f"ds_read_b128 {vr(V_XF+buf*8+m*4,4)}, v{V_AX+4*s2_+ks} offset:{off+m*4096}" for m in range(2)]
        w = [f"ds_read_b128 {vr(V_WF+buf*8+ri*4,4)}, v{V_AW+4*s2_+ks} offset:{off+ri*8192}" for ri in range(2)]
        return [x[0], w[0], w[1], x[1]]
    def mm(n):
        buf = n & 1
        r = []
        for m, ri in ((0, 0), (0, 1), (1, 1), (1, 0)):
            d = vr((URE, UIM)[ri] + 16 * m, 16)
            r.append(mf(d, vr(V_XF + buf * 8 + m * 4, 4), vr(V_WF + buf * 8 + ri * 4, 4), d if n else "0"))
        return r
    fill = []
    def xs_load(m, s):
        return lambda: A(f"buffer_load_dwordx4 {vr(XS+8*m+4*s,4)}, v{V_XSO}, s[{SX}:{SX+3}], s{P_XS0+m} offen offset:{16*s}")
    def on_step(n):
        i, ks = n >> 2, n & 3
        if ks == 0:
            if i == 0: fill.extend(g1_pieces(2) + g1_pieces(3))
            elif i + 3 < 8: fill.extend(g1_pieces(i + 3))
            elif i == 5:
                if HAND: fill.extend(clears[:7] + [lambda: (A(clears[7]), tok.__setitem__("clr", A.vm))])
                fill.extend(c_pieces(0) + c_pieces(1))
            elif i == 6:
                fill.extend([xs_load(m, s) for m in range(2) for s in range(2)])
                if OPT.get("ptouch", 0):
                    fill.extend([f"buffer_load_dword v254, v{V_GO+k}, s[{SWS}:{SWS+3}], s{P_SAB} offen sc1" for k in range(4)])
                    fill.append(lambda: rdy_load(254, 254))
    A.wait_vm(tok[0])
    A("s_barrier")
    stamp(4)
    gemm_loop(32, rd, mm, lambda n: tok[n >> 2] if (n & 3) == 0 else None, (2, 2, 0, 0), lambda n: (0, 1, 2, 3) if (n >> 2) in (0, 5) else (2, 3), fill, on_step, end_barrier=True)
    assert not fill
    stamp(5)
    P = [T0, T0 + 4]
    def lam_bc(hi): return f"op_sel:[{hi},0,0] op_sel_hi:[{hi},1,1]"
    NEG = "neg_lo:[1,0,0] neg_hi:[1,0,0]"
    cur_re, cur_im = URE, UIM
    for s in range(1, 16):
        d = P[s & 1]
        A(f"v_pk_fma_f32 {vr(d,2)}, {vr(C_LAM,2)}, {vr(cur_im,2)}, {vr(URE+2*s,2)} {lam_bc(1)} {NEG}")
        A(f"v_pk_fma_f32 {vr(d+2,2)}, {vr(C_LAM,2)}, {vr(cur_re,2)}, {vr(UIM+2*s,2)} {lam_bc(1)}")
        A(f"v_pk_fma_f32 {vr(d,2)}, {vr(C_LAM,2)}, {vr(cur_re,2)}, {vr(d,2)} {lam_bc(0)}")
        A(f"v_pk_fma_f32 {vr(d+2,2)}, {vr(C_LAM,2)}, {vr(cur_im,2)}, {vr(d+2,2)} {lam_bc(0)}")
        cur_re, cur_im = d, d + 2
    A0, BQ = T0 + 8, T0 + 10
    A(f"v_fma_f32 v{BQ}, v{C_M1}, v{cur_re}, v{cur_re+1}")
    A(f"v_fma_f32 v{BQ+1}, v{C_M1}, v{cur_im}, v{cur_im+1}")
    A(f"v_fma_f32 v{BQ}, -v{C_M1+1}, v{cur_im}, v{BQ}")
    A(f"v_fma_f32 v{BQ+1}, v{C_M1+1}, v{cur_re}, v{BQ+1}")
    A(f"ds_write_b64 v3, {vr(BQ,2)}")
    A(f"v_mov_b32 v{A0}, v{cur_re}")
    A(f"v_mov_b32 v{A0+1}, v{cur_im}")
    P2, P3, SS, tt = T0 + 20, T0 + 22, T0 + 24, T0 + 28
    A(f"v_mov_b32 v{SS+1}, s{S_TAG}")
    A(f"v_mov_b32 v{SS+3}, s{S_TAG}")
    def c2_bc(hi, n=3):
        return f"op_sel:[{hi},0,0] op_sel_hi:[{hi},1,1]" if n == 3 else f"op_sel:[{hi},0] op_sel_hi:[{hi},1]"
    cm = []
    for s in range(16):
        re, im, t = URE + 2 * s, UIM + 2 * s, T0 + 2 + 2 * (s & 1)
        cm += [f"v_pk_mul_f32 {vr(t,2)}, {vr(C_C2,2)}, {vr(re,2)} {c2_bc(1,2)} neg_lo:[1,0] neg_hi:[1,0]",
               f"v_pk_mul_f32 {vr(re,2)}, {vr(C_C2,2)}, {vr(re,2)} {c2_bc(0,2)}",
               f"v_pk_fma_f32 {vr(re,2)}, {vr(C_C2,2)}, {vr(im,2)}, {vr(re,2)} {c2_bc(1)} {NEG}",
               f"v_pk_fma_f32 {vr(im,2)}, {vr(C_C2,2)}, {vr(im,2)}, {vr(t,2)} {c2_bc(0)} {NEG}"]
    emit(cm[:8])
    if HAND: A.wait_both(tok["clr"], A.lg)
    else: A("s_waitcnt lgkmcnt(0)")
    A("s_barrier")
    B0 = T0 + 12
    for q in range(4):
        A(f"ds_read_b64 {vr(B0+2*q,2)}, v4 offset:{q*512}")
    emit(cm[8:24])
    A("s_waitcnt lgkmcnt(0)")
    cfma(P2, C_M2, B0, B0 + 2, tt)
    cfma(P3, C_M2, P2, B0 + 4, tt)
    cfma(tt, C_M2, P3, B0 + 6, tt)
    A(f"v_mov_b32 v{SS}, v{tt}")
    A(f"v_mov_b32 v{SS+2}, v{tt+1}")
    A(f"buffer_store_dwordx4 {vr(SS,4)}, v{V_PUB}, s[{SWS}:{SWS+3}], s{P_SAO} offen sc1")
    rdy_store()
    stamp(6)
    emit(cm[24:])
    LOC = T0 + 0
    for e in range(2):
        A(f"v_cndmask_b32_e64 v{T0+2+e}, 0, v{B0+e}, s[{S_MG}:{S_MG+1}]")
        A(f"v_cndmask_b32_e64 v{T0+4+e}, v{P2+e}, v{P3+e}, s[{S_MG}:{S_MG+1}]")
        A(f"v_cndmask_b32_e64 v{LOC+e}, v{T0+2+e}, v{T0+4+e}, s[{S_MRH}:{S_MRH+1}]")
    E0, F0, E1, F1 = T0 + 12, T0 + 14, T0 + 16, T0 + 18
    cfma(P2, C_M1, LOC, A0, tt)
    cmul(F1, C_C2, P2, tt)
    cmul(F0, C_C2, LOC, tt)
    cmul(E0, C_C2, C_MQ, tt)
    cmul(E1, E0, C_M1, tt)
    V_AH = V_AX
    A(f"v_bfe_u32 v9, v{V_LANE}, 4, 1")
    A(f"v_bfe_u32 v13, v{V_LANE}, 1, 1")
    A("v_lshl_add_u32 v9, v9, 1, v13")
    A(f"v_bfe_u32 v13, v{V_LANE}, 2, 2")
    A(f"v_lshl_add_u32 v13, v{V_G}, 3, v13")
    A("v_lshlrev_b32 v14, 2, v9")
    A("v_xor_b32 v13, v13, v14")
    A("v_lshlrev_b32 v13, 4, v13")
    A("v_lshl_add_u32 v13, v9, 9, v13")
    A(f"v_and_b32 v14, 1, v{V_LANE}")
    A("v_lshl_add_u32 v13, v14, 3, v13")
    A(f"s_lshl_b32 s{ST+2}, s{S_RH}, 13")
    A(f"v_add_u32 v{V_AH}, s{ST+2}, v13")
    A(f"v_xor_b32 v{V_AH+1}, 64, v{V_AH}")
    for st in (1, 2):
        A(f"v_add_u32 v{V_AH+2*st}, {st*0x10000:#x}, v{V_AH}")
        A(f"v_add_u32 v{V_AH+2*st+1}, {st*0x10000:#x}, v{V_AH+1}")
    for st in range(2, 8): run(c_pieces(st))
    stamp(7)
    GD = 48
    def loads():
        for i in range(4):
            A(f"buffer_load_dwordx4 {vr(GD+4*i,4)}, v{V_GO+i}, s[{SWS}:{SWS+3}], s{P_SAB} offen sc1")
        rdy_load(14)
    def check():
        rdy_check(13, 14)
        for i in range(4):
            A(f"v_xor_b32 v{GD+4*i+1}, v{GD+4*i+1}, v{V_GE+i}")
            A(f"v_xor_b32 v{GD+4*i+3}, v{GD+4*i+3}, v{V_GE+i}")
            A(f"v_or3_b32 v13, v13, v{GD+4*i+1}, v{GD+4*i+3}")
        A(f"v_cmp_ne_u32 s[{S_FAIL}:{S_FAIL+1}], 0, v13")
    poll(loads, check)
    stamp(8)
    for i in range(4):
        A(f"v_mov_b32 v{GD+4*i+1}, v{GD+4*i+2}")
    h1, h2 = T0 + 20, T0 + 22
    cfma(h1, C_L, GD + 12, GD + 8, tt)
    cfma(h2, C_L, h1, GD + 4, tt)
    cfma(h1, C_L, h2, GD + 0, tt)
    cmul(h2, C_LQ, h1, tt)
    A(f"ds_write_b64 v3, {vr(h2,2)} offset:2048")
    for m in range(2):
        d = vr(ACC2 + 16 * m, 16)
        for s in range(2):
            A(mf(d, vr(XS + 8 * m + 4 * s, 4), vr(DG + 4 * s, 4), d if s else "0"))
    xcc_decide(14)
    for o in range(1, 4):
        A(f"v_xor_b32 v{V_GO+o}, {o*64}, v{V_HSO}")
    A("s_waitcnt lgkmcnt(0)")
    A("s_barrier")
    CQ = GD
    for q in range(4):
        A(f"ds_read_b64 {vr(CQ+2*q,2)}, v4 offset:{2048+q*512}")
    tq = A.lg
    def c_reads(st):
        slot = CSLOT[st >> 1]
        s2_, off = slot >> 1, (slot & 1) * SLOT + (st & 1) * 16384
        r = [None] * 8
        for ks in range(4):
            for ri in range(2):
                kap = (ks >> 1) * 4 + ri * 2 + (ks & 1)
                r[kap] = f"ds_read_b128 {ar((st*8+kap)*4,4)}, v{V_AW+4*s2_+ks} offset:{off+ri*8192}"
        return r
    A.wait_lg(tq)
    A(f"v_pk_add_f32 {vr(CQ,2)}, {vr(CQ,2)}, {vr(CQ+2,2)}")
    A(f"v_pk_add_f32 {vr(CQ+4,2)}, {vr(CQ+4,2)}, {vr(CQ+6,2)}")
    A(f"v_pk_add_f32 {vr(CQ,2)}, {vr(CQ,2)}, {vr(CQ+4,2)}")
    HR, HI = T0 + 20, T0 + 22
    A(f"v_fma_f32 v{HR}, v{E0}, v{CQ}, v{F0}")
    A(f"v_fma_f32 v{HR+1}, v{E1}, v{CQ}, v{F1}")
    A(f"v_fma_f32 v{HI}, -v{E0}, v{CQ+1}, -v{F0+1}")
    A(f"v_fma_f32 v{HI+1}, -v{E1}, v{CQ+1}, -v{F1+1}")
    A(f"v_fma_f32 v{HR}, -v{E0+1}, v{CQ+1}, v{HR}")
    A(f"v_fma_f32 v{HR+1}, -v{E1+1}, v{CQ+1}, v{HR+1}")
    A(f"v_fma_f32 v{HI}, -v{E0+1}, v{CQ}, v{HI}")
    A(f"v_fma_f32 v{HI+1}, -v{E1+1}, v{CQ}, v{HI+1}")
    pr, pi_ = HR, HI
    for hf in range(2):
        for s in range(8 * hf, 8 * hf + 8):
            re, im = URE + 2 * s, UIM + 2 * s
            emit([f"v_pk_fma_f32 {vr(re,2)}, {vr(C_LAM,2)}, {vr(pi_,2)}, {vr(re,2)} {lam_bc(1)}",
                  f"v_pk_fma_f32 {vr(im,2)}, {vr(C_LAM,2)}, {vr(pr,2)}, {vr(im,2)} {lam_bc(1)} {NEG}",
                  f"v_pk_fma_f32 {vr(re,2)}, {vr(C_LAM,2)}, {vr(pr,2)}, {vr(re,2)} {lam_bc(0)}",
                  f"v_pk_fma_f32 {vr(im,2)}, {vr(C_LAM,2)}, {vr(pi_,2)}, {vr(im,2)} {lam_bc(0)}"])
            pr, pi_ = re, im
        for ri in range(2):
            U = (URE, UIM)[ri]
            for z in range(2):
                o = 2 * z + hf
                d = HP + (ri * 4 + o) * 4
                for u in range(4):
                    s0 = 8 * hf + 2 * u
                    A(f"v_cvt_pk_bf16_f32 v{d+u}, v{U+2*s0+z}, v{U+2*s0+2+z}")
                A(f"buffer_store_dwordx4 {vr(d,4)}, v{V_GO+o if o else V_HSO}, s[{SWS}:{SWS+3}], s{P_ACTW} offen offset:{(ri*4+o)*512} sc1")
    tok_h = A.vm - 8 + (OPT["hwait"] if HAND else 8)
    stamp(9)
    HS = [3, 4, 0, 1, 3, 4, 0, 1]
    def h_pieces(G, so=ST + 8, rec=True):
        r = []
        for sub in range(2):
            r += dma_pieces(V_LIN, SWS, so, HS[G] * SLOT + sub * 16384,
                            pre=lambda sub=sub: rot_soff(so, 2 * (G & 3) + sub, shift=15, plus=P_ACTR + (G >> 2)),
                            post=(lambda: tok.__setitem__(("h", G), A.vm)) if (sub and rec) else None, flags=PLF, same_v=True)
        return r
    VER = [make_verify(lambda so, G=G: h_pieces(G, so, False), HS[G], 16384) for G in range(8)] if HAND else None
    call = sum([c_reads(st) for st in range(8)], [])
    emit(call[:32])
    A.wait_both(tok_h, A.lg)
    if not HAND: flag_store()
    stamp(10)
    A("s_barrier")
    if not HAND: flag_poll()
    run(h_pieces(0))
    stamp(11)
    weave(call[32:], h_pieces(1), 3)
    stamp(12)
    HF = 48
    def rd2(n):
        G, q = n >> 2, n & 3
        slot, buf = HS[G], n & 1
        r = []
        for h in range(4):
            kap = 4 * (q & 1) + h
            off = (slot & 1) * SLOT + (q >> 1) * 16384 + (kap >> 2) * 4096 + ((kap >> 1) & 1) * 2048 + (kap & 1) * 256
            for j in range(2):
                r.append(f"ds_read_b64_tr_b16 {vr(HF+buf*16+h*4+2*j,2)}, v{V_AH+2*(slot>>1)+j} offset:{off}")
        return r
    def mm2(n):
        buf = n & 1
        d = vr(ACC2 + 16 * (n >> 4), 16)
        return [mf(d, vr(HF + buf * 16 + h * 4, 4), ar((4 * (n & 15) + h) * 4, 4), d) for h in range(4)]
    fill = []
    def on_step2(n):
        G, q = n >> 2, n & 3
        if q == 0:
            if G == 0: fill.extend(h_pieces(2) + h_pieces(3))
            elif G + 3 < 8: fill.extend(h_pieces(G + 3))
            elif G == 5: fill.extend(out_stores(ACC2, 0))
    A.wait_vm(tok[("h", 0)])
    if HAND: VER[0][0]()
    A("s_waitcnt lgkmcnt(0)")
    if HAND:
        VER[0][1]()
        VER[0][2]()
    A("s_barrier")
    stamp(13)
    gemm_loop(32, rd2, mm2, lambda n: tok[("h", n >> 2)] if (n & 3) == 0 else None, (3, 3, 2, 0),
              lambda n: (0, 1, 2, 3) if n < 4 else (2, 3), fill, on_step2, verify=(lambda n: VER[n >> 2]) if HAND else None)
    assert not fill
    stamp(14)
    run(out_stores(ACC2, 1))
    tag_update("A")
    stamp(15)
    finish()

def role_B():
    V_OO = 24
    V_AX, V_AT = 28, 36
    V_SW, V_SR, V_P2, V_G2B, V_PB0, V_PB1, V_G1, V_GZ, V_G2, V_P2Z = 39, 40, 41, 42, 43, 44, 45, 46, 47, 253
    S_M8 = P0 + 12
    V_WF = 48
    KACC, VACC, PK, KV, WPH = 64, 96, 128, 192, 224
    T0 = 232
    P_P1O, P_P1G, P_P2O, P_P2G, P_MSK = P0 + 1, P0 + 2, P0 + 8, P0 + 9, P0 + 10
    S_PART = 57
    code_prefetch()
    A("v_lshrrev_b32 v9, 1, v3")
    A("v_xor_b32 v9, v9, v4")
    A("v_lshlrev_b32 v9, 4, v9")
    A("v_lshl_add_u32 v10, v3, 10, v9")
    slin(ST, 0, (S_CHUNK, 1 << 17), (S_WAVE, 1 << 15))
    A(f"v_add_u32 v{V_OX}, s{ST}, v10")
    A(f"v_xor_b32 v11, 64, v{V_OX}")
    A(f"v_add_u32 v{V_OX+1}, 7168, v11")
    A(f"v_add_u32 v{V_OX+2}, {2*7168}, v{V_OX}")
    A(f"v_add_u32 v{V_OX+3}, {3*7168}, v11")
    A("v_bfe_u32 v9, v3, 1, 1")
    A("v_lshlrev_b32 v9, 2, v9")
    A("v_xor_b32 v9, v9, v4")
    A("v_lshlrev_b32 v9, 4, v9")
    A(f"s_lshl_b32 s{ST}, s{S_CG}, 7")
    A(f"v_add_u32 v9, s{ST}, v9")
    A(f"s_lshl_b32 s{ST+1}, s{S_CH}, 5")
    A(f"v_add_u32 v10, s{ST+1}, v3")
    A("v_mul_u32_u24 v11, 3072, v10")
    A(f"v_add_u32 v{V_OW}, v11, v9")
    for p in range(1, 4): A(f"v_add_u32 v{V_OW+p}, {p*(8*3072-1024)}, v{V_OW}")
    A(f"v_lshl_add_u32 v{V_OO}, v10, 10, v9")
    A(f"v_lshrrev_b32 v9, 3, v{V_N}")
    A(f"v_and_b32 v10, 3, v{V_N}")
    A("v_lshl_add_u32 v9, v9, 2, v10")
    A("v_lshlrev_b32 v9, 1, v9")
    A(f"v_lshl_add_u32 v9, v{V_G}, 7, v9")
    slin(ST, 0, (S_CG, 2048), (S_CH, 1024))
    A(f"v_add_u32 v14, s{ST}, v9")
    slin(S_PART, 1024, (S_RH, 1024))
    A("s_waitcnt lgkmcnt(0)")
    srd(SW, K_WQKV, 0x180000)
    stamp(1)
    A(f"s_load_dword s{S_TAG}, s[{K_WS}:{K_WS+1}], {WS_TAGB}")
    srd(SX, K_BX, 0x200000)
    tok = {}
    def g1_pieces(i):
        slot = i & 3
        return (dma_pieces(V_OW, SW, ST + 8, slot * SLOT, pre=lambda: rot_soff(ST + 8, i, mul=196608, plus=S_PART, rot=S_ROT1)) +
                dma_pieces(V_OX, SX, ST + 10, slot * SLOT + 16384, pre=lambda: rot_soff(ST + 10, i, shift=7, rot=S_ROT1),
                           post=lambda: tok.__setitem__(i, A.vm), flags=XF))
    QSLOT = [4, 0]; OSLOT = [1, 2]
    def q_pieces(st):
        return dma_pieces(V_OW, SW, ST + 9, QSLOT[st >> 1] * SLOT + (st & 1) * 16384,
                          pre=lambda: rot_soff(ST + 9, 2 * st, mul=196608, extra_sreg=S_RH, rot=S_ROT1), post=lambda: tok.__setitem__(("q", st), A.vm))
    def o_pieces(st):
        return dma_pieces(V_OO, SW2, ST + 9, OSLOT[st >> 1] * SLOT + (st & 1) * 16384,
                          pre=lambda: rot_soff(ST + 9, 2 * st, shift=16, extra_sreg=S_RH))
    run(g1_pieces(0))
    for hh in range(2):
        for u in range(4):
            d0 = (0, 2, 8, 10)[u]
            A(f"global_load_ushort v{WPH+4*hh+u}, v14, s[{K_WPHI}:{K_WPHI+1}] offset:{hh*512+d0*32}")
            A(f"global_load_ushort v{T0+8+4*hh+u}, v14, s[{K_WPHI}:{K_WPHI+1}] offset:{hh*512+(d0+1)*32}")
    tok_small = A.vm
    srd(SW2, K_WO, 0x80000)
    run(g1_pieces(1))
    if OPT.get("wtouch", 0):
        slin(ST, 0, (S_CHUNK, 32), (S_WAVE, 8))
        A(f"v_add_u32 v9, s{ST}, v4")
        A("v_mul_u32_u24 v10, 3072, v9")
        A("v_lshlrev_b32 v9, 10, v9")
        A(f"s_lshl_b32 s{ST}, s{S_CG}, 7")
        A(f"buffer_load_dword v254, v10, s[{SW}:{SW+3}], s{ST} offen")
        A(f"buffer_load_dword v254, v9, s[{SW2}:{SW2+3}], s{ST} offen")
    stamp(2)
    common_setup("B")
    for p in range(1, 4): A(f"v_add_u32 v{V_OO+p}, {p*7168}, v{V_OO}")
    slin(ST, 0, (S_CG, 512), (S_CH, 256), (S_CHUNK, 2), (S_RH, 1))
    slin(P_P1O, WS_P1, (ST, 640))
    slin(ST, 0, (S_CG, 16), (S_CHUNK, 1))
    slin(P_P2O, WS_P2, (ST, 640))
    slin(P_P1G, WS_P1, (ST, 32 * 640))
    for k in range(1, 4): A(f"s_add_u32 s{P_P1G+k}, s{P_P1G}, {8*k*640}")
    A(f"s_mov_b32 s{S_M8}, 0xff00ff00")
    A(f"s_mov_b32 s{S_M8+1}, 0xff00ff00")
    slin(ST, 0, (S_CG, 16), (S_CH, 8))
    slin(P_P2G, WS_P2, (ST, 640))
    A(f"s_mov_b32 s{P_MSK}, 0xffffff00")
    slin(P_ACTW, WS_O, (S_CHUNK, 1 << 17), (S_CG, 1 << 14), (S_RH, 1 << 12), (S_CH, 1 << 11))
    A(f"s_add_u32 s{P_ACTW2}, s{P_ACTW}, 8192")
    slin(P_ACTR, WS_O, (S_CHUNK, 1 << 17), (S_MF, 8192))
    A(f"s_xor_b32 s{P_ACTR2}, s{P_ACTR}, 8192")
    for r in range(4): A(f"v_mov_b32 v{T0+16+r}, -1")
    clears = [f"buffer_store_dwordx4 {vr(T0+16,4)}, v{V_LIN}, s[{SWS}:{SWS+3}], s{P_ACTW+(k>>1)} offen offset:{(k&1)*1024} sc1" for k in range(4)]
    A(f"s_and_b32 s{ST}, s{S_TAG}, 0xff")
    A(f"v_mov_b32 v{V_TAG}, s{ST}")
    A(f"v_mov_b32 v11, s{S_TAG}")
    A(f"s_lshl_b32 s{ST}, s{S_RH}, 13")
    lds_b128_addrs(V_AX, ST, 16384, 2)
    A(f"v_bfe_u32 v9, v{V_LANE}, 4, 1")
    A(f"v_bfe_u32 v13, v{V_LANE}, 1, 1")
    A("v_lshl_add_u32 v3, v9, 1, v13")
    A(f"v_bfe_u32 v13, v{V_LANE}, 3, 1")
    A(f"v_xor_b32 v13, s{S_CH}, v13")
    A("v_lshl_add_u32 v9, v13, 2, v3")
    A("v_lshlrev_b32 v9, 4, v9")
    A(f"v_and_b32 v4, 1, v{V_LANE}")
    A("v_lshl_add_u32 v9, v4, 3, v9")
    A(f"v_bfe_u32 v14, v{V_LANE}, 2, 2")
    A(f"v_lshl_add_u32 v13, v{V_G}, 3, v14")
    A(f"v_lshl_add_u32 v{V_AT}, v13, 7, v9")
    A(f"v_add_u32 v{V_AT+1}, 0x10000, v{V_AT}")
    A(f"v_add_u32 v{V_AT+2}, 0x20000, v{V_AT}")
    SCR = 3 * SLOT
    slin(ST, SCR, (S_WAVE, 8192))
    A(f"v_mul_u32_u24 v9, 1152, v{V_G}")
    A(f"v_lshl_add_u32 v9, v{V_N}, 4, v9")
    A(f"v_add_u32 v{V_SW}, s{ST}, v9")
    A("v_mul_u32_u24 v9, 576, v3")
    A(f"v_lshl_add_u32 v13, v{V_G}, 2, v14")
    A("v_lshl_add_u32 v9, v13, 4, v9")
    A("v_lshl_add_u32 v9, v4, 3, v9")
    A(f"v_add_u32 v{V_SR}, s{ST}, v9")
    A(f"v_and_b32 v9, 15, v{V_LANE}")
    A("v_cmp_gt_u32 vcc, 4, v9")
    A("v_lshlrev_b32 v9, 4, v9")
    A(f"v_lshl_add_u32 v13, v{V_G}, 6, v9")
    A("v_add_u32 v13, 512, v13")
    A(f"v_lshl_add_u32 v9, v{V_G}, 8, v9")
    A(f"v_mov_b32 v14, {OOB:#x}")
    A("v_cndmask_b32 v13, v14, v13, vcc")
    A(f"v_cndmask_b32_e64 v{V_PB0}, v9, v13, s[{S_M16}:{S_M16+1}]")
    A(f"v_cndmask_b32_e64 v{V_PB1}, v13, v9, s[{S_M16}:{S_M16+1}]")
    A(f"v_cndmask_b32_e64 v13, v13, v14, s[{S_M16}:{S_M16+1}]")
    A(f"s_cmp_eq_u32 s{S_WAVE}, 0")
    A(f"s_cselect_b64 vcc, -1, 0")
    A(f"v_cndmask_b32 v{V_P2Z}, v14, v13, vcc")
    A(f"v_and_b32 v9, 7, v{V_LANE}")
    A(f"s_lshl_b32 s{ST}, s{S_WAVE}, 7")
    A(f"v_lshl_add_u32 v9, v9, 4, s{ST}")
    A(f"v_lshrrev_b32 v13, 3, v{V_LANE}")
    A("v_mul_u32_u24 v13, 640, v13")
    A(f"v_add_u32 v{V_G1}, v9, v13")
    A(f"v_cmp_gt_u32 vcc, 8, v{V_LANE}")
    A(f"v_mul_u32_u24 v{V_GZ}, 640, v{V_N}")
    A(f"v_lshl_add_u32 v{V_GZ}, v{V_G}, 6, v{V_GZ}")
    A(f"v_cndmask_b32 v{V_P2}, v14, v9, vcc")
    A(f"v_bfe_u32 v9, v{V_N}, 2, 1")
    A("v_lshlrev_b32 v9, 3, v9")
    A(f"v_bfe_u32 v13, v{V_N}, 3, 1")
    A("v_lshl_add_u32 v9, v13, 2, v9")
    A(f"v_and_b32 v13, 3, v{V_N}")
    A("v_add_u32 v9, v9, v13")
    A(f"v_cndmask_b32_e64 v9, v9, 32, s[{S_M16}:{S_M16+1}]")
    A("v_lshlrev_b32 v9, 4, v9")
    A(f"v_mul_u32_u24 v13, 1280, v{V_G}")
    A(f"v_add_u32 v{V_G2}, v9, v13")
    A("v_mov_b32 v9, 0x100")
    A(f"v_cndmask_b32_e64 v9, v9, 64, s[{S_M16}:{S_M16+1}]")
    A(f"v_add_u32 v{V_G2B}, v{V_G2}, v9")
    if OPT.get("prew", 1):
        for r in range(4): A(f"v_subrev_u32 v{T0+4+r}, 1, v{V_TAG}")
        A(f"buffer_store_dwordx4 {vr(T0+4,4)}, v{V_P2Z}, s[{SWS}:{SWS+3}], s{P_P2O} offen sc1")
        A(f"buffer_store_dwordx4 {vr(T0+4,4)}, v{V_P2}, s[{SWS}:{SWS+3}], s{P_P2O} offen sc1")
    A("v_mov_b32 v3, 0x3f803f80")
    A(f"v_bfe_u32 v4, v{V_LANE}, 2, 1")
    A("v_mul_u32_u24 v4, 0x8000, v4")
    A("v_lshl_or_b32 v4, v4, 16, v4")
    stamp(3)
    def trfrag(dst, ldsoff, kind="v"):
        s_, off = ldsoff >> 16, ldsoff & 0xffff
        return [f"ds_read_b64_tr_b16 {vr(dst+2*j,2,kind)}, v{V_AT+s_} offset:{off+j*512}" for j in range(2)]
    def rd(n):
        i, ks = n >> 2, n & 3
        slot, buf = i & 3, n & 1
        s2_, off = slot >> 1, (slot & 1) * SLOT
        x = [f"ds_read_b128 {ar(n*8+m*4,4)}, v{V_AX+4*s2_+ks} offset:{off+m*4096}" for m in range(2)]
        w = [trfrag(V_WF + buf * 8 + part * 4, slot * SLOT + part * 8192 + ks * 2048) for part in range(2)]
        return [x[0]] + w[0] + [x[1]] + w[1]
    def mm(n):
        buf = n & 1
        r = []
        for part, m in ((0, 0), (0, 1), (1, 0), (1, 1)):
            x, w = ar(n * 8 + m * 4, 4), vr(V_WF + buf * 8 + part * 4, 4)
            d = vr((KACC, VACC)[part] + 16 * m, 16)
            r.append(mf(d, w, x, d if n else "0") if part == 0 else mf(d, x, w, d if n else "0"))
        return r
    fill = []
    def on_step(n):
        i, ks = n >> 2, n & 3
        if ks == 0:
            if i == 0: fill.extend(g1_pieces(2) + g1_pieces(3))
            elif i + 3 < 8: fill.extend(g1_pieces(i + 3))
            elif i == 5: fill.extend((clears if HAND else []) + q_pieces(0))
            elif i == 6:
                fill.extend(o_pieces(0))
                if OPT.get("ptouch", 0):
                    fill.extend([f"buffer_load_dword v254, v{V_G1}, s[{SWS}:{SWS+3}], s{P_P1G+k} offen sc1" for k in range(4)])
                    fill.append(f"buffer_load_dword v254, v{V_GZ}, s[{SWS}:{SWS+3}], s{P_P1G} offen sc1")
                    fill.extend([f"buffer_load_dword v254, v{V_G2}, s[{SWS}:{SWS+3}], s{P_P2G} offen offset:{(hh*4+jp)*640} sc1" for hh in range(2) for jp in range(2)])
                    fill.append(lambda: rdy_load(254, 254))
            elif i == 7:
                for r in range(8):
                    fill.append(lambda r=r: (A(f"v_lshl_or_b32 v{WPH+r}, v{T0+8+r}, 16, v{WPH+r}"), A(f"v_xor_b32 v{WPH+r}, v4, v{WPH+r}")))
    A.wait_vm(tok[0])
    A("s_barrier")
    stamp(4)
    gemm_loop(32, rd, mm, lambda n: tok[n >> 2] if (n & 3) == 0 else None, (3, 3, 0, 0), lambda n: (0, 1, 2, 3) if (n >> 2) in (0, 5, 6) else (2, 3), fill, on_step, end_barrier=True)
    assert not fill
    stamp(5)
    def feat(acc):
        for m in range(2):
            for u in range(8):
                A(f"v_cvt_pk_bf16_f32 v{acc+16*m+u}, v{acc+16*m+2*u}, v{acc+16*m+2*u+1}")
            for hh in range(2):
                A(mf(vr(PK + (m * 2 + hh) * 16, 16), vr(WPH + 4 * hh, 4), vr(acc + 16 * m + 4 * hh, 4), "0"))
    def softmax_l(x, dst):
        mx, sm = T0, T0 + 2
        l = [f"v_max3_f32 v{mx}, v{x}, v{x+1}, v{x+2}"]
        for u in range(3, 15, 2):
            l.append(f"v_max3_f32 v{mx}, v{mx}, v{x+u}, v{x+u+1}")
        l.append(f"v_max_f32 v{mx}, v{mx}, v{x+15}")
        l.append(f"v_mul_f32 v{mx}, s{S_L2E}, v{mx}")
        for u in range(8):
            l.append(f"v_pk_fma_f32 {vr(x+2*u,2)}, {vr(x+2*u,2)}, s[{S_L2E}:{S_L2E+1}], {vr(mx,2)} op_sel_hi:[1,1,0] neg_lo:[0,0,1] neg_hi:[0,0,1]")
        for u in range(16):
            l.append(f"v_exp_f32 v{x+u}, v{x+u}")
        l.append(f"v_pk_add_f32 {vr(sm,2)}, {vr(x,2)}, {vr(x+2,2)}")
        for u in range(2, 8):
            l.append(f"v_pk_add_f32 {vr(sm,2)}, {vr(sm,2)}, {vr(x+2*u,2)}")
        l.append(f"v_add_f32 v{sm}, v{sm}, v{sm+1}")
        l.append(f"v_rcp_f32 v{sm}, v{sm}")
        for u in range(8):
            l.append(f"v_pk_mul_f32 {vr(x+2*u,2)}, {vr(x+2*u,2)}, {vr(sm,2)} op_sel_hi:[1,0]")
        for u in range(8):
            l.append(f"v_cvt_pk_bf16_f32 v{dst+u}, v{x+2*u}, v{x+2*u+1}")
        return l
    feat(KACC)
    for m in range(2):
        for u in range(8):
            A(f"v_cvt_pk_bf16_f32 v{VACC+16*m+u}, v{VACC+16*m+2*u}, v{VACC+16*m+2*u+1}")
    for m in range(2):
        for u in range(8):
            A(f"v_cndmask_b32_e64 v{VACC+16*m+8+u}, v3, v{VACC+16*m+u}, s[{S_M16}:{S_M16+1}]")
            A(f"v_cndmask_b32_e64 v{VACC+16*m+u}, v{VACC+16*m+u}, v3, s[{S_M16}:{S_M16+1}]")
    PH = [KACC + 8, V_WF + 8]
    PT = [KACC + 24, V_WF]
    def kvmm(blk):
        m, hh = blk >> 1, blk & 1
        d = vr(KV + 16 * hh, 16)
        return [mf(d, vr(PT[blk & 1] + 4 * mm_, 4), vr(VACC + 16 * m + 8 * hh + 4 * mm_, 4), d if (m or mm_) else "0") for mm_ in range(2)]
    for blk in range(4):
        l = softmax_l(PK + blk * 16, PH[blk & 1])
        if blk:
            l = l[:20] + ["s_waitcnt lgkmcnt(0)"] + kvmm(blk - 1) + l[20:]
        emit(l)
        bo = (blk & 1) * 2304
        A(f"ds_write_b128 v{V_SW}, {vr(PH[blk&1],4)} offset:{bo}")
        A(f"ds_write_b128 v{V_SW}, {vr(PH[blk&1]+4,4)} offset:{bo+576}")
        for mm_ in range(2):
            for j in range(2):
                A(f"ds_read_b64_tr_b16 {vr(PT[blk&1]+4*mm_+2*j,2)}, v{V_SR} offset:{bo+(16*mm_+8*j)*16}")
        if OPT.get("fine"): stamp(17 + 2 * blk)
        if blk < 3: run(q_pieces(blk + 1))
        if OPT.get("fine"): stamp(18 + 2 * blk)
    def tagit(r, n):
        for e in range(n):
            A(f"v_and_or_b32 v{r+e}, v{r+e}, s{P_MSK}, v{V_TAG}")
    def pub(hh, oc):
        A(f"s_add_u32 s{ST+3}, s{P_P1O}, {(hh*4+oc)*32*640}")
        A(f"buffer_store_dwordx4 {vr(KV+16*hh+4*oc,4)}, v{V_PB0+hh}, s[{SWS}:{SWS+3}], s{ST+3} offen sc1")
    tagit(KV, 16)
    A("s_waitcnt lgkmcnt(0)")
    emit(kvmm(3))
    for oc in range(4): pub(0, oc)
    for oc in range(4):
        tagit(KV + 16 + 4 * oc, 4)
        pub(1, oc)
    QACC = KACC
    def qaddr(n):
        i, ks = n >> 2, n & 3
        return QSLOT[i >> 2] * SLOT + (i & 3) * 8192 + ks * 2048
    def rdq(n):
        return trfrag(V_WF + (n & 1) * 8, qaddr(2 * n)) + trfrag(V_WF + (n & 1) * 8 + 4, qaddr(2 * n + 1))
    def mmq(n):
        r = []
        for h in range(2):
            for m in range(2):
                d = vr(QACC + 16 * m, 16)
                r.append(mf(d, vr(V_WF + (n & 1) * 8 + 4 * h, 4), ar((2 * n + h) * 8 + m * 4, 4), d if (n or h) else "0"))
        return r
    stamp(6)
    GD = VACC
    GZ = GD + 16
    g1l = [f"buffer_load_dwordx4 {vr(GD+4*k,4)}, v{V_G1}, s[{SWS}:{SWS+3}], s{P_P1G+k} offen sc1" for k in range(4)]
    g1l.append(f"buffer_load_dwordx4 {vr(GZ,4)}, v{V_GZ}, s[{SWS}:{SWS+3}], s{P_P1G} offen offset:512 sc1")
    fill = []
    def on_stepq(n):
        if n in (4, 8, 12): stamp(26 + n // 4)
        if n == 0: fill.extend(([rdy_store] if HAND else []) + o_pieces(1) + o_pieces(2) + o_pieces(3))
        if n == OPT.get('g1at', 13): fill.extend(g1l)
    A.wait_vm(tok[("q", 3)])
    A("s_barrier")
    stamp(26)
    gemm_loop(16, rdq, mmq, lambda n: None, (2, 2, 0, 0),
              (2, 3), fill, on_stepq)
    assert not fill
    stamp(7)
    def check():
        A(f"v_xor_b32 v13, v{GD}, v{V_TAG}")
        for s in range(1, 20):
            A(f"v_bitop3_b32 v13, v{GD+s}, v{V_TAG}, v13 bitop3:0xbe")
        A("v_and_b32 v13, 0xff, v13")
        A(f"v_cmp_ne_u32 s[{S_FAIL}:{S_FAIL+1}], 0, v13")
    feat(QACC)
    poll_pre(lambda: emit(g1l), check)
    DPP = "row_mask:0xf bank_mask:0xf"
    A(f"v_permlane16_swap_b32 v{GZ}, v{GZ+2}")
    A(f"v_permlane16_swap_b32 v{GZ+1}, v{GZ+3}")
    for u in range(0, 8, 2):
        A(f"v_pk_add_f32 {vr(GD+u,2)}, {vr(GD+u,2)}, {vr(GD+8+u,2)}")
    A(f"v_pk_add_f32 {vr(GZ,2)}, {vr(GZ,2)}, {vr(GZ+2,2)}")
    for u in range(0, 4, 2):
        A(f"v_pk_add_f32 {vr(GD+u,2)}, {vr(GD+u,2)}, {vr(GD+4+u,2)}")
    def zror(k):
        for e in range(2): A(f"v_add_f32_dpp v{GZ+e}, v{GZ+e}, v{GZ+e} row_ror:{k} {DPP}")
    zror(1)
    A(f"v_permlane32_swap_b32 v{GD}, v{GD+1}")
    A(f"v_permlane32_swap_b32 v{GD+2}, v{GD+3}")
    zror(2)
    A(f"v_add_f32 v{GD}, v{GD}, v{GD+1}")
    A(f"v_add_f32 v{GD+2}, v{GD+2}, v{GD+3}")
    zror(4)
    A(f"v_permlane16_swap_b32 v{GD}, v{GD+2}")
    A(f"v_add_f32 v{GD}, v{GD}, v{GD+2}")
    zror(8)
    A(f"v_add_f32_dpp v{GD}, v{GD}, v{GD} row_ror:8 {DPP}")
    for e in range(2): A(f"v_and_or_b32 v{GZ+e}, v{GZ+e}, s{P_MSK}, v{V_TAG}")
    A(f"v_and_or_b32 v{GD}, v{GD}, s{P_MSK}, v{V_TAG}")
    for e in range(2): A(f"v_mov_b32 v{GZ+2+e}, v{GZ+e}")
    A(f"v_mov_b32 v{GD+1}, v{GD}")
    A(f"v_permlane16_swap_b32 v{GZ}, v{GZ+2}")
    A(f"v_permlane16_swap_b32 v{GZ+1}, v{GZ+3}")
    A(f"v_permlane32_swap_b32 v{GD}, v{GD+1}")
    A(f"buffer_store_dwordx4 {vr(GZ,4)}, v{V_P2Z}, s[{SWS}:{SWS+3}], s{P_P2O} offen sc1")
    A(f"v_mov_b32 v{GD+2}, v{GD}")
    A(f"v_mov_b32 v{GD+3}, v{GD+1}")
    A(f"v_permlane16_swap_b32 v{GD}, v{GD+2}")
    A(f"v_permlane16_swap_b32 v{GD+1}, v{GD+3}")
    A(f"buffer_store_dwordx4 {vr(GD,4)}, v{V_P2}, s[{SWS}:{SWS+3}], s{P_P2O} offen sc1")
    stamp(8)
    PHQ = KV
    FD = PK
    def loads2():
        for hh in range(2):
            for jp in range(2):
                r = FD + (hh * 2 + jp) * 8
                off = (hh * 4 + jp) * 640
                A(f"buffer_load_dwordx4 {vr(r,4)}, v{V_G2}, s[{SWS}:{SWS+3}], s{P_P2G} offen offset:{off} sc1")
                A(f"buffer_load_dwordx4 {vr(r+4,4)}, v{V_G2B}, s[{SWS}:{SWS+3}], s{P_P2G} offen offset:{off} sc1")
        rdy_load(14)
    def check2():
        A(f"v_xor_b32 v13, v{FD}, v{V_TAG}")
        for s in range(1, 32):
            A(f"v_bitop3_b32 v13, v{FD+s}, v{V_TAG}, v13 bitop3:0xbe")
        rdy_check(9, 14)
        A("v_and_b32 v13, 0xff, v13")
        A("v_or_b32 v13, v13, v9")
        A(f"v_cmp_ne_u32 s[{S_FAIL}:{S_FAIL+1}], 0, v13")
    for blk in range(4):
        if blk == 3: loads2()
        emit(softmax_l(PK + blk * 16, PHQ + 8 * blk))
    stamp(9)
    poll_pre(loads2, check2)
    stamp(10)
    KVF = VACC
    ODR = [KACC, KACC + 16, PK + 32, PK + 48]
    for hh in range(2):
        for q in (2 * hh, 2 * hh + 1):
            for u in range(4):
                A(f"v_cvt_pk_bf16_f32 v{KVF+4*q+u}, v{FD+8*q+2*u}, v{FD+8*q+2*u+1}")
        for m in range(2):
            blk = 2 * m + hh
            d = vr(ODR[blk], 16)
            for jp in range(2):
                A(mf(d, vr(KVF + (hh * 2 + jp) * 4, 4), vr(PHQ + 8 * blk + 4 * jp, 4), d if jp else "0"))
    xcc_decide(14)
    for blk in (0, 2, 1, 3):
        m, hh = blk >> 1, blk & 1
        o = ODR[blk]
        A(f"v_add_f32 v{o+8}, 0x358637bd, v{o+8}")
        A(f"v_rcp_f32 v{o+8}, v{o+8}")
        for u in range(4):
            A(f"v_pk_mul_f32 {vr(o+2*u,2)}, {vr(o+2*u,2)}, {vr(o+8,2)} op_sel_hi:[1,0]")
        for u in range(4):
            A(f"v_cvt_pk_bf16_f32 v{o+12+u}, v{o+2*u}, v{o+2*u+1}")
        A(f"buffer_store_dwordx4 {vr(o+12,4)}, v{V_LIN}, s[{SWS}:{SWS+3}], s{P_ACTW+m} offen offset:{hh*1024} sc1")
    tok_o = A.vm - 4 + (OPT["owait"] if HAND else 4)
    A(f"s_lshl_b32 s{ST+5}, s{S_RH}, 12")
    A(f"v_add_u32 v{V_AX}, s{ST+5}, v{V_LIN}")
    A(f"v_add_u32 v{V_AX+1}, 0x10000, v{V_AX}")
    A(f"v_add_u32 v{V_AX+2}, 0x20000, v{V_AX}")
    A("s_barrier")
    stamp(11)
    OS = [3, 4, 0, 1]
    def of_pieces(G, so=ST + 8, rec=True):
        return (dma_pieces(V_LIN, SWS, so, OS[G] * SLOT, m0reg=S_M0W2, same_v=True, flags=PLF,
                           pre=lambda: rot_soff(so, 4 * (G & 1), shift=14, extra_sreg=S_WAVE, plus=P_ACTR + (G >> 1))) +
                dma_pieces(V_LIN, SWS, so, OS[G] * SLOT + 4096, m0reg=S_M0W2, same_v=True, flags=PLF,
                           pre=lambda: A(f"s_add_u32 s{so}, s{so}, 4096"),
                           post=(lambda: tok.__setitem__(("of", G), A.vm)) if rec else None))
    VER = [make_verify(lambda so, G=G: of_pieces(G, so, False), OS[G], 4096) for G in range(4)] if HAND else None
    wor = []
    for n in range(32):
        wor += trfrag(n * 4, OSLOT[n >> 4] * SLOT + ((n >> 2) & 3) * 8192 + (n & 3) * 2048, "a")
    emit(wor[:32])
    A.wait_vm(tok_o)
    if not HAND:
        flag_store()
        flag_poll()
    stamp(12)
    run(of_pieces(0))
    weave(wor[32:], of_pieces(1), 4)
    OF = PK
    OACC = VACC
    def rd4(n):
        G, q = n >> 2, n & 3
        slot = OS[G]
        r = []
        for h in range(4):
            r.append(f"ds_read_b128 {vr(OF+(n&1)*16+h*4,4)}, v{V_AX+(slot>>1)} offset:{(slot&1)*SLOT+q*8192+h*1024}")
        return r
    def mm4(n):
        d = vr(OACC + 16 * (n >> 3), 16)
        return [mf(d, vr(OF + (n & 1) * 16 + h * 4, 4), ar((4 * (n & 7) + h) * 4, 4), d if ((n & 7) or h) else "0") for h in range(4)]
    fill = []
    def on_step4(n):
        if n == 0: fill.extend(of_pieces(2) + of_pieces(3))
        if n == 9: fill.extend(out_stores(OACC, 0))
    A.wait_vm(tok[("of", 0)])
    if HAND: VER[0][0]()
    A("s_waitcnt lgkmcnt(0)")
    if HAND:
        VER[0][1]()
        VER[0][2]()
    A("s_barrier")
    stamp(13)
    gemm_loop(16, rd4, mm4, lambda n: tok[("of", n >> 2)] if (n & 3) == 0 else None, (2, 2, 0, 0),
              lambda n: (1, 2, 3) if n >= 9 else (0, 1, 2, 3), fill, on_step4, verify=(lambda n: VER[n >> 2]) if HAND else None)
    assert not fill
    stamp(14)
    run(out_stores(OACC, 1))
    tag_update("B")
    stamp(15)
    finish()

prologue()
vm0, lg0 = A.vm, A.lg
role_A()
for f in DEFER: f()
DEFER.clear()
A.label("L_roleB")
ROLE[0] = "B"
A.vm, A.lg = vm0, lg0
A.hist = []
role_B()
for f in DEFER: f()
A.label("L_end")
A("s_endpgm")

lines = A.out
if OPT["align"]:
    lines, nw, nn = align(lines, min_nop=OPT.get('minnop', 12))
    print("align: widened", nw, "nops", nn)
HEAD = open("cdna_kernels/" + NAME + ".s.ref").read().split("; Override launch geometry")[0]
src = HEAD + f"""; @launch grid=(256,1,1) block=(256,1,1) lds=163840
.amdgcn_target "amdgcn-amd-amdhsa--gfx950"
.text
.globl {NAME}_kernel
.p2align 8
.type {NAME}_kernel,@function
{NAME}_kernel:
""" + "\n".join(lines) + f"""
.fill 8192, 4, 0xBF810000
.section .rodata,"a"
.p2align 6
.amdhsa_kernel {NAME}_kernel
  .amdhsa_next_free_vgpr 512
  .amdhsa_next_free_sgpr 102
  .amdhsa_accum_offset 256
  .amdhsa_group_segment_fixed_size 0
  .amdhsa_kernarg_size 128
  .amdhsa_user_sgpr_count 2
  .amdhsa_user_sgpr_kernarg_segment_ptr 1
  .amdhsa_system_sgpr_workgroup_id_x 1
.end_amdhsa_kernel
"""
open(sys.argv[1], "w").write(src)
print("hazard nops:", A.nnop, "lines:", len(lines))
```

```python
import sys
from dsl import Asm, vr, ar, sr
from align import align

NAME = "concat_heads__ssm_conv_s5__linear_kernel_hedgehog__prompt"
OPT = dict(stamps=False, rotmode=2, align=1, xnt=0, hwait=8, owait=4, hand=0)
for a_ in sys.argv[2:]:
    k_, _, v_ = a_.partition("=")
    OPT[k_] = int(v_) if v_ else True

WS_TAGA, WS_TAGB = 0x0, 0x80
WS_XCC = 0x1000
WS_FLAG = 0x2000
WS_SA = 0x10000
WS_P1 = 0x100000
WS_P2 = 0x3C0000
WS_H = 0x400000
WS_O = 0x800000
WS_STAMP = 0xA00000
OOB = 0x40000000
SPIN_LIMIT = 1 << 14
LOG2E = 0x3FB8AA3B
INV2PI = 0x3E22F983

S_WAVE, S_CHUNK, S_CG, S_ROT, S_TAG = 3, 4, 5, 6, 7
SX, SW, SW2, SWS, SOUT = 8, 12, 16, 20, 24
S_RH, S_CH, S_SLOT, S_GRP = 28, 29, 30, 31
ST = 32
S_M0W, S_M0W2 = 48, 49
S_MG = 50
S_MRH = 52
S_L2E = 54
S_CNT = 56
S_FAIL = 58
S_M16 = 60
S_SM0, S_RS = 62, 63
S_XW, S_SLOW, P_FLW = 91, 92, 93
S_ROT1 = 47
KAP = [62, 63, 44, 45, 86, 87, 94, 95]
SEQ = [(0, 0), (0, 1)] + [(j, 0) for j in range(1, 8)] + [(j, 1) for j in range(1, 8)]
HAND = OPT['hand']
KA = 64
K_AX, K_LRE, K_LIM, K_BRE, K_BIM, K_CRE, K_CIM, K_LDT, K_DSK, K_BX, K_WQKV, K_WPHI, K_WO, K_OUT, K_DBG, K_WS = [KA + 2 * i for i in range(16)]
P_FLAGB, P_FLAGO, P_XCCB, P_TAGSEL, P_OUT, P_OUT2, P_ACTR, P_ACTR2 = range(64, 72)
P_ACTW, P_ACTW2, S_MF = 88, 89, 90
P0 = 72
S_STAMP = 96
V_LANE, V_OUTO, V_N, V_G, V_LIN, V_TAG, V_L0, V_CHK, V_XPO = 1, 2, 5, 6, 7, 8, 10, 12, 15
V_OX, V_OW = 16, 20
SLOT = 32768

A = Asm()
nlab = [0]

def srd(dst, ptr, nbytes):
    A(f"s_mov_b32 s{dst}, s{ptr}")
    A(f"s_mov_b32 s{dst+1}, s{ptr+1}")
    A(f"s_mov_b32 s{dst+2}, {nbytes:#x}")
    A(f"s_mov_b32 s{dst+3}, 0x20000")

def slin(dst, const, *terms):
    first = True
    for reg, mul in terms:
        t = dst if first else ST + 14
        if mul == 1:
            if first: A(f"s_mov_b32 s{dst}, s{reg}")
            else: t = reg
        elif mul & (mul - 1) == 0: A(f"s_lshl_b32 s{t}, s{reg}, {mul.bit_length()-1}")
        else: A(f"s_mul_i32 s{t}, s{reg}, {mul}")
        if not first: A(f"s_add_u32 s{dst}, s{dst}, s{t}")
        first = False
    if const: A(f"s_add_u32 s{dst}, s{dst}, {const:#x}")

ROLE = ["A"]
def stamp(idx):
    if OPT.get("probe") == idx + (0 if ROLE[0] == "A" else 100):
        A("s_memrealtime s[96:97]")
        A("s_waitcnt lgkmcnt(0)")
        A("s_sub_u32 s99, s96, s100")
    if not OPT["stamps"]: return
    A(f"s_memtime s[{S_STAMP}:{S_STAMP+1}]")
    A("s_waitcnt lgkmcnt(0)")
    A(f"s_sub_u32 s{S_STAMP}, s{S_STAMP}, s98")
    A(f"v_writelane_b32 v255, s{S_STAMP}, {idx}")
    if OPT.get("rt") and idx <= 16:
        A(f"s_memrealtime s[{S_STAMP}:{S_STAMP+1}]")
        A("s_waitcnt lgkmcnt(0)")
        A(f"s_sub_u32 s{S_STAMP}, s{S_STAMP}, s100")
        A(f"v_writelane_b32 v255, s{S_STAMP}, {idx+44}")

NB = [32, 36, 38, 42, 58, 56]
nbuse = []
def nbstamp(k):
    if OPT.get("nb") and OPT["stamps"]:
        A(f"s_memtime s[{NB[k]}:{NB[k]+1}]"); nbuse.append(k)
def nbflush():
    if OPT.get("nb") and OPT["stamps"]:
        A("s_waitcnt lgkmcnt(0)")
        for k in nbuse:
            A(f"s_sub_u32 s{NB[k]}, s{NB[k]}, s98")
            A(f"v_writelane_b32 v255, s{NB[k]}, {17+k}")
        nbuse.clear()

def lab(n):
    nlab[0] += 1
    return f"L_{n}_{nlab[0]}"

def finish():
    if OPT.get("probe") and (OPT["probe"] >= 100) == (ROLE[0] == "B"):
        if OPT["probe"] % 100 == 16:
            A("s_waitcnt vmcnt(0)")
            stamp(16)
        l = lab("pr")
        A("s_lshl_b32 s99, s99, 1")
        A("s_add_u32 s99, s99, 2500")
        A.label(l)
        A("s_memrealtime s[96:97]")
        A("s_waitcnt lgkmcnt(0)")
        A("s_sub_u32 s96, s96, s100")
        A("s_cmp_lt_u32 s96, s99")
        A(f"s_cbranch_scc1 {l}")
    if OPT.get("fixrt"):
        l = lab("rt")
        A.label(l)
        A("s_memrealtime s[96:97]")
        A("s_waitcnt lgkmcnt(0)")
        A("s_sub_u32 s96, s96, s100")
        A(f"s_cmp_lt_u32 s96, {OPT['fixrt']}")
        A(f"s_cbranch_scc1 {l}")
    if OPT["stamps"]:
        A("s_waitcnt vmcnt(0)")
        stamp(16)
        A("v_writelane_b32 v255, s99, 30")
        A("s_memrealtime s[96:97]")
        A("v_writelane_b32 v255, s100, 40")
        A("s_waitcnt lgkmcnt(0)")
        A("v_writelane_b32 v255, s96, 41")
        slin(ST, WS_STAMP, (2, 1024), (S_WAVE, 256))
        A(f"v_lshlrev_b32 v254, 2, v{V_LANE}")
        A(f"buffer_store_dword v255, v254, s[{SWS}:{SWS+3}], s{ST} offen")
    A("s_endpgm")

def mf(d, a, b, c):
    return f"v_mfma_f32_32x32x16_bf16 {d}, {a}, {b}, {c}"

def poll(loads, check):
    top, done = lab("poll"), lab("ok")
    A(f"s_mov_b32 s{S_CNT}, {SPIN_LIMIT}")
    A.label(top)
    loads()
    A("s_waitcnt vmcnt(0)")
    check()
    A(f"s_cmp_eq_u64 s[{S_FAIL}:{S_FAIL+1}], 0")
    A(f"s_cbranch_scc1 {done}")
    A(f"s_sub_u32 s{S_CNT}, s{S_CNT}, 1")
    A(f"s_cbranch_scc0 {top}")
    A.label(done)

def poll_pre(loads, check):
    top, done = lab("poll"), lab("ok")
    A(f"s_mov_b32 s{S_CNT}, {SPIN_LIMIT}")
    A.label(top)
    A("s_waitcnt vmcnt(0)")
    check()
    A(f"s_cmp_eq_u64 s[{S_FAIL}:{S_FAIL+1}], 0")
    A(f"s_cbranch_scc1 {done}")
    loads()
    A(f"s_sub_u32 s{S_CNT}, s{S_CNT}, 1")
    A(f"s_cbranch_scc0 {top}")
    A("s_waitcnt vmcnt(0)")
    A.label(done)

def cfma_l(d, a, b, c, t):
    return [f"v_pk_fma_f32 {vr(t,2)}, {vr(a,2)}, {vr(b,2)}, {vr(c,2)} op_sel:[1,1,0] op_sel_hi:[1,0,1] neg_lo:[1,0,0]",
            f"v_pk_fma_f32 {vr(d,2)}, {vr(a,2)}, {vr(b,2)}, {vr(t,2)} op_sel:[0,0,0] op_sel_hi:[0,1,1]"]
def cmul_l(d, a, b, t):
    return [f"v_pk_mul_f32 {vr(t,2)}, {vr(a,2)}, {vr(b,2)} op_sel:[1,1] op_sel_hi:[1,0] neg_lo:[1,0]",
            f"v_pk_fma_f32 {vr(d,2)}, {vr(a,2)}, {vr(b,2)}, {vr(t,2)} op_sel:[0,0,0] op_sel_hi:[0,1,1]"]
def emit(l):
    for x in l: A(x)
def cfma(*a): emit(cfma_l(*a))
def cmul(*a): emit(cmul_l(*a))

def weave(main, fillers, every, start=0):
    for i, x in enumerate(main):
        A(x)
        if i >= start and (i - start) % every == every - 1 and fillers:
            f = fillers.pop(0)
            if isinstance(f, str): A(f)
            elif f: f()

def gemm_loop(nsteps, reads, mfmas, boundary, split, fill_gaps, fillers, on_step=None, end_barrier=False, verify=None, start=0):
    for r in reads(start): A(r)
    for n in range(start, nsteps):
        if on_step: on_step(n)
        last = n == nsteps - 1
        b = None if last else boundary(n + 1)
        b2 = boundary(n + 2) if (verify and n + 2 < nsteps) else None
        if b2 is not None: A.wait_both(b2, A.lg)
        elif b is not None and not verify: A.wait_both(b, A.lg)
        else: A("s_waitcnt lgkmcnt(0)")
        if b is not None and verify: verify(n + 1)[1]()
        rs = [] if last else list(reads(n + 1))
        ms = mfmas(n)
        for g in range(4):
            A(ms[g])
            if g == 0 and b2 is not None: verify(n + 2)[0]()
            if g == 0 and b is not None and verify: verify(n + 1)[2]()
            if g == 0 and (b is not None or (last and end_barrier)): A("s_barrier")
            for _ in range(split[g]):
                if rs: A(rs.pop(0))
            if g in (fill_gaps(n) if callable(fill_gaps) else fill_gaps) and fillers:
                f = fillers.pop(0)
                if isinstance(f, str): A(f)
                elif f: f()
        assert not rs

def dma_pieces(voff, srdreg, soff, ldsoff, pre=None, post=None, flags="", m0reg=S_M0W, same_v=False):
    def mk(p):
        def f():
            if p == 0:
                A(f"s_add_u32 m0, s{m0reg}, {ldsoff:#x}")
                if pre: pre()
            A(f"buffer_load_dwordx4 v{voff if same_v else voff+p}, s[{srdreg}:{srdreg+3}], s{soff} offen offset:{p*1024} {flags}lds")
            if p == 3 and post: post()
        return f
    return [mk(p) for p in range(4)]

def run(fs):
    for f in fs:
        if isinstance(f, str): A(f)
        else: f()

def rot_soff(dst, add, shift=None, mul=None, extra_sreg=None, plus=None, rot=S_ROT):
    A(f"s_add_u32 s{dst}, s{rot}, {add}")
    if extra_sreg is not None: A(f"s_add_u32 s{dst}, s{dst}, s{extra_sreg}")
    A(f"s_and_b32 s{dst}, s{dst}, 7")
    if shift is not None: A(f"s_lshl_b32 s{dst}, s{dst}, {shift}")
    else: A(f"s_mul_i32 s{dst}, s{dst}, {mul}")
    if plus is not None: A(f"s_add_u32 s{dst}, s{dst}, s{plus}")

def prologue():
    if OPT["stamps"]: A("s_memtime s[98:99]")
    if OPT.get("fixrt") or OPT.get("probe") or OPT["stamps"]: A("s_memrealtime s[100:101]")
    A("s_cmp_ge_u32 s2, 256")
    A("s_cbranch_scc1 L_end")
    A(f"s_load_dwordx16 s[{KA}:{KA+15}], s[0:1], 0")
    A(f"s_load_dwordx16 s[{KA+16}:{KA+31}], s[0:1], 64")
    A("v_and_b32 v1, 63, v0")
    A("v_lshrrev_b32 v2, 6, v0")
    A(f"s_lshr_b32 s{S_SLOT}, s2, 3")
    A(f"v_readfirstlane_b32 s{S_WAVE}, v2")
    A(f"s_and_b32 s{ST}, s2, 3")
    A(f"s_lshl_b32 s{S_CHUNK}, s{ST}, 2")
    A(f"s_lshr_b32 s{ST+1}, s{S_SLOT}, 3")
    A(f"s_add_u32 s{S_CHUNK}, s{S_CHUNK}, s{ST+1}")
    A(f"s_and_b32 s{S_CG}, s{S_SLOT}, 7")
    A(f"s_lshl_b32 s{S_ROT}, s{ST+1}, 1")
    A(f"s_add_u32 s{S_ROT}, s{S_ROT}, s{S_CG}")
    A(f"s_and_b32 s{S_ROT}, s{S_ROT}, 7")
    rm = OPT["rotmode"]
    if rm == 8: A(f"s_mov_b32 s{S_ROT1}, s{S_ROT}")
    elif rm == 1: A(f"s_mov_b32 s{S_ROT1}, 0")
    elif rm == 3:
        A(f"s_add_u32 s{S_ROT1}, s{S_CG}, s{ST+1}")
        A(f"s_and_b32 s{S_ROT1}, s{S_ROT1}, 3")
        A(f"s_mul_i32 s{S_ROT1}, s{S_ROT1}, 3")
    else:
        A(f"s_add_u32 s{S_ROT1}, s{S_CG}, s{ST+1}")
        A(f"s_and_b32 s{S_ROT1}, s{S_ROT1}, {rm-1}")
        A(f"s_lshl_b32 s{S_ROT1}, s{S_ROT1}, {2 if rm == 2 else 1}")
    A(f"s_lshr_b32 s{S_RH}, s{S_WAVE}, 1")
    A(f"s_and_b32 s{S_CH}, s{S_WAVE}, 1")
    A(f"s_lshl_b32 s{S_M0W}, s{S_WAVE}, 12")
    slin(ST + 2, 0, (S_SLOT, 512), (S_WAVE, 128))
    A("v_and_b32 v7, 1, v0")
    A(f"v_lshl_add_u32 v7, v7, 14, s{ST+2}")
    A("v_lshrrev_b32 v3, 3, v1")
    A("v_and_b32 v4, 7, v1")
    A(f"v_and_b32 v{V_N}, 31, v1")
    A(f"v_lshrrev_b32 v{V_G}, 5, v1")
    if OPT["stamps"]: A("v_mov_b32 v255, 0")
    A("s_bitcmp0_b32 s2, 2" if OPT.get("swap") else "s_bitcmp1_b32 s2, 2")
    A("s_cbranch_scc1 L_roleB")

CUT = {}
def cut(role):
    A(f"s_branch L_main{role}")
    CUT[role] = len(A.out)
    A.label(f"L_main{role}")

def code_prefetch():
    A(f"s_getpc_b64 s[{ST+4}:{ST+5}]")
    A.label(f"L_pc{ROLE[0]}")
    A(f"s_add_u32 s{ST+4}, s{ST+4}, L_main{ROLE[0]}-L_pc{ROLE[0]}")
    A(f"s_addc_u32 s{ST+5}, s{ST+5}, 0")
    A(f"global_load_dword v254, v7, s[{ST+4}:{ST+5}]")

def common_setup(role):
    srd(SWS, K_WS, 0x10000000)
    srd(SOUT, K_OUT, 0x800000)
    A(f"s_lshl_b32 s{S_M0W2}, s{S_WAVE}, 13")
    A(f"s_mov_b32 s{S_MG}, 0")
    A(f"s_mov_b32 s{S_MG+1}, -1")
    A(f"s_sub_u32 s{S_MRH}, 0, s{S_RH}")
    A(f"s_mov_b32 s{S_MRH+1}, s{S_MRH}")
    A(f"s_mov_b32 s{S_L2E}, {LOG2E:#x}")
    A(f"s_mov_b32 s{S_L2E+1}, {LOG2E:#x}")
    A(f"s_mov_b32 s{S_M16}, 0xffff0000")
    A(f"s_mov_b32 s{S_M16+1}, 0xffff0000")
    A(f"s_add_u32 s{S_GRP}, s{S_CHUNK}, {0 if role == 'A' else 16}")
    slin(P_XCCB, WS_XCC, (S_GRP, 128))
    A(f"s_and_b32 s{S_MF}, s{S_CG}, 1")
    slin(P_OUT, 0 if role == "A" else 2048, (S_CHUNK, 1 << 19), (S_RH, 1 << 18), (S_CG, 256), (S_CH, 128), (S_MF, 1 << 17))
    A(f"s_xor_b32 s{P_OUT2}, s{P_OUT}, {1 << 17:#x}")
    slin(P_TAGSEL, 0, (S_CHUNK, 256), (S_CG, 16), (S_WAVE, 1))
    A(f"s_and_b32 s{ST}, s{S_CHUNK}, 3")
    A(f"s_lshl_b32 s{ST}, s{ST}, 1")
    A(f"s_mov_b32 s{KAP[0]}, s{S_CG}")
    for j in range(1, 8):
        A(f"s_add_u32 s{ST+1}, s{ST}, {j-1}")
        A(f"s_cmp_ge_u32 s{ST+1}, 7")
        A(f"s_addc_u32 s{ST+1}, s{ST+1}, 1")
        A(f"s_add_u32 s{ST+1}, s{ST+1}, s{S_CG}")
        A(f"s_and_b32 s{KAP[j]}, s{ST+1}, 7")
    if OPT.get("tlb", 1):
        A(f"v_and_b32 v9, 15, v{V_LANE}")
        A("v_lshlrev_b32 v9, 20, v9")
        A(f"buffer_load_dword v254, v9, s[{SWS}:{SWS+3}], 0 offen offset:2048")
        A(f"buffer_load_dword v254, v9, s[{SOUT}:{SOUT+3}], 0 offen")
        A(f"buffer_load_dword v254, v9, s[{SW2}:{SW2+3}], 0 offen")
    A(f"v_lshlrev_b32 v{V_LIN}, 4, v{V_LANE}")
    A(f"v_mov_b32 v{V_L0}, {OOB:#x}")
    A(f"v_cmp_eq_u32 vcc, 0, v{V_LANE}")
    A(f"v_bfe_u32 v9, v{V_LANE}, 1, 4")
    A("v_lshlrev_b32 v9, 2, v9")
    A(f"v_lshl_add_u32 v9, v{V_LANE}, 6, v9")
    A(f"v_add_u32 v{V_CHK}, s{S_M0W if role == 'A' else S_M0W2}, v9")
    if not HAND:
        A(f"v_lshlrev_b32 v{V_CHK}, 2, v{V_N}")
        slin(P_FLAGB, WS_FLAG, (S_GRP, 128))
        slin(P_FLW, 0, (S_CG, 16), (S_WAVE, 4), (P_FLAGB, 1))
        A(f"s_getreg_b32 s{S_XW}, hwreg(HW_REG_XCC_ID, 0, 4)")
    A(f"v_lshlrev_b32 v{V_XPO}, 2, v4")
    A(f"v_cndmask_b32_e64 v{V_L0}, v{V_L0}, 0, vcc")
    A(f"v_lshlrev_b32 v{V_OUTO}, 14, v{V_G}")
    A(f"v_lshl_add_u32 v{V_OUTO}, v{V_N}, 2, v{V_OUTO}")
    slin(P_FLAGO, 0, (S_CG, 4), (P_XCCB, 1))
    A("s_waitcnt lgkmcnt(0)")
    A(f"s_add_u32 s{S_TAG}, s{S_TAG}, 1")
    if OPT["stamps"]: A("s_mov_b32 s99, 0")
    if not HAND:
        A(f"s_lshl_b32 s{ST}, s{S_TAG}, 4")
        A(f"s_or_b32 s{S_XW}, s{S_XW}, s{ST}")
        A(f"v_mov_b32 v9, s{S_XW}")
        A(f"buffer_store_dword v9, v{V_L0}, s[{SWS}:{SWS+3}], s{P_FLAGO} offen sc1")

def lds_b128_addrs(base_reg, wave_off_sreg, const, nsets):
    A(f"v_bfe_u32 v9, v{V_N}, 1, 3")
    A(f"v_xor_b32 v9, v9, v{V_G}")
    A("v_lshlrev_b32 v9, 4, v9")
    A(f"v_lshl_add_u32 v9, v{V_N}, 7, v9")
    A(f"v_add_u32 v9, s{wave_off_sreg}, v9")
    if const: A(f"v_add_u32 v9, {const:#x}, v9")
    for ks in range(4):
        A(f"v_xor_b32 v{base_reg+ks}, {32*ks}, v9")
    for st in range(1, nsets):
        for ks in range(4): A(f"v_add_u32 v{base_reg+4*st+ks}, {st*0x10000:#x}, v{base_reg+ks}")

def rdy_load(reg, dummy=9):
    if not HAND: A(f"buffer_load_dword v{dummy}, v{V_CHK}, s[{SWS}:{SWS+3}], s{P_FLAGB} offen sc1")
    A(f"buffer_load_dword v{reg}, v{V_XPO}, s[{SWS}:{SWS+3}], s{P_XCCB} offen sc1")
def rdy_check(dst, reg):
    if HAND: A(f"v_xor_b32 v{dst}, s{S_TAG}, v{reg}")
    else:
        A(f"v_xor_b32 v{reg}, s{S_XW}, v{reg}")
        A(f"v_lshrrev_b32 v{dst}, 4, v{reg}")
def rdy_store():
    if HAND: A(f"buffer_store_dword v11, v{V_L0}, s[{SWS}:{SWS+3}], s{P_FLAGO} offen sc1")
def xcc_decide(reg):
    if HAND: return
    A(f"v_cmp_ne_u32 vcc, 0, v{reg}")
    A("s_cmp_lg_u64 vcc, 0")
    A(f"s_cselect_b32 s{S_SLOW}, 1, 0")
def flag_store():
    slow, join = lab("slow"), lab("join")
    A(f"s_cmp_lg_u32 s{S_SLOW}, 0")
    A(f"s_cbranch_scc1 {slow}")
    A(f"buffer_store_dword v11, v{V_L0}, s[{SWS}:{SWS+3}], s{P_FLW} offen")
    A.label(join)
    def later():
        A.label(slow)
        A(f"buffer_store_dword v11, v{V_L0}, s[{SWS}:{SWS+3}], s{P_FLW} offen sc1")
        A(f"s_branch {join}")
    DEFER.append(later)
def flag_poll():
    poll(lambda: A(f"buffer_load_dword v13, v{V_CHK}, s[{SWS}:{SWS+3}], s{P_FLAGB} offen sc1"),
         lambda: A(f"v_cmp_ne_u32 s[{S_FAIL}:{S_FAIL+1}], s{S_TAG}, v13"))

DEFER = []
def make_verify(pieces, slot, second):
    retry, back = lab("retry"), lab("back")
    def reads():
        A(f"v_add_u32 v9, {slot*SLOT:#x}, v{V_CHK}")
        A("ds_read_b32 v13, v9")
        A(f"ds_read_b32 v14, v9 offset:{second}")
    def cmp():
        A("v_max_u32 v13, v13, v14")
        A("v_cmp_eq_u32 vcc, -1, v13")
    def branch():
        A("s_cmp_lg_u64 vcc, 0")
        A(f"s_cbranch_scc1 {retry}")
        A.label(back)
    def later():
        top, done = lab("rl"), lab("rd")
        A.label(retry)
        A.hist = []
        A(f"s_mov_b32 s{S_SM0}, m0")
        A(f"s_mov_b32 s{S_CNT}, {SPIN_LIMIT}")
        A.label(top)
        run(pieces(S_RS))
        A("s_waitcnt vmcnt(0)")
        A("ds_read_b32 v13, v9")
        A(f"ds_read_b32 v14, v9 offset:{second}")
        A("s_waitcnt lgkmcnt(0)")
        cmp()
        A("s_cmp_eq_u64 vcc, 0")
        A(f"s_cbranch_scc1 {done}")
        A(f"s_sub_u32 s{S_CNT}, s{S_CNT}, 1")
        A(f"s_cbranch_scc0 {top}")
        A.label(done)
        if OPT["stamps"]:
            A(f"s_sub_u32 s{S_CNT}, {SPIN_LIMIT + 1}, s{S_CNT}")
            A(f"s_add_u32 s99, s99, s{S_CNT}")
        A(f"s_mov_b32 m0, s{S_SM0}")
        A(f"s_branch {back}")
    DEFER.append(later)
    return reads, cmp, branch

def tag_update(role):
    skip = lab("notag")
    A(f"s_cmp_eq_u32 s{P_TAGSEL}, {(15 if role == 'A' else 0) << 8}")
    A(f"s_cbranch_scc0 {skip}")
    A(f"buffer_store_dword v11, v{V_L0}, s[{SWS}:{SWS+3}], 0 offen offset:{WS_TAGA if role == 'A' else WS_TAGB} sc1")
    A.label(skip)

def out_stores(acc, ph):
    def mk(r):
        def f():
            row = 8 * (r >> 2) + (r & 3)
            A(f"s_add_u32 s{ST+1}, s{P_OUT+ph}, {row*4096}")
            A(f"buffer_store_dword v{acc+16*ph+r}, v{V_OUTO}, s[{SOUT}:{SOUT+3}], s{ST+1} offen {OUTF}")
        return f
    return [mk(r) for r in range(16)]

SCHED = {
    0: ({0: [2, 3], 1: [4], 2: [5], 3: [6], 4: [7]}, 5, {0: "all"}),
    1: ({i: [i + 2] for i in range(6)}, 6, {i: "front" for i in range(6)}),
    2: ({0: [2], 1: [3], 2: [4], 3: [5, 6], 4: [7]}, 5, {3: "all"}),
    3: ({0: [2], 1: [3], 2: [4, 5], 3: [6], 4: [7]}, 5, {2: "all"}),
    4: ({0: [2], 1: [3], 2: [4], 3: [5], 4: [6], 5: [7]}, 6, {2: "front", 3: "front", 4: "front", 5: "front"}),
    5: ({0: [2], 1: [3, 4], 2: [5], 3: [6], 4: [7]}, 5, {1: "all"}),
    6: ({i: [i + 3] for i in range(5)}, 5, {}),
    7: ({i: [i + 3] for i in range(5)}, 5, {0: "front", 1: "front"}),
}[OPT.get("sched", 0)]
EARLY = OPT.get("sched", 0) >= 6
NPRE = OPT.get("npre", 4)
XST = SCHED[1]
def g1_gaps(n, busy):
    i = n >> 2
    if SCHED[2].get(i) in ("all", "front") or i in busy: return (0, 1, 2, 3)
    return (2, 3)
OUTF = {0: "sc1", 1: "sc1 nt", 2: "sc0 sc1", 3: "nt", 4: "", 5: "sc0 sc1 nt"}[OPT.get("outf", 0)]
XF = "nt " if OPT["xnt"] else ""
PLF = {0: "sc1 ", 1: "", 2: "sc0 ", 3: "nt "}[OPT.get("plf", 0)]

def role_A():
    V_AX, V_AW = 24, 32
    V_GO, V_SCW = 44, 3
    V_XF, V_WF = 48, 64
    URE, UIM = 80, 112
    ACC2 = 144
    HP = 176
    XS, DG, V_GE = 176, 192, 200
    V_PUB, V_XSO, V_HSO = 204, 205, 223
    C_LAM, C_M1, C_M2, C_L, C_MQ, C_LQ, C_C2 = 208, 210, 212, 214, 216, 218, 220
    C_DSK = 222
    T0 = 224
    P_SAB, P_SAO, P_XS0, P_XS1 = P0, P0 + 1, P0 + 2, P0 + 3
    code_prefetch()
    A("v_lshrrev_b32 v9, 1, v3")
    A("v_xor_b32 v9, v9, v4")
    A("v_lshlrev_b32 v9, 4, v9")
    A("v_lshrrev_b32 v10, 2, v3")
    A("v_lshlrev_b32 v10, 5, v10")
    A("v_and_b32 v11, 1, v3")
    A("v_lshl_add_u32 v10, v11, 4, v10")
    A("v_bfe_u32 v11, v3, 1, 1")
    A("v_add_u32 v10, v10, v11")
    A("v_lshl_add_u32 v10, v10, 10, v9")
    slin(ST, 0, (S_CHUNK, 1 << 17), (S_RH, 1 << 16), (S_CH, 1 << 13))
    A(f"v_add_u32 v{V_OX}, s{ST}, v10")
    A(f"v_xor_b32 v11, 64, v{V_OX}")
    A(f"v_add_u32 v{V_OX+1}, 1024, v11")
    A(f"v_add_u32 v{V_OX+2}, 2048, v{V_OX}")
    A(f"v_add_u32 v{V_OX+3}, 3072, v11")
    A("v_lshl_add_u32 v10, v3, 10, v9")
    slin(ST, 0, (S_CG, 1 << 16), (S_CH, 1 << 15))
    A(f"v_add_u32 v{V_OW}, s{ST}, v10")
    A(f"v_xor_b32 v11, 64, v{V_OW}")
    A(f"v_add_u32 v{V_OW+1}, 7168, v11")
    A(f"v_add_u32 v{V_OW+2}, {2*7168}, v{V_OW}")
    A(f"v_add_u32 v{V_OW+3}, {3*7168}, v11")
    slin(ST, 0, (S_CG, 128), (S_CH, 64))
    A(f"v_lshl_add_u32 v14, v{V_N}, 1, s{ST}")
    A(f"s_cmp_eq_u32 s{S_RH}, 0")
    A("s_waitcnt lgkmcnt(0)")
    A(f"s_cselect_b32 s{SW}, s{K_BRE}, s{K_BIM}")
    A(f"s_cselect_b32 s{SW+1}, s{K_BRE+1}, s{K_BIM+1}")
    A(f"s_cselect_b32 s{SW2}, s{K_CRE}, s{K_CIM}")
    A(f"s_cselect_b32 s{SW2+1}, s{K_CRE+1}, s{K_CIM+1}")
    A(f"s_mov_b32 s{SW+2}, 0x80000")
    A(f"s_mov_b32 s{SW+3}, 0x20000")
    stamp(1)
    A(f"s_load_dword s{S_TAG}, s[{K_WS}:{K_WS+1}], {WS_TAGA}")
    srd(SX, K_AX, 0x200000)
    tok = {}
    def g1_pieces(i):
        slot = i & 3
        return (dma_pieces(V_OW, SW, ST + 8, slot * SLOT, pre=lambda: rot_soff(ST + 8, i, shift=7, rot=S_ROT1)) +
                dma_pieces(V_OX, SX, ST + 8, slot * SLOT + 16384, post=lambda: tok.__setitem__(i, A.vm), flags=XF))
    CLDS = {1: 4 * SLOT, 2: 4 * SLOT + 16384, 0: 0, 3: 16384, 4: SLOT, 5: SLOT + 16384, 6: 2 * SLOT, 7: 2 * SLOT + 16384}
    CORD = [1, 2, 0, 3, 4, 5, 6, 7]
    def c_pieces(st):
        return dma_pieces(V_OW, SW2, ST + 9, CLDS[st], pre=lambda: A(f"s_lshl_b32 s{ST+9}, s{KAP[st]}, 7"))
    A(f"global_load_ushort v{T0}, v14, s[{K_LRE}:{K_LRE+1}]")
    A(f"global_load_ushort v{T0+1}, v14, s[{K_LIM}:{K_LIM+1}]")
    A(f"global_load_ushort v{T0+2}, v14, s[{K_LDT}:{K_LDT+1}]")
    A(f"global_load_ushort v{C_DSK}, v14, s[{K_DSK}:{K_DSK+1}]")
    tok_small = A.vm
    run(g1_pieces(0))
    A(f"s_mov_b32 s{SW2+2}, 0x80000")
    A(f"s_mov_b32 s{SW2+3}, 0x20000")
    late = g1_pieces(1)
    if EARLY:
        run(late[:NPRE]); late = late[NPRE:] + g1_pieces(2)
    else:
        run(late); late = []
    if OPT.get("wtouch", 0):
        slin(ST, 0, (S_CG, 1 << 16), (S_CHUNK, 4096), (S_CH, 2048))
        A(f"v_and_b32 v9, 15, v{V_LANE}")
        A("v_lshlrev_b32 v9, 7, v9")
        A(f"buffer_load_dword v254, v9, s[{SW2}:{SW2+3}], s{ST} offen")
    stamp(2)
    cut("A")
    common_setup("A")
    slin(P_SAB, WS_SA, (S_CG, 1 << 14), (S_CH, 512))
    slin(P_SAO, 0, (S_CHUNK, 1024), (P_SAB, 1))
    slin(P_XS0, 0, (S_CHUNK, 1 << 17), (S_RH, 1 << 16), (S_CG, 128), (S_CH, 64), (S_MF, 32768))
    A(f"s_xor_b32 s{P_XS1}, s{P_XS0}, 32768")
    slin(P_ACTW, WS_H, (S_CHUNK, 1 << 18), (S_CG, 1 << 15), (S_WAVE, 4096))
    slin(P_ACTR, WS_H, (S_CHUNK, 1 << 18), (S_WAVE, 4096), (S_MF, 16384))
    A(f"s_xor_b32 s{P_ACTR2}, s{P_ACTR}, 16384")
    A(f"v_lshlrev_b32 v9, 14, v{V_G}")
    A(f"v_lshl_add_u32 v{V_HSO}, v{V_N}, 4, v9")
    for r in range(4): A(f"v_mov_b32 v{T0+24+r}, -1")
    clears = [f"buffer_store_dwordx4 {vr(T0+24,4)}, v{V_HSO}, s[{SWS}:{SWS+3}], s{P_ACTW} offen offset:{k*512} sc1" for k in range(8)]
    A(f"v_mov_b32 v{V_TAG}, s{S_TAG}")
    A(f"v_mov_b32 v11, s{S_TAG}")
    A(f"s_lshl_b32 s{ST}, s{S_RH}, 13")
    lds_b128_addrs(V_AX, ST, 16384, 2)
    A(f"s_lshl_b32 s{ST}, s{S_CH}, 12")
    lds_b128_addrs(V_AW, ST, 0, 3)
    A(f"v_lshlrev_b32 v{V_XSO}, 10, v{V_N}")
    A(f"v_lshl_add_u32 v{V_XSO}, v{V_G}, 5, v{V_XSO}")
    SCR = 3 * SLOT
    slin(ST, SCR, (S_CH, 256))
    A(f"v_lshl_add_u32 v4, v{V_N}, 3, s{ST}")
    A(f"s_lshl_b32 s{ST}, s{S_RH}, 10")
    A(f"v_lshl_add_u32 v3, v{V_G}, 9, v4")
    A(f"v_add_u32 v3, s{ST}, v3")
    A(f"v_lshlrev_b32 v13, 4, v{V_N}")
    A(f"v_mov_b32 v14, {OOB:#x}")
    A(f"s_or_b64 s[{ST+2}:{ST+3}], s[{S_MG}:{S_MG+1}], s[{S_MRH}:{S_MRH+1}]")
    A(f"v_cndmask_b32_e64 v{V_PUB}, v13, v14, s[{ST+2}:{ST+3}]")
    if OPT.get("prew", 1):
        for r in range(4): A(f"v_subrev_u32 v{T0+20+r}, 1, v{V_TAG}")
        A(f"buffer_store_dwordx4 {vr(T0+20,4)}, v{V_PUB}, s[{SWS}:{SWS+3}], s{P_SAO} offen sc1")
    A(f"s_lshl_b32 s{ST+4}, s{S_RH}, 3")
    A(f"s_sub_u32 s{ST+4}, s{S_CHUNK}, s{ST+4}")
    A(f"s_sub_u32 s{ST+4}, s{ST+4}, 1")
    A(f"v_lshlrev_b32 v9, 2, v{V_G}")
    A(f"v_sub_u32 v9, s{ST+4}, v9")
    for i in range(4):
        A(f"v_subrev_u32 v{V_GO+i}, {i}, v9")
        A(f"v_cmp_gt_i32 vcc, 0, v{V_GO+i}")
        A(f"v_lshl_add_u32 v{V_GO+i}, v{V_GO+i}, 10, v13")
        A(f"v_cndmask_b32_e64 v{V_GE+i}, v{V_TAG}, 0, vcc")
        A(f"v_cndmask_b32 v{V_GO+i}, v{V_GO+i}, v14, vcc")
    A.wait_vm(tok_small)
    lre, lim, ldt = T0, T0 + 1, T0 + 2
    A(f"v_and_b32 v9, 1, v{V_N}")
    A("v_lshlrev_b32 v9, 4, v9")
    A(f"v_lshlrev_b32 v{C_DSK}, v9, v{C_DSK}")
    A(f"v_lshrrev_b32 v9, 1, v{V_N}")
    A(f"v_lshlrev_b32 v13, 3, v{V_G}")
    A("v_sub_u32 v9, v9, v13")
    for q in range(8):
        A(f"v_cmp_eq_u32 vcc, {q}, v9")
        A(f"v_cndmask_b32_e64 v{DG+q}, 0, v{C_DSK}, vcc")
    for r in (lre, lim, ldt): A(f"v_lshlrev_b32 v{r}, 16, v{r}")
    A(f"v_mul_f32 v{ldt}, s{S_L2E}, v{ldt}")
    A(f"v_exp_f32 v{ldt}, v{ldt}")
    A(f"v_cvt_pk_bf16_f32 v{ldt}, v{ldt}, v{ldt}")
    A(f"v_lshlrev_b32 v{ldt}, 16, v{ldt}")
    A(f"v_mul_f32 v{T0+4}, v{ldt}, v{lre}")
    A(f"v_mul_f32 v{T0+5}, v{ldt}, v{lim}")
    A(f"v_mul_f32 v{T0+4}, s{S_L2E}, v{T0+4}")
    A(f"v_exp_f32 v{T0+4}, v{T0+4}")
    A(f"v_mul_f32 v{T0+5}, {INV2PI:#x}, v{T0+5}")
    A(f"v_rndne_f32 v{T0+6}, v{T0+5}")
    A(f"v_sub_f32 v{T0+5}, v{T0+5}, v{T0+6}")
    A(f"v_cos_f32 v{T0+6}, v{T0+5}")
    A(f"v_sin_f32 v{T0+7}, v{T0+5}")
    A(f"v_mul_f32 v{C_LAM}, v{T0+4}, v{T0+6}")
    A(f"v_mul_f32 v{C_LAM+1}, v{T0+4}, v{T0+7}")
    A(f"v_add_f32 v{T0+4}, -1.0, v{C_LAM}")
    A(f"v_mul_f32 v{T0+5}, v{lre}, v{lre}")
    A(f"v_fmac_f32 v{T0+5}, v{lim}, v{lim}")
    A(f"v_rcp_f32 v{T0+5}, v{T0+5}")
    A(f"v_mul_f32 v{T0+6}, v{T0+4}, v{lre}")
    A(f"v_fmac_f32 v{T0+6}, v{C_LAM+1}, v{lim}")
    A(f"v_mul_f32 v{T0+7}, v{C_LAM+1}, v{lre}")
    A(f"v_fma_f32 v{T0+7}, -v{T0+4}, v{lim}, v{T0+7}")
    A(f"v_add_f32 v{T0+5}, v{T0+5}, v{T0+5}")
    A(f"v_mul_f32 v{C_C2}, v{T0+6}, v{T0+5}")
    A(f"v_mul_f32 v{C_C2+1}, v{T0+7}, v{T0+5}")
    pa, pb, tt = T0 + 8, T0 + 10, T0 + 12
    cmul(pa, C_LAM, C_LAM, tt)
    cmul(pb, pa, pa, tt)
    cmul(pa, pb, pb, tt)
    cmul(C_M1, pa, pa, tt)
    cmul(C_M2, C_M1, C_M1, tt)
    cmul(pa, C_M2, C_M2, tt)
    cmul(C_L, pa, pa, tt)
    def sel_pair(dst, src, mask):
        A(f"v_cndmask_b32_e64 v{dst}, 1.0, v{src}, s[{mask}:{mask+1}]")
        A(f"v_cndmask_b32_e64 v{dst+1}, 0, v{src+1}, s[{mask}:{mask+1}]")
    sel_pair(T0 + 14, C_M2, S_MG)
    sel_pair(T0 + 16, pa, S_MRH)
    cmul(C_MQ, T0 + 14, T0 + 16, tt)
    cmul(pa, C_L, C_L, tt)
    cmul(pb, pa, pa, tt)
    cmul(pa, pb, pb, tt)
    sel_pair(T0 + 14, pb, S_MG)
    sel_pair(T0 + 16, pa, S_MRH)
    cmul(C_LQ, T0 + 14, T0 + 16, tt)
    stamp(3)
    run(late)
    def rd(n):
        i, ks = n >> 2, n & 3
        slot, buf = i & 3, n & 1
        s2_, off = slot >> 1, (slot & 1) * SLOT
        x = [f"ds_read_b128 {vr(V_XF+buf*8+m*4,4)}, v{V_AX+4*s2_+ks} offset:{off+m*4096}" for m in range(2)]
        w = [f"ds_read_b128 {vr(V_WF+buf*8+ri*4,4)}, v{V_AW+4*s2_+ks} offset:{off+ri*8192}" for ri in range(2)]
        return [x[0], w[0], w[1], x[1]]
    def mm(n):
        buf = n & 1
        r = []
        for m, ri in ((0, 0), (0, 1), (1, 1), (1, 0)):
            d = vr((URE, UIM)[ri] + 16 * m, 16)
            r.append(mf(d, vr(V_XF + buf * 8 + m * 4, 4), vr(V_WF + buf * 8 + ri * 4, 4), d if n else "0"))
        return r
    fill = []
    def xs_load(m, s):
        return lambda: A(f"buffer_load_dwordx4 {vr(XS+8*m+4*s,4)}, v{V_XSO}, s[{SX}:{SX+3}], s{P_XS0+m} offen offset:{16*s}")
    def on_step(n):
        i, ks = n >> 2, n & 3
        if ks == 0 and OPT.get("g1st") and i: stamp(16 + i)
        if ks == 0:
            for st in SCHED[0].get(i, []): fill.extend(g1_pieces(st))
            if i == XST:
                fill.extend(c_pieces(1) + c_pieces(2))
            elif i == XST + 1:
                fill.extend([xs_load(m, s) for m in range(2) for s in range(2)])
                if OPT.get("ptouch", 0):
                    fill.extend([f"buffer_load_dword v254, v{V_GO+k}, s[{SWS}:{SWS+3}], s{P_SAB} offen sc1" for k in range(4)])
                    fill.append(lambda: rdy_load(254, 254))
    A.wait_vm(tok[0])
    A("s_barrier")
    stamp(4)
    gemm_loop(32, rd, mm, lambda n: tok[n >> 2] if (n & 3) == 0 else None, (2, 2, 0, 0), lambda n: g1_gaps(n, ()), fill, on_step, end_barrier=True)
    assert not fill
    stamp(5)
    P = [T0, T0 + 4]
    def lam_bc(hi): return f"op_sel:[{hi},0,0] op_sel_hi:[{hi},1,1]"
    NEG = "neg_lo:[1,0,0] neg_hi:[1,0,0]"
    cur_re, cur_im = URE, UIM
    for s in range(1, 16):
        d = P[s & 1]
        A(f"v_pk_fma_f32 {vr(d,2)}, {vr(C_LAM,2)}, {vr(cur_im,2)}, {vr(URE+2*s,2)} {lam_bc(1)} {NEG}")
        A(f"v_pk_fma_f32 {vr(d+2,2)}, {vr(C_LAM,2)}, {vr(cur_re,2)}, {vr(UIM+2*s,2)} {lam_bc(1)}")
        A(f"v_pk_fma_f32 {vr(d,2)}, {vr(C_LAM,2)}, {vr(cur_re,2)}, {vr(d,2)} {lam_bc(0)}")
        A(f"v_pk_fma_f32 {vr(d+2,2)}, {vr(C_LAM,2)}, {vr(cur_im,2)}, {vr(d+2,2)} {lam_bc(0)}")
        cur_re, cur_im = d, d + 2
    A0, BQ = T0 + 8, T0 + 10
    A(f"v_fma_f32 v{BQ}, v{C_M1}, v{cur_re}, v{cur_re+1}")
    A(f"v_fma_f32 v{BQ+1}, v{C_M1}, v{cur_im}, v{cur_im+1}")
    A(f"v_fma_f32 v{BQ}, -v{C_M1+1}, v{cur_im}, v{BQ}")
    A(f"v_fma_f32 v{BQ+1}, v{C_M1+1}, v{cur_re}, v{BQ+1}")
    A(f"ds_write_b64 v3, {vr(BQ,2)}")
    A(f"v_mov_b32 v{A0}, v{cur_re}")
    A(f"v_mov_b32 v{A0+1}, v{cur_im}")
    P2, P3, SS, tt = T0 + 20, T0 + 22, T0 + 24, T0 + 28
    A(f"v_mov_b32 v{SS+1}, s{S_TAG}")
    A(f"v_mov_b32 v{SS+3}, s{S_TAG}")
    def c2_bc(hi, n=3):
        return f"op_sel:[{hi},0,0] op_sel_hi:[{hi},1,1]" if n == 3 else f"op_sel:[{hi},0] op_sel_hi:[{hi},1]"
    cm = []
    for s in range(16):
        re, im, t = URE + 2 * s, UIM + 2 * s, T0 + 2 + 2 * (s & 1)
        cm += [f"v_pk_mul_f32 {vr(t,2)}, {vr(C_C2,2)}, {vr(re,2)} {c2_bc(1,2)} neg_lo:[1,0] neg_hi:[1,0]",
               f"v_pk_mul_f32 {vr(re,2)}, {vr(C_C2,2)}, {vr(re,2)} {c2_bc(0,2)}",
               f"v_pk_fma_f32 {vr(re,2)}, {vr(C_C2,2)}, {vr(im,2)}, {vr(re,2)} {c2_bc(1)} {NEG}",
               f"v_pk_fma_f32 {vr(im,2)}, {vr(C_C2,2)}, {vr(im,2)}, {vr(t,2)} {c2_bc(0)} {NEG}"]
    emit(cm[:8])
    if HAND: A.wait_both(tok["clr"], A.lg)
    else: A("s_waitcnt lgkmcnt(0)")
    A("s_barrier")
    B0 = T0 + 12
    for q in range(4):
        A(f"ds_read_b64 {vr(B0+2*q,2)}, v4 offset:{q*512}")
    emit(cm[8:24])
    A("s_waitcnt lgkmcnt(0)")
    cfma(P2, C_M2, B0, B0 + 2, tt)
    cfma(P3, C_M2, P2, B0 + 4, tt)
    cfma(tt, C_M2, P3, B0 + 6, tt)
    A(f"v_mov_b32 v{SS}, v{tt}")
    A(f"v_mov_b32 v{SS+2}, v{tt+1}")
    A(f"buffer_store_dwordx4 {vr(SS,4)}, v{V_PUB}, s[{SWS}:{SWS+3}], s{P_SAO} offen sc1")
    rdy_store()
    stamp(6)
    emit(cm[24:])
    LOC = T0 + 0
    for e in range(2):
        A(f"v_cndmask_b32_e64 v{T0+2+e}, 0, v{B0+e}, s[{S_MG}:{S_MG+1}]")
        A(f"v_cndmask_b32_e64 v{T0+4+e}, v{P2+e}, v{P3+e}, s[{S_MG}:{S_MG+1}]")
        A(f"v_cndmask_b32_e64 v{LOC+e}, v{T0+2+e}, v{T0+4+e}, s[{S_MRH}:{S_MRH+1}]")
    E0, F0, E1, F1 = T0 + 12, T0 + 14, T0 + 16, T0 + 18
    cfma(P2, C_M1, LOC, A0, tt)
    cmul(F1, C_C2, P2, tt)
    cmul(F0, C_C2, LOC, tt)
    cmul(E0, C_C2, C_MQ, tt)
    cmul(E1, E0, C_M1, tt)
    V_AH = V_AX
    A(f"v_bfe_u32 v9, v{V_LANE}, 4, 1")
    A(f"v_bfe_u32 v13, v{V_LANE}, 1, 1")
    A("v_lshl_add_u32 v9, v9, 1, v13")
    A(f"v_bfe_u32 v13, v{V_LANE}, 2, 2")
    A(f"v_lshl_add_u32 v13, v{V_G}, 3, v13")
    A("v_lshlrev_b32 v14, 2, v9")
    A("v_xor_b32 v13, v13, v14")
    A("v_lshlrev_b32 v13, 4, v13")
    A("v_lshl_add_u32 v13, v9, 9, v13")
    A(f"v_and_b32 v14, 1, v{V_LANE}")
    A("v_lshl_add_u32 v13, v14, 3, v13")
    A(f"s_lshl_b32 s{ST+2}, s{S_RH}, 13")
    A(f"v_add_u32 v{V_AH}, s{ST+2}, v13")
    A(f"v_xor_b32 v{V_AH+1}, 64, v{V_AH}")
    V_AO = T0 + 4
    A("v_lshl_add_u32 v13, v9, 9, v13")
    slin(ST + 2, 3 * SLOT, (S_RH, 16384), (S_MF, 512))
    A(f"v_add_u32 v{V_AO}, s{ST+2}, v13")
    A(f"v_xor_b32 v{V_AO+1}, 64, v{V_AO}")
    A(f"v_xor_b32 v{V_AO+2}, 0x200, v{V_AO}")
    A(f"v_xor_b32 v{V_AO+3}, 0x240, v{V_AO}")
    for st in (1, 2):
        A(f"v_add_u32 v{V_AH+2*st}, {st*0x10000:#x}, v{V_AH}")
        A(f"v_add_u32 v{V_AH+2*st+1}, {st*0x10000:#x}, v{V_AH+1}")
    CPRE = 2 + OPT.get('cpre', 6)
    for st in CORD[2:CPRE]: run(c_pieces(st))
    stamp(7)
    GD = 48
    def loads():
        for i in range(4):
            A(f"buffer_load_dwordx4 {vr(GD+4*i,4)}, v{V_GO+i}, s[{SWS}:{SWS+3}], s{P_SAB} offen sc1")
        rdy_load(14)
    def check():
        rdy_check(13, 14)
        for i in range(4):
            A(f"v_xor_b32 v{GD+4*i+1}, v{GD+4*i+1}, v{V_GE+i}")
            A(f"v_xor_b32 v{GD+4*i+3}, v{GD+4*i+3}, v{V_GE+i}")
            A(f"v_or3_b32 v13, v13, v{GD+4*i+1}, v{GD+4*i+3}")
        A(f"v_cmp_ne_u32 s[{S_FAIL}:{S_FAIL+1}], 0, v13")
    poll(loads, check)
    stamp(8)
    for i in range(4):
        A(f"v_mov_b32 v{GD+4*i+1}, v{GD+4*i+2}")
    h1, h2 = T0 + 20, T0 + 22
    cfma(h1, C_L, GD + 12, GD + 8, tt)
    cfma(h2, C_L, h1, GD + 4, tt)
    cfma(h1, C_L, h2, GD + 0, tt)
    cmul(h2, C_LQ, h1, tt)
    A(f"ds_write_b64 v3, {vr(h2,2)} offset:2048")
    for m in range(2):
        d = vr(ACC2 + 16 * m, 16)
        for s in range(2):
            A(mf(d, vr(XS + 8 * m + 4 * s, 4), vr(DG + 4 * s, 4), d if s else "0"))
    xcc_decide(14)
    for o in range(1, 4):
        A(f"v_xor_b32 v{V_GO+o}, {o*64}, v{V_HSO}")
    A("s_waitcnt lgkmcnt(0)")
    A("s_barrier")
    CQ = GD
    for q in range(4):
        A(f"ds_read_b64 {vr(CQ+2*q,2)}, v4 offset:{2048+q*512}")
    tq = A.lg
    def c_reads(st):
        s2_, off = CLDS[st] >> 16, CLDS[st] & 0xffff
        r = [None] * 8
        for ks in range(4):
            for ri in range(2):
                kap = (ks >> 1) * 4 + ri * 2 + (ks & 1)
                r[kap] = f"ds_read_b128 {ar((st*8+kap)*4,4)}, v{V_AW+4*s2_+ks} offset:{off+ri*8192}"
        return r
    A.wait_lg(tq)
    A(f"v_pk_add_f32 {vr(CQ,2)}, {vr(CQ,2)}, {vr(CQ+2,2)}")
    A(f"v_pk_add_f32 {vr(CQ+4,2)}, {vr(CQ+4,2)}, {vr(CQ+6,2)}")
    A(f"v_pk_add_f32 {vr(CQ,2)}, {vr(CQ,2)}, {vr(CQ+4,2)}")
    HR, HI = T0 + 20, T0 + 22
    A(f"v_fma_f32 v{HR}, v{E0}, v{CQ}, v{F0}")
    A(f"v_fma_f32 v{HR+1}, v{E1}, v{CQ}, v{F1}")
    A(f"v_fma_f32 v{HI}, -v{E0}, v{CQ+1}, -v{F0+1}")
    A(f"v_fma_f32 v{HI+1}, -v{E1}, v{CQ+1}, -v{F1+1}")
    A(f"v_fma_f32 v{HR}, -v{E0+1}, v{CQ+1}, v{HR}")
    A(f"v_fma_f32 v{HR+1}, -v{E1+1}, v{CQ+1}, v{HR+1}")
    A(f"v_fma_f32 v{HI}, -v{E0+1}, v{CQ}, v{HI}")
    A(f"v_fma_f32 v{HI+1}, -v{E1+1}, v{CQ}, v{HI+1}")
    pr, pi_ = HR, HI
    hst = []
    for hf in range(2):
        for s in range(8 * hf, 8 * hf + 8):
            re, im = URE + 2 * s, UIM + 2 * s
            emit([f"v_pk_fma_f32 {vr(re,2)}, {vr(C_LAM,2)}, {vr(pi_,2)}, {vr(re,2)} {lam_bc(1)}",
                  f"v_pk_fma_f32 {vr(im,2)}, {vr(C_LAM,2)}, {vr(pr,2)}, {vr(im,2)} {lam_bc(1)} {NEG}",
                  f"v_pk_fma_f32 {vr(re,2)}, {vr(C_LAM,2)}, {vr(pr,2)}, {vr(re,2)} {lam_bc(0)}",
                  f"v_pk_fma_f32 {vr(im,2)}, {vr(C_LAM,2)}, {vr(pi_,2)}, {vr(im,2)} {lam_bc(0)}"])
            pr, pi_ = re, im
        for ri in range(2):
            U = (URE, UIM)[ri]
            for z in range(2):
                o = 2 * z + hf
                d = HP + (ri * 4 + o) * 4
                for u in range(4):
                    s0 = 8 * hf + 2 * u
                    A(f"v_cvt_pk_bf16_f32 v{d+u}, v{U+2*s0+z}, v{U+2*s0+2+z}")
                A(f"buffer_store_dwordx4 {vr(d,4)}, v{V_GO+o if o else V_HSO}, s[{SWS}:{SWS+3}], s{P_ACTW} offen offset:{(ri*4+o)*512} sc1")
                hst.append((ri * 4 + o, A.vm))
    tok_h = A.vm
    stamp(9)
    HS = [3, 4, 0, 1, 3, 4, 0, 1]
    def h_pieces(G):
        r = []
        for sub in range(2):
            pos, ph = SEQ[2 * G + sub]
            r += dma_pieces(V_LIN, SWS, ST + 8, HS[G] * SLOT + sub * 16384,
                            pre=lambda pos=pos, ph=ph: (A(f"s_lshl_b32 s{ST+8}, s{KAP[pos]}, 15"), A(f"s_add_u32 s{ST+8}, s{ST+8}, s{P_ACTR+ph}")),
                            post=(lambda: tok.__setitem__(("h", G), A.vm)) if sub else None, flags=PLF, same_v=True)
        return r
    assert CPRE == 8
    call = sum([c_reads(st) for st in [0, 1, 2, 3, 4, 5, 6, 7]], [])
    HF = 48
    def rd2(n):
        G, q = n >> 2, n & 3
        slot, buf = HS[G], n & 1
        r = []
        for h in range(4):
            kap = 4 * (q & 1) + h
            off = (slot & 1) * SLOT + (q >> 1) * 16384 + (kap >> 2) * 4096 + ((kap >> 1) & 1) * 2048 + (kap & 1) * 256
            for j in range(2):
                if G == 0:
                    o2 = (kap >> 2) * 8192 + ((kap >> 1) & 1) * 4096 + (kap & 1) * 256
                    r.append(f"ds_read_b64_tr_b16 {vr(HF+buf*16+h*4+2*j,2)}, v{V_AO+2*(q>>1)+j} offset:{o2}")
                else:
                    r.append(f"ds_read_b64_tr_b16 {vr(HF+buf*16+h*4+2*j,2)}, v{V_AH+2*(slot>>1)+j} offset:{off}")
        return r
    def mm2(n):
        buf = n & 1
        pos, ph = SEQ[n >> 1]
        d = vr(ACC2 + 16 * ph, 16)
        return [mf(d, vr(HF + buf * 16 + h * 4, 4), ar((8 * pos + 4 * (n & 1) + h) * 4, 4), d) for h in range(4)]
    A("s_barrier")
    slin(ST + 2, 3 * SLOT, (S_WAVE, 8192))
    A(f"v_add_u32 v{V_GO}, s{ST+2}, v{V_LIN}")
    for o in range(1, 4): A(f"v_xor_b32 v{V_GO+o}, {o*64}, v{V_GO}")
    for p in range(8):
        A(f"ds_write_b128 v{V_GO+(p&3)}, {vr(HP+4*p,4)} offset:{p*1024}")
    emit(call[:8])
    A("s_waitcnt lgkmcnt(0)")
    A("s_barrier")
    cf = call[8:]
    gemm_loop(4, rd2, mm2, lambda n: None, (3, 3, 2, 0), (2, 3), cf)
    emit(cf[:24]); cf = cf[24:]
    A.wait_vm(tok_h)
    flag_store()
    stamp(10)
    emit(cf)
    A("s_waitcnt lgkmcnt(0)")
    A("s_barrier")
    flag_poll()
    stamp(11)
    run(h_pieces(1) + h_pieces(2))
    stamp(12)
    fill = []
    def on_step2(n):
        G, q = n >> 2, n & 3
        if q == 0:
            if G == 1: fill.extend(h_pieces(3) + h_pieces(4))
            elif G + 3 < 8: fill.extend(h_pieces(G + 3))
            elif G == 5: fill.extend(out_stores(ACC2, 0))
    A.wait_vm(tok[("h", 1)])
    A("s_barrier")
    stamp(13)
    gemm_loop(32, rd2, mm2, lambda n: tok[("h", n >> 2)] if (n & 3) == 0 else None, (3, 3, 2, 0),
              lambda n: (0, 1, 2, 3) if n < 8 else (2, 3), fill, on_step2, start=4)
    assert not fill
    stamp(14)
    run(out_stores(ACC2, 1))
    tag_update("A")
    stamp(15)
    finish()

def role_B():
    V_OO = 24
    V_AX, V_AT = 28, 36
    V_SW, V_SR, V_P2, V_G2B, V_PB0, V_PB1, V_G1, V_GZ, V_G2, V_P2Z = 39, 40, 41, 42, 43, 44, 45, 46, 47, 253
    S_WPH, V_WPO = P0 + 12, 252
    IDF = 216
    V_WF = 48
    KACC, VACC, PK, KV, WPH = 64, 96, 128, 192, 224
    T0 = 232
    P_P1O, P_P1G, P_P2O, P_P2G, P_MSK = P0 + 1, P0 + 2, P0 + 8, P0 + 9, P0 + 10
    S_PART = 57
    WPS = OPT.get('wps', 1)
    QE = OPT.get('qe', 0)
    code_prefetch()
    A("v_lshrrev_b32 v9, 1, v3")
    A("v_xor_b32 v9, v9, v4")
    A("v_lshlrev_b32 v9, 4, v9")
    A("v_lshl_add_u32 v10, v3, 10, v9")
    slin(ST, 0, (S_CHUNK, 1 << 17), (S_WAVE, 1 << 15))
    A(f"v_add_u32 v{V_OX}, s{ST}, v10")
    A(f"v_xor_b32 v11, 64, v{V_OX}")
    A(f"v_add_u32 v{V_OX+1}, 7168, v11")
    A(f"v_add_u32 v{V_OX+2}, {2*7168}, v{V_OX}")
    A(f"v_add_u32 v{V_OX+3}, {3*7168}, v11")
    A("v_bfe_u32 v9, v3, 1, 1")
    A("v_lshlrev_b32 v9, 2, v9")
    A("v_xor_b32 v9, v9, v4")
    A("v_lshlrev_b32 v9, 4, v9")
    A(f"s_lshl_b32 s{ST}, s{S_CG}, 7")
    A(f"v_add_u32 v9, s{ST}, v9")
    A(f"s_lshl_b32 s{ST+1}, s{S_CH}, 5")
    A(f"v_add_u32 v10, s{ST+1}, v3")
    A("v_mul_u32_u24 v11, 3072, v10")
    A(f"v_add_u32 v{V_OW}, v11, v9")
    for p in range(1, 4): A(f"v_add_u32 v{V_OW+p}, {p*(8*3072-1024)}, v{V_OW}")
    A(f"v_lshl_add_u32 v{V_OO}, v10, 10, v9")
    slin(S_PART, 1024, (S_RH, 1024))
    A("s_waitcnt lgkmcnt(0)")
    srd(SW, K_WQKV, 0x180000)
    stamp(1)
    A(f"s_load_dword s{S_TAG}, s[{K_WS}:{K_WS+1}], {WS_TAGB}")
    srd(SX, K_BX, 0x200000)
    tok = {}
    def g1_pieces(i):
        slot = i & 3
        return (dma_pieces(V_OW, SW, ST + 8, slot * SLOT, pre=lambda: rot_soff(ST + 8, i, mul=196608, plus=S_PART, rot=S_ROT1)) +
                dma_pieces(V_OX, SX, ST + 10, slot * SLOT + 16384, pre=lambda: rot_soff(ST + 10, i, shift=7, rot=S_ROT1),
                           post=lambda: tok.__setitem__(i, A.vm), flags=XF))
    QSLOT = [4, 0]; OSLOT = [1, 2]
    def q_pieces(st):
        return dma_pieces(V_OW, SW, ST + 9, QSLOT[st >> 1] * SLOT + (st & 1) * 16384,
                          pre=lambda: rot_soff(ST + 9, 2 * st, mul=196608, extra_sreg=S_RH, rot=S_ROT1), post=lambda: tok.__setitem__(("q", st), A.vm))
    OPAIR = [(1, 2), (0, 3), (4, 5), (6, 7)]
    OLDS = {}
    for st_, pr_ in enumerate(OPAIR):
        for e_ in range(2): OLDS[pr_[e_]] = OSLOT[st_ >> 1] * SLOT + (st_ & 1) * 16384 + e_ * 8192
    def o_pieces(st):
        def pre():
            A(f"s_cmp_eq_u32 s{S_RH}, 0")
            A(f"s_cselect_b32 s{ST+9}, s{KAP[OPAIR[st][0]]}, s{KAP[OPAIR[st][1]]}")
            A(f"s_lshl_b32 s{ST+9}, s{ST+9}, 16")
        return dma_pieces(V_OO, SW2, ST + 9, OSLOT[st >> 1] * SLOT + (st & 1) * 16384, pre=pre)
    run(g1_pieces(0))
    wpl = []
    for hh in range(2):
        for u in range(4):
            d0 = (0, 2, 8, 10)[u]
            wpl.append(f"global_load_ushort v{WPH+4*hh+u}, v{V_WPO}, s[{S_WPH}:{S_WPH+1}] offset:{hh*512+d0*32}")
            wpl.append(f"global_load_ushort v{T0+8+4*hh+u}, v{V_WPO}, s[{S_WPH}:{S_WPH+1}] offset:{hh*512+(d0+1)*32}")
    srd(SW2, K_WO, 0x80000)
    late = g1_pieces(1)
    if EARLY:
        run(late[:NPRE]); late = late[NPRE:] + g1_pieces(2)
    else:
        run(late); late = []
    if OPT.get("wtouch", 0):
        slin(ST, 0, (S_CHUNK, 32), (S_WAVE, 8))
        A(f"v_add_u32 v9, s{ST}, v4")
        A("v_mul_u32_u24 v10, 3072, v9")
        A("v_lshlrev_b32 v9, 10, v9")
        A(f"s_lshl_b32 s{ST}, s{S_CG}, 7")
        A(f"buffer_load_dword v254, v10, s[{SW}:{SW+3}], s{ST} offen")
        A(f"buffer_load_dword v254, v9, s[{SW2}:{SW2+3}], s{ST} offen")
    stamp(2)
    cut("B")
    A(f"s_mov_b64 s[{S_WPH}:{S_WPH+1}], s[{K_WPHI}:{K_WPHI+1}]")
    common_setup("B")
    for p in range(1, 4): A(f"v_add_u32 v{V_OO+p}, {p*7168}, v{V_OO}")
    A(f"v_lshrrev_b32 v9, 3, v{V_N}")
    A(f"v_and_b32 v13, 3, v{V_N}")
    A("v_lshl_add_u32 v9, v9, 2, v13")
    A("v_lshlrev_b32 v9, 1, v9")
    A(f"v_lshl_add_u32 v9, v{V_G}, 7, v9")
    slin(ST, 0, (S_CG, 2048), (S_CH, 1024))
    A(f"v_add_u32 v{V_WPO}, s{ST}, v9")
    slin(ST, 0, (S_CG, 512), (S_CH, 256), (S_CHUNK, 2), (S_RH, 1))
    slin(P_P1O, WS_P1, (ST, 640))
    slin(ST, 0, (S_CG, 16), (S_CHUNK, 1))
    slin(P_P2O, WS_P2, (ST, 640))
    slin(P_P1G, WS_P1, (ST, 32 * 640))
    for k in range(1, 4): A(f"s_add_u32 s{P_P1G+k}, s{P_P1G}, {8*k*640}")
    slin(ST, 0, (S_CG, 16), (S_CH, 8))
    slin(P_P2G, WS_P2, (ST, 640))
    A(f"s_mov_b32 s{P_MSK}, 0xffffff00")
    slin(P_ACTW, WS_O, (S_CHUNK, 1 << 17), (S_CG, 1 << 14), (S_RH, 1 << 12), (S_CH, 1 << 11))
    A(f"s_add_u32 s{P_ACTW2}, s{P_ACTW}, 8192")
    slin(P_ACTR, WS_O, (S_CHUNK, 1 << 17), (S_MF, 8192), (S_WAVE, 2048))
    A(f"s_lshl_b32 s{S_M0W2}, s{S_WAVE}, 11")
    A(f"s_xor_b32 s{P_ACTR2}, s{P_ACTR}, 8192")
    for r in range(4): A(f"v_mov_b32 v{T0+16+r}, -1")
    clears = [f"buffer_store_dwordx4 {vr(T0+16,4)}, v{V_LIN}, s[{SWS}:{SWS+3}], s{P_ACTW+(k>>1)} offen offset:{(k&1)*1024} sc1" for k in range(4)]
    A(f"s_and_b32 s{ST}, s{S_TAG}, 0xff")
    A(f"v_mov_b32 v{V_TAG}, s{ST}")
    A(f"v_mov_b32 v11, s{S_TAG}")
    A(f"s_lshl_b32 s{ST}, s{S_RH}, 13")
    lds_b128_addrs(V_AX, ST, 16384, 2)
    A(f"v_bfe_u32 v9, v{V_LANE}, 4, 1")
    A(f"v_bfe_u32 v13, v{V_LANE}, 1, 1")
    A("v_lshl_add_u32 v3, v9, 1, v13")
    A(f"v_bfe_u32 v13, v{V_LANE}, 3, 1")
    A(f"v_xor_b32 v13, s{S_CH}, v13")
    A("v_lshl_add_u32 v9, v13, 2, v3")
    A("v_lshlrev_b32 v9, 4, v9")
    A(f"v_and_b32 v4, 1, v{V_LANE}")
    A("v_lshl_add_u32 v9, v4, 3, v9")
    A(f"v_bfe_u32 v14, v{V_LANE}, 2, 2")
    A(f"v_lshl_add_u32 v13, v{V_G}, 3, v14")
    A(f"v_lshl_add_u32 v{V_AT}, v13, 7, v9")
    A(f"v_add_u32 v{V_AT+1}, 0x10000, v{V_AT}")
    A(f"v_add_u32 v{V_AT+2}, 0x20000, v{V_AT}")
    A(f"v_and_b32 v9, 1, v{V_N}")
    A("v_lshlrev_b32 v9, 4, v9")
    A("v_mov_b32 v13, 0x3f80")
    A("v_lshlrev_b32 v13, v9, v13")
    A(f"v_lshrrev_b32 v9, 1, v{V_N}")
    A(f"v_lshlrev_b32 v14, 3, v{V_G}")
    A("v_sub_u32 v9, v9, v14")
    for q in range(8):
        A(f"v_cmp_eq_u32 vcc, {q}, v9")
        A(f"v_cndmask_b32_e64 v{IDF+q}, 0, v13, vcc")
    A(f"v_and_b32 v9, 15, v{V_LANE}")
    A("v_cmp_gt_u32 vcc, 4, v9")
    A("v_lshlrev_b32 v9, 4, v9")
    A(f"v_lshl_add_u32 v13, v{V_G}, 6, v9")
    A("v_add_u32 v13, 512, v13")
    A(f"v_lshl_add_u32 v9, v{V_G}, 8, v9")
    A(f"v_mov_b32 v14, {OOB:#x}")
    A("v_cndmask_b32 v13, v14, v13, vcc")
    A(f"v_cndmask_b32_e64 v{V_PB0}, v9, v13, s[{S_M16}:{S_M16+1}]")
    A(f"v_cndmask_b32_e64 v{V_PB1}, v13, v9, s[{S_M16}:{S_M16+1}]")
    A(f"v_cndmask_b32_e64 v13, v13, v14, s[{S_M16}:{S_M16+1}]")
    A(f"s_cmp_eq_u32 s{S_WAVE}, 0")
    A(f"s_cselect_b64 vcc, -1, 0")
    A(f"v_cndmask_b32 v{V_P2Z}, v14, v13, vcc")
    A(f"v_and_b32 v9, 7, v{V_LANE}")
    A(f"s_lshl_b32 s{ST}, s{S_WAVE}, 7")
    A(f"v_lshl_add_u32 v9, v9, 4, s{ST}")
    A(f"v_lshrrev_b32 v13, 3, v{V_LANE}")
    A("v_mul_u32_u24 v13, 640, v13")
    A(f"v_add_u32 v{V_G1}, v9, v13")
    A(f"v_cmp_gt_u32 vcc, 8, v{V_LANE}")
    A(f"v_mul_u32_u24 v{V_GZ}, 640, v{V_N}")
    A(f"v_lshl_add_u32 v{V_GZ}, v{V_G}, 6, v{V_GZ}")
    A(f"v_cndmask_b32 v{V_P2}, v14, v9, vcc")
    A(f"v_bfe_u32 v9, v{V_N}, 2, 1")
    A("v_lshlrev_b32 v9, 3, v9")
    A(f"v_bfe_u32 v13, v{V_N}, 3, 1")
    A("v_lshl_add_u32 v9, v13, 2, v9")
    A(f"v_and_b32 v13, 3, v{V_N}")
    A("v_add_u32 v9, v9, v13")
    A(f"v_cndmask_b32_e64 v9, v9, 32, s[{S_M16}:{S_M16+1}]")
    A("v_lshlrev_b32 v9, 4, v9")
    A(f"v_mul_u32_u24 v13, 1280, v{V_G}")
    A(f"v_add_u32 v{V_G2}, v9, v13")
    A("v_mov_b32 v9, 0x100")
    A(f"v_cndmask_b32_e64 v9, v9, 64, s[{S_M16}:{S_M16+1}]")
    A(f"v_add_u32 v{V_G2B}, v{V_G2}, v9")
    if OPT.get("prew", 1):
        for r in range(4): A(f"v_subrev_u32 v{T0+4+r}, 1, v{V_TAG}")
        A(f"buffer_store_dwordx4 {vr(T0+4,4)}, v{V_P2Z}, s[{SWS}:{SWS+3}], s{P_P2O} offen sc1")
        A(f"buffer_store_dwordx4 {vr(T0+4,4)}, v{V_P2}, s[{SWS}:{SWS+3}], s{P_P2O} offen sc1")
    A("v_mov_b32 v3, 0x3f803f80")
    A(f"v_bfe_u32 v4, v{V_LANE}, 2, 1")
    A("v_mul_u32_u24 v4, 0x8000, v4")
    A("v_lshl_or_b32 v4, v4, 16, v4")
    stamp(3)
    run(late)
    def trfrag(dst, ldsoff, kind="v"):
        s_, off = ldsoff >> 16, ldsoff & 0xffff
        return [f"ds_read_b64_tr_b16 {vr(dst+2*j,2,kind)}, v{V_AT+s_} offset:{off+j*512}" for j in range(2)]
    def rd(n):
        i, ks = n >> 2, n & 3
        slot, buf = i & 3, n & 1
        s2_, off = slot >> 1, (slot & 1) * SLOT
        x = [f"ds_read_b128 {ar(n*8+m*4,4)}, v{V_AX+4*s2_+ks} offset:{off+m*4096}" for m in range(2)]
        w = [trfrag(V_WF + buf * 8 + part * 4, slot * SLOT + part * 8192 + ks * 2048) for part in range(2)]
        return [x[0]] + w[0] + [x[1]] + w[1]
    def mm(n):
        buf = n & 1
        r = []
        for part, m in ((0, 0), (0, 1), (1, 0), (1, 1)):
            x, w = ar(n * 8 + m * 4, 4), vr(V_WF + buf * 8 + part * 4, 4)
            d = vr((KACC, VACC)[part] + 16 * m, 16)
            r.append(mf(d, w, x, d if n else "0") if part == 0 else mf(d, x, w, d if n else "0"))
        return r
    fill = []
    def on_step(n):
        i, ks = n >> 2, n & 3
        if ks == 0 and OPT.get("g1st") and i: stamp(16 + i)
        if ks == 0:
            if i in (WPS, WPS + 1): fill.extend(wpl[8*(i-WPS):8*(i-WPS)+8])
            for st in SCHED[0].get(i, []): fill.extend(g1_pieces(st))
            if i == 5: fill.extend(q_pieces(0) + (q_pieces(1) if QE == 1 else []))
            if i == 6:
                fill.extend((q_pieces(2) + q_pieces(3)) if QE == 1 else o_pieces(0))
                if OPT.get("ptouch", 0):
                    fill.extend([f"buffer_load_dword v254, v{V_G1}, s[{SWS}:{SWS+3}], s{P_P1G+k} offen sc1" for k in range(4)])
                    fill.append(f"buffer_load_dword v254, v{V_GZ}, s[{SWS}:{SWS+3}], s{P_P1G} offen sc1")
                    fill.extend([f"buffer_load_dword v254, v{V_G2}, s[{SWS}:{SWS+3}], s{P_P2G} offen offset:{(hh*4+jp)*640} sc1" for hh in range(2) for jp in range(2)])
                    fill.append(lambda: rdy_load(254, 254))
            elif i == 7:
                fill.extend(o_pieces(0) if QE == 1 else o_pieces(1))
                for r in range(8):
                    fill.append(lambda r=r: (A(f"v_lshl_or_b32 v{WPH+r}, v{T0+8+r}, 16, v{WPH+r}"), A(f"v_xor_b32 v{WPH+r}, v4, v{WPH+r}"), A(f"v_mov_b32 v{T0+8+r}, v{IDF+r}")))
    A.wait_vm(tok[0])
    A("s_barrier")
    stamp(4)
    gemm_loop(32, rd, mm, lambda n: tok[n >> 2] if (n & 3) == 0 else None, (3, 3, 0, 0), lambda n: g1_gaps(n, (7, WPS, WPS + 1)), fill, on_step, end_barrier=True)
    assert not fill
    stamp(5)
    def feat(acc):
        for m in range(2):
            for u in range(8):
                A(f"v_cvt_pk_bf16_f32 v{acc+16*m+u}, v{acc+16*m+2*u}, v{acc+16*m+2*u+1}")
            for hh in range(2):
                A(mf(vr(PK + (m * 2 + hh) * 16, 16), vr(WPH + 4 * hh, 4), vr(acc + 16 * m + 4 * hh, 4), "0"))
    def softmax_l(x, dst):
        mx, sm = T0, T0 + 2
        l = [f"v_max3_f32 v{mx}, v{x}, v{x+1}, v{x+2}"]
        for u in range(3, 15, 2):
            l.append(f"v_max3_f32 v{mx}, v{mx}, v{x+u}, v{x+u+1}")
        l.append(f"v_max_f32 v{mx}, v{mx}, v{x+15}")
        l.append(f"v_mul_f32 v{mx}, s{S_L2E}, v{mx}")
        for u in range(8):
            l.append(f"v_pk_fma_f32 {vr(x+2*u,2)}, {vr(x+2*u,2)}, s[{S_L2E}:{S_L2E+1}], {vr(mx,2)} op_sel_hi:[1,1,0] neg_lo:[0,0,1] neg_hi:[0,0,1]")
        for u in range(16):
            l.append(f"v_exp_f32 v{x+u}, v{x+u}")
        l.append(f"v_pk_add_f32 {vr(sm,2)}, {vr(x,2)}, {vr(x+2,2)}")
        for u in range(2, 8):
            l.append(f"v_pk_add_f32 {vr(sm,2)}, {vr(sm,2)}, {vr(x+2*u,2)}")
        l.append(f"v_add_f32 v{sm}, v{sm}, v{sm+1}")
        l.append(f"v_rcp_f32 v{sm}, v{sm}")
        for u in range(8):
            l.append(f"v_pk_mul_f32 {vr(x+2*u,2)}, {vr(x+2*u,2)}, {vr(sm,2)} op_sel_hi:[1,0]")
        for u in range(8):
            l.append(f"v_cvt_pk_bf16_f32 v{dst+u}, v{x+2*u}, v{x+2*u+1}")
        return l
    feat(KACC)
    for m in range(2):
        for u in range(8):
            A(f"v_cvt_pk_bf16_f32 v{VACC+16*m+u}, v{VACC+16*m+2*u}, v{VACC+16*m+2*u+1}")
    for m in range(2):
        for u in range(8):
            A(f"v_cndmask_b32_e64 v{VACC+16*m+8+u}, v3, v{VACC+16*m+u}, s[{S_M16}:{S_M16+1}]")
            A(f"v_cndmask_b32_e64 v{VACC+16*m+u}, v{VACC+16*m+u}, v3, s[{S_M16}:{S_M16+1}]")
    nbstamp(0)
    PH = [KACC + 8, KACC + 24]
    ID = T0 + 8
    def tmm(blk):
        d = vr(PK + 16 * blk, 16)
        return [mf(d, vr(PH[blk & 1] + 4 * jp, 4), vr(ID + 4 * jp, 4), d if jp else "0") for jp in range(2)]
    def tcvt(blk):
        t = PK + 16 * blk
        return [f"v_cvt_pk_bf16_f32 v{t+u}, v{t+2*u}, v{t+2*u+1}" for u in range(8)]
    def kvmm(blk):
        m, hh = blk >> 1, blk & 1
        d = vr(KV + 16 * hh, 16)
        return [mf(d, vr(PK + 16 * blk + 4 * mm_, 4), vr(VACC + 16 * m + 8 * hh + 4 * mm_, 4), d if (m or mm_) else "0") for mm_ in range(2)]
    for blk in range(4):
        l = softmax_l(PK + blk * 16, PH[blk & 1])
        if blk:
            t, kv = tmm(blk - 1), kvmm(blk - 1)
            l = l[:17] + [t[0]] + l[17:21] + [t[1]] + l[21:33] + tcvt(blk - 1) + l[33:50] + [kv[0]] + l[50:58] + [kv[1]]
        emit(l)
        if blk < 3 and not QE: run(q_pieces(blk + 1))
        nbstamp(1 + blk)
    TS = 4 if OPT.get("tag1", 1) else 1
    def tagit(r, n):
        for e in range(0, n, TS):
            A(f"v_and_or_b32 v{r+e}, v{r+e}, s{P_MSK}, v{V_TAG}")
    def pub(hh, oc):
        A(f"s_add_u32 s{ST+3}, s{P_P1O}, {(hh*4+oc)*32*640}")
        A(f"buffer_store_dwordx4 {vr(KV+16*hh+4*oc,4)}, v{V_PB0+hh}, s[{SWS}:{SWS+3}], s{ST+3} offen sc1")
    emit(tmm(3))
    tagit(KV, 16)
    pub(0, 0); pub(0, 1)
    emit(tcvt(3))
    emit(kvmm(3))
    nbstamp(5)
    pub(0, 2); pub(0, 3)
    tagit(KV + 16, 16)
    for oc in range(4): pub(1, oc)
    QACC = KACC
    def qaddr(n):
        i, ks = n >> 2, n & 3
        return QSLOT[i >> 2] * SLOT + (i & 3) * 8192 + ks * 2048
    def rdq(n):
        return trfrag(V_WF + (n & 1) * 8, qaddr(2 * n)) + trfrag(V_WF + (n & 1) * 8 + 4, qaddr(2 * n + 1))
    def mmq(n):
        r = []
        for h in range(2):
            for m in range(2):
                d = vr(QACC + 16 * m, 16)
                r.append(mf(d, vr(V_WF + (n & 1) * 8 + 4 * h, 4), ar((2 * n + h) * 8 + m * 4, 4), d if (n or h) else "0"))
        return r
    stamp(6)
    nbflush()
    GD = VACC
    GZ = GD + 16
    g1l = [f"buffer_load_dwordx4 {vr(GD+4*k,4)}, v{V_G1}, s[{SWS}:{SWS+3}], s{P_P1G+k} offen sc1" for k in range(4)]
    g1l.append(f"buffer_load_dwordx4 {vr(GZ,4)}, v{V_GZ}, s[{SWS}:{SWS+3}], s{P_P1G} offen offset:512 sc1")
    S_D1, S_RET = P0 + 11, ST + 6
    A(f"s_mov_b32 s{S_D1}, 0")
    def try1a(block=False):
        skip = lab("sk")
        if block:
            A(f"s_cmp_lg_u32 s{S_D1}, 0")
        else:
            A(f"s_getreg_b32 s{ST+5}, hwreg(HW_REG_IB_STS, 0, 4)")
            A(f"s_or_b32 s{ST+5}, s{ST+5}, s{S_D1}")
        A(f"s_cbranch_scc1 {skip}")
        A(f"s_call_b64 s[{S_RET}:{S_RET+1}], L_try1a")
        A.label(skip)
    def sub_try1a():
        A.label("L_try1a")
        A.hist = []
        A("s_waitcnt vmcnt(0)")
        A(f"v_xor_b32 v13, v{GD}, v{V_TAG}")
        for s in range(TS, 20, TS):
            A(f"v_bitop3_b32 v13, v{GD+s}, v{V_TAG}, v13 bitop3:0xbe")
        A("v_and_b32 v13, 0xff, v13")
        A(f"v_cmp_ne_u32 s[{S_FAIL}:{S_FAIL+1}], 0, v13")
        A(f"s_cmp_eq_u64 s[{S_FAIL}:{S_FAIL+1}], 0")
        A("s_cbranch_scc1 L_try1a_ok")
        emit(g1l)
        A(f"s_setpc_b64 s[{S_RET}:{S_RET+1}]")
        A.label("L_try1a_ok")
        DPP = "row_mask:0xf bank_mask:0xf"
        A(f"v_permlane16_swap_b32 v{GZ}, v{GZ+2}")
        A(f"v_permlane16_swap_b32 v{GZ+1}, v{GZ+3}")
        for u in range(0, 8, 2):
            A(f"v_pk_add_f32 {vr(GD+u,2)}, {vr(GD+u,2)}, {vr(GD+8+u,2)}")
        A(f"v_pk_add_f32 {vr(GZ,2)}, {vr(GZ,2)}, {vr(GZ+2,2)}")
        for u in range(0, 4, 2):
            A(f"v_pk_add_f32 {vr(GD+u,2)}, {vr(GD+u,2)}, {vr(GD+4+u,2)}")
        def zror(k):
            for e in range(2): A(f"v_add_f32_dpp v{GZ+e}, v{GZ+e}, v{GZ+e} row_ror:{k} {DPP}")
        zror(1)
        A(f"v_permlane32_swap_b32 v{GD}, v{GD+1}")
        A(f"v_permlane32_swap_b32 v{GD+2}, v{GD+3}")
        zror(2)
        A(f"v_add_f32 v{GD}, v{GD}, v{GD+1}")
        A(f"v_add_f32 v{GD+2}, v{GD+2}, v{GD+3}")
        zror(4)
        A(f"v_permlane16_swap_b32 v{GD}, v{GD+2}")
        A(f"v_add_f32 v{GD}, v{GD}, v{GD+2}")
        zror(8)
        A(f"v_add_f32_dpp v{GD}, v{GD}, v{GD} row_ror:8 {DPP}")
        for e in range(2): A(f"v_and_or_b32 v{GZ+e}, v{GZ+e}, s{P_MSK}, v{V_TAG}")
        A(f"v_and_or_b32 v{GD}, v{GD}, s{P_MSK}, v{V_TAG}")
        for e in range(2): A(f"v_mov_b32 v{GZ+2+e}, v{GZ+e}")
        A(f"v_mov_b32 v{GD+1}, v{GD}")
        A(f"v_permlane16_swap_b32 v{GZ}, v{GZ+2}")
        A(f"v_permlane16_swap_b32 v{GZ+1}, v{GZ+3}")
        A(f"v_permlane32_swap_b32 v{GD}, v{GD+1}")
        A(f"buffer_store_dwordx4 {vr(GZ,4)}, v{V_P2Z}, s[{SWS}:{SWS+3}], s{P_P2O} offen sc1")
        A(f"v_mov_b32 v{GD+2}, v{GD}")
        A(f"v_mov_b32 v{GD+3}, v{GD+1}")
        A(f"v_permlane16_swap_b32 v{GD}, v{GD+2}")
        A(f"v_permlane16_swap_b32 v{GD+1}, v{GD+3}")
        A(f"buffer_store_dwordx4 {vr(GD,4)}, v{V_P2}, s[{SWS}:{SWS+3}], s{P_P2O} offen sc1")
        stamp(8)
        A(f"s_mov_b32 s{S_D1}, 1")
        A(f"s_setpc_b64 s[{S_RET}:{S_RET+1}]")
    DEFER.append(sub_try1a)
    fill = []
    G1AT = OPT.get('g1at', 13)
    def on_stepq(n):
        if n == 0: fill.extend((o_pieces(1) if QE == 1 else (q_pieces(2) + q_pieces(3) if QE == 2 else [])) + o_pieces(2) + o_pieces(3) + [lambda: tok.__setitem__('wo', A.vm)])
        if n == G1AT: fill.extend(g1l + [None])
        if n >= G1AT + 4: fill.extend([None, try1a])
    if QE == 2:
        run(q_pieces(1))
        A.wait_vm(tok[("q", 0)])
        qb = lambda n: tok[("q", n >> 2)] if n in (4, 8, 12) else None
    else:
        A.wait_vm(tok[("q", 3)])
        qb = lambda n: None
    A("s_barrier")
    stamp(26)
    gemm_loop(16, rdq, mmq, qb, (2, 2, 0, 0), lambda n: (0, 1, 2, 3) if (QE == 2 and n < 2) else (2, 3), fill, on_stepq)
    assert not fill
    A.wait_vm(tok["wo"])
    A("s_barrier")
    stamp(7)
    feat(QACC)
    def wait1a():
        top, done = lab("w1a"), lab("w1d")
        A(f"s_mov_b32 s{S_CNT}, {SPIN_LIMIT}")
        A.label(top)
        try1a(block=True)
        A(f"s_cmp_lg_u32 s{S_D1}, 0")
        A(f"s_cbranch_scc1 {done}")
        A(f"s_sub_u32 s{S_CNT}, s{S_CNT}, 1")
        A(f"s_cbranch_scc0 {top}")
        A.label(done)
    B1 = OPT.get("blk1a", 0)
    if B1 == 0: wait1a()
    S_D2 = ST + 4
    A(f"s_mov_b32 s{S_D2}, 0")
    PHQ = KV
    FD = PK
    def loads2():
        for hh in range(2):
            for jp in range(2):
                r = FD + (hh * 2 + jp) * 8
                off = (hh * 4 + jp) * 640
                A(f"buffer_load_dwordx4 {vr(r,4)}, v{V_G2}, s[{SWS}:{SWS+3}], s{P_P2G} offen offset:{off} sc1")
                A(f"buffer_load_dwordx4 {vr(r+4,4)}, v{V_G2B}, s[{SWS}:{SWS+3}], s{P_P2G} offen offset:{off} sc1")
        rdy_load(14)
    def check2():
        A(f"v_xor_b32 v13, v{FD}, v{V_TAG}")
        for s in range(1, 32):
            A(f"v_bitop3_b32 v13, v{FD+s}, v{V_TAG}, v13 bitop3:0xbe")
        rdy_check(9, 14)
        A("v_and_b32 v13, 0xff, v13")
        A("v_or_b32 v13, v13, v9")
        A(f"v_cmp_ne_u32 s[{S_FAIL}:{S_FAIL+1}], 0, v13")
    for blk in range(4):
        if blk == 3: loads2()
        emit(softmax_l(PK + blk * 16, PHQ + 8 * blk))
        if blk + 1 == B1: wait1a()
    stamp(9)
    KVF = VACC + 16
    ODR = [KACC, KACC + 16, PK + 32, PK + 48]
    A(f"s_lshl_b32 s{ST+5}, s{S_RH}, 12")
    A(f"v_add_u32 v{V_AX}, s{ST+5}, v{V_LIN}")
    A(f"v_add_u32 v{V_AX+1}, 0x10000, v{V_AX}")
    A(f"v_add_u32 v{V_AX+2}, 0x20000, v{V_AX}")
    slin(ST + 5, 3 * SLOT, (S_MF, 8192), (S_M0W2, 1))
    A(f"v_add_u32 v{V_AX+3}, s{ST+5}, v{V_LIN}")
    A(f"v_xor_b32 v{V_AX+4}, 0x2000, v{V_AX+3}")
    wor = []
    for n in range(32):
        wor += trfrag(n * 4, OLDS[n >> 2] + (n & 3) * 2048, "a")
    emit(wor[:8])
    def check2m():
        chk = [f"v_xor_b32 v13, v{FD}, v{V_TAG}"] + [f"v_bitop3_b32 v13, v{FD+s}, v{V_TAG}, v13 bitop3:0xbe" for s in range(TS, 32, TS)]
        for hh in range(2):
            for q in (2 * hh, 2 * hh + 1):
                for u in range(4):
                    A(f"v_cvt_pk_bf16_f32 v{KVF+4*q+u}, v{FD+8*q+2*u}, v{FD+8*q+2*u+1}")
            for m in range(2):
                blk = 2 * m + hh
                d = vr(ODR[blk], 16)
                for jp in range(2):
                    A(mf(d, vr(KVF + (hh * 2 + jp) * 4, 4), vr(PHQ + 8 * blk + 4 * jp, 4), d if jp else "0"))
                    k = 3 if hh == 0 else 5
                    emit(chk[:k]); chk = chk[k:]
        assert not chk
        rdy_check(9, 14)
        A("v_and_b32 v13, 0xff, v13")
        A("v_or_b32 v13, v13, v9")
        A(f"v_cmp_ne_u32 s[{S_FAIL}:{S_FAIL+1}], 0, v13")
    poll_pre(loads2, check2m)
    stamp(10)
    xcc_decide(14)
    ost = []
    for blk in (0, 2, 1, 3):
        m, hh = blk >> 1, blk & 1
        o = ODR[blk]
        A(f"v_add_f32 v{o+8}, 0x358637bd, v{o+8}")
        A(f"v_rcp_f32 v{o+8}, v{o+8}")
        for u in range(4):
            A(f"v_pk_mul_f32 {vr(o+2*u,2)}, {vr(o+2*u,2)}, {vr(o+8,2)} op_sel_hi:[1,0]")
        for u in range(4):
            A(f"v_cvt_pk_bf16_f32 v{o+12+u}, v{o+2*u}, v{o+2*u+1}")
        A(f"buffer_store_dwordx4 {vr(o+12,4)}, v{V_LIN}, s[{SWS}:{SWS+3}], s{P_ACTW+m} offen offset:{hh*1024} sc1")
        A(f"ds_write_b128 v{V_AX+3+m}, {vr(o+12,4)} offset:{hh*1024}")
    tok_o = A.vm
    stamp(11)
    ELDS = [(3, 4, 0, 1)[e >> 2] * SLOT + (e & 3) * 8192 for e in range(16)]
    def of_pieces(e):
        pos, ph = SEQ[e]
        def p0():
            A(f"s_add_u32 m0, s{S_M0W2}, {ELDS[e]:#x}")
            A(f"s_lshl_b32 s{ST+8}, s{KAP[pos]}, 14")
            A(f"s_add_u32 s{ST+8}, s{ST+8}, s{P_ACTR+ph}")
            A(f"buffer_load_dwordx4 v{V_LIN}, s[{SWS}:{SWS+3}], s{ST+8} offen {PLF}lds")
        def p1():
            A(f"buffer_load_dwordx4 v{V_LIN}, s[{SWS}:{SWS+3}], s{ST+8} offen offset:1024 {PLF}lds")
            tok[("of", e)] = A.vm
        return [p0, p1]
    OF = PK
    OACC = VACC
    def rd4(n):
        return [f"ds_read_b128 {vr(OF+(n&1)*16+h*4,4)}, v{V_AX+(ELDS[n]>>16)} offset:{(ELDS[n]&0xffff)+h*1024}" for h in range(4)]
    def mm4(n):
        pos, ph = SEQ[n]
        d = vr(OACC + 16 * ph, 16)
        return [mf(d, vr(OF + (n & 1) * 16 + h * 4, 4), ar((4 * pos + h) * 4, 4), d if (pos or h) else "0") for h in range(4)]
    A("s_waitcnt lgkmcnt(0)")
    A("s_barrier")
    wf = wor[8:]
    def two():
        for _ in range(2): A(wf.pop(0))
    gemm_loop(2, rd4, mm4, lambda n: None, (2, 2, 0, 0), (2, 3), [two] * 4)
    emit(wf[:16]); wf = wf[16:]
    A.wait_vm(tok_o)
    flag_store()
    emit(wf)
    flag_poll()
    stamp(12)
    for e in range(2, 7): run(of_pieces(e))
    fill = []
    def on_step4(n):
        if n == 2:
            for e in range(7, 16): fill.extend(of_pieces(e))
        if n == 10: fill.extend(out_stores(OACC, 0))
    A.wait_both(tok[("of", 3)], A.lg)
    A("s_barrier")
    stamp(13)
    BND = {4: 6, 7: 9, 10: 12, 13: 15}
    gemm_loop(16, rd4, mm4, lambda n: tok[("of", BND[n])] if n in BND else None, (2, 2, 0, 0),
              lambda n: (1, 2, 3) if n >= 10 else (0, 1, 2, 3), fill, on_step4, start=2)
    assert not fill
    stamp(14)
    run(out_stores(OACC, 1))
    tag_update("B")
    stamp(15)
    finish()

prologue()
vm0, lg0 = A.vm, A.lg
role_A()
for f in DEFER: f()
DEFER.clear()
A.label("L_roleB")
ROLE[0] = "B"
A.vm, A.lg = vm0, lg0
A.hist = []
role_B()
for f in DEFER: f()
A.label("L_end")
A("s_endpgm")

iB = A.out.index("L_roleB:")
lines = A.out[:CUT["A"]] + A.out[iB:CUT["B"]] + A.out[CUT["A"]:iB] + A.out[CUT["B"]:]
if OPT["align"]:
    lines, nw, nn = align(lines, min_nop=OPT.get('minnop', 12))
    print("align: widened", nw, "nops", nn)
HEAD = open("cdna_kernels/" + NAME + ".s.ref").read().split("; Override launch geometry")[0]
src = HEAD + f"""; @launch grid=(256,1,1) block=(256,1,1) lds=163840
.amdgcn_target "amdgcn-amd-amdhsa--gfx950"
.text
.globl {NAME}_kernel
.p2align 8
.type {NAME}_kernel,@function
{NAME}_kernel:
""" + "\n".join(lines) + f"""
.fill 8192, 4, 0xBF810000
.section .rodata,"a"
.p2align 6
.amdhsa_kernel {NAME}_kernel
  .amdhsa_next_free_vgpr 512
  .amdhsa_next_free_sgpr 102
  .amdhsa_accum_offset 256
  .amdhsa_group_segment_fixed_size 0
  .amdhsa_kernarg_size 128
  .amdhsa_user_sgpr_count 2
  .amdhsa_user_sgpr_kernarg_segment_ptr 1
  .amdhsa_system_sgpr_workgroup_id_x 1
.end_amdhsa_kernel
"""
open(sys.argv[1], "w").write(src)
print("hazard nops:", A.nnop, "lines:", len(lines))
```

```python
import sys
from dsl import Asm, vr, ar, sr
from align import align

NAME = "concat_heads__ssm_conv_s5__linear_kernel_hedgehog__prompt"
OPT = dict(stamps=False, rotmode=2, align=1, xnt=0, hwait=8, owait=4, hand=0)
for a_ in sys.argv[2:]:
    k_, _, v_ = a_.partition("=")
    OPT[k_] = int(v_) if v_ else True

WS_TAGA, WS_TAGB = 0x0, 0x80
WS_XCC = 0x1000
WS_FLAG = 0x2000
WS_SA = 0x10000
WS_P1 = 0x100000
WS_P2 = 0x3C0000
WS_H = 0x400000
WS_O = 0x800000
WS_STAMP = 0xA00000
OOB = 0x40000000
SPIN_LIMIT = 1 << 14
LOG2E = 0x3FB8AA3B
INV2PI = 0x3E22F983

S_WAVE, S_CHUNK, S_CG, S_ROT, S_TAG = 3, 4, 5, 6, 7
SX, SW, SW2, SWS, SOUT = 8, 12, 16, 20, 24
S_RH, S_CH, S_SLOT, S_GRP = 28, 29, 30, 31
ST = 32
S_M0W, S_M0W2 = 48, 49
S_MG = 50
S_MRH = 52
S_L2E = 54
S_CNT = 56
S_FAIL = 58
S_M16 = 60
S_SM0, S_RS = 62, 63
S_XW, S_SLOW, P_FLW = 91, 92, 93
S_ROT1 = 47
KAP = [62, 63, 44, 45, 86, 87, 94, 95]
SEQ = [(0, 0), (0, 1)] + [(j, 0) for j in range(1, 8)] + [(j, 1) for j in range(1, 8)]
HAND = OPT['hand']
KA = 64
K_AX, K_LRE, K_LIM, K_BRE, K_BIM, K_CRE, K_CIM, K_LDT, K_DSK, K_BX, K_WQKV, K_WPHI, K_WO, K_OUT, K_DBG, K_WS = [KA + 2 * i for i in range(16)]
P_FLAGB, P_FLAGO, P_XCCB, P_TAGSEL, P_OUT, P_OUT2, P_ACTR, P_ACTR2 = range(64, 72)
P_ACTW, P_ACTW2, S_MF = 88, 89, 90
P0 = 72
S_STAMP = 96
V_LANE, V_OUTO, V_N, V_G, V_LIN, V_TAG, V_L0, V_CHK, V_XPO = 1, 2, 5, 6, 7, 8, 10, 12, 15
V_OX, V_OW = 16, 20
SLOT = 32768

A = Asm()
nlab = [0]

def srd(dst, ptr, nbytes):
    A(f"s_mov_b32 s{dst}, s{ptr}")
    A(f"s_mov_b32 s{dst+1}, s{ptr+1}")
    A(f"s_mov_b32 s{dst+2}, {nbytes:#x}")
    A(f"s_mov_b32 s{dst+3}, 0x20000")

def slin(dst, const, *terms):
    first = True
    for reg, mul in terms:
        t = dst if first else ST + 14
        if mul == 1:
            if first: A(f"s_mov_b32 s{dst}, s{reg}")
            else: t = reg
        elif mul & (mul - 1) == 0: A(f"s_lshl_b32 s{t}, s{reg}, {mul.bit_length()-1}")
        else: A(f"s_mul_i32 s{t}, s{reg}, {mul}")
        if not first: A(f"s_add_u32 s{dst}, s{dst}, s{t}")
        first = False
    if const: A(f"s_add_u32 s{dst}, s{dst}, {const:#x}")

ROLE = ["A"]
def stamp(idx):
    if OPT.get("probe") == idx + (0 if ROLE[0] == "A" else 100):
        if OPT.get("cyc"):
            A("s_memtime s[96:97]")
            A("s_waitcnt lgkmcnt(0)")
            A("s_sub_u32 s99, s96, s98")
            A("s_lshr_b32 s99, s99, 4")
        else:
            A("s_memrealtime s[96:97]")
            A("s_waitcnt lgkmcnt(0)")
            A("s_sub_u32 s99, s96, s100")
    if not OPT["stamps"]: return
    A(f"s_memtime s[{S_STAMP}:{S_STAMP+1}]")
    A("s_waitcnt lgkmcnt(0)")
    A(f"s_sub_u32 s{S_STAMP}, s{S_STAMP}, s98")
    A(f"v_writelane_b32 v255, s{S_STAMP}, {idx}")
    if OPT.get("rt") and idx <= 16:
        A(f"s_memrealtime s[{S_STAMP}:{S_STAMP+1}]")
        A("s_waitcnt lgkmcnt(0)")
        A(f"s_sub_u32 s{S_STAMP}, s{S_STAMP}, s100")
        A(f"v_writelane_b32 v255, s{S_STAMP}, {idx+44}")

NB = [32, 36, 38, 42, 58, 56]
nbuse = []
def nbstamp(k):
    if OPT.get("nb") and OPT["stamps"]:
        A(f"s_memtime s[{NB[k]}:{NB[k]+1}]"); nbuse.append(k)
def nbflush():
    if OPT.get("nb") and OPT["stamps"]:
        A("s_waitcnt lgkmcnt(0)")
        for k in nbuse:
            A(f"s_sub_u32 s{NB[k]}, s{NB[k]}, s98")
            A(f"v_writelane_b32 v255, s{NB[k]}, {17+k}")
        nbuse.clear()

def lab(n):
    nlab[0] += 1
    return f"L_{n}_{nlab[0]}"

def finish():
    if OPT.get("probe") and (OPT["probe"] >= 100) == (ROLE[0] == "B"):
        if OPT["probe"] % 100 == 16:
            A("s_waitcnt vmcnt(0)")
            stamp(16)
        l = lab("pr")
        A("s_lshl_b32 s99, s99, 1")
        A("s_add_u32 s99, s99, 2500")
        A.label(l)
        A("s_memrealtime s[96:97]")
        A("s_waitcnt lgkmcnt(0)")
        A("s_sub_u32 s96, s96, s100")
        A("s_cmp_lt_u32 s96, s99")
        A(f"s_cbranch_scc1 {l}")
    if OPT.get("fixrt"):
        l = lab("rt")
        A.label(l)
        A("s_memrealtime s[96:97]")
        A("s_waitcnt lgkmcnt(0)")
        A("s_sub_u32 s96, s96, s100")
        A(f"s_cmp_lt_u32 s96, {OPT['fixrt']}")
        A(f"s_cbranch_scc1 {l}")
    if OPT["stamps"]:
        A("s_waitcnt vmcnt(0)")
        stamp(16)
        A("v_writelane_b32 v255, s99, 30")
        A("s_memrealtime s[96:97]")
        A("v_writelane_b32 v255, s100, 40")
        A("s_waitcnt lgkmcnt(0)")
        A("v_writelane_b32 v255, s96, 41")
        slin(ST, WS_STAMP, (2, 1024), (S_WAVE, 256))
        A(f"v_lshlrev_b32 v254, 2, v{V_LANE}")
        A(f"buffer_store_dword v255, v254, s[{SWS}:{SWS+3}], s{ST} offen")
    A("s_endpgm")

def mf(d, a, b, c):
    return f"v_mfma_f32_32x32x16_bf16 {d}, {a}, {b}, {c}"

def poll(loads, check):
    top, done = lab("poll"), lab("ok")
    A(f"s_mov_b32 s{S_CNT}, {SPIN_LIMIT}")
    A.label(top)
    loads()
    A("s_waitcnt vmcnt(0)")
    check()
    A(f"s_cmp_eq_u64 s[{S_FAIL}:{S_FAIL+1}], 0")
    A(f"s_cbranch_scc1 {done}")
    A(f"s_sub_u32 s{S_CNT}, s{S_CNT}, 1")
    A(f"s_cbranch_scc0 {top}")
    A.label(done)

def poll_pre(loads, check):
    top, done = lab("poll"), lab("ok")
    A(f"s_mov_b32 s{S_CNT}, {SPIN_LIMIT}")
    A.label(top)
    A("s_waitcnt vmcnt(0)")
    check()
    A(f"s_cmp_eq_u64 s[{S_FAIL}:{S_FAIL+1}], 0")
    A(f"s_cbranch_scc1 {done}")
    loads()
    A(f"s_sub_u32 s{S_CNT}, s{S_CNT}, 1")
    A(f"s_cbranch_scc0 {top}")
    A("s_waitcnt vmcnt(0)")
    A.label(done)

def cfma_l(d, a, b, c, t):
    return [f"v_pk_fma_f32 {vr(t,2)}, {vr(a,2)}, {vr(b,2)}, {vr(c,2)} op_sel:[1,1,0] op_sel_hi:[1,0,1] neg_lo:[1,0,0]",
            f"v_pk_fma_f32 {vr(d,2)}, {vr(a,2)}, {vr(b,2)}, {vr(t,2)} op_sel:[0,0,0] op_sel_hi:[0,1,1]"]
def cmul_l(d, a, b, t):
    return [f"v_pk_mul_f32 {vr(t,2)}, {vr(a,2)}, {vr(b,2)} op_sel:[1,1] op_sel_hi:[1,0] neg_lo:[1,0]",
            f"v_pk_fma_f32 {vr(d,2)}, {vr(a,2)}, {vr(b,2)}, {vr(t,2)} op_sel:[0,0,0] op_sel_hi:[0,1,1]"]
def emit(l):
    for x in l: A(x)
def cfma(*a): emit(cfma_l(*a))
def cmul(*a): emit(cmul_l(*a))

def weave(main, fillers, every, start=0):
    for i, x in enumerate(main):
        A(x)
        if i >= start and (i - start) % every == every - 1 and fillers:
            f = fillers.pop(0)
            if isinstance(f, str): A(f)
            elif f: f()

def gemm_loop(nsteps, reads, mfmas, boundary, split, fill_gaps, fillers, on_step=None, end_barrier=False, verify=None, start=0):
    for r in reads(start): A(r)
    for n in range(start, nsteps):
        if on_step: on_step(n)
        last = n == nsteps - 1
        b = None if last else boundary(n + 1)
        b2 = boundary(n + 2) if (verify and n + 2 < nsteps) else None
        if b2 is not None: A.wait_both(b2, A.lg)
        elif b is not None and not verify: A.wait_both(b, A.lg)
        else: A("s_waitcnt lgkmcnt(0)")
        if b is not None and verify: verify(n + 1)[1]()
        rs = [] if last else list(reads(n + 1))
        ms = mfmas(n)
        for g in range(4):
            A(ms[g])
            if g == 0 and b2 is not None: verify(n + 2)[0]()
            if g == 0 and b is not None and verify: verify(n + 1)[2]()
            if g == 0 and (b is not None or (last and end_barrier)): A("s_barrier")
            for _ in range(split[g]):
                if rs: A(rs.pop(0))
            if g in (fill_gaps(n) if callable(fill_gaps) else fill_gaps) and fillers:
                f = fillers.pop(0)
                if isinstance(f, str): A(f)
                elif f: f()
        assert not rs

def dma_pieces(voff, srdreg, soff, ldsoff, pre=None, post=None, flags="", m0reg=S_M0W, same_v=False):
    def mk(p):
        def f():
            if p == 0:
                A(f"s_add_u32 m0, s{m0reg}, {ldsoff:#x}")
                if pre: pre()
            A(f"buffer_load_dwordx4 v{voff if same_v else voff+p}, s[{srdreg}:{srdreg+3}], s{soff} offen offset:{p*1024} {flags}lds")
            if p == 3 and post: post()
        return f
    return [mk(p) for p in range(4)]

def run(fs):
    for f in fs:
        if isinstance(f, str): A(f)
        else: f()

def rot_soff(dst, add, shift=None, mul=None, extra_sreg=None, plus=None, rot=S_ROT):
    A(f"s_add_u32 s{dst}, s{rot}, {add}")
    if extra_sreg is not None: A(f"s_add_u32 s{dst}, s{dst}, s{extra_sreg}")
    A(f"s_and_b32 s{dst}, s{dst}, 7")
    if shift is not None: A(f"s_lshl_b32 s{dst}, s{dst}, {shift}")
    else: A(f"s_mul_i32 s{dst}, s{dst}, {mul}")
    if plus is not None: A(f"s_add_u32 s{dst}, s{dst}, s{plus}")

def prologue():
    if OPT["stamps"] or OPT.get("cyc"): A("s_memtime s[98:99]")
    if OPT.get("fixrt") or OPT.get("probe") or OPT["stamps"]: A("s_memrealtime s[100:101]")
    A("s_cmp_ge_u32 s2, 256")
    A("s_cbranch_scc1 L_end")
    A(f"s_load_dwordx16 s[{KA}:{KA+15}], s[0:1], 0")
    A(f"s_load_dwordx16 s[{KA+16}:{KA+31}], s[0:1], 64")
    A("v_and_b32 v1, 63, v0")
    A("v_lshrrev_b32 v2, 6, v0")
    A(f"s_lshr_b32 s{S_SLOT}, s2, 3")
    A(f"v_readfirstlane_b32 s{S_WAVE}, v2")
    A(f"s_and_b32 s{ST}, s2, 3")
    A(f"s_lshl_b32 s{S_CHUNK}, s{ST}, 2")
    A(f"s_lshr_b32 s{ST+1}, s{S_SLOT}, 3")
    A(f"s_add_u32 s{S_CHUNK}, s{S_CHUNK}, s{ST+1}")
    A(f"s_and_b32 s{S_CG}, s{S_SLOT}, 7")
    A(f"s_lshl_b32 s{S_ROT}, s{ST+1}, 1")
    A(f"s_add_u32 s{S_ROT}, s{S_ROT}, s{S_CG}")
    A(f"s_and_b32 s{S_ROT}, s{S_ROT}, 7")
    rm = OPT["rotmode"]
    if rm == 8: A(f"s_mov_b32 s{S_ROT1}, s{S_ROT}")
    elif rm == 1: A(f"s_mov_b32 s{S_ROT1}, 0")
    elif rm == 3:
        A(f"s_add_u32 s{S_ROT1}, s{S_CG}, s{ST+1}")
        A(f"s_and_b32 s{S_ROT1}, s{S_ROT1}, 3")
        A(f"s_mul_i32 s{S_ROT1}, s{S_ROT1}, 3")
    else:
        A(f"s_add_u32 s{S_ROT1}, s{S_CG}, s{ST+1}")
        A(f"s_and_b32 s{S_ROT1}, s{S_ROT1}, {rm-1}")
        A(f"s_lshl_b32 s{S_ROT1}, s{S_ROT1}, {2 if rm == 2 else 1}")
    A(f"s_lshr_b32 s{S_RH}, s{S_WAVE}, 1")
    A(f"s_and_b32 s{S_CH}, s{S_WAVE}, 1")
    A(f"s_lshl_b32 s{S_M0W}, s{S_WAVE}, 12")
    slin(ST + 2, 0, (S_SLOT, 512), (S_WAVE, 128))
    A("v_and_b32 v7, 1, v0")
    A(f"v_lshl_add_u32 v7, v7, 14, s{ST+2}")
    A("v_lshrrev_b32 v3, 3, v1")
    A("v_and_b32 v4, 7, v1")
    A(f"v_and_b32 v{V_N}, 31, v1")
    A(f"v_lshrrev_b32 v{V_G}, 5, v1")
    if OPT["stamps"]: A("v_mov_b32 v255, 0")
    A("s_bitcmp0_b32 s2, 2" if OPT.get("swap") else "s_bitcmp1_b32 s2, 2")
    A("s_cbranch_scc1 L_roleB")

CUT = {}
def cut(role):
    A(f"s_branch L_main{role}")
    CUT[role] = len(A.out)
    A.label(f"L_main{role}")

def code_prefetch():
    A(f"s_getpc_b64 s[{ST+4}:{ST+5}]")
    A.label(f"L_pc{ROLE[0]}")
    A(f"s_add_u32 s{ST+4}, s{ST+4}, L_main{ROLE[0]}-L_pc{ROLE[0]}")
    A(f"s_addc_u32 s{ST+5}, s{ST+5}, 0")
    A(f"global_load_dword v254, v7, s[{ST+4}:{ST+5}]")

def common_setup(role):
    srd(SWS, K_WS, 0x10000000)
    srd(SOUT, K_OUT, 0x800000)
    A(f"s_lshl_b32 s{S_M0W2}, s{S_WAVE}, 13")
    A(f"s_mov_b32 s{S_MG}, 0")
    A(f"s_mov_b32 s{S_MG+1}, -1")
    A(f"s_sub_u32 s{S_MRH}, 0, s{S_RH}")
    A(f"s_mov_b32 s{S_MRH+1}, s{S_MRH}")
    A(f"s_mov_b32 s{S_L2E}, {LOG2E:#x}")
    A(f"s_mov_b32 s{S_L2E+1}, {LOG2E:#x}")
    A(f"s_mov_b32 s{S_M16}, 0xffff0000")
    A(f"s_mov_b32 s{S_M16+1}, 0xffff0000")
    A(f"s_add_u32 s{S_GRP}, s{S_CHUNK}, {0 if role == 'A' else 16}")
    slin(P_XCCB, WS_XCC, (S_GRP, 128))
    A(f"s_and_b32 s{S_MF}, s{S_CG}, 1")
    slin(P_OUT, 0 if role == "A" else 2048, (S_CHUNK, 1 << 19), (S_RH, 1 << 18), (S_CG, 256), (S_CH, 128), (S_MF, 1 << 17))
    A(f"s_xor_b32 s{P_OUT2}, s{P_OUT}, {1 << 17:#x}")
    slin(P_TAGSEL, 0, (S_CHUNK, 256), (S_CG, 16), (S_WAVE, 1))
    A(f"s_and_b32 s{ST}, s{S_CHUNK}, 3")
    A(f"s_lshl_b32 s{ST}, s{ST}, 1")
    A(f"s_mov_b32 s{KAP[0]}, s{S_CG}")
    for j in range(1, 8):
        A(f"s_add_u32 s{ST+1}, s{ST}, {j-1}")
        A(f"s_cmp_ge_u32 s{ST+1}, 7")
        A(f"s_addc_u32 s{ST+1}, s{ST+1}, 1")
        A(f"s_add_u32 s{ST+1}, s{ST+1}, s{S_CG}")
        A(f"s_and_b32 s{KAP[j]}, s{ST+1}, 7")
    if OPT.get("tlb", 1):
        A(f"v_and_b32 v9, 15, v{V_LANE}")
        A("v_lshlrev_b32 v9, 20, v9")
        A(f"buffer_load_dword v254, v9, s[{SWS}:{SWS+3}], 0 offen offset:2048")
        A(f"buffer_load_dword v254, v9, s[{SOUT}:{SOUT+3}], 0 offen")
        A(f"buffer_load_dword v254, v9, s[{SW2}:{SW2+3}], 0 offen")
    A(f"v_lshlrev_b32 v{V_LIN}, 4, v{V_LANE}")
    A(f"v_mov_b32 v{V_L0}, {OOB:#x}")
    A(f"v_cmp_eq_u32 vcc, 0, v{V_LANE}")
    A(f"v_bfe_u32 v9, v{V_LANE}, 1, 4")
    A("v_lshlrev_b32 v9, 2, v9")
    A(f"v_lshl_add_u32 v9, v{V_LANE}, 6, v9")
    A(f"v_add_u32 v{V_CHK}, s{S_M0W if role == 'A' else S_M0W2}, v9")
    if not HAND:
        A(f"v_lshlrev_b32 v{V_CHK}, 2, v{V_N}")
        slin(P_FLAGB, WS_FLAG, (S_GRP, 128))
        slin(P_FLW, 0, (S_CG, 16), (S_WAVE, 4), (P_FLAGB, 1))
        A(f"s_getreg_b32 s{S_XW}, hwreg(HW_REG_XCC_ID, 0, 4)")
    A(f"v_lshlrev_b32 v{V_XPO}, 2, v4")
    A(f"v_cndmask_b32_e64 v{V_L0}, v{V_L0}, 0, vcc")
    A(f"v_lshlrev_b32 v{V_OUTO}, 14, v{V_G}")
    A(f"v_lshl_add_u32 v{V_OUTO}, v{V_N}, 2, v{V_OUTO}")
    slin(P_FLAGO, 0, (S_CG, 4), (P_XCCB, 1))
    A("s_waitcnt lgkmcnt(0)")
    A(f"s_add_u32 s{S_TAG}, s{S_TAG}, 1")
    if OPT["stamps"]: A("s_mov_b32 s99, 0")
    if not HAND:
        A(f"s_lshl_b32 s{ST}, s{S_TAG}, 4")
        A(f"s_or_b32 s{S_XW}, s{S_XW}, s{ST}")
        A(f"v_mov_b32 v9, s{S_XW}")
        A(f"buffer_store_dword v9, v{V_L0}, s[{SWS}:{SWS+3}], s{P_FLAGO} offen sc1")

def lds_b128_addrs(base_reg, wave_off_sreg, const, nsets):
    A(f"v_bfe_u32 v9, v{V_N}, 1, 3")
    A(f"v_xor_b32 v9, v9, v{V_G}")
    A("v_lshlrev_b32 v9, 4, v9")
    A(f"v_lshl_add_u32 v9, v{V_N}, 7, v9")
    A(f"v_add_u32 v9, s{wave_off_sreg}, v9")
    if const: A(f"v_add_u32 v9, {const:#x}, v9")
    for ks in range(4):
        A(f"v_xor_b32 v{base_reg+ks}, {32*ks}, v9")
    for st in range(1, nsets):
        for ks in range(4): A(f"v_add_u32 v{base_reg+4*st+ks}, {st*0x10000:#x}, v{base_reg+ks}")

def rdy_load(reg, dummy=9):
    if not HAND: A(f"buffer_load_dword v{dummy}, v{V_CHK}, s[{SWS}:{SWS+3}], s{P_FLAGB} offen sc1")
    A(f"buffer_load_dword v{reg}, v{V_XPO}, s[{SWS}:{SWS+3}], s{P_XCCB} offen sc1")
def rdy_check(dst, reg):
    if HAND: A(f"v_xor_b32 v{dst}, s{S_TAG}, v{reg}")
    else:
        A(f"v_xor_b32 v{reg}, s{S_XW}, v{reg}")
        A(f"v_lshrrev_b32 v{dst}, 4, v{reg}")
def rdy_store():
    if HAND: A(f"buffer_store_dword v11, v{V_L0}, s[{SWS}:{SWS+3}], s{P_FLAGO} offen sc1")
def xcc_decide(reg):
    if HAND: return
    A(f"v_cmp_ne_u32 vcc, 0, v{reg}")
    A("s_cmp_lg_u64 vcc, 0")
    A(f"s_cselect_b32 s{S_SLOW}, 1, 0")
def flag_store():
    slow, join = lab("slow"), lab("join")
    A(f"s_cmp_lg_u32 s{S_SLOW}, 0")
    A(f"s_cbranch_scc1 {slow}")
    A(f"buffer_store_dword v11, v{V_L0}, s[{SWS}:{SWS+3}], s{P_FLW} offen")
    A.label(join)
    def later():
        A.label(slow)
        A(f"buffer_store_dword v11, v{V_L0}, s[{SWS}:{SWS+3}], s{P_FLW} offen sc1")
        A(f"s_branch {join}")
    DEFER.append(later)
def flag_poll():
    poll(lambda: A(f"buffer_load_dword v13, v{V_CHK}, s[{SWS}:{SWS+3}], s{P_FLAGB} offen sc1"),
         lambda: A(f"v_cmp_ne_u32 s[{S_FAIL}:{S_FAIL+1}], s{S_TAG}, v13"))

DEFER = []
def make_verify(pieces, slot, second):
    retry, back = lab("retry"), lab("back")
    def reads():
        A(f"v_add_u32 v9, {slot*SLOT:#x}, v{V_CHK}")
        A("ds_read_b32 v13, v9")
        A(f"ds_read_b32 v14, v9 offset:{second}")
    def cmp():
        A("v_max_u32 v13, v13, v14")
        A("v_cmp_eq_u32 vcc, -1, v13")
    def branch():
        A("s_cmp_lg_u64 vcc, 0")
        A(f"s_cbranch_scc1 {retry}")
        A.label(back)
    def later():
        top, done = lab("rl"), lab("rd")
        A.label(retry)
        A.hist = []
        A(f"s_mov_b32 s{S_SM0}, m0")
        A(f"s_mov_b32 s{S_CNT}, {SPIN_LIMIT}")
        A.label(top)
        run(pieces(S_RS))
        A("s_waitcnt vmcnt(0)")
        A("ds_read_b32 v13, v9")
        A(f"ds_read_b32 v14, v9 offset:{second}")
        A("s_waitcnt lgkmcnt(0)")
        cmp()
        A("s_cmp_eq_u64 vcc, 0")
        A(f"s_cbranch_scc1 {done}")
        A(f"s_sub_u32 s{S_CNT}, s{S_CNT}, 1")
        A(f"s_cbranch_scc0 {top}")
        A.label(done)
        if OPT["stamps"]:
            A(f"s_sub_u32 s{S_CNT}, {SPIN_LIMIT + 1}, s{S_CNT}")
            A(f"s_add_u32 s99, s99, s{S_CNT}")
        A(f"s_mov_b32 m0, s{S_SM0}")
        A(f"s_branch {back}")
    DEFER.append(later)
    return reads, cmp, branch

def tag_update(role):
    skip = lab("notag")
    A(f"s_cmp_eq_u32 s{P_TAGSEL}, {(15 if role == 'A' else 0) << 8}")
    A(f"s_cbranch_scc0 {skip}")
    A(f"buffer_store_dword v11, v{V_L0}, s[{SWS}:{SWS+3}], 0 offen offset:{WS_TAGA if role == 'A' else WS_TAGB} sc1")
    A.label(skip)

def out_stores(acc, ph):
    def mk(r):
        def f():
            row = 8 * (r >> 2) + (r & 3)
            A(f"s_add_u32 s{ST+1}, s{P_OUT+ph}, {row*4096}")
            A(f"buffer_store_dword v{acc+16*ph+r}, v{V_OUTO}, s[{SOUT}:{SOUT+3}], s{ST+1} offen {OUTF}")
        return f
    return [mk(r) for r in range(16)]

SCHED = {
    0: ({0: [2, 3], 1: [4], 2: [5], 3: [6], 4: [7]}, 5, {0: "all"}),
    1: ({i: [i + 2] for i in range(6)}, 6, {i: "front" for i in range(6)}),
    2: ({0: [2], 1: [3], 2: [4], 3: [5, 6], 4: [7]}, 5, {3: "all"}),
    3: ({0: [2], 1: [3], 2: [4, 5], 3: [6], 4: [7]}, 5, {2: "all"}),
    4: ({0: [2], 1: [3], 2: [4], 3: [5], 4: [6], 5: [7]}, 6, {2: "front", 3: "front", 4: "front", 5: "front"}),
    5: ({0: [2], 1: [3, 4], 2: [5], 3: [6], 4: [7]}, 5, {1: "all"}),
    6: ({i: [i + 3] for i in range(5)}, 5, {}),
    7: ({i: [i + 3] for i in range(5)}, 5, {0: "front", 1: "front"}),
}[OPT.get("sched", 0)]
EARLY = OPT.get("sched", 0) >= 6
NPRE = OPT.get("npre", 4)
XST = SCHED[1]
def g1_gaps(n, busy):
    i = n >> 2
    if SCHED[2].get(i) in ("all", "front") or i in busy: return (0, 1, 2, 3)
    return (2, 3)
OUTF = {0: "sc1", 1: "sc1 nt", 2: "sc0 sc1", 3: "nt", 4: "", 5: "sc0 sc1 nt"}[OPT.get("outf", 0)]
XF = "nt " if OPT["xnt"] else ""
PLF = {0: "sc1 ", 1: "", 2: "sc0 ", 3: "nt "}[OPT.get("plf", 0)]

def role_A():
    V_AX, V_AW = 24, 32
    V_GO, V_SCW = 44, 3
    V_XF, V_WF = 48, 64
    URE, UIM = 80, 112
    ACC2 = 144
    HP = 176
    XS, DG, V_GE = 176, 192, 200
    V_PUB, V_XSO, V_HSO = 204, 205, 223
    C_LAM, C_M1, C_M2, C_L, C_MQ, C_LQ, C_C2 = 208, 210, 212, 214, 216, 218, 220
    C_DSK = 222
    T0 = 224
    P_SAB, P_SAO, P_XS0, P_XS1 = P0, P0 + 1, P0 + 2, P0 + 3
    code_prefetch()
    A("v_lshrrev_b32 v9, 1, v3")
    A("v_xor_b32 v9, v9, v4")
    A("v_lshlrev_b32 v9, 4, v9")
    A("v_lshrrev_b32 v10, 2, v3")
    A("v_lshlrev_b32 v10, 5, v10")
    A("v_and_b32 v11, 1, v3")
    A("v_lshl_add_u32 v10, v11, 4, v10")
    A("v_bfe_u32 v11, v3, 1, 1")
    A("v_add_u32 v10, v10, v11")
    A("v_lshl_add_u32 v10, v10, 10, v9")
    slin(ST, 0, (S_CHUNK, 1 << 17), (S_RH, 1 << 16), (S_CH, 1 << 13))
    A(f"v_add_u32 v{V_OX}, s{ST}, v10")
    A(f"v_xor_b32 v11, 64, v{V_OX}")
    A(f"v_add_u32 v{V_OX+1}, 1024, v11")
    A(f"v_add_u32 v{V_OX+2}, 2048, v{V_OX}")
    A(f"v_add_u32 v{V_OX+3}, 3072, v11")
    A("v_lshl_add_u32 v10, v3, 10, v9")
    slin(ST, 0, (S_CG, 1 << 16), (S_CH, 1 << 15))
    A(f"v_add_u32 v{V_OW}, s{ST}, v10")
    A(f"v_xor_b32 v11, 64, v{V_OW}")
    A(f"v_add_u32 v{V_OW+1}, 7168, v11")
    A(f"v_add_u32 v{V_OW+2}, {2*7168}, v{V_OW}")
    A(f"v_add_u32 v{V_OW+3}, {3*7168}, v11")
    slin(ST, 0, (S_CG, 128), (S_CH, 64))
    A(f"v_lshl_add_u32 v14, v{V_N}, 1, s{ST}")
    A(f"s_cmp_eq_u32 s{S_RH}, 0")
    A("s_waitcnt lgkmcnt(0)")
    A(f"s_cselect_b32 s{SW}, s{K_BRE}, s{K_BIM}")
    A(f"s_cselect_b32 s{SW+1}, s{K_BRE+1}, s{K_BIM+1}")
    A(f"s_cselect_b32 s{SW2}, s{K_CRE}, s{K_CIM}")
    A(f"s_cselect_b32 s{SW2+1}, s{K_CRE+1}, s{K_CIM+1}")
    A(f"s_mov_b32 s{SW+2}, 0x80000")
    A(f"s_mov_b32 s{SW+3}, 0x20000")
    stamp(1)
    A(f"s_load_dword s{S_TAG}, s[{K_WS}:{K_WS+1}], {WS_TAGA}")
    srd(SX, K_AX, 0x200000)
    tok = {}
    def g1_pieces(i):
        slot = i & 3
        return (dma_pieces(V_OW, SW, ST + 8, slot * SLOT, pre=lambda: rot_soff(ST + 8, i, shift=7, rot=S_ROT1)) +
                dma_pieces(V_OX, SX, ST + 8, slot * SLOT + 16384, post=lambda: tok.__setitem__(i, A.vm), flags=XF))
    CLDS = {1: 4 * SLOT, 2: 4 * SLOT + 16384, 0: 0, 3: 16384, 4: SLOT, 5: SLOT + 16384, 6: 2 * SLOT, 7: 2 * SLOT + 16384}
    CORD = [1, 2, 0, 3, 4, 5, 6, 7]
    def c_pieces(st):
        return dma_pieces(V_OW, SW2, ST + 9, CLDS[st], pre=lambda: A(f"s_lshl_b32 s{ST+9}, s{KAP[st]}, 7"))
    A(f"global_load_ushort v{T0}, v14, s[{K_LRE}:{K_LRE+1}]")
    A(f"global_load_ushort v{T0+1}, v14, s[{K_LIM}:{K_LIM+1}]")
    A(f"global_load_ushort v{T0+2}, v14, s[{K_LDT}:{K_LDT+1}]")
    A(f"global_load_ushort v{C_DSK}, v14, s[{K_DSK}:{K_DSK+1}]")
    tok_small = A.vm
    run(g1_pieces(0))
    A(f"s_mov_b32 s{SW2+2}, 0x80000")
    A(f"s_mov_b32 s{SW2+3}, 0x20000")
    late = g1_pieces(1)
    if EARLY:
        run(late[:NPRE]); late = late[NPRE:] + g1_pieces(2)
    else:
        run(late); late = []
    if OPT.get("wtouch", 0):
        slin(ST, 0, (S_CG, 1 << 16), (S_CHUNK, 4096), (S_CH, 2048))
        A(f"v_and_b32 v9, 15, v{V_LANE}")
        A("v_lshlrev_b32 v9, 7, v9")
        A(f"buffer_load_dword v254, v9, s[{SW2}:{SW2+3}], s{ST} offen")
    stamp(2)
    cut("A")
    common_setup("A")
    slin(P_SAB, WS_SA, (S_CG, 1 << 14), (S_CH, 512))
    slin(P_SAO, 0, (S_CHUNK, 1024), (P_SAB, 1))
    slin(P_XS0, 0, (S_CHUNK, 1 << 17), (S_RH, 1 << 16), (S_CG, 128), (S_CH, 64), (S_MF, 32768))
    A(f"s_xor_b32 s{P_XS1}, s{P_XS0}, 32768")
    slin(P_ACTW, WS_H, (S_CHUNK, 1 << 18), (S_CG, 1 << 15), (S_WAVE, 4096))
    slin(P_ACTR, WS_H, (S_CHUNK, 1 << 18), (S_WAVE, 4096), (S_MF, 16384))
    A(f"s_xor_b32 s{P_ACTR2}, s{P_ACTR}, 16384")
    A(f"v_lshlrev_b32 v9, 14, v{V_G}")
    A(f"v_lshl_add_u32 v{V_HSO}, v{V_N}, 4, v9")
    for r in range(4): A(f"v_mov_b32 v{T0+24+r}, -1")
    clears = [f"buffer_store_dwordx4 {vr(T0+24,4)}, v{V_HSO}, s[{SWS}:{SWS+3}], s{P_ACTW} offen offset:{k*512} sc1" for k in range(8)]
    A(f"v_mov_b32 v{V_TAG}, s{S_TAG}")
    A(f"v_mov_b32 v11, s{S_TAG}")
    A(f"s_lshl_b32 s{ST}, s{S_RH}, 13")
    lds_b128_addrs(V_AX, ST, 16384, 2)
    A(f"s_lshl_b32 s{ST}, s{S_CH}, 12")
    lds_b128_addrs(V_AW, ST, 0, 3)
    A(f"v_lshlrev_b32 v{V_XSO}, 10, v{V_N}")
    A(f"v_lshl_add_u32 v{V_XSO}, v{V_G}, 5, v{V_XSO}")
    SCR = 3 * SLOT
    slin(ST, SCR, (S_CH, 256))
    A(f"v_lshl_add_u32 v4, v{V_N}, 3, s{ST}")
    A(f"s_lshl_b32 s{ST}, s{S_RH}, 10")
    A(f"v_lshl_add_u32 v3, v{V_G}, 9, v4")
    A(f"v_add_u32 v3, s{ST}, v3")
    A(f"v_lshlrev_b32 v13, 4, v{V_N}")
    A(f"v_mov_b32 v14, {OOB:#x}")
    A(f"s_or_b64 s[{ST+2}:{ST+3}], s[{S_MG}:{S_MG+1}], s[{S_MRH}:{S_MRH+1}]")
    A(f"v_cndmask_b32_e64 v{V_PUB}, v13, v14, s[{ST+2}:{ST+3}]")
    if OPT.get("prew", 1):
        for r in range(4): A(f"v_subrev_u32 v{T0+20+r}, 1, v{V_TAG}")
        A(f"buffer_store_dwordx4 {vr(T0+20,4)}, v{V_PUB}, s[{SWS}:{SWS+3}], s{P_SAO} offen sc1")
    A(f"s_lshl_b32 s{ST+4}, s{S_RH}, 3")
    A(f"s_sub_u32 s{ST+4}, s{S_CHUNK}, s{ST+4}")
    A(f"s_sub_u32 s{ST+4}, s{ST+4}, 1")
    A(f"v_lshlrev_b32 v9, 2, v{V_G}")
    A(f"v_sub_u32 v9, s{ST+4}, v9")
    for i in range(4):
        A(f"v_subrev_u32 v{V_GO+i}, {i}, v9")
        A(f"v_cmp_gt_i32 vcc, 0, v{V_GO+i}")
        A(f"v_lshl_add_u32 v{V_GO+i}, v{V_GO+i}, 10, v13")
        A(f"v_cndmask_b32_e64 v{V_GE+i}, v{V_TAG}, 0, vcc")
        A(f"v_cndmask_b32 v{V_GO+i}, v{V_GO+i}, v14, vcc")
    A.wait_vm(tok_small)
    lre, lim, ldt = T0, T0 + 1, T0 + 2
    A(f"v_and_b32 v9, 1, v{V_N}")
    A("v_lshlrev_b32 v9, 4, v9")
    A(f"v_lshlrev_b32 v{C_DSK}, v9, v{C_DSK}")
    A(f"v_lshrrev_b32 v9, 1, v{V_N}")
    A(f"v_lshlrev_b32 v13, 3, v{V_G}")
    A("v_sub_u32 v9, v9, v13")
    for q in range(8):
        A(f"v_cmp_eq_u32 vcc, {q}, v9")
        A(f"v_cndmask_b32_e64 v{DG+q}, 0, v{C_DSK}, vcc")
    for r in (lre, lim, ldt): A(f"v_lshlrev_b32 v{r}, 16, v{r}")
    A(f"v_mul_f32 v{ldt}, s{S_L2E}, v{ldt}")
    A(f"v_exp_f32 v{ldt}, v{ldt}")
    A(f"v_cvt_pk_bf16_f32 v{ldt}, v{ldt}, v{ldt}")
    A(f"v_lshlrev_b32 v{ldt}, 16, v{ldt}")
    A(f"v_mul_f32 v{T0+4}, v{ldt}, v{lre}")
    A(f"v_mul_f32 v{T0+5}, v{ldt}, v{lim}")
    A(f"v_mul_f32 v{T0+4}, s{S_L2E}, v{T0+4}")
    A(f"v_exp_f32 v{T0+4}, v{T0+4}")
    A(f"v_mul_f32 v{T0+5}, {INV2PI:#x}, v{T0+5}")
    A(f"v_rndne_f32 v{T0+6}, v{T0+5}")
    A(f"v_sub_f32 v{T0+5}, v{T0+5}, v{T0+6}")
    A(f"v_cos_f32 v{T0+6}, v{T0+5}")
    A(f"v_sin_f32 v{T0+7}, v{T0+5}")
    A(f"v_mul_f32 v{C_LAM}, v{T0+4}, v{T0+6}")
    A(f"v_mul_f32 v{C_LAM+1}, v{T0+4}, v{T0+7}")
    A(f"v_add_f32 v{T0+4}, -1.0, v{C_LAM}")
    A(f"v_mul_f32 v{T0+5}, v{lre}, v{lre}")
    A(f"v_fmac_f32 v{T0+5}, v{lim}, v{lim}")
    A(f"v_rcp_f32 v{T0+5}, v{T0+5}")
    A(f"v_mul_f32 v{T0+6}, v{T0+4}, v{lre}")
    A(f"v_fmac_f32 v{T0+6}, v{C_LAM+1}, v{lim}")
    A(f"v_mul_f32 v{T0+7}, v{C_LAM+1}, v{lre}")
    A(f"v_fma_f32 v{T0+7}, -v{T0+4}, v{lim}, v{T0+7}")
    A(f"v_add_f32 v{T0+5}, v{T0+5}, v{T0+5}")
    A(f"v_mul_f32 v{C_C2}, v{T0+6}, v{T0+5}")
    A(f"v_mul_f32 v{C_C2+1}, v{T0+7}, v{T0+5}")
    pa, pb, tt = T0 + 8, T0 + 10, T0 + 12
    cmul(pa, C_LAM, C_LAM, tt)
    cmul(pb, pa, pa, tt)
    cmul(pa, pb, pb, tt)
    cmul(C_M1, pa, pa, tt)
    cmul(C_M2, C_M1, C_M1, tt)
    cmul(pa, C_M2, C_M2, tt)
    cmul(C_L, pa, pa, tt)
    def sel_pair(dst, src, mask):
        A(f"v_cndmask_b32_e64 v{dst}, 1.0, v{src}, s[{mask}:{mask+1}]")
        A(f"v_cndmask_b32_e64 v{dst+1}, 0, v{src+1}, s[{mask}:{mask+1}]")
    sel_pair(T0 + 14, C_M2, S_MG)
    sel_pair(T0 + 16, pa, S_MRH)
    cmul(C_MQ, T0 + 14, T0 + 16, tt)
    cmul(pa, C_L, C_L, tt)
    cmul(pb, pa, pa, tt)
    cmul(pa, pb, pb, tt)
    sel_pair(T0 + 14, pb, S_MG)
    sel_pair(T0 + 16, pa, S_MRH)
    cmul(C_LQ, T0 + 14, T0 + 16, tt)
    stamp(3)
    run(late)
    def rd(n):
        i, ks = n >> 2, n & 3
        slot, buf = i & 3, n & 1
        s2_, off = slot >> 1, (slot & 1) * SLOT
        x = [f"ds_read_b128 {vr(V_XF+buf*8+m*4,4)}, v{V_AX+4*s2_+ks} offset:{off+m*4096}" for m in range(2)]
        w = [f"ds_read_b128 {vr(V_WF+buf*8+ri*4,4)}, v{V_AW+4*s2_+ks} offset:{off+ri*8192}" for ri in range(2)]
        return [x[0], w[0], w[1], x[1]]
    def mm(n):
        buf = n & 1
        r = []
        for m, ri in ((0, 0), (0, 1), (1, 1), (1, 0)):
            d = vr((URE, UIM)[ri] + 16 * m, 16)
            r.append(mf(d, vr(V_XF + buf * 8 + m * 4, 4), vr(V_WF + buf * 8 + ri * 4, 4), d if n else "0"))
        return r
    fill = []
    def xs_load(m, s):
        return lambda: A(f"buffer_load_dwordx4 {vr(XS+8*m+4*s,4)}, v{V_XSO}, s[{SX}:{SX+3}], s{P_XS0+m} offen offset:{16*s}")
    def on_step(n):
        i, ks = n >> 2, n & 3
        if ks == 0 and OPT.get("g1st") and i: stamp(16 + i)
        if ks == 0:
            for st in SCHED[0].get(i, []): fill.extend(g1_pieces(st))
            if i == XST:
                fill.extend(c_pieces(1) + c_pieces(2))
            elif i == XST + 1:
                fill.extend([xs_load(m, s) for m in range(2) for s in range(2)])
                if OPT.get("ptouch", 0):
                    fill.extend([f"buffer_load_dword v254, v{V_GO+k}, s[{SWS}:{SWS+3}], s{P_SAB} offen sc1" for k in range(4)])
                    fill.append(lambda: rdy_load(254, 254))
    A.wait_vm(tok[0])
    A("s_barrier")
    stamp(4)
    gemm_loop(32, rd, mm, lambda n: tok[n >> 2] if (n & 3) == 0 else None, (2, 2, 0, 0), lambda n: g1_gaps(n, ()), fill, on_step, end_barrier=True)
    assert not fill
    stamp(5)
    P = [T0, T0 + 4]
    def lam_bc(hi): return f"op_sel:[{hi},0,0] op_sel_hi:[{hi},1,1]"
    NEG = "neg_lo:[1,0,0] neg_hi:[1,0,0]"
    cur_re, cur_im = URE, UIM
    for s in range(1, 16):
        d = P[s & 1]
        A(f"v_pk_fma_f32 {vr(d,2)}, {vr(C_LAM,2)}, {vr(cur_im,2)}, {vr(URE+2*s,2)} {lam_bc(1)} {NEG}")
        A(f"v_pk_fma_f32 {vr(d+2,2)}, {vr(C_LAM,2)}, {vr(cur_re,2)}, {vr(UIM+2*s,2)} {lam_bc(1)}")
        A(f"v_pk_fma_f32 {vr(d,2)}, {vr(C_LAM,2)}, {vr(cur_re,2)}, {vr(d,2)} {lam_bc(0)}")
        A(f"v_pk_fma_f32 {vr(d+2,2)}, {vr(C_LAM,2)}, {vr(cur_im,2)}, {vr(d+2,2)} {lam_bc(0)}")
        cur_re, cur_im = d, d + 2
    A0, BQ = T0 + 8, T0 + 10
    A(f"v_fma_f32 v{BQ}, v{C_M1}, v{cur_re}, v{cur_re+1}")
    A(f"v_fma_f32 v{BQ+1}, v{C_M1}, v{cur_im}, v{cur_im+1}")
    A(f"v_fma_f32 v{BQ}, -v{C_M1+1}, v{cur_im}, v{BQ}")
    A(f"v_fma_f32 v{BQ+1}, v{C_M1+1}, v{cur_re}, v{BQ+1}")
    A(f"ds_write_b64 v3, {vr(BQ,2)}")
    A(f"v_mov_b32 v{A0}, v{cur_re}")
    A(f"v_mov_b32 v{A0+1}, v{cur_im}")
    P2, P3, SS, tt = T0 + 20, T0 + 22, T0 + 24, T0 + 28
    A(f"v_mov_b32 v{SS+1}, s{S_TAG}")
    A(f"v_mov_b32 v{SS+3}, s{S_TAG}")
    def c2_bc(hi, n=3):
        return f"op_sel:[{hi},0,0] op_sel_hi:[{hi},1,1]" if n == 3 else f"op_sel:[{hi},0] op_sel_hi:[{hi},1]"
    cm = []
    for s in range(16):
        re, im, t = URE + 2 * s, UIM + 2 * s, T0 + 2 + 2 * (s & 1)
        cm += [f"v_pk_mul_f32 {vr(t,2)}, {vr(C_C2,2)}, {vr(re,2)} {c2_bc(1,2)} neg_lo:[1,0] neg_hi:[1,0]",
               f"v_pk_mul_f32 {vr(re,2)}, {vr(C_C2,2)}, {vr(re,2)} {c2_bc(0,2)}",
               f"v_pk_fma_f32 {vr(re,2)}, {vr(C_C2,2)}, {vr(im,2)}, {vr(re,2)} {c2_bc(1)} {NEG}",
               f"v_pk_fma_f32 {vr(im,2)}, {vr(C_C2,2)}, {vr(im,2)}, {vr(t,2)} {c2_bc(0)} {NEG}"]
    emit(cm[:8])
    if HAND: A.wait_both(tok["clr"], A.lg)
    else: A("s_waitcnt lgkmcnt(0)")
    A("s_barrier")
    B0 = T0 + 12
    for q in range(4):
        A(f"ds_read_b64 {vr(B0+2*q,2)}, v4 offset:{q*512}")
    emit(cm[8:24])
    A("s_waitcnt lgkmcnt(0)")
    cfma(P2, C_M2, B0, B0 + 2, tt)
    cfma(P3, C_M2, P2, B0 + 4, tt)
    cfma(tt, C_M2, P3, B0 + 6, tt)
    A(f"v_mov_b32 v{SS}, v{tt}")
    A(f"v_mov_b32 v{SS+2}, v{tt+1}")
    A(f"buffer_store_dwordx4 {vr(SS,4)}, v{V_PUB}, s[{SWS}:{SWS+3}], s{P_SAO} offen sc1")
    rdy_store()
    stamp(6)
    emit(cm[24:])
    LOC = T0 + 0
    for e in range(2):
        A(f"v_cndmask_b32_e64 v{T0+2+e}, 0, v{B0+e}, s[{S_MG}:{S_MG+1}]")
        A(f"v_cndmask_b32_e64 v{T0+4+e}, v{P2+e}, v{P3+e}, s[{S_MG}:{S_MG+1}]")
        A(f"v_cndmask_b32_e64 v{LOC+e}, v{T0+2+e}, v{T0+4+e}, s[{S_MRH}:{S_MRH+1}]")
    E0, F0, E1, F1 = T0 + 12, T0 + 14, T0 + 16, T0 + 18
    cfma(P2, C_M1, LOC, A0, tt)
    cmul(F1, C_C2, P2, tt)
    cmul(F0, C_C2, LOC, tt)
    cmul(E0, C_C2, C_MQ, tt)
    cmul(E1, E0, C_M1, tt)
    V_AH = V_AX
    A(f"v_bfe_u32 v9, v{V_LANE}, 4, 1")
    A(f"v_bfe_u32 v13, v{V_LANE}, 1, 1")
    A("v_lshl_add_u32 v9, v9, 1, v13")
    A(f"v_bfe_u32 v13, v{V_LANE}, 2, 2")
    A(f"v_lshl_add_u32 v13, v{V_G}, 3, v13")
    A("v_lshlrev_b32 v14, 2, v9")
    A("v_xor_b32 v13, v13, v14")
    A("v_lshlrev_b32 v13, 4, v13")
    A("v_lshl_add_u32 v13, v9, 9, v13")
    A(f"v_and_b32 v14, 1, v{V_LANE}")
    A("v_lshl_add_u32 v13, v14, 3, v13")
    A(f"s_lshl_b32 s{ST+2}, s{S_RH}, 13")
    A(f"v_add_u32 v{V_AH}, s{ST+2}, v13")
    A(f"v_xor_b32 v{V_AH+1}, 64, v{V_AH}")
    V_AO = T0 + 4
    A("v_lshl_add_u32 v13, v9, 9, v13")
    slin(ST + 2, 3 * SLOT, (S_RH, 16384), (S_MF, 512))
    A(f"v_add_u32 v{V_AO}, s{ST+2}, v13")
    A(f"v_xor_b32 v{V_AO+1}, 64, v{V_AO}")
    A(f"v_xor_b32 v{V_AO+2}, 0x200, v{V_AO}")
    A(f"v_xor_b32 v{V_AO+3}, 0x240, v{V_AO}")
    for st in (1, 2):
        A(f"v_add_u32 v{V_AH+2*st}, {st*0x10000:#x}, v{V_AH}")
        A(f"v_add_u32 v{V_AH+2*st+1}, {st*0x10000:#x}, v{V_AH+1}")
    CPRE = 2 + OPT.get('cpre', 6)
    for st in CORD[2:CPRE]: run(c_pieces(st))
    stamp(7)
    GD = 48
    def loads():
        for i in range(4):
            A(f"buffer_load_dwordx4 {vr(GD+4*i,4)}, v{V_GO+i}, s[{SWS}:{SWS+3}], s{P_SAB} offen sc1")
        rdy_load(14)
    def check():
        rdy_check(13, 14)
        for i in range(4):
            A(f"v_xor_b32 v{GD+4*i+1}, v{GD+4*i+1}, v{V_GE+i}")
            A(f"v_xor_b32 v{GD+4*i+3}, v{GD+4*i+3}, v{V_GE+i}")
            A(f"v_or3_b32 v13, v13, v{GD+4*i+1}, v{GD+4*i+3}")
        A(f"v_cmp_ne_u32 s[{S_FAIL}:{S_FAIL+1}], 0, v13")
    poll(loads, check)
    stamp(8)
    for i in range(4):
        A(f"v_mov_b32 v{GD+4*i+1}, v{GD+4*i+2}")
    h1, h2 = T0 + 20, T0 + 22
    cfma(h1, C_L, GD + 12, GD + 8, tt)
    cfma(h2, C_L, h1, GD + 4, tt)
    cfma(h1, C_L, h2, GD + 0, tt)
    cmul(h2, C_LQ, h1, tt)
    A(f"ds_write_b64 v3, {vr(h2,2)} offset:2048")
    for m in range(2):
        d = vr(ACC2 + 16 * m, 16)
        for s in range(2):
            A(mf(d, vr(XS + 8 * m + 4 * s, 4), vr(DG + 4 * s, 4), d if s else "0"))
    xcc_decide(14)
    for o in range(1, 4):
        A(f"v_xor_b32 v{V_GO+o}, {o*64}, v{V_HSO}")
    A("s_waitcnt lgkmcnt(0)")
    A("s_barrier")
    CQ = GD
    for q in range(4):
        A(f"ds_read_b64 {vr(CQ+2*q,2)}, v4 offset:{2048+q*512}")
    tq = A.lg
    def c_reads(st):
        s2_, off = CLDS[st] >> 16, CLDS[st] & 0xffff
        r = [None] * 8
        for ks in range(4):
            for ri in range(2):
                kap = (ks >> 1) * 4 + ri * 2 + (ks & 1)
                r[kap] = f"ds_read_b128 {ar((st*8+kap)*4,4)}, v{V_AW+4*s2_+ks} offset:{off+ri*8192}"
        return r
    A.wait_lg(tq)
    A(f"v_pk_add_f32 {vr(CQ,2)}, {vr(CQ,2)}, {vr(CQ+2,2)}")
    A(f"v_pk_add_f32 {vr(CQ+4,2)}, {vr(CQ+4,2)}, {vr(CQ+6,2)}")
    A(f"v_pk_add_f32 {vr(CQ,2)}, {vr(CQ,2)}, {vr(CQ+4,2)}")
    HR, HI = T0 + 20, T0 + 22
    A(f"v_fma_f32 v{HR}, v{E0}, v{CQ}, v{F0}")
    A(f"v_fma_f32 v{HR+1}, v{E1}, v{CQ}, v{F1}")
    A(f"v_fma_f32 v{HI}, -v{E0}, v{CQ+1}, -v{F0+1}")
    A(f"v_fma_f32 v{HI+1}, -v{E1}, v{CQ+1}, -v{F1+1}")
    A(f"v_fma_f32 v{HR}, -v{E0+1}, v{CQ+1}, v{HR}")
    A(f"v_fma_f32 v{HR+1}, -v{E1+1}, v{CQ+1}, v{HR+1}")
    A(f"v_fma_f32 v{HI}, -v{E0+1}, v{CQ}, v{HI}")
    A(f"v_fma_f32 v{HI+1}, -v{E1+1}, v{CQ}, v{HI+1}")
    pr, pi_ = HR, HI
    hst = []
    for hf in range(2):
        for s in range(8 * hf, 8 * hf + 8):
            re, im = URE + 2 * s, UIM + 2 * s
            emit([f"v_pk_fma_f32 {vr(re,2)}, {vr(C_LAM,2)}, {vr(pi_,2)}, {vr(re,2)} {lam_bc(1)}",
                  f"v_pk_fma_f32 {vr(im,2)}, {vr(C_LAM,2)}, {vr(pr,2)}, {vr(im,2)} {lam_bc(1)} {NEG}",
                  f"v_pk_fma_f32 {vr(re,2)}, {vr(C_LAM,2)}, {vr(pr,2)}, {vr(re,2)} {lam_bc(0)}",
                  f"v_pk_fma_f32 {vr(im,2)}, {vr(C_LAM,2)}, {vr(pi_,2)}, {vr(im,2)} {lam_bc(0)}"])
            pr, pi_ = re, im
        for ri in range(2):
            U = (URE, UIM)[ri]
            for z in range(2):
                o = 2 * z + hf
                d = HP + (ri * 4 + o) * 4
                for u in range(4):
                    s0 = 8 * hf + 2 * u
                    A(f"v_cvt_pk_bf16_f32 v{d+u}, v{U+2*s0+z}, v{U+2*s0+2+z}")
                A(f"buffer_store_dwordx4 {vr(d,4)}, v{V_GO+o if o else V_HSO}, s[{SWS}:{SWS+3}], s{P_ACTW} offen offset:{(ri*4+o)*512} sc1")
                hst.append((ri * 4 + o, A.vm))
    tok_h = A.vm
    stamp(9)
    HS = [3, 4, 0, 1, 3, 4, 0, 1]
    def h_pieces(G):
        r = []
        for sub in range(2):
            pos, ph = SEQ[2 * G + sub]
            r += dma_pieces(V_LIN, SWS, ST + 8, HS[G] * SLOT + sub * 16384,
                            pre=lambda pos=pos, ph=ph: (A(f"s_lshl_b32 s{ST+8}, s{KAP[pos]}, 15"), A(f"s_add_u32 s{ST+8}, s{ST+8}, s{P_ACTR+ph}")),
                            post=(lambda: tok.__setitem__(("h", G), A.vm)) if sub else None, flags=PLF, same_v=True)
        return r
    assert CPRE == 8
    call = sum([c_reads(st) for st in [0, 1, 2, 3, 4, 5, 6, 7]], [])
    HF = 48
    def rd2(n):
        G, q = n >> 2, n & 3
        slot, buf = HS[G], n & 1
        r = []
        for h in range(4):
            kap = 4 * (q & 1) + h
            off = (slot & 1) * SLOT + (q >> 1) * 16384 + (kap >> 2) * 4096 + ((kap >> 1) & 1) * 2048 + (kap & 1) * 256
            for j in range(2):
                if G == 0:
                    o2 = (kap >> 2) * 8192 + ((kap >> 1) & 1) * 4096 + (kap & 1) * 256
                    r.append(f"ds_read_b64_tr_b16 {vr(HF+buf*16+h*4+2*j,2)}, v{V_AO+2*(q>>1)+j} offset:{o2}")
                else:
                    r.append(f"ds_read_b64_tr_b16 {vr(HF+buf*16+h*4+2*j,2)}, v{V_AH+2*(slot>>1)+j} offset:{off}")
        return r
    def mm2(n):
        buf = n & 1
        pos, ph = SEQ[n >> 1]
        d = vr(ACC2 + 16 * ph, 16)
        return [mf(d, vr(HF + buf * 16 + h * 4, 4), ar((8 * pos + 4 * (n & 1) + h) * 4, 4), d) for h in range(4)]
    A("s_barrier")
    slin(ST + 2, 3 * SLOT, (S_WAVE, 8192))
    A(f"v_add_u32 v{V_GO}, s{ST+2}, v{V_LIN}")
    for o in range(1, 4): A(f"v_xor_b32 v{V_GO+o}, {o*64}, v{V_GO}")
    for p in range(8):
        A(f"ds_write_b128 v{V_GO+(p&3)}, {vr(HP+4*p,4)} offset:{p*1024}")
    emit(call[:8])
    A("s_waitcnt lgkmcnt(0)")
    A("s_barrier")
    cf = call[8:]
    gemm_loop(4, rd2, mm2, lambda n: None, (3, 3, 2, 0), (2, 3), cf)
    emit(cf[:24]); cf = cf[24:]
    A.wait_vm(tok_h)
    flag_store()
    stamp(10)
    emit(cf)
    A("s_waitcnt lgkmcnt(0)")
    A("s_barrier")
    flag_poll()
    stamp(11)
    run(h_pieces(1) + h_pieces(2))
    stamp(12)
    fill = []
    def on_step2(n):
        G, q = n >> 2, n & 3
        if q == 0:
            if G == 1: fill.extend(h_pieces(3) + h_pieces(4))
            elif G + 3 < 8: fill.extend(h_pieces(G + 3))
            elif G == 5: fill.extend(out_stores(ACC2, 0))
    A.wait_vm(tok[("h", 1)])
    A("s_barrier")
    stamp(13)
    gemm_loop(32, rd2, mm2, lambda n: tok[("h", n >> 2)] if (n & 3) == 0 else None, (3, 3, 2, 0),
              lambda n: (0, 1, 2, 3) if n < 8 else (2, 3), fill, on_step2, start=4)
    assert not fill
    stamp(14)
    run(out_stores(ACC2, 1))
    tag_update("A")
    stamp(15)
    finish()

def role_B():
    V_OO = 24
    V_AX, V_AT = 28, 36
    V_SW, V_SR, V_P2, V_G2B, V_PB0, V_PB1, V_G1, V_GZ, V_G2, V_P2Z = 39, 40, 41, 42, 43, 44, 45, 46, 47, 253
    S_WPH, V_WPO = P0 + 12, 252
    IDF = 216
    V_WF = 48
    KACC, VACC, PK, KV, WPH = 64, 96, 128, 192, 224
    T0 = 232
    P_P1O, P_P1G, P_P2O, P_P2G, P_MSK = P0 + 1, P0 + 2, P0 + 8, P0 + 9, P0 + 10
    S_PART = 57
    WPS = OPT.get('wps', 1)
    QE = OPT.get('qe', 0)
    code_prefetch()
    A("v_lshrrev_b32 v9, 1, v3")
    A("v_xor_b32 v9, v9, v4")
    A("v_lshlrev_b32 v9, 4, v9")
    A("v_lshl_add_u32 v10, v3, 10, v9")
    slin(ST, 0, (S_CHUNK, 1 << 17), (S_WAVE, 1 << 15))
    A(f"v_add_u32 v{V_OX}, s{ST}, v10")
    A(f"v_xor_b32 v11, 64, v{V_OX}")
    A(f"v_add_u32 v{V_OX+1}, 7168, v11")
    A(f"v_add_u32 v{V_OX+2}, {2*7168}, v{V_OX}")
    A(f"v_add_u32 v{V_OX+3}, {3*7168}, v11")
    A("v_bfe_u32 v9, v3, 1, 1")
    A("v_lshlrev_b32 v9, 2, v9")
    A("v_xor_b32 v9, v9, v4")
    A("v_lshlrev_b32 v9, 4, v9")
    A(f"s_lshl_b32 s{ST}, s{S_CG}, 7")
    A(f"v_add_u32 v9, s{ST}, v9")
    A(f"s_lshl_b32 s{ST+1}, s{S_CH}, 5")
    A(f"v_add_u32 v10, s{ST+1}, v3")
    A("v_mul_u32_u24 v11, 3072, v10")
    A(f"v_add_u32 v{V_OW}, v11, v9")
    for p in range(1, 4): A(f"v_add_u32 v{V_OW+p}, {p*(8*3072-1024)}, v{V_OW}")
    A(f"v_lshl_add_u32 v{V_OO}, v10, 10, v9")
    slin(S_PART, 1024, (S_RH, 1024))
    A("s_waitcnt lgkmcnt(0)")
    srd(SW, K_WQKV, 0x180000)
    stamp(1)
    A(f"s_load_dword s{S_TAG}, s[{K_WS}:{K_WS+1}], {WS_TAGB}")
    srd(SX, K_BX, 0x200000)
    tok = {}
    def g1_pieces(i):
        slot = i & 3
        return (dma_pieces(V_OW, SW, ST + 8, slot * SLOT, pre=lambda: rot_soff(ST + 8, i, mul=196608, plus=S_PART, rot=S_ROT1)) +
                dma_pieces(V_OX, SX, ST + 10, slot * SLOT + 16384, pre=lambda: rot_soff(ST + 10, i, shift=7, rot=S_ROT1),
                           post=lambda: tok.__setitem__(i, A.vm), flags=XF))
    QSLOT = [4, 0]; OSLOT = [1, 2]
    def q_pieces(st):
        return dma_pieces(V_OW, SW, ST + 9, QSLOT[st >> 1] * SLOT + (st & 1) * 16384,
                          pre=lambda: rot_soff(ST + 9, 2 * st, mul=196608, extra_sreg=S_RH, rot=S_ROT1), post=lambda: tok.__setitem__(("q", st), A.vm))
    OPAIR = [(1, 2), (0, 3), (4, 5), (6, 7)]
    OLDS = {}
    for st_, pr_ in enumerate(OPAIR):
        for e_ in range(2): OLDS[pr_[e_]] = OSLOT[st_ >> 1] * SLOT + (st_ & 1) * 16384 + e_ * 8192
    def o_pieces(st):
        def pre():
            A(f"s_cmp_eq_u32 s{S_RH}, 0")
            A(f"s_cselect_b32 s{ST+9}, s{KAP[OPAIR[st][0]]}, s{KAP[OPAIR[st][1]]}")
            A(f"s_lshl_b32 s{ST+9}, s{ST+9}, 16")
        return dma_pieces(V_OO, SW2, ST + 9, OSLOT[st >> 1] * SLOT + (st & 1) * 16384, pre=pre)
    run(g1_pieces(0))
    wpl = []
    for hh in range(2):
        for u in range(4):
            d0 = (0, 2, 8, 10)[u]
            wpl.append(f"global_load_ushort v{WPH+4*hh+u}, v{V_WPO}, s[{S_WPH}:{S_WPH+1}] offset:{hh*512+d0*32}")
            wpl.append(f"global_load_ushort v{T0+8+4*hh+u}, v{V_WPO}, s[{S_WPH}:{S_WPH+1}] offset:{hh*512+(d0+1)*32}")
    srd(SW2, K_WO, 0x80000)
    late = g1_pieces(1)
    if EARLY:
        run(late[:NPRE]); late = late[NPRE:] + g1_pieces(2)
    else:
        run(late); late = []
    if OPT.get("wtouch", 0):
        slin(ST, 0, (S_CHUNK, 32), (S_WAVE, 8))
        A(f"v_add_u32 v9, s{ST}, v4")
        A("v_mul_u32_u24 v10, 3072, v9")
        A("v_lshlrev_b32 v9, 10, v9")
        A(f"s_lshl_b32 s{ST}, s{S_CG}, 7")
        A(f"buffer_load_dword v254, v10, s[{SW}:{SW+3}], s{ST} offen")
        A(f"buffer_load_dword v254, v9, s[{SW2}:{SW2+3}], s{ST} offen")
    stamp(2)
    cut("B")
    A(f"s_mov_b64 s[{S_WPH}:{S_WPH+1}], s[{K_WPHI}:{K_WPHI+1}]")
    common_setup("B")
    for p in range(1, 4): A(f"v_add_u32 v{V_OO+p}, {p*7168}, v{V_OO}")
    A(f"v_lshrrev_b32 v9, 3, v{V_N}")
    A(f"v_and_b32 v13, 3, v{V_N}")
    A("v_lshl_add_u32 v9, v9, 2, v13")
    A("v_lshlrev_b32 v9, 1, v9")
    A(f"v_lshl_add_u32 v9, v{V_G}, 7, v9")
    slin(ST, 0, (S_CG, 2048), (S_CH, 1024))
    A(f"v_add_u32 v{V_WPO}, s{ST}, v9")
    slin(ST, 0, (S_CG, 512), (S_CH, 256), (S_CHUNK, 2), (S_RH, 1))
    slin(P_P1O, WS_P1, (ST, 640))
    slin(ST, 0, (S_CG, 16), (S_CHUNK, 1))
    slin(P_P2O, WS_P2, (ST, 640))
    slin(P_P1G, WS_P1, (ST, 32 * 640))
    for k in range(1, 4): A(f"s_add_u32 s{P_P1G+k}, s{P_P1G}, {8*k*640}")
    slin(ST, 0, (S_CG, 16), (S_CH, 8))
    slin(P_P2G, WS_P2, (ST, 640))
    A(f"s_mov_b32 s{P_MSK}, 0xffffff00")
    slin(P_ACTW, WS_O, (S_CHUNK, 1 << 17), (S_CG, 1 << 14), (S_RH, 1 << 12), (S_CH, 1 << 11))
    A(f"s_add_u32 s{P_ACTW2}, s{P_ACTW}, 8192")
    slin(P_ACTR, WS_O, (S_CHUNK, 1 << 17), (S_MF, 8192), (S_WAVE, 2048))
    A(f"s_lshl_b32 s{S_M0W2}, s{S_WAVE}, 11")
    A(f"s_xor_b32 s{P_ACTR2}, s{P_ACTR}, 8192")
    for r in range(4): A(f"v_mov_b32 v{T0+16+r}, -1")
    clears = [f"buffer_store_dwordx4 {vr(T0+16,4)}, v{V_LIN}, s[{SWS}:{SWS+3}], s{P_ACTW+(k>>1)} offen offset:{(k&1)*1024} sc1" for k in range(4)]
    A(f"s_and_b32 s{ST}, s{S_TAG}, 0xff")
    A(f"v_mov_b32 v{V_TAG}, s{ST}")
    A(f"v_mov_b32 v11, s{S_TAG}")
    A(f"s_lshl_b32 s{ST}, s{S_RH}, 13")
    lds_b128_addrs(V_AX, ST, 16384, 2)
    A(f"v_bfe_u32 v9, v{V_LANE}, 4, 1")
    A(f"v_bfe_u32 v13, v{V_LANE}, 1, 1")
    A("v_lshl_add_u32 v3, v9, 1, v13")
    A(f"v_bfe_u32 v13, v{V_LANE}, 3, 1")
    A(f"v_xor_b32 v13, s{S_CH}, v13")
    A("v_lshl_add_u32 v9, v13, 2, v3")
    A("v_lshlrev_b32 v9, 4, v9")
    A(f"v_and_b32 v4, 1, v{V_LANE}")
    A("v_lshl_add_u32 v9, v4, 3, v9")
    A(f"v_bfe_u32 v14, v{V_LANE}, 2, 2")
    A(f"v_lshl_add_u32 v13, v{V_G}, 3, v14")
    A(f"v_lshl_add_u32 v{V_AT}, v13, 7, v9")
    A(f"v_add_u32 v{V_AT+1}, 0x10000, v{V_AT}")
    A(f"v_add_u32 v{V_AT+2}, 0x20000, v{V_AT}")
    A(f"v_and_b32 v9, 1, v{V_N}")
    A("v_lshlrev_b32 v9, 4, v9")
    A("v_mov_b32 v13, 0x3f80")
    A("v_lshlrev_b32 v13, v9, v13")
    A(f"v_lshrrev_b32 v9, 1, v{V_N}")
    A(f"v_lshlrev_b32 v14, 3, v{V_G}")
    A("v_sub_u32 v9, v9, v14")
    for q in range(8):
        A(f"v_cmp_eq_u32 vcc, {q}, v9")
        A(f"v_cndmask_b32_e64 v{IDF+q}, 0, v13, vcc")
    A(f"v_and_b32 v9, 15, v{V_LANE}")
    A("v_cmp_gt_u32 vcc, 4, v9")
    A("v_lshlrev_b32 v9, 4, v9")
    A(f"v_lshl_add_u32 v13, v{V_G}, 6, v9")
    A("v_add_u32 v13, 512, v13")
    A(f"v_lshl_add_u32 v9, v{V_G}, 8, v9")
    A(f"v_mov_b32 v14, {OOB:#x}")
    A("v_cndmask_b32 v13, v14, v13, vcc")
    A(f"v_cndmask_b32_e64 v{V_PB0}, v9, v13, s[{S_M16}:{S_M16+1}]")
    A(f"v_cndmask_b32_e64 v{V_PB1}, v13, v9, s[{S_M16}:{S_M16+1}]")
    A(f"v_cndmask_b32_e64 v13, v13, v14, s[{S_M16}:{S_M16+1}]")
    A(f"s_cmp_eq_u32 s{S_WAVE}, 0")
    A(f"s_cselect_b64 vcc, -1, 0")
    A(f"v_cndmask_b32 v{V_P2Z}, v14, v13, vcc")
    A(f"v_and_b32 v9, 7, v{V_LANE}")
    A(f"s_lshl_b32 s{ST}, s{S_WAVE}, 7")
    A(f"v_lshl_add_u32 v9, v9, 4, s{ST}")
    A(f"v_lshrrev_b32 v13, 3, v{V_LANE}")
    A("v_mul_u32_u24 v13, 640, v13")
    A(f"v_add_u32 v{V_G1}, v9, v13")
    A(f"v_cmp_gt_u32 vcc, 8, v{V_LANE}")
    A(f"v_mul_u32_u24 v{V_GZ}, 640, v{V_N}")
    A(f"v_lshl_add_u32 v{V_GZ}, v{V_G}, 6, v{V_GZ}")
    A(f"v_cndmask_b32 v{V_P2}, v14, v9, vcc")
    A(f"v_bfe_u32 v9, v{V_N}, 2, 1")
    A("v_lshlrev_b32 v9, 3, v9")
    A(f"v_bfe_u32 v13, v{V_N}, 3, 1")
    A("v_lshl_add_u32 v9, v13, 2, v9")
    A(f"v_and_b32 v13, 3, v{V_N}")
    A("v_add_u32 v9, v9, v13")
    A(f"v_cndmask_b32_e64 v9, v9, 32, s[{S_M16}:{S_M16+1}]")
    A("v_lshlrev_b32 v9, 4, v9")
    A(f"v_mul_u32_u24 v13, 1280, v{V_G}")
    A(f"v_add_u32 v{V_G2}, v9, v13")
    A("v_mov_b32 v9, 0x100")
    A(f"v_cndmask_b32_e64 v9, v9, 64, s[{S_M16}:{S_M16+1}]")
    A(f"v_add_u32 v{V_G2B}, v{V_G2}, v9")
    if OPT.get("prew", 1):
        for r in range(4): A(f"v_subrev_u32 v{T0+4+r}, 1, v{V_TAG}")
        A(f"buffer_store_dwordx4 {vr(T0+4,4)}, v{V_P2Z}, s[{SWS}:{SWS+3}], s{P_P2O} offen sc1")
        A(f"buffer_store_dwordx4 {vr(T0+4,4)}, v{V_P2}, s[{SWS}:{SWS+3}], s{P_P2O} offen sc1")
    A("v_mov_b32 v3, 0x3f803f80")
    A(f"v_bfe_u32 v4, v{V_LANE}, 2, 1")
    A("v_mul_u32_u24 v4, 0x8000, v4")
    A("v_lshl_or_b32 v4, v4, 16, v4")
    stamp(3)
    run(late)
    def trfrag(dst, ldsoff, kind="v"):
        s_, off = ldsoff >> 16, ldsoff & 0xffff
        return [f"ds_read_b64_tr_b16 {vr(dst+2*j,2,kind)}, v{V_AT+s_} offset:{off+j*512}" for j in range(2)]
    def rd(n):
        i, ks = n >> 2, n & 3
        slot, buf = i & 3, n & 1
        s2_, off = slot >> 1, (slot & 1) * SLOT
        x = [f"ds_read_b128 {ar(n*8+m*4,4)}, v{V_AX+4*s2_+ks} offset:{off+m*4096}" for m in range(2)]
        w = [trfrag(V_WF + buf * 8 + part * 4, slot * SLOT + part * 8192 + ks * 2048) for part in range(2)]
        return [x[0]] + w[0] + [x[1]] + w[1]
    def mm(n):
        buf = n & 1
        r = []
        for part, m in ((0, 0), (0, 1), (1, 0), (1, 1)):
            x, w = ar(n * 8 + m * 4, 4), vr(V_WF + buf * 8 + part * 4, 4)
            d = vr((KACC, VACC)[part] + 16 * m, 16)
            r.append(mf(d, w, x, d if n else "0") if part == 0 else mf(d, x, w, d if n else "0"))
        return r
    fill = []
    def on_step(n):
        i, ks = n >> 2, n & 3
        if ks == 0 and OPT.get("g1st") and i: stamp(16 + i)
        if ks == 0:
            if i in (WPS, WPS + 1): fill.extend(wpl[8*(i-WPS):8*(i-WPS)+8])
            for st in SCHED[0].get(i, []): fill.extend(g1_pieces(st))
            if i == 5: fill.extend(q_pieces(0) + (q_pieces(1) if QE == 1 else []))
            if i == 6:
                fill.extend((q_pieces(2) + q_pieces(3)) if QE == 1 else o_pieces(0))
                if OPT.get("ptouch", 0):
                    fill.extend([f"buffer_load_dword v254, v{V_G1}, s[{SWS}:{SWS+3}], s{P_P1G+k} offen sc1" for k in range(4)])
                    fill.append(f"buffer_load_dword v254, v{V_GZ}, s[{SWS}:{SWS+3}], s{P_P1G} offen sc1")
                    fill.extend([f"buffer_load_dword v254, v{V_G2}, s[{SWS}:{SWS+3}], s{P_P2G} offen offset:{(hh*4+jp)*640} sc1" for hh in range(2) for jp in range(2)])
                    fill.append(lambda: rdy_load(254, 254))
            elif i == 7:
                fill.extend(o_pieces(0) if QE == 1 else o_pieces(1))
                for r in range(8):
                    fill.append(lambda r=r: (A(f"v_lshl_or_b32 v{WPH+r}, v{T0+8+r}, 16, v{WPH+r}"), A(f"v_xor_b32 v{WPH+r}, v4, v{WPH+r}"), A(f"v_mov_b32 v{T0+8+r}, v{IDF+r}")))
    A.wait_vm(tok[0])
    A("s_barrier")
    stamp(4)
    gemm_loop(32, rd, mm, lambda n: tok[n >> 2] if (n & 3) == 0 else None, (3, 3, 0, 0), lambda n: g1_gaps(n, (7, WPS, WPS + 1)), fill, on_step, end_barrier=True)
    assert not fill
    stamp(5)
    def feat(acc):
        for m in range(2):
            for u in range(8):
                A(f"v_cvt_pk_bf16_f32 v{acc+16*m+u}, v{acc+16*m+2*u}, v{acc+16*m+2*u+1}")
            for hh in range(2):
                A(mf(vr(PK + (m * 2 + hh) * 16, 16), vr(WPH + 4 * hh, 4), vr(acc + 16 * m + 4 * hh, 4), "0"))
    def softmax_l(x, dst):
        mx, sm = T0, T0 + 2
        l = [f"v_max3_f32 v{mx}, v{x}, v{x+1}, v{x+2}"]
        for u in range(3, 15, 2):
            l.append(f"v_max3_f32 v{mx}, v{mx}, v{x+u}, v{x+u+1}")
        l.append(f"v_max_f32 v{mx}, v{mx}, v{x+15}")
        l.append(f"v_mul_f32 v{mx}, s{S_L2E}, v{mx}")
        for u in range(8):
            l.append(f"v_pk_fma_f32 {vr(x+2*u,2)}, {vr(x+2*u,2)}, s[{S_L2E}:{S_L2E+1}], {vr(mx,2)} op_sel_hi:[1,1,0] neg_lo:[0,0,1] neg_hi:[0,0,1]")
        for u in range(16):
            l.append(f"v_exp_f32 v{x+u}, v{x+u}")
        l.append(f"v_pk_add_f32 {vr(sm,2)}, {vr(x,2)}, {vr(x+2,2)}")
        for u in range(2, 8):
            l.append(f"v_pk_add_f32 {vr(sm,2)}, {vr(sm,2)}, {vr(x+2*u,2)}")
        l.append(f"v_add_f32 v{sm}, v{sm}, v{sm+1}")
        l.append(f"v_rcp_f32 v{sm}, v{sm}")
        for u in range(8):
            l.append(f"v_pk_mul_f32 {vr(x+2*u,2)}, {vr(x+2*u,2)}, {vr(sm,2)} op_sel_hi:[1,0]")
        for u in range(8):
            l.append(f"v_cvt_pk_bf16_f32 v{dst+u}, v{x+2*u}, v{x+2*u+1}")
        return l
    feat(KACC)
    for m in range(2):
        for u in range(8):
            A(f"v_cvt_pk_bf16_f32 v{VACC+16*m+u}, v{VACC+16*m+2*u}, v{VACC+16*m+2*u+1}")
    for m in range(2):
        for u in range(8):
            A(f"v_cndmask_b32_e64 v{VACC+16*m+8+u}, v3, v{VACC+16*m+u}, s[{S_M16}:{S_M16+1}]")
            A(f"v_cndmask_b32_e64 v{VACC+16*m+u}, v{VACC+16*m+u}, v3, s[{S_M16}:{S_M16+1}]")
    nbstamp(0)
    PH = [KACC + 8, KACC + 24]
    ID = T0 + 8
    def tmm(blk):
        d = vr(PK + 16 * blk, 16)
        return [mf(d, vr(PH[blk & 1] + 4 * jp, 4), vr(ID + 4 * jp, 4), d if jp else "0") for jp in range(2)]
    def tcvt(blk):
        t = PK + 16 * blk
        return [f"v_cvt_pk_bf16_f32 v{t+u}, v{t+2*u}, v{t+2*u+1}" for u in range(8)]
    def kvmm(blk):
        m, hh = blk >> 1, blk & 1
        d = vr(KV + 16 * hh, 16)
        return [mf(d, vr(PK + 16 * blk + 4 * mm_, 4), vr(VACC + 16 * m + 8 * hh + 4 * mm_, 4), d if (m or mm_) else "0") for mm_ in range(2)]
    for blk in range(4):
        l = softmax_l(PK + blk * 16, PH[blk & 1])
        if blk:
            t, kv = tmm(blk - 1), kvmm(blk - 1)
            l = l[:17] + [t[0]] + l[17:21] + [t[1]] + l[21:33] + tcvt(blk - 1) + l[33:50] + [kv[0]] + l[50:58] + [kv[1]]
        emit(l)
        if blk < 3 and not QE: run(q_pieces(blk + 1))
        nbstamp(1 + blk)
    TS = 4 if OPT.get("tag1", 1) else 1
    def tagit(r, n):
        for e in range(0, n, TS):
            A(f"v_and_or_b32 v{r+e}, v{r+e}, s{P_MSK}, v{V_TAG}")
    def pub(hh, oc):
        A(f"s_add_u32 s{ST+3}, s{P_P1O}, {(hh*4+oc)*32*640}")
        A(f"buffer_store_dwordx4 {vr(KV+16*hh+4*oc,4)}, v{V_PB0+hh}, s[{SWS}:{SWS+3}], s{ST+3} offen sc1")
    emit(tmm(3))
    tagit(KV, 16)
    pub(0, 0); pub(0, 1)
    emit(tcvt(3))
    emit(kvmm(3))
    nbstamp(5)
    pub(0, 2); pub(0, 3)
    tagit(KV + 16, 16)
    for oc in range(4): pub(1, oc)
    QACC = KACC
    def qaddr(n):
        i, ks = n >> 2, n & 3
        return QSLOT[i >> 2] * SLOT + (i & 3) * 8192 + ks * 2048
    def rdq(n):
        return trfrag(V_WF + (n & 1) * 8, qaddr(2 * n)) + trfrag(V_WF + (n & 1) * 8 + 4, qaddr(2 * n + 1))
    def mmq(n):
        r = []
        for h in range(2):
            for m in range(2):
                d = vr(QACC + 16 * m, 16)
                r.append(mf(d, vr(V_WF + (n & 1) * 8 + 4 * h, 4), ar((2 * n + h) * 8 + m * 4, 4), d if (n or h) else "0"))
        return r
    stamp(6)
    nbflush()
    GD = VACC
    GZ = GD + 16
    g1l = [f"buffer_load_dwordx4 {vr(GD+4*k,4)}, v{V_G1}, s[{SWS}:{SWS+3}], s{P_P1G+k} offen sc1" for k in range(4)]
    g1l.append(f"buffer_load_dwordx4 {vr(GZ,4)}, v{V_GZ}, s[{SWS}:{SWS+3}], s{P_P1G} offen offset:512 sc1")
    S_D1, S_RET = P0 + 11, ST + 6
    A(f"s_mov_b32 s{S_D1}, 0")
    def try1a(block=False):
        skip = lab("sk")
        if block:
            A(f"s_cmp_lg_u32 s{S_D1}, 0")
        else:
            A(f"s_getreg_b32 s{ST+5}, hwreg(HW_REG_IB_STS, 0, 4)")
            A(f"s_or_b32 s{ST+5}, s{ST+5}, s{S_D1}")
        A(f"s_cbranch_scc1 {skip}")
        A(f"s_call_b64 s[{S_RET}:{S_RET+1}], L_try1a")
        A.label(skip)
    def sub_try1a():
        A.label("L_try1a")
        A.hist = []
        A("s_waitcnt vmcnt(0)")
        A(f"v_xor_b32 v13, v{GD}, v{V_TAG}")
        for s in range(TS, 20, TS):
            A(f"v_bitop3_b32 v13, v{GD+s}, v{V_TAG}, v13 bitop3:0xbe")
        A("v_and_b32 v13, 0xff, v13")
        A(f"v_cmp_ne_u32 s[{S_FAIL}:{S_FAIL+1}], 0, v13")
        A(f"s_cmp_eq_u64 s[{S_FAIL}:{S_FAIL+1}], 0")
        A("s_cbranch_scc1 L_try1a_ok")
        emit(g1l)
        A(f"s_setpc_b64 s[{S_RET}:{S_RET+1}]")
        A.label("L_try1a_ok")
        DPP = "row_mask:0xf bank_mask:0xf"
        A(f"v_permlane16_swap_b32 v{GZ}, v{GZ+2}")
        A(f"v_permlane16_swap_b32 v{GZ+1}, v{GZ+3}")
        for u in range(0, 8, 2):
            A(f"v_pk_add_f32 {vr(GD+u,2)}, {vr(GD+u,2)}, {vr(GD+8+u,2)}")
        A(f"v_pk_add_f32 {vr(GZ,2)}, {vr(GZ,2)}, {vr(GZ+2,2)}")
        for u in range(0, 4, 2):
            A(f"v_pk_add_f32 {vr(GD+u,2)}, {vr(GD+u,2)}, {vr(GD+4+u,2)}")
        def zror(k):
            for e in range(2): A(f"v_add_f32_dpp v{GZ+e}, v{GZ+e}, v{GZ+e} row_ror:{k} {DPP}")
        zror(1)
        A(f"v_permlane32_swap_b32 v{GD}, v{GD+1}")
        A(f"v_permlane32_swap_b32 v{GD+2}, v{GD+3}")
        zror(2)
        A(f"v_add_f32 v{GD}, v{GD}, v{GD+1}")
        A(f"v_add_f32 v{GD+2}, v{GD+2}, v{GD+3}")
        zror(4)
        A(f"v_permlane16_swap_b32 v{GD}, v{GD+2}")
        A(f"v_add_f32 v{GD}, v{GD}, v{GD+2}")
        zror(8)
        A(f"v_add_f32_dpp v{GD}, v{GD}, v{GD} row_ror:8 {DPP}")
        for e in range(2): A(f"v_and_or_b32 v{GZ+e}, v{GZ+e}, s{P_MSK}, v{V_TAG}")
        A(f"v_and_or_b32 v{GD}, v{GD}, s{P_MSK}, v{V_TAG}")
        for e in range(2): A(f"v_mov_b32 v{GZ+2+e}, v{GZ+e}")
        A(f"v_mov_b32 v{GD+1}, v{GD}")
        A(f"v_permlane16_swap_b32 v{GZ}, v{GZ+2}")
        A(f"v_permlane16_swap_b32 v{GZ+1}, v{GZ+3}")
        A(f"v_permlane32_swap_b32 v{GD}, v{GD+1}")
        A(f"buffer_store_dwordx4 {vr(GZ,4)}, v{V_P2Z}, s[{SWS}:{SWS+3}], s{P_P2O} offen sc1")
        A(f"v_mov_b32 v{GD+2}, v{GD}")
        A(f"v_mov_b32 v{GD+3}, v{GD+1}")
        A(f"v_permlane16_swap_b32 v{GD}, v{GD+2}")
        A(f"v_permlane16_swap_b32 v{GD+1}, v{GD+3}")
        A(f"buffer_store_dwordx4 {vr(GD,4)}, v{V_P2}, s[{SWS}:{SWS+3}], s{P_P2O} offen sc1")
        stamp(8)
        A(f"s_mov_b32 s{S_D1}, 1")
        A(f"s_setpc_b64 s[{S_RET}:{S_RET+1}]")
    DEFER.append(sub_try1a)
    fill = []
    G1AT = OPT.get('g1at', 13)
    def on_stepq(n):
        if n == 0: fill.extend((o_pieces(1) if QE == 1 else (q_pieces(2) + q_pieces(3) if QE == 2 else [])) + o_pieces(2) + o_pieces(3) + [lambda: tok.__setitem__('wo', A.vm)])
        if n == G1AT: fill.extend(g1l + [None])
        if n >= G1AT + 4: fill.extend([None, try1a])
    if QE == 2:
        run(q_pieces(1))
        A.wait_vm(tok[("q", 0)])
        qb = lambda n: tok[("q", n >> 2)] if n in (4, 8, 12) else None
    else:
        A.wait_vm(tok[("q", 3)])
        qb = lambda n: None
    A("s_barrier")
    stamp(26)
    gemm_loop(16, rdq, mmq, qb, (2, 2, 0, 0), lambda n: (0, 1, 2, 3) if (QE == 2 and n < 2) else (2, 3), fill, on_stepq)
    assert not fill
    A.wait_vm(tok["wo"])
    A("s_barrier")
    stamp(7)
    feat(QACC)
    def wait1a():
        top, done = lab("w1a"), lab("w1d")
        A(f"s_mov_b32 s{S_CNT}, {SPIN_LIMIT}")
        A.label(top)
        try1a(block=True)
        A(f"s_cmp_lg_u32 s{S_D1}, 0")
        A(f"s_cbranch_scc1 {done}")
        A(f"s_sub_u32 s{S_CNT}, s{S_CNT}, 1")
        A(f"s_cbranch_scc0 {top}")
        A.label(done)
    B1 = OPT.get("blk1a", 0)
    if B1 == 0: wait1a()
    S_D2 = ST + 4
    A(f"s_mov_b32 s{S_D2}, 0")
    PHQ = KV
    FD = PK
    def loads2():
        for hh in range(2):
            for jp in range(2):
                r = FD + (hh * 2 + jp) * 8
                off = (hh * 4 + jp) * 640
                A(f"buffer_load_dwordx4 {vr(r,4)}, v{V_G2}, s[{SWS}:{SWS+3}], s{P_P2G} offen offset:{off} sc1")
                A(f"buffer_load_dwordx4 {vr(r+4,4)}, v{V_G2B}, s[{SWS}:{SWS+3}], s{P_P2G} offen offset:{off} sc1")
        rdy_load(14)
    def check2():
        A(f"v_xor_b32 v13, v{FD}, v{V_TAG}")
        for s in range(1, 32):
            A(f"v_bitop3_b32 v13, v{FD+s}, v{V_TAG}, v13 bitop3:0xbe")
        rdy_check(9, 14)
        A("v_and_b32 v13, 0xff, v13")
        A("v_or_b32 v13, v13, v9")
        A(f"v_cmp_ne_u32 s[{S_FAIL}:{S_FAIL+1}], 0, v13")
    for blk in range(4):
        if blk == 3: loads2()
        emit(softmax_l(PK + blk * 16, PHQ + 8 * blk))
        if blk + 1 == B1: wait1a()
    stamp(9)
    KVF = VACC + 16
    ODR = [KACC, KACC + 16, PK + 32, PK + 48]
    A(f"s_lshl_b32 s{ST+5}, s{S_RH}, 12")
    A(f"v_add_u32 v{V_AX}, s{ST+5}, v{V_LIN}")
    A(f"v_add_u32 v{V_AX+1}, 0x10000, v{V_AX}")
    A(f"v_add_u32 v{V_AX+2}, 0x20000, v{V_AX}")
    slin(ST + 5, 3 * SLOT, (S_MF, 8192), (S_M0W2, 1))
    A(f"v_add_u32 v{V_AX+3}, s{ST+5}, v{V_LIN}")
    A(f"v_xor_b32 v{V_AX+4}, 0x2000, v{V_AX+3}")
    wor = []
    for n in range(32):
        wor += trfrag(n * 4, OLDS[n >> 2] + (n & 3) * 2048, "a")
    emit(wor[:8])
    def check2m():
        chk = [f"v_xor_b32 v13, v{FD}, v{V_TAG}"] + [f"v_bitop3_b32 v13, v{FD+s}, v{V_TAG}, v13 bitop3:0xbe" for s in range(TS, 32, TS)]
        for hh in range(2):
            for q in (2 * hh, 2 * hh + 1):
                for u in range(4):
                    A(f"v_cvt_pk_bf16_f32 v{KVF+4*q+u}, v{FD+8*q+2*u}, v{FD+8*q+2*u+1}")
            for m in range(2):
                blk = 2 * m + hh
                d = vr(ODR[blk], 16)
                for jp in range(2):
                    A(mf(d, vr(KVF + (hh * 2 + jp) * 4, 4), vr(PHQ + 8 * blk + 4 * jp, 4), d if jp else "0"))
                    k = 3 if hh == 0 else 5
                    emit(chk[:k]); chk = chk[k:]
        assert not chk
        rdy_check(9, 14)
        A("v_and_b32 v13, 0xff, v13")
        A("v_or_b32 v13, v13, v9")
        A(f"v_cmp_ne_u32 s[{S_FAIL}:{S_FAIL+1}], 0, v13")
    poll_pre(loads2, check2m)
    stamp(10)
    xcc_decide(14)
    ost = []
    for blk in (0, 2, 1, 3):
        m, hh = blk >> 1, blk & 1
        o = ODR[blk]
        A(f"v_add_f32 v{o+8}, 0x358637bd, v{o+8}")
        A(f"v_rcp_f32 v{o+8}, v{o+8}")
        for u in range(4):
            A(f"v_pk_mul_f32 {vr(o+2*u,2)}, {vr(o+2*u,2)}, {vr(o+8,2)} op_sel_hi:[1,0]")
        for u in range(4):
            A(f"v_cvt_pk_bf16_f32 v{o+12+u}, v{o+2*u}, v{o+2*u+1}")
        A(f"buffer_store_dwordx4 {vr(o+12,4)}, v{V_LIN}, s[{SWS}:{SWS+3}], s{P_ACTW+m} offen offset:{hh*1024} sc1")
        A(f"ds_write_b128 v{V_AX+3+m}, {vr(o+12,4)} offset:{hh*1024}")
    tok_o = A.vm
    stamp(11)
    ELDS = [(3, 4, 0, 1)[e >> 2] * SLOT + (e & 3) * 8192 for e in range(16)]
    def of_pieces(e):
        pos, ph = SEQ[e]
        def p0():
            A(f"s_add_u32 m0, s{S_M0W2}, {ELDS[e]:#x}")
            A(f"s_lshl_b32 s{ST+8}, s{KAP[pos]}, 14")
            A(f"s_add_u32 s{ST+8}, s{ST+8}, s{P_ACTR+ph}")
            A(f"buffer_load_dwordx4 v{V_LIN}, s[{SWS}:{SWS+3}], s{ST+8} offen {PLF}lds")
        def p1():
            A(f"buffer_load_dwordx4 v{V_LIN}, s[{SWS}:{SWS+3}], s{ST+8} offen offset:1024 {PLF}lds")
            tok[("of", e)] = A.vm
        return [p0, p1]
    OF = PK
    OACC = VACC
    def rd4(n):
        return [f"ds_read_b128 {vr(OF+(n&1)*16+h*4,4)}, v{V_AX+(ELDS[n]>>16)} offset:{(ELDS[n]&0xffff)+h*1024}" for h in range(4)]
    def mm4(n):
        pos, ph = SEQ[n]
        d = vr(OACC + 16 * ph, 16)
        return [mf(d, vr(OF + (n & 1) * 16 + h * 4, 4), ar((4 * pos + h) * 4, 4), d if (pos or h) else "0") for h in range(4)]
    A("s_waitcnt lgkmcnt(0)")
    A("s_barrier")
    wf = wor[8:]
    def two():
        for _ in range(2): A(wf.pop(0))
    gemm_loop(2, rd4, mm4, lambda n: None, (2, 2, 0, 0), (2, 3), [two] * 4)
    emit(wf[:16]); wf = wf[16:]
    A.wait_vm(tok_o)
    flag_store()
    emit(wf)
    flag_poll()
    stamp(12)
    for e in range(2, 7): run(of_pieces(e))
    fill = []
    def on_step4(n):
        if n == 2:
            for e in range(7, 16): fill.extend(of_pieces(e))
        if n == 10: fill.extend(out_stores(OACC, 0))
    A.wait_both(tok[("of", 3)], A.lg)
    A("s_barrier")
    stamp(13)
    BND = {4: 6, 7: 9, 10: 12, 13: 15}
    gemm_loop(16, rd4, mm4, lambda n: tok[("of", BND[n])] if n in BND else None, (2, 2, 0, 0),
              lambda n: (1, 2, 3) if n >= 10 else (0, 1, 2, 3), fill, on_step4, start=2)
    assert not fill
    stamp(14)
    run(out_stores(OACC, 1))
    tag_update("B")
    stamp(15)
    finish()

prologue()
vm0, lg0 = A.vm, A.lg
role_A()
for f in DEFER: f()
DEFER.clear()
A.label("L_roleB")
ROLE[0] = "B"
A.vm, A.lg = vm0, lg0
A.hist = []
role_B()
for f in DEFER: f()
A.label("L_end")
A("s_endpgm")

iB = A.out.index("L_roleB:")
lines = A.out[:CUT["A"]] + A.out[iB:CUT["B"]] + A.out[CUT["A"]:iB] + A.out[CUT["B"]:]
if OPT["align"]:
    lines, nw, nn = align(lines, min_nop=OPT.get('minnop', 12))
    print("align: widened", nw, "nops", nn)
HEAD = open("cdna_kernels/" + NAME + ".s.ref").read().split("; Override launch geometry")[0]
src = HEAD + f"""; @launch grid=(256,1,1) block=(256,1,1) lds=163840
.amdgcn_target "amdgcn-amd-amdhsa--gfx950"
.text
.globl {NAME}_kernel
.p2align 8
.type {NAME}_kernel,@function
{NAME}_kernel:
""" + "\n".join(lines) + f"""
.fill 8192, 4, 0xBF810000
.section .rodata,"a"
.p2align 6
.amdhsa_kernel {NAME}_kernel
  .amdhsa_next_free_vgpr 512
  .amdhsa_next_free_sgpr 102
  .amdhsa_accum_offset 256
  .amdhsa_group_segment_fixed_size 0
  .amdhsa_kernarg_size 128
  .amdhsa_user_sgpr_count 2
  .amdhsa_user_sgpr_kernarg_segment_ptr 1
  .amdhsa_system_sgpr_workgroup_id_x 1
.end_amdhsa_kernel
"""
open(sys.argv[1], "w").write(src)
print("hazard nops:", A.nnop, "lines:", len(lines))
```

```python
import re

TRANS = ("v_exp_f32", "v_log_f32", "v_rcp_f32", "v_rsq_f32", "v_sqrt_f32", "v_sin_f32", "v_cos_f32")
_reg = re.compile(r"^(-|abs\()?([vas])(?:(\d+)|\[(\d+):(\d+)\])\)?$")

def regs_of(tok):
    tok = tok.strip()
    if tok in ("vcc", "exec"):
        return {("s", tok)}
    if tok == "m0":
        return {("s", "m0")}
    m = _reg.match(tok)
    if not m:
        return set()
    k = m.group(2)
    if m.group(3) is not None:
        return {(k, int(m.group(3)))}
    return {(k, i) for i in range(int(m.group(4)), int(m.group(5)) + 1)}

def vr(a, n=1, k="v"):
    return f"{k}{a}" if n == 1 else f"{k}[{a}:{a+n-1}]"
def ar(a, n=1): return vr(a, n, "a")
def sr(a, n=1): return vr(a, n, "s")

class Ins:
    __slots__ = ("text", "op", "kind", "w", "r", "srcc", "srcab", "slots", "dpp", "wide_store")

class Asm:
    def __init__(self):
        self.out = []
        self.hist = []
        self.vm = 0
        self.lg = 0
        self.nnop = 0
        self.cap = None

    def raw(self, t):
        self.out.append(t)

    def label(self, name):
        self.out.append(name + ":")

    def comment(self, t):
        self.out.append("; " + t)

    def _parse(self, text):
        ins = Ins()
        ins.text = text
        parts = text.split(None, 1)
        op = parts[0]
        ins.op = op
        rest = parts[1] if len(parts) > 1 else ""
        ops, depth, cur = [], 0, ""
        for chh in rest:
            if chh == "[": depth += 1
            if chh == "]": depth -= 1
            if chh == "," and depth == 0:
                ops.append(cur.strip()); cur = ""
            else:
                cur += chh
        if cur.strip(): ops.append(cur.strip())
        mods = ""
        if ops:
            last = ops[-1].split(None, 1)
            ops[-1] = last[0]
            mods = last[1] if len(last) > 1 else ""
        R = [regs_of(o) for o in ops]
        ins.w, ins.r, ins.srcc, ins.srcab = set(), set(), set(), set()
        ins.slots = 1
        ins.dpp = ("_dpp" in op) or ("row_" in mods) or ("quad_perm" in mods)
        ins.wide_store = set()
        base = op.replace("_e32", "").replace("_e64", "").replace("_dpp", "")
        if op.startswith("v_mfma"):
            ins.kind = "mfma"; ins.w = R[0]; ins.srcab = R[1] | R[2]; ins.srcc = R[3]; ins.r = ins.srcab | ins.srcc
        elif op.startswith("v_"):
            ins.kind = "trans" if base in TRANS else "valu"
            if op.startswith("v_permlane") and "swap" in op:
                ins.w = R[0] | R[1]; ins.r = R[0] | R[1]; ins.kind = "permlane"
            elif base in ("v_add_co_u32", "v_addc_co_u32", "v_sub_co_u32", "v_subb_co_u32"):
                ins.w = R[0] | R[1]; ins.r = set().union(*R[2:])
            else:
                ins.w = R[0]; ins.r = set().union(*R[1:]) if len(R) > 1 else set()
                if base in ("v_fmac_f32", "v_pk_fmac_f16") or "d16" in op: ins.r |= R[0]
                if base in ("v_readfirstlane_b32", "v_readlane_b32"): ins.kind = "readlane"
        elif op.startswith("ds_"):
            ins.kind = "ds"
            if op.startswith("ds_read") or op.startswith("ds_bpermute") or op.startswith("ds_swizzle"):
                ins.w = R[0]; ins.r = set().union(*R[1:])
            else:
                ins.r = set().union(*R)
        elif op.startswith("buffer_") or op.startswith("global_"):
            ins.kind = "vmem"
            is_lds = bool(re.search(r"\blds\b", mods))
            if "_load" in op and not is_lds:
                ins.w = R[0]; ins.r = set().union(*R[1:])
            else:
                ins.r = set().union(*R) if R else set()
                if is_lds: ins.r |= {("s", "m0")}; ins.kind = "dma"
                if "store" in op and ("x4" in op or "x3" in op):
                    ins.wide_store = R[0] if op.startswith("buffer_") else R[1]
        elif op == "s_nop":
            ins.kind = "nop"; ins.slots = int(ops[0], 0) + 1
        elif op.startswith("s_"):
            ins.kind = "salu"
            if op.startswith("s_cmp") or op.startswith("s_cbranch") or op in ("s_branch", "s_barrier", "s_waitcnt", "s_endpgm", "s_sleep", "s_setprio", "s_setpc_b64"):
                ins.r = set().union(*R) if R else set()
            else:
                ins.w = R[0] if R else set(); ins.r = set().union(*R[1:]) if len(R) > 1 else set()
        else:
            raise ValueError("unknown op " + text)
        return ins

    def _need(self, p, c):
        VAL = ("valu", "trans", "permlane", "readlane")
        n = 0
        pv = p.kind in VAL
        cv = c.kind in VAL
        pw_v = {x for x in p.w if x[0] != "s"}
        pw_s = {x for x in p.w if x[0] == "s"}
        if pv and c.kind == "mfma" and (pw_v & c.r): n = max(n, 2)
        if p.kind == "mfma":
            if c.kind == "mfma":
                if p.w & c.srcab: n = max(n, 12)
                if (p.w & c.srcc) and p.w != c.srcc: n = max(n, 10)
                if (p.w & c.w) and not (p.w == c.w and c.srcc == c.w): n = max(n, 12)
            elif c.kind != "salu" and c.kind != "nop":
                if p.w & (c.r | c.w): n = max(n, 12)
            if cv and (p.srcc & c.w): n = max(n, 7)
        if p.kind == "trans" and c.kind not in ("salu", "nop", "trans") and (pw_v & c.r): n = max(n, 1)
        if pv and pw_s:
            if cv and (pw_s & c.r): n = max(n, 4 if c.kind == "readlane" else 2)
            if c.kind in ("vmem", "dma") and (pw_s & c.r): n = max(n, 5)
            if c.kind == "salu" and (pw_s & c.r): n = max(n, 1)
        if pv and c.kind == "readlane" and (pw_v & c.r): n = max(n, 1)
        if pv and (c.dpp or c.kind == "permlane") and (pw_v & c.r): n = max(n, 2)
        if p.kind == "salu" and ("s", "m0") in p.w and c.kind == "dma": n = max(n, 1)
        if p.wide_store and (p.wide_store & c.w): n = max(n, 2)
        return n

    def __call__(self, text):
        for t in text.split("\n"):
            t = t.strip()
            if not t: continue
            if self.cap is not None:
                if not t.startswith("s_waitcnt"): self.cap.append(t)
            else: self._emit(t)

    def _emit(self, text):
        ins = self._parse(text)
        dist, pad = 0, 0
        for p in reversed(self.hist):
            need = self._need(p, ins)
            if need > dist: pad = max(pad, need - dist)
            dist += p.slots
            if dist >= 14: break
        if pad:
            self.nnop += 1
            nop = self._parse(f"s_nop {pad-1}")
            self.hist.append(nop); self.out.append("    " + nop.text)
        self.hist.append(ins)
        if len(self.hist) > 40: self.hist = self.hist[-20:]
        self.out.append("    " + text)
        if ins.kind in ("vmem", "dma"): self.vm += 1
        if ins.kind == "ds": self.lg += 1
        return ins

    def wait_vm(self, tok):
        n = self.vm - tok
        assert n >= 0
        self(f"s_waitcnt vmcnt({min(n, 63)})")
    def wait_lg(self, tok):
        n = self.lg - tok
        assert 0 <= n
        self(f"s_waitcnt lgkmcnt({min(n, 15)})")
    def wait_both(self, vtok, ltok):
        self(f"s_waitcnt vmcnt({min(self.vm - vtok, 63)}) lgkmcnt({min(self.lg - ltok, 15)})")

    def text(self):
        return "\n".join(self.out)
```

```python
import sys
from dsl import Asm, vr, ar, sr
from align import align

NAME = "concat_heads__ssm_conv_s5__linear_kernel_hedgehog__prompt"
OPT = dict(stamps=False, rotmode=2, align=1, xnt=0, hwait=8, owait=4, hand=0)
for a_ in sys.argv[2:]:
    k_, _, v_ = a_.partition("=")
    OPT[k_] = int(v_) if v_ else True

WS_TAGA, WS_TAGB = 0x0, 0x80
WS_XCC = 0x1000
WS_FLAG = 0x2000
WS_SA = 0x10000
WS_P1 = 0x100000
WS_P2 = 0x3C0000
WS_H = 0x400000
WS_O = 0x800000
WS_STAMP = 0xA00000
OOB = 0x40000000
SPIN_LIMIT = 1 << 14
LOG2E = 0x3FB8AA3B
INV2PI = 0x3E22F983

S_WAVE, S_CHUNK, S_CG, S_ROT, S_TAG = 3, 4, 5, 6, 7
SX, SW, SW2, SWS, SOUT = 8, 12, 16, 20, 24
S_RH, S_CH, S_SLOT, S_GRP = 28, 29, 30, 31
ST = 32
S_M0W, S_M0W2 = 48, 49
S_MG = 50
S_MRH = 52
S_L2E = 54
S_CNT = 56
S_FAIL = 58
S_M16 = 60
S_SM0, S_RS = 62, 63
S_XW, S_SLOW, P_FLW = 91, 92, 93
S_ROT1 = 47
KAP = [62, 63, 44, 45, 86, 87, 94, 95]
SEQ = [(0, 0), (0, 1)] + [(j, 0) for j in range(1, 8)] + [(j, 1) for j in range(1, 8)]
HAND = OPT['hand']
KA = 64
K_AX, K_LRE, K_LIM, K_BRE, K_BIM, K_CRE, K_CIM, K_LDT, K_DSK, K_BX, K_WQKV, K_WPHI, K_WO, K_OUT, K_DBG, K_WS = [KA + 2 * i for i in range(16)]
P_FLAGB, P_FLAGO, P_XCCB, P_TAGSEL, P_OUT, P_OUT2, P_ACTR, P_ACTR2 = range(64, 72)
P_ACTW, P_ACTW2, S_MF = 88, 89, 90
P0 = 72
S_STAMP = 96
V_LANE, V_OUTO, V_N, V_G, V_LIN, V_TAG, V_L0, V_CHK, V_XPO = 1, 2, 5, 6, 7, 8, 10, 12, 15
V_OX, V_OW = 16, 20
SLOT = 32768

A = Asm()
CUT = {}
nlab = [0]

def srd(dst, ptr, nbytes):
    A(f"s_mov_b32 s{dst}, s{ptr}")
    A(f"s_mov_b32 s{dst+1}, s{ptr+1}")
    A(f"s_mov_b32 s{dst+2}, {nbytes:#x}")
    A(f"s_mov_b32 s{dst+3}, 0x20000")

def slin(dst, const, *terms):
    first = True
    for reg, mul in terms:
        t = dst if first else ST + 14
        if mul == 1:
            if first: A(f"s_mov_b32 s{dst}, s{reg}")
            else: t = reg
        elif mul & (mul - 1) == 0: A(f"s_lshl_b32 s{t}, s{reg}, {mul.bit_length()-1}")
        else: A(f"s_mul_i32 s{t}, s{reg}, {mul}")
        if not first: A(f"s_add_u32 s{dst}, s{dst}, s{t}")
        first = False
    if const: A(f"s_add_u32 s{dst}, s{dst}, {const:#x}")

ROLE = ["A"]
def stamp(idx):
    if OPT.get("probe") == idx + (0 if ROLE[0] == "A" else 100):
        if OPT.get("cyc"):
            A("s_memtime s[96:97]")
            A("s_waitcnt lgkmcnt(0)")
            A("s_sub_u32 s99, s96, s98")
            A("s_lshr_b32 s99, s99, 4")
        else:
            A("s_memrealtime s[96:97]")
            A("s_waitcnt lgkmcnt(0)")
            A("s_sub_u32 s99, s96, s100")
    if not OPT["stamps"]: return
    A(f"s_memtime s[{S_STAMP}:{S_STAMP+1}]")
    A("s_waitcnt lgkmcnt(0)")
    A(f"s_sub_u32 s{S_STAMP}, s{S_STAMP}, s98")
    A(f"v_writelane_b32 v255, s{S_STAMP}, {idx}")
    if OPT.get("rt") and idx <= 16:
        A(f"s_memrealtime s[{S_STAMP}:{S_STAMP+1}]")
        A("s_waitcnt lgkmcnt(0)")
        A(f"s_sub_u32 s{S_STAMP}, s{S_STAMP}, s100")
        A(f"v_writelane_b32 v255, s{S_STAMP}, {idx+44}")

NB = [32, 36, 38, 42, 58, 56]
nbuse = []
def nbstamp(k):
    if OPT.get("nb") and OPT["stamps"]:
        A(f"s_memtime s[{NB[k]}:{NB[k]+1}]"); nbuse.append(k)
def nbflush():
    if OPT.get("nb") and OPT["stamps"]:
        A("s_waitcnt lgkmcnt(0)")
        for k in nbuse:
            A(f"s_sub_u32 s{NB[k]}, s{NB[k]}, s98")
            A(f"v_writelane_b32 v255, s{NB[k]}, {17+k}")
        nbuse.clear()

def lab(n):
    nlab[0] += 1
    return f"L_{n}_{nlab[0]}"

def finish():
    if OPT.get("probe") and (OPT["probe"] >= 100) == (ROLE[0] == "B"):
        if OPT["probe"] % 100 == 16:
            A("s_waitcnt vmcnt(0)")
            stamp(16)
        l = lab("pr")
        A("s_lshl_b32 s99, s99, 1")
        A("s_add_u32 s99, s99, 2500")
        A.label(l)
        A("s_memrealtime s[96:97]")
        A("s_waitcnt lgkmcnt(0)")
        A("s_sub_u32 s96, s96, s100")
        A("s_cmp_lt_u32 s96, s99")
        A(f"s_cbranch_scc1 {l}")
    if OPT.get("fixrt"):
        l = lab("rt")
        A.label(l)
        A("s_memrealtime s[96:97]")
        A("s_waitcnt lgkmcnt(0)")
        A("s_sub_u32 s96, s96, s100")
        A(f"s_cmp_lt_u32 s96, {OPT['fixrt']}")
        A(f"s_cbranch_scc1 {l}")
    if OPT["stamps"]:
        A("s_waitcnt vmcnt(0)")
        stamp(16)
        A("v_writelane_b32 v255, s99, 30")
        A("s_memrealtime s[96:97]")
        A("v_writelane_b32 v255, s100, 40")
        A("s_waitcnt lgkmcnt(0)")
        A("v_writelane_b32 v255, s96, 41")
        slin(ST, WS_STAMP, (2, 1024), (S_WAVE, 256))
        A(f"v_lshlrev_b32 v254, 2, v{V_LANE}")
        A(f"buffer_store_dword v255, v254, s[{SWS}:{SWS+3}], s{ST} offen")
    A("s_endpgm")

def mf(d, a, b, c):
    return f"v_mfma_f32_32x32x16_bf16 {d}, {a}, {b}, {c}"

def poll(loads, check):
    top, done = lab("poll"), lab("ok")
    A(f"s_mov_b32 s{S_CNT}, {SPIN_LIMIT}")
    A.label(top)
    loads()
    A("s_waitcnt vmcnt(0)")
    check()
    A(f"s_cmp_eq_u64 s[{S_FAIL}:{S_FAIL+1}], 0")
    A(f"s_cbranch_scc1 {done}")
    A(f"s_sub_u32 s{S_CNT}, s{S_CNT}, 1")
    A(f"s_cbranch_scc0 {top}")
    A.label(done)

def poll_pre(loads, check):
    top, done = lab("poll"), lab("ok")
    A(f"s_mov_b32 s{S_CNT}, {SPIN_LIMIT}")
    A.label(top)
    A("s_waitcnt vmcnt(0)")
    check()
    A(f"s_cmp_eq_u64 s[{S_FAIL}:{S_FAIL+1}], 0")
    A(f"s_cbranch_scc1 {done}")
    loads()
    A(f"s_sub_u32 s{S_CNT}, s{S_CNT}, 1")
    A(f"s_cbranch_scc0 {top}")
    A("s_waitcnt vmcnt(0)")
    A.label(done)

def cfma_l(d, a, b, c, t):
    return [f"v_pk_fma_f32 {vr(t,2)}, {vr(a,2)}, {vr(b,2)}, {vr(c,2)} op_sel:[1,1,0] op_sel_hi:[1,0,1] neg_lo:[1,0,0]",
            f"v_pk_fma_f32 {vr(d,2)}, {vr(a,2)}, {vr(b,2)}, {vr(t,2)} op_sel:[0,0,0] op_sel_hi:[0,1,1]"]
def cmul_l(d, a, b, t):
    return [f"v_pk_mul_f32 {vr(t,2)}, {vr(a,2)}, {vr(b,2)} op_sel:[1,1] op_sel_hi:[1,0] neg_lo:[1,0]",
            f"v_pk_fma_f32 {vr(d,2)}, {vr(a,2)}, {vr(b,2)}, {vr(t,2)} op_sel:[0,0,0] op_sel_hi:[0,1,1]"]
def emit(l):
    for x in l: A(x)
def cfma(*a): emit(cfma_l(*a))
def cmul(*a): emit(cmul_l(*a))

def weave(main, fillers, every, start=0):
    for i, x in enumerate(main):
        A(x)
        if i >= start and (i - start) % every == every - 1 and fillers:
            f = fillers.pop(0)
            if isinstance(f, str): A(f)
            elif f: f()

def gemm_loop(nsteps, reads, mfmas, boundary, split, fill_gaps, fillers, on_step=None, end_barrier=False, verify=None, start=0, extra=None, nextra=None):
    for r in reads(start): A(r)
    for n in range(start, nsteps):
        if on_step: on_step(n)
        last = n == nsteps - 1
        b = None if last else boundary(n + 1)
        b2 = boundary(n + 2) if (verify and n + 2 < nsteps) else None
        if b2 is not None: A.wait_both(b2, A.lg)
        elif b is not None and not verify: A.wait_both(b, A.lg)
        else: A("s_waitcnt lgkmcnt(0)")
        if b is not None and verify: verify(n + 1)[1]()
        rs = [] if last else list(reads(n + 1))
        ms = mfmas(n)
        for g in range(4):
            A(ms[g])
            if g == 0 and b2 is not None: verify(n + 2)[0]()
            if g == 0 and b is not None and verify: verify(n + 1)[2]()
            if g == 0 and (b is not None or (last and end_barrier)): A("s_barrier")
            for _ in range(split[g]):
                if rs: A(rs.pop(0))
            if g in (fill_gaps(n) if callable(fill_gaps) else fill_gaps) and fillers:
                f = fillers.pop(0)
                if isinstance(f, str): A(f)
                elif f: f()
            if extra:
                k = nextra(n, g)
                while extra and k > 0:
                    x = extra.pop(0); A(x); k -= 1
                    if x.startswith("s_cmp") and k == 0: k = 1
        assert not rs

def dma_pieces(voff, srdreg, soff, ldsoff, pre=None, post=None, flags="", m0reg=S_M0W, same_v=False):
    def mk(p):
        def f():
            if p == 0:
                A(f"s_add_u32 m0, s{m0reg}, {ldsoff:#x}")
                if pre: pre()
            A(f"buffer_load_dwordx4 v{voff if same_v else voff+p}, s[{srdreg}:{srdreg+3}], s{soff} offen offset:{p*1024} {flags}lds")
            if p == 3 and post: post()
        return f
    return [mk(p) for p in range(4)]

def run(fs):
    for f in fs:
        if isinstance(f, str): A(f)
        else: f()

def rot_soff(dst, add, shift=None, mul=None, extra_sreg=None, plus=None, rot=S_ROT):
    A(f"s_add_u32 s{dst}, s{rot}, {add}")
    if extra_sreg is not None: A(f"s_add_u32 s{dst}, s{dst}, s{extra_sreg}")
    A(f"s_and_b32 s{dst}, s{dst}, 7")
    if shift is not None: A(f"s_lshl_b32 s{dst}, s{dst}, {shift}")
    else: A(f"s_mul_i32 s{dst}, s{dst}, {mul}")
    if plus is not None: A(f"s_add_u32 s{dst}, s{dst}, s{plus}")

def prologue():
    if OPT["stamps"] or OPT.get("cyc"): A("s_memtime s[98:99]")
    if OPT.get("fixrt") or OPT.get("probe") or OPT["stamps"]: A("s_memrealtime s[100:101]")
    A("s_cmp_ge_u32 s2, 256")
    A("s_cbranch_scc1 L_end")
    A(f"s_load_dwordx16 s[{KA}:{KA+15}], s[0:1], 0")
    A(f"s_load_dwordx16 s[{KA+16}:{KA+31}], s[0:1], 64")
    A("v_and_b32 v1, 63, v0")
    A("v_lshrrev_b32 v2, 6, v0")
    A(f"s_lshr_b32 s{S_SLOT}, s2, 3")
    A(f"v_readfirstlane_b32 s{S_WAVE}, v2")
    A(f"s_and_b32 s{ST}, s2, 3")
    A(f"s_lshl_b32 s{S_CHUNK}, s{ST}, 2")
    A(f"s_lshr_b32 s{ST+1}, s{S_SLOT}, 3")
    A(f"s_add_u32 s{S_CHUNK}, s{S_CHUNK}, s{ST+1}")
    A(f"s_and_b32 s{S_CG}, s{S_SLOT}, 7")
    A(f"s_lshl_b32 s{S_ROT}, s{ST+1}, 1")
    A(f"s_add_u32 s{S_ROT}, s{S_ROT}, s{S_CG}")
    A(f"s_and_b32 s{S_ROT}, s{S_ROT}, 7")
    rm = OPT["rotmode"]
    if rm == 8: A(f"s_mov_b32 s{S_ROT1}, s{S_ROT}")
    elif rm == 1: A(f"s_mov_b32 s{S_ROT1}, 0")
    elif rm == 3:
        A(f"s_add_u32 s{S_ROT1}, s{S_CG}, s{ST+1}")
        A(f"s_and_b32 s{S_ROT1}, s{S_ROT1}, 3")
        A(f"s_mul_i32 s{S_ROT1}, s{S_ROT1}, 3")
    else:
        A(f"s_add_u32 s{S_ROT1}, s{S_CG}, s{ST+1}")
        A(f"s_and_b32 s{S_ROT1}, s{S_ROT1}, {rm-1}")
        A(f"s_lshl_b32 s{S_ROT1}, s{S_ROT1}, {2 if rm == 2 else 1}")
    A(f"s_lshr_b32 s{S_RH}, s{S_WAVE}, 1")
    A(f"s_and_b32 s{S_CH}, s{S_WAVE}, 1")
    A(f"s_lshl_b32 s{S_M0W}, s{S_WAVE}, 12")
    slin(ST + 2, 0, (S_SLOT, 512), (S_WAVE, 128))
    A("v_and_b32 v7, 1, v0")
    A(f"v_lshl_add_u32 v7, v7, 14, s{ST+2}")
    A("v_lshrrev_b32 v3, 3, v1")
    A("v_and_b32 v4, 7, v1")
    A(f"v_and_b32 v{V_N}, 31, v1")
    A(f"v_lshrrev_b32 v{V_G}, 5, v1")
    if OPT["stamps"]: A("v_mov_b32 v255, 0")
    A("s_bitcmp0_b32 s2, 2" if OPT.get("swap") else "s_bitcmp1_b32 s2, 2")
    if OPT.get("bfirst", 1):
        A("s_cbranch_scc0 L_roleA")
        CUT["P"] = len(A.out)
        A.label("L_roleA")
    else:
        A("s_cbranch_scc1 L_roleB")

def cut(role):
    A(f"s_branch L_main{role}")
    CUT[role] = len(A.out)
    A.label(f"L_main{role}")

def code_prefetch():
    A(f"s_getpc_b64 s[{ST+4}:{ST+5}]")
    A.label(f"L_pc{ROLE[0]}")
    A(f"s_add_u32 s{ST+4}, s{ST+4}, L_main{ROLE[0]}-L_pc{ROLE[0]}")
    A(f"s_addc_u32 s{ST+5}, s{ST+5}, 0")
    A(f"global_load_dword v254, v7, s[{ST+4}:{ST+5}]")

def common_setup(role):
    srd(SWS, K_WS, 0x10000000)
    srd(SOUT, K_OUT, 0x800000)
    A(f"s_lshl_b32 s{S_M0W2}, s{S_WAVE}, 13")
    A(f"s_mov_b32 s{S_MG}, 0")
    A(f"s_mov_b32 s{S_MG+1}, -1")
    A(f"s_sub_u32 s{S_MRH}, 0, s{S_RH}")
    A(f"s_mov_b32 s{S_MRH+1}, s{S_MRH}")
    A(f"s_mov_b32 s{S_L2E}, {LOG2E:#x}")
    A(f"s_mov_b32 s{S_L2E+1}, {LOG2E:#x}")
    A(f"s_mov_b32 s{S_M16}, 0xffff0000")
    A(f"s_mov_b32 s{S_M16+1}, 0xffff0000")
    A(f"s_add_u32 s{S_GRP}, s{S_CHUNK}, {0 if role == 'A' else 16}")
    slin(P_XCCB, WS_XCC, (S_GRP, 128))
    A(f"s_and_b32 s{S_MF}, s{S_CG}, 1")
    slin(P_OUT, 0 if role == "A" else 2048, (S_CHUNK, 1 << 19), (S_RH, 1 << 18), (S_CG, 256), (S_CH, 128), (S_MF, 1 << 17))
    A(f"s_xor_b32 s{P_OUT2}, s{P_OUT}, {1 << 17:#x}")
    slin(P_TAGSEL, 0, (S_CHUNK, 256), (S_CG, 16), (S_WAVE, 1))
    A(f"s_and_b32 s{ST}, s{S_CHUNK}, 3")
    A(f"s_lshl_b32 s{ST}, s{ST}, 1")
    A(f"s_mov_b32 s{KAP[0]}, s{S_CG}")
    for j in range(1, 8):
        A(f"s_add_u32 s{ST+1}, s{ST}, {j-1}")
        A(f"s_cmp_ge_u32 s{ST+1}, 7")
        A(f"s_addc_u32 s{ST+1}, s{ST+1}, 1")
        A(f"s_add_u32 s{ST+1}, s{ST+1}, s{S_CG}")
        A(f"s_and_b32 s{KAP[j]}, s{ST+1}, 7")
    if OPT.get("tlb", 0):
        A(f"v_and_b32 v9, 15, v{V_LANE}")
        A("v_lshlrev_b32 v9, 20, v9")
        A(f"buffer_load_dword v254, v9, s[{SWS}:{SWS+3}], 0 offen offset:2048")
        A(f"buffer_load_dword v254, v9, s[{SOUT}:{SOUT+3}], 0 offen")
        A(f"buffer_load_dword v254, v9, s[{SW2}:{SW2+3}], 0 offen")
    A(f"v_lshlrev_b32 v{V_LIN}, 4, v{V_LANE}")
    A(f"v_mov_b32 v{V_L0}, {OOB:#x}")
    A(f"v_cmp_eq_u32 vcc, 0, v{V_LANE}")
    if not HAND:
        A(f"v_lshlrev_b32 v{V_CHK}, 2, v{V_N}")
        slin(P_FLAGB, WS_FLAG, (S_GRP, 128))
        slin(P_FLW, 0, (S_CG, 16), (S_WAVE, 4), (P_FLAGB, 1))
        A(f"s_getreg_b32 s{S_XW}, hwreg(HW_REG_XCC_ID, 0, 4)")
    A(f"v_lshlrev_b32 v{V_XPO}, 2, v4")
    A(f"v_cndmask_b32_e64 v{V_L0}, v{V_L0}, 0, vcc")
    A(f"v_lshlrev_b32 v{V_OUTO}, 14, v{V_G}")
    A(f"v_lshl_add_u32 v{V_OUTO}, v{V_N}, 2, v{V_OUTO}")
    slin(P_FLAGO, 0, (S_CG, 4), (P_XCCB, 1))
    A("s_waitcnt lgkmcnt(0)")
    A(f"s_add_u32 s{S_TAG}, s{S_TAG}, 1")
    if OPT["stamps"]: A("s_mov_b32 s99, 0")
    if not HAND:
        A(f"s_lshl_b32 s{ST}, s{S_TAG}, 4")
        A(f"s_or_b32 s{S_XW}, s{S_XW}, s{ST}")
        A(f"v_mov_b32 v9, s{S_XW}")
        A(f"buffer_store_dword v9, v{V_L0}, s[{SWS}:{SWS+3}], s{P_FLAGO} offen sc1")

def lds_b128_addrs(base_reg, wave_off_sreg, const, nsets):
    A(f"v_bfe_u32 v9, v{V_N}, 1, 3")
    A(f"v_xor_b32 v9, v9, v{V_G}")
    A("v_lshlrev_b32 v9, 4, v9")
    A(f"v_lshl_add_u32 v9, v{V_N}, 7, v9")
    A(f"v_add_u32 v9, s{wave_off_sreg}, v9")
    if const: A(f"v_add_u32 v9, {const:#x}, v9")
    for ks in range(4):
        A(f"v_xor_b32 v{base_reg+ks}, {32*ks}, v9")
    for st in range(1, nsets):
        for ks in range(4): A(f"v_add_u32 v{base_reg+4*st+ks}, {st*0x10000:#x}, v{base_reg+ks}")

def rdy_load(reg, dummy=9):
    if not HAND: A(f"buffer_load_dword v{dummy}, v{V_CHK}, s[{SWS}:{SWS+3}], s{P_FLAGB} offen sc1")
    A(f"buffer_load_dword v{reg}, v{V_XPO}, s[{SWS}:{SWS+3}], s{P_XCCB} offen sc1")
def rdy_check(dst, reg):
    if HAND: A(f"v_xor_b32 v{dst}, s{S_TAG}, v{reg}")
    else:
        A(f"v_xor_b32 v{reg}, s{S_XW}, v{reg}")
        A(f"v_lshrrev_b32 v{dst}, 4, v{reg}")
def rdy_store():
    if HAND: A(f"buffer_store_dword v11, v{V_L0}, s[{SWS}:{SWS+3}], s{P_FLAGO} offen sc1")
def xcc_decide(reg):
    if HAND: return
    A(f"v_cmp_ne_u32 vcc, 0, v{reg}")
    A("s_cmp_lg_u64 vcc, 0")
    A(f"s_cselect_b32 s{S_SLOW}, 1, 0")
def flag_store():
    slow, join = lab("slow"), lab("join")
    A(f"s_cmp_lg_u32 s{S_SLOW}, 0")
    A(f"s_cbranch_scc1 {slow}")
    A(f"buffer_store_dword v11, v{V_L0}, s[{SWS}:{SWS+3}], s{P_FLW} offen")
    A.label(join)
    def later():
        A.label(slow)
        A(f"buffer_store_dword v11, v{V_L0}, s[{SWS}:{SWS+3}], s{P_FLW} offen sc1")
        A(f"s_branch {join}")
    DEFER.append(later)
def flag_poll():
    poll(lambda: A(f"buffer_load_dword v13, v{V_CHK}, s[{SWS}:{SWS+3}], s{P_FLAGB} offen sc1"),
         lambda: A(f"v_cmp_ne_u32 s[{S_FAIL}:{S_FAIL+1}], s{S_TAG}, v13"))

DEFER = []
def make_verify(pieces, slot, second):
    retry, back = lab("retry"), lab("back")
    def reads():
        A(f"v_add_u32 v9, {slot*SLOT:#x}, v{V_CHK}")
        A("ds_read_b32 v13, v9")
        A(f"ds_read_b32 v14, v9 offset:{second}")
    def cmp():
        A("v_max_u32 v13, v13, v14")
        A("v_cmp_eq_u32 vcc, -1, v13")
    def branch():
        A("s_cmp_lg_u64 vcc, 0")
        A(f"s_cbranch_scc1 {retry}")
        A.label(back)
    def later():
        top, done = lab("rl"), lab("rd")
        A.label(retry)
        A.hist = []
        A(f"s_mov_b32 s{S_SM0}, m0")
        A(f"s_mov_b32 s{S_CNT}, {SPIN_LIMIT}")
        A.label(top)
        run(pieces(S_RS))
        A("s_waitcnt vmcnt(0)")
        A("ds_read_b32 v13, v9")
        A(f"ds_read_b32 v14, v9 offset:{second}")
        A("s_waitcnt lgkmcnt(0)")
        cmp()
        A("s_cmp_eq_u64 vcc, 0")
        A(f"s_cbranch_scc1 {done}")
        A(f"s_sub_u32 s{S_CNT}, s{S_CNT}, 1")
        A(f"s_cbranch_scc0 {top}")
        A.label(done)
        if OPT["stamps"]:
            A(f"s_sub_u32 s{S_CNT}, {SPIN_LIMIT + 1}, s{S_CNT}")
            A(f"s_add_u32 s99, s99, s{S_CNT}")
        A(f"s_mov_b32 m0, s{S_SM0}")
        A(f"s_branch {back}")
    DEFER.append(later)
    return reads, cmp, branch

def tag_update(role):
    skip = lab("notag")
    A(f"s_cmp_eq_u32 s{P_TAGSEL}, {(15 if role == 'A' else 0) << 8}")
    A(f"s_cbranch_scc0 {skip}")
    A(f"buffer_store_dword v11, v{V_L0}, s[{SWS}:{SWS+3}], 0 offen offset:{WS_TAGA if role == 'A' else WS_TAGB} sc1")
    A.label(skip)

def out_stores(acc, ph):
    def mk(r):
        def f():
            row = 8 * (r >> 2) + (r & 3)
            A(f"s_add_u32 s{ST+1}, s{P_OUT+ph}, {row*4096}")
            A(f"buffer_store_dword v{acc+16*ph+r}, v{V_OUTO}, s[{SOUT}:{SOUT+3}], s{ST+1} offen {OUTF}")
        return f
    return [mk(r) for r in range(16)]

SCHED = {
    0: ({0: [2, 3], 1: [4], 2: [5], 3: [6], 4: [7]}, 5, {0: "all"}),
    1: ({i: [i + 2] for i in range(6)}, 6, {i: "front" for i in range(6)}),
    2: ({0: [2], 1: [3], 2: [4], 3: [5, 6], 4: [7]}, 5, {3: "all"}),
    3: ({0: [2], 1: [3], 2: [4, 5], 3: [6], 4: [7]}, 5, {2: "all"}),
    4: ({0: [2], 1: [3], 2: [4], 3: [5], 4: [6], 5: [7]}, 6, {2: "front", 3: "front", 4: "front", 5: "front"}),
    5: ({0: [2], 1: [3, 4], 2: [5], 3: [6], 4: [7]}, 5, {1: "all"}),
    6: ({i: [i + 3] for i in range(5)}, 5, {}),
    7: ({i: [i + 3] for i in range(5)}, 5, {0: "front", 1: "front"}),
}[OPT.get("sched", 6)]
EARLY = OPT.get("sched", 6) >= 6
NPRE = OPT.get("npre", 4)
NX = OPT.get("nx", 5)
XST = SCHED[1]
def g1_gaps(n, busy):
    i = n >> 2
    if SCHED[2].get(i) in ("all", "front") or i in busy: return (0, 1, 2, 3)
    return (2, 3)
OUTF = {0: "sc1", 1: "sc1 nt", 2: "sc0 sc1", 3: "nt", 4: "", 5: "sc0 sc1 nt"}[OPT.get("outf", 0)]
XF = "nt " if OPT["xnt"] else ""
PLF = {0: "sc1 ", 1: "", 2: "sc0 ", 3: "nt "}[OPT.get("plf", 0)]

def role_A():
    V_AX, V_AW = 24, 32
    V_GO, V_SCW = 44, 3
    V_XF, V_WF = 48, 64
    URE, UIM = 80, 112
    ACC2 = 144
    HP = 176
    XS, DG, V_GE = 176, 192, 200
    V_PUB, V_XSO, V_HSO = 204, 205, 223
    C_LAM, C_M1, C_M2, C_L, C_MQ, C_LQ, C_C2 = 208, 210, 212, 214, 216, 218, 220
    C_DSK = 222
    T0 = 224
    P_SAB, P_SAO, P_XS0, P_XS1 = P0, P0 + 1, P0 + 2, P0 + 3
    code_prefetch()
    A("v_lshrrev_b32 v9, 1, v3")
    A("v_xor_b32 v9, v9, v4")
    A("v_lshlrev_b32 v9, 4, v9")
    A("v_lshrrev_b32 v10, 2, v3")
    A("v_lshlrev_b32 v10, 5, v10")
    A("v_and_b32 v11, 1, v3")
    A("v_lshl_add_u32 v10, v11, 4, v10")
    A("v_bfe_u32 v11, v3, 1, 1")
    A("v_add_u32 v10, v10, v11")
    A("v_lshl_add_u32 v10, v10, 10, v9")
    slin(ST, 0, (S_CHUNK, 1 << 17), (S_RH, 1 << 16), (S_CH, 1 << 13))
    A(f"v_add_u32 v{V_OX}, s{ST}, v10")
    A(f"v_xor_b32 v11, 64, v{V_OX}")
    A(f"v_add_u32 v{V_OX+1}, 1024, v11")
    A(f"v_add_u32 v{V_OX+2}, 2048, v{V_OX}")
    A(f"v_add_u32 v{V_OX+3}, 3072, v11")
    A("v_lshl_add_u32 v10, v3, 10, v9")
    slin(ST, 0, (S_CG, 1 << 16), (S_CH, 1 << 15))
    A(f"v_add_u32 v{V_OW}, s{ST}, v10")
    A(f"v_xor_b32 v11, 64, v{V_OW}")
    A(f"v_add_u32 v{V_OW+1}, 7168, v11")
    A(f"v_add_u32 v{V_OW+2}, {2*7168}, v{V_OW}")
    A(f"v_add_u32 v{V_OW+3}, {3*7168}, v11")
    slin(ST, 0, (S_CG, 128), (S_CH, 64))
    A(f"v_lshl_add_u32 v14, v{V_N}, 1, s{ST}")
    A(f"s_cmp_eq_u32 s{S_RH}, 0")
    A("s_waitcnt lgkmcnt(0)")
    A(f"s_cselect_b32 s{SW}, s{K_BRE}, s{K_BIM}")
    A(f"s_cselect_b32 s{SW+1}, s{K_BRE+1}, s{K_BIM+1}")
    A(f"s_cselect_b32 s{SW2}, s{K_CRE}, s{K_CIM}")
    A(f"s_cselect_b32 s{SW2+1}, s{K_CRE+1}, s{K_CIM+1}")
    A(f"s_mov_b32 s{SW+2}, 0x80000")
    A(f"s_mov_b32 s{SW+3}, 0x20000")
    stamp(1)
    A(f"s_load_dword s{S_TAG}, s[{K_WS}:{K_WS+1}], {WS_TAGA}")
    srd(SX, K_AX, 0x200000)
    tok = {}
    def g1_pieces(i):
        slot = i & 3
        return (dma_pieces(V_OW, SW, ST + 8, slot * SLOT, pre=lambda: rot_soff(ST + 8, i, shift=7, rot=S_ROT1)) +
                dma_pieces(V_OX, SX, ST + 8, slot * SLOT + 16384, post=lambda: tok.__setitem__(i, A.vm), flags=XF))
    CLDS = {1: 4 * SLOT, 2: 4 * SLOT + 16384, 0: 0, 3: 16384, 4: SLOT, 5: SLOT + 16384, 6: 2 * SLOT, 7: 2 * SLOT + 16384}
    CORD = [1, 2, 0, 3, 4, 5, 6, 7]
    def c_pieces(st):
        return dma_pieces(V_OW, SW2, ST + 9, CLDS[st], pre=lambda: A(f"s_lshl_b32 s{ST+9}, s{KAP[st]}, 7"))
    A(f"global_load_ushort v{T0}, v14, s[{K_LRE}:{K_LRE+1}]")
    A(f"global_load_ushort v{T0+1}, v14, s[{K_LIM}:{K_LIM+1}]")
    A(f"global_load_ushort v{T0+2}, v14, s[{K_LDT}:{K_LDT+1}]")
    A(f"global_load_ushort v{C_DSK}, v14, s[{K_DSK}:{K_DSK+1}]")
    tok_small = A.vm
    run(g1_pieces(0))
    A(f"s_mov_b32 s{SW2+2}, 0x80000")
    A(f"s_mov_b32 s{SW2+3}, 0x20000")
    late = g1_pieces(1)
    if EARLY:
        run(late[:NPRE]); late = late[NPRE:] + g1_pieces(2)
    else:
        run(late); late = []
    if OPT.get("wtouch", 0):
        slin(ST, 0, (S_CG, 1 << 16), (S_CHUNK, 4096), (S_CH, 2048))
        A(f"v_and_b32 v9, 15, v{V_LANE}")
        A("v_lshlrev_b32 v9, 7, v9")
        A(f"buffer_load_dword v254, v9, s[{SW2}:{SW2+3}], s{ST} offen")
    stamp(2)
    cut("A")
    A(f"s_lshl_b32 s{ST}, s{S_RH}, 13")
    lds_b128_addrs(V_AX, ST, 16384, 2)
    A(f"s_lshl_b32 s{ST}, s{S_CH}, 12")
    lds_b128_addrs(V_AW, ST, 0, 3)
    if OPT.get("lateset", 0): A.cap = []
    common_setup("A")
    slin(P_SAB, WS_SA, (S_CG, 1 << 14), (S_CH, 512))
    slin(P_SAO, 0, (S_CHUNK, 1024), (P_SAB, 1))
    slin(P_XS0, 0, (S_CHUNK, 1 << 17), (S_RH, 1 << 16), (S_CG, 128), (S_CH, 64), (S_MF, 32768))
    A(f"s_xor_b32 s{P_XS1}, s{P_XS0}, 32768")
    slin(P_ACTW, WS_H, (S_CHUNK, 1 << 18), (S_CG, 1 << 15), (S_WAVE, 4096))
    slin(P_ACTR, WS_H, (S_CHUNK, 1 << 18), (S_WAVE, 4096), (S_MF, 16384))
    A(f"s_xor_b32 s{P_ACTR2}, s{P_ACTR}, 16384")
    A(f"v_lshlrev_b32 v9, 14, v{V_G}")
    A(f"v_lshl_add_u32 v{V_HSO}, v{V_N}, 4, v9")
    clears = [f"buffer_store_dwordx4 {vr(T0+24,4)}, v{V_HSO}, s[{SWS}:{SWS+3}], s{P_ACTW} offen offset:{k*512} sc1" for k in range(8)]
    A(f"v_mov_b32 v{V_TAG}, s{S_TAG}")
    A(f"v_mov_b32 v11, s{S_TAG}")
    A(f"v_lshlrev_b32 v{V_XSO}, 10, v{V_N}")
    A(f"v_lshl_add_u32 v{V_XSO}, v{V_G}, 5, v{V_XSO}")
    SCR = 3 * SLOT
    slin(ST, SCR, (S_CH, 256))
    A(f"v_lshl_add_u32 v4, v{V_N}, 3, s{ST}")
    A(f"s_lshl_b32 s{ST}, s{S_RH}, 10")
    A(f"v_lshl_add_u32 v3, v{V_G}, 9, v4")
    A(f"v_add_u32 v3, s{ST}, v3")
    A(f"v_lshlrev_b32 v13, 4, v{V_N}")
    A(f"v_mov_b32 v14, {OOB:#x}")
    A(f"s_or_b64 s[{ST+2}:{ST+3}], s[{S_MG}:{S_MG+1}], s[{S_MRH}:{S_MRH+1}]")
    A(f"v_cndmask_b32_e64 v{V_PUB}, v13, v14, s[{ST+2}:{ST+3}]")
    if OPT.get("prew", 1):
        for r in range(4): A(f"v_subrev_u32 v{T0+20+r}, 1, v{V_TAG}")
        A(f"buffer_store_dwordx4 {vr(T0+20,4)}, v{V_PUB}, s[{SWS}:{SWS+3}], s{P_SAO} offen sc1")
    A(f"s_lshl_b32 s{ST+4}, s{S_RH}, 3")
    A(f"s_sub_u32 s{ST+4}, s{S_CHUNK}, s{ST+4}")
    A(f"s_sub_u32 s{ST+4}, s{ST+4}, 1")
    A(f"v_lshlrev_b32 v9, 2, v{V_G}")
    A(f"v_sub_u32 v9, s{ST+4}, v9")
    for i in range(4):
        A(f"v_subrev_u32 v{V_GO+i}, {i}, v9")
        A(f"v_cmp_gt_i32 vcc, 0, v{V_GO+i}")
        A(f"v_lshl_add_u32 v{V_GO+i}, v{V_GO+i}, 10, v13")
        A(f"v_cndmask_b32_e64 v{V_GE+i}, v{V_TAG}, 0, vcc")
        A(f"v_cndmask_b32 v{V_GO+i}, v{V_GO+i}, v14, vcc")
    A.wait_vm(tok_small)
    lre, lim, ldt = T0, T0 + 1, T0 + 2
    A(f"v_and_b32 v9, 1, v{V_N}")
    A("v_lshlrev_b32 v9, 4, v9")
    A(f"v_lshlrev_b32 v{C_DSK}, v9, v{C_DSK}")
    A(f"v_lshrrev_b32 v9, 1, v{V_N}")
    A(f"v_lshlrev_b32 v13, 3, v{V_G}")
    A("v_sub_u32 v9, v9, v13")
    for q in range(8):
        A(f"v_cmp_eq_u32 vcc, {q}, v9")
        A(f"v_cndmask_b32_e64 v{DG+q}, 0, v{C_DSK}, vcc")
    for r in (lre, lim, ldt): A(f"v_lshlrev_b32 v{r}, 16, v{r}")
    A(f"v_mul_f32 v{ldt}, s{S_L2E}, v{ldt}")
    A(f"v_exp_f32 v{ldt}, v{ldt}")
    A(f"v_cvt_pk_bf16_f32 v{ldt}, v{ldt}, v{ldt}")
    A(f"v_lshlrev_b32 v{ldt}, 16, v{ldt}")
    A(f"v_mul_f32 v{T0+4}, v{ldt}, v{lre}")
    A(f"v_mul_f32 v{T0+5}, v{ldt}, v{lim}")
    A(f"v_mul_f32 v{T0+4}, s{S_L2E}, v{T0+4}")
    A(f"v_exp_f32 v{T0+4}, v{T0+4}")
    A(f"v_mul_f32 v{T0+5}, {INV2PI:#x}, v{T0+5}")
    A(f"v_rndne_f32 v{T0+6}, v{T0+5}")
    A(f"v_sub_f32 v{T0+5}, v{T0+5}, v{T0+6}")
    A(f"v_cos_f32 v{T0+6}, v{T0+5}")
    A(f"v_sin_f32 v{T0+7}, v{T0+5}")
    A(f"v_mul_f32 v{C_LAM}, v{T0+4}, v{T0+6}")
    A(f"v_mul_f32 v{C_LAM+1}, v{T0+4}, v{T0+7}")
    A(f"v_add_f32 v{T0+4}, -1.0, v{C_LAM}")
    A(f"v_mul_f32 v{T0+5}, v{lre}, v{lre}")
    A(f"v_fmac_f32 v{T0+5}, v{lim}, v{lim}")
    A(f"v_rcp_f32 v{T0+5}, v{T0+5}")
    A(f"v_mul_f32 v{T0+6}, v{T0+4}, v{lre}")
    A(f"v_fmac_f32 v{T0+6}, v{C_LAM+1}, v{lim}")
    A(f"v_mul_f32 v{T0+7}, v{C_LAM+1}, v{lre}")
    A(f"v_fma_f32 v{T0+7}, -v{T0+4}, v{lim}, v{T0+7}")
    A(f"v_add_f32 v{T0+5}, v{T0+5}, v{T0+5}")
    A(f"v_mul_f32 v{C_C2}, v{T0+6}, v{T0+5}")
    A(f"v_mul_f32 v{C_C2+1}, v{T0+7}, v{T0+5}")
    pa, pb, tt = T0 + 8, T0 + 10, T0 + 12
    cmul(pa, C_LAM, C_LAM, tt)
    cmul(pb, pa, pa, tt)
    cmul(pa, pb, pb, tt)
    cmul(C_M1, pa, pa, tt)
    cmul(C_M2, C_M1, C_M1, tt)
    cmul(pa, C_M2, C_M2, tt)
    cmul(C_L, pa, pa, tt)
    def sel_pair(dst, src, mask):
        A(f"v_cndmask_b32_e64 v{dst}, 1.0, v{src}, s[{mask}:{mask+1}]")
        A(f"v_cndmask_b32_e64 v{dst+1}, 0, v{src+1}, s[{mask}:{mask+1}]")
    sel_pair(T0 + 14, C_M2, S_MG)
    sel_pair(T0 + 16, pa, S_MRH)
    cmul(C_MQ, T0 + 14, T0 + 16, tt)
    cmul(pa, C_L, C_L, tt)
    cmul(pb, pa, pa, tt)
    cmul(pa, pb, pb, tt)
    sel_pair(T0 + 14, pb, S_MG)
    sel_pair(T0 + 16, pa, S_MRH)
    cmul(C_LQ, T0 + 14, T0 + 16, tt)
    SET, A.cap = (A.cap or []), None
    stamp(3)
    run(late)
    def rd(n):
        i, ks = n >> 2, n & 3
        slot, buf = i & 3, n & 1
        s2_, off = slot >> 1, (slot & 1) * SLOT
        x = [f"ds_read_b128 {vr(V_XF+buf*8+m*4,4)}, v{V_AX+4*s2_+ks} offset:{off+m*4096}" for m in range(2)]
        w = [f"ds_read_b128 {vr(V_WF+buf*8+ri*4,4)}, v{V_AW+4*s2_+ks} offset:{off+ri*8192}" for ri in range(2)]
        return [x[0], w[0], w[1], x[1]]
    def mm(n):
        buf = n & 1
        r = []
        for m, ri in ((0, 0), (0, 1), (1, 1), (1, 0)):
            d = vr((URE, UIM)[ri] + 16 * m, 16)
            r.append(mf(d, vr(V_XF + buf * 8 + m * 4, 4), vr(V_WF + buf * 8 + ri * 4, 4), d if n else "0"))
        return r
    fill = []
    def xs_load(m, s):
        return lambda: A(f"buffer_load_dwordx4 {vr(XS+8*m+4*s,4)}, v{V_XSO}, s[{SX}:{SX+3}], s{P_XS0+m} offen offset:{16*s}")
    def on_step(n):
        i, ks = n >> 2, n & 3
        if ks == 0 and OPT.get("g1st") and i: stamp(16 + i)
        if ks == 0:
            for st in SCHED[0].get(i, []): fill.extend(g1_pieces(st))
            if i == XST:
                fill.extend(c_pieces(1) + c_pieces(2))
            elif i == XST + 1:
                fill.extend([xs_load(m, s) for m in range(2) for s in range(2)])
                if OPT.get("ptouch", 0):
                    fill.extend([f"buffer_load_dword v254, v{V_GO+k}, s[{SWS}:{SWS+3}], s{P_SAB} offen sc1" for k in range(4)])
                    fill.append(lambda: rdy_load(254, 254))
    A.wait_vm(tok[0])
    A("s_barrier")
    stamp(4)
    gemm_loop(32, rd, mm, lambda n: tok[n >> 2] if (n & 3) == 0 else None, (2, 2, 0, 0), lambda n: g1_gaps(n, ()), fill, on_step, end_barrier=True, extra=SET, nextra=lambda n, g: NX)
    assert not SET
    assert not fill
    stamp(5)
    P = [T0, T0 + 4]
    def lam_bc(hi): return f"op_sel:[{hi},0,0] op_sel_hi:[{hi},1,1]"
    NEG = "neg_lo:[1,0,0] neg_hi:[1,0,0]"
    cur_re, cur_im = URE, UIM
    for s in range(1, 16):
        d = P[s & 1]
        A(f"v_pk_fma_f32 {vr(d,2)}, {vr(C_LAM,2)}, {vr(cur_im,2)}, {vr(URE+2*s,2)} {lam_bc(1)} {NEG}")
        A(f"v_pk_fma_f32 {vr(d+2,2)}, {vr(C_LAM,2)}, {vr(cur_re,2)}, {vr(UIM+2*s,2)} {lam_bc(1)}")
        A(f"v_pk_fma_f32 {vr(d,2)}, {vr(C_LAM,2)}, {vr(cur_re,2)}, {vr(d,2)} {lam_bc(0)}")
        A(f"v_pk_fma_f32 {vr(d+2,2)}, {vr(C_LAM,2)}, {vr(cur_im,2)}, {vr(d+2,2)} {lam_bc(0)}")
        cur_re, cur_im = d, d + 2
    A0, BQ = T0 + 8, T0 + 10
    A(f"v_fma_f32 v{BQ}, v{C_M1}, v{cur_re}, v{cur_re+1}")
    A(f"v_fma_f32 v{BQ+1}, v{C_M1}, v{cur_im}, v{cur_im+1}")
    A(f"v_fma_f32 v{BQ}, -v{C_M1+1}, v{cur_im}, v{BQ}")
    A(f"v_fma_f32 v{BQ+1}, v{C_M1+1}, v{cur_re}, v{BQ+1}")
    A(f"ds_write_b64 v3, {vr(BQ,2)}")
    A(f"v_mov_b32 v{A0}, v{cur_re}")
    A(f"v_mov_b32 v{A0+1}, v{cur_im}")
    P2, P3, SS, tt = T0 + 20, T0 + 22, T0 + 24, T0 + 28
    A(f"v_mov_b32 v{SS+1}, s{S_TAG}")
    A(f"v_mov_b32 v{SS+3}, s{S_TAG}")
    def c2_bc(hi, n=3):
        return f"op_sel:[{hi},0,0] op_sel_hi:[{hi},1,1]" if n == 3 else f"op_sel:[{hi},0] op_sel_hi:[{hi},1]"
    cm = []
    for s in range(16):
        re, im, t = URE + 2 * s, UIM + 2 * s, T0 + 2 + 2 * (s & 1)
        cm += [f"v_pk_mul_f32 {vr(t,2)}, {vr(C_C2,2)}, {vr(re,2)} {c2_bc(1,2)} neg_lo:[1,0] neg_hi:[1,0]",
               f"v_pk_mul_f32 {vr(re,2)}, {vr(C_C2,2)}, {vr(re,2)} {c2_bc(0,2)}",
               f"v_pk_fma_f32 {vr(re,2)}, {vr(C_C2,2)}, {vr(im,2)}, {vr(re,2)} {c2_bc(1)} {NEG}",
               f"v_pk_fma_f32 {vr(im,2)}, {vr(C_C2,2)}, {vr(im,2)}, {vr(t,2)} {c2_bc(0)} {NEG}"]
    emit(cm[:8])
    if HAND: A.wait_both(tok["clr"], A.lg)
    else: A("s_waitcnt lgkmcnt(0)")
    A("s_barrier")
    B0 = T0 + 12
    for q in range(4):
        A(f"ds_read_b64 {vr(B0+2*q,2)}, v4 offset:{q*512}")
    emit(cm[8:24])
    A("s_waitcnt lgkmcnt(0)")
    cfma(P2, C_M2, B0, B0 + 2, tt)
    cfma(P3, C_M2, P2, B0 + 4, tt)
    cfma(tt, C_M2, P3, B0 + 6, tt)
    A(f"v_mov_b32 v{SS}, v{tt}")
    A(f"v_mov_b32 v{SS+2}, v{tt+1}")
    A(f"buffer_store_dwordx4 {vr(SS,4)}, v{V_PUB}, s[{SWS}:{SWS+3}], s{P_SAO} offen sc1")
    rdy_store()
    stamp(6)
    emit(cm[24:])
    LOC = T0 + 0
    for e in range(2):
        A(f"v_cndmask_b32_e64 v{T0+2+e}, 0, v{B0+e}, s[{S_MG}:{S_MG+1}]")
        A(f"v_cndmask_b32_e64 v{T0+4+e}, v{P2+e}, v{P3+e}, s[{S_MG}:{S_MG+1}]")
        A(f"v_cndmask_b32_e64 v{LOC+e}, v{T0+2+e}, v{T0+4+e}, s[{S_MRH}:{S_MRH+1}]")
    E0, F0, E1, F1 = T0 + 12, T0 + 14, T0 + 16, T0 + 18
    cfma(P2, C_M1, LOC, A0, tt)
    cmul(F1, C_C2, P2, tt)
    cmul(F0, C_C2, LOC, tt)
    cmul(E0, C_C2, C_MQ, tt)
    cmul(E1, E0, C_M1, tt)
    V_AH = V_AX
    A(f"v_bfe_u32 v9, v{V_LANE}, 4, 1")
    A(f"v_bfe_u32 v13, v{V_LANE}, 1, 1")
    A("v_lshl_add_u32 v9, v9, 1, v13")
    A(f"v_bfe_u32 v13, v{V_LANE}, 2, 2")
    A(f"v_lshl_add_u32 v13, v{V_G}, 3, v13")
    A("v_lshlrev_b32 v14, 2, v9")
    A("v_xor_b32 v13, v13, v14")
    A("v_lshlrev_b32 v13, 4, v13")
    A("v_lshl_add_u32 v13, v9, 9, v13")
    A(f"v_and_b32 v14, 1, v{V_LANE}")
    A("v_lshl_add_u32 v13, v14, 3, v13")
    A(f"s_lshl_b32 s{ST+2}, s{S_RH}, 13")
    A(f"v_add_u32 v{V_AH}, s{ST+2}, v13")
    A(f"v_xor_b32 v{V_AH+1}, 64, v{V_AH}")
    V_AO = T0 + 4
    A("v_lshl_add_u32 v13, v9, 9, v13")
    slin(ST + 2, 3 * SLOT, (S_RH, 16384), (S_MF, 512))
    A(f"v_add_u32 v{V_AO}, s{ST+2}, v13")
    A(f"v_xor_b32 v{V_AO+1}, 64, v{V_AO}")
    A(f"v_xor_b32 v{V_AO+2}, 0x200, v{V_AO}")
    A(f"v_xor_b32 v{V_AO+3}, 0x240, v{V_AO}")
    for st in (1, 2):
        A(f"v_add_u32 v{V_AH+2*st}, {st*0x10000:#x}, v{V_AH}")
        A(f"v_add_u32 v{V_AH+2*st+1}, {st*0x10000:#x}, v{V_AH+1}")
    CPRE = 2 + OPT.get('cpre', 6)
    for st in CORD[2:CPRE]: run(c_pieces(st))
    stamp(7)
    GD = 48
    def loads():
        for i in range(4):
            A(f"buffer_load_dwordx4 {vr(GD+4*i,4)}, v{V_GO+i}, s[{SWS}:{SWS+3}], s{P_SAB} offen sc1")
        rdy_load(14)
    def check():
        rdy_check(13, 14)
        for i in range(4):
            A(f"v_xor_b32 v{GD+4*i+1}, v{GD+4*i+1}, v{V_GE+i}")
            A(f"v_xor_b32 v{GD+4*i+3}, v{GD+4*i+3}, v{V_GE+i}")
            A(f"v_or3_b32 v13, v13, v{GD+4*i+1}, v{GD+4*i+3}")
        A(f"v_cmp_ne_u32 s[{S_FAIL}:{S_FAIL+1}], 0, v13")
    poll(loads, check)
    stamp(8)
    for i in range(4):
        A(f"v_mov_b32 v{GD+4*i+1}, v{GD+4*i+2}")
    h1, h2 = T0 + 20, T0 + 22
    cfma(h1, C_L, GD + 12, GD + 8, tt)
    cfma(h2, C_L, h1, GD + 4, tt)
    cfma(h1, C_L, h2, GD + 0, tt)
    cmul(h2, C_LQ, h1, tt)
    A(f"ds_write_b64 v3, {vr(h2,2)} offset:2048")
    for m in range(2):
        d = vr(ACC2 + 16 * m, 16)
        for s in range(2):
            A(mf(d, vr(XS + 8 * m + 4 * s, 4), vr(DG + 4 * s, 4), d if s else "0"))
    xcc_decide(14)
    for o in range(1, 4):
        A(f"v_xor_b32 v{V_GO+o}, {o*64}, v{V_HSO}")
    A("s_waitcnt lgkmcnt(0)")
    A("s_barrier")
    CQ = GD
    for q in range(4):
        A(f"ds_read_b64 {vr(CQ+2*q,2)}, v4 offset:{2048+q*512}")
    tq = A.lg
    def c_reads(st):
        s2_, off = CLDS[st] >> 16, CLDS[st] & 0xffff
        r = [None] * 8
        for ks in range(4):
            for ri in range(2):
                kap = (ks >> 1) * 4 + ri * 2 + (ks & 1)
                r[kap] = f"ds_read_b128 {ar((st*8+kap)*4,4)}, v{V_AW+4*s2_+ks} offset:{off+ri*8192}"
        return r
    A.wait_lg(tq)
    A(f"v_pk_add_f32 {vr(CQ,2)}, {vr(CQ,2)}, {vr(CQ+2,2)}")
    A(f"v_pk_add_f32 {vr(CQ+4,2)}, {vr(CQ+4,2)}, {vr(CQ+6,2)}")
    A(f"v_pk_add_f32 {vr(CQ,2)}, {vr(CQ,2)}, {vr(CQ+4,2)}")
    HR, HI = T0 + 20, T0 + 22
    A(f"v_fma_f32 v{HR}, v{E0}, v{CQ}, v{F0}")
    A(f"v_fma_f32 v{HR+1}, v{E1}, v{CQ}, v{F1}")
    A(f"v_fma_f32 v{HI}, -v{E0}, v{CQ+1}, -v{F0+1}")
    A(f"v_fma_f32 v{HI+1}, -v{E1}, v{CQ+1}, -v{F1+1}")
    A(f"v_fma_f32 v{HR}, -v{E0+1}, v{CQ+1}, v{HR}")
    A(f"v_fma_f32 v{HR+1}, -v{E1+1}, v{CQ+1}, v{HR+1}")
    A(f"v_fma_f32 v{HI}, -v{E0+1}, v{CQ}, v{HI}")
    A(f"v_fma_f32 v{HI+1}, -v{E1+1}, v{CQ}, v{HI+1}")
    pr, pi_ = HR, HI
    hst = []
    for hf in range(2):
        for s in range(8 * hf, 8 * hf + 8):
            re, im = URE + 2 * s, UIM + 2 * s
            emit([f"v_pk_fma_f32 {vr(re,2)}, {vr(C_LAM,2)}, {vr(pi_,2)}, {vr(re,2)} {lam_bc(1)}",
                  f"v_pk_fma_f32 {vr(im,2)}, {vr(C_LAM,2)}, {vr(pr,2)}, {vr(im,2)} {lam_bc(1)} {NEG}",
                  f"v_pk_fma_f32 {vr(re,2)}, {vr(C_LAM,2)}, {vr(pr,2)}, {vr(re,2)} {lam_bc(0)}",
                  f"v_pk_fma_f32 {vr(im,2)}, {vr(C_LAM,2)}, {vr(pi_,2)}, {vr(im,2)} {lam_bc(0)}"])
            pr, pi_ = re, im
        for ri in range(2):
            U = (URE, UIM)[ri]
            for z in range(2):
                o = 2 * z + hf
                d = HP + (ri * 4 + o) * 4
                for u in range(4):
                    s0 = 8 * hf + 2 * u
                    A(f"v_cvt_pk_bf16_f32 v{d+u}, v{U+2*s0+z}, v{U+2*s0+2+z}")
                A(f"buffer_store_dwordx4 {vr(d,4)}, v{V_GO+o if o else V_HSO}, s[{SWS}:{SWS+3}], s{P_ACTW} offen offset:{(ri*4+o)*512} sc1")
                hst.append((ri * 4 + o, A.vm))
    tok_h = A.vm
    stamp(9)
    HS = [3, 4, 0, 1, 3, 4, 0, 1]
    def h_pieces(G):
        r = []
        for sub in range(2):
            pos, ph = SEQ[2 * G + sub]
            r += dma_pieces(V_LIN, SWS, ST + 8, HS[G] * SLOT + sub * 16384,
                            pre=lambda pos=pos, ph=ph: (A(f"s_lshl_b32 s{ST+8}, s{KAP[pos]}, 15"), A(f"s_add_u32 s{ST+8}, s{ST+8}, s{P_ACTR+ph}")),
                            post=(lambda: tok.__setitem__(("h", G), A.vm)) if sub else None, flags=PLF, same_v=True)
        return r
    assert CPRE == 8
    call = sum([c_reads(st) for st in [0, 1, 2, 3, 4, 5, 6, 7]], [])
    HF = 48
    def rd2(n):
        G, q = n >> 2, n & 3
        slot, buf = HS[G], n & 1
        r = []
        for h in range(4):
            kap = 4 * (q & 1) + h
            off = (slot & 1) * SLOT + (q >> 1) * 16384 + (kap >> 2) * 4096 + ((kap >> 1) & 1) * 2048 + (kap & 1) * 256
            for j in range(2):
                if G == 0:
                    o2 = (kap >> 2) * 8192 + ((kap >> 1) & 1) * 4096 + (kap & 1) * 256
                    r.append(f"ds_read_b64_tr_b16 {vr(HF+buf*16+h*4+2*j,2)}, v{V_AO+2*(q>>1)+j} offset:{o2}")
                else:
                    r.append(f"ds_read_b64_tr_b16 {vr(HF+buf*16+h*4+2*j,2)}, v{V_AH+2*(slot>>1)+j} offset:{off}")
        return r
    def mm2(n):
        buf = n & 1
        pos, ph = SEQ[n >> 1]
        d = vr(ACC2 + 16 * ph, 16)
        return [mf(d, vr(HF + buf * 16 + h * 4, 4), ar((8 * pos + 4 * (n & 1) + h) * 4, 4), d) for h in range(4)]
    A("s_barrier")
    slin(ST + 2, 3 * SLOT, (S_WAVE, 8192))
    A(f"v_add_u32 v{V_GO}, s{ST+2}, v{V_LIN}")
    for o in range(1, 4): A(f"v_xor_b32 v{V_GO+o}, {o*64}, v{V_GO}")
    for p in range(8):
        A(f"ds_write_b128 v{V_GO+(p&3)}, {vr(HP+4*p,4)} offset:{p*1024}")
    emit(call[:8])
    A("s_waitcnt lgkmcnt(0)")
    A("s_barrier")
    cf = call[8:]
    gemm_loop(4, rd2, mm2, lambda n: None, (3, 3, 2, 0), (2, 3), cf)
    emit(cf[:24]); cf = cf[24:]
    A.wait_vm(tok_h)
    flag_store()
    stamp(10)
    emit(cf)
    A("s_waitcnt lgkmcnt(0)")
    A("s_barrier")
    flag_poll()
    stamp(11)
    run(h_pieces(1) + h_pieces(2))
    stamp(12)
    fill = []
    def on_step2(n):
        G, q = n >> 2, n & 3
        if q == 0:
            if G == 1: fill.extend(h_pieces(3) + h_pieces(4))
            elif G + 3 < 8: fill.extend(h_pieces(G + 3))
            elif G == 5: fill.extend(out_stores(ACC2, 0))
    A.wait_vm(tok[("h", 1)])
    A("s_barrier")
    stamp(13)
    gemm_loop(32, rd2, mm2, lambda n: tok[("h", n >> 2)] if (n & 3) == 0 else None, (3, 3, 2, 0),
              lambda n: (0, 1, 2, 3) if n < 8 else (2, 3), fill, on_step2, start=4)
    assert not fill
    stamp(14)
    run(out_stores(ACC2, 1))
    tag_update("A")
    stamp(15)
    finish()

def role_B():
    V_OO = 24
    V_AX, V_AT = 28, 36
    V_SW, V_SR, V_P2, V_G2B, V_PB0, V_PB1, V_G1, V_GZ, V_G2, V_P2Z = 39, 40, 41, 42, 43, 44, 45, 46, 47, 253
    S_WPH, V_WPO = P0 + 12, 252
    IDF = 216
    V_WF = 48
    KACC, VACC, PK, KV, WPH = 64, 96, 128, 192, 224
    T0 = 232
    P_P1O, P_P1G, P_P2O, P_P2G, P_MSK = P0 + 1, P0 + 2, P0 + 8, P0 + 9, P0 + 10
    S_PART = 57
    WPS = OPT.get('wps', 0)
    QE = OPT.get('qe', 0)
    code_prefetch()
    A("v_lshrrev_b32 v9, 1, v3")
    A("v_xor_b32 v9, v9, v4")
    A("v_lshlrev_b32 v9, 4, v9")
    A("v_lshl_add_u32 v10, v3, 10, v9")
    slin(ST, 0, (S_CHUNK, 1 << 17), (S_WAVE, 1 << 15))
    A(f"v_add_u32 v{V_OX}, s{ST}, v10")
    A(f"v_xor_b32 v11, 64, v{V_OX}")
    A(f"v_add_u32 v{V_OX+1}, 7168, v11")
    A(f"v_add_u32 v{V_OX+2}, {2*7168}, v{V_OX}")
    A(f"v_add_u32 v{V_OX+3}, {3*7168}, v11")
    A("v_bfe_u32 v9, v3, 1, 1")
    A("v_lshlrev_b32 v9, 2, v9")
    A("v_xor_b32 v9, v9, v4")
    A("v_lshlrev_b32 v9, 4, v9")
    A(f"s_lshl_b32 s{ST}, s{S_CG}, 7")
    A(f"v_add_u32 v9, s{ST}, v9")
    A(f"s_lshl_b32 s{ST+1}, s{S_CH}, 5")
    A(f"v_add_u32 v10, s{ST+1}, v3")
    A("v_mul_u32_u24 v11, 3072, v10")
    A(f"v_add_u32 v{V_OW}, v11, v9")
    for p in range(1, 4): A(f"v_add_u32 v{V_OW+p}, {p*(8*3072-1024)}, v{V_OW}")
    A(f"v_lshl_add_u32 v{V_OO}, v10, 10, v9")
    slin(S_PART, 1024, (S_RH, 1024))
    A("s_waitcnt lgkmcnt(0)")
    srd(SW, K_WQKV, 0x180000)
    stamp(1)
    A(f"s_load_dword s{S_TAG}, s[{K_WS}:{K_WS+1}], {WS_TAGB}")
    srd(SX, K_BX, 0x200000)
    tok = {}
    def g1_pieces(i):
        slot = i & 3
        return (dma_pieces(V_OW, SW, ST + 8, slot * SLOT, pre=lambda: rot_soff(ST + 8, i, mul=196608, plus=S_PART, rot=S_ROT1)) +
                dma_pieces(V_OX, SX, ST + 10, slot * SLOT + 16384, pre=lambda: rot_soff(ST + 10, i, shift=7, rot=S_ROT1),
                           post=lambda: tok.__setitem__(i, A.vm), flags=XF))
    QSLOT = [4, 0]; OSLOT = [1, 2]
    def q_pieces(st):
        return dma_pieces(V_OW, SW, ST + 9, QSLOT[st >> 1] * SLOT + (st & 1) * 16384,
                          pre=lambda: rot_soff(ST + 9, 2 * st, mul=196608, extra_sreg=S_RH, rot=S_ROT1), post=lambda: tok.__setitem__(("q", st), A.vm))
    OPAIR = [(1, 2), (0, 3), (4, 5), (6, 7)]
    OLDS = {}
    for st_, pr_ in enumerate(OPAIR):
        for e_ in range(2): OLDS[pr_[e_]] = OSLOT[st_ >> 1] * SLOT + (st_ & 1) * 16384 + e_ * 8192
    def o_pieces(st):
        def pre():
            A(f"s_cmp_eq_u32 s{S_RH}, 0")
            A(f"s_cselect_b32 s{ST+9}, s{KAP[OPAIR[st][0]]}, s{KAP[OPAIR[st][1]]}")
            A(f"s_lshl_b32 s{ST+9}, s{ST+9}, 16")
        return dma_pieces(V_OO, SW2, ST + 9, OSLOT[st >> 1] * SLOT + (st & 1) * 16384, pre=pre)
    run(g1_pieces(0))
    wpl = []
    for hh in range(2):
        for u in range(4):
            d0 = (0, 2, 8, 10)[u]
            wpl.append(f"global_load_ushort v{WPH+4*hh+u}, v{V_WPO}, s[{S_WPH}:{S_WPH+1}] offset:{hh*512+d0*32}")
            wpl.append(f"global_load_ushort v{T0+8+4*hh+u}, v{V_WPO}, s[{S_WPH}:{S_WPH+1}] offset:{hh*512+(d0+1)*32}")
    srd(SW2, K_WO, 0x80000)
    late = g1_pieces(1)
    if EARLY:
        run(late[:NPRE]); late = late[NPRE:] + g1_pieces(2)
    else:
        run(late); late = []
    if OPT.get("wtouch", 0):
        slin(ST, 0, (S_CHUNK, 32), (S_WAVE, 8))
        A(f"v_add_u32 v9, s{ST}, v4")
        A("v_mul_u32_u24 v10, 3072, v9")
        A("v_lshlrev_b32 v9, 10, v9")
        A(f"s_lshl_b32 s{ST}, s{S_CG}, 7")
        A(f"buffer_load_dword v254, v10, s[{SW}:{SW+3}], s{ST} offen")
        A(f"buffer_load_dword v254, v9, s[{SW2}:{SW2+3}], s{ST} offen")
    stamp(2)
    cut("B")
    A(f"s_lshl_b32 s{ST}, s{S_RH}, 13")
    lds_b128_addrs(V_AX, ST, 16384, 2)
    A(f"v_bfe_u32 v9, v{V_LANE}, 4, 1")
    A(f"v_bfe_u32 v13, v{V_LANE}, 1, 1")
    A("v_lshl_add_u32 v10, v9, 1, v13")
    A(f"v_bfe_u32 v13, v{V_LANE}, 3, 1")
    A(f"v_xor_b32 v13, s{S_CH}, v13")
    A("v_lshl_add_u32 v9, v13, 2, v10")
    A("v_lshlrev_b32 v9, 4, v9")
    A(f"v_and_b32 v10, 1, v{V_LANE}")
    A("v_lshl_add_u32 v9, v10, 3, v9")
    A(f"v_bfe_u32 v14, v{V_LANE}, 2, 2")
    A(f"v_lshl_add_u32 v13, v{V_G}, 3, v14")
    A(f"v_lshl_add_u32 v{V_AT}, v13, 7, v9")
    A(f"v_add_u32 v{V_AT+1}, 0x10000, v{V_AT}")
    A(f"v_add_u32 v{V_AT+2}, 0x20000, v{V_AT}")
    if OPT.get("lateset", 0): A.cap = []
    A(f"s_mov_b64 s[{S_WPH}:{S_WPH+1}], s[{K_WPHI}:{K_WPHI+1}]")
    common_setup("B")
    for p in range(1, 4): A(f"v_add_u32 v{V_OO+p}, {p*7168}, v{V_OO}")
    A(f"v_lshrrev_b32 v9, 3, v{V_N}")
    A(f"v_and_b32 v13, 3, v{V_N}")
    A("v_lshl_add_u32 v9, v9, 2, v13")
    A("v_lshlrev_b32 v9, 1, v9")
    A(f"v_lshl_add_u32 v9, v{V_G}, 7, v9")
    slin(ST, 0, (S_CG, 2048), (S_CH, 1024))
    A(f"v_add_u32 v{V_WPO}, s{ST}, v9")
    slin(ST, 0, (S_CG, 512), (S_CH, 256), (S_CHUNK, 2), (S_RH, 1))
    slin(P_P1O, WS_P1, (ST, 640))
    slin(ST, 0, (S_CG, 16), (S_CHUNK, 1))
    slin(P_P2O, WS_P2, (ST, 640))
    slin(P_P1G, WS_P1, (ST, 32 * 640))
    for k in range(1, 4): A(f"s_add_u32 s{P_P1G+k}, s{P_P1G}, {8*k*640}")
    slin(ST, 0, (S_CG, 16), (S_CH, 8))
    slin(P_P2G, WS_P2, (ST, 640))
    A(f"s_mov_b32 s{P_MSK}, 0xffffff00")
    slin(P_ACTW, WS_O, (S_CHUNK, 1 << 17), (S_CG, 1 << 14), (S_RH, 1 << 12), (S_CH, 1 << 11))
    A(f"s_add_u32 s{P_ACTW2}, s{P_ACTW}, 8192")
    slin(P_ACTR, WS_O, (S_CHUNK, 1 << 17), (S_MF, 8192), (S_WAVE, 2048))
    A(f"s_lshl_b32 s{S_M0W2}, s{S_WAVE}, 11")
    A(f"s_xor_b32 s{P_ACTR2}, s{P_ACTR}, 8192")
    clears = [f"buffer_store_dwordx4 {vr(T0+16,4)}, v{V_LIN}, s[{SWS}:{SWS+3}], s{P_ACTW+(k>>1)} offen offset:{(k&1)*1024} sc1" for k in range(4)]
    A(f"s_and_b32 s{ST}, s{S_TAG}, 0xff")
    A(f"v_mov_b32 v{V_TAG}, s{ST}")
    A(f"v_mov_b32 v11, s{S_TAG}")
    A(f"v_and_b32 v9, 1, v{V_N}")
    A("v_lshlrev_b32 v9, 4, v9")
    A("v_mov_b32 v13, 0x3f80")
    A("v_lshlrev_b32 v13, v9, v13")
    A(f"v_lshrrev_b32 v9, 1, v{V_N}")
    A(f"v_lshlrev_b32 v14, 3, v{V_G}")
    A("v_sub_u32 v9, v9, v14")
    for q in range(8):
        A(f"v_cmp_eq_u32 vcc, {q}, v9")
        A(f"v_cndmask_b32_e64 v{IDF+q}, 0, v13, vcc")
    A(f"v_and_b32 v9, 15, v{V_LANE}")
    A("v_cmp_gt_u32 vcc, 4, v9")
    A("v_lshlrev_b32 v9, 4, v9")
    A(f"v_lshl_add_u32 v13, v{V_G}, 6, v9")
    A("v_add_u32 v13, 512, v13")
    A(f"v_lshl_add_u32 v9, v{V_G}, 8, v9")
    A(f"v_mov_b32 v14, {OOB:#x}")
    A("v_cndmask_b32 v13, v14, v13, vcc")
    A(f"v_cndmask_b32_e64 v{V_PB0}, v9, v13, s[{S_M16}:{S_M16+1}]")
    A(f"v_cndmask_b32_e64 v{V_PB1}, v13, v9, s[{S_M16}:{S_M16+1}]")
    A(f"v_cndmask_b32_e64 v13, v13, v14, s[{S_M16}:{S_M16+1}]")
    A(f"s_cmp_eq_u32 s{S_WAVE}, 0")
    A(f"s_cselect_b64 vcc, -1, 0")
    A(f"v_cndmask_b32 v{V_P2Z}, v14, v13, vcc")
    A(f"v_and_b32 v9, 7, v{V_LANE}")
    A(f"s_lshl_b32 s{ST}, s{S_WAVE}, 7")
    A(f"v_lshl_add_u32 v9, v9, 4, s{ST}")
    A(f"v_lshrrev_b32 v13, 3, v{V_LANE}")
    A("v_mul_u32_u24 v13, 640, v13")
    A(f"v_add_u32 v{V_G1}, v9, v13")
    A(f"v_cmp_gt_u32 vcc, 8, v{V_LANE}")
    A(f"v_mul_u32_u24 v{V_GZ}, 640, v{V_N}")
    A(f"v_lshl_add_u32 v{V_GZ}, v{V_G}, 6, v{V_GZ}")
    A(f"v_cndmask_b32 v{V_P2}, v14, v9, vcc")
    A(f"v_bfe_u32 v9, v{V_N}, 2, 1")
    A("v_lshlrev_b32 v9, 3, v9")
    A(f"v_bfe_u32 v13, v{V_N}, 3, 1")
    A("v_lshl_add_u32 v9, v13, 2, v9")
    A(f"v_and_b32 v13, 3, v{V_N}")
    A("v_add_u32 v9, v9, v13")
    A(f"v_cndmask_b32_e64 v9, v9, 32, s[{S_M16}:{S_M16+1}]")
    A("v_lshlrev_b32 v9, 4, v9")
    A(f"v_mul_u32_u24 v13, 1280, v{V_G}")
    A(f"v_add_u32 v{V_G2}, v9, v13")
    A("v_mov_b32 v9, 0x100")
    A(f"v_cndmask_b32_e64 v9, v9, 64, s[{S_M16}:{S_M16+1}]")
    A(f"v_add_u32 v{V_G2B}, v{V_G2}, v9")
    if OPT.get("prew", 1):
        for r in range(4): A(f"v_subrev_u32 v{T0+4+r}, 1, v{V_TAG}")
        A(f"buffer_store_dwordx4 {vr(T0+4,4)}, v{V_P2Z}, s[{SWS}:{SWS+3}], s{P_P2O} offen sc1")
        A(f"buffer_store_dwordx4 {vr(T0+4,4)}, v{V_P2}, s[{SWS}:{SWS+3}], s{P_P2O} offen sc1")
    A("v_mov_b32 v3, 0x3f803f80")
    A(f"v_bfe_u32 v4, v{V_LANE}, 2, 1")
    A("v_mul_u32_u24 v4, 0x8000, v4")
    A("v_lshl_or_b32 v4, v4, 16, v4")
    SET, A.cap = (A.cap or []), None
    stamp(3)
    run(late)
    def trfrag(dst, ldsoff, kind="v"):
        s_, off = ldsoff >> 16, ldsoff & 0xffff
        return [f"ds_read_b64_tr_b16 {vr(dst+2*j,2,kind)}, v{V_AT+s_} offset:{off+j*512}" for j in range(2)]
    def rd(n):
        i, ks = n >> 2, n & 3
        slot, buf = i & 3, n & 1
        s2_, off = slot >> 1, (slot & 1) * SLOT
        x = [f"ds_read_b128 {ar(n*8+m*4,4)}, v{V_AX+4*s2_+ks} offset:{off+m*4096}" for m in range(2)]
        w = [trfrag(V_WF + buf * 8 + part * 4, slot * SLOT + part * 8192 + ks * 2048) for part in range(2)]
        return [x[0]] + w[0] + [x[1]] + w[1]
    def mm(n):
        buf = n & 1
        r = []
        for part, m in ((0, 0), (0, 1), (1, 0), (1, 1)):
            x, w = ar(n * 8 + m * 4, 4), vr(V_WF + buf * 8 + part * 4, 4)
            d = vr((KACC, VACC)[part] + 16 * m, 16)
            r.append(mf(d, w, x, d if n else "0") if part == 0 else mf(d, x, w, d if n else "0"))
        return r
    fill = []
    def on_step(n):
        i, ks = n >> 2, n & 3
        if ks == 0 and OPT.get("g1st") and i: stamp(16 + i)
        if ks == 0:
            if i in (WPS, WPS + 1): fill.extend(wpl[8*(i-WPS):8*(i-WPS)+8])
            for st in SCHED[0].get(i, []): fill.extend(g1_pieces(st))
            if i == 5: fill.extend(q_pieces(0) + (q_pieces(1) if QE == 1 else []))
            if i == 6:
                fill.extend((q_pieces(2) + q_pieces(3)) if QE == 1 else o_pieces(0))
                if OPT.get("ptouch", 0):
                    fill.extend([f"buffer_load_dword v254, v{V_G1}, s[{SWS}:{SWS+3}], s{P_P1G+k} offen sc1" for k in range(4)])
                    fill.append(f"buffer_load_dword v254, v{V_GZ}, s[{SWS}:{SWS+3}], s{P_P1G} offen sc1")
                    fill.extend([f"buffer_load_dword v254, v{V_G2}, s[{SWS}:{SWS+3}], s{P_P2G} offen offset:{(hh*4+jp)*640} sc1" for hh in range(2) for jp in range(2)])
                    fill.append(lambda: rdy_load(254, 254))
            elif i == 7:
                fill.extend(o_pieces(0) if QE == 1 else o_pieces(1))
                for r in range(8):
                    fill.append(lambda r=r: (A(f"v_lshl_or_b32 v{WPH+r}, v{T0+8+r}, 16, v{WPH+r}"), A(f"v_xor_b32 v{WPH+r}, v4, v{WPH+r}"), A(f"v_mov_b32 v{T0+8+r}, v{IDF+r}")))
    A.wait_vm(tok[0])
    A("s_barrier")
    stamp(4)
    gemm_loop(32, rd, mm, lambda n: tok[n >> 2] if (n & 3) == 0 else None, (3, 3, 0, 0), lambda n: g1_gaps(n, (7, WPS, WPS + 1)), fill, on_step, end_barrier=True, extra=SET, nextra=lambda n, g: NX)
    assert not SET
    assert not fill
    stamp(5)
    def feat(acc):
        for m in range(2):
            for u in range(8):
                A(f"v_cvt_pk_bf16_f32 v{acc+16*m+u}, v{acc+16*m+2*u}, v{acc+16*m+2*u+1}")
            for hh in range(2):
                A(mf(vr(PK + (m * 2 + hh) * 16, 16), vr(WPH + 4 * hh, 4), vr(acc + 16 * m + 4 * hh, 4), "0"))
    def softmax_l(x, dst):
        mx, sm = T0, T0 + 2
        l = [f"v_max3_f32 v{mx}, v{x}, v{x+1}, v{x+2}"]
        for u in range(3, 15, 2):
            l.append(f"v_max3_f32 v{mx}, v{mx}, v{x+u}, v{x+u+1}")
        l.append(f"v_max_f32 v{mx}, v{mx}, v{x+15}")
        l.append(f"v_mul_f32 v{mx}, s{S_L2E}, v{mx}")
        for u in range(8):
            l.append(f"v_pk_fma_f32 {vr(x+2*u,2)}, {vr(x+2*u,2)}, s[{S_L2E}:{S_L2E+1}], {vr(mx,2)} op_sel_hi:[1,1,0] neg_lo:[0,0,1] neg_hi:[0,0,1]")
        for u in range(16):
            l.append(f"v_exp_f32 v{x+u}, v{x+u}")
        l.append(f"v_pk_add_f32 {vr(sm,2)}, {vr(x,2)}, {vr(x+2,2)}")
        for u in range(2, 8):
            l.append(f"v_pk_add_f32 {vr(sm,2)}, {vr(sm,2)}, {vr(x+2*u,2)}")
        l.append(f"v_add_f32 v{sm}, v{sm}, v{sm+1}")
        l.append(f"v_rcp_f32 v{sm}, v{sm}")
        for u in range(8):
            l.append(f"v_pk_mul_f32 {vr(x+2*u,2)}, {vr(x+2*u,2)}, {vr(sm,2)} op_sel_hi:[1,0]")
        for u in range(8):
            l.append(f"v_cvt_pk_bf16_f32 v{dst+u}, v{x+2*u}, v{x+2*u+1}")
        return l
    feat(KACC)
    for m in range(2):
        for u in range(8):
            A(f"v_cvt_pk_bf16_f32 v{VACC+16*m+u}, v{VACC+16*m+2*u}, v{VACC+16*m+2*u+1}")
    for m in range(2):
        for u in range(8):
            A(f"v_cndmask_b32_e64 v{VACC+16*m+8+u}, v3, v{VACC+16*m+u}, s[{S_M16}:{S_M16+1}]")
            A(f"v_cndmask_b32_e64 v{VACC+16*m+u}, v{VACC+16*m+u}, v3, s[{S_M16}:{S_M16+1}]")
    nbstamp(0)
    PH = [KACC + 8, KACC + 24]
    ID = T0 + 8
    def tmm(blk):
        d = vr(PK + 16 * blk, 16)
        return [mf(d, vr(PH[blk & 1] + 4 * jp, 4), vr(ID + 4 * jp, 4), d if jp else "0") for jp in range(2)]
    def tcvt(blk):
        t = PK + 16 * blk
        return [f"v_cvt_pk_bf16_f32 v{t+u}, v{t+2*u}, v{t+2*u+1}" for u in range(8)]
    def kvmm(blk):
        m, hh = blk >> 1, blk & 1
        d = vr(KV + 16 * hh, 16)
        return [mf(d, vr(PK + 16 * blk + 4 * mm_, 4), vr(VACC + 16 * m + 8 * hh + 4 * mm_, 4), d if (m or mm_) else "0") for mm_ in range(2)]
    for blk in range(4):
        l = softmax_l(PK + blk * 16, PH[blk & 1])
        if blk:
            t, kv = tmm(blk - 1), kvmm(blk - 1)
            l = l[:17] + [t[0]] + l[17:21] + [t[1]] + l[21:33] + tcvt(blk - 1) + l[33:50] + [kv[0]] + l[50:58] + [kv[1]]
        emit(l)
        if blk < 3 and not QE: run(q_pieces(blk + 1))
        nbstamp(1 + blk)
    TS = 4 if OPT.get("tag1", 1) else 1
    def tagit(r, n):
        for e in range(0, n, TS):
            A(f"v_and_or_b32 v{r+e}, v{r+e}, s{P_MSK}, v{V_TAG}")
    def pub(hh, oc):
        A(f"s_add_u32 s{ST+3}, s{P_P1O}, {(hh*4+oc)*32*640}")
        A(f"buffer_store_dwordx4 {vr(KV+16*hh+4*oc,4)}, v{V_PB0+hh}, s[{SWS}:{SWS+3}], s{ST+3} offen sc1")
    emit(tmm(3))
    tagit(KV, 16)
    pub(0, 0); pub(0, 1)
    emit(tcvt(3))
    emit(kvmm(3))
    nbstamp(5)
    pub(0, 2); pub(0, 3)
    tagit(KV + 16, 16)
    for oc in range(4): pub(1, oc)
    QACC = KACC
    def qaddr(n):
        i, ks = n >> 2, n & 3
        return QSLOT[i >> 2] * SLOT + (i & 3) * 8192 + ks * 2048
    def rdq(n):
        return trfrag(V_WF + (n & 1) * 8, qaddr(2 * n)) + trfrag(V_WF + (n & 1) * 8 + 4, qaddr(2 * n + 1))
    def mmq(n):
        r = []
        for h in range(2):
            for m in range(2):
                d = vr(QACC + 16 * m, 16)
                r.append(mf(d, vr(V_WF + (n & 1) * 8 + 4 * h, 4), ar((2 * n + h) * 8 + m * 4, 4), d if (n or h) else "0"))
        return r
    stamp(6)
    nbflush()
    GD = VACC
    GZ = GD + 16
    g1l = [f"buffer_load_dwordx4 {vr(GD+4*k,4)}, v{V_G1}, s[{SWS}:{SWS+3}], s{P_P1G+k} offen sc1" for k in range(4)]
    g1l.append(f"buffer_load_dwordx4 {vr(GZ,4)}, v{V_GZ}, s[{SWS}:{SWS+3}], s{P_P1G} offen offset:512 sc1")
    S_D1, S_RET = P0 + 11, ST + 6
    A(f"s_mov_b32 s{S_D1}, 0")
    def try1a(block=False):
        skip = lab("sk")
        if block:
            A(f"s_cmp_lg_u32 s{S_D1}, 0")
        else:
            A(f"s_getreg_b32 s{ST+5}, hwreg(HW_REG_IB_STS, 0, 4)")
            A(f"s_or_b32 s{ST+5}, s{ST+5}, s{S_D1}")
        A(f"s_cbranch_scc1 {skip}")
        A(f"s_call_b64 s[{S_RET}:{S_RET+1}], L_try1a")
        A.label(skip)
    def sub_try1a():
        A.label("L_try1a")
        A.hist = []
        A("s_waitcnt vmcnt(0)")
        A(f"v_xor_b32 v13, v{GD}, v{V_TAG}")
        for s in range(TS, 20, TS):
            A(f"v_bitop3_b32 v13, v{GD+s}, v{V_TAG}, v13 bitop3:0xbe")
        A("v_and_b32 v13, 0xff, v13")
        A(f"v_cmp_ne_u32 s[{S_FAIL}:{S_FAIL+1}], 0, v13")
        A(f"s_cmp_eq_u64 s[{S_FAIL}:{S_FAIL+1}], 0")
        A("s_cbranch_scc1 L_try1a_ok")
        emit(g1l)
        A(f"s_setpc_b64 s[{S_RET}:{S_RET+1}]")
        A.label("L_try1a_ok")
        DPP = "row_mask:0xf bank_mask:0xf"
        A(f"v_permlane16_swap_b32 v{GZ}, v{GZ+2}")
        A(f"v_permlane16_swap_b32 v{GZ+1}, v{GZ+3}")
        for u in range(0, 8, 2):
            A(f"v_pk_add_f32 {vr(GD+u,2)}, {vr(GD+u,2)}, {vr(GD+8+u,2)}")
        A(f"v_pk_add_f32 {vr(GZ,2)}, {vr(GZ,2)}, {vr(GZ+2,2)}")
        for u in range(0, 4, 2):
            A(f"v_pk_add_f32 {vr(GD+u,2)}, {vr(GD+u,2)}, {vr(GD+4+u,2)}")
        def zror(k):
            for e in range(2): A(f"v_add_f32_dpp v{GZ+e}, v{GZ+e}, v{GZ+e} row_ror:{k} {DPP}")
        zror(1)
        A(f"v_permlane32_swap_b32 v{GD}, v{GD+1}")
        A(f"v_permlane32_swap_b32 v{GD+2}, v{GD+3}")
        zror(2)
        A(f"v_add_f32 v{GD}, v{GD}, v{GD+1}")
        A(f"v_add_f32 v{GD+2}, v{GD+2}, v{GD+3}")
        zror(4)
        A(f"v_permlane16_swap_b32 v{GD}, v{GD+2}")
        A(f"v_add_f32 v{GD}, v{GD}, v{GD+2}")
        zror(8)
        A(f"v_add_f32_dpp v{GD}, v{GD}, v{GD} row_ror:8 {DPP}")
        for e in range(2): A(f"v_and_or_b32 v{GZ+e}, v{GZ+e}, s{P_MSK}, v{V_TAG}")
        A(f"v_and_or_b32 v{GD}, v{GD}, s{P_MSK}, v{V_TAG}")
        for e in range(2): A(f"v_mov_b32 v{GZ+2+e}, v{GZ+e}")
        A(f"v_mov_b32 v{GD+1}, v{GD}")
        A(f"v_permlane16_swap_b32 v{GZ}, v{GZ+2}")
        A(f"v_permlane16_swap_b32 v{GZ+1}, v{GZ+3}")
        A(f"v_permlane32_swap_b32 v{GD}, v{GD+1}")
        A(f"buffer_store_dwordx4 {vr(GZ,4)}, v{V_P2Z}, s[{SWS}:{SWS+3}], s{P_P2O} offen sc1")
        A(f"v_mov_b32 v{GD+2}, v{GD}")
        A(f"v_mov_b32 v{GD+3}, v{GD+1}")
        A(f"v_permlane16_swap_b32 v{GD}, v{GD+2}")
        A(f"v_permlane16_swap_b32 v{GD+1}, v{GD+3}")
        A(f"buffer_store_dwordx4 {vr(GD,4)}, v{V_P2}, s[{SWS}:{SWS+3}], s{P_P2O} offen sc1")
        stamp(8)
        A(f"s_mov_b32 s{S_D1}, 1")
        A(f"s_setpc_b64 s[{S_RET}:{S_RET+1}]")
    DEFER.append(sub_try1a)
    fill = []
    G1AT = OPT.get('g1at', 13)
    def on_stepq(n):
        if n == 0: fill.extend((o_pieces(1) if QE == 1 else (q_pieces(2) + q_pieces(3) if QE == 2 else [])) + o_pieces(2) + o_pieces(3) + [lambda: tok.__setitem__('wo', A.vm)])
        if n == G1AT: fill.extend(g1l + [None])
        if n >= G1AT + 4: fill.extend([None, try1a])
    if QE == 2:
        run(q_pieces(1))
        A.wait_vm(tok[("q", 0)])
        qb = lambda n: tok[("q", n >> 2)] if n in (4, 8, 12) else None
    else:
        A.wait_vm(tok[("q", 3)])
        qb = lambda n: None
    A("s_barrier")
    stamp(26)
    gemm_loop(16, rdq, mmq, qb, (2, 2, 0, 0), lambda n: (0, 1, 2, 3) if (QE == 2 and n < 2) else (2, 3), fill, on_stepq)
    assert not fill
    A.wait_vm(tok["wo"])
    A("s_barrier")
    stamp(7)
    feat(QACC)
    def wait1a():
        top, done = lab("w1a"), lab("w1d")
        A(f"s_mov_b32 s{S_CNT}, {SPIN_LIMIT}")
        A.label(top)
        try1a(block=True)
        A(f"s_cmp_lg_u32 s{S_D1}, 0")
        A(f"s_cbranch_scc1 {done}")
        A(f"s_sub_u32 s{S_CNT}, s{S_CNT}, 1")
        A(f"s_cbranch_scc0 {top}")
        A.label(done)
    B1 = OPT.get("blk1a", 0)
    if B1 == 0: wait1a()
    S_D2 = ST + 4
    A(f"s_mov_b32 s{S_D2}, 0")
    PHQ = KV
    FD = PK
    def loads2():
        for hh in range(2):
            for jp in range(2):
                r = FD + (hh * 2 + jp) * 8
                off = (hh * 4 + jp) * 640
                A(f"buffer_load_dwordx4 {vr(r,4)}, v{V_G2}, s[{SWS}:{SWS+3}], s{P_P2G} offen offset:{off} sc1")
                A(f"buffer_load_dwordx4 {vr(r+4,4)}, v{V_G2B}, s[{SWS}:{SWS+3}], s{P_P2G} offen offset:{off} sc1")
        rdy_load(14)
    def check2():
        A(f"v_xor_b32 v13, v{FD}, v{V_TAG}")
        for s in range(1, 32):
            A(f"v_bitop3_b32 v13, v{FD+s}, v{V_TAG}, v13 bitop3:0xbe")
        rdy_check(9, 14)
        A("v_and_b32 v13, 0xff, v13")
        A("v_or_b32 v13, v13, v9")
        A(f"v_cmp_ne_u32 s[{S_FAIL}:{S_FAIL+1}], 0, v13")
    for blk in range(4):
        if blk == 3: loads2()
        emit(softmax_l(PK + blk * 16, PHQ + 8 * blk))
        if blk + 1 == B1: wait1a()
    stamp(9)
    KVF = VACC + 16
    ODR = [KACC, KACC + 16, PK + 32, PK + 48]
    A(f"s_lshl_b32 s{ST+5}, s{S_RH}, 12")
    A(f"v_add_u32 v{V_AX}, s{ST+5}, v{V_LIN}")
    A(f"v_add_u32 v{V_AX+1}, 0x10000, v{V_AX}")
    A(f"v_add_u32 v{V_AX+2}, 0x20000, v{V_AX}")
    slin(ST + 5, 3 * SLOT, (S_MF, 8192), (S_M0W2, 1))
    A(f"v_add_u32 v{V_AX+3}, s{ST+5}, v{V_LIN}")
    A(f"v_xor_b32 v{V_AX+4}, 0x2000, v{V_AX+3}")
    wor = []
    for n in range(32):
        wor += trfrag(n * 4, OLDS[n >> 2] + (n & 3) * 2048, "a")
    emit(wor[:8])
    def check2m():
        chk = [f"v_xor_b32 v13, v{FD}, v{V_TAG}"] + [f"v_bitop3_b32 v13, v{FD+s}, v{V_TAG}, v13 bitop3:0xbe" for s in range(TS, 32, TS)]
        for hh in range(2):
            for q in (2 * hh, 2 * hh + 1):
                for u in range(4):
                    A(f"v_cvt_pk_bf16_f32 v{KVF+4*q+u}, v{FD+8*q+2*u}, v{FD+8*q+2*u+1}")
            for m in range(2):
                blk = 2 * m + hh
                d = vr(ODR[blk], 16)
                for jp in range(2):
                    A(mf(d, vr(KVF + (hh * 2 + jp) * 4, 4), vr(PHQ + 8 * blk + 4 * jp, 4), d if jp else "0"))
                    k = 3 if hh == 0 else 5
                    emit(chk[:k]); chk = chk[k:]
        assert not chk
        rdy_check(9, 14)
        A("v_and_b32 v13, 0xff, v13")
        A("v_or_b32 v13, v13, v9")
        A(f"v_cmp_ne_u32 s[{S_FAIL}:{S_FAIL+1}], 0, v13")
    poll_pre(loads2, check2m)
    stamp(10)
    xcc_decide(14)
    ost = []
    for blk in (0, 2, 1, 3):
        m, hh = blk >> 1, blk & 1
        o = ODR[blk]
        A(f"v_add_f32 v{o+8}, 0x358637bd, v{o+8}")
        A(f"v_rcp_f32 v{o+8}, v{o+8}")
        for u in range(4):
            A(f"v_pk_mul_f32 {vr(o+2*u,2)}, {vr(o+2*u,2)}, {vr(o+8,2)} op_sel_hi:[1,0]")
        for u in range(4):
            A(f"v_cvt_pk_bf16_f32 v{o+12+u}, v{o+2*u}, v{o+2*u+1}")
        A(f"buffer_store_dwordx4 {vr(o+12,4)}, v{V_LIN}, s[{SWS}:{SWS+3}], s{P_ACTW+m} offen offset:{hh*1024} sc1")
        A(f"ds_write_b128 v{V_AX+3+m}, {vr(o+12,4)} offset:{hh*1024}")
    tok_o = A.vm
    stamp(11)
    ELDS = [(3, 4, 0, 1)[e >> 2] * SLOT + (e & 3) * 8192 for e in range(16)]
    def of_pieces(e):
        pos, ph = SEQ[e]
        def p0():
            A(f"s_add_u32 m0, s{S_M0W2}, {ELDS[e]:#x}")
            A(f"s_lshl_b32 s{ST+8}, s{KAP[pos]}, 14")
            A(f"s_add_u32 s{ST+8}, s{ST+8}, s{P_ACTR+ph}")
            A(f"buffer_load_dwordx4 v{V_LIN}, s[{SWS}:{SWS+3}], s{ST+8} offen {PLF}lds")
        def p1():
            A(f"buffer_load_dwordx4 v{V_LIN}, s[{SWS}:{SWS+3}], s{ST+8} offen offset:1024 {PLF}lds")
            tok[("of", e)] = A.vm
        return [p0, p1]
    OF = PK
    OACC = VACC
    def rd4(n):
        return [f"ds_read_b128 {vr(OF+(n&1)*16+h*4,4)}, v{V_AX+(ELDS[n]>>16)} offset:{(ELDS[n]&0xffff)+h*1024}" for h in range(4)]
    def mm4(n):
        pos, ph = SEQ[n]
        d = vr(OACC + 16 * ph, 16)
        return [mf(d, vr(OF + (n & 1) * 16 + h * 4, 4), ar((4 * pos + h) * 4, 4), d if (pos or h) else "0") for h in range(4)]
    A("s_waitcnt lgkmcnt(0)")
    A("s_barrier")
    wf = wor[8:]
    def two():
        for _ in range(2): A(wf.pop(0))
    gemm_loop(2, rd4, mm4, lambda n: None, (2, 2, 0, 0), (2, 3), [two] * 4)
    emit(wf[:16]); wf = wf[16:]
    A.wait_vm(tok_o)
    flag_store()
    emit(wf)
    flag_poll()
    stamp(12)
    for e in range(2, 7): run(of_pieces(e))
    fill = []
    def on_step4(n):
        if n == 2:
            for e in range(7, 16): fill.extend(of_pieces(e))
        if n == 10: fill.extend(out_stores(OACC, 0))
    A.wait_both(tok[("of", 3)], A.lg)
    A("s_barrier")
    stamp(13)
    BND = {4: 6, 7: 9, 10: 12, 13: 15}
    gemm_loop(16, rd4, mm4, lambda n: tok[("of", BND[n])] if n in BND else None, (2, 2, 0, 0),
              lambda n: (1, 2, 3) if n >= 10 else (0, 1, 2, 3), fill, on_step4, start=2)
    assert not fill
    stamp(14)
    run(out_stores(OACC, 1))
    tag_update("B")
    stamp(15)
    finish()

prologue()
vm0, lg0 = A.vm, A.lg
role_A()
for f in DEFER: f()
DEFER.clear()
A.label("L_roleB")
ROLE[0] = "B"
A.vm, A.lg = vm0, lg0
A.hist = []
role_B()
for f in DEFER: f()
A.label("L_end")
A("s_endpgm")

iB = A.out.index("L_roleB:")
iE = A.out.index("L_end:")
if OPT.get("bfirst", 1):
    lines = A.out[:CUT["P"]] + A.out[iB:CUT["B"]] + A.out[CUT["P"]:CUT["A"]] + A.out[CUT["B"]:iE] + A.out[CUT["A"]:iB] + A.out[iE:]
else:
    lines = A.out[:CUT["A"]] + A.out[iB:CUT["B"]] + A.out[CUT["A"]:iB] + A.out[CUT["B"]:]
if OPT["align"]:
    lines, nw, nn = align(lines, min_nop=OPT.get('minnop', 12))
    print("align: widened", nw, "nops", nn)
HEAD = open("cdna_kernels/" + NAME + ".s.ref").read().split("; Override launch geometry")[0]
src = HEAD + f"""; @launch grid=(256,1,1) block=(256,1,1) lds=163840
.amdgcn_target "amdgcn-amd-amdhsa--gfx950"
.text
.globl {NAME}_kernel
.p2align 8
.type {NAME}_kernel,@function
{NAME}_kernel:
""" + "\n".join(lines) + f"""
.fill 8192, 4, 0xBF810000
.section .rodata,"a"
.p2align 6
.amdhsa_kernel {NAME}_kernel
  .amdhsa_next_free_vgpr 512
  .amdhsa_next_free_sgpr 102
  .amdhsa_accum_offset 256
  .amdhsa_group_segment_fixed_size 0
  .amdhsa_kernarg_size 128
  .amdhsa_user_sgpr_count 2
  .amdhsa_user_sgpr_kernarg_segment_ptr 1
  .amdhsa_system_sgpr_workgroup_id_x 1
.end_amdhsa_kernel
"""
open(sys.argv[1], "w").write(src)
print("hazard nops:", A.nnop, "lines:", len(lines))
```

```python
import sys
from dsl import Asm, vr, ar, sr
from align import align

NAME = "concat_heads__ssm_conv_s5__linear_kernel_hedgehog__prompt"
OPT = dict(stamps=False, rotmode=2, align=1, xnt=0, hwait=8, owait=4, hand=0)
for a_ in sys.argv[2:]:
    k_, _, v_ = a_.partition("=")
    OPT[k_] = int(v_) if v_ else True

WS_TAGA, WS_TAGB = 0x0, 0x80
WS_XCC = 0x1000
WS_FLAG = 0x2000
WS_SA = 0x10000
WS_P1 = 0x100000
WS_P2 = 0x3C0000
WS_H = 0x400000
WS_O = 0x800000
WS_STAMP = 0xA00000
OOB = 0x40000000
SPIN_LIMIT = 1 << 14
LOG2E = 0x3FB8AA3B
INV2PI = 0x3E22F983

S_WAVE, S_CHUNK, S_CG, S_ROT, S_TAG = 3, 4, 5, 6, 7
SX, SW, SW2, SWS, SOUT = 8, 12, 16, 20, 24
S_RH, S_CH, S_SLOT, S_GRP = 28, 29, 30, 31
ST = 32
S_M0W, S_M0W2 = 48, 49
S_MG = 50
S_MRH = 52
S_L2E = 54
S_CNT = 56
S_FAIL = 58
S_M16 = 60
S_SM0, S_RS = 62, 63
S_XW, S_SLOW, P_FLW = 91, 92, 93
S_ROT1 = 47
KAP = [62, 63, 44, 45, 86, 87, 94, 95]
SEQ = [(0, 0), (0, 1)] + [(j, 0) for j in range(1, 8)] + [(j, 1) for j in range(1, 8)]
HAND = OPT['hand']
KA = 64
K_AX, K_LRE, K_LIM, K_BRE, K_BIM, K_CRE, K_CIM, K_LDT, K_DSK, K_BX, K_WQKV, K_WPHI, K_WO, K_OUT, K_DBG, K_WS = [KA + 2 * i for i in range(16)]
P_FLAGB, P_FLAGO, P_XCCB, P_TAGSEL, P_OUT, P_OUT2, P_ACTR, P_ACTR2 = range(64, 72)
P_ACTW, P_ACTW2, S_MF = 88, 89, 90
P0 = 72
S_STAMP = 96
V_LANE, V_OUTO, V_N, V_G, V_LIN, V_TAG, V_L0, V_CHK, V_XPO = 1, 2, 5, 6, 7, 8, 10, 12, 15
V_OX, V_OW = 16, 20
SLOT = 32768

A = Asm()
CUT = {}
nlab = [0]

def srd(dst, ptr, nbytes):
    A(f"s_mov_b32 s{dst}, s{ptr}")
    A(f"s_mov_b32 s{dst+1}, s{ptr+1}")
    A(f"s_mov_b32 s{dst+2}, {nbytes:#x}")
    A(f"s_mov_b32 s{dst+3}, 0x20000")

def slin(dst, const, *terms):
    first = True
    for reg, mul in terms:
        t = dst if first else ST + 14
        if mul == 1:
            if first: A(f"s_mov_b32 s{dst}, s{reg}")
            else: t = reg
        elif mul & (mul - 1) == 0: A(f"s_lshl_b32 s{t}, s{reg}, {mul.bit_length()-1}")
        else: A(f"s_mul_i32 s{t}, s{reg}, {mul}")
        if not first: A(f"s_add_u32 s{dst}, s{dst}, s{t}")
        first = False
    if const: A(f"s_add_u32 s{dst}, s{dst}, {const:#x}")

ROLE = ["A"]
def stamp(idx):
    if OPT.get("probe") == idx + (0 if ROLE[0] == "A" else 100):
        if OPT.get("cyc"):
            A("s_memtime s[96:97]")
            A("s_waitcnt lgkmcnt(0)")
            A("s_sub_u32 s99, s96, s98")
            A("s_lshr_b32 s99, s99, 4")
        else:
            A("s_memrealtime s[96:97]")
            A("s_waitcnt lgkmcnt(0)")
            A("s_sub_u32 s99, s96, s100")
    if not OPT["stamps"]: return
    A(f"s_memtime s[{S_STAMP}:{S_STAMP+1}]")
    A("s_waitcnt lgkmcnt(0)")
    A(f"s_sub_u32 s{S_STAMP}, s{S_STAMP}, s98")
    A(f"v_writelane_b32 v255, s{S_STAMP}, {idx}")
    if OPT.get("rt") and idx <= 16:
        A(f"s_memrealtime s[{S_STAMP}:{S_STAMP+1}]")
        A("s_waitcnt lgkmcnt(0)")
        A(f"s_sub_u32 s{S_STAMP}, s{S_STAMP}, s100")
        A(f"v_writelane_b32 v255, s{S_STAMP}, {idx+44}")

NB = [32, 36, 38, 42, 58, 56]
nbuse = []
def nbstamp(k):
    if OPT.get("nb") and OPT["stamps"]:
        A(f"s_memtime s[{NB[k]}:{NB[k]+1}]"); nbuse.append(k)
def nbflush():
    if OPT.get("nb") and OPT["stamps"]:
        A("s_waitcnt lgkmcnt(0)")
        for k in nbuse:
            A(f"s_sub_u32 s{NB[k]}, s{NB[k]}, s98")
            A(f"v_writelane_b32 v255, s{NB[k]}, {17+k}")
        nbuse.clear()

def lab(n):
    nlab[0] += 1
    return f"L_{n}_{nlab[0]}"

def finish():
    if OPT.get("probe") and (OPT["probe"] >= 100) == (ROLE[0] == "B"):
        if OPT["probe"] % 100 == 16:
            A("s_waitcnt vmcnt(0)")
            stamp(16)
        l = lab("pr")
        A("s_lshl_b32 s99, s99, 1")
        A("s_add_u32 s99, s99, 2500")
        A.label(l)
        A("s_memrealtime s[96:97]")
        A("s_waitcnt lgkmcnt(0)")
        A("s_sub_u32 s96, s96, s100")
        A("s_cmp_lt_u32 s96, s99")
        A(f"s_cbranch_scc1 {l}")
    if OPT.get("fixrt"):
        l = lab("rt")
        A.label(l)
        A("s_memrealtime s[96:97]")
        A("s_waitcnt lgkmcnt(0)")
        A("s_sub_u32 s96, s96, s100")
        A(f"s_cmp_lt_u32 s96, {OPT['fixrt']}")
        A(f"s_cbranch_scc1 {l}")
    if OPT["stamps"]:
        A("s_waitcnt vmcnt(0)")
        stamp(16)
        A("v_writelane_b32 v255, s99, 30")
        A("s_memrealtime s[96:97]")
        A("v_writelane_b32 v255, s100, 40")
        A("s_waitcnt lgkmcnt(0)")
        A("v_writelane_b32 v255, s96, 41")
        slin(ST, WS_STAMP, (2, 1024), (S_WAVE, 256))
        A(f"v_lshlrev_b32 v254, 2, v{V_LANE}")
        A(f"buffer_store_dword v255, v254, s[{SWS}:{SWS+3}], s{ST} offen")
    A("s_endpgm")

def mf(d, a, b, c):
    return f"v_mfma_f32_32x32x16_bf16 {d}, {a}, {b}, {c}"

def poll(loads, check):
    top, done = lab("poll"), lab("ok")
    A(f"s_mov_b32 s{S_CNT}, {SPIN_LIMIT}")
    A.label(top)
    loads()
    A("s_waitcnt vmcnt(0)")
    check()
    A(f"s_cmp_eq_u64 s[{S_FAIL}:{S_FAIL+1}], 0")
    A(f"s_cbranch_scc1 {done}")
    A(f"s_sub_u32 s{S_CNT}, s{S_CNT}, 1")
    A(f"s_cbranch_scc0 {top}")
    A.label(done)

def poll_pre(loads, check):
    top, done = lab("poll"), lab("ok")
    A(f"s_mov_b32 s{S_CNT}, {SPIN_LIMIT}")
    A.label(top)
    A("s_waitcnt vmcnt(0)")
    check()
    A(f"s_cmp_eq_u64 s[{S_FAIL}:{S_FAIL+1}], 0")
    A(f"s_cbranch_scc1 {done}")
    loads()
    A(f"s_sub_u32 s{S_CNT}, s{S_CNT}, 1")
    A(f"s_cbranch_scc0 {top}")
    A("s_waitcnt vmcnt(0)")
    A.label(done)

def cfma_l(d, a, b, c, t):
    return [f"v_pk_fma_f32 {vr(t,2)}, {vr(a,2)}, {vr(b,2)}, {vr(c,2)} op_sel:[1,1,0] op_sel_hi:[1,0,1] neg_lo:[1,0,0]",
            f"v_pk_fma_f32 {vr(d,2)}, {vr(a,2)}, {vr(b,2)}, {vr(t,2)} op_sel:[0,0,0] op_sel_hi:[0,1,1]"]
def cmul_l(d, a, b, t):
    return [f"v_pk_mul_f32 {vr(t,2)}, {vr(a,2)}, {vr(b,2)} op_sel:[1,1] op_sel_hi:[1,0] neg_lo:[1,0]",
            f"v_pk_fma_f32 {vr(d,2)}, {vr(a,2)}, {vr(b,2)}, {vr(t,2)} op_sel:[0,0,0] op_sel_hi:[0,1,1]"]
def emit(l):
    for x in l: A(x)
def cfma(*a): emit(cfma_l(*a))
def cmul(*a): emit(cmul_l(*a))

def weave(main, fillers, every, start=0):
    for i, x in enumerate(main):
        A(x)
        if i >= start and (i - start) % every == every - 1 and fillers:
            f = fillers.pop(0)
            if isinstance(f, str): A(f)
            elif f: f()

def gemm_loop(nsteps, reads, mfmas, boundary, split, fill_gaps, fillers, on_step=None, end_barrier=False, verify=None, start=0, extra=None, nextra=None):
    for r in reads(start): A(r)
    for n in range(start, nsteps):
        if on_step: on_step(n)
        last = n == nsteps - 1
        b = None if last else boundary(n + 1)
        b2 = boundary(n + 2) if (verify and n + 2 < nsteps) else None
        if b2 is not None: A.wait_both(b2, A.lg)
        elif b is not None and not verify: A.wait_both(b, A.lg)
        else: A("s_waitcnt lgkmcnt(0)")
        if b is not None and verify: verify(n + 1)[1]()
        rs = [] if last else list(reads(n + 1))
        ms = mfmas(n)
        for g in range(4):
            A(ms[g])
            if g == 0 and b2 is not None: verify(n + 2)[0]()
            if g == 0 and b is not None and verify: verify(n + 1)[2]()
            if g == 0 and (b is not None or (last and end_barrier)): A("s_barrier")
            for _ in range(split[g]):
                if rs: A(rs.pop(0))
            if g in (fill_gaps(n) if callable(fill_gaps) else fill_gaps) and fillers:
                f = fillers.pop(0)
                if isinstance(f, str): A(f)
                elif f: f()
            if extra:
                k = nextra(n, g)
                while extra and k > 0:
                    x = extra.pop(0); A(x); k -= 1
                    if x.startswith("s_cmp") and k == 0: k = 1
        assert not rs

def dma_pieces(voff, srdreg, soff, ldsoff, pre=None, post=None, flags="", m0reg=S_M0W, same_v=False):
    def mk(p):
        def f():
            if p == 0:
                A(f"s_add_u32 m0, s{m0reg}, {ldsoff:#x}")
                if pre: pre()
            A(f"buffer_load_dwordx4 v{voff if same_v else voff+p}, s[{srdreg}:{srdreg+3}], s{soff} offen offset:{p*1024} {flags}lds")
            if p == 3 and post: post()
        return f
    return [mk(p) for p in range(4)]

def run(fs):
    for f in fs:
        if isinstance(f, str): A(f)
        else: f()

def rot_soff(dst, add, shift=None, mul=None, extra_sreg=None, plus=None, rot=S_ROT):
    A(f"s_add_u32 s{dst}, s{rot}, {add}")
    if extra_sreg is not None: A(f"s_add_u32 s{dst}, s{dst}, s{extra_sreg}")
    A(f"s_and_b32 s{dst}, s{dst}, 7")
    if shift is not None: A(f"s_lshl_b32 s{dst}, s{dst}, {shift}")
    else: A(f"s_mul_i32 s{dst}, s{dst}, {mul}")
    if plus is not None: A(f"s_add_u32 s{dst}, s{dst}, s{plus}")

def prologue():
    if OPT["stamps"] or OPT.get("cyc"): A("s_memtime s[98:99]")
    if OPT.get("fixrt") or OPT.get("probe") or OPT["stamps"]: A("s_memrealtime s[100:101]")
    A("s_cmp_ge_u32 s2, 256")
    A("s_cbranch_scc1 L_end")
    A(f"s_load_dwordx16 s[{KA}:{KA+15}], s[0:1], 0")
    A(f"s_load_dwordx16 s[{KA+16}:{KA+31}], s[0:1], 64")
    A("v_and_b32 v1, 63, v0")
    A("v_lshrrev_b32 v2, 6, v0")
    A(f"s_lshr_b32 s{S_SLOT}, s2, 3")
    A(f"v_readfirstlane_b32 s{S_WAVE}, v2")
    A(f"s_and_b32 s{ST}, s2, 3")
    A(f"s_lshl_b32 s{S_CHUNK}, s{ST}, 2")
    A(f"s_lshr_b32 s{ST+1}, s{S_SLOT}, 3")
    A(f"s_add_u32 s{S_CHUNK}, s{S_CHUNK}, s{ST+1}")
    A(f"s_and_b32 s{S_CG}, s{S_SLOT}, 7")
    A(f"s_lshl_b32 s{S_ROT}, s{ST+1}, 1")
    A(f"s_add_u32 s{S_ROT}, s{S_ROT}, s{S_CG}")
    A(f"s_and_b32 s{S_ROT}, s{S_ROT}, 7")
    rm = OPT["rotmode"]
    if rm == 8: A(f"s_mov_b32 s{S_ROT1}, s{S_ROT}")
    elif rm == 1: A(f"s_mov_b32 s{S_ROT1}, 0")
    elif rm == 3:
        A(f"s_add_u32 s{S_ROT1}, s{S_CG}, s{ST+1}")
        A(f"s_and_b32 s{S_ROT1}, s{S_ROT1}, 3")
        A(f"s_mul_i32 s{S_ROT1}, s{S_ROT1}, 3")
    else:
        A(f"s_add_u32 s{S_ROT1}, s{S_CG}, s{ST+1}")
        A(f"s_and_b32 s{S_ROT1}, s{S_ROT1}, {rm-1}")
        A(f"s_lshl_b32 s{S_ROT1}, s{S_ROT1}, {2 if rm == 2 else 1}")
    A(f"s_lshr_b32 s{S_RH}, s{S_WAVE}, 1")
    A(f"s_and_b32 s{S_CH}, s{S_WAVE}, 1")
    A(f"s_lshl_b32 s{S_M0W}, s{S_WAVE}, 12")
    slin(ST + 2, 0, (S_SLOT, 512), (S_WAVE, 128))
    A("v_and_b32 v7, 1, v0")
    A(f"v_lshl_add_u32 v7, v7, 14, s{ST+2}")
    A("v_lshrrev_b32 v3, 3, v1")
    A("v_and_b32 v4, 7, v1")
    A(f"v_and_b32 v{V_N}, 31, v1")
    A(f"v_lshrrev_b32 v{V_G}, 5, v1")
    if OPT["stamps"]: A("v_mov_b32 v255, 0")
    A("s_bitcmp0_b32 s2, 2" if OPT.get("swap") else "s_bitcmp1_b32 s2, 2")
    if OPT.get("bfirst", 1):
        A("s_cbranch_scc0 L_roleA")
        CUT["P"] = len(A.out)
        A.label("L_roleA")
    else:
        A("s_cbranch_scc1 L_roleB")

def cut(role):
    A(f"s_branch L_main{role}")
    CUT[role] = len(A.out)
    A.label(f"L_main{role}")

def code_prefetch():
    A(f"s_getpc_b64 s[{ST+4}:{ST+5}]")
    A.label(f"L_pc{ROLE[0]}")
    A(f"s_add_u32 s{ST+4}, s{ST+4}, L_main{ROLE[0]}-L_pc{ROLE[0]}")
    A(f"s_addc_u32 s{ST+5}, s{ST+5}, 0")
    A(f"global_load_dword v254, v7, s[{ST+4}:{ST+5}]")

def common_setup(role):
    srd(SWS, K_WS, 0x10000000)
    srd(SOUT, K_OUT, 0x800000)
    A(f"s_lshl_b32 s{S_M0W2}, s{S_WAVE}, 13")
    A(f"s_mov_b32 s{S_MG}, 0")
    A(f"s_mov_b32 s{S_MG+1}, -1")
    A(f"s_sub_u32 s{S_MRH}, 0, s{S_RH}")
    A(f"s_mov_b32 s{S_MRH+1}, s{S_MRH}")
    A(f"s_mov_b32 s{S_L2E}, {LOG2E:#x}")
    A(f"s_mov_b32 s{S_L2E+1}, {LOG2E:#x}")
    A(f"s_mov_b32 s{S_M16}, 0xffff0000")
    A(f"s_mov_b32 s{S_M16+1}, 0xffff0000")
    A(f"s_add_u32 s{S_GRP}, s{S_CHUNK}, {0 if role == 'A' else 16}")
    slin(P_XCCB, WS_XCC, (S_GRP, 128))
    A(f"s_and_b32 s{S_MF}, s{S_CG}, 1")
    slin(P_OUT, 0 if role == "A" else 2048, (S_CHUNK, 1 << 19), (S_RH, 1 << 18), (S_CG, 256), (S_CH, 128), (S_MF, 1 << 17))
    A(f"s_xor_b32 s{P_OUT2}, s{P_OUT}, {1 << 17:#x}")
    slin(P_TAGSEL, 0, (S_CHUNK, 256), (S_CG, 16), (S_WAVE, 1))
    A(f"s_and_b32 s{ST}, s{S_CHUNK}, 3")
    A(f"s_lshl_b32 s{ST}, s{ST}, 1")
    A(f"s_mov_b32 s{KAP[0]}, s{S_CG}")
    for j in range(1, 8):
        A(f"s_add_u32 s{ST+1}, s{ST}, {j-1}")
        A(f"s_cmp_ge_u32 s{ST+1}, 7")
        A(f"s_addc_u32 s{ST+1}, s{ST+1}, 1")
        A(f"s_add_u32 s{ST+1}, s{ST+1}, s{S_CG}")
        A(f"s_and_b32 s{KAP[j]}, s{ST+1}, 7")
    if OPT.get("tlb", 0):
        A(f"v_and_b32 v9, 15, v{V_LANE}")
        A("v_lshlrev_b32 v9, 20, v9")
        A(f"buffer_load_dword v254, v9, s[{SWS}:{SWS+3}], 0 offen offset:2048")
        A(f"buffer_load_dword v254, v9, s[{SOUT}:{SOUT+3}], 0 offen")
        A(f"buffer_load_dword v254, v9, s[{SW2}:{SW2+3}], 0 offen")
    A(f"v_lshlrev_b32 v{V_LIN}, 4, v{V_LANE}")
    A(f"v_mov_b32 v{V_L0}, {OOB:#x}")
    A(f"v_cmp_eq_u32 vcc, 0, v{V_LANE}")
    if not HAND:
        A(f"v_lshlrev_b32 v{V_CHK}, 2, v{V_N}")
        slin(P_FLAGB, WS_FLAG, (S_GRP, 128))
        slin(P_FLW, 0, (S_CG, 16), (S_WAVE, 4), (P_FLAGB, 1))
        A(f"s_getreg_b32 s{S_XW}, hwreg(HW_REG_XCC_ID, 0, 4)")
    A(f"v_lshlrev_b32 v{V_XPO}, 2, v4")
    A(f"v_cndmask_b32_e64 v{V_L0}, v{V_L0}, 0, vcc")
    A(f"v_lshlrev_b32 v{V_OUTO}, 14, v{V_G}")
    A(f"v_lshl_add_u32 v{V_OUTO}, v{V_N}, 2, v{V_OUTO}")
    slin(P_FLAGO, 0, (S_CG, 4), (P_XCCB, 1))
    A("s_waitcnt lgkmcnt(0)")
    A(f"s_add_u32 s{S_TAG}, s{S_TAG}, 1")
    if OPT["stamps"]: A("s_mov_b32 s99, 0")
    if not HAND:
        A(f"s_lshl_b32 s{ST}, s{S_TAG}, 4")
        A(f"s_or_b32 s{S_XW}, s{S_XW}, s{ST}")
        A(f"v_mov_b32 v9, s{S_XW}")
        A(f"buffer_store_dword v9, v{V_L0}, s[{SWS}:{SWS+3}], s{P_FLAGO} offen sc1")

def lds_b128_addrs(base_reg, wave_off_sreg, const, nsets):
    A(f"v_bfe_u32 v9, v{V_N}, 1, 3")
    A(f"v_xor_b32 v9, v9, v{V_G}")
    A("v_lshlrev_b32 v9, 4, v9")
    A(f"v_lshl_add_u32 v9, v{V_N}, 7, v9")
    A(f"v_add_u32 v9, s{wave_off_sreg}, v9")
    if const: A(f"v_add_u32 v9, {const:#x}, v9")
    for ks in range(4):
        A(f"v_xor_b32 v{base_reg+ks}, {32*ks}, v9")
    for st in range(1, nsets):
        for ks in range(4): A(f"v_add_u32 v{base_reg+4*st+ks}, {st*0x10000:#x}, v{base_reg+ks}")

def rdy_load(reg, dummy=9):
    if not HAND: A(f"buffer_load_dword v{dummy}, v{V_CHK}, s[{SWS}:{SWS+3}], s{P_FLAGB} offen sc1")
    A(f"buffer_load_dword v{reg}, v{V_XPO}, s[{SWS}:{SWS+3}], s{P_XCCB} offen sc1")
def rdy_check(dst, reg):
    if HAND: A(f"v_xor_b32 v{dst}, s{S_TAG}, v{reg}")
    else:
        A(f"v_xor_b32 v{reg}, s{S_XW}, v{reg}")
        A(f"v_lshrrev_b32 v{dst}, 4, v{reg}")
def rdy_store():
    if HAND: A(f"buffer_store_dword v11, v{V_L0}, s[{SWS}:{SWS+3}], s{P_FLAGO} offen sc1")
def xcc_decide(reg):
    if HAND: return
    A(f"v_cmp_ne_u32 vcc, 0, v{reg}")
    A("s_cmp_lg_u64 vcc, 0")
    A(f"s_cselect_b32 s{S_SLOW}, 1, 0")
def flag_store():
    slow, join = lab("slow"), lab("join")
    A(f"s_cmp_lg_u32 s{S_SLOW}, 0")
    A(f"s_cbranch_scc1 {slow}")
    A(f"buffer_store_dword v11, v{V_L0}, s[{SWS}:{SWS+3}], s{P_FLW} offen")
    A.label(join)
    def later():
        A.label(slow)
        A(f"buffer_store_dword v11, v{V_L0}, s[{SWS}:{SWS+3}], s{P_FLW} offen sc1")
        A(f"s_branch {join}")
    DEFER.append(later)
def flag_poll():
    poll(lambda: A(f"buffer_load_dword v13, v{V_CHK}, s[{SWS}:{SWS+3}], s{P_FLAGB} offen sc1"),
         lambda: A(f"v_cmp_ne_u32 s[{S_FAIL}:{S_FAIL+1}], s{S_TAG}, v13"))

DEFER = []
def make_verify(pieces, slot, second):
    retry, back = lab("retry"), lab("back")
    def reads():
        A(f"v_add_u32 v9, {slot*SLOT:#x}, v{V_CHK}")
        A("ds_read_b32 v13, v9")
        A(f"ds_read_b32 v14, v9 offset:{second}")
    def cmp():
        A("v_max_u32 v13, v13, v14")
        A("v_cmp_eq_u32 vcc, -1, v13")
    def branch():
        A("s_cmp_lg_u64 vcc, 0")
        A(f"s_cbranch_scc1 {retry}")
        A.label(back)
    def later():
        top, done = lab("rl"), lab("rd")
        A.label(retry)
        A.hist = []
        A(f"s_mov_b32 s{S_SM0}, m0")
        A(f"s_mov_b32 s{S_CNT}, {SPIN_LIMIT}")
        A.label(top)
        run(pieces(S_RS))
        A("s_waitcnt vmcnt(0)")
        A("ds_read_b32 v13, v9")
        A(f"ds_read_b32 v14, v9 offset:{second}")
        A("s_waitcnt lgkmcnt(0)")
        cmp()
        A("s_cmp_eq_u64 vcc, 0")
        A(f"s_cbranch_scc1 {done}")
        A(f"s_sub_u32 s{S_CNT}, s{S_CNT}, 1")
        A(f"s_cbranch_scc0 {top}")
        A.label(done)
        if OPT["stamps"]:
            A(f"s_sub_u32 s{S_CNT}, {SPIN_LIMIT + 1}, s{S_CNT}")
            A(f"s_add_u32 s99, s99, s{S_CNT}")
        A(f"s_mov_b32 m0, s{S_SM0}")
        A(f"s_branch {back}")
    DEFER.append(later)
    return reads, cmp, branch

def tag_update(role):
    skip = lab("notag")
    A(f"s_cmp_eq_u32 s{P_TAGSEL}, {(15 if role == 'A' else 0) << 8}")
    A(f"s_cbranch_scc0 {skip}")
    A(f"buffer_store_dword v11, v{V_L0}, s[{SWS}:{SWS+3}], 0 offen offset:{WS_TAGA if role == 'A' else WS_TAGB} sc1")
    A.label(skip)

def out_stores(acc, ph):
    def mk(r):
        def f():
            row = 8 * (r >> 2) + (r & 3)
            A(f"s_add_u32 s{ST+1}, s{P_OUT+ph}, {row*4096}")
            A(f"buffer_store_dword v{acc+16*ph+r}, v{V_OUTO}, s[{SOUT}:{SOUT+3}], s{ST+1} offen {OUTF}")
        return f
    return [mk(r) for r in range(16)]

SCHED = {
    0: ({0: [2, 3], 1: [4], 2: [5], 3: [6], 4: [7]}, 5, {0: "all"}),
    1: ({i: [i + 2] for i in range(6)}, 6, {i: "front" for i in range(6)}),
    2: ({0: [2], 1: [3], 2: [4], 3: [5, 6], 4: [7]}, 5, {3: "all"}),
    3: ({0: [2], 1: [3], 2: [4, 5], 3: [6], 4: [7]}, 5, {2: "all"}),
    4: ({0: [2], 1: [3], 2: [4], 3: [5], 4: [6], 5: [7]}, 6, {2: "front", 3: "front", 4: "front", 5: "front"}),
    5: ({0: [2], 1: [3, 4], 2: [5], 3: [6], 4: [7]}, 5, {1: "all"}),
    6: ({i: [i + 3] for i in range(5)}, 5, {}),
    7: ({i: [i + 3] for i in range(5)}, 5, {0: "front", 1: "front"}),
}[OPT.get("sched", 6)]
EARLY = OPT.get("sched", 6) >= 6
NPRE = OPT.get("npre", 4)
NX = OPT.get("nx", 5)
XST = SCHED[1]
def g1_gaps(n, busy):
    i = n >> 2
    if SCHED[2].get(i) in ("all", "front") or i in busy: return (0, 1, 2, 3)
    return (2, 3)
OUTF = {0: "sc1", 1: "sc1 nt", 2: "sc0 sc1", 3: "nt", 4: "", 5: "sc0 sc1 nt"}[OPT.get("outf", 0)]
XF = "nt " if OPT["xnt"] else ""
PLF = {0: "sc1 ", 1: "", 2: "sc0 ", 3: "nt "}[OPT.get("plf", 0)]

def role_A():
    V_AX, V_AW = 24, 32
    V_GO, V_SCW = 44, 3
    V_XF, V_WF = 48, 64
    URE, UIM = 80, 112
    ACC2 = 144
    HP = 176
    XS, DG, V_GE = 176, 192, 200
    V_PUB, V_XSO, V_HSO = 45, 46, 223
    P_MSK = P0 + 4
    C_LAM, C_M1, C_M2, C_L, C_MQ, C_LQ, C_C2 = 208, 210, 212, 214, 216, 218, 220
    C_DSK = 222
    T0 = 224
    P_SAB, P_SAO, P_XS0, P_XS1 = P0, P0 + 1, P0 + 2, P0 + 3
    code_prefetch()
    A("v_lshrrev_b32 v9, 1, v3")
    A("v_xor_b32 v9, v9, v4")
    A("v_lshlrev_b32 v9, 4, v9")
    A("v_lshrrev_b32 v10, 2, v3")
    A("v_lshlrev_b32 v10, 5, v10")
    A("v_and_b32 v11, 1, v3")
    A("v_lshl_add_u32 v10, v11, 4, v10")
    A("v_bfe_u32 v11, v3, 1, 1")
    A("v_add_u32 v10, v10, v11")
    A("v_lshl_add_u32 v10, v10, 10, v9")
    slin(ST, 0, (S_CHUNK, 1 << 17), (S_RH, 1 << 16), (S_CH, 1 << 13))
    A(f"v_add_u32 v{V_OX}, s{ST}, v10")
    A(f"v_xor_b32 v11, 64, v{V_OX}")
    A(f"v_add_u32 v{V_OX+1}, 1024, v11")
    A(f"v_add_u32 v{V_OX+2}, 2048, v{V_OX}")
    A(f"v_add_u32 v{V_OX+3}, 3072, v11")
    A("v_lshl_add_u32 v10, v3, 10, v9")
    slin(ST, 0, (S_CG, 1 << 16), (S_CH, 1 << 15))
    A(f"v_add_u32 v{V_OW}, s{ST}, v10")
    A(f"v_xor_b32 v11, 64, v{V_OW}")
    A(f"v_add_u32 v{V_OW+1}, 7168, v11")
    A(f"v_add_u32 v{V_OW+2}, {2*7168}, v{V_OW}")
    A(f"v_add_u32 v{V_OW+3}, {3*7168}, v11")
    slin(ST, 0, (S_CG, 128), (S_CH, 64))
    A(f"v_lshl_add_u32 v14, v{V_N}, 1, s{ST}")
    A(f"s_cmp_eq_u32 s{S_RH}, 0")
    A("s_waitcnt lgkmcnt(0)")
    A(f"s_cselect_b32 s{SW}, s{K_BRE}, s{K_BIM}")
    A(f"s_cselect_b32 s{SW+1}, s{K_BRE+1}, s{K_BIM+1}")
    A(f"s_cselect_b32 s{SW2}, s{K_CRE}, s{K_CIM}")
    A(f"s_cselect_b32 s{SW2+1}, s{K_CRE+1}, s{K_CIM+1}")
    A(f"s_mov_b32 s{SW+2}, 0x80000")
    A(f"s_mov_b32 s{SW+3}, 0x20000")
    stamp(1)
    A(f"s_load_dword s{S_TAG}, s[{K_WS}:{K_WS+1}], {WS_TAGA}")
    srd(SX, K_AX, 0x200000)
    tok = {}
    def g1_pieces(i):
        slot = i & 3
        return (dma_pieces(V_OW, SW, ST + 8, slot * SLOT, pre=lambda: rot_soff(ST + 8, i, shift=7, rot=S_ROT1)) +
                dma_pieces(V_OX, SX, ST + 8, slot * SLOT + 16384, post=lambda: tok.__setitem__(i, A.vm), flags=XF))
    CLDS = {1: 4 * SLOT, 2: 4 * SLOT + 16384, 0: 0, 3: 16384, 4: SLOT, 5: SLOT + 16384, 6: 2 * SLOT, 7: 2 * SLOT + 16384}
    CORD = [1, 2, 0, 3, 4, 5, 6, 7]
    def c_pieces(st):
        return dma_pieces(V_OW, SW2, ST + 9, CLDS[st], pre=lambda: A(f"s_lshl_b32 s{ST+9}, s{KAP[st]}, 7"))
    A(f"global_load_ushort v{T0}, v14, s[{K_LRE}:{K_LRE+1}]")
    A(f"global_load_ushort v{T0+1}, v14, s[{K_LIM}:{K_LIM+1}]")
    A(f"global_load_ushort v{T0+2}, v14, s[{K_LDT}:{K_LDT+1}]")
    A(f"global_load_ushort v{C_DSK}, v14, s[{K_DSK}:{K_DSK+1}]")
    tok_small = A.vm
    run(g1_pieces(0))
    A(f"s_mov_b32 s{SW2+2}, 0x80000")
    A(f"s_mov_b32 s{SW2+3}, 0x20000")
    late = g1_pieces(1)
    if EARLY:
        run(late[:NPRE]); late = late[NPRE:] + g1_pieces(2)
    else:
        run(late); late = []
    if OPT.get("wtouch", 0):
        slin(ST, 0, (S_CG, 1 << 16), (S_CHUNK, 4096), (S_CH, 2048))
        A(f"v_and_b32 v9, 15, v{V_LANE}")
        A("v_lshlrev_b32 v9, 7, v9")
        A(f"buffer_load_dword v254, v9, s[{SW2}:{SW2+3}], s{ST} offen")
    stamp(2)
    cut("A")
    A(f"s_lshl_b32 s{ST}, s{S_RH}, 13")
    lds_b128_addrs(V_AX, ST, 16384, 2)
    A(f"s_lshl_b32 s{ST}, s{S_CH}, 12")
    lds_b128_addrs(V_AW, ST, 0, 3)
    if OPT.get("lateset", 0): A.cap = []
    common_setup("A")
    slin(P_SAB, WS_SA, (S_CG, 8192))
    A(f"s_sub_u32 s{ST}, 15, s{S_CHUNK}")
    slin(P_SAO, 0, (ST, 512), (S_CH, 256), (P_SAB, 1))
    A(f"s_mov_b32 s{P_MSK}, 0xffffff00")
    slin(P_XS0, 0, (S_CHUNK, 1 << 17), (S_RH, 1 << 16), (S_CG, 128), (S_CH, 64), (S_MF, 32768))
    A(f"s_xor_b32 s{P_XS1}, s{P_XS0}, 32768")
    slin(P_ACTW, WS_H, (S_CHUNK, 1 << 18), (S_CG, 1 << 15), (S_WAVE, 4096))
    slin(P_ACTR, WS_H, (S_CHUNK, 1 << 18), (S_WAVE, 4096), (S_MF, 16384))
    A(f"s_xor_b32 s{P_ACTR2}, s{P_ACTR}, 16384")
    A(f"v_lshlrev_b32 v9, 14, v{V_G}")
    A(f"v_lshl_add_u32 v{V_HSO}, v{V_N}, 4, v9")
    clears = [f"buffer_store_dwordx4 {vr(T0+24,4)}, v{V_HSO}, s[{SWS}:{SWS+3}], s{P_ACTW} offen offset:{k*512} sc1" for k in range(8)]
    A(f"s_and_b32 s{ST}, s{S_TAG}, 0xff")
    A(f"v_mov_b32 v{V_TAG}, s{ST}")
    A(f"v_mov_b32 v11, s{S_TAG}")
    A(f"v_lshlrev_b32 v{V_XSO}, 10, v{V_N}")
    A(f"v_lshl_add_u32 v{V_XSO}, v{V_G}, 5, v{V_XSO}")
    SCR = 3 * SLOT
    slin(ST, SCR, (S_CH, 256))
    A(f"v_lshl_add_u32 v4, v{V_N}, 3, s{ST}")
    A(f"s_lshl_b32 s{ST}, s{S_RH}, 10")
    A(f"v_lshl_add_u32 v3, v{V_G}, 9, v4")
    A(f"v_add_u32 v3, s{ST}, v3")
    A(f"v_lshlrev_b32 v13, 3, v{V_N}")
    A(f"v_mov_b32 v14, {OOB:#x}")
    A(f"s_or_b64 s[{ST+2}:{ST+3}], s[{S_MG}:{S_MG+1}], s[{S_MRH}:{S_MRH+1}]")
    A(f"v_cndmask_b32_e64 v{V_PUB}, v13, v14, s[{ST+2}:{ST+3}]")
    if OPT.get("prew", 1):
        for k in range(2): A(f"v_subrev_u32 v{T0+20+k}, 1, v{V_TAG}")
        A(f"buffer_store_dwordx2 {vr(T0+20,2)}, v{V_PUB}, s[{SWS}:{SWS+3}], s{P_SAO} offen sc1")
    A(f"s_sub_u32 s{ST+4}, 16, s{S_CHUNK}")
    A(f"v_lshlrev_b32 v9, 3, v{V_G}")
    A(f"v_add_u32 v9, s{ST+4}, v9")
    A(f"s_lshl_b32 s{ST+4}, s{S_CH}, 8")
    A(f"v_add_u32 v13, s{ST+4}, v13")
    A(f"v_lshl_add_u32 v{V_GO}, v9, 9, v13")
    for i in range(8):
        A(f"v_cmp_gt_u32 vcc, {16-i}, v9")
        A(f"v_cndmask_b32_e64 v{V_GE+i}, 0, v{V_TAG}, vcc")
    A.wait_vm(tok_small)
    lre, lim, ldt = T0, T0 + 1, T0 + 2
    A(f"v_and_b32 v9, 1, v{V_N}")
    A("v_lshlrev_b32 v9, 4, v9")
    A(f"v_lshlrev_b32 v{C_DSK}, v9, v{C_DSK}")
    A(f"v_lshrrev_b32 v9, 1, v{V_N}")
    A(f"v_lshlrev_b32 v13, 3, v{V_G}")
    A("v_sub_u32 v9, v9, v13")
    for q in range(8):
        A(f"v_cmp_eq_u32 vcc, {q}, v9")
        A(f"v_cndmask_b32_e64 v{DG+q}, 0, v{C_DSK}, vcc")
    for r in (lre, lim, ldt): A(f"v_lshlrev_b32 v{r}, 16, v{r}")
    A(f"v_mul_f32 v{ldt}, s{S_L2E}, v{ldt}")
    A(f"v_exp_f32 v{ldt}, v{ldt}")
    A(f"v_cvt_pk_bf16_f32 v{ldt}, v{ldt}, v{ldt}")
    A(f"v_lshlrev_b32 v{ldt}, 16, v{ldt}")
    A(f"v_mul_f32 v{T0+4}, v{ldt}, v{lre}")
    A(f"v_mul_f32 v{T0+5}, v{ldt}, v{lim}")
    A(f"v_mul_f32 v{T0+4}, s{S_L2E}, v{T0+4}")
    A(f"v_exp_f32 v{T0+4}, v{T0+4}")
    A(f"v_mul_f32 v{T0+5}, {INV2PI:#x}, v{T0+5}")
    A(f"v_rndne_f32 v{T0+6}, v{T0+5}")
    A(f"v_sub_f32 v{T0+5}, v{T0+5}, v{T0+6}")
    A(f"v_cos_f32 v{T0+6}, v{T0+5}")
    A(f"v_sin_f32 v{T0+7}, v{T0+5}")
    A(f"v_mul_f32 v{C_LAM}, v{T0+4}, v{T0+6}")
    A(f"v_mul_f32 v{C_LAM+1}, v{T0+4}, v{T0+7}")
    A(f"v_add_f32 v{T0+4}, -1.0, v{C_LAM}")
    A(f"v_mul_f32 v{T0+5}, v{lre}, v{lre}")
    A(f"v_fmac_f32 v{T0+5}, v{lim}, v{lim}")
    A(f"v_rcp_f32 v{T0+5}, v{T0+5}")
    A(f"v_mul_f32 v{T0+6}, v{T0+4}, v{lre}")
    A(f"v_fmac_f32 v{T0+6}, v{C_LAM+1}, v{lim}")
    A(f"v_mul_f32 v{T0+7}, v{C_LAM+1}, v{lre}")
    A(f"v_fma_f32 v{T0+7}, -v{T0+4}, v{lim}, v{T0+7}")
    A(f"v_add_f32 v{T0+5}, v{T0+5}, v{T0+5}")
    A(f"v_mul_f32 v{C_C2}, v{T0+6}, v{T0+5}")
    A(f"v_mul_f32 v{C_C2+1}, v{T0+7}, v{T0+5}")
    pa, pb, tt = T0 + 8, T0 + 10, T0 + 12
    cmul(pa, C_LAM, C_LAM, tt)
    cmul(pb, pa, pa, tt)
    cmul(pa, pb, pb, tt)
    cmul(C_M1, pa, pa, tt)
    cmul(C_M2, C_M1, C_M1, tt)
    cmul(pa, C_M2, C_M2, tt)
    cmul(C_L, pa, pa, tt)
    def sel_pair(dst, src, mask):
        A(f"v_cndmask_b32_e64 v{dst}, 1.0, v{src}, s[{mask}:{mask+1}]")
        A(f"v_cndmask_b32_e64 v{dst+1}, 0, v{src+1}, s[{mask}:{mask+1}]")
    sel_pair(T0 + 14, C_M2, S_MG)
    sel_pair(T0 + 16, pa, S_MRH)
    cmul(C_MQ, T0 + 14, T0 + 16, tt)
    cmul(pa, C_L, C_L, tt)
    cmul(pb, pa, pa, tt)
    cmul(pa, pb, pb, tt)
    sel_pair(C_LQ, pa, S_MG)
    SET, A.cap = (A.cap or []), None
    stamp(3)
    run(late)
    def rd(n):
        i, ks = n >> 2, n & 3
        slot, buf = i & 3, n & 1
        s2_, off = slot >> 1, (slot & 1) * SLOT
        x = [f"ds_read_b128 {vr(V_XF+buf*8+m*4,4)}, v{V_AX+4*s2_+ks} offset:{off+m*4096}" for m in range(2)]
        w = [f"ds_read_b128 {vr(V_WF+buf*8+ri*4,4)}, v{V_AW+4*s2_+ks} offset:{off+ri*8192}" for ri in range(2)]
        return [x[0], w[0], w[1], x[1]]
    def mm(n):
        buf = n & 1
        r = []
        for m, ri in ((0, 0), (0, 1), (1, 1), (1, 0)):
            d = vr((URE, UIM)[ri] + 16 * m, 16)
            r.append(mf(d, vr(V_XF + buf * 8 + m * 4, 4), vr(V_WF + buf * 8 + ri * 4, 4), d if n else "0"))
        return r
    fill = []
    def xs_load(m, s):
        return lambda: A(f"buffer_load_dwordx4 {vr(XS+8*m+4*s,4)}, v{V_XSO}, s[{SX}:{SX+3}], s{P_XS0+m} offen offset:{16*s}")
    def on_step(n):
        i, ks = n >> 2, n & 3
        if ks == 0 and OPT.get("g1st") and i: stamp(16 + i)
        if ks == 0:
            for st in SCHED[0].get(i, []): fill.extend(g1_pieces(st))
            if i == XST:
                fill.extend(c_pieces(1) + c_pieces(2))
            elif i == XST + 1:
                fill.extend([xs_load(m, s) for m in range(2) for s in range(2)])
                if OPT.get("ptouch", 0):
                    fill.extend([f"buffer_load_dword v254, v{V_GO+k}, s[{SWS}:{SWS+3}], s{P_SAB} offen sc1" for k in range(4)])
                    fill.append(lambda: rdy_load(254, 254))
    A.wait_vm(tok[0])
    A("s_barrier")
    stamp(4)
    gemm_loop(32, rd, mm, lambda n: tok[n >> 2] if (n & 3) == 0 else None, (2, 2, 0, 0), lambda n: g1_gaps(n, ()), fill, on_step, end_barrier=True, extra=SET, nextra=lambda n, g: NX)
    assert not SET
    assert not fill
    stamp(5)
    P = [T0, T0 + 4]
    def lam_bc(hi): return f"op_sel:[{hi},0,0] op_sel_hi:[{hi},1,1]"
    NEG = "neg_lo:[1,0,0] neg_hi:[1,0,0]"
    cur_re, cur_im = URE, UIM
    for s in range(1, 16):
        d = P[s & 1]
        A(f"v_pk_fma_f32 {vr(d,2)}, {vr(C_LAM,2)}, {vr(cur_im,2)}, {vr(URE+2*s,2)} {lam_bc(1)} {NEG}")
        A(f"v_pk_fma_f32 {vr(d+2,2)}, {vr(C_LAM,2)}, {vr(cur_re,2)}, {vr(UIM+2*s,2)} {lam_bc(1)}")
        A(f"v_pk_fma_f32 {vr(d,2)}, {vr(C_LAM,2)}, {vr(cur_re,2)}, {vr(d,2)} {lam_bc(0)}")
        A(f"v_pk_fma_f32 {vr(d+2,2)}, {vr(C_LAM,2)}, {vr(cur_im,2)}, {vr(d+2,2)} {lam_bc(0)}")
        cur_re, cur_im = d, d + 2
    A0, BQ = T0 + 8, T0 + 10
    A(f"v_fma_f32 v{BQ}, v{C_M1}, v{cur_re}, v{cur_re+1}")
    A(f"v_fma_f32 v{BQ+1}, v{C_M1}, v{cur_im}, v{cur_im+1}")
    A(f"v_fma_f32 v{BQ}, -v{C_M1+1}, v{cur_im}, v{BQ}")
    A(f"v_fma_f32 v{BQ+1}, v{C_M1+1}, v{cur_re}, v{BQ+1}")
    A(f"ds_write_b64 v3, {vr(BQ,2)}")
    A(f"v_mov_b32 v{A0}, v{cur_re}")
    A(f"v_mov_b32 v{A0+1}, v{cur_im}")
    P2, P3, SS, tt = T0 + 20, T0 + 22, T0 + 24, T0 + 28
    def c2_bc(hi, n=3):
        return f"op_sel:[{hi},0,0] op_sel_hi:[{hi},1,1]" if n == 3 else f"op_sel:[{hi},0] op_sel_hi:[{hi},1]"
    cm = []
    for s in range(16):
        re, im, t = URE + 2 * s, UIM + 2 * s, T0 + 2 + 2 * (s & 1)
        cm += [f"v_pk_mul_f32 {vr(t,2)}, {vr(C_C2,2)}, {vr(re,2)} {c2_bc(1,2)} neg_lo:[1,0] neg_hi:[1,0]",
               f"v_pk_mul_f32 {vr(re,2)}, {vr(C_C2,2)}, {vr(re,2)} {c2_bc(0,2)}",
               f"v_pk_fma_f32 {vr(re,2)}, {vr(C_C2,2)}, {vr(im,2)}, {vr(re,2)} {c2_bc(1)} {NEG}",
               f"v_pk_fma_f32 {vr(im,2)}, {vr(C_C2,2)}, {vr(im,2)}, {vr(t,2)} {c2_bc(0)} {NEG}"]
    emit(cm[:8])
    if HAND: A.wait_both(tok["clr"], A.lg)
    else: A("s_waitcnt lgkmcnt(0)")
    A("s_barrier")
    B0 = T0 + 12
    for q in range(4):
        A(f"ds_read_b64 {vr(B0+2*q,2)}, v4 offset:{q*512}")
    emit(cm[8:24])
    A("s_waitcnt lgkmcnt(0)")
    cfma(P2, C_M2, B0, B0 + 2, tt)
    cfma(P3, C_M2, P2, B0 + 4, tt)
    cfma(tt, C_M2, P3, B0 + 6, tt)
    A(f"v_and_or_b32 v{SS}, v{tt}, s{P_MSK}, v{V_TAG}")
    A(f"v_and_or_b32 v{SS+1}, v{tt+1}, s{P_MSK}, v{V_TAG}")
    A(f"buffer_store_dwordx2 {vr(SS,2)}, v{V_PUB}, s[{SWS}:{SWS+3}], s{P_SAO} offen sc1")
    rdy_store()
    stamp(6)
    emit(cm[24:])
    LOC = T0 + 0
    for e in range(2):
        A(f"v_cndmask_b32_e64 v{T0+2+e}, 0, v{B0+e}, s[{S_MG}:{S_MG+1}]")
        A(f"v_cndmask_b32_e64 v{T0+4+e}, v{P2+e}, v{P3+e}, s[{S_MG}:{S_MG+1}]")
        A(f"v_cndmask_b32_e64 v{LOC+e}, v{T0+2+e}, v{T0+4+e}, s[{S_MRH}:{S_MRH+1}]")
    E0, F0, E1, F1 = T0 + 12, T0 + 14, T0 + 16, T0 + 18
    cfma(P2, C_M1, LOC, A0, tt)
    cmul(F1, C_C2, P2, tt)
    cmul(F0, C_C2, LOC, tt)
    cmul(E0, C_C2, C_MQ, tt)
    cmul(E1, E0, C_M1, tt)
    V_AH = V_AX
    A(f"v_bfe_u32 v9, v{V_LANE}, 4, 1")
    A(f"v_bfe_u32 v13, v{V_LANE}, 1, 1")
    A("v_lshl_add_u32 v9, v9, 1, v13")
    A(f"v_bfe_u32 v13, v{V_LANE}, 2, 2")
    A(f"v_lshl_add_u32 v13, v{V_G}, 3, v13")
    A("v_lshlrev_b32 v14, 2, v9")
    A("v_xor_b32 v13, v13, v14")
    A("v_lshlrev_b32 v13, 4, v13")
    A("v_lshl_add_u32 v13, v9, 9, v13")
    A(f"v_and_b32 v14, 1, v{V_LANE}")
    A("v_lshl_add_u32 v13, v14, 3, v13")
    A(f"s_lshl_b32 s{ST+2}, s{S_RH}, 13")
    A(f"v_add_u32 v{V_AH}, s{ST+2}, v13")
    A(f"v_xor_b32 v{V_AH+1}, 64, v{V_AH}")
    V_AO = T0 + 4
    A("v_lshl_add_u32 v13, v9, 9, v13")
    slin(ST + 2, 3 * SLOT, (S_RH, 16384), (S_MF, 512))
    A(f"v_add_u32 v{V_AO}, s{ST+2}, v13")
    A(f"v_xor_b32 v{V_AO+1}, 64, v{V_AO}")
    A(f"v_xor_b32 v{V_AO+2}, 0x200, v{V_AO}")
    A(f"v_xor_b32 v{V_AO+3}, 0x240, v{V_AO}")
    for st in (1, 2):
        A(f"v_add_u32 v{V_AH+2*st}, {st*0x10000:#x}, v{V_AH}")
        A(f"v_add_u32 v{V_AH+2*st+1}, {st*0x10000:#x}, v{V_AH+1}")
    V_SO = T0 + 24
    for o in range(1, 4):
        A(f"v_xor_b32 v{V_SO+o}, {o*64}, v{V_HSO}")
    CPRE = 8
    A(f"s_add_u32 s{SW}, s{SWS}, s{P_SAB}")
    A(f"s_addc_u32 s{SW+1}, s{SWS+1}, 0")
    A(f"s_mov_b32 s{SW+2}, 8192")
    GD = 48
    def loads():
        for i in range(8):
            A(f"buffer_load_dwordx2 {vr(GD+2*i,2)}, v{V_GO}, s[{SW}:{SW+3}], 0 offen offset:{i*512} sc1")
        rdy_load(14)
    def check():
        A(f"v_xor_b32 v13, v{GD}, v{V_GE}")
        for i in range(1, 8):
            A(f"v_bitop3_b32 v13, v{GD+2*i}, v{V_GE+i}, v13 bitop3:0xbe")
        rdy_check(9, 14)
        A("v_and_b32 v13, 0xff, v13")
        A("v_or_b32 v13, v13, v9")
        A(f"v_cmp_ne_u32 s[{S_FAIL}:{S_FAIL+1}], 0, v13")
    CM = 2 + OPT.get("cmid", 3)
    for st in CORD[2:CM]: run(c_pieces(st))
    loads()
    tok_p = A.vm
    for st in CORD[CM:]: run(c_pieces(st))
    tok_c = A.vm
    stamp(7)
    ok = lab("ok1")
    A.wait_vm(tok_p)
    for m in range(2):
        d = vr(ACC2 + 16 * m, 16)
        A(mf(d, vr(XS + 8 * m, 4), vr(DG, 4), "0"))
    check()
    A(f"s_cmp_eq_u64 s[{S_FAIL}:{S_FAIL+1}], 0")
    A(f"s_cbranch_scc1 {ok}")
    vm_keep = A.vm
    poll(loads, check)
    A.vm = vm_keep
    A.label(ok)
    stamp(8)
    h1, h2 = T0 + 20, T0 + 22
    cur = GD + 14
    for i in range(6, -1, -1):
        d = (h1, h2)[i & 1]
        cfma(d, C_L, cur, GD + 2 * i, tt)
        cur = d
    CQ = GD
    cmul(CQ, C_LQ, cur, tt)
    for e in range(2): A(f"v_mov_b32 v{CQ+2+e}, v{CQ+e}")
    for e in range(2): A(f"v_permlane32_swap_b32 v{CQ+e}, v{CQ+2+e}")
    A(f"v_pk_add_f32 {vr(CQ,2)}, {vr(CQ,2)}, {vr(CQ+2,2)}")
    def c_reads(st):
        s2_, off = CLDS[st] >> 16, CLDS[st] & 0xffff
        r = [None] * 8
        for ks in range(4):
            for ri in range(2):
                kap = (ks >> 1) * 4 + ri * 2 + (ks & 1)
                r[kap] = f"ds_read_b128 {ar((st*8+kap)*4,4)}, v{V_AW+4*s2_+ks} offset:{off+ri*8192}"
        return r
    for m in range(2):
        d = vr(ACC2 + 16 * m, 16)
        A(mf(d, vr(XS + 8 * m + 4, 4), vr(DG + 4, 4), d))
    HR, HI = T0 + 20, T0 + 22
    A(f"v_fma_f32 v{HR}, v{E0}, v{CQ}, v{F0}")
    A(f"v_fma_f32 v{HR+1}, v{E1}, v{CQ}, v{F1}")
    A(f"v_fma_f32 v{HI}, -v{E0}, v{CQ+1}, -v{F0+1}")
    A(f"v_fma_f32 v{HI+1}, -v{E1}, v{CQ+1}, -v{F1+1}")
    A(f"v_fma_f32 v{HR}, -v{E0+1}, v{CQ+1}, v{HR}")
    A(f"v_fma_f32 v{HR+1}, -v{E1+1}, v{CQ+1}, v{HR+1}")
    A(f"v_fma_f32 v{HI}, -v{E0+1}, v{CQ}, v{HI}")
    A(f"v_fma_f32 v{HI+1}, -v{E1+1}, v{CQ}, v{HI+1}")
    pr, pi_ = HR, HI
    hst = []
    for hf in range(2):
        for s in range(8 * hf, 8 * hf + 8):
            re, im = URE + 2 * s, UIM + 2 * s
            emit([f"v_pk_fma_f32 {vr(re,2)}, {vr(C_LAM,2)}, {vr(pi_,2)}, {vr(re,2)} {lam_bc(1)}",
                  f"v_pk_fma_f32 {vr(im,2)}, {vr(C_LAM,2)}, {vr(pr,2)}, {vr(im,2)} {lam_bc(1)} {NEG}",
                  f"v_pk_fma_f32 {vr(re,2)}, {vr(C_LAM,2)}, {vr(pr,2)}, {vr(re,2)} {lam_bc(0)}",
                  f"v_pk_fma_f32 {vr(im,2)}, {vr(C_LAM,2)}, {vr(pi_,2)}, {vr(im,2)} {lam_bc(0)}"])
            pr, pi_ = re, im
        for ri in range(2):
            U = (URE, UIM)[ri]
            for z in range(2):
                o = 2 * z + hf
                d = HP + (ri * 4 + o) * 4
                for u in range(4):
                    s0 = 8 * hf + 2 * u
                    A(f"v_cvt_pk_bf16_f32 v{d+u}, v{U+2*s0+z}, v{U+2*s0+2+z}")
                A(f"buffer_store_dwordx4 {vr(d,4)}, v{V_AW+8+o if False else (V_SO+o if o else V_HSO)}, s[{SWS}:{SWS+3}], s{P_ACTW} offen offset:{(ri*4+o)*512} sc1")
                hst.append((ri * 4 + o, A.vm))
    tok_h = A.vm
    stamp(9)
    HS = [3, 4, 0, 1, 3, 4, 0, 1]
    def h_pieces(G):
        r = []
        for sub in range(2):
            pos, ph = SEQ[2 * G + sub]
            r += dma_pieces(V_LIN, SWS, ST + 8, HS[G] * SLOT + sub * 16384,
                            pre=lambda pos=pos, ph=ph: (A(f"s_lshl_b32 s{ST+8}, s{KAP[pos]}, 15"), A(f"s_add_u32 s{ST+8}, s{ST+8}, s{P_ACTR+ph}")),
                            post=(lambda: tok.__setitem__(("h", G), A.vm)) if sub else None, flags=PLF, same_v=True)
        return r
    assert CPRE == 8
    call = sum([c_reads(st) for st in [0, 1, 2, 3, 4, 5, 6, 7]], [])
    HF = 48
    def rd2(n):
        G, q = n >> 2, n & 3
        slot, buf = HS[G], n & 1
        r = []
        for h in range(4):
            kap = 4 * (q & 1) + h
            off = (slot & 1) * SLOT + (q >> 1) * 16384 + (kap >> 2) * 4096 + ((kap >> 1) & 1) * 2048 + (kap & 1) * 256
            for j in range(2):
                if G == 0:
                    o2 = (kap >> 2) * 8192 + ((kap >> 1) & 1) * 4096 + (kap & 1) * 256
                    r.append(f"ds_read_b64_tr_b16 {vr(HF+buf*16+h*4+2*j,2)}, v{V_AO+2*(q>>1)+j} offset:{o2}")
                else:
                    r.append(f"ds_read_b64_tr_b16 {vr(HF+buf*16+h*4+2*j,2)}, v{V_AH+2*(slot>>1)+j} offset:{off}")
        return r
    def mm2(n):
        buf = n & 1
        pos, ph = SEQ[n >> 1]
        d = vr(ACC2 + 16 * ph, 16)
        return [mf(d, vr(HF + buf * 16 + h * 4, 4), ar((8 * pos + 4 * (n & 1) + h) * 4, 4), d) for h in range(4)]
    xcc_decide(14)
    A.wait_vm(tok_c)
    A("s_barrier")
    slin(ST + 2, 3 * SLOT, (S_WAVE, 8192))
    A(f"v_add_u32 v{V_GO}, s{ST+2}, v{V_LIN}")
    for o in range(1, 4): A(f"v_xor_b32 v{V_GO+o}, {o*64}, v{V_GO}")
    for p in range(8):
        A(f"ds_write_b128 v{V_GO+(p&3)}, {vr(HP+4*p,4)} offset:{p*1024}")
    emit(call[:8])
    A("s_waitcnt lgkmcnt(0)")
    A("s_barrier")
    cf = call[8:]
    gemm_loop(4, rd2, mm2, lambda n: None, (3, 3, 2, 0), (2, 3), cf)
    emit(cf[:24]); cf = cf[24:]
    A.wait_vm(tok_h)
    flag_store()
    stamp(10)
    emit(cf)
    A("s_waitcnt lgkmcnt(0)")
    A("s_barrier")
    flag_poll()
    stamp(11)
    run(h_pieces(1) + h_pieces(2))
    stamp(12)
    fill = []
    def on_step2(n):
        G, q = n >> 2, n & 3
        if q == 0:
            if G == 1: fill.extend(h_pieces(3) + h_pieces(4))
            elif G + 3 < 8: fill.extend(h_pieces(G + 3))
            elif G == 5: fill.extend(out_stores(ACC2, 0))
    A.wait_vm(tok[("h", 1)])
    A("s_barrier")
    stamp(13)
    gemm_loop(32, rd2, mm2, lambda n: tok[("h", n >> 2)] if (n & 3) == 0 else None, (3, 3, 2, 0),
              lambda n: (0, 1, 2, 3) if n < 8 else (2, 3), fill, on_step2, start=4)
    assert not fill
    stamp(14)
    run(out_stores(ACC2, 1))
    tag_update("A")
    stamp(15)
    finish()

def role_B():
    V_OO = 24
    V_AX, V_AT = 28, 36
    V_SW, V_SR, V_P2, V_G2B, V_PB0, V_PB1, V_G1, V_GZ, V_G2, V_P2Z = 39, 40, 41, 42, 43, 44, 45, 46, 47, 253
    S_WPH, V_WPO = P0 + 12, 252
    IDF = 216
    V_WF = 48
    KACC, VACC, PK, KV, WPH = 64, 96, 128, 192, 224
    T0 = 232
    P_P1O, P_P1G, P_P2O, P_P2G, P_MSK = P0 + 1, P0 + 2, P0 + 8, P0 + 9, P0 + 10
    S_PART = 57
    WPS = OPT.get('wps', 0)
    QE = OPT.get('qe', 0)
    code_prefetch()
    A("v_lshrrev_b32 v9, 1, v3")
    A("v_xor_b32 v9, v9, v4")
    A("v_lshlrev_b32 v9, 4, v9")
    A("v_lshl_add_u32 v10, v3, 10, v9")
    slin(ST, 0, (S_CHUNK, 1 << 17), (S_WAVE, 1 << 15))
    A(f"v_add_u32 v{V_OX}, s{ST}, v10")
    A(f"v_xor_b32 v11, 64, v{V_OX}")
    A(f"v_add_u32 v{V_OX+1}, 7168, v11")
    A(f"v_add_u32 v{V_OX+2}, {2*7168}, v{V_OX}")
    A(f"v_add_u32 v{V_OX+3}, {3*7168}, v11")
    A("v_bfe_u32 v9, v3, 1, 1")
    A("v_lshlrev_b32 v9, 2, v9")
    A("v_xor_b32 v9, v9, v4")
    A("v_lshlrev_b32 v9, 4, v9")
    A(f"s_lshl_b32 s{ST}, s{S_CG}, 7")
    A(f"v_add_u32 v9, s{ST}, v9")
    A(f"s_lshl_b32 s{ST+1}, s{S_CH}, 5")
    A(f"v_add_u32 v10, s{ST+1}, v3")
    A("v_mul_u32_u24 v11, 3072, v10")
    A(f"v_add_u32 v{V_OW}, v11, v9")
    for p in range(1, 4): A(f"v_add_u32 v{V_OW+p}, {p*(8*3072-1024)}, v{V_OW}")
    A(f"v_lshl_add_u32 v{V_OO}, v10, 10, v9")
    slin(S_PART, 1024, (S_RH, 1024))
    A("s_waitcnt lgkmcnt(0)")
    srd(SW, K_WQKV, 0x180000)
    stamp(1)
    A(f"s_load_dword s{S_TAG}, s[{K_WS}:{K_WS+1}], {WS_TAGB}")
    srd(SX, K_BX, 0x200000)
    tok = {}
    def g1_pieces(i):
        slot = i & 3
        return (dma_pieces(V_OW, SW, ST + 8, slot * SLOT, pre=lambda: rot_soff(ST + 8, i, mul=196608, plus=S_PART, rot=S_ROT1)) +
                dma_pieces(V_OX, SX, ST + 10, slot * SLOT + 16384, pre=lambda: rot_soff(ST + 10, i, shift=7, rot=S_ROT1),
                           post=lambda: tok.__setitem__(i, A.vm), flags=XF))
    QSLOT = [4, 0]; OSLOT = [1, 2]
    def q_pieces(st):
        return dma_pieces(V_OW, SW, ST + 9, QSLOT[st >> 1] * SLOT + (st & 1) * 16384,
                          pre=lambda: rot_soff(ST + 9, 2 * st, mul=196608, extra_sreg=S_RH, rot=S_ROT1), post=lambda: tok.__setitem__(("q", st), A.vm))
    OPAIR = [(1, 2), (0, 3), (4, 5), (6, 7)]
    OLDS = {}
    for st_, pr_ in enumerate(OPAIR):
        for e_ in range(2): OLDS[pr_[e_]] = OSLOT[st_ >> 1] * SLOT + (st_ & 1) * 16384 + e_ * 8192
    def o_pieces(st):
        def pre():
            A(f"s_cmp_eq_u32 s{S_RH}, 0")
            A(f"s_cselect_b32 s{ST+9}, s{KAP[OPAIR[st][0]]}, s{KAP[OPAIR[st][1]]}")
            A(f"s_lshl_b32 s{ST+9}, s{ST+9}, 16")
        return dma_pieces(V_OO, SW2, ST + 9, OSLOT[st >> 1] * SLOT + (st & 1) * 16384, pre=pre)
    run(g1_pieces(0))
    wpl = []
    for hh in range(2):
        for u in range(4):
            d0 = (0, 2, 8, 10)[u]
            wpl.append(f"global_load_ushort v{WPH+4*hh+u}, v{V_WPO}, s[{S_WPH}:{S_WPH+1}] offset:{hh*512+d0*32}")
            wpl.append(f"global_load_ushort v{T0+8+4*hh+u}, v{V_WPO}, s[{S_WPH}:{S_WPH+1}] offset:{hh*512+(d0+1)*32}")
    srd(SW2, K_WO, 0x80000)
    late = g1_pieces(1)
    if EARLY:
        run(late[:NPRE]); late = late[NPRE:] + g1_pieces(2)
    else:
        run(late); late = []
    if OPT.get("wtouch", 0):
        slin(ST, 0, (S_CHUNK, 32), (S_WAVE, 8))
        A(f"v_add_u32 v9, s{ST}, v4")
        A("v_mul_u32_u24 v10, 3072, v9")
        A("v_lshlrev_b32 v9, 10, v9")
        A(f"s_lshl_b32 s{ST}, s{S_CG}, 7")
        A(f"buffer_load_dword v254, v10, s[{SW}:{SW+3}], s{ST} offen")
        A(f"buffer_load_dword v254, v9, s[{SW2}:{SW2+3}], s{ST} offen")
    stamp(2)
    cut("B")
    A(f"s_lshl_b32 s{ST}, s{S_RH}, 13")
    lds_b128_addrs(V_AX, ST, 16384, 2)
    A(f"v_bfe_u32 v9, v{V_LANE}, 4, 1")
    A(f"v_bfe_u32 v13, v{V_LANE}, 1, 1")
    A("v_lshl_add_u32 v10, v9, 1, v13")
    A(f"v_bfe_u32 v13, v{V_LANE}, 3, 1")
    A(f"v_xor_b32 v13, s{S_CH}, v13")
    A("v_lshl_add_u32 v9, v13, 2, v10")
    A("v_lshlrev_b32 v9, 4, v9")
    A(f"v_and_b32 v10, 1, v{V_LANE}")
    A("v_lshl_add_u32 v9, v10, 3, v9")
    A(f"v_bfe_u32 v14, v{V_LANE}, 2, 2")
    A(f"v_lshl_add_u32 v13, v{V_G}, 3, v14")
    A(f"v_lshl_add_u32 v{V_AT}, v13, 7, v9")
    A(f"v_add_u32 v{V_AT+1}, 0x10000, v{V_AT}")
    A(f"v_add_u32 v{V_AT+2}, 0x20000, v{V_AT}")
    if OPT.get("lateset", 0): A.cap = []
    A(f"s_mov_b64 s[{S_WPH}:{S_WPH+1}], s[{K_WPHI}:{K_WPHI+1}]")
    common_setup("B")
    for p in range(1, 4): A(f"v_add_u32 v{V_OO+p}, {p*7168}, v{V_OO}")
    A(f"v_lshrrev_b32 v9, 3, v{V_N}")
    A(f"v_and_b32 v13, 3, v{V_N}")
    A("v_lshl_add_u32 v9, v9, 2, v13")
    A("v_lshlrev_b32 v9, 1, v9")
    A(f"v_lshl_add_u32 v9, v{V_G}, 7, v9")
    slin(ST, 0, (S_CG, 2048), (S_CH, 1024))
    A(f"v_add_u32 v{V_WPO}, s{ST}, v9")
    slin(ST, 0, (S_CG, 512), (S_CH, 256), (S_CHUNK, 2), (S_RH, 1))
    slin(P_P1O, WS_P1, (ST, 640))
    slin(ST, 0, (S_CG, 16), (S_CHUNK, 1))
    slin(P_P2O, WS_P2, (ST, 640))
    slin(P_P1G, WS_P1, (ST, 32 * 640))
    for k in range(1, 4): A(f"s_add_u32 s{P_P1G+k}, s{P_P1G}, {8*k*640}")
    slin(ST, 0, (S_CG, 16), (S_CH, 8))
    slin(P_P2G, WS_P2, (ST, 640))
    A(f"s_mov_b32 s{P_MSK}, 0xffffff00")
    slin(P_ACTW, WS_O, (S_CHUNK, 1 << 17), (S_CG, 1 << 14), (S_RH, 1 << 12), (S_CH, 1 << 11))
    A(f"s_add_u32 s{P_ACTW2}, s{P_ACTW}, 8192")
    slin(P_ACTR, WS_O, (S_CHUNK, 1 << 17), (S_MF, 8192), (S_WAVE, 2048))
    A(f"s_lshl_b32 s{S_M0W2}, s{S_WAVE}, 11")
    A(f"s_xor_b32 s{P_ACTR2}, s{P_ACTR}, 8192")
    clears = [f"buffer_store_dwordx4 {vr(T0+16,4)}, v{V_LIN}, s[{SWS}:{SWS+3}], s{P_ACTW+(k>>1)} offen offset:{(k&1)*1024} sc1" for k in range(4)]
    A(f"s_and_b32 s{ST}, s{S_TAG}, 0xff")
    A(f"v_mov_b32 v{V_TAG}, s{ST}")
    A(f"v_mov_b32 v11, s{S_TAG}")
    A(f"v_and_b32 v9, 1, v{V_N}")
    A("v_lshlrev_b32 v9, 4, v9")
    A("v_mov_b32 v13, 0x3f80")
    A("v_lshlrev_b32 v13, v9, v13")
    A(f"v_lshrrev_b32 v9, 1, v{V_N}")
    A(f"v_lshlrev_b32 v14, 3, v{V_G}")
    A("v_sub_u32 v9, v9, v14")
    for q in range(8):
        A(f"v_cmp_eq_u32 vcc, {q}, v9")
        A(f"v_cndmask_b32_e64 v{IDF+q}, 0, v13, vcc")
    A(f"v_and_b32 v9, 15, v{V_LANE}")
    A("v_cmp_gt_u32 vcc, 4, v9")
    A("v_lshlrev_b32 v9, 4, v9")
    A(f"v_lshl_add_u32 v13, v{V_G}, 6, v9")
    A("v_add_u32 v13, 512, v13")
    A(f"v_lshl_add_u32 v9, v{V_G}, 8, v9")
    A(f"v_mov_b32 v14, {OOB:#x}")
    A("v_cndmask_b32 v13, v14, v13, vcc")
    A(f"v_cndmask_b32_e64 v{V_PB0}, v9, v13, s[{S_M16}:{S_M16+1}]")
    A(f"v_cndmask_b32_e64 v{V_PB1}, v13, v9, s[{S_M16}:{S_M16+1}]")
    A(f"v_cndmask_b32_e64 v13, v13, v14, s[{S_M16}:{S_M16+1}]")
    A(f"s_cmp_eq_u32 s{S_WAVE}, 0")
    A(f"s_cselect_b64 vcc, -1, 0")
    A(f"v_cndmask_b32 v{V_P2Z}, v14, v13, vcc")
    A(f"v_and_b32 v9, 7, v{V_LANE}")
    A(f"s_lshl_b32 s{ST}, s{S_WAVE}, 7")
    A(f"v_lshl_add_u32 v9, v9, 4, s{ST}")
    A(f"v_lshrrev_b32 v13, 3, v{V_LANE}")
    A("v_mul_u32_u24 v13, 640, v13")
    A(f"v_add_u32 v{V_G1}, v9, v13")
    A(f"v_cmp_gt_u32 vcc, 8, v{V_LANE}")
    A(f"v_mul_u32_u24 v{V_GZ}, 640, v{V_N}")
    A(f"v_lshl_add_u32 v{V_GZ}, v{V_G}, 6, v{V_GZ}")
    A(f"v_cndmask_b32 v{V_P2}, v14, v9, vcc")
    A(f"v_bfe_u32 v9, v{V_N}, 2, 1")
    A("v_lshlrev_b32 v9, 3, v9")
    A(f"v_bfe_u32 v13, v{V_N}, 3, 1")
    A("v_lshl_add_u32 v9, v13, 2, v9")
    A(f"v_and_b32 v13, 3, v{V_N}")
    A("v_add_u32 v9, v9, v13")
    A(f"v_cndmask_b32_e64 v9, v9, 32, s[{S_M16}:{S_M16+1}]")
    A("v_lshlrev_b32 v9, 4, v9")
    A(f"v_mul_u32_u24 v13, 1280, v{V_G}")
    A(f"v_add_u32 v{V_G2}, v9, v13")
    A("v_mov_b32 v9, 0x100")
    A(f"v_cndmask_b32_e64 v9, v9, 64, s[{S_M16}:{S_M16+1}]")
    A(f"v_add_u32 v{V_G2B}, v{V_G2}, v9")
    if OPT.get("prew", 1):
        for r in range(4): A(f"v_subrev_u32 v{T0+4+r}, 1, v{V_TAG}")
        A(f"buffer_store_dwordx4 {vr(T0+4,4)}, v{V_P2Z}, s[{SWS}:{SWS+3}], s{P_P2O} offen sc1")
        A(f"buffer_store_dwordx4 {vr(T0+4,4)}, v{V_P2}, s[{SWS}:{SWS+3}], s{P_P2O} offen sc1")
    A("v_mov_b32 v3, 0x3f803f80")
    A(f"v_bfe_u32 v4, v{V_LANE}, 2, 1")
    A("v_mul_u32_u24 v4, 0x8000, v4")
    A("v_lshl_or_b32 v4, v4, 16, v4")
    SET, A.cap = (A.cap or []), None
    stamp(3)
    run(late)
    def trfrag(dst, ldsoff, kind="v"):
        s_, off = ldsoff >> 16, ldsoff & 0xffff
        return [f"ds_read_b64_tr_b16 {vr(dst+2*j,2,kind)}, v{V_AT+s_} offset:{off+j*512}" for j in range(2)]
    def rd(n):
        i, ks = n >> 2, n & 3
        slot, buf = i & 3, n & 1
        s2_, off = slot >> 1, (slot & 1) * SLOT
        x = [f"ds_read_b128 {ar(n*8+m*4,4)}, v{V_AX+4*s2_+ks} offset:{off+m*4096}" for m in range(2)]
        w = [trfrag(V_WF + buf * 8 + part * 4, slot * SLOT + part * 8192 + ks * 2048) for part in range(2)]
        return [x[0]] + w[0] + [x[1]] + w[1]
    def mm(n):
        buf = n & 1
        r = []
        for part, m in ((0, 0), (0, 1), (1, 0), (1, 1)):
            x, w = ar(n * 8 + m * 4, 4), vr(V_WF + buf * 8 + part * 4, 4)
            d = vr((KACC, VACC)[part] + 16 * m, 16)
            r.append(mf(d, w, x, d if n else "0") if part == 0 else mf(d, x, w, d if n else "0"))
        return r
    fill = []
    def on_step(n):
        i, ks = n >> 2, n & 3
        if ks == 0 and OPT.get("g1st") and i: stamp(16 + i)
        if ks == 0:
            if i in (WPS, WPS + 1): fill.extend(wpl[8*(i-WPS):8*(i-WPS)+8])
            for st in SCHED[0].get(i, []): fill.extend(g1_pieces(st))
            if i == 5: fill.extend(q_pieces(0) + (q_pieces(1) if QE == 1 else []))
            if i == 6:
                fill.extend((q_pieces(2) + q_pieces(3)) if QE == 1 else o_pieces(0))
                if OPT.get("ptouch", 0):
                    fill.extend([f"buffer_load_dword v254, v{V_G1}, s[{SWS}:{SWS+3}], s{P_P1G+k} offen sc1" for k in range(4)])
                    fill.append(f"buffer_load_dword v254, v{V_GZ}, s[{SWS}:{SWS+3}], s{P_P1G} offen sc1")
                    fill.extend([f"buffer_load_dword v254, v{V_G2}, s[{SWS}:{SWS+3}], s{P_P2G} offen offset:{(hh*4+jp)*640} sc1" for hh in range(2) for jp in range(2)])
                    fill.append(lambda: rdy_load(254, 254))
            elif i == 7:
                fill.extend(o_pieces(0) if QE == 1 else o_pieces(1))
                for r in range(8):
                    fill.append(lambda r=r: (A(f"v_lshl_or_b32 v{WPH+r}, v{T0+8+r}, 16, v{WPH+r}"), A(f"v_xor_b32 v{WPH+r}, v4, v{WPH+r}"), A(f"v_mov_b32 v{T0+8+r}, v{IDF+r}")))
    A.wait_vm(tok[0])
    A("s_barrier")
    stamp(4)
    gemm_loop(32, rd, mm, lambda n: tok[n >> 2] if (n & 3) == 0 else None, (3, 3, 0, 0), lambda n: g1_gaps(n, (7, WPS, WPS + 1)), fill, on_step, end_barrier=True, extra=SET, nextra=lambda n, g: NX)
    assert not SET
    assert not fill
    stamp(5)
    def feat(acc):
        for m in range(2):
            for u in range(8):
                A(f"v_cvt_pk_bf16_f32 v{acc+16*m+u}, v{acc+16*m+2*u}, v{acc+16*m+2*u+1}")
            for hh in range(2):
                A(mf(vr(PK + (m * 2 + hh) * 16, 16), vr(WPH + 4 * hh, 4), vr(acc + 16 * m + 4 * hh, 4), "0"))
    def softmax_l(x, dst):
        mx, sm = T0, T0 + 2
        l = [f"v_max3_f32 v{mx}, v{x}, v{x+1}, v{x+2}"]
        for u in range(3, 15, 2):
            l.append(f"v_max3_f32 v{mx}, v{mx}, v{x+u}, v{x+u+1}")
        l.append(f"v_max_f32 v{mx}, v{mx}, v{x+15}")
        l.append(f"v_mul_f32 v{mx}, s{S_L2E}, v{mx}")
        for u in range(8):
            l.append(f"v_pk_fma_f32 {vr(x+2*u,2)}, {vr(x+2*u,2)}, s[{S_L2E}:{S_L2E+1}], {vr(mx,2)} op_sel_hi:[1,1,0] neg_lo:[0,0,1] neg_hi:[0,0,1]")
        for u in range(16):
            l.append(f"v_exp_f32 v{x+u}, v{x+u}")
        l.append(f"v_pk_add_f32 {vr(sm,2)}, {vr(x,2)}, {vr(x+2,2)}")
        for u in range(2, 8):
            l.append(f"v_pk_add_f32 {vr(sm,2)}, {vr(sm,2)}, {vr(x+2*u,2)}")
        l.append(f"v_add_f32 v{sm}, v{sm}, v{sm+1}")
        l.append(f"v_rcp_f32 v{sm}, v{sm}")
        for u in range(8):
            l.append(f"v_pk_mul_f32 {vr(x+2*u,2)}, {vr(x+2*u,2)}, {vr(sm,2)} op_sel_hi:[1,0]")
        for u in range(8):
            l.append(f"v_cvt_pk_bf16_f32 v{dst+u}, v{x+2*u}, v{x+2*u+1}")
        return l
    feat(KACC)
    for m in range(2):
        for u in range(8):
            A(f"v_cvt_pk_bf16_f32 v{VACC+16*m+u}, v{VACC+16*m+2*u}, v{VACC+16*m+2*u+1}")
    for m in range(2):
        for u in range(8):
            A(f"v_cndmask_b32_e64 v{VACC+16*m+8+u}, v3, v{VACC+16*m+u}, s[{S_M16}:{S_M16+1}]")
            A(f"v_cndmask_b32_e64 v{VACC+16*m+u}, v{VACC+16*m+u}, v3, s[{S_M16}:{S_M16+1}]")
    nbstamp(0)
    PH = [KACC + 8, KACC + 24]
    ID = T0 + 8
    def tmm(blk):
        d = vr(PK + 16 * blk, 16)
        return [mf(d, vr(PH[blk & 1] + 4 * jp, 4), vr(ID + 4 * jp, 4), d if jp else "0") for jp in range(2)]
    def tcvt(blk):
        t = PK + 16 * blk
        return [f"v_cvt_pk_bf16_f32 v{t+u}, v{t+2*u}, v{t+2*u+1}" for u in range(8)]
    def kvmm(blk):
        m, hh = blk >> 1, blk & 1
        d = vr(KV + 16 * hh, 16)
        return [mf(d, vr(PK + 16 * blk + 4 * mm_, 4), vr(VACC + 16 * m + 8 * hh + 4 * mm_, 4), d if (m or mm_) else "0") for mm_ in range(2)]
    for blk in range(4):
        l = softmax_l(PK + blk * 16, PH[blk & 1])
        if blk:
            t, kv = tmm(blk - 1), kvmm(blk - 1)
            l = l[:17] + [t[0]] + l[17:21] + [t[1]] + l[21:33] + tcvt(blk - 1) + l[33:50] + [kv[0]] + l[50:58] + [kv[1]]
        emit(l)
        if blk < 3 and not QE: run(q_pieces(blk + 1))
        nbstamp(1 + blk)
    TS = 4 if OPT.get("tag1", 1) else 1
    def tagit(r, n):
        for e in range(0, n, TS):
            A(f"v_and_or_b32 v{r+e}, v{r+e}, s{P_MSK}, v{V_TAG}")
    def pub(hh, oc):
        A(f"s_add_u32 s{ST+3}, s{P_P1O}, {(hh*4+oc)*32*640}")
        A(f"buffer_store_dwordx4 {vr(KV+16*hh+4*oc,4)}, v{V_PB0+hh}, s[{SWS}:{SWS+3}], s{ST+3} offen sc1")
    emit(tmm(3))
    tagit(KV, 16)
    pub(0, 0); pub(0, 1)
    emit(tcvt(3))
    emit(kvmm(3))
    nbstamp(5)
    pub(0, 2); pub(0, 3)
    tagit(KV + 16, 16)
    for oc in range(4): pub(1, oc)
    QACC = KACC
    def qaddr(n):
        i, ks = n >> 2, n & 3
        return QSLOT[i >> 2] * SLOT + (i & 3) * 8192 + ks * 2048
    def rdq(n):
        return trfrag(V_WF + (n & 1) * 8, qaddr(2 * n)) + trfrag(V_WF + (n & 1) * 8 + 4, qaddr(2 * n + 1))
    def mmq(n):
        r = []
        for h in range(2):
            for m in range(2):
                d = vr(QACC + 16 * m, 16)
                r.append(mf(d, vr(V_WF + (n & 1) * 8 + 4 * h, 4), ar((2 * n + h) * 8 + m * 4, 4), d if (n or h) else "0"))
        return r
    stamp(6)
    nbflush()
    GD = VACC
    GZ = GD + 16
    g1l = [f"buffer_load_dwordx4 {vr(GD+4*k,4)}, v{V_G1}, s[{SWS}:{SWS+3}], s{P_P1G+k} offen sc1" for k in range(4)]
    g1l.append(f"buffer_load_dwordx4 {vr(GZ,4)}, v{V_GZ}, s[{SWS}:{SWS+3}], s{P_P1G} offen offset:512 sc1")
    S_D1, S_RET = P0 + 11, ST + 6
    A(f"s_mov_b32 s{S_D1}, 0")
    def try1a(block=False):
        skip = lab("sk")
        if block:
            A(f"s_cmp_lg_u32 s{S_D1}, 0")
        else:
            A(f"s_getreg_b32 s{ST+5}, hwreg(HW_REG_IB_STS, 0, 4)")
            A(f"s_or_b32 s{ST+5}, s{ST+5}, s{S_D1}")
        A(f"s_cbranch_scc1 {skip}")
        A(f"s_call_b64 s[{S_RET}:{S_RET+1}], L_try1a")
        A.label(skip)
    def sub_try1a():
        A.label("L_try1a")
        A.hist = []
        A("s_waitcnt vmcnt(0)")
        A(f"v_xor_b32 v13, v{GD}, v{V_TAG}")
        for s in range(TS, 20, TS):
            A(f"v_bitop3_b32 v13, v{GD+s}, v{V_TAG}, v13 bitop3:0xbe")
        A("v_and_b32 v13, 0xff, v13")
        A(f"v_cmp_ne_u32 s[{S_FAIL}:{S_FAIL+1}], 0, v13")
        A(f"s_cmp_eq_u64 s[{S_FAIL}:{S_FAIL+1}], 0")
        A("s_cbranch_scc1 L_try1a_ok")
        emit(g1l)
        A(f"s_setpc_b64 s[{S_RET}:{S_RET+1}]")
        A.label("L_try1a_ok")
        DPP = "row_mask:0xf bank_mask:0xf"
        A(f"v_permlane16_swap_b32 v{GZ}, v{GZ+2}")
        A(f"v_permlane16_swap_b32 v{GZ+1}, v{GZ+3}")
        for u in range(0, 8, 2):
            A(f"v_pk_add_f32 {vr(GD+u,2)}, {vr(GD+u,2)}, {vr(GD+8+u,2)}")
        A(f"v_pk_add_f32 {vr(GZ,2)}, {vr(GZ,2)}, {vr(GZ+2,2)}")
        for u in range(0, 4, 2):
            A(f"v_pk_add_f32 {vr(GD+u,2)}, {vr(GD+u,2)}, {vr(GD+4+u,2)}")
        def zror(k):
            for e in range(2): A(f"v_add_f32_dpp v{GZ+e}, v{GZ+e}, v{GZ+e} row_ror:{k} {DPP}")
        zror(1)
        A(f"v_permlane32_swap_b32 v{GD}, v{GD+1}")
        A(f"v_permlane32_swap_b32 v{GD+2}, v{GD+3}")
        zror(2)
        A(f"v_add_f32 v{GD}, v{GD}, v{GD+1}")
        A(f"v_add_f32 v{GD+2}, v{GD+2}, v{GD+3}")
        zror(4)
        A(f"v_permlane16_swap_b32 v{GD}, v{GD+2}")
        A(f"v_add_f32 v{GD}, v{GD}, v{GD+2}")
        zror(8)
        A(f"v_add_f32_dpp v{GD}, v{GD}, v{GD} row_ror:8 {DPP}")
        for e in range(2): A(f"v_and_or_b32 v{GZ+e}, v{GZ+e}, s{P_MSK}, v{V_TAG}")
        A(f"v_and_or_b32 v{GD}, v{GD}, s{P_MSK}, v{V_TAG}")
        for e in range(2): A(f"v_mov_b32 v{GZ+2+e}, v{GZ+e}")
        A(f"v_mov_b32 v{GD+1}, v{GD}")
        A(f"v_permlane16_swap_b32 v{GZ}, v{GZ+2}")
        A(f"v_permlane16_swap_b32 v{GZ+1}, v{GZ+3}")
        A(f"v_permlane32_swap_b32 v{GD}, v{GD+1}")
        A(f"buffer_store_dwordx4 {vr(GZ,4)}, v{V_P2Z}, s[{SWS}:{SWS+3}], s{P_P2O} offen sc1")
        A(f"v_mov_b32 v{GD+2}, v{GD}")
        A(f"v_mov_b32 v{GD+3}, v{GD+1}")
        A(f"v_permlane16_swap_b32 v{GD}, v{GD+2}")
        A(f"v_permlane16_swap_b32 v{GD+1}, v{GD+3}")
        A(f"buffer_store_dwordx4 {vr(GD,4)}, v{V_P2}, s[{SWS}:{SWS+3}], s{P_P2O} offen sc1")
        stamp(8)
        A(f"s_mov_b32 s{S_D1}, 1")
        A(f"s_setpc_b64 s[{S_RET}:{S_RET+1}]")
    DEFER.append(sub_try1a)
    fill = []
    G1AT = OPT.get('g1at', 13)
    def on_stepq(n):
        if n == 0: fill.extend((o_pieces(1) if QE == 1 else (q_pieces(2) + q_pieces(3) if QE == 2 else [])) + o_pieces(2) + o_pieces(3) + [lambda: tok.__setitem__('wo', A.vm)])
        if n == G1AT: fill.extend(g1l + [None])
        if n >= G1AT + 4: fill.extend([None, try1a])
    if QE == 2:
        run(q_pieces(1))
        A.wait_vm(tok[("q", 0)])
        qb = lambda n: tok[("q", n >> 2)] if n in (4, 8, 12) else None
    else:
        A.wait_vm(tok[("q", 3)])
        qb = lambda n: None
    A("s_barrier")
    stamp(26)
    gemm_loop(16, rdq, mmq, qb, (2, 2, 0, 0), lambda n: (0, 1, 2, 3) if (QE == 2 and n < 2) else (2, 3), fill, on_stepq)
    assert not fill
    A.wait_vm(tok["wo"])
    A("s_barrier")
    stamp(7)
    feat(QACC)
    def wait1a():
        top, done = lab("w1a"), lab("w1d")
        A(f"s_mov_b32 s{S_CNT}, {SPIN_LIMIT}")
        A.label(top)
        try1a(block=True)
        A(f"s_cmp_lg_u32 s{S_D1}, 0")
        A(f"s_cbranch_scc1 {done}")
        A(f"s_sub_u32 s{S_CNT}, s{S_CNT}, 1")
        A(f"s_cbranch_scc0 {top}")
        A.label(done)
    B1 = OPT.get("blk1a", 0)
    if B1 == 0: wait1a()
    S_D2 = ST + 4
    A(f"s_mov_b32 s{S_D2}, 0")
    PHQ = KV
    FD = PK
    def loads2():
        for hh in range(2):
            for jp in range(2):
                r = FD + (hh * 2 + jp) * 8
                off = (hh * 4 + jp) * 640
                A(f"buffer_load_dwordx4 {vr(r,4)}, v{V_G2}, s[{SWS}:{SWS+3}], s{P_P2G} offen offset:{off} sc1")
                A(f"buffer_load_dwordx4 {vr(r+4,4)}, v{V_G2B}, s[{SWS}:{SWS+3}], s{P_P2G} offen offset:{off} sc1")
        rdy_load(14)
    def check2():
        A(f"v_xor_b32 v13, v{FD}, v{V_TAG}")
        for s in range(1, 32):
            A(f"v_bitop3_b32 v13, v{FD+s}, v{V_TAG}, v13 bitop3:0xbe")
        rdy_check(9, 14)
        A("v_and_b32 v13, 0xff, v13")
        A("v_or_b32 v13, v13, v9")
        A(f"v_cmp_ne_u32 s[{S_FAIL}:{S_FAIL+1}], 0, v13")
    for blk in range(4):
        if blk == 3: loads2()
        emit(softmax_l(PK + blk * 16, PHQ + 8 * blk))
        if blk + 1 == B1: wait1a()
    stamp(9)
    KVF = VACC + 16
    ODR = [KACC, KACC + 16, PK + 32, PK + 48]
    A(f"s_lshl_b32 s{ST+5}, s{S_RH}, 12")
    A(f"v_add_u32 v{V_AX}, s{ST+5}, v{V_LIN}")
    A(f"v_add_u32 v{V_AX+1}, 0x10000, v{V_AX}")
    A(f"v_add_u32 v{V_AX+2}, 0x20000, v{V_AX}")
    slin(ST + 5, 3 * SLOT, (S_MF, 8192), (S_M0W2, 1))
    A(f"v_add_u32 v{V_AX+3}, s{ST+5}, v{V_LIN}")
    A(f"v_xor_b32 v{V_AX+4}, 0x2000, v{V_AX+3}")
    wor = []
    for n in range(32):
        wor += trfrag(n * 4, OLDS[n >> 2] + (n & 3) * 2048, "a")
    emit(wor[:8])
    def check2m():
        chk = [f"v_xor_b32 v13, v{FD}, v{V_TAG}"] + [f"v_bitop3_b32 v13, v{FD+s}, v{V_TAG}, v13 bitop3:0xbe" for s in range(TS, 32, TS)]
        for hh in range(2):
            for q in (2 * hh, 2 * hh + 1):
                for u in range(4):
                    A(f"v_cvt_pk_bf16_f32 v{KVF+4*q+u}, v{FD+8*q+2*u}, v{FD+8*q+2*u+1}")
            for m in range(2):
                blk = 2 * m + hh
                d = vr(ODR[blk], 16)
                for jp in range(2):
                    A(mf(d, vr(KVF + (hh * 2 + jp) * 4, 4), vr(PHQ + 8 * blk + 4 * jp, 4), d if jp else "0"))
                    k = 3 if hh == 0 else 5
                    emit(chk[:k]); chk = chk[k:]
        assert not chk
        rdy_check(9, 14)
        A("v_and_b32 v13, 0xff, v13")
        A("v_or_b32 v13, v13, v9")
        A(f"v_cmp_ne_u32 s[{S_FAIL}:{S_FAIL+1}], 0, v13")
    poll_pre(loads2, check2m)
    stamp(10)
    xcc_decide(14)
    ost = []
    for blk in (0, 2, 1, 3):
        m, hh = blk >> 1, blk & 1
        o = ODR[blk]
        A(f"v_add_f32 v{o+8}, 0x358637bd, v{o+8}")
        A(f"v_rcp_f32 v{o+8}, v{o+8}")
        for u in range(4):
            A(f"v_pk_mul_f32 {vr(o+2*u,2)}, {vr(o+2*u,2)}, {vr(o+8,2)} op_sel_hi:[1,0]")
        for u in range(4):
            A(f"v_cvt_pk_bf16_f32 v{o+12+u}, v{o+2*u}, v{o+2*u+1}")
        A(f"buffer_store_dwordx4 {vr(o+12,4)}, v{V_LIN}, s[{SWS}:{SWS+3}], s{P_ACTW+m} offen offset:{hh*1024} sc1")
        A(f"ds_write_b128 v{V_AX+3+m}, {vr(o+12,4)} offset:{hh*1024}")
    tok_o = A.vm
    stamp(11)
    ELDS = [(3, 4, 0, 1)[e >> 2] * SLOT + (e & 3) * 8192 for e in range(16)]
    def of_pieces(e):
        pos, ph = SEQ[e]
        def p0():
            A(f"s_add_u32 m0, s{S_M0W2}, {ELDS[e]:#x}")
            A(f"s_lshl_b32 s{ST+8}, s{KAP[pos]}, 14")
            A(f"s_add_u32 s{ST+8}, s{ST+8}, s{P_ACTR+ph}")
            A(f"buffer_load_dwordx4 v{V_LIN}, s[{SWS}:{SWS+3}], s{ST+8} offen {PLF}lds")
        def p1():
            A(f"buffer_load_dwordx4 v{V_LIN}, s[{SWS}:{SWS+3}], s{ST+8} offen offset:1024 {PLF}lds")
            tok[("of", e)] = A.vm
        return [p0, p1]
    OF = PK
    OACC = VACC
    def rd4(n):
        return [f"ds_read_b128 {vr(OF+(n&1)*16+h*4,4)}, v{V_AX+(ELDS[n]>>16)} offset:{(ELDS[n]&0xffff)+h*1024}" for h in range(4)]
    def mm4(n):
        pos, ph = SEQ[n]
        d = vr(OACC + 16 * ph, 16)
        return [mf(d, vr(OF + (n & 1) * 16 + h * 4, 4), ar((4 * pos + h) * 4, 4), d if (pos or h) else "0") for h in range(4)]
    A("s_waitcnt lgkmcnt(0)")
    A("s_barrier")
    wf = wor[8:]
    def two():
        for _ in range(2): A(wf.pop(0))
    gemm_loop(2, rd4, mm4, lambda n: None, (2, 2, 0, 0), (2, 3), [two] * 4)
    emit(wf[:16]); wf = wf[16:]
    A.wait_vm(tok_o)
    flag_store()
    emit(wf)
    flag_poll()
    stamp(12)
    for e in range(2, 7): run(of_pieces(e))
    fill = []
    def on_step4(n):
        if n == 2:
            for e in range(7, 16): fill.extend(of_pieces(e))
        if n == 10: fill.extend(out_stores(OACC, 0))
    A.wait_both(tok[("of", 3)], A.lg)
    A("s_barrier")
    stamp(13)
    BND = {4: 6, 7: 9, 10: 12, 13: 15}
    gemm_loop(16, rd4, mm4, lambda n: tok[("of", BND[n])] if n in BND else None, (2, 2, 0, 0),
              lambda n: (1, 2, 3) if n >= 10 else (0, 1, 2, 3), fill, on_step4, start=2)
    assert not fill
    stamp(14)
    run(out_stores(OACC, 1))
    tag_update("B")
    stamp(15)
    finish()

prologue()
vm0, lg0 = A.vm, A.lg
role_A()
for f in DEFER: f()
DEFER.clear()
A.label("L_roleB")
ROLE[0] = "B"
A.vm, A.lg = vm0, lg0
A.hist = []
role_B()
for f in DEFER: f()
A.label("L_end")
A("s_endpgm")

iB = A.out.index("L_roleB:")
iE = A.out.index("L_end:")
if OPT.get("bfirst", 1):
    lines = A.out[:CUT["P"]] + A.out[iB:CUT["B"]] + A.out[CUT["P"]:CUT["A"]] + A.out[CUT["B"]:iE] + A.out[CUT["A"]:iB] + A.out[iE:]
else:
    lines = A.out[:CUT["A"]] + A.out[iB:CUT["B"]] + A.out[CUT["A"]:iB] + A.out[CUT["B"]:]
if OPT["align"]:
    lines, nw, nn = align(lines, min_nop=OPT.get('minnop', 12))
    print("align: widened", nw, "nops", nn)
HEAD = open("cdna_kernels/" + NAME + ".s.ref").read().split("; Override launch geometry")[0]
src = HEAD + f"""; @launch grid=(256,1,1) block=(256,1,1) lds=163840
.amdgcn_target "amdgcn-amd-amdhsa--gfx950"
.text
.globl {NAME}_kernel
.p2align 8
.type {NAME}_kernel,@function
{NAME}_kernel:
""" + "\n".join(lines) + f"""
.fill 8192, 4, 0xBF810000
.section .rodata,"a"
.p2align 6
.amdhsa_kernel {NAME}_kernel
  .amdhsa_next_free_vgpr 512
  .amdhsa_next_free_sgpr 102
  .amdhsa_accum_offset 256
  .amdhsa_group_segment_fixed_size 0
  .amdhsa_kernarg_size 128
  .amdhsa_user_sgpr_count 2
  .amdhsa_user_sgpr_kernarg_segment_ptr 1
  .amdhsa_system_sgpr_workgroup_id_x 1
.end_amdhsa_kernel
"""
open(sys.argv[1], "w").write(src)
print("hazard nops:", A.nnop, "lines:", len(lines))
```

```python
import sys
from dsl import Asm, vr, ar, sr
from align import align

NAME = "concat_heads__ssm_conv_s5__linear_kernel_hedgehog__prompt"
OPT = dict(stamps=False, rotmode=2, align=1, xnt=0, hwait=8, owait=4, hand=0)
for a_ in sys.argv[2:]:
    k_, _, v_ = a_.partition("=")
    OPT[k_] = int(v_) if v_ else True

WS_TAGA, WS_TAGB = 0x0, 0x80
WS_XCC = 0x1000
WS_FLAG = 0x2000
WS_SA = 0x10000
WS_P1 = 0x100000
WS_P2 = 0x3C0000
WS_H = 0x400000
WS_O = 0x800000
WS_STAMP = 0xA00000
OOB = 0x40000000
SPIN_LIMIT = 1 << 14
LOG2E = 0x3FB8AA3B
INV2PI = 0x3E22F983

S_WAVE, S_CHUNK, S_CG, S_ROT, S_TAG = 3, 4, 5, 6, 7
SX, SW, SW2, SWS, SOUT = 8, 12, 16, 20, 24
S_RH, S_CH, S_SLOT, S_GRP = 28, 29, 30, 31
ST = 32
S_M0W, S_M0W2 = 48, 49
S_MG = 50
S_MRH = 52
S_L2E = 54
S_CNT = 56
S_FAIL = 58
S_M16 = 60
S_SM0, S_RS = 62, 63
S_XW, S_SLOW, P_FLW = 91, 92, 93
S_ROT1 = 47
KAP = [62, 63, 44, 45, 86, 87, 94, 95]
SEQ = [(0, 0), (0, 1)] + [(j, 0) for j in range(1, 8)] + [(j, 1) for j in range(1, 8)]
HAND = OPT['hand']
KA = 64
K_AX, K_LRE, K_LIM, K_BRE, K_BIM, K_CRE, K_CIM, K_LDT, K_DSK, K_BX, K_WQKV, K_WPHI, K_WO, K_OUT, K_DBG, K_WS = [KA + 2 * i for i in range(16)]
P_FLAGB, P_FLAGO, P_XCCB, P_TAGSEL, P_OUT, P_OUT2, P_ACTR, P_ACTR2 = range(64, 72)
P_ACTW, P_ACTW2, S_MF = 88, 89, 90
P0 = 72
S_STAMP = 96
V_LANE, V_OUTO, V_N, V_G, V_LIN, V_TAG, V_L0, V_CHK, V_XPO = 1, 2, 5, 6, 7, 8, 10, 12, 15
V_OX, V_OW = 16, 20
SLOT = 32768

A = Asm()
CUT = {}
nlab = [0]

def srd(dst, ptr, nbytes):
    A(f"s_mov_b32 s{dst}, s{ptr}")
    A(f"s_mov_b32 s{dst+1}, s{ptr+1}")
    A(f"s_mov_b32 s{dst+2}, {nbytes:#x}")
    A(f"s_mov_b32 s{dst+3}, 0x20000")

def slin(dst, const, *terms):
    first = True
    for reg, mul in terms:
        t = dst if first else ST + 14
        if mul == 1:
            if first: A(f"s_mov_b32 s{dst}, s{reg}")
            else: t = reg
        elif mul & (mul - 1) == 0: A(f"s_lshl_b32 s{t}, s{reg}, {mul.bit_length()-1}")
        else: A(f"s_mul_i32 s{t}, s{reg}, {mul}")
        if not first: A(f"s_add_u32 s{dst}, s{dst}, s{t}")
        first = False
    if const: A(f"s_add_u32 s{dst}, s{dst}, {const:#x}")

ROLE = ["A"]
def stamp(idx):
    if OPT.get("probe") == idx + (0 if ROLE[0] == "A" else 100):
        if OPT.get("cyc"):
            A("s_memtime s[96:97]")
            A("s_waitcnt lgkmcnt(0)")
            A("s_sub_u32 s99, s96, s98")
            A("s_lshr_b32 s99, s99, 4")
        else:
            A("s_memrealtime s[96:97]")
            A("s_waitcnt lgkmcnt(0)")
            A("s_sub_u32 s99, s96, s100")
    if not OPT["stamps"]: return
    A(f"s_memtime s[{S_STAMP}:{S_STAMP+1}]")
    A("s_waitcnt lgkmcnt(0)")
    A(f"s_sub_u32 s{S_STAMP}, s{S_STAMP}, s98")
    A(f"v_writelane_b32 v255, s{S_STAMP}, {idx}")
    if OPT.get("rt") and idx <= 16:
        A(f"s_memrealtime s[{S_STAMP}:{S_STAMP+1}]")
        A("s_waitcnt lgkmcnt(0)")
        A(f"s_sub_u32 s{S_STAMP}, s{S_STAMP}, s100")
        A(f"v_writelane_b32 v255, s{S_STAMP}, {idx+44}")

NB = [32, 36, 38, 42, 58, 56]
nbuse = []
def nbstamp(k):
    if OPT.get("nb") and OPT["stamps"]:
        A(f"s_memtime s[{NB[k]}:{NB[k]+1}]"); nbuse.append(k)
def nbflush():
    if OPT.get("nb") and OPT["stamps"]:
        A("s_waitcnt lgkmcnt(0)")
        for k in nbuse:
            A(f"s_sub_u32 s{NB[k]}, s{NB[k]}, s98")
            A(f"v_writelane_b32 v255, s{NB[k]}, {17+k}")
        nbuse.clear()

def lab(n):
    nlab[0] += 1
    return f"L_{n}_{nlab[0]}"

def finish():
    if OPT.get("probe") and (OPT["probe"] >= 100) == (ROLE[0] == "B"):
        if OPT["probe"] % 100 == 16:
            A("s_waitcnt vmcnt(0)")
            stamp(16)
        l = lab("pr")
        A("s_lshl_b32 s99, s99, 1")
        A("s_add_u32 s99, s99, 2500")
        A.label(l)
        A("s_memrealtime s[96:97]")
        A("s_waitcnt lgkmcnt(0)")
        A("s_sub_u32 s96, s96, s100")
        A("s_cmp_lt_u32 s96, s99")
        A(f"s_cbranch_scc1 {l}")
    if OPT.get("fixrt"):
        l = lab("rt")
        A.label(l)
        A("s_memrealtime s[96:97]")
        A("s_waitcnt lgkmcnt(0)")
        A("s_sub_u32 s96, s96, s100")
        A(f"s_cmp_lt_u32 s96, {OPT['fixrt']}")
        A(f"s_cbranch_scc1 {l}")
    if OPT["stamps"]:
        A("s_waitcnt vmcnt(0)")
        stamp(16)
        A("v_writelane_b32 v255, s99, 30")
        A("s_memrealtime s[96:97]")
        A("v_writelane_b32 v255, s100, 40")
        A("s_waitcnt lgkmcnt(0)")
        A("v_writelane_b32 v255, s96, 41")
        slin(ST, WS_STAMP, (2, 1024), (S_WAVE, 256))
        A(f"v_lshlrev_b32 v254, 2, v{V_LANE}")
        A(f"buffer_store_dword v255, v254, s[{SWS}:{SWS+3}], s{ST} offen")
    A("s_endpgm")

def mf(d, a, b, c):
    return f"v_mfma_f32_32x32x16_bf16 {d}, {a}, {b}, {c}"

def poll(loads, check):
    top, done = lab("poll"), lab("ok")
    A(f"s_mov_b32 s{S_CNT}, {SPIN_LIMIT}")
    A.label(top)
    loads()
    A("s_waitcnt vmcnt(0)")
    check()
    A(f"s_cmp_eq_u64 s[{S_FAIL}:{S_FAIL+1}], 0")
    A(f"s_cbranch_scc1 {done}")
    A(f"s_sub_u32 s{S_CNT}, s{S_CNT}, 1")
    A(f"s_cbranch_scc0 {top}")
    A.label(done)

def poll_pre(loads, check):
    top, done = lab("poll"), lab("ok")
    A(f"s_mov_b32 s{S_CNT}, {SPIN_LIMIT}")
    A.label(top)
    A("s_waitcnt vmcnt(0)")
    check()
    A(f"s_cmp_eq_u64 s[{S_FAIL}:{S_FAIL+1}], 0")
    A(f"s_cbranch_scc1 {done}")
    loads()
    A(f"s_sub_u32 s{S_CNT}, s{S_CNT}, 1")
    A(f"s_cbranch_scc0 {top}")
    A("s_waitcnt vmcnt(0)")
    A.label(done)

def cfma_l(d, a, b, c, t):
    return [f"v_pk_fma_f32 {vr(t,2)}, {vr(a,2)}, {vr(b,2)}, {vr(c,2)} op_sel:[1,1,0] op_sel_hi:[1,0,1] neg_lo:[1,0,0]",
            f"v_pk_fma_f32 {vr(d,2)}, {vr(a,2)}, {vr(b,2)}, {vr(t,2)} op_sel:[0,0,0] op_sel_hi:[0,1,1]"]
def cmul_l(d, a, b, t):
    return [f"v_pk_mul_f32 {vr(t,2)}, {vr(a,2)}, {vr(b,2)} op_sel:[1,1] op_sel_hi:[1,0] neg_lo:[1,0]",
            f"v_pk_fma_f32 {vr(d,2)}, {vr(a,2)}, {vr(b,2)}, {vr(t,2)} op_sel:[0,0,0] op_sel_hi:[0,1,1]"]
def emit(l):
    for x in l: A(x)
def cfma(*a): emit(cfma_l(*a))
def cmul(*a): emit(cmul_l(*a))

def weave(main, fillers, every, start=0):
    for i, x in enumerate(main):
        A(x)
        if i >= start and (i - start) % every == every - 1 and fillers:
            f = fillers.pop(0)
            if isinstance(f, str): A(f)
            elif f: f()

def gemm_loop(nsteps, reads, mfmas, boundary, split, fill_gaps, fillers, on_step=None, end_barrier=False, verify=None, start=0, extra=None, nextra=None):
    for r in reads(start): A(r)
    for n in range(start, nsteps):
        if on_step: on_step(n)
        last = n == nsteps - 1
        b = None if last else boundary(n + 1)
        b2 = boundary(n + 2) if (verify and n + 2 < nsteps) else None
        if b2 is not None: A.wait_both(b2, A.lg)
        elif b is not None and not verify: A.wait_both(b, A.lg)
        else: A("s_waitcnt lgkmcnt(0)")
        if b is not None and verify: verify(n + 1)[1]()
        rs = [] if last else list(reads(n + 1))
        ms = mfmas(n)
        for g in range(4):
            A(ms[g])
            if g == 0 and b2 is not None: verify(n + 2)[0]()
            if g == 0 and b is not None and verify: verify(n + 1)[2]()
            if g == 0 and (b is not None or (last and end_barrier)): A("s_barrier")
            for _ in range(split[g]):
                if rs: A(rs.pop(0))
            if g in (fill_gaps(n) if callable(fill_gaps) else fill_gaps) and fillers:
                f = fillers.pop(0)
                if isinstance(f, str): A(f)
                elif f: f()
            if extra:
                k = nextra(n, g)
                while extra and k > 0:
                    x = extra.pop(0); A(x); k -= 1
                    if x.startswith("s_cmp") and k == 0: k = 1
        assert not rs

def dma_pieces(voff, srdreg, soff, ldsoff, pre=None, post=None, flags="", m0reg=S_M0W, same_v=False):
    def mk(p):
        def f():
            if p == 0:
                A(f"s_add_u32 m0, s{m0reg}, {ldsoff:#x}")
                if pre: pre()
            A(f"buffer_load_dwordx4 v{voff if same_v else voff+p}, s[{srdreg}:{srdreg+3}], s{soff} offen offset:{p*1024} {flags}lds")
            if p == 3 and post: post()
        return f
    return [mk(p) for p in range(4)]

def run(fs):
    for f in fs:
        if isinstance(f, str): A(f)
        else: f()

def rot_soff(dst, add, shift=None, mul=None, extra_sreg=None, plus=None, rot=S_ROT):
    A(f"s_add_u32 s{dst}, s{rot}, {add}")
    if extra_sreg is not None: A(f"s_add_u32 s{dst}, s{dst}, s{extra_sreg}")
    A(f"s_and_b32 s{dst}, s{dst}, 7")
    if shift is not None: A(f"s_lshl_b32 s{dst}, s{dst}, {shift}")
    else: A(f"s_mul_i32 s{dst}, s{dst}, {mul}")
    if plus is not None: A(f"s_add_u32 s{dst}, s{dst}, s{plus}")

def prologue():
    if OPT["stamps"] or OPT.get("cyc"): A("s_memtime s[98:99]")
    if OPT.get("fixrt") or OPT.get("probe") or OPT["stamps"]: A("s_memrealtime s[100:101]")
    A("s_cmp_ge_u32 s2, 256")
    A("s_cbranch_scc1 L_end")
    A(f"s_load_dwordx16 s[{KA}:{KA+15}], s[0:1], 0")
    A(f"s_load_dwordx16 s[{KA+16}:{KA+31}], s[0:1], 64")
    A("v_and_b32 v1, 63, v0")
    A("v_lshrrev_b32 v2, 6, v0")
    A(f"s_lshr_b32 s{S_SLOT}, s2, 3")
    A(f"v_readfirstlane_b32 s{S_WAVE}, v2")
    A(f"s_and_b32 s{ST}, s2, 3")
    A(f"s_lshl_b32 s{S_CHUNK}, s{ST}, 2")
    A(f"s_lshr_b32 s{ST+1}, s{S_SLOT}, 3")
    A(f"s_add_u32 s{S_CHUNK}, s{S_CHUNK}, s{ST+1}")
    A(f"s_and_b32 s{S_CG}, s{S_SLOT}, 7")
    A(f"s_lshl_b32 s{S_ROT}, s{ST+1}, 1")
    A(f"s_add_u32 s{S_ROT}, s{S_ROT}, s{S_CG}")
    A(f"s_and_b32 s{S_ROT}, s{S_ROT}, 7")
    rm = OPT["rotmode"]
    if rm == 8: A(f"s_mov_b32 s{S_ROT1}, s{S_ROT}")
    elif rm == 1: A(f"s_mov_b32 s{S_ROT1}, 0")
    elif rm == 3:
        A(f"s_add_u32 s{S_ROT1}, s{S_CG}, s{ST+1}")
        A(f"s_and_b32 s{S_ROT1}, s{S_ROT1}, 3")
        A(f"s_mul_i32 s{S_ROT1}, s{S_ROT1}, 3")
    else:
        A(f"s_add_u32 s{S_ROT1}, s{S_CG}, s{ST+1}")
        A(f"s_and_b32 s{S_ROT1}, s{S_ROT1}, {rm-1}")
        A(f"s_lshl_b32 s{S_ROT1}, s{S_ROT1}, {2 if rm == 2 else 1}")
    A(f"s_lshr_b32 s{S_RH}, s{S_WAVE}, 1")
    A(f"s_and_b32 s{S_CH}, s{S_WAVE}, 1")
    A(f"s_lshl_b32 s{S_M0W}, s{S_WAVE}, 12")
    slin(ST + 2, 0, (S_SLOT, 512), (S_WAVE, 128))
    A("v_and_b32 v7, 1, v0")
    A(f"v_lshl_add_u32 v7, v7, 14, s{ST+2}")
    A("v_lshrrev_b32 v3, 3, v1")
    A("v_and_b32 v4, 7, v1")
    A(f"v_and_b32 v{V_N}, 31, v1")
    A(f"v_lshrrev_b32 v{V_G}, 5, v1")
    if OPT["stamps"]: A("v_mov_b32 v255, 0")
    A("s_bitcmp0_b32 s2, 2" if OPT.get("swap") else "s_bitcmp1_b32 s2, 2")
    if OPT.get("bfirst", 1):
        A("s_cbranch_scc0 L_roleA")
        CUT["P"] = len(A.out)
        A.label("L_roleA")
    else:
        A("s_cbranch_scc1 L_roleB")

def cut(role):
    A(f"s_branch L_main{role}")
    CUT[role] = len(A.out)
    A.label(f"L_main{role}")

def code_prefetch():
    A(f"s_getpc_b64 s[{ST+4}:{ST+5}]")
    A.label(f"L_pc{ROLE[0]}")
    A(f"s_add_u32 s{ST+4}, s{ST+4}, L_main{ROLE[0]}-L_pc{ROLE[0]}")
    A(f"s_addc_u32 s{ST+5}, s{ST+5}, 0")
    A(f"global_load_dword v254, v7, s[{ST+4}:{ST+5}]")

def common_setup(role):
    srd(SWS, K_WS, 0x10000000)
    srd(SOUT, K_OUT, 0x800000)
    A(f"s_lshl_b32 s{S_M0W2}, s{S_WAVE}, 13")
    A(f"s_mov_b32 s{S_MG}, 0")
    A(f"s_mov_b32 s{S_MG+1}, -1")
    A(f"s_sub_u32 s{S_MRH}, 0, s{S_RH}")
    A(f"s_mov_b32 s{S_MRH+1}, s{S_MRH}")
    A(f"s_mov_b32 s{S_L2E}, {LOG2E:#x}")
    A(f"s_mov_b32 s{S_L2E+1}, {LOG2E:#x}")
    A(f"s_mov_b32 s{S_M16}, 0xffff0000")
    A(f"s_mov_b32 s{S_M16+1}, 0xffff0000")
    A(f"s_add_u32 s{S_GRP}, s{S_CHUNK}, {0 if role == 'A' else 16}")
    slin(P_XCCB, WS_XCC, (S_GRP, 128))
    A(f"s_and_b32 s{S_MF}, s{S_CG}, 1")
    slin(P_OUT, 0 if role == "A" else 2048, (S_CHUNK, 1 << 19), (S_RH, 1 << 18), (S_CG, 256), (S_CH, 128), (S_MF, 1 << 17))
    A(f"s_xor_b32 s{P_OUT2}, s{P_OUT}, {1 << 17:#x}")
    slin(P_TAGSEL, 0, (S_CHUNK, 256), (S_CG, 16), (S_WAVE, 1))
    A(f"s_and_b32 s{ST}, s{S_CHUNK}, 3")
    A(f"s_lshl_b32 s{ST}, s{ST}, 1")
    A(f"s_mov_b32 s{KAP[0]}, s{S_CG}")
    for j in range(1, 8):
        A(f"s_add_u32 s{ST+1}, s{ST}, {j-1}")
        A(f"s_cmp_ge_u32 s{ST+1}, 7")
        A(f"s_addc_u32 s{ST+1}, s{ST+1}, 1")
        A(f"s_add_u32 s{ST+1}, s{ST+1}, s{S_CG}")
        A(f"s_and_b32 s{KAP[j]}, s{ST+1}, 7")
    if OPT.get("tlb", 0):
        A(f"v_and_b32 v9, 15, v{V_LANE}")
        A("v_lshlrev_b32 v9, 20, v9")
        A(f"buffer_load_dword v254, v9, s[{SWS}:{SWS+3}], 0 offen offset:2048")
        A(f"buffer_load_dword v254, v9, s[{SOUT}:{SOUT+3}], 0 offen")
        A(f"buffer_load_dword v254, v9, s[{SW2}:{SW2+3}], 0 offen")
    A(f"v_lshlrev_b32 v{V_LIN}, 4, v{V_LANE}")
    A(f"v_mov_b32 v{V_L0}, {OOB:#x}")
    A(f"v_cmp_eq_u32 vcc, 0, v{V_LANE}")
    if not HAND:
        A(f"v_lshlrev_b32 v{V_CHK}, 2, v{V_N}")
        slin(P_FLAGB, WS_FLAG, (S_GRP, 128))
        slin(P_FLW, 0, (S_CG, 16), (S_WAVE, 4), (P_FLAGB, 1))
        A(f"s_getreg_b32 s{S_XW}, hwreg(HW_REG_XCC_ID, 0, 4)")
    A(f"v_lshlrev_b32 v{V_XPO}, 2, v4")
    A(f"v_cndmask_b32_e64 v{V_L0}, v{V_L0}, 0, vcc")
    A(f"v_lshlrev_b32 v{V_OUTO}, 14, v{V_G}")
    A(f"v_lshl_add_u32 v{V_OUTO}, v{V_N}, 2, v{V_OUTO}")
    slin(P_FLAGO, 0, (S_CG, 4), (P_XCCB, 1))
    A("s_waitcnt lgkmcnt(0)")
    A(f"s_add_u32 s{S_TAG}, s{S_TAG}, 1")
    if OPT["stamps"]: A("s_mov_b32 s99, 0")
    if not HAND:
        A(f"s_lshl_b32 s{ST}, s{S_TAG}, 4")
        A(f"s_or_b32 s{S_XW}, s{S_XW}, s{ST}")
        A(f"v_mov_b32 v9, s{S_XW}")
        A(f"buffer_store_dword v9, v{V_L0}, s[{SWS}:{SWS+3}], s{P_FLAGO} offen sc1")

def lds_b128_addrs(base_reg, wave_off_sreg, const, nsets):
    A(f"v_bfe_u32 v9, v{V_N}, 1, 3")
    A(f"v_xor_b32 v9, v9, v{V_G}")
    A("v_lshlrev_b32 v9, 4, v9")
    A(f"v_lshl_add_u32 v9, v{V_N}, 7, v9")
    A(f"v_add_u32 v9, s{wave_off_sreg}, v9")
    if const: A(f"v_add_u32 v9, {const:#x}, v9")
    for ks in range(4):
        A(f"v_xor_b32 v{base_reg+ks}, {32*ks}, v9")
    for st in range(1, nsets):
        for ks in range(4): A(f"v_add_u32 v{base_reg+4*st+ks}, {st*0x10000:#x}, v{base_reg+ks}")

def rdy_load(reg, dummy=9):
    if not HAND: A(f"buffer_load_dword v{dummy}, v{V_CHK}, s[{SWS}:{SWS+3}], s{P_FLAGB} offen sc1")
    A(f"buffer_load_dword v{reg}, v{V_XPO}, s[{SWS}:{SWS+3}], s{P_XCCB} offen sc1")
def rdy_check(dst, reg):
    if HAND: A(f"v_xor_b32 v{dst}, s{S_TAG}, v{reg}")
    else:
        A(f"v_xor_b32 v{reg}, s{S_XW}, v{reg}")
        A(f"v_lshrrev_b32 v{dst}, 4, v{reg}")
def rdy_store():
    if HAND: A(f"buffer_store_dword v11, v{V_L0}, s[{SWS}:{SWS+3}], s{P_FLAGO} offen sc1")
def xcc_decide(reg):
    if HAND: return
    A(f"v_cmp_ne_u32 vcc, 0, v{reg}")
    A("s_cmp_lg_u64 vcc, 0")
    A(f"s_cselect_b32 s{S_SLOW}, 1, 0")
def flag_store():
    slow, join = lab("slow"), lab("join")
    A(f"s_cmp_lg_u32 s{S_SLOW}, 0")
    A(f"s_cbranch_scc1 {slow}")
    A(f"buffer_store_dword v11, v{V_L0}, s[{SWS}:{SWS+3}], s{P_FLW} offen")
    A.label(join)
    def later():
        A.label(slow)
        A(f"buffer_store_dword v11, v{V_L0}, s[{SWS}:{SWS+3}], s{P_FLW} offen sc1")
        A(f"s_branch {join}")
    DEFER.append(later)
def flag_poll():
    poll(lambda: A(f"buffer_load_dword v13, v{V_CHK}, s[{SWS}:{SWS+3}], s{P_FLAGB} offen sc1"),
         lambda: A(f"v_cmp_ne_u32 s[{S_FAIL}:{S_FAIL+1}], s{S_TAG}, v13"))

DEFER = []
def make_verify(pieces, slot, second):
    retry, back = lab("retry"), lab("back")
    def reads():
        A(f"v_add_u32 v9, {slot*SLOT:#x}, v{V_CHK}")
        A("ds_read_b32 v13, v9")
        A(f"ds_read_b32 v14, v9 offset:{second}")
    def cmp():
        A("v_max_u32 v13, v13, v14")
        A("v_cmp_eq_u32 vcc, -1, v13")
    def branch():
        A("s_cmp_lg_u64 vcc, 0")
        A(f"s_cbranch_scc1 {retry}")
        A.label(back)
    def later():
        top, done = lab("rl"), lab("rd")
        A.label(retry)
        A.hist = []
        A(f"s_mov_b32 s{S_SM0}, m0")
        A(f"s_mov_b32 s{S_CNT}, {SPIN_LIMIT}")
        A.label(top)
        run(pieces(S_RS))
        A("s_waitcnt vmcnt(0)")
        A("ds_read_b32 v13, v9")
        A(f"ds_read_b32 v14, v9 offset:{second}")
        A("s_waitcnt lgkmcnt(0)")
        cmp()
        A("s_cmp_eq_u64 vcc, 0")
        A(f"s_cbranch_scc1 {done}")
        A(f"s_sub_u32 s{S_CNT}, s{S_CNT}, 1")
        A(f"s_cbranch_scc0 {top}")
        A.label(done)
        if OPT["stamps"]:
            A(f"s_sub_u32 s{S_CNT}, {SPIN_LIMIT + 1}, s{S_CNT}")
            A(f"s_add_u32 s99, s99, s{S_CNT}")
        A(f"s_mov_b32 m0, s{S_SM0}")
        A(f"s_branch {back}")
    DEFER.append(later)
    return reads, cmp, branch

def tag_update(role):
    skip = lab("notag")
    A(f"s_cmp_eq_u32 s{P_TAGSEL}, {(15 if role == 'A' else 0) << 8}")
    A(f"s_cbranch_scc0 {skip}")
    A(f"buffer_store_dword v11, v{V_L0}, s[{SWS}:{SWS+3}], 0 offen offset:{WS_TAGA if role == 'A' else WS_TAGB} sc1")
    A.label(skip)

def out_stores(acc, ph):
    def mk(r):
        def f():
            row = 8 * (r >> 2) + (r & 3)
            A(f"s_add_u32 s{ST+1}, s{P_OUT+ph}, {row*4096}")
            A(f"buffer_store_dword v{acc+16*ph+r}, v{V_OUTO}, s[{SOUT}:{SOUT+3}], s{ST+1} offen {OUTF}")
        return f
    return [mk(r) for r in range(16)]

SCHED = {
    0: ({0: [2, 3], 1: [4], 2: [5], 3: [6], 4: [7]}, 5, {0: "all"}),
    1: ({i: [i + 2] for i in range(6)}, 6, {i: "front" for i in range(6)}),
    2: ({0: [2], 1: [3], 2: [4], 3: [5, 6], 4: [7]}, 5, {3: "all"}),
    3: ({0: [2], 1: [3], 2: [4, 5], 3: [6], 4: [7]}, 5, {2: "all"}),
    4: ({0: [2], 1: [3], 2: [4], 3: [5], 4: [6], 5: [7]}, 6, {2: "front", 3: "front", 4: "front", 5: "front"}),
    5: ({0: [2], 1: [3, 4], 2: [5], 3: [6], 4: [7]}, 5, {1: "all"}),
    6: ({i: [i + 3] for i in range(5)}, 5, {}),
    7: ({i: [i + 3] for i in range(5)}, 5, {0: "front", 1: "front"}),
}[OPT.get("sched", 0)]
EARLY = OPT.get("sched", 0) >= 6
NPRE = OPT.get("npre", 4)
NX = OPT.get("nx", 5)
XST = SCHED[1]
def g1_gaps(n, busy):
    i = n >> 2
    if SCHED[2].get(i) in ("all", "front") or i in busy: return (0, 1, 2, 3)
    return (2, 3)
OUTF = {0: "sc1", 1: "sc1 nt", 2: "sc0 sc1", 3: "nt", 4: "", 5: "sc0 sc1 nt"}[OPT.get("outf", 0)]
XF = "nt " if OPT["xnt"] else ""
PLF = {0: "sc1 ", 1: "", 2: "sc0 ", 3: "nt "}[OPT.get("plf", 0)]

def role_A():
    V_AX, V_AW = 24, 32
    V_GO, V_SCW = 44, 3
    V_XF, V_WF = 48, 64
    URE, UIM = 80, 112
    ACC2 = 144
    HP = 176
    XS, DG, V_GE = 176, 192, 200
    V_PUB, V_XSO, V_HSO = 45, 46, 223
    P_MSK = P0 + 4
    C_LAM, C_M1, C_M2, C_L, C_MQ, C_LQ, C_C2 = 208, 210, 212, 214, 216, 218, 220
    C_DSK = 222
    T0 = 224
    P_SAB, P_SAO, P_XS0, P_XS1 = P0, P0 + 1, P0 + 2, P0 + 3
    code_prefetch()
    A("v_lshrrev_b32 v9, 1, v3")
    A("v_xor_b32 v9, v9, v4")
    A("v_lshlrev_b32 v9, 4, v9")
    A("v_lshrrev_b32 v10, 2, v3")
    A("v_lshlrev_b32 v10, 5, v10")
    A("v_and_b32 v11, 1, v3")
    A("v_lshl_add_u32 v10, v11, 4, v10")
    A("v_bfe_u32 v11, v3, 1, 1")
    A("v_add_u32 v10, v10, v11")
    A("v_lshl_add_u32 v10, v10, 10, v9")
    slin(ST, 0, (S_CHUNK, 1 << 17), (S_RH, 1 << 16), (S_CH, 1 << 13))
    A(f"v_add_u32 v{V_OX}, s{ST}, v10")
    A(f"v_xor_b32 v11, 64, v{V_OX}")
    A(f"v_add_u32 v{V_OX+1}, 1024, v11")
    A(f"v_add_u32 v{V_OX+2}, 2048, v{V_OX}")
    A(f"v_add_u32 v{V_OX+3}, 3072, v11")
    A("v_lshl_add_u32 v10, v3, 10, v9")
    slin(ST, 0, (S_CG, 1 << 16), (S_CH, 1 << 15))
    A(f"v_add_u32 v{V_OW}, s{ST}, v10")
    A(f"v_xor_b32 v11, 64, v{V_OW}")
    A(f"v_add_u32 v{V_OW+1}, 7168, v11")
    A(f"v_add_u32 v{V_OW+2}, {2*7168}, v{V_OW}")
    A(f"v_add_u32 v{V_OW+3}, {3*7168}, v11")
    slin(ST, 0, (S_CG, 128), (S_CH, 64))
    A(f"v_lshl_add_u32 v14, v{V_N}, 1, s{ST}")
    A(f"s_cmp_eq_u32 s{S_RH}, 0")
    A("s_waitcnt lgkmcnt(0)")
    A(f"s_cselect_b32 s{SW}, s{K_BRE}, s{K_BIM}")
    A(f"s_cselect_b32 s{SW+1}, s{K_BRE+1}, s{K_BIM+1}")
    A(f"s_cselect_b32 s{SW2}, s{K_CRE}, s{K_CIM}")
    A(f"s_cselect_b32 s{SW2+1}, s{K_CRE+1}, s{K_CIM+1}")
    A(f"s_mov_b32 s{SW+2}, 0x80000")
    A(f"s_mov_b32 s{SW+3}, 0x20000")
    stamp(1)
    A(f"s_load_dword s{S_TAG}, s[{K_WS}:{K_WS+1}], {WS_TAGA}")
    srd(SX, K_AX, 0x200000)
    tok = {}
    def g1_pieces(i):
        slot = i & 3
        return (dma_pieces(V_OW, SW, ST + 8, slot * SLOT, pre=lambda: rot_soff(ST + 8, i, shift=7, rot=S_ROT1)) +
                dma_pieces(V_OX, SX, ST + 8, slot * SLOT + 16384, post=lambda: tok.__setitem__(i, A.vm), flags=XF))
    CLDS = {1: 4 * SLOT, 2: 4 * SLOT + 16384, 0: 0, 3: 16384, 4: SLOT, 5: SLOT + 16384, 6: 2 * SLOT, 7: 2 * SLOT + 16384}
    CORD = [1, 2, 0, 3, 4, 5, 6, 7]
    def c_pieces(st):
        return dma_pieces(V_OW, SW2, ST + 9, CLDS[st], pre=lambda: A(f"s_lshl_b32 s{ST+9}, s{KAP[st]}, 7"))
    A(f"global_load_ushort v{T0}, v14, s[{K_LRE}:{K_LRE+1}]")
    A(f"global_load_ushort v{T0+1}, v14, s[{K_LIM}:{K_LIM+1}]")
    A(f"global_load_ushort v{T0+2}, v14, s[{K_LDT}:{K_LDT+1}]")
    A(f"global_load_ushort v{C_DSK}, v14, s[{K_DSK}:{K_DSK+1}]")
    tok_small = A.vm
    run(g1_pieces(0))
    A(f"s_mov_b32 s{SW2+2}, 0x80000")
    A(f"s_mov_b32 s{SW2+3}, 0x20000")
    late = g1_pieces(1)
    if EARLY:
        run(late[:NPRE]); late = late[NPRE:] + g1_pieces(2)
    else:
        run(late); late = []
    if OPT.get("wtouch", 0):
        slin(ST, 0, (S_CG, 1 << 16), (S_CHUNK, 4096), (S_CH, 2048))
        A(f"v_and_b32 v9, 15, v{V_LANE}")
        A("v_lshlrev_b32 v9, 7, v9")
        A(f"buffer_load_dword v254, v9, s[{SW2}:{SW2+3}], s{ST} offen")
    stamp(2)
    cut("A")
    A(f"s_lshl_b32 s{ST}, s{S_RH}, 13")
    lds_b128_addrs(V_AX, ST, 16384, 2)
    A(f"s_lshl_b32 s{ST}, s{S_CH}, 12")
    lds_b128_addrs(V_AW, ST, 0, 3)
    if OPT.get("lateset", 0): A.cap = []
    common_setup("A")
    slin(P_SAB, WS_SA, (S_CG, 8192))
    A(f"s_sub_u32 s{ST}, 15, s{S_CHUNK}")
    slin(P_SAO, 0, (ST, 512), (S_CH, 256), (P_SAB, 1))
    A(f"s_mov_b32 s{P_MSK}, 0xffffff00")
    slin(P_XS0, 0, (S_CHUNK, 1 << 17), (S_RH, 1 << 16), (S_CG, 128), (S_CH, 64), (S_MF, 32768))
    A(f"s_xor_b32 s{P_XS1}, s{P_XS0}, 32768")
    slin(P_ACTW, WS_H, (S_CHUNK, 1 << 18), (S_CG, 1 << 15), (S_WAVE, 4096))
    slin(P_ACTR, WS_H, (S_CHUNK, 1 << 18), (S_WAVE, 4096), (S_MF, 16384))
    A(f"s_xor_b32 s{P_ACTR2}, s{P_ACTR}, 16384")
    A(f"v_lshlrev_b32 v9, 14, v{V_G}")
    A(f"v_lshl_add_u32 v{V_HSO}, v{V_N}, 4, v9")
    clears = [f"buffer_store_dwordx4 {vr(T0+24,4)}, v{V_HSO}, s[{SWS}:{SWS+3}], s{P_ACTW} offen offset:{k*512} sc1" for k in range(8)]
    A(f"s_and_b32 s{ST}, s{S_TAG}, 0xff")
    A(f"v_mov_b32 v{V_TAG}, s{ST}")
    A(f"v_mov_b32 v11, s{S_TAG}")
    A(f"v_lshlrev_b32 v{V_XSO}, 10, v{V_N}")
    A(f"v_lshl_add_u32 v{V_XSO}, v{V_G}, 5, v{V_XSO}")
    SCR = 3 * SLOT
    slin(ST, SCR, (S_CH, 256))
    A(f"v_lshl_add_u32 v4, v{V_N}, 3, s{ST}")
    A(f"s_lshl_b32 s{ST}, s{S_RH}, 10")
    A(f"v_lshl_add_u32 v3, v{V_G}, 9, v4")
    A(f"v_add_u32 v3, s{ST}, v3")
    A(f"v_lshlrev_b32 v13, 3, v{V_N}")
    A(f"v_mov_b32 v14, {OOB:#x}")
    A(f"s_or_b64 s[{ST+2}:{ST+3}], s[{S_MG}:{S_MG+1}], s[{S_MRH}:{S_MRH+1}]")
    A(f"v_cndmask_b32_e64 v{V_PUB}, v13, v14, s[{ST+2}:{ST+3}]")
    if OPT.get("prew", 1):
        for k in range(2): A(f"v_subrev_u32 v{T0+20+k}, 1, v{V_TAG}")
        A(f"buffer_store_dwordx2 {vr(T0+20,2)}, v{V_PUB}, s[{SWS}:{SWS+3}], s{P_SAO} offen sc1")
    A(f"s_sub_u32 s{ST+4}, 16, s{S_CHUNK}")
    A(f"v_lshlrev_b32 v9, 3, v{V_G}")
    A(f"v_add_u32 v9, s{ST+4}, v9")
    A(f"s_lshl_b32 s{ST+4}, s{S_CH}, 8")
    A(f"v_add_u32 v13, s{ST+4}, v13")
    A(f"v_lshl_add_u32 v{V_GO}, v9, 9, v13")
    for i in range(8):
        A(f"v_cmp_gt_u32 vcc, {16-i}, v9")
        A(f"v_cndmask_b32_e64 v{V_GE+i}, 0, v{V_TAG}, vcc")
    A.wait_vm(tok_small)
    lre, lim, ldt = T0, T0 + 1, T0 + 2
    A(f"v_and_b32 v9, 1, v{V_N}")
    A("v_lshlrev_b32 v9, 4, v9")
    A(f"v_lshlrev_b32 v{C_DSK}, v9, v{C_DSK}")
    A(f"v_lshrrev_b32 v9, 1, v{V_N}")
    A(f"v_lshlrev_b32 v13, 3, v{V_G}")
    A("v_sub_u32 v9, v9, v13")
    for q in range(8):
        A(f"v_cmp_eq_u32 vcc, {q}, v9")
        A(f"v_cndmask_b32_e64 v{DG+q}, 0, v{C_DSK}, vcc")
    for r in (lre, lim, ldt): A(f"v_lshlrev_b32 v{r}, 16, v{r}")
    A(f"v_mul_f32 v{ldt}, s{S_L2E}, v{ldt}")
    A(f"v_exp_f32 v{ldt}, v{ldt}")
    A(f"v_cvt_pk_bf16_f32 v{ldt}, v{ldt}, v{ldt}")
    A(f"v_lshlrev_b32 v{ldt}, 16, v{ldt}")
    A(f"v_mul_f32 v{T0+4}, v{ldt}, v{lre}")
    A(f"v_mul_f32 v{T0+5}, v{ldt}, v{lim}")
    A(f"v_mul_f32 v{T0+4}, s{S_L2E}, v{T0+4}")
    A(f"v_exp_f32 v{T0+4}, v{T0+4}")
    A(f"v_mul_f32 v{T0+5}, {INV2PI:#x}, v{T0+5}")
    A(f"v_rndne_f32 v{T0+6}, v{T0+5}")
    A(f"v_sub_f32 v{T0+5}, v{T0+5}, v{T0+6}")
    A(f"v_cos_f32 v{T0+6}, v{T0+5}")
    A(f"v_sin_f32 v{T0+7}, v{T0+5}")
    A(f"v_mul_f32 v{C_LAM}, v{T0+4}, v{T0+6}")
    A(f"v_mul_f32 v{C_LAM+1}, v{T0+4}, v{T0+7}")
    A(f"v_add_f32 v{T0+4}, -1.0, v{C_LAM}")
    A(f"v_mul_f32 v{T0+5}, v{lre}, v{lre}")
    A(f"v_fmac_f32 v{T0+5}, v{lim}, v{lim}")
    A(f"v_rcp_f32 v{T0+5}, v{T0+5}")
    A(f"v_mul_f32 v{T0+6}, v{T0+4}, v{lre}")
    A(f"v_fmac_f32 v{T0+6}, v{C_LAM+1}, v{lim}")
    A(f"v_mul_f32 v{T0+7}, v{C_LAM+1}, v{lre}")
    A(f"v_fma_f32 v{T0+7}, -v{T0+4}, v{lim}, v{T0+7}")
    A(f"v_add_f32 v{T0+5}, v{T0+5}, v{T0+5}")
    A(f"v_mul_f32 v{C_C2}, v{T0+6}, v{T0+5}")
    A(f"v_mul_f32 v{C_C2+1}, v{T0+7}, v{T0+5}")
    pa, pb, tt = T0 + 8, T0 + 10, T0 + 12
    cmul(pa, C_LAM, C_LAM, tt)
    cmul(pb, pa, pa, tt)
    cmul(pa, pb, pb, tt)
    cmul(C_M1, pa, pa, tt)
    cmul(C_M2, C_M1, C_M1, tt)
    cmul(pa, C_M2, C_M2, tt)
    cmul(C_L, pa, pa, tt)
    def sel_pair(dst, src, mask):
        A(f"v_cndmask_b32_e64 v{dst}, 1.0, v{src}, s[{mask}:{mask+1}]")
        A(f"v_cndmask_b32_e64 v{dst+1}, 0, v{src+1}, s[{mask}:{mask+1}]")
    sel_pair(T0 + 14, C_M2, S_MG)
    sel_pair(T0 + 16, pa, S_MRH)
    cmul(C_MQ, T0 + 14, T0 + 16, tt)
    cmul(pa, C_L, C_L, tt)
    cmul(pb, pa, pa, tt)
    cmul(pa, pb, pb, tt)
    sel_pair(C_LQ, pa, S_MG)
    SET, A.cap = (A.cap or []), None
    stamp(3)
    run(late)
    def rd(n):
        i, ks = n >> 2, n & 3
        slot, buf = i & 3, n & 1
        s2_, off = slot >> 1, (slot & 1) * SLOT
        x = [f"ds_read_b128 {vr(V_XF+buf*8+m*4,4)}, v{V_AX+4*s2_+ks} offset:{off+m*4096}" for m in range(2)]
        w = [f"ds_read_b128 {vr(V_WF+buf*8+ri*4,4)}, v{V_AW+4*s2_+ks} offset:{off+ri*8192}" for ri in range(2)]
        return [x[0], w[0], w[1], x[1]]
    def mm(n):
        buf = n & 1
        r = []
        for m, ri in ((0, 0), (0, 1), (1, 1), (1, 0)):
            d = vr((URE, UIM)[ri] + 16 * m, 16)
            r.append(mf(d, vr(V_XF + buf * 8 + m * 4, 4), vr(V_WF + buf * 8 + ri * 4, 4), d if n else "0"))
        return r
    fill = []
    def xs_load(m, s):
        return lambda: A(f"buffer_load_dwordx4 {vr(XS+8*m+4*s,4)}, v{V_XSO}, s[{SX}:{SX+3}], s{P_XS0+m} offen offset:{16*s}")
    def on_step(n):
        i, ks = n >> 2, n & 3
        if ks == 0 and OPT.get("g1st") and i: stamp(16 + i)
        if ks == 0:
            for st in SCHED[0].get(i, []): fill.extend(g1_pieces(st))
            if i == XST:
                fill.extend(c_pieces(1) + c_pieces(2))
            elif i == XST + 1:
                fill.extend([xs_load(m, s) for m in range(2) for s in range(2)])
                if OPT.get("ptouch", 0):
                    fill.extend([f"buffer_load_dword v254, v{V_GO+k}, s[{SWS}:{SWS+3}], s{P_SAB} offen sc1" for k in range(4)])
                    fill.append(lambda: rdy_load(254, 254))
    A.wait_vm(tok[0])
    A("s_barrier")
    stamp(4)
    gemm_loop(32, rd, mm, lambda n: tok[n >> 2] if (n & 3) == 0 else None, (2, 2, 0, 0), lambda n: g1_gaps(n, ()), fill, on_step, end_barrier=True, extra=SET, nextra=lambda n, g: NX)
    assert not SET
    assert not fill
    stamp(5)
    P = [T0, T0 + 4]
    def lam_bc(hi): return f"op_sel:[{hi},0,0] op_sel_hi:[{hi},1,1]"
    NEG = "neg_lo:[1,0,0] neg_hi:[1,0,0]"
    cur_re, cur_im = URE, UIM
    for s in range(1, 16):
        d = P[s & 1]
        A(f"v_pk_fma_f32 {vr(d,2)}, {vr(C_LAM,2)}, {vr(cur_im,2)}, {vr(URE+2*s,2)} {lam_bc(1)} {NEG}")
        A(f"v_pk_fma_f32 {vr(d+2,2)}, {vr(C_LAM,2)}, {vr(cur_re,2)}, {vr(UIM+2*s,2)} {lam_bc(1)}")
        A(f"v_pk_fma_f32 {vr(d,2)}, {vr(C_LAM,2)}, {vr(cur_re,2)}, {vr(d,2)} {lam_bc(0)}")
        A(f"v_pk_fma_f32 {vr(d+2,2)}, {vr(C_LAM,2)}, {vr(cur_im,2)}, {vr(d+2,2)} {lam_bc(0)}")
        cur_re, cur_im = d, d + 2
    A0, BQ = T0 + 8, T0 + 10
    A(f"v_fma_f32 v{BQ}, v{C_M1}, v{cur_re}, v{cur_re+1}")
    A(f"v_fma_f32 v{BQ+1}, v{C_M1}, v{cur_im}, v{cur_im+1}")
    A(f"v_fma_f32 v{BQ}, -v{C_M1+1}, v{cur_im}, v{BQ}")
    A(f"v_fma_f32 v{BQ+1}, v{C_M1+1}, v{cur_re}, v{BQ+1}")
    A(f"ds_write_b64 v3, {vr(BQ,2)}")
    A(f"v_mov_b32 v{A0}, v{cur_re}")
    A(f"v_mov_b32 v{A0+1}, v{cur_im}")
    P2, P3, SS, tt = T0 + 20, T0 + 22, T0 + 24, T0 + 28
    def c2_bc(hi, n=3):
        return f"op_sel:[{hi},0,0] op_sel_hi:[{hi},1,1]" if n == 3 else f"op_sel:[{hi},0] op_sel_hi:[{hi},1]"
    cm = []
    for s in range(16):
        re, im, t = URE + 2 * s, UIM + 2 * s, T0 + 2 + 2 * (s & 1)
        cm += [f"v_pk_mul_f32 {vr(t,2)}, {vr(C_C2,2)}, {vr(re,2)} {c2_bc(1,2)} neg_lo:[1,0] neg_hi:[1,0]",
               f"v_pk_mul_f32 {vr(re,2)}, {vr(C_C2,2)}, {vr(re,2)} {c2_bc(0,2)}",
               f"v_pk_fma_f32 {vr(re,2)}, {vr(C_C2,2)}, {vr(im,2)}, {vr(re,2)} {c2_bc(1)} {NEG}",
               f"v_pk_fma_f32 {vr(im,2)}, {vr(C_C2,2)}, {vr(im,2)}, {vr(t,2)} {c2_bc(0)} {NEG}"]
    emit(cm[:8])
    if HAND: A.wait_both(tok["clr"], A.lg)
    else: A("s_waitcnt lgkmcnt(0)")
    A("s_barrier")
    B0 = T0 + 12
    for q in range(4):
        A(f"ds_read_b64 {vr(B0+2*q,2)}, v4 offset:{q*512}")
    emit(cm[8:24])
    A("s_waitcnt lgkmcnt(0)")
    cfma(P2, C_M2, B0, B0 + 2, tt)
    cfma(P3, C_M2, P2, B0 + 4, tt)
    cfma(tt, C_M2, P3, B0 + 6, tt)
    A(f"v_and_or_b32 v{SS}, v{tt}, s{P_MSK}, v{V_TAG}")
    A(f"v_and_or_b32 v{SS+1}, v{tt+1}, s{P_MSK}, v{V_TAG}")
    A(f"buffer_store_dwordx2 {vr(SS,2)}, v{V_PUB}, s[{SWS}:{SWS+3}], s{P_SAO} offen sc1")
    rdy_store()
    stamp(6)
    emit(cm[24:])
    LOC = T0 + 0
    for e in range(2):
        A(f"v_cndmask_b32_e64 v{T0+2+e}, 0, v{B0+e}, s[{S_MG}:{S_MG+1}]")
        A(f"v_cndmask_b32_e64 v{T0+4+e}, v{P2+e}, v{P3+e}, s[{S_MG}:{S_MG+1}]")
        A(f"v_cndmask_b32_e64 v{LOC+e}, v{T0+2+e}, v{T0+4+e}, s[{S_MRH}:{S_MRH+1}]")
    E0, F0, E1, F1 = T0 + 12, T0 + 14, T0 + 16, T0 + 18
    cfma(P2, C_M1, LOC, A0, tt)
    cmul(F1, C_C2, P2, tt)
    cmul(F0, C_C2, LOC, tt)
    cmul(E0, C_C2, C_MQ, tt)
    cmul(E1, E0, C_M1, tt)
    V_AH = V_AX
    A(f"v_bfe_u32 v9, v{V_LANE}, 4, 1")
    A(f"v_bfe_u32 v13, v{V_LANE}, 1, 1")
    A("v_lshl_add_u32 v9, v9, 1, v13")
    A(f"v_bfe_u32 v13, v{V_LANE}, 2, 2")
    A(f"v_lshl_add_u32 v13, v{V_G}, 3, v13")
    A("v_lshlrev_b32 v14, 2, v9")
    A("v_xor_b32 v13, v13, v14")
    A("v_lshlrev_b32 v13, 4, v13")
    A("v_lshl_add_u32 v13, v9, 9, v13")
    A(f"v_and_b32 v14, 1, v{V_LANE}")
    A("v_lshl_add_u32 v13, v14, 3, v13")
    A(f"s_lshl_b32 s{ST+2}, s{S_RH}, 13")
    A(f"v_add_u32 v{V_AH}, s{ST+2}, v13")
    A(f"v_xor_b32 v{V_AH+1}, 64, v{V_AH}")
    V_AO = T0 + 4
    A("v_lshl_add_u32 v13, v9, 9, v13")
    slin(ST + 2, 3 * SLOT, (S_RH, 16384), (S_MF, 512))
    A(f"v_add_u32 v{V_AO}, s{ST+2}, v13")
    A(f"v_xor_b32 v{V_AO+1}, 64, v{V_AO}")
    A(f"v_xor_b32 v{V_AO+2}, 0x200, v{V_AO}")
    A(f"v_xor_b32 v{V_AO+3}, 0x240, v{V_AO}")
    for st in (1, 2):
        A(f"v_add_u32 v{V_AH+2*st}, {st*0x10000:#x}, v{V_AH}")
        A(f"v_add_u32 v{V_AH+2*st+1}, {st*0x10000:#x}, v{V_AH+1}")
    V_SO = T0 + 24
    for o in range(1, 4):
        A(f"v_xor_b32 v{V_SO+o}, {o*64}, v{V_HSO}")
    CPRE = 8
    A(f"s_add_u32 s{SW}, s{SWS}, s{P_SAB}")
    A(f"s_addc_u32 s{SW+1}, s{SWS+1}, 0")
    A(f"s_mov_b32 s{SW+2}, 8192")
    GD = 48
    def loads():
        for i in range(8):
            A(f"buffer_load_dwordx2 {vr(GD+2*i,2)}, v{V_GO}, s[{SW}:{SW+3}], 0 offen offset:{i*512} sc1")
        rdy_load(14)
    def check():
        A(f"v_xor_b32 v13, v{GD}, v{V_GE}")
        for i in range(1, 8):
            A(f"v_bitop3_b32 v13, v{GD+2*i}, v{V_GE+i}, v13 bitop3:0xbe")
        rdy_check(9, 14)
        A("v_and_b32 v13, 0xff, v13")
        A("v_or_b32 v13, v13, v9")
        A(f"v_cmp_ne_u32 s[{S_FAIL}:{S_FAIL+1}], 0, v13")
    CM = 2 + OPT.get("cmid", 3)
    for st in CORD[2:CM]: run(c_pieces(st))
    loads()
    tok_p = A.vm
    for st in CORD[CM:]: run(c_pieces(st))
    tok_c = A.vm
    stamp(7)
    ok = lab("ok1")
    A.wait_vm(tok_p)
    for m in range(2):
        d = vr(ACC2 + 16 * m, 16)
        A(mf(d, vr(XS + 8 * m, 4), vr(DG, 4), "0"))
    check()
    A(f"s_cmp_eq_u64 s[{S_FAIL}:{S_FAIL+1}], 0")
    A(f"s_cbranch_scc1 {ok}")
    vm_keep = A.vm
    poll(loads, check)
    A.vm = vm_keep
    A.label(ok)
    stamp(8)
    h1, h2 = T0 + 20, T0 + 22
    cur = GD + 14
    for i in range(6, -1, -1):
        d = (h1, h2)[i & 1]
        cfma(d, C_L, cur, GD + 2 * i, tt)
        cur = d
    CQ = GD
    cmul(CQ, C_LQ, cur, tt)
    for e in range(2): A(f"v_mov_b32 v{CQ+2+e}, v{CQ+e}")
    for e in range(2): A(f"v_permlane32_swap_b32 v{CQ+e}, v{CQ+2+e}")
    A(f"v_pk_add_f32 {vr(CQ,2)}, {vr(CQ,2)}, {vr(CQ+2,2)}")
    def c_reads(st):
        s2_, off = CLDS[st] >> 16, CLDS[st] & 0xffff
        r = [None] * 8
        for ks in range(4):
            for ri in range(2):
                kap = (ks >> 1) * 4 + ri * 2 + (ks & 1)
                r[kap] = f"ds_read_b128 {ar((st*8+kap)*4,4)}, v{V_AW+4*s2_+ks} offset:{off+ri*8192}"
        return r
    for m in range(2):
        d = vr(ACC2 + 16 * m, 16)
        A(mf(d, vr(XS + 8 * m + 4, 4), vr(DG + 4, 4), d))
    HR, HI = T0 + 20, T0 + 22
    A(f"v_fma_f32 v{HR}, v{E0}, v{CQ}, v{F0}")
    A(f"v_fma_f32 v{HR+1}, v{E1}, v{CQ}, v{F1}")
    A(f"v_fma_f32 v{HI}, -v{E0}, v{CQ+1}, -v{F0+1}")
    A(f"v_fma_f32 v{HI+1}, -v{E1}, v{CQ+1}, -v{F1+1}")
    A(f"v_fma_f32 v{HR}, -v{E0+1}, v{CQ+1}, v{HR}")
    A(f"v_fma_f32 v{HR+1}, -v{E1+1}, v{CQ+1}, v{HR+1}")
    A(f"v_fma_f32 v{HI}, -v{E0+1}, v{CQ}, v{HI}")
    A(f"v_fma_f32 v{HI+1}, -v{E1+1}, v{CQ}, v{HI+1}")
    pr, pi_ = HR, HI
    hst = []
    for hf in range(2):
        for s in range(8 * hf, 8 * hf + 8):
            re, im = URE + 2 * s, UIM + 2 * s
            emit([f"v_pk_fma_f32 {vr(re,2)}, {vr(C_LAM,2)}, {vr(pi_,2)}, {vr(re,2)} {lam_bc(1)}",
                  f"v_pk_fma_f32 {vr(im,2)}, {vr(C_LAM,2)}, {vr(pr,2)}, {vr(im,2)} {lam_bc(1)} {NEG}",
                  f"v_pk_fma_f32 {vr(re,2)}, {vr(C_LAM,2)}, {vr(pr,2)}, {vr(re,2)} {lam_bc(0)}",
                  f"v_pk_fma_f32 {vr(im,2)}, {vr(C_LAM,2)}, {vr(pi_,2)}, {vr(im,2)} {lam_bc(0)}"])
            pr, pi_ = re, im
        for ri in range(2):
            U = (URE, UIM)[ri]
            for z in range(2):
                o = 2 * z + hf
                d = HP + (ri * 4 + o) * 4
                for u in range(4):
                    s0 = 8 * hf + 2 * u
                    A(f"v_cvt_pk_bf16_f32 v{d+u}, v{U+2*s0+z}, v{U+2*s0+2+z}")
                A(f"buffer_store_dwordx4 {vr(d,4)}, v{V_AW+8+o if False else (V_SO+o if o else V_HSO)}, s[{SWS}:{SWS+3}], s{P_ACTW} offen offset:{(ri*4+o)*512} sc1")
                hst.append((ri * 4 + o, A.vm))
    tok_h = A.vm
    stamp(9)
    HS = [3, 4, 0, 1, 3, 4, 0, 1]
    def h_pieces(G):
        r = []
        for sub in range(2):
            pos, ph = SEQ[2 * G + sub]
            r += dma_pieces(V_LIN, SWS, ST + 8, HS[G] * SLOT + sub * 16384,
                            pre=lambda pos=pos, ph=ph: (A(f"s_lshl_b32 s{ST+8}, s{KAP[pos]}, 15"), A(f"s_add_u32 s{ST+8}, s{ST+8}, s{P_ACTR+ph}")),
                            post=(lambda: tok.__setitem__(("h", G), A.vm)) if sub else None, flags=PLF, same_v=True)
        return r
    assert CPRE == 8
    call = sum([c_reads(st) for st in [0, 1, 2, 3, 4, 5, 6, 7]], [])
    HF = 48
    def rd2(n):
        G, q = n >> 2, n & 3
        slot, buf = HS[G], n & 1
        r = []
        for h in range(4):
            kap = 4 * (q & 1) + h
            off = (slot & 1) * SLOT + (q >> 1) * 16384 + (kap >> 2) * 4096 + ((kap >> 1) & 1) * 2048 + (kap & 1) * 256
            for j in range(2):
                if G == 0:
                    o2 = (kap >> 2) * 8192 + ((kap >> 1) & 1) * 4096 + (kap & 1) * 256
                    r.append(f"ds_read_b64_tr_b16 {vr(HF+buf*16+h*4+2*j,2)}, v{V_AO+2*(q>>1)+j} offset:{o2}")
                else:
                    r.append(f"ds_read_b64_tr_b16 {vr(HF+buf*16+h*4+2*j,2)}, v{V_AH+2*(slot>>1)+j} offset:{off}")
        return r
    def mm2(n):
        buf = n & 1
        pos, ph = SEQ[n >> 1]
        d = vr(ACC2 + 16 * ph, 16)
        return [mf(d, vr(HF + buf * 16 + h * 4, 4), ar((8 * pos + 4 * (n & 1) + h) * 4, 4), d) for h in range(4)]
    xcc_decide(14)
    A.wait_vm(tok_c)
    A("s_barrier")
    slin(ST + 2, 3 * SLOT, (S_WAVE, 8192))
    A(f"v_add_u32 v{V_GO}, s{ST+2}, v{V_LIN}")
    for o in range(1, 4): A(f"v_xor_b32 v{V_GO+o}, {o*64}, v{V_GO}")
    for p in range(8):
        A(f"ds_write_b128 v{V_GO+(p&3)}, {vr(HP+4*p,4)} offset:{p*1024}")
    emit(call[:8])
    A("s_waitcnt lgkmcnt(0)")
    A("s_barrier")
    cf = call[8:]
    gemm_loop(4, rd2, mm2, lambda n: None, (3, 3, 2, 0), (2, 3), cf)
    emit(cf[:24]); cf = cf[24:]
    A.wait_vm(tok_h)
    flag_store()
    stamp(10)
    emit(cf)
    A("s_waitcnt lgkmcnt(0)")
    A("s_barrier")
    flag_poll()
    stamp(11)
    run(h_pieces(1) + h_pieces(2))
    stamp(12)
    fill = []
    def on_step2(n):
        G, q = n >> 2, n & 3
        if q == 0:
            if G == 1: fill.extend(h_pieces(3) + h_pieces(4))
            elif G + 3 < 8: fill.extend(h_pieces(G + 3))
            elif G == 5: fill.extend(out_stores(ACC2, 0))
    A.wait_vm(tok[("h", 1)])
    A("s_barrier")
    stamp(13)
    gemm_loop(32, rd2, mm2, lambda n: tok[("h", n >> 2)] if (n & 3) == 0 else None, (3, 3, 2, 0),
              lambda n: (0, 1, 2, 3) if n < 8 else (2, 3), fill, on_step2, start=4)
    assert not fill
    stamp(14)
    run(out_stores(ACC2, 1))
    tag_update("A")
    stamp(15)
    finish()

def role_B():
    V_OO = 24
    V_AX, V_AT = 28, 36
    V_SW, V_SR, V_P2, V_G2B, V_PB0, V_PB1, V_G1, V_GZ, V_G2, V_P2Z = 39, 40, 41, 42, 43, 44, 45, 46, 47, 253
    S_WPH, V_WPO = P0 + 12, 252
    IDF = 216
    V_WF = 48
    KACC, VACC, PK, KV, WPH = 64, 96, 128, 192, 224
    T0 = 232
    P_P1O, P_P1G, P_P2O, P_P2G, P_MSK = P0 + 1, P0 + 2, P0 + 8, P0 + 9, P0 + 10
    S_PART = 57
    NS = 16 if OPT.get('p16', 1) else 32
    WPS = OPT.get('wps', 1)
    QE = OPT.get('qe', 0)
    code_prefetch()
    A("v_lshrrev_b32 v9, 1, v3")
    A("v_xor_b32 v9, v9, v4")
    A("v_lshlrev_b32 v9, 4, v9")
    A("v_lshl_add_u32 v10, v3, 10, v9")
    slin(ST, 0, (S_CHUNK, 1 << 17), (S_WAVE, 1 << 15))
    A(f"v_add_u32 v{V_OX}, s{ST}, v10")
    A(f"v_xor_b32 v11, 64, v{V_OX}")
    A(f"v_add_u32 v{V_OX+1}, 7168, v11")
    A(f"v_add_u32 v{V_OX+2}, {2*7168}, v{V_OX}")
    A(f"v_add_u32 v{V_OX+3}, {3*7168}, v11")
    A("v_bfe_u32 v9, v3, 1, 1")
    A("v_lshlrev_b32 v9, 2, v9")
    A("v_xor_b32 v9, v9, v4")
    A("v_lshlrev_b32 v9, 4, v9")
    A(f"s_lshl_b32 s{ST}, s{S_CG}, 7")
    A(f"v_add_u32 v9, s{ST}, v9")
    A(f"s_lshl_b32 s{ST+1}, s{S_CH}, 5")
    A(f"v_add_u32 v10, s{ST+1}, v3")
    A("v_mul_u32_u24 v11, 3072, v10")
    A(f"v_add_u32 v{V_OW}, v11, v9")
    for p in range(1, 4): A(f"v_add_u32 v{V_OW+p}, {p*(8*3072-1024)}, v{V_OW}")
    A(f"v_lshl_add_u32 v{V_OO}, v10, 10, v9")
    slin(S_PART, 1024, (S_RH, 1024))
    A("s_waitcnt lgkmcnt(0)")
    srd(SW, K_WQKV, 0x180000)
    stamp(1)
    A(f"s_load_dword s{S_TAG}, s[{K_WS}:{K_WS+1}], {WS_TAGB}")
    srd(SX, K_BX, 0x200000)
    tok = {}
    def g1_pieces(i):
        slot = i & 3
        return (dma_pieces(V_OW, SW, ST + 8, slot * SLOT, pre=lambda: rot_soff(ST + 8, i, mul=196608, plus=S_PART, rot=S_ROT1)) +
                dma_pieces(V_OX, SX, ST + 10, slot * SLOT + 16384, pre=lambda: rot_soff(ST + 10, i, shift=7, rot=S_ROT1),
                           post=lambda: tok.__setitem__(i, A.vm), flags=XF))
    QSLOT = [4, 0]; OSLOT = [1, 2]
    def q_pieces(st):
        return dma_pieces(V_OW, SW, ST + 9, QSLOT[st >> 1] * SLOT + (st & 1) * 16384,
                          pre=lambda: rot_soff(ST + 9, 2 * st, mul=196608, extra_sreg=S_RH, rot=S_ROT1), post=lambda: tok.__setitem__(("q", st), A.vm))
    OPAIR = [(1, 2), (0, 3), (4, 5), (6, 7)]
    OLDS = {}
    for st_, pr_ in enumerate(OPAIR):
        for e_ in range(2): OLDS[pr_[e_]] = OSLOT[st_ >> 1] * SLOT + (st_ & 1) * 16384 + e_ * 8192
    def o_pieces(st):
        def pre():
            A(f"s_cmp_eq_u32 s{S_RH}, 0")
            A(f"s_cselect_b32 s{ST+9}, s{KAP[OPAIR[st][0]]}, s{KAP[OPAIR[st][1]]}")
            A(f"s_lshl_b32 s{ST+9}, s{ST+9}, 16")
        return dma_pieces(V_OO, SW2, ST + 9, OSLOT[st >> 1] * SLOT + (st & 1) * 16384, pre=pre)
    run(g1_pieces(0))
    wpl = []
    for hh in range(2):
        for u in range(4):
            d0 = (0, 2, 8, 10)[u]
            wpl.append(f"global_load_ushort v{WPH+4*hh+u}, v{V_WPO}, s[{S_WPH}:{S_WPH+1}] offset:{hh*512+d0*32}")
            wpl.append(f"global_load_ushort v{T0+8+4*hh+u}, v{V_WPO}, s[{S_WPH}:{S_WPH+1}] offset:{hh*512+(d0+1)*32}")
    srd(SW2, K_WO, 0x80000)
    late = g1_pieces(1)
    if EARLY:
        run(late[:NPRE]); late = late[NPRE:] + g1_pieces(2)
    else:
        run(late); late = []
    if OPT.get("wtouch", 0):
        slin(ST, 0, (S_CHUNK, 32), (S_WAVE, 8))
        A(f"v_add_u32 v9, s{ST}, v4")
        A("v_mul_u32_u24 v10, 3072, v9")
        A("v_lshlrev_b32 v9, 10, v9")
        A(f"s_lshl_b32 s{ST}, s{S_CG}, 7")
        A(f"buffer_load_dword v254, v10, s[{SW}:{SW+3}], s{ST} offen")
        A(f"buffer_load_dword v254, v9, s[{SW2}:{SW2+3}], s{ST} offen")
    stamp(2)
    cut("B")
    A(f"s_lshl_b32 s{ST}, s{S_RH}, 13")
    lds_b128_addrs(V_AX, ST, 16384, 2)
    A(f"v_bfe_u32 v9, v{V_LANE}, 4, 1")
    A(f"v_bfe_u32 v13, v{V_LANE}, 1, 1")
    A("v_lshl_add_u32 v10, v9, 1, v13")
    A(f"v_bfe_u32 v13, v{V_LANE}, 3, 1")
    A(f"v_xor_b32 v13, s{S_CH}, v13")
    A("v_lshl_add_u32 v9, v13, 2, v10")
    A("v_lshlrev_b32 v9, 4, v9")
    A(f"v_and_b32 v10, 1, v{V_LANE}")
    A("v_lshl_add_u32 v9, v10, 3, v9")
    A(f"v_bfe_u32 v14, v{V_LANE}, 2, 2")
    A(f"v_lshl_add_u32 v13, v{V_G}, 3, v14")
    A(f"v_lshl_add_u32 v{V_AT}, v13, 7, v9")
    A(f"v_add_u32 v{V_AT+1}, 0x10000, v{V_AT}")
    A(f"v_add_u32 v{V_AT+2}, 0x20000, v{V_AT}")
    if OPT.get("lateset", 0): A.cap = []
    A(f"s_mov_b64 s[{S_WPH}:{S_WPH+1}], s[{K_WPHI}:{K_WPHI+1}]")
    common_setup("B")
    for p in range(1, 4): A(f"v_add_u32 v{V_OO+p}, {p*7168}, v{V_OO}")
    A(f"v_lshrrev_b32 v9, 3, v{V_N}")
    A(f"v_and_b32 v13, 3, v{V_N}")
    A("v_lshl_add_u32 v9, v9, 2, v13")
    A("v_lshlrev_b32 v9, 1, v9")
    A(f"v_lshl_add_u32 v9, v{V_G}, 7, v9")
    slin(ST, 0, (S_CG, 2048), (S_CH, 1024))
    A(f"v_add_u32 v{V_WPO}, s{ST}, v9")
    if NS == 32: slin(ST, 0, (S_CG, 512), (S_CH, 256), (S_CHUNK, 2), (S_RH, 1))
    else:
        slin(ST, 0, (S_CG, 256), (S_CH, 128), (S_RH, 32), (S_CHUNK, 1))
    slin(P_P1O, WS_P1, (ST, 640))
    slin(ST, 0, (S_CG, 16), (S_CHUNK, 1))
    slin(P_P2O, WS_P2, (ST, 640))
    slin(P_P1G, WS_P1, (ST, NS * 640))
    for k in range(1, 4): A(f"s_add_u32 s{P_P1G+k}, s{P_P1G}, {8*k*640}")
    slin(ST, 0, (S_CG, 16), (S_CH, 8))
    slin(P_P2G, WS_P2, (ST, 640))
    A(f"s_mov_b32 s{P_MSK}, 0xffffff00")
    slin(P_ACTW, WS_O, (S_CHUNK, 1 << 17), (S_CG, 1 << 14), (S_RH, 1 << 12), (S_CH, 1 << 11))
    A(f"s_add_u32 s{P_ACTW2}, s{P_ACTW}, 8192")
    slin(P_ACTR, WS_O, (S_CHUNK, 1 << 17), (S_MF, 8192), (S_WAVE, 2048))
    A(f"s_lshl_b32 s{S_M0W2}, s{S_WAVE}, 11")
    A(f"s_xor_b32 s{P_ACTR2}, s{P_ACTR}, 8192")
    clears = [f"buffer_store_dwordx4 {vr(T0+16,4)}, v{V_LIN}, s[{SWS}:{SWS+3}], s{P_ACTW+(k>>1)} offen offset:{(k&1)*1024} sc1" for k in range(4)]
    A(f"s_and_b32 s{ST}, s{S_TAG}, 0xff")
    A(f"v_mov_b32 v{V_TAG}, s{ST}")
    A(f"v_mov_b32 v11, s{S_TAG}")
    A(f"v_and_b32 v9, 1, v{V_N}")
    A("v_lshlrev_b32 v9, 4, v9")
    A("v_mov_b32 v13, 0x3f80")
    A("v_lshlrev_b32 v13, v9, v13")
    A(f"v_lshrrev_b32 v9, 1, v{V_N}")
    A(f"v_lshlrev_b32 v14, 3, v{V_G}")
    A("v_sub_u32 v9, v9, v14")
    for q in range(8):
        A(f"v_cmp_eq_u32 vcc, {q}, v9")
        A(f"v_cndmask_b32_e64 v{IDF+q}, 0, v13, vcc")
    A(f"v_and_b32 v9, 15, v{V_LANE}")
    A("v_cmp_gt_u32 vcc, 4, v9")
    A("v_lshlrev_b32 v9, 4, v9")
    A(f"v_lshl_add_u32 v13, v{V_G}, 6, v9")
    A("v_add_u32 v13, 512, v13")
    A(f"v_lshl_add_u32 v9, v{V_G}, 8, v9")
    A(f"v_mov_b32 v14, {OOB:#x}")
    A("v_cndmask_b32 v13, v14, v13, vcc")
    A(f"v_cndmask_b32_e64 v{V_PB0}, v9, v13, s[{S_M16}:{S_M16+1}]")
    A(f"v_cndmask_b32_e64 v{V_PB1}, v13, v9, s[{S_M16}:{S_M16+1}]")
    A(f"v_cndmask_b32_e64 v13, v13, v14, s[{S_M16}:{S_M16+1}]")
    A(f"s_cmp_eq_u32 s{S_WAVE}, 0")
    A(f"s_cselect_b64 vcc, -1, 0")
    A(f"v_cndmask_b32 v{V_P2Z}, v14, v13, vcc")
    A(f"v_and_b32 v9, 7, v{V_LANE}")
    A(f"s_lshl_b32 s{ST}, s{S_WAVE}, 7")
    A(f"v_lshl_add_u32 v9, v9, 4, s{ST}")
    A(f"v_lshrrev_b32 v13, 3, v{V_LANE}")
    A("v_mul_u32_u24 v13, 640, v13")
    A(f"v_add_u32 v{V_G1}, v9, v13")
    A(f"v_cmp_gt_u32 vcc, 8, v{V_LANE}")
    A(f"v_and_b32 v13, {NS-1}, v{V_N}")
    A(f"v_mul_u32_u24 v{V_GZ}, 640, v13")
    if NS == 16:
        slin(ST, 3 * SLOT, (S_WAVE, 4096))
        A(f"v_add_u32 v{V_SW}, s{ST}, v{V_LIN}")
        A(f"v_xor_b32 v{V_SR}, 0x2000, v{V_SW}")
    A(f"v_lshl_add_u32 v{V_GZ}, v{V_G}, 6, v{V_GZ}")
    A(f"v_cndmask_b32 v{V_P2}, v14, v9, vcc")
    A(f"v_bfe_u32 v9, v{V_N}, 2, 1")
    A("v_lshlrev_b32 v9, 3, v9")
    A(f"v_bfe_u32 v13, v{V_N}, 3, 1")
    A("v_lshl_add_u32 v9, v13, 2, v9")
    A(f"v_and_b32 v13, 3, v{V_N}")
    A("v_add_u32 v9, v9, v13")
    A(f"v_cndmask_b32_e64 v9, v9, 32, s[{S_M16}:{S_M16+1}]")
    A("v_lshlrev_b32 v9, 4, v9")
    A(f"v_mul_u32_u24 v13, 1280, v{V_G}")
    A(f"v_add_u32 v{V_G2}, v9, v13")
    A("v_mov_b32 v9, 0x100")
    A(f"v_cndmask_b32_e64 v9, v9, 64, s[{S_M16}:{S_M16+1}]")
    A(f"v_add_u32 v{V_G2B}, v{V_G2}, v9")
    if OPT.get("prew", 1):
        for r in range(4): A(f"v_subrev_u32 v{T0+4+r}, 1, v{V_TAG}")
        A(f"buffer_store_dwordx4 {vr(T0+4,4)}, v{V_P2Z}, s[{SWS}:{SWS+3}], s{P_P2O} offen sc1")
        A(f"buffer_store_dwordx4 {vr(T0+4,4)}, v{V_P2}, s[{SWS}:{SWS+3}], s{P_P2O} offen sc1")
    A("v_mov_b32 v3, 0x3f803f80")
    A(f"v_bfe_u32 v4, v{V_LANE}, 2, 1")
    A("v_mul_u32_u24 v4, 0x8000, v4")
    A("v_lshl_or_b32 v4, v4, 16, v4")
    SET, A.cap = (A.cap or []), None
    stamp(3)
    run(late)
    def trfrag(dst, ldsoff, kind="v"):
        s_, off = ldsoff >> 16, ldsoff & 0xffff
        return [f"ds_read_b64_tr_b16 {vr(dst+2*j,2,kind)}, v{V_AT+s_} offset:{off+j*512}" for j in range(2)]
    def rd(n):
        i, ks = n >> 2, n & 3
        slot, buf = i & 3, n & 1
        s2_, off = slot >> 1, (slot & 1) * SLOT
        x = [f"ds_read_b128 {ar(n*8+m*4,4)}, v{V_AX+4*s2_+ks} offset:{off+m*4096}" for m in range(2)]
        w = [trfrag(V_WF + buf * 8 + part * 4, slot * SLOT + part * 8192 + ks * 2048) for part in range(2)]
        return [x[0]] + w[0] + [x[1]] + w[1]
    def mm(n):
        buf = n & 1
        r = []
        for part, m in ((0, 0), (0, 1), (1, 0), (1, 1)):
            x, w = ar(n * 8 + m * 4, 4), vr(V_WF + buf * 8 + part * 4, 4)
            d = vr((KACC, VACC)[part] + 16 * m, 16)
            r.append(mf(d, w, x, d if n else "0") if part == 0 else mf(d, x, w, d if n else "0"))
        return r
    fill = []
    def on_step(n):
        i, ks = n >> 2, n & 3
        if ks == 0 and OPT.get("g1st") and i: stamp(16 + i)
        if ks == 0:
            if i in (WPS, WPS + 1): fill.extend(wpl[8*(i-WPS):8*(i-WPS)+8])
            for st in SCHED[0].get(i, []): fill.extend(g1_pieces(st))
            if i == 5: fill.extend(q_pieces(0) + (q_pieces(1) if QE == 1 else []))
            if i == 6:
                fill.extend((q_pieces(2) + q_pieces(3)) if QE == 1 else o_pieces(0))
                if OPT.get("ptouch", 0):
                    fill.extend([f"buffer_load_dword v254, v{V_G1}, s[{SWS}:{SWS+3}], s{P_P1G+k} offen sc1" for k in range(4)])
                    fill.append(f"buffer_load_dword v254, v{V_GZ}, s[{SWS}:{SWS+3}], s{P_P1G} offen sc1")
                    fill.extend([f"buffer_load_dword v254, v{V_G2}, s[{SWS}:{SWS+3}], s{P_P2G} offen offset:{(hh*4+jp)*640} sc1" for hh in range(2) for jp in range(2)])
                    fill.append(lambda: rdy_load(254, 254))
            elif i == 7:
                fill.extend(o_pieces(0) if QE == 1 else o_pieces(1))
                for r in range(8):
                    fill.append(lambda r=r: (A(f"v_lshl_or_b32 v{WPH+r}, v{T0+8+r}, 16, v{WPH+r}"), A(f"v_xor_b32 v{WPH+r}, v4, v{WPH+r}"), A(f"v_mov_b32 v{T0+8+r}, v{IDF+r}")))
    A.wait_vm(tok[0])
    A("s_barrier")
    stamp(4)
    gemm_loop(32, rd, mm, lambda n: tok[n >> 2] if (n & 3) == 0 else None, (3, 3, 0, 0), lambda n: g1_gaps(n, (7, WPS, WPS + 1)), fill, on_step, end_barrier=True, extra=SET, nextra=lambda n, g: NX)
    assert not SET
    assert not fill
    stamp(5)
    def feat(acc):
        for m in range(2):
            for u in range(8):
                A(f"v_cvt_pk_bf16_f32 v{acc+16*m+u}, v{acc+16*m+2*u}, v{acc+16*m+2*u+1}")
            for hh in range(2):
                A(mf(vr(PK + (m * 2 + hh) * 16, 16), vr(WPH + 4 * hh, 4), vr(acc + 16 * m + 4 * hh, 4), "0"))
    def softmax_l(x, dst):
        mx, sm = T0, T0 + 2
        l = [f"v_max3_f32 v{mx}, v{x}, v{x+1}, v{x+2}"]
        for u in range(3, 15, 2):
            l.append(f"v_max3_f32 v{mx}, v{mx}, v{x+u}, v{x+u+1}")
        l.append(f"v_max_f32 v{mx}, v{mx}, v{x+15}")
        l.append(f"v_mul_f32 v{mx}, s{S_L2E}, v{mx}")
        for u in range(8):
            l.append(f"v_pk_fma_f32 {vr(x+2*u,2)}, {vr(x+2*u,2)}, s[{S_L2E}:{S_L2E+1}], {vr(mx,2)} op_sel_hi:[1,1,0] neg_lo:[0,0,1] neg_hi:[0,0,1]")
        for u in range(16):
            l.append(f"v_exp_f32 v{x+u}, v{x+u}")
        l.append(f"v_pk_add_f32 {vr(sm,2)}, {vr(x,2)}, {vr(x+2,2)}")
        for u in range(2, 8):
            l.append(f"v_pk_add_f32 {vr(sm,2)}, {vr(sm,2)}, {vr(x+2*u,2)}")
        l.append(f"v_add_f32 v{sm}, v{sm}, v{sm+1}")
        l.append(f"v_rcp_f32 v{sm}, v{sm}")
        for u in range(8):
            l.append(f"v_pk_mul_f32 {vr(x+2*u,2)}, {vr(x+2*u,2)}, {vr(sm,2)} op_sel_hi:[1,0]")
        for u in range(8):
            l.append(f"v_cvt_pk_bf16_f32 v{dst+u}, v{x+2*u}, v{x+2*u+1}")
        return l
    feat(KACC)
    for m in range(2):
        for u in range(8):
            A(f"v_cvt_pk_bf16_f32 v{VACC+16*m+u}, v{VACC+16*m+2*u}, v{VACC+16*m+2*u+1}")
    for m in range(2):
        for u in range(8):
            A(f"v_cndmask_b32_e64 v{VACC+16*m+8+u}, v3, v{VACC+16*m+u}, s[{S_M16}:{S_M16+1}]")
            A(f"v_cndmask_b32_e64 v{VACC+16*m+u}, v{VACC+16*m+u}, v3, s[{S_M16}:{S_M16+1}]")
    nbstamp(0)
    PH = [KACC + 8, KACC + 24]
    ID = T0 + 8
    def tmm(blk):
        d = vr(PK + 16 * blk, 16)
        return [mf(d, vr(PH[blk & 1] + 4 * jp, 4), vr(ID + 4 * jp, 4), d if jp else "0") for jp in range(2)]
    def tcvt(blk):
        t = PK + 16 * blk
        return [f"v_cvt_pk_bf16_f32 v{t+u}, v{t+2*u}, v{t+2*u+1}" for u in range(8)]
    def kvmm(blk):
        m, hh = blk >> 1, blk & 1
        d = vr(KV + 16 * hh, 16)
        return [mf(d, vr(PK + 16 * blk + 4 * mm_, 4), vr(VACC + 16 * m + 8 * hh + 4 * mm_, 4), d if (m or mm_) else "0") for mm_ in range(2)]
    for blk in range(4):
        l = softmax_l(PK + blk * 16, PH[blk & 1])
        if blk:
            t, kv = tmm(blk - 1), kvmm(blk - 1)
            l = l[:17] + [t[0]] + l[17:21] + [t[1]] + l[21:33] + tcvt(blk - 1) + l[33:50] + [kv[0]] + l[50:58] + [kv[1]]
        emit(l)
        if blk < 3 and not QE: run(q_pieces(blk + 1))
        nbstamp(1 + blk)
    TS = 4 if OPT.get("tag1", 1) else 1
    def tagit(r, n):
        for e in range(0, n, TS):
            A(f"v_and_or_b32 v{r+e}, v{r+e}, s{P_MSK}, v{V_TAG}")
    def pub(hh, oc):
        A(f"s_add_u32 s{ST+3}, s{P_P1O}, {(hh*4+oc)*32*640}")
        A(f"buffer_store_dwordx4 {vr(KV+16*hh+4*oc,4)}, v{V_PB0+hh}, s[{SWS}:{SWS+3}], s{ST+3} offen sc1")
    if NS == 32:
        emit(tmm(3))
        tagit(KV, 16)
        pub(0, 0); pub(0, 1)
        emit(tcvt(3))
        emit(kvmm(3))
        nbstamp(5)
        pub(0, 2); pub(0, 3)
        tagit(KV + 16, 16)
        for oc in range(4): pub(1, oc)
    else:
        RB = PK
        def tail(rh):
            keep, send = 8 * rh, 8 - 8 * rh
            emit(tmm(3))
            for u in range(2): A(f"ds_write_b128 v{V_SW}, {vr(KV+send+4*u,4)} offset:{u*1024}")
            emit(tcvt(3))
            emit(kvmm(3))
            for u in range(2): A(f"ds_write_b128 v{V_SW}, {vr(KV+16+send+4*u,4)} offset:{(2+u)*1024}")
            A("s_waitcnt lgkmcnt(0)")
            A("s_barrier")
            for u in range(4): A(f"ds_read_b128 {vr(RB+4*u,4)}, v{V_SR} offset:{u*1024}")
            for hh in range(2):
                for jj in range(2):
                    r = KV + 16 * hh + keep + 4 * jj
                    A(f"s_add_u32 s{ST+3}, s{P_P1O}, {(hh*4+jj)*16*640}")
                    A(f"s_waitcnt lgkmcnt({3-2*hh-jj})")
                    for u in range(2):
                        A(f"v_pk_add_f32 {vr(r+2*u,2)}, {vr(r+2*u,2)}, {vr(RB+8*hh+4*jj+2*u,2)}")
                    tagit(r, 4)
                    A(f"buffer_store_dwordx4 {vr(r,4)}, v{V_PB0+hh}, s[{SWS}:{SWS+3}], s{ST+3} offen sc1")
        l1, l2 = lab("rh1"), lab("rhj")
        A(f"s_cmp_lg_u32 s{S_RH}, 0")
        A(f"s_cbranch_scc1 {l1}")
        st_ = (A.vm, A.lg, list(A.hist))
        tail(0)
        A(f"s_branch {l2}")
        A.label(l1)
        A.vm, A.lg, A.hist = st_[0], st_[1], list(st_[2])
        tail(1)
        A.label(l2)
    QACC = KACC
    def qaddr(n):
        i, ks = n >> 2, n & 3
        return QSLOT[i >> 2] * SLOT + (i & 3) * 8192 + ks * 2048
    def rdq(n):
        return trfrag(V_WF + (n & 1) * 8, qaddr(2 * n)) + trfrag(V_WF + (n & 1) * 8 + 4, qaddr(2 * n + 1))
    def mmq(n):
        r = []
        for h in range(2):
            for m in range(2):
                d = vr(QACC + 16 * m, 16)
                r.append(mf(d, vr(V_WF + (n & 1) * 8 + 4 * h, 4), ar((2 * n + h) * 8 + m * 4, 4), d if (n or h) else "0"))
        return r
    stamp(6)
    nbflush()
    GD = VACC
    GZ = GD + 16
    g1l = [f"buffer_load_dwordx4 {vr(GD+4*k,4)}, v{V_G1}, s[{SWS}:{SWS+3}], s{P_P1G+k} offen sc1" for k in range(NS // 8)]
    g1l.append(f"buffer_load_dwordx4 {vr(GZ,4)}, v{V_GZ}, s[{SWS}:{SWS+3}], s{P_P1G} offen offset:512 sc1")
    S_D1, S_RET = P0 + 11, ST + 6
    A(f"s_mov_b32 s{S_D1}, 0")
    def try1a(block=False):
        skip = lab("sk")
        if block:
            A(f"s_cmp_lg_u32 s{S_D1}, 0")
        else:
            A(f"s_getreg_b32 s{ST+5}, hwreg(HW_REG_IB_STS, 0, 4)")
            A(f"s_or_b32 s{ST+5}, s{ST+5}, s{S_D1}")
        A(f"s_cbranch_scc1 {skip}")
        A(f"s_call_b64 s[{S_RET}:{S_RET+1}], L_try1a")
        A.label(skip)
    def sub_try1a():
        A.label("L_try1a")
        A.hist = []
        A("s_waitcnt vmcnt(0)")
        A(f"v_xor_b32 v13, v{GD}, v{V_TAG}")
        for s in [x for x in range(TS, 20, TS) if x < NS // 2 or x >= 16]:
            A(f"v_bitop3_b32 v13, v{GD+s}, v{V_TAG}, v13 bitop3:0xbe")
        A("v_and_b32 v13, 0xff, v13")
        A(f"v_cmp_ne_u32 s[{S_FAIL}:{S_FAIL+1}], 0, v13")
        A(f"s_cmp_eq_u64 s[{S_FAIL}:{S_FAIL+1}], 0")
        A("s_cbranch_scc1 L_try1a_ok")
        emit(g1l)
        A(f"s_setpc_b64 s[{S_RET}:{S_RET+1}]")
        A.label("L_try1a_ok")
        DPP = "row_mask:0xf bank_mask:0xf"
        A(f"v_permlane16_swap_b32 v{GZ}, v{GZ+2}")
        A(f"v_permlane16_swap_b32 v{GZ+1}, v{GZ+3}")
        if NS == 32:
            for u in range(0, 8, 2):
                A(f"v_pk_add_f32 {vr(GD+u,2)}, {vr(GD+u,2)}, {vr(GD+8+u,2)}")
            A(f"v_pk_add_f32 {vr(GZ,2)}, {vr(GZ,2)}, {vr(GZ+2,2)}")
        for u in range(0, 4, 2):
            A(f"v_pk_add_f32 {vr(GD+u,2)}, {vr(GD+u,2)}, {vr(GD+4+u,2)}")
        def zror(k):
            for e in range(2): A(f"v_add_f32_dpp v{GZ+e}, v{GZ+e}, v{GZ+e} row_ror:{k} {DPP}")
        zror(1)
        A(f"v_permlane32_swap_b32 v{GD}, v{GD+1}")
        A(f"v_permlane32_swap_b32 v{GD+2}, v{GD+3}")
        zror(2)
        A(f"v_add_f32 v{GD}, v{GD}, v{GD+1}")
        A(f"v_add_f32 v{GD+2}, v{GD+2}, v{GD+3}")
        zror(4)
        A(f"v_permlane16_swap_b32 v{GD}, v{GD+2}")
        A(f"v_add_f32 v{GD}, v{GD}, v{GD+2}")
        zror(8)
        A(f"v_add_f32_dpp v{GD}, v{GD}, v{GD} row_ror:8 {DPP}")
        for e in range(2): A(f"v_and_or_b32 v{GZ+e}, v{GZ+e}, s{P_MSK}, v{V_TAG}")
        A(f"v_and_or_b32 v{GD}, v{GD}, s{P_MSK}, v{V_TAG}")
        for e in range(2): A(f"v_mov_b32 v{GZ+2+e}, v{GZ+e}")
        A(f"v_mov_b32 v{GD+1}, v{GD}")
        A(f"v_permlane16_swap_b32 v{GZ}, v{GZ+2}")
        A(f"v_permlane16_swap_b32 v{GZ+1}, v{GZ+3}")
        A(f"v_permlane32_swap_b32 v{GD}, v{GD+1}")
        A(f"buffer_store_dwordx4 {vr(GZ,4)}, v{V_P2Z}, s[{SWS}:{SWS+3}], s{P_P2O} offen sc1")
        A(f"v_mov_b32 v{GD+2}, v{GD}")
        A(f"v_mov_b32 v{GD+3}, v{GD+1}")
        A(f"v_permlane16_swap_b32 v{GD}, v{GD+2}")
        A(f"v_permlane16_swap_b32 v{GD+1}, v{GD+3}")
        A(f"buffer_store_dwordx4 {vr(GD,4)}, v{V_P2}, s[{SWS}:{SWS+3}], s{P_P2O} offen sc1")
        stamp(8)
        A(f"s_mov_b32 s{S_D1}, 1")
        A(f"s_setpc_b64 s[{S_RET}:{S_RET+1}]")
    DEFER.append(sub_try1a)
    fill = []
    G1AT = OPT.get('g1at', 13)
    def on_stepq(n):
        if n == 0: fill.extend((o_pieces(1) if QE == 1 else (q_pieces(2) + q_pieces(3) if QE == 2 else [])) + o_pieces(2) + o_pieces(3) + [lambda: tok.__setitem__('wo', A.vm)])
        if n == G1AT: fill.extend(g1l + [None])
        if n >= G1AT + 4: fill.extend([None, try1a])
    if QE == 2:
        run(q_pieces(1))
        A.wait_vm(tok[("q", 0)])
        qb = lambda n: tok[("q", n >> 2)] if n in (4, 8, 12) else None
    else:
        A.wait_vm(tok[("q", 3)])
        qb = lambda n: None
    A("s_barrier")
    stamp(26)
    gemm_loop(16, rdq, mmq, qb, (2, 2, 0, 0), lambda n: (0, 1, 2, 3) if (QE == 2 and n < 2) else (2, 3), fill, on_stepq)
    assert not fill
    A.wait_vm(tok["wo"])
    A("s_barrier")
    stamp(7)
    feat(QACC)
    def wait1a():
        top, done = lab("w1a"), lab("w1d")
        A(f"s_mov_b32 s{S_CNT}, {SPIN_LIMIT}")
        A.label(top)
        try1a(block=True)
        A(f"s_cmp_lg_u32 s{S_D1}, 0")
        A(f"s_cbranch_scc1 {done}")
        A(f"s_sub_u32 s{S_CNT}, s{S_CNT}, 1")
        A(f"s_cbranch_scc0 {top}")
        A.label(done)
    B1 = OPT.get("blk1a", 0)
    if B1 == 0: wait1a()
    S_D2 = ST + 4
    A(f"s_mov_b32 s{S_D2}, 0")
    PHQ = KV
    FD = PK
    def loads2():
        for hh in range(2):
            for jp in range(2):
                r = FD + (hh * 2 + jp) * 8
                off = (hh * 4 + jp) * 640
                A(f"buffer_load_dwordx4 {vr(r,4)}, v{V_G2}, s[{SWS}:{SWS+3}], s{P_P2G} offen offset:{off} sc1")
                A(f"buffer_load_dwordx4 {vr(r+4,4)}, v{V_G2B}, s[{SWS}:{SWS+3}], s{P_P2G} offen offset:{off} sc1")
        rdy_load(14)
    def check2():
        A(f"v_xor_b32 v13, v{FD}, v{V_TAG}")
        for s in range(1, 32):
            A(f"v_bitop3_b32 v13, v{FD+s}, v{V_TAG}, v13 bitop3:0xbe")
        rdy_check(9, 14)
        A("v_and_b32 v13, 0xff, v13")
        A("v_or_b32 v13, v13, v9")
        A(f"v_cmp_ne_u32 s[{S_FAIL}:{S_FAIL+1}], 0, v13")
    for blk in range(4):
        if blk == OPT.get("l2at", 3): loads2()
        emit(softmax_l(PK + blk * 16, PHQ + 8 * blk))
        if blk + 1 == B1: wait1a()
    stamp(9)
    KVF = VACC + 16
    ODR = [KACC, KACC + 16, PK + 32, PK + 48]
    A(f"s_lshl_b32 s{ST+5}, s{S_RH}, 12")
    A(f"v_add_u32 v{V_AX}, s{ST+5}, v{V_LIN}")
    A(f"v_add_u32 v{V_AX+1}, 0x10000, v{V_AX}")
    A(f"v_add_u32 v{V_AX+2}, 0x20000, v{V_AX}")
    slin(ST + 5, 3 * SLOT, (S_MF, 8192), (S_M0W2, 1))
    A(f"v_add_u32 v{V_AX+3}, s{ST+5}, v{V_LIN}")
    A(f"v_xor_b32 v{V_AX+4}, 0x2000, v{V_AX+3}")
    wor = []
    for n in range(32):
        wor += trfrag(n * 4, OLDS[n >> 2] + (n & 3) * 2048, "a")
    emit(wor[:8])
    def check2m():
        chk = [f"v_xor_b32 v13, v{FD}, v{V_TAG}"] + [f"v_bitop3_b32 v13, v{FD+s}, v{V_TAG}, v13 bitop3:0xbe" for s in range(TS, 32, TS)]
        for hh in range(2):
            for q in (2 * hh, 2 * hh + 1):
                for u in range(4):
                    A(f"v_cvt_pk_bf16_f32 v{KVF+4*q+u}, v{FD+8*q+2*u}, v{FD+8*q+2*u+1}")
            for m in range(2):
                blk = 2 * m + hh
                d = vr(ODR[blk], 16)
                for jp in range(2):
                    A(mf(d, vr(KVF + (hh * 2 + jp) * 4, 4), vr(PHQ + 8 * blk + 4 * jp, 4), d if jp else "0"))
                    k = 3 if hh == 0 else 5
                    emit(chk[:k]); chk = chk[k:]
        assert not chk
        rdy_check(9, 14)
        A("v_and_b32 v13, 0xff, v13")
        A("v_or_b32 v13, v13, v9")
        A(f"v_cmp_ne_u32 s[{S_FAIL}:{S_FAIL+1}], 0, v13")
    poll_pre(loads2, check2m)
    stamp(10)
    xcc_decide(14)
    ost = []
    for blk in (0, 2, 1, 3):
        m, hh = blk >> 1, blk & 1
        o = ODR[blk]
        A(f"v_add_f32 v{o+8}, 0x358637bd, v{o+8}")
        A(f"v_rcp_f32 v{o+8}, v{o+8}")
        for u in range(4):
            A(f"v_pk_mul_f32 {vr(o+2*u,2)}, {vr(o+2*u,2)}, {vr(o+8,2)} op_sel_hi:[1,0]")
        for u in range(4):
            A(f"v_cvt_pk_bf16_f32 v{o+12+u}, v{o+2*u}, v{o+2*u+1}")
        A(f"buffer_store_dwordx4 {vr(o+12,4)}, v{V_LIN}, s[{SWS}:{SWS+3}], s{P_ACTW+m} offen offset:{hh*1024} sc1")
        A(f"ds_write_b128 v{V_AX+3+m}, {vr(o+12,4)} offset:{hh*1024}")
    tok_o = A.vm
    stamp(11)
    ELDS = [(3, 4, 0, 1)[e >> 2] * SLOT + (e & 3) * 8192 for e in range(16)]
    def of_pieces(e):
        pos, ph = SEQ[e]
        def p0():
            A(f"s_add_u32 m0, s{S_M0W2}, {ELDS[e]:#x}")
            A(f"s_lshl_b32 s{ST+8}, s{KAP[pos]}, 14")
            A(f"s_add_u32 s{ST+8}, s{ST+8}, s{P_ACTR+ph}")
            A(f"buffer_load_dwordx4 v{V_LIN}, s[{SWS}:{SWS+3}], s{ST+8} offen {PLF}lds")
        def p1():
            A(f"buffer_load_dwordx4 v{V_LIN}, s[{SWS}:{SWS+3}], s{ST+8} offen offset:1024 {PLF}lds")
            tok[("of", e)] = A.vm
        return [p0, p1]
    OF = PK
    OACC = VACC
    def rd4(n):
        return [f"ds_read_b128 {vr(OF+(n&1)*16+h*4,4)}, v{V_AX+(ELDS[n]>>16)} offset:{(ELDS[n]&0xffff)+h*1024}" for h in range(4)]
    def mm4(n):
        pos, ph = SEQ[n]
        d = vr(OACC + 16 * ph, 16)
        return [mf(d, vr(OF + (n & 1) * 16 + h * 4, 4), ar((4 * pos + h) * 4, 4), d if (pos or h) else "0") for h in range(4)]
    A("s_waitcnt lgkmcnt(0)")
    A("s_barrier")
    wf = wor[8:]
    def two():
        for _ in range(2): A(wf.pop(0))
    gemm_loop(2, rd4, mm4, lambda n: None, (2, 2, 0, 0), (2, 3), [two] * 4)
    emit(wf[:16]); wf = wf[16:]
    A.wait_vm(tok_o)
    flag_store()
    emit(wf)
    flag_poll()
    stamp(12)
    for e in range(2, 7): run(of_pieces(e))
    fill = []
    def on_step4(n):
        if n == 2:
            for e in range(7, 16): fill.extend(of_pieces(e))
        if n == 10: fill.extend(out_stores(OACC, 0))
    A.wait_both(tok[("of", 3)], A.lg)
    A("s_barrier")
    stamp(13)
    BND = {4: 6, 7: 9, 10: 12, 13: 15}
    gemm_loop(16, rd4, mm4, lambda n: tok[("of", BND[n])] if n in BND else None, (2, 2, 0, 0),
              lambda n: (1, 2, 3) if n >= 10 else (0, 1, 2, 3), fill, on_step4, start=2)
    assert not fill
    stamp(14)
    run(out_stores(OACC, 1))
    tag_update("B")
    stamp(15)
    finish()

prologue()
vm0, lg0 = A.vm, A.lg
role_A()
for f in DEFER: f()
DEFER.clear()
A.label("L_roleB")
ROLE[0] = "B"
A.vm, A.lg = vm0, lg0
A.hist = []
role_B()
for f in DEFER: f()
A.label("L_end")
A("s_endpgm")

iB = A.out.index("L_roleB:")
iE = A.out.index("L_end:")
if OPT.get("bfirst", 1):
    lines = A.out[:CUT["P"]] + A.out[iB:CUT["B"]] + A.out[CUT["P"]:CUT["A"]] + A.out[CUT["B"]:iE] + A.out[CUT["A"]:iB] + A.out[iE:]
else:
    lines = A.out[:CUT["A"]] + A.out[iB:CUT["B"]] + A.out[CUT["A"]:iB] + A.out[CUT["B"]:]
if OPT["align"]:
    lines, nw, nn = align(lines, min_nop=OPT.get('minnop', 12))
    print("align: widened", nw, "nops", nn)
HEAD = open("cdna_kernels/" + NAME + ".s.ref").read().split("; Override launch geometry")[0]
src = HEAD + f"""; @launch grid=(256,1,1) block=(256,1,1) lds=163840
.amdgcn_target "amdgcn-amd-amdhsa--gfx950"
.text
.globl {NAME}_kernel
.p2align 8
.type {NAME}_kernel,@function
{NAME}_kernel:
""" + "\n".join(lines) + f"""
.fill 8192, 4, 0xBF810000
.section .rodata,"a"
.p2align 6
.amdhsa_kernel {NAME}_kernel
  .amdhsa_next_free_vgpr 512
  .amdhsa_next_free_sgpr 102
  .amdhsa_accum_offset 256
  .amdhsa_group_segment_fixed_size 0
  .amdhsa_kernarg_size 128
  .amdhsa_user_sgpr_count 2
  .amdhsa_user_sgpr_kernarg_segment_ptr 1
  .amdhsa_system_sgpr_workgroup_id_x 1
.end_amdhsa_kernel
"""
open(sys.argv[1], "w").write(src)
print("hazard nops:", A.nnop, "lines:", len(lines))
```

```python
import sys
from dsl import Asm, vr, ar, sr
from align import align

NAME = "concat_heads__ssm_conv_s5__linear_kernel_hedgehog__prompt"
OPT = dict(stamps=False, rotmode=2, align=1, xnt=0, hwait=8, owait=4, hand=0)
for a_ in sys.argv[2:]:
    k_, _, v_ = a_.partition("=")
    OPT[k_] = int(v_) if v_ else True

WS_TAGA, WS_TAGB = 0x0, 0x80
WS_XCC = 0x1000
WS_FLAG = 0x2000
WS_SA = 0x10000
WS_P1 = 0x100000
WS_P2 = 0x3C0000
WS_H = 0x400000
WS_O = 0x800000
WS_STAMP = 0xA00000
OOB = 0x40000000
SPIN_LIMIT = 1 << 14
LOG2E = 0x3FB8AA3B
INV2PI = 0x3E22F983

S_WAVE, S_CHUNK, S_CG, S_ROT, S_TAG = 3, 4, 5, 6, 7
SX, SW, SW2, SWS, SOUT = 8, 12, 16, 20, 24
S_RH, S_CH, S_SLOT, S_GRP = 28, 29, 30, 31
ST = 32
S_M0W, S_M0W2 = 48, 49
S_MG = 50
S_MRH = 52
S_L2E = 54
S_CNT = 56
S_FAIL = 58
S_M16 = 60
S_SM0, S_RS = 62, 63
S_XW, S_SLOW, P_FLW = 91, 92, 93
S_ROT1 = 47
KAP = [62, 63, 44, 45, 86, 87, 94, 95]
SEQ = [(0, 0), (0, 1)] + [(j, 0) for j in range(1, 8)] + [(j, 1) for j in range(1, 8)]
HAND = OPT['hand']
KA = 64
K_AX, K_LRE, K_LIM, K_BRE, K_BIM, K_CRE, K_CIM, K_LDT, K_DSK, K_BX, K_WQKV, K_WPHI, K_WO, K_OUT, K_DBG, K_WS = [KA + 2 * i for i in range(16)]
P_FLAGB, P_FLAGO, P_XCCB, P_TAGSEL, P_OUT, P_OUT2, P_ACTR, P_ACTR2 = range(64, 72)
P_ACTW, P_ACTW2, S_MF = 88, 89, 90
P0 = 72
S_STAMP = 96
V_LANE, V_OUTO, V_N, V_G, V_LIN, V_TAG, V_L0, V_CHK, V_XPO = 1, 2, 5, 6, 7, 8, 10, 12, 15
V_OX, V_OW = 16, 20
SLOT = 32768

A = Asm()
CUT = {}
nlab = [0]

def srd(dst, ptr, nbytes):
    A(f"s_mov_b32 s{dst}, s{ptr}")
    A(f"s_mov_b32 s{dst+1}, s{ptr+1}")
    A(f"s_mov_b32 s{dst+2}, {nbytes:#x}")
    A(f"s_mov_b32 s{dst+3}, 0x20000")

def slin(dst, const, *terms):
    first = True
    for reg, mul in terms:
        t = dst if first else ST + 14
        if mul == 1:
            if first: A(f"s_mov_b32 s{dst}, s{reg}")
            else: t = reg
        elif mul & (mul - 1) == 0: A(f"s_lshl_b32 s{t}, s{reg}, {mul.bit_length()-1}")
        else: A(f"s_mul_i32 s{t}, s{reg}, {mul}")
        if not first: A(f"s_add_u32 s{dst}, s{dst}, s{t}")
        first = False
    if const: A(f"s_add_u32 s{dst}, s{dst}, {const:#x}")

ROLE = ["A"]
def stamp(idx):
    if OPT.get("probe") == idx + (0 if ROLE[0] == "A" else 100):
        if OPT.get("cyc"):
            A("s_memtime s[96:97]")
            A("s_waitcnt lgkmcnt(0)")
            A("s_sub_u32 s99, s96, s98")
            A("s_lshr_b32 s99, s99, 4")
        else:
            A("s_memrealtime s[96:97]")
            A("s_waitcnt lgkmcnt(0)")
            A("s_sub_u32 s99, s96, s100")
    if not OPT["stamps"]: return
    A(f"s_memtime s[{S_STAMP}:{S_STAMP+1}]")
    A("s_waitcnt lgkmcnt(0)")
    A(f"s_sub_u32 s{S_STAMP}, s{S_STAMP}, s98")
    A(f"v_writelane_b32 v255, s{S_STAMP}, {idx}")
    if OPT.get("rt") and idx <= 16:
        A(f"s_memrealtime s[{S_STAMP}:{S_STAMP+1}]")
        A("s_waitcnt lgkmcnt(0)")
        A(f"s_sub_u32 s{S_STAMP}, s{S_STAMP}, s100")
        A(f"v_writelane_b32 v255, s{S_STAMP}, {idx+44}")

NB = [32, 36, 38, 42, 58, 56]
nbuse = []
def nbstamp(k):
    if OPT.get("nb") and OPT["stamps"]:
        A(f"s_memtime s[{NB[k]}:{NB[k]+1}]"); nbuse.append(k)
def nbflush():
    if OPT.get("nb") and OPT["stamps"]:
        A("s_waitcnt lgkmcnt(0)")
        for k in nbuse:
            A(f"s_sub_u32 s{NB[k]}, s{NB[k]}, s98")
            A(f"v_writelane_b32 v255, s{NB[k]}, {17+k}")
        nbuse.clear()

def lab(n):
    nlab[0] += 1
    return f"L_{n}_{nlab[0]}"

def finish():
    if OPT.get("probe") and (OPT["probe"] >= 100) == (ROLE[0] == "B"):
        if OPT["probe"] % 100 == 16:
            A("s_waitcnt vmcnt(0)")
            stamp(16)
        l = lab("pr")
        A("s_lshl_b32 s99, s99, 1")
        A("s_add_u32 s99, s99, 2500")
        A.label(l)
        A("s_memrealtime s[96:97]")
        A("s_waitcnt lgkmcnt(0)")
        A("s_sub_u32 s96, s96, s100")
        A("s_cmp_lt_u32 s96, s99")
        A(f"s_cbranch_scc1 {l}")
    if OPT.get("fixrt"):
        l = lab("rt")
        A.label(l)
        A("s_memrealtime s[96:97]")
        A("s_waitcnt lgkmcnt(0)")
        A("s_sub_u32 s96, s96, s100")
        A(f"s_cmp_lt_u32 s96, {OPT['fixrt']}")
        A(f"s_cbranch_scc1 {l}")
    if OPT["stamps"]:
        A("s_waitcnt vmcnt(0)")
        stamp(16)
        A("v_writelane_b32 v255, s99, 30")
        A("s_memrealtime s[96:97]")
        A("v_writelane_b32 v255, s100, 40")
        A("s_waitcnt lgkmcnt(0)")
        A("v_writelane_b32 v255, s96, 41")
        slin(ST, WS_STAMP, (2, 1024), (S_WAVE, 256))
        A(f"v_lshlrev_b32 v254, 2, v{V_LANE}")
        A(f"buffer_store_dword v255, v254, s[{SWS}:{SWS+3}], s{ST} offen")
    A("s_endpgm")

def mf(d, a, b, c):
    return f"v_mfma_f32_32x32x16_bf16 {d}, {a}, {b}, {c}"

def poll(loads, check):
    top, done = lab("poll"), lab("ok")
    A(f"s_mov_b32 s{S_CNT}, {SPIN_LIMIT}")
    A.label(top)
    loads()
    A("s_waitcnt vmcnt(0)")
    check()
    A(f"s_cmp_eq_u64 s[{S_FAIL}:{S_FAIL+1}], 0")
    A(f"s_cbranch_scc1 {done}")
    A(f"s_sub_u32 s{S_CNT}, s{S_CNT}, 1")
    A(f"s_cbranch_scc0 {top}")
    A.label(done)

def poll_pre(loads, check):
    top, done = lab("poll"), lab("ok")
    A(f"s_mov_b32 s{S_CNT}, {SPIN_LIMIT}")
    A.label(top)
    A("s_waitcnt vmcnt(0)")
    check()
    A(f"s_cmp_eq_u64 s[{S_FAIL}:{S_FAIL+1}], 0")
    A(f"s_cbranch_scc1 {done}")
    loads()
    A(f"s_sub_u32 s{S_CNT}, s{S_CNT}, 1")
    A(f"s_cbranch_scc0 {top}")
    A("s_waitcnt vmcnt(0)")
    A.label(done)

def cfma_l(d, a, b, c, t):
    return [f"v_pk_fma_f32 {vr(t,2)}, {vr(a,2)}, {vr(b,2)}, {vr(c,2)} op_sel:[1,1,0] op_sel_hi:[1,0,1] neg_lo:[1,0,0]",
            f"v_pk_fma_f32 {vr(d,2)}, {vr(a,2)}, {vr(b,2)}, {vr(t,2)} op_sel:[0,0,0] op_sel_hi:[0,1,1]"]
def cmul_l(d, a, b, t):
    return [f"v_pk_mul_f32 {vr(t,2)}, {vr(a,2)}, {vr(b,2)} op_sel:[1,1] op_sel_hi:[1,0] neg_lo:[1,0]",
            f"v_pk_fma_f32 {vr(d,2)}, {vr(a,2)}, {vr(b,2)}, {vr(t,2)} op_sel:[0,0,0] op_sel_hi:[0,1,1]"]
def emit(l):
    for x in l: A(x)
def cfma(*a): emit(cfma_l(*a))
def cmul(*a): emit(cmul_l(*a))

def weave(main, fillers, every, start=0):
    for i, x in enumerate(main):
        A(x)
        if i >= start and (i - start) % every == every - 1 and fillers:
            f = fillers.pop(0)
            if isinstance(f, str): A(f)
            elif f: f()

def gemm_loop(nsteps, reads, mfmas, boundary, split, fill_gaps, fillers, on_step=None, end_barrier=False, verify=None, start=0, extra=None, nextra=None):
    for r in reads(start): A(r)
    for n in range(start, nsteps):
        if on_step: on_step(n)
        last = n == nsteps - 1
        b = None if last else boundary(n + 1)
        b2 = boundary(n + 2) if (verify and n + 2 < nsteps) else None
        if b2 is not None: A.wait_both(b2, A.lg)
        elif b is not None and not verify: A.wait_both(b, A.lg)
        else: A("s_waitcnt lgkmcnt(0)")
        if b is not None and verify: verify(n + 1)[1]()
        rs = [] if last else list(reads(n + 1))
        ms = mfmas(n)
        for g in range(4):
            A(ms[g])
            if g == 0 and b2 is not None: verify(n + 2)[0]()
            if g == 0 and b is not None and verify: verify(n + 1)[2]()
            if g == 0 and (b is not None or (last and end_barrier)): A("s_barrier")
            for _ in range(split[g]):
                if rs: A(rs.pop(0))
            if g in (fill_gaps(n) if callable(fill_gaps) else fill_gaps) and fillers:
                f = fillers.pop(0)
                if isinstance(f, str): A(f)
                elif f: f()
            if extra:
                k = nextra(n, g)
                while extra and k > 0:
                    x = extra.pop(0); A(x); k -= 1
                    if x.startswith("s_cmp") and k == 0: k = 1
        assert not rs

def dma_pieces(voff, srdreg, soff, ldsoff, pre=None, post=None, flags="", m0reg=S_M0W, same_v=False):
    def mk(p):
        def f():
            if p == 0:
                A(f"s_add_u32 m0, s{m0reg}, {ldsoff:#x}")
                if pre: pre()
            A(f"buffer_load_dwordx4 v{voff if same_v else voff+p}, s[{srdreg}:{srdreg+3}], s{soff} offen offset:{p*1024} {flags}lds")
            if p == 3 and post: post()
        return f
    return [mk(p) for p in range(4)]

def run(fs):
    for f in fs:
        if isinstance(f, str): A(f)
        else: f()

def rot_soff(dst, add, shift=None, mul=None, extra_sreg=None, plus=None, rot=S_ROT):
    A(f"s_add_u32 s{dst}, s{rot}, {add}")
    if extra_sreg is not None: A(f"s_add_u32 s{dst}, s{dst}, s{extra_sreg}")
    A(f"s_and_b32 s{dst}, s{dst}, 7")
    if shift is not None: A(f"s_lshl_b32 s{dst}, s{dst}, {shift}")
    else: A(f"s_mul_i32 s{dst}, s{dst}, {mul}")
    if plus is not None: A(f"s_add_u32 s{dst}, s{dst}, s{plus}")

def prologue():
    if OPT["stamps"] or OPT.get("cyc"): A("s_memtime s[98:99]")
    if OPT.get("fixrt") or OPT.get("probe") or OPT["stamps"]: A("s_memrealtime s[100:101]")
    A("s_cmp_ge_u32 s2, 256")
    A("s_cbranch_scc1 L_end")
    A(f"s_load_dwordx16 s[{KA}:{KA+15}], s[0:1], 0")
    A(f"s_load_dwordx16 s[{KA+16}:{KA+31}], s[0:1], 64")
    A("v_and_b32 v1, 63, v0")
    A("v_lshrrev_b32 v2, 6, v0")
    A(f"s_lshr_b32 s{S_SLOT}, s2, 3")
    A(f"v_readfirstlane_b32 s{S_WAVE}, v2")
    A(f"s_and_b32 s{ST}, s2, 3")
    A(f"s_lshl_b32 s{S_CHUNK}, s{ST}, 2")
    A(f"s_lshr_b32 s{ST+1}, s{S_SLOT}, 3")
    A(f"s_add_u32 s{S_CHUNK}, s{S_CHUNK}, s{ST+1}")
    A(f"s_and_b32 s{S_CG}, s{S_SLOT}, 7")
    A(f"s_lshl_b32 s{S_ROT}, s{ST+1}, 1")
    A(f"s_add_u32 s{S_ROT}, s{S_ROT}, s{S_CG}")
    A(f"s_and_b32 s{S_ROT}, s{S_ROT}, 7")
    rm = OPT["rotmode"]
    if rm == 8: A(f"s_mov_b32 s{S_ROT1}, s{S_ROT}")
    elif rm == 1: A(f"s_mov_b32 s{S_ROT1}, 0")
    elif rm == 3:
        A(f"s_add_u32 s{S_ROT1}, s{S_CG}, s{ST+1}")
        A(f"s_and_b32 s{S_ROT1}, s{S_ROT1}, 3")
        A(f"s_mul_i32 s{S_ROT1}, s{S_ROT1}, 3")
    else:
        A(f"s_add_u32 s{S_ROT1}, s{S_CG}, s{ST+1}")
        A(f"s_and_b32 s{S_ROT1}, s{S_ROT1}, {rm-1}")
        A(f"s_lshl_b32 s{S_ROT1}, s{S_ROT1}, {2 if rm == 2 else 1}")
    A(f"s_lshr_b32 s{S_RH}, s{S_WAVE}, 1")
    A(f"s_and_b32 s{S_CH}, s{S_WAVE}, 1")
    A(f"s_lshl_b32 s{S_M0W}, s{S_WAVE}, 12")
    slin(ST + 2, 0, (S_SLOT, 512), (S_WAVE, 128))
    A("v_and_b32 v7, 1, v0")
    A(f"v_lshl_add_u32 v7, v7, 14, s{ST+2}")
    A("v_lshrrev_b32 v3, 3, v1")
    A("v_and_b32 v4, 7, v1")
    A(f"v_and_b32 v{V_N}, 31, v1")
    A(f"v_lshrrev_b32 v{V_G}, 5, v1")
    if OPT["stamps"]: A("v_mov_b32 v255, 0")
    A("s_bitcmp0_b32 s2, 2" if OPT.get("swap") else "s_bitcmp1_b32 s2, 2")
    if OPT.get("bfirst", 1):
        A("s_cbranch_scc0 L_roleA")
        CUT["P"] = len(A.out)
        A.label("L_roleA")
    else:
        A("s_cbranch_scc1 L_roleB")

def cut(role):
    A(f"s_branch L_main{role}")
    CUT[role] = len(A.out)
    A.label(f"L_main{role}")

def code_prefetch():
    A(f"s_getpc_b64 s[{ST+4}:{ST+5}]")
    A.label(f"L_pc{ROLE[0]}")
    A(f"s_add_u32 s{ST+4}, s{ST+4}, L_main{ROLE[0]}-L_pc{ROLE[0]}")
    A(f"s_addc_u32 s{ST+5}, s{ST+5}, 0")
    A(f"global_load_dword v254, v7, s[{ST+4}:{ST+5}]")

def common_setup(role):
    srd(SWS, K_WS, 0x10000000)
    srd(SOUT, K_OUT, 0x800000)
    A(f"s_lshl_b32 s{S_M0W2}, s{S_WAVE}, 13")
    A(f"s_mov_b32 s{S_MG}, 0")
    A(f"s_mov_b32 s{S_MG+1}, -1")
    A(f"s_sub_u32 s{S_MRH}, 0, s{S_RH}")
    A(f"s_mov_b32 s{S_MRH+1}, s{S_MRH}")
    A(f"s_mov_b32 s{S_L2E}, {LOG2E:#x}")
    A(f"s_mov_b32 s{S_L2E+1}, {LOG2E:#x}")
    A(f"s_mov_b32 s{S_M16}, 0xffff0000")
    A(f"s_mov_b32 s{S_M16+1}, 0xffff0000")
    A(f"s_add_u32 s{S_GRP}, s{S_CHUNK}, {0 if role == 'A' else 16}")
    slin(P_XCCB, WS_XCC, (S_GRP, 128))
    if role == "A": A(f"s_mov_b32 s{S_MF}, 0")
    else: A(f"s_and_b32 s{S_MF}, s{S_CG}, 1")
    slin(P_OUT, 0 if role == "A" else 2048, (S_CHUNK, 1 << 19), (S_RH, 1 << 18), (S_CG, 256), (S_CH, 128), (S_MF, 1 << 17))
    A(f"s_xor_b32 s{P_OUT2}, s{P_OUT}, {1 << 17:#x}")
    slin(P_TAGSEL, 0, (S_CHUNK, 256), (S_CG, 16), (S_WAVE, 1))
    A(f"s_and_b32 s{ST}, s{S_CHUNK}, 3")
    A(f"s_lshl_b32 s{ST}, s{ST}, 1")
    A(f"s_mov_b32 s{KAP[0]}, s{S_CG}")
    for j in range(1, 8):
        A(f"s_add_u32 s{ST+1}, s{ST}, {j-1}")
        A(f"s_cmp_ge_u32 s{ST+1}, 7")
        A(f"s_addc_u32 s{ST+1}, s{ST+1}, 1")
        A(f"s_add_u32 s{ST+1}, s{ST+1}, s{S_CG}")
        A(f"s_and_b32 s{KAP[j]}, s{ST+1}, 7")
    if OPT.get("tlb", 0):
        A(f"v_and_b32 v9, 15, v{V_LANE}")
        A("v_lshlrev_b32 v9, 20, v9")
        A(f"buffer_load_dword v254, v9, s[{SWS}:{SWS+3}], 0 offen offset:2048")
        A(f"buffer_load_dword v254, v9, s[{SOUT}:{SOUT+3}], 0 offen")
        A(f"buffer_load_dword v254, v9, s[{SW2}:{SW2+3}], 0 offen")
    A(f"v_lshlrev_b32 v{V_LIN}, 4, v{V_LANE}")
    A(f"v_mov_b32 v{V_L0}, {OOB:#x}")
    A(f"v_cmp_eq_u32 vcc, 0, v{V_LANE}")
    if not HAND:
        A(f"v_lshlrev_b32 v{V_CHK}, 2, v{V_N}")
        slin(P_FLAGB, WS_FLAG, (S_GRP, 256))
        slin(P_FLW, 0, (S_CG, 16), (S_WAVE, 4), (P_FLAGB, 1))
        A(f"s_getreg_b32 s{S_XW}, hwreg(HW_REG_XCC_ID, 0, 4)")
    A(f"v_lshlrev_b32 v{V_XPO}, 2, v4")
    A(f"v_cndmask_b32_e64 v{V_L0}, v{V_L0}, 0, vcc")
    A(f"v_lshlrev_b32 v{V_OUTO}, 14, v{V_G}")
    A(f"v_lshl_add_u32 v{V_OUTO}, v{V_N}, 2, v{V_OUTO}")
    slin(P_FLAGO, 0, (S_CG, 4), (P_XCCB, 1))
    A("s_waitcnt lgkmcnt(0)")
    A(f"s_add_u32 s{S_TAG}, s{S_TAG}, 1")
    if OPT["stamps"]: A("s_mov_b32 s99, 0")
    if not HAND:
        A(f"s_lshl_b32 s{ST}, s{S_TAG}, 4")
        A(f"s_or_b32 s{S_XW}, s{S_XW}, s{ST}")
        A(f"v_mov_b32 v248, s{S_XW}")
        A(f"buffer_store_dword v248, v{V_L0}, s[{SWS}:{SWS+3}], s{P_FLAGO} offen sc1")

def lds_b128_addrs(base_reg, wave_off_sreg, const, nsets):
    A(f"v_bfe_u32 v9, v{V_N}, 1, 3")
    A(f"v_xor_b32 v9, v9, v{V_G}")
    A("v_lshlrev_b32 v9, 4, v9")
    A(f"v_lshl_add_u32 v9, v{V_N}, 7, v9")
    A(f"v_add_u32 v9, s{wave_off_sreg}, v9")
    if const: A(f"v_add_u32 v9, {const:#x}, v9")
    for ks in range(4):
        A(f"v_xor_b32 v{base_reg+ks}, {32*ks}, v9")
    for st in range(1, nsets):
        for ks in range(4): A(f"v_add_u32 v{base_reg+4*st+ks}, {st*0x10000:#x}, v{base_reg+ks}")

TCH = 250
def rdy_load(reg, dummy=9):
    A(f"buffer_load_dword v254, v{V_XPO}, s[{SWS}:{SWS+3}], s{P_FLAGB} offen offset:112 sc1")
    A(f"buffer_load_dword v{reg}, v{V_XPO}, s[{SWS}:{SWS+3}], s{P_XCCB} offen sc1")
def rdy_check(dst, reg):
    if HAND: A(f"v_xor_b32 v{dst}, s{S_TAG}, v{reg}")
    else:
        A(f"v_xor_b32 v{reg}, s{S_XW}, v{reg}")
        A(f"v_lshrrev_b32 v{dst}, 4, v{reg}")
def rdy_store():
    if HAND: A(f"buffer_store_dword v11, v{V_L0}, s[{SWS}:{SWS+3}], s{P_FLAGO} offen sc1")
def xcc_decide(reg):
    if HAND: return
    A(f"v_cmp_ne_u32 vcc, 0, v{reg}")
    A("s_cmp_lg_u64 vcc, 0")
    A(f"s_cselect_b32 s{S_SLOW}, 1, 0")
def flag_store(ph=0):
    slow, join = lab("slow"), lab("join")
    A(f"s_cmp_lg_u32 s{S_SLOW}, 0")
    A(f"s_cbranch_scc1 {slow}")
    A(f"buffer_store_dword v11, v{V_L0}, s[{SWS}:{SWS+3}], s{P_FLW} offen offset:{ph*128}")
    A.label(join)
    def later():
        A.label(slow)
        A(f"buffer_store_dword v11, v{V_L0}, s[{SWS}:{SWS+3}], s{P_FLW} offen offset:{ph*128} sc1")
        A(f"s_branch {join}")
    DEFER.append(later)
def flag_load(ph):
    A(f"buffer_load_dword v13, v{V_CHK}, s[{SWS}:{SWS+3}], s{P_FLAGB} offen offset:{ph*128} sc1")
def flag_cmp():
    A(f"v_cmp_ne_u32 s[{S_FAIL}:{S_FAIL+1}], s{S_TAG}, v13")
def flag_poll(ph=0):
    poll(lambda: flag_load(ph), flag_cmp)
def flag_check(ph):
    slow, back = lab("fslow"), lab("fback")
    flag_cmp()
    A(f"s_cmp_lg_u64 s[{S_FAIL}:{S_FAIL+1}], 0")
    A(f"s_cbranch_scc1 {slow}")
    A.label(back)
    def later():
        A.label(slow)
        A.hist = []
        flag_poll(ph)
        A(f"s_branch {back}")
    DEFER.append(later)

DEFER = []
def make_verify(pieces, slot, second):
    retry, back = lab("retry"), lab("back")
    def reads():
        A(f"v_add_u32 v9, {slot*SLOT:#x}, v{V_CHK}")
        A("ds_read_b32 v13, v9")
        A(f"ds_read_b32 v14, v9 offset:{second}")
    def cmp():
        A("v_max_u32 v13, v13, v14")
        A("v_cmp_eq_u32 vcc, -1, v13")
    def branch():
        A("s_cmp_lg_u64 vcc, 0")
        A(f"s_cbranch_scc1 {retry}")
        A.label(back)
    def later():
        top, done = lab("rl"), lab("rd")
        A.label(retry)
        A.hist = []
        A(f"s_mov_b32 s{S_SM0}, m0")
        A(f"s_mov_b32 s{S_CNT}, {SPIN_LIMIT}")
        A.label(top)
        run(pieces(S_RS))
        A("s_waitcnt vmcnt(0)")
        A("ds_read_b32 v13, v9")
        A(f"ds_read_b32 v14, v9 offset:{second}")
        A("s_waitcnt lgkmcnt(0)")
        cmp()
        A("s_cmp_eq_u64 vcc, 0")
        A(f"s_cbranch_scc1 {done}")
        A(f"s_sub_u32 s{S_CNT}, s{S_CNT}, 1")
        A(f"s_cbranch_scc0 {top}")
        A.label(done)
        if OPT["stamps"]:
            A(f"s_sub_u32 s{S_CNT}, {SPIN_LIMIT + 1}, s{S_CNT}")
            A(f"s_add_u32 s99, s99, s{S_CNT}")
        A(f"s_mov_b32 m0, s{S_SM0}")
        A(f"s_branch {back}")
    DEFER.append(later)
    return reads, cmp, branch

def tag_update(role):
    skip = lab("notag")
    A(f"s_cmp_eq_u32 s{P_TAGSEL}, {(15 if role == 'A' else 0) << 8}")
    A(f"s_cbranch_scc0 {skip}")
    A(f"buffer_store_dword v11, v{V_L0}, s[{SWS}:{SWS+3}], 0 offen offset:{WS_TAGA if role == 'A' else WS_TAGB} sc1")
    A.label(skip)

def out_stores(acc, ph):
    def mk(r):
        def f():
            row = 8 * (r >> 2) + (r & 3)
            A(f"s_add_u32 s{ST+1}, s{P_OUT+ph}, {row*4096}")
            A(f"buffer_store_dword v{acc+16*ph+r}, v{V_OUTO}, s[{SOUT}:{SOUT+3}], s{ST+1} offen {OUTF}")
        return f
    return [mk(r) for r in range(16)]

SCHED = {
    0: ({0: [2, 3], 1: [4], 2: [5], 3: [6], 4: [7]}, 5, {0: "all"}),
    1: ({i: [i + 2] for i in range(6)}, 6, {i: "front" for i in range(6)}),
    2: ({0: [2], 1: [3], 2: [4], 3: [5, 6], 4: [7]}, 5, {3: "all"}),
    3: ({0: [2], 1: [3], 2: [4, 5], 3: [6], 4: [7]}, 5, {2: "all"}),
    4: ({0: [2], 1: [3], 2: [4], 3: [5], 4: [6], 5: [7]}, 6, {2: "front", 3: "front", 4: "front", 5: "front"}),
    5: ({0: [2], 1: [3, 4], 2: [5], 3: [6], 4: [7]}, 5, {1: "all"}),
    6: ({i: [i + 3] for i in range(5)}, 5, {}),
    7: ({i: [i + 3] for i in range(5)}, 5, {0: "front", 1: "front"}),
}[OPT.get("sched", 0)]
EARLY = OPT.get("sched", 0) >= 6
NPRE = OPT.get("npre", 4)
NX = OPT.get("nx", 5)
XST = SCHED[1]
def g1_gaps(n, busy):
    i = n >> 2
    if SCHED[2].get(i) in ("all", "front") or i in busy: return (0, 1, 2, 3)
    return (2, 3)
OUTF = {0: "sc1", 1: "sc1 nt", 2: "sc0 sc1", 3: "nt", 4: "", 5: "sc0 sc1 nt"}[OPT.get("outf", 0)]
XF = "nt " if OPT["xnt"] else ""
PLF = {0: "sc1 ", 1: "", 2: "sc0 ", 3: "nt "}[OPT.get("plf", 0)]

def role_A():
    V_AX, V_AW = 24, 32
    V_GO, V_SCW = 44, 3
    V_XF, V_WF = 48, 64
    URE, UIM = 80, 112
    ACC2 = 144
    HP = 176
    XS, DG, V_GE = 176, 192, 200
    V_PUB, V_XSO, V_HSO = 45, 46, 223
    P_MSK = P0 + 4
    C_LAM, C_M1, C_M2, C_L, C_MQ, C_LQ, C_C2 = 208, 210, 212, 214, 216, 218, 220
    C_DSK = 222
    T0 = 224
    P_SAB, P_SAO, P_XS0, P_XS1 = P0, P0 + 1, P0 + 2, P0 + 3
    code_prefetch()
    A("v_lshrrev_b32 v9, 1, v3")
    A("v_xor_b32 v9, v9, v4")
    A("v_lshlrev_b32 v9, 4, v9")
    A("v_lshrrev_b32 v10, 2, v3")
    A("v_lshlrev_b32 v10, 5, v10")
    A("v_and_b32 v11, 1, v3")
    A("v_lshl_add_u32 v10, v11, 4, v10")
    A("v_bfe_u32 v11, v3, 1, 1")
    A("v_add_u32 v10, v10, v11")
    A("v_lshl_add_u32 v10, v10, 10, v9")
    slin(ST, 0, (S_CHUNK, 1 << 17), (S_RH, 1 << 16), (S_CH, 1 << 13))
    A(f"v_add_u32 v{V_OX}, s{ST}, v10")
    A(f"v_xor_b32 v11, 64, v{V_OX}")
    A(f"v_add_u32 v{V_OX+1}, 1024, v11")
    A(f"v_add_u32 v{V_OX+2}, 2048, v{V_OX}")
    A(f"v_add_u32 v{V_OX+3}, 3072, v11")
    A("v_lshl_add_u32 v10, v3, 10, v9")
    slin(ST, 0, (S_CG, 1 << 16), (S_CH, 1 << 15))
    A(f"v_add_u32 v{V_OW}, s{ST}, v10")
    A(f"v_xor_b32 v11, 64, v{V_OW}")
    A(f"v_add_u32 v{V_OW+1}, 7168, v11")
    A(f"v_add_u32 v{V_OW+2}, {2*7168}, v{V_OW}")
    A(f"v_add_u32 v{V_OW+3}, {3*7168}, v11")
    slin(ST, 0, (S_CG, 128), (S_CH, 64))
    A(f"v_lshl_add_u32 v14, v{V_N}, 1, s{ST}")
    A(f"s_cmp_eq_u32 s{S_RH}, 0")
    A("s_waitcnt lgkmcnt(0)")
    A(f"s_cselect_b32 s{SW}, s{K_BRE}, s{K_BIM}")
    A(f"s_cselect_b32 s{SW+1}, s{K_BRE+1}, s{K_BIM+1}")
    A(f"s_cselect_b32 s{SW2}, s{K_CRE}, s{K_CIM}")
    A(f"s_cselect_b32 s{SW2+1}, s{K_CRE+1}, s{K_CIM+1}")
    A(f"s_mov_b32 s{SW+2}, 0x80000")
    A(f"s_mov_b32 s{SW+3}, 0x20000")
    stamp(1)
    A(f"s_load_dword s{S_TAG}, s[{K_WS}:{K_WS+1}], {WS_TAGA}")
    srd(SX, K_AX, 0x200000)
    tok = {}
    def g1_pieces(i):
        slot = i & 3
        return (dma_pieces(V_OW, SW, ST + 8, slot * SLOT, pre=lambda: rot_soff(ST + 8, i, shift=7, rot=S_ROT1)) +
                dma_pieces(V_OX, SX, ST + 8, slot * SLOT + 16384, post=lambda: tok.__setitem__(i, A.vm), flags=XF))
    CLDS = {1: 4 * SLOT, 2: 4 * SLOT + 16384, 0: 0, 3: 16384, 4: SLOT, 5: SLOT + 16384, 6: 2 * SLOT, 7: 2 * SLOT + 16384}
    CORD = [1, 2, 0, 3, 4, 5, 6, 7]
    def c_pieces(st):
        return dma_pieces(V_OW, SW2, ST + 9, CLDS[st], pre=lambda: A(f"s_lshl_b32 s{ST+9}, s{KAP[st]}, 7"))
    A(f"global_load_ushort v{T0}, v14, s[{K_LRE}:{K_LRE+1}]")
    A(f"global_load_ushort v{T0+1}, v14, s[{K_LIM}:{K_LIM+1}]")
    A(f"global_load_ushort v{T0+2}, v14, s[{K_LDT}:{K_LDT+1}]")
    A(f"global_load_ushort v{C_DSK}, v14, s[{K_DSK}:{K_DSK+1}]")
    tok_small = A.vm
    run(g1_pieces(0))
    A(f"s_mov_b32 s{SW2+2}, 0x80000")
    A(f"s_mov_b32 s{SW2+3}, 0x20000")
    late = g1_pieces(1)
    if EARLY:
        run(late[:NPRE]); late = late[NPRE:] + g1_pieces(2)
    else:
        run(late); late = []
    if OPT.get("wtouch", 0):
        slin(ST, 0, (S_CG, 1 << 16), (S_CHUNK, 4096), (S_CH, 2048))
        A(f"v_and_b32 v9, 15, v{V_LANE}")
        A("v_lshlrev_b32 v9, 7, v9")
        A(f"buffer_load_dword v254, v9, s[{SW2}:{SW2+3}], s{ST} offen")
    stamp(2)
    cut("A")
    A(f"s_lshl_b32 s{ST}, s{S_RH}, 13")
    lds_b128_addrs(V_AX, ST, 16384, 2)
    A(f"s_lshl_b32 s{ST}, s{S_CH}, 12")
    lds_b128_addrs(V_AW, ST, 0, 3)
    if OPT.get("lateset", 0): A.cap = []
    common_setup("A")
    slin(P_SAB, WS_SA, (S_CG, 8192))
    A(f"s_sub_u32 s{ST}, 15, s{S_CHUNK}")
    slin(P_SAO, 0, (ST, 512), (S_CH, 256), (P_SAB, 1))
    A(f"s_mov_b32 s{P_MSK}, 0xffffff00")
    slin(P_XS0, 0, (S_CHUNK, 1 << 17), (S_RH, 1 << 16), (S_CG, 128), (S_CH, 64), (S_MF, 32768))
    A(f"s_xor_b32 s{P_XS1}, s{P_XS0}, 32768")
    slin(P_ACTW, WS_H, (S_CHUNK, 1 << 18), (S_CG, 1 << 15), (S_WAVE, 4096))
    slin(P_ACTR, WS_H, (S_CHUNK, 1 << 18), (S_WAVE, 4096), (S_MF, 16384))
    A(f"s_xor_b32 s{P_ACTR2}, s{P_ACTR}, 16384")
    A(f"v_lshlrev_b32 v9, 11, v{V_G}")
    A(f"v_lshl_add_u32 v{V_HSO}, v{V_N}, 4, v9")
    A(f"s_add_u32 s{P_ACTW2}, s{P_ACTW}, 16384")
    clears = [f"buffer_store_dwordx4 {vr(T0+24,4)}, v{V_HSO}, s[{SWS}:{SWS+3}], s{P_ACTW} offen offset:{k*512} sc1" for k in range(8)]
    A(f"s_and_b32 s{ST}, s{S_TAG}, 0xff")
    A(f"v_mov_b32 v{V_TAG}, s{ST}")
    A(f"v_mov_b32 v11, s{S_TAG}")
    A(f"v_lshlrev_b32 v{V_XSO}, 10, v{V_N}")
    A(f"v_lshl_add_u32 v{V_XSO}, v{V_G}, 5, v{V_XSO}")
    SCR = 3 * SLOT
    slin(ST, SCR, (S_CH, 256))
    A(f"v_lshl_add_u32 v4, v{V_N}, 3, s{ST}")
    A(f"s_lshl_b32 s{ST}, s{S_RH}, 10")
    A(f"v_lshl_add_u32 v3, v{V_G}, 9, v4")
    A(f"v_add_u32 v3, s{ST}, v3")
    A(f"v_lshlrev_b32 v13, 3, v{V_N}")
    A(f"v_mov_b32 v14, {OOB:#x}")
    A(f"s_or_b64 s[{ST+2}:{ST+3}], s[{S_MG}:{S_MG+1}], s[{S_MRH}:{S_MRH+1}]")
    A(f"v_cndmask_b32_e64 v{V_PUB}, v13, v14, s[{ST+2}:{ST+3}]")
    if OPT.get("prew", 1):
        for k in range(2): A(f"v_subrev_u32 v{T0+20+k}, 1, v{V_TAG}")
        A(f"buffer_store_dwordx2 {vr(T0+20,2)}, v{V_PUB}, s[{SWS}:{SWS+3}], s{P_SAO} offen sc1")
    A(f"s_sub_u32 s{ST+4}, 16, s{S_CHUNK}")
    A(f"v_lshlrev_b32 v9, 3, v{V_G}")
    A(f"v_add_u32 v9, s{ST+4}, v9")
    A(f"s_lshl_b32 s{ST+4}, s{S_CH}, 8")
    A(f"v_add_u32 v13, s{ST+4}, v13")
    A(f"v_lshl_add_u32 v{V_GO}, v9, 9, v13")
    for i in range(8):
        A(f"v_cmp_gt_u32 vcc, {16-i}, v9")
        A(f"v_cndmask_b32_e64 v{V_GE+i}, 0, v{V_TAG}, vcc")
    A.wait_vm(tok_small)
    lre, lim, ldt = T0, T0 + 1, T0 + 2
    A(f"v_and_b32 v9, 1, v{V_N}")
    A("v_lshlrev_b32 v9, 4, v9")
    A(f"v_lshlrev_b32 v{C_DSK}, v9, v{C_DSK}")
    A(f"v_lshrrev_b32 v9, 1, v{V_N}")
    A(f"v_lshlrev_b32 v13, 3, v{V_G}")
    A("v_sub_u32 v9, v9, v13")
    for q in range(8):
        A(f"v_cmp_eq_u32 vcc, {q}, v9")
        A(f"v_cndmask_b32_e64 v{DG+q}, 0, v{C_DSK}, vcc")
    for r in (lre, lim, ldt): A(f"v_lshlrev_b32 v{r}, 16, v{r}")
    A(f"v_mul_f32 v{ldt}, s{S_L2E}, v{ldt}")
    A(f"v_exp_f32 v{ldt}, v{ldt}")
    A(f"v_cvt_pk_bf16_f32 v{ldt}, v{ldt}, v{ldt}")
    A(f"v_lshlrev_b32 v{ldt}, 16, v{ldt}")
    A(f"v_mul_f32 v{T0+4}, v{ldt}, v{lre}")
    A(f"v_mul_f32 v{T0+5}, v{ldt}, v{lim}")
    A(f"v_mul_f32 v{T0+4}, s{S_L2E}, v{T0+4}")
    A(f"v_exp_f32 v{T0+4}, v{T0+4}")
    A(f"v_mul_f32 v{T0+5}, {INV2PI:#x}, v{T0+5}")
    A(f"v_rndne_f32 v{T0+6}, v{T0+5}")
    A(f"v_sub_f32 v{T0+5}, v{T0+5}, v{T0+6}")
    A(f"v_cos_f32 v{T0+6}, v{T0+5}")
    A(f"v_sin_f32 v{T0+7}, v{T0+5}")
    A(f"v_mul_f32 v{C_LAM}, v{T0+4}, v{T0+6}")
    A(f"v_mul_f32 v{C_LAM+1}, v{T0+4}, v{T0+7}")
    A(f"v_add_f32 v{T0+4}, -1.0, v{C_LAM}")
    A(f"v_mul_f32 v{T0+5}, v{lre}, v{lre}")
    A(f"v_fmac_f32 v{T0+5}, v{lim}, v{lim}")
    A(f"v_rcp_f32 v{T0+5}, v{T0+5}")
    A(f"v_mul_f32 v{T0+6}, v{T0+4}, v{lre}")
    A(f"v_fmac_f32 v{T0+6}, v{C_LAM+1}, v{lim}")
    A(f"v_mul_f32 v{T0+7}, v{C_LAM+1}, v{lre}")
    A(f"v_fma_f32 v{T0+7}, -v{T0+4}, v{lim}, v{T0+7}")
    A(f"v_add_f32 v{T0+5}, v{T0+5}, v{T0+5}")
    A(f"v_mul_f32 v{C_C2}, v{T0+6}, v{T0+5}")
    A(f"v_mul_f32 v{C_C2+1}, v{T0+7}, v{T0+5}")
    pa, pb, tt = T0 + 8, T0 + 10, T0 + 12
    cmul(pa, C_LAM, C_LAM, tt)
    cmul(pb, pa, pa, tt)
    cmul(pa, pb, pb, tt)
    cmul(C_M1, pa, pa, tt)
    cmul(C_M2, C_M1, C_M1, tt)
    cmul(pa, C_M2, C_M2, tt)
    cmul(C_L, pa, pa, tt)
    def sel_pair(dst, src, mask):
        A(f"v_cndmask_b32_e64 v{dst}, 1.0, v{src}, s[{mask}:{mask+1}]")
        A(f"v_cndmask_b32_e64 v{dst+1}, 0, v{src+1}, s[{mask}:{mask+1}]")
    sel_pair(T0 + 14, C_M2, S_MG)
    sel_pair(T0 + 16, pa, S_MRH)
    cmul(C_MQ, T0 + 14, T0 + 16, tt)
    cmul(pa, C_L, C_L, tt)
    cmul(pb, pa, pa, tt)
    cmul(pa, pb, pb, tt)
    sel_pair(C_LQ, pa, S_MG)
    SET, A.cap = (A.cap or []), None
    LATEV = [x for x in SET if x.startswith("buffer_")]
    SET = [x for x in SET if not x.startswith("buffer_")]
    stamp(3)
    run(late)
    def rd(n):
        i, ks = n >> 2, n & 3
        slot, buf = i & 3, n & 1
        s2_, off = slot >> 1, (slot & 1) * SLOT
        x = [f"ds_read_b128 {vr(V_XF+buf*8+m*4,4)}, v{V_AX+4*s2_+ks} offset:{off+m*4096}" for m in range(2)]
        w = [f"ds_read_b128 {vr(V_WF+buf*8+ri*4,4)}, v{V_AW+4*s2_+ks} offset:{off+ri*8192}" for ri in range(2)]
        return [x[0], w[0], w[1], x[1]]
    def mm(n):
        buf = n & 1
        r = []
        for m, ri in ((0, 0), (0, 1), (1, 1), (1, 0)):
            d = vr((URE, UIM)[ri] + 16 * m, 16)
            r.append(mf(d, vr(V_XF + buf * 8 + m * 4, 4), vr(V_WF + buf * 8 + ri * 4, 4), d if n else "0"))
        return r
    fill = []
    def xs_load(m, s):
        return lambda: A(f"buffer_load_dwordx4 {vr(XS+8*m+4*s,4)}, v{V_XSO}, s[{SX}:{SX+3}], s{P_XS0+m} offen offset:{16*s}")
    def on_step(n):
        i, ks = n >> 2, n & 3
        if ks == 0 and OPT.get("g1st") and i: stamp(16 + i)
        if ks == 0:
            for st in SCHED[0].get(i, []): fill.extend(g1_pieces(st))
            if i == XST:
                fill.extend(c_pieces(1) + c_pieces(2))
            elif i == XST + 1:
                fill.extend(LATEV)
                fill.extend([xs_load(m, s) for m in range(2) for s in range(2)])
                if OPT.get("ptouch", 0):
                    fill.extend([f"buffer_load_dword v254, v{V_GO+k}, s[{SWS}:{SWS+3}], s{P_SAB} offen sc1" for k in range(4)])
                    fill.append(lambda: rdy_load(254, 254))
    A.wait_vm(tok[0])
    A("s_barrier")
    stamp(4)
    gemm_loop(32, rd, mm, lambda n: tok[n >> 2] if (n & 3) == 0 else None, (2, 2, 0, 0), lambda n: g1_gaps(n, ()), fill, on_step, end_barrier=True, extra=SET, nextra=lambda n, g: NX)
    assert not SET
    assert not fill
    stamp(5)
    P = [T0, T0 + 4]
    def lam_bc(hi): return f"op_sel:[{hi},0,0] op_sel_hi:[{hi},1,1]"
    NEG = "neg_lo:[1,0,0] neg_hi:[1,0,0]"
    cur_re, cur_im = URE, UIM
    for s in range(1, 16):
        d = P[s & 1]
        A(f"v_pk_fma_f32 {vr(d,2)}, {vr(C_LAM,2)}, {vr(cur_im,2)}, {vr(URE+2*s,2)} {lam_bc(1)} {NEG}")
        A(f"v_pk_fma_f32 {vr(d+2,2)}, {vr(C_LAM,2)}, {vr(cur_re,2)}, {vr(UIM+2*s,2)} {lam_bc(1)}")
        A(f"v_pk_fma_f32 {vr(d,2)}, {vr(C_LAM,2)}, {vr(cur_re,2)}, {vr(d,2)} {lam_bc(0)}")
        A(f"v_pk_fma_f32 {vr(d+2,2)}, {vr(C_LAM,2)}, {vr(cur_im,2)}, {vr(d+2,2)} {lam_bc(0)}")
        cur_re, cur_im = d, d + 2
    A0, BQ = T0 + 8, T0 + 10
    A(f"v_fma_f32 v{BQ}, v{C_M1}, v{cur_re}, v{cur_re+1}")
    A(f"v_fma_f32 v{BQ+1}, v{C_M1}, v{cur_im}, v{cur_im+1}")
    A(f"v_fma_f32 v{BQ}, -v{C_M1+1}, v{cur_im}, v{BQ}")
    A(f"v_fma_f32 v{BQ+1}, v{C_M1+1}, v{cur_re}, v{BQ+1}")
    A(f"ds_write_b64 v3, {vr(BQ,2)}")
    A(f"v_mov_b32 v{A0}, v{cur_re}")
    A(f"v_mov_b32 v{A0+1}, v{cur_im}")
    P2, P3, SS, tt = T0 + 20, T0 + 22, T0 + 24, T0 + 28
    def c2_bc(hi, n=3):
        return f"op_sel:[{hi},0,0] op_sel_hi:[{hi},1,1]" if n == 3 else f"op_sel:[{hi},0] op_sel_hi:[{hi},1]"
    cm = []
    for s in range(16):
        re, im, t = URE + 2 * s, UIM + 2 * s, T0 + 2 + 2 * (s & 1)
        cm += [f"v_pk_mul_f32 {vr(t,2)}, {vr(C_C2,2)}, {vr(re,2)} {c2_bc(1,2)} neg_lo:[1,0] neg_hi:[1,0]",
               f"v_pk_mul_f32 {vr(re,2)}, {vr(C_C2,2)}, {vr(re,2)} {c2_bc(0,2)}",
               f"v_pk_fma_f32 {vr(re,2)}, {vr(C_C2,2)}, {vr(im,2)}, {vr(re,2)} {c2_bc(1)} {NEG}",
               f"v_pk_fma_f32 {vr(im,2)}, {vr(C_C2,2)}, {vr(im,2)}, {vr(t,2)} {c2_bc(0)} {NEG}"]
    emit(cm[:8])
    if HAND: A.wait_both(tok["clr"], A.lg)
    else: A("s_waitcnt lgkmcnt(0)")
    A("s_barrier")
    B0 = T0 + 12
    for q in range(4):
        A(f"ds_read_b64 {vr(B0+2*q,2)}, v4 offset:{q*512}")
    emit(cm[8:24])
    A("s_waitcnt lgkmcnt(0)")
    cfma(P2, C_M2, B0, B0 + 2, tt)
    cfma(P3, C_M2, P2, B0 + 4, tt)
    cfma(tt, C_M2, P3, B0 + 6, tt)
    A(f"v_and_or_b32 v{SS}, v{tt}, s{P_MSK}, v{V_TAG}")
    A(f"v_and_or_b32 v{SS+1}, v{tt+1}, s{P_MSK}, v{V_TAG}")
    A(f"buffer_store_dwordx2 {vr(SS,2)}, v{V_PUB}, s[{SWS}:{SWS+3}], s{P_SAO} offen sc1")
    rdy_store()
    stamp(6)
    emit(cm[24:])
    LOC = T0 + 0
    for e in range(2):
        A(f"v_cndmask_b32_e64 v{T0+2+e}, 0, v{B0+e}, s[{S_MG}:{S_MG+1}]")
        A(f"v_cndmask_b32_e64 v{T0+4+e}, v{P2+e}, v{P3+e}, s[{S_MG}:{S_MG+1}]")
        A(f"v_cndmask_b32_e64 v{LOC+e}, v{T0+2+e}, v{T0+4+e}, s[{S_MRH}:{S_MRH+1}]")
    E0, F0, E1, F1 = T0 + 12, T0 + 14, T0 + 16, T0 + 18
    cfma(P2, C_M1, LOC, A0, tt)
    cmul(F1, C_C2, P2, tt)
    cmul(F0, C_C2, LOC, tt)
    cmul(E0, C_C2, C_MQ, tt)
    cmul(E1, E0, C_M1, tt)
    V_AH = V_AX
    A(f"v_bfe_u32 v9, v{V_LANE}, 4, 1")
    A(f"v_bfe_u32 v13, v{V_LANE}, 1, 1")
    A("v_lshl_add_u32 v9, v9, 1, v13")
    A(f"v_bfe_u32 v13, v{V_LANE}, 2, 2")
    A(f"v_lshl_add_u32 v13, v{V_G}, 3, v13")
    A("v_lshlrev_b32 v14, 2, v9")
    A("v_xor_b32 v13, v13, v14")
    A("v_lshlrev_b32 v13, 4, v13")
    A("v_lshl_add_u32 v13, v9, 9, v13")
    A(f"v_and_b32 v14, 1, v{V_LANE}")
    A("v_lshl_add_u32 v13, v14, 3, v13")
    A(f"s_lshl_b32 s{ST+2}, s{S_RH}, 13")
    A(f"v_add_u32 v{V_AH}, s{ST+2}, v13")
    A(f"v_xor_b32 v{V_AH+1}, 64, v{V_AH}")
    for st in (1, 2):
        A(f"v_add_u32 v{V_AH+2*st}, {st*0x10000:#x}, v{V_AH}")
        A(f"v_add_u32 v{V_AH+2*st+1}, {st*0x10000:#x}, v{V_AH+1}")
    V_SO = T0 + 24
    for o in range(1, 4):
        A(f"v_xor_b32 v{V_SO+o}, {o*64}, v{V_HSO}")
    CPRE = 8
    A(f"s_add_u32 s{SW}, s{SWS}, s{P_SAB}")
    A(f"s_addc_u32 s{SW+1}, s{SWS+1}, 0")
    A(f"s_mov_b32 s{SW+2}, 8192")
    GD = 48
    def loads():
        for i in range(8):
            A(f"buffer_load_dwordx2 {vr(GD+2*i,2)}, v{V_GO}, s[{SW}:{SW+3}], 0 offen offset:{i*512} sc1")
        rdy_load(14)
    def check():
        A(f"v_xor_b32 v13, v{GD}, v{V_GE}")
        for i in range(1, 8):
            A(f"v_bitop3_b32 v13, v{GD+2*i}, v{V_GE+i}, v13 bitop3:0xbe")
        rdy_check(9, 14)
        A("v_and_b32 v13, 0xff, v13")
        A("v_or_b32 v13, v13, v9")
        A(f"v_cmp_ne_u32 s[{S_FAIL}:{S_FAIL+1}], 0, v13")
    CM = 2 + OPT.get("cmid", 3)
    for st in CORD[2:CM]: run(c_pieces(st))
    loads()
    tok_p = A.vm
    for st in CORD[CM:]: run(c_pieces(st))
    tok_c = A.vm
    stamp(7)
    ok = lab("ok1")
    A.wait_vm(tok_p)
    for m in range(2):
        d = vr(ACC2 + 16 * m, 16)
        A(mf(d, vr(XS + 8 * m, 4), vr(DG, 4), "0"))
    check()
    A(f"s_cmp_eq_u64 s[{S_FAIL}:{S_FAIL+1}], 0")
    A(f"s_cbranch_scc1 {ok}")
    vm_keep = A.vm
    poll(loads, check)
    A.vm = vm_keep
    A.label(ok)
    stamp(8)
    h1, h2 = T0 + 20, T0 + 22
    cur = GD + 14
    for i in range(6, -1, -1):
        d = (h1, h2)[i & 1]
        cfma(d, C_L, cur, GD + 2 * i, tt)
        cur = d
    CQ = GD
    cmul(CQ, C_LQ, cur, tt)
    for e in range(2): A(f"v_mov_b32 v{CQ+2+e}, v{CQ+e}")
    for e in range(2): A(f"v_permlane32_swap_b32 v{CQ+e}, v{CQ+2+e}")
    A(f"v_pk_add_f32 {vr(CQ,2)}, {vr(CQ,2)}, {vr(CQ+2,2)}")
    def c_reads(st):
        s2_, off = CLDS[st] >> 16, CLDS[st] & 0xffff
        r = [None] * 8
        for ks in range(4):
            for ri in range(2):
                kap = (ks >> 1) * 4 + ri * 2 + (ks & 1)
                r[kap] = f"ds_read_b128 {ar((st*8+kap)*4,4)}, v{V_AW+4*s2_+ks} offset:{off+ri*8192}"
        return r
    for m in range(2):
        d = vr(ACC2 + 16 * m, 16)
        A(mf(d, vr(XS + 8 * m + 4, 4), vr(DG + 4, 4), d))
    HR, HI = T0 + 20, T0 + 22
    A(f"v_fma_f32 v{HR}, v{E0}, v{CQ}, v{F0}")
    A(f"v_fma_f32 v{HR+1}, v{E1}, v{CQ}, v{F1}")
    A(f"v_fma_f32 v{HI}, -v{E0}, v{CQ+1}, -v{F0+1}")
    A(f"v_fma_f32 v{HI+1}, -v{E1}, v{CQ+1}, -v{F1+1}")
    A(f"v_fma_f32 v{HR}, -v{E0+1}, v{CQ+1}, v{HR}")
    A(f"v_fma_f32 v{HR+1}, -v{E1+1}, v{CQ+1}, v{HR+1}")
    A(f"v_fma_f32 v{HI}, -v{E0+1}, v{CQ}, v{HI}")
    A(f"v_fma_f32 v{HI+1}, -v{E1+1}, v{CQ}, v{HI+1}")
    pr, pi_ = HR, HI
    def hstore(ph, o):
        A(f"buffer_store_dwordx4 {vr(HP+16*ph+4*o,4)}, v{V_SO+o if o else V_HSO}, s[{SWS}:{SWS+3}], s{P_ACTW+ph} offen offset:{o*512} sc1")
    for hf in range(2):
        for s in range(8 * hf, 8 * hf + 8):
            re, im = URE + 2 * s, UIM + 2 * s
            emit([f"v_pk_fma_f32 {vr(re,2)}, {vr(C_LAM,2)}, {vr(pi_,2)}, {vr(re,2)} {lam_bc(1)}",
                  f"v_pk_fma_f32 {vr(im,2)}, {vr(C_LAM,2)}, {vr(pr,2)}, {vr(im,2)} {lam_bc(1)} {NEG}",
                  f"v_pk_fma_f32 {vr(re,2)}, {vr(C_LAM,2)}, {vr(pr,2)}, {vr(re,2)} {lam_bc(0)}",
                  f"v_pk_fma_f32 {vr(im,2)}, {vr(C_LAM,2)}, {vr(pi_,2)}, {vr(im,2)} {lam_bc(0)}"])
            pr, pi_ = re, im
        for z in range(2):
            o = 2 * z + hf
            for ri in range(2):
                U = (URE, UIM)[ri]
                for u in range(4):
                    s0 = 8 * hf + 2 * u
                    A(f"v_cvt_pk_bf16_f32 v{HP+(ri*4+o)*4+u}, v{U+2*s0+z}, v{U+2*s0+2+z}")
            for u in range(4):
                A(f"v_permlane32_swap_b32 v{HP+o*4+u}, v{HP+16+o*4+u}")
            hstore(0, o)
    tok_a = A.vm
    for o in range(4): hstore(1, o)
    tok_h = A.vm
    stamp(9)
    HS = [3, 4, 0, 1, 3, 4, 0, 1]
    def h_pieces(G):
        r = []
        for sub in range(2):
            pos, ph = SEQ[2 * G + sub]
            r += dma_pieces(V_LIN, SWS, ST + 8, HS[G] * SLOT + sub * 16384,
                            pre=lambda pos=pos, ph=ph: (A(f"s_lshl_b32 s{ST+8}, s{KAP[pos]}, 15"), A(f"s_add_u32 s{ST+8}, s{ST+8}, s{P_ACTR+ph}")),
                            post=(lambda: tok.__setitem__(("h", G), A.vm)) if sub else None, flags=PLF, same_v=True)
        return r
    assert CPRE == 8
    call = sum([c_reads(st) for st in [0, 1, 2, 3, 4, 5, 6, 7]], [])
    HF = 48
    def rd2(n):
        G, q = n >> 2, n & 3
        slot, buf = HS[G], n & 1
        r = []
        for h in range(4):
            kap = 4 * (q & 1) + h
            off = (slot & 1) * SLOT + (q >> 1) * 16384 + (kap >> 2) * 4096 + ((kap >> 1) & 1) * 2048 + (kap & 1) * 256
            for j in range(2):
                if True:
                    r.append(f"ds_read_b64_tr_b16 {vr(HF+buf*16+h*4+2*j,2)}, v{V_AH+2*(slot>>1)+j} offset:{off}")
        return r
    def mm2(n):
        buf = n & 1
        pos, ph = SEQ[n >> 1]
        d = vr(ACC2 + 16 * ph, 16)
        return [mf(d, vr(HF + buf * 16 + h * 4, 4), ar((8 * pos + 4 * (n & 1) + h) * 4, 4), d) for h in range(4)]
    xcc_decide(14)
    A.wait_vm(tok_c)
    A("s_barrier")
    slin(ST + 2, 3 * SLOT, (S_WAVE, 4096))
    A(f"v_add_u32 v{V_GO}, s{ST+2}, v{V_HSO}")
    for o in range(1, 4): A(f"v_xor_b32 v{V_GO+o}, {o*64}, v{V_GO}")
    for p in range(8):
        A(f"ds_write_b128 v{V_GO+(p&3)}, {vr(HP+4*p,4)} offset:{(p>>2)*16384+(p&3)*512}")
    emit(call[:8])
    A("s_waitcnt lgkmcnt(0)")
    A("s_barrier")
    cf = call[8:32]
    gemm_loop(4, rd2, mm2, lambda n: None, (3, 3, 2, 0), (2, 3), cf)
    A.wait_vm(tok_a)
    flag_store(0)
    emit(cf)
    A("s_waitcnt lgkmcnt(0)")
    A("s_barrier")
    stamp(10)
    A.wait_vm(tok_h)
    flag_store(1)
    flag_poll(0)
    stamp(11)
    weave(call[32:], h_pieces(1) + h_pieces(2), 2)
    stamp(12)
    fill = []
    h4 = h_pieces(4)
    def on_step2(n):
        G, q = n >> 2, n & 3
        if n == 7:
            A.wait_vm(tok["fb"])
            flag_check(1)
        if q == 0:
            if G == 1: fill.extend([lambda: (flag_load(1), tok.__setitem__("fb", A.vm))] + h_pieces(3) + h4[:4])
            elif G == 2: fill.extend(h4[4:] + h_pieces(5))
            elif G + 3 < 8: fill.extend(h_pieces(G + 3))
            elif G == 5: fill.extend(out_stores(ACC2, 0))
    A.wait_both(tok[("h", 1)], A.lg)
    A("s_barrier")
    stamp(13)
    gemm_loop(32, rd2, mm2, lambda n: tok[("h", n >> 2)] if (n & 3) == 0 else None, (3, 3, 2, 0),
              lambda n: (0, 1, 2, 3) if n < 12 else (2, 3), fill, on_step2, start=4)
    assert not fill
    stamp(14)
    run(out_stores(ACC2, 1))
    tag_update("A")
    stamp(15)
    finish()

def role_B():
    V_OO = 24
    V_AX, V_AT = 28, 36
    V_SW, V_SR, V_P2, V_G2B, V_PB0, V_PB1, V_G1, V_GZ, V_G2, V_P2Z = 39, 40, 41, 42, 43, 44, 45, 46, 47, 253
    S_WPH, V_WPO = P0 + 12, 252
    IDF = 240
    V_WF = 48
    KACC, VACC, PK, KV, WPH = 64, 96, 128, 192, 224
    T0 = 232
    P_P1O, P_P1G, P_P2O, P_P2G, P_MSK = P0 + 1, P0 + 2, P0 + 8, P0 + 9, P0 + 10
    S_PART = 57
    NS = 16 if OPT.get('p16', 1) else 32
    WPS = OPT.get('wps', 1)
    QE = OPT.get('qe', 0)
    code_prefetch()
    A("v_lshrrev_b32 v9, 1, v3")
    A("v_xor_b32 v9, v9, v4")
    A("v_lshlrev_b32 v9, 4, v9")
    A("v_lshl_add_u32 v10, v3, 10, v9")
    slin(ST, 0, (S_CHUNK, 1 << 17), (S_WAVE, 1 << 15))
    A(f"v_add_u32 v{V_OX}, s{ST}, v10")
    A(f"v_xor_b32 v11, 64, v{V_OX}")
    A(f"v_add_u32 v{V_OX+1}, 7168, v11")
    A(f"v_add_u32 v{V_OX+2}, {2*7168}, v{V_OX}")
    A(f"v_add_u32 v{V_OX+3}, {3*7168}, v11")
    A("v_bfe_u32 v9, v3, 1, 1")
    A("v_lshlrev_b32 v9, 2, v9")
    A("v_xor_b32 v9, v9, v4")
    A("v_lshlrev_b32 v9, 4, v9")
    A(f"s_lshl_b32 s{ST}, s{S_CG}, 7")
    A(f"v_add_u32 v9, s{ST}, v9")
    A(f"s_lshl_b32 s{ST+1}, s{S_CH}, 5")
    A(f"v_add_u32 v10, s{ST+1}, v3")
    A("v_mul_u32_u24 v11, 3072, v10")
    A(f"v_add_u32 v{V_OW}, v11, v9")
    for p in range(1, 4): A(f"v_add_u32 v{V_OW+p}, {p*(8*3072-1024)}, v{V_OW}")
    A(f"v_lshl_add_u32 v{V_OO}, v10, 10, v9")
    slin(S_PART, 1024, (S_RH, 1024))
    A("s_waitcnt lgkmcnt(0)")
    srd(SW, K_WQKV, 0x180000)
    stamp(1)
    A(f"s_load_dword s{S_TAG}, s[{K_WS}:{K_WS+1}], {WS_TAGB}")
    srd(SX, K_BX, 0x200000)
    tok = {}
    def g1_pieces(i):
        slot = i & 3
        return (dma_pieces(V_OW, SW, ST + 8, slot * SLOT, pre=lambda: rot_soff(ST + 8, i, mul=196608, plus=S_PART, rot=S_ROT1)) +
                dma_pieces(V_OX, SX, ST + 10, slot * SLOT + 16384, pre=lambda: rot_soff(ST + 10, i, shift=7, rot=S_ROT1),
                           post=lambda: tok.__setitem__(i, A.vm), flags=XF))
    QSLOT = [4, 0]; OSLOT = [1, 2]
    def q_pieces(st):
        return dma_pieces(V_OW, SW, ST + 9, QSLOT[st >> 1] * SLOT + (st & 1) * 16384,
                          pre=lambda: rot_soff(ST + 9, 2 * st, mul=196608, extra_sreg=S_RH, rot=S_ROT1), post=lambda: tok.__setitem__(("q", st), A.vm))
    OPAIR = [(1, 2), (0, 3), (4, 5), (6, 7)]
    OLDS = {}
    for st_, pr_ in enumerate(OPAIR):
        for e_ in range(2): OLDS[pr_[e_]] = OSLOT[st_ >> 1] * SLOT + (st_ & 1) * 16384 + e_ * 8192
    def o_pieces(st):
        def pre():
            A(f"s_cmp_eq_u32 s{S_RH}, 0")
            A(f"s_cselect_b32 s{ST+9}, s{KAP[OPAIR[st][0]]}, s{KAP[OPAIR[st][1]]}")
            A(f"s_lshl_b32 s{ST+9}, s{ST+9}, 16")
        return dma_pieces(V_OO, SW2, ST + 9, OSLOT[st >> 1] * SLOT + (st & 1) * 16384, pre=pre)
    run(g1_pieces(0))
    WPL = 4 * SLOT
    srd(SW2, K_WPHI, 0x4000)
    A(f"v_lshlrev_b32 v{V_LIN}, 4, v{V_LANE}")
    slin(ST, 0, (S_CG, 2048), (S_CH, 1024))
    A(f"s_lshl_b32 s{ST+1}, s{S_WAVE}, 10")
    A(f"s_add_u32 m0, s{ST+1}, {WPL:#x}")
    A(f"buffer_load_dwordx4 v{V_LIN}, s[{SW2}:{SW2+3}], s{ST} offen lds")
    late = g1_pieces(1)
    if EARLY:
        run(late[:NPRE]); late = late[NPRE:] + g1_pieces(2)
    else:
        run(late); late = []
    if OPT.get("wtouch", 0):
        slin(ST, 0, (S_CHUNK, 32), (S_WAVE, 8))
        A(f"v_add_u32 v9, s{ST}, v4")
        A("v_mul_u32_u24 v10, 3072, v9")
        A("v_lshlrev_b32 v9, 10, v9")
        A(f"s_lshl_b32 s{ST}, s{S_CG}, 7")
        A(f"buffer_load_dword v254, v10, s[{SW}:{SW+3}], s{ST} offen")
        A(f"buffer_load_dword v254, v9, s[{SW2}:{SW2+3}], s{ST} offen")
    stamp(2)
    cut("B")
    A(f"s_lshl_b32 s{ST}, s{S_RH}, 13")
    lds_b128_addrs(V_AX, ST, 16384, 2)
    A(f"v_bfe_u32 v9, v{V_LANE}, 4, 1")
    A(f"v_bfe_u32 v13, v{V_LANE}, 1, 1")
    A("v_lshl_add_u32 v10, v9, 1, v13")
    A(f"v_bfe_u32 v13, v{V_LANE}, 3, 1")
    A(f"v_xor_b32 v13, s{S_CH}, v13")
    A("v_lshl_add_u32 v9, v13, 2, v10")
    A("v_lshlrev_b32 v9, 4, v9")
    A(f"v_and_b32 v10, 1, v{V_LANE}")
    A("v_lshl_add_u32 v9, v10, 3, v9")
    A(f"v_bfe_u32 v14, v{V_LANE}, 2, 2")
    A(f"v_lshl_add_u32 v13, v{V_G}, 3, v14")
    A(f"v_lshl_add_u32 v{V_AT}, v13, 7, v9")
    A(f"v_add_u32 v{V_AT+1}, 0x10000, v{V_AT}")
    A(f"v_add_u32 v{V_AT+2}, 0x20000, v{V_AT}")
    if OPT.get("lateset", 0): A.cap = []
    srd(SW2, K_WO, 0x80000)
    common_setup("B")
    for p in range(1, 4): A(f"v_add_u32 v{V_OO+p}, {p*7168}, v{V_OO}")
    A(f"v_bfe_u32 v9, v{V_LANE}, 4, 1")
    A(f"v_bfe_u32 v13, v{V_LANE}, 1, 1")
    A("v_lshl_add_u32 v9, v9, 1, v13")
    A("v_lshlrev_b32 v9, 3, v9")
    A(f"v_bfe_u32 v13, v{V_LANE}, 2, 2")
    A(f"v_lshl_add_u32 v13, v{V_G}, 2, v13")
    A("v_lshl_add_u32 v9, v13, 5, v9")
    slin(ST, WPL, (S_WAVE, 1024))
    A(f"v_add_u32 v{V_WPO}, s{ST}, v9")
    if NS == 32: slin(ST, 0, (S_CG, 512), (S_CH, 256), (S_CHUNK, 2), (S_RH, 1))
    else:
        slin(ST, 0, (S_CG, 256), (S_CH, 128), (S_RH, 32), (S_CHUNK, 1))
    slin(P_P1O, WS_P1, (ST, 640))
    slin(ST, 0, (S_CG, 16), (S_CHUNK, 1))
    slin(P_P2O, WS_P2, (ST, 640))
    slin(P_P1G, WS_P1, (ST, NS * 640))
    for k in range(1, 4): A(f"s_add_u32 s{P_P1G+k}, s{P_P1G}, {8*k*640}")
    slin(ST, 0, (S_CG, 16), (S_CH, 8))
    slin(P_P2G, WS_P2, (ST, 640))
    A(f"s_mov_b32 s{P_MSK}, 0xffffff00")
    slin(P_ACTW, WS_O, (S_CHUNK, 1 << 17), (S_CG, 1 << 14), (S_RH, 1 << 12), (S_CH, 1 << 11))
    A(f"s_add_u32 s{P_ACTW2}, s{P_ACTW}, 8192")
    slin(P_ACTR, WS_O, (S_CHUNK, 1 << 17), (S_MF, 8192), (S_WAVE, 2048))
    A(f"s_lshl_b32 s{S_M0W2}, s{S_WAVE}, 11")
    A(f"s_xor_b32 s{P_ACTR2}, s{P_ACTR}, 8192")
    clears = [f"buffer_store_dwordx4 {vr(T0+16,4)}, v{V_LIN}, s[{SWS}:{SWS+3}], s{P_ACTW+(k>>1)} offen offset:{(k&1)*1024} sc1" for k in range(4)]
    A(f"s_and_b32 s{ST}, s{S_TAG}, 0xff")
    A(f"v_mov_b32 v{V_TAG}, s{ST}")
    A(f"v_mov_b32 v11, s{S_TAG}")
    A(f"v_and_b32 v9, 1, v{V_N}")
    A("v_lshlrev_b32 v9, 4, v9")
    A("v_mov_b32 v13, 0x3f80")
    A("v_lshlrev_b32 v13, v9, v13")
    A(f"v_lshrrev_b32 v9, 1, v{V_N}")
    A(f"v_lshlrev_b32 v14, 3, v{V_G}")
    A("v_sub_u32 v9, v9, v14")
    for q in range(8):
        A(f"v_cmp_eq_u32 vcc, {q}, v9")
        A(f"v_cndmask_b32_e64 v{IDF+q}, 0, v13, vcc")
    A(f"v_and_b32 v9, 15, v{V_LANE}")
    A("v_cmp_gt_u32 vcc, 4, v9")
    A("v_lshlrev_b32 v9, 4, v9")
    A(f"v_lshl_add_u32 v13, v{V_G}, 6, v9")
    A("v_add_u32 v13, 512, v13")
    A(f"v_lshl_add_u32 v9, v{V_G}, 8, v9")
    A(f"v_mov_b32 v14, {OOB:#x}")
    A("v_cndmask_b32 v13, v14, v13, vcc")
    A(f"v_cndmask_b32_e64 v{V_PB0}, v9, v13, s[{S_M16}:{S_M16+1}]")
    A(f"v_cndmask_b32_e64 v{V_PB1}, v13, v9, s[{S_M16}:{S_M16+1}]")
    A(f"v_cndmask_b32_e64 v13, v13, v14, s[{S_M16}:{S_M16+1}]")
    A(f"s_cmp_eq_u32 s{S_WAVE}, 0")
    A(f"s_cselect_b64 vcc, -1, 0")
    A(f"v_cndmask_b32 v{V_P2Z}, v14, v13, vcc")
    A(f"v_and_b32 v9, 7, v{V_LANE}")
    A(f"s_lshl_b32 s{ST}, s{S_WAVE}, 7")
    A(f"v_lshl_add_u32 v9, v9, 4, s{ST}")
    A(f"v_lshrrev_b32 v13, 3, v{V_LANE}")
    A("v_mul_u32_u24 v13, 640, v13")
    A(f"v_add_u32 v{V_G1}, v9, v13")
    A(f"v_cmp_gt_u32 vcc, 8, v{V_LANE}")
    A(f"v_and_b32 v13, {NS-1}, v{V_N}")
    A(f"v_mul_u32_u24 v{V_GZ}, 640, v13")
    if NS == 16:
        slin(ST, 3 * SLOT, (S_WAVE, 4096))
        A(f"v_add_u32 v{V_SW}, s{ST}, v{V_LIN}")
        A(f"v_xor_b32 v{V_SR}, 0x2000, v{V_SW}")
    A(f"v_lshl_add_u32 v{V_GZ}, v{V_G}, 6, v{V_GZ}")
    A(f"v_cndmask_b32 v{V_P2}, v14, v9, vcc")
    A(f"v_bfe_u32 v9, v{V_N}, 2, 1")
    A("v_lshlrev_b32 v9, 3, v9")
    A(f"v_bfe_u32 v13, v{V_N}, 3, 1")
    A("v_lshl_add_u32 v9, v13, 2, v9")
    A(f"v_and_b32 v13, 3, v{V_N}")
    A("v_add_u32 v9, v9, v13")
    A(f"v_cndmask_b32_e64 v9, v9, 32, s[{S_M16}:{S_M16+1}]")
    A("v_lshlrev_b32 v9, 4, v9")
    A(f"v_mul_u32_u24 v13, 1280, v{V_G}")
    A(f"v_add_u32 v{V_G2}, v9, v13")
    A("v_mov_b32 v9, 0x100")
    A(f"v_cndmask_b32_e64 v9, v9, 64, s[{S_M16}:{S_M16+1}]")
    A(f"v_add_u32 v{V_G2B}, v{V_G2}, v9")
    if OPT.get("prew", 1):
        for r in range(4): A(f"v_subrev_u32 v{T0+4+r}, 1, v{V_TAG}")
        A(f"buffer_store_dwordx4 {vr(T0+4,4)}, v{V_P2Z}, s[{SWS}:{SWS+3}], s{P_P2O} offen sc1")
        A(f"buffer_store_dwordx4 {vr(T0+4,4)}, v{V_P2}, s[{SWS}:{SWS+3}], s{P_P2O} offen sc1")
    A("v_mov_b32 v3, 0x3f803f80")
    A(f"v_bfe_u32 v4, v{V_LANE}, 2, 1")
    A("v_mul_u32_u24 v4, 0x8000, v4")
    A("v_lshl_or_b32 v4, v4, 16, v4")
    SET, A.cap = (A.cap or []), None
    LATEV = [x for x in SET if x.startswith("buffer_")]
    SET = [x for x in SET if not x.startswith("buffer_")]
    stamp(3)
    run(late)
    def trfrag(dst, ldsoff, kind="v"):
        s_, off = ldsoff >> 16, ldsoff & 0xffff
        return [f"ds_read_b64_tr_b16 {vr(dst+2*j,2,kind)}, v{V_AT+s_} offset:{off+j*512}" for j in range(2)]
    def rd(n):
        i, ks = n >> 2, n & 3
        slot, buf = i & 3, n & 1
        s2_, off = slot >> 1, (slot & 1) * SLOT
        x = [f"ds_read_b128 {ar(n*8+m*4,4)}, v{V_AX+4*s2_+ks} offset:{off+m*4096}" for m in range(2)]
        w = [trfrag(V_WF + buf * 8 + part * 4, slot * SLOT + part * 8192 + ks * 2048) for part in range(2)]
        return [x[0]] + w[0] + [x[1]] + w[1]
    def mm(n):
        buf = n & 1
        r = []
        for part, m in ((0, 0), (0, 1), (1, 0), (1, 1)):
            x, w = ar(n * 8 + m * 4, 4), vr(V_WF + buf * 8 + part * 4, 4)
            d = vr((KACC, VACC)[part] + 16 * m, 16)
            r.append(mf(d, w, x, d if n else "0") if part == 0 else mf(d, x, w, d if n else "0"))
        return r
    fill = []
    def on_step(n):
        i, ks = n >> 2, n & 3
        if ks == 0 and OPT.get("g1st") and i: stamp(16 + i)
        if ks == 0:
            for st in SCHED[0].get(i, []): fill.extend(g1_pieces(st))
            if i == 5: fill.extend(q_pieces(0) + LATEV + (q_pieces(1) if QE == 1 else []))
            if i == 6:
                fill.extend((q_pieces(2) + q_pieces(3)) if QE == 1 else o_pieces(0))
                if OPT.get("ptouch", 0):
                    fill.extend([f"buffer_load_dword v254, v{V_G1}, s[{SWS}:{SWS+3}], s{P_P1G+k} offen sc1" for k in range(4)])
                    fill.append(f"buffer_load_dword v254, v{V_GZ}, s[{SWS}:{SWS+3}], s{P_P1G} offen sc1")
                    fill.extend([f"buffer_load_dword v254, v{V_G2}, s[{SWS}:{SWS+3}], s{P_P2G} offen offset:{(hh*4+jp)*640} sc1" for hh in range(2) for jp in range(2)])
                    fill.append(lambda: rdy_load(254, 254))
            elif i == 7:
                fill.extend(o_pieces(0) if QE == 1 else o_pieces(1))
                fill.append(lambda: emit([f"v_xor_b32 v{WPH+r}, v4, v{WPH+r}" for r in range(4)]))
                fill.append(lambda: emit([f"v_xor_b32 v{WPH+r}, v4, v{WPH+r}" for r in range(4, 8)]))
        if n == 17:
            emit([f"ds_read_b64_tr_b16 {vr(WPH+4*hh+2*j,2)}, v{V_WPO} offset:{hh*512+j*256}" for hh in range(2) for j in range(2)])
    A.wait_vm(tok[0])
    A("s_barrier")
    stamp(4)
    gemm_loop(32, rd, mm, lambda n: tok[n >> 2] if (n & 3) == 0 else None, (3, 3, 0, 0), lambda n: g1_gaps(n, ()), fill, on_step, end_barrier=True, extra=SET, nextra=lambda n, g: NX)
    assert not SET
    assert not fill
    stamp(5)
    def feat(acc):
        for m in range(2):
            for u in range(8):
                A(f"v_cvt_pk_bf16_f32 v{acc+16*m+u}, v{acc+16*m+2*u}, v{acc+16*m+2*u+1}")
            for hh in range(2):
                A(mf(vr(PK + (m * 2 + hh) * 16, 16), vr(WPH + 4 * hh, 4), vr(acc + 16 * m + 4 * hh, 4), "0"))
    def softmax_l(x, dst):
        mx, sm = T0, T0 + 2
        l = [f"v_max3_f32 v{mx}, v{x}, v{x+1}, v{x+2}"]
        for u in range(3, 15, 2):
            l.append(f"v_max3_f32 v{mx}, v{mx}, v{x+u}, v{x+u+1}")
        l.append(f"v_max_f32 v{mx}, v{mx}, v{x+15}")
        l.append(f"v_mul_f32 v{mx}, s{S_L2E}, v{mx}")
        for u in range(8):
            l.append(f"v_pk_fma_f32 {vr(x+2*u,2)}, {vr(x+2*u,2)}, s[{S_L2E}:{S_L2E+1}], {vr(mx,2)} op_sel_hi:[1,1,0] neg_lo:[0,0,1] neg_hi:[0,0,1]")
        for u in range(16):
            l.append(f"v_exp_f32 v{x+u}, v{x+u}")
        l.append(f"v_pk_add_f32 {vr(sm,2)}, {vr(x,2)}, {vr(x+2,2)}")
        for u in range(2, 8):
            l.append(f"v_pk_add_f32 {vr(sm,2)}, {vr(sm,2)}, {vr(x+2*u,2)}")
        l.append(f"v_add_f32 v{sm}, v{sm}, v{sm+1}")
        l.append(f"v_rcp_f32 v{sm}, v{sm}")
        for u in range(8):
            l.append(f"v_pk_mul_f32 {vr(x+2*u,2)}, {vr(x+2*u,2)}, {vr(sm,2)} op_sel_hi:[1,0]")
        for u in range(8):
            l.append(f"v_cvt_pk_bf16_f32 v{dst+u}, v{x+2*u}, v{x+2*u+1}")
        return l
    feat(KACC)
    for m in range(2):
        for u in range(8):
            A(f"v_cvt_pk_bf16_f32 v{VACC+16*m+u}, v{VACC+16*m+2*u}, v{VACC+16*m+2*u+1}")
    for m in range(2):
        for u in range(8):
            A(f"v_cndmask_b32_e64 v{VACC+16*m+8+u}, v3, v{VACC+16*m+u}, s[{S_M16}:{S_M16+1}]")
            A(f"v_cndmask_b32_e64 v{VACC+16*m+u}, v{VACC+16*m+u}, v3, s[{S_M16}:{S_M16+1}]")
    nbstamp(0)
    PH = [KACC + 8, KACC + 24]
    ID = T0 + 8
    def tmm(blk):
        d = vr(PK + 16 * blk, 16)
        return [mf(d, vr(PH[blk & 1] + 4 * jp, 4), vr(ID + 4 * jp, 4), d if jp else "0") for jp in range(2)]
    def tcvt(blk):
        t = PK + 16 * blk
        return [f"v_cvt_pk_bf16_f32 v{t+u}, v{t+2*u}, v{t+2*u+1}" for u in range(8)]
    def kvmm(blk):
        m, hh = blk >> 1, blk & 1
        d = vr(KV + 16 * hh, 16)
        return [mf(d, vr(PK + 16 * blk + 4 * mm_, 4), vr(VACC + 16 * m + 8 * hh + 4 * mm_, 4), d if (m or mm_) else "0") for mm_ in range(2)]
    for blk in range(4):
        l = softmax_l(PK + blk * 16, PH[blk & 1])
        if blk:
            t, kv = tmm(blk - 1), kvmm(blk - 1)
            l = l[:17] + [t[0]] + l[17:21] + [t[1]] + l[21:33] + tcvt(blk - 1) + l[33:50] + [kv[0]] + l[50:58] + [kv[1]]
        emit(l)
        if blk < 3 and not QE: run(q_pieces(blk + 1))
        nbstamp(1 + blk)
    TS = 4 if OPT.get("tag1", 1) else 1
    def tagit(r, n):
        for e in range(0, n, TS):
            A(f"v_and_or_b32 v{r+e}, v{r+e}, s{P_MSK}, v{V_TAG}")
    def pub(hh, oc):
        A(f"s_add_u32 s{ST+3}, s{P_P1O}, {(hh*4+oc)*32*640}")
        A(f"buffer_store_dwordx4 {vr(KV+16*hh+4*oc,4)}, v{V_PB0+hh}, s[{SWS}:{SWS+3}], s{ST+3} offen sc1")
    if NS == 32:
        emit(tmm(3))
        tagit(KV, 16)
        pub(0, 0); pub(0, 1)
        emit(tcvt(3))
        emit(kvmm(3))
        nbstamp(5)
        pub(0, 2); pub(0, 3)
        tagit(KV + 16, 16)
        for oc in range(4): pub(1, oc)
    else:
        RB = PK
        def tail(rh):
            keep, send = 8 * rh, 8 - 8 * rh
            emit(tmm(3))
            for u in range(2): A(f"ds_write_b128 v{V_SW}, {vr(KV+send+4*u,4)} offset:{u*1024}")
            emit(tcvt(3))
            emit(kvmm(3))
            for u in range(2): A(f"ds_write_b128 v{V_SW}, {vr(KV+16+send+4*u,4)} offset:{(2+u)*1024}")
            A("s_waitcnt lgkmcnt(0)")
            A("s_barrier")
            for u in range(4): A(f"ds_read_b128 {vr(RB+4*u,4)}, v{V_SR} offset:{u*1024}")
            for hh in range(2):
                for jj in range(2):
                    r = KV + 16 * hh + keep + 4 * jj
                    A(f"s_add_u32 s{ST+3}, s{P_P1O}, {(hh*4+jj)*16*640}")
                    A(f"s_waitcnt lgkmcnt({3-2*hh-jj})")
                    for u in range(2):
                        A(f"v_pk_add_f32 {vr(r+2*u,2)}, {vr(r+2*u,2)}, {vr(RB+8*hh+4*jj+2*u,2)}")
                    tagit(r, 4)
                    A(f"buffer_store_dwordx4 {vr(r,4)}, v{V_PB0+hh}, s[{SWS}:{SWS+3}], s{ST+3} offen sc1")
        l1, l2 = lab("rh1"), lab("rhj")
        A(f"s_cmp_lg_u32 s{S_RH}, 0")
        A(f"s_cbranch_scc1 {l1}")
        st_ = (A.vm, A.lg, list(A.hist))
        tail(0)
        A(f"s_branch {l2}")
        A.label(l1)
        A.vm, A.lg, A.hist = st_[0], st_[1], list(st_[2])
        tail(1)
        A.label(l2)
    QACC = KACC
    def qaddr(n):
        i, ks = n >> 2, n & 3
        return QSLOT[i >> 2] * SLOT + (i & 3) * 8192 + ks * 2048
    def rdq(n):
        return trfrag(V_WF + (n & 1) * 8, qaddr(2 * n)) + trfrag(V_WF + (n & 1) * 8 + 4, qaddr(2 * n + 1))
    def mmq(n):
        r = []
        for h in range(2):
            for m in range(2):
                d = vr(QACC + 16 * m, 16)
                r.append(mf(d, vr(V_WF + (n & 1) * 8 + 4 * h, 4), ar((2 * n + h) * 8 + m * 4, 4), d if (n or h) else "0"))
        return r
    stamp(6)
    nbflush()
    GD = VACC
    GZ = GD + 16
    g1l = [f"buffer_load_dwordx4 {vr(GD+4*k,4)}, v{V_G1}, s[{SWS}:{SWS+3}], s{P_P1G+k} offen sc1" for k in range(NS // 8)]
    g1l.append(f"buffer_load_dwordx4 {vr(GZ,4)}, v{V_GZ}, s[{SWS}:{SWS+3}], s{P_P1G} offen offset:512 sc1")
    S_D1, S_RET = P0 + 11, ST + 6
    A(f"s_mov_b32 s{S_D1}, 0")
    def try1a(block=False):
        skip = lab("sk")
        if block:
            A(f"s_cmp_lg_u32 s{S_D1}, 0")
        else:
            A(f"s_getreg_b32 s{ST+5}, hwreg(HW_REG_IB_STS, 0, 4)")
            A(f"s_or_b32 s{ST+5}, s{ST+5}, s{S_D1}")
        A(f"s_cbranch_scc1 {skip}")
        A(f"s_call_b64 s[{S_RET}:{S_RET+1}], L_try1a")
        A.label(skip)
    def sub_try1a():
        A.label("L_try1a")
        A.hist = []
        A("s_waitcnt vmcnt(0)")
        A(f"v_xor_b32 v13, v{GD}, v{V_TAG}")
        for s in [x for x in range(TS, 20, TS) if x < NS // 2 or x >= 16]:
            A(f"v_bitop3_b32 v13, v{GD+s}, v{V_TAG}, v13 bitop3:0xbe")
        A("v_and_b32 v13, 0xff, v13")
        A(f"v_cmp_ne_u32 s[{S_FAIL}:{S_FAIL+1}], 0, v13")
        A(f"s_cmp_eq_u64 s[{S_FAIL}:{S_FAIL+1}], 0")
        A("s_cbranch_scc1 L_try1a_ok")
        emit(g1l)
        A(f"s_setpc_b64 s[{S_RET}:{S_RET+1}]")
        A.label("L_try1a_ok")
        DPP = "row_mask:0xf bank_mask:0xf"
        A(f"v_permlane16_swap_b32 v{GZ}, v{GZ+2}")
        A(f"v_permlane16_swap_b32 v{GZ+1}, v{GZ+3}")
        if NS == 32:
            for u in range(0, 8, 2):
                A(f"v_pk_add_f32 {vr(GD+u,2)}, {vr(GD+u,2)}, {vr(GD+8+u,2)}")
            A(f"v_pk_add_f32 {vr(GZ,2)}, {vr(GZ,2)}, {vr(GZ+2,2)}")
        for u in range(0, 4, 2):
            A(f"v_pk_add_f32 {vr(GD+u,2)}, {vr(GD+u,2)}, {vr(GD+4+u,2)}")
        def zror(k):
            for e in range(2): A(f"v_add_f32_dpp v{GZ+e}, v{GZ+e}, v{GZ+e} row_ror:{k} {DPP}")
        zror(1)
        A(f"v_permlane32_swap_b32 v{GD}, v{GD+1}")
        A(f"v_permlane32_swap_b32 v{GD+2}, v{GD+3}")
        zror(2)
        A(f"v_add_f32 v{GD}, v{GD}, v{GD+1}")
        A(f"v_add_f32 v{GD+2}, v{GD+2}, v{GD+3}")
        zror(4)
        A(f"v_permlane16_swap_b32 v{GD}, v{GD+2}")
        A(f"v_add_f32 v{GD}, v{GD}, v{GD+2}")
        zror(8)
        A(f"v_add_f32_dpp v{GD}, v{GD}, v{GD} row_ror:8 {DPP}")
        for e in range(2): A(f"v_and_or_b32 v{GZ+e}, v{GZ+e}, s{P_MSK}, v{V_TAG}")
        A(f"v_and_or_b32 v{GD}, v{GD}, s{P_MSK}, v{V_TAG}")
        for e in range(2): A(f"v_mov_b32 v{GZ+2+e}, v{GZ+e}")
        A(f"v_mov_b32 v{GD+1}, v{GD}")
        A(f"v_permlane16_swap_b32 v{GZ}, v{GZ+2}")
        A(f"v_permlane16_swap_b32 v{GZ+1}, v{GZ+3}")
        A(f"v_permlane32_swap_b32 v{GD}, v{GD+1}")
        A(f"buffer_store_dwordx4 {vr(GZ,4)}, v{V_P2Z}, s[{SWS}:{SWS+3}], s{P_P2O} offen sc1")
        A(f"v_mov_b32 v{GD+2}, v{GD}")
        A(f"v_mov_b32 v{GD+3}, v{GD+1}")
        A(f"v_permlane16_swap_b32 v{GD}, v{GD+2}")
        A(f"v_permlane16_swap_b32 v{GD+1}, v{GD+3}")
        A(f"buffer_store_dwordx4 {vr(GD,4)}, v{V_P2}, s[{SWS}:{SWS+3}], s{P_P2O} offen sc1")
        stamp(8)
        A(f"s_mov_b32 s{S_D1}, 1")
        A(f"s_setpc_b64 s[{S_RET}:{S_RET+1}]")
    DEFER.append(sub_try1a)
    fill = []
    G1AT = OPT.get('g1at', 6)
    def on_stepq(n):
        if n == 0: fill.extend((o_pieces(1) if QE == 1 else (q_pieces(2) + q_pieces(3) if QE == 2 else [])) + o_pieces(2) + o_pieces(3) + [lambda: tok.__setitem__('wo', A.vm)])
        if n == G1AT: fill.extend(g1l + [None])
        if n >= G1AT + 4: fill.extend([None, try1a])
    if QE == 2:
        run(q_pieces(1))
        A.wait_vm(tok[("q", 0)])
        qb = lambda n: tok[("q", n >> 2)] if n in (4, 8, 12) else None
    else:
        A.wait_vm(tok[("q", 3)])
        qb = lambda n: None
    A("s_barrier")
    stamp(26)
    gemm_loop(16, rdq, mmq, qb, (2, 2, 0, 0), lambda n: (0, 1, 2, 3) if (QE == 2 and n < 2) else (2, 3), fill, on_stepq)
    assert not fill
    A.wait_vm(tok["wo"])
    A("s_barrier")
    stamp(7)
    feat(QACC)
    def wait1a():
        top, done = lab("w1a"), lab("w1d")
        A(f"s_mov_b32 s{S_CNT}, {SPIN_LIMIT}")
        A.label(top)
        try1a(block=True)
        A(f"s_cmp_lg_u32 s{S_D1}, 0")
        A(f"s_cbranch_scc1 {done}")
        A(f"s_sub_u32 s{S_CNT}, s{S_CNT}, 1")
        A(f"s_cbranch_scc0 {top}")
        A.label(done)
    B1 = OPT.get("blk1a", 0)
    if B1 == 0: wait1a()
    S_D2 = ST + 4
    A(f"s_mov_b32 s{S_D2}, 0")
    PHQ = KV
    FD = PK
    def loads2():
        for hh in range(2):
            for jp in range(2):
                r = FD + (hh * 2 + jp) * 8
                off = (hh * 4 + jp) * 640
                A(f"buffer_load_dwordx4 {vr(r,4)}, v{V_G2}, s[{SWS}:{SWS+3}], s{P_P2G} offen offset:{off} sc1")
                A(f"buffer_load_dwordx4 {vr(r+4,4)}, v{V_G2B}, s[{SWS}:{SWS+3}], s{P_P2G} offen offset:{off} sc1")
        rdy_load(14)
    def check2():
        A(f"v_xor_b32 v13, v{FD}, v{V_TAG}")
        for s in range(1, 32):
            A(f"v_bitop3_b32 v13, v{FD+s}, v{V_TAG}, v13 bitop3:0xbe")
        rdy_check(9, 14)
        A("v_and_b32 v13, 0xff, v13")
        A("v_or_b32 v13, v13, v9")
        A(f"v_cmp_ne_u32 s[{S_FAIL}:{S_FAIL+1}], 0, v13")
    for blk in range(4):
        if blk == OPT.get("l2at", 3): loads2()
        emit(softmax_l(PK + blk * 16, PHQ + 8 * blk))
        if blk + 1 == B1: wait1a()
    stamp(9)
    KVF = VACC + 16
    ODR = [KACC, KACC + 16, PK + 32, PK + 48]
    A(f"s_lshl_b32 s{ST+5}, s{S_RH}, 12")
    A(f"v_add_u32 v{V_AX}, s{ST+5}, v{V_LIN}")
    A(f"v_add_u32 v{V_AX+1}, 0x10000, v{V_AX}")
    A(f"v_add_u32 v{V_AX+2}, 0x20000, v{V_AX}")
    slin(ST + 5, 3 * SLOT, (S_MF, 8192), (S_M0W2, 1))
    A(f"v_add_u32 v{V_AX+3}, s{ST+5}, v{V_LIN}")
    A(f"v_xor_b32 v{V_AX+4}, 0x2000, v{V_AX+3}")
    wor = []
    for n in range(32):
        wor += trfrag(n * 4, OLDS[n >> 2] + (n & 3) * 2048, "a")
    emit(wor[:8])
    def check2m():
        chk = [f"v_xor_b32 v13, v{FD}, v{V_TAG}"] + [f"v_bitop3_b32 v13, v{FD+s}, v{V_TAG}, v13 bitop3:0xbe" for s in range(TS, 32, TS)]
        for hh in range(2):
            for q in (2 * hh, 2 * hh + 1):
                for u in range(4):
                    A(f"v_cvt_pk_bf16_f32 v{KVF+4*q+u}, v{FD+8*q+2*u}, v{FD+8*q+2*u+1}")
            for m in range(2):
                blk = 2 * m + hh
                d = vr(ODR[blk], 16)
                for jp in range(2):
                    A(mf(d, vr(KVF + (hh * 2 + jp) * 4, 4), vr(PHQ + 8 * blk + 4 * jp, 4), d if jp else "0"))
                    k = 3 if hh == 0 else 5
                    emit(chk[:k]); chk = chk[k:]
        assert not chk
        rdy_check(9, 14)
        A("v_and_b32 v13, 0xff, v13")
        A("v_or_b32 v13, v13, v9")
        A(f"v_cmp_ne_u32 s[{S_FAIL}:{S_FAIL+1}], 0, v13")
    poll_pre(loads2, check2m)
    stamp(10)
    xcc_decide(14)
    ost = []
    for blk in (0, 2, 1, 3):
        m, hh = blk >> 1, blk & 1
        o = ODR[blk]
        A(f"v_add_f32 v{o+8}, 0x358637bd, v{o+8}")
        A(f"v_rcp_f32 v{o+8}, v{o+8}")
        for u in range(4):
            A(f"v_pk_mul_f32 {vr(o+2*u,2)}, {vr(o+2*u,2)}, {vr(o+8,2)} op_sel_hi:[1,0]")
        for u in range(4):
            A(f"v_cvt_pk_bf16_f32 v{o+12+u}, v{o+2*u}, v{o+2*u+1}")
        A(f"buffer_store_dwordx4 {vr(o+12,4)}, v{V_LIN}, s[{SWS}:{SWS+3}], s{P_ACTW+m} offen offset:{hh*1024} sc1")
        A(f"ds_write_b128 v{V_AX+3+m}, {vr(o+12,4)} offset:{hh*1024}")
    tok_o = A.vm
    stamp(11)
    ELDS = [(3, 4, 0, 1)[e >> 2] * SLOT + (e & 3) * 8192 for e in range(16)]
    def of_pieces(e):
        pos, ph = SEQ[e]
        def p0():
            A(f"s_add_u32 m0, s{S_M0W2}, {ELDS[e]:#x}")
            A(f"s_lshl_b32 s{ST+8}, s{KAP[pos]}, 14")
            A(f"s_add_u32 s{ST+8}, s{ST+8}, s{P_ACTR+ph}")
            A(f"buffer_load_dwordx4 v{V_LIN}, s[{SWS}:{SWS+3}], s{ST+8} offen {PLF}lds")
        def p1():
            A(f"buffer_load_dwordx4 v{V_LIN}, s[{SWS}:{SWS+3}], s{ST+8} offen offset:1024 {PLF}lds")
            tok[("of", e)] = A.vm
        return [p0, p1]
    OF = PK
    OACC = VACC
    def rd4(n):
        return [f"ds_read_b128 {vr(OF+(n&1)*16+h*4,4)}, v{V_AX+(ELDS[n]>>16)} offset:{(ELDS[n]&0xffff)+h*1024}" for h in range(4)]
    def mm4(n):
        pos, ph = SEQ[n]
        d = vr(OACC + 16 * ph, 16)
        return [mf(d, vr(OF + (n & 1) * 16 + h * 4, 4), ar((4 * pos + h) * 4, 4), d if (pos or h) else "0") for h in range(4)]
    A("s_waitcnt lgkmcnt(0)")
    A("s_barrier")
    wf = wor[8:]
    def two():
        for _ in range(2): A(wf.pop(0))
    gemm_loop(2, rd4, mm4, lambda n: None, (2, 2, 0, 0), (2, 3), [two] * 4)
    emit(wf[:16]); wf = wf[16:]
    A.wait_vm(tok_o)
    flag_store()
    emit(wf)
    flag_poll()
    stamp(12)
    for e in range(2, 7): run(of_pieces(e))
    fill = []
    def on_step4(n):
        if n == 2:
            for e in range(7, 16): fill.extend(of_pieces(e))
        if n == 10: fill.extend(out_stores(OACC, 0))
    A.wait_both(tok[("of", 3)], A.lg)
    A("s_barrier")
    stamp(13)
    BND = {4: 6, 7: 9, 10: 12, 13: 15}
    gemm_loop(16, rd4, mm4, lambda n: tok[("of", BND[n])] if n in BND else None, (2, 2, 0, 0),
              lambda n: (1, 2, 3) if n >= 10 else (0, 1, 2, 3), fill, on_step4, start=2)
    assert not fill
    stamp(14)
    run(out_stores(OACC, 1))
    tag_update("B")
    stamp(15)
    finish()

prologue()
vm0, lg0 = A.vm, A.lg
role_A()
for f in DEFER: f()
DEFER.clear()
A.label("L_roleB")
ROLE[0] = "B"
A.vm, A.lg = vm0, lg0
A.hist = []
role_B()
for f in DEFER: f()
A.label("L_end")
A("s_endpgm")

iB = A.out.index("L_roleB:")
iE = A.out.index("L_end:")
if OPT.get("bfirst", 1):
    lines = A.out[:CUT["P"]] + A.out[iB:CUT["B"]] + A.out[CUT["P"]:CUT["A"]] + A.out[CUT["B"]:iE] + A.out[CUT["A"]:iB] + A.out[iE:]
else:
    lines = A.out[:CUT["A"]] + A.out[iB:CUT["B"]] + A.out[CUT["A"]:iB] + A.out[CUT["B"]:]
if OPT["align"]:
    lines, nw, nn = align(lines, min_nop=OPT.get('minnop', 12))
    print("align: widened", nw, "nops", nn)
HEAD = open("cdna_kernels/" + NAME + ".s.ref").read().split("; Override launch geometry")[0]
src = HEAD + f"""; @launch grid=(256,1,1) block=(256,1,1) lds=163840
.amdgcn_target "amdgcn-amd-amdhsa--gfx950"
.text
.globl {NAME}_kernel
.p2align 8
.type {NAME}_kernel,@function
{NAME}_kernel:
""" + "\n".join(lines) + f"""
.fill 8192, 4, 0xBF810000
.section .rodata,"a"
.p2align 6
.amdhsa_kernel {NAME}_kernel
  .amdhsa_next_free_vgpr 512
  .amdhsa_next_free_sgpr 102
  .amdhsa_accum_offset 256
  .amdhsa_group_segment_fixed_size 0
  .amdhsa_kernarg_size 128
  .amdhsa_user_sgpr_count 2
  .amdhsa_user_sgpr_kernarg_segment_ptr 1
  .amdhsa_system_sgpr_workgroup_id_x 1
.end_amdhsa_kernel
"""
open(sys.argv[1], "w").write(src)
print("hazard nops:", A.nnop, "lines:", len(lines))
```

```python
import sys
from dsl import Asm, vr, ar, sr
from align import align

NAME = "concat_heads__ssm_conv_s5__linear_kernel_hedgehog__prompt"
OPT = dict(stamps=False, rotmode=2, align=1, xnt=0, hwait=8, owait=4, hand=0)
for a_ in sys.argv[2:]:
    k_, _, v_ = a_.partition("=")
    OPT[k_] = int(v_) if v_ else True

WS_TAGA, WS_TAGB = 0x0, 0x80
WS_XCC = 0x1000
WS_FLAG = 0x2000
WS_SA = 0x10000
WS_P1 = 0x100000
WS_P2 = 0x3C0000
WS_H = 0x400000
WS_O = 0x800000
WS_STAMP = 0xA00000
OOB = 0x40000000
SPIN_LIMIT = 1 << 14
LOG2E = 0x3FB8AA3B
INV2PI = 0x3E22F983

S_WAVE, S_CHUNK, S_CG, S_ROT, S_TAG = 3, 4, 5, 6, 7
SX, SW, SW2, SWS, SOUT = 8, 12, 16, 20, 24
S_RH, S_CH, S_SLOT, S_GRP = 28, 29, 30, 31
ST = 32
S_M0W, S_M0W2 = 48, 49
S_MG = 50
S_MRH = 52
S_L2E = 54
S_CNT = 56
S_FAIL = 58
S_M16 = 60
S_SM0, S_RS = 62, 63
S_XW, S_SLOW, P_FLW = 91, 92, 93
S_ROT1 = 47
KAP = [62, 63, 44, 45, 86, 87, 94, 95]
SEQ = [(0, 0), (0, 1)] + [(j, 0) for j in range(1, 8)] + [(j, 1) for j in range(1, 8)]
HAND = OPT['hand']
KA = 64
K_AX, K_LRE, K_LIM, K_BRE, K_BIM, K_CRE, K_CIM, K_LDT, K_DSK, K_BX, K_WQKV, K_WPHI, K_WO, K_OUT, K_DBG, K_WS = [KA + 2 * i for i in range(16)]
P_FLAGB, P_FLAGO, P_XCCB, P_TAGSEL, P_OUT, P_OUT2, P_ACTR, P_ACTR2 = range(64, 72)
P_ACTW, P_ACTW2, S_MF = 88, 89, 90
P0 = 72
S_STAMP = 96
V_LANE, V_OUTO, V_N, V_G, V_LIN, V_TAG, V_L0, V_CHK, V_XPO = 1, 2, 5, 6, 7, 8, 10, 12, 15
V_OX, V_OW = 16, 20
SLOT = 32768

A = Asm()
CUT = {}
nlab = [0]

def srd(dst, ptr, nbytes):
    A(f"s_mov_b32 s{dst}, s{ptr}")
    A(f"s_mov_b32 s{dst+1}, s{ptr+1}")
    A(f"s_mov_b32 s{dst+2}, {nbytes:#x}")
    A(f"s_mov_b32 s{dst+3}, 0x20000")

def slin(dst, const, *terms):
    first = True
    for reg, mul in terms:
        t = dst if first else ST + 14
        if mul == 1:
            if first: A(f"s_mov_b32 s{dst}, s{reg}")
            else: t = reg
        elif mul & (mul - 1) == 0: A(f"s_lshl_b32 s{t}, s{reg}, {mul.bit_length()-1}")
        else: A(f"s_mul_i32 s{t}, s{reg}, {mul}")
        if not first: A(f"s_add_u32 s{dst}, s{dst}, s{t}")
        first = False
    if const: A(f"s_add_u32 s{dst}, s{dst}, {const:#x}")

ROLE = ["A"]
def stamp(idx):
    if OPT.get("probe") == idx + (0 if ROLE[0] == "A" else 100):
        if OPT.get("cyc"):
            A("s_memtime s[96:97]")
            A("s_waitcnt lgkmcnt(0)")
            A("s_sub_u32 s99, s96, s98")
            A("s_lshr_b32 s99, s99, 4")
        else:
            A("s_memrealtime s[96:97]")
            A("s_waitcnt lgkmcnt(0)")
            A("s_sub_u32 s99, s96, s100")
    if not OPT["stamps"]: return
    A(f"s_memtime s[{S_STAMP}:{S_STAMP+1}]")
    A("s_waitcnt lgkmcnt(0)")
    A(f"s_sub_u32 s{S_STAMP}, s{S_STAMP}, s98")
    A(f"v_writelane_b32 v255, s{S_STAMP}, {idx}")
    if OPT.get("rt") and idx <= 16:
        A(f"s_memrealtime s[{S_STAMP}:{S_STAMP+1}]")
        A("s_waitcnt lgkmcnt(0)")
        A(f"s_sub_u32 s{S_STAMP}, s{S_STAMP}, s100")
        A(f"v_writelane_b32 v255, s{S_STAMP}, {idx+44}")

NB = [32, 36, 38, 42, 58, 56]
nbuse = []
def nbstamp(k):
    if OPT.get("nb") and OPT["stamps"]:
        A(f"s_memtime s[{NB[k]}:{NB[k]+1}]"); nbuse.append(k)
def nbflush():
    if OPT.get("nb") and OPT["stamps"]:
        A("s_waitcnt lgkmcnt(0)")
        for k in nbuse:
            A(f"s_sub_u32 s{NB[k]}, s{NB[k]}, s98")
            A(f"v_writelane_b32 v255, s{NB[k]}, {17+k}")
        nbuse.clear()

def lab(n):
    nlab[0] += 1
    return f"L_{n}_{nlab[0]}"

def finish():
    if OPT.get("probe") and (OPT["probe"] >= 100) == (ROLE[0] == "B"):
        if OPT["probe"] % 100 == 16:
            A("s_waitcnt vmcnt(0)")
            stamp(16)
        l = lab("pr")
        A("s_lshl_b32 s99, s99, 1")
        A("s_add_u32 s99, s99, 2500")
        A.label(l)
        A("s_memrealtime s[96:97]")
        A("s_waitcnt lgkmcnt(0)")
        A("s_sub_u32 s96, s96, s100")
        A("s_cmp_lt_u32 s96, s99")
        A(f"s_cbranch_scc1 {l}")
    if OPT.get("fixrt"):
        l = lab("rt")
        A.label(l)
        A("s_memrealtime s[96:97]")
        A("s_waitcnt lgkmcnt(0)")
        A("s_sub_u32 s96, s96, s100")
        A(f"s_cmp_lt_u32 s96, {OPT['fixrt']}")
        A(f"s_cbranch_scc1 {l}")
    if OPT["stamps"]:
        A("s_waitcnt vmcnt(0)")
        stamp(16)
        A("v_writelane_b32 v255, s99, 30")
        A("s_memrealtime s[96:97]")
        A("v_writelane_b32 v255, s100, 40")
        A("s_waitcnt lgkmcnt(0)")
        A("v_writelane_b32 v255, s96, 41")
        slin(ST, WS_STAMP, (2, 1024), (S_WAVE, 256))
        A(f"v_lshlrev_b32 v254, 2, v{V_LANE}")
        A(f"buffer_store_dword v255, v254, s[{SWS}:{SWS+3}], s{ST} offen")
    A("s_endpgm")

def mf(d, a, b, c):
    return f"v_mfma_f32_32x32x16_bf16 {d}, {a}, {b}, {c}"

def poll(loads, check):
    top, done = lab("poll"), lab("ok")
    A(f"s_mov_b32 s{S_CNT}, {SPIN_LIMIT}")
    A.label(top)
    loads()
    A("s_waitcnt vmcnt(0)")
    check()
    A(f"s_cmp_eq_u64 s[{S_FAIL}:{S_FAIL+1}], 0")
    A(f"s_cbranch_scc1 {done}")
    A(f"s_sub_u32 s{S_CNT}, s{S_CNT}, 1")
    A(f"s_cbranch_scc0 {top}")
    A.label(done)

def poll_pre(loads, check):
    top, done = lab("poll"), lab("ok")
    A(f"s_mov_b32 s{S_CNT}, {SPIN_LIMIT}")
    A.label(top)
    A("s_waitcnt vmcnt(0)")
    check()
    A(f"s_cmp_eq_u64 s[{S_FAIL}:{S_FAIL+1}], 0")
    A(f"s_cbranch_scc1 {done}")
    loads()
    A(f"s_sub_u32 s{S_CNT}, s{S_CNT}, 1")
    A(f"s_cbranch_scc0 {top}")
    A("s_waitcnt vmcnt(0)")
    A.label(done)

def cfma_l(d, a, b, c, t):
    return [f"v_pk_fma_f32 {vr(t,2)}, {vr(a,2)}, {vr(b,2)}, {vr(c,2)} op_sel:[1,1,0] op_sel_hi:[1,0,1] neg_lo:[1,0,0]",
            f"v_pk_fma_f32 {vr(d,2)}, {vr(a,2)}, {vr(b,2)}, {vr(t,2)} op_sel:[0,0,0] op_sel_hi:[0,1,1]"]
def cmul_l(d, a, b, t):
    return [f"v_pk_mul_f32 {vr(t,2)}, {vr(a,2)}, {vr(b,2)} op_sel:[1,1] op_sel_hi:[1,0] neg_lo:[1,0]",
            f"v_pk_fma_f32 {vr(d,2)}, {vr(a,2)}, {vr(b,2)}, {vr(t,2)} op_sel:[0,0,0] op_sel_hi:[0,1,1]"]
def emit(l):
    for x in l: A(x)
def cfma(*a): emit(cfma_l(*a))
def cmul(*a): emit(cmul_l(*a))

def weave(main, fillers, every, start=0):
    for i, x in enumerate(main):
        A(x)
        if i >= start and (i - start) % every == every - 1 and fillers:
            f = fillers.pop(0)
            if isinstance(f, str): A(f)
            elif f: f()

def gemm_loop(nsteps, reads, mfmas, boundary, split, fill_gaps, fillers, on_step=None, end_barrier=False, verify=None, start=0, extra=None, nextra=None):
    for r in reads(start): A(r)
    for n in range(start, nsteps):
        if on_step: on_step(n)
        last = n == nsteps - 1
        b = None if last else boundary(n + 1)
        b2 = boundary(n + 2) if (verify and n + 2 < nsteps) else None
        if b2 is not None: A.wait_both(b2, A.lg)
        elif b is not None and not verify: A.wait_both(b, A.lg)
        else: A("s_waitcnt lgkmcnt(0)")
        if b is not None and verify: verify(n + 1)[1]()
        rs = [] if last else list(reads(n + 1))
        ms = mfmas(n)
        for g in range(4):
            A(ms[g])
            if g == 0 and b2 is not None: verify(n + 2)[0]()
            if g == 0 and b is not None and verify: verify(n + 1)[2]()
            if g == 0 and (b is not None or (last and end_barrier)): A("s_barrier")
            for _ in range(split[g]):
                if rs: A(rs.pop(0))
            if g in (fill_gaps(n) if callable(fill_gaps) else fill_gaps) and fillers:
                f = fillers.pop(0)
                if isinstance(f, str): A(f)
                elif f: f()
            if extra:
                k = nextra(n, g)
                while extra and k > 0:
                    x = extra.pop(0); A(x); k -= 1
                    if x.startswith("s_cmp") and k == 0: k = 1
        assert not rs

def dma_pieces(voff, srdreg, soff, ldsoff, pre=None, post=None, flags="", m0reg=S_M0W, same_v=False):
    def mk(p):
        def f():
            if p == 0:
                A(f"s_add_u32 m0, s{m0reg}, {ldsoff:#x}")
                if pre: pre()
            A(f"buffer_load_dwordx4 v{voff if same_v else voff+p}, s[{srdreg}:{srdreg+3}], s{soff} offen offset:{p*1024} {flags}lds")
            if p == 3 and post: post()
        return f
    return [mk(p) for p in range(4)]

def run(fs):
    for f in fs:
        if isinstance(f, str): A(f)
        else: f()

def rot_soff(dst, add, shift=None, mul=None, extra_sreg=None, plus=None, rot=S_ROT):
    A(f"s_add_u32 s{dst}, s{rot}, {add}")
    if extra_sreg is not None: A(f"s_add_u32 s{dst}, s{dst}, s{extra_sreg}")
    A(f"s_and_b32 s{dst}, s{dst}, 7")
    if shift is not None: A(f"s_lshl_b32 s{dst}, s{dst}, {shift}")
    else: A(f"s_mul_i32 s{dst}, s{dst}, {mul}")
    if plus is not None: A(f"s_add_u32 s{dst}, s{dst}, s{plus}")

def prologue():
    if OPT["stamps"] or OPT.get("cyc"): A("s_memtime s[98:99]")
    if OPT.get("fixrt") or OPT.get("probe") or OPT["stamps"]: A("s_memrealtime s[100:101]")
    A("s_cmp_ge_u32 s2, 256")
    A("s_cbranch_scc1 L_end")
    A(f"s_load_dwordx16 s[{KA}:{KA+15}], s[0:1], 0")
    A(f"s_load_dwordx16 s[{KA+16}:{KA+31}], s[0:1], 64")
    A("v_and_b32 v1, 63, v0")
    A("v_lshrrev_b32 v2, 6, v0")
    A(f"s_lshr_b32 s{S_SLOT}, s2, 3")
    A(f"v_readfirstlane_b32 s{S_WAVE}, v2")
    A(f"s_and_b32 s{ST}, s2, 3")
    A(f"s_lshl_b32 s{S_CHUNK}, s{ST}, 2")
    A(f"s_lshr_b32 s{ST+1}, s{S_SLOT}, 3")
    A(f"s_add_u32 s{S_CHUNK}, s{S_CHUNK}, s{ST+1}")
    A(f"s_and_b32 s{S_CG}, s{S_SLOT}, 7")
    A(f"s_lshl_b32 s{S_ROT}, s{ST+1}, 1")
    A(f"s_add_u32 s{S_ROT}, s{S_ROT}, s{S_CG}")
    A(f"s_and_b32 s{S_ROT}, s{S_ROT}, 7")
    rm = OPT["rotmode"]
    if rm == 8: A(f"s_mov_b32 s{S_ROT1}, s{S_ROT}")
    elif rm == 1: A(f"s_mov_b32 s{S_ROT1}, 0")
    elif rm == 3:
        A(f"s_add_u32 s{S_ROT1}, s{S_CG}, s{ST+1}")
        A(f"s_and_b32 s{S_ROT1}, s{S_ROT1}, 3")
        A(f"s_mul_i32 s{S_ROT1}, s{S_ROT1}, 3")
    else:
        A(f"s_add_u32 s{S_ROT1}, s{S_CG}, s{ST+1}")
        A(f"s_and_b32 s{S_ROT1}, s{S_ROT1}, {rm-1}")
        A(f"s_lshl_b32 s{S_ROT1}, s{S_ROT1}, {2 if rm == 2 else 1}")
    A(f"s_lshr_b32 s{S_RH}, s{S_WAVE}, 1")
    A(f"s_and_b32 s{S_CH}, s{S_WAVE}, 1")
    A(f"s_lshl_b32 s{S_M0W}, s{S_WAVE}, 12")
    slin(ST + 2, 0, (S_SLOT, 512), (S_WAVE, 128))
    A("v_and_b32 v7, 1, v0")
    A(f"v_lshl_add_u32 v7, v7, 14, s{ST+2}")
    A("v_lshrrev_b32 v3, 3, v1")
    A("v_and_b32 v4, 7, v1")
    A(f"v_and_b32 v{V_N}, 31, v1")
    A(f"v_lshrrev_b32 v{V_G}, 5, v1")
    if OPT["stamps"]: A("v_mov_b32 v255, 0")
    A("s_bitcmp0_b32 s2, 2" if OPT.get("swap") else "s_bitcmp1_b32 s2, 2")
    if OPT.get("bfirst", 1):
        A("s_cbranch_scc0 L_roleA")
        CUT["P"] = len(A.out)
        A.label("L_roleA")
    else:
        A("s_cbranch_scc1 L_roleB")

def cut(role):
    A(f"s_branch L_main{role}")
    CUT[role] = len(A.out)
    A.label(f"L_main{role}")

def code_prefetch():
    A(f"s_getpc_b64 s[{ST+4}:{ST+5}]")
    A.label(f"L_pc{ROLE[0]}")
    A(f"s_add_u32 s{ST+4}, s{ST+4}, L_main{ROLE[0]}-L_pc{ROLE[0]}")
    A(f"s_addc_u32 s{ST+5}, s{ST+5}, 0")
    A(f"global_load_dword v254, v7, s[{ST+4}:{ST+5}]")

def common_setup(role):
    srd(SWS, K_WS, 0x10000000)
    srd(SOUT, K_OUT, 0x800000)
    A(f"s_lshl_b32 s{S_M0W2}, s{S_WAVE}, 13")
    A(f"s_mov_b32 s{S_MG}, 0")
    A(f"s_mov_b32 s{S_MG+1}, -1")
    A(f"s_sub_u32 s{S_MRH}, 0, s{S_RH}")
    A(f"s_mov_b32 s{S_MRH+1}, s{S_MRH}")
    A(f"s_mov_b32 s{S_L2E}, {LOG2E:#x}")
    A(f"s_mov_b32 s{S_L2E+1}, {LOG2E:#x}")
    A(f"s_mov_b32 s{S_M16}, 0xffff0000")
    A(f"s_mov_b32 s{S_M16+1}, 0xffff0000")
    A(f"s_add_u32 s{S_GRP}, s{S_CHUNK}, {0 if role == 'A' else 16}")
    slin(P_XCCB, WS_XCC, (S_GRP, 128))
    if role == "A": A(f"s_mov_b32 s{S_MF}, 0")
    else: A(f"s_and_b32 s{S_MF}, s{S_CG}, 1")
    slin(P_OUT, 0 if role == "A" else 2048, (S_CHUNK, 1 << 19), (S_RH, 1 << 18), (S_CG, 256), (S_CH, 128), (S_MF, 1 << 17))
    A(f"s_xor_b32 s{P_OUT2}, s{P_OUT}, {1 << 17:#x}")
    slin(P_TAGSEL, 0, (S_CHUNK, 256), (S_CG, 16), (S_WAVE, 1))
    A(f"s_and_b32 s{ST}, s{S_CHUNK}, 3")
    A(f"s_lshl_b32 s{ST}, s{ST}, 1")
    A(f"s_mov_b32 s{KAP[0]}, s{S_CG}")
    for j in range(1, 8):
        A(f"s_add_u32 s{ST+1}, s{ST}, {j-1}")
        A(f"s_cmp_ge_u32 s{ST+1}, 7")
        A(f"s_addc_u32 s{ST+1}, s{ST+1}, 1")
        A(f"s_add_u32 s{ST+1}, s{ST+1}, s{S_CG}")
        A(f"s_and_b32 s{KAP[j]}, s{ST+1}, 7")
    if OPT.get("tlb", 0):
        A(f"v_and_b32 v9, 15, v{V_LANE}")
        A("v_lshlrev_b32 v9, 20, v9")
        A(f"buffer_load_dword v254, v9, s[{SWS}:{SWS+3}], 0 offen offset:2048")
        A(f"buffer_load_dword v254, v9, s[{SOUT}:{SOUT+3}], 0 offen")
        A(f"buffer_load_dword v254, v9, s[{SW2}:{SW2+3}], 0 offen")
    A(f"v_lshlrev_b32 v{V_LIN}, 4, v{V_LANE}")
    A(f"v_mov_b32 v{V_L0}, {OOB:#x}")
    A(f"v_cmp_eq_u32 vcc, 0, v{V_LANE}")
    if not HAND:
        A(f"v_lshlrev_b32 v{V_CHK}, 2, v{V_N}")
        slin(P_FLAGB, WS_FLAG, (S_GRP, 256))
        slin(P_FLW, 0, (S_CG, 16), (S_WAVE, 4), (P_FLAGB, 1))
        A(f"s_getreg_b32 s{S_XW}, hwreg(HW_REG_XCC_ID, 0, 4)")
    A(f"v_lshlrev_b32 v{V_XPO}, 2, v4")
    A(f"v_cndmask_b32_e64 v{V_L0}, v{V_L0}, 0, vcc")
    A(f"v_lshlrev_b32 v{V_OUTO}, 14, v{V_G}")
    A(f"v_lshl_add_u32 v{V_OUTO}, v{V_N}, 2, v{V_OUTO}")
    slin(P_FLAGO, 0, (S_CG, 4), (P_XCCB, 1))
    A("s_waitcnt lgkmcnt(0)")
    A(f"s_add_u32 s{S_TAG}, s{S_TAG}, 1")
    if OPT["stamps"]: A("s_mov_b32 s99, 0")
    if not HAND:
        A(f"s_lshl_b32 s{ST}, s{S_TAG}, 4")
        A(f"s_or_b32 s{S_XW}, s{S_XW}, s{ST}")
        A(f"v_mov_b32 v248, s{S_XW}")
        A(f"buffer_store_dword v248, v{V_L0}, s[{SWS}:{SWS+3}], s{P_FLAGO} offen sc1")

def lds_b128_addrs(base_reg, wave_off_sreg, const, nsets):
    A(f"v_bfe_u32 v9, v{V_N}, 1, 3")
    A(f"v_xor_b32 v9, v9, v{V_G}")
    A("v_lshlrev_b32 v9, 4, v9")
    A(f"v_lshl_add_u32 v9, v{V_N}, 7, v9")
    A(f"v_add_u32 v9, s{wave_off_sreg}, v9")
    if const: A(f"v_add_u32 v9, {const:#x}, v9")
    for ks in range(4):
        A(f"v_xor_b32 v{base_reg+ks}, {32*ks}, v9")
    for st in range(1, nsets):
        for ks in range(4): A(f"v_add_u32 v{base_reg+4*st+ks}, {st*0x10000:#x}, v{base_reg+ks}")

TCH = 250
def rdy_load(reg, dummy=9):
    A(f"buffer_load_dword v254, v{V_XPO}, s[{SWS}:{SWS+3}], s{P_FLAGB} offen offset:112 sc1")
    A(f"buffer_load_dword v{reg}, v{V_XPO}, s[{SWS}:{SWS+3}], s{P_XCCB} offen sc1")
def rdy_check(dst, reg):
    if HAND: A(f"v_xor_b32 v{dst}, s{S_TAG}, v{reg}")
    else:
        A(f"v_xor_b32 v{reg}, s{S_XW}, v{reg}")
        A(f"v_lshrrev_b32 v{dst}, 4, v{reg}")
def rdy_store():
    if HAND: A(f"buffer_store_dword v11, v{V_L0}, s[{SWS}:{SWS+3}], s{P_FLAGO} offen sc1")
def xcc_decide(reg):
    if HAND: return
    A(f"v_cmp_ne_u32 vcc, 0, v{reg}")
    A("s_cmp_lg_u64 vcc, 0")
    A(f"s_cselect_b32 s{S_SLOW}, 1, 0")
def flag_store(ph=0):
    slow, join = lab("slow"), lab("join")
    A(f"s_cmp_lg_u32 s{S_SLOW}, 0")
    A(f"s_cbranch_scc1 {slow}")
    A(f"buffer_store_dword v11, v{V_L0}, s[{SWS}:{SWS+3}], s{P_FLW} offen offset:{ph*128}")
    A.label(join)
    def later():
        A.label(slow)
        A(f"buffer_store_dword v11, v{V_L0}, s[{SWS}:{SWS+3}], s{P_FLW} offen offset:{ph*128} sc1")
        A(f"s_branch {join}")
    DEFER.append(later)
def flag_load(ph):
    A(f"buffer_load_dword v13, v{V_CHK}, s[{SWS}:{SWS+3}], s{P_FLAGB} offen offset:{ph*128} sc1")
def flag_cmp():
    A(f"v_cmp_ne_u32 s[{S_FAIL}:{S_FAIL+1}], s{S_TAG}, v13")
def flag_poll(ph=0):
    poll(lambda: flag_load(ph), flag_cmp)
def flag_check(ph):
    slow, back = lab("fslow"), lab("fback")
    flag_cmp()
    A(f"s_cmp_lg_u64 s[{S_FAIL}:{S_FAIL+1}], 0")
    A(f"s_cbranch_scc1 {slow}")
    A.label(back)
    def later():
        A.label(slow)
        A.hist = []
        flag_poll(ph)
        A(f"s_branch {back}")
    DEFER.append(later)

DEFER = []
def make_verify(pieces, slot, second):
    retry, back = lab("retry"), lab("back")
    def reads():
        A(f"v_add_u32 v9, {slot*SLOT:#x}, v{V_CHK}")
        A("ds_read_b32 v13, v9")
        A(f"ds_read_b32 v14, v9 offset:{second}")
    def cmp():
        A("v_max_u32 v13, v13, v14")
        A("v_cmp_eq_u32 vcc, -1, v13")
    def branch():
        A("s_cmp_lg_u64 vcc, 0")
        A(f"s_cbranch_scc1 {retry}")
        A.label(back)
    def later():
        top, done = lab("rl"), lab("rd")
        A.label(retry)
        A.hist = []
        A(f"s_mov_b32 s{S_SM0}, m0")
        A(f"s_mov_b32 s{S_CNT}, {SPIN_LIMIT}")
        A.label(top)
        run(pieces(S_RS))
        A("s_waitcnt vmcnt(0)")
        A("ds_read_b32 v13, v9")
        A(f"ds_read_b32 v14, v9 offset:{second}")
        A("s_waitcnt lgkmcnt(0)")
        cmp()
        A("s_cmp_eq_u64 vcc, 0")
        A(f"s_cbranch_scc1 {done}")
        A(f"s_sub_u32 s{S_CNT}, s{S_CNT}, 1")
        A(f"s_cbranch_scc0 {top}")
        A.label(done)
        if OPT["stamps"]:
            A(f"s_sub_u32 s{S_CNT}, {SPIN_LIMIT + 1}, s{S_CNT}")
            A(f"s_add_u32 s99, s99, s{S_CNT}")
        A(f"s_mov_b32 m0, s{S_SM0}")
        A(f"s_branch {back}")
    DEFER.append(later)
    return reads, cmp, branch

def tag_update(role):
    skip = lab("notag")
    A(f"s_cmp_eq_u32 s{P_TAGSEL}, {(15 if role == 'A' else 0) << 8}")
    A(f"s_cbranch_scc0 {skip}")
    A(f"buffer_store_dword v11, v{V_L0}, s[{SWS}:{SWS+3}], 0 offen offset:{WS_TAGA if role == 'A' else WS_TAGB} sc1")
    A.label(skip)

def out_stores(acc, ph):
    def mk(r):
        def f():
            row = 8 * (r >> 2) + (r & 3)
            A(f"s_add_u32 s{ST+1}, s{P_OUT+ph}, {row*4096}")
            A(f"buffer_store_dword v{acc+16*ph+r}, v{V_OUTO}, s[{SOUT}:{SOUT+3}], s{ST+1} offen {OUTF}")
        return f
    return [mk(r) for r in range(16)]

SCHED = {
    0: ({0: [2, 3], 1: [4], 2: [5], 3: [6], 4: [7]}, 5, {0: "all"}),
    1: ({i: [i + 2] for i in range(6)}, 6, {i: "front" for i in range(6)}),
    2: ({0: [2], 1: [3], 2: [4], 3: [5, 6], 4: [7]}, 5, {3: "all"}),
    3: ({0: [2], 1: [3], 2: [4, 5], 3: [6], 4: [7]}, 5, {2: "all"}),
    4: ({0: [2], 1: [3], 2: [4], 3: [5], 4: [6], 5: [7]}, 6, {2: "front", 3: "front", 4: "front", 5: "front"}),
    5: ({0: [2], 1: [3, 4], 2: [5], 3: [6], 4: [7]}, 5, {1: "all"}),
    6: ({i: [i + 3] for i in range(5)}, 5, {}),
    7: ({i: [i + 3] for i in range(5)}, 5, {0: "front", 1: "front"}),
}[OPT.get("sched", 6)]
EARLY = OPT.get("sched", 6) >= 6
NPRE = OPT.get("npre", 4)
NX = OPT.get("nx", 10)
XST = SCHED[1]
def g1_gaps(n, busy):
    i = n >> 2
    if SCHED[2].get(i) in ("all", "front") or i in busy: return (0, 1, 2, 3)
    return (2, 3)
OUTF = {0: "sc1", 1: "sc1 nt", 2: "sc0 sc1", 3: "nt", 4: "", 5: "sc0 sc1 nt"}[OPT.get("outf", 0)]
XF = "nt " if OPT["xnt"] else ""
PLF = {0: "sc1 ", 1: "", 2: "sc0 ", 3: "nt "}[OPT.get("plf", 0)]

def role_A():
    V_AX, V_AW = 24, 32
    V_GO, V_SCW = 44, 3
    V_XF, V_WF = 48, 64
    URE, UIM = 80, 112
    ACC2 = 144
    HP = 176
    XS, DG, V_GE = 176, 192, 200
    V_PUB, V_XSO, V_HSO = 45, 46, 223
    P_MSK = P0 + 4
    C_LAM, C_M1, C_M2, C_L, C_MQ, C_LQ, C_C2 = 208, 210, 212, 214, 216, 218, 220
    C_DSK = 222
    T0 = 224
    P_SAB, P_SAO, P_XS0, P_XS1 = P0, P0 + 1, P0 + 2, P0 + 3
    code_prefetch()
    A("v_lshrrev_b32 v9, 1, v3")
    A("v_xor_b32 v9, v9, v4")
    A("v_lshlrev_b32 v9, 4, v9")
    A("v_lshrrev_b32 v10, 2, v3")
    A("v_lshlrev_b32 v10, 5, v10")
    A("v_and_b32 v11, 1, v3")
    A("v_lshl_add_u32 v10, v11, 4, v10")
    A("v_bfe_u32 v11, v3, 1, 1")
    A("v_add_u32 v10, v10, v11")
    A("v_lshl_add_u32 v10, v10, 10, v9")
    slin(ST, 0, (S_CHUNK, 1 << 17), (S_RH, 1 << 16), (S_CH, 1 << 13))
    A(f"v_add_u32 v{V_OX}, s{ST}, v10")
    A(f"v_xor_b32 v11, 64, v{V_OX}")
    A(f"v_add_u32 v{V_OX+1}, 1024, v11")
    A(f"v_add_u32 v{V_OX+2}, 2048, v{V_OX}")
    A(f"v_add_u32 v{V_OX+3}, 3072, v11")
    A("v_lshl_add_u32 v10, v3, 10, v9")
    slin(ST, 0, (S_CG, 1 << 16), (S_CH, 1 << 15))
    A(f"v_add_u32 v{V_OW}, s{ST}, v10")
    A(f"v_xor_b32 v11, 64, v{V_OW}")
    A(f"v_add_u32 v{V_OW+1}, 7168, v11")
    A(f"v_add_u32 v{V_OW+2}, {2*7168}, v{V_OW}")
    A(f"v_add_u32 v{V_OW+3}, {3*7168}, v11")
    slin(ST, 0, (S_CG, 128), (S_CH, 64))
    A(f"v_lshl_add_u32 v14, v{V_N}, 1, s{ST}")
    A(f"s_cmp_eq_u32 s{S_RH}, 0")
    A("s_waitcnt lgkmcnt(0)")
    A(f"s_cselect_b32 s{SW}, s{K_BRE}, s{K_BIM}")
    A(f"s_cselect_b32 s{SW+1}, s{K_BRE+1}, s{K_BIM+1}")
    A(f"s_cselect_b32 s{SW2}, s{K_CRE}, s{K_CIM}")
    A(f"s_cselect_b32 s{SW2+1}, s{K_CRE+1}, s{K_CIM+1}")
    A(f"s_mov_b32 s{SW+2}, 0x80000")
    A(f"s_mov_b32 s{SW+3}, 0x20000")
    stamp(1)
    A(f"s_load_dword s{S_TAG}, s[{K_WS}:{K_WS+1}], {WS_TAGA}")
    srd(SX, K_AX, 0x200000)
    tok = {}
    def g1_pieces(i):
        slot = i & 3
        return (dma_pieces(V_OW, SW, ST + 8, slot * SLOT, pre=lambda: rot_soff(ST + 8, i, shift=7, rot=S_ROT1)) +
                dma_pieces(V_OX, SX, ST + 8, slot * SLOT + 16384, post=lambda: tok.__setitem__(i, A.vm), flags=XF))
    CLDS = {1: 4 * SLOT, 2: 4 * SLOT + 16384, 0: 0, 3: 16384, 4: SLOT, 5: SLOT + 16384, 6: 2 * SLOT, 7: 2 * SLOT + 16384}
    CORD = [1, 2, 0, 3, 4, 5, 6, 7]
    def c_pieces(st):
        return dma_pieces(V_OW, SW2, ST + 9, CLDS[st], pre=lambda: A(f"s_lshl_b32 s{ST+9}, s{KAP[st]}, 7"))
    A(f"global_load_ushort v{T0}, v14, s[{K_LRE}:{K_LRE+1}]")
    A(f"global_load_ushort v{T0+1}, v14, s[{K_LIM}:{K_LIM+1}]")
    A(f"global_load_ushort v{T0+2}, v14, s[{K_LDT}:{K_LDT+1}]")
    A(f"global_load_ushort v{C_DSK}, v14, s[{K_DSK}:{K_DSK+1}]")
    tok_small = A.vm
    run(g1_pieces(0))
    A(f"s_mov_b32 s{SW2+2}, 0x80000")
    A(f"s_mov_b32 s{SW2+3}, 0x20000")
    late = g1_pieces(1)
    if EARLY:
        run(late[:NPRE]); late = late[NPRE:] + g1_pieces(2)
    else:
        run(late); late = []
    if OPT.get("wtouch", 0):
        slin(ST, 0, (S_CG, 1 << 16), (S_CHUNK, 4096), (S_CH, 2048))
        A(f"v_and_b32 v9, 15, v{V_LANE}")
        A("v_lshlrev_b32 v9, 7, v9")
        A(f"buffer_load_dword v254, v9, s[{SW2}:{SW2+3}], s{ST} offen")
    stamp(2)
    cut("A")
    A(f"s_lshl_b32 s{ST}, s{S_RH}, 13")
    lds_b128_addrs(V_AX, ST, 16384, 2)
    A(f"s_lshl_b32 s{ST}, s{S_CH}, 12")
    lds_b128_addrs(V_AW, ST, 0, 3)
    if OPT.get("lateset", 1): A.cap = []
    common_setup("A")
    slin(P_SAB, WS_SA, (S_CG, 8192))
    A(f"s_sub_u32 s{ST}, 15, s{S_CHUNK}")
    slin(P_SAO, 0, (ST, 512), (S_CH, 256), (P_SAB, 1))
    A(f"s_mov_b32 s{P_MSK}, 0xffffff00")
    slin(P_XS0, 0, (S_CHUNK, 1 << 17), (S_RH, 1 << 16), (S_CG, 128), (S_CH, 64), (S_MF, 32768))
    A(f"s_xor_b32 s{P_XS1}, s{P_XS0}, 32768")
    slin(P_ACTW, WS_H, (S_CHUNK, 1 << 18), (S_CG, 1 << 15), (S_WAVE, 4096))
    slin(P_ACTR, WS_H, (S_CHUNK, 1 << 18), (S_WAVE, 4096), (S_MF, 16384))
    A(f"s_xor_b32 s{P_ACTR2}, s{P_ACTR}, 16384")
    A(f"v_lshlrev_b32 v9, 11, v{V_G}")
    A(f"v_lshl_add_u32 v{V_HSO}, v{V_N}, 4, v9")
    A(f"s_add_u32 s{P_ACTW2}, s{P_ACTW}, 16384")
    clears = [f"buffer_store_dwordx4 {vr(T0+24,4)}, v{V_HSO}, s[{SWS}:{SWS+3}], s{P_ACTW} offen offset:{k*512} sc1" for k in range(8)]
    A(f"s_and_b32 s{ST}, s{S_TAG}, 0xff")
    A(f"v_mov_b32 v{V_TAG}, s{ST}")
    A(f"v_mov_b32 v11, s{S_TAG}")
    A(f"v_lshlrev_b32 v{V_XSO}, 10, v{V_N}")
    A(f"v_lshl_add_u32 v{V_XSO}, v{V_G}, 5, v{V_XSO}")
    SCR = 3 * SLOT
    slin(ST, SCR, (S_CH, 256))
    A(f"v_lshl_add_u32 v4, v{V_N}, 3, s{ST}")
    A(f"s_lshl_b32 s{ST}, s{S_RH}, 10")
    A(f"v_lshl_add_u32 v3, v{V_G}, 9, v4")
    A(f"v_add_u32 v3, s{ST}, v3")
    A(f"v_lshlrev_b32 v13, 3, v{V_N}")
    A(f"v_mov_b32 v14, {OOB:#x}")
    A(f"s_or_b64 s[{ST+2}:{ST+3}], s[{S_MG}:{S_MG+1}], s[{S_MRH}:{S_MRH+1}]")
    A(f"v_cndmask_b32_e64 v{V_PUB}, v13, v14, s[{ST+2}:{ST+3}]")
    if OPT.get("prew", 1):
        for k in range(2): A(f"v_subrev_u32 v{T0+20+k}, 1, v{V_TAG}")
        A(f"buffer_store_dwordx2 {vr(T0+20,2)}, v{V_PUB}, s[{SWS}:{SWS+3}], s{P_SAO} offen sc1")
    A(f"s_sub_u32 s{ST+4}, 16, s{S_CHUNK}")
    A(f"v_lshlrev_b32 v9, 3, v{V_G}")
    A(f"v_add_u32 v9, s{ST+4}, v9")
    A(f"s_lshl_b32 s{ST+4}, s{S_CH}, 8")
    A(f"v_add_u32 v13, s{ST+4}, v13")
    A(f"v_lshl_add_u32 v{V_GO}, v9, 9, v13")
    for i in range(8):
        A(f"v_cmp_gt_u32 vcc, {16-i}, v9")
        A(f"v_cndmask_b32_e64 v{V_GE+i}, 0, v{V_TAG}, vcc")
    A.wait_vm(tok_small)
    lre, lim, ldt = T0, T0 + 1, T0 + 2
    A(f"v_and_b32 v9, 1, v{V_N}")
    A("v_lshlrev_b32 v9, 4, v9")
    A(f"v_lshlrev_b32 v{C_DSK}, v9, v{C_DSK}")
    A(f"v_lshrrev_b32 v9, 1, v{V_N}")
    A(f"v_lshlrev_b32 v13, 3, v{V_G}")
    A("v_sub_u32 v9, v9, v13")
    for q in range(8):
        A(f"v_cmp_eq_u32 vcc, {q}, v9")
        A(f"v_cndmask_b32_e64 v{DG+q}, 0, v{C_DSK}, vcc")
    for r in (lre, lim, ldt): A(f"v_lshlrev_b32 v{r}, 16, v{r}")
    A(f"v_mul_f32 v{ldt}, s{S_L2E}, v{ldt}")
    A(f"v_exp_f32 v{ldt}, v{ldt}")
    A(f"v_cvt_pk_bf16_f32 v{ldt}, v{ldt}, v{ldt}")
    A(f"v_lshlrev_b32 v{ldt}, 16, v{ldt}")
    A(f"v_mul_f32 v{T0+4}, v{ldt}, v{lre}")
    A(f"v_mul_f32 v{T0+5}, v{ldt}, v{lim}")
    A(f"v_mul_f32 v{T0+4}, s{S_L2E}, v{T0+4}")
    A(f"v_exp_f32 v{T0+4}, v{T0+4}")
    A(f"v_mul_f32 v{T0+5}, {INV2PI:#x}, v{T0+5}")
    A(f"v_rndne_f32 v{T0+6}, v{T0+5}")
    A(f"v_sub_f32 v{T0+5}, v{T0+5}, v{T0+6}")
    A(f"v_cos_f32 v{T0+6}, v{T0+5}")
    A(f"v_sin_f32 v{T0+7}, v{T0+5}")
    A(f"v_mul_f32 v{C_LAM}, v{T0+4}, v{T0+6}")
    A(f"v_mul_f32 v{C_LAM+1}, v{T0+4}, v{T0+7}")
    A(f"v_add_f32 v{T0+4}, -1.0, v{C_LAM}")
    A(f"v_mul_f32 v{T0+5}, v{lre}, v{lre}")
    A(f"v_fmac_f32 v{T0+5}, v{lim}, v{lim}")
    A(f"v_rcp_f32 v{T0+5}, v{T0+5}")
    A(f"v_mul_f32 v{T0+6}, v{T0+4}, v{lre}")
    A(f"v_fmac_f32 v{T0+6}, v{C_LAM+1}, v{lim}")
    A(f"v_mul_f32 v{T0+7}, v{C_LAM+1}, v{lre}")
    A(f"v_fma_f32 v{T0+7}, -v{T0+4}, v{lim}, v{T0+7}")
    A(f"v_add_f32 v{T0+5}, v{T0+5}, v{T0+5}")
    A(f"v_mul_f32 v{C_C2}, v{T0+6}, v{T0+5}")
    A(f"v_mul_f32 v{C_C2+1}, v{T0+7}, v{T0+5}")
    pa, pb, tt = T0 + 8, T0 + 10, T0 + 12
    cmul(pa, C_LAM, C_LAM, tt)
    cmul(pb, pa, pa, tt)
    cmul(pa, pb, pb, tt)
    cmul(C_M1, pa, pa, tt)
    cmul(C_M2, C_M1, C_M1, tt)
    cmul(pa, C_M2, C_M2, tt)
    cmul(C_L, pa, pa, tt)
    def sel_pair(dst, src, mask):
        A(f"v_cndmask_b32_e64 v{dst}, 1.0, v{src}, s[{mask}:{mask+1}]")
        A(f"v_cndmask_b32_e64 v{dst+1}, 0, v{src+1}, s[{mask}:{mask+1}]")
    sel_pair(T0 + 14, C_M2, S_MG)
    sel_pair(T0 + 16, pa, S_MRH)
    cmul(C_MQ, T0 + 14, T0 + 16, tt)
    cmul(pa, C_L, C_L, tt)
    cmul(pb, pa, pa, tt)
    cmul(pa, pb, pb, tt)
    sel_pair(C_LQ, pa, S_MG)
    SET, A.cap = (A.cap or []), None
    LATEV = [x for x in SET if x.startswith("buffer_")]
    SET = [x for x in SET if not x.startswith("buffer_")]
    stamp(3)
    run(late)
    def rd(n):
        i, ks = n >> 2, n & 3
        slot, buf = i & 3, n & 1
        s2_, off = slot >> 1, (slot & 1) * SLOT
        x = [f"ds_read_b128 {vr(V_XF+buf*8+m*4,4)}, v{V_AX+4*s2_+ks} offset:{off+m*4096}" for m in range(2)]
        w = [f"ds_read_b128 {vr(V_WF+buf*8+ri*4,4)}, v{V_AW+4*s2_+ks} offset:{off+ri*8192}" for ri in range(2)]
        return [x[0], w[0], w[1], x[1]]
    def mm(n):
        buf = n & 1
        r = []
        for m, ri in ((0, 0), (0, 1), (1, 1), (1, 0)):
            d = vr((URE, UIM)[ri] + 16 * m, 16)
            r.append(mf(d, vr(V_XF + buf * 8 + m * 4, 4), vr(V_WF + buf * 8 + ri * 4, 4), d if n else "0"))
        return r
    fill = []
    def xs_load(m, s):
        return lambda: A(f"buffer_load_dwordx4 {vr(XS+8*m+4*s,4)}, v{V_XSO}, s[{SX}:{SX+3}], s{P_XS0+m} offen offset:{16*s}")
    def on_step(n):
        i, ks = n >> 2, n & 3
        if ks == 0 and OPT.get("g1st") and i: stamp(16 + i)
        if ks == 0:
            for st in SCHED[0].get(i, []): fill.extend(g1_pieces(st))
            if i == XST:
                fill.extend(c_pieces(1) + c_pieces(2))
            elif i == XST + 1:
                fill.extend(LATEV)
                fill.extend([xs_load(m, s) for m in range(2) for s in range(2)])
                if OPT.get("ptouch", 0):
                    fill.extend([f"buffer_load_dword v254, v{V_GO+k}, s[{SWS}:{SWS+3}], s{P_SAB} offen sc1" for k in range(4)])
                    fill.append(lambda: rdy_load(254, 254))
    A.wait_vm(tok[0])
    A("s_barrier")
    stamp(4)
    gemm_loop(32, rd, mm, lambda n: tok[n >> 2] if (n & 3) == 0 else None, (2, 2, 0, 0), lambda n: g1_gaps(n, ()), fill, on_step, end_barrier=True, extra=SET, nextra=lambda n, g: NX)
    assert not SET
    assert not fill
    stamp(5)
    P = [T0, T0 + 4]
    def lam_bc(hi): return f"op_sel:[{hi},0,0] op_sel_hi:[{hi},1,1]"
    NEG = "neg_lo:[1,0,0] neg_hi:[1,0,0]"
    cur_re, cur_im = URE, UIM
    for s in range(1, 16):
        d = P[s & 1]
        A(f"v_pk_fma_f32 {vr(d,2)}, {vr(C_LAM,2)}, {vr(cur_im,2)}, {vr(URE+2*s,2)} {lam_bc(1)} {NEG}")
        A(f"v_pk_fma_f32 {vr(d+2,2)}, {vr(C_LAM,2)}, {vr(cur_re,2)}, {vr(UIM+2*s,2)} {lam_bc(1)}")
        A(f"v_pk_fma_f32 {vr(d,2)}, {vr(C_LAM,2)}, {vr(cur_re,2)}, {vr(d,2)} {lam_bc(0)}")
        A(f"v_pk_fma_f32 {vr(d+2,2)}, {vr(C_LAM,2)}, {vr(cur_im,2)}, {vr(d+2,2)} {lam_bc(0)}")
        cur_re, cur_im = d, d + 2
    A0, BQ = T0 + 8, T0 + 10
    A(f"v_fma_f32 v{BQ}, v{C_M1}, v{cur_re}, v{cur_re+1}")
    A(f"v_fma_f32 v{BQ+1}, v{C_M1}, v{cur_im}, v{cur_im+1}")
    A(f"v_fma_f32 v{BQ}, -v{C_M1+1}, v{cur_im}, v{BQ}")
    A(f"v_fma_f32 v{BQ+1}, v{C_M1+1}, v{cur_re}, v{BQ+1}")
    A(f"ds_write_b64 v3, {vr(BQ,2)}")
    A(f"v_mov_b32 v{A0}, v{cur_re}")
    A(f"v_mov_b32 v{A0+1}, v{cur_im}")
    P2, P3, SS, tt = T0 + 20, T0 + 22, T0 + 24, T0 + 28
    def c2_bc(hi, n=3):
        return f"op_sel:[{hi},0,0] op_sel_hi:[{hi},1,1]" if n == 3 else f"op_sel:[{hi},0] op_sel_hi:[{hi},1]"
    cm = []
    for s in range(16):
        re, im, t = URE + 2 * s, UIM + 2 * s, T0 + 2 + 2 * (s & 1)
        cm += [f"v_pk_mul_f32 {vr(t,2)}, {vr(C_C2,2)}, {vr(re,2)} {c2_bc(1,2)} neg_lo:[1,0] neg_hi:[1,0]",
               f"v_pk_mul_f32 {vr(re,2)}, {vr(C_C2,2)}, {vr(re,2)} {c2_bc(0,2)}",
               f"v_pk_fma_f32 {vr(re,2)}, {vr(C_C2,2)}, {vr(im,2)}, {vr(re,2)} {c2_bc(1)} {NEG}",
               f"v_pk_fma_f32 {vr(im,2)}, {vr(C_C2,2)}, {vr(im,2)}, {vr(t,2)} {c2_bc(0)} {NEG}"]
    emit(cm[:8])
    if HAND: A.wait_both(tok["clr"], A.lg)
    else: A("s_waitcnt lgkmcnt(0)")
    A("s_barrier")
    B0 = T0 + 12
    for q in range(4):
        A(f"ds_read_b64 {vr(B0+2*q,2)}, v4 offset:{q*512}")
    emit(cm[8:24])
    A("s_waitcnt lgkmcnt(0)")
    cfma(P2, C_M2, B0, B0 + 2, tt)
    cfma(P3, C_M2, P2, B0 + 4, tt)
    cfma(tt, C_M2, P3, B0 + 6, tt)
    A(f"v_and_or_b32 v{SS}, v{tt}, s{P_MSK}, v{V_TAG}")
    A(f"v_and_or_b32 v{SS+1}, v{tt+1}, s{P_MSK}, v{V_TAG}")
    A(f"buffer_store_dwordx2 {vr(SS,2)}, v{V_PUB}, s[{SWS}:{SWS+3}], s{P_SAO} offen sc1")
    rdy_store()
    stamp(6)
    emit(cm[24:])
    LOC = T0 + 0
    for e in range(2):
        A(f"v_cndmask_b32_e64 v{T0+2+e}, 0, v{B0+e}, s[{S_MG}:{S_MG+1}]")
        A(f"v_cndmask_b32_e64 v{T0+4+e}, v{P2+e}, v{P3+e}, s[{S_MG}:{S_MG+1}]")
        A(f"v_cndmask_b32_e64 v{LOC+e}, v{T0+2+e}, v{T0+4+e}, s[{S_MRH}:{S_MRH+1}]")
    E0, F0, E1, F1 = T0 + 12, T0 + 14, T0 + 16, T0 + 18
    cfma(P2, C_M1, LOC, A0, tt)
    cmul(F1, C_C2, P2, tt)
    cmul(F0, C_C2, LOC, tt)
    cmul(E0, C_C2, C_MQ, tt)
    cmul(E1, E0, C_M1, tt)
    V_AH = V_AX
    A(f"v_bfe_u32 v9, v{V_LANE}, 4, 1")
    A(f"v_bfe_u32 v13, v{V_LANE}, 1, 1")
    A("v_lshl_add_u32 v9, v9, 1, v13")
    A(f"v_bfe_u32 v13, v{V_LANE}, 2, 2")
    A(f"v_lshl_add_u32 v13, v{V_G}, 3, v13")
    A("v_lshlrev_b32 v14, 2, v9")
    A("v_xor_b32 v13, v13, v14")
    A("v_lshlrev_b32 v13, 4, v13")
    A("v_lshl_add_u32 v13, v9, 9, v13")
    A(f"v_and_b32 v14, 1, v{V_LANE}")
    A("v_lshl_add_u32 v13, v14, 3, v13")
    A(f"s_lshl_b32 s{ST+2}, s{S_RH}, 13")
    A(f"v_add_u32 v{V_AH}, s{ST+2}, v13")
    A(f"v_xor_b32 v{V_AH+1}, 64, v{V_AH}")
    for st in (1, 2):
        A(f"v_add_u32 v{V_AH+2*st}, {st*0x10000:#x}, v{V_AH}")
        A(f"v_add_u32 v{V_AH+2*st+1}, {st*0x10000:#x}, v{V_AH+1}")
    V_SO = T0 + 24
    for o in range(1, 4):
        A(f"v_xor_b32 v{V_SO+o}, {o*64}, v{V_HSO}")
    CPRE = 8
    A(f"s_add_u32 s{SW}, s{SWS}, s{P_SAB}")
    A(f"s_addc_u32 s{SW+1}, s{SWS+1}, 0")
    A(f"s_mov_b32 s{SW+2}, 8192")
    GD = 48
    def loads():
        for i in range(8):
            A(f"buffer_load_dwordx2 {vr(GD+2*i,2)}, v{V_GO}, s[{SW}:{SW+3}], 0 offen offset:{i*512} sc1")
        rdy_load(14)
    def check():
        A(f"v_xor_b32 v13, v{GD}, v{V_GE}")
        for i in range(1, 8):
            A(f"v_bitop3_b32 v13, v{GD+2*i}, v{V_GE+i}, v13 bitop3:0xbe")
        rdy_check(9, 14)
        A("v_and_b32 v13, 0xff, v13")
        A("v_or_b32 v13, v13, v9")
        A(f"v_cmp_ne_u32 s[{S_FAIL}:{S_FAIL+1}], 0, v13")
    CM = 2 + OPT.get("cmid", 3)
    for st in CORD[2:CM]: run(c_pieces(st))
    loads()
    tok_p = A.vm
    for st in CORD[CM:]: run(c_pieces(st))
    tok_c = A.vm
    stamp(7)
    ok = lab("ok1")
    A.wait_vm(tok_p)
    for m in range(2):
        d = vr(ACC2 + 16 * m, 16)
        A(mf(d, vr(XS + 8 * m, 4), vr(DG, 4), "0"))
    check()
    A(f"s_cmp_eq_u64 s[{S_FAIL}:{S_FAIL+1}], 0")
    A(f"s_cbranch_scc1 {ok}")
    vm_keep = A.vm
    poll(loads, check)
    A.vm = vm_keep
    A.label(ok)
    stamp(8)
    h1, h2 = T0 + 20, T0 + 22
    cur = GD + 14
    for i in range(6, -1, -1):
        d = (h1, h2)[i & 1]
        cfma(d, C_L, cur, GD + 2 * i, tt)
        cur = d
    CQ = GD
    cmul(CQ, C_LQ, cur, tt)
    for e in range(2): A(f"v_mov_b32 v{CQ+2+e}, v{CQ+e}")
    for e in range(2): A(f"v_permlane32_swap_b32 v{CQ+e}, v{CQ+2+e}")
    A(f"v_pk_add_f32 {vr(CQ,2)}, {vr(CQ,2)}, {vr(CQ+2,2)}")
    def c_reads(st):
        s2_, off = CLDS[st] >> 16, CLDS[st] & 0xffff
        r = [None] * 8
        for ks in range(4):
            for ri in range(2):
                kap = (ks >> 1) * 4 + ri * 2 + (ks & 1)
                r[kap] = f"ds_read_b128 {ar((st*8+kap)*4,4)}, v{V_AW+4*s2_+ks} offset:{off+ri*8192}"
        return r
    for m in range(2):
        d = vr(ACC2 + 16 * m, 16)
        A(mf(d, vr(XS + 8 * m + 4, 4), vr(DG + 4, 4), d))
    HR, HI = T0 + 20, T0 + 22
    A(f"v_fma_f32 v{HR}, v{E0}, v{CQ}, v{F0}")
    A(f"v_fma_f32 v{HR+1}, v{E1}, v{CQ}, v{F1}")
    A(f"v_fma_f32 v{HI}, -v{E0}, v{CQ+1}, -v{F0+1}")
    A(f"v_fma_f32 v{HI+1}, -v{E1}, v{CQ+1}, -v{F1+1}")
    A(f"v_fma_f32 v{HR}, -v{E0+1}, v{CQ+1}, v{HR}")
    A(f"v_fma_f32 v{HR+1}, -v{E1+1}, v{CQ+1}, v{HR+1}")
    A(f"v_fma_f32 v{HI}, -v{E0+1}, v{CQ}, v{HI}")
    A(f"v_fma_f32 v{HI+1}, -v{E1+1}, v{CQ}, v{HI+1}")
    pr, pi_ = HR, HI
    def hstore(ph, o):
        A(f"buffer_store_dwordx4 {vr(HP+16*ph+4*o,4)}, v{V_SO+o if o else V_HSO}, s[{SWS}:{SWS+3}], s{P_ACTW+ph} offen offset:{o*512} sc1")
    for hf in range(2):
        for s in range(8 * hf, 8 * hf + 8):
            re, im = URE + 2 * s, UIM + 2 * s
            emit([f"v_pk_fma_f32 {vr(re,2)}, {vr(C_LAM,2)}, {vr(pi_,2)}, {vr(re,2)} {lam_bc(1)}",
                  f"v_pk_fma_f32 {vr(im,2)}, {vr(C_LAM,2)}, {vr(pr,2)}, {vr(im,2)} {lam_bc(1)} {NEG}",
                  f"v_pk_fma_f32 {vr(re,2)}, {vr(C_LAM,2)}, {vr(pr,2)}, {vr(re,2)} {lam_bc(0)}",
                  f"v_pk_fma_f32 {vr(im,2)}, {vr(C_LAM,2)}, {vr(pi_,2)}, {vr(im,2)} {lam_bc(0)}"])
            pr, pi_ = re, im
        for z in range(2):
            o = 2 * z + hf
            for ri in range(2):
                U = (URE, UIM)[ri]
                for u in range(4):
                    s0 = 8 * hf + 2 * u
                    A(f"v_cvt_pk_bf16_f32 v{HP+(ri*4+o)*4+u}, v{U+2*s0+z}, v{U+2*s0+2+z}")
            for u in range(4):
                A(f"v_permlane32_swap_b32 v{HP+o*4+u}, v{HP+16+o*4+u}")
            hstore(0, o)
    tok_a = A.vm
    for o in range(4): hstore(1, o)
    tok_h = A.vm
    stamp(9)
    HS = [3, 4, 0, 1, 3, 4, 0, 1]
    def h_pieces(G):
        r = []
        for sub in range(2):
            pos, ph = SEQ[2 * G + sub]
            r += dma_pieces(V_LIN, SWS, ST + 8, HS[G] * SLOT + sub * 16384,
                            pre=lambda pos=pos, ph=ph: (A(f"s_lshl_b32 s{ST+8}, s{KAP[pos]}, 15"), A(f"s_add_u32 s{ST+8}, s{ST+8}, s{P_ACTR+ph}")),
                            post=(lambda: tok.__setitem__(("h", G), A.vm)) if sub else None, flags=PLF, same_v=True)
        return r
    assert CPRE == 8
    call = sum([c_reads(st) for st in [0, 1, 2, 3, 4, 5, 6, 7]], [])
    HF = 48
    def rd2(n):
        G, q = n >> 2, n & 3
        slot, buf = HS[G], n & 1
        r = []
        for h in range(4):
            kap = 4 * (q & 1) + h
            off = (slot & 1) * SLOT + (q >> 1) * 16384 + (kap >> 2) * 4096 + ((kap >> 1) & 1) * 2048 + (kap & 1) * 256
            for j in range(2):
                if True:
                    r.append(f"ds_read_b64_tr_b16 {vr(HF+buf*16+h*4+2*j,2)}, v{V_AH+2*(slot>>1)+j} offset:{off}")
        return r
    def mm2(n):
        buf = n & 1
        pos, ph = SEQ[n >> 1]
        d = vr(ACC2 + 16 * ph, 16)
        return [mf(d, vr(HF + buf * 16 + h * 4, 4), ar((8 * pos + 4 * (n & 1) + h) * 4, 4), d) for h in range(4)]
    xcc_decide(14)
    A.wait_vm(tok_c)
    A("s_barrier")
    slin(ST + 2, 3 * SLOT, (S_WAVE, 4096))
    A(f"v_add_u32 v{V_GO}, s{ST+2}, v{V_HSO}")
    for o in range(1, 4): A(f"v_xor_b32 v{V_GO+o}, {o*64}, v{V_GO}")
    for p in range(8):
        A(f"ds_write_b128 v{V_GO+(p&3)}, {vr(HP+4*p,4)} offset:{(p>>2)*16384+(p&3)*512}")
    emit(call[:8])
    A("s_waitcnt lgkmcnt(0)")
    A("s_barrier")
    cf = call[8:32]
    gemm_loop(4, rd2, mm2, lambda n: None, (3, 3, 2, 0), (2, 3), cf)
    A.wait_vm(tok_a)
    flag_store(0)
    emit(cf)
    A("s_waitcnt lgkmcnt(0)")
    A("s_barrier")
    stamp(10)
    A.wait_vm(tok_h)
    flag_store(1)
    flag_poll(0)
    stamp(11)
    weave(call[32:], h_pieces(1) + h_pieces(2), 2)
    stamp(12)
    fill = []
    h4 = h_pieces(4)
    def on_step2(n):
        G, q = n >> 2, n & 3
        if n == 7:
            A.wait_vm(tok["fb"])
            flag_check(1)
        if q == 0:
            if G == 1: fill.extend([lambda: (flag_load(1), tok.__setitem__("fb", A.vm))] + h_pieces(3) + h4[:4])
            elif G == 2: fill.extend(h4[4:] + h_pieces(5))
            elif G + 3 < 8: fill.extend(h_pieces(G + 3))
            elif G == 5: fill.extend(out_stores(ACC2, 0))
    A.wait_both(tok[("h", 1)], A.lg)
    A("s_barrier")
    stamp(13)
    gemm_loop(32, rd2, mm2, lambda n: tok[("h", n >> 2)] if (n & 3) == 0 else None, (3, 3, 2, 0),
              lambda n: (0, 1, 2, 3) if n < 12 else (2, 3), fill, on_step2, start=4)
    assert not fill
    stamp(14)
    run(out_stores(ACC2, 1))
    tag_update("A")
    stamp(15)
    finish()

def role_B():
    V_OO = 24
    V_AX, V_AT = 28, 36
    V_SW, V_SR, V_P2, V_G2B, V_PB0, V_PB1, V_G1, V_GZ, V_G2, V_P2Z = 39, 40, 41, 42, 43, 44, 45, 46, 47, 253
    S_WPH, V_WPO = P0 + 12, 252
    IDF = 240
    V_WF = 48
    KACC, VACC, PK, KV, WPH = 64, 96, 128, 192, 224
    T0 = 232
    P_P1O, P_P1G, P_P2O, P_P2G, P_MSK = P0 + 1, P0 + 2, P0 + 8, P0 + 9, P0 + 10
    S_PART = 57
    NS = 16 if OPT.get('p16', 1) else 32
    WPS = OPT.get('wps', 1)
    QE = OPT.get('qe', 0)
    code_prefetch()
    A("v_lshrrev_b32 v9, 1, v3")
    A("v_xor_b32 v9, v9, v4")
    A("v_lshlrev_b32 v9, 4, v9")
    A("v_lshl_add_u32 v10, v3, 10, v9")
    slin(ST, 0, (S_CHUNK, 1 << 17), (S_WAVE, 1 << 15))
    A(f"v_add_u32 v{V_OX}, s{ST}, v10")
    A(f"v_xor_b32 v11, 64, v{V_OX}")
    A(f"v_add_u32 v{V_OX+1}, 7168, v11")
    A(f"v_add_u32 v{V_OX+2}, {2*7168}, v{V_OX}")
    A(f"v_add_u32 v{V_OX+3}, {3*7168}, v11")
    A("v_bfe_u32 v9, v3, 1, 1")
    A("v_lshlrev_b32 v9, 2, v9")
    A("v_xor_b32 v9, v9, v4")
    A("v_lshlrev_b32 v9, 4, v9")
    A(f"s_lshl_b32 s{ST}, s{S_CG}, 7")
    A(f"v_add_u32 v9, s{ST}, v9")
    A(f"s_lshl_b32 s{ST+1}, s{S_CH}, 5")
    A(f"v_add_u32 v10, s{ST+1}, v3")
    A("v_mul_u32_u24 v11, 3072, v10")
    A(f"v_add_u32 v{V_OW}, v11, v9")
    for p in range(1, 4): A(f"v_add_u32 v{V_OW+p}, {p*(8*3072-1024)}, v{V_OW}")
    A(f"v_lshl_add_u32 v{V_OO}, v10, 10, v9")
    slin(S_PART, 1024, (S_RH, 1024))
    A("s_waitcnt lgkmcnt(0)")
    srd(SW, K_WQKV, 0x180000)
    stamp(1)
    A(f"s_load_dword s{S_TAG}, s[{K_WS}:{K_WS+1}], {WS_TAGB}")
    srd(SX, K_BX, 0x200000)
    tok = {}
    def g1_pieces(i):
        slot = i & 3
        return (dma_pieces(V_OW, SW, ST + 8, slot * SLOT, pre=lambda: rot_soff(ST + 8, i, mul=196608, plus=S_PART, rot=S_ROT1)) +
                dma_pieces(V_OX, SX, ST + 10, slot * SLOT + 16384, pre=lambda: rot_soff(ST + 10, i, shift=7, rot=S_ROT1),
                           post=lambda: tok.__setitem__(i, A.vm), flags=XF))
    QSLOT = [4, 0]; OSLOT = [1, 2]
    def q_pieces(st):
        return dma_pieces(V_OW, SW, ST + 9, QSLOT[st >> 1] * SLOT + (st & 1) * 16384,
                          pre=lambda: rot_soff(ST + 9, 2 * st, mul=196608, extra_sreg=S_RH, rot=S_ROT1), post=lambda: tok.__setitem__(("q", st), A.vm))
    OPAIR = [(1, 2), (0, 3), (4, 5), (6, 7)]
    OLDS = {}
    for st_, pr_ in enumerate(OPAIR):
        for e_ in range(2): OLDS[pr_[e_]] = OSLOT[st_ >> 1] * SLOT + (st_ & 1) * 16384 + e_ * 8192
    def o_pieces(st):
        def pre():
            A(f"s_cmp_eq_u32 s{S_RH}, 0")
            A(f"s_cselect_b32 s{ST+9}, s{KAP[OPAIR[st][0]]}, s{KAP[OPAIR[st][1]]}")
            A(f"s_lshl_b32 s{ST+9}, s{ST+9}, 16")
        return dma_pieces(V_OO, SW2, ST + 9, OSLOT[st >> 1] * SLOT + (st & 1) * 16384, pre=pre)
    run(g1_pieces(0))
    WPL = 4 * SLOT
    srd(SW2, K_WPHI, 0x4000)
    A(f"v_lshlrev_b32 v{V_LIN}, 4, v{V_LANE}")
    slin(ST, 0, (S_CG, 2048), (S_CH, 1024))
    A(f"s_lshl_b32 s{ST+1}, s{S_WAVE}, 10")
    A(f"s_add_u32 m0, s{ST+1}, {WPL:#x}")
    A(f"buffer_load_dwordx4 v{V_LIN}, s[{SW2}:{SW2+3}], s{ST} offen lds")
    late = g1_pieces(1)
    if EARLY:
        run(late[:NPRE]); late = late[NPRE:] + g1_pieces(2)
    else:
        run(late); late = []
    if OPT.get("wtouch", 0):
        slin(ST, 0, (S_CHUNK, 32), (S_WAVE, 8))
        A(f"v_add_u32 v9, s{ST}, v4")
        A("v_mul_u32_u24 v10, 3072, v9")
        A("v_lshlrev_b32 v9, 10, v9")
        A(f"s_lshl_b32 s{ST}, s{S_CG}, 7")
        A(f"buffer_load_dword v254, v10, s[{SW}:{SW+3}], s{ST} offen")
        A(f"buffer_load_dword v254, v9, s[{SW2}:{SW2+3}], s{ST} offen")
    stamp(2)
    cut("B")
    A(f"s_lshl_b32 s{ST}, s{S_RH}, 13")
    lds_b128_addrs(V_AX, ST, 16384, 2)
    A(f"v_bfe_u32 v9, v{V_LANE}, 4, 1")
    A(f"v_bfe_u32 v13, v{V_LANE}, 1, 1")
    A("v_lshl_add_u32 v10, v9, 1, v13")
    A(f"v_bfe_u32 v13, v{V_LANE}, 3, 1")
    A(f"v_xor_b32 v13, s{S_CH}, v13")
    A("v_lshl_add_u32 v9, v13, 2, v10")
    A("v_lshlrev_b32 v9, 4, v9")
    A(f"v_and_b32 v10, 1, v{V_LANE}")
    A("v_lshl_add_u32 v9, v10, 3, v9")
    A(f"v_bfe_u32 v14, v{V_LANE}, 2, 2")
    A(f"v_lshl_add_u32 v13, v{V_G}, 3, v14")
    A(f"v_lshl_add_u32 v{V_AT}, v13, 7, v9")
    A(f"v_add_u32 v{V_AT+1}, 0x10000, v{V_AT}")
    A(f"v_add_u32 v{V_AT+2}, 0x20000, v{V_AT}")
    if OPT.get("lateset", 1): A.cap = []
    srd(SW2, K_WO, 0x80000)
    common_setup("B")
    for p in range(1, 4): A(f"v_add_u32 v{V_OO+p}, {p*7168}, v{V_OO}")
    A(f"v_bfe_u32 v9, v{V_LANE}, 4, 1")
    A(f"v_bfe_u32 v13, v{V_LANE}, 1, 1")
    A("v_lshl_add_u32 v9, v9, 1, v13")
    A("v_lshlrev_b32 v9, 3, v9")
    A(f"v_bfe_u32 v13, v{V_LANE}, 2, 2")
    A(f"v_lshl_add_u32 v13, v{V_G}, 2, v13")
    A("v_lshl_add_u32 v9, v13, 5, v9")
    slin(ST, WPL, (S_WAVE, 1024))
    A(f"v_add_u32 v{V_WPO}, s{ST}, v9")
    if NS == 32: slin(ST, 0, (S_CG, 512), (S_CH, 256), (S_CHUNK, 2), (S_RH, 1))
    else:
        slin(ST, 0, (S_CG, 256), (S_CH, 128), (S_RH, 32), (S_CHUNK, 1))
    slin(P_P1O, WS_P1, (ST, 640))
    slin(ST, 0, (S_CG, 16), (S_CHUNK, 1))
    slin(P_P2O, WS_P2, (ST, 640))
    slin(P_P1G, WS_P1, (ST, NS * 640))
    for k in range(1, 4): A(f"s_add_u32 s{P_P1G+k}, s{P_P1G}, {8*k*640}")
    slin(ST, 0, (S_CG, 16), (S_CH, 8))
    slin(P_P2G, WS_P2, (ST, 640))
    A(f"s_mov_b32 s{P_MSK}, 0xffffff00")
    slin(P_ACTW, WS_O, (S_CHUNK, 1 << 17), (S_CG, 1 << 14), (S_RH, 1 << 12), (S_CH, 1 << 11))
    A(f"s_add_u32 s{P_ACTW2}, s{P_ACTW}, 8192")
    slin(P_ACTR, WS_O, (S_CHUNK, 1 << 17), (S_MF, 8192), (S_WAVE, 2048))
    A(f"s_lshl_b32 s{S_M0W2}, s{S_WAVE}, 11")
    A(f"s_xor_b32 s{P_ACTR2}, s{P_ACTR}, 8192")
    clears = [f"buffer_store_dwordx4 {vr(T0+16,4)}, v{V_LIN}, s[{SWS}:{SWS+3}], s{P_ACTW+(k>>1)} offen offset:{(k&1)*1024} sc1" for k in range(4)]
    A(f"s_and_b32 s{ST}, s{S_TAG}, 0xff")
    A(f"v_mov_b32 v{V_TAG}, s{ST}")
    A(f"v_mov_b32 v11, s{S_TAG}")
    A(f"v_and_b32 v9, 1, v{V_N}")
    A("v_lshlrev_b32 v9, 4, v9")
    A("v_mov_b32 v13, 0x3f80")
    A("v_lshlrev_b32 v13, v9, v13")
    A(f"v_lshrrev_b32 v9, 1, v{V_N}")
    A(f"v_lshlrev_b32 v14, 3, v{V_G}")
    A("v_sub_u32 v9, v9, v14")
    for q in range(8):
        A(f"v_cmp_eq_u32 vcc, {q}, v9")
        A(f"v_cndmask_b32_e64 v{IDF+q}, 0, v13, vcc")
    A(f"v_and_b32 v9, 15, v{V_LANE}")
    A("v_cmp_gt_u32 vcc, 4, v9")
    A("v_lshlrev_b32 v9, 4, v9")
    A(f"v_lshl_add_u32 v13, v{V_G}, 6, v9")
    A("v_add_u32 v13, 512, v13")
    A(f"v_lshl_add_u32 v9, v{V_G}, 8, v9")
    A(f"v_mov_b32 v14, {OOB:#x}")
    A("v_cndmask_b32 v13, v14, v13, vcc")
    A(f"v_cndmask_b32_e64 v{V_PB0}, v9, v13, s[{S_M16}:{S_M16+1}]")
    A(f"v_cndmask_b32_e64 v{V_PB1}, v13, v9, s[{S_M16}:{S_M16+1}]")
    A(f"v_cndmask_b32_e64 v13, v13, v14, s[{S_M16}:{S_M16+1}]")
    A(f"s_cmp_eq_u32 s{S_WAVE}, 0")
    A(f"s_cselect_b64 vcc, -1, 0")
    A(f"v_cndmask_b32 v{V_P2Z}, v14, v13, vcc")
    A(f"v_and_b32 v9, 7, v{V_LANE}")
    A(f"s_lshl_b32 s{ST}, s{S_WAVE}, 7")
    A(f"v_lshl_add_u32 v9, v9, 4, s{ST}")
    A(f"v_lshrrev_b32 v13, 3, v{V_LANE}")
    A("v_mul_u32_u24 v13, 640, v13")
    A(f"v_add_u32 v{V_G1}, v9, v13")
    A(f"v_cmp_gt_u32 vcc, 8, v{V_LANE}")
    A(f"v_and_b32 v13, {NS-1}, v{V_N}")
    A(f"v_mul_u32_u24 v{V_GZ}, 640, v13")
    if NS == 16:
        slin(ST, 3 * SLOT, (S_WAVE, 4096))
        A(f"v_add_u32 v{V_SW}, s{ST}, v{V_LIN}")
        A(f"v_xor_b32 v{V_SR}, 0x2000, v{V_SW}")
    A(f"v_lshl_add_u32 v{V_GZ}, v{V_G}, 6, v{V_GZ}")
    A(f"v_cndmask_b32 v{V_P2}, v14, v9, vcc")
    A(f"v_bfe_u32 v9, v{V_N}, 2, 1")
    A("v_lshlrev_b32 v9, 3, v9")
    A(f"v_bfe_u32 v13, v{V_N}, 3, 1")
    A("v_lshl_add_u32 v9, v13, 2, v9")
    A(f"v_and_b32 v13, 3, v{V_N}")
    A("v_add_u32 v9, v9, v13")
    A(f"v_cndmask_b32_e64 v9, v9, 32, s[{S_M16}:{S_M16+1}]")
    A("v_lshlrev_b32 v9, 4, v9")
    A(f"v_mul_u32_u24 v13, 1280, v{V_G}")
    A(f"v_add_u32 v{V_G2}, v9, v13")
    A("v_mov_b32 v9, 0x100")
    A(f"v_cndmask_b32_e64 v9, v9, 64, s[{S_M16}:{S_M16+1}]")
    A(f"v_add_u32 v{V_G2B}, v{V_G2}, v9")
    if OPT.get("prew", 1):
        for r in range(4): A(f"v_subrev_u32 v{T0+4+r}, 1, v{V_TAG}")
        A(f"buffer_store_dwordx4 {vr(T0+4,4)}, v{V_P2Z}, s[{SWS}:{SWS+3}], s{P_P2O} offen sc1")
        A(f"buffer_store_dwordx4 {vr(T0+4,4)}, v{V_P2}, s[{SWS}:{SWS+3}], s{P_P2O} offen sc1")
    A("v_mov_b32 v3, 0x3f803f80")
    A(f"v_bfe_u32 v4, v{V_LANE}, 2, 1")
    A("v_mul_u32_u24 v4, 0x8000, v4")
    A("v_lshl_or_b32 v4, v4, 16, v4")
    SET, A.cap = (A.cap or []), None
    LATEV = [x for x in SET if x.startswith("buffer_")]
    SET = [x for x in SET if not x.startswith("buffer_")]
    stamp(3)
    run(late)
    def trfrag(dst, ldsoff, kind="v"):
        s_, off = ldsoff >> 16, ldsoff & 0xffff
        return [f"ds_read_b64_tr_b16 {vr(dst+2*j,2,kind)}, v{V_AT+s_} offset:{off+j*512}" for j in range(2)]
    def rd(n):
        i, ks = n >> 2, n & 3
        slot, buf = i & 3, n & 1
        s2_, off = slot >> 1, (slot & 1) * SLOT
        x = [f"ds_read_b128 {ar(n*8+m*4,4)}, v{V_AX+4*s2_+ks} offset:{off+m*4096}" for m in range(2)]
        w = [trfrag(V_WF + buf * 8 + part * 4, slot * SLOT + part * 8192 + ks * 2048) for part in range(2)]
        return [x[0]] + w[0] + [x[1]] + w[1]
    def mm(n):
        buf = n & 1
        r = []
        for part, m in ((0, 0), (0, 1), (1, 0), (1, 1)):
            x, w = ar(n * 8 + m * 4, 4), vr(V_WF + buf * 8 + part * 4, 4)
            d = vr((KACC, VACC)[part] + 16 * m, 16)
            r.append(mf(d, w, x, d if n else "0") if part == 0 else mf(d, x, w, d if n else "0"))
        return r
    fill = []
    def on_step(n):
        i, ks = n >> 2, n & 3
        if ks == 0 and OPT.get("g1st") and i: stamp(16 + i)
        if ks == 0:
            for st in SCHED[0].get(i, []): fill.extend(g1_pieces(st))
            if i == 5: fill.extend(q_pieces(0) + LATEV + (q_pieces(1) if QE == 1 else []))
            if i == 6:
                fill.extend((q_pieces(2) + q_pieces(3)) if QE == 1 else o_pieces(0))
                if OPT.get("ptouch", 0):
                    fill.extend([f"buffer_load_dword v254, v{V_G1}, s[{SWS}:{SWS+3}], s{P_P1G+k} offen sc1" for k in range(4)])
                    fill.append(f"buffer_load_dword v254, v{V_GZ}, s[{SWS}:{SWS+3}], s{P_P1G} offen sc1")
                    fill.extend([f"buffer_load_dword v254, v{V_G2}, s[{SWS}:{SWS+3}], s{P_P2G} offen offset:{(hh*4+jp)*640} sc1" for hh in range(2) for jp in range(2)])
                    fill.append(lambda: rdy_load(254, 254))
            elif i == 7:
                fill.extend(o_pieces(0) if QE == 1 else o_pieces(1))
                fill.append(lambda: emit([f"v_xor_b32 v{WPH+r}, v4, v{WPH+r}" for r in range(4)]))
                fill.append(lambda: emit([f"v_xor_b32 v{WPH+r}, v4, v{WPH+r}" for r in range(4, 8)]))
        if n == 17:
            emit([f"ds_read_b64_tr_b16 {vr(WPH+4*hh+2*j,2)}, v{V_WPO} offset:{hh*512+j*256}" for hh in range(2) for j in range(2)])
    A.wait_vm(tok[0])
    A("s_barrier")
    stamp(4)
    gemm_loop(32, rd, mm, lambda n: tok[n >> 2] if (n & 3) == 0 else None, (3, 3, 0, 0), lambda n: g1_gaps(n, ()), fill, on_step, end_barrier=True, extra=SET, nextra=lambda n, g: NX)
    assert not SET
    assert not fill
    stamp(5)
    def feat(acc):
        for m in range(2):
            for u in range(8):
                A(f"v_cvt_pk_bf16_f32 v{acc+16*m+u}, v{acc+16*m+2*u}, v{acc+16*m+2*u+1}")
            for hh in range(2):
                A(mf(vr(PK + (m * 2 + hh) * 16, 16), vr(WPH + 4 * hh, 4), vr(acc + 16 * m + 4 * hh, 4), "0"))
    def softmax_l(x, dst):
        mx, sm = T0, T0 + 2
        l = [f"v_max3_f32 v{mx}, v{x}, v{x+1}, v{x+2}"]
        for u in range(3, 15, 2):
            l.append(f"v_max3_f32 v{mx}, v{mx}, v{x+u}, v{x+u+1}")
        l.append(f"v_max_f32 v{mx}, v{mx}, v{x+15}")
        l.append(f"v_mul_f32 v{mx}, s{S_L2E}, v{mx}")
        for u in range(8):
            l.append(f"v_pk_fma_f32 {vr(x+2*u,2)}, {vr(x+2*u,2)}, s[{S_L2E}:{S_L2E+1}], {vr(mx,2)} op_sel_hi:[1,1,0] neg_lo:[0,0,1] neg_hi:[0,0,1]")
        for u in range(16):
            l.append(f"v_exp_f32 v{x+u}, v{x+u}")
        l.append(f"v_pk_add_f32 {vr(sm,2)}, {vr(x,2)}, {vr(x+2,2)}")
        for u in range(2, 8):
            l.append(f"v_pk_add_f32 {vr(sm,2)}, {vr(sm,2)}, {vr(x+2*u,2)}")
        l.append(f"v_add_f32 v{sm}, v{sm}, v{sm+1}")
        l.append(f"v_rcp_f32 v{sm}, v{sm}")
        for u in range(8):
            l.append(f"v_pk_mul_f32 {vr(x+2*u,2)}, {vr(x+2*u,2)}, {vr(sm,2)} op_sel_hi:[1,0]")
        for u in range(8):
            l.append(f"v_cvt_pk_bf16_f32 v{dst+u}, v{x+2*u}, v{x+2*u+1}")
        return l
    feat(KACC)
    for m in range(2):
        for u in range(8):
            A(f"v_cvt_pk_bf16_f32 v{VACC+16*m+u}, v{VACC+16*m+2*u}, v{VACC+16*m+2*u+1}")
    for m in range(2):
        for u in range(8):
            A(f"v_cndmask_b32_e64 v{VACC+16*m+8+u}, v3, v{VACC+16*m+u}, s[{S_M16}:{S_M16+1}]")
            A(f"v_cndmask_b32_e64 v{VACC+16*m+u}, v{VACC+16*m+u}, v3, s[{S_M16}:{S_M16+1}]")
    nbstamp(0)
    PH = [KACC + 8, KACC + 24]
    ID = T0 + 8
    def tmm(blk):
        d = vr(PK + 16 * blk, 16)
        return [mf(d, vr(PH[blk & 1] + 4 * jp, 4), vr(ID + 4 * jp, 4), d if jp else "0") for jp in range(2)]
    def tcvt(blk):
        t = PK + 16 * blk
        return [f"v_cvt_pk_bf16_f32 v{t+u}, v{t+2*u}, v{t+2*u+1}" for u in range(8)]
    def kvmm(blk):
        m, hh = blk >> 1, blk & 1
        d = vr(KV + 16 * hh, 16)
        return [mf(d, vr(PK + 16 * blk + 4 * mm_, 4), vr(VACC + 16 * m + 8 * hh + 4 * mm_, 4), d if (m or mm_) else "0") for mm_ in range(2)]
    for blk in range(4):
        l = softmax_l(PK + blk * 16, PH[blk & 1])
        if blk:
            t, kv = tmm(blk - 1), kvmm(blk - 1)
            l = l[:17] + [t[0]] + l[17:21] + [t[1]] + l[21:33] + tcvt(blk - 1) + l[33:50] + [kv[0]] + l[50:58] + [kv[1]]
        emit(l)
        if blk < 3 and not QE: run(q_pieces(blk + 1))
        nbstamp(1 + blk)
    TS = 4 if OPT.get("tag1", 1) else 1
    def tagit(r, n):
        for e in range(0, n, TS):
            A(f"v_and_or_b32 v{r+e}, v{r+e}, s{P_MSK}, v{V_TAG}")
    def pub(hh, oc):
        A(f"s_add_u32 s{ST+3}, s{P_P1O}, {(hh*4+oc)*32*640}")
        A(f"buffer_store_dwordx4 {vr(KV+16*hh+4*oc,4)}, v{V_PB0+hh}, s[{SWS}:{SWS+3}], s{ST+3} offen sc1")
    if NS == 32:
        emit(tmm(3))
        tagit(KV, 16)
        pub(0, 0); pub(0, 1)
        emit(tcvt(3))
        emit(kvmm(3))
        nbstamp(5)
        pub(0, 2); pub(0, 3)
        tagit(KV + 16, 16)
        for oc in range(4): pub(1, oc)
    else:
        RB = PK
        def tail(rh):
            keep, send = 8 * rh, 8 - 8 * rh
            emit(tmm(3))
            for u in range(2): A(f"ds_write_b128 v{V_SW}, {vr(KV+send+4*u,4)} offset:{u*1024}")
            emit(tcvt(3))
            emit(kvmm(3))
            for u in range(2): A(f"ds_write_b128 v{V_SW}, {vr(KV+16+send+4*u,4)} offset:{(2+u)*1024}")
            A("s_waitcnt lgkmcnt(0)")
            A("s_barrier")
            for u in range(4): A(f"ds_read_b128 {vr(RB+4*u,4)}, v{V_SR} offset:{u*1024}")
            for hh in range(2):
                for jj in range(2):
                    r = KV + 16 * hh + keep + 4 * jj
                    A(f"s_add_u32 s{ST+3}, s{P_P1O}, {(hh*4+jj)*16*640}")
                    A(f"s_waitcnt lgkmcnt({3-2*hh-jj})")
                    for u in range(2):
                        A(f"v_pk_add_f32 {vr(r+2*u,2)}, {vr(r+2*u,2)}, {vr(RB+8*hh+4*jj+2*u,2)}")
                    tagit(r, 4)
                    A(f"buffer_store_dwordx4 {vr(r,4)}, v{V_PB0+hh}, s[{SWS}:{SWS+3}], s{ST+3} offen sc1")
        l1, l2 = lab("rh1"), lab("rhj")
        A(f"s_cmp_lg_u32 s{S_RH}, 0")
        A(f"s_cbranch_scc1 {l1}")
        st_ = (A.vm, A.lg, list(A.hist))
        tail(0)
        A(f"s_branch {l2}")
        A.label(l1)
        A.vm, A.lg, A.hist = st_[0], st_[1], list(st_[2])
        tail(1)
        A.label(l2)
    QACC = KACC
    def qaddr(n):
        i, ks = n >> 2, n & 3
        return QSLOT[i >> 2] * SLOT + (i & 3) * 8192 + ks * 2048
    def rdq(n):
        return trfrag(V_WF + (n & 1) * 8, qaddr(2 * n)) + trfrag(V_WF + (n & 1) * 8 + 4, qaddr(2 * n + 1))
    def mmq(n):
        r = []
        for h in range(2):
            for m in range(2):
                d = vr(QACC + 16 * m, 16)
                r.append(mf(d, vr(V_WF + (n & 1) * 8 + 4 * h, 4), ar((2 * n + h) * 8 + m * 4, 4), d if (n or h) else "0"))
        return r
    stamp(6)
    nbflush()
    GD = VACC
    GZ = GD + 16
    g1l = [f"buffer_load_dwordx4 {vr(GD+4*k,4)}, v{V_G1}, s[{SWS}:{SWS+3}], s{P_P1G+k} offen sc1" for k in range(NS // 8)]
    g1l.append(f"buffer_load_dwordx4 {vr(GZ,4)}, v{V_GZ}, s[{SWS}:{SWS+3}], s{P_P1G} offen offset:512 sc1")
    S_D1, S_RET = P0 + 11, ST + 6
    A(f"s_mov_b32 s{S_D1}, 0")
    def try1a(block=False):
        skip = lab("sk")
        if block:
            A(f"s_cmp_lg_u32 s{S_D1}, 0")
        else:
            A(f"s_getreg_b32 s{ST+5}, hwreg(HW_REG_IB_STS, 0, 4)")
            A(f"s_or_b32 s{ST+5}, s{ST+5}, s{S_D1}")
        A(f"s_cbranch_scc1 {skip}")
        A(f"s_call_b64 s[{S_RET}:{S_RET+1}], L_try1a")
        A.label(skip)
    def sub_try1a():
        A.label("L_try1a")
        A.hist = []
        A("s_waitcnt vmcnt(0)")
        A(f"v_xor_b32 v13, v{GD}, v{V_TAG}")
        for s in [x for x in range(TS, 20, TS) if x < NS // 2 or x >= 16]:
            A(f"v_bitop3_b32 v13, v{GD+s}, v{V_TAG}, v13 bitop3:0xbe")
        A("v_and_b32 v13, 0xff, v13")
        A(f"v_cmp_ne_u32 s[{S_FAIL}:{S_FAIL+1}], 0, v13")
        A(f"s_cmp_eq_u64 s[{S_FAIL}:{S_FAIL+1}], 0")
        A("s_cbranch_scc1 L_try1a_ok")
        emit(g1l)
        A(f"s_setpc_b64 s[{S_RET}:{S_RET+1}]")
        A.label("L_try1a_ok")
        DPP = "row_mask:0xf bank_mask:0xf"
        A(f"v_permlane16_swap_b32 v{GZ}, v{GZ+2}")
        A(f"v_permlane16_swap_b32 v{GZ+1}, v{GZ+3}")
        if NS == 32:
            for u in range(0, 8, 2):
                A(f"v_pk_add_f32 {vr(GD+u,2)}, {vr(GD+u,2)}, {vr(GD+8+u,2)}")
            A(f"v_pk_add_f32 {vr(GZ,2)}, {vr(GZ,2)}, {vr(GZ+2,2)}")
        for u in range(0, 4, 2):
            A(f"v_pk_add_f32 {vr(GD+u,2)}, {vr(GD+u,2)}, {vr(GD+4+u,2)}")
        def zror(k):
            for e in range(2): A(f"v_add_f32_dpp v{GZ+e}, v{GZ+e}, v{GZ+e} row_ror:{k} {DPP}")
        zror(1)
        A(f"v_permlane32_swap_b32 v{GD}, v{GD+1}")
        A(f"v_permlane32_swap_b32 v{GD+2}, v{GD+3}")
        zror(2)
        A(f"v_add_f32 v{GD}, v{GD}, v{GD+1}")
        A(f"v_add_f32 v{GD+2}, v{GD+2}, v{GD+3}")
        zror(4)
        A(f"v_permlane16_swap_b32 v{GD}, v{GD+2}")
        A(f"v_add_f32 v{GD}, v{GD}, v{GD+2}")
        zror(8)
        A(f"v_add_f32_dpp v{GD}, v{GD}, v{GD} row_ror:8 {DPP}")
        for e in range(2): A(f"v_and_or_b32 v{GZ+e}, v{GZ+e}, s{P_MSK}, v{V_TAG}")
        A(f"v_and_or_b32 v{GD}, v{GD}, s{P_MSK}, v{V_TAG}")
        for e in range(2): A(f"v_mov_b32 v{GZ+2+e}, v{GZ+e}")
        A(f"v_mov_b32 v{GD+1}, v{GD}")
        A(f"v_permlane16_swap_b32 v{GZ}, v{GZ+2}")
        A(f"v_permlane16_swap_b32 v{GZ+1}, v{GZ+3}")
        A(f"v_permlane32_swap_b32 v{GD}, v{GD+1}")
        A(f"buffer_store_dwordx4 {vr(GZ,4)}, v{V_P2Z}, s[{SWS}:{SWS+3}], s{P_P2O} offen sc1")
        A(f"v_mov_b32 v{GD+2}, v{GD}")
        A(f"v_mov_b32 v{GD+3}, v{GD+1}")
        A(f"v_permlane16_swap_b32 v{GD}, v{GD+2}")
        A(f"v_permlane16_swap_b32 v{GD+1}, v{GD+3}")
        A(f"buffer_store_dwordx4 {vr(GD,4)}, v{V_P2}, s[{SWS}:{SWS+3}], s{P_P2O} offen sc1")
        stamp(8)
        A(f"s_mov_b32 s{S_D1}, 1")
        A(f"s_setpc_b64 s[{S_RET}:{S_RET+1}]")
    DEFER.append(sub_try1a)
    fill = []
    G1AT = OPT.get('g1at', 6)
    def on_stepq(n):
        if n == 0: fill.extend((o_pieces(1) if QE == 1 else (q_pieces(2) + q_pieces(3) if QE == 2 else [])) + o_pieces(2) + o_pieces(3) + [lambda: tok.__setitem__('wo', A.vm)])
        if n == G1AT: fill.extend(g1l + [None])
        if n >= G1AT + 4: fill.extend([None, try1a])
    if QE == 2:
        run(q_pieces(1))
        A.wait_vm(tok[("q", 0)])
        qb = lambda n: tok[("q", n >> 2)] if n in (4, 8, 12) else None
    else:
        A.wait_vm(tok[("q", 3)])
        qb = lambda n: None
    A("s_barrier")
    stamp(26)
    gemm_loop(16, rdq, mmq, qb, (2, 2, 0, 0), lambda n: (0, 1, 2, 3) if (QE == 2 and n < 2) else (2, 3), fill, on_stepq)
    assert not fill
    A.wait_vm(tok["wo"])
    A("s_barrier")
    stamp(7)
    feat(QACC)
    def wait1a():
        top, done = lab("w1a"), lab("w1d")
        A(f"s_mov_b32 s{S_CNT}, {SPIN_LIMIT}")
        A.label(top)
        try1a(block=True)
        A(f"s_cmp_lg_u32 s{S_D1}, 0")
        A(f"s_cbranch_scc1 {done}")
        A(f"s_sub_u32 s{S_CNT}, s{S_CNT}, 1")
        A(f"s_cbranch_scc0 {top}")
        A.label(done)
    B1 = OPT.get("blk1a", 0)
    if B1 == 0: wait1a()
    S_D2 = ST + 4
    A(f"s_mov_b32 s{S_D2}, 0")
    PHQ = KV
    FD = PK
    def loads2():
        for hh in range(2):
            for jp in range(2):
                r = FD + (hh * 2 + jp) * 8
                off = (hh * 4 + jp) * 640
                A(f"buffer_load_dwordx4 {vr(r,4)}, v{V_G2}, s[{SWS}:{SWS+3}], s{P_P2G} offen offset:{off} sc1")
                A(f"buffer_load_dwordx4 {vr(r+4,4)}, v{V_G2B}, s[{SWS}:{SWS+3}], s{P_P2G} offen offset:{off} sc1")
        rdy_load(14)
    def check2():
        A(f"v_xor_b32 v13, v{FD}, v{V_TAG}")
        for s in range(1, 32):
            A(f"v_bitop3_b32 v13, v{FD+s}, v{V_TAG}, v13 bitop3:0xbe")
        rdy_check(9, 14)
        A("v_and_b32 v13, 0xff, v13")
        A("v_or_b32 v13, v13, v9")
        A(f"v_cmp_ne_u32 s[{S_FAIL}:{S_FAIL+1}], 0, v13")
    for blk in range(4):
        if blk == OPT.get("l2at", 3): loads2()
        emit(softmax_l(PK + blk * 16, PHQ + 8 * blk))
        if blk + 1 == B1: wait1a()
    stamp(9)
    KVF = VACC + 16
    ODR = [KACC, KACC + 16, PK + 32, PK + 48]
    A(f"s_lshl_b32 s{ST+5}, s{S_RH}, 12")
    A(f"v_add_u32 v{V_AX}, s{ST+5}, v{V_LIN}")
    A(f"v_add_u32 v{V_AX+1}, 0x10000, v{V_AX}")
    A(f"v_add_u32 v{V_AX+2}, 0x20000, v{V_AX}")
    slin(ST + 5, 3 * SLOT, (S_MF, 8192), (S_M0W2, 1))
    A(f"v_add_u32 v{V_AX+3}, s{ST+5}, v{V_LIN}")
    A(f"v_xor_b32 v{V_AX+4}, 0x2000, v{V_AX+3}")
    wor = []
    for n in range(32):
        wor += trfrag(n * 4, OLDS[n >> 2] + (n & 3) * 2048, "a")
    emit(wor[:8])
    def check2m():
        chk = [f"v_xor_b32 v13, v{FD}, v{V_TAG}"] + [f"v_bitop3_b32 v13, v{FD+s}, v{V_TAG}, v13 bitop3:0xbe" for s in range(TS, 32, TS)]
        for hh in range(2):
            for q in (2 * hh, 2 * hh + 1):
                for u in range(4):
                    A(f"v_cvt_pk_bf16_f32 v{KVF+4*q+u}, v{FD+8*q+2*u}, v{FD+8*q+2*u+1}")
            for m in range(2):
                blk = 2 * m + hh
                d = vr(ODR[blk], 16)
                for jp in range(2):
                    A(mf(d, vr(KVF + (hh * 2 + jp) * 4, 4), vr(PHQ + 8 * blk + 4 * jp, 4), d if jp else "0"))
                    k = 3 if hh == 0 else 5
                    emit(chk[:k]); chk = chk[k:]
        assert not chk
        rdy_check(9, 14)
        A("v_and_b32 v13, 0xff, v13")
        A("v_or_b32 v13, v13, v9")
        A(f"v_cmp_ne_u32 s[{S_FAIL}:{S_FAIL+1}], 0, v13")
    poll_pre(loads2, check2m)
    stamp(10)
    xcc_decide(14)
    ost = []
    for blk in (0, 2, 1, 3):
        m, hh = blk >> 1, blk & 1
        o = ODR[blk]
        A(f"v_add_f32 v{o+8}, 0x358637bd, v{o+8}")
        A(f"v_rcp_f32 v{o+8}, v{o+8}")
        for u in range(4):
            A(f"v_pk_mul_f32 {vr(o+2*u,2)}, {vr(o+2*u,2)}, {vr(o+8,2)} op_sel_hi:[1,0]")
        for u in range(4):
            A(f"v_cvt_pk_bf16_f32 v{o+12+u}, v{o+2*u}, v{o+2*u+1}")
        A(f"buffer_store_dwordx4 {vr(o+12,4)}, v{V_LIN}, s[{SWS}:{SWS+3}], s{P_ACTW+m} offen offset:{hh*1024} sc1")
        A(f"ds_write_b128 v{V_AX+3+m}, {vr(o+12,4)} offset:{hh*1024}")
    tok_o = A.vm
    stamp(11)
    ELDS = [(3, 4, 0, 1)[e >> 2] * SLOT + (e & 3) * 8192 for e in range(16)]
    def of_pieces(e):
        pos, ph = SEQ[e]
        def p0():
            A(f"s_add_u32 m0, s{S_M0W2}, {ELDS[e]:#x}")
            A(f"s_lshl_b32 s{ST+8}, s{KAP[pos]}, 14")
            A(f"s_add_u32 s{ST+8}, s{ST+8}, s{P_ACTR+ph}")
            A(f"buffer_load_dwordx4 v{V_LIN}, s[{SWS}:{SWS+3}], s{ST+8} offen {PLF}lds")
        def p1():
            A(f"buffer_load_dwordx4 v{V_LIN}, s[{SWS}:{SWS+3}], s{ST+8} offen offset:1024 {PLF}lds")
            tok[("of", e)] = A.vm
        return [p0, p1]
    OF = PK
    OACC = VACC
    def rd4(n):
        return [f"ds_read_b128 {vr(OF+(n&1)*16+h*4,4)}, v{V_AX+(ELDS[n]>>16)} offset:{(ELDS[n]&0xffff)+h*1024}" for h in range(4)]
    def mm4(n):
        pos, ph = SEQ[n]
        d = vr(OACC + 16 * ph, 16)
        return [mf(d, vr(OF + (n & 1) * 16 + h * 4, 4), ar((4 * pos + h) * 4, 4), d if (pos or h) else "0") for h in range(4)]
    A("s_waitcnt lgkmcnt(0)")
    A("s_barrier")
    wf = wor[8:]
    def two():
        for _ in range(2): A(wf.pop(0))
    gemm_loop(2, rd4, mm4, lambda n: None, (2, 2, 0, 0), (2, 3), [two] * 4)
    emit(wf[:16]); wf = wf[16:]
    A.wait_vm(tok_o)
    flag_store()
    emit(wf)
    flag_poll()
    stamp(12)
    for e in range(2, 7): run(of_pieces(e))
    fill = []
    def on_step4(n):
        if n == 2:
            for e in range(7, 16): fill.extend(of_pieces(e))
        if n == 10: fill.extend(out_stores(OACC, 0))
    A.wait_both(tok[("of", 3)], A.lg)
    A("s_barrier")
    stamp(13)
    BND = {4: 6, 7: 9, 10: 12, 13: 15}
    gemm_loop(16, rd4, mm4, lambda n: tok[("of", BND[n])] if n in BND else None, (2, 2, 0, 0),
              lambda n: (1, 2, 3) if n >= 10 else (0, 1, 2, 3), fill, on_step4, start=2)
    assert not fill
    stamp(14)
    run(out_stores(OACC, 1))
    tag_update("B")
    stamp(15)
    finish()

prologue()
vm0, lg0 = A.vm, A.lg
role_A()
for f in DEFER: f()
DEFER.clear()
A.label("L_roleB")
ROLE[0] = "B"
A.vm, A.lg = vm0, lg0
A.hist = []
role_B()
for f in DEFER: f()
A.label("L_end")
A("s_endpgm")

iB = A.out.index("L_roleB:")
iE = A.out.index("L_end:")
if OPT.get("bfirst", 1):
    lines = A.out[:CUT["P"]] + A.out[iB:CUT["B"]] + A.out[CUT["P"]:CUT["A"]] + A.out[CUT["B"]:iE] + A.out[CUT["A"]:iB] + A.out[iE:]
else:
    lines = A.out[:CUT["A"]] + A.out[iB:CUT["B"]] + A.out[CUT["A"]:iB] + A.out[CUT["B"]:]
if OPT["align"]:
    lines, nw, nn = align(lines, min_nop=OPT.get('minnop', 12))
    print("align: widened", nw, "nops", nn)
HEAD = open("cdna_kernels/" + NAME + ".s.ref").read().split("; Override launch geometry")[0]
src = HEAD + f"""; @launch grid=(256,1,1) block=(256,1,1) lds=163840
.amdgcn_target "amdgcn-amd-amdhsa--gfx950"
.text
.globl {NAME}_kernel
.p2align 8
.type {NAME}_kernel,@function
{NAME}_kernel:
""" + "\n".join(lines) + f"""
.fill 8192, 4, 0xBF810000
.section .rodata,"a"
.p2align 6
.amdhsa_kernel {NAME}_kernel
  .amdhsa_next_free_vgpr 512
  .amdhsa_next_free_sgpr 102
  .amdhsa_accum_offset 256
  .amdhsa_group_segment_fixed_size 0
  .amdhsa_kernarg_size 128
  .amdhsa_user_sgpr_count 2
  .amdhsa_user_sgpr_kernarg_segment_ptr 1
  .amdhsa_system_sgpr_workgroup_id_x 1
.end_amdhsa_kernel
"""
open(sys.argv[1], "w").write(src)
print("hazard nops:", A.nnop, "lines:", len(lines))
```

```python
import sys
from dsl import Asm, vr, ar, sr
from align import align

NAME = "concat_heads__ssm_conv_s5__linear_kernel_hedgehog__prompt"
OPT = dict(stamps=False, rotmode=2, align=1, xnt=0, hwait=8, owait=4, hand=0)
for a_ in sys.argv[2:]:
    k_, _, v_ = a_.partition("=")
    OPT[k_] = int(v_) if v_ else True

WS_TAGA, WS_TAGB = 0x0, 0x80
WS_XCC = 0x1000
WS_FLAG = 0x2000
WS_SA = 0x10000
WS_P1 = 0x100000
WS_P2 = 0x3C0000
WS_H = 0x400000
WS_O = 0x800000
WS_STAMP = 0xA00000
OOB = 0x40000000
SPIN_LIMIT = 1 << 14
LOG2E = 0x3FB8AA3B
INV2PI = 0x3E22F983

S_WAVE, S_CHUNK, S_CG, S_ROT, S_TAG = 3, 4, 5, 6, 7
SX, SW, SW2, SWS, SOUT = 8, 12, 16, 20, 24
S_RH, S_CH, S_SLOT, S_GRP = 28, 29, 30, 31
ST = 32
S_M0W, S_M0W2 = 48, 49
S_MG = 50
S_MRH = 52
S_L2E = 54
S_CNT = 56
S_FAIL = 58
S_M16 = 60
S_SM0, S_RS = 62, 63
S_XW, S_SLOW, P_FLW = 91, 92, 93
S_ROT1 = 47
KAP = [62, 63, 44, 45, 86, 87, 94, 95]
SEQ = [(0, 0), (0, 1)] + [(j, 0) for j in range(1, 8)] + [(j, 1) for j in range(1, 8)]
HAND = OPT['hand']
KA = 64
K_AX, K_LRE, K_LIM, K_BRE, K_BIM, K_CRE, K_CIM, K_LDT, K_DSK, K_BX, K_WQKV, K_WPHI, K_WO, K_OUT, K_DBG, K_WS = [KA + 2 * i for i in range(16)]
P_FLAGB, P_FLAGO, P_XCCB, P_TAGSEL, P_OUT, P_OUT2, P_ACTR, P_ACTR2 = range(64, 72)
P_ACTW, P_ACTW2, S_MF = 88, 89, 90
P0 = 72
S_STAMP = 96
V_LANE, V_OUTO, V_N, V_G, V_LIN, V_TAG, V_L0, V_CHK, V_XPO = 1, 2, 5, 6, 7, 8, 10, 12, 15
V_OX, V_OW = 16, 20
SLOT = 32768

A = Asm()
CUT = {}
nlab = [0]

def srd(dst, ptr, nbytes):
    A(f"s_mov_b32 s{dst}, s{ptr}")
    A(f"s_mov_b32 s{dst+1}, s{ptr+1}")
    A(f"s_mov_b32 s{dst+2}, {nbytes:#x}")
    A(f"s_mov_b32 s{dst+3}, 0x20000")

def slin(dst, const, *terms):
    first = True
    for reg, mul in terms:
        t = dst if first else ST + 14
        if mul == 1:
            if first: A(f"s_mov_b32 s{dst}, s{reg}")
            else: t = reg
        elif mul & (mul - 1) == 0: A(f"s_lshl_b32 s{t}, s{reg}, {mul.bit_length()-1}")
        else: A(f"s_mul_i32 s{t}, s{reg}, {mul}")
        if not first: A(f"s_add_u32 s{dst}, s{dst}, s{t}")
        first = False
    if const: A(f"s_add_u32 s{dst}, s{dst}, {const:#x}")

ROLE = ["A"]
def stamp(idx):
    if OPT.get("probe") == idx + (0 if ROLE[0] == "A" else 100):
        if OPT.get("cyc"):
            A("s_memtime s[96:97]")
            A("s_waitcnt lgkmcnt(0)")
            A("s_sub_u32 s99, s96, s98")
            A("s_lshr_b32 s99, s99, 4")
        else:
            A("s_memrealtime s[96:97]")
            A("s_waitcnt lgkmcnt(0)")
            A("s_sub_u32 s99, s96, s100")
    if not OPT["stamps"]: return
    A(f"s_memtime s[{S_STAMP}:{S_STAMP+1}]")
    A("s_waitcnt lgkmcnt(0)")
    A(f"s_sub_u32 s{S_STAMP}, s{S_STAMP}, s98")
    A(f"v_writelane_b32 v255, s{S_STAMP}, {idx}")
    if OPT.get("rt") and idx <= 16:
        A(f"s_memrealtime s[{S_STAMP}:{S_STAMP+1}]")
        A("s_waitcnt lgkmcnt(0)")
        A(f"s_sub_u32 s{S_STAMP}, s{S_STAMP}, s100")
        A(f"v_writelane_b32 v255, s{S_STAMP}, {idx+44}")

NB = [32, 36, 38, 42, 58, 56]
nbuse = []
def nbstamp(k):
    if OPT.get("nb") and OPT["stamps"]:
        A(f"s_memtime s[{NB[k]}:{NB[k]+1}]"); nbuse.append(k)
def nbflush():
    if OPT.get("nb") and OPT["stamps"]:
        A("s_waitcnt lgkmcnt(0)")
        for k in nbuse:
            A(f"s_sub_u32 s{NB[k]}, s{NB[k]}, s98")
            A(f"v_writelane_b32 v255, s{NB[k]}, {17+k}")
        nbuse.clear()

def lab(n):
    nlab[0] += 1
    return f"L_{n}_{nlab[0]}"

def finish():
    if OPT.get("probe") and (OPT["probe"] >= 100) == (ROLE[0] == "B"):
        if OPT["probe"] % 100 == 16:
            A("s_waitcnt vmcnt(0)")
            stamp(16)
        l = lab("pr")
        A("s_lshl_b32 s99, s99, 1")
        A("s_add_u32 s99, s99, 2500")
        A.label(l)
        A("s_memrealtime s[96:97]")
        A("s_waitcnt lgkmcnt(0)")
        A("s_sub_u32 s96, s96, s100")
        A("s_cmp_lt_u32 s96, s99")
        A(f"s_cbranch_scc1 {l}")
    if OPT.get("fixrt"):
        l = lab("rt")
        A.label(l)
        A("s_memrealtime s[96:97]")
        A("s_waitcnt lgkmcnt(0)")
        A("s_sub_u32 s96, s96, s100")
        A(f"s_cmp_lt_u32 s96, {OPT['fixrt']}")
        A(f"s_cbranch_scc1 {l}")
    if OPT["stamps"]:
        A("s_waitcnt vmcnt(0)")
        stamp(16)
        A("v_writelane_b32 v255, s99, 30")
        A("s_memrealtime s[96:97]")
        A("v_writelane_b32 v255, s100, 40")
        A("s_waitcnt lgkmcnt(0)")
        A("v_writelane_b32 v255, s96, 41")
        slin(ST, WS_STAMP, (2, 1024), (S_WAVE, 256))
        A(f"v_lshlrev_b32 v254, 2, v{V_LANE}")
        A(f"buffer_store_dword v255, v254, s[{SWS}:{SWS+3}], s{ST} offen")
    A("s_endpgm")

def mf(d, a, b, c):
    return f"v_mfma_f32_32x32x16_bf16 {d}, {a}, {b}, {c}"

def poll(loads, check):
    top, done = lab("poll"), lab("ok")
    A(f"s_mov_b32 s{S_CNT}, {SPIN_LIMIT}")
    A.label(top)
    loads()
    A("s_waitcnt vmcnt(0)")
    check()
    A(f"s_cmp_eq_u64 s[{S_FAIL}:{S_FAIL+1}], 0")
    A(f"s_cbranch_scc1 {done}")
    A(f"s_sub_u32 s{S_CNT}, s{S_CNT}, 1")
    A(f"s_cbranch_scc0 {top}")
    A.label(done)

def poll_pre(loads, check):
    top, done = lab("poll"), lab("ok")
    A(f"s_mov_b32 s{S_CNT}, {SPIN_LIMIT}")
    A.label(top)
    A("s_waitcnt vmcnt(0)")
    check()
    A(f"s_cmp_eq_u64 s[{S_FAIL}:{S_FAIL+1}], 0")
    A(f"s_cbranch_scc1 {done}")
    loads()
    A(f"s_sub_u32 s{S_CNT}, s{S_CNT}, 1")
    A(f"s_cbranch_scc0 {top}")
    A("s_waitcnt vmcnt(0)")
    A.label(done)

def cfma_l(d, a, b, c, t):
    return [f"v_pk_fma_f32 {vr(t,2)}, {vr(a,2)}, {vr(b,2)}, {vr(c,2)} op_sel:[1,1,0] op_sel_hi:[1,0,1] neg_lo:[1,0,0]",
            f"v_pk_fma_f32 {vr(d,2)}, {vr(a,2)}, {vr(b,2)}, {vr(t,2)} op_sel:[0,0,0] op_sel_hi:[0,1,1]"]
def cmul_l(d, a, b, t):
    return [f"v_pk_mul_f32 {vr(t,2)}, {vr(a,2)}, {vr(b,2)} op_sel:[1,1] op_sel_hi:[1,0] neg_lo:[1,0]",
            f"v_pk_fma_f32 {vr(d,2)}, {vr(a,2)}, {vr(b,2)}, {vr(t,2)} op_sel:[0,0,0] op_sel_hi:[0,1,1]"]
def emit(l):
    for x in l: A(x)
def cfma(*a): emit(cfma_l(*a))
def cmul(*a): emit(cmul_l(*a))

def weave(main, fillers, every, start=0):
    for i, x in enumerate(main):
        A(x)
        if i >= start and (i - start) % every == every - 1 and fillers:
            f = fillers.pop(0)
            if isinstance(f, str): A(f)
            elif f: f()

def gemm_loop(nsteps, reads, mfmas, boundary, split, fill_gaps, fillers, on_step=None, end_barrier=False, verify=None, start=0, extra=None, nextra=None):
    for r in reads(start): A(r)
    for n in range(start, nsteps):
        if on_step: on_step(n)
        last = n == nsteps - 1
        b = None if last else boundary(n + 1)
        b2 = boundary(n + 2) if (verify and n + 2 < nsteps) else None
        if b2 is not None: A.wait_both(b2, A.lg)
        elif b is not None and not verify: A.wait_both(b, A.lg)
        else: A("s_waitcnt lgkmcnt(0)")
        if b is not None and verify: verify(n + 1)[1]()
        rs = [] if last else list(reads(n + 1))
        ms = mfmas(n)
        for g in range(4):
            A(ms[g])
            if g == 0 and b2 is not None: verify(n + 2)[0]()
            if g == 0 and b is not None and verify: verify(n + 1)[2]()
            if g == 0 and (b is not None or (last and end_barrier)): A("s_barrier")
            for _ in range(split[g]):
                if rs: A(rs.pop(0))
            if g in (fill_gaps(n) if callable(fill_gaps) else fill_gaps) and fillers:
                f = fillers.pop(0)
                if isinstance(f, str): A(f)
                elif f: f()
            if extra:
                k = nextra(n, g)
                while extra and k > 0:
                    x = extra.pop(0); A(x); k -= 1
                    if x.startswith("s_cmp") and k == 0: k = 1
        assert not rs

def dma_pieces(voff, srdreg, soff, ldsoff, pre=None, post=None, flags="", m0reg=S_M0W, same_v=False):
    def mk(p):
        def f():
            if p == 0:
                A(f"s_add_u32 m0, s{m0reg}, {ldsoff:#x}")
                if pre: pre()
            A(f"buffer_load_dwordx4 v{voff if same_v else voff+p}, s[{srdreg}:{srdreg+3}], s{soff} offen offset:{p*1024} {flags}lds")
            if p == 3 and post: post()
        return f
    return [mk(p) for p in range(4)]

def run(fs):
    for f in fs:
        if isinstance(f, str): A(f)
        else: f()

def rot_soff(dst, add, shift=None, mul=None, extra_sreg=None, plus=None, rot=S_ROT):
    A(f"s_add_u32 s{dst}, s{rot}, {add}")
    if extra_sreg is not None: A(f"s_add_u32 s{dst}, s{dst}, s{extra_sreg}")
    A(f"s_and_b32 s{dst}, s{dst}, 7")
    if shift is not None: A(f"s_lshl_b32 s{dst}, s{dst}, {shift}")
    else: A(f"s_mul_i32 s{dst}, s{dst}, {mul}")
    if plus is not None: A(f"s_add_u32 s{dst}, s{dst}, s{plus}")

def prologue():
    if OPT["stamps"] or OPT.get("cyc"): A("s_memtime s[98:99]")
    if OPT.get("fixrt") or OPT.get("probe") or OPT["stamps"]: A("s_memrealtime s[100:101]")
    A("s_cmp_ge_u32 s2, 256")
    A("s_cbranch_scc1 L_end")
    A(f"s_load_dwordx16 s[{KA}:{KA+15}], s[0:1], 0")
    A(f"s_load_dwordx16 s[{KA+16}:{KA+31}], s[0:1], 64")
    A("v_and_b32 v1, 63, v0")
    A("v_lshrrev_b32 v2, 6, v0")
    A(f"s_lshr_b32 s{S_SLOT}, s2, 3")
    A(f"v_readfirstlane_b32 s{S_WAVE}, v2")
    A(f"s_and_b32 s{ST}, s2, 3")
    A(f"s_lshl_b32 s{S_CHUNK}, s{ST}, 2")
    A(f"s_lshr_b32 s{ST+1}, s{S_SLOT}, 3")
    A(f"s_add_u32 s{S_CHUNK}, s{S_CHUNK}, s{ST+1}")
    A(f"s_and_b32 s{S_CG}, s{S_SLOT}, 7")
    A(f"s_lshl_b32 s{S_ROT}, s{ST+1}, 1")
    A(f"s_add_u32 s{S_ROT}, s{S_ROT}, s{S_CG}")
    A(f"s_and_b32 s{S_ROT}, s{S_ROT}, 7")
    rm = OPT["rotmode"]
    if rm == 8: A(f"s_mov_b32 s{S_ROT1}, s{S_ROT}")
    elif rm == 1: A(f"s_mov_b32 s{S_ROT1}, 0")
    elif rm == 3:
        A(f"s_add_u32 s{S_ROT1}, s{S_CG}, s{ST+1}")
        A(f"s_and_b32 s{S_ROT1}, s{S_ROT1}, 3")
        A(f"s_mul_i32 s{S_ROT1}, s{S_ROT1}, 3")
    else:
        A(f"s_add_u32 s{S_ROT1}, s{S_CG}, s{ST+1}")
        A(f"s_and_b32 s{S_ROT1}, s{S_ROT1}, {rm-1}")
        A(f"s_lshl_b32 s{S_ROT1}, s{S_ROT1}, {2 if rm == 2 else 1}")
    A(f"s_lshr_b32 s{S_RH}, s{S_WAVE}, 1")
    A(f"s_and_b32 s{S_CH}, s{S_WAVE}, 1")
    A(f"s_lshl_b32 s{S_M0W}, s{S_WAVE}, 12")
    slin(ST + 2, 0, (S_SLOT, 512), (S_WAVE, 128))
    A("v_and_b32 v7, 1, v0")
    A(f"v_lshl_add_u32 v7, v7, 14, s{ST+2}")
    A("v_lshrrev_b32 v3, 3, v1")
    A("v_and_b32 v4, 7, v1")
    A(f"v_and_b32 v{V_N}, 31, v1")
    A(f"v_lshrrev_b32 v{V_G}, 5, v1")
    if OPT["stamps"]: A("v_mov_b32 v255, 0")
    A("s_bitcmp0_b32 s2, 2" if OPT.get("swap") else "s_bitcmp1_b32 s2, 2")
    if OPT.get("bfirst", 1):
        A("s_cbranch_scc0 L_roleA")
        CUT["P"] = len(A.out)
        A.label("L_roleA")
    else:
        A("s_cbranch_scc1 L_roleB")

def cut(role):
    A(f"s_branch L_main{role}")
    CUT[role] = len(A.out)
    A.label(f"L_main{role}")

def code_prefetch():
    A(f"s_getpc_b64 s[{ST+4}:{ST+5}]")
    A.label(f"L_pc{ROLE[0]}")
    A(f"s_add_u32 s{ST+4}, s{ST+4}, L_main{ROLE[0]}-L_pc{ROLE[0]}")
    A(f"s_addc_u32 s{ST+5}, s{ST+5}, 0")
    A(f"global_load_dword v254, v7, s[{ST+4}:{ST+5}]")

def common_setup(role):
    srd(SWS, K_WS, 0x10000000)
    srd(SOUT, K_OUT, 0x800000)
    A(f"s_lshl_b32 s{S_M0W2}, s{S_WAVE}, 13")
    A(f"s_mov_b32 s{S_MG}, 0")
    A(f"s_mov_b32 s{S_MG+1}, -1")
    A(f"s_sub_u32 s{S_MRH}, 0, s{S_RH}")
    A(f"s_mov_b32 s{S_MRH+1}, s{S_MRH}")
    A(f"s_mov_b32 s{S_L2E}, {LOG2E:#x}")
    A(f"s_mov_b32 s{S_L2E+1}, {LOG2E:#x}")
    A(f"s_mov_b32 s{S_M16}, 0xffff0000")
    A(f"s_mov_b32 s{S_M16+1}, 0xffff0000")
    A(f"s_add_u32 s{S_GRP}, s{S_CHUNK}, {0 if role == 'A' else 16}")
    slin(P_XCCB, WS_XCC, (S_GRP, 128))
    if role == "A": A(f"s_mov_b32 s{S_MF}, 0")
    else: A(f"s_and_b32 s{S_MF}, s{S_CG}, 1")
    slin(P_OUT, 0 if role == "A" else 2048, (S_CHUNK, 1 << 19), (S_RH, 1 << 18), (S_CG, 256), (S_CH, 128), (S_MF, 1 << 17))
    A(f"s_xor_b32 s{P_OUT2}, s{P_OUT}, {1 << 17:#x}")
    slin(P_TAGSEL, 0, (S_CHUNK, 256), (S_CG, 16), (S_WAVE, 1))
    A(f"s_and_b32 s{ST}, s{S_CHUNK}, 3")
    A(f"s_lshl_b32 s{ST}, s{ST}, 1")
    A(f"s_mov_b32 s{KAP[0]}, s{S_CG}")
    for j in range(1, 8):
        A(f"s_add_u32 s{ST+1}, s{ST}, {j-1}")
        A(f"s_cmp_ge_u32 s{ST+1}, 7")
        A(f"s_addc_u32 s{ST+1}, s{ST+1}, 1")
        A(f"s_add_u32 s{ST+1}, s{ST+1}, s{S_CG}")
        A(f"s_and_b32 s{KAP[j]}, s{ST+1}, 7")
    if OPT.get("tlb", 0):
        A(f"v_and_b32 v9, 15, v{V_LANE}")
        A("v_lshlrev_b32 v9, 20, v9")
        A(f"buffer_load_dword v254, v9, s[{SWS}:{SWS+3}], 0 offen offset:2048")
        A(f"buffer_load_dword v254, v9, s[{SOUT}:{SOUT+3}], 0 offen")
        A(f"buffer_load_dword v254, v9, s[{SW2}:{SW2+3}], 0 offen")
    A(f"v_lshlrev_b32 v{V_LIN}, 4, v{V_LANE}")
    A(f"v_mov_b32 v{V_L0}, {OOB:#x}")
    A(f"v_cmp_eq_u32 vcc, 0, v{V_LANE}")
    if not HAND:
        A(f"v_lshlrev_b32 v{V_CHK}, 2, v{V_N}")
        slin(P_FLAGB, WS_FLAG, (S_GRP, 256))
        slin(P_FLW, 0, (S_CG, 16), (S_WAVE, 4), (P_FLAGB, 1))
        A(f"s_getreg_b32 s{S_XW}, hwreg(HW_REG_XCC_ID, 0, 4)")
    A(f"v_lshlrev_b32 v{V_XPO}, 2, v4")
    A(f"v_cndmask_b32_e64 v{V_L0}, v{V_L0}, 0, vcc")
    A(f"v_lshlrev_b32 v{V_OUTO}, 14, v{V_G}")
    A(f"v_lshl_add_u32 v{V_OUTO}, v{V_N}, 2, v{V_OUTO}")
    slin(P_FLAGO, 0, (S_CG, 4), (P_XCCB, 1))
    A("s_waitcnt lgkmcnt(0)")
    A(f"s_add_u32 s{S_TAG}, s{S_TAG}, 1")
    if OPT["stamps"]: A("s_mov_b32 s99, 0")
    if not HAND:
        A(f"s_lshl_b32 s{ST}, s{S_TAG}, 4")
        A(f"s_or_b32 s{S_XW}, s{S_XW}, s{ST}")
        A(f"v_mov_b32 v248, s{S_XW}")
        A(f"buffer_store_dword v248, v{V_L0}, s[{SWS}:{SWS+3}], s{P_FLAGO} offen sc1")

def lds_b128_addrs(base_reg, wave_off_sreg, const, nsets):
    A(f"v_bfe_u32 v9, v{V_N}, 1, 3")
    A(f"v_xor_b32 v9, v9, v{V_G}")
    A("v_lshlrev_b32 v9, 4, v9")
    A(f"v_lshl_add_u32 v9, v{V_N}, 7, v9")
    A(f"v_add_u32 v9, s{wave_off_sreg}, v9")
    if const: A(f"v_add_u32 v9, {const:#x}, v9")
    for ks in range(4):
        A(f"v_xor_b32 v{base_reg+ks}, {32*ks}, v9")
    for st in range(1, nsets):
        for ks in range(4): A(f"v_add_u32 v{base_reg+4*st+ks}, {st*0x10000:#x}, v{base_reg+ks}")

TCH = 250
def rdy_load(reg, dummy=9):
    A(f"buffer_load_dword v254, v{V_XPO}, s[{SWS}:{SWS+3}], s{P_FLAGB} offen offset:112 sc1")
    A(f"buffer_load_dword v{reg}, v{V_XPO}, s[{SWS}:{SWS+3}], s{P_XCCB} offen sc1")
def rdy_check(dst, reg):
    if HAND: A(f"v_xor_b32 v{dst}, s{S_TAG}, v{reg}")
    else:
        A(f"v_xor_b32 v{reg}, s{S_XW}, v{reg}")
        A(f"v_lshrrev_b32 v{dst}, 4, v{reg}")
def rdy_store():
    if HAND: A(f"buffer_store_dword v11, v{V_L0}, s[{SWS}:{SWS+3}], s{P_FLAGO} offen sc1")
def xcc_decide(reg):
    if HAND: return
    A(f"v_cmp_ne_u32 vcc, 0, v{reg}")
    A("s_cmp_lg_u64 vcc, 0")
    A(f"s_cselect_b32 s{S_SLOW}, 1, 0")
def flag_store(ph=0):
    slow, join = lab("slow"), lab("join")
    A(f"s_cmp_lg_u32 s{S_SLOW}, 0")
    A(f"s_cbranch_scc1 {slow}")
    A(f"buffer_store_dword v11, v{V_L0}, s[{SWS}:{SWS+3}], s{P_FLW} offen offset:{ph*128}")
    A.label(join)
    def later():
        A.label(slow)
        A(f"buffer_store_dword v11, v{V_L0}, s[{SWS}:{SWS+3}], s{P_FLW} offen offset:{ph*128} sc1")
        A(f"s_branch {join}")
    DEFER.append(later)
def flag_load(ph):
    A(f"buffer_load_dword v13, v{V_CHK}, s[{SWS}:{SWS+3}], s{P_FLAGB} offen offset:{ph*128} sc1")
def flag_cmp():
    A(f"v_cmp_ne_u32 s[{S_FAIL}:{S_FAIL+1}], s{S_TAG}, v13")
def flag_poll(ph=0):
    poll(lambda: flag_load(ph), flag_cmp)
def flag_check(ph):
    slow, back = lab("fslow"), lab("fback")
    flag_cmp()
    A(f"s_cmp_lg_u64 s[{S_FAIL}:{S_FAIL+1}], 0")
    A(f"s_cbranch_scc1 {slow}")
    A.label(back)
    def later():
        A.label(slow)
        A.hist = []
        flag_poll(ph)
        A(f"s_branch {back}")
    DEFER.append(later)

DEFER = []
def make_verify(pieces, slot, second):
    retry, back = lab("retry"), lab("back")
    def reads():
        A(f"v_add_u32 v9, {slot*SLOT:#x}, v{V_CHK}")
        A("ds_read_b32 v13, v9")
        A(f"ds_read_b32 v14, v9 offset:{second}")
    def cmp():
        A("v_max_u32 v13, v13, v14")
        A("v_cmp_eq_u32 vcc, -1, v13")
    def branch():
        A("s_cmp_lg_u64 vcc, 0")
        A(f"s_cbranch_scc1 {retry}")
        A.label(back)
    def later():
        top, done = lab("rl"), lab("rd")
        A.label(retry)
        A.hist = []
        A(f"s_mov_b32 s{S_SM0}, m0")
        A(f"s_mov_b32 s{S_CNT}, {SPIN_LIMIT}")
        A.label(top)
        run(pieces(S_RS))
        A("s_waitcnt vmcnt(0)")
        A("ds_read_b32 v13, v9")
        A(f"ds_read_b32 v14, v9 offset:{second}")
        A("s_waitcnt lgkmcnt(0)")
        cmp()
        A("s_cmp_eq_u64 vcc, 0")
        A(f"s_cbranch_scc1 {done}")
        A(f"s_sub_u32 s{S_CNT}, s{S_CNT}, 1")
        A(f"s_cbranch_scc0 {top}")
        A.label(done)
        if OPT["stamps"]:
            A(f"s_sub_u32 s{S_CNT}, {SPIN_LIMIT + 1}, s{S_CNT}")
            A(f"s_add_u32 s99, s99, s{S_CNT}")
        A(f"s_mov_b32 m0, s{S_SM0}")
        A(f"s_branch {back}")
    DEFER.append(later)
    return reads, cmp, branch

def tag_update(role):
    skip = lab("notag")
    A(f"s_cmp_eq_u32 s{P_TAGSEL}, {(15 if role == 'A' else 0) << 8}")
    A(f"s_cbranch_scc0 {skip}")
    A(f"buffer_store_dword v11, v{V_L0}, s[{SWS}:{SWS+3}], 0 offen offset:{WS_TAGA if role == 'A' else WS_TAGB} sc1")
    A.label(skip)

def out_stores(acc, ph):
    def mk(r):
        def f():
            row = 8 * (r >> 2) + (r & 3)
            A(f"s_add_u32 s{ST+1}, s{P_OUT+ph}, {row*4096}")
            A(f"buffer_store_dword v{acc+16*ph+r}, v{V_OUTO}, s[{SOUT}:{SOUT+3}], s{ST+1} offen {OUTF}")
        return f
    return [mk(r) for r in range(16)]

SCHED = {
    0: ({0: [2, 3], 1: [4], 2: [5], 3: [6], 4: [7]}, 5, {0: "all"}),
    1: ({i: [i + 2] for i in range(6)}, 6, {i: "front" for i in range(6)}),
    2: ({0: [2], 1: [3], 2: [4], 3: [5, 6], 4: [7]}, 5, {3: "all"}),
    3: ({0: [2], 1: [3], 2: [4, 5], 3: [6], 4: [7]}, 5, {2: "all"}),
    4: ({0: [2], 1: [3], 2: [4], 3: [5], 4: [6], 5: [7]}, 6, {2: "front", 3: "front", 4: "front", 5: "front"}),
    5: ({0: [2], 1: [3, 4], 2: [5], 3: [6], 4: [7]}, 5, {1: "all"}),
    6: ({i: [i + 3] for i in range(5)}, 5, {}),
    7: ({i: [i + 3] for i in range(5)}, 5, {0: "front", 1: "front"}),
}[OPT.get("sched", 6)]
EARLY = OPT.get("sched", 6) >= 6
NPRE = OPT.get("npre", 4)
NX = OPT.get("nx", 10)
XST = SCHED[1]
def g1_gaps(n, busy):
    i = n >> 2
    if SCHED[2].get(i) in ("all", "front") or i in busy: return (0, 1, 2, 3)
    return (2, 3)
OUTF = {0: "sc1", 1: "sc1 nt", 2: "sc0 sc1", 3: "nt", 4: "", 5: "sc0 sc1 nt"}[OPT.get("outf", 0)]
XF = "nt " if OPT["xnt"] else ""
PLF = {0: "sc1 ", 1: "", 2: "sc0 ", 3: "nt "}[OPT.get("plf", 0)]

def role_A():
    V_AX, V_AW = 24, 32
    V_GO, V_SCW = 44, 3
    V_XF, V_WF = 48, 64
    URE, UIM = 80, 112
    ACC2 = 144
    HP = 176
    XS, DG, V_GE = 176, 192, 200
    V_PUB, V_XSO, V_HSO = 45, 46, 223
    P_MSK = P0 + 4
    C_LAM, C_M1, C_M2, C_L, C_MQ, C_LQ, C_C2 = 208, 210, 212, 214, 216, 218, 220
    C_DSK = 222
    T0 = 224
    P_SAB, P_SAO, P_XS0, P_XS1 = P0, P0 + 1, P0 + 2, P0 + 3
    code_prefetch()
    A("v_lshrrev_b32 v9, 1, v3")
    A("v_xor_b32 v9, v9, v4")
    A("v_lshlrev_b32 v9, 4, v9")
    A("v_lshrrev_b32 v10, 2, v3")
    A("v_lshlrev_b32 v10, 5, v10")
    A("v_and_b32 v11, 1, v3")
    A("v_lshl_add_u32 v10, v11, 4, v10")
    A("v_bfe_u32 v11, v3, 1, 1")
    A("v_add_u32 v10, v10, v11")
    A("v_lshl_add_u32 v10, v10, 10, v9")
    slin(ST, 0, (S_CHUNK, 1 << 17), (S_RH, 1 << 16), (S_CH, 1 << 13))
    A(f"v_add_u32 v{V_OX}, s{ST}, v10")
    A(f"v_xor_b32 v11, 64, v{V_OX}")
    A(f"v_add_u32 v{V_OX+1}, 1024, v11")
    A(f"v_add_u32 v{V_OX+2}, 2048, v{V_OX}")
    A(f"v_add_u32 v{V_OX+3}, 3072, v11")
    A("v_lshl_add_u32 v10, v3, 10, v9")
    slin(ST, 0, (S_CG, 1 << 16), (S_CH, 1 << 15))
    A(f"v_add_u32 v{V_OW}, s{ST}, v10")
    A(f"v_xor_b32 v11, 64, v{V_OW}")
    A(f"v_add_u32 v{V_OW+1}, 7168, v11")
    A(f"v_add_u32 v{V_OW+2}, {2*7168}, v{V_OW}")
    A(f"v_add_u32 v{V_OW+3}, {3*7168}, v11")
    slin(ST, 0, (S_CG, 128), (S_CH, 64))
    A(f"v_lshl_add_u32 v14, v{V_N}, 1, s{ST}")
    A(f"s_cmp_eq_u32 s{S_RH}, 0")
    A("s_waitcnt lgkmcnt(0)")
    A(f"s_cselect_b32 s{SW}, s{K_BRE}, s{K_BIM}")
    A(f"s_cselect_b32 s{SW+1}, s{K_BRE+1}, s{K_BIM+1}")
    A(f"s_cselect_b32 s{SW2}, s{K_CRE}, s{K_CIM}")
    A(f"s_cselect_b32 s{SW2+1}, s{K_CRE+1}, s{K_CIM+1}")
    A(f"s_mov_b32 s{SW+2}, 0x80000")
    A(f"s_mov_b32 s{SW+3}, 0x20000")
    stamp(1)
    A(f"s_load_dword s{S_TAG}, s[{K_WS}:{K_WS+1}], {WS_TAGA}")
    srd(SX, K_AX, 0x200000)
    tok = {}
    def g1_pieces(i):
        slot = i & 3
        return (dma_pieces(V_OW, SW, ST + 8, slot * SLOT, pre=lambda: rot_soff(ST + 8, i, shift=7, rot=S_ROT1)) +
                dma_pieces(V_OX, SX, ST + 8, slot * SLOT + 16384, post=lambda: tok.__setitem__(i, A.vm), flags=XF))
    CLDS = {1: 4 * SLOT, 2: 4 * SLOT + 16384, 0: 0, 3: 16384, 4: SLOT, 5: SLOT + 16384, 6: 2 * SLOT, 7: 2 * SLOT + 16384}
    CORD = [1, 2, 0, 3, 4, 5, 6, 7]
    def c_pieces(st):
        return dma_pieces(V_OW, SW2, ST + 9, CLDS[st], pre=lambda: A(f"s_lshl_b32 s{ST+9}, s{KAP[st]}, 7"))
    A(f"global_load_ushort v{T0}, v14, s[{K_LRE}:{K_LRE+1}]")
    A(f"global_load_ushort v{T0+1}, v14, s[{K_LIM}:{K_LIM+1}]")
    A(f"global_load_ushort v{T0+2}, v14, s[{K_LDT}:{K_LDT+1}]")
    A(f"global_load_ushort v{C_DSK}, v14, s[{K_DSK}:{K_DSK+1}]")
    tok_small = A.vm
    run(g1_pieces(0))
    A(f"s_mov_b32 s{SW2+2}, 0x80000")
    A(f"s_mov_b32 s{SW2+3}, 0x20000")
    late = g1_pieces(1)
    if EARLY:
        run(late[:NPRE]); late = late[NPRE:] + g1_pieces(2)
    else:
        run(late); late = []
    if OPT.get("wtouch", 0):
        slin(ST, 0, (S_CG, 1 << 16), (S_CHUNK, 4096), (S_CH, 2048))
        A(f"v_and_b32 v9, 15, v{V_LANE}")
        A("v_lshlrev_b32 v9, 7, v9")
        A(f"buffer_load_dword v254, v9, s[{SW2}:{SW2+3}], s{ST} offen")
    stamp(2)
    cut("A")
    A(f"s_lshl_b32 s{ST}, s{S_RH}, 13")
    lds_b128_addrs(V_AX, ST, 16384, 2)
    A(f"s_lshl_b32 s{ST}, s{S_CH}, 12")
    lds_b128_addrs(V_AW, ST, 0, 3)
    if OPT.get("lateset", 1): A.cap = []
    common_setup("A")
    slin(P_SAB, WS_SA, (S_CG, 8192))
    A(f"s_sub_u32 s{ST}, 15, s{S_CHUNK}")
    slin(P_SAO, 0, (ST, 512), (S_CH, 256), (P_SAB, 1))
    A(f"s_mov_b32 s{P_MSK}, 0xffffff00")
    slin(P_XS0, 0, (S_CHUNK, 1 << 17), (S_RH, 1 << 16), (S_CG, 128), (S_CH, 64), (S_MF, 32768))
    A(f"s_xor_b32 s{P_XS1}, s{P_XS0}, 32768")
    slin(P_ACTW, WS_H, (S_CHUNK, 1 << 18), (S_CG, 1 << 15), (S_WAVE, 4096))
    slin(P_ACTR, WS_H, (S_CHUNK, 1 << 18), (S_WAVE, 4096), (S_MF, 16384))
    A(f"s_xor_b32 s{P_ACTR2}, s{P_ACTR}, 16384")
    A(f"v_lshlrev_b32 v9, 11, v{V_G}")
    A(f"v_lshl_add_u32 v{V_HSO}, v{V_N}, 4, v9")
    A(f"s_add_u32 s{P_ACTW2}, s{P_ACTW}, 16384")
    clears = [f"buffer_store_dwordx4 {vr(T0+24,4)}, v{V_HSO}, s[{SWS}:{SWS+3}], s{P_ACTW} offen offset:{k*512} sc1" for k in range(8)]
    A(f"s_and_b32 s{ST}, s{S_TAG}, 0xff")
    A(f"v_mov_b32 v{V_TAG}, s{ST}")
    A(f"v_mov_b32 v11, s{S_TAG}")
    A(f"v_lshlrev_b32 v{V_XSO}, 10, v{V_N}")
    A(f"v_lshl_add_u32 v{V_XSO}, v{V_G}, 5, v{V_XSO}")
    SCR = 3 * SLOT
    slin(ST, SCR, (S_CH, 256))
    A(f"v_lshl_add_u32 v4, v{V_N}, 3, s{ST}")
    A(f"s_lshl_b32 s{ST}, s{S_RH}, 10")
    A(f"v_lshl_add_u32 v3, v{V_G}, 9, v4")
    A(f"v_add_u32 v3, s{ST}, v3")
    A(f"v_lshlrev_b32 v13, 3, v{V_N}")
    A(f"v_mov_b32 v14, {OOB:#x}")
    A(f"s_or_b64 s[{ST+2}:{ST+3}], s[{S_MG}:{S_MG+1}], s[{S_MRH}:{S_MRH+1}]")
    A(f"v_cndmask_b32_e64 v{V_PUB}, v13, v14, s[{ST+2}:{ST+3}]")
    if OPT.get("prew", 1):
        for k in range(2): A(f"v_subrev_u32 v{T0+20+k}, 1, v{V_TAG}")
        A(f"buffer_store_dwordx2 {vr(T0+20,2)}, v{V_PUB}, s[{SWS}:{SWS+3}], s{P_SAO} offen sc1")
    A(f"s_sub_u32 s{ST+4}, 16, s{S_CHUNK}")
    A(f"v_lshlrev_b32 v9, 3, v{V_G}")
    A(f"v_add_u32 v9, s{ST+4}, v9")
    A(f"s_lshl_b32 s{ST+4}, s{S_CH}, 8")
    A(f"v_add_u32 v13, s{ST+4}, v13")
    A(f"v_lshl_add_u32 v{V_GO}, v9, 9, v13")
    for i in range(8):
        A(f"v_cmp_gt_u32 vcc, {16-i}, v9")
        A(f"v_cndmask_b32_e64 v{V_GE+i}, 0, v{V_TAG}, vcc")
    A.wait_vm(tok_small)
    lre, lim, ldt = T0, T0 + 1, T0 + 2
    A(f"v_and_b32 v9, 1, v{V_N}")
    A("v_lshlrev_b32 v9, 4, v9")
    A(f"v_lshlrev_b32 v{C_DSK}, v9, v{C_DSK}")
    A(f"v_lshrrev_b32 v9, 1, v{V_N}")
    A(f"v_lshlrev_b32 v13, 3, v{V_G}")
    A("v_sub_u32 v9, v9, v13")
    for q in range(8):
        A(f"v_cmp_eq_u32 vcc, {q}, v9")
        A(f"v_cndmask_b32_e64 v{DG+q}, 0, v{C_DSK}, vcc")
    for r in (lre, lim, ldt): A(f"v_lshlrev_b32 v{r}, 16, v{r}")
    A(f"v_mul_f32 v{ldt}, s{S_L2E}, v{ldt}")
    A(f"v_exp_f32 v{ldt}, v{ldt}")
    A(f"v_cvt_pk_bf16_f32 v{ldt}, v{ldt}, v{ldt}")
    A(f"v_lshlrev_b32 v{ldt}, 16, v{ldt}")
    A(f"v_mul_f32 v{T0+4}, v{ldt}, v{lre}")
    A(f"v_mul_f32 v{T0+5}, v{ldt}, v{lim}")
    A(f"v_mul_f32 v{T0+4}, s{S_L2E}, v{T0+4}")
    A(f"v_exp_f32 v{T0+4}, v{T0+4}")
    A(f"v_mul_f32 v{T0+5}, {INV2PI:#x}, v{T0+5}")
    A(f"v_rndne_f32 v{T0+6}, v{T0+5}")
    A(f"v_sub_f32 v{T0+5}, v{T0+5}, v{T0+6}")
    A(f"v_cos_f32 v{T0+6}, v{T0+5}")
    A(f"v_sin_f32 v{T0+7}, v{T0+5}")
    A(f"v_mul_f32 v{C_LAM}, v{T0+4}, v{T0+6}")
    A(f"v_mul_f32 v{C_LAM+1}, v{T0+4}, v{T0+7}")
    A(f"v_add_f32 v{T0+4}, -1.0, v{C_LAM}")
    A(f"v_mul_f32 v{T0+5}, v{lre}, v{lre}")
    A(f"v_fmac_f32 v{T0+5}, v{lim}, v{lim}")
    A(f"v_rcp_f32 v{T0+5}, v{T0+5}")
    A(f"v_mul_f32 v{T0+6}, v{T0+4}, v{lre}")
    A(f"v_fmac_f32 v{T0+6}, v{C_LAM+1}, v{lim}")
    A(f"v_mul_f32 v{T0+7}, v{C_LAM+1}, v{lre}")
    A(f"v_fma_f32 v{T0+7}, -v{T0+4}, v{lim}, v{T0+7}")
    A(f"v_add_f32 v{T0+5}, v{T0+5}, v{T0+5}")
    A(f"v_mul_f32 v{C_C2}, v{T0+6}, v{T0+5}")
    A(f"v_mul_f32 v{C_C2+1}, v{T0+7}, v{T0+5}")
    pa, pb, tt = T0 + 8, T0 + 10, T0 + 12
    cmul(pa, C_LAM, C_LAM, tt)
    cmul(pb, pa, pa, tt)
    cmul(pa, pb, pb, tt)
    cmul(C_M1, pa, pa, tt)
    cmul(C_M2, C_M1, C_M1, tt)
    cmul(pa, C_M2, C_M2, tt)
    cmul(C_L, pa, pa, tt)
    def sel_pair(dst, src, mask):
        A(f"v_cndmask_b32_e64 v{dst}, 1.0, v{src}, s[{mask}:{mask+1}]")
        A(f"v_cndmask_b32_e64 v{dst+1}, 0, v{src+1}, s[{mask}:{mask+1}]")
    sel_pair(T0 + 14, C_M2, S_MG)
    sel_pair(T0 + 16, pa, S_MRH)
    cmul(C_MQ, T0 + 14, T0 + 16, tt)
    cmul(pa, C_L, C_L, tt)
    cmul(pb, pa, pa, tt)
    cmul(pa, pb, pb, tt)
    sel_pair(C_LQ, pa, S_MG)
    SET, A.cap = (A.cap or []), None
    LATEV = [x for x in SET if x.startswith("buffer_")]
    SET = [x for x in SET if not x.startswith("buffer_")]
    for _ in range(OPT.get("pset", 0)):
        if f"s{S_TAG}," in SET[0] + ",": break
        A(SET.pop(0))
    while SET and (SET[0].startswith("s_addc") or SET[0].startswith("s_cselect")): A(SET.pop(0))
    stamp(3)
    run(late)
    def rd(n):
        i, ks = n >> 2, n & 3
        slot, buf = i & 3, n & 1
        s2_, off = slot >> 1, (slot & 1) * SLOT
        x = [f"ds_read_b128 {vr(V_XF+buf*8+m*4,4)}, v{V_AX+4*s2_+ks} offset:{off+m*4096}" for m in range(2)]
        w = [f"ds_read_b128 {vr(V_WF+buf*8+ri*4,4)}, v{V_AW+4*s2_+ks} offset:{off+ri*8192}" for ri in range(2)]
        return [x[0], w[0], w[1], x[1]]
    def mm(n):
        buf = n & 1
        r = []
        for m, ri in ((0, 0), (0, 1), (1, 1), (1, 0)):
            d = vr((URE, UIM)[ri] + 16 * m, 16)
            r.append(mf(d, vr(V_XF + buf * 8 + m * 4, 4), vr(V_WF + buf * 8 + ri * 4, 4), d if n else "0"))
        return r
    fill = []
    def xs_load(m, s):
        return lambda: A(f"buffer_load_dwordx4 {vr(XS+8*m+4*s,4)}, v{V_XSO}, s[{SX}:{SX+3}], s{P_XS0+m} offen offset:{16*s}")
    def on_step(n):
        i, ks = n >> 2, n & 3
        if ks == 0 and OPT.get("g1st") and i: stamp(16 + i)
        if ks == 0:
            for st in SCHED[0].get(i, []): fill.extend(g1_pieces(st))
            if i == XST:
                fill.extend(c_pieces(1) + c_pieces(2))
            elif i == XST + 1:
                fill.extend(LATEV)
                fill.extend([xs_load(m, s) for m in range(2) for s in range(2)])
                if OPT.get("ptouch", 0):
                    fill.extend([f"buffer_load_dword v254, v{V_GO+k}, s[{SWS}:{SWS+3}], s{P_SAB} offen sc1" for k in range(4)])
                    fill.append(lambda: rdy_load(254, 254))
    A.wait_vm(tok[0])
    A("s_barrier")
    stamp(4)
    gemm_loop(32, rd, mm, lambda n: tok[n >> 2] if (n & 3) == 0 else None, (2, 2, 0, 0), lambda n: g1_gaps(n, ()), fill, on_step, end_barrier=True, extra=SET, nextra=lambda n, g: NX)
    assert not SET
    assert not fill
    stamp(5)
    P = [T0, T0 + 4]
    def lam_bc(hi): return f"op_sel:[{hi},0,0] op_sel_hi:[{hi},1,1]"
    NEG = "neg_lo:[1,0,0] neg_hi:[1,0,0]"
    cur_re, cur_im = URE, UIM
    for s in range(1, 16):
        d = P[s & 1]
        A(f"v_pk_fma_f32 {vr(d,2)}, {vr(C_LAM,2)}, {vr(cur_im,2)}, {vr(URE+2*s,2)} {lam_bc(1)} {NEG}")
        A(f"v_pk_fma_f32 {vr(d+2,2)}, {vr(C_LAM,2)}, {vr(cur_re,2)}, {vr(UIM+2*s,2)} {lam_bc(1)}")
        A(f"v_pk_fma_f32 {vr(d,2)}, {vr(C_LAM,2)}, {vr(cur_re,2)}, {vr(d,2)} {lam_bc(0)}")
        A(f"v_pk_fma_f32 {vr(d+2,2)}, {vr(C_LAM,2)}, {vr(cur_im,2)}, {vr(d+2,2)} {lam_bc(0)}")
        cur_re, cur_im = d, d + 2
    A0, BQ = T0 + 8, T0 + 10
    A(f"v_fma_f32 v{BQ}, v{C_M1}, v{cur_re}, v{cur_re+1}")
    A(f"v_fma_f32 v{BQ+1}, v{C_M1}, v{cur_im}, v{cur_im+1}")
    A(f"v_fma_f32 v{BQ}, -v{C_M1+1}, v{cur_im}, v{BQ}")
    A(f"v_fma_f32 v{BQ+1}, v{C_M1+1}, v{cur_re}, v{BQ+1}")
    A(f"ds_write_b64 v3, {vr(BQ,2)}")
    A(f"v_mov_b32 v{A0}, v{cur_re}")
    A(f"v_mov_b32 v{A0+1}, v{cur_im}")
    P2, P3, SS, tt = T0 + 20, T0 + 22, T0 + 24, T0 + 28
    def c2_bc(hi, n=3):
        return f"op_sel:[{hi},0,0] op_sel_hi:[{hi},1,1]" if n == 3 else f"op_sel:[{hi},0] op_sel_hi:[{hi},1]"
    cm = []
    for s in range(16):
        re, im, t = URE + 2 * s, UIM + 2 * s, T0 + 2 + 2 * (s & 1)
        cm += [f"v_pk_mul_f32 {vr(t,2)}, {vr(C_C2,2)}, {vr(re,2)} {c2_bc(1,2)} neg_lo:[1,0] neg_hi:[1,0]",
               f"v_pk_mul_f32 {vr(re,2)}, {vr(C_C2,2)}, {vr(re,2)} {c2_bc(0,2)}",
               f"v_pk_fma_f32 {vr(re,2)}, {vr(C_C2,2)}, {vr(im,2)}, {vr(re,2)} {c2_bc(1)} {NEG}",
               f"v_pk_fma_f32 {vr(im,2)}, {vr(C_C2,2)}, {vr(im,2)}, {vr(t,2)} {c2_bc(0)} {NEG}"]
    emit(cm[:8])
    if HAND: A.wait_both(tok["clr"], A.lg)
    else: A("s_waitcnt lgkmcnt(0)")
    A("s_barrier")
    B0 = T0 + 12
    for q in range(4):
        A(f"ds_read_b64 {vr(B0+2*q,2)}, v4 offset:{q*512}")
    emit(cm[8:24])
    A("s_waitcnt lgkmcnt(0)")
    cfma(P2, C_M2, B0, B0 + 2, tt)
    cfma(P3, C_M2, P2, B0 + 4, tt)
    cfma(tt, C_M2, P3, B0 + 6, tt)
    A(f"v_and_or_b32 v{SS}, v{tt}, s{P_MSK}, v{V_TAG}")
    A(f"v_and_or_b32 v{SS+1}, v{tt+1}, s{P_MSK}, v{V_TAG}")
    A(f"buffer_store_dwordx2 {vr(SS,2)}, v{V_PUB}, s[{SWS}:{SWS+3}], s{P_SAO} offen sc1")
    rdy_store()
    stamp(6)
    emit(cm[24:])
    LOC = T0 + 0
    for e in range(2):
        A(f"v_cndmask_b32_e64 v{T0+2+e}, 0, v{B0+e}, s[{S_MG}:{S_MG+1}]")
        A(f"v_cndmask_b32_e64 v{T0+4+e}, v{P2+e}, v{P3+e}, s[{S_MG}:{S_MG+1}]")
        A(f"v_cndmask_b32_e64 v{LOC+e}, v{T0+2+e}, v{T0+4+e}, s[{S_MRH}:{S_MRH+1}]")
    E0, F0, E1, F1 = T0 + 12, T0 + 14, T0 + 16, T0 + 18
    cfma(P2, C_M1, LOC, A0, tt)
    cmul(F1, C_C2, P2, tt)
    cmul(F0, C_C2, LOC, tt)
    cmul(E0, C_C2, C_MQ, tt)
    cmul(E1, E0, C_M1, tt)
    V_AH = V_AX
    A(f"v_bfe_u32 v9, v{V_LANE}, 4, 1")
    A(f"v_bfe_u32 v13, v{V_LANE}, 1, 1")
    A("v_lshl_add_u32 v9, v9, 1, v13")
    A(f"v_bfe_u32 v13, v{V_LANE}, 2, 2")
    A(f"v_lshl_add_u32 v13, v{V_G}, 3, v13")
    A("v_lshlrev_b32 v14, 2, v9")
    A("v_xor_b32 v13, v13, v14")
    A("v_lshlrev_b32 v13, 4, v13")
    A("v_lshl_add_u32 v13, v9, 9, v13")
    A(f"v_and_b32 v14, 1, v{V_LANE}")
    A("v_lshl_add_u32 v13, v14, 3, v13")
    A(f"s_lshl_b32 s{ST+2}, s{S_RH}, 13")
    A(f"v_add_u32 v{V_AH}, s{ST+2}, v13")
    A(f"v_xor_b32 v{V_AH+1}, 64, v{V_AH}")
    for st in (1, 2):
        A(f"v_add_u32 v{V_AH+2*st}, {st*0x10000:#x}, v{V_AH}")
        A(f"v_add_u32 v{V_AH+2*st+1}, {st*0x10000:#x}, v{V_AH+1}")
    V_SO = T0 + 24
    for o in range(1, 4):
        A(f"v_xor_b32 v{V_SO+o}, {o*64}, v{V_HSO}")
    CPRE = 8
    A(f"s_add_u32 s{SW}, s{SWS}, s{P_SAB}")
    A(f"s_addc_u32 s{SW+1}, s{SWS+1}, 0")
    A(f"s_mov_b32 s{SW+2}, 8192")
    GD = 48
    def loads():
        for i in range(8):
            A(f"buffer_load_dwordx2 {vr(GD+2*i,2)}, v{V_GO}, s[{SW}:{SW+3}], 0 offen offset:{i*512} sc1")
        rdy_load(14)
    def check():
        A(f"v_xor_b32 v13, v{GD}, v{V_GE}")
        for i in range(1, 8):
            A(f"v_bitop3_b32 v13, v{GD+2*i}, v{V_GE+i}, v13 bitop3:0xbe")
        rdy_check(9, 14)
        A("v_and_b32 v13, 0xff, v13")
        A("v_or_b32 v13, v13, v9")
        A(f"v_cmp_ne_u32 s[{S_FAIL}:{S_FAIL+1}], 0, v13")
    CM = 2 + OPT.get("cmid", 3)
    for st in CORD[2:CM]: run(c_pieces(st))
    loads()
    tok_p = A.vm
    for st in CORD[CM:]: run(c_pieces(st))
    tok_c = A.vm
    stamp(7)
    ok = lab("ok1")
    A.wait_vm(tok_p)
    for m in range(2):
        d = vr(ACC2 + 16 * m, 16)
        A(mf(d, vr(XS + 8 * m, 4), vr(DG, 4), "0"))
    check()
    A(f"s_cmp_eq_u64 s[{S_FAIL}:{S_FAIL+1}], 0")
    A(f"s_cbranch_scc1 {ok}")
    vm_keep = A.vm
    poll(loads, check)
    A.vm = vm_keep
    A.label(ok)
    stamp(8)
    h1, h2 = T0 + 20, T0 + 22
    cur = GD + 14
    for i in range(6, -1, -1):
        d = (h1, h2)[i & 1]
        cfma(d, C_L, cur, GD + 2 * i, tt)
        cur = d
    CQ = GD
    cmul(CQ, C_LQ, cur, tt)
    for e in range(2): A(f"v_mov_b32 v{CQ+2+e}, v{CQ+e}")
    for e in range(2): A(f"v_permlane32_swap_b32 v{CQ+e}, v{CQ+2+e}")
    A(f"v_pk_add_f32 {vr(CQ,2)}, {vr(CQ,2)}, {vr(CQ+2,2)}")
    def c_reads(st):
        s2_, off = CLDS[st] >> 16, CLDS[st] & 0xffff
        r = [None] * 8
        for ks in range(4):
            for ri in range(2):
                kap = (ks >> 1) * 4 + ri * 2 + (ks & 1)
                r[kap] = f"ds_read_b128 {ar((st*8+kap)*4,4)}, v{V_AW+4*s2_+ks} offset:{off+ri*8192}"
        return r
    for m in range(2):
        d = vr(ACC2 + 16 * m, 16)
        A(mf(d, vr(XS + 8 * m + 4, 4), vr(DG + 4, 4), d))
    HR, HI = T0 + 20, T0 + 22
    A(f"v_fma_f32 v{HR}, v{E0}, v{CQ}, v{F0}")
    A(f"v_fma_f32 v{HR+1}, v{E1}, v{CQ}, v{F1}")
    A(f"v_fma_f32 v{HI}, -v{E0}, v{CQ+1}, -v{F0+1}")
    A(f"v_fma_f32 v{HI+1}, -v{E1}, v{CQ+1}, -v{F1+1}")
    A(f"v_fma_f32 v{HR}, -v{E0+1}, v{CQ+1}, v{HR}")
    A(f"v_fma_f32 v{HR+1}, -v{E1+1}, v{CQ+1}, v{HR+1}")
    A(f"v_fma_f32 v{HI}, -v{E0+1}, v{CQ}, v{HI}")
    A(f"v_fma_f32 v{HI+1}, -v{E1+1}, v{CQ}, v{HI+1}")
    pr, pi_ = HR, HI
    def hstore(ph, o):
        A(f"buffer_store_dwordx4 {vr(HP+16*ph+4*o,4)}, v{V_SO+o if o else V_HSO}, s[{SWS}:{SWS+3}], s{P_ACTW+ph} offen offset:{o*512} sc1")
    for hf in range(2):
        for s in range(8 * hf, 8 * hf + 8):
            re, im = URE + 2 * s, UIM + 2 * s
            emit([f"v_pk_fma_f32 {vr(re,2)}, {vr(C_LAM,2)}, {vr(pi_,2)}, {vr(re,2)} {lam_bc(1)}",
                  f"v_pk_fma_f32 {vr(im,2)}, {vr(C_LAM,2)}, {vr(pr,2)}, {vr(im,2)} {lam_bc(1)} {NEG}",
                  f"v_pk_fma_f32 {vr(re,2)}, {vr(C_LAM,2)}, {vr(pr,2)}, {vr(re,2)} {lam_bc(0)}",
                  f"v_pk_fma_f32 {vr(im,2)}, {vr(C_LAM,2)}, {vr(pi_,2)}, {vr(im,2)} {lam_bc(0)}"])
            pr, pi_ = re, im
        for z in range(2):
            o = 2 * z + hf
            for ri in range(2):
                U = (URE, UIM)[ri]
                for u in range(4):
                    s0 = 8 * hf + 2 * u
                    A(f"v_cvt_pk_bf16_f32 v{HP+(ri*4+o)*4+u}, v{U+2*s0+z}, v{U+2*s0+2+z}")
            for u in range(4):
                A(f"v_permlane32_swap_b32 v{HP+o*4+u}, v{HP+16+o*4+u}")
            hstore(0, o)
    tok_a = A.vm
    for o in range(4): hstore(1, o)
    tok_h = A.vm
    stamp(9)
    HS = [3, 4, 0, 1, 3, 4, 0, 1]
    def h_pieces(G):
        r = []
        for sub in range(2):
            pos, ph = SEQ[2 * G + sub]
            r += dma_pieces(V_LIN, SWS, ST + 8, HS[G] * SLOT + sub * 16384,
                            pre=lambda pos=pos, ph=ph: (A(f"s_lshl_b32 s{ST+8}, s{KAP[pos]}, 15"), A(f"s_add_u32 s{ST+8}, s{ST+8}, s{P_ACTR+ph}")),
                            post=(lambda: tok.__setitem__(("h", G), A.vm)) if sub else None, flags=PLF, same_v=True)
        return r
    assert CPRE == 8
    call = sum([c_reads(st) for st in [0, 1, 2, 3, 4, 5, 6, 7]], [])
    HF = 48
    def rd2(n):
        G, q = n >> 2, n & 3
        slot, buf = HS[G], n & 1
        r = []
        for h in range(4):
            kap = 4 * (q & 1) + h
            off = (slot & 1) * SLOT + (q >> 1) * 16384 + (kap >> 2) * 4096 + ((kap >> 1) & 1) * 2048 + (kap & 1) * 256
            for j in range(2):
                if True:
                    r.append(f"ds_read_b64_tr_b16 {vr(HF+buf*16+h*4+2*j,2)}, v{V_AH+2*(slot>>1)+j} offset:{off}")
        return r
    def mm2(n):
        buf = n & 1
        pos, ph = SEQ[n >> 1]
        d = vr(ACC2 + 16 * ph, 16)
        return [mf(d, vr(HF + buf * 16 + h * 4, 4), ar((8 * pos + 4 * (n & 1) + h) * 4, 4), d) for h in range(4)]
    xcc_decide(14)
    A.wait_vm(tok_c)
    A("s_barrier")
    slin(ST + 2, 3 * SLOT, (S_WAVE, 4096))
    A(f"v_add_u32 v{V_GO}, s{ST+2}, v{V_HSO}")
    for o in range(1, 4): A(f"v_xor_b32 v{V_GO+o}, {o*64}, v{V_GO}")
    for p in range(8):
        A(f"ds_write_b128 v{V_GO+(p&3)}, {vr(HP+4*p,4)} offset:{(p>>2)*16384+(p&3)*512}")
    emit(call[:8])
    A("s_waitcnt lgkmcnt(0)")
    A("s_barrier")
    cf = call[8:32]
    gemm_loop(4, rd2, mm2, lambda n: None, (3, 3, 2, 0), (2, 3), cf)
    A.wait_vm(tok_a)
    flag_store(0)
    emit(cf)
    A("s_waitcnt lgkmcnt(0)")
    A("s_barrier")
    stamp(10)
    A.wait_vm(tok_h)
    flag_store(1)
    flag_poll(0)
    stamp(11)
    weave(call[32:], h_pieces(1) + h_pieces(2), 2)
    stamp(12)
    fill = []
    h4 = h_pieces(4)
    def on_step2(n):
        G, q = n >> 2, n & 3
        if n == 7:
            A.wait_vm(tok["fb"])
            flag_check(1)
        if q == 0:
            if G == 1: fill.extend([lambda: (flag_load(1), tok.__setitem__("fb", A.vm))] + h_pieces(3) + h4[:4])
            elif G == 2: fill.extend(h4[4:] + h_pieces(5))
            elif G + 3 < 8: fill.extend(h_pieces(G + 3))
            elif G == 5: fill.extend(out_stores(ACC2, 0))
    A.wait_both(tok[("h", 1)], A.lg)
    A("s_barrier")
    stamp(13)
    gemm_loop(32, rd2, mm2, lambda n: tok[("h", n >> 2)] if (n & 3) == 0 else None, (3, 3, 2, 0),
              lambda n: (0, 1, 2, 3) if n < 12 else (2, 3), fill, on_step2, start=4)
    assert not fill
    stamp(14)
    run(out_stores(ACC2, 1))
    tag_update("A")
    stamp(15)
    finish()

def role_B():
    V_OO = 24
    V_AX, V_AT = 28, 36
    V_SW, V_SR, V_P2, V_G2B, V_PB0, V_PB1, V_G1, V_GZ, V_G2, V_P2Z = 39, 40, 41, 42, 43, 44, 45, 46, 47, 253
    S_WPH, V_WPO = P0 + 12, 252
    IDF = 240
    V_WF = 48
    KACC, VACC, PK, KV, WPH = 64, 96, 128, 192, 224
    T0 = 232
    P_P1O, P_P1G, P_P2O, P_P2G, P_MSK = P0 + 1, P0 + 2, P0 + 8, P0 + 9, P0 + 10
    S_PART = 57
    NS = 16 if OPT.get('p16', 1) else 32
    WPS = OPT.get('wps', 1)
    QE = OPT.get('qe', 0)
    code_prefetch()
    A("v_lshrrev_b32 v9, 1, v3")
    A("v_xor_b32 v9, v9, v4")
    A("v_lshlrev_b32 v9, 4, v9")
    A("v_lshl_add_u32 v10, v3, 10, v9")
    slin(ST, 0, (S_CHUNK, 1 << 17), (S_WAVE, 1 << 15))
    A(f"v_add_u32 v{V_OX}, s{ST}, v10")
    A(f"v_xor_b32 v11, 64, v{V_OX}")
    A(f"v_add_u32 v{V_OX+1}, 7168, v11")
    A(f"v_add_u32 v{V_OX+2}, {2*7168}, v{V_OX}")
    A(f"v_add_u32 v{V_OX+3}, {3*7168}, v11")
    A("v_bfe_u32 v9, v3, 1, 1")
    A("v_lshlrev_b32 v9, 2, v9")
    A("v_xor_b32 v9, v9, v4")
    A("v_lshlrev_b32 v9, 4, v9")
    A(f"s_lshl_b32 s{ST}, s{S_CG}, 7")
    A(f"v_add_u32 v9, s{ST}, v9")
    A(f"s_lshl_b32 s{ST+1}, s{S_CH}, 5")
    A(f"v_add_u32 v10, s{ST+1}, v3")
    A("v_mul_u32_u24 v11, 3072, v10")
    A(f"v_add_u32 v{V_OW}, v11, v9")
    for p in range(1, 4): A(f"v_add_u32 v{V_OW+p}, {p*(8*3072-1024)}, v{V_OW}")
    A(f"v_lshl_add_u32 v{V_OO}, v10, 10, v9")
    slin(S_PART, 1024, (S_RH, 1024))
    A("s_waitcnt lgkmcnt(0)")
    srd(SW, K_WQKV, 0x180000)
    stamp(1)
    A(f"s_load_dword s{S_TAG}, s[{K_WS}:{K_WS+1}], {WS_TAGB}")
    srd(SX, K_BX, 0x200000)
    tok = {}
    def g1_pieces(i):
        slot = i & 3
        return (dma_pieces(V_OW, SW, ST + 8, slot * SLOT, pre=lambda: rot_soff(ST + 8, i, mul=196608, plus=S_PART, rot=S_ROT1)) +
                dma_pieces(V_OX, SX, ST + 10, slot * SLOT + 16384, pre=lambda: rot_soff(ST + 10, i, shift=7, rot=S_ROT1),
                           post=lambda: tok.__setitem__(i, A.vm), flags=XF))
    QSLOT = [4, 0]; OSLOT = [1, 2]
    def q_pieces(st):
        return dma_pieces(V_OW, SW, ST + 9, QSLOT[st >> 1] * SLOT + (st & 1) * 16384,
                          pre=lambda: rot_soff(ST + 9, 2 * st, mul=196608, extra_sreg=S_RH, rot=S_ROT1), post=lambda: tok.__setitem__(("q", st), A.vm))
    OPAIR = [(1, 2), (0, 3), (4, 5), (6, 7)]
    OLDS = {}
    for st_, pr_ in enumerate(OPAIR):
        for e_ in range(2): OLDS[pr_[e_]] = OSLOT[st_ >> 1] * SLOT + (st_ & 1) * 16384 + e_ * 8192
    def o_pieces(st):
        def pre():
            A(f"s_cmp_eq_u32 s{S_RH}, 0")
            A(f"s_cselect_b32 s{ST+9}, s{KAP[OPAIR[st][0]]}, s{KAP[OPAIR[st][1]]}")
            A(f"s_lshl_b32 s{ST+9}, s{ST+9}, 16")
        return dma_pieces(V_OO, SW2, ST + 9, OSLOT[st >> 1] * SLOT + (st & 1) * 16384, pre=pre)
    run(g1_pieces(0))
    WPL = 4 * SLOT
    srd(SW2, K_WPHI, 0x4000)
    A(f"v_lshlrev_b32 v{V_LIN}, 4, v{V_LANE}")
    slin(ST, 0, (S_CG, 2048), (S_CH, 1024))
    A(f"s_lshl_b32 s{ST+1}, s{S_WAVE}, 10")
    A(f"s_add_u32 m0, s{ST+1}, {WPL:#x}")
    A(f"buffer_load_dwordx4 v{V_LIN}, s[{SW2}:{SW2+3}], s{ST} offen lds")
    late = g1_pieces(1)
    if EARLY:
        run(late[:NPRE]); late = late[NPRE:] + g1_pieces(2)
    else:
        run(late); late = []
    if OPT.get("wtouch", 0):
        slin(ST, 0, (S_CHUNK, 32), (S_WAVE, 8))
        A(f"v_add_u32 v9, s{ST}, v4")
        A("v_mul_u32_u24 v10, 3072, v9")
        A("v_lshlrev_b32 v9, 10, v9")
        A(f"s_lshl_b32 s{ST}, s{S_CG}, 7")
        A(f"buffer_load_dword v254, v10, s[{SW}:{SW+3}], s{ST} offen")
        A(f"buffer_load_dword v254, v9, s[{SW2}:{SW2+3}], s{ST} offen")
    stamp(2)
    cut("B")
    A(f"s_lshl_b32 s{ST}, s{S_RH}, 13")
    lds_b128_addrs(V_AX, ST, 16384, 2)
    A(f"v_bfe_u32 v9, v{V_LANE}, 4, 1")
    A(f"v_bfe_u32 v13, v{V_LANE}, 1, 1")
    A("v_lshl_add_u32 v10, v9, 1, v13")
    A(f"v_bfe_u32 v13, v{V_LANE}, 3, 1")
    A(f"v_xor_b32 v13, s{S_CH}, v13")
    A("v_lshl_add_u32 v9, v13, 2, v10")
    A("v_lshlrev_b32 v9, 4, v9")
    A(f"v_and_b32 v10, 1, v{V_LANE}")
    A("v_lshl_add_u32 v9, v10, 3, v9")
    A(f"v_bfe_u32 v14, v{V_LANE}, 2, 2")
    A(f"v_lshl_add_u32 v13, v{V_G}, 3, v14")
    A(f"v_lshl_add_u32 v{V_AT}, v13, 7, v9")
    A(f"v_add_u32 v{V_AT+1}, 0x10000, v{V_AT}")
    A(f"v_add_u32 v{V_AT+2}, 0x20000, v{V_AT}")
    if OPT.get("lateset", 1): A.cap = []
    srd(SW2, K_WO, 0x80000)
    common_setup("B")
    for p in range(1, 4): A(f"v_add_u32 v{V_OO+p}, {p*7168}, v{V_OO}")
    A(f"v_bfe_u32 v9, v{V_LANE}, 4, 1")
    A(f"v_bfe_u32 v13, v{V_LANE}, 1, 1")
    A("v_lshl_add_u32 v9, v9, 1, v13")
    A("v_lshlrev_b32 v9, 3, v9")
    A(f"v_bfe_u32 v13, v{V_LANE}, 2, 2")
    A(f"v_lshl_add_u32 v13, v{V_G}, 2, v13")
    A("v_lshl_add_u32 v9, v13, 5, v9")
    slin(ST, WPL, (S_WAVE, 1024))
    A(f"v_add_u32 v{V_WPO}, s{ST}, v9")
    if NS == 32: slin(ST, 0, (S_CG, 512), (S_CH, 256), (S_CHUNK, 2), (S_RH, 1))
    else:
        slin(ST, 0, (S_CG, 256), (S_CH, 128), (S_RH, 32), (S_CHUNK, 1))
    slin(P_P1O, WS_P1, (ST, 640))
    slin(ST, 0, (S_CG, 16), (S_CHUNK, 1))
    slin(P_P2O, WS_P2, (ST, 640))
    slin(P_P1G, WS_P1, (ST, NS * 640))
    for k in range(1, 4): A(f"s_add_u32 s{P_P1G+k}, s{P_P1G}, {8*k*640}")
    slin(ST, 0, (S_CG, 16), (S_CH, 8))
    slin(P_P2G, WS_P2, (ST, 640))
    A(f"s_mov_b32 s{P_MSK}, 0xffffff00")
    slin(P_ACTW, WS_O, (S_CHUNK, 1 << 17), (S_CG, 1 << 14), (S_RH, 1 << 12), (S_CH, 1 << 11))
    A(f"s_add_u32 s{P_ACTW2}, s{P_ACTW}, 8192")
    slin(P_ACTR, WS_O, (S_CHUNK, 1 << 17), (S_MF, 8192), (S_WAVE, 2048))
    A(f"s_lshl_b32 s{S_M0W2}, s{S_WAVE}, 11")
    A(f"s_xor_b32 s{P_ACTR2}, s{P_ACTR}, 8192")
    clears = [f"buffer_store_dwordx4 {vr(T0+16,4)}, v{V_LIN}, s[{SWS}:{SWS+3}], s{P_ACTW+(k>>1)} offen offset:{(k&1)*1024} sc1" for k in range(4)]
    A(f"s_and_b32 s{ST}, s{S_TAG}, 0xff")
    A(f"v_mov_b32 v{V_TAG}, s{ST}")
    A(f"v_mov_b32 v11, s{S_TAG}")
    A(f"v_and_b32 v9, 1, v{V_N}")
    A("v_lshlrev_b32 v9, 4, v9")
    A("v_mov_b32 v13, 0x3f80")
    A("v_lshlrev_b32 v13, v9, v13")
    A(f"v_lshrrev_b32 v9, 1, v{V_N}")
    A(f"v_lshlrev_b32 v14, 3, v{V_G}")
    A("v_sub_u32 v9, v9, v14")
    for q in range(8):
        A(f"v_cmp_eq_u32 vcc, {q}, v9")
        A(f"v_cndmask_b32_e64 v{IDF+q}, 0, v13, vcc")
    A(f"v_and_b32 v9, 15, v{V_LANE}")
    A("v_cmp_gt_u32 vcc, 4, v9")
    A("v_lshlrev_b32 v9, 4, v9")
    A(f"v_lshl_add_u32 v13, v{V_G}, 6, v9")
    A("v_add_u32 v13, 512, v13")
    A(f"v_lshl_add_u32 v9, v{V_G}, 8, v9")
    A(f"v_mov_b32 v14, {OOB:#x}")
    A("v_cndmask_b32 v13, v14, v13, vcc")
    A(f"v_cndmask_b32_e64 v{V_PB0}, v9, v13, s[{S_M16}:{S_M16+1}]")
    A(f"v_cndmask_b32_e64 v{V_PB1}, v13, v9, s[{S_M16}:{S_M16+1}]")
    A(f"v_cndmask_b32_e64 v13, v13, v14, s[{S_M16}:{S_M16+1}]")
    A(f"s_cmp_eq_u32 s{S_WAVE}, 0")
    A(f"s_cselect_b64 vcc, -1, 0")
    A(f"v_cndmask_b32 v{V_P2Z}, v14, v13, vcc")
    A(f"v_and_b32 v9, 7, v{V_LANE}")
    A(f"s_lshl_b32 s{ST}, s{S_WAVE}, 7")
    A(f"v_lshl_add_u32 v9, v9, 4, s{ST}")
    A(f"v_lshrrev_b32 v13, 3, v{V_LANE}")
    A("v_mul_u32_u24 v13, 640, v13")
    A(f"v_add_u32 v{V_G1}, v9, v13")
    A(f"v_cmp_gt_u32 vcc, 8, v{V_LANE}")
    A(f"v_and_b32 v13, {NS-1}, v{V_N}")
    A(f"v_mul_u32_u24 v{V_GZ}, 640, v13")
    if NS == 16:
        slin(ST, 3 * SLOT, (S_WAVE, 4096))
        A(f"v_add_u32 v{V_SW}, s{ST}, v{V_LIN}")
        A(f"v_xor_b32 v{V_SR}, 0x2000, v{V_SW}")
    A(f"v_lshl_add_u32 v{V_GZ}, v{V_G}, 6, v{V_GZ}")
    A(f"v_cndmask_b32 v{V_P2}, v14, v9, vcc")
    A(f"v_bfe_u32 v9, v{V_N}, 2, 1")
    A("v_lshlrev_b32 v9, 3, v9")
    A(f"v_bfe_u32 v13, v{V_N}, 3, 1")
    A("v_lshl_add_u32 v9, v13, 2, v9")
    A(f"v_and_b32 v13, 3, v{V_N}")
    A("v_add_u32 v9, v9, v13")
    A(f"v_cndmask_b32_e64 v9, v9, 32, s[{S_M16}:{S_M16+1}]")
    A("v_lshlrev_b32 v9, 4, v9")
    A(f"v_mul_u32_u24 v13, 1280, v{V_G}")
    A(f"v_add_u32 v{V_G2}, v9, v13")
    A("v_mov_b32 v9, 0x100")
    A(f"v_cndmask_b32_e64 v9, v9, 64, s[{S_M16}:{S_M16+1}]")
    A(f"v_add_u32 v{V_G2B}, v{V_G2}, v9")
    if OPT.get("prew", 1):
        for r in range(4): A(f"v_subrev_u32 v{T0+4+r}, 1, v{V_TAG}")
        A(f"buffer_store_dwordx4 {vr(T0+4,4)}, v{V_P2Z}, s[{SWS}:{SWS+3}], s{P_P2O} offen sc1")
        A(f"buffer_store_dwordx4 {vr(T0+4,4)}, v{V_P2}, s[{SWS}:{SWS+3}], s{P_P2O} offen sc1")
    A("v_mov_b32 v3, 0x3f803f80")
    A(f"v_bfe_u32 v4, v{V_LANE}, 2, 1")
    A("v_mul_u32_u24 v4, 0x8000, v4")
    A("v_lshl_or_b32 v4, v4, 16, v4")
    SET, A.cap = (A.cap or []), None
    LATEV = [x for x in SET if x.startswith("buffer_")]
    SET = [x for x in SET if not x.startswith("buffer_")]
    for _ in range(OPT.get("pset", 0)):
        if f"s{S_TAG}," in SET[0] + ",": break
        A(SET.pop(0))
    while SET and (SET[0].startswith("s_addc") or SET[0].startswith("s_cselect")): A(SET.pop(0))
    stamp(3)
    run(late)
    def trfrag(dst, ldsoff, kind="v"):
        s_, off = ldsoff >> 16, ldsoff & 0xffff
        return [f"ds_read_b64_tr_b16 {vr(dst+2*j,2,kind)}, v{V_AT+s_} offset:{off+j*512}" for j in range(2)]
    def rd(n):
        i, ks = n >> 2, n & 3
        slot, buf = i & 3, n & 1
        s2_, off = slot >> 1, (slot & 1) * SLOT
        x = [f"ds_read_b128 {ar(n*8+m*4,4)}, v{V_AX+4*s2_+ks} offset:{off+m*4096}" for m in range(2)]
        w = [trfrag(V_WF + buf * 8 + part * 4, slot * SLOT + part * 8192 + ks * 2048) for part in range(2)]
        return [x[0]] + w[0] + [x[1]] + w[1]
    def mm(n):
        buf = n & 1
        r = []
        for part, m in ((0, 0), (0, 1), (1, 0), (1, 1)):
            x, w = ar(n * 8 + m * 4, 4), vr(V_WF + buf * 8 + part * 4, 4)
            d = vr((KACC, VACC)[part] + 16 * m, 16)
            r.append(mf(d, w, x, d if n else "0") if part == 0 else mf(d, x, w, d if n else "0"))
        return r
    fill = []
    def on_step(n):
        i, ks = n >> 2, n & 3
        if ks == 0 and OPT.get("g1st") and i: stamp(16 + i)
        if ks == 0:
            for st in SCHED[0].get(i, []): fill.extend(g1_pieces(st))
            if i == 5: fill.extend(q_pieces(0) + LATEV + (q_pieces(1) if QE == 1 else []))
            if i == 6:
                fill.extend((q_pieces(2) + q_pieces(3)) if QE == 1 else o_pieces(0))
                if OPT.get("ptouch", 0):
                    fill.extend([f"buffer_load_dword v254, v{V_G1}, s[{SWS}:{SWS+3}], s{P_P1G+k} offen sc1" for k in range(4)])
                    fill.append(f"buffer_load_dword v254, v{V_GZ}, s[{SWS}:{SWS+3}], s{P_P1G} offen sc1")
                    fill.extend([f"buffer_load_dword v254, v{V_G2}, s[{SWS}:{SWS+3}], s{P_P2G} offen offset:{(hh*4+jp)*640} sc1" for hh in range(2) for jp in range(2)])
                    fill.append(lambda: rdy_load(254, 254))
            elif i == 7:
                fill.extend(o_pieces(0) if QE == 1 else o_pieces(1))
                fill.append(lambda: emit([f"v_xor_b32 v{WPH+r}, v4, v{WPH+r}" for r in range(4)]))
                fill.append(lambda: emit([f"v_xor_b32 v{WPH+r}, v4, v{WPH+r}" for r in range(4, 8)]))
        if n == 17:
            emit([f"ds_read_b64_tr_b16 {vr(WPH+4*hh+2*j,2)}, v{V_WPO} offset:{hh*512+j*256}" for hh in range(2) for j in range(2)])
    A.wait_vm(tok[0])
    A("s_barrier")
    stamp(4)
    gemm_loop(32, rd, mm, lambda n: tok[n >> 2] if (n & 3) == 0 else None, (3, 3, 0, 0), lambda n: g1_gaps(n, ()), fill, on_step, end_barrier=True, extra=SET, nextra=lambda n, g: NX)
    assert not SET
    assert not fill
    stamp(5)
    def feat(acc):
        for m in range(2):
            for u in range(8):
                A(f"v_cvt_pk_bf16_f32 v{acc+16*m+u}, v{acc+16*m+2*u}, v{acc+16*m+2*u+1}")
            for hh in range(2):
                A(mf(vr(PK + (m * 2 + hh) * 16, 16), vr(WPH + 4 * hh, 4), vr(acc + 16 * m + 4 * hh, 4), "0"))
    def softmax_l(x, dst):
        mx, sm = T0, T0 + 2
        l = [f"v_max3_f32 v{mx}, v{x}, v{x+1}, v{x+2}"]
        for u in range(3, 15, 2):
            l.append(f"v_max3_f32 v{mx}, v{mx}, v{x+u}, v{x+u+1}")
        l.append(f"v_max_f32 v{mx}, v{mx}, v{x+15}")
        l.append(f"v_mul_f32 v{mx}, s{S_L2E}, v{mx}")
        for u in range(8):
            l.append(f"v_pk_fma_f32 {vr(x+2*u,2)}, {vr(x+2*u,2)}, s[{S_L2E}:{S_L2E+1}], {vr(mx,2)} op_sel_hi:[1,1,0] neg_lo:[0,0,1] neg_hi:[0,0,1]")
        for u in range(16):
            l.append(f"v_exp_f32 v{x+u}, v{x+u}")
        l.append(f"v_pk_add_f32 {vr(sm,2)}, {vr(x,2)}, {vr(x+2,2)}")
        for u in range(2, 8):
            l.append(f"v_pk_add_f32 {vr(sm,2)}, {vr(sm,2)}, {vr(x+2*u,2)}")
        l.append(f"v_add_f32 v{sm}, v{sm}, v{sm+1}")
        l.append(f"v_rcp_f32 v{sm}, v{sm}")
        for u in range(8):
            l.append(f"v_pk_mul_f32 {vr(x+2*u,2)}, {vr(x+2*u,2)}, {vr(sm,2)} op_sel_hi:[1,0]")
        for u in range(8):
            l.append(f"v_cvt_pk_bf16_f32 v{dst+u}, v{x+2*u}, v{x+2*u+1}")
        return l
    feat(KACC)
    for m in range(2):
        for u in range(8):
            A(f"v_cvt_pk_bf16_f32 v{VACC+16*m+u}, v{VACC+16*m+2*u}, v{VACC+16*m+2*u+1}")
    for m in range(2):
        for u in range(8):
            A(f"v_cndmask_b32_e64 v{VACC+16*m+8+u}, v3, v{VACC+16*m+u}, s[{S_M16}:{S_M16+1}]")
            A(f"v_cndmask_b32_e64 v{VACC+16*m+u}, v{VACC+16*m+u}, v3, s[{S_M16}:{S_M16+1}]")
    nbstamp(0)
    PH = [KACC + 8, KACC + 24]
    ID = T0 + 8
    def tmm(blk):
        d = vr(PK + 16 * blk, 16)
        return [mf(d, vr(PH[blk & 1] + 4 * jp, 4), vr(ID + 4 * jp, 4), d if jp else "0") for jp in range(2)]
    def tcvt(blk):
        t = PK + 16 * blk
        return [f"v_cvt_pk_bf16_f32 v{t+u}, v{t+2*u}, v{t+2*u+1}" for u in range(8)]
    def kvmm(blk):
        m, hh = blk >> 1, blk & 1
        d = vr(KV + 16 * hh, 16)
        return [mf(d, vr(PK + 16 * blk + 4 * mm_, 4), vr(VACC + 16 * m + 8 * hh + 4 * mm_, 4), d if (m or mm_) else "0") for mm_ in range(2)]
    for blk in range(4):
        l = softmax_l(PK + blk * 16, PH[blk & 1])
        if blk:
            t, kv = tmm(blk - 1), kvmm(blk - 1)
            l = l[:17] + [t[0]] + l[17:21] + [t[1]] + l[21:33] + tcvt(blk - 1) + l[33:50] + [kv[0]] + l[50:58] + [kv[1]]
        emit(l)
        if blk < 3 and not QE: run(q_pieces(blk + 1))
        nbstamp(1 + blk)
    TS = 4 if OPT.get("tag1", 1) else 1
    def tagit(r, n):
        for e in range(0, n, TS):
            A(f"v_and_or_b32 v{r+e}, v{r+e}, s{P_MSK}, v{V_TAG}")
    def pub(hh, oc):
        A(f"s_add_u32 s{ST+3}, s{P_P1O}, {(hh*4+oc)*32*640}")
        A(f"buffer_store_dwordx4 {vr(KV+16*hh+4*oc,4)}, v{V_PB0+hh}, s[{SWS}:{SWS+3}], s{ST+3} offen sc1")
    if NS == 32:
        emit(tmm(3))
        tagit(KV, 16)
        pub(0, 0); pub(0, 1)
        emit(tcvt(3))
        emit(kvmm(3))
        nbstamp(5)
        pub(0, 2); pub(0, 3)
        tagit(KV + 16, 16)
        for oc in range(4): pub(1, oc)
    else:
        RB = PK
        def tail(rh):
            keep, send = 8 * rh, 8 - 8 * rh
            emit(tmm(3))
            for u in range(2): A(f"ds_write_b128 v{V_SW}, {vr(KV+send+4*u,4)} offset:{u*1024}")
            emit(tcvt(3))
            emit(kvmm(3))
            for u in range(2): A(f"ds_write_b128 v{V_SW}, {vr(KV+16+send+4*u,4)} offset:{(2+u)*1024}")
            A("s_waitcnt lgkmcnt(0)")
            A("s_barrier")
            for u in range(4): A(f"ds_read_b128 {vr(RB+4*u,4)}, v{V_SR} offset:{u*1024}")
            for hh in range(2):
                for jj in range(2):
                    r = KV + 16 * hh + keep + 4 * jj
                    A(f"s_add_u32 s{ST+3}, s{P_P1O}, {(hh*4+jj)*16*640}")
                    A(f"s_waitcnt lgkmcnt({3-2*hh-jj})")
                    for u in range(2):
                        A(f"v_pk_add_f32 {vr(r+2*u,2)}, {vr(r+2*u,2)}, {vr(RB+8*hh+4*jj+2*u,2)}")
                    tagit(r, 4)
                    A(f"buffer_store_dwordx4 {vr(r,4)}, v{V_PB0+hh}, s[{SWS}:{SWS+3}], s{ST+3} offen sc1")
        l1, l2 = lab("rh1"), lab("rhj")
        A(f"s_cmp_lg_u32 s{S_RH}, 0")
        A(f"s_cbranch_scc1 {l1}")
        st_ = (A.vm, A.lg, list(A.hist))
        tail(0)
        A(f"s_branch {l2}")
        A.label(l1)
        A.vm, A.lg, A.hist = st_[0], st_[1], list(st_[2])
        tail(1)
        A.label(l2)
    QACC = KACC
    def qaddr(n):
        i, ks = n >> 2, n & 3
        return QSLOT[i >> 2] * SLOT + (i & 3) * 8192 + ks * 2048
    def rdq(n):
        return trfrag(V_WF + (n & 1) * 8, qaddr(2 * n)) + trfrag(V_WF + (n & 1) * 8 + 4, qaddr(2 * n + 1))
    def mmq(n):
        r = []
        for h in range(2):
            for m in range(2):
                d = vr(QACC + 16 * m, 16)
                r.append(mf(d, vr(V_WF + (n & 1) * 8 + 4 * h, 4), ar((2 * n + h) * 8 + m * 4, 4), d if (n or h) else "0"))
        return r
    stamp(6)
    nbflush()
    GD = VACC
    GZ = GD + 16
    g1l = [f"buffer_load_dwordx4 {vr(GD+4*k,4)}, v{V_G1}, s[{SWS}:{SWS+3}], s{P_P1G+k} offen sc1" for k in range(NS // 8)]
    g1l.append(f"buffer_load_dwordx4 {vr(GZ,4)}, v{V_GZ}, s[{SWS}:{SWS+3}], s{P_P1G} offen offset:512 sc1")
    S_D1, S_RET = P0 + 11, ST + 6
    A(f"s_mov_b32 s{S_D1}, 0")
    def try1a(block=False):
        skip = lab("sk")
        if block:
            A(f"s_cmp_lg_u32 s{S_D1}, 0")
        else:
            A(f"s_getreg_b32 s{ST+5}, hwreg(HW_REG_IB_STS, 0, 4)")
            A(f"s_or_b32 s{ST+5}, s{ST+5}, s{S_D1}")
        A(f"s_cbranch_scc1 {skip}")
        A(f"s_call_b64 s[{S_RET}:{S_RET+1}], L_try1a")
        A.label(skip)
    def sub_try1a():
        A.label("L_try1a")
        A.hist = []
        A("s_waitcnt vmcnt(0)")
        A(f"v_xor_b32 v13, v{GD}, v{V_TAG}")
        for s in [x for x in range(TS, 20, TS) if x < NS // 2 or x >= 16]:
            A(f"v_bitop3_b32 v13, v{GD+s}, v{V_TAG}, v13 bitop3:0xbe")
        A("v_and_b32 v13, 0xff, v13")
        A(f"v_cmp_ne_u32 s[{S_FAIL}:{S_FAIL+1}], 0, v13")
        A(f"s_cmp_eq_u64 s[{S_FAIL}:{S_FAIL+1}], 0")
        A("s_cbranch_scc1 L_try1a_ok")
        emit(g1l)
        A(f"s_setpc_b64 s[{S_RET}:{S_RET+1}]")
        A.label("L_try1a_ok")
        DPP = "row_mask:0xf bank_mask:0xf"
        A(f"v_permlane16_swap_b32 v{GZ}, v{GZ+2}")
        A(f"v_permlane16_swap_b32 v{GZ+1}, v{GZ+3}")
        if NS == 32:
            for u in range(0, 8, 2):
                A(f"v_pk_add_f32 {vr(GD+u,2)}, {vr(GD+u,2)}, {vr(GD+8+u,2)}")
            A(f"v_pk_add_f32 {vr(GZ,2)}, {vr(GZ,2)}, {vr(GZ+2,2)}")
        for u in range(0, 4, 2):
            A(f"v_pk_add_f32 {vr(GD+u,2)}, {vr(GD+u,2)}, {vr(GD+4+u,2)}")
        def zror(k):
            for e in range(2): A(f"v_add_f32_dpp v{GZ+e}, v{GZ+e}, v{GZ+e} row_ror:{k} {DPP}")
        zror(1)
        A(f"v_permlane32_swap_b32 v{GD}, v{GD+1}")
        A(f"v_permlane32_swap_b32 v{GD+2}, v{GD+3}")
        zror(2)
        A(f"v_add_f32 v{GD}, v{GD}, v{GD+1}")
        A(f"v_add_f32 v{GD+2}, v{GD+2}, v{GD+3}")
        zror(4)
        A(f"v_permlane16_swap_b32 v{GD}, v{GD+2}")
        A(f"v_add_f32 v{GD}, v{GD}, v{GD+2}")
        zror(8)
        A(f"v_add_f32_dpp v{GD}, v{GD}, v{GD} row_ror:8 {DPP}")
        for e in range(2): A(f"v_and_or_b32 v{GZ+e}, v{GZ+e}, s{P_MSK}, v{V_TAG}")
        A(f"v_and_or_b32 v{GD}, v{GD}, s{P_MSK}, v{V_TAG}")
        for e in range(2): A(f"v_mov_b32 v{GZ+2+e}, v{GZ+e}")
        A(f"v_mov_b32 v{GD+1}, v{GD}")
        A(f"v_permlane16_swap_b32 v{GZ}, v{GZ+2}")
        A(f"v_permlane16_swap_b32 v{GZ+1}, v{GZ+3}")
        A(f"v_permlane32_swap_b32 v{GD}, v{GD+1}")
        A(f"buffer_store_dwordx4 {vr(GZ,4)}, v{V_P2Z}, s[{SWS}:{SWS+3}], s{P_P2O} offen sc1")
        A(f"v_mov_b32 v{GD+2}, v{GD}")
        A(f"v_mov_b32 v{GD+3}, v{GD+1}")
        A(f"v_permlane16_swap_b32 v{GD}, v{GD+2}")
        A(f"v_permlane16_swap_b32 v{GD+1}, v{GD+3}")
        A(f"buffer_store_dwordx4 {vr(GD,4)}, v{V_P2}, s[{SWS}:{SWS+3}], s{P_P2O} offen sc1")
        stamp(8)
        A(f"s_mov_b32 s{S_D1}, 1")
        A(f"s_setpc_b64 s[{S_RET}:{S_RET+1}]")
    DEFER.append(sub_try1a)
    fill = []
    G1AT = OPT.get('g1at', 6)
    def on_stepq(n):
        if n == 0: fill.extend((o_pieces(1) if QE == 1 else (q_pieces(2) + q_pieces(3) if QE == 2 else [])) + o_pieces(2) + o_pieces(3) + [lambda: tok.__setitem__('wo', A.vm)])
        if n == G1AT: fill.extend(g1l + [None])
        if n >= G1AT + 4: fill.extend([None, try1a])
    if QE == 2:
        run(q_pieces(1))
        A.wait_vm(tok[("q", 0)])
        qb = lambda n: tok[("q", n >> 2)] if n in (4, 8, 12) else None
    else:
        A.wait_vm(tok[("q", 3)])
        qb = lambda n: None
    A("s_barrier")
    stamp(26)
    gemm_loop(16, rdq, mmq, qb, (2, 2, 0, 0), lambda n: (0, 1, 2, 3) if (QE == 2 and n < 2) else (2, 3), fill, on_stepq)
    assert not fill
    A.wait_vm(tok["wo"])
    A("s_barrier")
    stamp(7)
    feat(QACC)
    def wait1a():
        top, done = lab("w1a"), lab("w1d")
        A(f"s_mov_b32 s{S_CNT}, {SPIN_LIMIT}")
        A.label(top)
        try1a(block=True)
        A(f"s_cmp_lg_u32 s{S_D1}, 0")
        A(f"s_cbranch_scc1 {done}")
        A(f"s_sub_u32 s{S_CNT}, s{S_CNT}, 1")
        A(f"s_cbranch_scc0 {top}")
        A.label(done)
    B1 = OPT.get("blk1a", 0)
    if B1 == 0: wait1a()
    S_D2 = ST + 4
    A(f"s_mov_b32 s{S_D2}, 0")
    PHQ = KV
    FD = PK
    def loads2():
        for hh in range(2):
            for jp in range(2):
                r = FD + (hh * 2 + jp) * 8
                off = (hh * 4 + jp) * 640
                A(f"buffer_load_dwordx4 {vr(r,4)}, v{V_G2}, s[{SWS}:{SWS+3}], s{P_P2G} offen offset:{off} sc1")
                A(f"buffer_load_dwordx4 {vr(r+4,4)}, v{V_G2B}, s[{SWS}:{SWS+3}], s{P_P2G} offen offset:{off} sc1")
        rdy_load(14)
    def check2():
        A(f"v_xor_b32 v13, v{FD}, v{V_TAG}")
        for s in range(1, 32):
            A(f"v_bitop3_b32 v13, v{FD+s}, v{V_TAG}, v13 bitop3:0xbe")
        rdy_check(9, 14)
        A("v_and_b32 v13, 0xff, v13")
        A("v_or_b32 v13, v13, v9")
        A(f"v_cmp_ne_u32 s[{S_FAIL}:{S_FAIL+1}], 0, v13")
    for blk in range(4):
        if blk == OPT.get("l2at", 3): loads2()
        emit(softmax_l(PK + blk * 16, PHQ + 8 * blk))
        if blk + 1 == B1: wait1a()
    stamp(9)
    KVF = VACC + 16
    ODR = [KACC, KACC + 16, PK + 32, PK + 48]
    A(f"s_lshl_b32 s{ST+5}, s{S_RH}, 12")
    A(f"v_add_u32 v{V_AX}, s{ST+5}, v{V_LIN}")
    A(f"v_add_u32 v{V_AX+1}, 0x10000, v{V_AX}")
    A(f"v_add_u32 v{V_AX+2}, 0x20000, v{V_AX}")
    slin(ST + 5, 3 * SLOT, (S_MF, 8192), (S_M0W2, 1))
    A(f"v_add_u32 v{V_AX+3}, s{ST+5}, v{V_LIN}")
    A(f"v_xor_b32 v{V_AX+4}, 0x2000, v{V_AX+3}")
    wor = []
    for n in range(32):
        wor += trfrag(n * 4, OLDS[n >> 2] + (n & 3) * 2048, "a")
    emit(wor[:8])
    def check2m():
        chk = [f"v_xor_b32 v13, v{FD}, v{V_TAG}"] + [f"v_bitop3_b32 v13, v{FD+s}, v{V_TAG}, v13 bitop3:0xbe" for s in range(TS, 32, TS)]
        for hh in range(2):
            for q in (2 * hh, 2 * hh + 1):
                for u in range(4):
                    A(f"v_cvt_pk_bf16_f32 v{KVF+4*q+u}, v{FD+8*q+2*u}, v{FD+8*q+2*u+1}")
            for m in range(2):
                blk = 2 * m + hh
                d = vr(ODR[blk], 16)
                for jp in range(2):
                    A(mf(d, vr(KVF + (hh * 2 + jp) * 4, 4), vr(PHQ + 8 * blk + 4 * jp, 4), d if jp else "0"))
                    k = 3 if hh == 0 else 5
                    emit(chk[:k]); chk = chk[k:]
        assert not chk
        rdy_check(9, 14)
        A("v_and_b32 v13, 0xff, v13")
        A("v_or_b32 v13, v13, v9")
        A(f"v_cmp_ne_u32 s[{S_FAIL}:{S_FAIL+1}], 0, v13")
    poll_pre(loads2, check2m)
    stamp(10)
    xcc_decide(14)
    ost = []
    for blk in (0, 2, 1, 3):
        m, hh = blk >> 1, blk & 1
        o = ODR[blk]
        A(f"v_add_f32 v{o+8}, 0x358637bd, v{o+8}")
        A(f"v_rcp_f32 v{o+8}, v{o+8}")
        for u in range(4):
            A(f"v_pk_mul_f32 {vr(o+2*u,2)}, {vr(o+2*u,2)}, {vr(o+8,2)} op_sel_hi:[1,0]")
        for u in range(4):
            A(f"v_cvt_pk_bf16_f32 v{o+12+u}, v{o+2*u}, v{o+2*u+1}")
        A(f"buffer_store_dwordx4 {vr(o+12,4)}, v{V_LIN}, s[{SWS}:{SWS+3}], s{P_ACTW+m} offen offset:{hh*1024} sc1")
        A(f"ds_write_b128 v{V_AX+3+m}, {vr(o+12,4)} offset:{hh*1024}")
    tok_o = A.vm
    stamp(11)
    ELDS = [(3, 4, 0, 1)[e >> 2] * SLOT + (e & 3) * 8192 for e in range(16)]
    def of_pieces(e):
        pos, ph = SEQ[e]
        def p0():
            A(f"s_add_u32 m0, s{S_M0W2}, {ELDS[e]:#x}")
            A(f"s_lshl_b32 s{ST+8}, s{KAP[pos]}, 14")
            A(f"s_add_u32 s{ST+8}, s{ST+8}, s{P_ACTR+ph}")
            A(f"buffer_load_dwordx4 v{V_LIN}, s[{SWS}:{SWS+3}], s{ST+8} offen {PLF}lds")
        def p1():
            A(f"buffer_load_dwordx4 v{V_LIN}, s[{SWS}:{SWS+3}], s{ST+8} offen offset:1024 {PLF}lds")
            tok[("of", e)] = A.vm
        return [p0, p1]
    OF = PK
    OACC = VACC
    def rd4(n):
        return [f"ds_read_b128 {vr(OF+(n&1)*16+h*4,4)}, v{V_AX+(ELDS[n]>>16)} offset:{(ELDS[n]&0xffff)+h*1024}" for h in range(4)]
    def mm4(n):
        pos, ph = SEQ[n]
        d = vr(OACC + 16 * ph, 16)
        return [mf(d, vr(OF + (n & 1) * 16 + h * 4, 4), ar((4 * pos + h) * 4, 4), d if (pos or h) else "0") for h in range(4)]
    A("s_waitcnt lgkmcnt(0)")
    A("s_barrier")
    wf = wor[8:]
    def two():
        for _ in range(2): A(wf.pop(0))
    gemm_loop(2, rd4, mm4, lambda n: None, (2, 2, 0, 0), (2, 3), [two] * 4)
    emit(wf[:16]); wf = wf[16:]
    A.wait_vm(tok_o)
    flag_store()
    emit(wf)
    flag_poll()
    stamp(12)
    for e in range(2, 7): run(of_pieces(e))
    fill = []
    def on_step4(n):
        if n == 2:
            for e in range(7, 16): fill.extend(of_pieces(e))
        if n == 10: fill.extend(out_stores(OACC, 0))
    A.wait_both(tok[("of", 3)], A.lg)
    A("s_barrier")
    stamp(13)
    BND = {4: 6, 7: 9, 10: 12, 13: 15}
    gemm_loop(16, rd4, mm4, lambda n: tok[("of", BND[n])] if n in BND else None, (2, 2, 0, 0),
              lambda n: (1, 2, 3) if n >= 10 else (0, 1, 2, 3), fill, on_step4, start=2)
    assert not fill
    stamp(14)
    run(out_stores(OACC, 1))
    tag_update("B")
    stamp(15)
    finish()

prologue()
vm0, lg0 = A.vm, A.lg
role_A()
for f in DEFER: f()
DEFER.clear()
A.label("L_roleB")
ROLE[0] = "B"
A.vm, A.lg = vm0, lg0
A.hist = []
role_B()
for f in DEFER: f()
A.label("L_end")
A("s_endpgm")

iB = A.out.index("L_roleB:")
iE = A.out.index("L_end:")
if OPT.get("bfirst", 1):
    lines = A.out[:CUT["P"]] + A.out[iB:CUT["B"]] + A.out[CUT["P"]:CUT["A"]] + A.out[CUT["B"]:iE] + A.out[CUT["A"]:iB] + A.out[iE:]
else:
    lines = A.out[:CUT["A"]] + A.out[iB:CUT["B"]] + A.out[CUT["A"]:iB] + A.out[CUT["B"]:]
if OPT["align"]:
    lines, nw, nn = align(lines, min_nop=OPT.get('minnop', 12))
    print("align: widened", nw, "nops", nn)
HEAD = open("cdna_kernels/" + NAME + ".s.ref").read().split("; Override launch geometry")[0]
src = HEAD + f"""; @launch grid=(256,1,1) block=(256,1,1) lds=163840
.amdgcn_target "amdgcn-amd-amdhsa--gfx950"
.text
.globl {NAME}_kernel
.p2align 8
.type {NAME}_kernel,@function
{NAME}_kernel:
""" + "\n".join(lines) + f"""
.fill 8192, 4, 0xBF810000
.section .rodata,"a"
.p2align 6
.amdhsa_kernel {NAME}_kernel
  .amdhsa_next_free_vgpr 512
  .amdhsa_next_free_sgpr 102
  .amdhsa_accum_offset 256
  .amdhsa_group_segment_fixed_size 0
  .amdhsa_kernarg_size 128
  .amdhsa_user_sgpr_count 2
  .amdhsa_user_sgpr_kernarg_segment_ptr 1
  .amdhsa_system_sgpr_workgroup_id_x 1
.end_amdhsa_kernel
"""
open(sys.argv[1], "w").write(src)
print("hazard nops:", A.nnop, "lines:", len(lines))
```

```python
import sys
from dsl import Asm, vr, ar, sr
from align import align

NAME = "concat_heads__ssm_conv_s5__linear_kernel_hedgehog__prompt"
OPT = dict(stamps=False, rotmode=2, align=1, xnt=0, hwait=8, owait=4, hand=0)
for a_ in sys.argv[2:]:
    k_, _, v_ = a_.partition("=")
    OPT[k_] = int(v_) if v_ else True

WS_TAGA, WS_TAGB = 0x0, 0x80
WS_XCC = 0x1000
WS_FLAG = 0x2000
WS_SA = 0x10000
WS_P1 = 0x100000
WS_P2 = 0x3C0000
WS_H = 0x400000
WS_O = 0x800000
WS_STAMP = 0xA00000
OOB = 0x40000000
SPIN_LIMIT = 1 << 14
LOG2E = 0x3FB8AA3B
INV2PI = 0x3E22F983

S_WAVE, S_CHUNK, S_CG, S_ROT, S_TAG = 3, 4, 5, 6, 7
SX, SW, SW2, SWS, SOUT = 8, 12, 16, 20, 24
S_RH, S_CH, S_SLOT, S_GRP = 28, 29, 30, 31
ST = 32
S_M0W, S_M0W2 = 48, 49
S_MG = 50
S_MRH = 52
S_L2E = 54
S_CNT = 56
S_FAIL = 58
S_M16 = 60
S_SM0, S_RS = 62, 63
S_XW, S_SLOW, P_FLW = 91, 92, 93
S_ROT1 = 47
KAP = [62, 63, 44, 45, 86, 87, 94, 95]
SEQ = [(0, 0), (0, 1)] + [(j, 0) for j in range(1, 8)] + [(j, 1) for j in range(1, 8)]
HAND = OPT['hand']
KA = 64
K_AX, K_LRE, K_LIM, K_BRE, K_BIM, K_CRE, K_CIM, K_LDT, K_DSK, K_BX, K_WQKV, K_WPHI, K_WO, K_OUT, K_DBG, K_WS = [KA + 2 * i for i in range(16)]
P_FLAGB, P_FLAGO, P_XCCB, P_TAGSEL, P_OUT, P_OUT2, P_ACTR, P_ACTR2 = range(64, 72)
P_ACTW, P_ACTW2, S_MF = 88, 89, 90
P0 = 72
S_STAMP = 96
V_LANE, V_OUTO, V_N, V_G, V_LIN, V_TAG, V_L0, V_CHK, V_XPO = 1, 2, 5, 6, 7, 8, 10, 12, 15
V_OX, V_OW = 16, 20
SLOT = 32768

A = Asm()
CUT = {}
nlab = [0]

def srd(dst, ptr, nbytes):
    A(f"s_mov_b32 s{dst}, s{ptr}")
    A(f"s_mov_b32 s{dst+1}, s{ptr+1}")
    A(f"s_mov_b32 s{dst+2}, {nbytes:#x}")
    A(f"s_mov_b32 s{dst+3}, 0x20000")

def slin(dst, const, *terms):
    first = True
    for reg, mul in terms:
        t = dst if first else ST + 14
        if mul == 1:
            if first: A(f"s_mov_b32 s{dst}, s{reg}")
            else: t = reg
        elif mul & (mul - 1) == 0: A(f"s_lshl_b32 s{t}, s{reg}, {mul.bit_length()-1}")
        else: A(f"s_mul_i32 s{t}, s{reg}, {mul}")
        if not first: A(f"s_add_u32 s{dst}, s{dst}, s{t}")
        first = False
    if const: A(f"s_add_u32 s{dst}, s{dst}, {const:#x}")

ROLE = ["A"]
def stamp(idx):
    if OPT.get("probe") == idx + (0 if ROLE[0] == "A" else 100):
        if OPT.get("cyc"):
            A("s_memtime s[96:97]")
            A("s_waitcnt lgkmcnt(0)")
            A("s_sub_u32 s99, s96, s98")
            A("s_lshr_b32 s99, s99, 4")
        else:
            A("s_memrealtime s[96:97]")
            A("s_waitcnt lgkmcnt(0)")
            A("s_sub_u32 s99, s96, s100")
    if not OPT["stamps"]: return
    A(f"s_memtime s[{S_STAMP}:{S_STAMP+1}]")
    A("s_waitcnt lgkmcnt(0)")
    A(f"s_sub_u32 s{S_STAMP}, s{S_STAMP}, s98")
    A(f"v_writelane_b32 v255, s{S_STAMP}, {idx}")
    if OPT.get("rt") and idx <= 16:
        A(f"s_memrealtime s[{S_STAMP}:{S_STAMP+1}]")
        A("s_waitcnt lgkmcnt(0)")
        A(f"s_sub_u32 s{S_STAMP}, s{S_STAMP}, s100")
        A(f"v_writelane_b32 v255, s{S_STAMP}, {idx+44}")

NB = [32, 36, 38, 42, 58, 56]
nbuse = []
def nbstamp(k):
    if OPT.get("nb") and OPT["stamps"]:
        A(f"s_memtime s[{NB[k]}:{NB[k]+1}]"); nbuse.append(k)
def nbflush():
    if OPT.get("nb") and OPT["stamps"]:
        A("s_waitcnt lgkmcnt(0)")
        for k in nbuse:
            A(f"s_sub_u32 s{NB[k]}, s{NB[k]}, s98")
            A(f"v_writelane_b32 v255, s{NB[k]}, {17+k}")
        nbuse.clear()

def lab(n):
    nlab[0] += 1
    return f"L_{n}_{nlab[0]}"

def finish():
    if OPT.get("probe") and (OPT["probe"] >= 100) == (ROLE[0] == "B"):
        if OPT["probe"] % 100 == 16:
            A("s_waitcnt vmcnt(0)")
            stamp(16)
        l = lab("pr")
        A("s_lshl_b32 s99, s99, 1")
        A("s_add_u32 s99, s99, 2500")
        A.label(l)
        A("s_memrealtime s[96:97]")
        A("s_waitcnt lgkmcnt(0)")
        A("s_sub_u32 s96, s96, s100")
        A("s_cmp_lt_u32 s96, s99")
        A(f"s_cbranch_scc1 {l}")
    if OPT.get("fixrt"):
        l = lab("rt")
        A.label(l)
        A("s_memrealtime s[96:97]")
        A("s_waitcnt lgkmcnt(0)")
        A("s_sub_u32 s96, s96, s100")
        A(f"s_cmp_lt_u32 s96, {OPT['fixrt']}")
        A(f"s_cbranch_scc1 {l}")
    if OPT["stamps"]:
        A("s_waitcnt vmcnt(0)")
        stamp(16)
        A("v_writelane_b32 v255, s99, 30")
        A("s_memrealtime s[96:97]")
        A("v_writelane_b32 v255, s100, 40")
        A("s_waitcnt lgkmcnt(0)")
        A("v_writelane_b32 v255, s96, 41")
        slin(ST, WS_STAMP, (2, 1024), (S_WAVE, 256))
        A(f"v_lshlrev_b32 v254, 2, v{V_LANE}")
        A(f"buffer_store_dword v255, v254, s[{SWS}:{SWS+3}], s{ST} offen")
    A("s_endpgm")

def mf(d, a, b, c):
    return f"v_mfma_f32_32x32x16_bf16 {d}, {a}, {b}, {c}"

def poll(loads, check):
    top, done = lab("poll"), lab("ok")
    A(f"s_mov_b32 s{S_CNT}, {SPIN_LIMIT}")
    A.label(top)
    loads()
    A("s_waitcnt vmcnt(0)")
    check()
    A(f"s_cmp_eq_u64 s[{S_FAIL}:{S_FAIL+1}], 0")
    A(f"s_cbranch_scc1 {done}")
    A(f"s_sub_u32 s{S_CNT}, s{S_CNT}, 1")
    A(f"s_cbranch_scc0 {top}")
    A.label(done)

def poll_pre(loads, check):
    top, done = lab("poll"), lab("ok")
    A(f"s_mov_b32 s{S_CNT}, {SPIN_LIMIT}")
    A.label(top)
    A("s_waitcnt vmcnt(0)")
    check()
    A(f"s_cmp_eq_u64 s[{S_FAIL}:{S_FAIL+1}], 0")
    A(f"s_cbranch_scc1 {done}")
    loads()
    A(f"s_sub_u32 s{S_CNT}, s{S_CNT}, 1")
    A(f"s_cbranch_scc0 {top}")
    A("s_waitcnt vmcnt(0)")
    A.label(done)

def cfma_l(d, a, b, c, t):
    return [f"v_pk_fma_f32 {vr(t,2)}, {vr(a,2)}, {vr(b,2)}, {vr(c,2)} op_sel:[1,1,0] op_sel_hi:[1,0,1] neg_lo:[1,0,0]",
            f"v_pk_fma_f32 {vr(d,2)}, {vr(a,2)}, {vr(b,2)}, {vr(t,2)} op_sel:[0,0,0] op_sel_hi:[0,1,1]"]
def cmul_l(d, a, b, t):
    return [f"v_pk_mul_f32 {vr(t,2)}, {vr(a,2)}, {vr(b,2)} op_sel:[1,1] op_sel_hi:[1,0] neg_lo:[1,0]",
            f"v_pk_fma_f32 {vr(d,2)}, {vr(a,2)}, {vr(b,2)}, {vr(t,2)} op_sel:[0,0,0] op_sel_hi:[0,1,1]"]
def emit(l):
    for x in l: A(x)
def cfma(*a): emit(cfma_l(*a))
def cmul(*a): emit(cmul_l(*a))

def weave(main, fillers, every, start=0):
    for i, x in enumerate(main):
        A(x)
        if i >= start and (i - start) % every == every - 1 and fillers:
            f = fillers.pop(0)
            if isinstance(f, str): A(f)
            elif f: f()

def gemm_loop(nsteps, reads, mfmas, boundary, split, fill_gaps, fillers, on_step=None, end_barrier=False, verify=None, start=0, extra=None, nextra=None):
    for r in reads(start): A(r)
    for n in range(start, nsteps):
        if on_step: on_step(n)
        last = n == nsteps - 1
        b = None if last else boundary(n + 1)
        b2 = boundary(n + 2) if (verify and n + 2 < nsteps) else None
        if b2 is not None: A.wait_both(b2, A.lg)
        elif b is not None and not verify: A.wait_both(b, A.lg)
        else: A("s_waitcnt lgkmcnt(0)")
        if b is not None and verify: verify(n + 1)[1]()
        rs = [] if last else list(reads(n + 1))
        ms = mfmas(n)
        for g in range(4):
            A(ms[g])
            if g == 0 and b2 is not None: verify(n + 2)[0]()
            if g == 0 and b is not None and verify: verify(n + 1)[2]()
            if g == 0 and (b is not None or (last and end_barrier)): A("s_barrier")
            for _ in range(split[g]):
                if rs: A(rs.pop(0))
            if g in (fill_gaps(n) if callable(fill_gaps) else fill_gaps) and fillers:
                f = fillers.pop(0)
                if isinstance(f, str): A(f)
                elif f: f()
            if extra:
                k = nextra(n, g)
                while extra and k > 0:
                    x = extra.pop(0); A(x); k -= 1
                    if x.startswith("s_cmp") and k == 0: k = 1
        assert not rs

def dma_pieces(voff, srdreg, soff, ldsoff, pre=None, post=None, flags="", m0reg=S_M0W, same_v=False):
    def mk(p):
        def f():
            if p == 0:
                A(f"s_add_u32 m0, s{m0reg}, {ldsoff:#x}")
                if pre: pre()
            A(f"buffer_load_dwordx4 v{voff if same_v else voff+p}, s[{srdreg}:{srdreg+3}], s{soff} offen offset:{p*1024} {flags}lds")
            if p == 3 and post: post()
        return f
    return [mk(p) for p in range(4)]

def run(fs):
    for f in fs:
        if isinstance(f, str): A(f)
        else: f()

def rot_soff(dst, add, shift=None, mul=None, extra_sreg=None, plus=None, rot=S_ROT):
    A(f"s_add_u32 s{dst}, s{rot}, {add}")
    if extra_sreg is not None: A(f"s_add_u32 s{dst}, s{dst}, s{extra_sreg}")
    A(f"s_and_b32 s{dst}, s{dst}, 7")
    if shift is not None: A(f"s_lshl_b32 s{dst}, s{dst}, {shift}")
    else: A(f"s_mul_i32 s{dst}, s{dst}, {mul}")
    if plus is not None: A(f"s_add_u32 s{dst}, s{dst}, s{plus}")

def prologue():
    if OPT["stamps"] or OPT.get("cyc"): A("s_memtime s[98:99]")
    if OPT.get("fixrt") or OPT.get("probe") or OPT["stamps"]: A("s_memrealtime s[100:101]")
    A("s_cmp_ge_u32 s2, 256")
    A("s_cbranch_scc1 L_end")
    A(f"s_load_dwordx16 s[{KA}:{KA+15}], s[0:1], 0")
    A(f"s_load_dwordx16 s[{KA+16}:{KA+31}], s[0:1], 64")
    A("v_and_b32 v1, 63, v0")
    A("v_lshrrev_b32 v2, 6, v0")
    A(f"s_lshr_b32 s{S_SLOT}, s2, 3")
    A(f"v_readfirstlane_b32 s{S_WAVE}, v2")
    A(f"s_and_b32 s{ST}, s2, 3")
    A(f"s_lshl_b32 s{S_CHUNK}, s{ST}, 2")
    A(f"s_lshr_b32 s{ST+1}, s{S_SLOT}, 3")
    A(f"s_add_u32 s{S_CHUNK}, s{S_CHUNK}, s{ST+1}")
    A(f"s_and_b32 s{S_CG}, s{S_SLOT}, 7")
    A(f"s_lshl_b32 s{S_ROT}, s{ST+1}, 1")
    A(f"s_add_u32 s{S_ROT}, s{S_ROT}, s{S_CG}")
    A(f"s_and_b32 s{S_ROT}, s{S_ROT}, 7")
    rm = OPT["rotmode"]
    if rm == 8: A(f"s_mov_b32 s{S_ROT1}, s{S_ROT}")
    elif rm == 1: A(f"s_mov_b32 s{S_ROT1}, 0")
    elif rm == 3:
        A(f"s_add_u32 s{S_ROT1}, s{S_CG}, s{ST+1}")
        A(f"s_and_b32 s{S_ROT1}, s{S_ROT1}, 3")
        A(f"s_mul_i32 s{S_ROT1}, s{S_ROT1}, 3")
    else:
        A(f"s_add_u32 s{S_ROT1}, s{S_CG}, s{ST+1}")
        A(f"s_and_b32 s{S_ROT1}, s{S_ROT1}, {rm-1}")
        A(f"s_lshl_b32 s{S_ROT1}, s{S_ROT1}, {2 if rm == 2 else 1}")
    A(f"s_lshr_b32 s{S_RH}, s{S_WAVE}, 1")
    A(f"s_and_b32 s{S_CH}, s{S_WAVE}, 1")
    A(f"s_lshl_b32 s{S_M0W}, s{S_WAVE}, 12")
    slin(ST + 2, 0, (S_SLOT, 512), (S_WAVE, 128))
    A("v_and_b32 v7, 1, v0")
    A(f"v_lshl_add_u32 v7, v7, 14, s{ST+2}")
    A("v_lshrrev_b32 v3, 3, v1")
    A("v_and_b32 v4, 7, v1")
    A(f"v_and_b32 v{V_N}, 31, v1")
    A(f"v_lshrrev_b32 v{V_G}, 5, v1")
    if OPT["stamps"]: A("v_mov_b32 v255, 0")
    A("s_bitcmp0_b32 s2, 2" if OPT.get("swap", 1) else "s_bitcmp1_b32 s2, 2")
    if OPT.get("bfirst", 1):
        A("s_cbranch_scc0 L_roleA")
        CUT["P"] = len(A.out)
        A.label("L_roleA")
    else:
        A("s_cbranch_scc1 L_roleB")

def cut(role):
    A(f"s_branch L_main{role}")
    CUT[role] = len(A.out)
    A.label(f"L_main{role}")

def code_prefetch():
    A(f"s_getpc_b64 s[{ST+4}:{ST+5}]")
    A.label(f"L_pc{ROLE[0]}")
    A(f"s_add_u32 s{ST+4}, s{ST+4}, L_main{ROLE[0]}-L_pc{ROLE[0]}")
    A(f"s_addc_u32 s{ST+5}, s{ST+5}, 0")
    A(f"global_load_dword v254, v7, s[{ST+4}:{ST+5}]")

def common_setup(role):
    srd(SWS, K_WS, 0x10000000)
    srd(SOUT, K_OUT, 0x800000)
    A(f"s_lshl_b32 s{S_M0W2}, s{S_WAVE}, 13")
    A(f"s_mov_b32 s{S_MG}, 0")
    A(f"s_mov_b32 s{S_MG+1}, -1")
    A(f"s_sub_u32 s{S_MRH}, 0, s{S_RH}")
    A(f"s_mov_b32 s{S_MRH+1}, s{S_MRH}")
    A(f"s_mov_b32 s{S_L2E}, {LOG2E:#x}")
    A(f"s_mov_b32 s{S_L2E+1}, {LOG2E:#x}")
    A(f"s_mov_b32 s{S_M16}, 0xffff0000")
    A(f"s_mov_b32 s{S_M16+1}, 0xffff0000")
    A(f"s_add_u32 s{S_GRP}, s{S_CHUNK}, {0 if role == 'A' else 16}")
    slin(P_XCCB, WS_XCC, (S_GRP, 128))
    if role == "A": A(f"s_mov_b32 s{S_MF}, 0")
    else: A(f"s_and_b32 s{S_MF}, s{S_CG}, 1")
    slin(P_OUT, 0 if role == "A" else 2048, (S_CHUNK, 1 << 19), (S_RH, 1 << 18), (S_CG, 256), (S_CH, 128), (S_MF, 1 << 17))
    A(f"s_xor_b32 s{P_OUT2}, s{P_OUT}, {1 << 17:#x}")
    slin(P_TAGSEL, 0, (S_CHUNK, 256), (S_CG, 16), (S_WAVE, 1))
    A(f"s_and_b32 s{ST}, s{S_CHUNK}, 3")
    A(f"s_lshl_b32 s{ST}, s{ST}, 1")
    A(f"s_mov_b32 s{KAP[0]}, s{S_CG}")
    for j in range(1, 8):
        A(f"s_add_u32 s{ST+1}, s{ST}, {j-1}")
        A(f"s_cmp_ge_u32 s{ST+1}, 7")
        A(f"s_addc_u32 s{ST+1}, s{ST+1}, 1")
        A(f"s_add_u32 s{ST+1}, s{ST+1}, s{S_CG}")
        A(f"s_and_b32 s{KAP[j]}, s{ST+1}, 7")
    if OPT.get("tlb", 0):
        A(f"v_and_b32 v9, 15, v{V_LANE}")
        A("v_lshlrev_b32 v9, 20, v9")
        A(f"buffer_load_dword v254, v9, s[{SWS}:{SWS+3}], 0 offen offset:2048")
        A(f"buffer_load_dword v254, v9, s[{SOUT}:{SOUT+3}], 0 offen")
        A(f"buffer_load_dword v254, v9, s[{SW2}:{SW2+3}], 0 offen")
    A(f"v_lshlrev_b32 v{V_LIN}, 4, v{V_LANE}")
    A(f"v_mov_b32 v{V_L0}, {OOB:#x}")
    A(f"v_cmp_eq_u32 vcc, 0, v{V_LANE}")
    if not HAND:
        A(f"v_lshlrev_b32 v{V_CHK}, 2, v{V_N}")
        slin(P_FLAGB, WS_FLAG, (S_GRP, 256))
        slin(P_FLW, 0, (S_CG, 16), (S_WAVE, 4), (P_FLAGB, 1))
        A(f"s_getreg_b32 s{S_XW}, hwreg(HW_REG_XCC_ID, 0, 4)")
    A(f"v_lshlrev_b32 v{V_XPO}, 2, v4")
    A(f"v_cndmask_b32_e64 v{V_L0}, v{V_L0}, 0, vcc")
    A(f"v_lshlrev_b32 v{V_OUTO}, 14, v{V_G}")
    A(f"v_lshl_add_u32 v{V_OUTO}, v{V_N}, 2, v{V_OUTO}")
    slin(P_FLAGO, 0, (S_CG, 4), (P_XCCB, 1))
    A("s_waitcnt lgkmcnt(0)")
    A(f"s_add_u32 s{S_TAG}, s{S_TAG}, 1")
    if OPT["stamps"]: A("s_mov_b32 s99, 0")
    if not HAND:
        A(f"s_lshl_b32 s{ST}, s{S_TAG}, 4")
        A(f"s_or_b32 s{S_XW}, s{S_XW}, s{ST}")
        A(f"v_mov_b32 v248, s{S_XW}")
        A(f"buffer_store_dword v248, v{V_L0}, s[{SWS}:{SWS+3}], s{P_FLAGO} offen sc1")

def lds_b128_addrs(base_reg, wave_off_sreg, const, nsets):
    A(f"v_bfe_u32 v9, v{V_N}, 1, 3")
    A(f"v_xor_b32 v9, v9, v{V_G}")
    A("v_lshlrev_b32 v9, 4, v9")
    A(f"v_lshl_add_u32 v9, v{V_N}, 7, v9")
    A(f"v_add_u32 v9, s{wave_off_sreg}, v9")
    if const: A(f"v_add_u32 v9, {const:#x}, v9")
    for ks in range(4):
        A(f"v_xor_b32 v{base_reg+ks}, {32*ks}, v9")
    for st in range(1, nsets):
        for ks in range(4): A(f"v_add_u32 v{base_reg+4*st+ks}, {st*0x10000:#x}, v{base_reg+ks}")

TCH = 250
def rdy_load(reg, dummy=9):
    A(f"buffer_load_dword v254, v{V_XPO}, s[{SWS}:{SWS+3}], s{P_FLAGB} offen offset:112 sc1")
    A(f"buffer_load_dword v{reg}, v{V_XPO}, s[{SWS}:{SWS+3}], s{P_XCCB} offen sc1")
def rdy_check(dst, reg):
    if HAND: A(f"v_xor_b32 v{dst}, s{S_TAG}, v{reg}")
    else:
        A(f"v_xor_b32 v{reg}, s{S_XW}, v{reg}")
        A(f"v_lshrrev_b32 v{dst}, 4, v{reg}")
def rdy_store():
    if HAND: A(f"buffer_store_dword v11, v{V_L0}, s[{SWS}:{SWS+3}], s{P_FLAGO} offen sc1")
def xcc_decide(reg):
    if HAND: return
    A(f"v_cmp_ne_u32 vcc, 0, v{reg}")
    A("s_cmp_lg_u64 vcc, 0")
    A(f"s_cselect_b32 s{S_SLOW}, 1, 0")
def flag_store(ph=0):
    slow, join = lab("slow"), lab("join")
    A(f"s_cmp_lg_u32 s{S_SLOW}, 0")
    A(f"s_cbranch_scc1 {slow}")
    A(f"buffer_store_dword v11, v{V_L0}, s[{SWS}:{SWS+3}], s{P_FLW} offen offset:{ph*128}")
    A.label(join)
    def later():
        A.label(slow)
        A(f"buffer_store_dword v11, v{V_L0}, s[{SWS}:{SWS+3}], s{P_FLW} offen offset:{ph*128} sc1")
        A(f"s_branch {join}")
    DEFER.append(later)
def flag_load(ph):
    A(f"buffer_load_dword v13, v{V_CHK}, s[{SWS}:{SWS+3}], s{P_FLAGB} offen offset:{ph*128} sc1")
def flag_cmp():
    A(f"v_cmp_ne_u32 s[{S_FAIL}:{S_FAIL+1}], s{S_TAG}, v13")
def flag_poll(ph=0):
    poll(lambda: flag_load(ph), flag_cmp)
def flag_check(ph):
    slow, back = lab("fslow"), lab("fback")
    flag_cmp()
    A(f"s_cmp_lg_u64 s[{S_FAIL}:{S_FAIL+1}], 0")
    A(f"s_cbranch_scc1 {slow}")
    A.label(back)
    def later():
        A.label(slow)
        A.hist = []
        flag_poll(ph)
        A(f"s_branch {back}")
    DEFER.append(later)

DEFER = []
def make_verify(pieces, slot, second):
    retry, back = lab("retry"), lab("back")
    def reads():
        A(f"v_add_u32 v9, {slot*SLOT:#x}, v{V_CHK}")
        A("ds_read_b32 v13, v9")
        A(f"ds_read_b32 v14, v9 offset:{second}")
    def cmp():
        A("v_max_u32 v13, v13, v14")
        A("v_cmp_eq_u32 vcc, -1, v13")
    def branch():
        A("s_cmp_lg_u64 vcc, 0")
        A(f"s_cbranch_scc1 {retry}")
        A.label(back)
    def later():
        top, done = lab("rl"), lab("rd")
        A.label(retry)
        A.hist = []
        A(f"s_mov_b32 s{S_SM0}, m0")
        A(f"s_mov_b32 s{S_CNT}, {SPIN_LIMIT}")
        A.label(top)
        run(pieces(S_RS))
        A("s_waitcnt vmcnt(0)")
        A("ds_read_b32 v13, v9")
        A(f"ds_read_b32 v14, v9 offset:{second}")
        A("s_waitcnt lgkmcnt(0)")
        cmp()
        A("s_cmp_eq_u64 vcc, 0")
        A(f"s_cbranch_scc1 {done}")
        A(f"s_sub_u32 s{S_CNT}, s{S_CNT}, 1")
        A(f"s_cbranch_scc0 {top}")
        A.label(done)
        if OPT["stamps"]:
            A(f"s_sub_u32 s{S_CNT}, {SPIN_LIMIT + 1}, s{S_CNT}")
            A(f"s_add_u32 s99, s99, s{S_CNT}")
        A(f"s_mov_b32 m0, s{S_SM0}")
        A(f"s_branch {back}")
    DEFER.append(later)
    return reads, cmp, branch

def tag_update(role):
    skip = lab("notag")
    A(f"s_cmp_eq_u32 s{P_TAGSEL}, {(15 if role == 'A' else 0) << 8}")
    A(f"s_cbranch_scc0 {skip}")
    A(f"buffer_store_dword v11, v{V_L0}, s[{SWS}:{SWS+3}], 0 offen offset:{WS_TAGA if role == 'A' else WS_TAGB} sc1")
    A.label(skip)

def out_stores(acc, ph):
    def mk(r):
        def f():
            row = 8 * (r >> 2) + (r & 3)
            A(f"s_add_u32 s{ST+1}, s{P_OUT+ph}, {row*4096}")
            A(f"buffer_store_dword v{acc+16*ph+r}, v{V_OUTO}, s[{SOUT}:{SOUT+3}], s{ST+1} offen {OUTF}")
        return f
    return [mk(r) for r in range(16)]

SCHED = {
    0: ({0: [2, 3], 1: [4], 2: [5], 3: [6], 4: [7]}, 5, {0: "all"}),
    1: ({i: [i + 2] for i in range(6)}, 6, {i: "front" for i in range(6)}),
    2: ({0: [2], 1: [3], 2: [4], 3: [5, 6], 4: [7]}, 5, {3: "all"}),
    3: ({0: [2], 1: [3], 2: [4, 5], 3: [6], 4: [7]}, 5, {2: "all"}),
    4: ({0: [2], 1: [3], 2: [4], 3: [5], 4: [6], 5: [7]}, 6, {2: "front", 3: "front", 4: "front", 5: "front"}),
    5: ({0: [2], 1: [3, 4], 2: [5], 3: [6], 4: [7]}, 5, {1: "all"}),
    6: ({i: [i + 3] for i in range(5)}, 5, {}),
    7: ({i: [i + 3] for i in range(5)}, 5, {0: "front", 1: "front"}),
}[OPT.get("sched", 6)]
EARLY = OPT.get("sched", 6) >= 6
NPRE = OPT.get("npre", 4)
NX = OPT.get("nx", 10)
XST = SCHED[1]
def g1_gaps(n, busy):
    i = n >> 2
    if SCHED[2].get(i) in ("all", "front") or i in busy: return (0, 1, 2, 3)
    return (2, 3)
OUTF = {0: "sc1", 1: "sc1 nt", 2: "sc0 sc1", 3: "nt", 4: "", 5: "sc0 sc1 nt"}[OPT.get("outf", 0)]
XF = "nt " if OPT["xnt"] else ""
PLF = {0: "sc1 ", 1: "", 2: "sc0 ", 3: "nt "}[OPT.get("plf", 0)]

def role_A():
    V_AX, V_AW = 24, 32
    V_GO, V_SCW = 44, 3
    V_XF, V_WF = 48, 64
    URE, UIM = 80, 112
    ACC2 = 144
    HP = 176
    XS, DG, V_GE = 176, 192, 200
    V_PUB, V_XSO, V_HSO = 45, 46, 223
    P_MSK = P0 + 4
    C_LAM, C_M1, C_M2, C_L, C_MQ, C_LQ, C_C2 = 208, 210, 212, 214, 216, 218, 220
    C_DSK = 222
    T0 = 224
    P_SAB, P_SAO, P_XS0, P_XS1 = P0, P0 + 1, P0 + 2, P0 + 3
    code_prefetch()
    A("v_lshrrev_b32 v9, 1, v3")
    A("v_xor_b32 v9, v9, v4")
    A("v_lshlrev_b32 v9, 4, v9")
    A("v_lshrrev_b32 v10, 2, v3")
    A("v_lshlrev_b32 v10, 5, v10")
    A("v_and_b32 v11, 1, v3")
    A("v_lshl_add_u32 v10, v11, 4, v10")
    A("v_bfe_u32 v11, v3, 1, 1")
    A("v_add_u32 v10, v10, v11")
    A("v_lshl_add_u32 v10, v10, 10, v9")
    slin(ST, 0, (S_CHUNK, 1 << 17), (S_RH, 1 << 16), (S_CH, 1 << 13))
    A(f"v_add_u32 v{V_OX}, s{ST}, v10")
    A(f"v_xor_b32 v11, 64, v{V_OX}")
    A(f"v_add_u32 v{V_OX+1}, 1024, v11")
    A(f"v_add_u32 v{V_OX+2}, 2048, v{V_OX}")
    A(f"v_add_u32 v{V_OX+3}, 3072, v11")
    A("v_lshl_add_u32 v10, v3, 10, v9")
    slin(ST, 0, (S_CG, 1 << 16), (S_CH, 1 << 15))
    A(f"v_add_u32 v{V_OW}, s{ST}, v10")
    A(f"v_xor_b32 v11, 64, v{V_OW}")
    A(f"v_add_u32 v{V_OW+1}, 7168, v11")
    A(f"v_add_u32 v{V_OW+2}, {2*7168}, v{V_OW}")
    A(f"v_add_u32 v{V_OW+3}, {3*7168}, v11")
    slin(ST, 0, (S_CG, 128), (S_CH, 64))
    A(f"v_lshl_add_u32 v14, v{V_N}, 1, s{ST}")
    A(f"s_cmp_eq_u32 s{S_RH}, 0")
    A("s_waitcnt lgkmcnt(0)")
    A(f"s_cselect_b32 s{SW}, s{K_BRE}, s{K_BIM}")
    A(f"s_cselect_b32 s{SW+1}, s{K_BRE+1}, s{K_BIM+1}")
    A(f"s_cselect_b32 s{SW2}, s{K_CRE}, s{K_CIM}")
    A(f"s_cselect_b32 s{SW2+1}, s{K_CRE+1}, s{K_CIM+1}")
    A(f"s_mov_b32 s{SW+2}, 0x80000")
    A(f"s_mov_b32 s{SW+3}, 0x20000")
    stamp(1)
    A(f"s_load_dword s{S_TAG}, s[{K_WS}:{K_WS+1}], {WS_TAGA}")
    srd(SX, K_AX, 0x200000)
    tok = {}
    def g1_pieces(i):
        slot = i & 3
        return (dma_pieces(V_OW, SW, ST + 8, slot * SLOT, pre=lambda: rot_soff(ST + 8, i, shift=7, rot=S_ROT1)) +
                dma_pieces(V_OX, SX, ST + 8, slot * SLOT + 16384, post=lambda: tok.__setitem__(i, A.vm), flags=XF))
    CLDS = {1: 4 * SLOT, 2: 4 * SLOT + 16384, 0: 0, 3: 16384, 4: SLOT, 5: SLOT + 16384, 6: 2 * SLOT, 7: 2 * SLOT + 16384}
    CORD = [1, 2, 0, 3, 4, 5, 6, 7]
    CE = OPT.get('ce', 0)
    def c_pieces(st):
        if st in (0, 2) and OPT.get("cswap", 1):
            def pre():
                A(f"s_and_b32 s{ST+9}, s{S_CHUNK}, 3")
                A(f"s_cmp_eq_u32 s{ST+9}, 3")
                A(f"s_cselect_b32 s{ST+9}, {CLDS[2-st]:#x}, {CLDS[st]:#x}")
                A(f"s_cselect_b32 s{ST+7}, s{KAP[2-st]}, s{KAP[st]}")
                A(f"s_add_u32 m0, s{S_M0W}, s{ST+9}")
                A(f"s_lshl_b32 s{ST+9}, s{ST+7}, 7")
            return dma_pieces(V_OW, SW2, ST + 9, 0, pre=pre)
        return dma_pieces(V_OW, SW2, ST + 9, CLDS[st], pre=lambda: A(f"s_lshl_b32 s{ST+9}, s{KAP[st]}, 7"))
    A(f"global_load_ushort v{T0}, v14, s[{K_LRE}:{K_LRE+1}]")
    A(f"global_load_ushort v{T0+1}, v14, s[{K_LIM}:{K_LIM+1}]")
    A(f"global_load_ushort v{T0+2}, v14, s[{K_LDT}:{K_LDT+1}]")
    A(f"global_load_ushort v{C_DSK}, v14, s[{K_DSK}:{K_DSK+1}]")
    tok_small = A.vm
    run(g1_pieces(0))
    A(f"s_mov_b32 s{SW2+2}, 0x80000")
    A(f"s_mov_b32 s{SW2+3}, 0x20000")
    late = g1_pieces(1)
    if EARLY:
        run(late[:NPRE]); late = late[NPRE:] + g1_pieces(2)
    else:
        run(late); late = []
    if OPT.get("wtouch", 0):
        slin(ST, 0, (S_CG, 1 << 16), (S_CHUNK, 4096), (S_CH, 2048))
        A(f"v_and_b32 v9, 15, v{V_LANE}")
        A("v_lshlrev_b32 v9, 7, v9")
        A(f"buffer_load_dword v254, v9, s[{SW2}:{SW2+3}], s{ST} offen")
    stamp(2)
    cut("A")
    A(f"s_lshl_b32 s{ST}, s{S_RH}, 13")
    lds_b128_addrs(V_AX, ST, 16384, 2)
    A(f"s_lshl_b32 s{ST}, s{S_CH}, 12")
    lds_b128_addrs(V_AW, ST, 0, 3)
    if OPT.get("lateset", 1): A.cap = []
    common_setup("A")
    slin(P_SAB, WS_SA, (S_CG, 8192))
    A(f"s_sub_u32 s{ST}, 15, s{S_CHUNK}")
    slin(P_SAO, 0, (ST, 512), (S_CH, 256), (P_SAB, 1))
    A(f"s_mov_b32 s{P_MSK}, 0xffffff00")
    slin(P_XS0, 0, (S_CHUNK, 1 << 17), (S_RH, 1 << 16), (S_CG, 128), (S_CH, 64), (S_MF, 32768))
    A(f"s_xor_b32 s{P_XS1}, s{P_XS0}, 32768")
    slin(P_ACTW, WS_H, (S_CHUNK, 1 << 18), (S_CG, 1 << 15), (S_WAVE, 4096))
    slin(P_ACTR, WS_H, (S_CHUNK, 1 << 18), (S_WAVE, 4096), (S_MF, 16384))
    A(f"s_xor_b32 s{P_ACTR2}, s{P_ACTR}, 16384")
    A(f"v_lshlrev_b32 v9, 11, v{V_G}")
    A(f"v_lshl_add_u32 v{V_HSO}, v{V_N}, 4, v9")
    A(f"s_add_u32 s{P_ACTW2}, s{P_ACTW}, 16384")
    clears = [f"buffer_store_dwordx4 {vr(T0+24,4)}, v{V_HSO}, s[{SWS}:{SWS+3}], s{P_ACTW} offen offset:{k*512} sc1" for k in range(8)]
    A(f"s_and_b32 s{ST}, s{S_TAG}, 0xff")
    A(f"v_mov_b32 v{V_TAG}, s{ST}")
    A(f"v_mov_b32 v11, s{S_TAG}")
    A(f"v_lshlrev_b32 v{V_XSO}, 10, v{V_N}")
    A(f"v_lshl_add_u32 v{V_XSO}, v{V_G}, 5, v{V_XSO}")
    SCR = 3 * SLOT
    slin(ST, SCR, (S_CH, 256))
    A(f"v_lshl_add_u32 v4, v{V_N}, 3, s{ST}")
    A(f"s_lshl_b32 s{ST}, s{S_RH}, 10")
    A(f"v_lshl_add_u32 v3, v{V_G}, 9, v4")
    A(f"v_add_u32 v3, s{ST}, v3")
    A(f"v_lshlrev_b32 v13, 3, v{V_N}")
    A(f"v_mov_b32 v14, {OOB:#x}")
    A(f"s_or_b64 s[{ST+2}:{ST+3}], s[{S_MG}:{S_MG+1}], s[{S_MRH}:{S_MRH+1}]")
    A(f"v_cndmask_b32_e64 v{V_PUB}, v13, v14, s[{ST+2}:{ST+3}]")
    if OPT.get("prew", 1):
        for k in range(2): A(f"v_subrev_u32 v{T0+20+k}, 1, v{V_TAG}")
        A(f"buffer_store_dwordx2 {vr(T0+20,2)}, v{V_PUB}, s[{SWS}:{SWS+3}], s{P_SAO} offen sc1")
    A(f"s_sub_u32 s{ST+4}, 16, s{S_CHUNK}")
    A(f"v_lshlrev_b32 v9, 3, v{V_G}")
    A(f"v_add_u32 v9, s{ST+4}, v9")
    A(f"s_lshl_b32 s{ST+4}, s{S_CH}, 8")
    A(f"v_add_u32 v13, s{ST+4}, v13")
    A(f"v_lshl_add_u32 v{V_GO}, v9, 9, v13")
    for i in range(8):
        A(f"v_cmp_gt_u32 vcc, {16-i}, v9")
        A(f"v_cndmask_b32_e64 v{V_GE+i}, 0, v{V_TAG}, vcc")
    A.wait_vm(tok_small)
    lre, lim, ldt = T0, T0 + 1, T0 + 2
    A(f"v_and_b32 v9, 1, v{V_N}")
    A("v_lshlrev_b32 v9, 4, v9")
    A(f"v_lshlrev_b32 v{C_DSK}, v9, v{C_DSK}")
    A(f"v_lshrrev_b32 v9, 1, v{V_N}")
    A(f"v_lshlrev_b32 v13, 3, v{V_G}")
    A("v_sub_u32 v9, v9, v13")
    for q in range(8):
        A(f"v_cmp_eq_u32 vcc, {q}, v9")
        A(f"v_cndmask_b32_e64 v{DG+q}, 0, v{C_DSK}, vcc")
    for r in (lre, lim, ldt): A(f"v_lshlrev_b32 v{r}, 16, v{r}")
    A(f"v_mul_f32 v{ldt}, s{S_L2E}, v{ldt}")
    A(f"v_exp_f32 v{ldt}, v{ldt}")
    A(f"v_cvt_pk_bf16_f32 v{ldt}, v{ldt}, v{ldt}")
    A(f"v_lshlrev_b32 v{ldt}, 16, v{ldt}")
    A(f"v_mul_f32 v{T0+4}, v{ldt}, v{lre}")
    A(f"v_mul_f32 v{T0+5}, v{ldt}, v{lim}")
    A(f"v_mul_f32 v{T0+4}, s{S_L2E}, v{T0+4}")
    A(f"v_exp_f32 v{T0+4}, v{T0+4}")
    A(f"v_mul_f32 v{T0+5}, {INV2PI:#x}, v{T0+5}")
    A(f"v_rndne_f32 v{T0+6}, v{T0+5}")
    A(f"v_sub_f32 v{T0+5}, v{T0+5}, v{T0+6}")
    A(f"v_cos_f32 v{T0+6}, v{T0+5}")
    A(f"v_sin_f32 v{T0+7}, v{T0+5}")
    A(f"v_mul_f32 v{C_LAM}, v{T0+4}, v{T0+6}")
    A(f"v_mul_f32 v{C_LAM+1}, v{T0+4}, v{T0+7}")
    A(f"v_add_f32 v{T0+4}, -1.0, v{C_LAM}")
    A(f"v_mul_f32 v{T0+5}, v{lre}, v{lre}")
    A(f"v_fmac_f32 v{T0+5}, v{lim}, v{lim}")
    A(f"v_rcp_f32 v{T0+5}, v{T0+5}")
    A(f"v_mul_f32 v{T0+6}, v{T0+4}, v{lre}")
    A(f"v_fmac_f32 v{T0+6}, v{C_LAM+1}, v{lim}")
    A(f"v_mul_f32 v{T0+7}, v{C_LAM+1}, v{lre}")
    A(f"v_fma_f32 v{T0+7}, -v{T0+4}, v{lim}, v{T0+7}")
    A(f"v_add_f32 v{T0+5}, v{T0+5}, v{T0+5}")
    A(f"v_mul_f32 v{C_C2}, v{T0+6}, v{T0+5}")
    A(f"v_mul_f32 v{C_C2+1}, v{T0+7}, v{T0+5}")
    pa, pb, tt = T0 + 8, T0 + 10, T0 + 12
    cmul(pa, C_LAM, C_LAM, tt)
    cmul(pb, pa, pa, tt)
    cmul(pa, pb, pb, tt)
    cmul(C_M1, pa, pa, tt)
    cmul(C_M2, C_M1, C_M1, tt)
    cmul(pa, C_M2, C_M2, tt)
    cmul(C_L, pa, pa, tt)
    def sel_pair(dst, src, mask):
        A(f"v_cndmask_b32_e64 v{dst}, 1.0, v{src}, s[{mask}:{mask+1}]")
        A(f"v_cndmask_b32_e64 v{dst+1}, 0, v{src+1}, s[{mask}:{mask+1}]")
    sel_pair(T0 + 14, C_M2, S_MG)
    sel_pair(T0 + 16, pa, S_MRH)
    cmul(C_MQ, T0 + 14, T0 + 16, tt)
    cmul(pa, C_L, C_L, tt)
    cmul(pb, pa, pa, tt)
    cmul(pa, pb, pb, tt)
    sel_pair(C_LQ, pa, S_MG)
    SET, A.cap = (A.cap or []), None
    LATEV = [x for x in SET if x.startswith("buffer_")]
    SET = [x for x in SET if not x.startswith("buffer_")]
    for _ in range(OPT.get("pset", 0)):
        if f"s{S_TAG}," in SET[0] + ",": break
        A(SET.pop(0))
    while SET and (SET[0].startswith("s_addc") or SET[0].startswith("s_cselect")): A(SET.pop(0))
    stamp(3)
    run(late)
    def rd(n):
        i, ks = n >> 2, n & 3
        slot, buf = i & 3, n & 1
        s2_, off = slot >> 1, (slot & 1) * SLOT
        x = [f"ds_read_b128 {vr(V_XF+buf*8+m*4,4)}, v{V_AX+4*s2_+ks} offset:{off+m*4096}" for m in range(2)]
        w = [f"ds_read_b128 {vr(V_WF+buf*8+ri*4,4)}, v{V_AW+4*s2_+ks} offset:{off+ri*8192}" for ri in range(2)]
        return [x[0], w[0], w[1], x[1]]
    def mm(n):
        buf = n & 1
        r = []
        for m, ri in ((0, 0), (0, 1), (1, 1), (1, 0)):
            d = vr((URE, UIM)[ri] + 16 * m, 16)
            r.append(mf(d, vr(V_XF + buf * 8 + m * 4, 4), vr(V_WF + buf * 8 + ri * 4, 4), d if n else "0"))
        return r
    fill = []
    def xs_load(m, s):
        return lambda: A(f"buffer_load_dwordx4 {vr(XS+8*m+4*s,4)}, v{V_XSO}, s[{SX}:{SX+3}], s{P_XS0+m} offen offset:{16*s}")
    def on_step(n):
        i, ks = n >> 2, n & 3
        if ks == 0 and OPT.get("g1st") and i: stamp(16 + i)
        if ks == 0:
            for st in SCHED[0].get(i, []): fill.extend(g1_pieces(st))
            if i == XST:
                fill.extend(c_pieces(1) + c_pieces(2))
            elif i == XST + 1:
                fill.extend(LATEV)
                fill.extend([xs_load(m, s) for m in range(2) for s in range(2)])
                if CE >= 4: fill.extend(c_pieces(0) + c_pieces(3))
            elif i == 7:
                if CE == 2: fill.extend(c_pieces(0) + c_pieces(3))
                if CE >= 4: fill.extend(c_pieces(4) + c_pieces(5))
                if OPT.get("ptouch", 0):
                    fill.extend([f"buffer_load_dword v254, v{V_GO+k}, s[{SWS}:{SWS+3}], s{P_SAB} offen sc1" for k in range(4)])
                    fill.append(lambda: rdy_load(254, 254))
    A.wait_vm(tok[0])
    A("s_barrier")
    stamp(4)
    gemm_loop(32, rd, mm, lambda n: tok[n >> 2] if (n & 3) == 0 else None, (2, 2, 0, 0), lambda n: g1_gaps(n, (6,) if CE >= 4 else ()), fill, on_step, end_barrier=True, extra=SET, nextra=lambda n, g: NX)
    assert not SET
    assert not fill
    stamp(5)
    P = [T0, T0 + 4]
    def lam_bc(hi): return f"op_sel:[{hi},0,0] op_sel_hi:[{hi},1,1]"
    NEG = "neg_lo:[1,0,0] neg_hi:[1,0,0]"
    cur_re, cur_im = URE, UIM
    for s in range(1, 16):
        d = P[s & 1]
        A(f"v_pk_fma_f32 {vr(d,2)}, {vr(C_LAM,2)}, {vr(cur_im,2)}, {vr(URE+2*s,2)} {lam_bc(1)} {NEG}")
        A(f"v_pk_fma_f32 {vr(d+2,2)}, {vr(C_LAM,2)}, {vr(cur_re,2)}, {vr(UIM+2*s,2)} {lam_bc(1)}")
        A(f"v_pk_fma_f32 {vr(d,2)}, {vr(C_LAM,2)}, {vr(cur_re,2)}, {vr(d,2)} {lam_bc(0)}")
        A(f"v_pk_fma_f32 {vr(d+2,2)}, {vr(C_LAM,2)}, {vr(cur_im,2)}, {vr(d+2,2)} {lam_bc(0)}")
        cur_re, cur_im = d, d + 2
    A0, BQ = T0 + 8, T0 + 10
    A(f"v_fma_f32 v{BQ}, v{C_M1}, v{cur_re}, v{cur_re+1}")
    A(f"v_fma_f32 v{BQ+1}, v{C_M1}, v{cur_im}, v{cur_im+1}")
    A(f"v_fma_f32 v{BQ}, -v{C_M1+1}, v{cur_im}, v{BQ}")
    A(f"v_fma_f32 v{BQ+1}, v{C_M1+1}, v{cur_re}, v{BQ+1}")
    A(f"ds_write_b64 v3, {vr(BQ,2)}")
    A(f"v_mov_b32 v{A0}, v{cur_re}")
    A(f"v_mov_b32 v{A0+1}, v{cur_im}")
    P2, P3, SS, tt = T0 + 20, T0 + 22, T0 + 24, T0 + 28
    def c2_bc(hi, n=3):
        return f"op_sel:[{hi},0,0] op_sel_hi:[{hi},1,1]" if n == 3 else f"op_sel:[{hi},0] op_sel_hi:[{hi},1]"
    cm = []
    for s in range(16):
        re, im, t = URE + 2 * s, UIM + 2 * s, T0 + 2 + 2 * (s & 1)
        cm += [f"v_pk_mul_f32 {vr(t,2)}, {vr(C_C2,2)}, {vr(re,2)} {c2_bc(1,2)} neg_lo:[1,0] neg_hi:[1,0]",
               f"v_pk_mul_f32 {vr(re,2)}, {vr(C_C2,2)}, {vr(re,2)} {c2_bc(0,2)}",
               f"v_pk_fma_f32 {vr(re,2)}, {vr(C_C2,2)}, {vr(im,2)}, {vr(re,2)} {c2_bc(1)} {NEG}",
               f"v_pk_fma_f32 {vr(im,2)}, {vr(C_C2,2)}, {vr(im,2)}, {vr(t,2)} {c2_bc(0)} {NEG}"]
    emit(cm[:8])
    if HAND: A.wait_both(tok["clr"], A.lg)
    else: A("s_waitcnt lgkmcnt(0)")
    A("s_barrier")
    B0 = T0 + 12
    for q in range(4):
        A(f"ds_read_b64 {vr(B0+2*q,2)}, v4 offset:{q*512}")
    emit(cm[8:24])
    A("s_waitcnt lgkmcnt(0)")
    cfma(P2, C_M2, B0, B0 + 2, tt)
    cfma(P3, C_M2, P2, B0 + 4, tt)
    cfma(tt, C_M2, P3, B0 + 6, tt)
    A(f"v_and_or_b32 v{SS}, v{tt}, s{P_MSK}, v{V_TAG}")
    A(f"v_and_or_b32 v{SS+1}, v{tt+1}, s{P_MSK}, v{V_TAG}")
    A(f"buffer_store_dwordx2 {vr(SS,2)}, v{V_PUB}, s[{SWS}:{SWS+3}], s{P_SAO} offen sc1")
    rdy_store()
    stamp(6)
    emit(cm[24:])
    LOC = T0 + 0
    for e in range(2):
        A(f"v_cndmask_b32_e64 v{T0+2+e}, 0, v{B0+e}, s[{S_MG}:{S_MG+1}]")
        A(f"v_cndmask_b32_e64 v{T0+4+e}, v{P2+e}, v{P3+e}, s[{S_MG}:{S_MG+1}]")
        A(f"v_cndmask_b32_e64 v{LOC+e}, v{T0+2+e}, v{T0+4+e}, s[{S_MRH}:{S_MRH+1}]")
    E0, F0, E1, F1 = T0 + 12, T0 + 14, T0 + 16, T0 + 18
    cfma(P2, C_M1, LOC, A0, tt)
    cmul(F1, C_C2, P2, tt)
    cmul(F0, C_C2, LOC, tt)
    cmul(E0, C_C2, C_MQ, tt)
    cmul(E1, E0, C_M1, tt)
    V_AH = V_AX
    A(f"v_bfe_u32 v9, v{V_LANE}, 4, 1")
    A(f"v_bfe_u32 v13, v{V_LANE}, 1, 1")
    A("v_lshl_add_u32 v9, v9, 1, v13")
    A(f"v_bfe_u32 v13, v{V_LANE}, 2, 2")
    A(f"v_lshl_add_u32 v13, v{V_G}, 3, v13")
    A("v_lshlrev_b32 v14, 2, v9")
    A("v_xor_b32 v13, v13, v14")
    A("v_lshlrev_b32 v13, 4, v13")
    A("v_lshl_add_u32 v13, v9, 9, v13")
    A(f"v_and_b32 v14, 1, v{V_LANE}")
    A("v_lshl_add_u32 v13, v14, 3, v13")
    A(f"s_lshl_b32 s{ST+2}, s{S_RH}, 13")
    A(f"v_add_u32 v{V_AH}, s{ST+2}, v13")
    A(f"v_xor_b32 v{V_AH+1}, 64, v{V_AH}")
    for st in (1, 2):
        A(f"v_add_u32 v{V_AH+2*st}, {st*0x10000:#x}, v{V_AH}")
        A(f"v_add_u32 v{V_AH+2*st+1}, {st*0x10000:#x}, v{V_AH+1}")
    V_SO = T0 + 24
    for o in range(1, 4):
        A(f"v_xor_b32 v{V_SO+o}, {o*64}, v{V_HSO}")
    CPRE = 8
    A(f"s_add_u32 s{SW}, s{SWS}, s{P_SAB}")
    A(f"s_addc_u32 s{SW+1}, s{SWS+1}, 0")
    A(f"s_mov_b32 s{SW+2}, 8192")
    GD = 48
    def loads():
        for i in range(8):
            A(f"buffer_load_dwordx2 {vr(GD+2*i,2)}, v{V_GO}, s[{SW}:{SW+3}], 0 offen offset:{i*512} sc1")
        rdy_load(14)
    def check():
        A(f"v_xor_b32 v13, v{GD}, v{V_GE}")
        for i in range(1, 8):
            A(f"v_bitop3_b32 v13, v{GD+2*i}, v{V_GE+i}, v13 bitop3:0xbe")
        rdy_check(9, 14)
        A("v_and_b32 v13, 0xff, v13")
        A("v_or_b32 v13, v13, v9")
        A(f"v_cmp_ne_u32 s[{S_FAIL}:{S_FAIL+1}], 0, v13")
    CM = min(8, 2 + CE + OPT.get("cmid", 3))
    for st in CORD[2+CE:CM]: run(c_pieces(st))
    loads()
    tok_p = A.vm
    for st in CORD[CM:]: run(c_pieces(st))
    tok_c = A.vm
    stamp(7)
    ok = lab("ok1")
    A.wait_vm(tok_p)
    for m in range(2):
        d = vr(ACC2 + 16 * m, 16)
        A(mf(d, vr(XS + 8 * m, 4), vr(DG, 4), "0"))
    check()
    A(f"s_cmp_eq_u64 s[{S_FAIL}:{S_FAIL+1}], 0")
    A(f"s_cbranch_scc1 {ok}")
    vm_keep = A.vm
    poll(loads, check)
    A.vm = vm_keep
    A.label(ok)
    stamp(8)
    h1, h2 = T0 + 20, T0 + 22
    cur = GD + 14
    for i in range(6, -1, -1):
        d = (h1, h2)[i & 1]
        cfma(d, C_L, cur, GD + 2 * i, tt)
        cur = d
    CQ = GD
    cmul(CQ, C_LQ, cur, tt)
    for e in range(2): A(f"v_mov_b32 v{CQ+2+e}, v{CQ+e}")
    for e in range(2): A(f"v_permlane32_swap_b32 v{CQ+e}, v{CQ+2+e}")
    A(f"v_pk_add_f32 {vr(CQ,2)}, {vr(CQ,2)}, {vr(CQ+2,2)}")
    def c_reads(st):
        s2_, off = CLDS[st] >> 16, CLDS[st] & 0xffff
        r = [None] * 8
        for ks in range(4):
            for ri in range(2):
                kap = (ks >> 1) * 4 + ri * 2 + (ks & 1)
                r[kap] = f"ds_read_b128 {ar((st*8+kap)*4,4)}, v{V_AW+4*s2_+ks} offset:{off+ri*8192}"
        return r
    for m in range(2):
        d = vr(ACC2 + 16 * m, 16)
        A(mf(d, vr(XS + 8 * m + 4, 4), vr(DG + 4, 4), d))
    HR, HI = T0 + 20, T0 + 22
    A(f"v_fma_f32 v{HR}, v{E0}, v{CQ}, v{F0}")
    A(f"v_fma_f32 v{HR+1}, v{E1}, v{CQ}, v{F1}")
    A(f"v_fma_f32 v{HI}, -v{E0}, v{CQ+1}, -v{F0+1}")
    A(f"v_fma_f32 v{HI+1}, -v{E1}, v{CQ+1}, -v{F1+1}")
    A(f"v_fma_f32 v{HR}, -v{E0+1}, v{CQ+1}, v{HR}")
    A(f"v_fma_f32 v{HR+1}, -v{E1+1}, v{CQ+1}, v{HR+1}")
    A(f"v_fma_f32 v{HI}, -v{E0+1}, v{CQ}, v{HI}")
    A(f"v_fma_f32 v{HI+1}, -v{E1+1}, v{CQ}, v{HI+1}")
    pr, pi_ = HR, HI
    def hstore(ph, o):
        A(f"buffer_store_dwordx4 {vr(HP+16*ph+4*o,4)}, v{V_SO+o if o else V_HSO}, s[{SWS}:{SWS+3}], s{P_ACTW+ph} offen offset:{o*512} sc1")
    for hf in range(2):
        for s in range(8 * hf, 8 * hf + 8):
            re, im = URE + 2 * s, UIM + 2 * s
            emit([f"v_pk_fma_f32 {vr(re,2)}, {vr(C_LAM,2)}, {vr(pi_,2)}, {vr(re,2)} {lam_bc(1)}",
                  f"v_pk_fma_f32 {vr(im,2)}, {vr(C_LAM,2)}, {vr(pr,2)}, {vr(im,2)} {lam_bc(1)} {NEG}",
                  f"v_pk_fma_f32 {vr(re,2)}, {vr(C_LAM,2)}, {vr(pr,2)}, {vr(re,2)} {lam_bc(0)}",
                  f"v_pk_fma_f32 {vr(im,2)}, {vr(C_LAM,2)}, {vr(pi_,2)}, {vr(im,2)} {lam_bc(0)}"])
            pr, pi_ = re, im
        for z in range(2):
            o = 2 * z + hf
            for ri in range(2):
                U = (URE, UIM)[ri]
                for u in range(4):
                    s0 = 8 * hf + 2 * u
                    A(f"v_cvt_pk_bf16_f32 v{HP+(ri*4+o)*4+u}, v{U+2*s0+z}, v{U+2*s0+2+z}")
            for u in range(4):
                A(f"v_permlane32_swap_b32 v{HP+o*4+u}, v{HP+16+o*4+u}")
            hstore(0, o)
    tok_a = A.vm
    for o in range(4): hstore(1, o)
    tok_h = A.vm
    stamp(9)
    HS = [3, 4, 0, 1, 3, 4, 0, 1]
    def h_pieces(G):
        r = []
        for sub in range(2):
            pos, ph = SEQ[2 * G + sub]
            r += dma_pieces(V_LIN, SWS, ST + 8, HS[G] * SLOT + sub * 16384,
                            pre=lambda pos=pos, ph=ph: (A(f"s_lshl_b32 s{ST+8}, s{KAP[pos]}, 15"), A(f"s_add_u32 s{ST+8}, s{ST+8}, s{P_ACTR+ph}")),
                            post=(lambda: tok.__setitem__(("h", G), A.vm)) if sub else None, flags=PLF, same_v=True)
        return r
    assert CPRE == 8
    call = sum([c_reads(st) for st in [0, 1, 2, 3, 4, 5, 6, 7]], [])
    HF = 48
    def rd2(n):
        G, q = n >> 2, n & 3
        slot, buf = HS[G], n & 1
        r = []
        for h in range(4):
            kap = 4 * (q & 1) + h
            off = (slot & 1) * SLOT + (q >> 1) * 16384 + (kap >> 2) * 4096 + ((kap >> 1) & 1) * 2048 + (kap & 1) * 256
            for j in range(2):
                if True:
                    r.append(f"ds_read_b64_tr_b16 {vr(HF+buf*16+h*4+2*j,2)}, v{V_AH+2*(slot>>1)+j} offset:{off}")
        return r
    def mm2(n):
        buf = n & 1
        pos, ph = SEQ[n >> 1]
        d = vr(ACC2 + 16 * ph, 16)
        return [mf(d, vr(HF + buf * 16 + h * 4, 4), ar((8 * pos + 4 * (n & 1) + h) * 4, 4), d) for h in range(4)]
    xcc_decide(14)
    A.wait_vm(tok_c)
    A("s_barrier")
    slin(ST + 2, 3 * SLOT, (S_WAVE, 4096))
    A(f"v_add_u32 v{V_GO}, s{ST+2}, v{V_HSO}")
    for o in range(1, 4): A(f"v_xor_b32 v{V_GO+o}, {o*64}, v{V_GO}")
    for p in range(8):
        A(f"ds_write_b128 v{V_GO+(p&3)}, {vr(HP+4*p,4)} offset:{(p>>2)*16384+(p&3)*512}")
    emit(call[:8])
    A("s_waitcnt lgkmcnt(0)")
    A("s_barrier")
    cf = call[8:32]
    gemm_loop(4, rd2, mm2, lambda n: None, (3, 3, 2, 0), (2, 3), cf)
    A.wait_vm(tok_a)
    flag_store(0)
    emit(cf)
    A("s_waitcnt lgkmcnt(0)")
    A("s_barrier")
    stamp(10)
    A.wait_vm(tok_h)
    flag_store(1)
    flag_poll(0)
    stamp(11)
    run(h_pieces(1))
    weave(call[32:], h_pieces(2), 4)
    if OPT.get("btouch", 0):
        A(f"v_lshlrev_b32 v9, 7, v{V_N}")
        A(f"buffer_load_dword v254, v9, s[{SWS}:{SWS+3}], s{P_ACTW2} offen sc1")
    stamp(12)
    fill = []
    h4 = h_pieces(4)
    def on_step2(n):
        G, q = n >> 2, n & 3
        if q == 0 and OPT.get("g2st") and G > 1: stamp(15 + G)
        if n == 7:
            A.wait_vm(tok["fb"])
            flag_check(1)
        fb = [lambda: (flag_load(1), tok.__setitem__("fb", A.vm))]
        if q == 0 and G2S == 0:
            if G == 1: fill.extend(fb + h_pieces(3) + h4[:4])
            elif G == 2: fill.extend(h4[4:] + h_pieces(5))
            elif G + 3 < 8: fill.extend(h_pieces(G + 3))
            elif G == 5: fill.extend(out_stores(ACC2, 0))
        elif q == 0 and G2S in (1, 2):
            if G == 1: fill.extend(fb)
            if G + 2 < 8: fill.extend(h_pieces(G + 2))
            elif G == 6: fill.extend(out_stores(ACC2, 0))
        elif q == 0:
            if G == 1: fill.extend(fb + h_pieces(3))
            elif G == 2: fill.extend(h_pieces(4) + h_pieces(5)[:4])
            elif G == 3: fill.extend(h_pieces(5)[4:] + h_pieces(6))
            elif G == 4: fill.extend(h_pieces(7))
            elif G == 5: fill.extend(out_stores(ACC2, 0))
    G2S = OPT.get("g2s", 2)
    def gaps2(n):
        if G2S == 0: return (0, 1, 2, 3) if n < 12 else (2, 3)
        if G2S == 1: return (0, 1, 2, 3) if n < 24 else (2, 3)
        if G2S == 2: return (1, 2, 3) if n < 24 else (2, 3)
        return (1, 2, 3) if n < 16 else (2, 3)
    A.wait_both(tok[("h", 1)], A.lg)
    A("s_barrier")
    stamp(13)
    gemm_loop(32, rd2, mm2, lambda n: tok[("h", n >> 2)] if (n & 3) == 0 else None, (3, 3, 2, 0),
              gaps2, fill, on_step2, start=4)
    assert not fill
    stamp(14)
    run(out_stores(ACC2, 1))
    tag_update("A")
    stamp(15)
    finish()

def role_B():
    V_OO = 24
    V_AX, V_AT = 28, 36
    V_SW, V_SR, V_P2, V_G2B, V_PB0, V_PB1, V_G1, V_GZ, V_G2, V_P2Z = 39, 40, 41, 42, 43, 44, 45, 46, 47, 253
    S_WPH, V_WPO = P0 + 12, 252
    IDF = 240
    V_WF = 48
    KACC, VACC, PK, KV, WPH = 64, 96, 128, 192, 224
    T0 = 232
    P_P1O, P_P1G, P_P2O, P_P2G, P_MSK = P0 + 1, P0 + 2, P0 + 8, P0 + 9, P0 + 10
    S_PART = 57
    NS = 16 if OPT.get('p16', 1) else 32
    WPS = OPT.get('wps', 1)
    QE = OPT.get('qe', 0)
    code_prefetch()
    A("v_lshrrev_b32 v9, 1, v3")
    A("v_xor_b32 v9, v9, v4")
    A("v_lshlrev_b32 v9, 4, v9")
    A("v_lshl_add_u32 v10, v3, 10, v9")
    slin(ST, 0, (S_CHUNK, 1 << 17), (S_WAVE, 1 << 15))
    A(f"v_add_u32 v{V_OX}, s{ST}, v10")
    A(f"v_xor_b32 v11, 64, v{V_OX}")
    A(f"v_add_u32 v{V_OX+1}, 7168, v11")
    A(f"v_add_u32 v{V_OX+2}, {2*7168}, v{V_OX}")
    A(f"v_add_u32 v{V_OX+3}, {3*7168}, v11")
    A("v_bfe_u32 v9, v3, 1, 1")
    A("v_lshlrev_b32 v9, 2, v9")
    A("v_xor_b32 v9, v9, v4")
    A("v_lshlrev_b32 v9, 4, v9")
    A(f"s_lshl_b32 s{ST}, s{S_CG}, 7")
    A(f"v_add_u32 v9, s{ST}, v9")
    A(f"s_lshl_b32 s{ST+1}, s{S_CH}, 5")
    A(f"v_add_u32 v10, s{ST+1}, v3")
    A("v_mul_u32_u24 v11, 3072, v10")
    A(f"v_add_u32 v{V_OW}, v11, v9")
    for p in range(1, 4): A(f"v_add_u32 v{V_OW+p}, {p*(8*3072-1024)}, v{V_OW}")
    A(f"v_lshl_add_u32 v{V_OO}, v10, 10, v9")
    slin(S_PART, 1024, (S_RH, 1024))
    A("s_waitcnt lgkmcnt(0)")
    srd(SW, K_WQKV, 0x180000)
    stamp(1)
    A(f"s_load_dword s{S_TAG}, s[{K_WS}:{K_WS+1}], {WS_TAGB}")
    srd(SX, K_BX, 0x200000)
    tok = {}
    def g1_pieces(i):
        slot = i & 3
        return (dma_pieces(V_OW, SW, ST + 8, slot * SLOT, pre=lambda: rot_soff(ST + 8, i, mul=196608, plus=S_PART, rot=S_ROT1)) +
                dma_pieces(V_OX, SX, ST + 10, slot * SLOT + 16384, pre=lambda: rot_soff(ST + 10, i, shift=7, rot=S_ROT1),
                           post=lambda: tok.__setitem__(i, A.vm), flags=XF))
    QSLOT = [4, 0]; OSLOT = [1, 2]
    def q_pieces(st):
        return dma_pieces(V_OW, SW, ST + 9, QSLOT[st >> 1] * SLOT + (st & 1) * 16384,
                          pre=lambda: rot_soff(ST + 9, 2 * st, mul=196608, extra_sreg=S_RH, rot=S_ROT1), post=lambda: tok.__setitem__(("q", st), A.vm))
    OPAIR = [(1, 2), (0, 3), (4, 5), (6, 7)]
    OLDS = {}
    for st_, pr_ in enumerate(OPAIR):
        for e_ in range(2): OLDS[pr_[e_]] = OSLOT[st_ >> 1] * SLOT + (st_ & 1) * 16384 + e_ * 8192
    def o_pieces(st):
        def pre():
            A(f"s_cmp_eq_u32 s{S_RH}, 0")
            A(f"s_cselect_b32 s{ST+9}, s{KAP[OPAIR[st][0]]}, s{KAP[OPAIR[st][1]]}")
            A(f"s_lshl_b32 s{ST+9}, s{ST+9}, 16")
        return dma_pieces(V_OO, SW2, ST + 9, OSLOT[st >> 1] * SLOT + (st & 1) * 16384, pre=pre)
    run(g1_pieces(0))
    WPL = 4 * SLOT
    srd(SW2, K_WPHI, 0x4000)
    A(f"v_lshlrev_b32 v{V_LIN}, 4, v{V_LANE}")
    slin(ST, 0, (S_CG, 2048), (S_CH, 1024))
    A(f"s_lshl_b32 s{ST+1}, s{S_WAVE}, 10")
    A(f"s_add_u32 m0, s{ST+1}, {WPL:#x}")
    A(f"buffer_load_dwordx4 v{V_LIN}, s[{SW2}:{SW2+3}], s{ST} offen lds")
    late = g1_pieces(1)
    if EARLY:
        run(late[:NPRE]); late = late[NPRE:] + g1_pieces(2)
    else:
        run(late); late = []
    if OPT.get("wtouch", 0):
        slin(ST, 0, (S_CHUNK, 32), (S_WAVE, 8))
        A(f"v_add_u32 v9, s{ST}, v4")
        A("v_mul_u32_u24 v10, 3072, v9")
        A("v_lshlrev_b32 v9, 10, v9")
        A(f"s_lshl_b32 s{ST}, s{S_CG}, 7")
        A(f"buffer_load_dword v254, v10, s[{SW}:{SW+3}], s{ST} offen")
        A(f"buffer_load_dword v254, v9, s[{SW2}:{SW2+3}], s{ST} offen")
    stamp(2)
    cut("B")
    A(f"s_lshl_b32 s{ST}, s{S_RH}, 13")
    lds_b128_addrs(V_AX, ST, 16384, 2)
    A(f"v_bfe_u32 v9, v{V_LANE}, 4, 1")
    A(f"v_bfe_u32 v13, v{V_LANE}, 1, 1")
    A("v_lshl_add_u32 v10, v9, 1, v13")
    A(f"v_bfe_u32 v13, v{V_LANE}, 3, 1")
    A(f"v_xor_b32 v13, s{S_CH}, v13")
    A("v_lshl_add_u32 v9, v13, 2, v10")
    A("v_lshlrev_b32 v9, 4, v9")
    A(f"v_and_b32 v10, 1, v{V_LANE}")
    A("v_lshl_add_u32 v9, v10, 3, v9")
    A(f"v_bfe_u32 v14, v{V_LANE}, 2, 2")
    A(f"v_lshl_add_u32 v13, v{V_G}, 3, v14")
    A(f"v_lshl_add_u32 v{V_AT}, v13, 7, v9")
    A(f"v_add_u32 v{V_AT+1}, 0x10000, v{V_AT}")
    A(f"v_add_u32 v{V_AT+2}, 0x20000, v{V_AT}")
    if OPT.get("lateset", 1): A.cap = []
    srd(SW2, K_WO, 0x80000)
    common_setup("B")
    for p in range(1, 4): A(f"v_add_u32 v{V_OO+p}, {p*7168}, v{V_OO}")
    A(f"v_bfe_u32 v9, v{V_LANE}, 4, 1")
    A(f"v_bfe_u32 v13, v{V_LANE}, 1, 1")
    A("v_lshl_add_u32 v9, v9, 1, v13")
    A("v_lshlrev_b32 v9, 3, v9")
    A(f"v_bfe_u32 v13, v{V_LANE}, 2, 2")
    A(f"v_lshl_add_u32 v13, v{V_G}, 2, v13")
    A("v_lshl_add_u32 v9, v13, 5, v9")
    slin(ST, WPL, (S_WAVE, 1024))
    A(f"v_add_u32 v{V_WPO}, s{ST}, v9")
    if NS == 32: slin(ST, 0, (S_CG, 512), (S_CH, 256), (S_CHUNK, 2), (S_RH, 1))
    else:
        slin(ST, 0, (S_CG, 256), (S_CH, 128), (S_RH, 32), (S_CHUNK, 1))
    slin(P_P1O, WS_P1, (ST, 640))
    slin(ST, 0, (S_CG, 16), (S_CHUNK, 1))
    slin(P_P2O, WS_P2, (ST, 640))
    slin(P_P1G, WS_P1, (ST, NS * 640))
    for k in range(1, 4): A(f"s_add_u32 s{P_P1G+k}, s{P_P1G}, {8*k*640}")
    slin(ST, 0, (S_CG, 16), (S_CH, 8))
    slin(P_P2G, WS_P2, (ST, 640))
    A(f"s_mov_b32 s{P_MSK}, 0xffffff00")
    slin(P_ACTW, WS_O, (S_CHUNK, 1 << 17), (S_CG, 1 << 14), (S_RH, 1 << 12), (S_CH, 1 << 11))
    A(f"s_add_u32 s{P_ACTW2}, s{P_ACTW}, 8192")
    slin(P_ACTR, WS_O, (S_CHUNK, 1 << 17), (S_MF, 8192), (S_WAVE, 2048))
    A(f"s_lshl_b32 s{S_M0W2}, s{S_WAVE}, 11")
    A(f"s_xor_b32 s{P_ACTR2}, s{P_ACTR}, 8192")
    clears = [f"buffer_store_dwordx4 {vr(T0+16,4)}, v{V_LIN}, s[{SWS}:{SWS+3}], s{P_ACTW+(k>>1)} offen offset:{(k&1)*1024} sc1" for k in range(4)]
    A(f"s_and_b32 s{ST}, s{S_TAG}, 0xff")
    A(f"v_mov_b32 v{V_TAG}, s{ST}")
    A(f"v_mov_b32 v11, s{S_TAG}")
    A(f"v_and_b32 v9, 1, v{V_N}")
    A("v_lshlrev_b32 v9, 4, v9")
    A("v_mov_b32 v13, 0x3f80")
    A("v_lshlrev_b32 v13, v9, v13")
    A(f"v_lshrrev_b32 v9, 1, v{V_N}")
    A(f"v_lshlrev_b32 v14, 3, v{V_G}")
    A("v_sub_u32 v9, v9, v14")
    for q in range(8):
        A(f"v_cmp_eq_u32 vcc, {q}, v9")
        A(f"v_cndmask_b32_e64 v{IDF+q}, 0, v13, vcc")
    A(f"v_and_b32 v9, 15, v{V_LANE}")
    A("v_cmp_gt_u32 vcc, 4, v9")
    A("v_lshlrev_b32 v9, 4, v9")
    A(f"v_lshl_add_u32 v13, v{V_G}, 6, v9")
    A("v_add_u32 v13, 512, v13")
    A(f"v_lshl_add_u32 v9, v{V_G}, 8, v9")
    A(f"v_mov_b32 v14, {OOB:#x}")
    A("v_cndmask_b32 v13, v14, v13, vcc")
    A(f"v_cndmask_b32_e64 v{V_PB0}, v9, v13, s[{S_M16}:{S_M16+1}]")
    A(f"v_cndmask_b32_e64 v{V_PB1}, v13, v9, s[{S_M16}:{S_M16+1}]")
    A(f"v_cndmask_b32_e64 v13, v13, v14, s[{S_M16}:{S_M16+1}]")
    A(f"s_cmp_eq_u32 s{S_WAVE}, 0")
    A(f"s_cselect_b64 vcc, -1, 0")
    A(f"v_cndmask_b32 v{V_P2Z}, v14, v13, vcc")
    A(f"v_and_b32 v9, 7, v{V_LANE}")
    A(f"s_lshl_b32 s{ST}, s{S_WAVE}, 7")
    A(f"v_lshl_add_u32 v9, v9, 4, s{ST}")
    A(f"v_lshrrev_b32 v13, 3, v{V_LANE}")
    A("v_mul_u32_u24 v13, 640, v13")
    A(f"v_add_u32 v{V_G1}, v9, v13")
    A(f"v_cmp_gt_u32 vcc, 8, v{V_LANE}")
    A(f"v_and_b32 v13, {NS-1}, v{V_N}")
    A(f"v_mul_u32_u24 v{V_GZ}, 640, v13")
    if NS == 16:
        slin(ST, 3 * SLOT, (S_WAVE, 4096))
        A(f"v_add_u32 v{V_SW}, s{ST}, v{V_LIN}")
        A(f"v_xor_b32 v{V_SR}, 0x2000, v{V_SW}")
    A(f"v_lshl_add_u32 v{V_GZ}, v{V_G}, 6, v{V_GZ}")
    A(f"v_cndmask_b32 v{V_P2}, v14, v9, vcc")
    A(f"v_bfe_u32 v9, v{V_N}, 2, 1")
    A("v_lshlrev_b32 v9, 3, v9")
    A(f"v_bfe_u32 v13, v{V_N}, 3, 1")
    A("v_lshl_add_u32 v9, v13, 2, v9")
    A(f"v_and_b32 v13, 3, v{V_N}")
    A("v_add_u32 v9, v9, v13")
    A(f"v_cndmask_b32_e64 v9, v9, 32, s[{S_M16}:{S_M16+1}]")
    A("v_lshlrev_b32 v9, 4, v9")
    A(f"v_mul_u32_u24 v13, 1280, v{V_G}")
    A(f"v_add_u32 v{V_G2}, v9, v13")
    A("v_mov_b32 v9, 0x100")
    A(f"v_cndmask_b32_e64 v9, v9, 64, s[{S_M16}:{S_M16+1}]")
    A(f"v_add_u32 v{V_G2B}, v{V_G2}, v9")
    if OPT.get("prew", 1):
        for r in range(4): A(f"v_subrev_u32 v{T0+4+r}, 1, v{V_TAG}")
        A(f"buffer_store_dwordx4 {vr(T0+4,4)}, v{V_P2Z}, s[{SWS}:{SWS+3}], s{P_P2O} offen sc1")
        A(f"buffer_store_dwordx4 {vr(T0+4,4)}, v{V_P2}, s[{SWS}:{SWS+3}], s{P_P2O} offen sc1")
    A("v_mov_b32 v3, 0x3f803f80")
    A(f"v_bfe_u32 v4, v{V_LANE}, 2, 1")
    A("v_mul_u32_u24 v4, 0x8000, v4")
    A("v_lshl_or_b32 v4, v4, 16, v4")
    SET, A.cap = (A.cap or []), None
    LATEV = [x for x in SET if x.startswith("buffer_")]
    SET = [x for x in SET if not x.startswith("buffer_")]
    for _ in range(OPT.get("pset", 0)):
        if f"s{S_TAG}," in SET[0] + ",": break
        A(SET.pop(0))
    while SET and (SET[0].startswith("s_addc") or SET[0].startswith("s_cselect")): A(SET.pop(0))
    stamp(3)
    run(late)
    def trfrag(dst, ldsoff, kind="v"):
        s_, off = ldsoff >> 16, ldsoff & 0xffff
        return [f"ds_read_b64_tr_b16 {vr(dst+2*j,2,kind)}, v{V_AT+s_} offset:{off+j*512}" for j in range(2)]
    def rd(n):
        i, ks = n >> 2, n & 3
        slot, buf = i & 3, n & 1
        s2_, off = slot >> 1, (slot & 1) * SLOT
        x = [f"ds_read_b128 {ar(n*8+m*4,4)}, v{V_AX+4*s2_+ks} offset:{off+m*4096}" for m in range(2)]
        w = [trfrag(V_WF + buf * 8 + part * 4, slot * SLOT + part * 8192 + ks * 2048) for part in range(2)]
        return [x[0]] + w[0] + [x[1]] + w[1]
    def mm(n):
        buf = n & 1
        r = []
        for part, m in ((0, 0), (0, 1), (1, 0), (1, 1)):
            x, w = ar(n * 8 + m * 4, 4), vr(V_WF + buf * 8 + part * 4, 4)
            d = vr((KACC, VACC)[part] + 16 * m, 16)
            r.append(mf(d, w, x, d if n else "0") if part == 0 else mf(d, x, w, d if n else "0"))
        return r
    fill = []
    def on_step(n):
        i, ks = n >> 2, n & 3
        if ks == 0 and OPT.get("g1st") and i: stamp(16 + i)
        if ks == 0:
            for st in SCHED[0].get(i, []): fill.extend(g1_pieces(st))
            if i == 5: fill.extend(q_pieces(0) + LATEV + (q_pieces(1) if QE == 1 else []))
            if i == 6:
                fill.extend((q_pieces(2) + q_pieces(3)) if QE == 1 else o_pieces(0))
                if OPT.get("ptouch", 0):
                    fill.extend([f"buffer_load_dword v254, v{V_G1}, s[{SWS}:{SWS+3}], s{P_P1G+k} offen sc1" for k in range(4)])
                    fill.append(f"buffer_load_dword v254, v{V_GZ}, s[{SWS}:{SWS+3}], s{P_P1G} offen sc1")
                    fill.extend([f"buffer_load_dword v254, v{V_G2}, s[{SWS}:{SWS+3}], s{P_P2G} offen offset:{(hh*4+jp)*640} sc1" for hh in range(2) for jp in range(2)])
                    fill.append(lambda: rdy_load(254, 254))
            elif i == 7:
                fill.extend(o_pieces(0) if QE == 1 else o_pieces(1))
                fill.append(lambda: emit([f"v_xor_b32 v{WPH+r}, v4, v{WPH+r}" for r in range(4)]))
                fill.append(lambda: emit([f"v_xor_b32 v{WPH+r}, v4, v{WPH+r}" for r in range(4, 8)]))
        if n == 17:
            emit([f"ds_read_b64_tr_b16 {vr(WPH+4*hh+2*j,2)}, v{V_WPO} offset:{hh*512+j*256}" for hh in range(2) for j in range(2)])
    A.wait_vm(tok[0])
    A("s_barrier")
    stamp(4)
    gemm_loop(32, rd, mm, lambda n: tok[n >> 2] if (n & 3) == 0 else None, (3, 3, 0, 0), lambda n: g1_gaps(n, (7,) if QE == 1 else ()), fill, on_step, end_barrier=True, extra=SET, nextra=lambda n, g: NX)
    assert not SET
    assert not fill
    stamp(5)
    def feat(acc):
        for m in range(2):
            for u in range(8):
                A(f"v_cvt_pk_bf16_f32 v{acc+16*m+u}, v{acc+16*m+2*u}, v{acc+16*m+2*u+1}")
            for hh in range(2):
                A(mf(vr(PK + (m * 2 + hh) * 16, 16), vr(WPH + 4 * hh, 4), vr(acc + 16 * m + 4 * hh, 4), "0"))
    def softmax_l(x, dst):
        mx, sm = T0, T0 + 2
        l = [f"v_max3_f32 v{mx}, v{x}, v{x+1}, v{x+2}"]
        for u in range(3, 15, 2):
            l.append(f"v_max3_f32 v{mx}, v{mx}, v{x+u}, v{x+u+1}")
        l.append(f"v_max_f32 v{mx}, v{mx}, v{x+15}")
        l.append(f"v_mul_f32 v{mx}, s{S_L2E}, v{mx}")
        for u in range(8):
            l.append(f"v_pk_fma_f32 {vr(x+2*u,2)}, {vr(x+2*u,2)}, s[{S_L2E}:{S_L2E+1}], {vr(mx,2)} op_sel_hi:[1,1,0] neg_lo:[0,0,1] neg_hi:[0,0,1]")
        for u in range(16):
            l.append(f"v_exp_f32 v{x+u}, v{x+u}")
        l.append(f"v_pk_add_f32 {vr(sm,2)}, {vr(x,2)}, {vr(x+2,2)}")
        for u in range(2, 8):
            l.append(f"v_pk_add_f32 {vr(sm,2)}, {vr(sm,2)}, {vr(x+2*u,2)}")
        l.append(f"v_add_f32 v{sm}, v{sm}, v{sm+1}")
        l.append(f"v_rcp_f32 v{sm}, v{sm}")
        for u in range(8):
            l.append(f"v_pk_mul_f32 {vr(x+2*u,2)}, {vr(x+2*u,2)}, {vr(sm,2)} op_sel_hi:[1,0]")
        for u in range(8):
            l.append(f"v_cvt_pk_bf16_f32 v{dst+u}, v{x+2*u}, v{x+2*u+1}")
        return l
    feat(KACC)
    for m in range(2):
        for u in range(8):
            A(f"v_cvt_pk_bf16_f32 v{VACC+16*m+u}, v{VACC+16*m+2*u}, v{VACC+16*m+2*u+1}")
    for m in range(2):
        for u in range(8):
            A(f"v_cndmask_b32_e64 v{VACC+16*m+8+u}, v3, v{VACC+16*m+u}, s[{S_M16}:{S_M16+1}]")
            A(f"v_cndmask_b32_e64 v{VACC+16*m+u}, v{VACC+16*m+u}, v3, s[{S_M16}:{S_M16+1}]")
    nbstamp(0)
    PH = [KACC + 8, KACC + 24]
    ID = T0 + 8
    def tmm(blk):
        d = vr(PK + 16 * blk, 16)
        return [mf(d, vr(PH[blk & 1] + 4 * jp, 4), vr(ID + 4 * jp, 4), d if jp else "0") for jp in range(2)]
    def tcvt(blk):
        t = PK + 16 * blk
        return [f"v_cvt_pk_bf16_f32 v{t+u}, v{t+2*u}, v{t+2*u+1}" for u in range(8)]
    def kvmm(blk):
        m, hh = blk >> 1, blk & 1
        d = vr(KV + 16 * hh, 16)
        return [mf(d, vr(PK + 16 * blk + 4 * mm_, 4), vr(VACC + 16 * m + 8 * hh + 4 * mm_, 4), d if (m or mm_) else "0") for mm_ in range(2)]
    for blk in range(4):
        l = softmax_l(PK + blk * 16, PH[blk & 1])
        if blk:
            t, kv = tmm(blk - 1), kvmm(blk - 1)
            l = l[:17] + [t[0]] + l[17:21] + [t[1]] + l[21:33] + tcvt(blk - 1) + l[33:50] + [kv[0]] + l[50:58] + [kv[1]]
        emit(l)
        if blk < 3 and not QE: run(q_pieces(blk + 1))
        nbstamp(1 + blk)
    TS = 4 if OPT.get("tag1", 1) else 1
    def tagit(r, n):
        for e in range(0, n, TS):
            A(f"v_and_or_b32 v{r+e}, v{r+e}, s{P_MSK}, v{V_TAG}")
    def pub(hh, oc):
        A(f"s_add_u32 s{ST+3}, s{P_P1O}, {(hh*4+oc)*32*640}")
        A(f"buffer_store_dwordx4 {vr(KV+16*hh+4*oc,4)}, v{V_PB0+hh}, s[{SWS}:{SWS+3}], s{ST+3} offen sc1")
    if NS == 32:
        emit(tmm(3))
        tagit(KV, 16)
        pub(0, 0); pub(0, 1)
        emit(tcvt(3))
        emit(kvmm(3))
        nbstamp(5)
        pub(0, 2); pub(0, 3)
        tagit(KV + 16, 16)
        for oc in range(4): pub(1, oc)
    else:
        RB = PK
        def tail(rh):
            keep, send = 8 * rh, 8 - 8 * rh
            emit(tmm(3))
            for u in range(2): A(f"ds_write_b128 v{V_SW}, {vr(KV+send+4*u,4)} offset:{u*1024}")
            emit(tcvt(3))
            emit(kvmm(3))
            for u in range(2): A(f"ds_write_b128 v{V_SW}, {vr(KV+16+send+4*u,4)} offset:{(2+u)*1024}")
            A("s_waitcnt lgkmcnt(0)")
            A("s_barrier")
            for u in range(4): A(f"ds_read_b128 {vr(RB+4*u,4)}, v{V_SR} offset:{u*1024}")
            for hh in range(2):
                for jj in range(2):
                    r = KV + 16 * hh + keep + 4 * jj
                    A(f"s_add_u32 s{ST+3}, s{P_P1O}, {(hh*4+jj)*16*640}")
                    A(f"s_waitcnt lgkmcnt({3-2*hh-jj})")
                    for u in range(2):
                        A(f"v_pk_add_f32 {vr(r+2*u,2)}, {vr(r+2*u,2)}, {vr(RB+8*hh+4*jj+2*u,2)}")
                    tagit(r, 4)
                    A(f"buffer_store_dwordx4 {vr(r,4)}, v{V_PB0+hh}, s[{SWS}:{SWS+3}], s{ST+3} offen sc1")
        l1, l2 = lab("rh1"), lab("rhj")
        A(f"s_cmp_lg_u32 s{S_RH}, 0")
        A(f"s_cbranch_scc1 {l1}")
        st_ = (A.vm, A.lg, list(A.hist))
        tail(0)
        A(f"s_branch {l2}")
        A.label(l1)
        A.vm, A.lg, A.hist = st_[0], st_[1], list(st_[2])
        tail(1)
        A.label(l2)
    QACC = KACC
    def qaddr(n):
        i, ks = n >> 2, n & 3
        return QSLOT[i >> 2] * SLOT + (i & 3) * 8192 + ks * 2048
    def rdq(n):
        return trfrag(V_WF + (n & 1) * 8, qaddr(2 * n)) + trfrag(V_WF + (n & 1) * 8 + 4, qaddr(2 * n + 1))
    def mmq(n):
        r = []
        for h in range(2):
            for m in range(2):
                d = vr(QACC + 16 * m, 16)
                r.append(mf(d, vr(V_WF + (n & 1) * 8 + 4 * h, 4), ar((2 * n + h) * 8 + m * 4, 4), d if (n or h) else "0"))
        return r
    stamp(6)
    nbflush()
    GD = VACC
    GZ = GD + 16
    g1l = [f"buffer_load_dwordx4 {vr(GD+4*k,4)}, v{V_G1}, s[{SWS}:{SWS+3}], s{P_P1G+k} offen sc1" for k in range(NS // 8)]
    g1l.append(f"buffer_load_dwordx4 {vr(GZ,4)}, v{V_GZ}, s[{SWS}:{SWS+3}], s{P_P1G} offen offset:512 sc1")
    S_D1, S_RET = P0 + 11, ST + 6
    A(f"s_mov_b32 s{S_D1}, 0")
    def try1a(block=False):
        skip = lab("sk")
        if block:
            A(f"s_cmp_lg_u32 s{S_D1}, 0")
        else:
            A(f"s_getreg_b32 s{ST+5}, hwreg(HW_REG_IB_STS, 0, 4)")
            A(f"s_or_b32 s{ST+5}, s{ST+5}, s{S_D1}")
        A(f"s_cbranch_scc1 {skip}")
        A(f"s_call_b64 s[{S_RET}:{S_RET+1}], L_try1a")
        A.label(skip)
    def sub_try1a():
        A.label("L_try1a")
        A.hist = []
        A("s_waitcnt vmcnt(0)")
        A(f"v_xor_b32 v13, v{GD}, v{V_TAG}")
        for s in [x for x in range(TS, 20, TS) if x < NS // 2 or x >= 16]:
            A(f"v_bitop3_b32 v13, v{GD+s}, v{V_TAG}, v13 bitop3:0xbe")
        A("v_and_b32 v13, 0xff, v13")
        A(f"v_cmp_ne_u32 s[{S_FAIL}:{S_FAIL+1}], 0, v13")
        A(f"s_cmp_eq_u64 s[{S_FAIL}:{S_FAIL+1}], 0")
        A("s_cbranch_scc1 L_try1a_ok")
        emit(g1l)
        A(f"s_setpc_b64 s[{S_RET}:{S_RET+1}]")
        A.label("L_try1a_ok")
        DPP = "row_mask:0xf bank_mask:0xf"
        A(f"v_permlane16_swap_b32 v{GZ}, v{GZ+2}")
        A(f"v_permlane16_swap_b32 v{GZ+1}, v{GZ+3}")
        if NS == 32:
            for u in range(0, 8, 2):
                A(f"v_pk_add_f32 {vr(GD+u,2)}, {vr(GD+u,2)}, {vr(GD+8+u,2)}")
            A(f"v_pk_add_f32 {vr(GZ,2)}, {vr(GZ,2)}, {vr(GZ+2,2)}")
        for u in range(0, 4, 2):
            A(f"v_pk_add_f32 {vr(GD+u,2)}, {vr(GD+u,2)}, {vr(GD+4+u,2)}")
        def zror(k):
            for e in range(2): A(f"v_add_f32_dpp v{GZ+e}, v{GZ+e}, v{GZ+e} row_ror:{k} {DPP}")
        zror(1)
        A(f"v_permlane32_swap_b32 v{GD}, v{GD+1}")
        A(f"v_permlane32_swap_b32 v{GD+2}, v{GD+3}")
        zror(2)
        A(f"v_add_f32 v{GD}, v{GD}, v{GD+1}")
        A(f"v_add_f32 v{GD+2}, v{GD+2}, v{GD+3}")
        zror(4)
        A(f"v_permlane16_swap_b32 v{GD}, v{GD+2}")
        A(f"v_add_f32 v{GD}, v{GD}, v{GD+2}")
        zror(8)
        A(f"v_add_f32_dpp v{GD}, v{GD}, v{GD} row_ror:8 {DPP}")
        for e in range(2): A(f"v_and_or_b32 v{GZ+e}, v{GZ+e}, s{P_MSK}, v{V_TAG}")
        A(f"v_and_or_b32 v{GD}, v{GD}, s{P_MSK}, v{V_TAG}")
        for e in range(2): A(f"v_mov_b32 v{GZ+2+e}, v{GZ+e}")
        A(f"v_mov_b32 v{GD+1}, v{GD}")
        A(f"v_permlane16_swap_b32 v{GZ}, v{GZ+2}")
        A(f"v_permlane16_swap_b32 v{GZ+1}, v{GZ+3}")
        A(f"v_permlane32_swap_b32 v{GD}, v{GD+1}")
        A(f"buffer_store_dwordx4 {vr(GZ,4)}, v{V_P2Z}, s[{SWS}:{SWS+3}], s{P_P2O} offen sc1")
        A(f"v_mov_b32 v{GD+2}, v{GD}")
        A(f"v_mov_b32 v{GD+3}, v{GD+1}")
        A(f"v_permlane16_swap_b32 v{GD}, v{GD+2}")
        A(f"v_permlane16_swap_b32 v{GD+1}, v{GD+3}")
        A(f"buffer_store_dwordx4 {vr(GD,4)}, v{V_P2}, s[{SWS}:{SWS+3}], s{P_P2O} offen sc1")
        stamp(8)
        A(f"s_mov_b32 s{S_D1}, 1")
        A(f"s_setpc_b64 s[{S_RET}:{S_RET+1}]")
    DEFER.append(sub_try1a)
    fill = []
    G1AT = OPT.get('g1at', 6)
    def on_stepq(n):
        if n == 0: fill.extend((o_pieces(1) if QE == 1 else (q_pieces(2) + q_pieces(3) if QE == 2 else [])) + o_pieces(2) + o_pieces(3) + [lambda: tok.__setitem__('wo', A.vm)])
        if n == G1AT: fill.extend(g1l + [None])
        if n >= G1AT + 4: fill.extend([None, try1a])
    if QE == 2:
        run(q_pieces(1))
        A.wait_vm(tok[("q", 0)])
        qb = lambda n: tok[("q", n >> 2)] if n in (4, 8, 12) else None
    else:
        A.wait_vm(tok[("q", 3)])
        qb = lambda n: None
    A("s_barrier")
    stamp(26)
    gemm_loop(16, rdq, mmq, qb, (2, 2, 0, 0), lambda n: (0, 1, 2, 3) if (QE == 2 and n < 2) else (2, 3), fill, on_stepq)
    assert not fill
    A.wait_vm(tok["wo"])
    A("s_barrier")
    stamp(7)
    feat(QACC)
    def wait1a():
        top, done = lab("w1a"), lab("w1d")
        A(f"s_mov_b32 s{S_CNT}, {SPIN_LIMIT}")
        A.label(top)
        try1a(block=True)
        A(f"s_cmp_lg_u32 s{S_D1}, 0")
        A(f"s_cbranch_scc1 {done}")
        A(f"s_sub_u32 s{S_CNT}, s{S_CNT}, 1")
        A(f"s_cbranch_scc0 {top}")
        A.label(done)
    B1 = OPT.get("blk1a", 0)
    if B1 == 0: wait1a()
    S_D2 = ST + 4
    A(f"s_mov_b32 s{S_D2}, 0")
    PHQ = KV
    FD = PK
    def loads2():
        for hh in range(2):
            for jp in range(2):
                r = FD + (hh * 2 + jp) * 8
                off = (hh * 4 + jp) * 640
                A(f"buffer_load_dwordx4 {vr(r,4)}, v{V_G2}, s[{SWS}:{SWS+3}], s{P_P2G} offen offset:{off} sc1")
                A(f"buffer_load_dwordx4 {vr(r+4,4)}, v{V_G2B}, s[{SWS}:{SWS+3}], s{P_P2G} offen offset:{off} sc1")
        rdy_load(14)
    def check2():
        A(f"v_xor_b32 v13, v{FD}, v{V_TAG}")
        for s in range(1, 32):
            A(f"v_bitop3_b32 v13, v{FD+s}, v{V_TAG}, v13 bitop3:0xbe")
        rdy_check(9, 14)
        A("v_and_b32 v13, 0xff, v13")
        A("v_or_b32 v13, v13, v9")
        A(f"v_cmp_ne_u32 s[{S_FAIL}:{S_FAIL+1}], 0, v13")
    for blk in range(4):
        if blk == OPT.get("l2at", 3): loads2()
        emit(softmax_l(PK + blk * 16, PHQ + 8 * blk))
        if blk + 1 == B1: wait1a()
    stamp(9)
    KVF = VACC + 16
    ODR = [KACC, KACC + 16, PK + 32, PK + 48]
    A(f"s_lshl_b32 s{ST+5}, s{S_RH}, 12")
    A(f"v_add_u32 v{V_AX}, s{ST+5}, v{V_LIN}")
    A(f"v_add_u32 v{V_AX+1}, 0x10000, v{V_AX}")
    A(f"v_add_u32 v{V_AX+2}, 0x20000, v{V_AX}")
    slin(ST + 5, 3 * SLOT, (S_MF, 8192), (S_M0W2, 1))
    A(f"v_add_u32 v{V_AX+3}, s{ST+5}, v{V_LIN}")
    A(f"v_xor_b32 v{V_AX+4}, 0x2000, v{V_AX+3}")
    wor = []
    for n in range(32):
        wor += trfrag(n * 4, OLDS[n >> 2] + (n & 3) * 2048, "a")
    emit(wor[:8])
    def check2m():
        chk = [f"v_xor_b32 v13, v{FD}, v{V_TAG}"] + [f"v_bitop3_b32 v13, v{FD+s}, v{V_TAG}, v13 bitop3:0xbe" for s in range(TS, 32, TS)]
        for hh in range(2):
            for q in (2 * hh, 2 * hh + 1):
                for u in range(4):
                    A(f"v_cvt_pk_bf16_f32 v{KVF+4*q+u}, v{FD+8*q+2*u}, v{FD+8*q+2*u+1}")
            for m in range(2):
                blk = 2 * m + hh
                d = vr(ODR[blk], 16)
                for jp in range(2):
                    A(mf(d, vr(KVF + (hh * 2 + jp) * 4, 4), vr(PHQ + 8 * blk + 4 * jp, 4), d if jp else "0"))
                    k = 3 if hh == 0 else 5
                    emit(chk[:k]); chk = chk[k:]
        assert not chk
        rdy_check(9, 14)
        A("v_and_b32 v13, 0xff, v13")
        A("v_or_b32 v13, v13, v9")
        A(f"v_cmp_ne_u32 s[{S_FAIL}:{S_FAIL+1}], 0, v13")
    poll_pre(loads2, check2m)
    stamp(10)
    xcc_decide(14)
    ost = []
    for blk in (0, 2, 1, 3):
        m, hh = blk >> 1, blk & 1
        o = ODR[blk]
        A(f"v_add_f32 v{o+8}, 0x358637bd, v{o+8}")
        A(f"v_rcp_f32 v{o+8}, v{o+8}")
        for u in range(4):
            A(f"v_pk_mul_f32 {vr(o+2*u,2)}, {vr(o+2*u,2)}, {vr(o+8,2)} op_sel_hi:[1,0]")
        for u in range(4):
            A(f"v_cvt_pk_bf16_f32 v{o+12+u}, v{o+2*u}, v{o+2*u+1}")
        A(f"buffer_store_dwordx4 {vr(o+12,4)}, v{V_LIN}, s[{SWS}:{SWS+3}], s{P_ACTW+m} offen offset:{hh*1024} sc1")
        A(f"ds_write_b128 v{V_AX+3+m}, {vr(o+12,4)} offset:{hh*1024}")
    tok_o = A.vm
    stamp(11)
    ELDS = [(3, 4, 0, 1)[e >> 2] * SLOT + (e & 3) * 8192 for e in range(16)]
    def of_pieces(e):
        pos, ph = SEQ[e]
        def p0():
            A(f"s_add_u32 m0, s{S_M0W2}, {ELDS[e]:#x}")
            A(f"s_lshl_b32 s{ST+8}, s{KAP[pos]}, 14")
            A(f"s_add_u32 s{ST+8}, s{ST+8}, s{P_ACTR+ph}")
            A(f"buffer_load_dwordx4 v{V_LIN}, s[{SWS}:{SWS+3}], s{ST+8} offen {PLF}lds")
        def p1():
            A(f"buffer_load_dwordx4 v{V_LIN}, s[{SWS}:{SWS+3}], s{ST+8} offen offset:1024 {PLF}lds")
            tok[("of", e)] = A.vm
        return [p0, p1]
    OF = PK
    OACC = VACC
    def rd4(n):
        return [f"ds_read_b128 {vr(OF+(n&1)*16+h*4,4)}, v{V_AX+(ELDS[n]>>16)} offset:{(ELDS[n]&0xffff)+h*1024}" for h in range(4)]
    def mm4(n):
        pos, ph = SEQ[n]
        d = vr(OACC + 16 * ph, 16)
        return [mf(d, vr(OF + (n & 1) * 16 + h * 4, 4), ar((4 * pos + h) * 4, 4), d if (pos or h) else "0") for h in range(4)]
    A("s_waitcnt lgkmcnt(0)")
    A("s_barrier")
    wf = wor[8:]
    def two():
        for _ in range(2): A(wf.pop(0))
    gemm_loop(2, rd4, mm4, lambda n: None, (2, 2, 0, 0), (2, 3), [two] * 4)
    emit(wf[:16]); wf = wf[16:]
    A.wait_vm(tok_o)
    flag_store()
    emit(wf)
    flag_poll()
    stamp(12)
    for e in range(2, 7): run(of_pieces(e))
    fill = []
    def on_step4(n):
        if OPT.get("g2st") and n in (4, 7, 10, 13): stamp(16 + n // 3)
        if n == 2:
            for e in range(7, 16): fill.extend(of_pieces(e))
        if n == 10: fill.extend(out_stores(OACC, 0))
    A.wait_both(tok[("of", 3)], A.lg)
    A("s_barrier")
    stamp(13)
    BND = {4: 6, 7: 9, 10: 12, 13: 15}
    gemm_loop(16, rd4, mm4, lambda n: tok[("of", BND[n])] if n in BND else None, (2, 2, 0, 0),
              lambda n: (1, 2, 3) if n >= 10 else (0, 1, 2, 3), fill, on_step4, start=2)
    assert not fill
    stamp(14)
    run(out_stores(OACC, 1))
    tag_update("B")
    stamp(15)
    finish()

prologue()
vm0, lg0 = A.vm, A.lg
role_A()
for f in DEFER: f()
DEFER.clear()
A.label("L_roleB")
ROLE[0] = "B"
A.vm, A.lg = vm0, lg0
A.hist = []
role_B()
for f in DEFER: f()
A.label("L_end")
A("s_endpgm")

iB = A.out.index("L_roleB:")
iE = A.out.index("L_end:")
if OPT.get("bfirst", 1):
    lines = A.out[:CUT["P"]] + A.out[iB:CUT["B"]] + A.out[CUT["P"]:CUT["A"]] + A.out[CUT["B"]:iE] + A.out[CUT["A"]:iB] + A.out[iE:]
else:
    lines = A.out[:CUT["A"]] + A.out[iB:CUT["B"]] + A.out[CUT["A"]:iB] + A.out[CUT["B"]:]
if OPT["align"]:
    lines, nw, nn = align(lines, min_nop=OPT.get('minnop', 12))
    print("align: widened", nw, "nops", nn)
HEAD = open("cdna_kernels/" + NAME + ".s.ref").read().split("; Override launch geometry")[0]
src = HEAD + f"""; @launch grid=(256,1,1) block=(256,1,1) lds=163840
.amdgcn_target "amdgcn-amd-amdhsa--gfx950"
.text
.globl {NAME}_kernel
.p2align 8
.type {NAME}_kernel,@function
{NAME}_kernel:
""" + "\n".join(lines) + f"""
.fill 8192, 4, 0xBF810000
.section .rodata,"a"
.p2align 6
.amdhsa_kernel {NAME}_kernel
  .amdhsa_next_free_vgpr 512
  .amdhsa_next_free_sgpr 102
  .amdhsa_accum_offset 256
  .amdhsa_group_segment_fixed_size 0
  .amdhsa_kernarg_size 128
  .amdhsa_user_sgpr_count 2
  .amdhsa_user_sgpr_kernarg_segment_ptr 1
  .amdhsa_system_sgpr_workgroup_id_x 1
.end_amdhsa_kernel
"""
open(sys.argv[1], "w").write(src)
print("hazard nops:", A.nnop, "lines:", len(lines))
```

```python
import sys
from dsl import Asm, vr, ar, sr
from align import align

NAME = "concat_heads__ssm_conv_s5__linear_kernel_hedgehog__prompt"
OPT = dict(stamps=False, rotmode=2, align=1, xnt=0, hwait=8, owait=4, hand=0)
for a_ in sys.argv[2:]:
    k_, _, v_ = a_.partition("=")
    OPT[k_] = int(v_) if v_ else True

WS_TAGA, WS_TAGB = 0x0, 0x80
WS_XCC = 0x1000
WS_FLAG = 0x2000
WS_SA = 0x10000
WS_P1 = 0x100000
WS_P2 = 0x3C0000
WS_H = 0x400000
WS_O = 0x800000
WS_STAMP = 0xA00000
OOB = 0x40000000
SPIN_LIMIT = 1 << 14
LOG2E = 0x3FB8AA3B
INV2PI = 0x3E22F983

S_WAVE, S_CHUNK, S_CG, S_ROT, S_TAG = 3, 4, 5, 6, 7
SX, SW, SW2, SWS, SOUT = 8, 12, 16, 20, 24
S_RH, S_CH, S_SLOT, S_GRP = 28, 29, 30, 31
ST = 32
S_M0W, S_M0W2 = 48, 49
S_MG = 50
S_MRH = 52
S_L2E = 54
S_CNT = 56
S_FAIL = 58
S_M16 = 60
S_SM0, S_RS = 62, 63
S_XW, S_SLOW, P_FLW = 91, 92, 93
S_ROT1 = 47
KAP = [62, 63, 44, 45, 86, 87, 94, 95]
SEQ = [(0, 0), (0, 1)] + [(j, 0) for j in range(1, 8)] + [(j, 1) for j in range(1, 8)]
HAND = OPT['hand']
KA = 64
K_AX, K_LRE, K_LIM, K_BRE, K_BIM, K_CRE, K_CIM, K_LDT, K_DSK, K_BX, K_WQKV, K_WPHI, K_WO, K_OUT, K_DBG, K_WS = [KA + 2 * i for i in range(16)]
P_FLAGB, P_FLAGO, P_XCCB, P_TAGSEL, P_OUT, P_OUT2, P_ACTR, P_ACTR2 = range(64, 72)
P_ACTW, P_ACTW2, S_MF = 88, 89, 90
P0 = 72
S_STAMP = 96
V_LANE, V_OUTO, V_N, V_G, V_LIN, V_TAG, V_L0, V_CHK, V_XPO = 1, 2, 5, 6, 7, 8, 10, 12, 15
V_OX, V_OW = 16, 20
SLOT = 32768

A = Asm()
CUT = {}
nlab = [0]

def srd(dst, ptr, nbytes):
    A(f"s_mov_b32 s{dst}, s{ptr}")
    A(f"s_mov_b32 s{dst+1}, s{ptr+1}")
    A(f"s_mov_b32 s{dst+2}, {nbytes:#x}")
    A(f"s_mov_b32 s{dst+3}, 0x20000")

def slin(dst, const, *terms):
    first = True
    for reg, mul in terms:
        t = dst if first else ST + 14
        if mul == 1:
            if first: A(f"s_mov_b32 s{dst}, s{reg}")
            else: t = reg
        elif mul & (mul - 1) == 0: A(f"s_lshl_b32 s{t}, s{reg}, {mul.bit_length()-1}")
        else: A(f"s_mul_i32 s{t}, s{reg}, {mul}")
        if not first: A(f"s_add_u32 s{dst}, s{dst}, s{t}")
        first = False
    if const: A(f"s_add_u32 s{dst}, s{dst}, {const:#x}")

ROLE = ["A"]
def stamp(idx):
    if OPT.get("probe") == idx + (0 if ROLE[0] == "A" else 100):
        if OPT.get("cyc"):
            A("s_memtime s[96:97]")
            A("s_waitcnt lgkmcnt(0)")
            A("s_sub_u32 s99, s96, s98")
            A("s_lshr_b32 s99, s99, 4")
        else:
            A("s_memrealtime s[96:97]")
            A("s_waitcnt lgkmcnt(0)")
            A("s_sub_u32 s99, s96, s100")
    if not OPT["stamps"]: return
    A(f"s_memtime s[{S_STAMP}:{S_STAMP+1}]")
    A("s_waitcnt lgkmcnt(0)")
    A(f"s_sub_u32 s{S_STAMP}, s{S_STAMP}, s98")
    A(f"v_writelane_b32 v255, s{S_STAMP}, {idx}")
    if OPT.get("rt") and idx <= 16:
        A(f"s_memrealtime s[{S_STAMP}:{S_STAMP+1}]")
        A("s_waitcnt lgkmcnt(0)")
        A(f"s_sub_u32 s{S_STAMP}, s{S_STAMP}, s100")
        A(f"v_writelane_b32 v255, s{S_STAMP}, {idx+44}")

NB = [32, 36, 38, 42, 58, 56]
nbuse = []
def nbstamp(k):
    if OPT.get("nb") and OPT["stamps"]:
        A(f"s_memtime s[{NB[k]}:{NB[k]+1}]"); nbuse.append(k)
def nbflush():
    if OPT.get("nb") and OPT["stamps"]:
        A("s_waitcnt lgkmcnt(0)")
        for k in nbuse:
            A(f"s_sub_u32 s{NB[k]}, s{NB[k]}, s98")
            A(f"v_writelane_b32 v255, s{NB[k]}, {17+k}")
        nbuse.clear()

def lab(n):
    nlab[0] += 1
    return f"L_{n}_{nlab[0]}"

def finish():
    if OPT.get("probe") and (OPT["probe"] >= 100) == (ROLE[0] == "B"):
        if OPT["probe"] % 100 == 16:
            A("s_waitcnt vmcnt(0)")
            stamp(16)
        l = lab("pr")
        A("s_lshl_b32 s99, s99, 1")
        A("s_add_u32 s99, s99, 2500")
        A.label(l)
        A("s_memrealtime s[96:97]")
        A("s_waitcnt lgkmcnt(0)")
        A("s_sub_u32 s96, s96, s100")
        A("s_cmp_lt_u32 s96, s99")
        A(f"s_cbranch_scc1 {l}")
    if OPT.get("fixrt"):
        l = lab("rt")
        A.label(l)
        A("s_memrealtime s[96:97]")
        A("s_waitcnt lgkmcnt(0)")
        A("s_sub_u32 s96, s96, s100")
        A(f"s_cmp_lt_u32 s96, {OPT['fixrt']}")
        A(f"s_cbranch_scc1 {l}")
    if OPT["stamps"]:
        A("s_waitcnt vmcnt(0)")
        stamp(16)
        A("v_writelane_b32 v255, s99, 30")
        A("s_memrealtime s[96:97]")
        A("v_writelane_b32 v255, s100, 40")
        A("s_waitcnt lgkmcnt(0)")
        A("v_writelane_b32 v255, s96, 41")
        slin(ST, WS_STAMP, (2, 1024), (S_WAVE, 256))
        A(f"v_lshlrev_b32 v254, 2, v{V_LANE}")
        A(f"buffer_store_dword v255, v254, s[{SWS}:{SWS+3}], s{ST} offen")
    A("s_endpgm")

def mf(d, a, b, c):
    return f"v_mfma_f32_32x32x16_bf16 {d}, {a}, {b}, {c}"

def poll(loads, check):
    top, done = lab("poll"), lab("ok")
    A(f"s_mov_b32 s{S_CNT}, {SPIN_LIMIT}")
    A.label(top)
    loads()
    A("s_waitcnt vmcnt(0)")
    check()
    A(f"s_cmp_eq_u64 s[{S_FAIL}:{S_FAIL+1}], 0")
    A(f"s_cbranch_scc1 {done}")
    A(f"s_sub_u32 s{S_CNT}, s{S_CNT}, 1")
    A(f"s_cbranch_scc0 {top}")
    A.label(done)

def poll_pre(loads, check):
    top, done = lab("poll"), lab("ok")
    A(f"s_mov_b32 s{S_CNT}, {SPIN_LIMIT}")
    A.label(top)
    A("s_waitcnt vmcnt(0)")
    check()
    A(f"s_cmp_eq_u64 s[{S_FAIL}:{S_FAIL+1}], 0")
    A(f"s_cbranch_scc1 {done}")
    loads()
    A(f"s_sub_u32 s{S_CNT}, s{S_CNT}, 1")
    A(f"s_cbranch_scc0 {top}")
    A("s_waitcnt vmcnt(0)")
    A.label(done)

def cfma_l(d, a, b, c, t):
    return [f"v_pk_fma_f32 {vr(t,2)}, {vr(a,2)}, {vr(b,2)}, {vr(c,2)} op_sel:[1,1,0] op_sel_hi:[1,0,1] neg_lo:[1,0,0]",
            f"v_pk_fma_f32 {vr(d,2)}, {vr(a,2)}, {vr(b,2)}, {vr(t,2)} op_sel:[0,0,0] op_sel_hi:[0,1,1]"]
def cmul_l(d, a, b, t):
    return [f"v_pk_mul_f32 {vr(t,2)}, {vr(a,2)}, {vr(b,2)} op_sel:[1,1] op_sel_hi:[1,0] neg_lo:[1,0]",
            f"v_pk_fma_f32 {vr(d,2)}, {vr(a,2)}, {vr(b,2)}, {vr(t,2)} op_sel:[0,0,0] op_sel_hi:[0,1,1]"]
def emit(l):
    for x in l: A(x)
def cfma(*a): emit(cfma_l(*a))
def cmul(*a): emit(cmul_l(*a))

def weave(main, fillers, every, start=0):
    for i, x in enumerate(main):
        A(x)
        if i >= start and (i - start) % every == every - 1 and fillers:
            f = fillers.pop(0)
            if isinstance(f, str): A(f)
            elif f: f()

def gemm_loop(nsteps, reads, mfmas, boundary, split, fill_gaps, fillers, on_step=None, end_barrier=False, verify=None, start=0, extra=None, nextra=None):
    for r in reads(start): A(r)
    for n in range(start, nsteps):
        if on_step: on_step(n)
        last = n == nsteps - 1
        b = None if last else boundary(n + 1)
        b2 = boundary(n + 2) if (verify and n + 2 < nsteps) else None
        if b2 is not None: A.wait_both(b2, A.lg)
        elif b is not None and not verify: A.wait_both(b, A.lg)
        else: A("s_waitcnt lgkmcnt(0)")
        if b is not None and verify: verify(n + 1)[1]()
        rs = [] if last else list(reads(n + 1))
        ms = mfmas(n)
        for g in range(4):
            A(ms[g])
            if g == 0 and b2 is not None: verify(n + 2)[0]()
            if g == 0 and b is not None and verify: verify(n + 1)[2]()
            if g == 0 and (b is not None or (last and end_barrier)): A("s_barrier")
            for _ in range(split[g]):
                if rs: A(rs.pop(0))
            if g in (fill_gaps(n) if callable(fill_gaps) else fill_gaps) and fillers:
                f = fillers.pop(0)
                if isinstance(f, str): A(f)
                elif f: f()
            if extra:
                k = nextra(n, g)
                while extra and k > 0:
                    x = extra.pop(0); A(x); k -= 1
                    if x.startswith("s_cmp") and k == 0: k = 1
        assert not rs

def dma_pieces(voff, srdreg, soff, ldsoff, pre=None, post=None, flags="", m0reg=S_M0W, same_v=False):
    def mk(p):
        def f():
            if p == 0:
                A(f"s_add_u32 m0, s{m0reg}, {ldsoff:#x}")
                if pre: pre()
            A(f"buffer_load_dwordx4 v{voff if same_v else voff+p}, s[{srdreg}:{srdreg+3}], s{soff} offen offset:{p*1024} {flags}lds")
            if p == 3 and post: post()
        return f
    return [mk(p) for p in range(4)]

def run(fs):
    for f in fs:
        if isinstance(f, str): A(f)
        else: f()

def rot_soff(dst, add, shift=None, mul=None, extra_sreg=None, plus=None, rot=S_ROT):
    A(f"s_add_u32 s{dst}, s{rot}, {add}")
    if extra_sreg is not None: A(f"s_add_u32 s{dst}, s{dst}, s{extra_sreg}")
    A(f"s_and_b32 s{dst}, s{dst}, 7")
    if shift is not None: A(f"s_lshl_b32 s{dst}, s{dst}, {shift}")
    else: A(f"s_mul_i32 s{dst}, s{dst}, {mul}")
    if plus is not None: A(f"s_add_u32 s{dst}, s{dst}, s{plus}")

def prologue():
    if OPT["stamps"] or OPT.get("cyc"): A("s_memtime s[98:99]")
    if OPT.get("fixrt") or OPT.get("probe") or OPT["stamps"]: A("s_memrealtime s[100:101]")
    A("s_cmp_ge_u32 s2, 256")
    A("s_cbranch_scc1 L_end")
    A(f"s_load_dwordx16 s[{KA}:{KA+15}], s[0:1], 0")
    A(f"s_load_dwordx16 s[{KA+16}:{KA+31}], s[0:1], 64")
    A("v_and_b32 v1, 63, v0")
    A("v_lshrrev_b32 v2, 6, v0")
    A(f"s_lshr_b32 s{S_SLOT}, s2, 3")
    A(f"v_readfirstlane_b32 s{S_WAVE}, v2")
    A(f"s_and_b32 s{ST}, s2, 3")
    A(f"s_lshl_b32 s{S_CHUNK}, s{ST}, 2")
    A(f"s_lshr_b32 s{ST+1}, s{S_SLOT}, 3")
    A(f"s_add_u32 s{S_CHUNK}, s{S_CHUNK}, s{ST+1}")
    A(f"s_and_b32 s{S_CG}, s{S_SLOT}, 7")
    A(f"s_lshl_b32 s{S_ROT}, s{ST+1}, 1")
    A(f"s_add_u32 s{S_ROT}, s{S_ROT}, s{S_CG}")
    A(f"s_and_b32 s{S_ROT}, s{S_ROT}, 7")
    rm = OPT["rotmode"]
    if rm == 8: A(f"s_mov_b32 s{S_ROT1}, s{S_ROT}")
    elif rm == 1: A(f"s_mov_b32 s{S_ROT1}, 0")
    elif rm == 3:
        A(f"s_add_u32 s{S_ROT1}, s{S_CG}, s{ST+1}")
        A(f"s_and_b32 s{S_ROT1}, s{S_ROT1}, 3")
        A(f"s_mul_i32 s{S_ROT1}, s{S_ROT1}, 3")
    else:
        A(f"s_add_u32 s{S_ROT1}, s{S_CG}, s{ST+1}")
        A(f"s_and_b32 s{S_ROT1}, s{S_ROT1}, {rm-1}")
        A(f"s_lshl_b32 s{S_ROT1}, s{S_ROT1}, {2 if rm == 2 else 1}")
    A(f"s_lshr_b32 s{S_RH}, s{S_WAVE}, 1")
    A(f"s_and_b32 s{S_CH}, s{S_WAVE}, 1")
    A(f"s_lshl_b32 s{S_M0W}, s{S_WAVE}, 12")
    slin(ST + 2, 0, (S_SLOT, 512), (S_WAVE, 128))
    A("v_and_b32 v7, 1, v0")
    A(f"v_lshl_add_u32 v7, v7, 14, s{ST+2}")
    A("v_lshrrev_b32 v3, 3, v1")
    A("v_and_b32 v4, 7, v1")
    A(f"v_and_b32 v{V_N}, 31, v1")
    A(f"v_lshrrev_b32 v{V_G}, 5, v1")
    if OPT["stamps"]: A("v_mov_b32 v255, 0")
    A("s_bitcmp0_b32 s2, 2" if OPT.get("swap", 1) else "s_bitcmp1_b32 s2, 2")
    if OPT.get("bfirst", 1):
        A("s_cbranch_scc0 L_roleA")
        CUT["P"] = len(A.out)
        A.label("L_roleA")
    else:
        A("s_cbranch_scc1 L_roleB")

WSO = OPT.get("wso", 0) << 20
def ws_shift():
    if WSO:
        A(f"s_add_u32 s{K_WS}, s{K_WS}, {WSO:#x}")
        A(f"s_addc_u32 s{K_WS+1}, s{K_WS+1}, 0")

def cut(role):
    A(f"s_branch L_main{role}")
    CUT[role] = len(A.out)
    A.label(f"L_main{role}")

def code_prefetch():
    A(f"s_getpc_b64 s[{ST+4}:{ST+5}]")
    A.label(f"L_pc{ROLE[0]}")
    A(f"s_add_u32 s{ST+4}, s{ST+4}, L_main{ROLE[0]}-L_pc{ROLE[0]}")
    A(f"s_addc_u32 s{ST+5}, s{ST+5}, 0")
    A(f"global_load_dword v254, v7, s[{ST+4}:{ST+5}]")

def common_setup(role):
    srd(SWS, K_WS, 0x10000000 - WSO)
    srd(SOUT, K_OUT, 0x800000)
    A(f"s_lshl_b32 s{S_M0W2}, s{S_WAVE}, 13")
    A(f"s_mov_b32 s{S_MG}, 0")
    A(f"s_mov_b32 s{S_MG+1}, -1")
    A(f"s_sub_u32 s{S_MRH}, 0, s{S_RH}")
    A(f"s_mov_b32 s{S_MRH+1}, s{S_MRH}")
    A(f"s_mov_b32 s{S_L2E}, {LOG2E:#x}")
    A(f"s_mov_b32 s{S_L2E+1}, {LOG2E:#x}")
    A(f"s_mov_b32 s{S_M16}, 0xffff0000")
    A(f"s_mov_b32 s{S_M16+1}, 0xffff0000")
    A(f"s_add_u32 s{S_GRP}, s{S_CHUNK}, {0 if role == 'A' else 16}")
    slin(P_XCCB, WS_XCC, (S_GRP, 128))
    if role == "A": A(f"s_mov_b32 s{S_MF}, 0")
    else: A(f"s_and_b32 s{S_MF}, s{S_CG}, 1")
    slin(P_OUT, 0 if role == "A" else 2048, (S_CHUNK, 1 << 19), (S_RH, 1 << 18), (S_CG, 256), (S_CH, 128), (S_MF, 1 << 17))
    A(f"s_xor_b32 s{P_OUT2}, s{P_OUT}, {1 << 17:#x}")
    slin(P_TAGSEL, 0, (S_CHUNK, 256), (S_CG, 16), (S_WAVE, 1))
    A(f"s_and_b32 s{ST}, s{S_CHUNK}, 3")
    A(f"s_lshl_b32 s{ST}, s{ST}, 1")
    A(f"s_mov_b32 s{KAP[0]}, s{S_CG}")
    for j in range(1, 8):
        A(f"s_add_u32 s{ST+1}, s{ST}, {j-1}")
        A(f"s_cmp_ge_u32 s{ST+1}, 7")
        A(f"s_addc_u32 s{ST+1}, s{ST+1}, 1")
        A(f"s_add_u32 s{ST+1}, s{ST+1}, s{S_CG}")
        A(f"s_and_b32 s{KAP[j]}, s{ST+1}, 7")
    if OPT.get("tlb", 0):
        A(f"v_and_b32 v9, 15, v{V_LANE}")
        A("v_lshlrev_b32 v9, 20, v9")
        A(f"buffer_load_dword v254, v9, s[{SWS}:{SWS+3}], 0 offen offset:2048")
        A(f"buffer_load_dword v254, v9, s[{SOUT}:{SOUT+3}], 0 offen")
        A(f"buffer_load_dword v254, v9, s[{SW2}:{SW2+3}], 0 offen")
    A(f"v_lshlrev_b32 v{V_LIN}, 4, v{V_LANE}")
    A(f"v_mov_b32 v{V_L0}, {OOB:#x}")
    A(f"v_cmp_eq_u32 vcc, 0, v{V_LANE}")
    if not HAND:
        A(f"v_lshlrev_b32 v{V_CHK}, 2, v{V_N}")
        slin(P_FLAGB, WS_FLAG, (S_GRP, 256))
        slin(P_FLW, 0, (S_CG, 16), (S_WAVE, 4), (P_FLAGB, 1))
        A(f"s_getreg_b32 s{S_XW}, hwreg(HW_REG_XCC_ID, 0, 4)")
    A(f"v_lshlrev_b32 v{V_XPO}, 2, v4")
    A(f"v_cndmask_b32_e64 v{V_L0}, v{V_L0}, 0, vcc")
    A(f"v_lshlrev_b32 v{V_OUTO}, 14, v{V_G}")
    A(f"v_lshl_add_u32 v{V_OUTO}, v{V_N}, 2, v{V_OUTO}")
    slin(P_FLAGO, 0, (S_CG, 4), (P_XCCB, 1))
    A("s_waitcnt lgkmcnt(0)")
    A(f"s_add_u32 s{S_TAG}, s{S_TAG}, 1")
    if OPT["stamps"]: A("s_mov_b32 s99, 0")
    if not HAND:
        A(f"s_lshl_b32 s{ST}, s{S_TAG}, 4")
        A(f"s_or_b32 s{S_XW}, s{S_XW}, s{ST}")
        A(f"v_mov_b32 v248, s{S_XW}")
        A(f"buffer_store_dword v248, v{V_L0}, s[{SWS}:{SWS+3}], s{P_FLAGO} offen sc1")

def lds_b128_addrs(base_reg, wave_off_sreg, const, nsets):
    A(f"v_bfe_u32 v9, v{V_N}, 1, 3")
    A(f"v_xor_b32 v9, v9, v{V_G}")
    A("v_lshlrev_b32 v9, 4, v9")
    A(f"v_lshl_add_u32 v9, v{V_N}, 7, v9")
    A(f"v_add_u32 v9, s{wave_off_sreg}, v9")
    if const: A(f"v_add_u32 v9, {const:#x}, v9")
    for ks in range(4):
        A(f"v_xor_b32 v{base_reg+ks}, {32*ks}, v9")
    for st in range(1, nsets):
        for ks in range(4): A(f"v_add_u32 v{base_reg+4*st+ks}, {st*0x10000:#x}, v{base_reg+ks}")

TCH = 250
def rdy_load(reg, dummy=9):
    A(f"buffer_load_dword v254, v{V_XPO}, s[{SWS}:{SWS+3}], s{P_FLAGB} offen offset:112 sc1")
    A(f"buffer_load_dword v{reg}, v{V_XPO}, s[{SWS}:{SWS+3}], s{P_XCCB} offen sc1")
def rdy_check(dst, reg):
    if HAND: A(f"v_xor_b32 v{dst}, s{S_TAG}, v{reg}")
    else:
        A(f"v_xor_b32 v{reg}, s{S_XW}, v{reg}")
        A(f"v_lshrrev_b32 v{dst}, 4, v{reg}")
def rdy_store():
    if HAND: A(f"buffer_store_dword v11, v{V_L0}, s[{SWS}:{SWS+3}], s{P_FLAGO} offen sc1")
def xcc_decide(reg):
    if HAND: return
    A(f"v_cmp_ne_u32 vcc, 0, v{reg}")
    A("s_cmp_lg_u64 vcc, 0")
    A(f"s_cselect_b32 s{S_SLOW}, 1, 0")
def flag_store(ph=0):
    slow, join = lab("slow"), lab("join")
    A(f"s_cmp_lg_u32 s{S_SLOW}, 0")
    A(f"s_cbranch_scc1 {slow}")
    A(f"buffer_store_dword v11, v{V_L0}, s[{SWS}:{SWS+3}], s{P_FLW} offen offset:{ph*128}")
    A.label(join)
    def later():
        A.label(slow)
        A(f"buffer_store_dword v11, v{V_L0}, s[{SWS}:{SWS+3}], s{P_FLW} offen offset:{ph*128} sc1")
        A(f"s_branch {join}")
    DEFER.append(later)
def flag_load(ph):
    A(f"buffer_load_dword v13, v{V_CHK}, s[{SWS}:{SWS+3}], s{P_FLAGB} offen offset:{ph*128} sc1")
def flag_cmp():
    A(f"v_cmp_ne_u32 s[{S_FAIL}:{S_FAIL+1}], s{S_TAG}, v13")
def flag_poll(ph=0):
    poll(lambda: flag_load(ph), flag_cmp)
def flag_check(ph):
    slow, back = lab("fslow"), lab("fback")
    flag_cmp()
    A(f"s_cmp_lg_u64 s[{S_FAIL}:{S_FAIL+1}], 0")
    A(f"s_cbranch_scc1 {slow}")
    A.label(back)
    def later():
        A.label(slow)
        A.hist = []
        flag_poll(ph)
        A(f"s_branch {back}")
    DEFER.append(later)

DEFER = []
def make_verify(pieces, slot, second):
    retry, back = lab("retry"), lab("back")
    def reads():
        A(f"v_add_u32 v9, {slot*SLOT:#x}, v{V_CHK}")
        A("ds_read_b32 v13, v9")
        A(f"ds_read_b32 v14, v9 offset:{second}")
    def cmp():
        A("v_max_u32 v13, v13, v14")
        A("v_cmp_eq_u32 vcc, -1, v13")
    def branch():
        A("s_cmp_lg_u64 vcc, 0")
        A(f"s_cbranch_scc1 {retry}")
        A.label(back)
    def later():
        top, done = lab("rl"), lab("rd")
        A.label(retry)
        A.hist = []
        A(f"s_mov_b32 s{S_SM0}, m0")
        A(f"s_mov_b32 s{S_CNT}, {SPIN_LIMIT}")
        A.label(top)
        run(pieces(S_RS))
        A("s_waitcnt vmcnt(0)")
        A("ds_read_b32 v13, v9")
        A(f"ds_read_b32 v14, v9 offset:{second}")
        A("s_waitcnt lgkmcnt(0)")
        cmp()
        A("s_cmp_eq_u64 vcc, 0")
        A(f"s_cbranch_scc1 {done}")
        A(f"s_sub_u32 s{S_CNT}, s{S_CNT}, 1")
        A(f"s_cbranch_scc0 {top}")
        A.label(done)
        if OPT["stamps"]:
            A(f"s_sub_u32 s{S_CNT}, {SPIN_LIMIT + 1}, s{S_CNT}")
            A(f"s_add_u32 s99, s99, s{S_CNT}")
        A(f"s_mov_b32 m0, s{S_SM0}")
        A(f"s_branch {back}")
    DEFER.append(later)
    return reads, cmp, branch

def tag_update(role):
    skip = lab("notag")
    A(f"s_cmp_eq_u32 s{P_TAGSEL}, {(15 if role == 'A' else 0) << 8}")
    A(f"s_cbranch_scc0 {skip}")
    A(f"buffer_store_dword v11, v{V_L0}, s[{SWS}:{SWS+3}], 0 offen offset:{WS_TAGA if role == 'A' else WS_TAGB} sc1")
    A.label(skip)

def out_stores(acc, ph):
    def mk(r):
        def f():
            row = 8 * (r >> 2) + (r & 3)
            A(f"s_add_u32 s{ST+1}, s{P_OUT+ph}, {row*4096}")
            A(f"buffer_store_dword v{acc+16*ph+r}, v{V_OUTO}, s[{SOUT}:{SOUT+3}], s{ST+1} offen {OUTF2 if ph else OUTF}")
        return f
    return [mk(r) for r in range(16)]

SCHED = {
    0: ({0: [2, 3], 1: [4], 2: [5], 3: [6], 4: [7]}, 5, {0: "all"}),
    1: ({i: [i + 2] for i in range(6)}, 6, {i: "front" for i in range(6)}),
    2: ({0: [2], 1: [3], 2: [4], 3: [5, 6], 4: [7]}, 5, {3: "all"}),
    3: ({0: [2], 1: [3], 2: [4, 5], 3: [6], 4: [7]}, 5, {2: "all"}),
    4: ({0: [2], 1: [3], 2: [4], 3: [5], 4: [6], 5: [7]}, 6, {2: "front", 3: "front", 4: "front", 5: "front"}),
    5: ({0: [2], 1: [3, 4], 2: [5], 3: [6], 4: [7]}, 5, {1: "all"}),
    6: ({i: [i + 3] for i in range(5)}, 5, {}),
    7: ({i: [i + 3] for i in range(5)}, 5, {0: "front", 1: "front"}),
}[OPT.get("sched", 6)]
EARLY = OPT.get("sched", 6) >= 6
NPRE = OPT.get("npre", 4)
NX = OPT.get("nx", 10)
XST = SCHED[1]
def g1_gaps(n, busy):
    i = n >> 2
    if SCHED[2].get(i) in ("all", "front") or i in busy: return (0, 1, 2, 3)
    return (2, 3)
OUTF = {0: "sc1", 1: "sc1 nt", 2: "sc0 sc1", 3: "nt", 4: "", 5: "sc0 sc1 nt"}[OPT.get("outf", 0)]
OUTF2 = {0: "sc1", 3: "nt", 4: ""}[OPT.get("outf2", 0)]
XF = "nt " if OPT["xnt"] else ""
PLF = {0: "sc1 ", 1: "", 2: "sc0 ", 3: "nt "}[OPT.get("plf", 0)]

def role_A():
    V_AX, V_AW = 24, 32
    V_GO, V_SCW = 44, 3
    V_XF, V_WF = 48, 64
    URE, UIM = 80, 112
    ACC2 = 144
    HP = 176
    XS, DG, V_GE = 176, 192, 200
    V_PUB, V_XSO, V_HSO = 45, 46, 223
    P_MSK = P0 + 4
    C_LAM, C_M1, C_M2, C_L, C_MQ, C_LQ, C_C2 = 208, 210, 212, 214, 216, 218, 220
    C_DSK = 222
    T0 = 224
    P_SAB, P_SAO, P_XS0, P_XS1 = P0, P0 + 1, P0 + 2, P0 + 3
    code_prefetch()
    A("v_lshrrev_b32 v9, 1, v3")
    A("v_xor_b32 v9, v9, v4")
    A("v_lshlrev_b32 v9, 4, v9")
    A("v_lshrrev_b32 v10, 2, v3")
    A("v_lshlrev_b32 v10, 5, v10")
    A("v_and_b32 v11, 1, v3")
    A("v_lshl_add_u32 v10, v11, 4, v10")
    A("v_bfe_u32 v11, v3, 1, 1")
    A("v_add_u32 v10, v10, v11")
    A("v_lshl_add_u32 v10, v10, 10, v9")
    slin(ST, 0, (S_CHUNK, 1 << 17), (S_RH, 1 << 16), (S_CH, 1 << 13))
    A(f"v_add_u32 v{V_OX}, s{ST}, v10")
    A(f"v_xor_b32 v11, 64, v{V_OX}")
    A(f"v_add_u32 v{V_OX+1}, 1024, v11")
    A(f"v_add_u32 v{V_OX+2}, 2048, v{V_OX}")
    A(f"v_add_u32 v{V_OX+3}, 3072, v11")
    A("v_lshl_add_u32 v10, v3, 10, v9")
    slin(ST, 0, (S_CG, 1 << 16), (S_CH, 1 << 15))
    A(f"v_add_u32 v{V_OW}, s{ST}, v10")
    A(f"v_xor_b32 v11, 64, v{V_OW}")
    A(f"v_add_u32 v{V_OW+1}, 7168, v11")
    A(f"v_add_u32 v{V_OW+2}, {2*7168}, v{V_OW}")
    A(f"v_add_u32 v{V_OW+3}, {3*7168}, v11")
    slin(ST, 0, (S_CG, 128), (S_CH, 64))
    A(f"v_lshl_add_u32 v14, v{V_N}, 1, s{ST}")
    A(f"s_cmp_eq_u32 s{S_RH}, 0")
    A("s_waitcnt lgkmcnt(0)")
    A(f"s_cselect_b32 s{SW}, s{K_BRE}, s{K_BIM}")
    A(f"s_cselect_b32 s{SW+1}, s{K_BRE+1}, s{K_BIM+1}")
    A(f"s_cselect_b32 s{SW2}, s{K_CRE}, s{K_CIM}")
    A(f"s_cselect_b32 s{SW2+1}, s{K_CRE+1}, s{K_CIM+1}")
    A(f"s_mov_b32 s{SW+2}, 0x80000")
    A(f"s_mov_b32 s{SW+3}, 0x20000")
    stamp(1)
    ws_shift()
    A(f"s_load_dword s{S_TAG}, s[{K_WS}:{K_WS+1}], {WS_TAGA}")
    srd(SX, K_AX, 0x200000)
    tok = {}
    def g1_pieces(i):
        slot = i & 3
        return (dma_pieces(V_OW, SW, ST + 8, slot * SLOT, pre=lambda: rot_soff(ST + 8, i, shift=7, rot=S_ROT1)) +
                dma_pieces(V_OX, SX, ST + 8, slot * SLOT + 16384, post=lambda: tok.__setitem__(i, A.vm), flags=XF))
    CLDS = {1: 4 * SLOT, 2: 4 * SLOT + 16384, 0: 0, 3: 16384, 4: SLOT, 5: SLOT + 16384, 6: 2 * SLOT, 7: 2 * SLOT + 16384}
    CORD = [1, 2, 0, 3, 4, 5, 6, 7]
    CE = OPT.get('ce', 0)
    def c_pieces(st):
        if st in (0, 2) and OPT.get("cswap", 1):
            def pre():
                A(f"s_and_b32 s{ST+9}, s{S_CHUNK}, 3")
                A(f"s_cmp_eq_u32 s{ST+9}, 3")
                A(f"s_cselect_b32 s{ST+9}, {CLDS[2-st]:#x}, {CLDS[st]:#x}")
                A(f"s_cselect_b32 s{ST+7}, s{KAP[2-st]}, s{KAP[st]}")
                A(f"s_add_u32 m0, s{S_M0W}, s{ST+9}")
                A(f"s_lshl_b32 s{ST+9}, s{ST+7}, 7")
            return dma_pieces(V_OW, SW2, ST + 9, 0, pre=pre)
        return dma_pieces(V_OW, SW2, ST + 9, CLDS[st], pre=lambda: A(f"s_lshl_b32 s{ST+9}, s{KAP[st]}, 7"))
    SML = OPT.get("sml", 1)
    def small():
        A(f"global_load_ushort v{T0}, v14, s[{K_LRE}:{K_LRE+1}]")
        A(f"global_load_ushort v{T0+1}, v14, s[{K_LIM}:{K_LIM+1}]")
        A(f"global_load_ushort v{T0+2}, v14, s[{K_LDT}:{K_LDT+1}]")
        A(f"global_load_ushort v{C_DSK}, v14, s[{K_DSK}:{K_DSK+1}]")
    if not SML: small()
    tok_small = A.vm
    run(g1_pieces(0))
    A(f"s_mov_b32 s{SW2+2}, 0x80000")
    A(f"s_mov_b32 s{SW2+3}, 0x20000")
    late = g1_pieces(1)
    if EARLY:
        run(late[:NPRE]); late = late[NPRE:] + g1_pieces(2)
    else:
        run(late); late = []
    if SML: small()
    if OPT.get("wtouch", 0):
        slin(ST, 0, (S_CG, 1 << 16), (S_CHUNK, 4096), (S_CH, 2048))
        A(f"v_and_b32 v9, 15, v{V_LANE}")
        A("v_lshlrev_b32 v9, 7, v9")
        A(f"buffer_load_dword v254, v9, s[{SW2}:{SW2+3}], s{ST} offen")
    stamp(2)
    cut("A")
    A(f"s_lshl_b32 s{ST}, s{S_RH}, 13")
    lds_b128_addrs(V_AX, ST, 16384, 2)
    A(f"s_lshl_b32 s{ST}, s{S_CH}, 12")
    lds_b128_addrs(V_AW, ST, 0, 3)
    if OPT.get("lateset", 1): A.cap = []
    common_setup("A")
    slin(P_SAB, WS_SA, (S_CG, 8192))
    A(f"s_sub_u32 s{ST}, 15, s{S_CHUNK}")
    slin(P_SAO, 0, (ST, 512), (S_CH, 256), (P_SAB, 1))
    A(f"s_mov_b32 s{P_MSK}, 0xffffff00")
    slin(P_XS0, 0, (S_CHUNK, 1 << 17), (S_RH, 1 << 16), (S_CG, 128), (S_CH, 64), (S_MF, 32768))
    A(f"s_xor_b32 s{P_XS1}, s{P_XS0}, 32768")
    slin(P_ACTW, WS_H, (S_CHUNK, 1 << 18), (S_CG, 1 << 15), (S_WAVE, 4096))
    slin(P_ACTR, WS_H, (S_CHUNK, 1 << 18), (S_WAVE, 4096), (S_MF, 16384))
    A(f"s_xor_b32 s{P_ACTR2}, s{P_ACTR}, 16384")
    A(f"v_lshlrev_b32 v9, 11, v{V_G}")
    A(f"v_lshl_add_u32 v{V_HSO}, v{V_N}, 4, v9")
    A(f"s_add_u32 s{P_ACTW2}, s{P_ACTW}, 16384")
    clears = [f"buffer_store_dwordx4 {vr(T0+24,4)}, v{V_HSO}, s[{SWS}:{SWS+3}], s{P_ACTW} offen offset:{k*512} sc1" for k in range(8)]
    A(f"s_and_b32 s{ST}, s{S_TAG}, 0xff")
    A(f"v_mov_b32 v{V_TAG}, s{ST}")
    A(f"v_mov_b32 v11, s{S_TAG}")
    A(f"v_lshlrev_b32 v{V_XSO}, 10, v{V_N}")
    A(f"v_lshl_add_u32 v{V_XSO}, v{V_G}, 5, v{V_XSO}")
    SCR = 3 * SLOT
    slin(ST, SCR, (S_CH, 256))
    A(f"v_lshl_add_u32 v4, v{V_N}, 3, s{ST}")
    A(f"s_lshl_b32 s{ST}, s{S_RH}, 10")
    A(f"v_lshl_add_u32 v3, v{V_G}, 9, v4")
    A(f"v_add_u32 v3, s{ST}, v3")
    A(f"v_lshlrev_b32 v13, 3, v{V_N}")
    A(f"v_mov_b32 v14, {OOB:#x}")
    A(f"s_or_b64 s[{ST+2}:{ST+3}], s[{S_MG}:{S_MG+1}], s[{S_MRH}:{S_MRH+1}]")
    A(f"v_cndmask_b32_e64 v{V_PUB}, v13, v14, s[{ST+2}:{ST+3}]")
    if OPT.get("prew", 1):
        for k in range(2): A(f"v_subrev_u32 v{T0+20+k}, 1, v{V_TAG}")
        A(f"buffer_store_dwordx2 {vr(T0+20,2)}, v{V_PUB}, s[{SWS}:{SWS+3}], s{P_SAO} offen sc1")
    A(f"s_sub_u32 s{ST+4}, 16, s{S_CHUNK}")
    A(f"v_lshlrev_b32 v9, 3, v{V_G}")
    A(f"v_add_u32 v9, s{ST+4}, v9")
    A(f"s_lshl_b32 s{ST+4}, s{S_CH}, 8")
    A(f"v_add_u32 v13, s{ST+4}, v13")
    A(f"v_lshl_add_u32 v{V_GO}, v9, 9, v13")
    for i in range(8):
        A(f"v_cmp_gt_u32 vcc, {16-i}, v9")
        A(f"v_cndmask_b32_e64 v{V_GE+i}, 0, v{V_TAG}, vcc")
    if SML: assert len([x for x in A.cap if not x.startswith("buffer_")]) >= 13 * NX + 8 and EARLY and not OPT.get("pset")
    A.wait_vm(tok_small)
    lre, lim, ldt = T0, T0 + 1, T0 + 2
    A(f"v_and_b32 v9, 1, v{V_N}")
    A("v_lshlrev_b32 v9, 4, v9")
    A(f"v_lshlrev_b32 v{C_DSK}, v9, v{C_DSK}")
    A(f"v_lshrrev_b32 v9, 1, v{V_N}")
    A(f"v_lshlrev_b32 v13, 3, v{V_G}")
    A("v_sub_u32 v9, v9, v13")
    for q in range(8):
        A(f"v_cmp_eq_u32 vcc, {q}, v9")
        A(f"v_cndmask_b32_e64 v{DG+q}, 0, v{C_DSK}, vcc")
    for r in (lre, lim, ldt): A(f"v_lshlrev_b32 v{r}, 16, v{r}")
    A(f"v_mul_f32 v{ldt}, s{S_L2E}, v{ldt}")
    A(f"v_exp_f32 v{ldt}, v{ldt}")
    A(f"v_cvt_pk_bf16_f32 v{ldt}, v{ldt}, v{ldt}")
    A(f"v_lshlrev_b32 v{ldt}, 16, v{ldt}")
    A(f"v_mul_f32 v{T0+4}, v{ldt}, v{lre}")
    A(f"v_mul_f32 v{T0+5}, v{ldt}, v{lim}")
    A(f"v_mul_f32 v{T0+4}, s{S_L2E}, v{T0+4}")
    A(f"v_exp_f32 v{T0+4}, v{T0+4}")
    A(f"v_mul_f32 v{T0+5}, {INV2PI:#x}, v{T0+5}")
    A(f"v_rndne_f32 v{T0+6}, v{T0+5}")
    A(f"v_sub_f32 v{T0+5}, v{T0+5}, v{T0+6}")
    A(f"v_cos_f32 v{T0+6}, v{T0+5}")
    A(f"v_sin_f32 v{T0+7}, v{T0+5}")
    A(f"v_mul_f32 v{C_LAM}, v{T0+4}, v{T0+6}")
    A(f"v_mul_f32 v{C_LAM+1}, v{T0+4}, v{T0+7}")
    A(f"v_add_f32 v{T0+4}, -1.0, v{C_LAM}")
    A(f"v_mul_f32 v{T0+5}, v{lre}, v{lre}")
    A(f"v_fmac_f32 v{T0+5}, v{lim}, v{lim}")
    A(f"v_rcp_f32 v{T0+5}, v{T0+5}")
    A(f"v_mul_f32 v{T0+6}, v{T0+4}, v{lre}")
    A(f"v_fmac_f32 v{T0+6}, v{C_LAM+1}, v{lim}")
    A(f"v_mul_f32 v{T0+7}, v{C_LAM+1}, v{lre}")
    A(f"v_fma_f32 v{T0+7}, -v{T0+4}, v{lim}, v{T0+7}")
    A(f"v_add_f32 v{T0+5}, v{T0+5}, v{T0+5}")
    A(f"v_mul_f32 v{C_C2}, v{T0+6}, v{T0+5}")
    A(f"v_mul_f32 v{C_C2+1}, v{T0+7}, v{T0+5}")
    pa, pb, tt = T0 + 8, T0 + 10, T0 + 12
    cmul(pa, C_LAM, C_LAM, tt)
    cmul(pb, pa, pa, tt)
    cmul(pa, pb, pb, tt)
    cmul(C_M1, pa, pa, tt)
    cmul(C_M2, C_M1, C_M1, tt)
    cmul(pa, C_M2, C_M2, tt)
    cmul(C_L, pa, pa, tt)
    def sel_pair(dst, src, mask):
        A(f"v_cndmask_b32_e64 v{dst}, 1.0, v{src}, s[{mask}:{mask+1}]")
        A(f"v_cndmask_b32_e64 v{dst+1}, 0, v{src+1}, s[{mask}:{mask+1}]")
    sel_pair(T0 + 14, C_M2, S_MG)
    sel_pair(T0 + 16, pa, S_MRH)
    cmul(C_MQ, T0 + 14, T0 + 16, tt)
    cmul(pa, C_L, C_L, tt)
    cmul(pb, pa, pa, tt)
    cmul(pa, pb, pb, tt)
    sel_pair(C_LQ, pa, S_MG)
    SET, A.cap = (A.cap or []), None
    LATEV = [x for x in SET if x.startswith("buffer_")]
    SET = [x for x in SET if not x.startswith("buffer_")]
    for _ in range(OPT.get("pset", 0)):
        if f"s{S_TAG}," in SET[0] + ",": break
        A(SET.pop(0))
    while SET and (SET[0].startswith("s_addc") or SET[0].startswith("s_cselect")): A(SET.pop(0))
    stamp(3)
    run(late)
    def rd(n):
        i, ks = n >> 2, n & 3
        slot, buf = i & 3, n & 1
        s2_, off = slot >> 1, (slot & 1) * SLOT
        x = [f"ds_read_b128 {vr(V_XF+buf*8+m*4,4)}, v{V_AX+4*s2_+ks} offset:{off+m*4096}" for m in range(2)]
        w = [f"ds_read_b128 {vr(V_WF+buf*8+ri*4,4)}, v{V_AW+4*s2_+ks} offset:{off+ri*8192}" for ri in range(2)]
        return [x[0], w[0], w[1], x[1]]
    def mm(n):
        buf = n & 1
        r = []
        for m, ri in ((0, 0), (0, 1), (1, 1), (1, 0)):
            d = vr((URE, UIM)[ri] + 16 * m, 16)
            r.append(mf(d, vr(V_XF + buf * 8 + m * 4, 4), vr(V_WF + buf * 8 + ri * 4, 4), d if n else "0"))
        return r
    fill = []
    def xs_load(m, s):
        return lambda: A(f"buffer_load_dwordx4 {vr(XS+8*m+4*s,4)}, v{V_XSO}, s[{SX}:{SX+3}], s{P_XS0+m} offen offset:{16*s}")
    def on_step(n):
        i, ks = n >> 2, n & 3
        if ks == 0 and OPT.get("g1st") and i: stamp(16 + i)
        if ks == 0:
            for st in SCHED[0].get(i, []): fill.extend(g1_pieces(st))
            if i == XST:
                fill.extend(c_pieces(1) + c_pieces(2))
            elif i == XST + 1:
                fill.extend(LATEV)
                fill.extend([xs_load(m, s) for m in range(2) for s in range(2)])
                if CE >= 4: fill.extend(c_pieces(0) + c_pieces(3))
            elif i == 7:
                if CE == 2: fill.extend(c_pieces(0) + c_pieces(3))
                if CE >= 4: fill.extend(c_pieces(4) + c_pieces(5))
                if OPT.get("ptouch", 0):
                    fill.extend([f"buffer_load_dword v254, v{V_GO+k}, s[{SWS}:{SWS+3}], s{P_SAB} offen sc1" for k in range(4)])
                    fill.append(lambda: rdy_load(254, 254))
    A.wait_vm(tok[0])
    A("s_barrier")
    stamp(4)
    gemm_loop(32, rd, mm, lambda n: tok[n >> 2] if (n & 3) == 0 else None, (2, 2, 0, 0), lambda n: g1_gaps(n, (6,) if CE >= 4 else ()), fill, on_step, end_barrier=True, extra=SET, nextra=lambda n, g: NX)
    assert not SET
    assert not fill
    stamp(5)
    P = [T0, T0 + 4]
    def lam_bc(hi): return f"op_sel:[{hi},0,0] op_sel_hi:[{hi},1,1]"
    NEG = "neg_lo:[1,0,0] neg_hi:[1,0,0]"
    cur_re, cur_im = URE, UIM
    for s in range(1, 16):
        d = P[s & 1]
        A(f"v_pk_fma_f32 {vr(d,2)}, {vr(C_LAM,2)}, {vr(cur_im,2)}, {vr(URE+2*s,2)} {lam_bc(1)} {NEG}")
        A(f"v_pk_fma_f32 {vr(d+2,2)}, {vr(C_LAM,2)}, {vr(cur_re,2)}, {vr(UIM+2*s,2)} {lam_bc(1)}")
        A(f"v_pk_fma_f32 {vr(d,2)}, {vr(C_LAM,2)}, {vr(cur_re,2)}, {vr(d,2)} {lam_bc(0)}")
        A(f"v_pk_fma_f32 {vr(d+2,2)}, {vr(C_LAM,2)}, {vr(cur_im,2)}, {vr(d+2,2)} {lam_bc(0)}")
        cur_re, cur_im = d, d + 2
    A0, BQ = T0 + 8, T0 + 10
    A(f"v_fma_f32 v{BQ}, v{C_M1}, v{cur_re}, v{cur_re+1}")
    A(f"v_fma_f32 v{BQ+1}, v{C_M1}, v{cur_im}, v{cur_im+1}")
    A(f"v_fma_f32 v{BQ}, -v{C_M1+1}, v{cur_im}, v{BQ}")
    A(f"v_fma_f32 v{BQ+1}, v{C_M1+1}, v{cur_re}, v{BQ+1}")
    A(f"ds_write_b64 v3, {vr(BQ,2)}")
    A(f"v_mov_b32 v{A0}, v{cur_re}")
    A(f"v_mov_b32 v{A0+1}, v{cur_im}")
    P2, P3, SS, tt = T0 + 20, T0 + 22, T0 + 24, T0 + 28
    def c2_bc(hi, n=3):
        return f"op_sel:[{hi},0,0] op_sel_hi:[{hi},1,1]" if n == 3 else f"op_sel:[{hi},0] op_sel_hi:[{hi},1]"
    cm = []
    for s in range(16):
        re, im, t = URE + 2 * s, UIM + 2 * s, T0 + 2 + 2 * (s & 1)
        cm += [f"v_pk_mul_f32 {vr(t,2)}, {vr(C_C2,2)}, {vr(re,2)} {c2_bc(1,2)} neg_lo:[1,0] neg_hi:[1,0]",
               f"v_pk_mul_f32 {vr(re,2)}, {vr(C_C2,2)}, {vr(re,2)} {c2_bc(0,2)}",
               f"v_pk_fma_f32 {vr(re,2)}, {vr(C_C2,2)}, {vr(im,2)}, {vr(re,2)} {c2_bc(1)} {NEG}",
               f"v_pk_fma_f32 {vr(im,2)}, {vr(C_C2,2)}, {vr(im,2)}, {vr(t,2)} {c2_bc(0)} {NEG}"]
    emit(cm[:8])
    if HAND: A.wait_both(tok["clr"], A.lg)
    else: A("s_waitcnt lgkmcnt(0)")
    A("s_barrier")
    B0 = T0 + 12
    for q in range(4):
        A(f"ds_read_b64 {vr(B0+2*q,2)}, v4 offset:{q*512}")
    emit(cm[8:24])
    A("s_waitcnt lgkmcnt(0)")
    cfma(P2, C_M2, B0, B0 + 2, tt)
    cfma(P3, C_M2, P2, B0 + 4, tt)
    cfma(tt, C_M2, P3, B0 + 6, tt)
    A(f"v_and_or_b32 v{SS}, v{tt}, s{P_MSK}, v{V_TAG}")
    A(f"v_and_or_b32 v{SS+1}, v{tt+1}, s{P_MSK}, v{V_TAG}")
    A(f"buffer_store_dwordx2 {vr(SS,2)}, v{V_PUB}, s[{SWS}:{SWS+3}], s{P_SAO} offen sc1")
    rdy_store()
    stamp(6)
    emit(cm[24:])
    LOC = T0 + 0
    for e in range(2):
        A(f"v_cndmask_b32_e64 v{T0+2+e}, 0, v{B0+e}, s[{S_MG}:{S_MG+1}]")
        A(f"v_cndmask_b32_e64 v{T0+4+e}, v{P2+e}, v{P3+e}, s[{S_MG}:{S_MG+1}]")
        A(f"v_cndmask_b32_e64 v{LOC+e}, v{T0+2+e}, v{T0+4+e}, s[{S_MRH}:{S_MRH+1}]")
    E0, F0, E1, F1 = T0 + 12, T0 + 14, T0 + 16, T0 + 18
    cfma(P2, C_M1, LOC, A0, tt)
    cmul(F1, C_C2, P2, tt)
    cmul(F0, C_C2, LOC, tt)
    cmul(E0, C_C2, C_MQ, tt)
    cmul(E1, E0, C_M1, tt)
    V_AH = V_AX
    A(f"v_bfe_u32 v9, v{V_LANE}, 4, 1")
    A(f"v_bfe_u32 v13, v{V_LANE}, 1, 1")
    A("v_lshl_add_u32 v9, v9, 1, v13")
    A(f"v_bfe_u32 v13, v{V_LANE}, 2, 2")
    A(f"v_lshl_add_u32 v13, v{V_G}, 3, v13")
    A("v_lshlrev_b32 v14, 2, v9")
    A("v_xor_b32 v13, v13, v14")
    A("v_lshlrev_b32 v13, 4, v13")
    A("v_lshl_add_u32 v13, v9, 9, v13")
    A(f"v_and_b32 v14, 1, v{V_LANE}")
    A("v_lshl_add_u32 v13, v14, 3, v13")
    A(f"s_lshl_b32 s{ST+2}, s{S_RH}, 13")
    A(f"v_add_u32 v{V_AH}, s{ST+2}, v13")
    A(f"v_xor_b32 v{V_AH+1}, 64, v{V_AH}")
    for st in (1, 2):
        A(f"v_add_u32 v{V_AH+2*st}, {st*0x10000:#x}, v{V_AH}")
        A(f"v_add_u32 v{V_AH+2*st+1}, {st*0x10000:#x}, v{V_AH+1}")
    V_SO = T0 + 24
    for o in range(1, 4):
        A(f"v_xor_b32 v{V_SO+o}, {o*64}, v{V_HSO}")
    CPRE = 8
    A(f"s_add_u32 s{SW}, s{SWS}, s{P_SAB}")
    A(f"s_addc_u32 s{SW+1}, s{SWS+1}, 0")
    A(f"s_mov_b32 s{SW+2}, 8192")
    GD = 48
    def loads():
        for i in range(8):
            A(f"buffer_load_dwordx2 {vr(GD+2*i,2)}, v{V_GO}, s[{SW}:{SW+3}], 0 offen offset:{i*512} sc1")
        rdy_load(14)
    def check():
        A(f"v_xor_b32 v13, v{GD}, v{V_GE}")
        for i in range(1, 8):
            A(f"v_bitop3_b32 v13, v{GD+2*i}, v{V_GE+i}, v13 bitop3:0xbe")
        rdy_check(9, 14)
        A("v_and_b32 v13, 0xff, v13")
        A("v_or_b32 v13, v13, v9")
        A(f"v_cmp_ne_u32 s[{S_FAIL}:{S_FAIL+1}], 0, v13")
    CM = min(8, 2 + CE + OPT.get("cmid", 3))
    for st in CORD[2+CE:CM]: run(c_pieces(st))
    loads()
    tok_p = A.vm
    CPOST = OPT.get("cpost", 0)
    for st in CORD[CM:8-CPOST]: run(c_pieces(st))
    tok_c = A.vm
    stamp(7)
    ok = lab("ok1")
    A.wait_vm(tok_p)
    for m in range(2):
        d = vr(ACC2 + 16 * m, 16)
        A(mf(d, vr(XS + 8 * m, 4), vr(DG, 4), "0"))
    check()
    A(f"s_cmp_eq_u64 s[{S_FAIL}:{S_FAIL+1}], 0")
    A(f"s_cbranch_scc1 {ok}")
    vm_keep = A.vm
    poll(loads, check)
    A.vm = vm_keep
    A.label(ok)
    stamp(8)
    h1, h2 = T0 + 20, T0 + 22
    cur = GD + 14
    for i in range(6, -1, -1):
        d = (h1, h2)[i & 1]
        cfma(d, C_L, cur, GD + 2 * i, tt)
        cur = d
    CQ = GD
    cmul(CQ, C_LQ, cur, tt)
    for e in range(2): A(f"v_mov_b32 v{CQ+2+e}, v{CQ+e}")
    for e in range(2): A(f"v_permlane32_swap_b32 v{CQ+e}, v{CQ+2+e}")
    A(f"v_pk_add_f32 {vr(CQ,2)}, {vr(CQ,2)}, {vr(CQ+2,2)}")
    def c_reads(st):
        s2_, off = CLDS[st] >> 16, CLDS[st] & 0xffff
        r = [None] * 8
        for ks in range(4):
            for ri in range(2):
                kap = (ks >> 1) * 4 + ri * 2 + (ks & 1)
                r[kap] = f"ds_read_b128 {ar((st*8+kap)*4,4)}, v{V_AW+4*s2_+ks} offset:{off+ri*8192}"
        return r
    for m in range(2):
        d = vr(ACC2 + 16 * m, 16)
        A(mf(d, vr(XS + 8 * m + 4, 4), vr(DG + 4, 4), d))
    HR, HI = T0 + 20, T0 + 22
    A(f"v_fma_f32 v{HR}, v{E0}, v{CQ}, v{F0}")
    A(f"v_fma_f32 v{HR+1}, v{E1}, v{CQ}, v{F1}")
    A(f"v_fma_f32 v{HI}, -v{E0}, v{CQ+1}, -v{F0+1}")
    A(f"v_fma_f32 v{HI+1}, -v{E1}, v{CQ+1}, -v{F1+1}")
    A(f"v_fma_f32 v{HR}, -v{E0+1}, v{CQ+1}, v{HR}")
    A(f"v_fma_f32 v{HR+1}, -v{E1+1}, v{CQ+1}, v{HR+1}")
    A(f"v_fma_f32 v{HI}, -v{E0+1}, v{CQ}, v{HI}")
    A(f"v_fma_f32 v{HI+1}, -v{E1+1}, v{CQ}, v{HI+1}")
    pr, pi_ = HR, HI
    def hstore(ph, o):
        A(f"buffer_store_dwordx4 {vr(HP+16*ph+4*o,4)}, v{V_SO+o if o else V_HSO}, s[{SWS}:{SWS+3}], s{P_ACTW+ph} offen offset:{o*512} sc1")
    for hf in range(2):
        for s in range(8 * hf, 8 * hf + 8):
            re, im = URE + 2 * s, UIM + 2 * s
            emit([f"v_pk_fma_f32 {vr(re,2)}, {vr(C_LAM,2)}, {vr(pi_,2)}, {vr(re,2)} {lam_bc(1)}",
                  f"v_pk_fma_f32 {vr(im,2)}, {vr(C_LAM,2)}, {vr(pr,2)}, {vr(im,2)} {lam_bc(1)} {NEG}",
                  f"v_pk_fma_f32 {vr(re,2)}, {vr(C_LAM,2)}, {vr(pr,2)}, {vr(re,2)} {lam_bc(0)}",
                  f"v_pk_fma_f32 {vr(im,2)}, {vr(C_LAM,2)}, {vr(pi_,2)}, {vr(im,2)} {lam_bc(0)}"])
            pr, pi_ = re, im
        for z in range(2):
            o = 2 * z + hf
            for ri in range(2):
                U = (URE, UIM)[ri]
                for u in range(4):
                    s0 = 8 * hf + 2 * u
                    A(f"v_cvt_pk_bf16_f32 v{HP+(ri*4+o)*4+u}, v{U+2*s0+z}, v{U+2*s0+2+z}")
            for u in range(4):
                A(f"v_permlane32_swap_b32 v{HP+o*4+u}, v{HP+16+o*4+u}")
            hstore(0, o)
    tok_a = A.vm
    for o in range(4): hstore(1, o)
    tok_h = A.vm
    stamp(9)
    for st in CORD[8-CPOST:] if CPOST else []: run(c_pieces(st))
    tok_c2 = A.vm
    HS = [3, 4, 0, 1, 3, 4, 0, 1]
    def h_pieces(G):
        r = []
        for sub in range(2):
            pos, ph = SEQ[2 * G + sub]
            r += dma_pieces(V_LIN, SWS, ST + 8, HS[G] * SLOT + sub * 16384,
                            pre=lambda pos=pos, ph=ph: (A(f"s_lshl_b32 s{ST+8}, s{KAP[pos]}, 15"), A(f"s_add_u32 s{ST+8}, s{ST+8}, s{P_ACTR+ph}")),
                            post=(lambda: tok.__setitem__(("h", G), A.vm)) if sub else None, flags=PLF, same_v=True)
        return r
    assert CPRE == 8
    call = sum([c_reads(st) for st in [0, 1, 2, 3, 4, 5, 6, 7]], [])
    HF = 48
    def rd2(n):
        G, q = n >> 2, n & 3
        slot, buf = HS[G], n & 1
        r = []
        for h in range(4):
            kap = 4 * (q & 1) + h
            off = (slot & 1) * SLOT + (q >> 1) * 16384 + (kap >> 2) * 4096 + ((kap >> 1) & 1) * 2048 + (kap & 1) * 256
            for j in range(2):
                if True:
                    r.append(f"ds_read_b64_tr_b16 {vr(HF+buf*16+h*4+2*j,2)}, v{V_AH+2*(slot>>1)+j} offset:{off}")
        return r
    def mm2(n):
        buf = n & 1
        pos, ph = SEQ[n >> 1]
        d = vr(ACC2 + 16 * ph, 16)
        return [mf(d, vr(HF + buf * 16 + h * 4, 4), ar((8 * pos + 4 * (n & 1) + h) * 4, 4), d) for h in range(4)]
    xcc_decide(14)
    A.wait_vm(tok_c)
    A("s_barrier")
    slin(ST + 2, 3 * SLOT, (S_WAVE, 4096))
    A(f"v_add_u32 v{V_GO}, s{ST+2}, v{V_HSO}")
    for o in range(1, 4): A(f"v_xor_b32 v{V_GO+o}, {o*64}, v{V_GO}")
    for p in range(8):
        A(f"ds_write_b128 v{V_GO+(p&3)}, {vr(HP+4*p,4)} offset:{(p>>2)*16384+(p&3)*512}")
    emit(call[:8])
    A("s_waitcnt lgkmcnt(0)")
    A("s_barrier")
    cf = call[8:32]
    gemm_loop(4, rd2, mm2, lambda n: None, (3, 3, 2, 0), (2, 3), cf)
    A.wait_vm(tok_a)
    flag_store(0)
    emit(cf)
    if CPOST:
        A.wait_vm(tok_h)
        flag_store(1)
        A.wait_both(tok_c2, A.lg)
        A("s_barrier")
        stamp(10)
    else:
        A("s_waitcnt lgkmcnt(0)")
        A("s_barrier")
        stamp(10)
        A.wait_vm(tok_h)
        flag_store(1)
    flag_poll(0)
    stamp(11)
    run(h_pieces(1))
    weave(call[32:], h_pieces(2), 4)
    if OPT.get("btouch", 0):
        A(f"v_lshlrev_b32 v9, 7, v{V_N}")
        A(f"buffer_load_dword v254, v9, s[{SWS}:{SWS+3}], s{P_ACTW2} offen sc1")
    stamp(12)
    fill = []
    h4 = h_pieces(4)
    def on_step2(n):
        G, q = n >> 2, n & 3
        if q == 0 and OPT.get("g2st") and G > 1: stamp(15 + G)
        if n == 7:
            A.wait_vm(tok["fb"])
            flag_check(1)
        fb = [lambda: (flag_load(1), tok.__setitem__("fb", A.vm))]
        if q == 0 and G2S == 0:
            if G == 1: fill.extend(fb + h_pieces(3) + h4[:4])
            elif G == 2: fill.extend(h4[4:] + h_pieces(5))
            elif G + 3 < 8: fill.extend(h_pieces(G + 3))
            elif G == 5: fill.extend(out_stores(ACC2, 0))
        elif q == 0 and G2S in (1, 2):
            if G == 1: fill.extend(fb)
            if G + 2 < 8: fill.extend(h_pieces(G + 2))
            elif G == 6: fill.extend(out_stores(ACC2, 0))
        elif q == 0:
            if G == 1: fill.extend(fb + h_pieces(3))
            elif G == 2: fill.extend(h_pieces(4) + h_pieces(5)[:4])
            elif G == 3: fill.extend(h_pieces(5)[4:] + h_pieces(6))
            elif G == 4: fill.extend(h_pieces(7))
            elif G == 5: fill.extend(out_stores(ACC2, 0))
    G2S = OPT.get("g2s", 2)
    def gaps2(n):
        if G2S == 0: return (0, 1, 2, 3) if n < 12 else (2, 3)
        if G2S == 1: return (0, 1, 2, 3) if n < 24 else (2, 3)
        if G2S == 2: return (1, 2, 3) if n < 24 else (2, 3)
        return (1, 2, 3) if n < 16 else (2, 3)
    A.wait_both(tok[("h", 1)], A.lg)
    A("s_barrier")
    stamp(13)
    gemm_loop(32, rd2, mm2, lambda n: tok[("h", n >> 2)] if (n & 3) == 0 else None, (3, 3, 2, 0),
              gaps2, fill, on_step2, start=4)
    assert not fill
    stamp(14)
    run(out_stores(ACC2, 1))
    tag_update("A")
    stamp(15)
    finish()

def role_B():
    V_OO = 24
    V_AX, V_AT = 28, 36
    V_SW, V_SR, V_P2, V_G2B, V_PB0, V_PB1, V_G1, V_GZ, V_G2, V_P2Z = 39, 40, 41, 42, 43, 44, 45, 46, 47, 253
    S_WPH, V_WPO = P0 + 12, 252
    IDF = 240
    V_WF = 48
    KACC, VACC, PK, KV, WPH = 64, 96, 128, 192, 224
    T0 = 232
    P_P1O, P_P1G, P_P2O, P_P2G, P_MSK = P0 + 1, P0 + 2, P0 + 8, P0 + 9, P0 + 10
    S_PART = 57
    NS = 16 if OPT.get('p16', 1) else 32
    WPS = OPT.get('wps', 1)
    QE = OPT.get('qe', 0)
    code_prefetch()
    A("v_lshrrev_b32 v9, 1, v3")
    A("v_xor_b32 v9, v9, v4")
    A("v_lshlrev_b32 v9, 4, v9")
    A("v_lshl_add_u32 v10, v3, 10, v9")
    slin(ST, 0, (S_CHUNK, 1 << 17), (S_WAVE, 1 << 15))
    A(f"v_add_u32 v{V_OX}, s{ST}, v10")
    A(f"v_xor_b32 v11, 64, v{V_OX}")
    A(f"v_add_u32 v{V_OX+1}, 7168, v11")
    A(f"v_add_u32 v{V_OX+2}, {2*7168}, v{V_OX}")
    A(f"v_add_u32 v{V_OX+3}, {3*7168}, v11")
    A("v_bfe_u32 v9, v3, 1, 1")
    A("v_lshlrev_b32 v9, 2, v9")
    A("v_xor_b32 v9, v9, v4")
    A("v_lshlrev_b32 v9, 4, v9")
    A(f"s_lshl_b32 s{ST}, s{S_CG}, 7")
    A(f"v_add_u32 v9, s{ST}, v9")
    A(f"s_lshl_b32 s{ST+1}, s{S_CH}, 5")
    A(f"v_add_u32 v10, s{ST+1}, v3")
    A("v_mul_u32_u24 v11, 3072, v10")
    A(f"v_add_u32 v{V_OW}, v11, v9")
    for p in range(1, 4): A(f"v_add_u32 v{V_OW+p}, {p*(8*3072-1024)}, v{V_OW}")
    A(f"v_lshl_add_u32 v{V_OO}, v10, 10, v9")
    slin(S_PART, 1024, (S_RH, 1024))
    A("s_waitcnt lgkmcnt(0)")
    srd(SW, K_WQKV, 0x180000)
    stamp(1)
    ws_shift()
    A(f"s_load_dword s{S_TAG}, s[{K_WS}:{K_WS+1}], {WS_TAGB}")
    srd(SX, K_BX, 0x200000)
    tok = {}
    def g1_pieces(i):
        slot = i & 3
        return (dma_pieces(V_OW, SW, ST + 8, slot * SLOT, pre=lambda: rot_soff(ST + 8, i, mul=196608, plus=S_PART, rot=S_ROT1)) +
                dma_pieces(V_OX, SX, ST + 10, slot * SLOT + 16384, pre=lambda: rot_soff(ST + 10, i, shift=7, rot=S_ROT1),
                           post=lambda: tok.__setitem__(i, A.vm), flags=XF))
    QSLOT = [4, 0]; OSLOT = [1, 2]
    def q_pieces(st):
        return dma_pieces(V_OW, SW, ST + 9, QSLOT[st >> 1] * SLOT + (st & 1) * 16384,
                          pre=lambda: rot_soff(ST + 9, 2 * st, mul=196608, extra_sreg=S_RH, rot=S_ROT1), post=lambda: tok.__setitem__(("q", st), A.vm))
    OPAIR = [(1, 2), (0, 3), (4, 5), (6, 7)]
    OLDS = {}
    for st_, pr_ in enumerate(OPAIR):
        for e_ in range(2): OLDS[pr_[e_]] = OSLOT[st_ >> 1] * SLOT + (st_ & 1) * 16384 + e_ * 8192
    def o_pieces(st):
        def pre():
            A(f"s_cmp_eq_u32 s{S_RH}, 0")
            A(f"s_cselect_b32 s{ST+9}, s{KAP[OPAIR[st][0]]}, s{KAP[OPAIR[st][1]]}")
            A(f"s_lshl_b32 s{ST+9}, s{ST+9}, 16")
        return dma_pieces(V_OO, SW2, ST + 9, OSLOT[st >> 1] * SLOT + (st & 1) * 16384, pre=pre)
    run(g1_pieces(0))
    WPL = 4 * SLOT
    srd(SW2, K_WPHI, 0x4000)
    A(f"v_lshlrev_b32 v{V_LIN}, 4, v{V_LANE}")
    slin(ST, 0, (S_CG, 2048), (S_CH, 1024))
    A(f"s_lshl_b32 s{ST+1}, s{S_WAVE}, 10")
    A(f"s_add_u32 m0, s{ST+1}, {WPL:#x}")
    A(f"buffer_load_dwordx4 v{V_LIN}, s[{SW2}:{SW2+3}], s{ST} offen lds")
    late = g1_pieces(1)
    if EARLY:
        run(late[:NPRE]); late = late[NPRE:] + g1_pieces(2)
    else:
        run(late); late = []
    if OPT.get("wtouch", 0):
        slin(ST, 0, (S_CHUNK, 32), (S_WAVE, 8))
        A(f"v_add_u32 v9, s{ST}, v4")
        A("v_mul_u32_u24 v10, 3072, v9")
        A("v_lshlrev_b32 v9, 10, v9")
        A(f"s_lshl_b32 s{ST}, s{S_CG}, 7")
        A(f"buffer_load_dword v254, v10, s[{SW}:{SW+3}], s{ST} offen")
        A(f"buffer_load_dword v254, v9, s[{SW2}:{SW2+3}], s{ST} offen")
    stamp(2)
    cut("B")
    A(f"s_lshl_b32 s{ST}, s{S_RH}, 13")
    lds_b128_addrs(V_AX, ST, 16384, 2)
    A(f"v_bfe_u32 v9, v{V_LANE}, 4, 1")
    A(f"v_bfe_u32 v13, v{V_LANE}, 1, 1")
    A("v_lshl_add_u32 v10, v9, 1, v13")
    A(f"v_bfe_u32 v13, v{V_LANE}, 3, 1")
    A(f"v_xor_b32 v13, s{S_CH}, v13")
    A("v_lshl_add_u32 v9, v13, 2, v10")
    A("v_lshlrev_b32 v9, 4, v9")
    A(f"v_and_b32 v10, 1, v{V_LANE}")
    A("v_lshl_add_u32 v9, v10, 3, v9")
    A(f"v_bfe_u32 v14, v{V_LANE}, 2, 2")
    A(f"v_lshl_add_u32 v13, v{V_G}, 3, v14")
    A(f"v_lshl_add_u32 v{V_AT}, v13, 7, v9")
    A(f"v_add_u32 v{V_AT+1}, 0x10000, v{V_AT}")
    A(f"v_add_u32 v{V_AT+2}, 0x20000, v{V_AT}")
    if OPT.get("lateset", 1): A.cap = []
    srd(SW2, K_WO, 0x80000)
    common_setup("B")
    for p in range(1, 4): A(f"v_add_u32 v{V_OO+p}, {p*7168}, v{V_OO}")
    A(f"v_bfe_u32 v9, v{V_LANE}, 4, 1")
    A(f"v_bfe_u32 v13, v{V_LANE}, 1, 1")
    A("v_lshl_add_u32 v9, v9, 1, v13")
    A("v_lshlrev_b32 v9, 3, v9")
    A(f"v_bfe_u32 v13, v{V_LANE}, 2, 2")
    A(f"v_lshl_add_u32 v13, v{V_G}, 2, v13")
    A("v_lshl_add_u32 v9, v13, 5, v9")
    slin(ST, WPL, (S_WAVE, 1024))
    A(f"v_add_u32 v{V_WPO}, s{ST}, v9")
    if NS == 32: slin(ST, 0, (S_CG, 512), (S_CH, 256), (S_CHUNK, 2), (S_RH, 1))
    else:
        slin(ST, 0, (S_CG, 256), (S_CH, 128), (S_RH, 32), (S_CHUNK, 1))
    slin(P_P1O, WS_P1, (ST, 640))
    slin(ST, 0, (S_CG, 16), (S_CHUNK, 1))
    slin(P_P2O, WS_P2, (ST, 640))
    slin(P_P1G, WS_P1, (ST, NS * 640))
    for k in range(1, 4): A(f"s_add_u32 s{P_P1G+k}, s{P_P1G}, {8*k*640}")
    slin(ST, 0, (S_CG, 16), (S_CH, 8))
    slin(P_P2G, WS_P2, (ST, 640))
    A(f"s_mov_b32 s{P_MSK}, 0xffffff00")
    slin(P_ACTW, WS_O, (S_CHUNK, 1 << 17), (S_CG, 1 << 14), (S_RH, 1 << 12), (S_CH, 1 << 11))
    A(f"s_add_u32 s{P_ACTW2}, s{P_ACTW}, 8192")
    slin(P_ACTR, WS_O, (S_CHUNK, 1 << 17), (S_MF, 8192), (S_WAVE, 2048))
    A(f"s_lshl_b32 s{S_M0W2}, s{S_WAVE}, 11")
    A(f"s_xor_b32 s{P_ACTR2}, s{P_ACTR}, 8192")
    clears = [f"buffer_store_dwordx4 {vr(T0+16,4)}, v{V_LIN}, s[{SWS}:{SWS+3}], s{P_ACTW+(k>>1)} offen offset:{(k&1)*1024} sc1" for k in range(4)]
    A(f"s_and_b32 s{ST}, s{S_TAG}, 0xff")
    A(f"v_mov_b32 v{V_TAG}, s{ST}")
    A(f"v_mov_b32 v11, s{S_TAG}")
    A(f"v_and_b32 v9, 1, v{V_N}")
    A("v_lshlrev_b32 v9, 4, v9")
    A("v_mov_b32 v13, 0x3f80")
    A("v_lshlrev_b32 v13, v9, v13")
    A(f"v_lshrrev_b32 v9, 1, v{V_N}")
    A(f"v_lshlrev_b32 v14, 3, v{V_G}")
    A("v_sub_u32 v9, v9, v14")
    for q in range(8):
        A(f"v_cmp_eq_u32 vcc, {q}, v9")
        A(f"v_cndmask_b32_e64 v{IDF+q}, 0, v13, vcc")
    A(f"v_and_b32 v9, 15, v{V_LANE}")
    A("v_cmp_gt_u32 vcc, 4, v9")
    A("v_lshlrev_b32 v9, 4, v9")
    A(f"v_lshl_add_u32 v13, v{V_G}, 6, v9")
    A("v_add_u32 v13, 512, v13")
    A(f"v_lshl_add_u32 v9, v{V_G}, 8, v9")
    A(f"v_mov_b32 v14, {OOB:#x}")
    A("v_cndmask_b32 v13, v14, v13, vcc")
    A(f"v_cndmask_b32_e64 v{V_PB0}, v9, v13, s[{S_M16}:{S_M16+1}]")
    A(f"v_cndmask_b32_e64 v{V_PB1}, v13, v9, s[{S_M16}:{S_M16+1}]")
    A(f"v_cndmask_b32_e64 v13, v13, v14, s[{S_M16}:{S_M16+1}]")
    A(f"s_cmp_eq_u32 s{S_WAVE}, 0")
    A(f"s_cselect_b64 vcc, -1, 0")
    A(f"v_cndmask_b32 v{V_P2Z}, v14, v13, vcc")
    A(f"v_and_b32 v9, 7, v{V_LANE}")
    A(f"s_lshl_b32 s{ST}, s{S_WAVE}, 7")
    A(f"v_lshl_add_u32 v9, v9, 4, s{ST}")
    A(f"v_lshrrev_b32 v13, 3, v{V_LANE}")
    A("v_mul_u32_u24 v13, 640, v13")
    A(f"v_add_u32 v{V_G1}, v9, v13")
    A(f"v_cmp_gt_u32 vcc, 8, v{V_LANE}")
    A(f"v_and_b32 v13, {NS-1}, v{V_N}")
    A(f"v_mul_u32_u24 v{V_GZ}, 640, v13")
    if NS == 16:
        slin(ST, 3 * SLOT, (S_WAVE, 4096))
        A(f"v_add_u32 v{V_SW}, s{ST}, v{V_LIN}")
        A(f"v_xor_b32 v{V_SR}, 0x2000, v{V_SW}")
    A(f"v_lshl_add_u32 v{V_GZ}, v{V_G}, 6, v{V_GZ}")
    A(f"v_cndmask_b32 v{V_P2}, v14, v9, vcc")
    A(f"v_bfe_u32 v9, v{V_N}, 2, 1")
    A("v_lshlrev_b32 v9, 3, v9")
    A(f"v_bfe_u32 v13, v{V_N}, 3, 1")
    A("v_lshl_add_u32 v9, v13, 2, v9")
    A(f"v_and_b32 v13, 3, v{V_N}")
    A("v_add_u32 v9, v9, v13")
    A(f"v_cndmask_b32_e64 v9, v9, 32, s[{S_M16}:{S_M16+1}]")
    A("v_lshlrev_b32 v9, 4, v9")
    A(f"v_mul_u32_u24 v13, 1280, v{V_G}")
    A(f"v_add_u32 v{V_G2}, v9, v13")
    A("v_mov_b32 v9, 0x100")
    A(f"v_cndmask_b32_e64 v9, v9, 64, s[{S_M16}:{S_M16+1}]")
    A(f"v_add_u32 v{V_G2B}, v{V_G2}, v9")
    if OPT.get("prew", 1):
        for r in range(4): A(f"v_subrev_u32 v{T0+4+r}, 1, v{V_TAG}")
        A(f"buffer_store_dwordx4 {vr(T0+4,4)}, v{V_P2Z}, s[{SWS}:{SWS+3}], s{P_P2O} offen sc1")
        A(f"buffer_store_dwordx4 {vr(T0+4,4)}, v{V_P2}, s[{SWS}:{SWS+3}], s{P_P2O} offen sc1")
    A("v_mov_b32 v3, 0x3f803f80")
    A(f"v_bfe_u32 v4, v{V_LANE}, 2, 1")
    A("v_mul_u32_u24 v4, 0x8000, v4")
    A("v_lshl_or_b32 v4, v4, 16, v4")
    SET, A.cap = (A.cap or []), None
    LATEV = [x for x in SET if x.startswith("buffer_")]
    SET = [x for x in SET if not x.startswith("buffer_")]
    for _ in range(OPT.get("pset", 0)):
        if f"s{S_TAG}," in SET[0] + ",": break
        A(SET.pop(0))
    while SET and (SET[0].startswith("s_addc") or SET[0].startswith("s_cselect")): A(SET.pop(0))
    stamp(3)
    run(late)
    def trfrag(dst, ldsoff, kind="v"):
        s_, off = ldsoff >> 16, ldsoff & 0xffff
        return [f"ds_read_b64_tr_b16 {vr(dst+2*j,2,kind)}, v{V_AT+s_} offset:{off+j*512}" for j in range(2)]
    def rd(n):
        i, ks = n >> 2, n & 3
        slot, buf = i & 3, n & 1
        s2_, off = slot >> 1, (slot & 1) * SLOT
        x = [f"ds_read_b128 {ar(n*8+m*4,4)}, v{V_AX+4*s2_+ks} offset:{off+m*4096}" for m in range(2)]
        w = [trfrag(V_WF + buf * 8 + part * 4, slot * SLOT + part * 8192 + ks * 2048) for part in range(2)]
        return [x[0]] + w[0] + [x[1]] + w[1]
    def mm(n):
        buf = n & 1
        r = []
        for part, m in ((0, 0), (0, 1), (1, 0), (1, 1)):
            x, w = ar(n * 8 + m * 4, 4), vr(V_WF + buf * 8 + part * 4, 4)
            d = vr((KACC, VACC)[part] + 16 * m, 16)
            r.append(mf(d, w, x, d if n else "0") if part == 0 else mf(d, x, w, d if n else "0"))
        return r
    fill = []
    def on_step(n):
        i, ks = n >> 2, n & 3
        if ks == 0 and OPT.get("g1st") and i: stamp(16 + i)
        if ks == 0:
            for st in SCHED[0].get(i, []): fill.extend(g1_pieces(st))
            if i == 5: fill.extend(q_pieces(0) + LATEV + (q_pieces(1) if QE == 1 else []))
            if i == 6:
                fill.extend((q_pieces(2) + q_pieces(3)) if QE == 1 else o_pieces(0))
                if OPT.get("ptouch", 0):
                    fill.extend([f"buffer_load_dword v254, v{V_G1}, s[{SWS}:{SWS+3}], s{P_P1G+k} offen sc1" for k in range(4)])
                    fill.append(f"buffer_load_dword v254, v{V_GZ}, s[{SWS}:{SWS+3}], s{P_P1G} offen sc1")
                    fill.extend([f"buffer_load_dword v254, v{V_G2}, s[{SWS}:{SWS+3}], s{P_P2G} offen offset:{(hh*4+jp)*640} sc1" for hh in range(2) for jp in range(2)])
                    fill.append(lambda: rdy_load(254, 254))
            elif i == 7:
                fill.extend(o_pieces(0) if QE == 1 else o_pieces(1))
                fill.append(lambda: emit([f"v_xor_b32 v{WPH+r}, v4, v{WPH+r}" for r in range(4)]))
                fill.append(lambda: emit([f"v_xor_b32 v{WPH+r}, v4, v{WPH+r}" for r in range(4, 8)]))
        if n == 17:
            emit([f"ds_read_b64_tr_b16 {vr(WPH+4*hh+2*j,2)}, v{V_WPO} offset:{hh*512+j*256}" for hh in range(2) for j in range(2)])
    A.wait_vm(tok[0])
    A("s_barrier")
    stamp(4)
    gemm_loop(32, rd, mm, lambda n: tok[n >> 2] if (n & 3) == 0 else None, (3, 3, 0, 0), lambda n: g1_gaps(n, (7,) if QE == 1 else ()), fill, on_step, end_barrier=True, extra=SET, nextra=lambda n, g: NX)
    assert not SET
    assert not fill
    stamp(5)
    def feat(acc):
        for m in range(2):
            for u in range(8):
                A(f"v_cvt_pk_bf16_f32 v{acc+16*m+u}, v{acc+16*m+2*u}, v{acc+16*m+2*u+1}")
            for hh in range(2):
                A(mf(vr(PK + (m * 2 + hh) * 16, 16), vr(WPH + 4 * hh, 4), vr(acc + 16 * m + 4 * hh, 4), "0"))
    def softmax_l(x, dst):
        mx, sm = T0, T0 + 2
        l = [f"v_max3_f32 v{mx}, v{x}, v{x+1}, v{x+2}"]
        for u in range(3, 15, 2):
            l.append(f"v_max3_f32 v{mx}, v{mx}, v{x+u}, v{x+u+1}")
        l.append(f"v_max_f32 v{mx}, v{mx}, v{x+15}")
        l.append(f"v_mul_f32 v{mx}, s{S_L2E}, v{mx}")
        for u in range(8):
            l.append(f"v_pk_fma_f32 {vr(x+2*u,2)}, {vr(x+2*u,2)}, s[{S_L2E}:{S_L2E+1}], {vr(mx,2)} op_sel_hi:[1,1,0] neg_lo:[0,0,1] neg_hi:[0,0,1]")
        for u in range(16):
            l.append(f"v_exp_f32 v{x+u}, v{x+u}")
        l.append(f"v_pk_add_f32 {vr(sm,2)}, {vr(x,2)}, {vr(x+2,2)}")
        for u in range(2, 8):
            l.append(f"v_pk_add_f32 {vr(sm,2)}, {vr(sm,2)}, {vr(x+2*u,2)}")
        l.append(f"v_add_f32 v{sm}, v{sm}, v{sm+1}")
        l.append(f"v_rcp_f32 v{sm}, v{sm}")
        for u in range(8):
            l.append(f"v_pk_mul_f32 {vr(x+2*u,2)}, {vr(x+2*u,2)}, {vr(sm,2)} op_sel_hi:[1,0]")
        for u in range(8):
            l.append(f"v_cvt_pk_bf16_f32 v{dst+u}, v{x+2*u}, v{x+2*u+1}")
        return l
    feat(KACC)
    for m in range(2):
        for u in range(8):
            A(f"v_cvt_pk_bf16_f32 v{VACC+16*m+u}, v{VACC+16*m+2*u}, v{VACC+16*m+2*u+1}")
    for m in range(2):
        for u in range(8):
            A(f"v_cndmask_b32_e64 v{VACC+16*m+8+u}, v3, v{VACC+16*m+u}, s[{S_M16}:{S_M16+1}]")
            A(f"v_cndmask_b32_e64 v{VACC+16*m+u}, v{VACC+16*m+u}, v3, s[{S_M16}:{S_M16+1}]")
    nbstamp(0)
    PH = [KACC + 8, KACC + 24]
    ID = T0 + 8
    def tmm(blk):
        d = vr(PK + 16 * blk, 16)
        return [mf(d, vr(PH[blk & 1] + 4 * jp, 4), vr(ID + 4 * jp, 4), d if jp else "0") for jp in range(2)]
    def tcvt(blk):
        t = PK + 16 * blk
        return [f"v_cvt_pk_bf16_f32 v{t+u}, v{t+2*u}, v{t+2*u+1}" for u in range(8)]
    def kvmm(blk):
        m, hh = blk >> 1, blk & 1
        d = vr(KV + 16 * hh, 16)
        return [mf(d, vr(PK + 16 * blk + 4 * mm_, 4), vr(VACC + 16 * m + 8 * hh + 4 * mm_, 4), d if (m or mm_) else "0") for mm_ in range(2)]
    for blk in range(4):
        l = softmax_l(PK + blk * 16, PH[blk & 1])
        if blk:
            t, kv = tmm(blk - 1), kvmm(blk - 1)
            qp = q_pieces(blk) if not QE else [None] * 4
            l = l[:17] + [t[0], qp[0]] + l[17:21] + [t[1], qp[1]] + l[21:33] + tcvt(blk - 1) + l[33:50] + [kv[0], qp[2]] + l[50:58] + [kv[1], qp[3]]
        run([x for x in l if x is not None])
        nbstamp(1 + blk)
    TS = 4 if OPT.get("tag1", 1) else 1
    def tagit(r, n):
        for e in range(0, n, TS):
            A(f"v_and_or_b32 v{r+e}, v{r+e}, s{P_MSK}, v{V_TAG}")
    def pub(hh, oc):
        A(f"s_add_u32 s{ST+3}, s{P_P1O}, {(hh*4+oc)*32*640}")
        A(f"buffer_store_dwordx4 {vr(KV+16*hh+4*oc,4)}, v{V_PB0+hh}, s[{SWS}:{SWS+3}], s{ST+3} offen sc1")
    if NS == 32:
        emit(tmm(3))
        tagit(KV, 16)
        pub(0, 0); pub(0, 1)
        emit(tcvt(3))
        emit(kvmm(3))
        nbstamp(5)
        pub(0, 2); pub(0, 3)
        tagit(KV + 16, 16)
        for oc in range(4): pub(1, oc)
    else:
        RB = PK
        def tail(rh):
            keep, send = 8 * rh, 8 - 8 * rh
            emit(tmm(3))
            for u in range(2): A(f"ds_write_b128 v{V_SW}, {vr(KV+send+4*u,4)} offset:{u*1024}")
            emit(tcvt(3))
            emit(kvmm(3))
            for u in range(2): A(f"ds_write_b128 v{V_SW}, {vr(KV+16+send+4*u,4)} offset:{(2+u)*1024}")
            A("s_waitcnt lgkmcnt(0)")
            A("s_barrier")
            for u in range(4): A(f"ds_read_b128 {vr(RB+4*u,4)}, v{V_SR} offset:{u*1024}")
            for hh in range(2):
                for jj in range(2):
                    r = KV + 16 * hh + keep + 4 * jj
                    A(f"s_add_u32 s{ST+3}, s{P_P1O}, {(hh*4+jj)*16*640}")
                    A(f"s_waitcnt lgkmcnt({3-2*hh-jj})")
                    for u in range(2):
                        A(f"v_pk_add_f32 {vr(r+2*u,2)}, {vr(r+2*u,2)}, {vr(RB+8*hh+4*jj+2*u,2)}")
                    tagit(r, 4)
                    A(f"buffer_store_dwordx4 {vr(r,4)}, v{V_PB0+hh}, s[{SWS}:{SWS+3}], s{ST+3} offen sc1")
        l1, l2 = lab("rh1"), lab("rhj")
        A(f"s_cmp_lg_u32 s{S_RH}, 0")
        A(f"s_cbranch_scc1 {l1}")
        st_ = (A.vm, A.lg, list(A.hist))
        tail(0)
        A(f"s_branch {l2}")
        A.label(l1)
        A.vm, A.lg, A.hist = st_[0], st_[1], list(st_[2])
        tail(1)
        A.label(l2)
    QACC = KACC
    def qaddr(n):
        i, ks = n >> 2, n & 3
        return QSLOT[i >> 2] * SLOT + (i & 3) * 8192 + ks * 2048
    def rdq(n):
        return trfrag(V_WF + (n & 1) * 8, qaddr(2 * n)) + trfrag(V_WF + (n & 1) * 8 + 4, qaddr(2 * n + 1))
    def mmq(n):
        r = []
        for h in range(2):
            for m in range(2):
                d = vr(QACC + 16 * m, 16)
                r.append(mf(d, vr(V_WF + (n & 1) * 8 + 4 * h, 4), ar((2 * n + h) * 8 + m * 4, 4), d if (n or h) else "0"))
        if n == 15: r = [r[0], r[2], r[1], r[3]]
        return r
    stamp(6)
    nbflush()
    GD = VACC
    GZ = GD + 16
    g1l = [f"buffer_load_dwordx4 {vr(GD+4*k,4)}, v{V_G1}, s[{SWS}:{SWS+3}], s{P_P1G+k} offen sc1" for k in range(NS // 8)]
    g1l.append(f"buffer_load_dwordx4 {vr(GZ,4)}, v{V_GZ}, s[{SWS}:{SWS+3}], s{P_P1G} offen offset:512 sc1")
    S_D1, S_RET = P0 + 11, ST + 6
    A(f"s_mov_b32 s{S_D1}, 0")
    def try1a(block=False):
        skip = lab("sk")
        if block:
            A(f"s_cmp_lg_u32 s{S_D1}, 0")
        else:
            A(f"s_getreg_b32 s{ST+5}, hwreg(HW_REG_IB_STS, 0, 4)")
            A(f"s_or_b32 s{ST+5}, s{ST+5}, s{S_D1}")
        A(f"s_cbranch_scc1 {skip}")
        A(f"s_call_b64 s[{S_RET}:{S_RET+1}], L_try1a")
        A.label(skip)
    def sub_try1a():
        A.label("L_try1a")
        A.hist = []
        A("s_waitcnt vmcnt(0)")
        A(f"v_xor_b32 v13, v{GD}, v{V_TAG}")
        for s in [x for x in range(TS, 20, TS) if x < NS // 2 or x >= 16]:
            A(f"v_bitop3_b32 v13, v{GD+s}, v{V_TAG}, v13 bitop3:0xbe")
        A("v_and_b32 v13, 0xff, v13")
        A(f"v_cmp_ne_u32 s[{S_FAIL}:{S_FAIL+1}], 0, v13")
        A(f"s_cmp_eq_u64 s[{S_FAIL}:{S_FAIL+1}], 0")
        A("s_cbranch_scc1 L_try1a_ok")
        emit(g1l)
        A(f"s_setpc_b64 s[{S_RET}:{S_RET+1}]")
        A.label("L_try1a_ok")
        DPP = "row_mask:0xf bank_mask:0xf"
        A(f"v_permlane16_swap_b32 v{GZ}, v{GZ+2}")
        A(f"v_permlane16_swap_b32 v{GZ+1}, v{GZ+3}")
        if NS == 32:
            for u in range(0, 8, 2):
                A(f"v_pk_add_f32 {vr(GD+u,2)}, {vr(GD+u,2)}, {vr(GD+8+u,2)}")
            A(f"v_pk_add_f32 {vr(GZ,2)}, {vr(GZ,2)}, {vr(GZ+2,2)}")
        for u in range(0, 4, 2):
            A(f"v_pk_add_f32 {vr(GD+u,2)}, {vr(GD+u,2)}, {vr(GD+4+u,2)}")
        def zror(k):
            for e in range(2): A(f"v_add_f32_dpp v{GZ+e}, v{GZ+e}, v{GZ+e} row_ror:{k} {DPP}")
        zror(1)
        A(f"v_permlane32_swap_b32 v{GD}, v{GD+1}")
        A(f"v_permlane32_swap_b32 v{GD+2}, v{GD+3}")
        zror(2)
        A(f"v_add_f32 v{GD}, v{GD}, v{GD+1}")
        A(f"v_add_f32 v{GD+2}, v{GD+2}, v{GD+3}")
        zror(4)
        A(f"v_permlane16_swap_b32 v{GD}, v{GD+2}")
        A(f"v_add_f32 v{GD}, v{GD}, v{GD+2}")
        zror(8)
        A(f"v_add_f32_dpp v{GD}, v{GD}, v{GD} row_ror:8 {DPP}")
        for e in range(2): A(f"v_and_or_b32 v{GZ+e}, v{GZ+e}, s{P_MSK}, v{V_TAG}")
        A(f"v_and_or_b32 v{GD}, v{GD}, s{P_MSK}, v{V_TAG}")
        for e in range(2): A(f"v_mov_b32 v{GZ+2+e}, v{GZ+e}")
        A(f"v_mov_b32 v{GD+1}, v{GD}")
        A(f"v_permlane16_swap_b32 v{GZ}, v{GZ+2}")
        A(f"v_permlane16_swap_b32 v{GZ+1}, v{GZ+3}")
        A(f"v_permlane32_swap_b32 v{GD}, v{GD+1}")
        A(f"buffer_store_dwordx4 {vr(GZ,4)}, v{V_P2Z}, s[{SWS}:{SWS+3}], s{P_P2O} offen sc1")
        A(f"v_mov_b32 v{GD+2}, v{GD}")
        A(f"v_mov_b32 v{GD+3}, v{GD+1}")
        A(f"v_permlane16_swap_b32 v{GD}, v{GD+2}")
        A(f"v_permlane16_swap_b32 v{GD+1}, v{GD+3}")
        A(f"buffer_store_dwordx4 {vr(GD,4)}, v{V_P2}, s[{SWS}:{SWS+3}], s{P_P2O} offen sc1")
        stamp(8)
        A(f"s_mov_b32 s{S_D1}, 1")
        A(f"s_setpc_b64 s[{S_RET}:{S_RET+1}]")
    DEFER.append(sub_try1a)
    fill = []
    G1AT = OPT.get('g1at', 6)
    def on_stepq(n):
        if n == 0: fill.extend((o_pieces(1) if QE == 1 else (q_pieces(2) + q_pieces(3) if QE == 2 else [])) + o_pieces(2) + o_pieces(3) + [lambda: (rdy_load(14), tok.__setitem__('wo', A.vm))])
        if n == G1AT: fill.extend(g1l + [None])
        if n >= G1AT + 4: fill.extend([None, try1a])
    if QE == 2:
        run(q_pieces(1))
        A.wait_vm(tok[("q", 0)])
        qb = lambda n: tok[("q", n >> 2)] if n in (4, 8, 12) else None
    else:
        A.wait_vm(tok[("q", 3)])
        qb = lambda n: None
    A("s_barrier")
    stamp(26)
    gemm_loop(16, rdq, mmq, qb, (2, 2, 0, 0), lambda n: (0, 1, 2, 3) if (QE == 2 and n < 2) else (2, 3), fill, on_stepq)
    assert not fill
    stamp(7)
    feat(QACC)
    def wait1a():
        top, done = lab("w1a"), lab("w1d")
        A(f"s_mov_b32 s{S_CNT}, {SPIN_LIMIT}")
        A.label(top)
        try1a(block=True)
        A(f"s_cmp_lg_u32 s{S_D1}, 0")
        A(f"s_cbranch_scc1 {done}")
        A(f"s_sub_u32 s{S_CNT}, s{S_CNT}, 1")
        A(f"s_cbranch_scc0 {top}")
        A.label(done)
    B1 = OPT.get("blk1a", 0)
    if B1 == 0: wait1a()
    S_D2 = ST + 4
    A(f"s_mov_b32 s{S_D2}, 0")
    PHQ = KV
    FD = PK
    def loads2(rdy=True):
        for hh in range(2):
            for jp in range(2):
                r = FD + (hh * 2 + jp) * 8
                off = (hh * 4 + jp) * 640
                A(f"buffer_load_dwordx4 {vr(r,4)}, v{V_G2}, s[{SWS}:{SWS+3}], s{P_P2G} offen offset:{off} sc1")
                A(f"buffer_load_dwordx4 {vr(r+4,4)}, v{V_G2B}, s[{SWS}:{SWS+3}], s{P_P2G} offen offset:{off} sc1")
        if rdy: rdy_load(14)
    def check2():
        A(f"v_xor_b32 v13, v{FD}, v{V_TAG}")
        for s in range(1, 32):
            A(f"v_bitop3_b32 v13, v{FD+s}, v{V_TAG}, v13 bitop3:0xbe")
        rdy_check(9, 14)
        A("v_and_b32 v13, 0xff, v13")
        A("v_or_b32 v13, v13, v9")
        A(f"v_cmp_ne_u32 s[{S_FAIL}:{S_FAIL+1}], 0, v13")
    for blk in range(4):
        if blk == OPT.get("l2at", 3): loads2(False)
        emit(softmax_l(PK + blk * 16, PHQ + 8 * blk))
        if blk + 1 == B1: wait1a()
    A("s_barrier")
    stamp(9)
    KVF = VACC + 16
    ODR = [KACC, KACC + 16, PK + 32, PK + 48]
    A(f"s_lshl_b32 s{ST+5}, s{S_RH}, 12")
    A(f"v_add_u32 v{V_AX}, s{ST+5}, v{V_LIN}")
    A(f"v_add_u32 v{V_AX+1}, 0x10000, v{V_AX}")
    A(f"v_add_u32 v{V_AX+2}, 0x20000, v{V_AX}")
    slin(ST + 5, 3 * SLOT, (S_MF, 8192), (S_M0W2, 1))
    A(f"v_add_u32 v{V_AX+3}, s{ST+5}, v{V_LIN}")
    A(f"v_xor_b32 v{V_AX+4}, 0x2000, v{V_AX+3}")
    wor = []
    for n in range(32):
        wor += trfrag(n * 4, OLDS[n >> 2] + (n & 3) * 2048, "a")
    NW = OPT.get('nw', 8)
    emit(wor[:NW])
    def check2m():
        chk = [f"v_xor_b32 v13, v{FD}, v{V_TAG}"] + [f"v_bitop3_b32 v13, v{FD+s}, v{V_TAG}, v13 bitop3:0xbe" for s in range(TS, 32, TS)]
        for hh in range(2):
            for q in (2 * hh, 2 * hh + 1):
                for u in range(4):
                    A(f"v_cvt_pk_bf16_f32 v{KVF+4*q+u}, v{FD+8*q+2*u}, v{FD+8*q+2*u+1}")
            for m in range(2):
                blk = 2 * m + hh
                d = vr(ODR[blk], 16)
                for jp in range(2):
                    A(mf(d, vr(KVF + (hh * 2 + jp) * 4, 4), vr(PHQ + 8 * blk + 4 * jp, 4), d if jp else "0"))
                    k = 3 if hh == 0 else 5
                    emit(chk[:k]); chk = chk[k:]
        assert not chk
        rdy_check(9, 14)
        A("v_and_b32 v13, 0xff, v13")
        A("v_or_b32 v13, v13, v9")
        A(f"v_cmp_ne_u32 s[{S_FAIL}:{S_FAIL+1}], 0, v13")
    poll_pre(loads2, check2m)
    stamp(10)
    xcc_decide(14)
    ost = []
    for blk in (0, 2, 1, 3):
        m, hh = blk >> 1, blk & 1
        o = ODR[blk]
        A(f"v_add_f32 v{o+8}, 0x358637bd, v{o+8}")
        A(f"v_rcp_f32 v{o+8}, v{o+8}")
        for u in range(4):
            A(f"v_pk_mul_f32 {vr(o+2*u,2)}, {vr(o+2*u,2)}, {vr(o+8,2)} op_sel_hi:[1,0]")
        for u in range(4):
            A(f"v_cvt_pk_bf16_f32 v{o+12+u}, v{o+2*u}, v{o+2*u+1}")
        A(f"buffer_store_dwordx4 {vr(o+12,4)}, v{V_LIN}, s[{SWS}:{SWS+3}], s{P_ACTW+m} offen offset:{hh*1024} sc1")
        A(f"ds_write_b128 v{V_AX+3+m}, {vr(o+12,4)} offset:{hh*1024}")
    tok_o = A.vm
    stamp(11)
    ELDS = [(3, 4, 0, 1)[e >> 2] * SLOT + (e & 3) * 8192 for e in range(16)]
    def of_pieces(e):
        pos, ph = SEQ[e]
        def p0():
            A(f"s_add_u32 m0, s{S_M0W2}, {ELDS[e]:#x}")
            A(f"s_lshl_b32 s{ST+8}, s{KAP[pos]}, 14")
            A(f"s_add_u32 s{ST+8}, s{ST+8}, s{P_ACTR+ph}")
            A(f"buffer_load_dwordx4 v{V_LIN}, s[{SWS}:{SWS+3}], s{ST+8} offen {PLF}lds")
        def p1():
            A(f"buffer_load_dwordx4 v{V_LIN}, s[{SWS}:{SWS+3}], s{ST+8} offen offset:1024 {PLF}lds")
            tok[("of", e)] = A.vm
        return [p0, p1]
    OF = PK
    OACC = VACC
    def rd4(n):
        return [f"ds_read_b128 {vr(OF+(n&1)*16+h*4,4)}, v{V_AX+(ELDS[n]>>16)} offset:{(ELDS[n]&0xffff)+h*1024}" for h in range(4)]
    def mm4(n):
        pos, ph = SEQ[n]
        d = vr(OACC + 16 * ph, 16)
        return [mf(d, vr(OF + (n & 1) * 16 + h * 4, 4), ar((4 * pos + h) * 4, 4), d if (pos or h) else "0") for h in range(4)]
    A("s_waitcnt lgkmcnt(0)")
    A("s_barrier")
    wf = wor[NW:]
    def two():
        for _ in range(2): A(wf.pop(0))
    gemm_loop(2, rd4, mm4, lambda n: None, (2, 2, 0, 0), (2, 3), [two] * 4)
    emit(wf[:16]); wf = wf[16:]
    A.wait_vm(tok_o)
    flag_store()
    emit(wf)
    flag_poll()
    stamp(12)
    for e in range(2, 7): run(of_pieces(e))
    fill = []
    def on_step4(n):
        if OPT.get("g2st") and n in (4, 7, 10, 13): stamp(16 + n // 3)
        if n == 2:
            for e in range(7, 16): fill.extend(of_pieces(e))
        if n == 10: fill.extend(out_stores(OACC, 0))
    A.wait_both(tok[("of", 3)], A.lg)
    A("s_barrier")
    stamp(13)
    BND = {4: 6, 7: 9, 10: 12, 13: 15}
    gemm_loop(16, rd4, mm4, lambda n: tok[("of", BND[n])] if n in BND else None, (2, 2, 0, 0),
              lambda n: (1, 2, 3) if n >= 10 else (0, 1, 2, 3), fill, on_step4, start=2)
    assert not fill
    stamp(14)
    run(out_stores(OACC, 1))
    tag_update("B")
    stamp(15)
    finish()

prologue()
vm0, lg0 = A.vm, A.lg
role_A()
for f in DEFER: f()
DEFER.clear()
A.label("L_roleB")
ROLE[0] = "B"
A.vm, A.lg = vm0, lg0
A.hist = []
role_B()
for f in DEFER: f()
A.label("L_end")
A("s_endpgm")

iB = A.out.index("L_roleB:")
iE = A.out.index("L_end:")
if OPT.get("bfirst", 1):
    lines = A.out[:CUT["P"]] + A.out[iB:CUT["B"]] + A.out[CUT["P"]:CUT["A"]] + A.out[CUT["B"]:iE] + A.out[CUT["A"]:iB] + A.out[iE:]
else:
    lines = A.out[:CUT["A"]] + A.out[iB:CUT["B"]] + A.out[CUT["A"]:iB] + A.out[CUT["B"]:]
if OPT["align"]:
    lines, nw, nn = align(lines, min_nop=OPT.get('minnop', 12))
    print("align: widened", nw, "nops", nn)
HEAD = open("cdna_kernels/" + NAME + ".s.ref").read().split("; Override launch geometry")[0]
src = HEAD + f"""; @launch grid=(256,1,1) block=(256,1,1) lds=163840
.amdgcn_target "amdgcn-amd-amdhsa--gfx950"
.text
.globl {NAME}_kernel
.p2align 8
.type {NAME}_kernel,@function
{NAME}_kernel:
""" + "\n".join(lines) + f"""
.fill 8192, 4, 0xBF810000
.section .rodata,"a"
.p2align 6
.amdhsa_kernel {NAME}_kernel
  .amdhsa_next_free_vgpr 512
  .amdhsa_next_free_sgpr 102
  .amdhsa_accum_offset 256
  .amdhsa_group_segment_fixed_size 0
  .amdhsa_kernarg_size 128
  .amdhsa_user_sgpr_count 2
  .amdhsa_user_sgpr_kernarg_segment_ptr 1
  .amdhsa_system_sgpr_workgroup_id_x 1
.end_amdhsa_kernel
"""
open(sys.argv[1], "w").write(src)
print("hazard nops:", A.nnop, "lines:", len(lines))
```

```python
import sys
from dsl import Asm, vr, ar, sr
from align import align

NAME = "concat_heads__ssm_conv_s5__linear_kernel_hedgehog__prompt"
OPT = dict(stamps=False, rotmode=2, align=1, xnt=0, hwait=8, owait=4, hand=0)
for a_ in sys.argv[2:]:
    k_, _, v_ = a_.partition("=")
    OPT[k_] = int(v_) if v_ else True

WS_TAGA, WS_TAGB = 0x0, 0x80
WS_XCC = 0x1000
WS_FLAG = 0x2000
WS_SA = 0x10000
WS_P1 = 0x100000
WS_P2 = 0x3C0000
WS_H = 0x400000
WS_O = 0x800000
WS_STAMP = 0xA00000
OOB = 0x40000000
SPIN_LIMIT = 1 << 14
LOG2E = 0x3FB8AA3B
INV2PI = 0x3E22F983

S_WAVE, S_CHUNK, S_CG, S_ROT, S_TAG = 3, 4, 5, 6, 7
SX, SW, SW2, SWS, SOUT = 8, 12, 16, 20, 24
S_RH, S_CH, S_SLOT, S_GRP = 28, 29, 30, 31
ST = 32
S_M0W, S_M0W2 = 48, 49
S_MG = 50
S_MRH = 52
S_L2E = 54
S_CNT = 56
S_FAIL = 58
S_M16 = 60
S_SM0, S_RS = 62, 63
S_XW, S_SLOW, P_FLW = 91, 92, 93
S_ROT1 = 47
KAP = [62, 63, 44, 45, 86, 87, 94, 95]
SEQ = [(0, 0), (0, 1)] + [(j, 0) for j in range(1, 8)] + [(j, 1) for j in range(1, 8)]
HAND = OPT['hand']
KA = 64
K_AX, K_LRE, K_LIM, K_BRE, K_BIM, K_CRE, K_CIM, K_LDT, K_DSK, K_BX, K_WQKV, K_WPHI, K_WO, K_OUT, K_DBG, K_WS = [KA + 2 * i for i in range(16)]
P_FLAGB, P_FLAGO, P_XCCB, P_TAGSEL, P_OUT, P_OUT2, P_ACTR, P_ACTR2 = range(64, 72)
P_ACTW, P_ACTW2, S_MF = 88, 89, 90
P0 = 72
S_STAMP = 96
V_LANE, V_OUTO, V_N, V_G, V_LIN, V_TAG, V_L0, V_CHK, V_XPO = 1, 2, 5, 6, 7, 8, 10, 12, 15
V_OX, V_OW = 16, 20
SLOT = 32768

A = Asm()
CUT = {}
nlab = [0]

def srd(dst, ptr, nbytes):
    A(f"s_mov_b32 s{dst}, s{ptr}")
    A(f"s_mov_b32 s{dst+1}, s{ptr+1}")
    A(f"s_mov_b32 s{dst+2}, {nbytes:#x}")
    A(f"s_mov_b32 s{dst+3}, 0x20000")

def slin(dst, const, *terms):
    first = True
    for reg, mul in terms:
        t = dst if first else ST + 14
        if mul == 1:
            if first: A(f"s_mov_b32 s{dst}, s{reg}")
            else: t = reg
        elif mul & (mul - 1) == 0: A(f"s_lshl_b32 s{t}, s{reg}, {mul.bit_length()-1}")
        else: A(f"s_mul_i32 s{t}, s{reg}, {mul}")
        if not first: A(f"s_add_u32 s{dst}, s{dst}, s{t}")
        first = False
    if const: A(f"s_add_u32 s{dst}, s{dst}, {const:#x}")

ROLE = ["A"]
def stamp(idx):
    if OPT.get("probe") == idx + (0 if ROLE[0] == "A" else 100):
        if OPT.get("cyc"):
            A("s_memtime s[96:97]")
            A("s_waitcnt lgkmcnt(0)")
            A("s_sub_u32 s99, s96, s98")
            A("s_lshr_b32 s99, s99, 4")
        else:
            A("s_memrealtime s[96:97]")
            A("s_waitcnt lgkmcnt(0)")
            A("s_sub_u32 s99, s96, s100")
    if not OPT["stamps"]: return
    A(f"s_memtime s[{S_STAMP}:{S_STAMP+1}]")
    A("s_waitcnt lgkmcnt(0)")
    A(f"s_sub_u32 s{S_STAMP}, s{S_STAMP}, s98")
    A(f"v_writelane_b32 v255, s{S_STAMP}, {idx}")
    if OPT.get("rt") and idx <= 16:
        A(f"s_memrealtime s[{S_STAMP}:{S_STAMP+1}]")
        A("s_waitcnt lgkmcnt(0)")
        A(f"s_sub_u32 s{S_STAMP}, s{S_STAMP}, s100")
        A(f"v_writelane_b32 v255, s{S_STAMP}, {idx+44}")

NB = [32, 36, 38, 42, 58, 56]
nbuse = []
def nbstamp(k):
    if OPT.get("nb") and OPT["stamps"]:
        A(f"s_memtime s[{NB[k]}:{NB[k]+1}]"); nbuse.append(k)
def nbflush():
    if OPT.get("nb") and OPT["stamps"]:
        A("s_waitcnt lgkmcnt(0)")
        for k in nbuse:
            A(f"s_sub_u32 s{NB[k]}, s{NB[k]}, s98")
            A(f"v_writelane_b32 v255, s{NB[k]}, {17+k}")
        nbuse.clear()

def lab(n):
    nlab[0] += 1
    return f"L_{n}_{nlab[0]}"

def finish():
    if OPT.get("probe") and (OPT["probe"] >= 100) == (ROLE[0] == "B"):
        if OPT["probe"] % 100 == 16:
            A("s_waitcnt vmcnt(0)")
            stamp(16)
        l = lab("pr")
        A("s_lshl_b32 s99, s99, 1")
        A("s_add_u32 s99, s99, 2500")
        A.label(l)
        A("s_memrealtime s[96:97]")
        A("s_waitcnt lgkmcnt(0)")
        A("s_sub_u32 s96, s96, s100")
        A("s_cmp_lt_u32 s96, s99")
        A(f"s_cbranch_scc1 {l}")
    if OPT.get("fixrt"):
        l = lab("rt")
        A.label(l)
        A("s_memrealtime s[96:97]")
        A("s_waitcnt lgkmcnt(0)")
        A("s_sub_u32 s96, s96, s100")
        A(f"s_cmp_lt_u32 s96, {OPT['fixrt']}")
        A(f"s_cbranch_scc1 {l}")
    if OPT["stamps"]:
        A("s_waitcnt vmcnt(0)")
        stamp(16)
        A("v_writelane_b32 v255, s99, 30")
        A("s_memrealtime s[96:97]")
        A("v_writelane_b32 v255, s100, 40")
        A("s_waitcnt lgkmcnt(0)")
        A("v_writelane_b32 v255, s96, 41")
        slin(ST, WS_STAMP, (2, 1024), (S_WAVE, 256))
        A(f"v_lshlrev_b32 v254, 2, v{V_LANE}")
        A(f"buffer_store_dword v255, v254, s[{SWS}:{SWS+3}], s{ST} offen")
    A("s_endpgm")

def mf(d, a, b, c):
    return f"v_mfma_f32_32x32x16_bf16 {d}, {a}, {b}, {c}"

def poll(loads, check):
    top, done = lab("poll"), lab("ok")
    A(f"s_mov_b32 s{S_CNT}, {SPIN_LIMIT}")
    A.label(top)
    loads()
    A("s_waitcnt vmcnt(0)")
    check()
    A(f"s_cmp_eq_u64 s[{S_FAIL}:{S_FAIL+1}], 0")
    A(f"s_cbranch_scc1 {done}")
    A(f"s_sub_u32 s{S_CNT}, s{S_CNT}, 1")
    A(f"s_cbranch_scc0 {top}")
    A.label(done)

def poll_pre(loads, check):
    top, done = lab("poll"), lab("ok")
    A(f"s_mov_b32 s{S_CNT}, {SPIN_LIMIT}")
    A.label(top)
    A("s_waitcnt vmcnt(0)")
    check()
    A(f"s_cmp_eq_u64 s[{S_FAIL}:{S_FAIL+1}], 0")
    A(f"s_cbranch_scc1 {done}")
    loads()
    A(f"s_sub_u32 s{S_CNT}, s{S_CNT}, 1")
    A(f"s_cbranch_scc0 {top}")
    A("s_waitcnt vmcnt(0)")
    A.label(done)

def cfma_l(d, a, b, c, t):
    return [f"v_pk_fma_f32 {vr(t,2)}, {vr(a,2)}, {vr(b,2)}, {vr(c,2)} op_sel:[1,1,0] op_sel_hi:[1,0,1] neg_lo:[1,0,0]",
            f"v_pk_fma_f32 {vr(d,2)}, {vr(a,2)}, {vr(b,2)}, {vr(t,2)} op_sel:[0,0,0] op_sel_hi:[0,1,1]"]
def cmul_l(d, a, b, t):
    return [f"v_pk_mul_f32 {vr(t,2)}, {vr(a,2)}, {vr(b,2)} op_sel:[1,1] op_sel_hi:[1,0] neg_lo:[1,0]",
            f"v_pk_fma_f32 {vr(d,2)}, {vr(a,2)}, {vr(b,2)}, {vr(t,2)} op_sel:[0,0,0] op_sel_hi:[0,1,1]"]
def emit(l):
    for x in l: A(x)
def cfma(*a): emit(cfma_l(*a))
def cmul(*a): emit(cmul_l(*a))

def weave(main, fillers, every, start=0):
    for i, x in enumerate(main):
        A(x)
        if i >= start and (i - start) % every == every - 1 and fillers:
            f = fillers.pop(0)
            if isinstance(f, str): A(f)
            elif f: f()

def gemm_loop(nsteps, reads, mfmas, boundary, split, fill_gaps, fillers, on_step=None, end_barrier=False, verify=None, start=0, extra=None, nextra=None):
    for r in reads(start): A(r)
    for n in range(start, nsteps):
        if on_step: on_step(n)
        last = n == nsteps - 1
        b = None if last else boundary(n + 1)
        b2 = boundary(n + 2) if (verify and n + 2 < nsteps) else None
        if b2 is not None: A.wait_both(b2, A.lg)
        elif b is not None and not verify: A.wait_both(b, A.lg)
        else: A("s_waitcnt lgkmcnt(0)")
        if b is not None and verify: verify(n + 1)[1]()
        rs = [] if last else list(reads(n + 1))
        ms = mfmas(n)
        for g in range(4):
            A(ms[g])
            if g == 0 and b2 is not None: verify(n + 2)[0]()
            if g == 0 and b is not None and verify: verify(n + 1)[2]()
            if g == 0 and (b is not None or (last and end_barrier)): A("s_barrier")
            for _ in range(split[g]):
                if rs: A(rs.pop(0))
            if g in (fill_gaps(n) if callable(fill_gaps) else fill_gaps) and fillers:
                f = fillers.pop(0)
                if isinstance(f, str): A(f)
                elif f: f()
            if extra:
                k = nextra(n, g) if not extra[0].startswith('ds_') else (2 if g == 2 else 0)
                while extra and k > 0:
                    if extra[0] == "@hold":
                        if n < 3: break
                        extra.pop(0); continue
                    x = extra.pop(0); A(x); k -= 1
                    if x.startswith("s_cmp") and k == 0: k = 1
        assert not rs

def dma_pieces(voff, srdreg, soff, ldsoff, pre=None, post=None, flags="", m0reg=S_M0W, same_v=False):
    def mk(p):
        def f():
            if p == 0:
                A(f"s_add_u32 m0, s{m0reg}, {ldsoff:#x}")
                if pre: pre()
            A(f"buffer_load_dwordx4 v{voff if same_v else voff+p}, s[{srdreg}:{srdreg+3}], s{soff} offen offset:{p*1024} {flags}lds")
            if p == 3 and post: post()
        return f
    return [mk(p) for p in range(4)]

def run(fs):
    for f in fs:
        if isinstance(f, str): A(f)
        else: f()

def rot_soff(dst, add, shift=None, mul=None, extra_sreg=None, plus=None, rot=S_ROT):
    A(f"s_add_u32 s{dst}, s{rot}, {add}")
    if extra_sreg is not None: A(f"s_add_u32 s{dst}, s{dst}, s{extra_sreg}")
    A(f"s_and_b32 s{dst}, s{dst}, 7")
    if shift is not None: A(f"s_lshl_b32 s{dst}, s{dst}, {shift}")
    else: A(f"s_mul_i32 s{dst}, s{dst}, {mul}")
    if plus is not None: A(f"s_add_u32 s{dst}, s{dst}, s{plus}")

def prologue():
    if OPT["stamps"] or OPT.get("cyc"): A("s_memtime s[98:99]")
    if OPT.get("fixrt") or OPT.get("probe") or OPT["stamps"]: A("s_memrealtime s[100:101]")
    A("s_cmp_ge_u32 s2, 256")
    A("s_cbranch_scc1 L_end")
    A(f"s_load_dwordx16 s[{KA}:{KA+15}], s[0:1], 0")
    A(f"s_load_dwordx16 s[{KA+16}:{KA+31}], s[0:1], 64")
    A("v_and_b32 v1, 63, v0")
    A("v_lshrrev_b32 v2, 6, v0")
    A(f"s_lshr_b32 s{S_SLOT}, s2, 3")
    A(f"v_readfirstlane_b32 s{S_WAVE}, v2")
    A(f"s_and_b32 s{ST}, s2, 3")
    A(f"s_lshl_b32 s{S_CHUNK}, s{ST}, 2")
    A(f"s_lshr_b32 s{ST+1}, s{S_SLOT}, 3")
    A(f"s_add_u32 s{S_CHUNK}, s{S_CHUNK}, s{ST+1}")
    A(f"s_and_b32 s{S_CG}, s{S_SLOT}, 7")
    A(f"s_lshl_b32 s{S_ROT}, s{ST+1}, 1")
    A(f"s_add_u32 s{S_ROT}, s{S_ROT}, s{S_CG}")
    A(f"s_and_b32 s{S_ROT}, s{S_ROT}, 7")
    rm = OPT["rotmode"]
    if rm == 8: A(f"s_mov_b32 s{S_ROT1}, s{S_ROT}")
    elif rm == 1: A(f"s_mov_b32 s{S_ROT1}, 0")
    elif rm == 3:
        A(f"s_add_u32 s{S_ROT1}, s{S_CG}, s{ST+1}")
        A(f"s_and_b32 s{S_ROT1}, s{S_ROT1}, 3")
        A(f"s_mul_i32 s{S_ROT1}, s{S_ROT1}, 3")
    else:
        A(f"s_add_u32 s{S_ROT1}, s{S_CG}, s{ST+1}")
        A(f"s_and_b32 s{S_ROT1}, s{S_ROT1}, {rm-1}")
        A(f"s_lshl_b32 s{S_ROT1}, s{S_ROT1}, {2 if rm == 2 else 1}")
    A(f"s_lshr_b32 s{S_RH}, s{S_WAVE}, 1")
    A(f"s_and_b32 s{S_CH}, s{S_WAVE}, 1")
    A(f"s_lshl_b32 s{S_M0W}, s{S_WAVE}, 12")
    slin(ST + 2, 0, (S_SLOT, 512), (S_WAVE, 128))
    A("v_and_b32 v7, 1, v0")
    A(f"v_lshl_add_u32 v7, v7, 14, s{ST+2}")
    A("v_lshrrev_b32 v3, 3, v1")
    A("v_and_b32 v4, 7, v1")
    A(f"v_and_b32 v{V_N}, 31, v1")
    A(f"v_lshrrev_b32 v{V_G}, 5, v1")
    if OPT["stamps"]: A("v_mov_b32 v255, 0")
    A("s_bitcmp0_b32 s2, 2" if OPT.get("swap", 1) else "s_bitcmp1_b32 s2, 2")
    if OPT.get("bfirst", 1):
        A("s_cbranch_scc0 L_roleA")
        CUT["P"] = len(A.out)
        A.label("L_roleA")
    else:
        A("s_cbranch_scc1 L_roleB")

WSO = OPT.get("wso", 0) << 20
def ws_shift():
    if WSO:
        A(f"s_add_u32 s{K_WS}, s{K_WS}, {WSO:#x}")
        A(f"s_addc_u32 s{K_WS+1}, s{K_WS+1}, 0")

def cut(role):
    A(f"s_branch L_main{role}")
    CUT[role] = len(A.out)
    A.label(f"L_main{role}")

def code_prefetch():
    A(f"s_getpc_b64 s[{ST+4}:{ST+5}]")
    A.label(f"L_pc{ROLE[0]}")
    A(f"s_add_u32 s{ST+4}, s{ST+4}, L_main{ROLE[0]}-L_pc{ROLE[0]}")
    A(f"s_addc_u32 s{ST+5}, s{ST+5}, 0")
    A(f"global_load_dword v254, v7, s[{ST+4}:{ST+5}]")

def common_setup(role):
    srd(SWS, K_WS, 0x10000000 - WSO)
    srd(SOUT, K_OUT, 0x800000)
    A(f"s_lshl_b32 s{S_M0W2}, s{S_WAVE}, 13")
    A(f"s_mov_b32 s{S_MG}, 0")
    A(f"s_mov_b32 s{S_MG+1}, -1")
    A(f"s_sub_u32 s{S_MRH}, 0, s{S_RH}")
    A(f"s_mov_b32 s{S_MRH+1}, s{S_MRH}")
    A(f"s_mov_b32 s{S_L2E}, {LOG2E:#x}")
    A(f"s_mov_b32 s{S_L2E+1}, {LOG2E:#x}")
    A(f"s_mov_b32 s{S_M16}, 0xffff0000")
    A(f"s_mov_b32 s{S_M16+1}, 0xffff0000")
    A(f"s_add_u32 s{S_GRP}, s{S_CHUNK}, {0 if role == 'A' else 16}")
    slin(P_XCCB, WS_XCC, (S_GRP, 128))
    if role == "A": A(f"s_mov_b32 s{S_MF}, 0")
    else: A(f"s_and_b32 s{S_MF}, s{S_CG}, 1")
    slin(P_OUT, 0 if role == "A" else 2048, (S_CHUNK, 1 << 19), (S_RH, 1 << 18), (S_CG, 256), (S_CH, 128), (S_MF, 1 << 17))
    A(f"s_xor_b32 s{P_OUT2}, s{P_OUT}, {1 << 17:#x}")
    slin(P_TAGSEL, 0, (S_CHUNK, 256), (S_CG, 16), (S_WAVE, 1))
    A(f"s_and_b32 s{ST}, s{S_CHUNK}, 3")
    A(f"s_lshl_b32 s{ST}, s{ST}, 1")
    A(f"s_mov_b32 s{KAP[0]}, s{S_CG}")
    for j in range(1, 8):
        A(f"s_add_u32 s{ST+1}, s{ST}, {j-1}")
        A(f"s_cmp_ge_u32 s{ST+1}, 7")
        A(f"s_addc_u32 s{ST+1}, s{ST+1}, 1")
        A(f"s_add_u32 s{ST+1}, s{ST+1}, s{S_CG}")
        A(f"s_and_b32 s{KAP[j]}, s{ST+1}, 7")
    if OPT.get("tlb", 0):
        A(f"v_and_b32 v9, 15, v{V_LANE}")
        A("v_lshlrev_b32 v9, 20, v9")
        A(f"buffer_load_dword v254, v9, s[{SWS}:{SWS+3}], 0 offen offset:2048")
        A(f"buffer_load_dword v254, v9, s[{SOUT}:{SOUT+3}], 0 offen")
        A(f"buffer_load_dword v254, v9, s[{SW2}:{SW2+3}], 0 offen")
    A(f"v_lshlrev_b32 v{V_LIN}, 4, v{V_LANE}")
    A(f"v_mov_b32 v{V_L0}, {OOB:#x}")
    A(f"v_cmp_eq_u32 vcc, 0, v{V_LANE}")
    if not HAND:
        A(f"v_lshlrev_b32 v{V_CHK}, 2, v{V_N}")
        slin(P_FLAGB, WS_FLAG, (S_GRP, 256))
        slin(P_FLW, 0, (S_CG, 16), (S_WAVE, 4), (P_FLAGB, 1))
        A(f"s_getreg_b32 s{S_XW}, hwreg(HW_REG_XCC_ID, 0, 4)")
    A(f"v_lshlrev_b32 v{V_XPO}, 2, v4")
    A(f"v_cndmask_b32_e64 v{V_L0}, v{V_L0}, 0, vcc")
    A(f"v_lshlrev_b32 v{V_OUTO}, 14, v{V_G}")
    A(f"v_lshl_add_u32 v{V_OUTO}, v{V_N}, 2, v{V_OUTO}")
    slin(P_FLAGO, 0, (S_CG, 4), (P_XCCB, 1))
    A("s_waitcnt lgkmcnt(0)")
    A(f"s_add_u32 s{S_TAG}, s{S_TAG}, 1")
    if OPT["stamps"]: A("s_mov_b32 s99, 0")
    if not HAND:
        A(f"s_lshl_b32 s{ST}, s{S_TAG}, 4")
        A(f"s_or_b32 s{S_XW}, s{S_XW}, s{ST}")
        A(f"v_mov_b32 v248, s{S_XW}")
        A(f"buffer_store_dword v248, v{V_L0}, s[{SWS}:{SWS+3}], s{P_FLAGO} offen sc1")

def lds_b128_addrs(base_reg, wave_off_sreg, const, nsets):
    A(f"v_bfe_u32 v9, v{V_N}, 1, 3")
    A(f"v_xor_b32 v9, v9, v{V_G}")
    A("v_lshlrev_b32 v9, 4, v9")
    A(f"v_lshl_add_u32 v9, v{V_N}, 7, v9")
    A(f"v_add_u32 v9, s{wave_off_sreg}, v9")
    if const: A(f"v_add_u32 v9, {const:#x}, v9")
    for ks in range(4):
        A(f"v_xor_b32 v{base_reg+ks}, {32*ks}, v9")
    for st in range(1, nsets):
        for ks in range(4): A(f"v_add_u32 v{base_reg+4*st+ks}, {st*0x10000:#x}, v{base_reg+ks}")

TCH = 250
def rdy_load(reg, dummy=9):
    A(f"buffer_load_dword v254, v{V_XPO}, s[{SWS}:{SWS+3}], s{P_FLAGB} offen offset:112 sc1")
    A(f"buffer_load_dword v{reg}, v{V_XPO}, s[{SWS}:{SWS+3}], s{P_XCCB} offen sc1")
def rdy_check(dst, reg):
    if HAND: A(f"v_xor_b32 v{dst}, s{S_TAG}, v{reg}")
    else:
        A(f"v_xor_b32 v{reg}, s{S_XW}, v{reg}")
        A(f"v_lshrrev_b32 v{dst}, 4, v{reg}")
def rdy_store():
    if HAND: A(f"buffer_store_dword v11, v{V_L0}, s[{SWS}:{SWS+3}], s{P_FLAGO} offen sc1")
def xcc_decide(reg):
    if HAND: return
    A(f"v_cmp_ne_u32 vcc, 0, v{reg}")
    A("s_cmp_lg_u64 vcc, 0")
    A(f"s_cselect_b32 s{S_SLOW}, 1, 0")
def flag_store(ph=0):
    slow, join = lab("slow"), lab("join")
    A(f"s_cmp_lg_u32 s{S_SLOW}, 0")
    A(f"s_cbranch_scc1 {slow}")
    A(f"buffer_store_dword v11, v{V_L0}, s[{SWS}:{SWS+3}], s{P_FLW} offen offset:{ph*128}")
    A.label(join)
    def later():
        A.label(slow)
        A(f"buffer_store_dword v11, v{V_L0}, s[{SWS}:{SWS+3}], s{P_FLW} offen offset:{ph*128} sc1")
        A(f"s_branch {join}")
    DEFER.append(later)
def flag_load(ph):
    A(f"buffer_load_dword v13, v{V_CHK}, s[{SWS}:{SWS+3}], s{P_FLAGB} offen offset:{ph*128} sc1")
def flag_cmp():
    A(f"v_cmp_ne_u32 s[{S_FAIL}:{S_FAIL+1}], s{S_TAG}, v13")
def flag_poll(ph=0):
    poll(lambda: flag_load(ph), flag_cmp)
def flag_check(ph):
    slow, back = lab("fslow"), lab("fback")
    flag_cmp()
    A(f"s_cmp_lg_u64 s[{S_FAIL}:{S_FAIL+1}], 0")
    A(f"s_cbranch_scc1 {slow}")
    A.label(back)
    def later():
        A.label(slow)
        A.hist = []
        flag_poll(ph)
        A(f"s_branch {back}")
    DEFER.append(later)

DEFER = []
def make_verify(pieces, slot, second):
    retry, back = lab("retry"), lab("back")
    def reads():
        A(f"v_add_u32 v9, {slot*SLOT:#x}, v{V_CHK}")
        A("ds_read_b32 v13, v9")
        A(f"ds_read_b32 v14, v9 offset:{second}")
    def cmp():
        A("v_max_u32 v13, v13, v14")
        A("v_cmp_eq_u32 vcc, -1, v13")
    def branch():
        A("s_cmp_lg_u64 vcc, 0")
        A(f"s_cbranch_scc1 {retry}")
        A.label(back)
    def later():
        top, done = lab("rl"), lab("rd")
        A.label(retry)
        A.hist = []
        A(f"s_mov_b32 s{S_SM0}, m0")
        A(f"s_mov_b32 s{S_CNT}, {SPIN_LIMIT}")
        A.label(top)
        run(pieces(S_RS))
        A("s_waitcnt vmcnt(0)")
        A("ds_read_b32 v13, v9")
        A(f"ds_read_b32 v14, v9 offset:{second}")
        A("s_waitcnt lgkmcnt(0)")
        cmp()
        A("s_cmp_eq_u64 vcc, 0")
        A(f"s_cbranch_scc1 {done}")
        A(f"s_sub_u32 s{S_CNT}, s{S_CNT}, 1")
        A(f"s_cbranch_scc0 {top}")
        A.label(done)
        if OPT["stamps"]:
            A(f"s_sub_u32 s{S_CNT}, {SPIN_LIMIT + 1}, s{S_CNT}")
            A(f"s_add_u32 s99, s99, s{S_CNT}")
        A(f"s_mov_b32 m0, s{S_SM0}")
        A(f"s_branch {back}")
    DEFER.append(later)
    return reads, cmp, branch

def tag_update(role):
    skip = lab("notag")
    A(f"s_cmp_eq_u32 s{P_TAGSEL}, {(15 if role == 'A' else 0) << 8}")
    A(f"s_cbranch_scc0 {skip}")
    A(f"buffer_store_dword v11, v{V_L0}, s[{SWS}:{SWS+3}], 0 offen offset:{WS_TAGA if role == 'A' else WS_TAGB} sc1")
    A.label(skip)

def out_stores(acc, ph):
    def mk(r):
        def f():
            row = 8 * (r >> 2) + (r & 3)
            A(f"s_add_u32 s{ST+1}, s{P_OUT+ph}, {row*4096}")
            A(f"buffer_store_dword v{acc+16*ph+r}, v{V_OUTO}, s[{SOUT}:{SOUT+3}], s{ST+1} offen {OUTF2 if ph else OUTF}")
        return f
    return [mk(r) for r in range(16)]

SCHED = {
    0: ({0: [2, 3], 1: [4], 2: [5], 3: [6], 4: [7]}, 5, {0: "all"}),
    1: ({i: [i + 2] for i in range(6)}, 6, {i: "front" for i in range(6)}),
    2: ({0: [2], 1: [3], 2: [4], 3: [5, 6], 4: [7]}, 5, {3: "all"}),
    3: ({0: [2], 1: [3], 2: [4, 5], 3: [6], 4: [7]}, 5, {2: "all"}),
    4: ({0: [2], 1: [3], 2: [4], 3: [5], 4: [6], 5: [7]}, 6, {2: "front", 3: "front", 4: "front", 5: "front"}),
    5: ({0: [2], 1: [3, 4], 2: [5], 3: [6], 4: [7]}, 5, {1: "all"}),
    6: ({i: [i + 3] for i in range(5)}, 5, {}),
    7: ({i: [i + 3] for i in range(5)}, 5, {0: "front", 1: "front"}),
}[OPT.get("sched", 6)]
EARLY = OPT.get("sched", 6) >= 6
NPRE = OPT.get("npre", 4)
NX = OPT.get("nx", 10)
XST = SCHED[1]
def g1_gaps(n, busy):
    i = n >> 2
    if SCHED[2].get(i) in ("all", "front") or i in busy: return (0, 1, 2, 3)
    return (2, 3)
OUTF = {0: "sc1", 1: "sc1 nt", 2: "sc0 sc1", 3: "nt", 4: "", 5: "sc0 sc1 nt"}[OPT.get("outf", 0)]
OUTF2 = {0: "sc1", 3: "nt", 4: ""}[OPT.get("outf2", 0)]
XF = "nt " if OPT["xnt"] else ""
PLF = {0: "sc1 ", 1: "", 2: "sc0 ", 3: "nt "}[OPT.get("plf", 0)]

def role_A():
    V_AX, V_AW = 24, 32
    V_GO, V_SCW = 44, 3
    V_XF, V_WF = 48, 64
    URE, UIM = 80, 112
    ACC2 = 144
    HP = 176
    XS, DG, V_GE = 176, 192, 200
    V_PUB, V_XSO, V_HSO = 45, 46, 223
    P_MSK = P0 + 4
    C_LAM, C_M1, C_M2, C_L, C_MQ, C_LQ, C_C2 = 208, 210, 212, 214, 216, 218, 220
    C_DSK = 222
    T0 = 224
    P_SAB, P_SAO, P_XS0, P_XS1 = P0, P0 + 1, P0 + 2, P0 + 3
    code_prefetch()
    A("v_lshrrev_b32 v9, 1, v3")
    A("v_xor_b32 v9, v9, v4")
    A("v_lshlrev_b32 v9, 4, v9")
    A("v_lshrrev_b32 v10, 2, v3")
    A("v_lshlrev_b32 v10, 5, v10")
    A("v_and_b32 v11, 1, v3")
    A("v_lshl_add_u32 v10, v11, 4, v10")
    A("v_bfe_u32 v11, v3, 1, 1")
    A("v_add_u32 v10, v10, v11")
    A("v_lshl_add_u32 v10, v10, 10, v9")
    slin(ST, 0, (S_CHUNK, 1 << 17), (S_RH, 1 << 16), (S_CH, 1 << 13))
    A(f"v_add_u32 v{V_OX}, s{ST}, v10")
    A(f"v_xor_b32 v11, 64, v{V_OX}")
    A(f"v_add_u32 v{V_OX+1}, 1024, v11")
    A(f"v_add_u32 v{V_OX+2}, 2048, v{V_OX}")
    A(f"v_add_u32 v{V_OX+3}, 3072, v11")
    A("v_lshl_add_u32 v10, v3, 10, v9")
    slin(ST, 0, (S_CG, 1 << 16), (S_CH, 1 << 15))
    A(f"v_add_u32 v{V_OW}, s{ST}, v10")
    A(f"v_xor_b32 v11, 64, v{V_OW}")
    A(f"v_add_u32 v{V_OW+1}, 7168, v11")
    A(f"v_add_u32 v{V_OW+2}, {2*7168}, v{V_OW}")
    A(f"v_add_u32 v{V_OW+3}, {3*7168}, v11")
    slin(ST, 0, (S_CG, 128), (S_CH, 64))
    A(f"v_lshl_add_u32 v14, v{V_N}, 1, s{ST}")
    A(f"s_cmp_eq_u32 s{S_RH}, 0")
    A("s_waitcnt lgkmcnt(0)")
    A(f"s_cselect_b32 s{SW}, s{K_BRE}, s{K_BIM}")
    A(f"s_cselect_b32 s{SW+1}, s{K_BRE+1}, s{K_BIM+1}")
    A(f"s_cselect_b32 s{SW2}, s{K_CRE}, s{K_CIM}")
    A(f"s_cselect_b32 s{SW2+1}, s{K_CRE+1}, s{K_CIM+1}")
    A(f"s_mov_b32 s{SW+2}, 0x80000")
    A(f"s_mov_b32 s{SW+3}, 0x20000")
    stamp(1)
    ws_shift()
    A(f"s_load_dword s{S_TAG}, s[{K_WS}:{K_WS+1}], {WS_TAGA}")
    srd(SX, K_AX, 0x200000)
    tok = {}
    def g1_pieces(i):
        slot = i & 3
        return (dma_pieces(V_OW, SW, ST + 8, slot * SLOT, pre=lambda: rot_soff(ST + 8, i, shift=7, rot=S_ROT1)) +
                dma_pieces(V_OX, SX, ST + 8, slot * SLOT + 16384, post=lambda: tok.__setitem__(i, A.vm), flags=XF))
    CLDS = {1: 4 * SLOT, 2: 4 * SLOT + 16384, 0: 0, 3: 16384, 4: SLOT, 5: SLOT + 16384, 6: 2 * SLOT, 7: 2 * SLOT + 16384}
    CORD = [1, 2, 0, 3, 4, 5, 6, 7]
    CE = OPT.get('ce', 0)
    def c_pieces(st):
        if st in (0, 2) and OPT.get("cswap", 1):
            def pre():
                A(f"s_and_b32 s{ST+9}, s{S_CHUNK}, 3")
                A(f"s_cmp_eq_u32 s{ST+9}, 3")
                A(f"s_cselect_b32 s{ST+9}, {CLDS[2-st]:#x}, {CLDS[st]:#x}")
                A(f"s_cselect_b32 s{ST+7}, s{KAP[2-st]}, s{KAP[st]}")
                A(f"s_add_u32 m0, s{S_M0W}, s{ST+9}")
                A(f"s_lshl_b32 s{ST+9}, s{ST+7}, 7")
            return dma_pieces(V_OW, SW2, ST + 9, 0, pre=pre)
        return dma_pieces(V_OW, SW2, ST + 9, CLDS[st], pre=lambda: A(f"s_lshl_b32 s{ST+9}, s{KAP[st]}, 7"))
    SML = OPT.get("sml", 1)
    def small():
        A(f"global_load_ushort v{T0}, v14, s[{K_LRE}:{K_LRE+1}]")
        A(f"global_load_ushort v{T0+1}, v14, s[{K_LIM}:{K_LIM+1}]")
        A(f"global_load_ushort v{T0+2}, v14, s[{K_LDT}:{K_LDT+1}]")
        A(f"global_load_ushort v{C_DSK}, v14, s[{K_DSK}:{K_DSK+1}]")
    if not SML: small()
    tok_small = A.vm
    run(g1_pieces(0))
    A(f"s_mov_b32 s{SW2+2}, 0x80000")
    A(f"s_mov_b32 s{SW2+3}, 0x20000")
    late = g1_pieces(1)
    NA = OPT.get("nprea", 4)
    if SML == 2: small()
    if EARLY:
        run(late[:NA]); late = late[NA:] + g1_pieces(2)
    else:
        run(late); late = []
    if SML == 1: small()
    if OPT.get("wtouch", 0):
        slin(ST, 0, (S_CG, 1 << 16), (S_CHUNK, 4096), (S_CH, 2048))
        A(f"v_and_b32 v9, 15, v{V_LANE}")
        A("v_lshlrev_b32 v9, 7, v9")
        A(f"buffer_load_dword v254, v9, s[{SW2}:{SW2+3}], s{ST} offen")
    stamp(2)
    cut("A")
    A(f"s_lshl_b32 s{ST}, s{S_RH}, 13")
    lds_b128_addrs(V_AX, ST, 16384, 2)
    A(f"s_lshl_b32 s{ST}, s{S_CH}, 12")
    lds_b128_addrs(V_AW, ST, 0, 3)
    if OPT.get("lateset", 1): A.cap = []
    common_setup("A")
    slin(P_SAB, WS_SA, (S_CG, 8192))
    A(f"s_sub_u32 s{ST}, 15, s{S_CHUNK}")
    slin(P_SAO, 0, (ST, 512), (S_CH, 256), (P_SAB, 1))
    A(f"s_mov_b32 s{P_MSK}, 0xffffff00")
    slin(P_XS0, 0, (S_CHUNK, 1 << 17), (S_RH, 1 << 16), (S_CG, 128), (S_CH, 64), (S_MF, 32768))
    A(f"s_xor_b32 s{P_XS1}, s{P_XS0}, 32768")
    slin(P_ACTW, WS_H, (S_CHUNK, 1 << 18), (S_CG, 1 << 15), (S_WAVE, 4096))
    slin(P_ACTR, WS_H, (S_CHUNK, 1 << 18), (S_WAVE, 4096), (S_MF, 16384))
    A(f"s_xor_b32 s{P_ACTR2}, s{P_ACTR}, 16384")
    A(f"v_lshlrev_b32 v9, 11, v{V_G}")
    A(f"v_lshl_add_u32 v{V_HSO}, v{V_N}, 4, v9")
    A(f"s_add_u32 s{P_ACTW2}, s{P_ACTW}, 16384")
    clears = [f"buffer_store_dwordx4 {vr(T0+24,4)}, v{V_HSO}, s[{SWS}:{SWS+3}], s{P_ACTW} offen offset:{k*512} sc1" for k in range(8)]
    A(f"s_and_b32 s{ST}, s{S_TAG}, 0xff")
    A(f"v_mov_b32 v{V_TAG}, s{ST}")
    A(f"v_mov_b32 v11, s{S_TAG}")
    A(f"v_lshlrev_b32 v{V_XSO}, 10, v{V_N}")
    A(f"v_lshl_add_u32 v{V_XSO}, v{V_G}, 5, v{V_XSO}")
    SCR = 3 * SLOT
    slin(ST, SCR, (S_CH, 256))
    A(f"v_lshl_add_u32 v4, v{V_N}, 3, s{ST}")
    A(f"s_lshl_b32 s{ST}, s{S_RH}, 10")
    A(f"v_lshl_add_u32 v3, v{V_G}, 9, v4")
    A(f"v_add_u32 v3, s{ST}, v3")
    A(f"v_lshlrev_b32 v13, 3, v{V_N}")
    A(f"v_mov_b32 v14, {OOB:#x}")
    A(f"s_or_b64 s[{ST+2}:{ST+3}], s[{S_MG}:{S_MG+1}], s[{S_MRH}:{S_MRH+1}]")
    A(f"v_cndmask_b32_e64 v{V_PUB}, v13, v14, s[{ST+2}:{ST+3}]")
    if OPT.get("prew", 1):
        for k in range(2): A(f"v_subrev_u32 v{T0+20+k}, 1, v{V_TAG}")
        A(f"buffer_store_dwordx2 {vr(T0+20,2)}, v{V_PUB}, s[{SWS}:{SWS+3}], s{P_SAO} offen sc1")
    A(f"s_sub_u32 s{ST+4}, 16, s{S_CHUNK}")
    A(f"v_lshlrev_b32 v9, 3, v{V_G}")
    A(f"v_add_u32 v9, s{ST+4}, v9")
    A(f"s_lshl_b32 s{ST+4}, s{S_CH}, 8")
    A(f"v_add_u32 v13, s{ST+4}, v13")
    A(f"v_lshl_add_u32 v{V_GO}, v9, 9, v13")
    for i in range(8):
        A(f"v_cmp_gt_u32 vcc, {16-i}, v9")
        A(f"v_cndmask_b32_e64 v{V_GE+i}, 0, v{V_TAG}, vcc")
    if SML: A.cap.append("@consts")
    A.wait_vm(tok_small)
    lre, lim, ldt = T0, T0 + 1, T0 + 2
    A(f"v_and_b32 v9, 1, v{V_N}")
    A("v_lshlrev_b32 v9, 4, v9")
    A(f"v_lshlrev_b32 v{C_DSK}, v9, v{C_DSK}")
    A(f"v_lshrrev_b32 v9, 1, v{V_N}")
    A(f"v_lshlrev_b32 v13, 3, v{V_G}")
    A("v_sub_u32 v9, v9, v13")
    for q in range(8):
        A(f"v_cmp_eq_u32 vcc, {q}, v9")
        A(f"v_cndmask_b32_e64 v{DG+q}, 0, v{C_DSK}, vcc")
    for r in (lre, lim, ldt): A(f"v_lshlrev_b32 v{r}, 16, v{r}")
    A(f"v_mul_f32 v{ldt}, s{S_L2E}, v{ldt}")
    A(f"v_exp_f32 v{ldt}, v{ldt}")
    A(f"v_cvt_pk_bf16_f32 v{ldt}, v{ldt}, v{ldt}")
    A(f"v_lshlrev_b32 v{ldt}, 16, v{ldt}")
    A(f"v_mul_f32 v{T0+4}, v{ldt}, v{lre}")
    A(f"v_mul_f32 v{T0+5}, v{ldt}, v{lim}")
    A(f"v_mul_f32 v{T0+4}, s{S_L2E}, v{T0+4}")
    A(f"v_exp_f32 v{T0+4}, v{T0+4}")
    A(f"v_mul_f32 v{T0+5}, {INV2PI:#x}, v{T0+5}")
    A(f"v_rndne_f32 v{T0+6}, v{T0+5}")
    A(f"v_sub_f32 v{T0+5}, v{T0+5}, v{T0+6}")
    A(f"v_cos_f32 v{T0+6}, v{T0+5}")
    A(f"v_sin_f32 v{T0+7}, v{T0+5}")
    A(f"v_mul_f32 v{C_LAM}, v{T0+4}, v{T0+6}")
    A(f"v_mul_f32 v{C_LAM+1}, v{T0+4}, v{T0+7}")
    A(f"v_add_f32 v{T0+4}, -1.0, v{C_LAM}")
    A(f"v_mul_f32 v{T0+5}, v{lre}, v{lre}")
    A(f"v_fmac_f32 v{T0+5}, v{lim}, v{lim}")
    A(f"v_rcp_f32 v{T0+5}, v{T0+5}")
    A(f"v_mul_f32 v{T0+6}, v{T0+4}, v{lre}")
    A(f"v_fmac_f32 v{T0+6}, v{C_LAM+1}, v{lim}")
    A(f"v_mul_f32 v{T0+7}, v{C_LAM+1}, v{lre}")
    A(f"v_fma_f32 v{T0+7}, -v{T0+4}, v{lim}, v{T0+7}")
    A(f"v_add_f32 v{T0+5}, v{T0+5}, v{T0+5}")
    A(f"v_mul_f32 v{C_C2}, v{T0+6}, v{T0+5}")
    A(f"v_mul_f32 v{C_C2+1}, v{T0+7}, v{T0+5}")
    pa, pb, tt = T0 + 8, T0 + 10, T0 + 12
    cmul(pa, C_LAM, C_LAM, tt)
    cmul(pb, pa, pa, tt)
    cmul(pa, pb, pb, tt)
    cmul(C_M1, pa, pa, tt)
    cmul(C_M2, C_M1, C_M1, tt)
    cmul(pa, C_M2, C_M2, tt)
    cmul(C_L, pa, pa, tt)
    def sel_pair(dst, src, mask):
        A(f"v_cndmask_b32_e64 v{dst}, 1.0, v{src}, s[{mask}:{mask+1}]")
        A(f"v_cndmask_b32_e64 v{dst+1}, 0, v{src+1}, s[{mask}:{mask+1}]")
    sel_pair(T0 + 14, C_M2, S_MG)
    sel_pair(T0 + 16, pa, S_MRH)
    cmul(C_MQ, T0 + 14, T0 + 16, tt)
    cmul(pa, C_L, C_L, tt)
    cmul(pb, pa, pa, tt)
    cmul(pa, pb, pb, tt)
    sel_pair(C_LQ, pa, S_MG)
    SET, A.cap = (A.cap or []), None
    LATEV = [x for x in SET if x.startswith("buffer_")]
    SET = [x for x in SET if not x.startswith("buffer_")]
    for _ in range(OPT.get("pset", 0)):
        if not SET or SET[0] == "@consts": break
        if SET[0].startswith(f"s_add_u32 s{S_TAG},"): A("s_waitcnt lgkmcnt(0)")
        A(SET.pop(0))
    while SET and (SET[0].startswith("s_addc") or SET[0].startswith("s_cselect")): A(SET.pop(0))
    if "@consts" in SET:
        k_ = SET.index("@consts")
        SET = SET[:k_] + ["@hold"] + SET[k_+1:]
    stamp(3)
    run(late)
    def rd(n):
        i, ks = n >> 2, n & 3
        slot, buf = i & 3, n & 1
        s2_, off = slot >> 1, (slot & 1) * SLOT
        x = [f"ds_read_b128 {vr(V_XF+buf*8+m*4,4)}, v{V_AX+4*s2_+ks} offset:{off+m*4096}" for m in range(2)]
        w = [f"ds_read_b128 {vr(V_WF+buf*8+ri*4,4)}, v{V_AW+4*s2_+ks} offset:{off+ri*8192}" for ri in range(2)]
        return [x[0], w[0], w[1], x[1]]
    def mm(n):
        buf = n & 1
        r = []
        for m, ri in ((0, 0), (0, 1), (1, 1), (1, 0)):
            d = vr((URE, UIM)[ri] + 16 * m, 16)
            r.append(mf(d, vr(V_XF + buf * 8 + m * 4, 4), vr(V_WF + buf * 8 + ri * 4, 4), d if n else "0"))
        return r
    fill = []
    def xs_load(m, s):
        return lambda: A(f"buffer_load_dwordx4 {vr(XS+8*m+4*s,4)}, v{V_XSO}, s[{SX}:{SX+3}], s{P_XS0+m} offen offset:{16*s}")
    def on_step(n):
        i, ks = n >> 2, n & 3
        if ks == 0 and OPT.get("g1st") and i: stamp(16 + i)
        if ks == 0:
            for st in SCHED[0].get(i, []): fill.extend(g1_pieces(st))
            if i == XST:
                fill.extend(c_pieces(1) + c_pieces(2))
            elif i == XST + 1:
                fill.extend(LATEV)
                fill.extend([xs_load(m, s) for m in range(2) for s in range(2)])
                if CE >= 4: fill.extend(c_pieces(0) + c_pieces(3))
            elif i == 7:
                if CE == 2: fill.extend(c_pieces(0) + c_pieces(3))
                if CE >= 4: fill.extend(c_pieces(4) + c_pieces(5))
                if OPT.get("ptouch", 0):
                    fill.extend([f"buffer_load_dword v254, v{V_GO+k}, s[{SWS}:{SWS+3}], s{P_SAB} offen sc1" for k in range(4)])
                    fill.append(lambda: rdy_load(254, 254))
    A.wait_vm(tok[0])
    A("s_barrier")
    stamp(4)
    gemm_loop(32, rd, mm, lambda n: tok[n >> 2] if (n & 3) == 0 else None, (2, 2, 0, 0), lambda n: g1_gaps(n, (6,) if CE >= 4 else ()), fill, on_step, end_barrier=True, extra=SET, nextra=lambda n, g: NX)
    assert not SET
    assert not fill
    stamp(5)
    P = [T0, T0 + 4]
    def lam_bc(hi): return f"op_sel:[{hi},0,0] op_sel_hi:[{hi},1,1]"
    NEG = "neg_lo:[1,0,0] neg_hi:[1,0,0]"
    cur_re, cur_im = URE, UIM
    for s in range(1, 16):
        d = P[s & 1]
        A(f"v_pk_fma_f32 {vr(d,2)}, {vr(C_LAM,2)}, {vr(cur_im,2)}, {vr(URE+2*s,2)} {lam_bc(1)} {NEG}")
        A(f"v_pk_fma_f32 {vr(d+2,2)}, {vr(C_LAM,2)}, {vr(cur_re,2)}, {vr(UIM+2*s,2)} {lam_bc(1)}")
        A(f"v_pk_fma_f32 {vr(d,2)}, {vr(C_LAM,2)}, {vr(cur_re,2)}, {vr(d,2)} {lam_bc(0)}")
        A(f"v_pk_fma_f32 {vr(d+2,2)}, {vr(C_LAM,2)}, {vr(cur_im,2)}, {vr(d+2,2)} {lam_bc(0)}")
        cur_re, cur_im = d, d + 2
    A0, BQ = T0 + 8, T0 + 10
    A(f"v_fma_f32 v{BQ}, v{C_M1}, v{cur_re}, v{cur_re+1}")
    A(f"v_fma_f32 v{BQ+1}, v{C_M1}, v{cur_im}, v{cur_im+1}")
    A(f"v_fma_f32 v{BQ}, -v{C_M1+1}, v{cur_im}, v{BQ}")
    A(f"v_fma_f32 v{BQ+1}, v{C_M1+1}, v{cur_re}, v{BQ+1}")
    A(f"ds_write_b64 v3, {vr(BQ,2)}")
    A(f"v_mov_b32 v{A0}, v{cur_re}")
    A(f"v_mov_b32 v{A0+1}, v{cur_im}")
    P2, P3, SS, tt = T0 + 20, T0 + 22, T0 + 24, T0 + 28
    def c2_bc(hi, n=3):
        return f"op_sel:[{hi},0,0] op_sel_hi:[{hi},1,1]" if n == 3 else f"op_sel:[{hi},0] op_sel_hi:[{hi},1]"
    cm = []
    for s in range(16):
        re, im, t = URE + 2 * s, UIM + 2 * s, T0 + 2 + 2 * (s & 1)
        cm += [f"v_pk_mul_f32 {vr(t,2)}, {vr(C_C2,2)}, {vr(re,2)} {c2_bc(1,2)} neg_lo:[1,0] neg_hi:[1,0]",
               f"v_pk_mul_f32 {vr(re,2)}, {vr(C_C2,2)}, {vr(re,2)} {c2_bc(0,2)}",
               f"v_pk_fma_f32 {vr(re,2)}, {vr(C_C2,2)}, {vr(im,2)}, {vr(re,2)} {c2_bc(1)} {NEG}",
               f"v_pk_fma_f32 {vr(im,2)}, {vr(C_C2,2)}, {vr(im,2)}, {vr(t,2)} {c2_bc(0)} {NEG}"]
    emit(cm[:8])
    if HAND: A.wait_both(tok["clr"], A.lg)
    else: A("s_waitcnt lgkmcnt(0)")
    A("s_barrier")
    B0 = T0 + 12
    for q in range(4):
        A(f"ds_read_b64 {vr(B0+2*q,2)}, v4 offset:{q*512}")
    emit(cm[8:24])
    A("s_waitcnt lgkmcnt(0)")
    cfma(P2, C_M2, B0, B0 + 2, tt)
    cfma(P3, C_M2, P2, B0 + 4, tt)
    cfma(tt, C_M2, P3, B0 + 6, tt)
    A(f"v_and_or_b32 v{SS}, v{tt}, s{P_MSK}, v{V_TAG}")
    A(f"v_and_or_b32 v{SS+1}, v{tt+1}, s{P_MSK}, v{V_TAG}")
    A(f"buffer_store_dwordx2 {vr(SS,2)}, v{V_PUB}, s[{SWS}:{SWS+3}], s{P_SAO} offen sc1")
    rdy_store()
    stamp(6)
    emit(cm[24:])
    LOC = T0 + 0
    for e in range(2):
        A(f"v_cndmask_b32_e64 v{T0+2+e}, 0, v{B0+e}, s[{S_MG}:{S_MG+1}]")
        A(f"v_cndmask_b32_e64 v{T0+4+e}, v{P2+e}, v{P3+e}, s[{S_MG}:{S_MG+1}]")
        A(f"v_cndmask_b32_e64 v{LOC+e}, v{T0+2+e}, v{T0+4+e}, s[{S_MRH}:{S_MRH+1}]")
    E0, F0, E1, F1 = T0 + 12, T0 + 14, T0 + 16, T0 + 18
    cfma(P2, C_M1, LOC, A0, tt)
    cmul(F1, C_C2, P2, tt)
    cmul(F0, C_C2, LOC, tt)
    cmul(E0, C_C2, C_MQ, tt)
    cmul(E1, E0, C_M1, tt)
    V_AH = V_AX
    A(f"v_bfe_u32 v9, v{V_LANE}, 4, 1")
    A(f"v_bfe_u32 v13, v{V_LANE}, 1, 1")
    A("v_lshl_add_u32 v9, v9, 1, v13")
    A(f"v_bfe_u32 v13, v{V_LANE}, 2, 2")
    A(f"v_lshl_add_u32 v13, v{V_G}, 3, v13")
    A("v_lshlrev_b32 v14, 2, v9")
    A("v_xor_b32 v13, v13, v14")
    A("v_lshlrev_b32 v13, 4, v13")
    A("v_lshl_add_u32 v13, v9, 9, v13")
    A(f"v_and_b32 v14, 1, v{V_LANE}")
    A("v_lshl_add_u32 v13, v14, 3, v13")
    A(f"s_lshl_b32 s{ST+2}, s{S_RH}, 13")
    A(f"v_add_u32 v{V_AH}, s{ST+2}, v13")
    A(f"v_xor_b32 v{V_AH+1}, 64, v{V_AH}")
    for st in (1, 2):
        A(f"v_add_u32 v{V_AH+2*st}, {st*0x10000:#x}, v{V_AH}")
        A(f"v_add_u32 v{V_AH+2*st+1}, {st*0x10000:#x}, v{V_AH+1}")
    V_SO = T0 + 24
    for o in range(1, 4):
        A(f"v_xor_b32 v{V_SO+o}, {o*64}, v{V_HSO}")
    CPRE = 8
    A(f"s_add_u32 s{SW}, s{SWS}, s{P_SAB}")
    A(f"s_addc_u32 s{SW+1}, s{SWS+1}, 0")
    A(f"s_mov_b32 s{SW+2}, 8192")
    GD = 48
    def loads():
        for i in range(8):
            A(f"buffer_load_dwordx2 {vr(GD+2*i,2)}, v{V_GO}, s[{SW}:{SW+3}], 0 offen offset:{i*512} sc1")
        rdy_load(14)
    def check():
        A(f"v_xor_b32 v13, v{GD}, v{V_GE}")
        for i in range(1, 8):
            A(f"v_bitop3_b32 v13, v{GD+2*i}, v{V_GE+i}, v13 bitop3:0xbe")
        rdy_check(9, 14)
        A("v_and_b32 v13, 0xff, v13")
        A("v_or_b32 v13, v13, v9")
        A(f"v_cmp_ne_u32 s[{S_FAIL}:{S_FAIL+1}], 0, v13")
    CM = min(8, 2 + CE + OPT.get("cmid", 3))
    for st in CORD[2+CE:CM]: run(c_pieces(st))
    loads()
    tok_p = A.vm
    CPOST = OPT.get("cpost", 0)
    for st in CORD[CM:8-CPOST]: run(c_pieces(st))
    tok_c = A.vm
    stamp(7)
    ok = lab("ok1")
    A.wait_vm(tok_p)
    for m in range(2):
        d = vr(ACC2 + 16 * m, 16)
        A(mf(d, vr(XS + 8 * m, 4), vr(DG, 4), "0"))
    check()
    A(f"s_cmp_eq_u64 s[{S_FAIL}:{S_FAIL+1}], 0")
    A(f"s_cbranch_scc1 {ok}")
    vm_keep = A.vm
    poll(loads, check)
    A.vm = vm_keep
    A.label(ok)
    stamp(8)
    h1, h2 = T0 + 20, T0 + 22
    cur = GD + 14
    for i in range(6, -1, -1):
        d = (h1, h2)[i & 1]
        cfma(d, C_L, cur, GD + 2 * i, tt)
        cur = d
    CQ = GD
    cmul(CQ, C_LQ, cur, tt)
    for e in range(2): A(f"v_mov_b32 v{CQ+2+e}, v{CQ+e}")
    for e in range(2): A(f"v_permlane32_swap_b32 v{CQ+e}, v{CQ+2+e}")
    A(f"v_pk_add_f32 {vr(CQ,2)}, {vr(CQ,2)}, {vr(CQ+2,2)}")
    def c_reads(st):
        s2_, off = CLDS[st] >> 16, CLDS[st] & 0xffff
        r = [None] * 8
        for ks in range(4):
            for ri in range(2):
                kap = (ks >> 1) * 4 + ri * 2 + (ks & 1)
                r[kap] = f"ds_read_b128 {ar((st*8+kap)*4,4)}, v{V_AW+4*s2_+ks} offset:{off+ri*8192}"
        return r
    for m in range(2):
        d = vr(ACC2 + 16 * m, 16)
        A(mf(d, vr(XS + 8 * m + 4, 4), vr(DG + 4, 4), d))
    HR, HI = T0 + 20, T0 + 22
    A(f"v_fma_f32 v{HR}, v{E0}, v{CQ}, v{F0}")
    A(f"v_fma_f32 v{HR+1}, v{E1}, v{CQ}, v{F1}")
    A(f"v_fma_f32 v{HI}, -v{E0}, v{CQ+1}, -v{F0+1}")
    A(f"v_fma_f32 v{HI+1}, -v{E1}, v{CQ+1}, -v{F1+1}")
    A(f"v_fma_f32 v{HR}, -v{E0+1}, v{CQ+1}, v{HR}")
    A(f"v_fma_f32 v{HR+1}, -v{E1+1}, v{CQ+1}, v{HR+1}")
    A(f"v_fma_f32 v{HI}, -v{E0+1}, v{CQ}, v{HI}")
    A(f"v_fma_f32 v{HI+1}, -v{E1+1}, v{CQ}, v{HI+1}")
    pr, pi_ = HR, HI
    def hstore(ph, o):
        A(f"buffer_store_dwordx4 {vr(HP+16*ph+4*o,4)}, v{V_SO+o if o else V_HSO}, s[{SWS}:{SWS+3}], s{P_ACTW+ph} offen offset:{o*512} sc1")
    for hf in range(2):
        for s in range(8 * hf, 8 * hf + 8):
            re, im = URE + 2 * s, UIM + 2 * s
            emit([f"v_pk_fma_f32 {vr(re,2)}, {vr(C_LAM,2)}, {vr(pi_,2)}, {vr(re,2)} {lam_bc(1)}",
                  f"v_pk_fma_f32 {vr(im,2)}, {vr(C_LAM,2)}, {vr(pr,2)}, {vr(im,2)} {lam_bc(1)} {NEG}",
                  f"v_pk_fma_f32 {vr(re,2)}, {vr(C_LAM,2)}, {vr(pr,2)}, {vr(re,2)} {lam_bc(0)}",
                  f"v_pk_fma_f32 {vr(im,2)}, {vr(C_LAM,2)}, {vr(pi_,2)}, {vr(im,2)} {lam_bc(0)}"])
            pr, pi_ = re, im
        for z in range(2):
            o = 2 * z + hf
            for ri in range(2):
                U = (URE, UIM)[ri]
                for u in range(4):
                    s0 = 8 * hf + 2 * u
                    A(f"v_cvt_pk_bf16_f32 v{HP+(ri*4+o)*4+u}, v{U+2*s0+z}, v{U+2*s0+2+z}")
            for u in range(4):
                A(f"v_permlane32_swap_b32 v{HP+o*4+u}, v{HP+16+o*4+u}")
            hstore(0, o)
    tok_a = A.vm
    for o in range(4): hstore(1, o)
    tok_h = A.vm
    stamp(9)
    for st in CORD[8-CPOST:] if CPOST else []: run(c_pieces(st))
    tok_c2 = A.vm
    HS = [3, 4, 0, 1, 3, 4, 0, 1]
    def h_pieces(G):
        r = []
        for sub in range(2):
            pos, ph = SEQ[2 * G + sub]
            r += dma_pieces(V_LIN, SWS, ST + 8, HS[G] * SLOT + sub * 16384,
                            pre=lambda pos=pos, ph=ph: (A(f"s_lshl_b32 s{ST+8}, s{KAP[pos]}, 15"), A(f"s_add_u32 s{ST+8}, s{ST+8}, s{P_ACTR+ph}")),
                            post=(lambda: tok.__setitem__(("h", G), A.vm)) if sub else None, flags=PLF, same_v=True)
        return r
    assert CPRE == 8
    call = sum([c_reads(st) for st in [0, 1, 2, 3, 4, 5, 6, 7]], [])
    HF = 48
    def rd2(n):
        G, q = n >> 2, n & 3
        slot, buf = HS[G], n & 1
        r = []
        for h in range(4):
            kap = 4 * (q & 1) + h
            off = (slot & 1) * SLOT + (q >> 1) * 16384 + (kap >> 2) * 4096 + ((kap >> 1) & 1) * 2048 + (kap & 1) * 256
            for j in range(2):
                if True:
                    r.append(f"ds_read_b64_tr_b16 {vr(HF+buf*16+h*4+2*j,2)}, v{V_AH+2*(slot>>1)+j} offset:{off}")
        return r
    def mm2(n):
        buf = n & 1
        pos, ph = SEQ[n >> 1]
        d = vr(ACC2 + 16 * ph, 16)
        return [mf(d, vr(HF + buf * 16 + h * 4, 4), ar((8 * pos + 4 * (n & 1) + h) * 4, 4), d) for h in range(4)]
    xcc_decide(14)
    A.wait_vm(tok_c)
    A("s_barrier")
    slin(ST + 2, 3 * SLOT, (S_WAVE, 4096))
    A(f"v_add_u32 v{V_GO}, s{ST+2}, v{V_HSO}")
    for o in range(1, 4): A(f"v_xor_b32 v{V_GO+o}, {o*64}, v{V_GO}")
    for p in range(8):
        A(f"ds_write_b128 v{V_GO+(p&3)}, {vr(HP+4*p,4)} offset:{(p>>2)*16384+(p&3)*512}")
    emit(call[:8])
    A("s_waitcnt lgkmcnt(0)")
    A("s_barrier")
    cf = call[8:32]
    gemm_loop(4, rd2, mm2, lambda n: None, (3, 3, 2, 0), (2, 3), cf)
    A.wait_vm(tok_a)
    flag_store(0)
    emit(cf)
    if CPOST:
        A.wait_vm(tok_h)
        flag_store(1)
        A.wait_both(tok_c2, A.lg)
        A("s_barrier")
        stamp(10)
    else:
        A("s_waitcnt lgkmcnt(0)")
        A("s_barrier")
        stamp(10)
        A.wait_vm(tok_h)
        flag_store(1)
    flag_poll(0)
    stamp(11)
    run(h_pieces(1))
    weave(call[32:], h_pieces(2), 4)
    if OPT.get("btouch", 0):
        A(f"v_lshlrev_b32 v9, 7, v{V_N}")
        A(f"buffer_load_dword v254, v9, s[{SWS}:{SWS+3}], s{P_ACTW2} offen sc1")
    stamp(12)
    fill = []
    h4 = h_pieces(4)
    def on_step2(n):
        G, q = n >> 2, n & 3
        if q == 0 and OPT.get("g2st") and G > 1: stamp(15 + G)
        if n == 7:
            A.wait_vm(tok["fb"])
            flag_check(1)
        fb = [lambda: (flag_load(1), tok.__setitem__("fb", A.vm))]
        if q == 0 and G2S == 0:
            if G == 1: fill.extend(fb + h_pieces(3) + h4[:4])
            elif G == 2: fill.extend(h4[4:] + h_pieces(5))
            elif G + 3 < 8: fill.extend(h_pieces(G + 3))
            elif G == 5: fill.extend(out_stores(ACC2, 0))
        elif q == 0 and G2S in (1, 2):
            if G == 1: fill.extend(fb)
            if G + 2 < 8: fill.extend(h_pieces(G + 2))
            elif G == 6: fill.extend(out_stores(ACC2, 0))
        elif q == 0:
            if G == 1: fill.extend(fb + h_pieces(3))
            elif G == 2: fill.extend(h_pieces(4) + h_pieces(5)[:4])
            elif G == 3: fill.extend(h_pieces(5)[4:] + h_pieces(6))
            elif G == 4: fill.extend(h_pieces(7))
            elif G == 5: fill.extend(out_stores(ACC2, 0))
    G2S = OPT.get("g2s", 2)
    def gaps2(n):
        if G2S == 0: return (0, 1, 2, 3) if n < 12 else (2, 3)
        if G2S == 1: return (0, 1, 2, 3) if n < 24 else (2, 3)
        if G2S == 2: return (1, 2, 3) if n < 24 else (2, 3)
        return (1, 2, 3) if n < 16 else (2, 3)
    A.wait_both(tok[("h", 1)], A.lg)
    A("s_barrier")
    stamp(13)
    gemm_loop(32, rd2, mm2, lambda n: tok[("h", n >> 2)] if (n & 3) == 0 else None, (3, 3, 2, 0),
              gaps2, fill, on_step2, start=4)
    assert not fill
    stamp(14)
    run(out_stores(ACC2, 1))
    tag_update("A")
    stamp(15)
    finish()

def role_B():
    V_OO = 24
    V_AX, V_AT = 28, 36
    V_SW, V_SR, V_P2, V_G2B, V_PB0, V_PB1, V_G1, V_GZ, V_G2, V_P2Z = 39, 40, 41, 42, 43, 44, 45, 46, 47, 253
    S_WPH, V_WPO = P0 + 12, 252
    IDF = 240
    V_WF = 48
    KACC, VACC, PK, KV, WPH = 64, 96, 128, 192, 224
    T0 = 232
    P_P1O, P_P1G, P_P2O, P_P2G, P_MSK = P0 + 1, P0 + 2, P0 + 8, P0 + 9, P0 + 10
    S_PART = 57
    NS = 16 if OPT.get('p16', 1) else 32
    WPS = OPT.get('wps', 1)
    QE = OPT.get('qe', 0)
    code_prefetch()
    A("v_lshrrev_b32 v9, 1, v3")
    A("v_xor_b32 v9, v9, v4")
    A("v_lshlrev_b32 v9, 4, v9")
    A("v_lshl_add_u32 v10, v3, 10, v9")
    slin(ST, 0, (S_CHUNK, 1 << 17), (S_WAVE, 1 << 15))
    A(f"v_add_u32 v{V_OX}, s{ST}, v10")
    A(f"v_xor_b32 v11, 64, v{V_OX}")
    A(f"v_add_u32 v{V_OX+1}, 7168, v11")
    A(f"v_add_u32 v{V_OX+2}, {2*7168}, v{V_OX}")
    A(f"v_add_u32 v{V_OX+3}, {3*7168}, v11")
    A("v_bfe_u32 v9, v3, 1, 1")
    A("v_lshlrev_b32 v9, 2, v9")
    A("v_xor_b32 v9, v9, v4")
    A("v_lshlrev_b32 v9, 4, v9")
    A(f"s_lshl_b32 s{ST}, s{S_CG}, 7")
    A(f"v_add_u32 v9, s{ST}, v9")
    A(f"s_lshl_b32 s{ST+1}, s{S_CH}, 5")
    A(f"v_add_u32 v10, s{ST+1}, v3")
    A("v_mul_u32_u24 v11, 3072, v10")
    A(f"v_add_u32 v{V_OW}, v11, v9")
    for p in range(1, 4): A(f"v_add_u32 v{V_OW+p}, {p*(8*3072-1024)}, v{V_OW}")
    A(f"v_lshl_add_u32 v{V_OO}, v10, 10, v9")
    slin(S_PART, 1024, (S_RH, 1024))
    A("s_waitcnt lgkmcnt(0)")
    srd(SW, K_WQKV, 0x180000)
    stamp(1)
    ws_shift()
    A(f"s_load_dword s{S_TAG}, s[{K_WS}:{K_WS+1}], {WS_TAGB}")
    srd(SX, K_BX, 0x200000)
    tok = {}
    def g1_pieces(i):
        slot = i & 3
        return (dma_pieces(V_OW, SW, ST + 8, slot * SLOT, pre=lambda: rot_soff(ST + 8, i, mul=196608, plus=S_PART, rot=S_ROT1)) +
                dma_pieces(V_OX, SX, ST + 10, slot * SLOT + 16384, pre=lambda: rot_soff(ST + 10, i, shift=7, rot=S_ROT1),
                           post=lambda: tok.__setitem__(i, A.vm), flags=XF))
    QSLOT = [4, 0]; OSLOT = [1, 2]
    def q_pieces(st):
        return dma_pieces(V_OW, SW, ST + 9, QSLOT[st >> 1] * SLOT + (st & 1) * 16384,
                          pre=lambda: rot_soff(ST + 9, 2 * st, mul=196608, extra_sreg=S_RH, rot=S_ROT1), post=lambda: tok.__setitem__(("q", st), A.vm))
    OPAIR = [(1, 2), (0, 3), (4, 5), (6, 7)]
    OLDS = {}
    for st_, pr_ in enumerate(OPAIR):
        for e_ in range(2): OLDS[pr_[e_]] = OSLOT[st_ >> 1] * SLOT + (st_ & 1) * 16384 + e_ * 8192
    def o_pieces(st):
        def pre():
            A(f"s_cmp_eq_u32 s{S_RH}, 0")
            A(f"s_cselect_b32 s{ST+9}, s{KAP[OPAIR[st][0]]}, s{KAP[OPAIR[st][1]]}")
            A(f"s_lshl_b32 s{ST+9}, s{ST+9}, 16")
        return dma_pieces(V_OO, SW2, ST + 9, OSLOT[st >> 1] * SLOT + (st & 1) * 16384, pre=pre)
    run(g1_pieces(0))
    WPL = 4 * SLOT
    srd(SW2, K_WPHI, 0x4000)
    A(f"v_lshlrev_b32 v{V_LIN}, 4, v{V_LANE}")
    slin(ST, 0, (S_CG, 2048), (S_CH, 1024))
    A(f"s_lshl_b32 s{ST+1}, s{S_WAVE}, 10")
    A(f"s_add_u32 m0, s{ST+1}, {WPL:#x}")
    A(f"buffer_load_dwordx4 v{V_LIN}, s[{SW2}:{SW2+3}], s{ST} offen lds")
    late = g1_pieces(1)
    if EARLY:
        run(late[:NPRE]); late = late[NPRE:] + g1_pieces(2)
    else:
        run(late); late = []
    if OPT.get("wtouch", 0):
        slin(ST, 0, (S_CHUNK, 32), (S_WAVE, 8))
        A(f"v_add_u32 v9, s{ST}, v4")
        A("v_mul_u32_u24 v10, 3072, v9")
        A("v_lshlrev_b32 v9, 10, v9")
        A(f"s_lshl_b32 s{ST}, s{S_CG}, 7")
        A(f"buffer_load_dword v254, v10, s[{SW}:{SW+3}], s{ST} offen")
        A(f"buffer_load_dword v254, v9, s[{SW2}:{SW2+3}], s{ST} offen")
    stamp(2)
    cut("B")
    A(f"s_lshl_b32 s{ST}, s{S_RH}, 13")
    lds_b128_addrs(V_AX, ST, 16384, 2)
    A(f"v_bfe_u32 v9, v{V_LANE}, 4, 1")
    A(f"v_bfe_u32 v13, v{V_LANE}, 1, 1")
    A("v_lshl_add_u32 v10, v9, 1, v13")
    A(f"v_bfe_u32 v13, v{V_LANE}, 3, 1")
    A(f"v_xor_b32 v13, s{S_CH}, v13")
    A("v_lshl_add_u32 v9, v13, 2, v10")
    A("v_lshlrev_b32 v9, 4, v9")
    A(f"v_and_b32 v10, 1, v{V_LANE}")
    A("v_lshl_add_u32 v9, v10, 3, v9")
    A(f"v_bfe_u32 v14, v{V_LANE}, 2, 2")
    A(f"v_lshl_add_u32 v13, v{V_G}, 3, v14")
    A(f"v_lshl_add_u32 v{V_AT}, v13, 7, v9")
    A(f"v_add_u32 v{V_AT+1}, 0x10000, v{V_AT}")
    A(f"v_add_u32 v{V_AT+2}, 0x20000, v{V_AT}")
    if OPT.get("lateset", 1): A.cap = []
    srd(SW2, K_WO, 0x80000)
    common_setup("B")
    for p in range(1, 4): A(f"v_add_u32 v{V_OO+p}, {p*7168}, v{V_OO}")
    A(f"v_bfe_u32 v9, v{V_LANE}, 4, 1")
    A(f"v_bfe_u32 v13, v{V_LANE}, 1, 1")
    A("v_lshl_add_u32 v9, v9, 1, v13")
    A("v_lshlrev_b32 v9, 3, v9")
    A(f"v_bfe_u32 v13, v{V_LANE}, 2, 2")
    A(f"v_lshl_add_u32 v13, v{V_G}, 2, v13")
    A("v_lshl_add_u32 v9, v13, 5, v9")
    slin(ST, WPL, (S_WAVE, 1024))
    A(f"v_add_u32 v{V_WPO}, s{ST}, v9")
    if NS == 32: slin(ST, 0, (S_CG, 512), (S_CH, 256), (S_CHUNK, 2), (S_RH, 1))
    else:
        slin(ST, 0, (S_CG, 256), (S_CH, 128), (S_RH, 32), (S_CHUNK, 1))
    slin(P_P1O, WS_P1, (ST, 640))
    slin(ST, 0, (S_CG, 16), (S_CHUNK, 1))
    slin(P_P2O, WS_P2, (ST, 640))
    slin(P_P1G, WS_P1, (ST, NS * 640))
    for k in range(1, 4): A(f"s_add_u32 s{P_P1G+k}, s{P_P1G}, {8*k*640}")
    slin(ST, 0, (S_CG, 16), (S_CH, 8))
    slin(P_P2G, WS_P2, (ST, 640))
    A(f"s_mov_b32 s{P_MSK}, 0xffffff00")
    slin(P_ACTW, WS_O, (S_CHUNK, 1 << 17), (S_CG, 1 << 14), (S_RH, 1 << 12), (S_CH, 1 << 11))
    A(f"s_add_u32 s{P_ACTW2}, s{P_ACTW}, 8192")
    slin(P_ACTR, WS_O, (S_CHUNK, 1 << 17), (S_MF, 8192), (S_WAVE, 2048))
    A(f"s_lshl_b32 s{S_M0W2}, s{S_WAVE}, 11")
    A(f"s_xor_b32 s{P_ACTR2}, s{P_ACTR}, 8192")
    clears = [f"buffer_store_dwordx4 {vr(T0+16,4)}, v{V_LIN}, s[{SWS}:{SWS+3}], s{P_ACTW+(k>>1)} offen offset:{(k&1)*1024} sc1" for k in range(4)]
    A(f"s_and_b32 s{ST}, s{S_TAG}, 0xff")
    A(f"v_mov_b32 v{V_TAG}, s{ST}")
    A(f"v_mov_b32 v11, s{S_TAG}")
    A(f"v_and_b32 v9, 1, v{V_N}")
    A("v_lshlrev_b32 v9, 4, v9")
    A("v_mov_b32 v13, 0x3f80")
    A("v_lshlrev_b32 v13, v9, v13")
    A(f"v_lshrrev_b32 v9, 1, v{V_N}")
    A(f"v_lshlrev_b32 v14, 3, v{V_G}")
    A("v_sub_u32 v9, v9, v14")
    for q in range(8):
        A(f"v_cmp_eq_u32 vcc, {q}, v9")
        A(f"v_cndmask_b32_e64 v{IDF+q}, 0, v13, vcc")
    A(f"v_and_b32 v9, 15, v{V_LANE}")
    A("v_cmp_gt_u32 vcc, 4, v9")
    A("v_lshlrev_b32 v9, 4, v9")
    A(f"v_lshl_add_u32 v13, v{V_G}, 6, v9")
    A("v_add_u32 v13, 512, v13")
    A(f"v_lshl_add_u32 v9, v{V_G}, 8, v9")
    A(f"v_mov_b32 v14, {OOB:#x}")
    A("v_cndmask_b32 v13, v14, v13, vcc")
    A(f"v_cndmask_b32_e64 v{V_PB0}, v9, v13, s[{S_M16}:{S_M16+1}]")
    A(f"v_cndmask_b32_e64 v{V_PB1}, v13, v9, s[{S_M16}:{S_M16+1}]")
    A(f"v_cndmask_b32_e64 v13, v13, v14, s[{S_M16}:{S_M16+1}]")
    A(f"s_cmp_eq_u32 s{S_WAVE}, 0")
    A(f"s_cselect_b64 vcc, -1, 0")
    A(f"v_cndmask_b32 v{V_P2Z}, v14, v13, vcc")
    A(f"v_and_b32 v9, 7, v{V_LANE}")
    A(f"s_lshl_b32 s{ST}, s{S_WAVE}, 7")
    A(f"v_lshl_add_u32 v9, v9, 4, s{ST}")
    A(f"v_lshrrev_b32 v13, 3, v{V_LANE}")
    A("v_mul_u32_u24 v13, 640, v13")
    A(f"v_add_u32 v{V_G1}, v9, v13")
    A(f"v_cmp_gt_u32 vcc, 8, v{V_LANE}")
    A(f"v_and_b32 v13, {NS-1}, v{V_N}")
    A(f"v_mul_u32_u24 v{V_GZ}, 640, v13")
    if NS == 16:
        slin(ST, 3 * SLOT, (S_WAVE, 4096))
        A(f"v_add_u32 v{V_SW}, s{ST}, v{V_LIN}")
        A(f"v_xor_b32 v{V_SR}, 0x2000, v{V_SW}")
    A(f"v_lshl_add_u32 v{V_GZ}, v{V_G}, 6, v{V_GZ}")
    A(f"v_cndmask_b32 v{V_P2}, v14, v9, vcc")
    A(f"v_bfe_u32 v9, v{V_N}, 2, 1")
    A("v_lshlrev_b32 v9, 3, v9")
    A(f"v_bfe_u32 v13, v{V_N}, 3, 1")
    A("v_lshl_add_u32 v9, v13, 2, v9")
    A(f"v_and_b32 v13, 3, v{V_N}")
    A("v_add_u32 v9, v9, v13")
    A(f"v_cndmask_b32_e64 v9, v9, 32, s[{S_M16}:{S_M16+1}]")
    A("v_lshlrev_b32 v9, 4, v9")
    A(f"v_mul_u32_u24 v13, 1280, v{V_G}")
    A(f"v_add_u32 v{V_G2}, v9, v13")
    A("v_mov_b32 v9, 0x100")
    A(f"v_cndmask_b32_e64 v9, v9, 64, s[{S_M16}:{S_M16+1}]")
    A(f"v_add_u32 v{V_G2B}, v{V_G2}, v9")
    if OPT.get("prew", 1):
        for r in range(4): A(f"v_subrev_u32 v{T0+4+r}, 1, v{V_TAG}")
        A(f"buffer_store_dwordx4 {vr(T0+4,4)}, v{V_P2Z}, s[{SWS}:{SWS+3}], s{P_P2O} offen sc1")
        A(f"buffer_store_dwordx4 {vr(T0+4,4)}, v{V_P2}, s[{SWS}:{SWS+3}], s{P_P2O} offen sc1")
    A("v_mov_b32 v3, 0x3f803f80")
    A(f"v_bfe_u32 v4, v{V_LANE}, 2, 1")
    A("v_mul_u32_u24 v4, 0x8000, v4")
    A("v_lshl_or_b32 v4, v4, 16, v4")
    SET, A.cap = (A.cap or []), None
    LATEV = [x for x in SET if x.startswith("buffer_")]
    SET = [x for x in SET if not x.startswith("buffer_")]
    for _ in range(OPT.get("pset", 0)):
        if not SET or SET[0] == "@consts": break
        if SET[0].startswith(f"s_add_u32 s{S_TAG},"): A("s_waitcnt lgkmcnt(0)")
        A(SET.pop(0))
    while SET and (SET[0].startswith("s_addc") or SET[0].startswith("s_cselect")): A(SET.pop(0))
    if "@consts" in SET:
        k_ = SET.index("@consts")
        SET = SET[:k_] + ["@hold"] + SET[k_+1:]
    stamp(3)
    run(late)
    def trfrag(dst, ldsoff, kind="v"):
        s_, off = ldsoff >> 16, ldsoff & 0xffff
        return [f"ds_read_b64_tr_b16 {vr(dst+2*j,2,kind)}, v{V_AT+s_} offset:{off+j*512}" for j in range(2)]
    def rd(n):
        i, ks = n >> 2, n & 3
        slot, buf = i & 3, n & 1
        s2_, off = slot >> 1, (slot & 1) * SLOT
        x = [f"ds_read_b128 {ar(n*8+m*4,4)}, v{V_AX+4*s2_+ks} offset:{off+m*4096}" for m in range(2)]
        w = [trfrag(V_WF + buf * 8 + part * 4, slot * SLOT + part * 8192 + ks * 2048) for part in range(2)]
        return [x[0]] + w[0] + [x[1]] + w[1]
    def mm(n):
        buf = n & 1
        r = []
        for part, m in ((0, 0), (0, 1), (1, 0), (1, 1)):
            x, w = ar(n * 8 + m * 4, 4), vr(V_WF + buf * 8 + part * 4, 4)
            d = vr((KACC, VACC)[part] + 16 * m, 16)
            r.append(mf(d, w, x, d if n else "0") if part == 0 else mf(d, x, w, d if n else "0"))
        return r
    fill = []
    def on_step(n):
        i, ks = n >> 2, n & 3
        if ks == 0 and OPT.get("g1st") and i: stamp(16 + i)
        if ks == 0:
            for st in SCHED[0].get(i, []): fill.extend(g1_pieces(st))
            if i == 5: fill.extend(q_pieces(0) + LATEV + (q_pieces(1) if QE == 1 else []))
            if i == 6:
                fill.extend((q_pieces(2) + q_pieces(3)) if QE == 1 else o_pieces(0))
                if OPT.get("ptouch", 0):
                    fill.extend([f"buffer_load_dword v254, v{V_G1}, s[{SWS}:{SWS+3}], s{P_P1G+k} offen sc1" for k in range(4)])
                    fill.append(f"buffer_load_dword v254, v{V_GZ}, s[{SWS}:{SWS+3}], s{P_P1G} offen sc1")
                    fill.extend([f"buffer_load_dword v254, v{V_G2}, s[{SWS}:{SWS+3}], s{P_P2G} offen offset:{(hh*4+jp)*640} sc1" for hh in range(2) for jp in range(2)])
                    fill.append(lambda: rdy_load(254, 254))
            elif i == 7:
                fill.extend(o_pieces(0) if QE == 1 else o_pieces(1))
                fill.append(lambda: emit([f"v_xor_b32 v{WPH+r}, v4, v{WPH+r}" for r in range(4)]))
                fill.append(lambda: emit([f"v_xor_b32 v{WPH+r}, v4, v{WPH+r}" for r in range(4, 8)]))
        if n == 18:
            SET.extend([f"ds_read_b64_tr_b16 {vr(WPH+4*hh+2*j,2)}, v{V_WPO} offset:{hh*512+j*256}" for hh in range(2) for j in range(2)])
    A.wait_vm(tok[0])
    A("s_barrier")
    stamp(4)
    gemm_loop(32, rd, mm, lambda n: tok[n >> 2] if (n & 3) == 0 else None, (3, 3, 0, 0), lambda n: g1_gaps(n, (7,) if QE == 1 else ()), fill, on_step, end_barrier=True, extra=SET, nextra=lambda n, g: NX)
    assert not SET
    assert not fill
    stamp(5)
    def feat(acc):
        for m in range(2):
            for u in range(8):
                A(f"v_cvt_pk_bf16_f32 v{acc+16*m+u}, v{acc+16*m+2*u}, v{acc+16*m+2*u+1}")
            for hh in range(2):
                A(mf(vr(PK + (m * 2 + hh) * 16, 16), vr(WPH + 4 * hh, 4), vr(acc + 16 * m + 4 * hh, 4), "0"))
    def softmax_l(x, dst):
        mx, sm = T0, T0 + 2
        l = [f"v_max3_f32 v{mx}, v{x}, v{x+1}, v{x+2}"]
        for u in range(3, 15, 2):
            l.append(f"v_max3_f32 v{mx}, v{mx}, v{x+u}, v{x+u+1}")
        l.append(f"v_max_f32 v{mx}, v{mx}, v{x+15}")
        l.append(f"v_mul_f32 v{mx}, s{S_L2E}, v{mx}")
        for u in range(8):
            l.append(f"v_pk_fma_f32 {vr(x+2*u,2)}, {vr(x+2*u,2)}, s[{S_L2E}:{S_L2E+1}], {vr(mx,2)} op_sel_hi:[1,1,0] neg_lo:[0,0,1] neg_hi:[0,0,1]")
        for u in range(16):
            l.append(f"v_exp_f32 v{x+u}, v{x+u}")
        l.append(f"v_pk_add_f32 {vr(sm,2)}, {vr(x,2)}, {vr(x+2,2)}")
        for u in range(2, 8):
            l.append(f"v_pk_add_f32 {vr(sm,2)}, {vr(sm,2)}, {vr(x+2*u,2)}")
        l.append(f"v_add_f32 v{sm}, v{sm}, v{sm+1}")
        l.append(f"v_rcp_f32 v{sm}, v{sm}")
        for u in range(8):
            l.append(f"v_pk_mul_f32 {vr(x+2*u,2)}, {vr(x+2*u,2)}, {vr(sm,2)} op_sel_hi:[1,0]")
        for u in range(8):
            l.append(f"v_cvt_pk_bf16_f32 v{dst+u}, v{x+2*u}, v{x+2*u+1}")
        return l
    feat(KACC)
    for m in range(2):
        for u in range(8):
            A(f"v_cvt_pk_bf16_f32 v{VACC+16*m+u}, v{VACC+16*m+2*u}, v{VACC+16*m+2*u+1}")
    for m in range(2):
        for u in range(8):
            A(f"v_cndmask_b32_e64 v{VACC+16*m+8+u}, v3, v{VACC+16*m+u}, s[{S_M16}:{S_M16+1}]")
            A(f"v_cndmask_b32_e64 v{VACC+16*m+u}, v{VACC+16*m+u}, v3, s[{S_M16}:{S_M16+1}]")
    nbstamp(0)
    PH = [KACC + 8, KACC + 24]
    ID = T0 + 8
    def tmm(blk):
        d = vr(PK + 16 * blk, 16)
        return [mf(d, vr(PH[blk & 1] + 4 * jp, 4), vr(ID + 4 * jp, 4), d if jp else "0") for jp in range(2)]
    def tcvt(blk):
        t = PK + 16 * blk
        return [f"v_cvt_pk_bf16_f32 v{t+u}, v{t+2*u}, v{t+2*u+1}" for u in range(8)]
    def kvmm(blk):
        m, hh = blk >> 1, blk & 1
        d = vr(KV + 16 * hh, 16)
        return [mf(d, vr(PK + 16 * blk + 4 * mm_, 4), vr(VACC + 16 * m + 8 * hh + 4 * mm_, 4), d if (m or mm_) else "0") for mm_ in range(2)]
    for blk in range(4):
        l = softmax_l(PK + blk * 16, PH[blk & 1])
        if blk:
            t, kv = tmm(blk - 1), kvmm(blk - 1)
            qp = q_pieces(blk) if not QE else [None] * 4
            l = l[:17] + [t[0], qp[0]] + l[17:21] + [t[1], qp[1]] + l[21:33] + tcvt(blk - 1) + l[33:50] + [kv[0], qp[2]] + l[50:58] + [kv[1], qp[3]]
        run([x for x in l if x is not None])
        nbstamp(1 + blk)
    TS = 4 if OPT.get("tag1", 1) else 1
    def tagit(r, n):
        for e in range(0, n, TS):
            A(f"v_and_or_b32 v{r+e}, v{r+e}, s{P_MSK}, v{V_TAG}")
    def pub(hh, oc):
        A(f"s_add_u32 s{ST+3}, s{P_P1O}, {(hh*4+oc)*32*640}")
        A(f"buffer_store_dwordx4 {vr(KV+16*hh+4*oc,4)}, v{V_PB0+hh}, s[{SWS}:{SWS+3}], s{ST+3} offen sc1")
    if NS == 32:
        emit(tmm(3))
        tagit(KV, 16)
        pub(0, 0); pub(0, 1)
        emit(tcvt(3))
        emit(kvmm(3))
        nbstamp(5)
        pub(0, 2); pub(0, 3)
        tagit(KV + 16, 16)
        for oc in range(4): pub(1, oc)
    else:
        RB = PK
        def tail(rh):
            keep, send = 8 * rh, 8 - 8 * rh
            emit(tmm(3))
            for u in range(2): A(f"ds_write_b128 v{V_SW}, {vr(KV+send+4*u,4)} offset:{u*1024}")
            emit(tcvt(3))
            emit(kvmm(3))
            for u in range(2): A(f"ds_write_b128 v{V_SW}, {vr(KV+16+send+4*u,4)} offset:{(2+u)*1024}")
            A("s_waitcnt lgkmcnt(0)")
            A("s_barrier")
            for u in range(4): A(f"ds_read_b128 {vr(RB+4*u,4)}, v{V_SR} offset:{u*1024}")
            for hh in range(2):
                for jj in range(2):
                    r = KV + 16 * hh + keep + 4 * jj
                    A(f"s_add_u32 s{ST+3}, s{P_P1O}, {(hh*4+jj)*16*640}")
                    A(f"s_waitcnt lgkmcnt({3-2*hh-jj})")
                    for u in range(2):
                        A(f"v_pk_add_f32 {vr(r+2*u,2)}, {vr(r+2*u,2)}, {vr(RB+8*hh+4*jj+2*u,2)}")
                    tagit(r, 4)
                    A(f"buffer_store_dwordx4 {vr(r,4)}, v{V_PB0+hh}, s[{SWS}:{SWS+3}], s{ST+3} offen sc1")
        l1, l2 = lab("rh1"), lab("rhj")
        A(f"s_cmp_lg_u32 s{S_RH}, 0")
        A(f"s_cbranch_scc1 {l1}")
        st_ = (A.vm, A.lg, list(A.hist))
        tail(0)
        A(f"s_branch {l2}")
        A.label(l1)
        A.vm, A.lg, A.hist = st_[0], st_[1], list(st_[2])
        tail(1)
        A.label(l2)
    QACC = KACC
    def qaddr(n):
        i, ks = n >> 2, n & 3
        return QSLOT[i >> 2] * SLOT + (i & 3) * 8192 + ks * 2048
    def rdq(n):
        return trfrag(V_WF + (n & 1) * 8, qaddr(2 * n)) + trfrag(V_WF + (n & 1) * 8 + 4, qaddr(2 * n + 1))
    def mmq(n):
        r = []
        for h in range(2):
            for m in range(2):
                d = vr(QACC + 16 * m, 16)
                r.append(mf(d, vr(V_WF + (n & 1) * 8 + 4 * h, 4), ar((2 * n + h) * 8 + m * 4, 4), d if (n or h) else "0"))
        if n == 15: r = [r[0], r[2], r[1], r[3]]
        return r
    stamp(6)
    nbflush()
    GD = VACC
    GZ = GD + 16
    g1l = [f"buffer_load_dwordx4 {vr(GD+4*k,4)}, v{V_G1}, s[{SWS}:{SWS+3}], s{P_P1G+k} offen sc1" for k in range(NS // 8)]
    g1l.append(f"buffer_load_dwordx4 {vr(GZ,4)}, v{V_GZ}, s[{SWS}:{SWS+3}], s{P_P1G} offen offset:512 sc1")
    S_D1, S_RET = P0 + 11, ST + 6
    A(f"s_mov_b32 s{S_D1}, 0")
    def try1a(block=False):
        skip = lab("sk")
        if block:
            A(f"s_cmp_lg_u32 s{S_D1}, 0")
        else:
            A(f"s_getreg_b32 s{ST+5}, hwreg(HW_REG_IB_STS, 0, 4)")
            A(f"s_or_b32 s{ST+5}, s{ST+5}, s{S_D1}")
        A(f"s_cbranch_scc1 {skip}")
        A(f"s_call_b64 s[{S_RET}:{S_RET+1}], L_try1a")
        A.label(skip)
    def sub_try1a():
        A.label("L_try1a")
        A.hist = []
        A("s_waitcnt vmcnt(0)")
        A(f"v_xor_b32 v13, v{GD}, v{V_TAG}")
        for s in [x for x in range(TS, 20, TS) if x < NS // 2 or x >= 16]:
            A(f"v_bitop3_b32 v13, v{GD+s}, v{V_TAG}, v13 bitop3:0xbe")
        A("v_and_b32 v13, 0xff, v13")
        A(f"v_cmp_ne_u32 s[{S_FAIL}:{S_FAIL+1}], 0, v13")
        A(f"s_cmp_eq_u64 s[{S_FAIL}:{S_FAIL+1}], 0")
        A("s_cbranch_scc1 L_try1a_ok")
        emit(g1l)
        A(f"s_setpc_b64 s[{S_RET}:{S_RET+1}]")
        A.label("L_try1a_ok")
        DPP = "row_mask:0xf bank_mask:0xf"
        A(f"v_permlane16_swap_b32 v{GZ}, v{GZ+2}")
        A(f"v_permlane16_swap_b32 v{GZ+1}, v{GZ+3}")
        if NS == 32:
            for u in range(0, 8, 2):
                A(f"v_pk_add_f32 {vr(GD+u,2)}, {vr(GD+u,2)}, {vr(GD+8+u,2)}")
            A(f"v_pk_add_f32 {vr(GZ,2)}, {vr(GZ,2)}, {vr(GZ+2,2)}")
        for u in range(0, 4, 2):
            A(f"v_pk_add_f32 {vr(GD+u,2)}, {vr(GD+u,2)}, {vr(GD+4+u,2)}")
        def zror(k):
            for e in range(2): A(f"v_add_f32_dpp v{GZ+e}, v{GZ+e}, v{GZ+e} row_ror:{k} {DPP}")
        zror(1)
        A(f"v_permlane32_swap_b32 v{GD}, v{GD+1}")
        A(f"v_permlane32_swap_b32 v{GD+2}, v{GD+3}")
        zror(2)
        A(f"v_add_f32 v{GD}, v{GD}, v{GD+1}")
        A(f"v_add_f32 v{GD+2}, v{GD+2}, v{GD+3}")
        zror(4)
        A(f"v_permlane16_swap_b32 v{GD}, v{GD+2}")
        A(f"v_add_f32 v{GD}, v{GD}, v{GD+2}")
        zror(8)
        A(f"v_add_f32_dpp v{GD}, v{GD}, v{GD} row_ror:8 {DPP}")
        for e in range(2): A(f"v_and_or_b32 v{GZ+e}, v{GZ+e}, s{P_MSK}, v{V_TAG}")
        A(f"v_and_or_b32 v{GD}, v{GD}, s{P_MSK}, v{V_TAG}")
        for e in range(2): A(f"v_mov_b32 v{GZ+2+e}, v{GZ+e}")
        A(f"v_mov_b32 v{GD+1}, v{GD}")
        A(f"v_permlane16_swap_b32 v{GZ}, v{GZ+2}")
        A(f"v_permlane16_swap_b32 v{GZ+1}, v{GZ+3}")
        A(f"v_permlane32_swap_b32 v{GD}, v{GD+1}")
        A(f"buffer_store_dwordx4 {vr(GZ,4)}, v{V_P2Z}, s[{SWS}:{SWS+3}], s{P_P2O} offen sc1")
        A(f"v_mov_b32 v{GD+2}, v{GD}")
        A(f"v_mov_b32 v{GD+3}, v{GD+1}")
        A(f"v_permlane16_swap_b32 v{GD}, v{GD+2}")
        A(f"v_permlane16_swap_b32 v{GD+1}, v{GD+3}")
        A(f"buffer_store_dwordx4 {vr(GD,4)}, v{V_P2}, s[{SWS}:{SWS+3}], s{P_P2O} offen sc1")
        stamp(8)
        A(f"s_mov_b32 s{S_D1}, 1")
        A(f"s_setpc_b64 s[{S_RET}:{S_RET+1}]")
    DEFER.append(sub_try1a)
    fill = []
    G1AT = OPT.get('g1at', 6)
    def on_stepq(n):
        if n == 0: fill.extend((o_pieces(1) if QE == 1 else (q_pieces(2) + q_pieces(3) if QE == 2 else [])) + o_pieces(2) + o_pieces(3) + [lambda: (rdy_load(14), tok.__setitem__('wo', A.vm))])
        if n == G1AT: fill.extend(g1l + [None])
        if n >= G1AT + 4: fill.extend([None, try1a])
    if QE == 2:
        run(q_pieces(1))
        A.wait_vm(tok[("q", 0)])
        qb = lambda n: tok[("q", n >> 2)] if n in (4, 8, 12) else None
    else:
        A.wait_vm(tok[("q", 3)])
        qb = lambda n: None
    A("s_barrier")
    stamp(26)
    gemm_loop(16, rdq, mmq, qb, (2, 2, 0, 0), lambda n: (0, 1, 2, 3) if (QE == 2 and n < 2) else (2, 3), fill, on_stepq)
    assert not fill
    stamp(7)
    feat(QACC)
    def wait1a():
        top, done = lab("w1a"), lab("w1d")
        A(f"s_mov_b32 s{S_CNT}, {SPIN_LIMIT}")
        A.label(top)
        try1a(block=True)
        A(f"s_cmp_lg_u32 s{S_D1}, 0")
        A(f"s_cbranch_scc1 {done}")
        A(f"s_sub_u32 s{S_CNT}, s{S_CNT}, 1")
        A(f"s_cbranch_scc0 {top}")
        A.label(done)
    B1 = OPT.get("blk1a", 0)
    if B1 == 0: wait1a()
    S_D2 = ST + 4
    A(f"s_mov_b32 s{S_D2}, 0")
    PHQ = KV
    FD = PK
    def loads2(rdy=True):
        for hh in range(2):
            for jp in range(2):
                r = FD + (hh * 2 + jp) * 8
                off = (hh * 4 + jp) * 640
                A(f"buffer_load_dwordx4 {vr(r,4)}, v{V_G2}, s[{SWS}:{SWS+3}], s{P_P2G} offen offset:{off} sc1")
                A(f"buffer_load_dwordx4 {vr(r+4,4)}, v{V_G2B}, s[{SWS}:{SWS+3}], s{P_P2G} offen offset:{off} sc1")
        if rdy: rdy_load(14)
    def check2():
        A(f"v_xor_b32 v13, v{FD}, v{V_TAG}")
        for s in range(1, 32):
            A(f"v_bitop3_b32 v13, v{FD+s}, v{V_TAG}, v13 bitop3:0xbe")
        rdy_check(9, 14)
        A("v_and_b32 v13, 0xff, v13")
        A("v_or_b32 v13, v13, v9")
        A(f"v_cmp_ne_u32 s[{S_FAIL}:{S_FAIL+1}], 0, v13")
    for blk in range(4):
        if blk == OPT.get("l2at", 3): loads2(False)
        emit(softmax_l(PK + blk * 16, PHQ + 8 * blk))
        if blk + 1 == B1: wait1a()
    A("s_barrier")
    stamp(9)
    KVF = VACC + 16
    ODR = [KACC, KACC + 16, PK + 32, PK + 48]
    A(f"s_lshl_b32 s{ST+5}, s{S_RH}, 12")
    A(f"v_add_u32 v{V_AX}, s{ST+5}, v{V_LIN}")
    A(f"v_add_u32 v{V_AX+1}, 0x10000, v{V_AX}")
    A(f"v_add_u32 v{V_AX+2}, 0x20000, v{V_AX}")
    slin(ST + 5, 3 * SLOT, (S_MF, 8192), (S_M0W2, 1))
    A(f"v_add_u32 v{V_AX+3}, s{ST+5}, v{V_LIN}")
    A(f"v_xor_b32 v{V_AX+4}, 0x2000, v{V_AX+3}")
    wor = []
    for n in range(32):
        wor += trfrag(n * 4, OLDS[n >> 2] + (n & 3) * 2048, "a")
    NW = OPT.get('nw', 8)
    emit(wor[:NW])
    def check2m():
        chk = [f"v_xor_b32 v13, v{FD}, v{V_TAG}"] + [f"v_bitop3_b32 v13, v{FD+s}, v{V_TAG}, v13 bitop3:0xbe" for s in range(TS, 32, TS)]
        for hh in range(2):
            for q in (2 * hh, 2 * hh + 1):
                for u in range(4):
                    A(f"v_cvt_pk_bf16_f32 v{KVF+4*q+u}, v{FD+8*q+2*u}, v{FD+8*q+2*u+1}")
            for m in range(2):
                blk = 2 * m + hh
                d = vr(ODR[blk], 16)
                for jp in range(2):
                    A(mf(d, vr(KVF + (hh * 2 + jp) * 4, 4), vr(PHQ + 8 * blk + 4 * jp, 4), d if jp else "0"))
                    k = 3 if hh == 0 else 5
                    emit(chk[:k]); chk = chk[k:]
        assert not chk
        rdy_check(9, 14)
        A("v_and_b32 v13, 0xff, v13")
        A("v_or_b32 v13, v13, v9")
        A(f"v_cmp_ne_u32 s[{S_FAIL}:{S_FAIL+1}], 0, v13")
    poll_pre(loads2, check2m)
    stamp(10)
    A("s_nop 2")
    for blk in (0, 2, 1, 3):
        m, hh = blk >> 1, blk & 1
        o = ODR[blk]
        A(f"v_add_f32 v{o+8}, 0x358637bd, v{o+8}")
        A(f"v_rcp_f32 v{o+8}, v{o+8}")
        for u in range(4):
            A(f"v_pk_mul_f32 {vr(o+2*u,2)}, {vr(o+2*u,2)}, {vr(o+8,2)} op_sel_hi:[1,0]")
        for u in range(4):
            A(f"v_cvt_pk_bf16_f32 v{o+12+u}, v{o+2*u}, v{o+2*u+1}")
        A(f"buffer_store_dwordx4 {vr(o+12,4)}, v{V_LIN}, s[{SWS}:{SWS+3}], s{P_ACTW+m} offen offset:{hh*1024} sc1")
    tok_o = A.vm
    xcc_decide(14)
    for blk in range(4):
        A(f"ds_write_b128 v{V_AX+3+(blk>>1)}, {vr(ODR[blk]+12,4)} offset:{(blk&1)*1024}")
    stamp(11)
    ELDS = [(3, 4, 0, 1)[e >> 2] * SLOT + (e & 3) * 8192 for e in range(16)]
    def of_pieces(e):
        pos, ph = SEQ[e]
        def p0():
            A(f"s_add_u32 m0, s{S_M0W2}, {ELDS[e]:#x}")
            A(f"s_lshl_b32 s{ST+8}, s{KAP[pos]}, 14")
            A(f"s_add_u32 s{ST+8}, s{ST+8}, s{P_ACTR+ph}")
            A(f"buffer_load_dwordx4 v{V_LIN}, s[{SWS}:{SWS+3}], s{ST+8} offen {PLF}lds")
        def p1():
            A(f"buffer_load_dwordx4 v{V_LIN}, s[{SWS}:{SWS+3}], s{ST+8} offen offset:1024 {PLF}lds")
            tok[("of", e)] = A.vm
        return [p0, p1]
    OF = PK
    OACC = VACC
    def rd4(n):
        return [f"ds_read_b128 {vr(OF+(n&1)*16+h*4,4)}, v{V_AX+(ELDS[n]>>16)} offset:{(ELDS[n]&0xffff)+h*1024}" for h in range(4)]
    def mm4(n):
        pos, ph = SEQ[n]
        d = vr(OACC + 16 * ph, 16)
        return [mf(d, vr(OF + (n & 1) * 16 + h * 4, 4), ar((4 * pos + h) * 4, 4), d if (pos or h) else "0") for h in range(4)]
    A("s_waitcnt lgkmcnt(0)")
    A("s_barrier")
    wf = wor[NW:]
    def two():
        for _ in range(2): A(wf.pop(0))
    gemm_loop(2, rd4, mm4, lambda n: None, (2, 2, 0, 0), (2, 3), [two] * 4)
    emit(wf[:16]); wf = wf[16:]
    A.wait_vm(tok_o)
    flag_store()
    emit(wf)
    flag_poll()
    stamp(12)
    for e in range(2, 7): run(of_pieces(e))
    fill = []
    def on_step4(n):
        if OPT.get("g2st") and n in (4, 7, 10, 13): stamp(16 + n // 3)
        if n == 2:
            for e in range(7, 16): fill.extend(of_pieces(e))
        if n == 10: fill.extend(out_stores(OACC, 0))
    A.wait_both(tok[("of", 3)], A.lg)
    A("s_barrier")
    stamp(13)
    BND = {4: 6, 7: 9, 10: 12, 13: 15}
    gemm_loop(16, rd4, mm4, lambda n: tok[("of", BND[n])] if n in BND else None, (2, 2, 0, 0),
              lambda n: (1, 2, 3) if n >= 10 else (0, 1, 2, 3), fill, on_step4, start=2)
    assert not fill
    stamp(14)
    run(out_stores(OACC, 1))
    tag_update("B")
    stamp(15)
    finish()

prologue()
vm0, lg0 = A.vm, A.lg
role_A()
for f in DEFER: f()
DEFER.clear()
A.label("L_roleB")
ROLE[0] = "B"
A.vm, A.lg = vm0, lg0
A.hist = []
role_B()
for f in DEFER: f()
A.label("L_end")
A("s_endpgm")

iB = A.out.index("L_roleB:")
iE = A.out.index("L_end:")
if OPT.get("bfirst", 1):
    lines = A.out[:CUT["P"]] + A.out[iB:CUT["B"]] + A.out[CUT["P"]:CUT["A"]] + A.out[CUT["B"]:iE] + A.out[CUT["A"]:iB] + A.out[iE:]
else:
    lines = A.out[:CUT["A"]] + A.out[iB:CUT["B"]] + A.out[CUT["A"]:iB] + A.out[CUT["B"]:]
if OPT["align"]:
    lines, nw, nn = align(lines, min_nop=OPT.get('minnop', 12))
    print("align: widened", nw, "nops", nn)
HEAD = open("cdna_kernels/" + NAME + ".s.ref").read().split("; Override launch geometry")[0]
src = HEAD + f"""; @launch grid=(256,1,1) block=(256,1,1) lds=163840
.amdgcn_target "amdgcn-amd-amdhsa--gfx950"
.text
.globl {NAME}_kernel
.p2align 8
.type {NAME}_kernel,@function
{NAME}_kernel:
""" + "\n".join(lines) + f"""
.fill 8192, 4, 0xBF810000
.section .rodata,"a"
.p2align 6
.amdhsa_kernel {NAME}_kernel
  .amdhsa_next_free_vgpr 512
  .amdhsa_next_free_sgpr 102
  .amdhsa_accum_offset 256
  .amdhsa_group_segment_fixed_size 0
  .amdhsa_kernarg_size 128
  .amdhsa_user_sgpr_count 2
  .amdhsa_user_sgpr_kernarg_segment_ptr 1
  .amdhsa_system_sgpr_workgroup_id_x 1
.end_amdhsa_kernel
"""
open(sys.argv[1], "w").write(src)
print("hazard nops:", A.nnop, "lines:", len(lines))
```

```python
import sys
from dsl import Asm, vr, ar, sr
from align import align

NAME = "concat_heads__ssm_conv_s5__linear_kernel_hedgehog__prompt"
OPT = dict(stamps=False, rotmode=2, align=1, xnt=0, hwait=8, owait=4, hand=0)
for a_ in sys.argv[2:]:
    k_, _, v_ = a_.partition("=")
    OPT[k_] = int(v_) if v_ else True

WS_TAGA, WS_TAGB = 0x0, 0x80
WS_XCC = 0x8000
WS_FLAG = 0x2000
WS_SA = 0x10000
WS_P1 = 0x100000
WS_P2 = 0x3C0000
WS_H = 0x400000
WS_O = 0x800000
WS_STAMP = 0xA00000
OOB = 0x40000000
SPIN_LIMIT = 1 << 14
LOG2E = 0x3FB8AA3B
INV2PI = 0x3E22F983

S_WAVE, S_CHUNK, S_CG, S_ROT, S_TAG = 3, 4, 5, 6, 7
SX, SW, SW2, SWS, SOUT = 8, 12, 16, 20, 24
S_RH, S_CH, S_SLOT, S_GRP = 28, 29, 30, 31
ST = 32
S_M0W, S_M0W2 = 48, 49
S_MG = 50
S_MRH = 52
S_L2E = 54
S_CNT = 56
S_FAIL = 58
S_M16 = 60
S_SM0, S_RS = 62, 63
S_XW, S_SLOW, P_FLW = 91, 92, 93
S_ROT1 = 47
KAP = [62, 63, 44, 45, 86, 87, 94, 95]
SEQ = [(0, 0), (0, 1)] + [(j, 0) for j in range(1, 8)] + [(j, 1) for j in range(1, 8)]
HAND = OPT['hand']
KA = 64
K_AX, K_LRE, K_LIM, K_BRE, K_BIM, K_CRE, K_CIM, K_LDT, K_DSK, K_BX, K_WQKV, K_WPHI, K_WO, K_OUT, K_DBG, K_WS = [KA + 2 * i for i in range(16)]
P_FLAGB, P_FLAGO, P_XCCB, P_TAGSEL, P_OUT, P_OUT2, P_ACTR, P_ACTR2 = range(64, 72)
P_ACTW, P_ACTW2, S_MF = 88, 89, 90
P0 = 72
S_STAMP = 96
V_LANE, V_OUTO, V_N, V_G, V_LIN, V_TAG, V_L0, V_CHK, V_XPO = 1, 2, 5, 6, 7, 8, 10, 12, 15
V_OX, V_OW = 16, 20
SLOT = 32768

A = Asm()
CUT = {}
nlab = [0]

def srd(dst, ptr, nbytes):
    A(f"s_mov_b32 s{dst}, s{ptr}")
    A(f"s_mov_b32 s{dst+1}, s{ptr+1}")
    A(f"s_mov_b32 s{dst+2}, {nbytes:#x}")
    A(f"s_mov_b32 s{dst+3}, 0x20000")

def slin(dst, const, *terms):
    first = True
    for reg, mul in terms:
        t = dst if first else ST + 14
        if mul == 1:
            if first: A(f"s_mov_b32 s{dst}, s{reg}")
            else: t = reg
        elif mul & (mul - 1) == 0: A(f"s_lshl_b32 s{t}, s{reg}, {mul.bit_length()-1}")
        else: A(f"s_mul_i32 s{t}, s{reg}, {mul}")
        if not first: A(f"s_add_u32 s{dst}, s{dst}, s{t}")
        first = False
    if const: A(f"s_add_u32 s{dst}, s{dst}, {const:#x}")

ROLE = ["A"]
def stamp(idx):
    if OPT.get("probe") == idx + (0 if ROLE[0] == "A" else 100):
        if OPT.get("cyc"):
            A("s_memtime s[96:97]")
            A("s_waitcnt lgkmcnt(0)")
            A("s_sub_u32 s99, s96, s98")
            A("s_lshr_b32 s99, s99, 4")
        else:
            A("s_memrealtime s[96:97]")
            A("s_waitcnt lgkmcnt(0)")
            A("s_sub_u32 s99, s96, s100")
    if not OPT["stamps"]: return
    A(f"s_memtime s[{S_STAMP}:{S_STAMP+1}]")
    A("s_waitcnt lgkmcnt(0)")
    A(f"s_sub_u32 s{S_STAMP}, s{S_STAMP}, s98")
    A(f"v_writelane_b32 v255, s{S_STAMP}, {idx}")
    if OPT.get("rt") and idx <= 16:
        A(f"s_memrealtime s[{S_STAMP}:{S_STAMP+1}]")
        A("s_waitcnt lgkmcnt(0)")
        A(f"s_sub_u32 s{S_STAMP}, s{S_STAMP}, s100")
        A(f"v_writelane_b32 v255, s{S_STAMP}, {idx+44}")

NB = [32, 36, 38, 42, 58, 56]
nbuse = []
def nbstamp(k):
    if OPT.get("nb") and OPT["stamps"]:
        A(f"s_memtime s[{NB[k]}:{NB[k]+1}]"); nbuse.append(k)
def nbflush():
    if OPT.get("nb") and OPT["stamps"]:
        A("s_waitcnt lgkmcnt(0)")
        for k in nbuse:
            A(f"s_sub_u32 s{NB[k]}, s{NB[k]}, s98")
            A(f"v_writelane_b32 v255, s{NB[k]}, {17+k}")
        nbuse.clear()

def lab(n):
    nlab[0] += 1
    return f"L_{n}_{nlab[0]}"

def finish():
    if OPT.get("probe") and (OPT["probe"] >= 100) == (ROLE[0] == "B"):
        if OPT["probe"] % 100 == 16:
            A("s_waitcnt vmcnt(0)")
            stamp(16)
        l = lab("pr")
        A("s_lshl_b32 s99, s99, 1")
        A("s_add_u32 s99, s99, 2500")
        A.label(l)
        A("s_memrealtime s[96:97]")
        A("s_waitcnt lgkmcnt(0)")
        A("s_sub_u32 s96, s96, s100")
        A("s_cmp_lt_u32 s96, s99")
        A(f"s_cbranch_scc1 {l}")
    if OPT.get("fixrt"):
        l = lab("rt")
        A.label(l)
        A("s_memrealtime s[96:97]")
        A("s_waitcnt lgkmcnt(0)")
        A("s_sub_u32 s96, s96, s100")
        A(f"s_cmp_lt_u32 s96, {OPT['fixrt']}")
        A(f"s_cbranch_scc1 {l}")
    if OPT["stamps"]:
        A("s_waitcnt vmcnt(0)")
        stamp(16)
        A("v_writelane_b32 v255, s99, 30")
        A("s_memrealtime s[96:97]")
        A("v_writelane_b32 v255, s100, 40")
        A("s_waitcnt lgkmcnt(0)")
        A("v_writelane_b32 v255, s96, 41")
        slin(ST, WS_STAMP, (2, 1024), (S_WAVE, 256))
        A(f"v_lshlrev_b32 v254, 2, v{V_LANE}")
        A(f"buffer_store_dword v255, v254, s[{SWS}:{SWS+3}], s{ST} offen")
    A("s_endpgm")

def mf(d, a, b, c):
    return f"v_mfma_f32_32x32x16_bf16 {d}, {a}, {b}, {c}"

def poll(loads, check):
    top, done = lab("poll"), lab("ok")
    A(f"s_mov_b32 s{S_CNT}, {SPIN_LIMIT}")
    A.label(top)
    loads()
    A("s_waitcnt vmcnt(0)")
    check()
    A(f"s_cmp_eq_u64 s[{S_FAIL}:{S_FAIL+1}], 0")
    A(f"s_cbranch_scc1 {done}")
    A(f"s_sub_u32 s{S_CNT}, s{S_CNT}, 1")
    A(f"s_cbranch_scc0 {top}")
    A.label(done)

def poll_pre(loads, check):
    top, done = lab("poll"), lab("ok")
    A(f"s_mov_b32 s{S_CNT}, {SPIN_LIMIT}")
    A.label(top)
    A("s_waitcnt vmcnt(0)")
    check()
    A(f"s_cmp_eq_u64 s[{S_FAIL}:{S_FAIL+1}], 0")
    A(f"s_cbranch_scc1 {done}")
    loads()
    A(f"s_sub_u32 s{S_CNT}, s{S_CNT}, 1")
    A(f"s_cbranch_scc0 {top}")
    A("s_waitcnt vmcnt(0)")
    A.label(done)

def cfma_l(d, a, b, c, t):
    return [f"v_pk_fma_f32 {vr(t,2)}, {vr(a,2)}, {vr(b,2)}, {vr(c,2)} op_sel:[1,1,0] op_sel_hi:[1,0,1] neg_lo:[1,0,0]",
            f"v_pk_fma_f32 {vr(d,2)}, {vr(a,2)}, {vr(b,2)}, {vr(t,2)} op_sel:[0,0,0] op_sel_hi:[0,1,1]"]
def cmul_l(d, a, b, t):
    return [f"v_pk_mul_f32 {vr(t,2)}, {vr(a,2)}, {vr(b,2)} op_sel:[1,1] op_sel_hi:[1,0] neg_lo:[1,0]",
            f"v_pk_fma_f32 {vr(d,2)}, {vr(a,2)}, {vr(b,2)}, {vr(t,2)} op_sel:[0,0,0] op_sel_hi:[0,1,1]"]
def emit(l):
    for x in l: A(x)
def cfma(*a): emit(cfma_l(*a))
def cmul(*a): emit(cmul_l(*a))

def weave(main, fillers, every, start=0):
    for i, x in enumerate(main):
        A(x)
        if i >= start and (i - start) % every == every - 1 and fillers:
            f = fillers.pop(0)
            if isinstance(f, str): A(f)
            elif f: f()

def gemm_loop(nsteps, reads, mfmas, boundary, split, fill_gaps, fillers, on_step=None, end_barrier=False, verify=None, start=0, extra=None, nextra=None, hook=None):
    for r in reads(start): A(r)
    for n in range(start, nsteps):
        if on_step: on_step(n)
        last = n == nsteps - 1
        b = None if last else boundary(n + 1)
        b2 = boundary(n + 2) if (verify and n + 2 < nsteps) else None
        if b2 is not None: A.wait_both(b2, A.lg)
        elif b is not None and not verify: A.wait_both(b, A.lg)
        else: A("s_waitcnt lgkmcnt(0)")
        if b is not None and verify: verify(n + 1)[1]()
        rs = [] if last else list(reads(n + 1))
        ms = mfmas(n)
        for g in range(4):
            A(ms[g])
            if g == 0 and b2 is not None: verify(n + 2)[0]()
            if g == 0 and b is not None and verify: verify(n + 1)[2]()
            if g == 0 and (b is not None or (last and end_barrier)): A("s_barrier")
            for _ in range(split[g]):
                if rs: A(rs.pop(0))
            if hook and g == 1: hook.pop(0)()
            if g in (fill_gaps(n) if callable(fill_gaps) else fill_gaps) and fillers:
                f = fillers.pop(0)
                if isinstance(f, str): A(f)
                elif f: f()
            if extra:
                k = nextra(n, g) if not extra[0].startswith('ds_') else (2 if g == 2 else 0)
                while extra and k > 0:
                    if extra[0] == "@hold":
                        if n < 3: break
                        extra.pop(0); continue
                    x = extra.pop(0); A(x); k -= 1
                    if x.startswith("s_cmp") and k == 0: k = 1
        assert not rs

def dma_pieces(voff, srdreg, soff, ldsoff, pre=None, post=None, flags="", m0reg=S_M0W, same_v=False):
    def mk(p):
        def f():
            if p == 0:
                A(f"s_add_u32 m0, s{m0reg}, {ldsoff:#x}")
                if pre: pre()
            A(f"buffer_load_dwordx4 v{voff if same_v else voff+p}, s[{srdreg}:{srdreg+3}], s{soff} offen offset:{p*1024} {flags}lds")
            if p == 3 and post: post()
        return f
    return [mk(p) for p in range(4)]

def run(fs):
    for f in fs:
        if isinstance(f, str): A(f)
        else: f()

def rot_soff(dst, add, shift=None, mul=None, extra_sreg=None, plus=None, rot=S_ROT):
    A(f"s_add_u32 s{dst}, s{rot}, {add}")
    if extra_sreg is not None: A(f"s_add_u32 s{dst}, s{dst}, s{extra_sreg}")
    A(f"s_and_b32 s{dst}, s{dst}, 7")
    if shift is not None: A(f"s_lshl_b32 s{dst}, s{dst}, {shift}")
    else: A(f"s_mul_i32 s{dst}, s{dst}, {mul}")
    if plus is not None: A(f"s_add_u32 s{dst}, s{dst}, s{plus}")

def prologue():
    if OPT["stamps"] or OPT.get("cyc"): A("s_memtime s[98:99]")
    if OPT.get("fixrt") or OPT.get("probe") or OPT["stamps"]: A("s_memrealtime s[100:101]")
    A("s_cmp_ge_u32 s2, 256")
    A("s_cbranch_scc1 L_end")
    A(f"s_load_dwordx16 s[{KA}:{KA+15}], s[0:1], 0")
    A(f"s_load_dwordx16 s[{KA+16}:{KA+31}], s[0:1], 64")
    A("v_and_b32 v1, 63, v0")
    A("v_lshrrev_b32 v2, 6, v0")
    A(f"s_lshr_b32 s{S_SLOT}, s2, 3")
    A(f"v_readfirstlane_b32 s{S_WAVE}, v2")
    A(f"s_and_b32 s{ST}, s2, 3")
    A(f"s_lshl_b32 s{S_CHUNK}, s{ST}, 2")
    A(f"s_lshr_b32 s{ST+1}, s{S_SLOT}, 3")
    A(f"s_add_u32 s{S_CHUNK}, s{S_CHUNK}, s{ST+1}")
    A(f"s_and_b32 s{S_CG}, s{S_SLOT}, 7")
    A(f"s_lshl_b32 s{S_ROT}, s{ST+1}, 1")
    A(f"s_add_u32 s{S_ROT}, s{S_ROT}, s{S_CG}")
    A(f"s_and_b32 s{S_ROT}, s{S_ROT}, 7")
    rm = OPT["rotmode"]
    if rm == 8: A(f"s_mov_b32 s{S_ROT1}, s{S_ROT}")
    elif rm == 1: A(f"s_mov_b32 s{S_ROT1}, 0")
    elif rm == 3:
        A(f"s_add_u32 s{S_ROT1}, s{S_CG}, s{ST+1}")
        A(f"s_and_b32 s{S_ROT1}, s{S_ROT1}, 3")
        A(f"s_mul_i32 s{S_ROT1}, s{S_ROT1}, 3")
    else:
        A(f"s_add_u32 s{S_ROT1}, s{S_CG}, s{ST+1}")
        A(f"s_and_b32 s{S_ROT1}, s{S_ROT1}, {rm-1}")
        A(f"s_lshl_b32 s{S_ROT1}, s{S_ROT1}, {2 if rm == 2 else 1}")
    A(f"s_lshr_b32 s{S_RH}, s{S_WAVE}, 1")
    A(f"s_and_b32 s{S_CH}, s{S_WAVE}, 1")
    A(f"s_lshl_b32 s{S_M0W}, s{S_WAVE}, 12")
    slin(ST + 2, 0, (S_SLOT, 512), (S_WAVE, 128))
    A("v_and_b32 v7, 1, v0")
    A(f"v_lshl_add_u32 v7, v7, 14, s{ST+2}")
    A("v_lshrrev_b32 v3, 3, v1")
    A("v_and_b32 v4, 7, v1")
    A(f"v_and_b32 v{V_N}, 31, v1")
    A(f"v_lshrrev_b32 v{V_G}, 5, v1")
    if OPT["stamps"]: A("v_mov_b32 v255, 0")
    A("s_bitcmp0_b32 s2, 2" if OPT.get("swap", 1) else "s_bitcmp1_b32 s2, 2")
    if OPT.get("bfirst", 1):
        A("s_cbranch_scc0 L_roleA")
        CUT["P"] = len(A.out)
        A.label("L_roleA")
    else:
        A("s_cbranch_scc1 L_roleB")

WSO = OPT.get("wso", 0) << 20
def ws_shift():
    if WSO:
        A(f"s_add_u32 s{K_WS}, s{K_WS}, {WSO:#x}")
        A(f"s_addc_u32 s{K_WS+1}, s{K_WS+1}, 0")

TCHM = OPT.get("touchm", 0)
V_T3, V_T2, STC = 250, 251, 24
def touch_setup(role):
    A(f"s_and_b32 s{ST+2}, s{S_CHUNK}, 3")
    A(f"v_and_b32 v9, 15, v1")
    A(f"v_lshrrev_b32 v10, 4, v1")
    slin(ST, 0, (S_CHUNK, 1 << 17), (S_CG, 1 << 14))
    if role == "A":
        slin(ST + 1, 0, (S_CG, 1 << 16), (ST + 2, 1 << 14))
        A(f"s_cmp_eq_u32 s{S_WAVE}, 0")
        A(f"s_cselect_b32 s{ST}, s{ST}, s{ST+1}")
        A("v_lshlrev_b32 v9, 10, v9")
        A("v_lshl_add_u32 v9, v10, 7, v9")
        A(f"s_mov_b32 s{ST+3}, 128")
    else:
        slin(ST + 1, 0, (ST + 2, 16 * 3072), (S_CG, 128), (S_WAVE, 1024))
        A(f"s_cmp_eq_u32 s{S_WAVE}, 0")
        A(f"s_cselect_b32 s{ST}, s{ST}, s{ST+1}")
        A(f"s_mov_b32 s{ST+1}, 3072")
        A(f"s_mov_b32 s{ST+3}, 196608")
        A(f"s_cselect_b32 s{ST+1}, 1024, s{ST+1}")
        A(f"s_cselect_b32 s{ST+3}, 128, s{ST+3}")
        A(f"v_mul_lo_u32 v9, v9, s{ST+1}")
        A(f"v_mul_lo_u32 v10, v10, s{ST+3}")
        A("v_add_u32 v9, v9, v10")
    A(f"v_add_u32 v9, s{ST}, v9")
    A(f"v_mov_b32 v10, {OOB:#x}")
    A("v_cmp_gt_u32 vcc, 48, v1")
    A(f"v_cndmask_b32 v{V_T3}, v10, v9, vcc")
    A("v_cmp_gt_u32 vcc, 32, v1")
    A(f"v_cndmask_b32 v{V_T2}, v10, v9, vcc")
    A(f"s_mov_b32 s{S_CNT}, s{ST+3}")
def touch_srd(role):
    px, p1, p2 = (K_AX, K_BRE, K_BIM) if role == "A" else (K_BX, K_WQKV, K_WQKV)
    A(f"s_cmp_eq_u32 s{S_WAVE}, 1")
    A(f"s_cselect_b32 s{STC}, s{p1}, s{p2}")
    A(f"s_cselect_b32 s{STC+1}, s{p1+1}, s{p2+1}")
    A(f"s_mov_b32 s{STC+2}, {0x80000 if role == 'A' else 0x180000:#x}")
    A(f"s_cmp_eq_u32 s{S_WAVE}, 0")
    A(f"s_cselect_b32 s{STC}, s{px}, s{STC}")
    A(f"s_cselect_b32 s{STC+1}, s{px+1}, s{STC+1}")
    A(f"s_cselect_b32 s{STC+2}, 0x200000, s{STC+2}")
    A(f"s_cmp_eq_u32 s{S_WAVE}, 3")
    A(f"s_cselect_b32 s{STC+2}, 0, s{STC+2}")
    A(f"s_mov_b32 s{STC+3}, 0x20000")
def touch(k0, v):
    def f():
        A(f"s_mul_i32 s{ST+6}, s{S_CNT}, {k0}")
        A(f"buffer_load_dword v254, v{v}, s[{STC}:{STC+3}], s{ST+6} offen")
    return f

def cut(role):
    A(f"s_branch L_main{role}")
    CUT[role] = len(A.out)
    A.label(f"L_main{role}")

def code_prefetch():
    A(f"s_getpc_b64 s[{ST+4}:{ST+5}]")
    A.label(f"L_pc{ROLE[0]}")
    A(f"s_add_u32 s{ST+4}, s{ST+4}, L_main{ROLE[0]}-L_pc{ROLE[0]}")
    A(f"s_addc_u32 s{ST+5}, s{ST+5}, 0")
    A(f"global_load_dword v254, v7, s[{ST+4}:{ST+5}]")

def common_setup(role):
    srd(SWS, K_WS, 0x10000000 - WSO)
    if TCHM: A(f"s_mov_b64 s[100:101], s[{K_OUT}:{K_OUT+1}]")
    else: srd(SOUT, K_OUT, 0x800000)
    A(f"s_lshl_b32 s{S_M0W2}, s{S_WAVE}, 13")
    A(f"s_mov_b32 s{S_MG}, 0")
    A(f"s_mov_b32 s{S_MG+1}, -1")
    A(f"s_sub_u32 s{S_MRH}, 0, s{S_RH}")
    A(f"s_mov_b32 s{S_MRH+1}, s{S_MRH}")
    A(f"s_mov_b32 s{S_L2E}, {LOG2E:#x}")
    A(f"s_mov_b32 s{S_L2E+1}, {LOG2E:#x}")
    A(f"s_mov_b32 s{S_M16}, 0xffff0000")
    A(f"s_mov_b32 s{S_M16+1}, 0xffff0000")
    A(f"s_add_u32 s{S_GRP}, s{S_CHUNK}, {0 if role == 'A' else 16}")
    slin(P_XCCB, WS_XCC, (S_GRP, 1024))
    if role == "A": A(f"s_mov_b32 s{S_MF}, 0")
    else: A(f"s_and_b32 s{S_MF}, s{S_CG}, 1")
    slin(P_OUT, 0 if role == "A" else 2048, (S_CHUNK, 1 << 19), (S_RH, 1 << 18), (S_CG, 256), (S_CH, 128), (S_MF, 1 << 17))
    A(f"s_xor_b32 s{P_OUT2}, s{P_OUT}, {1 << 17:#x}")
    slin(P_TAGSEL, 0, (S_CHUNK, 256), (S_CG, 16), (S_WAVE, 1))
    A(f"s_and_b32 s{ST}, s{S_CHUNK}, 3")
    A(f"s_lshl_b32 s{ST}, s{ST}, 1")
    A(f"s_mov_b32 s{KAP[0]}, s{S_CG}")
    for j in range(1, 8):
        A(f"s_add_u32 s{ST+1}, s{ST}, {j-1}")
        A(f"s_cmp_ge_u32 s{ST+1}, 7")
        A(f"s_addc_u32 s{ST+1}, s{ST+1}, 1")
        A(f"s_add_u32 s{ST+1}, s{ST+1}, s{S_CG}")
        A(f"s_and_b32 s{KAP[j]}, s{ST+1}, 7")
    if OPT.get("tlb", 0):
        A(f"v_and_b32 v9, 15, v{V_LANE}")
        A("v_lshlrev_b32 v9, 20, v9")
        A(f"buffer_load_dword v254, v9, s[{SWS}:{SWS+3}], 0 offen offset:2048")
        A(f"buffer_load_dword v254, v9, s[{SOUT}:{SOUT+3}], 0 offen")
        A(f"buffer_load_dword v254, v9, s[{SW2}:{SW2+3}], 0 offen")
    A(f"v_lshlrev_b32 v{V_LIN}, 4, v{V_LANE}")
    A(f"v_mov_b32 v{V_L0}, {OOB:#x}")
    A(f"v_cmp_eq_u32 vcc, 0, v{V_LANE}")
    if not HAND:
        A(f"v_lshlrev_b32 v{V_CHK}, 2, v{V_N}")
        slin(P_FLAGB, WS_FLAG, (S_GRP, 256))
        slin(P_FLW, 0, (S_CG, 16), (S_WAVE, 4), (P_FLAGB, 1))
        A(f"s_getreg_b32 s{S_XW}, hwreg(HW_REG_XCC_ID, 0, 4)")
    A(f"v_lshlrev_b32 v{V_XPO}, 7, v4")
    A(f"v_cndmask_b32_e64 v{V_L0}, v{V_L0}, 0, vcc")
    A(f"v_lshlrev_b32 v{V_OUTO}, 14, v{V_G}")
    A(f"v_lshl_add_u32 v{V_OUTO}, v{V_N}, 2, v{V_OUTO}")
    slin(P_FLAGO, 0, (S_CG, 128), (P_XCCB, 1))
    A("s_waitcnt lgkmcnt(0)")
    A(f"s_add_u32 s{S_TAG}, s{S_TAG}, 1")
    if OPT["stamps"]: A("s_mov_b32 s99, 0")
    if not HAND:
        A(f"s_lshl_b32 s{ST}, s{S_TAG}, 4")
        A(f"s_or_b32 s{S_XW}, s{S_XW}, s{ST}")
        A(f"v_mov_b32 v248, s{S_XW}")
        A(f"v_mov_b32 v249, {OOB:#x}")
        A("v_cmp_gt_u32 vcc, 32, v0")
        A(f"v_cndmask_b32 v249, v249, v{V_CHK}, vcc")
        A(f"buffer_store_dword v248, v249, s[{SWS}:{SWS+3}], s{P_FLAGO} offen sc1")

def lds_b128_addrs(base_reg, wave_off_sreg, const, nsets):
    A(f"v_bfe_u32 v9, v{V_N}, 1, 3")
    A(f"v_xor_b32 v9, v9, v{V_G}")
    A("v_lshlrev_b32 v9, 4, v9")
    A(f"v_lshl_add_u32 v9, v{V_N}, 7, v9")
    A(f"v_add_u32 v9, s{wave_off_sreg}, v9")
    if const: A(f"v_add_u32 v9, {const:#x}, v9")
    for ks in range(4):
        A(f"v_xor_b32 v{base_reg+ks}, {32*ks}, v9")
    for st in range(1, nsets):
        for ks in range(4): A(f"v_add_u32 v{base_reg+4*st+ks}, {st*0x10000:#x}, v{base_reg+ks}")

TCH = 250
def rdy_load(reg, dummy=9):
    A(f"buffer_load_dword v254, v{V_CHK}, s[{SWS}:{SWS+3}], s{P_FLAGB} offen offset:64 sc1")
    A(f"buffer_load_dword v{reg}, v{V_XPO}, s[{SWS}:{SWS+3}], s{P_XCCB} offen sc1")
def rdy_check(dst, reg):
    if HAND: A(f"v_xor_b32 v{dst}, s{S_TAG}, v{reg}")
    else:
        A(f"v_xor_b32 v{reg}, s{S_XW}, v{reg}")
        A(f"v_lshrrev_b32 v{dst}, 4, v{reg}")
def rdy_store():
    if HAND: A(f"buffer_store_dword v11, v{V_L0}, s[{SWS}:{SWS+3}], s{P_FLAGO} offen sc1")
def xcc_decide(reg):
    if HAND: return
    A(f"v_cmp_ne_u32 vcc, 0, v{reg}")
    A("s_cmp_lg_u64 vcc, 0")
    A(f"s_cselect_b32 s{S_SLOW}, 1, 0")
def flag_store(ph=0):
    slow, join = lab("slow"), lab("join")
    A(f"s_cmp_lg_u32 s{S_SLOW}, 0")
    A(f"s_cbranch_scc1 {slow}")
    A(f"buffer_store_dword v11, v{V_L0}, s[{SWS}:{SWS+3}], s{P_FLW} offen offset:{ph*128}")
    A.label(join)
    def later():
        A.label(slow)
        A(f"buffer_store_dword v11, v{V_L0}, s[{SWS}:{SWS+3}], s{P_FLW} offen offset:{ph*128} sc1")
        A(f"s_branch {join}")
    DEFER.append(later)
def flag_load(ph):
    A(f"buffer_load_dword v13, v{V_CHK}, s[{SWS}:{SWS+3}], s{P_FLAGB} offen offset:{ph*128} sc1")
def flag_cmp():
    A(f"v_cmp_ne_u32 s[{S_FAIL}:{S_FAIL+1}], s{S_TAG}, v13")
def flag_poll(ph=0):
    poll(lambda: flag_load(ph), flag_cmp)
def flag_check(ph):
    slow, back = lab("fslow"), lab("fback")
    flag_cmp()
    A(f"s_cmp_lg_u64 s[{S_FAIL}:{S_FAIL+1}], 0")
    A(f"s_cbranch_scc1 {slow}")
    A.label(back)
    def later():
        A.label(slow)
        A.hist = []
        flag_poll(ph)
        A(f"s_branch {back}")
    DEFER.append(later)

DEFER = []
def make_verify(pieces, slot, second):
    retry, back = lab("retry"), lab("back")
    def reads():
        A(f"v_add_u32 v9, {slot*SLOT:#x}, v{V_CHK}")
        A("ds_read_b32 v13, v9")
        A(f"ds_read_b32 v14, v9 offset:{second}")
    def cmp():
        A("v_max_u32 v13, v13, v14")
        A("v_cmp_eq_u32 vcc, -1, v13")
    def branch():
        A("s_cmp_lg_u64 vcc, 0")
        A(f"s_cbranch_scc1 {retry}")
        A.label(back)
    def later():
        top, done = lab("rl"), lab("rd")
        A.label(retry)
        A.hist = []
        A(f"s_mov_b32 s{S_SM0}, m0")
        A(f"s_mov_b32 s{S_CNT}, {SPIN_LIMIT}")
        A.label(top)
        run(pieces(S_RS))
        A("s_waitcnt vmcnt(0)")
        A("ds_read_b32 v13, v9")
        A(f"ds_read_b32 v14, v9 offset:{second}")
        A("s_waitcnt lgkmcnt(0)")
        cmp()
        A("s_cmp_eq_u64 vcc, 0")
        A(f"s_cbranch_scc1 {done}")
        A(f"s_sub_u32 s{S_CNT}, s{S_CNT}, 1")
        A(f"s_cbranch_scc0 {top}")
        A.label(done)
        if OPT["stamps"]:
            A(f"s_sub_u32 s{S_CNT}, {SPIN_LIMIT + 1}, s{S_CNT}")
            A(f"s_add_u32 s99, s99, s{S_CNT}")
        A(f"s_mov_b32 m0, s{S_SM0}")
        A(f"s_branch {back}")
    DEFER.append(later)
    return reads, cmp, branch

def tag_update(role):
    skip = lab("notag")
    A(f"s_cmp_eq_u32 s{P_TAGSEL}, {(15 if role == 'A' else 0) << 8}")
    A(f"s_cbranch_scc0 {skip}")
    A(f"buffer_store_dword v11, v{V_L0}, s[{SWS}:{SWS+3}], 0 offen offset:{WS_TAGA if role == 'A' else WS_TAGB} sc1")
    A.label(skip)

def out_stores(acc, ph):
    def mk(r):
        def f():
            row = 8 * (r >> 2) + (r & 3)
            A(f"s_add_u32 s{ST+1}, s{P_OUT+ph}, {row*4096}")
            A(f"buffer_store_dword v{acc+16*ph+r}, v{V_OUTO}, s[{SOUT}:{SOUT+3}], s{ST+1} offen {OUTF2 if ph else OUTF}")
        return f
    return [mk(r) for r in range(16)]

SCHED = {
    0: ({0: [2, 3], 1: [4], 2: [5], 3: [6], 4: [7]}, 5, {0: "all"}),
    1: ({i: [i + 2] for i in range(6)}, 6, {i: "front" for i in range(6)}),
    2: ({0: [2], 1: [3], 2: [4], 3: [5, 6], 4: [7]}, 5, {3: "all"}),
    3: ({0: [2], 1: [3], 2: [4, 5], 3: [6], 4: [7]}, 5, {2: "all"}),
    4: ({0: [2], 1: [3], 2: [4], 3: [5], 4: [6], 5: [7]}, 6, {2: "front", 3: "front", 4: "front", 5: "front"}),
    5: ({0: [2], 1: [3, 4], 2: [5], 3: [6], 4: [7]}, 5, {1: "all"}),
    6: ({i: [i + 3] for i in range(5)}, 5, {}),
    7: ({i: [i + 3] for i in range(5)}, 5, {0: "front", 1: "front"}),
    8: ({0: [2], 1: [3], 2: [4, 5], 3: [6], 4: [7]}, 5, {0: "late", 1: "late", 2: "all"}),
    9: ({0: [2], 1: [3, 4], 2: [5], 3: [6], 4: [7]}, 5, {0: "three", 1: "all", 2: "three"}),
}[OPT.get("sched", 6)]
EARLY = OPT.get("sched", 6) >= 6
NPRE = OPT.get("npre", 4)
NX = OPT.get("nx", 10)
XST = SCHED[1]
def g1_gaps(n, busy):
    i = n >> 2
    if SCHED[2].get(i) == "late": return (0, 1, 2, 3) if (n & 3) >= 2 else ((3,) if (n & 3) == 1 else ())
    if SCHED[2].get(i) == "three": return (1, 2, 3)
    if SCHED[2].get(i) in ("all", "front") or i in busy: return (0, 1, 2, 3)
    return (2, 3)
OUTF = {0: "sc1", 1: "sc1 nt", 2: "sc0 sc1", 3: "nt", 4: "", 5: "sc0 sc1 nt"}[OPT.get("outf", 0)]
OUTF2 = {0: "sc1", 3: "nt", 4: ""}[OPT.get("outf2", 0)]
XF = "nt " if OPT["xnt"] else ""
PLF = {0: "sc1 ", 1: "", 2: "sc0 ", 3: "nt "}[OPT.get("plf", 0)]

def role_A():
    V_AX, V_AW = 24, 32
    V_GO, V_SCW = 44, 3
    V_XF, V_WF = 48, 64
    URE, UIM = 80, 112
    ACC2 = 144
    HP = 176
    XS, DG, V_GE = 176, 192, 200
    V_PUB, V_XSO, V_HSO = 45, 46, 223
    P_MSK = P0 + 4
    C_LAM, C_M1, C_M2, C_L, C_MQ, C_LQ, C_C2 = 208, 210, 212, 214, 216, 218, 220
    C_DSK = 222
    T0 = 224
    P_SAB, P_SAO, P_XS0, P_XS1 = P0, P0 + 1, P0 + 2, P0 + 3
    code_prefetch()
    A("v_lshrrev_b32 v9, 1, v3")
    A("v_xor_b32 v9, v9, v4")
    A("v_lshlrev_b32 v9, 4, v9")
    A("v_lshrrev_b32 v10, 2, v3")
    A("v_lshlrev_b32 v10, 5, v10")
    A("v_and_b32 v11, 1, v3")
    A("v_lshl_add_u32 v10, v11, 4, v10")
    A("v_bfe_u32 v11, v3, 1, 1")
    A("v_add_u32 v10, v10, v11")
    A("v_lshl_add_u32 v10, v10, 10, v9")
    slin(ST, 0, (S_CHUNK, 1 << 17), (S_RH, 1 << 16), (S_CH, 1 << 13))
    A(f"v_add_u32 v{V_OX}, s{ST}, v10")
    A(f"v_xor_b32 v11, 64, v{V_OX}")
    A(f"v_add_u32 v{V_OX+1}, 1024, v11")
    A(f"v_add_u32 v{V_OX+2}, 2048, v{V_OX}")
    A(f"v_add_u32 v{V_OX+3}, 3072, v11")
    A("v_lshl_add_u32 v10, v3, 10, v9")
    slin(ST, 0, (S_CG, 1 << 16), (S_CH, 1 << 15))
    A(f"v_add_u32 v{V_OW}, s{ST}, v10")
    A(f"v_xor_b32 v11, 64, v{V_OW}")
    A(f"v_add_u32 v{V_OW+1}, 7168, v11")
    A(f"v_add_u32 v{V_OW+2}, {2*7168}, v{V_OW}")
    A(f"v_add_u32 v{V_OW+3}, {3*7168}, v11")
    slin(ST, 0, (S_CG, 128), (S_CH, 64))
    A(f"v_lshl_add_u32 v14, v{V_N}, 1, s{ST}")
    if TCHM: touch_setup("A")
    A(f"s_cmp_eq_u32 s{S_RH}, 0")
    A("s_waitcnt lgkmcnt(0)")
    A(f"s_cselect_b32 s{SW}, s{K_BRE}, s{K_BIM}")
    A(f"s_cselect_b32 s{SW+1}, s{K_BRE+1}, s{K_BIM+1}")
    A(f"s_cselect_b32 s{SW2}, s{K_CRE}, s{K_CIM}")
    A(f"s_cselect_b32 s{SW2+1}, s{K_CRE+1}, s{K_CIM+1}")
    A(f"s_mov_b32 s{SW+2}, 0x80000")
    A(f"s_mov_b32 s{SW+3}, 0x20000")
    stamp(1)
    ws_shift()
    A(f"s_load_dword s{S_TAG}, s[{K_WS}:{K_WS+1}], {WS_TAGA}")
    srd(SX, K_AX, 0x200000)
    tok = {}
    def g1_pieces(i):
        slot = i & 3
        return (dma_pieces(V_OW, SW, ST + 8, slot * SLOT, pre=lambda: rot_soff(ST + 8, i, shift=7, rot=S_ROT1)) +
                dma_pieces(V_OX, SX, ST + 8, slot * SLOT + 16384, post=lambda: tok.__setitem__(i, A.vm), flags=XF))
    CLDS = {1: 4 * SLOT, 2: 4 * SLOT + 16384, 0: 0, 3: 16384, 4: SLOT, 5: SLOT + 16384, 6: 2 * SLOT, 7: 2 * SLOT + 16384}
    CORD = [1, 2, 0, 3, 4, 5, 6, 7]
    CE = OPT.get('ce', 0)
    def c_pieces(st):
        if st in (0, 2) and OPT.get("cswap", 1):
            def pre():
                A(f"s_and_b32 s{ST+9}, s{S_CHUNK}, 3")
                A(f"s_cmp_eq_u32 s{ST+9}, 3")
                A(f"s_cselect_b32 s{ST+9}, {CLDS[2-st]:#x}, {CLDS[st]:#x}")
                A(f"s_cselect_b32 s{ST+7}, s{KAP[2-st]}, s{KAP[st]}")
                A(f"s_add_u32 m0, s{S_M0W}, s{ST+9}")
                A(f"s_lshl_b32 s{ST+9}, s{ST+7}, 7")
            return dma_pieces(V_OW, SW2, ST + 9, 0, pre=pre)
        return dma_pieces(V_OW, SW2, ST + 9, CLDS[st], pre=lambda: A(f"s_lshl_b32 s{ST+9}, s{KAP[st]}, 7"))
    SML = OPT.get("sml", 1)
    def small():
        A(f"global_load_ushort v{T0}, v14, s[{K_LRE}:{K_LRE+1}]")
        A(f"global_load_ushort v{T0+1}, v14, s[{K_LIM}:{K_LIM+1}]")
        A(f"global_load_ushort v{T0+2}, v14, s[{K_LDT}:{K_LDT+1}]")
        A(f"global_load_ushort v{C_DSK}, v14, s[{K_DSK}:{K_DSK+1}]")
    if not SML: small()
    tok_small = A.vm
    run(g1_pieces(0))
    A(f"s_mov_b32 s{SW2+2}, 0x80000")
    A(f"s_mov_b32 s{SW2+3}, 0x20000")
    late = g1_pieces(1)
    NA = OPT.get("nprea", 4)
    if SML == 2: small()
    if TCHM:
        touch_srd("A"); touch(1, V_T3)()
        if TCHM == 1: late = late + [touch(4, V_T2)] + g1_pieces(2) + [touch(6, V_T2)]
    elif EARLY:
        run(late[:NA]); late = late[NA:] + g1_pieces(2)
    else:
        run(late); late = []
    if SML == 1: small()
    if OPT.get("wtouch", 0):
        slin(ST, 0, (S_CG, 1 << 16), (S_CHUNK, 4096), (S_CH, 2048))
        A(f"v_and_b32 v9, 15, v{V_LANE}")
        A("v_lshlrev_b32 v9, 7, v9")
        A(f"buffer_load_dword v254, v9, s[{SW2}:{SW2+3}], s{ST} offen")
    stamp(2)
    cut("A")
    A(f"s_lshl_b32 s{ST}, s{S_RH}, 13")
    lds_b128_addrs(V_AX, ST, 16384, 2)
    A(f"s_lshl_b32 s{ST}, s{S_CH}, 12")
    lds_b128_addrs(V_AW, ST, 0, 3)
    XLDS = OPT.get("xlds", 1)
    S_XI = 57
    if XLDS:
        V_XA = ACC2
        A(f"s_sub_u32 s{S_XI}, s{S_CG}, s{S_ROT1}")
        A(f"s_and_b32 s{S_XI}, s{S_XI}, 7")
        A(f"s_and_b32 s{ST+1}, s{S_XI}, 3")
        slin(ST, 16384, (ST + 1, SLOT), (S_RH, 8192))
        A(f"v_bfe_u32 v9, v{V_N}, 1, 2")
        A(f"v_and_b32 v10, 1, v{V_N}")
        A("v_lshl_add_u32 v9, v9, 2, v10")
        A(f"v_bfe_u32 v10, v{V_N}, 4, 1")
        A("v_lshl_add_u32 v10, v9, 1, v10")
        A(f"v_bfe_u32 v11, v{V_N}, 3, 1")
        A("v_lshl_add_u32 v10, v11, 5, v10")
        A("v_and_b32 v9, 7, v9")
        A(f"s_lshl_b32 s{ST+1}, s{S_CH}, 2")
        A(f"v_lshl_add_u32 v11, v{V_G}, 1, s{ST+1}")
        A("v_xor_b32 v9, v9, v11")
        A("v_lshlrev_b32 v9, 4, v9")
        A("v_lshl_add_u32 v9, v10, 7, v9")
        A(f"v_add_u32 v{V_XA}, s{ST}, v9")
        A(f"v_xor_b32 v{V_XA+1}, 16, v{V_XA}")
        A(f"v_xor_b32 v{V_XA+2}, 32, v{V_XA}")
        A(f"v_xor_b32 v{V_XA+3}, 48, v{V_XA}")
    if OPT.get("lateset", 1): A.cap = []
    common_setup("A")
    slin(P_SAB, WS_SA, (S_CG, 8192))
    A(f"s_sub_u32 s{ST}, 15, s{S_CHUNK}")
    slin(P_SAO, 0, (ST, 512), (S_CH, 256), (P_SAB, 1))
    A(f"s_mov_b32 s{P_MSK}, 0xffffff00")
    slin(P_XS0, 0, (S_CHUNK, 1 << 17), (S_RH, 1 << 16), (S_CG, 128), (S_CH, 64), (S_MF, 32768))
    A(f"s_xor_b32 s{P_XS1}, s{P_XS0}, 32768")
    slin(P_ACTW, WS_H, (S_CHUNK, 1 << 18), (S_CG, 1 << 15), (S_WAVE, 4096))
    slin(P_ACTR, WS_H, (S_CHUNK, 1 << 18), (S_WAVE, 4096), (S_MF, 16384))
    A(f"s_xor_b32 s{P_ACTR2}, s{P_ACTR}, 16384")
    A(f"v_lshlrev_b32 v9, 11, v{V_G}")
    A(f"v_lshl_add_u32 v{V_HSO}, v{V_N}, 4, v9")
    A(f"s_add_u32 s{P_ACTW2}, s{P_ACTW}, 16384")
    clears = [f"buffer_store_dwordx4 {vr(T0+24,4)}, v{V_HSO}, s[{SWS}:{SWS+3}], s{P_ACTW} offen offset:{k*512} sc1" for k in range(8)]
    A(f"s_and_b32 s{ST}, s{S_TAG}, 0xff")
    A(f"v_mov_b32 v{V_TAG}, s{ST}")
    A(f"v_mov_b32 v11, s{S_TAG}")
    A(f"v_lshlrev_b32 v{V_XSO}, 10, v{V_N}")
    A(f"v_lshl_add_u32 v{V_XSO}, v{V_G}, 5, v{V_XSO}")
    SCR = 3 * SLOT
    slin(ST, SCR, (S_CH, 256))
    A(f"v_lshl_add_u32 v4, v{V_N}, 3, s{ST}")
    A(f"s_lshl_b32 s{ST}, s{S_RH}, 10")
    A(f"v_lshl_add_u32 v3, v{V_G}, 9, v4")
    A(f"v_add_u32 v3, s{ST}, v3")
    A(f"v_lshlrev_b32 v13, 3, v{V_N}")
    A(f"v_mov_b32 v14, {OOB:#x}")
    A(f"s_or_b64 s[{ST+2}:{ST+3}], s[{S_MG}:{S_MG+1}], s[{S_MRH}:{S_MRH+1}]")
    A(f"v_cndmask_b32_e64 v{V_PUB}, v13, v14, s[{ST+2}:{ST+3}]")
    if OPT.get("prew", 1):
        for k in range(2): A(f"v_subrev_u32 v{T0+20+k}, 1, v{V_TAG}")
        A(f"buffer_store_dwordx2 {vr(T0+20,2)}, v{V_PUB}, s[{SWS}:{SWS+3}], s{P_SAO} offen sc1")
    A(f"s_sub_u32 s{ST+4}, 16, s{S_CHUNK}")
    A(f"v_lshlrev_b32 v9, 3, v{V_G}")
    A(f"v_add_u32 v9, s{ST+4}, v9")
    A(f"s_lshl_b32 s{ST+4}, s{S_CH}, 8")
    A(f"v_add_u32 v13, s{ST+4}, v13")
    A(f"v_lshl_add_u32 v{V_GO}, v9, 9, v13")
    for i in range(8):
        A(f"v_cmp_gt_u32 vcc, {16-i}, v9")
        A(f"v_cndmask_b32_e64 v{V_GE+i}, 0, v{V_TAG}, vcc")
    if SML: A.cap.append("@consts")
    A.wait_vm(tok_small)
    lre, lim, ldt = T0, T0 + 1, T0 + 2
    A(f"v_and_b32 v9, 1, v{V_N}")
    A("v_lshlrev_b32 v9, 4, v9")
    A(f"v_lshlrev_b32 v{C_DSK}, v9, v{C_DSK}")
    A(f"v_lshrrev_b32 v9, 1, v{V_N}")
    A(f"v_lshlrev_b32 v13, 3, v{V_G}")
    A("v_sub_u32 v9, v9, v13")
    for q in range(8):
        A(f"v_cmp_eq_u32 vcc, {q}, v9")
        A(f"v_cndmask_b32_e64 v{DG+q}, 0, v{C_DSK}, vcc")
    for r in (lre, lim, ldt): A(f"v_lshlrev_b32 v{r}, 16, v{r}")
    A(f"v_mul_f32 v{ldt}, s{S_L2E}, v{ldt}")
    A(f"v_exp_f32 v{ldt}, v{ldt}")
    A(f"v_cvt_pk_bf16_f32 v{ldt}, v{ldt}, v{ldt}")
    A(f"v_lshlrev_b32 v{ldt}, 16, v{ldt}")
    A(f"v_mul_f32 v{T0+4}, v{ldt}, v{lre}")
    A(f"v_mul_f32 v{T0+5}, v{ldt}, v{lim}")
    A(f"v_mul_f32 v{T0+4}, s{S_L2E}, v{T0+4}")
    A(f"v_exp_f32 v{T0+4}, v{T0+4}")
    A(f"v_mul_f32 v{T0+5}, {INV2PI:#x}, v{T0+5}")
    A(f"v_rndne_f32 v{T0+6}, v{T0+5}")
    A(f"v_sub_f32 v{T0+5}, v{T0+5}, v{T0+6}")
    A(f"v_cos_f32 v{T0+6}, v{T0+5}")
    A(f"v_sin_f32 v{T0+7}, v{T0+5}")
    A(f"v_mul_f32 v{C_LAM}, v{T0+4}, v{T0+6}")
    A(f"v_mul_f32 v{C_LAM+1}, v{T0+4}, v{T0+7}")
    A(f"v_add_f32 v{T0+4}, -1.0, v{C_LAM}")
    A(f"v_mul_f32 v{T0+5}, v{lre}, v{lre}")
    A(f"v_fmac_f32 v{T0+5}, v{lim}, v{lim}")
    A(f"v_rcp_f32 v{T0+5}, v{T0+5}")
    A(f"v_mul_f32 v{T0+6}, v{T0+4}, v{lre}")
    A(f"v_fmac_f32 v{T0+6}, v{C_LAM+1}, v{lim}")
    A(f"v_mul_f32 v{T0+7}, v{C_LAM+1}, v{lre}")
    A(f"v_fma_f32 v{T0+7}, -v{T0+4}, v{lim}, v{T0+7}")
    A(f"v_add_f32 v{T0+5}, v{T0+5}, v{T0+5}")
    A(f"v_mul_f32 v{C_C2}, v{T0+6}, v{T0+5}")
    A(f"v_mul_f32 v{C_C2+1}, v{T0+7}, v{T0+5}")
    pa, pb, tt = T0 + 8, T0 + 10, T0 + 12
    cmul(pa, C_LAM, C_LAM, tt)
    cmul(pb, pa, pa, tt)
    cmul(pa, pb, pb, tt)
    cmul(C_M1, pa, pa, tt)
    cmul(C_M2, C_M1, C_M1, tt)
    cmul(pa, C_M2, C_M2, tt)
    cmul(C_L, pa, pa, tt)
    def sel_pair(dst, src, mask):
        A(f"v_cndmask_b32_e64 v{dst}, 1.0, v{src}, s[{mask}:{mask+1}]")
        A(f"v_cndmask_b32_e64 v{dst+1}, 0, v{src+1}, s[{mask}:{mask+1}]")
    sel_pair(T0 + 14, C_M2, S_MG)
    sel_pair(T0 + 16, pa, S_MRH)
    cmul(C_MQ, T0 + 14, T0 + 16, tt)
    cmul(pa, C_L, C_L, tt)
    cmul(pb, pa, pa, tt)
    cmul(pa, pb, pb, tt)
    sel_pair(C_LQ, pa, S_MG)
    SET, A.cap = (A.cap or []), None
    LATEV = [x for x in SET if x.startswith("buffer_")]
    SET = [x for x in SET if not x.startswith("buffer_")]
    for _ in range(OPT.get("pset", 0)):
        if not SET or SET[0] == "@consts": break
        if SET[0].startswith(f"s_add_u32 s{S_TAG},"): A("s_waitcnt lgkmcnt(0)")
        A(SET.pop(0))
    while SET and (SET[0].startswith("s_addc") or SET[0].startswith("s_cselect")): A(SET.pop(0))
    if "@consts" in SET:
        k_ = SET.index("@consts")
        SET = SET[:k_] + ["@hold"] + SET[k_+1:]
    stamp(3)
    run(late)
    def rd(n):
        i, ks = n >> 2, n & 3
        slot, buf = i & 3, n & 1
        s2_, off = slot >> 1, (slot & 1) * SLOT
        x = [f"ds_read_b128 {vr(V_XF+buf*8+m*4,4)}, v{V_AX+4*s2_+ks} offset:{off+m*4096}" for m in range(2)]
        w = [f"ds_read_b128 {vr(V_WF+buf*8+ri*4,4)}, v{V_AW+4*s2_+ks} offset:{off+ri*8192}" for ri in range(2)]
        return [x[0], w[0], w[1], x[1]]
    def mm(n):
        buf = n & 1
        r = []
        for m, ri in ((0, 0), (0, 1), (1, 1), (1, 0)):
            d = vr((URE, UIM)[ri] + 16 * m, 16)
            r.append(mf(d, vr(V_XF + buf * 8 + m * 4, 4), vr(V_WF + buf * 8 + ri * 4, 4), d if n else "0"))
        return r
    fill = []
    hook = []
    def xs_load(m, s):
        return lambda: A(f"buffer_load_dwordx4 {vr(XS+8*m+4*s,4)}, v{V_XSO}, s[{SX}:{SX+3}], s{P_XS0+m} offen offset:{16*s}")
    def xs_lds(i):
        sk = lab("nx")
        A(f"s_cmp_eq_u32 s{S_XI}, {i}")
        A(f"s_cbranch_scc0 {sk}")
        for m in range(2):
            for s_ in range(2):
                A(f"ds_read_b128 {vr(XS+8*m+4*s_,4)}, v{V_XA+2*m+s_} offset:{m*512}")
        A.label(sk)
    def on_step(n):
        i, ks = n >> 2, n & 3
        if XLDS and ks == 1: hook.append(lambda: xs_lds(i))
        if ks == 0 and OPT.get("g1st") and i: stamp(16 + i)
        if ks == 0:
            if TCHM == 2 and i < 2: fill.append(touch(4 + 2 * i, V_T2))
            for st in SCHED[0].get(i, []): fill.extend(g1_pieces(st))
            XL = [xs_load(m, s) for m in range(2) for s in range(2)] if not XLDS else []
            XO = OPT.get("xso", 1)
            if i == XST:
                if XO == 1: fill.extend(LATEV + XL)
                fill.extend(c_pieces(1) + c_pieces(2))
            elif i == XST + 1:
                if XO == 0: fill.extend(LATEV + XL)
                if CE >= 4: fill.extend(c_pieces(0) + c_pieces(3))
            elif i == 7:
                if CE == 2: fill.extend(c_pieces(0) + c_pieces(3))
                if CE >= 4: fill.extend(c_pieces(4) + c_pieces(5))
                if OPT.get("ptouch", 0):
                    fill.extend([f"buffer_load_dword v254, v{V_GO+k}, s[{SWS}:{SWS+3}], s{P_SAB} offen sc1" for k in range(4)])
                    fill.append(lambda: rdy_load(254, 254))
    A.wait_vm(tok[0])
    A("s_barrier")
    stamp(4)
    gemm_loop(32, rd, mm, lambda n: tok[n >> 2] if (n & 3) == 0 else None, (2, 2, 0, 0), lambda n: g1_gaps(n, (5,) if OPT.get('xall', 0) else ()), fill, on_step, end_barrier=True, extra=SET, nextra=lambda n, g: NX, hook=hook)
    assert not SET
    assert not fill
    stamp(5)
    if TCHM: srd(SOUT, 100, 0x800000)
    P = [T0, T0 + 4]
    def lam_bc(hi): return f"op_sel:[{hi},0,0] op_sel_hi:[{hi},1,1]"
    NEG = "neg_lo:[1,0,0] neg_hi:[1,0,0]"
    cur_re, cur_im = URE, UIM
    for s in range(1, 16):
        d = P[s & 1]
        A(f"v_pk_fma_f32 {vr(d,2)}, {vr(C_LAM,2)}, {vr(cur_im,2)}, {vr(URE+2*s,2)} {lam_bc(1)} {NEG}")
        A(f"v_pk_fma_f32 {vr(d+2,2)}, {vr(C_LAM,2)}, {vr(cur_re,2)}, {vr(UIM+2*s,2)} {lam_bc(1)}")
        A(f"v_pk_fma_f32 {vr(d,2)}, {vr(C_LAM,2)}, {vr(cur_re,2)}, {vr(d,2)} {lam_bc(0)}")
        A(f"v_pk_fma_f32 {vr(d+2,2)}, {vr(C_LAM,2)}, {vr(cur_im,2)}, {vr(d+2,2)} {lam_bc(0)}")
        cur_re, cur_im = d, d + 2
    A0, BQ = T0 + 8, T0 + 10
    A(f"v_fma_f32 v{BQ}, v{C_M1}, v{cur_re}, v{cur_re+1}")
    A(f"v_fma_f32 v{BQ+1}, v{C_M1}, v{cur_im}, v{cur_im+1}")
    A(f"v_fma_f32 v{BQ}, -v{C_M1+1}, v{cur_im}, v{BQ}")
    A(f"v_fma_f32 v{BQ+1}, v{C_M1+1}, v{cur_re}, v{BQ+1}")
    A(f"ds_write_b64 v3, {vr(BQ,2)}")
    A(f"v_mov_b32 v{A0}, v{cur_re}")
    A(f"v_mov_b32 v{A0+1}, v{cur_im}")
    P2, P3, SS, tt = T0 + 20, T0 + 22, T0 + 24, T0 + 28
    def c2_bc(hi, n=3):
        return f"op_sel:[{hi},0,0] op_sel_hi:[{hi},1,1]" if n == 3 else f"op_sel:[{hi},0] op_sel_hi:[{hi},1]"
    cm = []
    for s in range(16):
        re, im, t = URE + 2 * s, UIM + 2 * s, T0 + 2 + 2 * (s & 1)
        cm += [f"v_pk_mul_f32 {vr(t,2)}, {vr(C_C2,2)}, {vr(re,2)} {c2_bc(1,2)} neg_lo:[1,0] neg_hi:[1,0]",
               f"v_pk_mul_f32 {vr(re,2)}, {vr(C_C2,2)}, {vr(re,2)} {c2_bc(0,2)}",
               f"v_pk_fma_f32 {vr(re,2)}, {vr(C_C2,2)}, {vr(im,2)}, {vr(re,2)} {c2_bc(1)} {NEG}",
               f"v_pk_fma_f32 {vr(im,2)}, {vr(C_C2,2)}, {vr(im,2)}, {vr(t,2)} {c2_bc(0)} {NEG}"]
    emit(cm[:8])
    if HAND: A.wait_both(tok["clr"], A.lg)
    else: A("s_waitcnt lgkmcnt(0)")
    A("s_barrier")
    B0 = T0 + 12
    for q in range(4):
        A(f"ds_read_b64 {vr(B0+2*q,2)}, v4 offset:{q*512}")
    emit(cm[8:24])
    A("s_waitcnt lgkmcnt(0)")
    cfma(P2, C_M2, B0, B0 + 2, tt)
    cfma(P3, C_M2, P2, B0 + 4, tt)
    cfma(tt, C_M2, P3, B0 + 6, tt)
    A(f"v_and_or_b32 v{SS}, v{tt}, s{P_MSK}, v{V_TAG}")
    A(f"v_and_or_b32 v{SS+1}, v{tt+1}, s{P_MSK}, v{V_TAG}")
    A(f"buffer_store_dwordx2 {vr(SS,2)}, v{V_PUB}, s[{SWS}:{SWS+3}], s{P_SAO} offen sc1")
    rdy_store()
    stamp(6)
    emit(cm[24:])
    LOC = T0 + 0
    for e in range(2):
        A(f"v_cndmask_b32_e64 v{T0+2+e}, 0, v{B0+e}, s[{S_MG}:{S_MG+1}]")
        A(f"v_cndmask_b32_e64 v{T0+4+e}, v{P2+e}, v{P3+e}, s[{S_MG}:{S_MG+1}]")
        A(f"v_cndmask_b32_e64 v{LOC+e}, v{T0+2+e}, v{T0+4+e}, s[{S_MRH}:{S_MRH+1}]")
    E0, F0, E1, F1 = T0 + 12, T0 + 14, T0 + 16, T0 + 18
    cfma(P2, C_M1, LOC, A0, tt)
    cmul(F1, C_C2, P2, tt)
    cmul(F0, C_C2, LOC, tt)
    cmul(E0, C_C2, C_MQ, tt)
    cmul(E1, E0, C_M1, tt)
    V_AH = V_AX
    A(f"v_bfe_u32 v9, v{V_LANE}, 4, 1")
    A(f"v_bfe_u32 v13, v{V_LANE}, 1, 1")
    A("v_lshl_add_u32 v9, v9, 1, v13")
    A(f"v_bfe_u32 v13, v{V_LANE}, 2, 2")
    A(f"v_lshl_add_u32 v13, v{V_G}, 3, v13")
    A("v_lshlrev_b32 v14, 2, v9")
    A("v_xor_b32 v13, v13, v14")
    A("v_lshlrev_b32 v13, 4, v13")
    A("v_lshl_add_u32 v13, v9, 9, v13")
    A(f"v_and_b32 v14, 1, v{V_LANE}")
    A("v_lshl_add_u32 v13, v14, 3, v13")
    A(f"s_lshl_b32 s{ST+2}, s{S_RH}, 13")
    A(f"v_add_u32 v{V_AH}, s{ST+2}, v13")
    A(f"v_xor_b32 v{V_AH+1}, 64, v{V_AH}")
    for st in (1, 2):
        A(f"v_add_u32 v{V_AH+2*st}, {st*0x10000:#x}, v{V_AH}")
        A(f"v_add_u32 v{V_AH+2*st+1}, {st*0x10000:#x}, v{V_AH+1}")
    V_SO = T0 + 24
    for o in range(1, 4):
        A(f"v_xor_b32 v{V_SO+o}, {o*64}, v{V_HSO}")
    CPRE = 8
    A(f"s_add_u32 s{SW}, s{SWS}, s{P_SAB}")
    A(f"s_addc_u32 s{SW+1}, s{SWS+1}, 0")
    A(f"s_mov_b32 s{SW+2}, 8192")
    GD = 48
    def loads():
        for i in range(8):
            A(f"buffer_load_dwordx2 {vr(GD+2*i,2)}, v{V_GO}, s[{SW}:{SW+3}], 0 offen offset:{i*512} sc1")
        rdy_load(14)
    def check():
        A(f"v_xor_b32 v13, v{GD}, v{V_GE}")
        for i in range(1, 8):
            A(f"v_bitop3_b32 v13, v{GD+2*i}, v{V_GE+i}, v13 bitop3:0xbe")
        rdy_check(9, 14)
        A("v_and_b32 v13, 0xff, v13")
        A("v_or_b32 v13, v13, v9")
        A(f"v_cmp_ne_u32 s[{S_FAIL}:{S_FAIL+1}], 0, v13")
    CM = min(8, 2 + CE + OPT.get("cmid", 3))
    for st in CORD[2+CE:CM]: run(c_pieces(st))
    loads()
    tok_p = A.vm
    CPOST = OPT.get("cpost", 0)
    for st in CORD[CM:8-CPOST]: run(c_pieces(st))
    tok_c = A.vm
    stamp(7)
    ok = lab("ok1")
    A.wait_vm(tok_p)
    for m in range(2):
        d = vr(ACC2 + 16 * m, 16)
        A(mf(d, vr(XS + 8 * m, 4), vr(DG, 4), "0"))
    check()
    A(f"s_cmp_eq_u64 s[{S_FAIL}:{S_FAIL+1}], 0")
    A(f"s_cbranch_scc1 {ok}")
    vm_keep = A.vm
    poll(loads, check)
    A.vm = vm_keep
    A.label(ok)
    stamp(8)
    h1, h2 = T0 + 20, T0 + 22
    cur = GD + 14
    for i in range(6, -1, -1):
        d = (h1, h2)[i & 1]
        cfma(d, C_L, cur, GD + 2 * i, tt)
        cur = d
    CQ = GD
    cmul(CQ, C_LQ, cur, tt)
    for e in range(2): A(f"v_mov_b32 v{CQ+2+e}, v{CQ+e}")
    for e in range(2): A(f"v_permlane32_swap_b32 v{CQ+e}, v{CQ+2+e}")
    A(f"v_pk_add_f32 {vr(CQ,2)}, {vr(CQ,2)}, {vr(CQ+2,2)}")
    def c_reads(st):
        s2_, off = CLDS[st] >> 16, CLDS[st] & 0xffff
        r = [None] * 8
        for ks in range(4):
            for ri in range(2):
                kap = (ks >> 1) * 4 + ri * 2 + (ks & 1)
                r[kap] = f"ds_read_b128 {ar((st*8+kap)*4,4)}, v{V_AW+4*s2_+ks} offset:{off+ri*8192}"
        return r
    for m in range(2):
        d = vr(ACC2 + 16 * m, 16)
        A(mf(d, vr(XS + 8 * m + 4, 4), vr(DG + 4, 4), d))
    HR, HI = T0 + 20, T0 + 22
    A(f"v_fma_f32 v{HR}, v{E0}, v{CQ}, v{F0}")
    A(f"v_fma_f32 v{HR+1}, v{E1}, v{CQ}, v{F1}")
    A(f"v_fma_f32 v{HI}, -v{E0}, v{CQ+1}, -v{F0+1}")
    A(f"v_fma_f32 v{HI+1}, -v{E1}, v{CQ+1}, -v{F1+1}")
    A(f"v_fma_f32 v{HR}, -v{E0+1}, v{CQ+1}, v{HR}")
    A(f"v_fma_f32 v{HR+1}, -v{E1+1}, v{CQ+1}, v{HR+1}")
    A(f"v_fma_f32 v{HI}, -v{E0+1}, v{CQ}, v{HI}")
    A(f"v_fma_f32 v{HI+1}, -v{E1+1}, v{CQ}, v{HI+1}")
    pr, pi_ = HR, HI
    def hstore(ph, o):
        A(f"buffer_store_dwordx4 {vr(HP+16*ph+4*o,4)}, v{V_SO+o if o else V_HSO}, s[{SWS}:{SWS+3}], s{P_ACTW+ph} offen offset:{o*512} sc1")
    for hf in range(2):
        for s in range(8 * hf, 8 * hf + 8):
            re, im = URE + 2 * s, UIM + 2 * s
            emit([f"v_pk_fma_f32 {vr(re,2)}, {vr(C_LAM,2)}, {vr(pi_,2)}, {vr(re,2)} {lam_bc(1)}",
                  f"v_pk_fma_f32 {vr(im,2)}, {vr(C_LAM,2)}, {vr(pr,2)}, {vr(im,2)} {lam_bc(1)} {NEG}",
                  f"v_pk_fma_f32 {vr(re,2)}, {vr(C_LAM,2)}, {vr(pr,2)}, {vr(re,2)} {lam_bc(0)}",
                  f"v_pk_fma_f32 {vr(im,2)}, {vr(C_LAM,2)}, {vr(pi_,2)}, {vr(im,2)} {lam_bc(0)}"])
            pr, pi_ = re, im
        for z in range(2):
            o = 2 * z + hf
            for ri in range(2):
                U = (URE, UIM)[ri]
                for u in range(4):
                    s0 = 8 * hf + 2 * u
                    A(f"v_cvt_pk_bf16_f32 v{HP+(ri*4+o)*4+u}, v{U+2*s0+z}, v{U+2*s0+2+z}")
            for u in range(4):
                A(f"v_permlane32_swap_b32 v{HP+o*4+u}, v{HP+16+o*4+u}")
            hstore(0, o)
    tok_a = A.vm
    for o in range(4): hstore(1, o)
    tok_h = A.vm
    stamp(9)
    for st in CORD[8-CPOST:] if CPOST else []: run(c_pieces(st))
    tok_c2 = A.vm
    HS = [3, 4, 0, 1, 3, 4, 0, 1]
    def h_pieces(G):
        r = []
        for sub in range(2):
            pos, ph = SEQ[2 * G + sub]
            r += dma_pieces(V_LIN, SWS, ST + 8, HS[G] * SLOT + sub * 16384,
                            pre=lambda pos=pos, ph=ph: (A(f"s_lshl_b32 s{ST+8}, s{KAP[pos]}, 15"), A(f"s_add_u32 s{ST+8}, s{ST+8}, s{P_ACTR+ph}")),
                            post=(lambda: tok.__setitem__(("h", G), A.vm)) if sub else None, flags=PLF, same_v=True)
        return r
    assert CPRE == 8
    call = sum([c_reads(st) for st in [0, 1, 2, 3, 4, 5, 6, 7]], [])
    HF = 48
    def rd2(n):
        G, q = n >> 2, n & 3
        slot, buf = HS[G], n & 1
        r = []
        for h in range(4):
            kap = 4 * (q & 1) + h
            off = (slot & 1) * SLOT + (q >> 1) * 16384 + (kap >> 2) * 4096 + ((kap >> 1) & 1) * 2048 + (kap & 1) * 256
            for j in range(2):
                if True:
                    r.append(f"ds_read_b64_tr_b16 {vr(HF+buf*16+h*4+2*j,2)}, v{V_AH+2*(slot>>1)+j} offset:{off}")
        return r
    def mm2(n):
        buf = n & 1
        pos, ph = SEQ[n >> 1]
        d = vr(ACC2 + 16 * ph, 16)
        return [mf(d, vr(HF + buf * 16 + h * 4, 4), ar((8 * pos + 4 * (n & 1) + h) * 4, 4), d) for h in range(4)]
    xcc_decide(14)
    A.wait_vm(tok_c)
    A("s_barrier")
    slin(ST + 2, 3 * SLOT, (S_WAVE, 4096))
    A(f"v_add_u32 v{V_GO}, s{ST+2}, v{V_HSO}")
    for o in range(1, 4): A(f"v_xor_b32 v{V_GO+o}, {o*64}, v{V_GO}")
    for p in range(8):
        A(f"ds_write_b128 v{V_GO+(p&3)}, {vr(HP+4*p,4)} offset:{(p>>2)*16384+(p&3)*512}")
    emit(call[:8])
    A("s_waitcnt lgkmcnt(0)")
    A("s_barrier")
    cf = call[8:32]
    gemm_loop(4, rd2, mm2, lambda n: None, (3, 3, 2, 0), (2, 3), cf)
    A.wait_vm(tok_a)
    flag_store(0)
    emit(cf)
    if CPOST:
        A.wait_vm(tok_h)
        flag_store(1)
        A.wait_both(tok_c2, A.lg)
        A("s_barrier")
        stamp(10)
    else:
        A("s_waitcnt lgkmcnt(0)")
        A("s_barrier")
        stamp(10)
        A.wait_vm(tok_h)
        flag_store(1)
    flag_poll(0)
    stamp(11)
    run(h_pieces(1))
    weave(call[32:], h_pieces(2), 4)
    if OPT.get("btouch", 0):
        A(f"v_lshlrev_b32 v9, 7, v{V_N}")
        A(f"buffer_load_dword v254, v9, s[{SWS}:{SWS+3}], s{P_ACTW2} offen sc1")
    stamp(12)
    fill = []
    h4 = h_pieces(4)
    def on_step2(n):
        G, q = n >> 2, n & 3
        if q == 0 and OPT.get("g2st") and G > 1: stamp(15 + G)
        if n == 7:
            A.wait_vm(tok["fb"])
            flag_check(1)
        fb = [lambda: (flag_load(1), tok.__setitem__("fb", A.vm))]
        if q == 0 and G2S == 0:
            if G == 1: fill.extend(fb + h_pieces(3) + h4[:4])
            elif G == 2: fill.extend(h4[4:] + h_pieces(5))
            elif G + 3 < 8: fill.extend(h_pieces(G + 3))
            elif G == 5: fill.extend(out_stores(ACC2, 0))
        elif q == 0 and G2S in (1, 2):
            if G == 1: fill.extend(fb)
            if G + 2 < 8: fill.extend(h_pieces(G + 2))
            elif G == 6: fill.extend(out_stores(ACC2, 0))
        elif q == 0:
            if G == 1: fill.extend(fb + h_pieces(3))
            elif G == 2: fill.extend(h_pieces(4) + h_pieces(5)[:4])
            elif G == 3: fill.extend(h_pieces(5)[4:] + h_pieces(6))
            elif G == 4: fill.extend(h_pieces(7))
            elif G == 5: fill.extend(out_stores(ACC2, 0))
    G2S = OPT.get("g2s", 2)
    def gaps2(n):
        if G2S == 0: return (0, 1, 2, 3) if n < 12 else (2, 3)
        if G2S == 1: return (0, 1, 2, 3) if n < 24 else (2, 3)
        if G2S == 2: return (1, 2, 3) if n < 24 else (2, 3)
        return (1, 2, 3) if n < 16 else (2, 3)
    A.wait_both(tok[("h", 1)], A.lg)
    A("s_barrier")
    stamp(13)
    gemm_loop(32, rd2, mm2, lambda n: tok[("h", n >> 2)] if (n & 3) == 0 else None, (3, 3, 2, 0),
              gaps2, fill, on_step2, start=4)
    assert not fill
    stamp(14)
    run(out_stores(ACC2, 1))
    tag_update("A")
    stamp(15)
    finish()

def role_B():
    V_OO = 24
    V_AX, V_AT = 28, 36
    V_SW, V_SR, V_P2, V_G2B, V_PB0, V_PB1, V_G1, V_GZ, V_G2, V_P2Z = 39, 40, 41, 42, 43, 44, 45, 46, 47, 253
    S_WPH, V_WPO = P0 + 12, 252
    IDF = 240
    V_WF = 48
    KACC, VACC, PK, KV, WPH = 64, 96, 128, 192, 224
    T0 = 232
    P_P1O, P_P1G, P_P2O, P_P2G, P_MSK = P0 + 1, P0 + 2, P0 + 8, P0 + 9, P0 + 10
    S_PART = 57
    NS = 16 if OPT.get('p16', 1) else 32
    WPS = OPT.get('wps', 1)
    QE = OPT.get('qe', 0)
    code_prefetch()
    A("v_lshrrev_b32 v9, 1, v3")
    A("v_xor_b32 v9, v9, v4")
    A("v_lshlrev_b32 v9, 4, v9")
    A("v_lshl_add_u32 v10, v3, 10, v9")
    slin(ST, 0, (S_CHUNK, 1 << 17), (S_WAVE, 1 << 15))
    A(f"v_add_u32 v{V_OX}, s{ST}, v10")
    A(f"v_xor_b32 v11, 64, v{V_OX}")
    A(f"v_add_u32 v{V_OX+1}, 7168, v11")
    A(f"v_add_u32 v{V_OX+2}, {2*7168}, v{V_OX}")
    A(f"v_add_u32 v{V_OX+3}, {3*7168}, v11")
    A("v_bfe_u32 v9, v3, 1, 1")
    A("v_lshlrev_b32 v9, 2, v9")
    A("v_xor_b32 v9, v9, v4")
    A("v_lshlrev_b32 v9, 4, v9")
    A(f"s_lshl_b32 s{ST}, s{S_CG}, 7")
    A(f"v_add_u32 v9, s{ST}, v9")
    A(f"s_lshl_b32 s{ST+1}, s{S_CH}, 5")
    A(f"v_add_u32 v10, s{ST+1}, v3")
    A("v_mul_u32_u24 v11, 3072, v10")
    A(f"v_add_u32 v{V_OW}, v11, v9")
    for p in range(1, 4): A(f"v_add_u32 v{V_OW+p}, {p*(8*3072-1024)}, v{V_OW}")
    A(f"v_lshl_add_u32 v{V_OO}, v10, 10, v9")
    slin(S_PART, 1024, (S_RH, 1024))
    if TCHM: touch_setup("B")
    A("s_waitcnt lgkmcnt(0)")
    srd(SW, K_WQKV, 0x180000)
    stamp(1)
    ws_shift()
    A(f"s_load_dword s{S_TAG}, s[{K_WS}:{K_WS+1}], {WS_TAGB}")
    srd(SX, K_BX, 0x200000)
    tok = {}
    def g1_pieces(i):
        slot = i & 3
        return (dma_pieces(V_OW, SW, ST + 8, slot * SLOT, pre=lambda: rot_soff(ST + 8, i, mul=196608, plus=S_PART, rot=S_ROT1)) +
                dma_pieces(V_OX, SX, ST + 10, slot * SLOT + 16384, pre=lambda: rot_soff(ST + 10, i, shift=7, rot=S_ROT1),
                           post=lambda: tok.__setitem__(i, A.vm), flags=XF))
    QSLOT = [4, 0]; OSLOT = [1, 2]
    def q_pieces(st):
        return dma_pieces(V_OW, SW, ST + 9, QSLOT[st >> 1] * SLOT + (st & 1) * 16384,
                          pre=lambda: rot_soff(ST + 9, 2 * st, mul=196608, extra_sreg=S_RH, rot=S_ROT1), post=lambda: tok.__setitem__(("q", st), A.vm))
    OPAIR = [(1, 2), (0, 3), (4, 5), (6, 7)]
    OLDS = {}
    for st_, pr_ in enumerate(OPAIR):
        for e_ in range(2): OLDS[pr_[e_]] = OSLOT[st_ >> 1] * SLOT + (st_ & 1) * 16384 + e_ * 8192
    def o_pieces(st):
        def pre():
            A(f"s_cmp_eq_u32 s{S_RH}, 0")
            A(f"s_cselect_b32 s{ST+9}, s{KAP[OPAIR[st][0]]}, s{KAP[OPAIR[st][1]]}")
            A(f"s_lshl_b32 s{ST+9}, s{ST+9}, 16")
        return dma_pieces(V_OO, SW2, ST + 9, OSLOT[st >> 1] * SLOT + (st & 1) * 16384, pre=pre)
    run(g1_pieces(0))
    WPL = 4 * SLOT
    srd(SW2, K_WPHI, 0x4000)
    A(f"v_lshlrev_b32 v{V_LIN}, 4, v{V_LANE}")
    slin(ST, 0, (S_CG, 2048), (S_CH, 1024))
    A(f"s_lshl_b32 s{ST+1}, s{S_WAVE}, 10")
    A(f"s_add_u32 m0, s{ST+1}, {WPL:#x}")
    A(f"buffer_load_dwordx4 v{V_LIN}, s[{SW2}:{SW2+3}], s{ST} offen lds")
    late = g1_pieces(1)
    if TCHM:
        touch_srd("B"); touch(1, V_T3)()
        if TCHM == 1: late = late + [touch(4, V_T2)] + g1_pieces(2) + [touch(6, V_T2)]
    elif EARLY:
        run(late[:NPRE]); late = late[NPRE:] + g1_pieces(2)
    else:
        run(late); late = []
    if OPT.get("wtouch", 0):
        slin(ST, 0, (S_CHUNK, 32), (S_WAVE, 8))
        A(f"v_add_u32 v9, s{ST}, v4")
        A("v_mul_u32_u24 v10, 3072, v9")
        A("v_lshlrev_b32 v9, 10, v9")
        A(f"s_lshl_b32 s{ST}, s{S_CG}, 7")
        A(f"buffer_load_dword v254, v10, s[{SW}:{SW+3}], s{ST} offen")
        A(f"buffer_load_dword v254, v9, s[{SW2}:{SW2+3}], s{ST} offen")
    stamp(2)
    cut("B")
    A(f"s_lshl_b32 s{ST}, s{S_RH}, 13")
    lds_b128_addrs(V_AX, ST, 16384, 2)
    A(f"v_bfe_u32 v9, v{V_LANE}, 4, 1")
    A(f"v_bfe_u32 v13, v{V_LANE}, 1, 1")
    A("v_lshl_add_u32 v10, v9, 1, v13")
    A(f"v_bfe_u32 v13, v{V_LANE}, 3, 1")
    A(f"v_xor_b32 v13, s{S_CH}, v13")
    A("v_lshl_add_u32 v9, v13, 2, v10")
    A("v_lshlrev_b32 v9, 4, v9")
    A(f"v_and_b32 v10, 1, v{V_LANE}")
    A("v_lshl_add_u32 v9, v10, 3, v9")
    A(f"v_bfe_u32 v14, v{V_LANE}, 2, 2")
    A(f"v_lshl_add_u32 v13, v{V_G}, 3, v14")
    A(f"v_lshl_add_u32 v{V_AT}, v13, 7, v9")
    A(f"v_add_u32 v{V_AT+1}, 0x10000, v{V_AT}")
    A(f"v_add_u32 v{V_AT+2}, 0x20000, v{V_AT}")
    if OPT.get("lateset", 1): A.cap = []
    srd(SW2, K_WO, 0x80000)
    common_setup("B")
    for p in range(1, 4): A(f"v_add_u32 v{V_OO+p}, {p*7168}, v{V_OO}")
    A(f"v_bfe_u32 v9, v{V_LANE}, 4, 1")
    A(f"v_bfe_u32 v13, v{V_LANE}, 1, 1")
    A("v_lshl_add_u32 v9, v9, 1, v13")
    A("v_lshlrev_b32 v9, 3, v9")
    A(f"v_bfe_u32 v13, v{V_LANE}, 2, 2")
    A(f"v_lshl_add_u32 v13, v{V_G}, 2, v13")
    A("v_lshl_add_u32 v9, v13, 5, v9")
    slin(ST, WPL, (S_WAVE, 1024))
    A(f"v_add_u32 v{V_WPO}, s{ST}, v9")
    if NS == 32: slin(ST, 0, (S_CG, 512), (S_CH, 256), (S_CHUNK, 2), (S_RH, 1))
    else:
        slin(ST, 0, (S_CG, 256), (S_CH, 128), (S_RH, 32), (S_CHUNK, 1))
    slin(P_P1O, WS_P1, (ST, 640))
    slin(ST, 0, (S_CG, 16), (S_CHUNK, 1))
    slin(P_P2O, WS_P2, (ST, 640))
    slin(P_P1G, WS_P1, (ST, NS * 640))
    for k in range(1, 4): A(f"s_add_u32 s{P_P1G+k}, s{P_P1G}, {8*k*640}")
    slin(ST, 0, (S_CG, 16), (S_CH, 8))
    slin(P_P2G, WS_P2, (ST, 640))
    A(f"s_mov_b32 s{P_MSK}, 0xffffff00")
    slin(P_ACTW, WS_O, (S_CHUNK, 1 << 17), (S_CG, 1 << 14), (S_RH, 1 << 12), (S_CH, 1 << 11))
    A(f"s_add_u32 s{P_ACTW2}, s{P_ACTW}, 8192")
    slin(P_ACTR, WS_O, (S_CHUNK, 1 << 17), (S_MF, 8192), (S_WAVE, 2048))
    A(f"s_lshl_b32 s{S_M0W2}, s{S_WAVE}, 11")
    A(f"s_xor_b32 s{P_ACTR2}, s{P_ACTR}, 8192")
    clears = [f"buffer_store_dwordx4 {vr(T0+16,4)}, v{V_LIN}, s[{SWS}:{SWS+3}], s{P_ACTW+(k>>1)} offen offset:{(k&1)*1024} sc1" for k in range(4)]
    A(f"s_and_b32 s{ST}, s{S_TAG}, 0xff")
    A(f"v_mov_b32 v{V_TAG}, s{ST}")
    A(f"v_mov_b32 v11, s{S_TAG}")
    A(f"v_and_b32 v9, 1, v{V_N}")
    A("v_lshlrev_b32 v9, 4, v9")
    A("v_mov_b32 v13, 0x3f80")
    A("v_lshlrev_b32 v13, v9, v13")
    A(f"v_lshrrev_b32 v9, 1, v{V_N}")
    A(f"v_lshlrev_b32 v14, 3, v{V_G}")
    A("v_sub_u32 v9, v9, v14")
    for q in range(8):
        A(f"v_cmp_eq_u32 vcc, {q}, v9")
        A(f"v_cndmask_b32_e64 v{IDF+q}, 0, v13, vcc")
    A(f"v_and_b32 v9, 15, v{V_LANE}")
    A("v_cmp_gt_u32 vcc, 4, v9")
    A("v_lshlrev_b32 v9, 4, v9")
    A(f"v_lshl_add_u32 v13, v{V_G}, 6, v9")
    A("v_add_u32 v13, 512, v13")
    A(f"v_lshl_add_u32 v9, v{V_G}, 8, v9")
    A(f"v_mov_b32 v14, {OOB:#x}")
    A("v_cndmask_b32 v13, v14, v13, vcc")
    A(f"v_cndmask_b32_e64 v{V_PB0}, v9, v13, s[{S_M16}:{S_M16+1}]")
    A(f"v_cndmask_b32_e64 v{V_PB1}, v13, v9, s[{S_M16}:{S_M16+1}]")
    A(f"v_cndmask_b32_e64 v13, v13, v14, s[{S_M16}:{S_M16+1}]")
    A(f"s_cmp_eq_u32 s{S_WAVE}, 0")
    A(f"s_cselect_b64 vcc, -1, 0")
    A(f"v_cndmask_b32 v{V_P2Z}, v14, v13, vcc")
    A(f"v_and_b32 v9, 7, v{V_LANE}")
    A(f"s_lshl_b32 s{ST}, s{S_WAVE}, 7")
    A(f"v_lshl_add_u32 v9, v9, 4, s{ST}")
    A(f"v_lshrrev_b32 v13, 3, v{V_LANE}")
    A("v_mul_u32_u24 v13, 640, v13")
    A(f"v_add_u32 v{V_G1}, v9, v13")
    A(f"v_cmp_gt_u32 vcc, 8, v{V_LANE}")
    A(f"v_and_b32 v13, {NS-1}, v{V_N}")
    A(f"v_mul_u32_u24 v{V_GZ}, 640, v13")
    if NS == 16:
        slin(ST, 3 * SLOT, (S_WAVE, 4096))
        A(f"v_add_u32 v{V_SW}, s{ST}, v{V_LIN}")
        A(f"v_xor_b32 v{V_SR}, 0x2000, v{V_SW}")
    A(f"v_lshl_add_u32 v{V_GZ}, v{V_G}, 6, v{V_GZ}")
    A(f"v_cndmask_b32 v{V_P2}, v14, v9, vcc")
    A(f"v_bfe_u32 v9, v{V_N}, 2, 1")
    A("v_lshlrev_b32 v9, 3, v9")
    A(f"v_bfe_u32 v13, v{V_N}, 3, 1")
    A("v_lshl_add_u32 v9, v13, 2, v9")
    A(f"v_and_b32 v13, 3, v{V_N}")
    A("v_add_u32 v9, v9, v13")
    A(f"v_cndmask_b32_e64 v9, v9, 32, s[{S_M16}:{S_M16+1}]")
    A("v_lshlrev_b32 v9, 4, v9")
    A(f"v_mul_u32_u24 v13, 1280, v{V_G}")
    A(f"v_add_u32 v{V_G2}, v9, v13")
    A("v_mov_b32 v9, 0x100")
    A(f"v_cndmask_b32_e64 v9, v9, 64, s[{S_M16}:{S_M16+1}]")
    A(f"v_add_u32 v{V_G2B}, v{V_G2}, v9")
    if OPT.get("prew", 1):
        for r in range(4): A(f"v_subrev_u32 v{T0+4+r}, 1, v{V_TAG}")
        A(f"buffer_store_dwordx4 {vr(T0+4,4)}, v{V_P2Z}, s[{SWS}:{SWS+3}], s{P_P2O} offen sc1")
        A(f"buffer_store_dwordx4 {vr(T0+4,4)}, v{V_P2}, s[{SWS}:{SWS+3}], s{P_P2O} offen sc1")
    A("v_mov_b32 v3, 0x3f803f80")
    A(f"v_bfe_u32 v4, v{V_LANE}, 2, 1")
    A("v_mul_u32_u24 v4, 0x8000, v4")
    A("v_lshl_or_b32 v4, v4, 16, v4")
    SET, A.cap = (A.cap or []), None
    LATEV = [x for x in SET if x.startswith("buffer_")]
    SET = [x for x in SET if not x.startswith("buffer_")]
    for _ in range(OPT.get("pset", 0)):
        if not SET or SET[0] == "@consts": break
        if SET[0].startswith(f"s_add_u32 s{S_TAG},"): A("s_waitcnt lgkmcnt(0)")
        A(SET.pop(0))
    while SET and (SET[0].startswith("s_addc") or SET[0].startswith("s_cselect")): A(SET.pop(0))
    if "@consts" in SET:
        k_ = SET.index("@consts")
        SET = SET[:k_] + ["@hold"] + SET[k_+1:]
    stamp(3)
    run(late)
    def trfrag(dst, ldsoff, kind="v"):
        s_, off = ldsoff >> 16, ldsoff & 0xffff
        return [f"ds_read_b64_tr_b16 {vr(dst+2*j,2,kind)}, v{V_AT+s_} offset:{off+j*512}" for j in range(2)]
    def rd(n):
        i, ks = n >> 2, n & 3
        slot, buf = i & 3, n & 1
        s2_, off = slot >> 1, (slot & 1) * SLOT
        x = [f"ds_read_b128 {ar(n*8+m*4,4)}, v{V_AX+4*s2_+ks} offset:{off+m*4096}" for m in range(2)]
        w = [trfrag(V_WF + buf * 8 + part * 4, slot * SLOT + part * 8192 + ks * 2048) for part in range(2)]
        return [x[0]] + w[0] + [x[1]] + w[1]
    def mm(n):
        buf = n & 1
        r = []
        for part, m in ((0, 0), (0, 1), (1, 0), (1, 1)):
            x, w = ar(n * 8 + m * 4, 4), vr(V_WF + buf * 8 + part * 4, 4)
            d = vr((KACC, VACC)[part] + 16 * m, 16)
            r.append(mf(d, w, x, d if n else "0") if part == 0 else mf(d, x, w, d if n else "0"))
        return r
    fill = []
    def on_step(n):
        i, ks = n >> 2, n & 3
        if ks == 0 and OPT.get("g1st") and i: stamp(16 + i)
        if ks == 0:
            if TCHM == 2 and i < 2: fill.append(touch(4 + 2 * i, V_T2))
            for st in SCHED[0].get(i, []): fill.extend(g1_pieces(st))
            if i == 5: fill.extend((LATEV + q_pieces(0)) if OPT.get('lvf', 0) else (q_pieces(0) + LATEV))
            if i == 6:
                fill.extend(q_pieces(1) if QE == 3 else o_pieces(0))
                if OPT.get("ptouch", 0):
                    fill.extend([f"buffer_load_dword v254, v{V_G1}, s[{SWS}:{SWS+3}], s{P_P1G+k} offen sc1" for k in range(4)])
                    fill.append(f"buffer_load_dword v254, v{V_GZ}, s[{SWS}:{SWS+3}], s{P_P1G} offen sc1")
                    fill.extend([f"buffer_load_dword v254, v{V_G2}, s[{SWS}:{SWS+3}], s{P_P2G} offen offset:{(hh*4+jp)*640} sc1" for hh in range(2) for jp in range(2)])
                    fill.append(lambda: rdy_load(254, 254))
            elif i == 7:
                fill.extend(o_pieces(0) if QE == 3 else o_pieces(1))
                fill.append(lambda: emit([f"v_xor_b32 v{WPH+r}, v4, v{WPH+r}" for r in range(4)]))
                fill.append(lambda: emit([f"v_xor_b32 v{WPH+r}, v4, v{WPH+r}" for r in range(4, 8)]))
        if n == OPT.get('wpn', 7):
            SET.extend([f"ds_read_b64_tr_b16 {vr(WPH+4*hh+2*j,2)}, v{V_WPO} offset:{hh*512+j*256}" for hh in range(2) for j in range(2)])
    A.wait_vm(tok[0])
    A("s_barrier")
    stamp(4)
    gemm_loop(32, rd, mm, lambda n: tok[n >> 2] if (n & 3) == 0 else None, (3, 3, 0, 0), lambda n: g1_gaps(n, (7,) if QE == 1 else ()), fill, on_step, end_barrier=True, extra=SET, nextra=lambda n, g: NX)
    assert not SET
    assert not fill
    stamp(5)
    if TCHM: srd(SOUT, 100, 0x800000)
    def feat(acc):
        for m in range(2):
            for u in range(8):
                A(f"v_cvt_pk_bf16_f32 v{acc+16*m+u}, v{acc+16*m+2*u}, v{acc+16*m+2*u+1}")
            for hh in range(2):
                A(mf(vr(PK + (m * 2 + hh) * 16, 16), vr(WPH + 4 * hh, 4), vr(acc + 16 * m + 4 * hh, 4), "0"))
    def softmax_l(x, dst):
        mx, sm = T0, T0 + 2
        l = [f"v_max3_f32 v{mx}, v{x}, v{x+1}, v{x+2}"]
        for u in range(3, 15, 2):
            l.append(f"v_max3_f32 v{mx}, v{mx}, v{x+u}, v{x+u+1}")
        l.append(f"v_max_f32 v{mx}, v{mx}, v{x+15}")
        l.append(f"v_mul_f32 v{mx}, s{S_L2E}, v{mx}")
        for u in range(8):
            l.append(f"v_pk_fma_f32 {vr(x+2*u,2)}, {vr(x+2*u,2)}, s[{S_L2E}:{S_L2E+1}], {vr(mx,2)} op_sel_hi:[1,1,0] neg_lo:[0,0,1] neg_hi:[0,0,1]")
        for u in range(16):
            l.append(f"v_exp_f32 v{x+u}, v{x+u}")
        l.append(f"v_pk_add_f32 {vr(sm,2)}, {vr(x,2)}, {vr(x+2,2)}")
        for u in range(2, 8):
            l.append(f"v_pk_add_f32 {vr(sm,2)}, {vr(sm,2)}, {vr(x+2*u,2)}")
        l.append(f"v_add_f32 v{sm}, v{sm}, v{sm+1}")
        l.append(f"v_rcp_f32 v{sm}, v{sm}")
        for u in range(8):
            l.append(f"v_pk_mul_f32 {vr(x+2*u,2)}, {vr(x+2*u,2)}, {vr(sm,2)} op_sel_hi:[1,0]")
        for u in range(8):
            l.append(f"v_cvt_pk_bf16_f32 v{dst+u}, v{x+2*u}, v{x+2*u+1}")
        return l
    feat(KACC)
    for m in range(2):
        for u in range(8):
            A(f"v_cvt_pk_bf16_f32 v{VACC+16*m+u}, v{VACC+16*m+2*u}, v{VACC+16*m+2*u+1}")
    for m in range(2):
        for u in range(8):
            A(f"v_cndmask_b32_e64 v{VACC+16*m+8+u}, v3, v{VACC+16*m+u}, s[{S_M16}:{S_M16+1}]")
            A(f"v_cndmask_b32_e64 v{VACC+16*m+u}, v{VACC+16*m+u}, v3, s[{S_M16}:{S_M16+1}]")
    nbstamp(0)
    PH = [KACC + 8, KACC + 24]
    ID = T0 + 8
    def tmm(blk):
        d = vr(PK + 16 * blk, 16)
        return [mf(d, vr(PH[blk & 1] + 4 * jp, 4), vr(ID + 4 * jp, 4), d if jp else "0") for jp in range(2)]
    def tcvt(blk):
        t = PK + 16 * blk
        return [f"v_cvt_pk_bf16_f32 v{t+u}, v{t+2*u}, v{t+2*u+1}" for u in range(8)]
    def kvmm(blk):
        m, hh = blk >> 1, blk & 1
        d = vr(KV + 16 * hh, 16)
        return [mf(d, vr(PK + 16 * blk + 4 * mm_, 4), vr(VACC + 16 * m + 8 * hh + 4 * mm_, 4), d if (m or mm_) else "0") for mm_ in range(2)]
    for blk in range(4):
        l = softmax_l(PK + blk * 16, PH[blk & 1])
        if blk:
            t, kv = tmm(blk - 1), kvmm(blk - 1)
            qp = q_pieces(blk) if not QE else (q_pieces(blk + 1) if blk < 3 else o_pieces(1))
            l = l[:17] + [t[0], qp[0]] + l[17:21] + [t[1], qp[1]] + l[21:33] + tcvt(blk - 1) + l[33:50] + [kv[0], qp[2]] + l[50:58] + [kv[1], qp[3]]
        run([x for x in l if x is not None])
        nbstamp(1 + blk)
    TS = 4 if OPT.get("tag1", 1) else 1
    def tagit(r, n):
        for e in range(0, n, TS):
            A(f"v_and_or_b32 v{r+e}, v{r+e}, s{P_MSK}, v{V_TAG}")
    def pub(hh, oc):
        A(f"s_add_u32 s{ST+3}, s{P_P1O}, {(hh*4+oc)*32*640}")
        A(f"buffer_store_dwordx4 {vr(KV+16*hh+4*oc,4)}, v{V_PB0+hh}, s[{SWS}:{SWS+3}], s{ST+3} offen sc1")
    if NS == 32:
        emit(tmm(3))
        tagit(KV, 16)
        pub(0, 0); pub(0, 1)
        emit(tcvt(3))
        emit(kvmm(3))
        nbstamp(5)
        pub(0, 2); pub(0, 3)
        tagit(KV + 16, 16)
        for oc in range(4): pub(1, oc)
    else:
        RB = PK
        def tail(rh):
            keep, send = 8 * rh, 8 - 8 * rh
            emit(tmm(3))
            for u in range(2): A(f"ds_write_b128 v{V_SW}, {vr(KV+send+4*u,4)} offset:{u*1024}")
            emit(tcvt(3))
            emit(kvmm(3))
            for u in range(2): A(f"ds_write_b128 v{V_SW}, {vr(KV+16+send+4*u,4)} offset:{(2+u)*1024}")
            A("s_waitcnt lgkmcnt(0)")
            A("s_barrier")
            for u in range(4): A(f"ds_read_b128 {vr(RB+4*u,4)}, v{V_SR} offset:{u*1024}")
            for hh in range(2):
                for jj in range(2):
                    r = KV + 16 * hh + keep + 4 * jj
                    A(f"s_add_u32 s{ST+3}, s{P_P1O}, {(hh*4+jj)*16*640}")
                    A(f"s_waitcnt lgkmcnt({3-2*hh-jj})")
                    for u in range(2):
                        A(f"v_pk_add_f32 {vr(r+2*u,2)}, {vr(r+2*u,2)}, {vr(RB+8*hh+4*jj+2*u,2)}")
                    tagit(r, 4)
                    A(f"buffer_store_dwordx4 {vr(r,4)}, v{V_PB0+hh}, s[{SWS}:{SWS+3}], s{ST+3} offen sc1")
        l1, l2 = lab("rh1"), lab("rhj")
        A(f"s_cmp_lg_u32 s{S_RH}, 0")
        A(f"s_cbranch_scc1 {l1}")
        st_ = (A.vm, A.lg, list(A.hist))
        tail(0)
        A(f"s_branch {l2}")
        A.label(l1)
        A.vm, A.lg, A.hist = st_[0], st_[1], list(st_[2])
        tail(1)
        A.label(l2)
    QACC = KACC
    def qaddr(n):
        i, ks = n >> 2, n & 3
        return QSLOT[i >> 2] * SLOT + (i & 3) * 8192 + ks * 2048
    def rdq(n):
        return trfrag(V_WF + (n & 1) * 8, qaddr(2 * n)) + trfrag(V_WF + (n & 1) * 8 + 4, qaddr(2 * n + 1))
    def mmq(n):
        r = []
        for h in range(2):
            for m in range(2):
                d = vr(QACC + 16 * m, 16)
                r.append(mf(d, vr(V_WF + (n & 1) * 8 + 4 * h, 4), ar((2 * n + h) * 8 + m * 4, 4), d if (n or h) else "0"))
        if n == 15: r = [r[0], r[2], r[1], r[3]]
        return r
    stamp(6)
    nbflush()
    GD = VACC
    GZ = GD + 16
    g1l = [f"buffer_load_dwordx4 {vr(GD+4*k,4)}, v{V_G1}, s[{SWS}:{SWS+3}], s{P_P1G+k} offen sc1" for k in range(NS // 8)]
    g1l.append(f"buffer_load_dwordx4 {vr(GZ,4)}, v{V_GZ}, s[{SWS}:{SWS+3}], s{P_P1G} offen offset:512 sc1")
    S_D1, S_RET = P0 + 11, ST + 6
    A(f"s_mov_b32 s{S_D1}, 0")
    def try1a(block=False):
        skip = lab("sk")
        if block:
            A(f"s_cmp_lg_u32 s{S_D1}, 0")
        else:
            A(f"s_getreg_b32 s{ST+5}, hwreg(HW_REG_IB_STS, 0, 4)")
            A(f"s_or_b32 s{ST+5}, s{ST+5}, s{S_D1}")
        A(f"s_cbranch_scc1 {skip}")
        A(f"s_call_b64 s[{S_RET}:{S_RET+1}], L_try1a")
        A.label(skip)
    def sub_try1a():
        A.label("L_try1a")
        A.hist = []
        A("s_waitcnt vmcnt(0)")
        A(f"v_xor_b32 v13, v{GD}, v{V_TAG}")
        for s in [x for x in range(TS, 20, TS) if x < NS // 2 or x >= 16]:
            A(f"v_bitop3_b32 v13, v{GD+s}, v{V_TAG}, v13 bitop3:0xbe")
        A("v_and_b32 v13, 0xff, v13")
        A(f"v_cmp_ne_u32 s[{S_FAIL}:{S_FAIL+1}], 0, v13")
        A(f"s_cmp_eq_u64 s[{S_FAIL}:{S_FAIL+1}], 0")
        A("s_cbranch_scc1 L_try1a_ok")
        emit(g1l)
        A(f"s_setpc_b64 s[{S_RET}:{S_RET+1}]")
        A.label("L_try1a_ok")
        DPP = "row_mask:0xf bank_mask:0xf"
        A(f"v_permlane16_swap_b32 v{GZ}, v{GZ+2}")
        A(f"v_permlane16_swap_b32 v{GZ+1}, v{GZ+3}")
        if NS == 32:
            for u in range(0, 8, 2):
                A(f"v_pk_add_f32 {vr(GD+u,2)}, {vr(GD+u,2)}, {vr(GD+8+u,2)}")
            A(f"v_pk_add_f32 {vr(GZ,2)}, {vr(GZ,2)}, {vr(GZ+2,2)}")
        for u in range(0, 4, 2):
            A(f"v_pk_add_f32 {vr(GD+u,2)}, {vr(GD+u,2)}, {vr(GD+4+u,2)}")
        def zror(k):
            for e in range(2): A(f"v_add_f32_dpp v{GZ+e}, v{GZ+e}, v{GZ+e} row_ror:{k} {DPP}")
        zror(1)
        A(f"v_permlane32_swap_b32 v{GD}, v{GD+1}")
        A(f"v_permlane32_swap_b32 v{GD+2}, v{GD+3}")
        zror(2)
        A(f"v_add_f32 v{GD}, v{GD}, v{GD+1}")
        A(f"v_add_f32 v{GD+2}, v{GD+2}, v{GD+3}")
        zror(4)
        A(f"v_permlane16_swap_b32 v{GD}, v{GD+2}")
        A(f"v_add_f32 v{GD}, v{GD}, v{GD+2}")
        zror(8)
        A(f"v_add_f32_dpp v{GD}, v{GD}, v{GD} row_ror:8 {DPP}")
        for e in range(2): A(f"v_and_or_b32 v{GZ+e}, v{GZ+e}, s{P_MSK}, v{V_TAG}")
        A(f"v_and_or_b32 v{GD}, v{GD}, s{P_MSK}, v{V_TAG}")
        for e in range(2): A(f"v_mov_b32 v{GZ+2+e}, v{GZ+e}")
        A(f"v_mov_b32 v{GD+1}, v{GD}")
        A(f"v_permlane16_swap_b32 v{GZ}, v{GZ+2}")
        A(f"v_permlane16_swap_b32 v{GZ+1}, v{GZ+3}")
        A(f"v_permlane32_swap_b32 v{GD}, v{GD+1}")
        A(f"buffer_store_dwordx4 {vr(GZ,4)}, v{V_P2Z}, s[{SWS}:{SWS+3}], s{P_P2O} offen sc1")
        A(f"v_mov_b32 v{GD+2}, v{GD}")
        A(f"v_mov_b32 v{GD+3}, v{GD+1}")
        A(f"v_permlane16_swap_b32 v{GD}, v{GD+2}")
        A(f"v_permlane16_swap_b32 v{GD+1}, v{GD+3}")
        A(f"buffer_store_dwordx4 {vr(GD,4)}, v{V_P2}, s[{SWS}:{SWS+3}], s{P_P2O} offen sc1")
        stamp(8)
        A(f"s_mov_b32 s{S_D1}, 1")
        A(f"s_setpc_b64 s[{S_RET}:{S_RET+1}]")
    DEFER.append(sub_try1a)
    fill = []
    G1AT = OPT.get('g1at', 6)
    def on_stepq(n):
        if n == 0: fill.extend((o_pieces(1) if QE == 1 else (q_pieces(2) + q_pieces(3) if QE == 2 else [])) + o_pieces(2) + o_pieces(3) + [lambda: (rdy_load(14), tok.__setitem__('wo', A.vm))])
        if n == G1AT: fill.extend(g1l + [None])
        if n >= G1AT + 4: fill.extend([None, try1a])
    if QE == 2:
        run(q_pieces(1))
        A.wait_vm(tok[("q", 0)])
        qb = lambda n: tok[("q", n >> 2)] if n in (4, 8, 12) else None
    else:
        A.wait_vm(tok[("q", 3)])
        qb = lambda n: None
    A("s_barrier")
    stamp(26)
    gemm_loop(16, rdq, mmq, qb, (2, 2, 0, 0), lambda n: (0, 1, 2, 3) if (QE == 2 and n < 2) else (2, 3), fill, on_stepq)
    assert not fill
    stamp(7)
    feat(QACC)
    def wait1a():
        top, done = lab("w1a"), lab("w1d")
        A(f"s_mov_b32 s{S_CNT}, {SPIN_LIMIT}")
        A.label(top)
        try1a(block=True)
        A(f"s_cmp_lg_u32 s{S_D1}, 0")
        A(f"s_cbranch_scc1 {done}")
        A(f"s_sub_u32 s{S_CNT}, s{S_CNT}, 1")
        A(f"s_cbranch_scc0 {top}")
        A.label(done)
    B1 = OPT.get("blk1a", 0)
    if B1 == 0: wait1a()
    S_D2 = ST + 4
    A(f"s_mov_b32 s{S_D2}, 0")
    PHQ = KV
    FD = PK
    def loads2(rdy=True):
        for hh in range(2):
            for jp in range(2):
                r = FD + (hh * 2 + jp) * 8
                off = (hh * 4 + jp) * 640
                A(f"buffer_load_dwordx4 {vr(r,4)}, v{V_G2}, s[{SWS}:{SWS+3}], s{P_P2G} offen offset:{off} sc1")
                A(f"buffer_load_dwordx4 {vr(r+4,4)}, v{V_G2B}, s[{SWS}:{SWS+3}], s{P_P2G} offen offset:{off} sc1")
        if rdy: rdy_load(14)
    def check2():
        A(f"v_xor_b32 v13, v{FD}, v{V_TAG}")
        for s in range(1, 32):
            A(f"v_bitop3_b32 v13, v{FD+s}, v{V_TAG}, v13 bitop3:0xbe")
        rdy_check(9, 14)
        A("v_and_b32 v13, 0xff, v13")
        A("v_or_b32 v13, v13, v9")
        A(f"v_cmp_ne_u32 s[{S_FAIL}:{S_FAIL+1}], 0, v13")
    for blk in range(4):
        if blk == OPT.get("l2at", 3): loads2(False)
        emit(softmax_l(PK + blk * 16, PHQ + 8 * blk))
        if blk + 1 == B1: wait1a()
    A("s_barrier")
    stamp(9)
    KVF = VACC + 16
    ODR = [KACC, KACC + 16, PK + 32, PK + 48]
    A(f"s_lshl_b32 s{ST+5}, s{S_RH}, 12")
    A(f"v_add_u32 v{V_AX}, s{ST+5}, v{V_LIN}")
    A(f"v_add_u32 v{V_AX+1}, 0x10000, v{V_AX}")
    A(f"v_add_u32 v{V_AX+2}, 0x20000, v{V_AX}")
    slin(ST + 5, 3 * SLOT, (S_MF, 8192), (S_M0W2, 1))
    A(f"v_add_u32 v{V_AX+3}, s{ST+5}, v{V_LIN}")
    A(f"v_xor_b32 v{V_AX+4}, 0x2000, v{V_AX+3}")
    wor = []
    for n in range(32):
        wor += trfrag(n * 4, OLDS[n >> 2] + (n & 3) * 2048, "a")
    NW = OPT.get('nw', 8)
    emit(wor[:NW])
    def check2m():
        chk = [f"v_xor_b32 v13, v{FD}, v{V_TAG}"] + [f"v_bitop3_b32 v13, v{FD+s}, v{V_TAG}, v13 bitop3:0xbe" for s in range(TS, 32, TS)]
        for hh in range(2):
            for q in (2 * hh, 2 * hh + 1):
                for u in range(4):
                    A(f"v_cvt_pk_bf16_f32 v{KVF+4*q+u}, v{FD+8*q+2*u}, v{FD+8*q+2*u+1}")
            for m in range(2):
                blk = 2 * m + hh
                d = vr(ODR[blk], 16)
                for jp in range(2):
                    A(mf(d, vr(KVF + (hh * 2 + jp) * 4, 4), vr(PHQ + 8 * blk + 4 * jp, 4), d if jp else "0"))
                    k = 3 if hh == 0 else 5
                    emit(chk[:k]); chk = chk[k:]
        assert not chk
        rdy_check(9, 14)
        A("v_and_b32 v13, 0xff, v13")
        A("v_or_b32 v13, v13, v9")
        A(f"v_cmp_ne_u32 s[{S_FAIL}:{S_FAIL+1}], 0, v13")
    poll_pre(loads2, check2m)
    stamp(10)
    A("s_nop 2")
    for blk in (0, 2, 1, 3):
        m, hh = blk >> 1, blk & 1
        o = ODR[blk]
        A(f"v_add_f32 v{o+8}, 0x358637bd, v{o+8}")
        A(f"v_rcp_f32 v{o+8}, v{o+8}")
        for u in range(4):
            A(f"v_pk_mul_f32 {vr(o+2*u,2)}, {vr(o+2*u,2)}, {vr(o+8,2)} op_sel_hi:[1,0]")
        for u in range(4):
            A(f"v_cvt_pk_bf16_f32 v{o+12+u}, v{o+2*u}, v{o+2*u+1}")
        A(f"buffer_store_dwordx4 {vr(o+12,4)}, v{V_LIN}, s[{SWS}:{SWS+3}], s{P_ACTW+m} offen offset:{hh*1024} sc1")
    tok_o = A.vm
    xcc_decide(14)
    for blk in range(4):
        A(f"ds_write_b128 v{V_AX+3+(blk>>1)}, {vr(ODR[blk]+12,4)} offset:{(blk&1)*1024}")
    stamp(11)
    ELDS = [(3, 4, 0, 1)[e >> 2] * SLOT + (e & 3) * 8192 for e in range(16)]
    def of_pieces(e):
        pos, ph = SEQ[e]
        def p0():
            A(f"s_add_u32 m0, s{S_M0W2}, {ELDS[e]:#x}")
            A(f"s_lshl_b32 s{ST+8}, s{KAP[pos]}, 14")
            A(f"s_add_u32 s{ST+8}, s{ST+8}, s{P_ACTR+ph}")
            A(f"buffer_load_dwordx4 v{V_LIN}, s[{SWS}:{SWS+3}], s{ST+8} offen {PLF}lds")
        def p1():
            A(f"buffer_load_dwordx4 v{V_LIN}, s[{SWS}:{SWS+3}], s{ST+8} offen offset:1024 {PLF}lds")
            tok[("of", e)] = A.vm
        return [p0, p1]
    OF = PK
    OACC = VACC
    def rd4(n):
        return [f"ds_read_b128 {vr(OF+(n&1)*16+h*4,4)}, v{V_AX+(ELDS[n]>>16)} offset:{(ELDS[n]&0xffff)+h*1024}" for h in range(4)]
    def mm4(n):
        pos, ph = SEQ[n]
        d = vr(OACC + 16 * ph, 16)
        return [mf(d, vr(OF + (n & 1) * 16 + h * 4, 4), ar((4 * pos + h) * 4, 4), d if (pos or h) else "0") for h in range(4)]
    A("s_waitcnt lgkmcnt(0)")
    A("s_barrier")
    wf = wor[NW:]
    def two():
        for _ in range(2): A(wf.pop(0))
    gemm_loop(2, rd4, mm4, lambda n: None, (2, 2, 0, 0), (2, 3), [two] * 4)
    emit(wf[:16]); wf = wf[16:]
    A.wait_vm(tok_o)
    flag_store()
    emit(wf)
    flag_poll()
    stamp(12)
    for e in range(2, 7): run(of_pieces(e))
    fill = []
    def on_step4(n):
        if OPT.get("g2st") and n in (4, 7, 10, 13): stamp(16 + n // 3)
        if n == 2:
            for e in range(7, 16): fill.extend(of_pieces(e))
        if n == 10: fill.extend(out_stores(OACC, 0))
    A.wait_both(tok[("of", 3)], A.lg)
    A("s_barrier")
    stamp(13)
    BND = {4: 6, 7: 9, 10: 12, 13: 15}
    gemm_loop(16, rd4, mm4, lambda n: tok[("of", BND[n])] if n in BND else None, (2, 2, 0, 0),
              lambda n: (1, 2, 3) if n >= 10 else (0, 1, 2, 3), fill, on_step4, start=2)
    assert not fill
    stamp(14)
    run(out_stores(OACC, 1))
    tag_update("B")
    stamp(15)
    finish()

prologue()
vm0, lg0 = A.vm, A.lg
role_A()
for f in DEFER: f()
DEFER.clear()
A.label("L_roleB")
ROLE[0] = "B"
A.vm, A.lg = vm0, lg0
A.hist = []
role_B()
for f in DEFER: f()
A.label("L_end")
A("s_endpgm")

iB = A.out.index("L_roleB:")
iE = A.out.index("L_end:")
if OPT.get("bfirst", 1):
    lines = A.out[:CUT["P"]] + A.out[iB:CUT["B"]] + A.out[CUT["P"]:CUT["A"]] + A.out[CUT["B"]:iE] + A.out[CUT["A"]:iB] + A.out[iE:]
else:
    lines = A.out[:CUT["A"]] + A.out[iB:CUT["B"]] + A.out[CUT["A"]:iB] + A.out[CUT["B"]:]
if OPT["align"]:
    lines, nw, nn = align(lines, min_nop=OPT.get('minnop', 12))
    print("align: widened", nw, "nops", nn)
HEAD = open("cdna_kernels/" + NAME + ".s.ref").read().split("; Override launch geometry")[0]
src = HEAD + f"""; @launch grid=(256,1,1) block=(256,1,1) lds=163840
.amdgcn_target "amdgcn-amd-amdhsa--gfx950"
.text
.globl {NAME}_kernel
.p2align 8
.type {NAME}_kernel,@function
{NAME}_kernel:
""" + "\n".join(lines) + f"""
.fill 8192, 4, 0xBF810000
.section .rodata,"a"
.p2align 6
.amdhsa_kernel {NAME}_kernel
  .amdhsa_next_free_vgpr 512
  .amdhsa_next_free_sgpr 102
  .amdhsa_accum_offset 256
  .amdhsa_group_segment_fixed_size 0
  .amdhsa_kernarg_size 128
  .amdhsa_user_sgpr_count 2
  .amdhsa_user_sgpr_kernarg_segment_ptr 1
  .amdhsa_system_sgpr_workgroup_id_x 1
.end_amdhsa_kernel
"""
open(sys.argv[1], "w").write(src)
print("hazard nops:", A.nnop, "lines:", len(lines))
```

```python
import sys
from dsl import Asm, vr, ar, sr
from align import align

NAME = "concat_heads__ssm_conv_s5__linear_kernel_hedgehog__prompt"
OPT = dict(stamps=False, rotmode=2, align=1, xnt=0, hwait=8, owait=4, hand=0)
for a_ in sys.argv[2:]:
    k_, _, v_ = a_.partition("=")
    OPT[k_] = int(v_) if v_ else True

WS_TAGA, WS_TAGB = 0x0, 0x80
WS_XCC = 0x8000
WS_FLAG = 0x2000
WS_SA = 0x10000
WS_P1 = 0x100000
WS_P2 = 0x3C0000
WS_H = 0x400000
WS_O = 0x800000
WS_STAMP = 0xA00000
OOB = 0x40000000
SPIN_LIMIT = 1 << 14
LOG2E = 0x3FB8AA3B
INV2PI = 0x3E22F983

S_WAVE, S_CHUNK, S_CG, S_ROT, S_TAG = 3, 4, 5, 6, 7
SX, SW, SW2, SWS, SOUT = 8, 12, 16, 20, 24
S_RH, S_CH, S_SLOT, S_GRP = 28, 29, 30, 31
ST = 32
S_M0W, S_M0W2 = 48, 49
S_MG = 50
S_MRH = 52
S_L2E = 54
S_CNT = 56
S_FAIL = 58
S_M16 = 60
S_SM0, S_RS = 62, 63
S_XW, S_SLOW, P_FLW = 91, 92, 93
S_ROT1 = 47
KAP = [62, 63, 44, 45, 86, 87, 94, 95]
SEQ = [(0, 0), (0, 1)] + [(j, 0) for j in range(1, 8)] + [(j, 1) for j in range(1, 8)]
HAND = OPT['hand']
KA = 64
K_AX, K_LRE, K_LIM, K_BRE, K_BIM, K_CRE, K_CIM, K_LDT, K_DSK, K_BX, K_WQKV, K_WPHI, K_WO, K_OUT, K_DBG, K_WS = [KA + 2 * i for i in range(16)]
P_FLAGB, P_FLAGO, P_XCCB, P_TAGSEL, P_OUT, P_OUT2, P_ACTR, P_ACTR2 = range(64, 72)
P_ACTW, P_ACTW2, S_MF = 88, 89, 90
P0 = 72
S_STAMP = 96
V_LANE, V_OUTO, V_N, V_G, V_LIN, V_TAG, V_L0, V_CHK, V_XPO = 1, 2, 5, 6, 7, 8, 10, 12, 15
V_OX, V_OW = 16, 20
SLOT = 32768

A = Asm()
CUT = {}
nlab = [0]

def srd(dst, ptr, nbytes):
    A(f"s_mov_b32 s{dst}, s{ptr}")
    A(f"s_mov_b32 s{dst+1}, s{ptr+1}")
    A(f"s_mov_b32 s{dst+2}, {nbytes:#x}")
    A(f"s_mov_b32 s{dst+3}, 0x20000")

def slin(dst, const, *terms):
    first = True
    for reg, mul in terms:
        t = dst if first else ST + 14
        if mul == 1:
            if first: A(f"s_mov_b32 s{dst}, s{reg}")
            else: t = reg
        elif mul & (mul - 1) == 0: A(f"s_lshl_b32 s{t}, s{reg}, {mul.bit_length()-1}")
        else: A(f"s_mul_i32 s{t}, s{reg}, {mul}")
        if not first: A(f"s_add_u32 s{dst}, s{dst}, s{t}")
        first = False
    if const: A(f"s_add_u32 s{dst}, s{dst}, {const:#x}")

ROLE = ["A"]
def stamp(idx):
    if OPT.get("probe") == idx + (0 if ROLE[0] == "A" else 100):
        if OPT.get("cyc"):
            A("s_memtime s[96:97]")
            A("s_waitcnt lgkmcnt(0)")
            A("s_sub_u32 s99, s96, s98")
            A("s_lshr_b32 s99, s99, 4")
        else:
            A("s_memrealtime s[96:97]")
            A("s_waitcnt lgkmcnt(0)")
            A("s_sub_u32 s99, s96, s100")
    if not OPT["stamps"]: return
    A(f"s_memtime s[{S_STAMP}:{S_STAMP+1}]")
    A("s_waitcnt lgkmcnt(0)")
    A(f"s_sub_u32 s{S_STAMP}, s{S_STAMP}, s98")
    A(f"v_writelane_b32 v255, s{S_STAMP}, {idx}")
    if OPT.get("rt") and idx <= 16:
        A(f"s_memrealtime s[{S_STAMP}:{S_STAMP+1}]")
        A("s_waitcnt lgkmcnt(0)")
        A(f"s_sub_u32 s{S_STAMP}, s{S_STAMP}, s100")
        A(f"v_writelane_b32 v255, s{S_STAMP}, {idx+44}")

NB = [32, 36, 38, 42, 58, 56]
nbuse = []
def nbstamp(k):
    if OPT.get("nb") and OPT["stamps"]:
        A(f"s_memtime s[{NB[k]}:{NB[k]+1}]"); nbuse.append(k)
def nbflush():
    if OPT.get("nb") and OPT["stamps"]:
        A("s_waitcnt lgkmcnt(0)")
        for k in nbuse:
            A(f"s_sub_u32 s{NB[k]}, s{NB[k]}, s98")
            A(f"v_writelane_b32 v255, s{NB[k]}, {17+k}")
        nbuse.clear()

def lab(n):
    nlab[0] += 1
    return f"L_{n}_{nlab[0]}"

def finish():
    if OPT.get("probe") and (OPT["probe"] >= 100) == (ROLE[0] == "B"):
        if OPT["probe"] % 100 == 16:
            A("s_waitcnt vmcnt(0)")
            stamp(16)
        l = lab("pr")
        A("s_lshl_b32 s99, s99, 1")
        A("s_add_u32 s99, s99, 2500")
        A.label(l)
        A("s_memrealtime s[96:97]")
        A("s_waitcnt lgkmcnt(0)")
        A("s_sub_u32 s96, s96, s100")
        A("s_cmp_lt_u32 s96, s99")
        A(f"s_cbranch_scc1 {l}")
    if OPT.get("fixrt"):
        l = lab("rt")
        A.label(l)
        A("s_memrealtime s[96:97]")
        A("s_waitcnt lgkmcnt(0)")
        A("s_sub_u32 s96, s96, s100")
        A(f"s_cmp_lt_u32 s96, {OPT['fixrt']}")
        A(f"s_cbranch_scc1 {l}")
    if OPT["stamps"]:
        A("s_waitcnt vmcnt(0)")
        stamp(16)
        A("v_writelane_b32 v255, s99, 30")
        A("s_memrealtime s[96:97]")
        A("v_writelane_b32 v255, s100, 40")
        A("s_waitcnt lgkmcnt(0)")
        A("v_writelane_b32 v255, s96, 41")
        slin(ST, WS_STAMP, (2, 1024), (S_WAVE, 256))
        A(f"v_lshlrev_b32 v254, 2, v{V_LANE}")
        A(f"buffer_store_dword v255, v254, s[{SWS}:{SWS+3}], s{ST} offen")
    A("s_endpgm")

def mf(d, a, b, c):
    return f"v_mfma_f32_32x32x16_bf16 {d}, {a}, {b}, {c}"

def poll(loads, check):
    top, done = lab("poll"), lab("ok")
    A(f"s_mov_b32 s{S_CNT}, {SPIN_LIMIT}")
    A.label(top)
    loads()
    A("s_waitcnt vmcnt(0)")
    check()
    A(f"s_cmp_eq_u64 s[{S_FAIL}:{S_FAIL+1}], 0")
    A(f"s_cbranch_scc1 {done}")
    A(f"s_sub_u32 s{S_CNT}, s{S_CNT}, 1")
    A(f"s_cbranch_scc0 {top}")
    A.label(done)

def poll_pre(loads, check):
    top, done = lab("poll"), lab("ok")
    A(f"s_mov_b32 s{S_CNT}, {SPIN_LIMIT}")
    A.label(top)
    A("s_waitcnt vmcnt(0)")
    check()
    A(f"s_cmp_eq_u64 s[{S_FAIL}:{S_FAIL+1}], 0")
    A(f"s_cbranch_scc1 {done}")
    loads()
    A(f"s_sub_u32 s{S_CNT}, s{S_CNT}, 1")
    A(f"s_cbranch_scc0 {top}")
    A("s_waitcnt vmcnt(0)")
    A.label(done)

def cfma_l(d, a, b, c, t):
    return [f"v_pk_fma_f32 {vr(t,2)}, {vr(a,2)}, {vr(b,2)}, {vr(c,2)} op_sel:[1,1,0] op_sel_hi:[1,0,1] neg_lo:[1,0,0]",
            f"v_pk_fma_f32 {vr(d,2)}, {vr(a,2)}, {vr(b,2)}, {vr(t,2)} op_sel:[0,0,0] op_sel_hi:[0,1,1]"]
def cmul_l(d, a, b, t):
    return [f"v_pk_mul_f32 {vr(t,2)}, {vr(a,2)}, {vr(b,2)} op_sel:[1,1] op_sel_hi:[1,0] neg_lo:[1,0]",
            f"v_pk_fma_f32 {vr(d,2)}, {vr(a,2)}, {vr(b,2)}, {vr(t,2)} op_sel:[0,0,0] op_sel_hi:[0,1,1]"]
def emit(l):
    for x in l: A(x)
def cfma(*a): emit(cfma_l(*a))
def cmul(*a): emit(cmul_l(*a))

def weave(main, fillers, every, start=0):
    for i, x in enumerate(main):
        A(x)
        if i >= start and (i - start) % every == every - 1 and fillers:
            f = fillers.pop(0)
            if isinstance(f, str): A(f)
            elif f: f()

def gemm_loop(nsteps, reads, mfmas, boundary, split, fill_gaps, fillers, on_step=None, end_barrier=False, verify=None, start=0, extra=None, nextra=None, hook=None):
    for r in reads(start): A(r)
    for n in range(start, nsteps):
        if on_step: on_step(n)
        last = n == nsteps - 1
        b = None if last else boundary(n + 1)
        b2 = boundary(n + 2) if (verify and n + 2 < nsteps) else None
        if b2 is not None: A.wait_both(b2, A.lg)
        elif b is not None and not verify: A.wait_both(b, A.lg)
        else: A("s_waitcnt lgkmcnt(0)")
        if b is not None and verify: verify(n + 1)[1]()
        rs = [] if last else list(reads(n + 1))
        ms = mfmas(n)
        for g in range(4):
            A(ms[g])
            if g == 0 and b2 is not None: verify(n + 2)[0]()
            if g == 0 and b is not None and verify: verify(n + 1)[2]()
            if g == 0 and (b is not None or (last and end_barrier)): A("s_barrier")
            for _ in range(split[g]):
                if rs: A(rs.pop(0))
            if hook and g == 1: hook.pop(0)()
            if g in (fill_gaps(n) if callable(fill_gaps) else fill_gaps) and fillers:
                f = fillers.pop(0)
                if isinstance(f, str): A(f)
                elif f: f()
            if extra:
                k = nextra(n, g) if not extra[0].startswith('ds_') else (2 if g == 2 else 0)
                while extra and k > 0:
                    if extra[0] == "@hold":
                        if n < 3: break
                        extra.pop(0); continue
                    x = extra.pop(0); A(x); k -= 1
                    if x.startswith("s_cmp") and k == 0: k = 1
        assert not rs

def dma_pieces(voff, srdreg, soff, ldsoff, pre=None, post=None, flags="", m0reg=S_M0W, same_v=False):
    def mk(p):
        def f():
            if p == 0:
                A(f"s_add_u32 m0, s{m0reg}, {ldsoff:#x}")
                if pre: pre()
            A(f"buffer_load_dwordx4 v{voff if same_v else voff+p}, s[{srdreg}:{srdreg+3}], s{soff} offen offset:{p*1024} {flags}lds")
            if p == 3 and post: post()
        return f
    return [mk(p) for p in range(4)]

def run(fs):
    for f in fs:
        if isinstance(f, str): A(f)
        else: f()

def rot_soff(dst, add, shift=None, mul=None, extra_sreg=None, plus=None, rot=S_ROT):
    A(f"s_add_u32 s{dst}, s{rot}, {add}")
    if extra_sreg is not None: A(f"s_add_u32 s{dst}, s{dst}, s{extra_sreg}")
    A(f"s_and_b32 s{dst}, s{dst}, 7")
    if shift is not None: A(f"s_lshl_b32 s{dst}, s{dst}, {shift}")
    else: A(f"s_mul_i32 s{dst}, s{dst}, {mul}")
    if plus is not None: A(f"s_add_u32 s{dst}, s{dst}, s{plus}")

def prologue():
    if OPT["stamps"] or OPT.get("cyc"): A("s_memtime s[98:99]")
    if OPT.get("fixrt") or OPT.get("probe") or OPT["stamps"]: A("s_memrealtime s[100:101]")
    A("s_cmp_ge_u32 s2, 256")
    A("s_cbranch_scc1 L_end")
    A(f"s_load_dwordx16 s[{KA}:{KA+15}], s[0:1], 0")
    A(f"s_load_dwordx16 s[{KA+16}:{KA+31}], s[0:1], 64")
    A("v_and_b32 v1, 63, v0")
    A("v_lshrrev_b32 v2, 6, v0")
    A(f"s_lshr_b32 s{S_SLOT}, s2, 3")
    A(f"v_readfirstlane_b32 s{S_WAVE}, v2")
    A(f"s_and_b32 s{ST}, s2, 3")
    A(f"s_lshl_b32 s{S_CHUNK}, s{ST}, 2")
    A(f"s_lshr_b32 s{ST+1}, s{S_SLOT}, 3")
    A(f"s_add_u32 s{S_CHUNK}, s{S_CHUNK}, s{ST+1}")
    A(f"s_and_b32 s{S_CG}, s{S_SLOT}, 7")
    A(f"s_lshl_b32 s{S_ROT}, s{ST+1}, 1")
    A(f"s_add_u32 s{S_ROT}, s{S_ROT}, s{S_CG}")
    A(f"s_and_b32 s{S_ROT}, s{S_ROT}, 7")
    rm = OPT["rotmode"]
    if rm == 8: A(f"s_mov_b32 s{S_ROT1}, s{S_ROT}")
    elif rm == 1: A(f"s_mov_b32 s{S_ROT1}, 0")
    elif rm == 3:
        A(f"s_add_u32 s{S_ROT1}, s{S_CG}, s{ST+1}")
        A(f"s_and_b32 s{S_ROT1}, s{S_ROT1}, 3")
        A(f"s_mul_i32 s{S_ROT1}, s{S_ROT1}, 3")
    else:
        A(f"s_add_u32 s{S_ROT1}, s{S_CG}, s{ST+1}")
        A(f"s_and_b32 s{S_ROT1}, s{S_ROT1}, {rm-1}")
        A(f"s_lshl_b32 s{S_ROT1}, s{S_ROT1}, {2 if rm == 2 else 1}")
    A(f"s_lshr_b32 s{S_RH}, s{S_WAVE}, 1")
    A(f"s_and_b32 s{S_CH}, s{S_WAVE}, 1")
    A(f"s_lshl_b32 s{S_M0W}, s{S_WAVE}, 12")
    slin(ST + 2, 0, (S_SLOT, 512), (S_WAVE, 128))
    A("v_and_b32 v7, 1, v0")
    A(f"v_lshl_add_u32 v7, v7, 14, s{ST+2}")
    A("v_lshrrev_b32 v3, 3, v1")
    A("v_and_b32 v4, 7, v1")
    A(f"v_and_b32 v{V_N}, 31, v1")
    A(f"v_lshrrev_b32 v{V_G}, 5, v1")
    if OPT["stamps"]: A("v_mov_b32 v255, 0")
    A("s_bitcmp0_b32 s2, 2" if OPT.get("swap", 1) else "s_bitcmp1_b32 s2, 2")
    if OPT.get("bfirst", 1):
        A("s_cbranch_scc0 L_roleA")
        CUT["P"] = len(A.out)
        A.label("L_roleA")
    else:
        A("s_cbranch_scc1 L_roleB")

WSO = OPT.get("wso", 0) << 20
def ws_shift():
    if WSO:
        A(f"s_add_u32 s{K_WS}, s{K_WS}, {WSO:#x}")
        A(f"s_addc_u32 s{K_WS+1}, s{K_WS+1}, 0")

TCHM = OPT.get("touchm", 0)
V_T3, V_T2, STC = 250, 251, 24
def touch_setup(role):
    A(f"s_and_b32 s{ST+2}, s{S_CHUNK}, 3")
    A(f"v_and_b32 v9, 15, v1")
    A(f"v_lshrrev_b32 v10, 4, v1")
    slin(ST, 0, (S_CHUNK, 1 << 17), (S_CG, 1 << 14))
    if role == "A":
        slin(ST + 1, 0, (S_CG, 1 << 16), (ST + 2, 1 << 14))
        A(f"s_cmp_eq_u32 s{S_WAVE}, 0")
        A(f"s_cselect_b32 s{ST}, s{ST}, s{ST+1}")
        A("v_lshlrev_b32 v9, 10, v9")
        A("v_lshl_add_u32 v9, v10, 7, v9")
        A(f"s_mov_b32 s{ST+3}, 128")
    else:
        slin(ST + 1, 0, (ST + 2, 16 * 3072), (S_CG, 128), (S_WAVE, 1024))
        A(f"s_cmp_eq_u32 s{S_WAVE}, 0")
        A(f"s_cselect_b32 s{ST}, s{ST}, s{ST+1}")
        A(f"s_mov_b32 s{ST+1}, 3072")
        A(f"s_mov_b32 s{ST+3}, 196608")
        A(f"s_cselect_b32 s{ST+1}, 1024, s{ST+1}")
        A(f"s_cselect_b32 s{ST+3}, 128, s{ST+3}")
        A(f"v_mul_lo_u32 v9, v9, s{ST+1}")
        A(f"v_mul_lo_u32 v10, v10, s{ST+3}")
        A("v_add_u32 v9, v9, v10")
    A(f"v_add_u32 v9, s{ST}, v9")
    A(f"v_mov_b32 v10, {OOB:#x}")
    A("v_cmp_gt_u32 vcc, 48, v1")
    A(f"v_cndmask_b32 v{V_T3}, v10, v9, vcc")
    A("v_cmp_gt_u32 vcc, 32, v1")
    A(f"v_cndmask_b32 v{V_T2}, v10, v9, vcc")
    A(f"s_mov_b32 s{S_CNT}, s{ST+3}")
def touch_srd(role):
    px, p1, p2 = (K_AX, K_BRE, K_BIM) if role == "A" else (K_BX, K_WQKV, K_WQKV)
    A(f"s_cmp_eq_u32 s{S_WAVE}, 1")
    A(f"s_cselect_b32 s{STC}, s{p1}, s{p2}")
    A(f"s_cselect_b32 s{STC+1}, s{p1+1}, s{p2+1}")
    A(f"s_mov_b32 s{STC+2}, {0x80000 if role == 'A' else 0x180000:#x}")
    A(f"s_cmp_eq_u32 s{S_WAVE}, 0")
    A(f"s_cselect_b32 s{STC}, s{px}, s{STC}")
    A(f"s_cselect_b32 s{STC+1}, s{px+1}, s{STC+1}")
    A(f"s_cselect_b32 s{STC+2}, 0x200000, s{STC+2}")
    A(f"s_cmp_eq_u32 s{S_WAVE}, 3")
    A(f"s_cselect_b32 s{STC+2}, 0, s{STC+2}")
    A(f"s_mov_b32 s{STC+3}, 0x20000")
def touch(k0, v):
    def f():
        A(f"s_mul_i32 s{ST+6}, s{S_CNT}, {k0}")
        A(f"buffer_load_dword v254, v{v}, s[{STC}:{STC+3}], s{ST+6} offen")
    return f

def cut(role):
    A(f"s_branch L_main{role}")
    CUT[role] = len(A.out)
    A.label(f"L_main{role}")

def code_prefetch():
    A(f"s_getpc_b64 s[{ST+4}:{ST+5}]")
    A.label(f"L_pc{ROLE[0]}")
    A(f"s_add_u32 s{ST+4}, s{ST+4}, L_main{ROLE[0]}-L_pc{ROLE[0]}")
    A(f"s_addc_u32 s{ST+5}, s{ST+5}, 0")
    A(f"global_load_dword v254, v7, s[{ST+4}:{ST+5}]")

def common_setup(role):
    srd(SWS, K_WS, 0x10000000 - WSO)
    if TCHM: A(f"s_mov_b64 s[100:101], s[{K_OUT}:{K_OUT+1}]")
    else: srd(SOUT, K_OUT, 0x800000)
    A(f"s_lshl_b32 s{S_M0W2}, s{S_WAVE}, 13")
    A(f"s_mov_b32 s{S_MG}, 0")
    A(f"s_mov_b32 s{S_MG+1}, -1")
    A(f"s_sub_u32 s{S_MRH}, 0, s{S_RH}")
    A(f"s_mov_b32 s{S_MRH+1}, s{S_MRH}")
    A(f"s_mov_b32 s{S_L2E}, {LOG2E:#x}")
    A(f"s_mov_b32 s{S_L2E+1}, {LOG2E:#x}")
    A(f"s_mov_b32 s{S_M16}, 0xffff0000")
    A(f"s_mov_b32 s{S_M16+1}, 0xffff0000")
    A(f"s_add_u32 s{S_GRP}, s{S_CHUNK}, {0 if role == 'A' else 16}")
    slin(P_XCCB, WS_XCC, (S_GRP, 1024))
    if role == "A": A(f"s_mov_b32 s{S_MF}, 0")
    else: A(f"s_and_b32 s{S_MF}, s{S_CG}, 1")
    slin(P_OUT, 0 if role == "A" else 2048, (S_CHUNK, 1 << 19), (S_RH, 1 << 18), (S_CG, 256), (S_CH, 128), (S_MF, 1 << 17))
    A(f"s_xor_b32 s{P_OUT2}, s{P_OUT}, {1 << 17:#x}")
    slin(P_TAGSEL, 0, (S_CHUNK, 256), (S_CG, 16), (S_WAVE, 1))
    A(f"s_and_b32 s{ST}, s{S_CHUNK}, 3")
    A(f"s_lshl_b32 s{ST}, s{ST}, 1")
    A(f"s_mov_b32 s{KAP[0]}, s{S_CG}")
    for j in range(1, 8):
        A(f"s_add_u32 s{ST+1}, s{ST}, {j-1}")
        A(f"s_cmp_ge_u32 s{ST+1}, 7")
        A(f"s_addc_u32 s{ST+1}, s{ST+1}, 1")
        A(f"s_add_u32 s{ST+1}, s{ST+1}, s{S_CG}")
        A(f"s_and_b32 s{KAP[j]}, s{ST+1}, 7")
    if OPT.get("tlb", 0):
        A(f"v_and_b32 v9, 15, v{V_LANE}")
        A("v_lshlrev_b32 v9, 20, v9")
        A(f"buffer_load_dword v254, v9, s[{SWS}:{SWS+3}], 0 offen offset:2048")
        A(f"buffer_load_dword v254, v9, s[{SOUT}:{SOUT+3}], 0 offen")
        A(f"buffer_load_dword v254, v9, s[{SW2}:{SW2+3}], 0 offen")
    A(f"v_lshlrev_b32 v{V_LIN}, 4, v{V_LANE}")
    A(f"v_mov_b32 v{V_L0}, {OOB:#x}")
    A(f"v_cmp_eq_u32 vcc, 0, v{V_LANE}")
    if not HAND:
        A(f"v_lshlrev_b32 v{V_CHK}, 2, v{V_N}")
        slin(P_FLAGB, WS_FLAG, (S_GRP, 256))
        slin(P_FLW, 0, (S_CG, 16), (S_WAVE, 4), (P_FLAGB, 1))
        A(f"s_getreg_b32 s{S_XW}, hwreg(HW_REG_XCC_ID, 0, 4)")
    A(f"v_lshlrev_b32 v{V_XPO}, 7, v4")
    A(f"v_cndmask_b32_e64 v{V_L0}, v{V_L0}, 0, vcc")
    A(f"v_lshlrev_b32 v{V_OUTO}, 14, v{V_G}")
    A(f"v_lshl_add_u32 v{V_OUTO}, v{V_N}, 2, v{V_OUTO}")
    slin(P_FLAGO, 0, (S_CG, 128), (P_XCCB, 1))
    A("s_waitcnt lgkmcnt(0)")
    A(f"s_add_u32 s{S_TAG}, s{S_TAG}, 1")
    if OPT["stamps"]: A("s_mov_b32 s99, 0")
    if not HAND:
        A(f"s_lshl_b32 s{ST}, s{S_TAG}, 4")
        A(f"s_or_b32 s{S_XW}, s{S_XW}, s{ST}")
        A(f"v_mov_b32 v248, s{S_XW}")
        A(f"v_mov_b32 v249, {OOB:#x}")
        A("v_cmp_gt_u32 vcc, 32, v0")
        A(f"v_cndmask_b32 v249, v249, v{V_CHK}, vcc")
        A(f"buffer_store_dword v248, v249, s[{SWS}:{SWS+3}], s{P_FLAGO} offen sc1")

def lds_b128_addrs(base_reg, wave_off_sreg, const, nsets):
    A(f"v_bfe_u32 v9, v{V_N}, 1, 3")
    A(f"v_xor_b32 v9, v9, v{V_G}")
    A("v_lshlrev_b32 v9, 4, v9")
    A(f"v_lshl_add_u32 v9, v{V_N}, 7, v9")
    A(f"v_add_u32 v9, s{wave_off_sreg}, v9")
    if const: A(f"v_add_u32 v9, {const:#x}, v9")
    for ks in range(4):
        A(f"v_xor_b32 v{base_reg+ks}, {32*ks}, v9")
    for st in range(1, nsets):
        for ks in range(4): A(f"v_add_u32 v{base_reg+4*st+ks}, {st*0x10000:#x}, v{base_reg+ks}")

TCH = 250
def rdy_load(reg, dummy=9):
    A(f"buffer_load_dword v254, v{V_CHK}, s[{SWS}:{SWS+3}], s{P_FLAGB} offen offset:64 sc1")
    A(f"buffer_load_dword v{reg}, v{V_XPO}, s[{SWS}:{SWS+3}], s{P_XCCB} offen sc1")
def rdy_check(dst, reg):
    if HAND: A(f"v_xor_b32 v{dst}, s{S_TAG}, v{reg}")
    else:
        A(f"v_xor_b32 v{reg}, s{S_XW}, v{reg}")
        A(f"v_lshrrev_b32 v{dst}, 4, v{reg}")
def rdy_store():
    if HAND: A(f"buffer_store_dword v11, v{V_L0}, s[{SWS}:{SWS+3}], s{P_FLAGO} offen sc1")
def xcc_decide(reg):
    if HAND: return
    A(f"v_cmp_ne_u32 vcc, 0, v{reg}")
    A("s_cmp_lg_u64 vcc, 0")
    A(f"s_cselect_b32 s{S_SLOW}, 1, 0")
def flag_store(ph=0):
    slow, join = lab("slow"), lab("join")
    A(f"s_cmp_lg_u32 s{S_SLOW}, 0")
    A(f"s_cbranch_scc1 {slow}")
    A(f"buffer_store_dword v11, v{V_L0}, s[{SWS}:{SWS+3}], s{P_FLW} offen offset:{ph*128}")
    A.label(join)
    def later():
        A.label(slow)
        A(f"buffer_store_dword v11, v{V_L0}, s[{SWS}:{SWS+3}], s{P_FLW} offen offset:{ph*128} sc1")
        A(f"s_branch {join}")
    DEFER.append(later)
def flag_load(ph):
    A(f"buffer_load_dword v13, v{V_CHK}, s[{SWS}:{SWS+3}], s{P_FLAGB} offen offset:{ph*128} sc1")
def flag_cmp():
    A(f"v_cmp_ne_u32 s[{S_FAIL}:{S_FAIL+1}], s{S_TAG}, v13")
def flag_poll(ph=0):
    poll(lambda: flag_load(ph), flag_cmp)
def flag_check(ph):
    slow, back = lab("fslow"), lab("fback")
    flag_cmp()
    A(f"s_cmp_lg_u64 s[{S_FAIL}:{S_FAIL+1}], 0")
    A(f"s_cbranch_scc1 {slow}")
    A.label(back)
    def later():
        A.label(slow)
        A.hist = []
        flag_poll(ph)
        A(f"s_branch {back}")
    DEFER.append(later)

DEFER = []
def make_verify(pieces, slot, second):
    retry, back = lab("retry"), lab("back")
    def reads():
        A(f"v_add_u32 v9, {slot*SLOT:#x}, v{V_CHK}")
        A("ds_read_b32 v13, v9")
        A(f"ds_read_b32 v14, v9 offset:{second}")
    def cmp():
        A("v_max_u32 v13, v13, v14")
        A("v_cmp_eq_u32 vcc, -1, v13")
    def branch():
        A("s_cmp_lg_u64 vcc, 0")
        A(f"s_cbranch_scc1 {retry}")
        A.label(back)
    def later():
        top, done = lab("rl"), lab("rd")
        A.label(retry)
        A.hist = []
        A(f"s_mov_b32 s{S_SM0}, m0")
        A(f"s_mov_b32 s{S_CNT}, {SPIN_LIMIT}")
        A.label(top)
        run(pieces(S_RS))
        A("s_waitcnt vmcnt(0)")
        A("ds_read_b32 v13, v9")
        A(f"ds_read_b32 v14, v9 offset:{second}")
        A("s_waitcnt lgkmcnt(0)")
        cmp()
        A("s_cmp_eq_u64 vcc, 0")
        A(f"s_cbranch_scc1 {done}")
        A(f"s_sub_u32 s{S_CNT}, s{S_CNT}, 1")
        A(f"s_cbranch_scc0 {top}")
        A.label(done)
        if OPT["stamps"]:
            A(f"s_sub_u32 s{S_CNT}, {SPIN_LIMIT + 1}, s{S_CNT}")
            A(f"s_add_u32 s99, s99, s{S_CNT}")
        A(f"s_mov_b32 m0, s{S_SM0}")
        A(f"s_branch {back}")
    DEFER.append(later)
    return reads, cmp, branch

def tag_update(role):
    skip = lab("notag")
    A(f"s_cmp_eq_u32 s{P_TAGSEL}, {(15 if role == 'A' else 0) << 8}")
    A(f"s_cbranch_scc0 {skip}")
    A(f"buffer_store_dword v11, v{V_L0}, s[{SWS}:{SWS+3}], 0 offen offset:{WS_TAGA if role == 'A' else WS_TAGB} sc1")
    A.label(skip)

def out_stores(acc, ph):
    def mk(r):
        def f():
            row = 8 * (r >> 2) + (r & 3)
            A(f"s_add_u32 s{ST+1}, s{P_OUT+ph}, {row*4096}")
            A(f"buffer_store_dword v{acc+16*ph+r}, v{V_OUTO}, s[{SOUT}:{SOUT+3}], s{ST+1} offen {OUTF2 if ph else OUTF}")
        return f
    return [mk(r) for r in range(16)]

SCHED = {
    0: ({0: [2, 3], 1: [4], 2: [5], 3: [6], 4: [7]}, 5, {0: "all"}),
    1: ({i: [i + 2] for i in range(6)}, 6, {i: "front" for i in range(6)}),
    2: ({0: [2], 1: [3], 2: [4], 3: [5, 6], 4: [7]}, 5, {3: "all"}),
    3: ({0: [2], 1: [3], 2: [4, 5], 3: [6], 4: [7]}, 5, {2: "all"}),
    4: ({0: [2], 1: [3], 2: [4], 3: [5], 4: [6], 5: [7]}, 6, {2: "front", 3: "front", 4: "front", 5: "front"}),
    5: ({0: [2], 1: [3, 4], 2: [5], 3: [6], 4: [7]}, 5, {1: "all"}),
    6: ({i: [i + 3] for i in range(5)}, 5, {}),
    7: ({i: [i + 3] for i in range(5)}, 5, {0: "front", 1: "front"}),
    8: ({0: [2], 1: [3], 2: [4, 5], 3: [6], 4: [7]}, 5, {0: "late", 1: "late", 2: "all"}),
    9: ({0: [2], 1: [3, 4], 2: [5], 3: [6], 4: [7]}, 5, {0: "three", 1: "all", 2: "three"}),
}[OPT.get("sched", 6)]
EARLY = OPT.get("sched", 6) >= 6
NPRE = OPT.get("npre", 4)
NX = OPT.get("nx", 10)
XST = SCHED[1]
def g1_gaps(n, busy):
    i = n >> 2
    if SCHED[2].get(i) == "late": return (0, 1, 2, 3) if (n & 3) >= 2 else ((3,) if (n & 3) == 1 else ())
    if SCHED[2].get(i) == "three": return (1, 2, 3)
    if SCHED[2].get(i) in ("all", "front") or i in busy: return (0, 1, 2, 3)
    return (2, 3)
OUTF = {0: "sc1", 1: "sc1 nt", 2: "sc0 sc1", 3: "nt", 4: "", 5: "sc0 sc1 nt"}[OPT.get("outf", 0)]
OUTF2 = {0: "sc1", 3: "nt", 4: ""}[OPT.get("outf2", 0)]
XF = "nt " if OPT["xnt"] else ""
PLF = {0: "sc1 ", 1: "", 2: "sc0 ", 3: "nt "}[OPT.get("plf", 0)]

def role_A():
    V_AX, V_AW = 24, 32
    V_GO, V_SCW = 44, 3
    V_XF, V_WF = 48, 64
    URE, UIM = 80, 112
    ACC2 = 144
    HP = 176
    XS, DG, V_GE = 176, 192, 200
    V_PUB, V_XSO, V_HSO = 45, 46, 223
    P_MSK = P0 + 4
    C_LAM, C_M1, C_M2, C_L, C_MQ, C_LQ, C_C2 = 208, 210, 212, 214, 216, 218, 220
    C_DSK = 222
    T0 = 224
    P_SAB, P_SAO, P_XS0, P_XS1 = P0, P0 + 1, P0 + 2, P0 + 3
    code_prefetch()
    A("v_lshrrev_b32 v9, 1, v3")
    A("v_xor_b32 v9, v9, v4")
    A("v_lshlrev_b32 v9, 4, v9")
    A("v_lshrrev_b32 v10, 2, v3")
    A("v_lshlrev_b32 v10, 5, v10")
    A("v_and_b32 v11, 1, v3")
    A("v_lshl_add_u32 v10, v11, 4, v10")
    A("v_bfe_u32 v11, v3, 1, 1")
    A("v_add_u32 v10, v10, v11")
    A("v_lshl_add_u32 v10, v10, 10, v9")
    slin(ST, 0, (S_CHUNK, 1 << 17), (S_RH, 1 << 16), (S_CH, 1 << 13))
    A(f"v_add_u32 v{V_OX}, s{ST}, v10")
    A(f"v_xor_b32 v11, 64, v{V_OX}")
    A(f"v_add_u32 v{V_OX+1}, 1024, v11")
    A(f"v_add_u32 v{V_OX+2}, 2048, v{V_OX}")
    A(f"v_add_u32 v{V_OX+3}, 3072, v11")
    A("v_lshl_add_u32 v10, v3, 10, v9")
    slin(ST, 0, (S_CG, 1 << 16), (S_CH, 1 << 15))
    A(f"v_add_u32 v{V_OW}, s{ST}, v10")
    A(f"v_xor_b32 v11, 64, v{V_OW}")
    A(f"v_add_u32 v{V_OW+1}, 7168, v11")
    A(f"v_add_u32 v{V_OW+2}, {2*7168}, v{V_OW}")
    A(f"v_add_u32 v{V_OW+3}, {3*7168}, v11")
    slin(ST, 0, (S_CG, 128), (S_CH, 64))
    A(f"v_lshl_add_u32 v14, v{V_N}, 1, s{ST}")
    if TCHM: touch_setup("A")
    A(f"s_cmp_eq_u32 s{S_RH}, 0")
    A("s_waitcnt lgkmcnt(0)")
    A(f"s_cselect_b32 s{SW}, s{K_BRE}, s{K_BIM}")
    A(f"s_cselect_b32 s{SW+1}, s{K_BRE+1}, s{K_BIM+1}")
    A(f"s_cselect_b32 s{SW2}, s{K_CRE}, s{K_CIM}")
    A(f"s_cselect_b32 s{SW2+1}, s{K_CRE+1}, s{K_CIM+1}")
    A(f"s_mov_b32 s{SW+2}, 0x80000")
    A(f"s_mov_b32 s{SW+3}, 0x20000")
    stamp(1)
    ws_shift()
    A(f"s_load_dword s{S_TAG}, s[{K_WS}:{K_WS+1}], {WS_TAGA}")
    srd(SX, K_AX, 0x200000)
    tok = {}
    def g1_pieces(i):
        slot = i & 3
        return (dma_pieces(V_OW, SW, ST + 8, slot * SLOT, pre=lambda: rot_soff(ST + 8, i, shift=7, rot=S_ROT1)) +
                dma_pieces(V_OX, SX, ST + 8, slot * SLOT + 16384, post=lambda: tok.__setitem__(i, A.vm), flags=XF))
    CLDS = {1: 4 * SLOT, 2: 4 * SLOT + 16384, 0: 0, 3: 16384, 4: SLOT, 5: SLOT + 16384, 6: 2 * SLOT, 7: 2 * SLOT + 16384}
    CORD = [1, 2, 0, 3, 4, 5, 6, 7]
    CE = OPT.get('ce', 0)
    def c_pieces(st):
        if st in (0, 2) and OPT.get("cswap", 1):
            def pre():
                A(f"s_and_b32 s{ST+9}, s{S_CHUNK}, 3")
                A(f"s_cmp_eq_u32 s{ST+9}, 3")
                A(f"s_cselect_b32 s{ST+9}, {CLDS[2-st]:#x}, {CLDS[st]:#x}")
                A(f"s_cselect_b32 s{ST+7}, s{KAP[2-st]}, s{KAP[st]}")
                A(f"s_add_u32 m0, s{S_M0W}, s{ST+9}")
                A(f"s_lshl_b32 s{ST+9}, s{ST+7}, 7")
            return dma_pieces(V_OW, SW2, ST + 9, 0, pre=pre)
        return dma_pieces(V_OW, SW2, ST + 9, CLDS[st], pre=lambda: A(f"s_lshl_b32 s{ST+9}, s{KAP[st]}, 7"))
    SML = OPT.get("sml", 1)
    def small():
        A(f"global_load_ushort v{T0}, v14, s[{K_LRE}:{K_LRE+1}]")
        A(f"global_load_ushort v{T0+1}, v14, s[{K_LIM}:{K_LIM+1}]")
        A(f"global_load_ushort v{T0+2}, v14, s[{K_LDT}:{K_LDT+1}]")
        A(f"global_load_ushort v{C_DSK}, v14, s[{K_DSK}:{K_DSK+1}]")
    if not SML: small()
    tok_small = A.vm
    run(g1_pieces(0))
    A(f"s_mov_b32 s{SW2+2}, 0x80000")
    A(f"s_mov_b32 s{SW2+3}, 0x20000")
    late = g1_pieces(1)
    NA = OPT.get("nprea", 4)
    if SML == 2: small()
    if TCHM:
        touch_srd("A"); touch(1, V_T3)()
        if TCHM == 1: late = late + [touch(4, V_T2)] + g1_pieces(2) + [touch(6, V_T2)]
    elif EARLY:
        run(late[:NA]); late = late[NA:] + g1_pieces(2)
    else:
        run(late); late = []
    if SML == 1: small()
    if OPT.get("wtouch", 0):
        slin(ST, 0, (S_CG, 1 << 16), (S_CHUNK, 4096), (S_CH, 2048))
        A(f"v_and_b32 v9, 15, v{V_LANE}")
        A("v_lshlrev_b32 v9, 7, v9")
        A(f"buffer_load_dword v254, v9, s[{SW2}:{SW2+3}], s{ST} offen")
    stamp(2)
    cut("A")
    A(f"s_lshl_b32 s{ST}, s{S_RH}, 13")
    lds_b128_addrs(V_AX, ST, 16384, 2)
    A(f"s_lshl_b32 s{ST}, s{S_CH}, 12")
    lds_b128_addrs(V_AW, ST, 0, 3)
    XLDS = OPT.get("xlds", 1)
    S_XI = 57
    if XLDS:
        V_XA = ACC2
        A(f"s_sub_u32 s{S_XI}, s{S_CG}, s{S_ROT1}")
        A(f"s_and_b32 s{S_XI}, s{S_XI}, 7")
        A(f"s_and_b32 s{ST+1}, s{S_XI}, 3")
        slin(ST, 16384, (ST + 1, SLOT), (S_RH, 8192))
        A(f"v_bfe_u32 v9, v{V_N}, 1, 2")
        A(f"v_and_b32 v10, 1, v{V_N}")
        A("v_lshl_add_u32 v9, v9, 2, v10")
        A(f"v_bfe_u32 v10, v{V_N}, 4, 1")
        A("v_lshl_add_u32 v10, v9, 1, v10")
        A(f"v_bfe_u32 v11, v{V_N}, 3, 1")
        A("v_lshl_add_u32 v10, v11, 5, v10")
        A("v_and_b32 v9, 7, v9")
        A(f"s_lshl_b32 s{ST+1}, s{S_CH}, 2")
        A(f"v_lshl_add_u32 v11, v{V_G}, 1, s{ST+1}")
        A("v_xor_b32 v9, v9, v11")
        A("v_lshlrev_b32 v9, 4, v9")
        A("v_lshl_add_u32 v9, v10, 7, v9")
        A(f"v_add_u32 v{V_XA}, s{ST}, v9")
        A(f"v_xor_b32 v{V_XA+1}, 16, v{V_XA}")
        A(f"v_xor_b32 v{V_XA+2}, 32, v{V_XA}")
        A(f"v_xor_b32 v{V_XA+3}, 48, v{V_XA}")
    if OPT.get("lateset", 1): A.cap = []
    common_setup("A")
    slin(P_SAB, WS_SA, (S_CG, 8192))
    A(f"s_sub_u32 s{ST}, 15, s{S_CHUNK}")
    slin(P_SAO, 0, (ST, 512), (S_CH, 256), (P_SAB, 1))
    A(f"s_mov_b32 s{P_MSK}, 0xffffff00")
    slin(P_XS0, 0, (S_CHUNK, 1 << 17), (S_RH, 1 << 16), (S_CG, 128), (S_CH, 64), (S_MF, 32768))
    A(f"s_xor_b32 s{P_XS1}, s{P_XS0}, 32768")
    slin(P_ACTW, WS_H, (S_CHUNK, 1 << 18), (S_CG, 1 << 15), (S_WAVE, 4096))
    slin(P_ACTR, WS_H, (S_CHUNK, 1 << 18), (S_WAVE, 4096), (S_MF, 16384))
    A(f"s_xor_b32 s{P_ACTR2}, s{P_ACTR}, 16384")
    A(f"v_lshlrev_b32 v9, 11, v{V_G}")
    A(f"v_lshl_add_u32 v{V_HSO}, v{V_N}, 4, v9")
    A(f"s_add_u32 s{P_ACTW2}, s{P_ACTW}, 16384")
    clears = [f"buffer_store_dwordx4 {vr(T0+24,4)}, v{V_HSO}, s[{SWS}:{SWS+3}], s{P_ACTW} offen offset:{k*512} sc1" for k in range(8)]
    A(f"s_and_b32 s{ST}, s{S_TAG}, 0xff")
    A(f"v_mov_b32 v{V_TAG}, s{ST}")
    A(f"v_mov_b32 v11, s{S_TAG}")
    A(f"v_lshlrev_b32 v{V_XSO}, 10, v{V_N}")
    A(f"v_lshl_add_u32 v{V_XSO}, v{V_G}, 5, v{V_XSO}")
    SCR = 3 * SLOT
    slin(ST, SCR, (S_CH, 256))
    A(f"v_lshl_add_u32 v4, v{V_N}, 3, s{ST}")
    A(f"s_lshl_b32 s{ST}, s{S_RH}, 10")
    A(f"v_lshl_add_u32 v3, v{V_G}, 9, v4")
    A(f"v_add_u32 v3, s{ST}, v3")
    A(f"v_lshlrev_b32 v13, 3, v{V_N}")
    A(f"v_mov_b32 v14, {OOB:#x}")
    A(f"s_or_b64 s[{ST+2}:{ST+3}], s[{S_MG}:{S_MG+1}], s[{S_MRH}:{S_MRH+1}]")
    A(f"v_cndmask_b32_e64 v{V_PUB}, v13, v14, s[{ST+2}:{ST+3}]")
    if OPT.get("prew", 1):
        for k in range(2): A(f"v_subrev_u32 v{T0+20+k}, 1, v{V_TAG}")
        A(f"buffer_store_dwordx2 {vr(T0+20,2)}, v{V_PUB}, s[{SWS}:{SWS+3}], s{P_SAO} offen sc1")
    A(f"s_sub_u32 s{ST+4}, 16, s{S_CHUNK}")
    A(f"v_lshlrev_b32 v9, 3, v{V_G}")
    A(f"v_add_u32 v9, s{ST+4}, v9")
    A(f"s_lshl_b32 s{ST+4}, s{S_CH}, 8")
    A(f"v_add_u32 v13, s{ST+4}, v13")
    A(f"v_lshl_add_u32 v{V_GO}, v9, 9, v13")
    for i in range(8):
        A(f"v_cmp_gt_u32 vcc, {16-i}, v9")
        A(f"v_cndmask_b32_e64 v{V_GE+i}, 0, v{V_TAG}, vcc")
    if SML: A.cap.append("@consts")
    A.wait_vm(tok_small)
    lre, lim, ldt = T0, T0 + 1, T0 + 2
    A(f"v_and_b32 v9, 1, v{V_N}")
    A("v_lshlrev_b32 v9, 4, v9")
    A(f"v_lshlrev_b32 v{C_DSK}, v9, v{C_DSK}")
    A(f"v_lshrrev_b32 v9, 1, v{V_N}")
    A(f"v_lshlrev_b32 v13, 3, v{V_G}")
    A("v_sub_u32 v9, v9, v13")
    for q in range(8):
        A(f"v_cmp_eq_u32 vcc, {q}, v9")
        A(f"v_cndmask_b32_e64 v{DG+q}, 0, v{C_DSK}, vcc")
    for r in (lre, lim, ldt): A(f"v_lshlrev_b32 v{r}, 16, v{r}")
    A(f"v_mul_f32 v{ldt}, s{S_L2E}, v{ldt}")
    A(f"v_exp_f32 v{ldt}, v{ldt}")
    A(f"v_cvt_pk_bf16_f32 v{ldt}, v{ldt}, v{ldt}")
    A(f"v_lshlrev_b32 v{ldt}, 16, v{ldt}")
    A(f"v_mul_f32 v{T0+4}, v{ldt}, v{lre}")
    A(f"v_mul_f32 v{T0+5}, v{ldt}, v{lim}")
    A(f"v_mul_f32 v{T0+4}, s{S_L2E}, v{T0+4}")
    A(f"v_exp_f32 v{T0+4}, v{T0+4}")
    A(f"v_mul_f32 v{T0+5}, {INV2PI:#x}, v{T0+5}")
    A(f"v_rndne_f32 v{T0+6}, v{T0+5}")
    A(f"v_sub_f32 v{T0+5}, v{T0+5}, v{T0+6}")
    A(f"v_cos_f32 v{T0+6}, v{T0+5}")
    A(f"v_sin_f32 v{T0+7}, v{T0+5}")
    A(f"v_mul_f32 v{C_LAM}, v{T0+4}, v{T0+6}")
    A(f"v_mul_f32 v{C_LAM+1}, v{T0+4}, v{T0+7}")
    A(f"v_add_f32 v{T0+4}, -1.0, v{C_LAM}")
    A(f"v_mul_f32 v{T0+5}, v{lre}, v{lre}")
    A(f"v_fmac_f32 v{T0+5}, v{lim}, v{lim}")
    A(f"v_rcp_f32 v{T0+5}, v{T0+5}")
    A(f"v_mul_f32 v{T0+6}, v{T0+4}, v{lre}")
    A(f"v_fmac_f32 v{T0+6}, v{C_LAM+1}, v{lim}")
    A(f"v_mul_f32 v{T0+7}, v{C_LAM+1}, v{lre}")
    A(f"v_fma_f32 v{T0+7}, -v{T0+4}, v{lim}, v{T0+7}")
    A(f"v_add_f32 v{T0+5}, v{T0+5}, v{T0+5}")
    A(f"v_mul_f32 v{C_C2}, v{T0+6}, v{T0+5}")
    A(f"v_mul_f32 v{C_C2+1}, v{T0+7}, v{T0+5}")
    pa, pb, tt = T0 + 8, T0 + 10, T0 + 12
    cmul(pa, C_LAM, C_LAM, tt)
    cmul(pb, pa, pa, tt)
    cmul(pa, pb, pb, tt)
    cmul(C_M1, pa, pa, tt)
    cmul(C_M2, C_M1, C_M1, tt)
    cmul(pa, C_M2, C_M2, tt)
    cmul(C_L, pa, pa, tt)
    def sel_pair(dst, src, mask):
        A(f"v_cndmask_b32_e64 v{dst}, 1.0, v{src}, s[{mask}:{mask+1}]")
        A(f"v_cndmask_b32_e64 v{dst+1}, 0, v{src+1}, s[{mask}:{mask+1}]")
    sel_pair(T0 + 14, C_M2, S_MG)
    sel_pair(T0 + 16, pa, S_MRH)
    cmul(C_MQ, T0 + 14, T0 + 16, tt)
    cmul(pa, C_L, C_L, tt)
    cmul(pb, pa, pa, tt)
    cmul(pa, pb, pb, tt)
    sel_pair(C_LQ, pa, S_MG)
    SET, A.cap = (A.cap or []), None
    LATEV = [x for x in SET if x.startswith("buffer_")]
    SET = [x for x in SET if not x.startswith("buffer_")]
    for _ in range(OPT.get("pset", 0)):
        if not SET or SET[0] == "@consts": break
        if SET[0].startswith(f"s_add_u32 s{S_TAG},"): A("s_waitcnt lgkmcnt(0)")
        A(SET.pop(0))
    while SET and (SET[0].startswith("s_addc") or SET[0].startswith("s_cselect")): A(SET.pop(0))
    if "@consts" in SET:
        k_ = SET.index("@consts")
        SET = SET[:k_] + ["@hold"] + SET[k_+1:]
    stamp(3)
    run(late)
    def rd(n):
        i, ks = n >> 2, n & 3
        slot, buf = i & 3, n & 1
        s2_, off = slot >> 1, (slot & 1) * SLOT
        x = [f"ds_read_b128 {vr(V_XF+buf*8+m*4,4)}, v{V_AX+4*s2_+ks} offset:{off+m*4096}" for m in range(2)]
        w = [f"ds_read_b128 {vr(V_WF+buf*8+ri*4,4)}, v{V_AW+4*s2_+ks} offset:{off+ri*8192}" for ri in range(2)]
        return [x[0], w[0], w[1], x[1]]
    def mm(n):
        buf = n & 1
        r = []
        for m, ri in ((0, 0), (0, 1), (1, 1), (1, 0)):
            d = vr((URE, UIM)[ri] + 16 * m, 16)
            r.append(mf(d, vr(V_XF + buf * 8 + m * 4, 4), vr(V_WF + buf * 8 + ri * 4, 4), d if n else "0"))
        return r
    fill = []
    hook = []
    def xs_load(m, s):
        return lambda: A(f"buffer_load_dwordx4 {vr(XS+8*m+4*s,4)}, v{V_XSO}, s[{SX}:{SX+3}], s{P_XS0+m} offen offset:{16*s}")
    def xs_lds(i):
        sk = lab("nx")
        A(f"s_cmp_eq_u32 s{S_XI}, {i}")
        A(f"s_cbranch_scc0 {sk}")
        for m in range(2):
            for s_ in range(2):
                A(f"ds_read_b128 {vr(XS+8*m+4*s_,4)}, v{V_XA+2*m+s_} offset:{m*512}")
        A.label(sk)
    def on_step(n):
        i, ks = n >> 2, n & 3
        if XLDS and ks == 1: hook.append(lambda: xs_lds(i))
        if ks == 0 and OPT.get("g1st") and i: stamp(16 + i)
        if ks == 0:
            if TCHM == 2 and i < 2: fill.append(touch(4 + 2 * i, V_T2))
            for st in SCHED[0].get(i, []): fill.extend(g1_pieces(st))
            XL = [xs_load(m, s) for m in range(2) for s in range(2)] if not XLDS else []
            XO = OPT.get("xso", 1)
            if i == XST:
                if XO == 1: fill.extend(LATEV + XL)
                fill.extend(c_pieces(1) + c_pieces(2))
            elif i == XST + 1:
                if XO == 0: fill.extend(LATEV + XL)
                if CE >= 4: fill.extend(c_pieces(0) + c_pieces(3))
            elif i == 7:
                if CE == 2: fill.extend(c_pieces(0) + c_pieces(3))
                if CE >= 4: fill.extend(c_pieces(4) + c_pieces(5))
                if OPT.get("ptouch", 0):
                    fill.extend([f"buffer_load_dword v254, v{V_GO+k}, s[{SWS}:{SWS+3}], s{P_SAB} offen sc1" for k in range(4)])
                    fill.append(lambda: rdy_load(254, 254))
    A.wait_vm(tok[0])
    A("s_barrier")
    stamp(4)
    gemm_loop(32, rd, mm, lambda n: tok[n >> 2] if (n & 3) == 0 else None, (2, 2, 0, 0), lambda n: g1_gaps(n, (5,) if OPT.get('xall', 0) else ()), fill, on_step, end_barrier=True, extra=SET, nextra=lambda n, g: NX, hook=hook)
    assert not SET
    assert not fill
    stamp(5)
    if TCHM: srd(SOUT, 100, 0x800000)
    P = [T0, T0 + 4]
    def lam_bc(hi): return f"op_sel:[{hi},0,0] op_sel_hi:[{hi},1,1]"
    NEG = "neg_lo:[1,0,0] neg_hi:[1,0,0]"
    cur_re, cur_im = URE, UIM
    for s in range(1, 16):
        d = P[s & 1]
        A(f"v_pk_fma_f32 {vr(d,2)}, {vr(C_LAM,2)}, {vr(cur_im,2)}, {vr(URE+2*s,2)} {lam_bc(1)} {NEG}")
        A(f"v_pk_fma_f32 {vr(d+2,2)}, {vr(C_LAM,2)}, {vr(cur_re,2)}, {vr(UIM+2*s,2)} {lam_bc(1)}")
        A(f"v_pk_fma_f32 {vr(d,2)}, {vr(C_LAM,2)}, {vr(cur_re,2)}, {vr(d,2)} {lam_bc(0)}")
        A(f"v_pk_fma_f32 {vr(d+2,2)}, {vr(C_LAM,2)}, {vr(cur_im,2)}, {vr(d+2,2)} {lam_bc(0)}")
        cur_re, cur_im = d, d + 2
    A0, BQ = T0 + 8, T0 + 10
    A(f"v_fma_f32 v{BQ}, v{C_M1}, v{cur_re}, v{cur_re+1}")
    A(f"v_fma_f32 v{BQ+1}, v{C_M1}, v{cur_im}, v{cur_im+1}")
    A(f"v_fma_f32 v{BQ}, -v{C_M1+1}, v{cur_im}, v{BQ}")
    A(f"v_fma_f32 v{BQ+1}, v{C_M1+1}, v{cur_re}, v{BQ+1}")
    A(f"ds_write_b64 v3, {vr(BQ,2)}")
    A(f"v_mov_b32 v{A0}, v{cur_re}")
    A(f"v_mov_b32 v{A0+1}, v{cur_im}")
    P2, P3, SS, tt = T0 + 20, T0 + 22, T0 + 24, T0 + 28
    def c2_bc(hi, n=3):
        return f"op_sel:[{hi},0,0] op_sel_hi:[{hi},1,1]" if n == 3 else f"op_sel:[{hi},0] op_sel_hi:[{hi},1]"
    cm = []
    for s in range(16):
        re, im, t = URE + 2 * s, UIM + 2 * s, T0 + 2 + 2 * (s & 1)
        cm += [f"v_pk_mul_f32 {vr(t,2)}, {vr(C_C2,2)}, {vr(re,2)} {c2_bc(1,2)} neg_lo:[1,0] neg_hi:[1,0]",
               f"v_pk_mul_f32 {vr(re,2)}, {vr(C_C2,2)}, {vr(re,2)} {c2_bc(0,2)}",
               f"v_pk_fma_f32 {vr(re,2)}, {vr(C_C2,2)}, {vr(im,2)}, {vr(re,2)} {c2_bc(1)} {NEG}",
               f"v_pk_fma_f32 {vr(im,2)}, {vr(C_C2,2)}, {vr(im,2)}, {vr(t,2)} {c2_bc(0)} {NEG}"]
    emit(cm[:8])
    if HAND: A.wait_both(tok["clr"], A.lg)
    else: A("s_waitcnt lgkmcnt(0)")
    A("s_barrier")
    B0 = T0 + 12
    for q in range(4):
        A(f"ds_read_b64 {vr(B0+2*q,2)}, v4 offset:{q*512}")
    emit(cm[8:24])
    A("s_waitcnt lgkmcnt(0)")
    cfma(P2, C_M2, B0, B0 + 2, tt)
    cfma(P3, C_M2, P2, B0 + 4, tt)
    cfma(tt, C_M2, P3, B0 + 6, tt)
    A(f"v_and_or_b32 v{SS}, v{tt}, s{P_MSK}, v{V_TAG}")
    A(f"v_and_or_b32 v{SS+1}, v{tt+1}, s{P_MSK}, v{V_TAG}")
    A(f"buffer_store_dwordx2 {vr(SS,2)}, v{V_PUB}, s[{SWS}:{SWS+3}], s{P_SAO} offen sc1")
    rdy_store()
    stamp(6)
    emit(cm[24:])
    LOC = T0 + 0
    for e in range(2):
        A(f"v_cndmask_b32_e64 v{T0+2+e}, 0, v{B0+e}, s[{S_MG}:{S_MG+1}]")
        A(f"v_cndmask_b32_e64 v{T0+4+e}, v{P2+e}, v{P3+e}, s[{S_MG}:{S_MG+1}]")
        A(f"v_cndmask_b32_e64 v{LOC+e}, v{T0+2+e}, v{T0+4+e}, s[{S_MRH}:{S_MRH+1}]")
    E0, F0, E1, F1 = T0 + 12, T0 + 14, T0 + 16, T0 + 18
    cfma(P2, C_M1, LOC, A0, tt)
    cmul(F1, C_C2, P2, tt)
    cmul(F0, C_C2, LOC, tt)
    cmul(E0, C_C2, C_MQ, tt)
    cmul(E1, E0, C_M1, tt)
    V_AH = V_AX
    A(f"v_bfe_u32 v9, v{V_LANE}, 4, 1")
    A(f"v_bfe_u32 v13, v{V_LANE}, 1, 1")
    A("v_lshl_add_u32 v9, v9, 1, v13")
    A(f"v_bfe_u32 v13, v{V_LANE}, 2, 2")
    A(f"v_lshl_add_u32 v13, v{V_G}, 3, v13")
    A("v_lshlrev_b32 v14, 2, v9")
    A("v_xor_b32 v13, v13, v14")
    A("v_lshlrev_b32 v13, 4, v13")
    A("v_lshl_add_u32 v13, v9, 9, v13")
    A(f"v_and_b32 v14, 1, v{V_LANE}")
    A("v_lshl_add_u32 v13, v14, 3, v13")
    A(f"s_lshl_b32 s{ST+2}, s{S_RH}, 13")
    A(f"v_add_u32 v{V_AH}, s{ST+2}, v13")
    A(f"v_xor_b32 v{V_AH+1}, 64, v{V_AH}")
    for st in (1, 2):
        A(f"v_add_u32 v{V_AH+2*st}, {st*0x10000:#x}, v{V_AH}")
        A(f"v_add_u32 v{V_AH+2*st+1}, {st*0x10000:#x}, v{V_AH+1}")
    V_SO = T0 + 24
    for o in range(1, 4):
        A(f"v_xor_b32 v{V_SO+o}, {o*64}, v{V_HSO}")
    CPRE = 8
    A(f"s_add_u32 s{SW}, s{SWS}, s{P_SAB}")
    A(f"s_addc_u32 s{SW+1}, s{SWS+1}, 0")
    A(f"s_mov_b32 s{SW+2}, 8192")
    GD = 48
    def loads():
        for i in range(8):
            A(f"buffer_load_dwordx2 {vr(GD+2*i,2)}, v{V_GO}, s[{SW}:{SW+3}], 0 offen offset:{i*512} sc1")
        rdy_load(14)
    def check():
        A(f"v_xor_b32 v13, v{GD}, v{V_GE}")
        for i in range(1, 8):
            A(f"v_bitop3_b32 v13, v{GD+2*i}, v{V_GE+i}, v13 bitop3:0xbe")
        rdy_check(9, 14)
        A("v_and_b32 v13, 0xff, v13")
        A("v_or_b32 v13, v13, v9")
        A(f"v_cmp_ne_u32 s[{S_FAIL}:{S_FAIL+1}], 0, v13")
    CM = min(8, 2 + CE + OPT.get("cmid", 3))
    for st in CORD[2+CE:CM]: run(c_pieces(st))
    loads()
    tok_p = A.vm
    CPOST = OPT.get("cpost", 0)
    for st in CORD[CM:8-CPOST]: run(c_pieces(st))
    tok_c = A.vm
    stamp(7)
    ok = lab("ok1")
    A.wait_vm(tok_p)
    for m in range(2):
        d = vr(ACC2 + 16 * m, 16)
        A(mf(d, vr(XS + 8 * m, 4), vr(DG, 4), "0"))
    check()
    A(f"s_cmp_eq_u64 s[{S_FAIL}:{S_FAIL+1}], 0")
    A(f"s_cbranch_scc1 {ok}")
    vm_keep = A.vm
    poll(loads, check)
    A.vm = vm_keep
    A.label(ok)
    stamp(8)
    h1, h2 = T0 + 20, T0 + 22
    cur = GD + 14
    for i in range(6, -1, -1):
        d = (h1, h2)[i & 1]
        cfma(d, C_L, cur, GD + 2 * i, tt)
        cur = d
    CQ = GD
    cmul(CQ, C_LQ, cur, tt)
    for e in range(2): A(f"v_mov_b32 v{CQ+2+e}, v{CQ+e}")
    for e in range(2): A(f"v_permlane32_swap_b32 v{CQ+e}, v{CQ+2+e}")
    A(f"v_pk_add_f32 {vr(CQ,2)}, {vr(CQ,2)}, {vr(CQ+2,2)}")
    def c_reads(st):
        s2_, off = CLDS[st] >> 16, CLDS[st] & 0xffff
        r = [None] * 8
        for ks in range(4):
            for ri in range(2):
                kap = (ks >> 1) * 4 + ri * 2 + (ks & 1)
                r[kap] = f"ds_read_b128 {ar((st*8+kap)*4,4)}, v{V_AW+4*s2_+ks} offset:{off+ri*8192}"
        return r
    for m in range(2):
        d = vr(ACC2 + 16 * m, 16)
        A(mf(d, vr(XS + 8 * m + 4, 4), vr(DG + 4, 4), d))
    HR, HI = T0 + 20, T0 + 22
    A(f"v_fma_f32 v{HR}, v{E0}, v{CQ}, v{F0}")
    A(f"v_fma_f32 v{HR+1}, v{E1}, v{CQ}, v{F1}")
    A(f"v_fma_f32 v{HI}, -v{E0}, v{CQ+1}, -v{F0+1}")
    A(f"v_fma_f32 v{HI+1}, -v{E1}, v{CQ+1}, -v{F1+1}")
    A(f"v_fma_f32 v{HR}, -v{E0+1}, v{CQ+1}, v{HR}")
    A(f"v_fma_f32 v{HR+1}, -v{E1+1}, v{CQ+1}, v{HR+1}")
    A(f"v_fma_f32 v{HI}, -v{E0+1}, v{CQ}, v{HI}")
    A(f"v_fma_f32 v{HI+1}, -v{E1+1}, v{CQ}, v{HI+1}")
    pr, pi_ = HR, HI
    def hstore(ph, o):
        A(f"buffer_store_dwordx4 {vr(HP+16*ph+4*o,4)}, v{V_SO+o if o else V_HSO}, s[{SWS}:{SWS+3}], s{P_ACTW+ph} offen offset:{o*512} sc1")
    for hf in range(2):
        for s in range(8 * hf, 8 * hf + 8):
            re, im = URE + 2 * s, UIM + 2 * s
            emit([f"v_pk_fma_f32 {vr(re,2)}, {vr(C_LAM,2)}, {vr(pi_,2)}, {vr(re,2)} {lam_bc(1)}",
                  f"v_pk_fma_f32 {vr(im,2)}, {vr(C_LAM,2)}, {vr(pr,2)}, {vr(im,2)} {lam_bc(1)} {NEG}",
                  f"v_pk_fma_f32 {vr(re,2)}, {vr(C_LAM,2)}, {vr(pr,2)}, {vr(re,2)} {lam_bc(0)}",
                  f"v_pk_fma_f32 {vr(im,2)}, {vr(C_LAM,2)}, {vr(pi_,2)}, {vr(im,2)} {lam_bc(0)}"])
            pr, pi_ = re, im
        for z in range(2):
            o = 2 * z + hf
            for ri in range(2):
                U = (URE, UIM)[ri]
                for u in range(4):
                    s0 = 8 * hf + 2 * u
                    A(f"v_cvt_pk_bf16_f32 v{HP+(ri*4+o)*4+u}, v{U+2*s0+z}, v{U+2*s0+2+z}")
            for u in range(4):
                A(f"v_permlane32_swap_b32 v{HP+o*4+u}, v{HP+16+o*4+u}")
            hstore(0, o)
    tok_a = A.vm
    for o in range(4): hstore(1, o)
    tok_h = A.vm
    stamp(9)
    for st in CORD[8-CPOST:] if CPOST else []: run(c_pieces(st))
    tok_c2 = A.vm
    HS = [3, 4, 0, 1, 3, 4, 0, 1]
    def h_pieces(G):
        r = []
        for sub in range(2):
            pos, ph = SEQ[2 * G + sub]
            r += dma_pieces(V_LIN, SWS, ST + 8, HS[G] * SLOT + sub * 16384,
                            pre=lambda pos=pos, ph=ph: (A(f"s_lshl_b32 s{ST+8}, s{KAP[pos]}, 15"), A(f"s_add_u32 s{ST+8}, s{ST+8}, s{P_ACTR+ph}")),
                            post=(lambda: tok.__setitem__(("h", G), A.vm)) if sub else None, flags=PLF, same_v=True)
        return r
    assert CPRE == 8
    call = sum([c_reads(st) for st in [0, 1, 2, 3, 4, 5, 6, 7]], [])
    HF = 48
    def rd2(n):
        G, q = n >> 2, n & 3
        slot, buf = HS[G], n & 1
        r = []
        for h in range(4):
            kap = 4 * (q & 1) + h
            off = (slot & 1) * SLOT + (q >> 1) * 16384 + (kap >> 2) * 4096 + ((kap >> 1) & 1) * 2048 + (kap & 1) * 256
            for j in range(2):
                if True:
                    r.append(f"ds_read_b64_tr_b16 {vr(HF+buf*16+h*4+2*j,2)}, v{V_AH+2*(slot>>1)+j} offset:{off}")
        return r
    def mm2(n):
        buf = n & 1
        pos, ph = SEQ[n >> 1]
        d = vr(ACC2 + 16 * ph, 16)
        return [mf(d, vr(HF + buf * 16 + h * 4, 4), ar((8 * pos + 4 * (n & 1) + h) * 4, 4), d) for h in range(4)]
    xcc_decide(14)
    A.wait_vm(tok_c)
    A("s_barrier")
    slin(ST + 2, 3 * SLOT, (S_WAVE, 4096))
    A(f"v_add_u32 v{V_GO}, s{ST+2}, v{V_HSO}")
    for o in range(1, 4): A(f"v_xor_b32 v{V_GO+o}, {o*64}, v{V_GO}")
    for p in range(8):
        A(f"ds_write_b128 v{V_GO+(p&3)}, {vr(HP+4*p,4)} offset:{(p>>2)*16384+(p&3)*512}")
    emit(call[:8])
    A("s_waitcnt lgkmcnt(0)")
    A("s_barrier")
    cf = call[8:32]
    gemm_loop(4, rd2, mm2, lambda n: None, (3, 3, 2, 0), (2, 3), cf)
    A.wait_vm(tok_a)
    flag_store(0)
    emit(cf)
    if CPOST:
        A.wait_vm(tok_h)
        flag_store(1)
        A.wait_both(tok_c2, A.lg)
        A("s_barrier")
        stamp(10)
    else:
        A("s_waitcnt lgkmcnt(0)")
        A("s_barrier")
        stamp(10)
        A.wait_vm(tok_h)
        flag_store(1)
    flag_poll(0)
    stamp(11)
    run(h_pieces(1))
    weave(call[32:], h_pieces(2), 4)
    if OPT.get("btouch", 0):
        A(f"v_lshlrev_b32 v9, 7, v{V_N}")
        A(f"buffer_load_dword v254, v9, s[{SWS}:{SWS+3}], s{P_ACTW2} offen sc1")
    stamp(12)
    fill = []
    h4 = h_pieces(4)
    def on_step2(n):
        G, q = n >> 2, n & 3
        if q == 0 and OPT.get("g2st") and G > 1: stamp(15 + G)
        if n == 7:
            A.wait_vm(tok["fb"])
            flag_check(1)
        fb = [lambda: (flag_load(1), tok.__setitem__("fb", A.vm))]
        if q == 0 and G2S == 0:
            if G == 1: fill.extend(fb + h_pieces(3) + h4[:4])
            elif G == 2: fill.extend(h4[4:] + h_pieces(5))
            elif G + 3 < 8: fill.extend(h_pieces(G + 3))
            elif G == 5: fill.extend(out_stores(ACC2, 0))
        elif q == 0 and G2S in (1, 2):
            if G == 1: fill.extend(fb)
            if G + 2 < 8: fill.extend(h_pieces(G + 2))
            elif G == 6: fill.extend(out_stores(ACC2, 0))
        elif q == 0:
            if G == 1: fill.extend(fb + h_pieces(3))
            elif G == 2: fill.extend(h_pieces(4) + h_pieces(5)[:4])
            elif G == 3: fill.extend(h_pieces(5)[4:] + h_pieces(6))
            elif G == 4: fill.extend(h_pieces(7))
            elif G == 5: fill.extend(out_stores(ACC2, 0))
    G2S = OPT.get("g2s", 2)
    def gaps2(n):
        if G2S == 0: return (0, 1, 2, 3) if n < 12 else (2, 3)
        if G2S == 1: return (0, 1, 2, 3) if n < 24 else (2, 3)
        if G2S == 2: return (1, 2, 3) if n < 24 else (2, 3)
        return (1, 2, 3) if n < 16 else (2, 3)
    A.wait_both(tok[("h", 1)], A.lg)
    A("s_barrier")
    stamp(13)
    gemm_loop(32, rd2, mm2, lambda n: tok[("h", n >> 2)] if (n & 3) == 0 else None, (3, 3, 2, 0),
              gaps2, fill, on_step2, start=4)
    assert not fill
    stamp(14)
    run(out_stores(ACC2, 1))
    tag_update("A")
    stamp(15)
    finish()

def role_B():
    V_OO = 24
    V_AX, V_AT = 28, 36
    V_SW, V_SR, V_P2, V_G2B, V_PB0, V_PB1, V_G1, V_GZ, V_G2, V_P2Z = 39, 40, 41, 42, 43, 44, 45, 46, 47, 253
    S_WPH, V_WPO = P0 + 12, 252
    IDF = 240
    V_WF = 48
    KACC, VACC, PK, KV, WPH = 64, 96, 128, 192, 224
    T0 = 232
    P_P1O, P_P1G, P_P2O, P_P2G, P_MSK = P0 + 1, P0 + 2, P0 + 8, P0 + 9, P0 + 10
    S_PART = 57
    SL = 768 if OPT.get('sl768', 0) else 640
    ZS = 7 if SL == 768 else 6
    NS = 16 if OPT.get('p16', 1) else 32
    WPS = OPT.get('wps', 1)
    QE = OPT.get('qe', 3)
    code_prefetch()
    A("v_lshrrev_b32 v9, 1, v3")
    A("v_xor_b32 v9, v9, v4")
    A("v_lshlrev_b32 v9, 4, v9")
    A("v_lshl_add_u32 v10, v3, 10, v9")
    slin(ST, 0, (S_CHUNK, 1 << 17), (S_WAVE, 1 << 15))
    A(f"v_add_u32 v{V_OX}, s{ST}, v10")
    A(f"v_xor_b32 v11, 64, v{V_OX}")
    A(f"v_add_u32 v{V_OX+1}, 7168, v11")
    A(f"v_add_u32 v{V_OX+2}, {2*7168}, v{V_OX}")
    A(f"v_add_u32 v{V_OX+3}, {3*7168}, v11")
    A("v_bfe_u32 v9, v3, 1, 1")
    A("v_lshlrev_b32 v9, 2, v9")
    A("v_xor_b32 v9, v9, v4")
    A("v_lshlrev_b32 v9, 4, v9")
    A(f"s_lshl_b32 s{ST}, s{S_CG}, 7")
    A(f"v_add_u32 v9, s{ST}, v9")
    A(f"s_lshl_b32 s{ST+1}, s{S_CH}, 5")
    A(f"v_add_u32 v10, s{ST+1}, v3")
    A("v_mul_u32_u24 v11, 3072, v10")
    A(f"v_add_u32 v{V_OW}, v11, v9")
    for p in range(1, 4): A(f"v_add_u32 v{V_OW+p}, {p*(8*3072-1024)}, v{V_OW}")
    A(f"v_lshl_add_u32 v{V_OO}, v10, 10, v9")
    slin(S_PART, 1024, (S_RH, 1024))
    if TCHM: touch_setup("B")
    A("s_waitcnt lgkmcnt(0)")
    srd(SW, K_WQKV, 0x180000)
    stamp(1)
    ws_shift()
    A(f"s_load_dword s{S_TAG}, s[{K_WS}:{K_WS+1}], {WS_TAGB}")
    srd(SX, K_BX, 0x200000)
    tok = {}
    def g1_pieces(i):
        slot = i & 3
        return (dma_pieces(V_OW, SW, ST + 8, slot * SLOT, pre=lambda: rot_soff(ST + 8, i, mul=196608, plus=S_PART, rot=S_ROT1)) +
                dma_pieces(V_OX, SX, ST + 10, slot * SLOT + 16384, pre=lambda: rot_soff(ST + 10, i, shift=7, rot=S_ROT1),
                           post=lambda: tok.__setitem__(i, A.vm), flags=XF))
    QSLOT = [4, 0]; OSLOT = [1, 2]
    def q_pieces(st):
        if OPT.get("qdyn", 0):
            def pre():
                A(f"s_add_u32 s{ST+9}, s{S_CHUNK}, {st}")
                A(f"s_lshr_b32 s{ST+7}, s{S_ROT1}, 1")
                A(f"s_sub_u32 s{ST+7}, s{ST+9}, s{ST+7}")
                A(f"s_and_b32 s{ST+7}, s{ST+7}, 3")
                A(f"s_xor_b32 s{ST+7}, s{ST+7}, 2")
                A(f"s_bitcmp1_b32 s{ST+7}, 1")
                A(f"s_cselect_b32 s{ST+5}, {0x20000 - 0x8000:#x}, 0")
                A(f"s_lshl_b32 s{ST+7}, s{ST+7}, 14")
                A(f"s_add_u32 s{ST+7}, s{ST+7}, s{ST+5}")
                A(f"s_add_u32 m0, s{S_M0W}, s{ST+7}")
                A(f"s_and_b32 s{ST+9}, s{ST+9}, 3")
                A(f"s_lshl_b32 s{ST+9}, s{ST+9}, 1")
                A(f"s_add_u32 s{ST+9}, s{ST+9}, s{S_RH}")
                A(f"s_mul_i32 s{ST+9}, s{ST+9}, 196608")
            return dma_pieces(V_OW, SW, ST + 9, 0, pre=pre, post=lambda: tok.__setitem__(("q", st), A.vm))
        return dma_pieces(V_OW, SW, ST + 9, QSLOT[st >> 1] * SLOT + (st & 1) * 16384,
                          pre=lambda: rot_soff(ST + 9, 2 * st, mul=196608, extra_sreg=S_RH, rot=S_ROT1), post=lambda: tok.__setitem__(("q", st), A.vm))
    OPAIR = [(1, 2), (0, 3), (4, 5), (6, 7)]
    OLDS = {}
    for st_, pr_ in enumerate(OPAIR):
        for e_ in range(2): OLDS[pr_[e_]] = OSLOT[st_ >> 1] * SLOT + (st_ & 1) * 16384 + e_ * 8192
    def o_pieces(st):
        def pre():
            A(f"s_cmp_eq_u32 s{S_RH}, 0")
            A(f"s_cselect_b32 s{ST+9}, s{KAP[OPAIR[st][0]]}, s{KAP[OPAIR[st][1]]}")
            A(f"s_lshl_b32 s{ST+9}, s{ST+9}, 16")
        return dma_pieces(V_OO, SW2, ST + 9, OSLOT[st >> 1] * SLOT + (st & 1) * 16384, pre=pre)
    run(g1_pieces(0))
    WPL = 4 * SLOT
    srd(SW2, K_WPHI, 0x4000)
    A(f"v_lshlrev_b32 v{V_LIN}, 4, v{V_LANE}")
    slin(ST, 0, (S_CG, 2048), (S_CH, 1024))
    A(f"s_lshl_b32 s{ST+1}, s{S_WAVE}, 10")
    A(f"s_add_u32 m0, s{ST+1}, {WPL:#x}")
    A(f"buffer_load_dwordx4 v{V_LIN}, s[{SW2}:{SW2+3}], s{ST} offen lds")
    late = g1_pieces(1)
    if TCHM:
        touch_srd("B"); touch(1, V_T3)()
        if TCHM == 1: late = late + [touch(4, V_T2)] + g1_pieces(2) + [touch(6, V_T2)]
    elif EARLY:
        run(late[:NPRE]); late = late[NPRE:] + g1_pieces(2)
    else:
        run(late); late = []
    if OPT.get("wtouch", 0):
        slin(ST, 0, (S_CHUNK, 32), (S_WAVE, 8))
        A(f"v_add_u32 v9, s{ST}, v4")
        A("v_mul_u32_u24 v10, 3072, v9")
        A("v_lshlrev_b32 v9, 10, v9")
        A(f"s_lshl_b32 s{ST}, s{S_CG}, 7")
        A(f"buffer_load_dword v254, v10, s[{SW}:{SW+3}], s{ST} offen")
        A(f"buffer_load_dword v254, v9, s[{SW2}:{SW2+3}], s{ST} offen")
    stamp(2)
    cut("B")
    A(f"s_lshl_b32 s{ST}, s{S_RH}, 13")
    lds_b128_addrs(V_AX, ST, 16384, 2)
    A(f"v_bfe_u32 v9, v{V_LANE}, 4, 1")
    A(f"v_bfe_u32 v13, v{V_LANE}, 1, 1")
    A("v_lshl_add_u32 v10, v9, 1, v13")
    A(f"v_bfe_u32 v13, v{V_LANE}, 3, 1")
    A(f"v_xor_b32 v13, s{S_CH}, v13")
    A("v_lshl_add_u32 v9, v13, 2, v10")
    A("v_lshlrev_b32 v9, 4, v9")
    A(f"v_and_b32 v10, 1, v{V_LANE}")
    A("v_lshl_add_u32 v9, v10, 3, v9")
    A(f"v_bfe_u32 v14, v{V_LANE}, 2, 2")
    A(f"v_lshl_add_u32 v13, v{V_G}, 3, v14")
    A(f"v_lshl_add_u32 v{V_AT}, v13, 7, v9")
    A(f"v_add_u32 v{V_AT+1}, 0x10000, v{V_AT}")
    A(f"v_add_u32 v{V_AT+2}, 0x20000, v{V_AT}")
    if OPT.get("lateset", 1): A.cap = []
    srd(SW2, K_WO, 0x80000)
    common_setup("B")
    for p in range(1, 4): A(f"v_add_u32 v{V_OO+p}, {p*7168}, v{V_OO}")
    A(f"v_bfe_u32 v9, v{V_LANE}, 4, 1")
    A(f"v_bfe_u32 v13, v{V_LANE}, 1, 1")
    A("v_lshl_add_u32 v9, v9, 1, v13")
    A("v_lshlrev_b32 v9, 3, v9")
    A(f"v_bfe_u32 v13, v{V_LANE}, 2, 2")
    A(f"v_lshl_add_u32 v13, v{V_G}, 2, v13")
    A("v_lshl_add_u32 v9, v13, 5, v9")
    slin(ST, WPL, (S_WAVE, 1024))
    A(f"v_add_u32 v{V_WPO}, s{ST}, v9")
    if NS == 32: slin(ST, 0, (S_CG, 512), (S_CH, 256), (S_CHUNK, 2), (S_RH, 1))
    else:
        slin(ST, 0, (S_CG, 256), (S_CH, 128), (S_RH, 32), (S_CHUNK, 1))
    slin(P_P1O, WS_P1, (ST, SL))
    slin(ST, 0, (S_CG, 16), (S_CHUNK, 1))
    slin(P_P2O, WS_P2, (ST, SL))
    slin(P_P1G, WS_P1, (ST, NS * SL))
    for k in range(1, 4): A(f"s_add_u32 s{P_P1G+k}, s{P_P1G}, {8*k*SL}")
    slin(ST, 0, (S_CG, 16), (S_CH, 8))
    slin(P_P2G, WS_P2, (ST, SL))
    A(f"s_mov_b32 s{P_MSK}, 0xffffff00")
    slin(P_ACTW, WS_O, (S_CHUNK, 1 << 17), (S_CG, 1 << 14), (S_RH, 1 << 12), (S_CH, 1 << 11))
    A(f"s_add_u32 s{P_ACTW2}, s{P_ACTW}, 8192")
    slin(P_ACTR, WS_O, (S_CHUNK, 1 << 17), (S_MF, 8192), (S_WAVE, 2048))
    A(f"s_lshl_b32 s{S_M0W2}, s{S_WAVE}, 11")
    A(f"s_xor_b32 s{P_ACTR2}, s{P_ACTR}, 8192")
    clears = [f"buffer_store_dwordx4 {vr(T0+16,4)}, v{V_LIN}, s[{SWS}:{SWS+3}], s{P_ACTW+(k>>1)} offen offset:{(k&1)*1024} sc1" for k in range(4)]
    A(f"s_and_b32 s{ST}, s{S_TAG}, 0xff")
    A(f"v_mov_b32 v{V_TAG}, s{ST}")
    A(f"v_mov_b32 v11, s{S_TAG}")
    A(f"v_and_b32 v9, 1, v{V_N}")
    A("v_lshlrev_b32 v9, 4, v9")
    A("v_mov_b32 v13, 0x3f80")
    A("v_lshlrev_b32 v13, v9, v13")
    A(f"v_lshrrev_b32 v9, 1, v{V_N}")
    A(f"v_lshlrev_b32 v14, 3, v{V_G}")
    A("v_sub_u32 v9, v9, v14")
    for q in range(8):
        A(f"v_cmp_eq_u32 vcc, {q}, v9")
        A(f"v_cndmask_b32_e64 v{IDF+q}, 0, v13, vcc")
    A(f"v_and_b32 v9, 15, v{V_LANE}")
    A(f"v_cmp_gt_u32 vcc, {1 << (ZS-4)}, v9")
    A("v_lshlrev_b32 v9, 4, v9")
    A(f"v_lshl_add_u32 v13, v{V_G}, {ZS}, v9")
    A("v_add_u32 v13, 512, v13")
    A(f"v_lshl_add_u32 v9, v{V_G}, 8, v9")
    A(f"v_mov_b32 v14, {OOB:#x}")
    A("v_cndmask_b32 v13, v14, v13, vcc")
    A(f"v_cndmask_b32_e64 v{V_PB0}, v9, v13, s[{S_M16}:{S_M16+1}]")
    A(f"v_cndmask_b32_e64 v{V_PB1}, v13, v9, s[{S_M16}:{S_M16+1}]")
    A(f"v_cndmask_b32_e64 v13, v13, v14, s[{S_M16}:{S_M16+1}]")
    A(f"s_cmp_eq_u32 s{S_WAVE}, 0")
    A(f"s_cselect_b64 vcc, -1, 0")
    A(f"v_cndmask_b32 v{V_P2Z}, v14, v13, vcc")
    A(f"v_and_b32 v9, 7, v{V_LANE}")
    A(f"s_lshl_b32 s{ST}, s{S_WAVE}, 7")
    A(f"v_lshl_add_u32 v9, v9, 4, s{ST}")
    A(f"v_lshrrev_b32 v13, 3, v{V_LANE}")
    A(f"v_mul_u32_u24 v13, {SL}, v13")
    A(f"v_add_u32 v{V_G1}, v9, v13")
    A(f"v_cmp_gt_u32 vcc, 8, v{V_LANE}")
    A(f"v_and_b32 v13, {NS-1}, v{V_N}")
    A(f"v_mul_u32_u24 v{V_GZ}, {SL}, v13")
    if NS == 16:
        slin(ST, 3 * SLOT, (S_WAVE, 4096))
        A(f"v_add_u32 v{V_SW}, s{ST}, v{V_LIN}")
        A(f"v_xor_b32 v{V_SR}, 0x2000, v{V_SW}")
    A(f"v_lshl_add_u32 v{V_GZ}, v{V_G}, {ZS}, v{V_GZ}")
    A(f"v_cndmask_b32 v{V_P2}, v14, v9, vcc")
    A(f"v_bfe_u32 v9, v{V_N}, 2, 1")
    A("v_lshlrev_b32 v9, 3, v9")
    A(f"v_bfe_u32 v13, v{V_N}, 3, 1")
    A("v_lshl_add_u32 v9, v13, 2, v9")
    A(f"v_and_b32 v13, 3, v{V_N}")
    A("v_add_u32 v9, v9, v13")
    A(f"v_cndmask_b32_e64 v9, v9, 32, s[{S_M16}:{S_M16+1}]")
    A("v_lshlrev_b32 v9, 4, v9")
    A(f"v_mul_u32_u24 v13, {2*SL}, v{V_G}")
    A(f"v_add_u32 v{V_G2}, v9, v13")
    A("v_mov_b32 v9, 0x100")
    A(f"v_mov_b32 v13, {1 << ZS}")
    A(f"v_cndmask_b32_e64 v9, v9, v13, s[{S_M16}:{S_M16+1}]")
    A(f"v_add_u32 v{V_G2B}, v{V_G2}, v9")
    if OPT.get("prew", 1):
        for r in range(4): A(f"v_subrev_u32 v{T0+4+r}, 1, v{V_TAG}")
        A(f"buffer_store_dwordx4 {vr(T0+4,4)}, v{V_P2Z}, s[{SWS}:{SWS+3}], s{P_P2O} offen sc1")
        A(f"buffer_store_dwordx4 {vr(T0+4,4)}, v{V_P2}, s[{SWS}:{SWS+3}], s{P_P2O} offen sc1")
    A("v_mov_b32 v3, 0x3f803f80")
    A(f"v_bfe_u32 v4, v{V_LANE}, 2, 1")
    A("v_mul_u32_u24 v4, 0x8000, v4")
    A("v_lshl_or_b32 v4, v4, 16, v4")
    SET, A.cap = (A.cap or []), None
    LATEV = [x for x in SET if x.startswith("buffer_")]
    SET = [x for x in SET if not x.startswith("buffer_")]
    for _ in range(OPT.get("pset", 0)):
        if not SET or SET[0] == "@consts": break
        if SET[0].startswith(f"s_add_u32 s{S_TAG},"): A("s_waitcnt lgkmcnt(0)")
        A(SET.pop(0))
    while SET and (SET[0].startswith("s_addc") or SET[0].startswith("s_cselect")): A(SET.pop(0))
    if "@consts" in SET:
        k_ = SET.index("@consts")
        SET = SET[:k_] + ["@hold"] + SET[k_+1:]
    stamp(3)
    run(late)
    def trfrag(dst, ldsoff, kind="v"):
        s_, off = ldsoff >> 16, ldsoff & 0xffff
        return [f"ds_read_b64_tr_b16 {vr(dst+2*j,2,kind)}, v{V_AT+s_} offset:{off+j*512}" for j in range(2)]
    def rd(n):
        i, ks = n >> 2, n & 3
        slot, buf = i & 3, n & 1
        s2_, off = slot >> 1, (slot & 1) * SLOT
        x = [f"ds_read_b128 {ar(n*8+m*4,4)}, v{V_AX+4*s2_+ks} offset:{off+m*4096}" for m in range(2)]
        w = [trfrag(V_WF + buf * 8 + part * 4, slot * SLOT + part * 8192 + ks * 2048) for part in range(2)]
        return [x[0]] + w[0] + [x[1]] + w[1]
    def mm(n):
        buf = n & 1
        r = []
        for part, m in ((0, 0), (0, 1), (1, 0), (1, 1)):
            x, w = ar(n * 8 + m * 4, 4), vr(V_WF + buf * 8 + part * 4, 4)
            d = vr((KACC, VACC)[part] + 16 * m, 16)
            r.append(mf(d, w, x, d if n else "0") if part == 0 else mf(d, x, w, d if n else "0"))
        return r
    fill = []
    def on_step(n):
        i, ks = n >> 2, n & 3
        if ks == 0 and OPT.get("g1st") and i: stamp(16 + i)
        if ks == 0:
            if TCHM == 2 and i < 2: fill.append(touch(4 + 2 * i, V_T2))
            for st in SCHED[0].get(i, []): fill.extend(g1_pieces(st))
            if i == 5: fill.extend((LATEV + q_pieces(0)) if OPT.get('lvf', 0) else (q_pieces(0) + LATEV))
            if i == 6:
                fill.extend(q_pieces(1) if QE == 3 else o_pieces(0))
                if OPT.get("ptouch", 0):
                    fill.extend([f"buffer_load_dword v254, v{V_G1}, s[{SWS}:{SWS+3}], s{P_P1G+k} offen sc1" for k in range(4)])
                    fill.append(f"buffer_load_dword v254, v{V_GZ}, s[{SWS}:{SWS+3}], s{P_P1G} offen sc1")
                    fill.extend([f"buffer_load_dword v254, v{V_G2}, s[{SWS}:{SWS+3}], s{P_P2G} offen offset:{(hh*4+jp)*640} sc1" for hh in range(2) for jp in range(2)])
                    fill.append(lambda: rdy_load(254, 254))
            elif i == 7:
                fill.extend(o_pieces(0) if QE == 3 else o_pieces(1))
                fill.append(lambda: emit([f"v_xor_b32 v{WPH+r}, v4, v{WPH+r}" for r in range(4)]))
                fill.append(lambda: emit([f"v_xor_b32 v{WPH+r}, v4, v{WPH+r}" for r in range(4, 8)]))
        if n == OPT.get('wpn', 7):
            SET.extend([f"ds_read_b64_tr_b16 {vr(WPH+4*hh+2*j,2)}, v{V_WPO} offset:{hh*512+j*256}" for hh in range(2) for j in range(2)])
    A.wait_vm(tok[0])
    A("s_barrier")
    stamp(4)
    gemm_loop(32, rd, mm, lambda n: tok[n >> 2] if (n & 3) == 0 else None, (3, 3, 0, 0), lambda n: g1_gaps(n, (7,) if QE == 1 else ()), fill, on_step, end_barrier=True, extra=SET, nextra=lambda n, g: NX)
    assert not SET
    assert not fill
    stamp(5)
    if TCHM: srd(SOUT, 100, 0x800000)
    def feat(acc):
        for m in range(2):
            for u in range(8):
                A(f"v_cvt_pk_bf16_f32 v{acc+16*m+u}, v{acc+16*m+2*u}, v{acc+16*m+2*u+1}")
            for hh in range(2):
                A(mf(vr(PK + (m * 2 + hh) * 16, 16), vr(WPH + 4 * hh, 4), vr(acc + 16 * m + 4 * hh, 4), "0"))
    def softmax_l(x, dst):
        mx, sm = T0, T0 + 2
        l = [f"v_max3_f32 v{mx}, v{x}, v{x+1}, v{x+2}"]
        for u in range(3, 15, 2):
            l.append(f"v_max3_f32 v{mx}, v{mx}, v{x+u}, v{x+u+1}")
        l.append(f"v_max_f32 v{mx}, v{mx}, v{x+15}")
        l.append(f"v_mul_f32 v{mx}, s{S_L2E}, v{mx}")
        for u in range(8):
            l.append(f"v_pk_fma_f32 {vr(x+2*u,2)}, {vr(x+2*u,2)}, s[{S_L2E}:{S_L2E+1}], {vr(mx,2)} op_sel_hi:[1,1,0] neg_lo:[0,0,1] neg_hi:[0,0,1]")
        for u in range(16):
            l.append(f"v_exp_f32 v{x+u}, v{x+u}")
        l.append(f"v_pk_add_f32 {vr(sm,2)}, {vr(x,2)}, {vr(x+2,2)}")
        for u in range(2, 8):
            l.append(f"v_pk_add_f32 {vr(sm,2)}, {vr(sm,2)}, {vr(x+2*u,2)}")
        l.append(f"v_add_f32 v{sm}, v{sm}, v{sm+1}")
        l.append(f"v_rcp_f32 v{sm}, v{sm}")
        for u in range(8):
            l.append(f"v_pk_mul_f32 {vr(x+2*u,2)}, {vr(x+2*u,2)}, {vr(sm,2)} op_sel_hi:[1,0]")
        for u in range(8):
            l.append(f"v_cvt_pk_bf16_f32 v{dst+u}, v{x+2*u}, v{x+2*u+1}")
        return l
    feat(KACC)
    for m in range(2):
        for u in range(8):
            A(f"v_cvt_pk_bf16_f32 v{VACC+16*m+u}, v{VACC+16*m+2*u}, v{VACC+16*m+2*u+1}")
    for m in range(2):
        for u in range(8):
            A(f"v_cndmask_b32_e64 v{VACC+16*m+8+u}, v3, v{VACC+16*m+u}, s[{S_M16}:{S_M16+1}]")
            A(f"v_cndmask_b32_e64 v{VACC+16*m+u}, v{VACC+16*m+u}, v3, s[{S_M16}:{S_M16+1}]")
    nbstamp(0)
    PH = [KACC + 8, KACC + 24]
    ID = T0 + 8
    def tmm(blk):
        d = vr(PK + 16 * blk, 16)
        return [mf(d, vr(PH[blk & 1] + 4 * jp, 4), vr(ID + 4 * jp, 4), d if jp else "0") for jp in range(2)]
    def tcvt(blk):
        t = PK + 16 * blk
        return [f"v_cvt_pk_bf16_f32 v{t+u}, v{t+2*u}, v{t+2*u+1}" for u in range(8)]
    def kvmm(blk):
        m, hh = blk >> 1, blk & 1
        d = vr(KV + 16 * hh, 16)
        return [mf(d, vr(PK + 16 * blk + 4 * mm_, 4), vr(VACC + 16 * m + 8 * hh + 4 * mm_, 4), d if (m or mm_) else "0") for mm_ in range(2)]
    for blk in range(4):
        l = softmax_l(PK + blk * 16, PH[blk & 1])
        if blk:
            t, kv = tmm(blk - 1), kvmm(blk - 1)
            qp = q_pieces(blk) if not QE else (q_pieces(blk + 1) if blk < 3 else o_pieces(1))
            l = l[:17] + [t[0], qp[0]] + l[17:21] + [t[1], qp[1]] + l[21:33] + tcvt(blk - 1) + l[33:50] + [kv[0], qp[2]] + l[50:58] + [kv[1], qp[3]]
        run([x for x in l if x is not None])
        nbstamp(1 + blk)
    TS = 4 if OPT.get("tag1", 1) else 1
    def tagit(r, n):
        for e in range(0, n, TS):
            A(f"v_and_or_b32 v{r+e}, v{r+e}, s{P_MSK}, v{V_TAG}")
    def pub(hh, oc):
        A(f"s_add_u32 s{ST+3}, s{P_P1O}, {(hh*4+oc)*32*SL}")
        A(f"buffer_store_dwordx4 {vr(KV+16*hh+4*oc,4)}, v{V_PB0+hh}, s[{SWS}:{SWS+3}], s{ST+3} offen sc1")
    if NS == 32:
        emit(tmm(3))
        tagit(KV, 16)
        pub(0, 0); pub(0, 1)
        emit(tcvt(3))
        emit(kvmm(3))
        nbstamp(5)
        pub(0, 2); pub(0, 3)
        tagit(KV + 16, 16)
        for oc in range(4): pub(1, oc)
    else:
        RB = PK
        def tail(rh):
            keep, send = 8 * rh, 8 - 8 * rh
            emit(tmm(3))
            for u in range(2): A(f"ds_write_b128 v{V_SW}, {vr(KV+send+4*u,4)} offset:{u*1024}")
            emit(tcvt(3))
            emit(kvmm(3))
            for u in range(2): A(f"ds_write_b128 v{V_SW}, {vr(KV+16+send+4*u,4)} offset:{(2+u)*1024}")
            A("s_waitcnt lgkmcnt(0)")
            A("s_barrier")
            for u in range(4): A(f"ds_read_b128 {vr(RB+4*u,4)}, v{V_SR} offset:{u*1024}")
            for hh in range(2):
                for jj in range(2):
                    r = KV + 16 * hh + keep + 4 * jj
                    A(f"s_add_u32 s{ST+3}, s{P_P1O}, {(hh*4+jj)*16*SL}")
                    A(f"s_waitcnt lgkmcnt({3-2*hh-jj})")
                    for u in range(2):
                        A(f"v_pk_add_f32 {vr(r+2*u,2)}, {vr(r+2*u,2)}, {vr(RB+8*hh+4*jj+2*u,2)}")
                    tagit(r, 4)
                    A(f"buffer_store_dwordx4 {vr(r,4)}, v{V_PB0+hh}, s[{SWS}:{SWS+3}], s{ST+3} offen sc1")
        l1, l2 = lab("rh1"), lab("rhj")
        A(f"s_cmp_lg_u32 s{S_RH}, 0")
        A(f"s_cbranch_scc1 {l1}")
        st_ = (A.vm, A.lg, list(A.hist))
        tail(0)
        A(f"s_branch {l2}")
        A.label(l1)
        A.vm, A.lg, A.hist = st_[0], st_[1], list(st_[2])
        tail(1)
        A.label(l2)
    QACC = KACC
    def qaddr(n):
        i, ks = n >> 2, n & 3
        return QSLOT[i >> 2] * SLOT + (i & 3) * 8192 + ks * 2048
    def rdq(n):
        return trfrag(V_WF + (n & 1) * 8, qaddr(2 * n)) + trfrag(V_WF + (n & 1) * 8 + 4, qaddr(2 * n + 1))
    def mmq(n):
        r = []
        for h in range(2):
            for m in range(2):
                d = vr(QACC + 16 * m, 16)
                r.append(mf(d, vr(V_WF + (n & 1) * 8 + 4 * h, 4), ar((2 * n + h) * 8 + m * 4, 4), d if (n or h) else "0"))
        if n == 15: r = [r[0], r[2], r[1], r[3]]
        return r
    stamp(6)
    nbflush()
    GD = VACC
    GZ = GD + 16
    g1l = [f"buffer_load_dwordx4 {vr(GD+4*k,4)}, v{V_G1}, s[{SWS}:{SWS+3}], s{P_P1G+k} offen sc1" for k in range(NS // 8)]
    g1l.append(f"buffer_load_dwordx4 {vr(GZ,4)}, v{V_GZ}, s[{SWS}:{SWS+3}], s{P_P1G} offen offset:512 sc1")
    S_D1, S_RET = P0 + 11, ST + 6
    A(f"s_mov_b32 s{S_D1}, 0")
    def try1a(block=False):
        skip = lab("sk")
        if block:
            A(f"s_cmp_lg_u32 s{S_D1}, 0")
        else:
            A(f"s_getreg_b32 s{ST+5}, hwreg(HW_REG_IB_STS, 0, 4)")
            A(f"s_or_b32 s{ST+5}, s{ST+5}, s{S_D1}")
        A(f"s_cbranch_scc1 {skip}")
        A(f"s_call_b64 s[{S_RET}:{S_RET+1}], L_try1a")
        A.label(skip)
    def sub_try1a():
        A.label("L_try1a")
        A.hist = []
        A("s_waitcnt vmcnt(0)")
        A(f"v_xor_b32 v13, v{GD}, v{V_TAG}")
        for s in [x for x in range(TS, 20, TS) if x < NS // 2 or x >= 16]:
            A(f"v_bitop3_b32 v13, v{GD+s}, v{V_TAG}, v13 bitop3:0xbe")
        A("v_and_b32 v13, 0xff, v13")
        A(f"v_cmp_ne_u32 s[{S_FAIL}:{S_FAIL+1}], 0, v13")
        A(f"s_cmp_eq_u64 s[{S_FAIL}:{S_FAIL+1}], 0")
        A("s_cbranch_scc1 L_try1a_ok")
        emit(g1l)
        A(f"s_setpc_b64 s[{S_RET}:{S_RET+1}]")
        A.label("L_try1a_ok")
        DPP = "row_mask:0xf bank_mask:0xf"
        A(f"v_permlane16_swap_b32 v{GZ}, v{GZ+2}")
        A(f"v_permlane16_swap_b32 v{GZ+1}, v{GZ+3}")
        if NS == 32:
            for u in range(0, 8, 2):
                A(f"v_pk_add_f32 {vr(GD+u,2)}, {vr(GD+u,2)}, {vr(GD+8+u,2)}")
            A(f"v_pk_add_f32 {vr(GZ,2)}, {vr(GZ,2)}, {vr(GZ+2,2)}")
        for u in range(0, 4, 2):
            A(f"v_pk_add_f32 {vr(GD+u,2)}, {vr(GD+u,2)}, {vr(GD+4+u,2)}")
        def zror(k):
            for e in range(2): A(f"v_add_f32_dpp v{GZ+e}, v{GZ+e}, v{GZ+e} row_ror:{k} {DPP}")
        zror(1)
        A(f"v_permlane32_swap_b32 v{GD}, v{GD+1}")
        A(f"v_permlane32_swap_b32 v{GD+2}, v{GD+3}")
        zror(2)
        A(f"v_add_f32 v{GD}, v{GD}, v{GD+1}")
        A(f"v_add_f32 v{GD+2}, v{GD+2}, v{GD+3}")
        zror(4)
        A(f"v_permlane16_swap_b32 v{GD}, v{GD+2}")
        A(f"v_add_f32 v{GD}, v{GD}, v{GD+2}")
        zror(8)
        A(f"v_add_f32_dpp v{GD}, v{GD}, v{GD} row_ror:8 {DPP}")
        for e in range(2): A(f"v_and_or_b32 v{GZ+e}, v{GZ+e}, s{P_MSK}, v{V_TAG}")
        A(f"v_and_or_b32 v{GD}, v{GD}, s{P_MSK}, v{V_TAG}")
        for e in range(2): A(f"v_mov_b32 v{GZ+2+e}, v{GZ+e}")
        A(f"v_mov_b32 v{GD+1}, v{GD}")
        A(f"v_permlane16_swap_b32 v{GZ}, v{GZ+2}")
        A(f"v_permlane16_swap_b32 v{GZ+1}, v{GZ+3}")
        A(f"v_permlane32_swap_b32 v{GD}, v{GD+1}")
        A(f"buffer_store_dwordx4 {vr(GZ,4)}, v{V_P2Z}, s[{SWS}:{SWS+3}], s{P_P2O} offen sc1")
        A(f"v_mov_b32 v{GD+2}, v{GD}")
        A(f"v_mov_b32 v{GD+3}, v{GD+1}")
        A(f"v_permlane16_swap_b32 v{GD}, v{GD+2}")
        A(f"v_permlane16_swap_b32 v{GD+1}, v{GD+3}")
        A(f"buffer_store_dwordx4 {vr(GD,4)}, v{V_P2}, s[{SWS}:{SWS+3}], s{P_P2O} offen sc1")
        stamp(8)
        A(f"s_mov_b32 s{S_D1}, 1")
        A(f"s_setpc_b64 s[{S_RET}:{S_RET+1}]")
    DEFER.append(sub_try1a)
    fill = []
    G1AT = OPT.get('g1at', 6)
    def on_stepq(n):
        if n == 0: fill.extend((o_pieces(1) if QE == 1 else (q_pieces(2) + q_pieces(3) if QE == 2 else [])) + o_pieces(2) + o_pieces(3) + [lambda: (rdy_load(14), tok.__setitem__('wo', A.vm))])
        if n == G1AT: fill.extend(g1l + [None])
        if n >= G1AT + 4: fill.extend([None, try1a])
    if QE == 2:
        run(q_pieces(1))
        A.wait_vm(tok[("q", 0)])
        qb = lambda n: tok[("q", n >> 2)] if n in (4, 8, 12) else None
    else:
        A.wait_vm(tok[("q", 3)])
        qb = lambda n: None
    A("s_barrier")
    stamp(26)
    gemm_loop(16, rdq, mmq, qb, (2, 2, 0, 0), lambda n: (0, 1, 2, 3) if (QE == 2 and n < 2) else (2, 3), fill, on_stepq)
    assert not fill
    stamp(7)
    feat(QACC)
    def wait1a():
        top, done = lab("w1a"), lab("w1d")
        A(f"s_mov_b32 s{S_CNT}, {SPIN_LIMIT}")
        A.label(top)
        try1a(block=True)
        A(f"s_cmp_lg_u32 s{S_D1}, 0")
        A(f"s_cbranch_scc1 {done}")
        A(f"s_sub_u32 s{S_CNT}, s{S_CNT}, 1")
        A(f"s_cbranch_scc0 {top}")
        A.label(done)
    B1 = OPT.get("blk1a", 0)
    if B1 == 0: wait1a()
    S_D2 = ST + 4
    A(f"s_mov_b32 s{S_D2}, 0")
    PHQ = KV
    FD = PK
    def loads2(rdy=True):
        for hh in range(2):
            for jp in range(2):
                r = FD + (hh * 2 + jp) * 8
                off = (hh * 4 + jp) * SL
                A(f"buffer_load_dwordx4 {vr(r,4)}, v{V_G2}, s[{SWS}:{SWS+3}], s{P_P2G} offen offset:{off} sc1")
                A(f"buffer_load_dwordx4 {vr(r+4,4)}, v{V_G2B}, s[{SWS}:{SWS+3}], s{P_P2G} offen offset:{off} sc1")
        if rdy: rdy_load(14)
    def check2():
        A(f"v_xor_b32 v13, v{FD}, v{V_TAG}")
        for s in range(1, 32):
            A(f"v_bitop3_b32 v13, v{FD+s}, v{V_TAG}, v13 bitop3:0xbe")
        rdy_check(9, 14)
        A("v_and_b32 v13, 0xff, v13")
        A("v_or_b32 v13, v13, v9")
        A(f"v_cmp_ne_u32 s[{S_FAIL}:{S_FAIL+1}], 0, v13")
    for blk in range(4):
        if blk == OPT.get("l2at", 3): loads2(False)
        emit(softmax_l(PK + blk * 16, PHQ + 8 * blk))
        if blk + 1 == B1: wait1a()
    A("s_barrier")
    stamp(9)
    KVF = VACC + 16
    ODR = [KACC, KACC + 16, PK + 32, PK + 48]
    A(f"s_lshl_b32 s{ST+5}, s{S_RH}, 12")
    A(f"v_add_u32 v{V_AX}, s{ST+5}, v{V_LIN}")
    A(f"v_add_u32 v{V_AX+1}, 0x10000, v{V_AX}")
    A(f"v_add_u32 v{V_AX+2}, 0x20000, v{V_AX}")
    slin(ST + 5, 3 * SLOT, (S_MF, 8192), (S_M0W2, 1))
    A(f"v_add_u32 v{V_AX+3}, s{ST+5}, v{V_LIN}")
    A(f"v_xor_b32 v{V_AX+4}, 0x2000, v{V_AX+3}")
    wor = []
    for n in range(32):
        wor += trfrag(n * 4, OLDS[n >> 2] + (n & 3) * 2048, "a")
    NW = OPT.get('nw', 8)
    emit(wor[:NW])
    def check2m():
        chk = [f"v_xor_b32 v13, v{FD}, v{V_TAG}"] + [f"v_bitop3_b32 v13, v{FD+s}, v{V_TAG}, v13 bitop3:0xbe" for s in range(TS, 32, TS)]
        for hh in range(2):
            for q in (2 * hh, 2 * hh + 1):
                for u in range(4):
                    A(f"v_cvt_pk_bf16_f32 v{KVF+4*q+u}, v{FD+8*q+2*u}, v{FD+8*q+2*u+1}")
            for m in range(2):
                blk = 2 * m + hh
                d = vr(ODR[blk], 16)
                for jp in range(2):
                    A(mf(d, vr(KVF + (hh * 2 + jp) * 4, 4), vr(PHQ + 8 * blk + 4 * jp, 4), d if jp else "0"))
                    k = 3 if hh == 0 else 5
                    emit(chk[:k]); chk = chk[k:]
        assert not chk
        rdy_check(9, 14)
        A("v_and_b32 v13, 0xff, v13")
        A("v_or_b32 v13, v13, v9")
        A(f"v_cmp_ne_u32 s[{S_FAIL}:{S_FAIL+1}], 0, v13")
    poll_pre(loads2, check2m)
    stamp(10)
    A("s_nop 2")
    for blk in (0, 2, 1, 3):
        m, hh = blk >> 1, blk & 1
        o = ODR[blk]
        A(f"v_add_f32 v{o+8}, 0x358637bd, v{o+8}")
        A(f"v_rcp_f32 v{o+8}, v{o+8}")
        for u in range(4):
            A(f"v_pk_mul_f32 {vr(o+2*u,2)}, {vr(o+2*u,2)}, {vr(o+8,2)} op_sel_hi:[1,0]")
        for u in range(4):
            A(f"v_cvt_pk_bf16_f32 v{o+12+u}, v{o+2*u}, v{o+2*u+1}")
        A(f"buffer_store_dwordx4 {vr(o+12,4)}, v{V_LIN}, s[{SWS}:{SWS+3}], s{P_ACTW+m} offen offset:{hh*1024} sc1")
    tok_o = A.vm
    xcc_decide(14)
    for blk in range(4):
        A(f"ds_write_b128 v{V_AX+3+(blk>>1)}, {vr(ODR[blk]+12,4)} offset:{(blk&1)*1024}")
    stamp(11)
    ELDS = [(3, 4, 0, 1)[e >> 2] * SLOT + (e & 3) * 8192 for e in range(16)]
    def of_pieces(e):
        pos, ph = SEQ[e]
        def p0():
            A(f"s_add_u32 m0, s{S_M0W2}, {ELDS[e]:#x}")
            A(f"s_lshl_b32 s{ST+8}, s{KAP[pos]}, 14")
            A(f"s_add_u32 s{ST+8}, s{ST+8}, s{P_ACTR+ph}")
            A(f"buffer_load_dwordx4 v{V_LIN}, s[{SWS}:{SWS+3}], s{ST+8} offen {PLF}lds")
        def p1():
            A(f"buffer_load_dwordx4 v{V_LIN}, s[{SWS}:{SWS+3}], s{ST+8} offen offset:1024 {PLF}lds")
            tok[("of", e)] = A.vm
        return [p0, p1]
    OF = PK
    OACC = VACC
    def rd4(n):
        return [f"ds_read_b128 {vr(OF+(n&1)*16+h*4,4)}, v{V_AX+(ELDS[n]>>16)} offset:{(ELDS[n]&0xffff)+h*1024}" for h in range(4)]
    def mm4(n):
        pos, ph = SEQ[n]
        d = vr(OACC + 16 * ph, 16)
        return [mf(d, vr(OF + (n & 1) * 16 + h * 4, 4), ar((4 * pos + h) * 4, 4), d if (pos or h) else "0") for h in range(4)]
    A("s_waitcnt lgkmcnt(0)")
    A("s_barrier")
    wf = wor[NW:]
    def two():
        for _ in range(2): A(wf.pop(0))
    gemm_loop(2, rd4, mm4, lambda n: None, (2, 2, 0, 0), (2, 3), [two] * 4)
    emit(wf[:16]); wf = wf[16:]
    A.wait_vm(tok_o)
    flag_store()
    emit(wf)
    flag_poll()
    stamp(12)
    for e in range(2, 7): run(of_pieces(e))
    fill = []
    def on_step4(n):
        if OPT.get("g2st") and n in (4, 7, 10, 13): stamp(16 + n // 3)
        if n == 2:
            for e in range(7, 16): fill.extend(of_pieces(e))
        if n == 10: fill.extend(out_stores(OACC, 0))
    A.wait_both(tok[("of", 3)], A.lg)
    A("s_barrier")
    stamp(13)
    BND = {4: 6, 7: 9, 10: 12, 13: 15}
    gemm_loop(16, rd4, mm4, lambda n: tok[("of", BND[n])] if n in BND else None, (2, 2, 0, 0),
              lambda n: (1, 2, 3) if n >= 10 else (0, 1, 2, 3), fill, on_step4, start=2)
    assert not fill
    stamp(14)
    run(out_stores(OACC, 1))
    tag_update("B")
    stamp(15)
    finish()

prologue()
vm0, lg0 = A.vm, A.lg
role_A()
for f in DEFER: f()
DEFER.clear()
A.label("L_roleB")
ROLE[0] = "B"
A.vm, A.lg = vm0, lg0
A.hist = []
role_B()
for f in DEFER: f()
A.label("L_end")
A("s_endpgm")

iB = A.out.index("L_roleB:")
iE = A.out.index("L_end:")
if OPT.get("bfirst", 1):
    lines = A.out[:CUT["P"]] + A.out[iB:CUT["B"]] + A.out[CUT["P"]:CUT["A"]] + A.out[CUT["B"]:iE] + A.out[CUT["A"]:iB] + A.out[iE:]
else:
    lines = A.out[:CUT["A"]] + A.out[iB:CUT["B"]] + A.out[CUT["A"]:iB] + A.out[CUT["B"]:]
if OPT["align"]:
    lines, nw, nn = align(lines, min_nop=OPT.get('minnop', 12))
    print("align: widened", nw, "nops", nn)
HEAD = open("cdna_kernels/" + NAME + ".s.ref").read().split("; Override launch geometry")[0]
src = HEAD + f"""; @launch grid=(256,1,1) block=(256,1,1) lds=163840
.amdgcn_target "amdgcn-amd-amdhsa--gfx950"
.text
.globl {NAME}_kernel
.p2align 8
.type {NAME}_kernel,@function
{NAME}_kernel:
""" + "\n".join(lines) + f"""
.fill 8192, 4, 0xBF810000
.section .rodata,"a"
.p2align 6
.amdhsa_kernel {NAME}_kernel
  .amdhsa_next_free_vgpr 512
  .amdhsa_next_free_sgpr 102
  .amdhsa_accum_offset 256
  .amdhsa_group_segment_fixed_size 0
  .amdhsa_kernarg_size 128
  .amdhsa_user_sgpr_count 2
  .amdhsa_user_sgpr_kernarg_segment_ptr 1
  .amdhsa_system_sgpr_workgroup_id_x 1
.end_amdhsa_kernel
"""
open(sys.argv[1], "w").write(src)
print("hazard nops:", A.nnop, "lines:", len(lines))
```

```python
import sys
from dsl import Asm, vr, ar, sr
from align import align

NAME = "concat_heads__ssm_conv_s5__linear_kernel_hedgehog__prompt"
OPT = dict(stamps=False, rotmode=2, align=1, xnt=0, hwait=8, owait=4, hand=0)
for a_ in sys.argv[2:]:
    k_, _, v_ = a_.partition("=")
    OPT[k_] = int(v_) if v_ else True

WS_TAGA, WS_TAGB = 0x0, 0x80
WS_XCC = 0x8000
WS_FLAG = 0x2000
WS_SA = 0x10000
WS_P1 = 0x100000
WS_P2 = 0x3C0000
WS_H = 0x400000
WS_O = 0x800000
WS_STAMP = 0xA00000
OOB = 0x40000000
SPIN_LIMIT = 1 << 14
LOG2E = 0x3FB8AA3B
INV2PI = 0x3E22F983

S_WAVE, S_CHUNK, S_CG, S_ROT, S_TAG = 3, 4, 5, 6, 7
SX, SW, SW2, SWS, SOUT = 8, 12, 16, 20, 24
S_RH, S_CH, S_SLOT, S_GRP = 28, 29, 30, 31
ST = 32
S_M0W, S_M0W2 = 48, 49
S_MG = 50
S_MRH = 52
S_L2E = 54
S_CNT = 56
S_FAIL = 58
S_M16 = 60
S_SM0, S_RS = 62, 63
S_XW, S_SLOW, P_FLW = 91, 92, 93
S_ROT1 = 47
KAP = [62, 63, 44, 45, 86, 87, 94, 95]
SEQ = [(0, 0), (0, 1)] + [(j, 0) for j in range(1, 8)] + [(j, 1) for j in range(1, 8)]
HAND = OPT['hand']
KA = 64
K_AX, K_LRE, K_LIM, K_BRE, K_BIM, K_CRE, K_CIM, K_LDT, K_DSK, K_BX, K_WQKV, K_WPHI, K_WO, K_OUT, K_DBG, K_WS = [KA + 2 * i for i in range(16)]
P_FLAGB, P_FLAGO, P_XCCB, P_TAGSEL, P_OUT, P_OUT2, P_ACTR, P_ACTR2 = range(64, 72)
P_ACTW, P_ACTW2, S_MF = 88, 89, 90
P0 = 72
S_STAMP = 96
V_LANE, V_OUTO, V_N, V_G, V_LIN, V_TAG, V_L0, V_CHK, V_XPO = 1, 2, 5, 6, 7, 8, 10, 12, 15
V_OX, V_OW = 16, 20
SLOT = 32768

A = Asm()
CUT = {}
nlab = [0]

def srd(dst, ptr, nbytes):
    A(f"s_mov_b32 s{dst}, s{ptr}")
    A(f"s_mov_b32 s{dst+1}, s{ptr+1}")
    A(f"s_mov_b32 s{dst+2}, {nbytes:#x}")
    A(f"s_mov_b32 s{dst+3}, 0x20000")

def slin(dst, const, *terms):
    first = True
    for reg, mul in terms:
        t = dst if first else ST + 14
        if mul == 1:
            if first: A(f"s_mov_b32 s{dst}, s{reg}")
            else: t = reg
        elif mul & (mul - 1) == 0: A(f"s_lshl_b32 s{t}, s{reg}, {mul.bit_length()-1}")
        else: A(f"s_mul_i32 s{t}, s{reg}, {mul}")
        if not first: A(f"s_add_u32 s{dst}, s{dst}, s{t}")
        first = False
    if const: A(f"s_add_u32 s{dst}, s{dst}, {const:#x}")

ROLE = ["A"]
def stamp(idx):
    if OPT.get("probe") == idx + (0 if ROLE[0] == "A" else 100):
        if OPT.get("cyc"):
            A("s_memtime s[96:97]")
            A("s_waitcnt lgkmcnt(0)")
            A("s_sub_u32 s99, s96, s98")
            A("s_lshr_b32 s99, s99, 4")
        else:
            A("s_memrealtime s[96:97]")
            A("s_waitcnt lgkmcnt(0)")
            A("s_sub_u32 s99, s96, s100")
    if not OPT["stamps"]: return
    A(f"s_memtime s[{S_STAMP}:{S_STAMP+1}]")
    A("s_waitcnt lgkmcnt(0)")
    A(f"s_sub_u32 s{S_STAMP}, s{S_STAMP}, s98")
    A(f"v_writelane_b32 v255, s{S_STAMP}, {idx}")
    if OPT.get("rt") and idx <= 16:
        A(f"s_memrealtime s[{S_STAMP}:{S_STAMP+1}]")
        A("s_waitcnt lgkmcnt(0)")
        A(f"s_sub_u32 s{S_STAMP}, s{S_STAMP}, s100")
        A(f"v_writelane_b32 v255, s{S_STAMP}, {idx+44}")

NB = [32, 36, 38, 42, 58, 56]
nbuse = []
def nbstamp(k):
    if OPT.get("nb") and OPT["stamps"]:
        A(f"s_memtime s[{NB[k]}:{NB[k]+1}]"); nbuse.append(k)
def nbflush():
    if OPT.get("nb") and OPT["stamps"]:
        A("s_waitcnt lgkmcnt(0)")
        for k in nbuse:
            A(f"s_sub_u32 s{NB[k]}, s{NB[k]}, s98")
            A(f"v_writelane_b32 v255, s{NB[k]}, {17+k}")
        nbuse.clear()

def lab(n):
    nlab[0] += 1
    return f"L_{n}_{nlab[0]}"

def finish():
    if OPT.get("probe") and (OPT["probe"] >= 100) == (ROLE[0] == "B"):
        if OPT["probe"] % 100 == 16:
            A("s_waitcnt vmcnt(0)")
            stamp(16)
        l = lab("pr")
        A("s_lshl_b32 s99, s99, 1")
        A("s_add_u32 s99, s99, 2500")
        A.label(l)
        A("s_memrealtime s[96:97]")
        A("s_waitcnt lgkmcnt(0)")
        A("s_sub_u32 s96, s96, s100")
        A("s_cmp_lt_u32 s96, s99")
        A(f"s_cbranch_scc1 {l}")
    if OPT.get("fixrt"):
        l = lab("rt")
        A.label(l)
        A("s_memrealtime s[96:97]")
        A("s_waitcnt lgkmcnt(0)")
        A("s_sub_u32 s96, s96, s100")
        A(f"s_cmp_lt_u32 s96, {OPT['fixrt']}")
        A(f"s_cbranch_scc1 {l}")
    if OPT["stamps"]:
        A("s_waitcnt vmcnt(0)")
        stamp(16)
        A("v_writelane_b32 v255, s99, 30")
        A("s_memrealtime s[96:97]")
        A("v_writelane_b32 v255, s100, 40")
        A("s_waitcnt lgkmcnt(0)")
        A("v_writelane_b32 v255, s96, 41")
        slin(ST, WS_STAMP, (2, 1024), (S_WAVE, 256))
        A(f"v_lshlrev_b32 v254, 2, v{V_LANE}")
        A(f"buffer_store_dword v255, v254, s[{SWS}:{SWS+3}], s{ST} offen")
    A("s_endpgm")

def mf(d, a, b, c):
    return f"v_mfma_f32_32x32x16_bf16 {d}, {a}, {b}, {c}"

def poll(loads, check):
    top, done = lab("poll"), lab("ok")
    A(f"s_mov_b32 s{S_CNT}, {SPIN_LIMIT}")
    A.label(top)
    loads()
    A("s_waitcnt vmcnt(0)")
    check()
    A(f"s_cmp_eq_u64 s[{S_FAIL}:{S_FAIL+1}], 0")
    A(f"s_cbranch_scc1 {done}")
    A(f"s_sub_u32 s{S_CNT}, s{S_CNT}, 1")
    A(f"s_cbranch_scc0 {top}")
    A.label(done)

def poll_pre(loads, check):
    top, done = lab("poll"), lab("ok")
    A(f"s_mov_b32 s{S_CNT}, {SPIN_LIMIT}")
    A.label(top)
    A("s_waitcnt vmcnt(0)")
    check()
    A(f"s_cmp_eq_u64 s[{S_FAIL}:{S_FAIL+1}], 0")
    A(f"s_cbranch_scc1 {done}")
    loads()
    A(f"s_sub_u32 s{S_CNT}, s{S_CNT}, 1")
    A(f"s_cbranch_scc0 {top}")
    A("s_waitcnt vmcnt(0)")
    A.label(done)

def cfma_l(d, a, b, c, t):
    return [f"v_pk_fma_f32 {vr(t,2)}, {vr(a,2)}, {vr(b,2)}, {vr(c,2)} op_sel:[1,1,0] op_sel_hi:[1,0,1] neg_lo:[1,0,0]",
            f"v_pk_fma_f32 {vr(d,2)}, {vr(a,2)}, {vr(b,2)}, {vr(t,2)} op_sel:[0,0,0] op_sel_hi:[0,1,1]"]
def cmul_l(d, a, b, t):
    return [f"v_pk_mul_f32 {vr(t,2)}, {vr(a,2)}, {vr(b,2)} op_sel:[1,1] op_sel_hi:[1,0] neg_lo:[1,0]",
            f"v_pk_fma_f32 {vr(d,2)}, {vr(a,2)}, {vr(b,2)}, {vr(t,2)} op_sel:[0,0,0] op_sel_hi:[0,1,1]"]
def emit(l):
    for x in l: A(x)
def cfma(*a): emit(cfma_l(*a))
def cmul(*a): emit(cmul_l(*a))

def weave(main, fillers, every, start=0):
    for i, x in enumerate(main):
        A(x)
        if i >= start and (i - start) % every == every - 1 and fillers:
            f = fillers.pop(0)
            if isinstance(f, str): A(f)
            elif f: f()

def gemm_loop(nsteps, reads, mfmas, boundary, split, fill_gaps, fillers, on_step=None, end_barrier=False, verify=None, start=0, extra=None, nextra=None, hook=None):
    for r in reads(start): A(r)
    for n in range(start, nsteps):
        if on_step: on_step(n)
        last = n == nsteps - 1
        b = None if last else boundary(n + 1)
        b2 = boundary(n + 2) if (verify and n + 2 < nsteps) else None
        if b2 is not None: A.wait_both(b2, A.lg)
        elif b is not None and not verify: A.wait_both(b, A.lg)
        else: A("s_waitcnt lgkmcnt(0)")
        if b is not None and verify: verify(n + 1)[1]()
        rs = [] if last else list(reads(n + 1))
        ms = mfmas(n)
        for g in range(4):
            A(ms[g])
            if g == 0 and b2 is not None: verify(n + 2)[0]()
            if g == 0 and b is not None and verify: verify(n + 1)[2]()
            if g == 0 and (b is not None or (last and end_barrier)): A("s_barrier")
            for _ in range(split[g]):
                if rs: A(rs.pop(0))
            if hook and g == 1: hook.pop(0)()
            if g in (fill_gaps(n) if callable(fill_gaps) else fill_gaps) and fillers:
                f = fillers.pop(0)
                if isinstance(f, str): A(f)
                elif f: f()
            if extra:
                k = nextra(n, g) if not extra[0].startswith('ds_') else (2 if g == 2 else 0)
                while extra and k > 0:
                    if extra[0] == "@hold":
                        if n < 3: break
                        extra.pop(0); continue
                    x = extra.pop(0); A(x); k -= 1
                    if x.startswith("s_cmp") and k == 0: k = 1
        assert not rs

def dma_pieces(voff, srdreg, soff, ldsoff, pre=None, post=None, flags="", m0reg=S_M0W, same_v=False):
    def mk(p):
        def f():
            if p == 0:
                A(f"s_add_u32 m0, s{m0reg}, {ldsoff:#x}")
                if pre: pre()
            A(f"buffer_load_dwordx4 v{voff if same_v else voff+p}, s[{srdreg}:{srdreg+3}], s{soff} offen offset:{p*1024} {flags}lds")
            if p == 3 and post: post()
        return f
    return [mk(p) for p in range(4)]

def run(fs):
    for f in fs:
        if isinstance(f, str): A(f)
        else: f()

def rot_soff(dst, add, shift=None, mul=None, extra_sreg=None, plus=None, rot=S_ROT):
    A(f"s_add_u32 s{dst}, s{rot}, {add}")
    if extra_sreg is not None: A(f"s_add_u32 s{dst}, s{dst}, s{extra_sreg}")
    A(f"s_and_b32 s{dst}, s{dst}, 7")
    if shift is not None: A(f"s_lshl_b32 s{dst}, s{dst}, {shift}")
    else: A(f"s_mul_i32 s{dst}, s{dst}, {mul}")
    if plus is not None: A(f"s_add_u32 s{dst}, s{dst}, s{plus}")

def prologue():
    if OPT["stamps"] or OPT.get("cyc"): A("s_memtime s[98:99]")
    if OPT.get("fixrt") or OPT.get("probe") or OPT["stamps"]: A("s_memrealtime s[100:101]")
    A("s_cmp_ge_u32 s2, 256")
    A("s_cbranch_scc1 L_end")
    A(f"s_load_dwordx16 s[{KA}:{KA+15}], s[0:1], 0")
    A(f"s_load_dwordx16 s[{KA+16}:{KA+31}], s[0:1], 64")
    A("v_and_b32 v1, 63, v0")
    A("v_lshrrev_b32 v2, 6, v0")
    A(f"s_lshr_b32 s{S_SLOT}, s2, 3")
    A(f"v_readfirstlane_b32 s{S_WAVE}, v2")
    A(f"s_and_b32 s{ST}, s2, 3")
    A(f"s_lshl_b32 s{S_CHUNK}, s{ST}, 2")
    A(f"s_lshr_b32 s{ST+1}, s{S_SLOT}, 3")
    A(f"s_add_u32 s{S_CHUNK}, s{S_CHUNK}, s{ST+1}")
    A(f"s_and_b32 s{S_CG}, s{S_SLOT}, 7")
    A(f"s_lshl_b32 s{S_ROT}, s{ST+1}, 1")
    A(f"s_add_u32 s{S_ROT}, s{S_ROT}, s{S_CG}")
    A(f"s_and_b32 s{S_ROT}, s{S_ROT}, 7")
    rm = OPT["rotmode"]
    if rm == 8: A(f"s_mov_b32 s{S_ROT1}, s{S_ROT}")
    elif rm == 1: A(f"s_mov_b32 s{S_ROT1}, 0")
    elif rm == 3:
        A(f"s_add_u32 s{S_ROT1}, s{S_CG}, s{ST+1}")
        A(f"s_and_b32 s{S_ROT1}, s{S_ROT1}, 3")
        A(f"s_mul_i32 s{S_ROT1}, s{S_ROT1}, 3")
    else:
        A(f"s_add_u32 s{S_ROT1}, s{S_CG}, s{ST+1}")
        A(f"s_and_b32 s{S_ROT1}, s{S_ROT1}, {rm-1}")
        A(f"s_lshl_b32 s{S_ROT1}, s{S_ROT1}, {2 if rm == 2 else 1}")
    A(f"s_lshr_b32 s{S_RH}, s{S_WAVE}, 1")
    A(f"s_and_b32 s{S_CH}, s{S_WAVE}, 1")
    A(f"s_lshl_b32 s{S_M0W}, s{S_WAVE}, 12")
    slin(ST + 2, 0, (S_SLOT, 512), (S_WAVE, 128))
    A("v_and_b32 v7, 1, v0")
    A(f"v_lshl_add_u32 v7, v7, 14, s{ST+2}")
    A("v_lshrrev_b32 v3, 3, v1")
    A("v_and_b32 v4, 7, v1")
    A(f"v_and_b32 v{V_N}, 31, v1")
    A(f"v_lshrrev_b32 v{V_G}, 5, v1")
    if OPT["stamps"]: A("v_mov_b32 v255, 0")
    A("s_bitcmp0_b32 s2, 2" if OPT.get("swap", 1) else "s_bitcmp1_b32 s2, 2")
    if OPT.get("bfirst", 1):
        A("s_cbranch_scc0 L_roleA")
        CUT["P"] = len(A.out)
        A.label("L_roleA")
    else:
        A("s_cbranch_scc1 L_roleB")

WSO = OPT.get("wso", 0) << 20
def ws_shift():
    if WSO:
        A(f"s_add_u32 s{K_WS}, s{K_WS}, {WSO:#x}")
        A(f"s_addc_u32 s{K_WS+1}, s{K_WS+1}, 0")

TCHM = OPT.get("touchm", 0)
V_T3, V_T2, STC = 250, 251, 24
def touch_setup(role):
    A(f"s_and_b32 s{ST+2}, s{S_CHUNK}, 3")
    A(f"v_and_b32 v9, 15, v1")
    A(f"v_lshrrev_b32 v10, 4, v1")
    slin(ST, 0, (S_CHUNK, 1 << 17), (S_CG, 1 << 14))
    if role == "A":
        slin(ST + 1, 0, (S_CG, 1 << 16), (ST + 2, 1 << 14))
        A(f"s_cmp_eq_u32 s{S_WAVE}, 0")
        A(f"s_cselect_b32 s{ST}, s{ST}, s{ST+1}")
        A("v_lshlrev_b32 v9, 10, v9")
        A("v_lshl_add_u32 v9, v10, 7, v9")
        A(f"s_mov_b32 s{ST+3}, 128")
    else:
        slin(ST + 1, 0, (ST + 2, 16 * 3072), (S_CG, 128), (S_WAVE, 1024))
        A(f"s_cmp_eq_u32 s{S_WAVE}, 0")
        A(f"s_cselect_b32 s{ST}, s{ST}, s{ST+1}")
        A(f"s_mov_b32 s{ST+1}, 3072")
        A(f"s_mov_b32 s{ST+3}, 196608")
        A(f"s_cselect_b32 s{ST+1}, 1024, s{ST+1}")
        A(f"s_cselect_b32 s{ST+3}, 128, s{ST+3}")
        A(f"v_mul_lo_u32 v9, v9, s{ST+1}")
        A(f"v_mul_lo_u32 v10, v10, s{ST+3}")
        A("v_add_u32 v9, v9, v10")
    A(f"v_add_u32 v9, s{ST}, v9")
    A(f"v_mov_b32 v10, {OOB:#x}")
    A("v_cmp_gt_u32 vcc, 48, v1")
    A(f"v_cndmask_b32 v{V_T3}, v10, v9, vcc")
    A("v_cmp_gt_u32 vcc, 32, v1")
    A(f"v_cndmask_b32 v{V_T2}, v10, v9, vcc")
    A(f"s_mov_b32 s{S_CNT}, s{ST+3}")
def touch_srd(role):
    px, p1, p2 = (K_AX, K_BRE, K_BIM) if role == "A" else (K_BX, K_WQKV, K_WQKV)
    A(f"s_cmp_eq_u32 s{S_WAVE}, 1")
    A(f"s_cselect_b32 s{STC}, s{p1}, s{p2}")
    A(f"s_cselect_b32 s{STC+1}, s{p1+1}, s{p2+1}")
    A(f"s_mov_b32 s{STC+2}, {0x80000 if role == 'A' else 0x180000:#x}")
    A(f"s_cmp_eq_u32 s{S_WAVE}, 0")
    A(f"s_cselect_b32 s{STC}, s{px}, s{STC}")
    A(f"s_cselect_b32 s{STC+1}, s{px+1}, s{STC+1}")
    A(f"s_cselect_b32 s{STC+2}, 0x200000, s{STC+2}")
    A(f"s_cmp_eq_u32 s{S_WAVE}, 3")
    A(f"s_cselect_b32 s{STC+2}, 0, s{STC+2}")
    A(f"s_mov_b32 s{STC+3}, 0x20000")
def touch(k0, v):
    def f():
        A(f"s_mul_i32 s{ST+6}, s{S_CNT}, {k0}")
        A(f"buffer_load_dword v254, v{v}, s[{STC}:{STC+3}], s{ST+6} offen")
    return f

def cut(role):
    A(f"s_branch L_main{role}")
    CUT[role] = len(A.out)
    A.label(f"L_main{role}")

def code_prefetch():
    A(f"s_getpc_b64 s[{ST+4}:{ST+5}]")
    A.label(f"L_pc{ROLE[0]}")
    A(f"s_add_u32 s{ST+4}, s{ST+4}, L_main{ROLE[0]}-L_pc{ROLE[0]}")
    A(f"s_addc_u32 s{ST+5}, s{ST+5}, 0")
    A(f"global_load_dword v254, v7, s[{ST+4}:{ST+5}]")

def common_setup(role):
    srd(SWS, K_WS, 0x10000000 - WSO)
    if TCHM: A(f"s_mov_b64 s[100:101], s[{K_OUT}:{K_OUT+1}]")
    else: srd(SOUT, K_OUT, 0x800000)
    A(f"s_lshl_b32 s{S_M0W2}, s{S_WAVE}, 13")
    A(f"s_mov_b32 s{S_MG}, 0")
    A(f"s_mov_b32 s{S_MG+1}, -1")
    A(f"s_sub_u32 s{S_MRH}, 0, s{S_RH}")
    A(f"s_mov_b32 s{S_MRH+1}, s{S_MRH}")
    A(f"s_mov_b32 s{S_L2E}, {LOG2E:#x}")
    A(f"s_mov_b32 s{S_L2E+1}, {LOG2E:#x}")
    A(f"s_mov_b32 s{S_M16}, 0xffff0000")
    A(f"s_mov_b32 s{S_M16+1}, 0xffff0000")
    A(f"s_add_u32 s{S_GRP}, s{S_CHUNK}, {0 if role == 'A' else 16}")
    slin(P_XCCB, WS_XCC, (S_GRP, 1024))
    if role == "A": A(f"s_mov_b32 s{S_MF}, 0")
    else: A(f"s_and_b32 s{S_MF}, s{S_CG}, 1")
    slin(P_OUT, 0 if role == "A" else 2048, (S_CHUNK, 1 << 19), (S_RH, 1 << 18), (S_CG, 256), (S_CH, 128), (S_MF, 1 << 17))
    A(f"s_xor_b32 s{P_OUT2}, s{P_OUT}, {1 << 17:#x}")
    slin(P_TAGSEL, 0, (S_CHUNK, 256), (S_CG, 16), (S_WAVE, 1))
    A(f"s_and_b32 s{ST}, s{S_CHUNK}, 3")
    A(f"s_lshl_b32 s{ST}, s{ST}, 1")
    A(f"s_mov_b32 s{KAP[0]}, s{S_CG}")
    for j in range(1, 8):
        A(f"s_add_u32 s{ST+1}, s{ST}, {j-1}")
        A(f"s_cmp_ge_u32 s{ST+1}, 7")
        A(f"s_addc_u32 s{ST+1}, s{ST+1}, 1")
        A(f"s_add_u32 s{ST+1}, s{ST+1}, s{S_CG}")
        A(f"s_and_b32 s{KAP[j]}, s{ST+1}, 7")
    if OPT.get("tlb", 0):
        A(f"v_and_b32 v9, 15, v{V_LANE}")
        A("v_lshlrev_b32 v9, 20, v9")
        A(f"buffer_load_dword v254, v9, s[{SWS}:{SWS+3}], 0 offen offset:2048")
        A(f"buffer_load_dword v254, v9, s[{SOUT}:{SOUT+3}], 0 offen")
        A(f"buffer_load_dword v254, v9, s[{SW2}:{SW2+3}], 0 offen")
    A(f"v_lshlrev_b32 v{V_LIN}, 4, v{V_LANE}")
    A(f"v_mov_b32 v{V_L0}, {OOB:#x}")
    A(f"v_cmp_eq_u32 vcc, 0, v{V_LANE}")
    if not HAND:
        A(f"v_lshlrev_b32 v{V_CHK}, 2, v{V_N}")
        slin(P_FLAGB, WS_FLAG, (S_GRP, 256))
        slin(P_FLW, 0, (S_CG, 16), (S_WAVE, 4), (P_FLAGB, 1))
        A(f"s_getreg_b32 s{S_XW}, hwreg(HW_REG_XCC_ID, 0, 4)")
    A(f"v_lshlrev_b32 v{V_XPO}, 7, v4")
    A(f"v_cndmask_b32_e64 v{V_L0}, v{V_L0}, 0, vcc")
    A(f"v_lshlrev_b32 v{V_OUTO}, 14, v{V_G}")
    A(f"v_lshl_add_u32 v{V_OUTO}, v{V_N}, 2, v{V_OUTO}")
    slin(P_FLAGO, 0, (S_CG, 128), (P_XCCB, 1))
    A("s_waitcnt lgkmcnt(0)")
    A(f"s_add_u32 s{S_TAG}, s{S_TAG}, 1")
    if OPT["stamps"]: A("s_mov_b32 s99, 0")
    if not HAND:
        A(f"s_lshl_b32 s{ST}, s{S_TAG}, 4")
        A(f"s_or_b32 s{S_XW}, s{S_XW}, s{ST}")
        A(f"v_mov_b32 v248, s{S_XW}")
        A(f"v_mov_b32 v249, {OOB:#x}")
        A("v_cmp_gt_u32 vcc, 32, v0")
        A(f"v_cndmask_b32 v249, v249, v{V_CHK}, vcc")
        A(f"buffer_store_dword v248, v249, s[{SWS}:{SWS+3}], s{P_FLAGO} offen sc1")

def lds_b128_addrs(base_reg, wave_off_sreg, const, nsets):
    A(f"v_bfe_u32 v9, v{V_N}, 1, 3")
    A(f"v_xor_b32 v9, v9, v{V_G}")
    A("v_lshlrev_b32 v9, 4, v9")
    A(f"v_lshl_add_u32 v9, v{V_N}, 7, v9")
    A(f"v_add_u32 v9, s{wave_off_sreg}, v9")
    if const: A(f"v_add_u32 v9, {const:#x}, v9")
    for ks in range(4):
        A(f"v_xor_b32 v{base_reg+ks}, {32*ks}, v9")
    for st in range(1, nsets):
        for ks in range(4): A(f"v_add_u32 v{base_reg+4*st+ks}, {st*0x10000:#x}, v{base_reg+ks}")

TCH = 250
def rdy_load(reg, dummy=9):
    A(f"buffer_load_dword v254, v{V_CHK}, s[{SWS}:{SWS+3}], s{P_FLAGB} offen offset:64 sc1")
    A(f"buffer_load_dword v{reg}, v{V_XPO}, s[{SWS}:{SWS+3}], s{P_XCCB} offen sc1")
def rdy_check(dst, reg):
    if HAND: A(f"v_xor_b32 v{dst}, s{S_TAG}, v{reg}")
    else:
        A(f"v_xor_b32 v{reg}, s{S_XW}, v{reg}")
        A(f"v_lshrrev_b32 v{dst}, 4, v{reg}")
def rdy_store():
    if HAND: A(f"buffer_store_dword v11, v{V_L0}, s[{SWS}:{SWS+3}], s{P_FLAGO} offen sc1")
def xcc_decide(reg):
    if HAND: return
    A(f"v_cmp_ne_u32 vcc, 0, v{reg}")
    A("s_cmp_lg_u64 vcc, 0")
    A(f"s_cselect_b32 s{S_SLOW}, 1, 0")
def flag_store(ph=0):
    slow, join = lab("slow"), lab("join")
    A(f"s_cmp_lg_u32 s{S_SLOW}, 0")
    A(f"s_cbranch_scc1 {slow}")
    A(f"buffer_store_dword v11, v{V_L0}, s[{SWS}:{SWS+3}], s{P_FLW} offen offset:{ph*128}")
    A.label(join)
    def later():
        A.label(slow)
        A(f"buffer_store_dword v11, v{V_L0}, s[{SWS}:{SWS+3}], s{P_FLW} offen offset:{ph*128} sc1")
        A(f"s_branch {join}")
    DEFER.append(later)
def flag_load(ph):
    A(f"buffer_load_dword v13, v{V_CHK}, s[{SWS}:{SWS+3}], s{P_FLAGB} offen offset:{ph*128} sc1")
def flag_cmp():
    A(f"v_cmp_ne_u32 s[{S_FAIL}:{S_FAIL+1}], s{S_TAG}, v13")
def flag_poll(ph=0):
    poll(lambda: flag_load(ph), flag_cmp)
def flag_check(ph):
    slow, back = lab("fslow"), lab("fback")
    flag_cmp()
    A(f"s_cmp_lg_u64 s[{S_FAIL}:{S_FAIL+1}], 0")
    A(f"s_cbranch_scc1 {slow}")
    A.label(back)
    def later():
        A.label(slow)
        A.hist = []
        flag_poll(ph)
        A(f"s_branch {back}")
    DEFER.append(later)

DEFER = []
def make_verify(pieces, slot, second):
    retry, back = lab("retry"), lab("back")
    def reads():
        A(f"v_add_u32 v9, {slot*SLOT:#x}, v{V_CHK}")
        A("ds_read_b32 v13, v9")
        A(f"ds_read_b32 v14, v9 offset:{second}")
    def cmp():
        A("v_max_u32 v13, v13, v14")
        A("v_cmp_eq_u32 vcc, -1, v13")
    def branch():
        A("s_cmp_lg_u64 vcc, 0")
        A(f"s_cbranch_scc1 {retry}")
        A.label(back)
    def later():
        top, done = lab("rl"), lab("rd")
        A.label(retry)
        A.hist = []
        A(f"s_mov_b32 s{S_SM0}, m0")
        A(f"s_mov_b32 s{S_CNT}, {SPIN_LIMIT}")
        A.label(top)
        run(pieces(S_RS))
        A("s_waitcnt vmcnt(0)")
        A("ds_read_b32 v13, v9")
        A(f"ds_read_b32 v14, v9 offset:{second}")
        A("s_waitcnt lgkmcnt(0)")
        cmp()
        A("s_cmp_eq_u64 vcc, 0")
        A(f"s_cbranch_scc1 {done}")
        A(f"s_sub_u32 s{S_CNT}, s{S_CNT}, 1")
        A(f"s_cbranch_scc0 {top}")
        A.label(done)
        if OPT["stamps"]:
            A(f"s_sub_u32 s{S_CNT}, {SPIN_LIMIT + 1}, s{S_CNT}")
            A(f"s_add_u32 s99, s99, s{S_CNT}")
        A(f"s_mov_b32 m0, s{S_SM0}")
        A(f"s_branch {back}")
    DEFER.append(later)
    return reads, cmp, branch

def tag_update(role):
    skip = lab("notag")
    A(f"s_cmp_eq_u32 s{P_TAGSEL}, {(15 if role == 'A' else 0) << 8}")
    A(f"s_cbranch_scc0 {skip}")
    A(f"buffer_store_dword v11, v{V_L0}, s[{SWS}:{SWS+3}], 0 offen offset:{WS_TAGA if role == 'A' else WS_TAGB} sc1")
    A.label(skip)

def out_stores(acc, ph):
    def mk(r):
        def f():
            row = 8 * (r >> 2) + (r & 3)
            A(f"s_add_u32 s{ST+1}, s{P_OUT+ph}, {row*4096}")
            A(f"buffer_store_dword v{acc+16*ph+r}, v{V_OUTO}, s[{SOUT}:{SOUT+3}], s{ST+1} offen {OUTF2 if ph else OUTF}")
        return f
    return [mk(r) for r in range(16)]

SCHED = {
    0: ({0: [2, 3], 1: [4], 2: [5], 3: [6], 4: [7]}, 5, {0: "all"}),
    1: ({i: [i + 2] for i in range(6)}, 6, {i: "front" for i in range(6)}),
    2: ({0: [2], 1: [3], 2: [4], 3: [5, 6], 4: [7]}, 5, {3: "all"}),
    3: ({0: [2], 1: [3], 2: [4, 5], 3: [6], 4: [7]}, 5, {2: "all"}),
    4: ({0: [2], 1: [3], 2: [4], 3: [5], 4: [6], 5: [7]}, 6, {2: "front", 3: "front", 4: "front", 5: "front"}),
    5: ({0: [2], 1: [3, 4], 2: [5], 3: [6], 4: [7]}, 5, {1: "all"}),
    6: ({i: [i + 3] for i in range(5)}, 5, {}),
    7: ({i: [i + 3] for i in range(5)}, 5, {0: "front", 1: "front"}),
    8: ({0: [2], 1: [3], 2: [4, 5], 3: [6], 4: [7]}, 5, {0: "late", 1: "late", 2: "all"}),
    9: ({0: [2], 1: [3, 4], 2: [5], 3: [6], 4: [7]}, 5, {0: "three", 1: "all", 2: "three"}),
}[OPT.get("sched", 6)]
EARLY = OPT.get("sched", 6) >= 6
NPRE = OPT.get("npre", 4)
NX = OPT.get("nx", 10)
XST = SCHED[1]
def g1_gaps(n, busy):
    i = n >> 2
    if SCHED[2].get(i) == "late": return (0, 1, 2, 3) if (n & 3) >= 2 else ((3,) if (n & 3) == 1 else ())
    if SCHED[2].get(i) == "three": return (1, 2, 3)
    if SCHED[2].get(i) in ("all", "front") or i in busy: return (0, 1, 2, 3)
    return (2, 3)
OUTF = {0: "sc1", 1: "sc1 nt", 2: "sc0 sc1", 3: "nt", 4: "", 5: "sc0 sc1 nt"}[OPT.get("outf", 0)]
OUTF2 = {0: "sc1", 3: "nt", 4: ""}[OPT.get("outf2", 0)]
XF = "nt " if OPT["xnt"] else ""
PLF = {0: "sc1 ", 1: "", 2: "sc0 ", 3: "nt "}[OPT.get("plf", 0)]

def role_A():
    V_AX, V_AW = 24, 32
    V_GO, V_SCW = 44, 3
    V_XF, V_WF = 48, 64
    URE, UIM = 80, 112
    ACC2 = 144
    HP = 176
    XS, DG, V_GE = 176, 192, 200
    V_PUB, V_XSO, V_HSO = 45, 46, 223
    P_MSK = P0 + 4
    C_LAM, C_M1, C_M2, C_L, C_MQ, C_LQ, C_C2 = 208, 210, 212, 214, 216, 218, 220
    C_DSK = 222
    T0 = 224
    P_SAB, P_SAO, P_XS0, P_XS1 = P0, P0 + 1, P0 + 2, P0 + 3
    code_prefetch()
    A("v_lshrrev_b32 v9, 1, v3")
    A("v_xor_b32 v9, v9, v4")
    A("v_lshlrev_b32 v9, 4, v9")
    A("v_lshrrev_b32 v10, 2, v3")
    A("v_lshlrev_b32 v10, 5, v10")
    A("v_and_b32 v11, 1, v3")
    A("v_lshl_add_u32 v10, v11, 4, v10")
    A("v_bfe_u32 v11, v3, 1, 1")
    A("v_add_u32 v10, v10, v11")
    A("v_lshl_add_u32 v10, v10, 10, v9")
    slin(ST, 0, (S_CHUNK, 1 << 17), (S_RH, 1 << 16), (S_CH, 1 << 13))
    A(f"v_add_u32 v{V_OX}, s{ST}, v10")
    A(f"v_xor_b32 v11, 64, v{V_OX}")
    A(f"v_add_u32 v{V_OX+1}, 1024, v11")
    A(f"v_add_u32 v{V_OX+2}, 2048, v{V_OX}")
    A(f"v_add_u32 v{V_OX+3}, 3072, v11")
    A("v_lshl_add_u32 v10, v3, 10, v9")
    slin(ST, 0, (S_CG, 1 << 16), (S_CH, 1 << 15))
    A(f"v_add_u32 v{V_OW}, s{ST}, v10")
    A(f"v_xor_b32 v11, 64, v{V_OW}")
    A(f"v_add_u32 v{V_OW+1}, 7168, v11")
    A(f"v_add_u32 v{V_OW+2}, {2*7168}, v{V_OW}")
    A(f"v_add_u32 v{V_OW+3}, {3*7168}, v11")
    slin(ST, 0, (S_CG, 128), (S_CH, 64))
    A(f"v_lshl_add_u32 v14, v{V_N}, 1, s{ST}")
    if TCHM: touch_setup("A")
    A(f"s_cmp_eq_u32 s{S_RH}, 0")
    A("s_waitcnt lgkmcnt(0)")
    A(f"s_cselect_b32 s{SW}, s{K_BRE}, s{K_BIM}")
    A(f"s_cselect_b32 s{SW+1}, s{K_BRE+1}, s{K_BIM+1}")
    A(f"s_cselect_b32 s{SW2}, s{K_CRE}, s{K_CIM}")
    A(f"s_cselect_b32 s{SW2+1}, s{K_CRE+1}, s{K_CIM+1}")
    A(f"s_mov_b32 s{SW+2}, 0x80000")
    A(f"s_mov_b32 s{SW+3}, 0x20000")
    stamp(1)
    ws_shift()
    A(f"s_load_dword s{S_TAG}, s[{K_WS}:{K_WS+1}], {WS_TAGA}")
    srd(SX, K_AX, 0x200000)
    tok = {}
    def g1_pieces(i):
        slot = i & 3
        return (dma_pieces(V_OW, SW, ST + 8, slot * SLOT, pre=lambda: rot_soff(ST + 8, i, shift=7, rot=S_ROT1)) +
                dma_pieces(V_OX, SX, ST + 8, slot * SLOT + 16384, post=lambda: tok.__setitem__(i, A.vm), flags=XF))
    CLDS = {1: 4 * SLOT, 2: 4 * SLOT + 16384, 0: 0, 3: 16384, 4: SLOT, 5: SLOT + 16384, 6: 2 * SLOT, 7: 2 * SLOT + 16384}
    CORD = [1, 2, 0, 3, 4, 5, 6, 7]
    CE = OPT.get('ce', 0)
    def c_pieces(st):
        if st in (0, 2) and OPT.get("cswap", 1):
            def pre():
                A(f"s_and_b32 s{ST+9}, s{S_CHUNK}, 3")
                A(f"s_cmp_eq_u32 s{ST+9}, 3")
                A(f"s_cselect_b32 s{ST+9}, {CLDS[2-st]:#x}, {CLDS[st]:#x}")
                A(f"s_cselect_b32 s{ST+7}, s{KAP[2-st]}, s{KAP[st]}")
                A(f"s_add_u32 m0, s{S_M0W}, s{ST+9}")
                A(f"s_lshl_b32 s{ST+9}, s{ST+7}, 7")
            return dma_pieces(V_OW, SW2, ST + 9, 0, pre=pre)
        return dma_pieces(V_OW, SW2, ST + 9, CLDS[st], pre=lambda: A(f"s_lshl_b32 s{ST+9}, s{KAP[st]}, 7"))
    ADL = OPT.get("adl", 0)
    SML = OPT.get("sml", 1) if not ADL else 0
    def small():
        A(f"global_load_ushort v{T0}, v14, s[{K_LRE}:{K_LRE+1}]")
        A(f"global_load_ushort v{T0+1}, v14, s[{K_LIM}:{K_LIM+1}]")
        A(f"global_load_ushort v{T0+2}, v14, s[{K_LDT}:{K_LDT+1}]")
        A(f"global_load_ushort v{C_DSK}, v14, s[{K_DSK}:{K_DSK+1}]")
    if not SML: small()
    tok_small = A.vm
    if ADL < 2: run(g1_pieces(0))
    A(f"s_mov_b32 s{SW2+2}, 0x80000")
    A(f"s_mov_b32 s{SW2+3}, 0x20000")
    late = g1_pieces(1)
    NA = OPT.get("nprea", 4) if not ADL else 0
    if ADL == 2: late = g1_pieces(0) + late
    if SML == 2: small()
    if TCHM:
        touch_srd("A"); touch(1, V_T3)()
        if TCHM == 1: late = late + [touch(4, V_T2)] + g1_pieces(2) + [touch(6, V_T2)]
    elif EARLY:
        run(late[:NA]); late = late[NA:] + g1_pieces(2)
    else:
        run(late); late = []
    if SML == 1: small()
    if OPT.get("wtouch", 0):
        slin(ST, 0, (S_CG, 1 << 16), (S_CHUNK, 4096), (S_CH, 2048))
        A(f"v_and_b32 v9, 15, v{V_LANE}")
        A("v_lshlrev_b32 v9, 7, v9")
        A(f"buffer_load_dword v254, v9, s[{SW2}:{SW2+3}], s{ST} offen")
    stamp(2)
    cut("A")
    A(f"s_lshl_b32 s{ST}, s{S_RH}, 13")
    lds_b128_addrs(V_AX, ST, 16384, 2)
    A(f"s_lshl_b32 s{ST}, s{S_CH}, 12")
    lds_b128_addrs(V_AW, ST, 0, 3)
    XLDS = OPT.get("xlds", 1)
    S_XI = 57
    if XLDS:
        V_XA = ACC2
        A(f"s_sub_u32 s{S_XI}, s{S_CG}, s{S_ROT1}")
        A(f"s_and_b32 s{S_XI}, s{S_XI}, 7")
        A(f"s_and_b32 s{ST+1}, s{S_XI}, 3")
        slin(ST, 16384, (ST + 1, SLOT), (S_RH, 8192))
        A(f"v_bfe_u32 v9, v{V_N}, 1, 2")
        A(f"v_and_b32 v10, 1, v{V_N}")
        A("v_lshl_add_u32 v9, v9, 2, v10")
        A(f"v_bfe_u32 v10, v{V_N}, 4, 1")
        A("v_lshl_add_u32 v10, v9, 1, v10")
        A(f"v_bfe_u32 v11, v{V_N}, 3, 1")
        A("v_lshl_add_u32 v10, v11, 5, v10")
        A("v_and_b32 v9, 7, v9")
        A(f"s_lshl_b32 s{ST+1}, s{S_CH}, 2")
        A(f"v_lshl_add_u32 v11, v{V_G}, 1, s{ST+1}")
        A("v_xor_b32 v9, v9, v11")
        A("v_lshlrev_b32 v9, 4, v9")
        A("v_lshl_add_u32 v9, v10, 7, v9")
        A(f"v_add_u32 v{V_XA}, s{ST}, v9")
        A(f"v_xor_b32 v{V_XA+1}, 16, v{V_XA}")
        A(f"v_xor_b32 v{V_XA+2}, 32, v{V_XA}")
        A(f"v_xor_b32 v{V_XA+3}, 48, v{V_XA}")
    if OPT.get("lateset", 1): A.cap = []
    common_setup("A")
    slin(P_SAB, WS_SA, (S_CG, 8192))
    A(f"s_sub_u32 s{ST}, 15, s{S_CHUNK}")
    slin(P_SAO, 0, (ST, 512), (S_CH, 256), (P_SAB, 1))
    A(f"s_mov_b32 s{P_MSK}, 0xffffff00")
    slin(P_XS0, 0, (S_CHUNK, 1 << 17), (S_RH, 1 << 16), (S_CG, 128), (S_CH, 64), (S_MF, 32768))
    A(f"s_xor_b32 s{P_XS1}, s{P_XS0}, 32768")
    slin(P_ACTW, WS_H, (S_CHUNK, 1 << 18), (S_CG, 1 << 15), (S_WAVE, 4096))
    slin(P_ACTR, WS_H, (S_CHUNK, 1 << 18), (S_WAVE, 4096), (S_MF, 16384))
    A(f"s_xor_b32 s{P_ACTR2}, s{P_ACTR}, 16384")
    A(f"v_lshlrev_b32 v9, 11, v{V_G}")
    A(f"v_lshl_add_u32 v{V_HSO}, v{V_N}, 4, v9")
    A(f"s_add_u32 s{P_ACTW2}, s{P_ACTW}, 16384")
    clears = [f"buffer_store_dwordx4 {vr(T0+24,4)}, v{V_HSO}, s[{SWS}:{SWS+3}], s{P_ACTW} offen offset:{k*512} sc1" for k in range(8)]
    A(f"s_and_b32 s{ST}, s{S_TAG}, 0xff")
    A(f"v_mov_b32 v{V_TAG}, s{ST}")
    A(f"v_mov_b32 v11, s{S_TAG}")
    A(f"v_lshlrev_b32 v{V_XSO}, 10, v{V_N}")
    A(f"v_lshl_add_u32 v{V_XSO}, v{V_G}, 5, v{V_XSO}")
    SCR = 3 * SLOT
    slin(ST, SCR, (S_CH, 256))
    A(f"v_lshl_add_u32 v4, v{V_N}, 3, s{ST}")
    A(f"s_lshl_b32 s{ST}, s{S_RH}, 10")
    A(f"v_lshl_add_u32 v3, v{V_G}, 9, v4")
    A(f"v_add_u32 v3, s{ST}, v3")
    A(f"v_lshlrev_b32 v13, 3, v{V_N}")
    A(f"v_mov_b32 v14, {OOB:#x}")
    A(f"s_or_b64 s[{ST+2}:{ST+3}], s[{S_MG}:{S_MG+1}], s[{S_MRH}:{S_MRH+1}]")
    A(f"v_cndmask_b32_e64 v{V_PUB}, v13, v14, s[{ST+2}:{ST+3}]")
    if OPT.get("prew", 1):
        for k in range(2): A(f"v_subrev_u32 v{T0+20+k}, 1, v{V_TAG}")
        A(f"buffer_store_dwordx2 {vr(T0+20,2)}, v{V_PUB}, s[{SWS}:{SWS+3}], s{P_SAO} offen sc1")
    A(f"s_sub_u32 s{ST+4}, 16, s{S_CHUNK}")
    A(f"v_lshlrev_b32 v9, 3, v{V_G}")
    A(f"v_add_u32 v9, s{ST+4}, v9")
    A(f"s_lshl_b32 s{ST+4}, s{S_CH}, 8")
    A(f"v_add_u32 v13, s{ST+4}, v13")
    A(f"v_lshl_add_u32 v{V_GO}, v9, 9, v13")
    for i in range(8):
        A(f"v_cmp_gt_u32 vcc, {16-i}, v9")
        A(f"v_cndmask_b32_e64 v{V_GE+i}, 0, v{V_TAG}, vcc")
    if SML: A.cap.append("@consts")
    if ADL: A.cap.append("@small")
    A.wait_vm(tok_small)
    lre, lim, ldt = T0, T0 + 1, T0 + 2
    A(f"v_and_b32 v9, 1, v{V_N}")
    A("v_lshlrev_b32 v9, 4, v9")
    A(f"v_lshlrev_b32 v{C_DSK}, v9, v{C_DSK}")
    A(f"v_lshrrev_b32 v9, 1, v{V_N}")
    A(f"v_lshlrev_b32 v13, 3, v{V_G}")
    A("v_sub_u32 v9, v9, v13")
    for q in range(8):
        A(f"v_cmp_eq_u32 vcc, {q}, v9")
        A(f"v_cndmask_b32_e64 v{DG+q}, 0, v{C_DSK}, vcc")
    for r in (lre, lim, ldt): A(f"v_lshlrev_b32 v{r}, 16, v{r}")
    A(f"v_mul_f32 v{ldt}, s{S_L2E}, v{ldt}")
    A(f"v_exp_f32 v{ldt}, v{ldt}")
    A(f"v_cvt_pk_bf16_f32 v{ldt}, v{ldt}, v{ldt}")
    A(f"v_lshlrev_b32 v{ldt}, 16, v{ldt}")
    A(f"v_mul_f32 v{T0+4}, v{ldt}, v{lre}")
    A(f"v_mul_f32 v{T0+5}, v{ldt}, v{lim}")
    A(f"v_mul_f32 v{T0+4}, s{S_L2E}, v{T0+4}")
    A(f"v_exp_f32 v{T0+4}, v{T0+4}")
    A(f"v_mul_f32 v{T0+5}, {INV2PI:#x}, v{T0+5}")
    A(f"v_rndne_f32 v{T0+6}, v{T0+5}")
    A(f"v_sub_f32 v{T0+5}, v{T0+5}, v{T0+6}")
    A(f"v_cos_f32 v{T0+6}, v{T0+5}")
    A(f"v_sin_f32 v{T0+7}, v{T0+5}")
    A(f"v_mul_f32 v{C_LAM}, v{T0+4}, v{T0+6}")
    A(f"v_mul_f32 v{C_LAM+1}, v{T0+4}, v{T0+7}")
    A(f"v_add_f32 v{T0+4}, -1.0, v{C_LAM}")
    A(f"v_mul_f32 v{T0+5}, v{lre}, v{lre}")
    A(f"v_fmac_f32 v{T0+5}, v{lim}, v{lim}")
    A(f"v_rcp_f32 v{T0+5}, v{T0+5}")
    A(f"v_mul_f32 v{T0+6}, v{T0+4}, v{lre}")
    A(f"v_fmac_f32 v{T0+6}, v{C_LAM+1}, v{lim}")
    A(f"v_mul_f32 v{T0+7}, v{C_LAM+1}, v{lre}")
    A(f"v_fma_f32 v{T0+7}, -v{T0+4}, v{lim}, v{T0+7}")
    A(f"v_add_f32 v{T0+5}, v{T0+5}, v{T0+5}")
    A(f"v_mul_f32 v{C_C2}, v{T0+6}, v{T0+5}")
    A(f"v_mul_f32 v{C_C2+1}, v{T0+7}, v{T0+5}")
    pa, pb, tt = T0 + 8, T0 + 10, T0 + 12
    cmul(pa, C_LAM, C_LAM, tt)
    cmul(pb, pa, pa, tt)
    cmul(pa, pb, pb, tt)
    cmul(C_M1, pa, pa, tt)
    cmul(C_M2, C_M1, C_M1, tt)
    cmul(pa, C_M2, C_M2, tt)
    cmul(C_L, pa, pa, tt)
    def sel_pair(dst, src, mask):
        A(f"v_cndmask_b32_e64 v{dst}, 1.0, v{src}, s[{mask}:{mask+1}]")
        A(f"v_cndmask_b32_e64 v{dst+1}, 0, v{src+1}, s[{mask}:{mask+1}]")
    sel_pair(T0 + 14, C_M2, S_MG)
    sel_pair(T0 + 16, pa, S_MRH)
    cmul(C_MQ, T0 + 14, T0 + 16, tt)
    cmul(pa, C_L, C_L, tt)
    cmul(pb, pa, pa, tt)
    cmul(pa, pb, pb, tt)
    sel_pair(C_LQ, pa, S_MG)
    SET, A.cap = (A.cap or []), None
    LATEV = [x for x in SET if x.startswith("buffer_")]
    SET = [x for x in SET if not x.startswith("buffer_")]
    if ADL: A.wait_vm(tok_small) if False else None
    for _ in range(OPT.get("pset", 0) if not ADL else 1000):
        if not SET or SET[0] == "@consts": break
        if SET[0] == "@small":
            SET.pop(0); A.wait_vm(tok_small); continue
        if SET[0].startswith(f"s_add_u32 s{S_TAG},"): A("s_waitcnt lgkmcnt(0)")
        A(SET.pop(0))
    while SET and (SET[0].startswith("s_addc") or SET[0].startswith("s_cselect")): A(SET.pop(0))
    if "@consts" in SET:
        k_ = SET.index("@consts")
        SET = SET[:k_] + ["@hold"] + SET[k_+1:]
    stamp(3)
    run(late)
    def rd(n):
        i, ks = n >> 2, n & 3
        slot, buf = i & 3, n & 1
        s2_, off = slot >> 1, (slot & 1) * SLOT
        x = [f"ds_read_b128 {vr(V_XF+buf*8+m*4,4)}, v{V_AX+4*s2_+ks} offset:{off+m*4096}" for m in range(2)]
        w = [f"ds_read_b128 {vr(V_WF+buf*8+ri*4,4)}, v{V_AW+4*s2_+ks} offset:{off+ri*8192}" for ri in range(2)]
        return [x[0], w[0], w[1], x[1]]
    def mm(n):
        buf = n & 1
        r = []
        for m, ri in ((0, 0), (0, 1), (1, 1), (1, 0)):
            d = vr((URE, UIM)[ri] + 16 * m, 16)
            r.append(mf(d, vr(V_XF + buf * 8 + m * 4, 4), vr(V_WF + buf * 8 + ri * 4, 4), d if n else "0"))
        return r
    fill = []
    hook = []
    def xs_load(m, s):
        return lambda: A(f"buffer_load_dwordx4 {vr(XS+8*m+4*s,4)}, v{V_XSO}, s[{SX}:{SX+3}], s{P_XS0+m} offen offset:{16*s}")
    def xs_lds(i):
        sk = lab("nx")
        A(f"s_cmp_eq_u32 s{S_XI}, {i}")
        A(f"s_cbranch_scc0 {sk}")
        for m in range(2):
            for s_ in range(2):
                A(f"ds_read_b128 {vr(XS+8*m+4*s_,4)}, v{V_XA+2*m+s_} offset:{m*512}")
        A.label(sk)
    def on_step(n):
        i, ks = n >> 2, n & 3
        if XLDS and ks == 1: hook.append(lambda: xs_lds(i))
        if ks == 0 and OPT.get("g1st") and i: stamp(16 + i)
        if ks == 0:
            if TCHM == 2 and i < 2: fill.append(touch(4 + 2 * i, V_T2))
            for st in SCHED[0].get(i, []): fill.extend(g1_pieces(st))
            XL = [xs_load(m, s) for m in range(2) for s in range(2)] if not XLDS else []
            XO = OPT.get("xso", 1)
            if i == XST:
                if XO == 1: fill.extend(LATEV + XL)
                fill.extend(c_pieces(1) + c_pieces(2))
            elif i == XST + 1:
                if XO == 0: fill.extend(LATEV + XL)
                if CE >= 4: fill.extend(c_pieces(0) + c_pieces(3))
            elif i == 7:
                if CE == 2: fill.extend(c_pieces(0) + c_pieces(3))
                if CE >= 4: fill.extend(c_pieces(4) + c_pieces(5))
                if OPT.get("ptouch", 0):
                    fill.extend([f"buffer_load_dword v254, v{V_GO+k}, s[{SWS}:{SWS+3}], s{P_SAB} offen sc1" for k in range(4)])
                    fill.append(lambda: rdy_load(254, 254))
    A.wait_vm(tok[0])
    A("s_barrier")
    stamp(4)
    gemm_loop(32, rd, mm, lambda n: tok[n >> 2] if (n & 3) == 0 else None, (2, 2, 0, 0), lambda n: g1_gaps(n, (5,) if OPT.get('xall', 0) else ()), fill, on_step, end_barrier=True, extra=SET, nextra=lambda n, g: NX, hook=hook)
    assert not SET
    assert not fill
    stamp(5)
    if TCHM: srd(SOUT, 100, 0x800000)
    P = [T0, T0 + 4]
    def lam_bc(hi): return f"op_sel:[{hi},0,0] op_sel_hi:[{hi},1,1]"
    NEG = "neg_lo:[1,0,0] neg_hi:[1,0,0]"
    cur_re, cur_im = URE, UIM
    for s in range(1, 16):
        d = P[s & 1]
        A(f"v_pk_fma_f32 {vr(d,2)}, {vr(C_LAM,2)}, {vr(cur_im,2)}, {vr(URE+2*s,2)} {lam_bc(1)} {NEG}")
        A(f"v_pk_fma_f32 {vr(d+2,2)}, {vr(C_LAM,2)}, {vr(cur_re,2)}, {vr(UIM+2*s,2)} {lam_bc(1)}")
        A(f"v_pk_fma_f32 {vr(d,2)}, {vr(C_LAM,2)}, {vr(cur_re,2)}, {vr(d,2)} {lam_bc(0)}")
        A(f"v_pk_fma_f32 {vr(d+2,2)}, {vr(C_LAM,2)}, {vr(cur_im,2)}, {vr(d+2,2)} {lam_bc(0)}")
        cur_re, cur_im = d, d + 2
    A0, BQ = T0 + 8, T0 + 10
    A(f"v_fma_f32 v{BQ}, v{C_M1}, v{cur_re}, v{cur_re+1}")
    A(f"v_fma_f32 v{BQ+1}, v{C_M1}, v{cur_im}, v{cur_im+1}")
    A(f"v_fma_f32 v{BQ}, -v{C_M1+1}, v{cur_im}, v{BQ}")
    A(f"v_fma_f32 v{BQ+1}, v{C_M1+1}, v{cur_re}, v{BQ+1}")
    A(f"ds_write_b64 v3, {vr(BQ,2)}")
    A(f"v_mov_b32 v{A0}, v{cur_re}")
    A(f"v_mov_b32 v{A0+1}, v{cur_im}")
    P2, P3, SS, tt = T0 + 20, T0 + 22, T0 + 24, T0 + 28
    def c2_bc(hi, n=3):
        return f"op_sel:[{hi},0,0] op_sel_hi:[{hi},1,1]" if n == 3 else f"op_sel:[{hi},0] op_sel_hi:[{hi},1]"
    cm = []
    for s in range(16):
        re, im, t = URE + 2 * s, UIM + 2 * s, T0 + 2 + 2 * (s & 1)
        cm += [f"v_pk_mul_f32 {vr(t,2)}, {vr(C_C2,2)}, {vr(re,2)} {c2_bc(1,2)} neg_lo:[1,0] neg_hi:[1,0]",
               f"v_pk_mul_f32 {vr(re,2)}, {vr(C_C2,2)}, {vr(re,2)} {c2_bc(0,2)}",
               f"v_pk_fma_f32 {vr(re,2)}, {vr(C_C2,2)}, {vr(im,2)}, {vr(re,2)} {c2_bc(1)} {NEG}",
               f"v_pk_fma_f32 {vr(im,2)}, {vr(C_C2,2)}, {vr(im,2)}, {vr(t,2)} {c2_bc(0)} {NEG}"]
    emit(cm[:8])
    if HAND: A.wait_both(tok["clr"], A.lg)
    else: A("s_waitcnt lgkmcnt(0)")
    A("s_barrier")
    B0 = T0 + 12
    for q in range(4):
        A(f"ds_read_b64 {vr(B0+2*q,2)}, v4 offset:{q*512}")
    emit(cm[8:24])
    A("s_waitcnt lgkmcnt(0)")
    cfma(P2, C_M2, B0, B0 + 2, tt)
    cfma(P3, C_M2, P2, B0 + 4, tt)
    cfma(tt, C_M2, P3, B0 + 6, tt)
    A(f"v_and_or_b32 v{SS}, v{tt}, s{P_MSK}, v{V_TAG}")
    A(f"v_and_or_b32 v{SS+1}, v{tt+1}, s{P_MSK}, v{V_TAG}")
    A(f"buffer_store_dwordx2 {vr(SS,2)}, v{V_PUB}, s[{SWS}:{SWS+3}], s{P_SAO} offen sc1")
    rdy_store()
    stamp(6)
    emit(cm[24:])
    LOC = T0 + 0
    for e in range(2):
        A(f"v_cndmask_b32_e64 v{T0+2+e}, 0, v{B0+e}, s[{S_MG}:{S_MG+1}]")
        A(f"v_cndmask_b32_e64 v{T0+4+e}, v{P2+e}, v{P3+e}, s[{S_MG}:{S_MG+1}]")
        A(f"v_cndmask_b32_e64 v{LOC+e}, v{T0+2+e}, v{T0+4+e}, s[{S_MRH}:{S_MRH+1}]")
    E0, F0, E1, F1 = T0 + 12, T0 + 14, T0 + 16, T0 + 18
    cfma(P2, C_M1, LOC, A0, tt)
    cmul(F1, C_C2, P2, tt)
    cmul(F0, C_C2, LOC, tt)
    cmul(E0, C_C2, C_MQ, tt)
    cmul(E1, E0, C_M1, tt)
    V_AH = V_AX
    A(f"v_bfe_u32 v9, v{V_LANE}, 4, 1")
    A(f"v_bfe_u32 v13, v{V_LANE}, 1, 1")
    A("v_lshl_add_u32 v9, v9, 1, v13")
    A(f"v_bfe_u32 v13, v{V_LANE}, 2, 2")
    A(f"v_lshl_add_u32 v13, v{V_G}, 3, v13")
    A("v_lshlrev_b32 v14, 2, v9")
    A("v_xor_b32 v13, v13, v14")
    A("v_lshlrev_b32 v13, 4, v13")
    A("v_lshl_add_u32 v13, v9, 9, v13")
    A(f"v_and_b32 v14, 1, v{V_LANE}")
    A("v_lshl_add_u32 v13, v14, 3, v13")
    A(f"s_lshl_b32 s{ST+2}, s{S_RH}, 13")
    A(f"v_add_u32 v{V_AH}, s{ST+2}, v13")
    A(f"v_xor_b32 v{V_AH+1}, 64, v{V_AH}")
    for st in (1, 2):
        A(f"v_add_u32 v{V_AH+2*st}, {st*0x10000:#x}, v{V_AH}")
        A(f"v_add_u32 v{V_AH+2*st+1}, {st*0x10000:#x}, v{V_AH+1}")
    V_SO = T0 + 24
    for o in range(1, 4):
        A(f"v_xor_b32 v{V_SO+o}, {o*64}, v{V_HSO}")
    CPRE = 8
    A(f"s_add_u32 s{SW}, s{SWS}, s{P_SAB}")
    A(f"s_addc_u32 s{SW+1}, s{SWS+1}, 0")
    A(f"s_mov_b32 s{SW+2}, 8192")
    GD = 48
    def loads():
        for i in range(8):
            A(f"buffer_load_dwordx2 {vr(GD+2*i,2)}, v{V_GO}, s[{SW}:{SW+3}], 0 offen offset:{i*512} sc1")
        rdy_load(14)
    def check():
        A(f"v_xor_b32 v13, v{GD}, v{V_GE}")
        for i in range(1, 8):
            A(f"v_bitop3_b32 v13, v{GD+2*i}, v{V_GE+i}, v13 bitop3:0xbe")
        rdy_check(9, 14)
        A("v_and_b32 v13, 0xff, v13")
        A("v_or_b32 v13, v13, v9")
        A(f"v_cmp_ne_u32 s[{S_FAIL}:{S_FAIL+1}], 0, v13")
    CM = min(8, 2 + CE + OPT.get("cmid", 3))
    for st in CORD[2+CE:CM]: run(c_pieces(st))
    loads()
    tok_p = A.vm
    CPOST = OPT.get("cpost", 0)
    for st in CORD[CM:8-CPOST]: run(c_pieces(st))
    tok_c = A.vm
    stamp(7)
    ok = lab("ok1")
    A.wait_vm(tok_p)
    for m in range(2):
        d = vr(ACC2 + 16 * m, 16)
        A(mf(d, vr(XS + 8 * m, 4), vr(DG, 4), "0"))
    check()
    A(f"s_cmp_eq_u64 s[{S_FAIL}:{S_FAIL+1}], 0")
    A(f"s_cbranch_scc1 {ok}")
    vm_keep = A.vm
    poll(loads, check)
    A.vm = vm_keep
    A.label(ok)
    stamp(8)
    h1, h2 = T0 + 20, T0 + 22
    cur = GD + 14
    for i in range(6, -1, -1):
        d = (h1, h2)[i & 1]
        cfma(d, C_L, cur, GD + 2 * i, tt)
        cur = d
    CQ = GD
    cmul(CQ, C_LQ, cur, tt)
    for e in range(2): A(f"v_mov_b32 v{CQ+2+e}, v{CQ+e}")
    for e in range(2): A(f"v_permlane32_swap_b32 v{CQ+e}, v{CQ+2+e}")
    A(f"v_pk_add_f32 {vr(CQ,2)}, {vr(CQ,2)}, {vr(CQ+2,2)}")
    def c_reads(st):
        s2_, off = CLDS[st] >> 16, CLDS[st] & 0xffff
        r = [None] * 8
        for ks in range(4):
            for ri in range(2):
                kap = (ks >> 1) * 4 + ri * 2 + (ks & 1)
                r[kap] = f"ds_read_b128 {ar((st*8+kap)*4,4)}, v{V_AW+4*s2_+ks} offset:{off+ri*8192}"
        return r
    for m in range(2):
        d = vr(ACC2 + 16 * m, 16)
        A(mf(d, vr(XS + 8 * m + 4, 4), vr(DG + 4, 4), d))
    HR, HI = T0 + 20, T0 + 22
    A(f"v_fma_f32 v{HR}, v{E0}, v{CQ}, v{F0}")
    A(f"v_fma_f32 v{HR+1}, v{E1}, v{CQ}, v{F1}")
    A(f"v_fma_f32 v{HI}, -v{E0}, v{CQ+1}, -v{F0+1}")
    A(f"v_fma_f32 v{HI+1}, -v{E1}, v{CQ+1}, -v{F1+1}")
    A(f"v_fma_f32 v{HR}, -v{E0+1}, v{CQ+1}, v{HR}")
    A(f"v_fma_f32 v{HR+1}, -v{E1+1}, v{CQ+1}, v{HR+1}")
    A(f"v_fma_f32 v{HI}, -v{E0+1}, v{CQ}, v{HI}")
    A(f"v_fma_f32 v{HI+1}, -v{E1+1}, v{CQ}, v{HI+1}")
    pr, pi_ = HR, HI
    def hstore(ph, o):
        A(f"buffer_store_dwordx4 {vr(HP+16*ph+4*o,4)}, v{V_SO+o if o else V_HSO}, s[{SWS}:{SWS+3}], s{P_ACTW+ph} offen offset:{o*512} sc1")
    for hf in range(2):
        for s in range(8 * hf, 8 * hf + 8):
            re, im = URE + 2 * s, UIM + 2 * s
            emit([f"v_pk_fma_f32 {vr(re,2)}, {vr(C_LAM,2)}, {vr(pi_,2)}, {vr(re,2)} {lam_bc(1)}",
                  f"v_pk_fma_f32 {vr(im,2)}, {vr(C_LAM,2)}, {vr(pr,2)}, {vr(im,2)} {lam_bc(1)} {NEG}",
                  f"v_pk_fma_f32 {vr(re,2)}, {vr(C_LAM,2)}, {vr(pr,2)}, {vr(re,2)} {lam_bc(0)}",
                  f"v_pk_fma_f32 {vr(im,2)}, {vr(C_LAM,2)}, {vr(pi_,2)}, {vr(im,2)} {lam_bc(0)}"])
            pr, pi_ = re, im
        for z in range(2):
            o = 2 * z + hf
            for ri in range(2):
                U = (URE, UIM)[ri]
                for u in range(4):
                    s0 = 8 * hf + 2 * u
                    A(f"v_cvt_pk_bf16_f32 v{HP+(ri*4+o)*4+u}, v{U+2*s0+z}, v{U+2*s0+2+z}")
            for u in range(4):
                A(f"v_permlane32_swap_b32 v{HP+o*4+u}, v{HP+16+o*4+u}")
            hstore(0, o)
    tok_a = A.vm
    for o in range(4): hstore(1, o)
    tok_h = A.vm
    stamp(9)
    for st in CORD[8-CPOST:] if CPOST else []: run(c_pieces(st))
    tok_c2 = A.vm
    HS = [3, 4, 0, 1, 3, 4, 0, 1]
    def h_pieces(G):
        r = []
        for sub in range(2):
            pos, ph = SEQ[2 * G + sub]
            r += dma_pieces(V_LIN, SWS, ST + 8, HS[G] * SLOT + sub * 16384,
                            pre=lambda pos=pos, ph=ph: (A(f"s_lshl_b32 s{ST+8}, s{KAP[pos]}, 15"), A(f"s_add_u32 s{ST+8}, s{ST+8}, s{P_ACTR+ph}")),
                            post=(lambda: tok.__setitem__(("h", G), A.vm)) if sub else None, flags=PLF, same_v=True)
        return r
    assert CPRE == 8
    call = sum([c_reads(st) for st in [0, 1, 2, 3, 4, 5, 6, 7]], [])
    HF = 48
    def rd2(n):
        G, q = n >> 2, n & 3
        slot, buf = HS[G], n & 1
        r = []
        for h in range(4):
            kap = 4 * (q & 1) + h
            off = (slot & 1) * SLOT + (q >> 1) * 16384 + (kap >> 2) * 4096 + ((kap >> 1) & 1) * 2048 + (kap & 1) * 256
            for j in range(2):
                if True:
                    r.append(f"ds_read_b64_tr_b16 {vr(HF+buf*16+h*4+2*j,2)}, v{V_AH+2*(slot>>1)+j} offset:{off}")
        return r
    def mm2(n):
        buf = n & 1
        pos, ph = SEQ[n >> 1]
        d = vr(ACC2 + 16 * ph, 16)
        return [mf(d, vr(HF + buf * 16 + h * 4, 4), ar((8 * pos + 4 * (n & 1) + h) * 4, 4), d) for h in range(4)]
    xcc_decide(14)
    A.wait_vm(tok_c)
    A("s_barrier")
    slin(ST + 2, 3 * SLOT, (S_WAVE, 4096))
    A(f"v_add_u32 v{V_GO}, s{ST+2}, v{V_HSO}")
    for o in range(1, 4): A(f"v_xor_b32 v{V_GO+o}, {o*64}, v{V_GO}")
    for p in range(8):
        A(f"ds_write_b128 v{V_GO+(p&3)}, {vr(HP+4*p,4)} offset:{(p>>2)*16384+(p&3)*512}")
    emit(call[:8])
    A("s_waitcnt lgkmcnt(0)")
    A("s_barrier")
    cf = call[8:32]
    gemm_loop(4, rd2, mm2, lambda n: None, (3, 3, 2, 0), (2, 3), cf)
    A.wait_vm(tok_a)
    flag_store(0)
    emit(cf)
    if CPOST:
        A.wait_vm(tok_h)
        flag_store(1)
        A.wait_both(tok_c2, A.lg)
        A("s_barrier")
        stamp(10)
    else:
        A("s_waitcnt lgkmcnt(0)")
        A("s_barrier")
        stamp(10)
        A.wait_vm(tok_h)
        flag_store(1)
    flag_poll(0)
    stamp(11)
    run(h_pieces(1))
    weave(call[32:], h_pieces(2), 4)
    if OPT.get("btouch", 0):
        A(f"v_lshlrev_b32 v9, 7, v{V_N}")
        A(f"buffer_load_dword v254, v9, s[{SWS}:{SWS+3}], s{P_ACTW2} offen sc1")
    stamp(12)
    fill = []
    h4 = h_pieces(4)
    def on_step2(n):
        G, q = n >> 2, n & 3
        if q == 0 and OPT.get("g2st") and G > 1: stamp(15 + G)
        if n == 7:
            A.wait_vm(tok["fb"])
            flag_check(1)
        fb = [lambda: (flag_load(1), tok.__setitem__("fb", A.vm))]
        if q == 0 and G2S == 0:
            if G == 1: fill.extend(fb + h_pieces(3) + h4[:4])
            elif G == 2: fill.extend(h4[4:] + h_pieces(5))
            elif G + 3 < 8: fill.extend(h_pieces(G + 3))
            elif G == 5: fill.extend(out_stores(ACC2, 0))
        elif q == 0 and G2S in (1, 2):
            if G == 1: fill.extend(fb)
            if G + 2 < 8: fill.extend(h_pieces(G + 2))
            elif G == 6: fill.extend(out_stores(ACC2, 0))
        elif q == 0:
            if G == 1: fill.extend(fb + h_pieces(3))
            elif G == 2: fill.extend(h_pieces(4) + h_pieces(5)[:4])
            elif G == 3: fill.extend(h_pieces(5)[4:] + h_pieces(6))
            elif G == 4: fill.extend(h_pieces(7))
            elif G == 5: fill.extend(out_stores(ACC2, 0))
    G2S = OPT.get("g2s", 2)
    def gaps2(n):
        if G2S == 0: return (0, 1, 2, 3) if n < 12 else (2, 3)
        if G2S == 1: return (0, 1, 2, 3) if n < 24 else (2, 3)
        if G2S == 2: return (1, 2, 3) if n < 24 else (2, 3)
        return (1, 2, 3) if n < 16 else (2, 3)
    A.wait_both(tok[("h", 1)], A.lg)
    A("s_barrier")
    stamp(13)
    gemm_loop(32, rd2, mm2, lambda n: tok[("h", n >> 2)] if (n & 3) == 0 else None, (3, 3, 2, 0),
              gaps2, fill, on_step2, start=4)
    assert not fill
    stamp(14)
    run(out_stores(ACC2, 1))
    tag_update("A")
    stamp(15)
    finish()

def role_B():
    V_OO = 24
    V_AX, V_AT = 28, 36
    V_SW, V_SR, V_P2, V_G2B, V_PB0, V_PB1, V_G1, V_GZ, V_G2, V_P2Z = 39, 40, 41, 42, 43, 44, 45, 46, 47, 253
    S_WPH, V_WPO = P0 + 12, 252
    IDF = 240
    V_WF = 48
    KACC, VACC, PK, KV, WPH = 64, 96, 128, 192, 224
    T0 = 232
    P_P1O, P_P1G, P_P2O, P_P2G, P_MSK = P0 + 1, P0 + 2, P0 + 8, P0 + 9, P0 + 10
    S_PART = 57
    SL = 768 if OPT.get('sl768', 0) else 640
    ZS = 7 if SL == 768 else 6
    NS = 16 if OPT.get('p16', 1) else 32
    WPS = OPT.get('wps', 1)
    QE = OPT.get('qe', 3)
    code_prefetch()
    A("v_lshrrev_b32 v9, 1, v3")
    A("v_xor_b32 v9, v9, v4")
    A("v_lshlrev_b32 v9, 4, v9")
    A("v_lshl_add_u32 v10, v3, 10, v9")
    slin(ST, 0, (S_CHUNK, 1 << 17), (S_WAVE, 1 << 15))
    A(f"v_add_u32 v{V_OX}, s{ST}, v10")
    A(f"v_xor_b32 v11, 64, v{V_OX}")
    A(f"v_add_u32 v{V_OX+1}, 7168, v11")
    A(f"v_add_u32 v{V_OX+2}, {2*7168}, v{V_OX}")
    A(f"v_add_u32 v{V_OX+3}, {3*7168}, v11")
    A("v_bfe_u32 v9, v3, 1, 1")
    A("v_lshlrev_b32 v9, 2, v9")
    A("v_xor_b32 v9, v9, v4")
    A("v_lshlrev_b32 v9, 4, v9")
    A(f"s_lshl_b32 s{ST}, s{S_CG}, 7")
    A(f"v_add_u32 v9, s{ST}, v9")
    A(f"s_lshl_b32 s{ST+1}, s{S_CH}, 5")
    A(f"v_add_u32 v10, s{ST+1}, v3")
    A("v_mul_u32_u24 v11, 3072, v10")
    A(f"v_add_u32 v{V_OW}, v11, v9")
    for p in range(1, 4): A(f"v_add_u32 v{V_OW+p}, {p*(8*3072-1024)}, v{V_OW}")
    A(f"v_lshl_add_u32 v{V_OO}, v10, 10, v9")
    slin(S_PART, 1024, (S_RH, 1024))
    if TCHM: touch_setup("B")
    A("s_waitcnt lgkmcnt(0)")
    srd(SW, K_WQKV, 0x180000)
    stamp(1)
    ws_shift()
    A(f"s_load_dword s{S_TAG}, s[{K_WS}:{K_WS+1}], {WS_TAGB}")
    srd(SX, K_BX, 0x200000)
    tok = {}
    def g1_pieces(i):
        slot = i & 3
        return (dma_pieces(V_OW, SW, ST + 8, slot * SLOT, pre=lambda: rot_soff(ST + 8, i, mul=196608, plus=S_PART, rot=S_ROT1)) +
                dma_pieces(V_OX, SX, ST + 10, slot * SLOT + 16384, pre=lambda: rot_soff(ST + 10, i, shift=7, rot=S_ROT1),
                           post=lambda: tok.__setitem__(i, A.vm), flags=XF))
    QSLOT = [4, 0]; OSLOT = [1, 2]
    def q_pieces(st):
        if OPT.get("qdyn", 0):
            def pre():
                A(f"s_add_u32 s{ST+9}, s{S_CHUNK}, {st}")
                A(f"s_lshr_b32 s{ST+7}, s{S_ROT1}, 1")
                A(f"s_sub_u32 s{ST+7}, s{ST+9}, s{ST+7}")
                A(f"s_and_b32 s{ST+7}, s{ST+7}, 3")
                A(f"s_xor_b32 s{ST+7}, s{ST+7}, 2")
                A(f"s_bitcmp1_b32 s{ST+7}, 1")
                A(f"s_cselect_b32 s{ST+5}, {0x20000 - 0x8000:#x}, 0")
                A(f"s_lshl_b32 s{ST+7}, s{ST+7}, 14")
                A(f"s_add_u32 s{ST+7}, s{ST+7}, s{ST+5}")
                A(f"s_add_u32 m0, s{S_M0W}, s{ST+7}")
                A(f"s_and_b32 s{ST+9}, s{ST+9}, 3")
                A(f"s_lshl_b32 s{ST+9}, s{ST+9}, 1")
                A(f"s_add_u32 s{ST+9}, s{ST+9}, s{S_RH}")
                A(f"s_mul_i32 s{ST+9}, s{ST+9}, 196608")
            return dma_pieces(V_OW, SW, ST + 9, 0, pre=pre, post=lambda: tok.__setitem__(("q", st), A.vm))
        return dma_pieces(V_OW, SW, ST + 9, QSLOT[st >> 1] * SLOT + (st & 1) * 16384,
                          pre=lambda: rot_soff(ST + 9, 2 * st, mul=196608, extra_sreg=S_RH, rot=S_ROT1), post=lambda: tok.__setitem__(("q", st), A.vm))
    OPAIR = [(1, 2), (0, 3), (4, 5), (6, 7)]
    OLDS = {}
    for st_, pr_ in enumerate(OPAIR):
        for e_ in range(2): OLDS[pr_[e_]] = OSLOT[st_ >> 1] * SLOT + (st_ & 1) * 16384 + e_ * 8192
    def o_pieces(st):
        def pre():
            A(f"s_cmp_eq_u32 s{S_RH}, 0")
            A(f"s_cselect_b32 s{ST+9}, s{KAP[OPAIR[st][0]]}, s{KAP[OPAIR[st][1]]}")
            A(f"s_lshl_b32 s{ST+9}, s{ST+9}, 16")
        return dma_pieces(V_OO, SW2, ST + 9, OSLOT[st >> 1] * SLOT + (st & 1) * 16384, pre=pre)
    run(g1_pieces(0))
    WPL = 4 * SLOT
    srd(SW2, K_WPHI, 0x4000)
    A(f"v_lshlrev_b32 v{V_LIN}, 4, v{V_LANE}")
    slin(ST, 0, (S_CG, 2048), (S_CH, 1024))
    A(f"s_lshl_b32 s{ST+1}, s{S_WAVE}, 10")
    A(f"s_add_u32 m0, s{ST+1}, {WPL:#x}")
    A(f"buffer_load_dwordx4 v{V_LIN}, s[{SW2}:{SW2+3}], s{ST} offen lds")
    late = g1_pieces(1)
    if TCHM:
        touch_srd("B"); touch(1, V_T3)()
        if TCHM == 1: late = late + [touch(4, V_T2)] + g1_pieces(2) + [touch(6, V_T2)]
    elif EARLY:
        run(late[:NPRE]); late = late[NPRE:] + g1_pieces(2)
    else:
        run(late); late = []
    if OPT.get("wtouch", 0):
        slin(ST, 0, (S_CHUNK, 32), (S_WAVE, 8))
        A(f"v_add_u32 v9, s{ST}, v4")
        A("v_mul_u32_u24 v10, 3072, v9")
        A("v_lshlrev_b32 v9, 10, v9")
        A(f"s_lshl_b32 s{ST}, s{S_CG}, 7")
        A(f"buffer_load_dword v254, v10, s[{SW}:{SW+3}], s{ST} offen")
        A(f"buffer_load_dword v254, v9, s[{SW2}:{SW2+3}], s{ST} offen")
    stamp(2)
    cut("B")
    A(f"s_lshl_b32 s{ST}, s{S_RH}, 13")
    lds_b128_addrs(V_AX, ST, 16384, 2)
    A(f"v_bfe_u32 v9, v{V_LANE}, 4, 1")
    A(f"v_bfe_u32 v13, v{V_LANE}, 1, 1")
    A("v_lshl_add_u32 v10, v9, 1, v13")
    A(f"v_bfe_u32 v13, v{V_LANE}, 3, 1")
    A(f"v_xor_b32 v13, s{S_CH}, v13")
    A("v_lshl_add_u32 v9, v13, 2, v10")
    A("v_lshlrev_b32 v9, 4, v9")
    A(f"v_and_b32 v10, 1, v{V_LANE}")
    A("v_lshl_add_u32 v9, v10, 3, v9")
    A(f"v_bfe_u32 v14, v{V_LANE}, 2, 2")
    A(f"v_lshl_add_u32 v13, v{V_G}, 3, v14")
    A(f"v_lshl_add_u32 v{V_AT}, v13, 7, v9")
    A(f"v_add_u32 v{V_AT+1}, 0x10000, v{V_AT}")
    A(f"v_add_u32 v{V_AT+2}, 0x20000, v{V_AT}")
    if OPT.get("lateset", 1): A.cap = []
    srd(SW2, K_WO, 0x80000)
    common_setup("B")
    for p in range(1, 4): A(f"v_add_u32 v{V_OO+p}, {p*7168}, v{V_OO}")
    A(f"v_bfe_u32 v9, v{V_LANE}, 4, 1")
    A(f"v_bfe_u32 v13, v{V_LANE}, 1, 1")
    A("v_lshl_add_u32 v9, v9, 1, v13")
    A("v_lshlrev_b32 v9, 3, v9")
    A(f"v_bfe_u32 v13, v{V_LANE}, 2, 2")
    A(f"v_lshl_add_u32 v13, v{V_G}, 2, v13")
    A("v_lshl_add_u32 v9, v13, 5, v9")
    slin(ST, WPL, (S_WAVE, 1024))
    A(f"v_add_u32 v{V_WPO}, s{ST}, v9")
    if NS == 32: slin(ST, 0, (S_CG, 512), (S_CH, 256), (S_CHUNK, 2), (S_RH, 1))
    else:
        slin(ST, 0, (S_CG, 256), (S_CH, 128), (S_RH, 32), (S_CHUNK, 1))
    slin(P_P1O, WS_P1, (ST, SL))
    slin(ST, 0, (S_CG, 16), (S_CHUNK, 1))
    slin(P_P2O, WS_P2, (ST, SL))
    slin(P_P1G, WS_P1, (ST, NS * SL))
    for k in range(1, 4): A(f"s_add_u32 s{P_P1G+k}, s{P_P1G}, {8*k*SL}")
    slin(ST, 0, (S_CG, 16), (S_CH, 8))
    slin(P_P2G, WS_P2, (ST, SL))
    A(f"s_mov_b32 s{P_MSK}, 0xffffff00")
    slin(P_ACTW, WS_O, (S_CHUNK, 1 << 17), (S_CG, 1 << 14), (S_RH, 1 << 12), (S_CH, 1 << 11))
    A(f"s_add_u32 s{P_ACTW2}, s{P_ACTW}, 8192")
    slin(P_ACTR, WS_O, (S_CHUNK, 1 << 17), (S_MF, 8192), (S_WAVE, 2048))
    A(f"s_lshl_b32 s{S_M0W2}, s{S_WAVE}, 11")
    A(f"s_xor_b32 s{P_ACTR2}, s{P_ACTR}, 8192")
    clears = [f"buffer_store_dwordx4 {vr(T0+16,4)}, v{V_LIN}, s[{SWS}:{SWS+3}], s{P_ACTW+(k>>1)} offen offset:{(k&1)*1024} sc1" for k in range(4)]
    A(f"s_and_b32 s{ST}, s{S_TAG}, 0xff")
    A(f"v_mov_b32 v{V_TAG}, s{ST}")
    A(f"v_mov_b32 v11, s{S_TAG}")
    A(f"v_and_b32 v9, 1, v{V_N}")
    A("v_lshlrev_b32 v9, 4, v9")
    A("v_mov_b32 v13, 0x3f80")
    A("v_lshlrev_b32 v13, v9, v13")
    A(f"v_lshrrev_b32 v9, 1, v{V_N}")
    A(f"v_lshlrev_b32 v14, 3, v{V_G}")
    A("v_sub_u32 v9, v9, v14")
    for q in range(8):
        A(f"v_cmp_eq_u32 vcc, {q}, v9")
        A(f"v_cndmask_b32_e64 v{IDF+q}, 0, v13, vcc")
    A(f"v_and_b32 v9, 15, v{V_LANE}")
    A(f"v_cmp_gt_u32 vcc, {1 << (ZS-4)}, v9")
    A("v_lshlrev_b32 v9, 4, v9")
    A(f"v_lshl_add_u32 v13, v{V_G}, {ZS}, v9")
    A("v_add_u32 v13, 512, v13")
    A(f"v_lshl_add_u32 v9, v{V_G}, 8, v9")
    A(f"v_mov_b32 v14, {OOB:#x}")
    A("v_cndmask_b32 v13, v14, v13, vcc")
    A(f"v_cndmask_b32_e64 v{V_PB0}, v9, v13, s[{S_M16}:{S_M16+1}]")
    A(f"v_cndmask_b32_e64 v{V_PB1}, v13, v9, s[{S_M16}:{S_M16+1}]")
    A(f"v_cndmask_b32_e64 v13, v13, v14, s[{S_M16}:{S_M16+1}]")
    A(f"s_cmp_eq_u32 s{S_WAVE}, 0")
    A(f"s_cselect_b64 vcc, -1, 0")
    A(f"v_cndmask_b32 v{V_P2Z}, v14, v13, vcc")
    A(f"v_and_b32 v9, 7, v{V_LANE}")
    A(f"s_lshl_b32 s{ST}, s{S_WAVE}, 7")
    A(f"v_lshl_add_u32 v9, v9, 4, s{ST}")
    A(f"v_lshrrev_b32 v13, 3, v{V_LANE}")
    A(f"v_mul_u32_u24 v13, {SL}, v13")
    A(f"v_add_u32 v{V_G1}, v9, v13")
    A(f"v_cmp_gt_u32 vcc, 8, v{V_LANE}")
    A(f"v_and_b32 v13, {NS-1}, v{V_N}")
    A(f"v_mul_u32_u24 v{V_GZ}, {SL}, v13")
    if NS == 16:
        slin(ST, 3 * SLOT, (S_WAVE, 4096))
        A(f"v_add_u32 v{V_SW}, s{ST}, v{V_LIN}")
        A(f"v_xor_b32 v{V_SR}, 0x2000, v{V_SW}")
    A(f"v_lshl_add_u32 v{V_GZ}, v{V_G}, {ZS}, v{V_GZ}")
    A(f"v_cndmask_b32 v{V_P2}, v14, v9, vcc")
    A(f"v_bfe_u32 v9, v{V_N}, 2, 1")
    A("v_lshlrev_b32 v9, 3, v9")
    A(f"v_bfe_u32 v13, v{V_N}, 3, 1")
    A("v_lshl_add_u32 v9, v13, 2, v9")
    A(f"v_and_b32 v13, 3, v{V_N}")
    A("v_add_u32 v9, v9, v13")
    A(f"v_cndmask_b32_e64 v9, v9, 32, s[{S_M16}:{S_M16+1}]")
    A("v_lshlrev_b32 v9, 4, v9")
    A(f"v_mul_u32_u24 v13, {2*SL}, v{V_G}")
    A(f"v_add_u32 v{V_G2}, v9, v13")
    A("v_mov_b32 v9, 0x100")
    A(f"v_mov_b32 v13, {1 << ZS}")
    A(f"v_cndmask_b32_e64 v9, v9, v13, s[{S_M16}:{S_M16+1}]")
    A(f"v_add_u32 v{V_G2B}, v{V_G2}, v9")
    if OPT.get("prew", 1):
        for r in range(4): A(f"v_subrev_u32 v{T0+4+r}, 1, v{V_TAG}")
        A(f"buffer_store_dwordx4 {vr(T0+4,4)}, v{V_P2Z}, s[{SWS}:{SWS+3}], s{P_P2O} offen sc1")
        A(f"buffer_store_dwordx4 {vr(T0+4,4)}, v{V_P2}, s[{SWS}:{SWS+3}], s{P_P2O} offen sc1")
    A("v_mov_b32 v3, 0x3f803f80")
    A(f"v_bfe_u32 v4, v{V_LANE}, 2, 1")
    A("v_mul_u32_u24 v4, 0x8000, v4")
    A("v_lshl_or_b32 v4, v4, 16, v4")
    SET, A.cap = (A.cap or []), None
    LATEV = [x for x in SET if x.startswith("buffer_")]
    SET = [x for x in SET if not x.startswith("buffer_")]
    for _ in range(OPT.get("pset", 0)):
        if not SET or SET[0] == "@consts": break
        if SET[0].startswith(f"s_add_u32 s{S_TAG},"): A("s_waitcnt lgkmcnt(0)")
        A(SET.pop(0))
    while SET and (SET[0].startswith("s_addc") or SET[0].startswith("s_cselect")): A(SET.pop(0))
    if "@consts" in SET:
        k_ = SET.index("@consts")
        SET = SET[:k_] + ["@hold"] + SET[k_+1:]
    stamp(3)
    run(late)
    def trfrag(dst, ldsoff, kind="v"):
        s_, off = ldsoff >> 16, ldsoff & 0xffff
        return [f"ds_read_b64_tr_b16 {vr(dst+2*j,2,kind)}, v{V_AT+s_} offset:{off+j*512}" for j in range(2)]
    def rd(n):
        i, ks = n >> 2, n & 3
        slot, buf = i & 3, n & 1
        s2_, off = slot >> 1, (slot & 1) * SLOT
        x = [f"ds_read_b128 {ar(n*8+m*4,4)}, v{V_AX+4*s2_+ks} offset:{off+m*4096}" for m in range(2)]
        w = [trfrag(V_WF + buf * 8 + part * 4, slot * SLOT + part * 8192 + ks * 2048) for part in range(2)]
        return [x[0]] + w[0] + [x[1]] + w[1]
    def mm(n):
        buf = n & 1
        r = []
        for part, m in ((0, 0), (0, 1), (1, 0), (1, 1)):
            x, w = ar(n * 8 + m * 4, 4), vr(V_WF + buf * 8 + part * 4, 4)
            d = vr((KACC, VACC)[part] + 16 * m, 16)
            r.append(mf(d, w, x, d if n else "0") if part == 0 else mf(d, x, w, d if n else "0"))
        return r
    fill = []
    def on_step(n):
        i, ks = n >> 2, n & 3
        if ks == 0 and OPT.get("g1st") and i: stamp(16 + i)
        if ks == 0:
            if TCHM == 2 and i < 2: fill.append(touch(4 + 2 * i, V_T2))
            for st in SCHED[0].get(i, []): fill.extend(g1_pieces(st))
            if i == 5: fill.extend((LATEV + q_pieces(0)) if OPT.get('lvf', 0) else (q_pieces(0) + LATEV))
            if i == 6:
                fill.extend(q_pieces(1) if QE == 3 else o_pieces(0))
                if OPT.get("ptouch", 0):
                    fill.extend([f"buffer_load_dword v254, v{V_G1}, s[{SWS}:{SWS+3}], s{P_P1G+k} offen sc1" for k in range(4)])
                    fill.append(f"buffer_load_dword v254, v{V_GZ}, s[{SWS}:{SWS+3}], s{P_P1G} offen sc1")
                    fill.extend([f"buffer_load_dword v254, v{V_G2}, s[{SWS}:{SWS+3}], s{P_P2G} offen offset:{(hh*4+jp)*640} sc1" for hh in range(2) for jp in range(2)])
                    fill.append(lambda: rdy_load(254, 254))
            elif i == 7:
                fill.extend(o_pieces(0) if QE == 3 else o_pieces(1))
                fill.append(lambda: emit([f"v_xor_b32 v{WPH+r}, v4, v{WPH+r}" for r in range(4)]))
                fill.append(lambda: emit([f"v_xor_b32 v{WPH+r}, v4, v{WPH+r}" for r in range(4, 8)]))
        if n == OPT.get('wpn', 7):
            SET.extend([f"ds_read_b64_tr_b16 {vr(WPH+4*hh+2*j,2)}, v{V_WPO} offset:{hh*512+j*256}" for hh in range(2) for j in range(2)])
    A.wait_vm(tok[0])
    A("s_barrier")
    stamp(4)
    gemm_loop(32, rd, mm, lambda n: tok[n >> 2] if (n & 3) == 0 else None, (3, 3, 0, 0), lambda n: g1_gaps(n, (7,) if QE == 1 else ()), fill, on_step, end_barrier=True, extra=SET, nextra=lambda n, g: NX)
    assert not SET
    assert not fill
    stamp(5)
    if TCHM: srd(SOUT, 100, 0x800000)
    def feat(acc):
        for m in range(2):
            for u in range(8):
                A(f"v_cvt_pk_bf16_f32 v{acc+16*m+u}, v{acc+16*m+2*u}, v{acc+16*m+2*u+1}")
            for hh in range(2):
                A(mf(vr(PK + (m * 2 + hh) * 16, 16), vr(WPH + 4 * hh, 4), vr(acc + 16 * m + 4 * hh, 4), "0"))
    def softmax_l(x, dst):
        mx, sm = T0, T0 + 2
        l = [f"v_max3_f32 v{mx}, v{x}, v{x+1}, v{x+2}"]
        for u in range(3, 15, 2):
            l.append(f"v_max3_f32 v{mx}, v{mx}, v{x+u}, v{x+u+1}")
        l.append(f"v_max_f32 v{mx}, v{mx}, v{x+15}")
        l.append(f"v_mul_f32 v{mx}, s{S_L2E}, v{mx}")
        for u in range(8):
            l.append(f"v_pk_fma_f32 {vr(x+2*u,2)}, {vr(x+2*u,2)}, s[{S_L2E}:{S_L2E+1}], {vr(mx,2)} op_sel_hi:[1,1,0] neg_lo:[0,0,1] neg_hi:[0,0,1]")
        for u in range(16):
            l.append(f"v_exp_f32 v{x+u}, v{x+u}")
        l.append(f"v_pk_add_f32 {vr(sm,2)}, {vr(x,2)}, {vr(x+2,2)}")
        for u in range(2, 8):
            l.append(f"v_pk_add_f32 {vr(sm,2)}, {vr(sm,2)}, {vr(x+2*u,2)}")
        l.append(f"v_add_f32 v{sm}, v{sm}, v{sm+1}")
        l.append(f"v_rcp_f32 v{sm}, v{sm}")
        for u in range(8):
            l.append(f"v_pk_mul_f32 {vr(x+2*u,2)}, {vr(x+2*u,2)}, {vr(sm,2)} op_sel_hi:[1,0]")
        for u in range(8):
            l.append(f"v_cvt_pk_bf16_f32 v{dst+u}, v{x+2*u}, v{x+2*u+1}")
        return l
    feat(KACC)
    for m in range(2):
        for u in range(8):
            A(f"v_cvt_pk_bf16_f32 v{VACC+16*m+u}, v{VACC+16*m+2*u}, v{VACC+16*m+2*u+1}")
    for m in range(2):
        for u in range(8):
            A(f"v_cndmask_b32_e64 v{VACC+16*m+8+u}, v3, v{VACC+16*m+u}, s[{S_M16}:{S_M16+1}]")
            A(f"v_cndmask_b32_e64 v{VACC+16*m+u}, v{VACC+16*m+u}, v3, s[{S_M16}:{S_M16+1}]")
    nbstamp(0)
    PH = [KACC + 8, KACC + 24]
    ID = T0 + 8
    def tmm(blk):
        d = vr(PK + 16 * blk, 16)
        return [mf(d, vr(PH[blk & 1] + 4 * jp, 4), vr(ID + 4 * jp, 4), d if jp else "0") for jp in range(2)]
    def tcvt(blk):
        t = PK + 16 * blk
        return [f"v_cvt_pk_bf16_f32 v{t+u}, v{t+2*u}, v{t+2*u+1}" for u in range(8)]
    def kvmm(blk):
        m, hh = blk >> 1, blk & 1
        d = vr(KV + 16 * hh, 16)
        return [mf(d, vr(PK + 16 * blk + 4 * mm_, 4), vr(VACC + 16 * m + 8 * hh + 4 * mm_, 4), d if (m or mm_) else "0") for mm_ in range(2)]
    for blk in range(4):
        l = softmax_l(PK + blk * 16, PH[blk & 1])
        if blk:
            t, kv = tmm(blk - 1), kvmm(blk - 1)
            qp = q_pieces(blk) if not QE else (q_pieces(blk + 1) if blk < 3 else o_pieces(1))
            l = l[:17] + [t[0], qp[0]] + l[17:21] + [t[1], qp[1]] + l[21:33] + tcvt(blk - 1) + l[33:50] + [kv[0], qp[2]] + l[50:58] + [kv[1], qp[3]]
        run([x for x in l if x is not None])
        nbstamp(1 + blk)
    TS = 4 if OPT.get("tag1", 1) else 1
    def tagit(r, n):
        for e in range(0, n, TS):
            A(f"v_and_or_b32 v{r+e}, v{r+e}, s{P_MSK}, v{V_TAG}")
    def pub(hh, oc):
        A(f"s_add_u32 s{ST+3}, s{P_P1O}, {(hh*4+oc)*32*SL}")
        A(f"buffer_store_dwordx4 {vr(KV+16*hh+4*oc,4)}, v{V_PB0+hh}, s[{SWS}:{SWS+3}], s{ST+3} offen sc1")
    if NS == 32:
        emit(tmm(3))
        tagit(KV, 16)
        pub(0, 0); pub(0, 1)
        emit(tcvt(3))
        emit(kvmm(3))
        nbstamp(5)
        pub(0, 2); pub(0, 3)
        tagit(KV + 16, 16)
        for oc in range(4): pub(1, oc)
    else:
        RB = PK
        def tail(rh):
            keep, send = 8 * rh, 8 - 8 * rh
            emit(tmm(3))
            for u in range(2): A(f"ds_write_b128 v{V_SW}, {vr(KV+send+4*u,4)} offset:{u*1024}")
            emit(tcvt(3))
            emit(kvmm(3))
            for u in range(2): A(f"ds_write_b128 v{V_SW}, {vr(KV+16+send+4*u,4)} offset:{(2+u)*1024}")
            A("s_waitcnt lgkmcnt(0)")
            A("s_barrier")
            for u in range(4): A(f"ds_read_b128 {vr(RB+4*u,4)}, v{V_SR} offset:{u*1024}")
            for hh in range(2):
                for jj in range(2):
                    r = KV + 16 * hh + keep + 4 * jj
                    A(f"s_add_u32 s{ST+3}, s{P_P1O}, {(hh*4+jj)*16*SL}")
                    A(f"s_waitcnt lgkmcnt({3-2*hh-jj})")
                    for u in range(2):
                        A(f"v_pk_add_f32 {vr(r+2*u,2)}, {vr(r+2*u,2)}, {vr(RB+8*hh+4*jj+2*u,2)}")
                    tagit(r, 4)
                    A(f"buffer_store_dwordx4 {vr(r,4)}, v{V_PB0+hh}, s[{SWS}:{SWS+3}], s{ST+3} offen sc1")
        l1, l2 = lab("rh1"), lab("rhj")
        A(f"s_cmp_lg_u32 s{S_RH}, 0")
        A(f"s_cbranch_scc1 {l1}")
        st_ = (A.vm, A.lg, list(A.hist))
        tail(0)
        A(f"s_branch {l2}")
        A.label(l1)
        A.vm, A.lg, A.hist = st_[0], st_[1], list(st_[2])
        tail(1)
        A.label(l2)
    QACC = KACC
    def qaddr(n):
        i, ks = n >> 2, n & 3
        return QSLOT[i >> 2] * SLOT + (i & 3) * 8192 + ks * 2048
    def rdq(n):
        return trfrag(V_WF + (n & 1) * 8, qaddr(2 * n)) + trfrag(V_WF + (n & 1) * 8 + 4, qaddr(2 * n + 1))
    def mmq(n):
        r = []
        for h in range(2):
            for m in range(2):
                d = vr(QACC + 16 * m, 16)
                r.append(mf(d, vr(V_WF + (n & 1) * 8 + 4 * h, 4), ar((2 * n + h) * 8 + m * 4, 4), d if (n or h) else "0"))
        if n == 15: r = [r[0], r[2], r[1], r[3]]
        return r
    stamp(6)
    nbflush()
    GD = VACC
    GZ = GD + 16
    g1l = [f"buffer_load_dwordx4 {vr(GD+4*k,4)}, v{V_G1}, s[{SWS}:{SWS+3}], s{P_P1G+k} offen sc1" for k in range(NS // 8)]
    g1l.append(f"buffer_load_dwordx4 {vr(GZ,4)}, v{V_GZ}, s[{SWS}:{SWS+3}], s{P_P1G} offen offset:512 sc1")
    S_D1, S_RET = P0 + 11, ST + 6
    A(f"s_mov_b32 s{S_D1}, 0")
    def try1a(block=False):
        skip = lab("sk")
        if block:
            A(f"s_cmp_lg_u32 s{S_D1}, 0")
        else:
            A(f"s_getreg_b32 s{ST+5}, hwreg(HW_REG_IB_STS, 0, 4)")
            A(f"s_or_b32 s{ST+5}, s{ST+5}, s{S_D1}")
        A(f"s_cbranch_scc1 {skip}")
        A(f"s_call_b64 s[{S_RET}:{S_RET+1}], L_try1a")
        A.label(skip)
    def sub_try1a():
        A.label("L_try1a")
        A.hist = []
        A("s_waitcnt vmcnt(0)")
        A(f"v_xor_b32 v13, v{GD}, v{V_TAG}")
        for s in [x for x in range(TS, 20, TS) if x < NS // 2 or x >= 16]:
            A(f"v_bitop3_b32 v13, v{GD+s}, v{V_TAG}, v13 bitop3:0xbe")
        A("v_and_b32 v13, 0xff, v13")
        A(f"v_cmp_ne_u32 s[{S_FAIL}:{S_FAIL+1}], 0, v13")
        A(f"s_cmp_eq_u64 s[{S_FAIL}:{S_FAIL+1}], 0")
        A("s_cbranch_scc1 L_try1a_ok")
        emit(g1l)
        A(f"s_setpc_b64 s[{S_RET}:{S_RET+1}]")
        A.label("L_try1a_ok")
        DPP = "row_mask:0xf bank_mask:0xf"
        A(f"v_permlane16_swap_b32 v{GZ}, v{GZ+2}")
        A(f"v_permlane16_swap_b32 v{GZ+1}, v{GZ+3}")
        if NS == 32:
            for u in range(0, 8, 2):
                A(f"v_pk_add_f32 {vr(GD+u,2)}, {vr(GD+u,2)}, {vr(GD+8+u,2)}")
            A(f"v_pk_add_f32 {vr(GZ,2)}, {vr(GZ,2)}, {vr(GZ+2,2)}")
        for u in range(0, 4, 2):
            A(f"v_pk_add_f32 {vr(GD+u,2)}, {vr(GD+u,2)}, {vr(GD+4+u,2)}")
        def zror(k):
            for e in range(2): A(f"v_add_f32_dpp v{GZ+e}, v{GZ+e}, v{GZ+e} row_ror:{k} {DPP}")
        zror(1)
        A(f"v_permlane32_swap_b32 v{GD}, v{GD+1}")
        A(f"v_permlane32_swap_b32 v{GD+2}, v{GD+3}")
        zror(2)
        A(f"v_add_f32 v{GD}, v{GD}, v{GD+1}")
        A(f"v_add_f32 v{GD+2}, v{GD+2}, v{GD+3}")
        zror(4)
        A(f"v_permlane16_swap_b32 v{GD}, v{GD+2}")
        A(f"v_add_f32 v{GD}, v{GD}, v{GD+2}")
        zror(8)
        A(f"v_add_f32_dpp v{GD}, v{GD}, v{GD} row_ror:8 {DPP}")
        for e in range(2): A(f"v_and_or_b32 v{GZ+e}, v{GZ+e}, s{P_MSK}, v{V_TAG}")
        A(f"v_and_or_b32 v{GD}, v{GD}, s{P_MSK}, v{V_TAG}")
        for e in range(2): A(f"v_mov_b32 v{GZ+2+e}, v{GZ+e}")
        A(f"v_mov_b32 v{GD+1}, v{GD}")
        A(f"v_permlane16_swap_b32 v{GZ}, v{GZ+2}")
        A(f"v_permlane16_swap_b32 v{GZ+1}, v{GZ+3}")
        A(f"v_permlane32_swap_b32 v{GD}, v{GD+1}")
        A(f"buffer_store_dwordx4 {vr(GZ,4)}, v{V_P2Z}, s[{SWS}:{SWS+3}], s{P_P2O} offen sc1")
        A(f"v_mov_b32 v{GD+2}, v{GD}")
        A(f"v_mov_b32 v{GD+3}, v{GD+1}")
        A(f"v_permlane16_swap_b32 v{GD}, v{GD+2}")
        A(f"v_permlane16_swap_b32 v{GD+1}, v{GD+3}")
        A(f"buffer_store_dwordx4 {vr(GD,4)}, v{V_P2}, s[{SWS}:{SWS+3}], s{P_P2O} offen sc1")
        stamp(8)
        A(f"s_mov_b32 s{S_D1}, 1")
        A(f"s_setpc_b64 s[{S_RET}:{S_RET+1}]")
    DEFER.append(sub_try1a)
    fill = []
    G1AT = OPT.get('g1at', 6)
    def on_stepq(n):
        if n == 0: fill.extend((o_pieces(1) if QE == 1 else (q_pieces(2) + q_pieces(3) if QE == 2 else [])) + o_pieces(2) + o_pieces(3) + [lambda: (rdy_load(14), tok.__setitem__('wo', A.vm))])
        if n == G1AT: fill.extend(g1l + [None])
        if n >= G1AT + 4: fill.extend([None, try1a])
    if QE == 2:
        run(q_pieces(1))
        A.wait_vm(tok[("q", 0)])
        qb = lambda n: tok[("q", n >> 2)] if n in (4, 8, 12) else None
    else:
        A.wait_vm(tok[("q", 3)])
        qb = lambda n: None
    A("s_barrier")
    stamp(26)
    gemm_loop(16, rdq, mmq, qb, (2, 2, 0, 0), lambda n: (0, 1, 2, 3) if (QE == 2 and n < 2) else (2, 3), fill, on_stepq)
    assert not fill
    stamp(7)
    feat(QACC)
    def wait1a():
        top, done = lab("w1a"), lab("w1d")
        A(f"s_mov_b32 s{S_CNT}, {SPIN_LIMIT}")
        A.label(top)
        try1a(block=True)
        A(f"s_cmp_lg_u32 s{S_D1}, 0")
        A(f"s_cbranch_scc1 {done}")
        A(f"s_sub_u32 s{S_CNT}, s{S_CNT}, 1")
        A(f"s_cbranch_scc0 {top}")
        A.label(done)
    B1 = OPT.get("blk1a", 0)
    if B1 == 0: wait1a()
    S_D2 = ST + 4
    A(f"s_mov_b32 s{S_D2}, 0")
    PHQ = KV
    FD = PK
    def loads2(rdy=True):
        for hh in range(2):
            for jp in range(2):
                r = FD + (hh * 2 + jp) * 8
                off = (hh * 4 + jp) * SL
                A(f"buffer_load_dwordx4 {vr(r,4)}, v{V_G2}, s[{SWS}:{SWS+3}], s{P_P2G} offen offset:{off} sc1")
                A(f"buffer_load_dwordx4 {vr(r+4,4)}, v{V_G2B}, s[{SWS}:{SWS+3}], s{P_P2G} offen offset:{off} sc1")
        if rdy: rdy_load(14)
    def check2():
        A(f"v_xor_b32 v13, v{FD}, v{V_TAG}")
        for s in range(1, 32):
            A(f"v_bitop3_b32 v13, v{FD+s}, v{V_TAG}, v13 bitop3:0xbe")
        rdy_check(9, 14)
        A("v_and_b32 v13, 0xff, v13")
        A("v_or_b32 v13, v13, v9")
        A(f"v_cmp_ne_u32 s[{S_FAIL}:{S_FAIL+1}], 0, v13")
    for blk in range(4):
        if blk == OPT.get("l2at", 3): loads2(False)
        emit(softmax_l(PK + blk * 16, PHQ + 8 * blk))
        if blk + 1 == B1: wait1a()
    A("s_barrier")
    stamp(9)
    KVF = VACC + 16
    ODR = [KACC, KACC + 16, PK + 32, PK + 48]
    A(f"s_lshl_b32 s{ST+5}, s{S_RH}, 12")
    A(f"v_add_u32 v{V_AX}, s{ST+5}, v{V_LIN}")
    A(f"v_add_u32 v{V_AX+1}, 0x10000, v{V_AX}")
    A(f"v_add_u32 v{V_AX+2}, 0x20000, v{V_AX}")
    slin(ST + 5, 3 * SLOT, (S_MF, 8192), (S_M0W2, 1))
    A(f"v_add_u32 v{V_AX+3}, s{ST+5}, v{V_LIN}")
    A(f"v_xor_b32 v{V_AX+4}, 0x2000, v{V_AX+3}")
    wor = []
    for n in range(32):
        wor += trfrag(n * 4, OLDS[n >> 2] + (n & 3) * 2048, "a")
    NW = OPT.get('nw', 8)
    emit(wor[:NW])
    def check2m():
        chk = [f"v_xor_b32 v13, v{FD}, v{V_TAG}"] + [f"v_bitop3_b32 v13, v{FD+s}, v{V_TAG}, v13 bitop3:0xbe" for s in range(TS, 32, TS)]
        for hh in range(2):
            for q in (2 * hh, 2 * hh + 1):
                for u in range(4):
                    A(f"v_cvt_pk_bf16_f32 v{KVF+4*q+u}, v{FD+8*q+2*u}, v{FD+8*q+2*u+1}")
            for m in range(2):
                blk = 2 * m + hh
                d = vr(ODR[blk], 16)
                for jp in range(2):
                    A(mf(d, vr(KVF + (hh * 2 + jp) * 4, 4), vr(PHQ + 8 * blk + 4 * jp, 4), d if jp else "0"))
                    k = 3 if hh == 0 else 5
                    emit(chk[:k]); chk = chk[k:]
        assert not chk
        rdy_check(9, 14)
        A("v_and_b32 v13, 0xff, v13")
        A("v_or_b32 v13, v13, v9")
        A(f"v_cmp_ne_u32 s[{S_FAIL}:{S_FAIL+1}], 0, v13")
    poll_pre(loads2, check2m)
    stamp(10)
    A("s_nop 2")
    for blk in (0, 2, 1, 3):
        m, hh = blk >> 1, blk & 1
        o = ODR[blk]
        A(f"v_add_f32 v{o+8}, 0x358637bd, v{o+8}")
        A(f"v_rcp_f32 v{o+8}, v{o+8}")
        for u in range(4):
            A(f"v_pk_mul_f32 {vr(o+2*u,2)}, {vr(o+2*u,2)}, {vr(o+8,2)} op_sel_hi:[1,0]")
        for u in range(4):
            A(f"v_cvt_pk_bf16_f32 v{o+12+u}, v{o+2*u}, v{o+2*u+1}")
        A(f"buffer_store_dwordx4 {vr(o+12,4)}, v{V_LIN}, s[{SWS}:{SWS+3}], s{P_ACTW+m} offen offset:{hh*1024} sc1")
    tok_o = A.vm
    xcc_decide(14)
    for blk in range(4):
        A(f"ds_write_b128 v{V_AX+3+(blk>>1)}, {vr(ODR[blk]+12,4)} offset:{(blk&1)*1024}")
    stamp(11)
    ELDS = [(3, 4, 0, 1)[e >> 2] * SLOT + (e & 3) * 8192 for e in range(16)]
    def of_pieces(e):
        pos, ph = SEQ[e]
        def p0():
            A(f"s_add_u32 m0, s{S_M0W2}, {ELDS[e]:#x}")
            A(f"s_lshl_b32 s{ST+8}, s{KAP[pos]}, 14")
            A(f"s_add_u32 s{ST+8}, s{ST+8}, s{P_ACTR+ph}")
            A(f"buffer_load_dwordx4 v{V_LIN}, s[{SWS}:{SWS+3}], s{ST+8} offen {PLF}lds")
        def p1():
            A(f"buffer_load_dwordx4 v{V_LIN}, s[{SWS}:{SWS+3}], s{ST+8} offen offset:1024 {PLF}lds")
            tok[("of", e)] = A.vm
        return [p0, p1]
    OF = PK
    OACC = VACC
    def rd4(n):
        return [f"ds_read_b128 {vr(OF+(n&1)*16+h*4,4)}, v{V_AX+(ELDS[n]>>16)} offset:{(ELDS[n]&0xffff)+h*1024}" for h in range(4)]
    def mm4(n):
        pos, ph = SEQ[n]
        d = vr(OACC + 16 * ph, 16)
        return [mf(d, vr(OF + (n & 1) * 16 + h * 4, 4), ar((4 * pos + h) * 4, 4), d if (pos or h) else "0") for h in range(4)]
    A("s_waitcnt lgkmcnt(0)")
    A("s_barrier")
    wf = wor[NW:]
    def two():
        for _ in range(2): A(wf.pop(0))
    gemm_loop(2, rd4, mm4, lambda n: None, (2, 2, 0, 0), (2, 3), [two] * 4)
    emit(wf[:16]); wf = wf[16:]
    A.wait_vm(tok_o)
    flag_store()
    emit(wf)
    flag_poll()
    stamp(12)
    for e in range(2, 7): run(of_pieces(e))
    fill = []
    def on_step4(n):
        if OPT.get("g2st") and n in (4, 7, 10, 13): stamp(16 + n // 3)
        if n == 2:
            for e in range(7, 16): fill.extend(of_pieces(e))
        if n == 10: fill.extend(out_stores(OACC, 0))
    A.wait_both(tok[("of", 3)], A.lg)
    A("s_barrier")
    stamp(13)
    BND = {4: 6, 7: 9, 10: 12, 13: 15}
    gemm_loop(16, rd4, mm4, lambda n: tok[("of", BND[n])] if n in BND else None, (2, 2, 0, 0),
              lambda n: (1, 2, 3) if n >= 10 else (0, 1, 2, 3), fill, on_step4, start=2)
    assert not fill
    stamp(14)
    run(out_stores(OACC, 1))
    tag_update("B")
    stamp(15)
    finish()

prologue()
vm0, lg0 = A.vm, A.lg
role_A()
for f in DEFER: f()
DEFER.clear()
A.label("L_roleB")
ROLE[0] = "B"
A.vm, A.lg = vm0, lg0
A.hist = []
role_B()
for f in DEFER: f()
A.label("L_end")
A("s_endpgm")

iB = A.out.index("L_roleB:")
iE = A.out.index("L_end:")
if OPT.get("bfirst", 1):
    lines = A.out[:CUT["P"]] + A.out[iB:CUT["B"]] + A.out[CUT["P"]:CUT["A"]] + A.out[CUT["B"]:iE] + A.out[CUT["A"]:iB] + A.out[iE:]
else:
    lines = A.out[:CUT["A"]] + A.out[iB:CUT["B"]] + A.out[CUT["A"]:iB] + A.out[CUT["B"]:]
if OPT["align"]:
    lines, nw, nn = align(lines, min_nop=OPT.get('minnop', 12))
    print("align: widened", nw, "nops", nn)
HEAD = open("cdna_kernels/" + NAME + ".s.ref").read().split("; Override launch geometry")[0]
src = HEAD + f"""; @launch grid=(256,1,1) block=(256,1,1) lds=163840
.amdgcn_target "amdgcn-amd-amdhsa--gfx950"
.text
.globl {NAME}_kernel
.p2align 8
.type {NAME}_kernel,@function
{NAME}_kernel:
""" + "\n".join(lines) + f"""
.fill 8192, 4, 0xBF810000
.section .rodata,"a"
.p2align 6
.amdhsa_kernel {NAME}_kernel
  .amdhsa_next_free_vgpr 512
  .amdhsa_next_free_sgpr 102
  .amdhsa_accum_offset 256
  .amdhsa_group_segment_fixed_size 0
  .amdhsa_kernarg_size 128
  .amdhsa_user_sgpr_count 2
  .amdhsa_user_sgpr_kernarg_segment_ptr 1
  .amdhsa_system_sgpr_workgroup_id_x 1
.end_amdhsa_kernel
"""
open(sys.argv[1], "w").write(src)
print("hazard nops:", A.nnop, "lines:", len(lines))
```

```python
import sys
from dsl import Asm, vr, ar, sr
from align import align

NAME = "concat_heads__ssm_conv_s5__linear_kernel_hedgehog__prompt"
OPT = dict(stamps=False, rotmode=2, align=1, xnt=0, hwait=8, owait=4, hand=0)
for a_ in sys.argv[2:]:
    k_, _, v_ = a_.partition("=")
    OPT[k_] = int(v_) if v_ else True

WS_TAGA, WS_TAGB = 0x0, 0x80
WS_XCC = 0x8000
WS_FLAG = 0x2000
WS_SA = 0x10000
WS_P1 = 0x100000
WS_P2 = 0x3C0000
WS_H = 0x400000
WS_O = 0x800000
WS_STAMP = 0xA00000
OOB = 0x40000000
SPIN_LIMIT = 1 << 14
LOG2E = 0x3FB8AA3B
INV2PI = 0x3E22F983

S_WAVE, S_CHUNK, S_CG, S_ROT, S_TAG = 3, 4, 5, 6, 7
SX, SW, SW2, SWS, SOUT = 8, 12, 16, 20, 24
S_RH, S_CH, S_SLOT, S_GRP = 28, 29, 30, 31
ST = 32
S_M0W, S_M0W2 = 48, 49
S_MG = 50
S_MRH = 52
S_L2E = 54
S_CNT = 56
S_FAIL = 58
S_M16 = 60
S_SM0, S_RS = 62, 63
S_XW, S_SLOW, P_FLW = 91, 92, 93
S_ROT1 = 47
KAP = [62, 63, 44, 45, 86, 87, 94, 95]
SEQ = [(0, 0), (0, 1)] + [(j, 0) for j in range(1, 8)] + [(j, 1) for j in range(1, 8)]
HAND = OPT['hand']
KA = 64
K_AX, K_LRE, K_LIM, K_BRE, K_BIM, K_CRE, K_CIM, K_LDT, K_DSK, K_BX, K_WQKV, K_WPHI, K_WO, K_OUT, K_DBG, K_WS = [KA + 2 * i for i in range(16)]
P_FLAGB, P_FLAGO, P_XCCB, P_TAGSEL, P_OUT, P_OUT2, P_ACTR, P_ACTR2 = range(64, 72)
P_ACTW, P_ACTW2, S_MF = 88, 89, 90
P0 = 72
S_STAMP = 96
V_LANE, V_OUTO, V_N, V_G, V_LIN, V_TAG, V_L0, V_CHK, V_XPO = 1, 2, 5, 6, 7, 8, 10, 12, 15
V_OX, V_OW = 16, 20
SLOT = 32768

A = Asm()
CUT = {}
nlab = [0]

def srd(dst, ptr, nbytes):
    A(f"s_mov_b32 s{dst}, s{ptr}")
    A(f"s_mov_b32 s{dst+1}, s{ptr+1}")
    A(f"s_mov_b32 s{dst+2}, {nbytes:#x}")
    A(f"s_mov_b32 s{dst+3}, 0x20000")

def slin(dst, const, *terms):
    first = True
    for reg, mul in terms:
        t = dst if first else ST + 14
        if mul == 1:
            if first: A(f"s_mov_b32 s{dst}, s{reg}")
            else: t = reg
        elif mul & (mul - 1) == 0: A(f"s_lshl_b32 s{t}, s{reg}, {mul.bit_length()-1}")
        else: A(f"s_mul_i32 s{t}, s{reg}, {mul}")
        if not first: A(f"s_add_u32 s{dst}, s{dst}, s{t}")
        first = False
    if const: A(f"s_add_u32 s{dst}, s{dst}, {const:#x}")

ROLE = ["A"]
def stamp(idx):
    if OPT.get("probe") == idx + (0 if ROLE[0] == "A" else 100):
        if OPT.get("cyc"):
            A("s_memtime s[96:97]")
            A("s_waitcnt lgkmcnt(0)")
            A("s_sub_u32 s99, s96, s98")
            A("s_lshr_b32 s99, s99, 4")
        else:
            A("s_memrealtime s[96:97]")
            A("s_waitcnt lgkmcnt(0)")
            A("s_sub_u32 s99, s96, s100")
    if not OPT["stamps"]: return
    A(f"s_memtime s[{S_STAMP}:{S_STAMP+1}]")
    A("s_waitcnt lgkmcnt(0)")
    A(f"s_sub_u32 s{S_STAMP}, s{S_STAMP}, s98")
    A(f"v_writelane_b32 v255, s{S_STAMP}, {idx}")
    if OPT.get("rt") and idx <= 16:
        A(f"s_memrealtime s[{S_STAMP}:{S_STAMP+1}]")
        A("s_waitcnt lgkmcnt(0)")
        A(f"s_sub_u32 s{S_STAMP}, s{S_STAMP}, s100")
        A(f"v_writelane_b32 v255, s{S_STAMP}, {idx+44}")

NB = [32, 36, 38, 42, 58, 56]
nbuse = []
def nbstamp(k):
    if OPT.get("nb") and OPT["stamps"]:
        A(f"s_memtime s[{NB[k]}:{NB[k]+1}]"); nbuse.append(k)
def nbflush():
    if OPT.get("nb") and OPT["stamps"]:
        A("s_waitcnt lgkmcnt(0)")
        for k in nbuse:
            A(f"s_sub_u32 s{NB[k]}, s{NB[k]}, s98")
            A(f"v_writelane_b32 v255, s{NB[k]}, {17+k}")
        nbuse.clear()

def lab(n):
    nlab[0] += 1
    return f"L_{n}_{nlab[0]}"

def finish():
    if OPT.get("probe") and (OPT["probe"] >= 100) == (ROLE[0] == "B"):
        if OPT["probe"] % 100 == 16:
            A("s_waitcnt vmcnt(0)")
            stamp(16)
        l = lab("pr")
        A("s_lshl_b32 s99, s99, 1")
        A("s_add_u32 s99, s99, 2500")
        A.label(l)
        A("s_memrealtime s[96:97]")
        A("s_waitcnt lgkmcnt(0)")
        A("s_sub_u32 s96, s96, s100")
        A("s_cmp_lt_u32 s96, s99")
        A(f"s_cbranch_scc1 {l}")
    if OPT.get("fixrt"):
        l = lab("rt")
        A.label(l)
        A("s_memrealtime s[96:97]")
        A("s_waitcnt lgkmcnt(0)")
        A("s_sub_u32 s96, s96, s100")
        A(f"s_cmp_lt_u32 s96, {OPT['fixrt']}")
        A(f"s_cbranch_scc1 {l}")
    if OPT["stamps"]:
        A("s_waitcnt vmcnt(0)")
        stamp(16)
        A("v_writelane_b32 v255, s99, 30")
        A("s_memrealtime s[96:97]")
        A("v_writelane_b32 v255, s100, 40")
        A("s_waitcnt lgkmcnt(0)")
        A("v_writelane_b32 v255, s96, 41")
        slin(ST, WS_STAMP, (2, 1024), (S_WAVE, 256))
        A(f"v_lshlrev_b32 v254, 2, v{V_LANE}")
        A(f"buffer_store_dword v255, v254, s[{SWS}:{SWS+3}], s{ST} offen")
    A("s_endpgm")

def mf(d, a, b, c):
    return f"v_mfma_f32_32x32x16_bf16 {d}, {a}, {b}, {c}"

def poll(loads, check):
    top, done = lab("poll"), lab("ok")
    A(f"s_mov_b32 s{S_CNT}, {SPIN_LIMIT}")
    A.label(top)
    loads()
    A("s_waitcnt vmcnt(0)")
    check()
    A(f"s_cmp_eq_u64 s[{S_FAIL}:{S_FAIL+1}], 0")
    A(f"s_cbranch_scc1 {done}")
    A(f"s_sub_u32 s{S_CNT}, s{S_CNT}, 1")
    A(f"s_cbranch_scc0 {top}")
    A.label(done)

def poll_pre(loads, check):
    top, done = lab("poll"), lab("ok")
    A(f"s_mov_b32 s{S_CNT}, {SPIN_LIMIT}")
    A.label(top)
    A("s_waitcnt vmcnt(0)")
    check()
    A(f"s_cmp_eq_u64 s[{S_FAIL}:{S_FAIL+1}], 0")
    A(f"s_cbranch_scc1 {done}")
    loads()
    A(f"s_sub_u32 s{S_CNT}, s{S_CNT}, 1")
    A(f"s_cbranch_scc0 {top}")
    A("s_waitcnt vmcnt(0)")
    A.label(done)

def cfma_l(d, a, b, c, t):
    return [f"v_pk_fma_f32 {vr(t,2)}, {vr(a,2)}, {vr(b,2)}, {vr(c,2)} op_sel:[1,1,0] op_sel_hi:[1,0,1] neg_lo:[1,0,0]",
            f"v_pk_fma_f32 {vr(d,2)}, {vr(a,2)}, {vr(b,2)}, {vr(t,2)} op_sel:[0,0,0] op_sel_hi:[0,1,1]"]
def cmul_l(d, a, b, t):
    return [f"v_pk_mul_f32 {vr(t,2)}, {vr(a,2)}, {vr(b,2)} op_sel:[1,1] op_sel_hi:[1,0] neg_lo:[1,0]",
            f"v_pk_fma_f32 {vr(d,2)}, {vr(a,2)}, {vr(b,2)}, {vr(t,2)} op_sel:[0,0,0] op_sel_hi:[0,1,1]"]
def emit(l):
    for x in l: A(x)
def cfma(*a): emit(cfma_l(*a))
def cmul(*a): emit(cmul_l(*a))

def weave(main, fillers, every, start=0):
    for i, x in enumerate(main):
        A(x)
        if i >= start and (i - start) % every == every - 1 and fillers:
            f = fillers.pop(0)
            if isinstance(f, str): A(f)
            elif f: f()

def gemm_loop(nsteps, reads, mfmas, boundary, split, fill_gaps, fillers, on_step=None, end_barrier=False, verify=None, start=0, extra=None, nextra=None, hook=None):
    for r in reads(start): A(r)
    for n in range(start, nsteps):
        if on_step: on_step(n)
        last = n == nsteps - 1
        b = None if last else boundary(n + 1)
        b2 = boundary(n + 2) if (verify and n + 2 < nsteps) else None
        if b2 is not None: A.wait_both(b2, A.lg)
        elif b is not None and not verify: A.wait_both(b, A.lg)
        else: A("s_waitcnt lgkmcnt(0)")
        if b is not None and verify: verify(n + 1)[1]()
        rs = [] if last else list(reads(n + 1))
        ms = mfmas(n)
        for g in range(4):
            A(ms[g])
            if g == 0 and b2 is not None: verify(n + 2)[0]()
            if g == 0 and b is not None and verify: verify(n + 1)[2]()
            if g == 0 and (b is not None or (last and end_barrier)): A("s_barrier")
            for _ in range(split[g]):
                if rs: A(rs.pop(0))
            if hook and g == 1: hook.pop(0)()
            if g in (fill_gaps(n) if callable(fill_gaps) else fill_gaps) and fillers:
                f = fillers.pop(0)
                if isinstance(f, str): A(f)
                elif f: f()
            if extra:
                k = nextra(n, g) if not extra[0].startswith('ds_') else (2 if g == 2 else 0)
                while extra and k > 0:
                    if extra[0] == "@hold":
                        if n < 3: break
                        extra.pop(0); continue
                    x = extra.pop(0); A(x); k -= 1
                    if x.startswith("s_cmp") and k == 0: k = 1
        assert not rs

def dma_pieces(voff, srdreg, soff, ldsoff, pre=None, post=None, flags="", m0reg=S_M0W, same_v=False):
    def mk(p):
        def f():
            if p == 0:
                A(f"s_add_u32 m0, s{m0reg}, {ldsoff:#x}")
                if pre: pre()
            A(f"buffer_load_dwordx4 v{voff if same_v else voff+p}, s[{srdreg}:{srdreg+3}], s{soff} offen offset:{p*1024} {flags}lds")
            if p == 3 and post: post()
        return f
    return [mk(p) for p in range(4)]

def run(fs):
    for f in fs:
        if isinstance(f, str): A(f)
        else: f()

def rot_soff(dst, add, shift=None, mul=None, extra_sreg=None, plus=None, rot=S_ROT):
    A(f"s_add_u32 s{dst}, s{rot}, {add}")
    if extra_sreg is not None: A(f"s_add_u32 s{dst}, s{dst}, s{extra_sreg}")
    A(f"s_and_b32 s{dst}, s{dst}, 7")
    if shift is not None: A(f"s_lshl_b32 s{dst}, s{dst}, {shift}")
    else: A(f"s_mul_i32 s{dst}, s{dst}, {mul}")
    if plus is not None: A(f"s_add_u32 s{dst}, s{dst}, s{plus}")

def prologue():
    if OPT["stamps"] or OPT.get("cyc"): A("s_memtime s[98:99]")
    if OPT.get("fixrt") or OPT.get("probe") or OPT["stamps"]: A("s_memrealtime s[100:101]")
    A("s_cmp_ge_u32 s2, 256")
    A("s_cbranch_scc1 L_end")
    A(f"s_load_dwordx16 s[{KA}:{KA+15}], s[0:1], 0")
    A(f"s_load_dwordx16 s[{KA+16}:{KA+31}], s[0:1], 64")
    A("v_and_b32 v1, 63, v0")
    A("v_lshrrev_b32 v2, 6, v0")
    A(f"s_lshr_b32 s{S_SLOT}, s2, 3")
    A(f"v_readfirstlane_b32 s{S_WAVE}, v2")
    A(f"s_and_b32 s{ST}, s2, 3")
    A(f"s_lshl_b32 s{S_CHUNK}, s{ST}, 2")
    A(f"s_lshr_b32 s{ST+1}, s{S_SLOT}, 3")
    A(f"s_add_u32 s{S_CHUNK}, s{S_CHUNK}, s{ST+1}")
    A(f"s_and_b32 s{S_CG}, s{S_SLOT}, 7")
    A(f"s_lshl_b32 s{S_ROT}, s{ST+1}, 1")
    A(f"s_add_u32 s{S_ROT}, s{S_ROT}, s{S_CG}")
    A(f"s_and_b32 s{S_ROT}, s{S_ROT}, 7")
    rm = OPT["rotmode"]
    if rm == 8: A(f"s_mov_b32 s{S_ROT1}, s{S_ROT}")
    elif rm == 1: A(f"s_mov_b32 s{S_ROT1}, 0")
    elif rm == 3:
        A(f"s_add_u32 s{S_ROT1}, s{S_CG}, s{ST+1}")
        A(f"s_and_b32 s{S_ROT1}, s{S_ROT1}, 3")
        A(f"s_mul_i32 s{S_ROT1}, s{S_ROT1}, 3")
    else:
        A(f"s_add_u32 s{S_ROT1}, s{S_CG}, s{ST+1}")
        A(f"s_and_b32 s{S_ROT1}, s{S_ROT1}, {rm-1}")
        A(f"s_lshl_b32 s{S_ROT1}, s{S_ROT1}, {2 if rm == 2 else 1}")
    A(f"s_lshr_b32 s{S_RH}, s{S_WAVE}, 1")
    A(f"s_and_b32 s{S_CH}, s{S_WAVE}, 1")
    A(f"s_lshl_b32 s{S_M0W}, s{S_WAVE}, 12")
    slin(ST + 2, 0, (S_SLOT, 512), (S_WAVE, 128))
    A("v_and_b32 v7, 1, v0")
    A(f"v_lshl_add_u32 v7, v7, 14, s{ST+2}")
    A("v_lshrrev_b32 v3, 3, v1")
    A("v_and_b32 v4, 7, v1")
    A(f"v_and_b32 v{V_N}, 31, v1")
    A(f"v_lshrrev_b32 v{V_G}, 5, v1")
    if OPT["stamps"]: A("v_mov_b32 v255, 0")
    A("s_bitcmp0_b32 s2, 2" if OPT.get("swap", 1) else "s_bitcmp1_b32 s2, 2")
    if OPT.get("bfirst", 1):
        A("s_cbranch_scc0 L_roleA")
        CUT["P"] = len(A.out)
        A.label("L_roleA")
    else:
        A("s_cbranch_scc1 L_roleB")

WSO = OPT.get("wso", 0) << 20
def ws_shift():
    if WSO:
        A(f"s_add_u32 s{K_WS}, s{K_WS}, {WSO:#x}")
        A(f"s_addc_u32 s{K_WS+1}, s{K_WS+1}, 0")

TCHM = OPT.get("touchm", 0)
V_T3, V_T2, STC = 250, 251, 24
def touch_setup(role):
    A(f"s_and_b32 s{ST+2}, s{S_CHUNK}, 3")
    A(f"v_and_b32 v9, 15, v1")
    A(f"v_lshrrev_b32 v10, 4, v1")
    slin(ST, 0, (S_CHUNK, 1 << 17), (S_CG, 1 << 14))
    if role == "A":
        slin(ST + 1, 0, (S_CG, 1 << 16), (ST + 2, 1 << 14))
        A(f"s_cmp_eq_u32 s{S_WAVE}, 0")
        A(f"s_cselect_b32 s{ST}, s{ST}, s{ST+1}")
        A("v_lshlrev_b32 v9, 10, v9")
        A("v_lshl_add_u32 v9, v10, 7, v9")
        A(f"s_mov_b32 s{ST+3}, 128")
    else:
        slin(ST + 1, 0, (ST + 2, 16 * 3072), (S_CG, 128), (S_WAVE, 1024))
        A(f"s_cmp_eq_u32 s{S_WAVE}, 0")
        A(f"s_cselect_b32 s{ST}, s{ST}, s{ST+1}")
        A(f"s_mov_b32 s{ST+1}, 3072")
        A(f"s_mov_b32 s{ST+3}, 196608")
        A(f"s_cselect_b32 s{ST+1}, 1024, s{ST+1}")
        A(f"s_cselect_b32 s{ST+3}, 128, s{ST+3}")
        A(f"v_mul_lo_u32 v9, v9, s{ST+1}")
        A(f"v_mul_lo_u32 v10, v10, s{ST+3}")
        A("v_add_u32 v9, v9, v10")
    A(f"v_add_u32 v9, s{ST}, v9")
    A(f"v_mov_b32 v10, {OOB:#x}")
    A("v_cmp_gt_u32 vcc, 48, v1")
    A(f"v_cndmask_b32 v{V_T3}, v10, v9, vcc")
    A("v_cmp_gt_u32 vcc, 32, v1")
    A(f"v_cndmask_b32 v{V_T2}, v10, v9, vcc")
    A(f"s_mov_b32 s{S_CNT}, s{ST+3}")
def touch_srd(role):
    px, p1, p2 = (K_AX, K_BRE, K_BIM) if role == "A" else (K_BX, K_WQKV, K_WQKV)
    A(f"s_cmp_eq_u32 s{S_WAVE}, 1")
    A(f"s_cselect_b32 s{STC}, s{p1}, s{p2}")
    A(f"s_cselect_b32 s{STC+1}, s{p1+1}, s{p2+1}")
    A(f"s_mov_b32 s{STC+2}, {0x80000 if role == 'A' else 0x180000:#x}")
    A(f"s_cmp_eq_u32 s{S_WAVE}, 0")
    A(f"s_cselect_b32 s{STC}, s{px}, s{STC}")
    A(f"s_cselect_b32 s{STC+1}, s{px+1}, s{STC+1}")
    A(f"s_cselect_b32 s{STC+2}, 0x200000, s{STC+2}")
    A(f"s_cmp_eq_u32 s{S_WAVE}, 3")
    A(f"s_cselect_b32 s{STC+2}, 0, s{STC+2}")
    A(f"s_mov_b32 s{STC+3}, 0x20000")
def touch(k0, v):
    def f():
        A(f"s_mul_i32 s{ST+6}, s{S_CNT}, {k0}")
        A(f"buffer_load_dword v254, v{v}, s[{STC}:{STC+3}], s{ST+6} offen")
    return f

def cut(role):
    A(f"s_branch L_main{role}")
    CUT[role] = len(A.out)
    A.label(f"L_main{role}")

def role_rot(rm):
    if not rm: return
    if rm == 8: A(f"s_mov_b32 s{S_ROT1}, s{S_ROT}")
    elif rm == 1: A(f"s_mov_b32 s{S_ROT1}, 0")
    else:
        A(f"s_add_u32 s{S_ROT1}, s{S_CG}, s{ST+1}")
        A(f"s_and_b32 s{S_ROT1}, s{S_ROT1}, {rm-1}")
        A(f"s_lshl_b32 s{S_ROT1}, s{S_ROT1}, {2 if rm == 2 else 1}")

def code_prefetch():
    role_rot(OPT.get("rot" + ROLE[0], 0))
    A(f"s_getpc_b64 s[{ST+4}:{ST+5}]")
    A.label(f"L_pc{ROLE[0]}")
    A(f"s_add_u32 s{ST+4}, s{ST+4}, L_main{ROLE[0]}-L_pc{ROLE[0]}")
    A(f"s_addc_u32 s{ST+5}, s{ST+5}, 0")
    A(f"global_load_dword v254, v7, s[{ST+4}:{ST+5}]")

def common_setup(role):
    srd(SWS, K_WS, 0x10000000 - WSO)
    if TCHM: A(f"s_mov_b64 s[100:101], s[{K_OUT}:{K_OUT+1}]")
    else: srd(SOUT, K_OUT, 0x800000)
    A(f"s_lshl_b32 s{S_M0W2}, s{S_WAVE}, 13")
    A(f"s_mov_b32 s{S_MG}, 0")
    A(f"s_mov_b32 s{S_MG+1}, -1")
    A(f"s_sub_u32 s{S_MRH}, 0, s{S_RH}")
    A(f"s_mov_b32 s{S_MRH+1}, s{S_MRH}")
    A(f"s_mov_b32 s{S_L2E}, {LOG2E:#x}")
    A(f"s_mov_b32 s{S_L2E+1}, {LOG2E:#x}")
    A(f"s_mov_b32 s{S_M16}, 0xffff0000")
    A(f"s_mov_b32 s{S_M16+1}, 0xffff0000")
    A(f"s_add_u32 s{S_GRP}, s{S_CHUNK}, {0 if role == 'A' else 16}")
    slin(P_XCCB, WS_XCC, (S_GRP, 1024))
    if role == "A": A(f"s_mov_b32 s{S_MF}, 0")
    else: A(f"s_and_b32 s{S_MF}, s{S_CG}, 1")
    slin(P_OUT, 0 if role == "A" else 2048, (S_CHUNK, 1 << 19), (S_RH, 1 << 18), (S_CG, 256), (S_CH, 128), (S_MF, 1 << 17))
    A(f"s_xor_b32 s{P_OUT2}, s{P_OUT}, {1 << 17:#x}")
    slin(P_TAGSEL, 0, (S_CHUNK, 256), (S_CG, 16), (S_WAVE, 1))
    A(f"s_and_b32 s{ST}, s{S_CHUNK}, 3")
    A(f"s_lshl_b32 s{ST}, s{ST}, 1")
    A(f"s_mov_b32 s{KAP[0]}, s{S_CG}")
    for j in range(1, 8):
        A(f"s_add_u32 s{ST+1}, s{ST}, {j-1}")
        A(f"s_cmp_ge_u32 s{ST+1}, 7")
        A(f"s_addc_u32 s{ST+1}, s{ST+1}, 1")
        A(f"s_add_u32 s{ST+1}, s{ST+1}, s{S_CG}")
        A(f"s_and_b32 s{KAP[j]}, s{ST+1}, 7")
    if OPT.get("tlb", 0):
        A(f"v_and_b32 v9, 15, v{V_LANE}")
        A("v_lshlrev_b32 v9, 20, v9")
        A(f"buffer_load_dword v254, v9, s[{SWS}:{SWS+3}], 0 offen offset:2048")
        A(f"buffer_load_dword v254, v9, s[{SOUT}:{SOUT+3}], 0 offen")
        A(f"buffer_load_dword v254, v9, s[{SW2}:{SW2+3}], 0 offen")
    A(f"v_lshlrev_b32 v{V_LIN}, 4, v{V_LANE}")
    A(f"v_mov_b32 v{V_L0}, {OOB:#x}")
    A(f"v_cmp_eq_u32 vcc, 0, v{V_LANE}")
    if not HAND:
        A(f"v_lshlrev_b32 v{V_CHK}, 2, v{V_N}")
        slin(P_FLAGB, WS_FLAG, (S_GRP, 256))
        slin(P_FLW, 0, (S_CG, 16), (S_WAVE, 4), (P_FLAGB, 1))
        A(f"s_getreg_b32 s{S_XW}, hwreg(HW_REG_XCC_ID, 0, 4)")
    A(f"v_lshlrev_b32 v{V_XPO}, 7, v4")
    A(f"v_cndmask_b32_e64 v{V_L0}, v{V_L0}, 0, vcc")
    A(f"v_lshlrev_b32 v{V_OUTO}, 14, v{V_G}")
    A(f"v_lshl_add_u32 v{V_OUTO}, v{V_N}, 2, v{V_OUTO}")
    slin(P_FLAGO, 0, (S_CG, 128), (P_XCCB, 1))
    A("s_waitcnt lgkmcnt(0)")
    A(f"s_add_u32 s{S_TAG}, s{S_TAG}, 1")
    if OPT["stamps"]: A("s_mov_b32 s99, 0")
    if not HAND:
        A(f"s_lshl_b32 s{ST}, s{S_TAG}, 4")
        A(f"s_or_b32 s{S_XW}, s{S_XW}, s{ST}")
        A(f"v_mov_b32 v248, s{S_XW}")
        A(f"v_mov_b32 v249, {OOB:#x}")
        A("v_cmp_gt_u32 vcc, 32, v0")
        A(f"v_cndmask_b32 v249, v249, v{V_CHK}, vcc")
        A(f"buffer_store_dword v248, v249, s[{SWS}:{SWS+3}], s{P_FLAGO} offen sc1")

def lds_b128_addrs(base_reg, wave_off_sreg, const, nsets):
    A(f"v_bfe_u32 v9, v{V_N}, 1, 3")
    A(f"v_xor_b32 v9, v9, v{V_G}")
    A("v_lshlrev_b32 v9, 4, v9")
    A(f"v_lshl_add_u32 v9, v{V_N}, 7, v9")
    A(f"v_add_u32 v9, s{wave_off_sreg}, v9")
    if const: A(f"v_add_u32 v9, {const:#x}, v9")
    for ks in range(4):
        A(f"v_xor_b32 v{base_reg+ks}, {32*ks}, v9")
    for st in range(1, nsets):
        for ks in range(4): A(f"v_add_u32 v{base_reg+4*st+ks}, {st*0x10000:#x}, v{base_reg+ks}")

TCH = 250
def rdy_load(reg, dummy=9):
    A(f"buffer_load_dword v254, v{V_CHK}, s[{SWS}:{SWS+3}], s{P_FLAGB} offen offset:64 sc1")
    A(f"buffer_load_dword v{reg}, v{V_XPO}, s[{SWS}:{SWS+3}], s{P_XCCB} offen sc1")
def rdy_check(dst, reg):
    if HAND: A(f"v_xor_b32 v{dst}, s{S_TAG}, v{reg}")
    else:
        A(f"v_xor_b32 v{reg}, s{S_XW}, v{reg}")
        A(f"v_lshrrev_b32 v{dst}, 4, v{reg}")
def rdy_store():
    if HAND: A(f"buffer_store_dword v11, v{V_L0}, s[{SWS}:{SWS+3}], s{P_FLAGO} offen sc1")
def xcc_decide(reg):
    if HAND: return
    A(f"v_cmp_ne_u32 vcc, 0, v{reg}")
    A("s_cmp_lg_u64 vcc, 0")
    A(f"s_cselect_b32 s{S_SLOW}, 1, 0")
def flag_store(ph=0):
    slow, join = lab("slow"), lab("join")
    A(f"s_cmp_lg_u32 s{S_SLOW}, 0")
    A(f"s_cbranch_scc1 {slow}")
    A(f"buffer_store_dword v11, v{V_L0}, s[{SWS}:{SWS+3}], s{P_FLW} offen offset:{ph*128}")
    A.label(join)
    def later():
        A.label(slow)
        A(f"buffer_store_dword v11, v{V_L0}, s[{SWS}:{SWS+3}], s{P_FLW} offen offset:{ph*128} sc1")
        A(f"s_branch {join}")
    DEFER.append(later)
def flag_load(ph):
    A(f"buffer_load_dword v13, v{V_CHK}, s[{SWS}:{SWS+3}], s{P_FLAGB} offen offset:{ph*128} sc1")
def flag_cmp():
    A(f"v_cmp_ne_u32 s[{S_FAIL}:{S_FAIL+1}], s{S_TAG}, v13")
def flag_poll(ph=0):
    poll(lambda: flag_load(ph), flag_cmp)
def flag_check(ph):
    slow, back = lab("fslow"), lab("fback")
    flag_cmp()
    A(f"s_cmp_lg_u64 s[{S_FAIL}:{S_FAIL+1}], 0")
    A(f"s_cbranch_scc1 {slow}")
    A.label(back)
    def later():
        A.label(slow)
        A.hist = []
        flag_poll(ph)
        A(f"s_branch {back}")
    DEFER.append(later)

DEFER = []
def make_verify(pieces, slot, second):
    retry, back = lab("retry"), lab("back")
    def reads():
        A(f"v_add_u32 v9, {slot*SLOT:#x}, v{V_CHK}")
        A("ds_read_b32 v13, v9")
        A(f"ds_read_b32 v14, v9 offset:{second}")
    def cmp():
        A("v_max_u32 v13, v13, v14")
        A("v_cmp_eq_u32 vcc, -1, v13")
    def branch():
        A("s_cmp_lg_u64 vcc, 0")
        A(f"s_cbranch_scc1 {retry}")
        A.label(back)
    def later():
        top, done = lab("rl"), lab("rd")
        A.label(retry)
        A.hist = []
        A(f"s_mov_b32 s{S_SM0}, m0")
        A(f"s_mov_b32 s{S_CNT}, {SPIN_LIMIT}")
        A.label(top)
        run(pieces(S_RS))
        A("s_waitcnt vmcnt(0)")
        A("ds_read_b32 v13, v9")
        A(f"ds_read_b32 v14, v9 offset:{second}")
        A("s_waitcnt lgkmcnt(0)")
        cmp()
        A("s_cmp_eq_u64 vcc, 0")
        A(f"s_cbranch_scc1 {done}")
        A(f"s_sub_u32 s{S_CNT}, s{S_CNT}, 1")
        A(f"s_cbranch_scc0 {top}")
        A.label(done)
        if OPT["stamps"]:
            A(f"s_sub_u32 s{S_CNT}, {SPIN_LIMIT + 1}, s{S_CNT}")
            A(f"s_add_u32 s99, s99, s{S_CNT}")
        A(f"s_mov_b32 m0, s{S_SM0}")
        A(f"s_branch {back}")
    DEFER.append(later)
    return reads, cmp, branch

def tag_update(role):
    skip = lab("notag")
    A(f"s_cmp_eq_u32 s{P_TAGSEL}, {(15 if role == 'A' else 0) << 8}")
    A(f"s_cbranch_scc0 {skip}")
    A(f"buffer_store_dword v11, v{V_L0}, s[{SWS}:{SWS+3}], 0 offen offset:{WS_TAGA if role == 'A' else WS_TAGB} sc1")
    A.label(skip)

def out_stores(acc, ph):
    def mk(r):
        def f():
            row = 8 * (r >> 2) + (r & 3)
            A(f"s_add_u32 s{ST+1}, s{P_OUT+ph}, {row*4096}")
            A(f"buffer_store_dword v{acc+16*ph+r}, v{V_OUTO}, s[{SOUT}:{SOUT+3}], s{ST+1} offen {OUTF2 if ph else OUTF}")
        return f
    return [mk(r) for r in range(16)]

SCHED = {
    0: ({0: [2, 3], 1: [4], 2: [5], 3: [6], 4: [7]}, 5, {0: "all"}),
    1: ({i: [i + 2] for i in range(6)}, 6, {i: "front" for i in range(6)}),
    2: ({0: [2], 1: [3], 2: [4], 3: [5, 6], 4: [7]}, 5, {3: "all"}),
    3: ({0: [2], 1: [3], 2: [4, 5], 3: [6], 4: [7]}, 5, {2: "all"}),
    4: ({0: [2], 1: [3], 2: [4], 3: [5], 4: [6], 5: [7]}, 6, {2: "front", 3: "front", 4: "front", 5: "front"}),
    5: ({0: [2], 1: [3, 4], 2: [5], 3: [6], 4: [7]}, 5, {1: "all"}),
    6: ({i: [i + 3] for i in range(5)}, 5, {}),
    7: ({i: [i + 3] for i in range(5)}, 5, {0: "front", 1: "front"}),
    8: ({0: [2], 1: [3], 2: [4, 5], 3: [6], 4: [7]}, 5, {0: "late", 1: "late", 2: "all"}),
    9: ({0: [2], 1: [3, 4], 2: [5], 3: [6], 4: [7]}, 5, {0: "three", 1: "all", 2: "three"}),
}[OPT.get("sched", 6)]
EARLY = OPT.get("sched", 6) >= 6
NPRE = OPT.get("npre", 4)
NX = OPT.get("nx", 10)
XST = SCHED[1]
def g1_gaps(n, busy):
    i = n >> 2
    if SCHED[2].get(i) == "late": return (0, 1, 2, 3) if (n & 3) >= 2 else ((3,) if (n & 3) == 1 else ())
    if SCHED[2].get(i) == "three": return (1, 2, 3)
    if SCHED[2].get(i) in ("all", "front") or i in busy: return (0, 1, 2, 3)
    return (2, 3)
OUTF = {0: "sc1", 1: "sc1 nt", 2: "sc0 sc1", 3: "nt", 4: "", 5: "sc0 sc1 nt"}[OPT.get("outf", 0)]
OUTF2 = {0: "sc1", 3: "nt", 4: ""}[OPT.get("outf2", 0)]
XF = "nt " if OPT["xnt"] else ""
PLF = {0: "sc1 ", 1: "", 2: "sc0 ", 3: "nt "}[OPT.get("plf", 0)]

def role_A():
    V_AX, V_AW = 24, 32
    V_GO, V_SCW = 44, 3
    V_XF, V_WF = 48, 64
    URE, UIM = 80, 112
    ACC2 = 144
    HP = 176
    XS, DG, V_GE = 176, 192, 200
    V_PUB, V_XSO, V_HSO = 45, 46, 223
    P_MSK = P0 + 4
    C_LAM, C_M1, C_M2, C_L, C_MQ, C_LQ, C_C2 = 208, 210, 212, 214, 216, 218, 220
    C_DSK = 222
    T0 = 224
    P_SAB, P_SAO, P_XS0, P_XS1 = P0, P0 + 1, P0 + 2, P0 + 3
    code_prefetch()
    A("v_lshrrev_b32 v9, 1, v3")
    A("v_xor_b32 v9, v9, v4")
    A("v_lshlrev_b32 v9, 4, v9")
    A("v_lshrrev_b32 v10, 2, v3")
    A("v_lshlrev_b32 v10, 5, v10")
    A("v_and_b32 v11, 1, v3")
    A("v_lshl_add_u32 v10, v11, 4, v10")
    A("v_bfe_u32 v11, v3, 1, 1")
    A("v_add_u32 v10, v10, v11")
    A("v_lshl_add_u32 v10, v10, 10, v9")
    slin(ST, 0, (S_CHUNK, 1 << 17), (S_RH, 1 << 16), (S_CH, 1 << 13))
    A(f"v_add_u32 v{V_OX}, s{ST}, v10")
    A(f"v_xor_b32 v11, 64, v{V_OX}")
    A(f"v_add_u32 v{V_OX+1}, 1024, v11")
    A(f"v_add_u32 v{V_OX+2}, 2048, v{V_OX}")
    A(f"v_add_u32 v{V_OX+3}, 3072, v11")
    A("v_lshl_add_u32 v10, v3, 10, v9")
    slin(ST, 0, (S_CG, 1 << 16), (S_CH, 1 << 15))
    A(f"v_add_u32 v{V_OW}, s{ST}, v10")
    A(f"v_xor_b32 v11, 64, v{V_OW}")
    A(f"v_add_u32 v{V_OW+1}, 7168, v11")
    A(f"v_add_u32 v{V_OW+2}, {2*7168}, v{V_OW}")
    A(f"v_add_u32 v{V_OW+3}, {3*7168}, v11")
    slin(ST, 0, (S_CG, 128), (S_CH, 64))
    A(f"v_lshl_add_u32 v14, v{V_N}, 1, s{ST}")
    if TCHM: touch_setup("A")
    A(f"s_cmp_eq_u32 s{S_RH}, 0")
    A("s_waitcnt lgkmcnt(0)")
    A(f"s_cselect_b32 s{SW}, s{K_BRE}, s{K_BIM}")
    A(f"s_cselect_b32 s{SW+1}, s{K_BRE+1}, s{K_BIM+1}")
    A(f"s_cselect_b32 s{SW2}, s{K_CRE}, s{K_CIM}")
    A(f"s_cselect_b32 s{SW2+1}, s{K_CRE+1}, s{K_CIM+1}")
    A(f"s_mov_b32 s{SW+2}, 0x80000")
    A(f"s_mov_b32 s{SW+3}, 0x20000")
    stamp(1)
    ws_shift()
    A(f"s_load_dword s{S_TAG}, s[{K_WS}:{K_WS+1}], {WS_TAGA}")
    srd(SX, K_AX, 0x200000)
    tok = {}
    def g1_pieces(i):
        slot = i & 3
        return (dma_pieces(V_OW, SW, ST + 8, slot * SLOT, pre=lambda: rot_soff(ST + 8, i, shift=7, rot=S_ROT1)) +
                dma_pieces(V_OX, SX, ST + 8, slot * SLOT + 16384, post=lambda: tok.__setitem__(i, A.vm), flags=XF))
    CLDS = {1: 4 * SLOT, 2: 4 * SLOT + 16384, 0: 0, 3: 16384, 4: SLOT, 5: SLOT + 16384, 6: 2 * SLOT, 7: 2 * SLOT + 16384}
    CORD = [1, 2, 0, 3, 4, 5, 6, 7]
    CE = OPT.get('ce', 0)
    def c_pieces(st):
        if st in (0, 2) and OPT.get("cswap", 1):
            def pre():
                A(f"s_and_b32 s{ST+9}, s{S_CHUNK}, 3")
                A(f"s_cmp_eq_u32 s{ST+9}, 3")
                A(f"s_cselect_b32 s{ST+9}, {CLDS[2-st]:#x}, {CLDS[st]:#x}")
                A(f"s_cselect_b32 s{ST+7}, s{KAP[2-st]}, s{KAP[st]}")
                A(f"s_add_u32 m0, s{S_M0W}, s{ST+9}")
                A(f"s_lshl_b32 s{ST+9}, s{ST+7}, 7")
            return dma_pieces(V_OW, SW2, ST + 9, 0, pre=pre)
        return dma_pieces(V_OW, SW2, ST + 9, CLDS[st], pre=lambda: A(f"s_lshl_b32 s{ST+9}, s{KAP[st]}, 7"))
    ADL = OPT.get("adl", 1)
    SML = OPT.get("sml", 1) if not ADL else 0
    def small():
        A(f"global_load_ushort v{T0}, v14, s[{K_LRE}:{K_LRE+1}]")
        A(f"global_load_ushort v{T0+1}, v14, s[{K_LIM}:{K_LIM+1}]")
        A(f"global_load_ushort v{T0+2}, v14, s[{K_LDT}:{K_LDT+1}]")
        A(f"global_load_ushort v{C_DSK}, v14, s[{K_DSK}:{K_DSK+1}]")
    if not SML: small()
    tok_small = A.vm
    if ADL < 2: run(g1_pieces(0))
    A(f"s_mov_b32 s{SW2+2}, 0x80000")
    A(f"s_mov_b32 s{SW2+3}, 0x20000")
    late = g1_pieces(1)
    NA = OPT.get("nprea", 4) if not ADL else 0
    if ADL == 2: late = g1_pieces(0) + late
    if OPT.get("diagdelay"): late = [f"s_sleep {OPT['diagdelay']}"] + late
    if SML == 2: small()
    if TCHM:
        touch_srd("A"); touch(1, V_T3)()
        if TCHM == 1: late = late + [touch(4, V_T2)] + g1_pieces(2) + [touch(6, V_T2)]
    elif EARLY:
        run(late[:NA]); late = late[NA:] + g1_pieces(2)
    else:
        run(late); late = []
    if SML == 1: small()
    if OPT.get("wtouch", 0):
        slin(ST, 0, (S_CG, 1 << 16), (S_CHUNK, 4096), (S_CH, 2048))
        A(f"v_and_b32 v9, 15, v{V_LANE}")
        A("v_lshlrev_b32 v9, 7, v9")
        A(f"buffer_load_dword v254, v9, s[{SW2}:{SW2+3}], s{ST} offen")
    stamp(2)
    cut("A")
    A(f"s_lshl_b32 s{ST}, s{S_RH}, 13")
    lds_b128_addrs(V_AX, ST, 16384, 2)
    A(f"s_lshl_b32 s{ST}, s{S_CH}, 12")
    lds_b128_addrs(V_AW, ST, 0, 3)
    XLDS = OPT.get("xlds", 1)
    S_XI = 57
    if XLDS:
        V_XA = ACC2
        A(f"s_sub_u32 s{S_XI}, s{S_CG}, s{S_ROT1}")
        A(f"s_and_b32 s{S_XI}, s{S_XI}, 7")
        A(f"s_and_b32 s{ST+1}, s{S_XI}, 3")
        slin(ST, 16384, (ST + 1, SLOT), (S_RH, 8192))
        A(f"v_bfe_u32 v9, v{V_N}, 1, 2")
        A(f"v_and_b32 v10, 1, v{V_N}")
        A("v_lshl_add_u32 v9, v9, 2, v10")
        A(f"v_bfe_u32 v10, v{V_N}, 4, 1")
        A("v_lshl_add_u32 v10, v9, 1, v10")
        A(f"v_bfe_u32 v11, v{V_N}, 3, 1")
        A("v_lshl_add_u32 v10, v11, 5, v10")
        A("v_and_b32 v9, 7, v9")
        A(f"s_lshl_b32 s{ST+1}, s{S_CH}, 2")
        A(f"v_lshl_add_u32 v11, v{V_G}, 1, s{ST+1}")
        A("v_xor_b32 v9, v9, v11")
        A("v_lshlrev_b32 v9, 4, v9")
        A("v_lshl_add_u32 v9, v10, 7, v9")
        A(f"v_add_u32 v{V_XA}, s{ST}, v9")
        A(f"v_xor_b32 v{V_XA+1}, 16, v{V_XA}")
        A(f"v_xor_b32 v{V_XA+2}, 32, v{V_XA}")
        A(f"v_xor_b32 v{V_XA+3}, 48, v{V_XA}")
    if OPT.get("lateset", 1): A.cap = []
    common_setup("A")
    slin(P_SAB, WS_SA, (S_CG, 8192))
    A(f"s_sub_u32 s{ST}, 15, s{S_CHUNK}")
    slin(P_SAO, 0, (ST, 512), (S_CH, 256), (P_SAB, 1))
    A(f"s_mov_b32 s{P_MSK}, 0xffffff00")
    slin(P_XS0, 0, (S_CHUNK, 1 << 17), (S_RH, 1 << 16), (S_CG, 128), (S_CH, 64), (S_MF, 32768))
    A(f"s_xor_b32 s{P_XS1}, s{P_XS0}, 32768")
    slin(P_ACTW, WS_H, (S_CHUNK, 1 << 18), (S_CG, 1 << 15), (S_WAVE, 4096))
    slin(P_ACTR, WS_H, (S_CHUNK, 1 << 18), (S_WAVE, 4096), (S_MF, 16384))
    A(f"s_xor_b32 s{P_ACTR2}, s{P_ACTR}, 16384")
    A(f"v_lshlrev_b32 v9, 11, v{V_G}")
    A(f"v_lshl_add_u32 v{V_HSO}, v{V_N}, 4, v9")
    A(f"s_add_u32 s{P_ACTW2}, s{P_ACTW}, 16384")
    clears = [f"buffer_store_dwordx4 {vr(T0+24,4)}, v{V_HSO}, s[{SWS}:{SWS+3}], s{P_ACTW} offen offset:{k*512} sc1" for k in range(8)]
    A(f"s_and_b32 s{ST}, s{S_TAG}, 0xff")
    A(f"v_mov_b32 v{V_TAG}, s{ST}")
    A(f"v_mov_b32 v11, s{S_TAG}")
    A(f"v_lshlrev_b32 v{V_XSO}, 10, v{V_N}")
    A(f"v_lshl_add_u32 v{V_XSO}, v{V_G}, 5, v{V_XSO}")
    SCR = 3 * SLOT
    slin(ST, SCR, (S_CH, 256))
    A(f"v_lshl_add_u32 v4, v{V_N}, 3, s{ST}")
    A(f"s_lshl_b32 s{ST}, s{S_RH}, 10")
    A(f"v_lshl_add_u32 v3, v{V_G}, 9, v4")
    A(f"v_add_u32 v3, s{ST}, v3")
    A(f"v_lshlrev_b32 v13, 3, v{V_N}")
    A(f"v_mov_b32 v14, {OOB:#x}")
    A(f"s_or_b64 s[{ST+2}:{ST+3}], s[{S_MG}:{S_MG+1}], s[{S_MRH}:{S_MRH+1}]")
    A(f"v_cndmask_b32_e64 v{V_PUB}, v13, v14, s[{ST+2}:{ST+3}]")
    if OPT.get("prew", 1):
        for k in range(2): A(f"v_subrev_u32 v{T0+20+k}, 1, v{V_TAG}")
        A(f"buffer_store_dwordx2 {vr(T0+20,2)}, v{V_PUB}, s[{SWS}:{SWS+3}], s{P_SAO} offen sc1")
    A(f"s_sub_u32 s{ST+4}, 16, s{S_CHUNK}")
    A(f"v_lshlrev_b32 v9, 3, v{V_G}")
    A(f"v_add_u32 v9, s{ST+4}, v9")
    A(f"s_lshl_b32 s{ST+4}, s{S_CH}, 8")
    A(f"v_add_u32 v13, s{ST+4}, v13")
    A(f"v_lshl_add_u32 v{V_GO}, v9, 9, v13")
    for i in range(8):
        A(f"v_cmp_gt_u32 vcc, {16-i}, v9")
        A(f"v_cndmask_b32_e64 v{V_GE+i}, 0, v{V_TAG}, vcc")
    if SML: A.cap.append("@consts")
    if ADL: A.cap.append("@small")
    A.wait_vm(tok_small)
    lre, lim, ldt = T0, T0 + 1, T0 + 2
    A(f"v_and_b32 v9, 1, v{V_N}")
    A("v_lshlrev_b32 v9, 4, v9")
    A(f"v_lshlrev_b32 v{C_DSK}, v9, v{C_DSK}")
    A(f"v_lshrrev_b32 v9, 1, v{V_N}")
    A(f"v_lshlrev_b32 v13, 3, v{V_G}")
    A("v_sub_u32 v9, v9, v13")
    for q in range(8):
        A(f"v_cmp_eq_u32 vcc, {q}, v9")
        A(f"v_cndmask_b32_e64 v{DG+q}, 0, v{C_DSK}, vcc")
    for r in (lre, lim, ldt): A(f"v_lshlrev_b32 v{r}, 16, v{r}")
    A(f"v_mul_f32 v{ldt}, s{S_L2E}, v{ldt}")
    A(f"v_exp_f32 v{ldt}, v{ldt}")
    A(f"v_cvt_pk_bf16_f32 v{ldt}, v{ldt}, v{ldt}")
    A(f"v_lshlrev_b32 v{ldt}, 16, v{ldt}")
    A(f"v_mul_f32 v{T0+4}, v{ldt}, v{lre}")
    A(f"v_mul_f32 v{T0+5}, v{ldt}, v{lim}")
    A(f"v_mul_f32 v{T0+4}, s{S_L2E}, v{T0+4}")
    A(f"v_exp_f32 v{T0+4}, v{T0+4}")
    A(f"v_mul_f32 v{T0+5}, {INV2PI:#x}, v{T0+5}")
    A(f"v_rndne_f32 v{T0+6}, v{T0+5}")
    A(f"v_sub_f32 v{T0+5}, v{T0+5}, v{T0+6}")
    A(f"v_cos_f32 v{T0+6}, v{T0+5}")
    A(f"v_sin_f32 v{T0+7}, v{T0+5}")
    A(f"v_mul_f32 v{C_LAM}, v{T0+4}, v{T0+6}")
    A(f"v_mul_f32 v{C_LAM+1}, v{T0+4}, v{T0+7}")
    A(f"v_add_f32 v{T0+4}, -1.0, v{C_LAM}")
    A(f"v_mul_f32 v{T0+5}, v{lre}, v{lre}")
    A(f"v_fmac_f32 v{T0+5}, v{lim}, v{lim}")
    A(f"v_rcp_f32 v{T0+5}, v{T0+5}")
    A(f"v_mul_f32 v{T0+6}, v{T0+4}, v{lre}")
    A(f"v_fmac_f32 v{T0+6}, v{C_LAM+1}, v{lim}")
    A(f"v_mul_f32 v{T0+7}, v{C_LAM+1}, v{lre}")
    A(f"v_fma_f32 v{T0+7}, -v{T0+4}, v{lim}, v{T0+7}")
    A(f"v_add_f32 v{T0+5}, v{T0+5}, v{T0+5}")
    A(f"v_mul_f32 v{C_C2}, v{T0+6}, v{T0+5}")
    A(f"v_mul_f32 v{C_C2+1}, v{T0+7}, v{T0+5}")
    pa, pb, tt = T0 + 8, T0 + 10, T0 + 12
    cmul(pa, C_LAM, C_LAM, tt)
    cmul(pb, pa, pa, tt)
    cmul(pa, pb, pb, tt)
    cmul(C_M1, pa, pa, tt)
    cmul(C_M2, C_M1, C_M1, tt)
    cmul(pa, C_M2, C_M2, tt)
    cmul(C_L, pa, pa, tt)
    def sel_pair(dst, src, mask):
        A(f"v_cndmask_b32_e64 v{dst}, 1.0, v{src}, s[{mask}:{mask+1}]")
        A(f"v_cndmask_b32_e64 v{dst+1}, 0, v{src+1}, s[{mask}:{mask+1}]")
    sel_pair(T0 + 14, C_M2, S_MG)
    sel_pair(T0 + 16, pa, S_MRH)
    cmul(C_MQ, T0 + 14, T0 + 16, tt)
    cmul(pa, C_L, C_L, tt)
    cmul(pb, pa, pa, tt)
    cmul(pa, pb, pb, tt)
    sel_pair(C_LQ, pa, S_MG)
    SET, A.cap = (A.cap or []), None
    LATEV = [x for x in SET if x.startswith("buffer_")]
    SET = [x for x in SET if not x.startswith("buffer_")]
    if ADL: A.wait_vm(tok_small) if False else None
    for _ in range(OPT.get("pset", 0) if not ADL else 1000):
        if not SET or SET[0] == "@consts": break
        if SET[0] == "@small":
            SET.pop(0); A.wait_vm(tok_small); continue
        if SET[0].startswith(f"s_add_u32 s{S_TAG},"): A("s_waitcnt lgkmcnt(0)")
        A(SET.pop(0))
    while SET and (SET[0].startswith("s_addc") or SET[0].startswith("s_cselect")): A(SET.pop(0))
    if "@consts" in SET:
        k_ = SET.index("@consts")
        SET = SET[:k_] + ["@hold"] + SET[k_+1:]
    stamp(3)
    run(late)
    def rd(n):
        i, ks = n >> 2, n & 3
        slot, buf = i & 3, n & 1
        s2_, off = slot >> 1, (slot & 1) * SLOT
        x = [f"ds_read_b128 {vr(V_XF+buf*8+m*4,4)}, v{V_AX+4*s2_+ks} offset:{off+m*4096}" for m in range(2)]
        w = [f"ds_read_b128 {vr(V_WF+buf*8+ri*4,4)}, v{V_AW+4*s2_+ks} offset:{off+ri*8192}" for ri in range(2)]
        return [x[0], w[0], w[1], x[1]]
    def mm(n):
        buf = n & 1
        r = []
        for m, ri in ((0, 0), (0, 1), (1, 1), (1, 0)):
            d = vr((URE, UIM)[ri] + 16 * m, 16)
            r.append(mf(d, vr(V_XF + buf * 8 + m * 4, 4), vr(V_WF + buf * 8 + ri * 4, 4), d if n else "0"))
        return r
    fill = []
    hook = []
    def xs_load(m, s):
        return lambda: A(f"buffer_load_dwordx4 {vr(XS+8*m+4*s,4)}, v{V_XSO}, s[{SX}:{SX+3}], s{P_XS0+m} offen offset:{16*s}")
    def xs_lds(i):
        sk = lab("nx")
        A(f"s_cmp_eq_u32 s{S_XI}, {i}")
        A(f"s_cbranch_scc0 {sk}")
        for m in range(2):
            for s_ in range(2):
                A(f"ds_read_b128 {vr(XS+8*m+4*s_,4)}, v{V_XA+2*m+s_} offset:{m*512}")
        A.label(sk)
    def on_step(n):
        i, ks = n >> 2, n & 3
        if XLDS and ks == 1: hook.append(lambda: xs_lds(i))
        if ks == 0 and OPT.get("g1st") and i: stamp(16 + i)
        if ks == 0:
            if TCHM == 2 and i < 2: fill.append(touch(4 + 2 * i, V_T2))
            for st in SCHED[0].get(i, []): fill.extend(g1_pieces(st))
            XL = [xs_load(m, s) for m in range(2) for s in range(2)] if not XLDS else []
            XO = OPT.get("xso", 1)
            if i == XST:
                if XO == 1: fill.extend(LATEV + XL)
                fill.extend(c_pieces(1) + c_pieces(2))
            elif i == XST + 1:
                if XO == 0: fill.extend(LATEV + XL)
                if CE >= 4: fill.extend(c_pieces(0) + c_pieces(3))
            elif i == 7:
                if CE == 2: fill.extend(c_pieces(0) + c_pieces(3))
                if CE >= 4: fill.extend(c_pieces(4) + c_pieces(5))
                if OPT.get("ptouch", 0):
                    fill.extend([f"buffer_load_dword v254, v{V_GO+k}, s[{SWS}:{SWS+3}], s{P_SAB} offen sc1" for k in range(4)])
                    fill.append(lambda: rdy_load(254, 254))
    A.wait_vm(tok[0])
    A("s_barrier")
    stamp(4)
    gemm_loop(32, rd, mm, lambda n: tok[n >> 2] if (n & 3) == 0 else None, (2, 2, 0, 0), lambda n: g1_gaps(n, (5,) if OPT.get('xall', 0) else ()), fill, on_step, end_barrier=True, extra=SET, nextra=lambda n, g: NX, hook=hook)
    assert not SET
    assert not fill
    stamp(5)
    if TCHM: srd(SOUT, 100, 0x800000)
    P = [T0, T0 + 4]
    def lam_bc(hi): return f"op_sel:[{hi},0,0] op_sel_hi:[{hi},1,1]"
    NEG = "neg_lo:[1,0,0] neg_hi:[1,0,0]"
    cur_re, cur_im = URE, UIM
    for s in range(1, 16):
        d = P[s & 1]
        A(f"v_pk_fma_f32 {vr(d,2)}, {vr(C_LAM,2)}, {vr(cur_im,2)}, {vr(URE+2*s,2)} {lam_bc(1)} {NEG}")
        A(f"v_pk_fma_f32 {vr(d+2,2)}, {vr(C_LAM,2)}, {vr(cur_re,2)}, {vr(UIM+2*s,2)} {lam_bc(1)}")
        A(f"v_pk_fma_f32 {vr(d,2)}, {vr(C_LAM,2)}, {vr(cur_re,2)}, {vr(d,2)} {lam_bc(0)}")
        A(f"v_pk_fma_f32 {vr(d+2,2)}, {vr(C_LAM,2)}, {vr(cur_im,2)}, {vr(d+2,2)} {lam_bc(0)}")
        cur_re, cur_im = d, d + 2
    A0, BQ = T0 + 8, T0 + 10
    A(f"v_fma_f32 v{BQ}, v{C_M1}, v{cur_re}, v{cur_re+1}")
    A(f"v_fma_f32 v{BQ+1}, v{C_M1}, v{cur_im}, v{cur_im+1}")
    A(f"v_fma_f32 v{BQ}, -v{C_M1+1}, v{cur_im}, v{BQ}")
    A(f"v_fma_f32 v{BQ+1}, v{C_M1+1}, v{cur_re}, v{BQ+1}")
    A(f"ds_write_b64 v3, {vr(BQ,2)}")
    A(f"v_mov_b32 v{A0}, v{cur_re}")
    A(f"v_mov_b32 v{A0+1}, v{cur_im}")
    P2, P3, SS, tt = T0 + 20, T0 + 22, T0 + 24, T0 + 28
    def c2_bc(hi, n=3):
        return f"op_sel:[{hi},0,0] op_sel_hi:[{hi},1,1]" if n == 3 else f"op_sel:[{hi},0] op_sel_hi:[{hi},1]"
    cm = []
    for s in range(16):
        re, im, t = URE + 2 * s, UIM + 2 * s, T0 + 2 + 2 * (s & 1)
        cm += [f"v_pk_mul_f32 {vr(t,2)}, {vr(C_C2,2)}, {vr(re,2)} {c2_bc(1,2)} neg_lo:[1,0] neg_hi:[1,0]",
               f"v_pk_mul_f32 {vr(re,2)}, {vr(C_C2,2)}, {vr(re,2)} {c2_bc(0,2)}",
               f"v_pk_fma_f32 {vr(re,2)}, {vr(C_C2,2)}, {vr(im,2)}, {vr(re,2)} {c2_bc(1)} {NEG}",
               f"v_pk_fma_f32 {vr(im,2)}, {vr(C_C2,2)}, {vr(im,2)}, {vr(t,2)} {c2_bc(0)} {NEG}"]
    emit(cm[:8])
    if HAND: A.wait_both(tok["clr"], A.lg)
    else: A("s_waitcnt lgkmcnt(0)")
    A("s_barrier")
    B0 = T0 + 12
    for q in range(4):
        A(f"ds_read_b64 {vr(B0+2*q,2)}, v4 offset:{q*512}")
    emit(cm[8:24])
    A("s_waitcnt lgkmcnt(0)")
    cfma(P2, C_M2, B0, B0 + 2, tt)
    cfma(P3, C_M2, P2, B0 + 4, tt)
    cfma(tt, C_M2, P3, B0 + 6, tt)
    A(f"v_and_or_b32 v{SS}, v{tt}, s{P_MSK}, v{V_TAG}")
    A(f"v_and_or_b32 v{SS+1}, v{tt+1}, s{P_MSK}, v{V_TAG}")
    A(f"buffer_store_dwordx2 {vr(SS,2)}, v{V_PUB}, s[{SWS}:{SWS+3}], s{P_SAO} offen sc1")
    rdy_store()
    stamp(6)
    emit(cm[24:])
    LOC = T0 + 0
    for e in range(2):
        A(f"v_cndmask_b32_e64 v{T0+2+e}, 0, v{B0+e}, s[{S_MG}:{S_MG+1}]")
        A(f"v_cndmask_b32_e64 v{T0+4+e}, v{P2+e}, v{P3+e}, s[{S_MG}:{S_MG+1}]")
        A(f"v_cndmask_b32_e64 v{LOC+e}, v{T0+2+e}, v{T0+4+e}, s[{S_MRH}:{S_MRH+1}]")
    E0, F0, E1, F1 = T0 + 12, T0 + 14, T0 + 16, T0 + 18
    cfma(P2, C_M1, LOC, A0, tt)
    cmul(F1, C_C2, P2, tt)
    cmul(F0, C_C2, LOC, tt)
    cmul(E0, C_C2, C_MQ, tt)
    cmul(E1, E0, C_M1, tt)
    V_AH = V_AX
    A(f"v_bfe_u32 v9, v{V_LANE}, 4, 1")
    A(f"v_bfe_u32 v13, v{V_LANE}, 1, 1")
    A("v_lshl_add_u32 v9, v9, 1, v13")
    A(f"v_bfe_u32 v13, v{V_LANE}, 2, 2")
    A(f"v_lshl_add_u32 v13, v{V_G}, 3, v13")
    A("v_lshlrev_b32 v14, 2, v9")
    A("v_xor_b32 v13, v13, v14")
    A("v_lshlrev_b32 v13, 4, v13")
    A("v_lshl_add_u32 v13, v9, 9, v13")
    A(f"v_and_b32 v14, 1, v{V_LANE}")
    A("v_lshl_add_u32 v13, v14, 3, v13")
    A(f"s_lshl_b32 s{ST+2}, s{S_RH}, 13")
    A(f"v_add_u32 v{V_AH}, s{ST+2}, v13")
    A(f"v_xor_b32 v{V_AH+1}, 64, v{V_AH}")
    for st in (1, 2):
        A(f"v_add_u32 v{V_AH+2*st}, {st*0x10000:#x}, v{V_AH}")
        A(f"v_add_u32 v{V_AH+2*st+1}, {st*0x10000:#x}, v{V_AH+1}")
    V_SO = T0 + 24
    for o in range(1, 4):
        A(f"v_xor_b32 v{V_SO+o}, {o*64}, v{V_HSO}")
    CPRE = 8
    A(f"s_add_u32 s{SW}, s{SWS}, s{P_SAB}")
    A(f"s_addc_u32 s{SW+1}, s{SWS+1}, 0")
    A(f"s_mov_b32 s{SW+2}, 8192")
    GD = 48
    def loads():
        for i in range(8):
            A(f"buffer_load_dwordx2 {vr(GD+2*i,2)}, v{V_GO}, s[{SW}:{SW+3}], 0 offen offset:{i*512} sc1")
        rdy_load(14)
    def check():
        A(f"v_xor_b32 v13, v{GD}, v{V_GE}")
        for i in range(1, 8):
            A(f"v_bitop3_b32 v13, v{GD+2*i}, v{V_GE+i}, v13 bitop3:0xbe")
        rdy_check(9, 14)
        A("v_and_b32 v13, 0xff, v13")
        A("v_or_b32 v13, v13, v9")
        A(f"v_cmp_ne_u32 s[{S_FAIL}:{S_FAIL+1}], 0, v13")
    CM = min(8, 2 + CE + OPT.get("cmid", 3))
    for st in CORD[2+CE:CM]: run(c_pieces(st))
    loads()
    tok_p = A.vm
    CPOST = OPT.get("cpost", 0)
    for st in CORD[CM:8-CPOST]: run(c_pieces(st))
    tok_c = A.vm
    stamp(7)
    ok = lab("ok1")
    A.wait_vm(tok_p)
    for m in range(2):
        d = vr(ACC2 + 16 * m, 16)
        A(mf(d, vr(XS + 8 * m, 4), vr(DG, 4), "0"))
    check()
    A(f"s_cmp_eq_u64 s[{S_FAIL}:{S_FAIL+1}], 0")
    A(f"s_cbranch_scc1 {ok}")
    vm_keep = A.vm
    poll(loads, check)
    A.vm = vm_keep
    A.label(ok)
    stamp(8)
    h1, h2 = T0 + 20, T0 + 22
    cur = GD + 14
    for i in range(6, -1, -1):
        d = (h1, h2)[i & 1]
        cfma(d, C_L, cur, GD + 2 * i, tt)
        cur = d
    CQ = GD
    cmul(CQ, C_LQ, cur, tt)
    for e in range(2): A(f"v_mov_b32 v{CQ+2+e}, v{CQ+e}")
    for e in range(2): A(f"v_permlane32_swap_b32 v{CQ+e}, v{CQ+2+e}")
    A(f"v_pk_add_f32 {vr(CQ,2)}, {vr(CQ,2)}, {vr(CQ+2,2)}")
    def c_reads(st):
        s2_, off = CLDS[st] >> 16, CLDS[st] & 0xffff
        r = [None] * 8
        for ks in range(4):
            for ri in range(2):
                kap = (ks >> 1) * 4 + ri * 2 + (ks & 1)
                r[kap] = f"ds_read_b128 {ar((st*8+kap)*4,4)}, v{V_AW+4*s2_+ks} offset:{off+ri*8192}"
        return r
    for m in range(2):
        d = vr(ACC2 + 16 * m, 16)
        A(mf(d, vr(XS + 8 * m + 4, 4), vr(DG + 4, 4), d))
    HR, HI = T0 + 20, T0 + 22
    A(f"v_fma_f32 v{HR}, v{E0}, v{CQ}, v{F0}")
    A(f"v_fma_f32 v{HR+1}, v{E1}, v{CQ}, v{F1}")
    A(f"v_fma_f32 v{HI}, -v{E0}, v{CQ+1}, -v{F0+1}")
    A(f"v_fma_f32 v{HI+1}, -v{E1}, v{CQ+1}, -v{F1+1}")
    A(f"v_fma_f32 v{HR}, -v{E0+1}, v{CQ+1}, v{HR}")
    A(f"v_fma_f32 v{HR+1}, -v{E1+1}, v{CQ+1}, v{HR+1}")
    A(f"v_fma_f32 v{HI}, -v{E0+1}, v{CQ}, v{HI}")
    A(f"v_fma_f32 v{HI+1}, -v{E1+1}, v{CQ}, v{HI+1}")
    pr, pi_ = HR, HI
    def hstore(ph, o):
        A(f"buffer_store_dwordx4 {vr(HP+16*ph+4*o,4)}, v{V_SO+o if o else V_HSO}, s[{SWS}:{SWS+3}], s{P_ACTW+ph} offen offset:{o*512} sc1")
    for hf in range(2):
        for s in range(8 * hf, 8 * hf + 8):
            re, im = URE + 2 * s, UIM + 2 * s
            emit([f"v_pk_fma_f32 {vr(re,2)}, {vr(C_LAM,2)}, {vr(pi_,2)}, {vr(re,2)} {lam_bc(1)}",
                  f"v_pk_fma_f32 {vr(im,2)}, {vr(C_LAM,2)}, {vr(pr,2)}, {vr(im,2)} {lam_bc(1)} {NEG}",
                  f"v_pk_fma_f32 {vr(re,2)}, {vr(C_LAM,2)}, {vr(pr,2)}, {vr(re,2)} {lam_bc(0)}",
                  f"v_pk_fma_f32 {vr(im,2)}, {vr(C_LAM,2)}, {vr(pi_,2)}, {vr(im,2)} {lam_bc(0)}"])
            pr, pi_ = re, im
        for z in range(2):
            o = 2 * z + hf
            for ri in range(2):
                U = (URE, UIM)[ri]
                for u in range(4):
                    s0 = 8 * hf + 2 * u
                    A(f"v_cvt_pk_bf16_f32 v{HP+(ri*4+o)*4+u}, v{U+2*s0+z}, v{U+2*s0+2+z}")
            for u in range(4):
                A(f"v_permlane32_swap_b32 v{HP+o*4+u}, v{HP+16+o*4+u}")
            hstore(0, o)
    tok_a = A.vm
    for o in range(4): hstore(1, o)
    tok_h = A.vm
    stamp(9)
    for st in CORD[8-CPOST:] if CPOST else []: run(c_pieces(st))
    tok_c2 = A.vm
    HS = [3, 4, 0, 1, 3, 4, 0, 1]
    def h_pieces(G):
        r = []
        for sub in range(2):
            pos, ph = SEQ[2 * G + sub]
            r += dma_pieces(V_LIN, SWS, ST + 8, HS[G] * SLOT + sub * 16384,
                            pre=lambda pos=pos, ph=ph: (A(f"s_lshl_b32 s{ST+8}, s{KAP[pos]}, 15"), A(f"s_add_u32 s{ST+8}, s{ST+8}, s{P_ACTR+ph}")),
                            post=(lambda: tok.__setitem__(("h", G), A.vm)) if sub else None, flags=PLF, same_v=True)
        return r
    assert CPRE == 8
    call = sum([c_reads(st) for st in [0, 1, 2, 3, 4, 5, 6, 7]], [])
    HF = 48
    def rd2(n):
        G, q = n >> 2, n & 3
        slot, buf = HS[G], n & 1
        r = []
        for h in range(4):
            kap = 4 * (q & 1) + h
            off = (slot & 1) * SLOT + (q >> 1) * 16384 + (kap >> 2) * 4096 + ((kap >> 1) & 1) * 2048 + (kap & 1) * 256
            for j in range(2):
                if True:
                    r.append(f"ds_read_b64_tr_b16 {vr(HF+buf*16+h*4+2*j,2)}, v{V_AH+2*(slot>>1)+j} offset:{off}")
        return r
    def mm2(n):
        buf = n & 1
        pos, ph = SEQ[n >> 1]
        d = vr(ACC2 + 16 * ph, 16)
        return [mf(d, vr(HF + buf * 16 + h * 4, 4), ar((8 * pos + 4 * (n & 1) + h) * 4, 4), d) for h in range(4)]
    xcc_decide(14)
    A.wait_vm(tok_c)
    A("s_barrier")
    slin(ST + 2, 3 * SLOT, (S_WAVE, 4096))
    A(f"v_add_u32 v{V_GO}, s{ST+2}, v{V_HSO}")
    for o in range(1, 4): A(f"v_xor_b32 v{V_GO+o}, {o*64}, v{V_GO}")
    for p in range(8):
        A(f"ds_write_b128 v{V_GO+(p&3)}, {vr(HP+4*p,4)} offset:{(p>>2)*16384+(p&3)*512}")
    emit(call[:8])
    A("s_waitcnt lgkmcnt(0)")
    A("s_barrier")
    cf = call[8:32]
    gemm_loop(4, rd2, mm2, lambda n: None, (3, 3, 2, 0), (2, 3), cf)
    A.wait_vm(tok_a)
    flag_store(0)
    emit(cf)
    if CPOST:
        A.wait_vm(tok_h)
        flag_store(1)
        A.wait_both(tok_c2, A.lg)
        A("s_barrier")
        stamp(10)
    else:
        A("s_waitcnt lgkmcnt(0)")
        A("s_barrier")
        stamp(10)
        A.wait_vm(tok_h)
        flag_store(1)
    flag_poll(0)
    stamp(11)
    run(h_pieces(1))
    weave(call[32:], h_pieces(2), 4)
    if OPT.get("btouch", 0):
        A(f"v_lshlrev_b32 v9, 7, v{V_N}")
        A(f"buffer_load_dword v254, v9, s[{SWS}:{SWS+3}], s{P_ACTW2} offen sc1")
    stamp(12)
    fill = []
    h4 = h_pieces(4)
    def on_step2(n):
        G, q = n >> 2, n & 3
        if q == 0 and OPT.get("g2st") and G > 1: stamp(15 + G)
        if n == 7:
            A.wait_vm(tok["fb"])
            flag_check(1)
        fb = [lambda: (flag_load(1), tok.__setitem__("fb", A.vm))]
        if q == 0 and G2S == 0:
            if G == 1: fill.extend(fb + h_pieces(3) + h4[:4])
            elif G == 2: fill.extend(h4[4:] + h_pieces(5))
            elif G + 3 < 8: fill.extend(h_pieces(G + 3))
            elif G == 5: fill.extend(out_stores(ACC2, 0))
        elif q == 0 and G2S in (1, 2):
            if G == 1: fill.extend(fb)
            if G + 2 < 8: fill.extend(h_pieces(G + 2))
            elif G == 6: fill.extend(out_stores(ACC2, 0))
        elif q == 0:
            if G == 1: fill.extend(fb + h_pieces(3))
            elif G == 2: fill.extend(h_pieces(4) + h_pieces(5)[:4])
            elif G == 3: fill.extend(h_pieces(5)[4:] + h_pieces(6))
            elif G == 4: fill.extend(h_pieces(7))
            elif G == 5: fill.extend(out_stores(ACC2, 0))
    G2S = OPT.get("g2s", 2)
    def gaps2(n):
        if G2S == 0: return (0, 1, 2, 3) if n < 12 else (2, 3)
        if G2S == 1: return (0, 1, 2, 3) if n < 24 else (2, 3)
        if G2S == 2: return (1, 2, 3) if n < 24 else (2, 3)
        return (1, 2, 3) if n < 16 else (2, 3)
    A.wait_both(tok[("h", 1)], A.lg)
    A("s_barrier")
    stamp(13)
    gemm_loop(32, rd2, mm2, lambda n: tok[("h", n >> 2)] if (n & 3) == 0 else None, (3, 3, 2, 0),
              gaps2, fill, on_step2, start=4)
    assert not fill
    stamp(14)
    run(out_stores(ACC2, 1))
    tag_update("A")
    stamp(15)
    finish()

def role_B():
    V_OO = 24
    V_AX, V_AT = 28, 36
    V_SW, V_SR, V_P2, V_G2B, V_PB0, V_PB1, V_G1, V_GZ, V_G2, V_P2Z = 39, 40, 41, 42, 43, 44, 45, 46, 47, 253
    S_WPH, V_WPO = P0 + 12, 252
    IDF = 240
    V_WF = 48
    KACC, VACC, PK, KV, WPH = 64, 96, 128, 192, 224
    T0 = 232
    P_P1O, P_P1G, P_P2O, P_P2G, P_MSK = P0 + 1, P0 + 2, P0 + 8, P0 + 9, P0 + 10
    S_PART = 57
    SL = 768 if OPT.get('sl768', 0) else 640
    ZS = 7 if SL == 768 else 6
    NS = 16 if OPT.get('p16', 1) else 32
    WPS = OPT.get('wps', 1)
    QE = OPT.get('qe', 3)
    code_prefetch()
    A("v_lshrrev_b32 v9, 1, v3")
    A("v_xor_b32 v9, v9, v4")
    A("v_lshlrev_b32 v9, 4, v9")
    A("v_lshl_add_u32 v10, v3, 10, v9")
    slin(ST, 0, (S_CHUNK, 1 << 17), (S_WAVE, 1 << 15))
    A(f"v_add_u32 v{V_OX}, s{ST}, v10")
    A(f"v_xor_b32 v11, 64, v{V_OX}")
    A(f"v_add_u32 v{V_OX+1}, 7168, v11")
    A(f"v_add_u32 v{V_OX+2}, {2*7168}, v{V_OX}")
    A(f"v_add_u32 v{V_OX+3}, {3*7168}, v11")
    A("v_bfe_u32 v9, v3, 1, 1")
    A("v_lshlrev_b32 v9, 2, v9")
    A("v_xor_b32 v9, v9, v4")
    A("v_lshlrev_b32 v9, 4, v9")
    A(f"s_lshl_b32 s{ST}, s{S_CG}, 7")
    A(f"v_add_u32 v9, s{ST}, v9")
    A(f"s_lshl_b32 s{ST+1}, s{S_CH}, 5")
    A(f"v_add_u32 v10, s{ST+1}, v3")
    A("v_mul_u32_u24 v11, 3072, v10")
    A(f"v_add_u32 v{V_OW}, v11, v9")
    for p in range(1, 4): A(f"v_add_u32 v{V_OW+p}, {p*(8*3072-1024)}, v{V_OW}")
    A(f"v_lshl_add_u32 v{V_OO}, v10, 10, v9")
    slin(S_PART, 1024, (S_RH, 1024))
    if TCHM: touch_setup("B")
    A("s_waitcnt lgkmcnt(0)")
    srd(SW, K_WQKV, 0x180000)
    stamp(1)
    ws_shift()
    A(f"s_load_dword s{S_TAG}, s[{K_WS}:{K_WS+1}], {WS_TAGB}")
    srd(SX, K_BX, 0x200000)
    tok = {}
    def g1_pieces(i):
        slot = i & 3
        return (dma_pieces(V_OW, SW, ST + 8, slot * SLOT, pre=lambda: rot_soff(ST + 8, i, mul=196608, plus=S_PART, rot=S_ROT1)) +
                dma_pieces(V_OX, SX, ST + 10, slot * SLOT + 16384, pre=lambda: rot_soff(ST + 10, i, shift=7, rot=S_ROT1),
                           post=lambda: tok.__setitem__(i, A.vm), flags=XF))
    QSLOT = [4, 0]; OSLOT = [1, 2]
    def q_pieces(st):
        if OPT.get("qdyn", 0):
            def pre():
                A(f"s_add_u32 s{ST+9}, s{S_CHUNK}, {st}")
                A(f"s_lshr_b32 s{ST+7}, s{S_ROT1}, 1")
                A(f"s_sub_u32 s{ST+7}, s{ST+9}, s{ST+7}")
                A(f"s_and_b32 s{ST+7}, s{ST+7}, 3")
                A(f"s_xor_b32 s{ST+7}, s{ST+7}, 2")
                A(f"s_bitcmp1_b32 s{ST+7}, 1")
                A(f"s_cselect_b32 s{ST+5}, {0x20000 - 0x8000:#x}, 0")
                A(f"s_lshl_b32 s{ST+7}, s{ST+7}, 14")
                A(f"s_add_u32 s{ST+7}, s{ST+7}, s{ST+5}")
                A(f"s_add_u32 m0, s{S_M0W}, s{ST+7}")
                A(f"s_and_b32 s{ST+9}, s{ST+9}, 3")
                A(f"s_lshl_b32 s{ST+9}, s{ST+9}, 1")
                A(f"s_add_u32 s{ST+9}, s{ST+9}, s{S_RH}")
                A(f"s_mul_i32 s{ST+9}, s{ST+9}, 196608")
            return dma_pieces(V_OW, SW, ST + 9, 0, pre=pre, post=lambda: tok.__setitem__(("q", st), A.vm))
        return dma_pieces(V_OW, SW, ST + 9, QSLOT[st >> 1] * SLOT + (st & 1) * 16384,
                          pre=lambda: rot_soff(ST + 9, 2 * st, mul=196608, extra_sreg=S_RH, rot=S_ROT1), post=lambda: tok.__setitem__(("q", st), A.vm))
    OPAIR = [(1, 2), (0, 3), (4, 5), (6, 7)]
    OLDS = {}
    for st_, pr_ in enumerate(OPAIR):
        for e_ in range(2): OLDS[pr_[e_]] = OSLOT[st_ >> 1] * SLOT + (st_ & 1) * 16384 + e_ * 8192
    def o_pieces(st):
        def pre():
            A(f"s_cmp_eq_u32 s{S_RH}, 0")
            A(f"s_cselect_b32 s{ST+9}, s{KAP[OPAIR[st][0]]}, s{KAP[OPAIR[st][1]]}")
            A(f"s_lshl_b32 s{ST+9}, s{ST+9}, 16")
        return dma_pieces(V_OO, SW2, ST + 9, OSLOT[st >> 1] * SLOT + (st & 1) * 16384, pre=pre)
    run(g1_pieces(0))
    WPL = 4 * SLOT
    srd(SW2, K_WPHI, 0x4000)
    A(f"v_lshlrev_b32 v{V_LIN}, 4, v{V_LANE}")
    slin(ST, 0, (S_CG, 2048), (S_CH, 1024))
    A(f"s_lshl_b32 s{ST+1}, s{S_WAVE}, 10")
    A(f"s_add_u32 m0, s{ST+1}, {WPL:#x}")
    A(f"buffer_load_dwordx4 v{V_LIN}, s[{SW2}:{SW2+3}], s{ST} offen lds")
    late = g1_pieces(1)
    if TCHM:
        touch_srd("B"); touch(1, V_T3)()
        if TCHM == 1: late = late + [touch(4, V_T2)] + g1_pieces(2) + [touch(6, V_T2)]
    elif EARLY:
        run(late[:NPRE]); late = late[NPRE:] + g1_pieces(2)
    else:
        run(late); late = []
    if OPT.get("wtouch", 0):
        slin(ST, 0, (S_CHUNK, 32), (S_WAVE, 8))
        A(f"v_add_u32 v9, s{ST}, v4")
        A("v_mul_u32_u24 v10, 3072, v9")
        A("v_lshlrev_b32 v9, 10, v9")
        A(f"s_lshl_b32 s{ST}, s{S_CG}, 7")
        A(f"buffer_load_dword v254, v10, s[{SW}:{SW+3}], s{ST} offen")
        A(f"buffer_load_dword v254, v9, s[{SW2}:{SW2+3}], s{ST} offen")
    stamp(2)
    cut("B")
    A(f"s_lshl_b32 s{ST}, s{S_RH}, 13")
    lds_b128_addrs(V_AX, ST, 16384, 2)
    A(f"v_bfe_u32 v9, v{V_LANE}, 4, 1")
    A(f"v_bfe_u32 v13, v{V_LANE}, 1, 1")
    A("v_lshl_add_u32 v10, v9, 1, v13")
    A(f"v_bfe_u32 v13, v{V_LANE}, 3, 1")
    A(f"v_xor_b32 v13, s{S_CH}, v13")
    A("v_lshl_add_u32 v9, v13, 2, v10")
    A("v_lshlrev_b32 v9, 4, v9")
    A(f"v_and_b32 v10, 1, v{V_LANE}")
    A("v_lshl_add_u32 v9, v10, 3, v9")
    A(f"v_bfe_u32 v14, v{V_LANE}, 2, 2")
    A(f"v_lshl_add_u32 v13, v{V_G}, 3, v14")
    A(f"v_lshl_add_u32 v{V_AT}, v13, 7, v9")
    A(f"v_add_u32 v{V_AT+1}, 0x10000, v{V_AT}")
    A(f"v_add_u32 v{V_AT+2}, 0x20000, v{V_AT}")
    if OPT.get("lateset", 1): A.cap = []
    srd(SW2, K_WO, 0x80000)
    common_setup("B")
    for p in range(1, 4): A(f"v_add_u32 v{V_OO+p}, {p*7168}, v{V_OO}")
    A(f"v_bfe_u32 v9, v{V_LANE}, 4, 1")
    A(f"v_bfe_u32 v13, v{V_LANE}, 1, 1")
    A("v_lshl_add_u32 v9, v9, 1, v13")
    A("v_lshlrev_b32 v9, 3, v9")
    A(f"v_bfe_u32 v13, v{V_LANE}, 2, 2")
    A(f"v_lshl_add_u32 v13, v{V_G}, 2, v13")
    A("v_lshl_add_u32 v9, v13, 5, v9")
    slin(ST, WPL, (S_WAVE, 1024))
    A(f"v_add_u32 v{V_WPO}, s{ST}, v9")
    if NS == 32: slin(ST, 0, (S_CG, 512), (S_CH, 256), (S_CHUNK, 2), (S_RH, 1))
    else:
        slin(ST, 0, (S_CG, 256), (S_CH, 128), (S_RH, 32), (S_CHUNK, 1))
    slin(P_P1O, WS_P1, (ST, SL))
    slin(ST, 0, (S_CG, 16), (S_CHUNK, 1))
    slin(P_P2O, WS_P2, (ST, SL))
    slin(P_P1G, WS_P1, (ST, NS * SL))
    for k in range(1, 4): A(f"s_add_u32 s{P_P1G+k}, s{P_P1G}, {8*k*SL}")
    slin(ST, 0, (S_CG, 16), (S_CH, 8))
    slin(P_P2G, WS_P2, (ST, SL))
    A(f"s_mov_b32 s{P_MSK}, 0xffffff00")
    slin(P_ACTW, WS_O, (S_CHUNK, 1 << 17), (S_CG, 1 << 14), (S_RH, 1 << 12), (S_CH, 1 << 11))
    A(f"s_add_u32 s{P_ACTW2}, s{P_ACTW}, 8192")
    slin(P_ACTR, WS_O, (S_CHUNK, 1 << 17), (S_MF, 8192), (S_WAVE, 2048))
    A(f"s_lshl_b32 s{S_M0W2}, s{S_WAVE}, 11")
    A(f"s_xor_b32 s{P_ACTR2}, s{P_ACTR}, 8192")
    clears = [f"buffer_store_dwordx4 {vr(T0+16,4)}, v{V_LIN}, s[{SWS}:{SWS+3}], s{P_ACTW+(k>>1)} offen offset:{(k&1)*1024} sc1" for k in range(4)]
    A(f"s_and_b32 s{ST}, s{S_TAG}, 0xff")
    A(f"v_mov_b32 v{V_TAG}, s{ST}")
    A(f"v_mov_b32 v11, s{S_TAG}")
    A(f"v_and_b32 v9, 1, v{V_N}")
    A("v_lshlrev_b32 v9, 4, v9")
    A("v_mov_b32 v13, 0x3f80")
    A("v_lshlrev_b32 v13, v9, v13")
    A(f"v_lshrrev_b32 v9, 1, v{V_N}")
    A(f"v_lshlrev_b32 v14, 3, v{V_G}")
    A("v_sub_u32 v9, v9, v14")
    for q in range(8):
        A(f"v_cmp_eq_u32 vcc, {q}, v9")
        A(f"v_cndmask_b32_e64 v{IDF+q}, 0, v13, vcc")
    A(f"v_and_b32 v9, 15, v{V_LANE}")
    A(f"v_cmp_gt_u32 vcc, {1 << (ZS-4)}, v9")
    A("v_lshlrev_b32 v9, 4, v9")
    A(f"v_lshl_add_u32 v13, v{V_G}, {ZS}, v9")
    A("v_add_u32 v13, 512, v13")
    A(f"v_lshl_add_u32 v9, v{V_G}, 8, v9")
    A(f"v_mov_b32 v14, {OOB:#x}")
    A("v_cndmask_b32 v13, v14, v13, vcc")
    A(f"v_cndmask_b32_e64 v{V_PB0}, v9, v13, s[{S_M16}:{S_M16+1}]")
    A(f"v_cndmask_b32_e64 v{V_PB1}, v13, v9, s[{S_M16}:{S_M16+1}]")
    A(f"v_cndmask_b32_e64 v13, v13, v14, s[{S_M16}:{S_M16+1}]")
    A(f"s_cmp_eq_u32 s{S_WAVE}, 0")
    A(f"s_cselect_b64 vcc, -1, 0")
    A(f"v_cndmask_b32 v{V_P2Z}, v14, v13, vcc")
    A(f"v_and_b32 v9, 7, v{V_LANE}")
    A(f"s_lshl_b32 s{ST}, s{S_WAVE}, 7")
    A(f"v_lshl_add_u32 v9, v9, 4, s{ST}")
    A(f"v_lshrrev_b32 v13, 3, v{V_LANE}")
    A(f"v_mul_u32_u24 v13, {SL}, v13")
    A(f"v_add_u32 v{V_G1}, v9, v13")
    A(f"v_cmp_gt_u32 vcc, 8, v{V_LANE}")
    A(f"v_and_b32 v13, {NS-1}, v{V_N}")
    A(f"v_mul_u32_u24 v{V_GZ}, {SL}, v13")
    if NS == 16:
        slin(ST, 3 * SLOT, (S_WAVE, 4096))
        A(f"v_add_u32 v{V_SW}, s{ST}, v{V_LIN}")
        A(f"v_xor_b32 v{V_SR}, 0x2000, v{V_SW}")
    A(f"v_lshl_add_u32 v{V_GZ}, v{V_G}, {ZS}, v{V_GZ}")
    A(f"v_cndmask_b32 v{V_P2}, v14, v9, vcc")
    A(f"v_bfe_u32 v9, v{V_N}, 2, 1")
    A("v_lshlrev_b32 v9, 3, v9")
    A(f"v_bfe_u32 v13, v{V_N}, 3, 1")
    A("v_lshl_add_u32 v9, v13, 2, v9")
    A(f"v_and_b32 v13, 3, v{V_N}")
    A("v_add_u32 v9, v9, v13")
    A(f"v_cndmask_b32_e64 v9, v9, 32, s[{S_M16}:{S_M16+1}]")
    A("v_lshlrev_b32 v9, 4, v9")
    A(f"v_mul_u32_u24 v13, {2*SL}, v{V_G}")
    A(f"v_add_u32 v{V_G2}, v9, v13")
    A("v_mov_b32 v9, 0x100")
    A(f"v_mov_b32 v13, {1 << ZS}")
    A(f"v_cndmask_b32_e64 v9, v9, v13, s[{S_M16}:{S_M16+1}]")
    A(f"v_add_u32 v{V_G2B}, v{V_G2}, v9")
    if OPT.get("prew", 1):
        for r in range(4): A(f"v_subrev_u32 v{T0+4+r}, 1, v{V_TAG}")
        A(f"buffer_store_dwordx4 {vr(T0+4,4)}, v{V_P2Z}, s[{SWS}:{SWS+3}], s{P_P2O} offen sc1")
        A(f"buffer_store_dwordx4 {vr(T0+4,4)}, v{V_P2}, s[{SWS}:{SWS+3}], s{P_P2O} offen sc1")
    A("v_mov_b32 v3, 0x3f803f80")
    A(f"v_bfe_u32 v4, v{V_LANE}, 2, 1")
    A("v_mul_u32_u24 v4, 0x8000, v4")
    A("v_lshl_or_b32 v4, v4, 16, v4")
    SET, A.cap = (A.cap or []), None
    LATEV = [x for x in SET if x.startswith("buffer_")]
    SET = [x for x in SET if not x.startswith("buffer_")]
    for _ in range(OPT.get("pset", 0)):
        if not SET or SET[0] == "@consts": break
        if SET[0].startswith(f"s_add_u32 s{S_TAG},"): A("s_waitcnt lgkmcnt(0)")
        A(SET.pop(0))
    while SET and (SET[0].startswith("s_addc") or SET[0].startswith("s_cselect")): A(SET.pop(0))
    if "@consts" in SET:
        k_ = SET.index("@consts")
        SET = SET[:k_] + ["@hold"] + SET[k_+1:]
    stamp(3)
    run(late)
    def trfrag(dst, ldsoff, kind="v"):
        s_, off = ldsoff >> 16, ldsoff & 0xffff
        return [f"ds_read_b64_tr_b16 {vr(dst+2*j,2,kind)}, v{V_AT+s_} offset:{off+j*512}" for j in range(2)]
    def rd(n):
        i, ks = n >> 2, n & 3
        slot, buf = i & 3, n & 1
        s2_, off = slot >> 1, (slot & 1) * SLOT
        x = [f"ds_read_b128 {ar(n*8+m*4,4)}, v{V_AX+4*s2_+ks} offset:{off+m*4096}" for m in range(2)]
        w = [trfrag(V_WF + buf * 8 + part * 4, slot * SLOT + part * 8192 + ks * 2048) for part in range(2)]
        return [x[0]] + w[0] + [x[1]] + w[1]
    def mm(n):
        buf = n & 1
        r = []
        for part, m in ((0, 0), (0, 1), (1, 0), (1, 1)):
            x, w = ar(n * 8 + m * 4, 4), vr(V_WF + buf * 8 + part * 4, 4)
            d = vr((KACC, VACC)[part] + 16 * m, 16)
            r.append(mf(d, w, x, d if n else "0") if part == 0 else mf(d, x, w, d if n else "0"))
        return r
    fill = []
    def on_step(n):
        i, ks = n >> 2, n & 3
        if ks == 0 and OPT.get("g1st") and i: stamp(16 + i)
        if ks == 0:
            if TCHM == 2 and i < 2: fill.append(touch(4 + 2 * i, V_T2))
            for st in SCHED[0].get(i, []): fill.extend(g1_pieces(st))
            if i == 5: fill.extend((LATEV + q_pieces(0)) if OPT.get('lvf', 0) else (q_pieces(0) + LATEV))
            if i == 6:
                fill.extend(q_pieces(1) if QE == 3 else o_pieces(0))
                if OPT.get("ptouch", 0):
                    fill.extend([f"buffer_load_dword v254, v{V_G1}, s[{SWS}:{SWS+3}], s{P_P1G+k} offen sc1" for k in range(4)])
                    fill.append(f"buffer_load_dword v254, v{V_GZ}, s[{SWS}:{SWS+3}], s{P_P1G} offen sc1")
                    fill.extend([f"buffer_load_dword v254, v{V_G2}, s[{SWS}:{SWS+3}], s{P_P2G} offen offset:{(hh*4+jp)*640} sc1" for hh in range(2) for jp in range(2)])
                    fill.append(lambda: rdy_load(254, 254))
            elif i == 7:
                fill.extend(o_pieces(0) if QE == 3 else o_pieces(1))
                fill.append(lambda: emit([f"v_xor_b32 v{WPH+r}, v4, v{WPH+r}" for r in range(4)]))
                fill.append(lambda: emit([f"v_xor_b32 v{WPH+r}, v4, v{WPH+r}" for r in range(4, 8)]))
        if n == OPT.get('wpn', 7):
            SET.extend([f"ds_read_b64_tr_b16 {vr(WPH+4*hh+2*j,2)}, v{V_WPO} offset:{hh*512+j*256}" for hh in range(2) for j in range(2)])
    A.wait_vm(tok[0])
    A("s_barrier")
    stamp(4)
    gemm_loop(32, rd, mm, lambda n: tok[n >> 2] if (n & 3) == 0 else None, (3, 3, 0, 0), lambda n: g1_gaps(n, (7,) if QE == 1 else ()), fill, on_step, end_barrier=True, extra=SET, nextra=lambda n, g: NX)
    assert not SET
    assert not fill
    stamp(5)
    if TCHM: srd(SOUT, 100, 0x800000)
    def feat(acc):
        for m in range(2):
            for u in range(8):
                A(f"v_cvt_pk_bf16_f32 v{acc+16*m+u}, v{acc+16*m+2*u}, v{acc+16*m+2*u+1}")
            for hh in range(2):
                A(mf(vr(PK + (m * 2 + hh) * 16, 16), vr(WPH + 4 * hh, 4), vr(acc + 16 * m + 4 * hh, 4), "0"))
    def softmax_l(x, dst):
        mx, sm = T0, T0 + 2
        l = [f"v_max3_f32 v{mx}, v{x}, v{x+1}, v{x+2}"]
        for u in range(3, 15, 2):
            l.append(f"v_max3_f32 v{mx}, v{mx}, v{x+u}, v{x+u+1}")
        l.append(f"v_max_f32 v{mx}, v{mx}, v{x+15}")
        l.append(f"v_mul_f32 v{mx}, s{S_L2E}, v{mx}")
        for u in range(8):
            l.append(f"v_pk_fma_f32 {vr(x+2*u,2)}, {vr(x+2*u,2)}, s[{S_L2E}:{S_L2E+1}], {vr(mx,2)} op_sel_hi:[1,1,0] neg_lo:[0,0,1] neg_hi:[0,0,1]")
        for u in range(16):
            l.append(f"v_exp_f32 v{x+u}, v{x+u}")
        l.append(f"v_pk_add_f32 {vr(sm,2)}, {vr(x,2)}, {vr(x+2,2)}")
        for u in range(2, 8):
            l.append(f"v_pk_add_f32 {vr(sm,2)}, {vr(sm,2)}, {vr(x+2*u,2)}")
        l.append(f"v_add_f32 v{sm}, v{sm}, v{sm+1}")
        l.append(f"v_rcp_f32 v{sm}, v{sm}")
        for u in range(8):
            l.append(f"v_pk_mul_f32 {vr(x+2*u,2)}, {vr(x+2*u,2)}, {vr(sm,2)} op_sel_hi:[1,0]")
        for u in range(8):
            l.append(f"v_cvt_pk_bf16_f32 v{dst+u}, v{x+2*u}, v{x+2*u+1}")
        return l
    feat(KACC)
    for m in range(2):
        for u in range(8):
            A(f"v_cvt_pk_bf16_f32 v{VACC+16*m+u}, v{VACC+16*m+2*u}, v{VACC+16*m+2*u+1}")
    for m in range(2):
        for u in range(8):
            A(f"v_cndmask_b32_e64 v{VACC+16*m+8+u}, v3, v{VACC+16*m+u}, s[{S_M16}:{S_M16+1}]")
            A(f"v_cndmask_b32_e64 v{VACC+16*m+u}, v{VACC+16*m+u}, v3, s[{S_M16}:{S_M16+1}]")
    nbstamp(0)
    PH = [KACC + 8, KACC + 24]
    ID = T0 + 8
    def tmm(blk):
        d = vr(PK + 16 * blk, 16)
        return [mf(d, vr(PH[blk & 1] + 4 * jp, 4), vr(ID + 4 * jp, 4), d if jp else "0") for jp in range(2)]
    def tcvt(blk):
        t = PK + 16 * blk
        return [f"v_cvt_pk_bf16_f32 v{t+u}, v{t+2*u}, v{t+2*u+1}" for u in range(8)]
    def kvmm(blk):
        m, hh = blk >> 1, blk & 1
        d = vr(KV + 16 * hh, 16)
        return [mf(d, vr(PK + 16 * blk + 4 * mm_, 4), vr(VACC + 16 * m + 8 * hh + 4 * mm_, 4), d if (m or mm_) else "0") for mm_ in range(2)]
    for blk in range(4):
        l = softmax_l(PK + blk * 16, PH[blk & 1])
        if blk:
            t, kv = tmm(blk - 1), kvmm(blk - 1)
            qp = q_pieces(blk) if not QE else (q_pieces(blk + 1) if blk < 3 else o_pieces(1))
            l = l[:17] + [t[0], qp[0]] + l[17:21] + [t[1], qp[1]] + l[21:33] + tcvt(blk - 1) + l[33:50] + [kv[0], qp[2]] + l[50:58] + [kv[1], qp[3]]
        run([x for x in l if x is not None])
        nbstamp(1 + blk)
    TS = 4 if OPT.get("tag1", 1) else 1
    def tagit(r, n):
        for e in range(0, n, TS):
            A(f"v_and_or_b32 v{r+e}, v{r+e}, s{P_MSK}, v{V_TAG}")
    def pub(hh, oc):
        A(f"s_add_u32 s{ST+3}, s{P_P1O}, {(hh*4+oc)*32*SL}")
        A(f"buffer_store_dwordx4 {vr(KV+16*hh+4*oc,4)}, v{V_PB0+hh}, s[{SWS}:{SWS+3}], s{ST+3} offen sc1")
    if NS == 32:
        emit(tmm(3))
        tagit(KV, 16)
        pub(0, 0); pub(0, 1)
        emit(tcvt(3))
        emit(kvmm(3))
        nbstamp(5)
        pub(0, 2); pub(0, 3)
        tagit(KV + 16, 16)
        for oc in range(4): pub(1, oc)
    else:
        RB = PK
        def tail(rh):
            keep, send = 8 * rh, 8 - 8 * rh
            emit(tmm(3))
            for u in range(2): A(f"ds_write_b128 v{V_SW}, {vr(KV+send+4*u,4)} offset:{u*1024}")
            emit(tcvt(3))
            emit(kvmm(3))
            for u in range(2): A(f"ds_write_b128 v{V_SW}, {vr(KV+16+send+4*u,4)} offset:{(2+u)*1024}")
            A("s_waitcnt lgkmcnt(0)")
            A("s_barrier")
            for u in range(4): A(f"ds_read_b128 {vr(RB+4*u,4)}, v{V_SR} offset:{u*1024}")
            for hh in range(2):
                for jj in range(2):
                    r = KV + 16 * hh + keep + 4 * jj
                    A(f"s_add_u32 s{ST+3}, s{P_P1O}, {(hh*4+jj)*16*SL}")
                    A(f"s_waitcnt lgkmcnt({3-2*hh-jj})")
                    for u in range(2):
                        A(f"v_pk_add_f32 {vr(r+2*u,2)}, {vr(r+2*u,2)}, {vr(RB+8*hh+4*jj+2*u,2)}")
                    tagit(r, 4)
                    A(f"buffer_store_dwordx4 {vr(r,4)}, v{V_PB0+hh}, s[{SWS}:{SWS+3}], s{ST+3} offen sc1")
        l1, l2 = lab("rh1"), lab("rhj")
        A(f"s_cmp_lg_u32 s{S_RH}, 0")
        A(f"s_cbranch_scc1 {l1}")
        st_ = (A.vm, A.lg, list(A.hist))
        tail(0)
        A(f"s_branch {l2}")
        A.label(l1)
        A.vm, A.lg, A.hist = st_[0], st_[1], list(st_[2])
        tail(1)
        A.label(l2)
    QACC = KACC
    def qaddr(n):
        i, ks = n >> 2, n & 3
        return QSLOT[i >> 2] * SLOT + (i & 3) * 8192 + ks * 2048
    def rdq(n):
        return trfrag(V_WF + (n & 1) * 8, qaddr(2 * n)) + trfrag(V_WF + (n & 1) * 8 + 4, qaddr(2 * n + 1))
    def mmq(n):
        r = []
        for h in range(2):
            for m in range(2):
                d = vr(QACC + 16 * m, 16)
                r.append(mf(d, vr(V_WF + (n & 1) * 8 + 4 * h, 4), ar((2 * n + h) * 8 + m * 4, 4), d if (n or h) else "0"))
        if n == 15: r = [r[0], r[2], r[1], r[3]]
        return r
    stamp(6)
    nbflush()
    GD = VACC
    GZ = GD + 16
    g1l = [f"buffer_load_dwordx4 {vr(GD+4*k,4)}, v{V_G1}, s[{SWS}:{SWS+3}], s{P_P1G+k} offen sc1" for k in range(NS // 8)]
    g1l.append(f"buffer_load_dwordx4 {vr(GZ,4)}, v{V_GZ}, s[{SWS}:{SWS+3}], s{P_P1G} offen offset:512 sc1")
    S_D1, S_RET = P0 + 11, ST + 6
    A(f"s_mov_b32 s{S_D1}, 0")
    def try1a(block=False):
        skip = lab("sk")
        if block:
            A(f"s_cmp_lg_u32 s{S_D1}, 0")
        else:
            A(f"s_getreg_b32 s{ST+5}, hwreg(HW_REG_IB_STS, 0, 4)")
            A(f"s_or_b32 s{ST+5}, s{ST+5}, s{S_D1}")
        A(f"s_cbranch_scc1 {skip}")
        A(f"s_call_b64 s[{S_RET}:{S_RET+1}], L_try1a")
        A.label(skip)
    def sub_try1a():
        A.label("L_try1a")
        A.hist = []
        A("s_waitcnt vmcnt(0)")
        A(f"v_xor_b32 v13, v{GD}, v{V_TAG}")
        for s in [x for x in range(TS, 20, TS) if x < NS // 2 or x >= 16]:
            A(f"v_bitop3_b32 v13, v{GD+s}, v{V_TAG}, v13 bitop3:0xbe")
        A("v_and_b32 v13, 0xff, v13")
        A(f"v_cmp_ne_u32 s[{S_FAIL}:{S_FAIL+1}], 0, v13")
        A(f"s_cmp_eq_u64 s[{S_FAIL}:{S_FAIL+1}], 0")
        A("s_cbranch_scc1 L_try1a_ok")
        emit(g1l)
        A(f"s_setpc_b64 s[{S_RET}:{S_RET+1}]")
        A.label("L_try1a_ok")
        DPP = "row_mask:0xf bank_mask:0xf"
        A(f"v_permlane16_swap_b32 v{GZ}, v{GZ+2}")
        A(f"v_permlane16_swap_b32 v{GZ+1}, v{GZ+3}")
        if NS == 32:
            for u in range(0, 8, 2):
                A(f"v_pk_add_f32 {vr(GD+u,2)}, {vr(GD+u,2)}, {vr(GD+8+u,2)}")
            A(f"v_pk_add_f32 {vr(GZ,2)}, {vr(GZ,2)}, {vr(GZ+2,2)}")
        for u in range(0, 4, 2):
            A(f"v_pk_add_f32 {vr(GD+u,2)}, {vr(GD+u,2)}, {vr(GD+4+u,2)}")
        def zror(k):
            for e in range(2): A(f"v_add_f32_dpp v{GZ+e}, v{GZ+e}, v{GZ+e} row_ror:{k} {DPP}")
        zror(1)
        A(f"v_permlane32_swap_b32 v{GD}, v{GD+1}")
        A(f"v_permlane32_swap_b32 v{GD+2}, v{GD+3}")
        zror(2)
        A(f"v_add_f32 v{GD}, v{GD}, v{GD+1}")
        A(f"v_add_f32 v{GD+2}, v{GD+2}, v{GD+3}")
        zror(4)
        A(f"v_permlane16_swap_b32 v{GD}, v{GD+2}")
        A(f"v_add_f32 v{GD}, v{GD}, v{GD+2}")
        zror(8)
        A(f"v_add_f32_dpp v{GD}, v{GD}, v{GD} row_ror:8 {DPP}")
        for e in range(2): A(f"v_and_or_b32 v{GZ+e}, v{GZ+e}, s{P_MSK}, v{V_TAG}")
        A(f"v_and_or_b32 v{GD}, v{GD}, s{P_MSK}, v{V_TAG}")
        for e in range(2): A(f"v_mov_b32 v{GZ+2+e}, v{GZ+e}")
        A(f"v_mov_b32 v{GD+1}, v{GD}")
        A(f"v_permlane16_swap_b32 v{GZ}, v{GZ+2}")
        A(f"v_permlane16_swap_b32 v{GZ+1}, v{GZ+3}")
        A(f"v_permlane32_swap_b32 v{GD}, v{GD+1}")
        A(f"buffer_store_dwordx4 {vr(GZ,4)}, v{V_P2Z}, s[{SWS}:{SWS+3}], s{P_P2O} offen sc1")
        A(f"v_mov_b32 v{GD+2}, v{GD}")
        A(f"v_mov_b32 v{GD+3}, v{GD+1}")
        A(f"v_permlane16_swap_b32 v{GD}, v{GD+2}")
        A(f"v_permlane16_swap_b32 v{GD+1}, v{GD+3}")
        A(f"buffer_store_dwordx4 {vr(GD,4)}, v{V_P2}, s[{SWS}:{SWS+3}], s{P_P2O} offen sc1")
        stamp(8)
        A(f"s_mov_b32 s{S_D1}, 1")
        A(f"s_setpc_b64 s[{S_RET}:{S_RET+1}]")
    DEFER.append(sub_try1a)
    fill = []
    G1AT = OPT.get('g1at', 6)
    def on_stepq(n):
        if n == 0: fill.extend((o_pieces(1) if QE == 1 else (q_pieces(2) + q_pieces(3) if QE == 2 else [])) + o_pieces(2) + o_pieces(3) + [lambda: (rdy_load(14), tok.__setitem__('wo', A.vm))])
        if n == G1AT: fill.extend(g1l + [None])
        if n >= G1AT + 4: fill.extend([None, try1a])
    if QE == 2:
        run(q_pieces(1))
        A.wait_vm(tok[("q", 0)])
        qb = lambda n: tok[("q", n >> 2)] if n in (4, 8, 12) else None
    else:
        A.wait_vm(tok[("q", 3)])
        qb = lambda n: None
    A("s_barrier")
    stamp(26)
    gemm_loop(16, rdq, mmq, qb, (2, 2, 0, 0), lambda n: (0, 1, 2, 3) if (QE == 2 and n < 2) else (2, 3), fill, on_stepq)
    assert not fill
    stamp(7)
    feat(QACC)
    def wait1a():
        top, done = lab("w1a"), lab("w1d")
        A(f"s_mov_b32 s{S_CNT}, {SPIN_LIMIT}")
        A.label(top)
        try1a(block=True)
        A(f"s_cmp_lg_u32 s{S_D1}, 0")
        A(f"s_cbranch_scc1 {done}")
        A(f"s_sub_u32 s{S_CNT}, s{S_CNT}, 1")
        A(f"s_cbranch_scc0 {top}")
        A.label(done)
    B1 = OPT.get("blk1a", 0)
    if B1 == 0: wait1a()
    S_D2 = ST + 4
    A(f"s_mov_b32 s{S_D2}, 0")
    PHQ = KV
    FD = PK
    def loads2(rdy=True):
        for hh in range(2):
            for jp in range(2):
                r = FD + (hh * 2 + jp) * 8
                off = (hh * 4 + jp) * SL
                A(f"buffer_load_dwordx4 {vr(r,4)}, v{V_G2}, s[{SWS}:{SWS+3}], s{P_P2G} offen offset:{off} sc1")
                A(f"buffer_load_dwordx4 {vr(r+4,4)}, v{V_G2B}, s[{SWS}:{SWS+3}], s{P_P2G} offen offset:{off} sc1")
        if rdy: rdy_load(14)
    def check2():
        A(f"v_xor_b32 v13, v{FD}, v{V_TAG}")
        for s in range(1, 32):
            A(f"v_bitop3_b32 v13, v{FD+s}, v{V_TAG}, v13 bitop3:0xbe")
        rdy_check(9, 14)
        A("v_and_b32 v13, 0xff, v13")
        A("v_or_b32 v13, v13, v9")
        A(f"v_cmp_ne_u32 s[{S_FAIL}:{S_FAIL+1}], 0, v13")
    for blk in range(4):
        if blk == OPT.get("l2at", 3): loads2(False)
        emit(softmax_l(PK + blk * 16, PHQ + 8 * blk))
        if blk + 1 == B1: wait1a()
    A("s_barrier")
    stamp(9)
    KVF = VACC + 16
    ODR = [KACC, KACC + 16, PK + 32, PK + 48]
    A(f"s_lshl_b32 s{ST+5}, s{S_RH}, 12")
    A(f"v_add_u32 v{V_AX}, s{ST+5}, v{V_LIN}")
    A(f"v_add_u32 v{V_AX+1}, 0x10000, v{V_AX}")
    A(f"v_add_u32 v{V_AX+2}, 0x20000, v{V_AX}")
    slin(ST + 5, 3 * SLOT, (S_MF, 8192), (S_M0W2, 1))
    A(f"v_add_u32 v{V_AX+3}, s{ST+5}, v{V_LIN}")
    A(f"v_xor_b32 v{V_AX+4}, 0x2000, v{V_AX+3}")
    wor = []
    for n in range(32):
        wor += trfrag(n * 4, OLDS[n >> 2] + (n & 3) * 2048, "a")
    NW = OPT.get('nw', 8)
    emit(wor[:NW])
    def check2m():
        chk = [f"v_xor_b32 v13, v{FD}, v{V_TAG}"] + [f"v_bitop3_b32 v13, v{FD+s}, v{V_TAG}, v13 bitop3:0xbe" for s in range(TS, 32, TS)]
        for hh in range(2):
            for q in (2 * hh, 2 * hh + 1):
                for u in range(4):
                    A(f"v_cvt_pk_bf16_f32 v{KVF+4*q+u}, v{FD+8*q+2*u}, v{FD+8*q+2*u+1}")
            for m in range(2):
                blk = 2 * m + hh
                d = vr(ODR[blk], 16)
                for jp in range(2):
                    A(mf(d, vr(KVF + (hh * 2 + jp) * 4, 4), vr(PHQ + 8 * blk + 4 * jp, 4), d if jp else "0"))
                    k = 3 if hh == 0 else 5
                    emit(chk[:k]); chk = chk[k:]
        assert not chk
        rdy_check(9, 14)
        A("v_and_b32 v13, 0xff, v13")
        A("v_or_b32 v13, v13, v9")
        A(f"v_cmp_ne_u32 s[{S_FAIL}:{S_FAIL+1}], 0, v13")
    poll_pre(loads2, check2m)
    stamp(10)
    A("s_nop 2")
    for blk in (0, 2, 1, 3):
        m, hh = blk >> 1, blk & 1
        o = ODR[blk]
        A(f"v_add_f32 v{o+8}, 0x358637bd, v{o+8}")
        A(f"v_rcp_f32 v{o+8}, v{o+8}")
        for u in range(4):
            A(f"v_pk_mul_f32 {vr(o+2*u,2)}, {vr(o+2*u,2)}, {vr(o+8,2)} op_sel_hi:[1,0]")
        for u in range(4):
            A(f"v_cvt_pk_bf16_f32 v{o+12+u}, v{o+2*u}, v{o+2*u+1}")
        A(f"buffer_store_dwordx4 {vr(o+12,4)}, v{V_LIN}, s[{SWS}:{SWS+3}], s{P_ACTW+m} offen offset:{hh*1024} sc1")
    tok_o = A.vm
    xcc_decide(14)
    for blk in range(4):
        A(f"ds_write_b128 v{V_AX+3+(blk>>1)}, {vr(ODR[blk]+12,4)} offset:{(blk&1)*1024}")
    stamp(11)
    ELDS = [(3, 4, 0, 1)[e >> 2] * SLOT + (e & 3) * 8192 for e in range(16)]
    def of_pieces(e):
        pos, ph = SEQ[e]
        def p0():
            A(f"s_add_u32 m0, s{S_M0W2}, {ELDS[e]:#x}")
            A(f"s_lshl_b32 s{ST+8}, s{KAP[pos]}, 14")
            A(f"s_add_u32 s{ST+8}, s{ST+8}, s{P_ACTR+ph}")
            A(f"buffer_load_dwordx4 v{V_LIN}, s[{SWS}:{SWS+3}], s{ST+8} offen {PLF}lds")
        def p1():
            A(f"buffer_load_dwordx4 v{V_LIN}, s[{SWS}:{SWS+3}], s{ST+8} offen offset:1024 {PLF}lds")
            tok[("of", e)] = A.vm
        return [p0, p1]
    OF = PK
    OACC = VACC
    def rd4(n):
        return [f"ds_read_b128 {vr(OF+(n&1)*16+h*4,4)}, v{V_AX+(ELDS[n]>>16)} offset:{(ELDS[n]&0xffff)+h*1024}" for h in range(4)]
    def mm4(n):
        pos, ph = SEQ[n]
        d = vr(OACC + 16 * ph, 16)
        return [mf(d, vr(OF + (n & 1) * 16 + h * 4, 4), ar((4 * pos + h) * 4, 4), d if (pos or h) else "0") for h in range(4)]
    A("s_waitcnt lgkmcnt(0)")
    A("s_barrier")
    wf = wor[NW:]
    def two():
        for _ in range(2): A(wf.pop(0))
    gemm_loop(2, rd4, mm4, lambda n: None, (2, 2, 0, 0), (2, 3), [two] * 4)
    emit(wf[:16]); wf = wf[16:]
    A.wait_vm(tok_o)
    flag_store()
    emit(wf)
    flag_poll()
    stamp(12)
    for e in range(2, 7): run(of_pieces(e))
    fill = []
    def on_step4(n):
        if OPT.get("g2st") and n in (4, 7, 10, 13): stamp(16 + n // 3)
        if n == 2:
            for e in range(7, 16): fill.extend(of_pieces(e))
        if n == 10: fill.extend(out_stores(OACC, 0))
    A.wait_both(tok[("of", 3)], A.lg)
    A("s_barrier")
    stamp(13)
    BND = {4: 6, 7: 9, 10: 12, 13: 15}
    gemm_loop(16, rd4, mm4, lambda n: tok[("of", BND[n])] if n in BND else None, (2, 2, 0, 0),
              lambda n: (1, 2, 3) if n >= 10 else (0, 1, 2, 3), fill, on_step4, start=2)
    assert not fill
    stamp(14)
    run(out_stores(OACC, 1))
    tag_update("B")
    stamp(15)
    finish()

prologue()
vm0, lg0 = A.vm, A.lg
role_A()
for f in DEFER: f()
DEFER.clear()
A.label("L_roleB")
ROLE[0] = "B"
A.vm, A.lg = vm0, lg0
A.hist = []
role_B()
for f in DEFER: f()
A.label("L_end")
A("s_endpgm")

iB = A.out.index("L_roleB:")
iE = A.out.index("L_end:")
if OPT.get("bfirst", 1):
    lines = A.out[:CUT["P"]] + A.out[iB:CUT["B"]] + A.out[CUT["P"]:CUT["A"]] + A.out[CUT["B"]:iE] + A.out[CUT["A"]:iB] + A.out[iE:]
else:
    lines = A.out[:CUT["A"]] + A.out[iB:CUT["B"]] + A.out[CUT["A"]:iB] + A.out[CUT["B"]:]
if OPT["align"]:
    lines, nw, nn = align(lines, min_nop=OPT.get('minnop', 12))
    print("align: widened", nw, "nops", nn)
HEAD = open("cdna_kernels/" + NAME + ".s.ref").read().split("; Override launch geometry")[0]
src = HEAD + f"""; @launch grid=(256,1,1) block=(256,1,1) lds=163840
.amdgcn_target "amdgcn-amd-amdhsa--gfx950"
.text
.globl {NAME}_kernel
.p2align 8
.type {NAME}_kernel,@function
{NAME}_kernel:
""" + "\n".join(lines) + f"""
.fill 8192, 4, 0xBF810000
.section .rodata,"a"
.p2align 6
.amdhsa_kernel {NAME}_kernel
  .amdhsa_next_free_vgpr 512
  .amdhsa_next_free_sgpr 102
  .amdhsa_accum_offset 256
  .amdhsa_group_segment_fixed_size 0
  .amdhsa_kernarg_size 128
  .amdhsa_user_sgpr_count 2
  .amdhsa_user_sgpr_kernarg_segment_ptr 1
  .amdhsa_system_sgpr_workgroup_id_x 1
.end_amdhsa_kernel
"""
open(sys.argv[1], "w").write(src)
print("hazard nops:", A.nnop, "lines:", len(lines))
```

```python
import sys
from dsl import Asm, vr, ar, sr
from align import align

NAME = "concat_heads__ssm_conv_s5__linear_kernel_hedgehog__prompt"
OPT = dict(stamps=False, rotmode=2, align=1, xnt=0, hwait=8, owait=4, hand=0)
for a_ in sys.argv[2:]:
    k_, _, v_ = a_.partition("=")
    OPT[k_] = int(v_) if v_ else True

WS_TAGA, WS_TAGB = 0x0, 0x80
WS_XCC = 0x8000
WS_FLAG = 0x2000
WS_SA = 0x10000
WS_P1 = 0x100000
WS_P2 = 0x3C0000
WS_H = 0x400000
WS_O = 0x800000
WS_STAMP = 0xA00000
OOB = 0x40000000
SPIN_LIMIT = 1 << 14
LOG2E = 0x3FB8AA3B
INV2PI = 0x3E22F983

S_WAVE, S_CHUNK, S_CG, S_ROT, S_TAG = 3, 4, 5, 6, 7
SX, SW, SW2, SWS, SOUT = 8, 12, 16, 20, 24
S_RH, S_CH, S_SLOT, S_GRP = 28, 29, 30, 31
ST = 32
S_M0W, S_M0W2 = 48, 49
S_MG = 50
S_MRH = 52
S_L2E = 54
S_CNT = 56
S_FAIL = 58
S_M16 = 60
S_SM0, S_RS = 62, 63
S_XW, S_SLOW, P_FLW = 91, 92, 93
S_ROT1 = 47
KAP = [62, 63, 44, 45, 86, 87, 94, 95]
SEQ = [(0, 0), (0, 1)] + [(j, 0) for j in range(1, 8)] + [(j, 1) for j in range(1, 8)]
HAND = OPT['hand']
KA = 64
K_AX, K_LRE, K_LIM, K_BRE, K_BIM, K_CRE, K_CIM, K_LDT, K_DSK, K_BX, K_WQKV, K_WPHI, K_WO, K_OUT, K_DBG, K_WS = [KA + 2 * i for i in range(16)]
P_FLAGB, P_FLAGO, P_XCCB, P_TAGSEL, P_OUT, P_OUT2, P_ACTR, P_ACTR2 = range(64, 72)
P_ACTW, P_ACTW2, S_MF = 88, 89, 90
P0 = 72
S_STAMP = 96
V_LANE, V_OUTO, V_N, V_G, V_LIN, V_TAG, V_L0, V_CHK, V_XPO = 1, 2, 5, 6, 7, 8, 10, 12, 15
V_OX, V_OW = 16, 20
SLOT = 32768

A = Asm()
CUT = {}
nlab = [0]

def srd(dst, ptr, nbytes):
    A(f"s_mov_b32 s{dst}, s{ptr}")
    A(f"s_mov_b32 s{dst+1}, s{ptr+1}")
    A(f"s_mov_b32 s{dst+2}, {nbytes:#x}")
    A(f"s_mov_b32 s{dst+3}, 0x20000")

def slin(dst, const, *terms):
    first = True
    for reg, mul in terms:
        t = dst if first else ST + 14
        if mul == 1:
            if first: A(f"s_mov_b32 s{dst}, s{reg}")
            else: t = reg
        elif mul & (mul - 1) == 0: A(f"s_lshl_b32 s{t}, s{reg}, {mul.bit_length()-1}")
        else: A(f"s_mul_i32 s{t}, s{reg}, {mul}")
        if not first: A(f"s_add_u32 s{dst}, s{dst}, s{t}")
        first = False
    if const: A(f"s_add_u32 s{dst}, s{dst}, {const:#x}")

ROLE = ["A"]
def stamp(idx):
    if OPT.get("probe") == idx + (0 if ROLE[0] == "A" else 100):
        if OPT.get("cyc"):
            A("s_memtime s[96:97]")
            A("s_waitcnt lgkmcnt(0)")
            A("s_sub_u32 s99, s96, s98")
            A("s_lshr_b32 s99, s99, 4")
        else:
            A("s_memrealtime s[96:97]")
            A("s_waitcnt lgkmcnt(0)")
            A("s_sub_u32 s99, s96, s100")
    if not OPT["stamps"]: return
    A(f"s_memtime s[{S_STAMP}:{S_STAMP+1}]")
    A("s_waitcnt lgkmcnt(0)")
    A(f"s_sub_u32 s{S_STAMP}, s{S_STAMP}, s98")
    A(f"v_writelane_b32 v255, s{S_STAMP}, {idx}")
    if OPT.get("rt") and idx <= 16:
        A(f"s_memrealtime s[{S_STAMP}:{S_STAMP+1}]")
        A("s_waitcnt lgkmcnt(0)")
        A(f"s_sub_u32 s{S_STAMP}, s{S_STAMP}, s100")
        A(f"v_writelane_b32 v255, s{S_STAMP}, {idx+44}")

NB = [32, 36, 38, 42, 58, 56]
nbuse = []
def nbstamp(k):
    if OPT.get("nb") and OPT["stamps"]:
        A(f"s_memtime s[{NB[k]}:{NB[k]+1}]"); nbuse.append(k)
def nbflush():
    if OPT.get("nb") and OPT["stamps"]:
        A("s_waitcnt lgkmcnt(0)")
        for k in nbuse:
            A(f"s_sub_u32 s{NB[k]}, s{NB[k]}, s98")
            A(f"v_writelane_b32 v255, s{NB[k]}, {17+k}")
        nbuse.clear()

def lab(n):
    nlab[0] += 1
    return f"L_{n}_{nlab[0]}"

def finish():
    if OPT.get("probe") and (OPT["probe"] >= 100) == (ROLE[0] == "B"):
        if OPT["probe"] % 100 == 16:
            A("s_waitcnt vmcnt(0)")
            stamp(16)
        l = lab("pr")
        A("s_lshl_b32 s99, s99, 1")
        A("s_add_u32 s99, s99, 2500")
        A.label(l)
        A("s_memrealtime s[96:97]")
        A("s_waitcnt lgkmcnt(0)")
        A("s_sub_u32 s96, s96, s100")
        A("s_cmp_lt_u32 s96, s99")
        A(f"s_cbranch_scc1 {l}")
    if OPT.get("fixrt"):
        l = lab("rt")
        A.label(l)
        A("s_memrealtime s[96:97]")
        A("s_waitcnt lgkmcnt(0)")
        A("s_sub_u32 s96, s96, s100")
        A(f"s_cmp_lt_u32 s96, {OPT['fixrt']}")
        A(f"s_cbranch_scc1 {l}")
    if OPT["stamps"]:
        A("s_waitcnt vmcnt(0)")
        stamp(16)
        A("v_writelane_b32 v255, s99, 30")
        A("s_memrealtime s[96:97]")
        A("v_writelane_b32 v255, s100, 40")
        A("s_waitcnt lgkmcnt(0)")
        A("v_writelane_b32 v255, s96, 41")
        slin(ST, WS_STAMP, (2, 1024), (S_WAVE, 256))
        A(f"v_lshlrev_b32 v254, 2, v{V_LANE}")
        A(f"buffer_store_dword v255, v254, s[{SWS}:{SWS+3}], s{ST} offen")
    A("s_endpgm")

def mf(d, a, b, c):
    return f"v_mfma_f32_32x32x16_bf16 {d}, {a}, {b}, {c}"

def poll(loads, check):
    top, done = lab("poll"), lab("ok")
    A(f"s_mov_b32 s{S_CNT}, {SPIN_LIMIT}")
    A.label(top)
    loads()
    A("s_waitcnt vmcnt(0)")
    check()
    A(f"s_cmp_eq_u64 s[{S_FAIL}:{S_FAIL+1}], 0")
    A(f"s_cbranch_scc1 {done}")
    A(f"s_sub_u32 s{S_CNT}, s{S_CNT}, 1")
    A(f"s_cbranch_scc0 {top}")
    A.label(done)

def poll_pre(loads, check):
    top, done = lab("poll"), lab("ok")
    A(f"s_mov_b32 s{S_CNT}, {SPIN_LIMIT}")
    A.label(top)
    A("s_waitcnt vmcnt(0)")
    check()
    A(f"s_cmp_eq_u64 s[{S_FAIL}:{S_FAIL+1}], 0")
    A(f"s_cbranch_scc1 {done}")
    loads()
    A(f"s_sub_u32 s{S_CNT}, s{S_CNT}, 1")
    A(f"s_cbranch_scc0 {top}")
    A("s_waitcnt vmcnt(0)")
    A.label(done)

def cfma_l(d, a, b, c, t):
    return [f"v_pk_fma_f32 {vr(t,2)}, {vr(a,2)}, {vr(b,2)}, {vr(c,2)} op_sel:[1,1,0] op_sel_hi:[1,0,1] neg_lo:[1,0,0]",
            f"v_pk_fma_f32 {vr(d,2)}, {vr(a,2)}, {vr(b,2)}, {vr(t,2)} op_sel:[0,0,0] op_sel_hi:[0,1,1]"]
def cmul_l(d, a, b, t):
    return [f"v_pk_mul_f32 {vr(t,2)}, {vr(a,2)}, {vr(b,2)} op_sel:[1,1] op_sel_hi:[1,0] neg_lo:[1,0]",
            f"v_pk_fma_f32 {vr(d,2)}, {vr(a,2)}, {vr(b,2)}, {vr(t,2)} op_sel:[0,0,0] op_sel_hi:[0,1,1]"]
def emit(l):
    for x in l: A(x)
def cfma(*a): emit(cfma_l(*a))
def cmul(*a): emit(cmul_l(*a))

def weave(main, fillers, every, start=0):
    for i, x in enumerate(main):
        A(x)
        if i >= start and (i - start) % every == every - 1 and fillers:
            f = fillers.pop(0)
            if isinstance(f, str): A(f)
            elif f: f()

def gemm_loop(nsteps, reads, mfmas, boundary, split, fill_gaps, fillers, on_step=None, end_barrier=False, verify=None, start=0, extra=None, nextra=None, hook=None):
    for r in reads(start): A(r)
    for n in range(start, nsteps):
        if on_step: on_step(n)
        last = n == nsteps - 1
        b = None if last else boundary(n + 1)
        b2 = boundary(n + 2) if (verify and n + 2 < nsteps) else None
        if b2 is not None: A.wait_both(b2, A.lg)
        elif b is not None and not verify: A.wait_both(b, A.lg)
        else: A("s_waitcnt lgkmcnt(0)")
        if b is not None and verify: verify(n + 1)[1]()
        rs = [] if last else list(reads(n + 1))
        ms = mfmas(n)
        for g in range(4):
            A(ms[g])
            if g == 0 and b2 is not None: verify(n + 2)[0]()
            if g == 0 and b is not None and verify: verify(n + 1)[2]()
            if g == 0 and (b is not None or (last and end_barrier)): A("s_barrier")
            for _ in range(split[g]):
                if rs: A(rs.pop(0))
            if hook and g == 1: hook.pop(0)()
            if g in (fill_gaps(n) if callable(fill_gaps) else fill_gaps) and fillers:
                f = fillers.pop(0)
                if isinstance(f, str): A(f)
                elif f: f()
            if extra:
                k = nextra(n, g) if not extra[0].startswith('ds_') else (2 if g == 2 else 0)
                while extra and k > 0:
                    if extra[0] == "@hold":
                        if n < 3: break
                        extra.pop(0); continue
                    x = extra.pop(0); A(x); k -= 1
                    if x.startswith("s_cmp") and k == 0: k = 1
        assert not rs

def dma_pieces(voff, srdreg, soff, ldsoff, pre=None, post=None, flags="", m0reg=S_M0W, same_v=False):
    def mk(p):
        def f():
            if p == 0:
                A(f"s_add_u32 m0, s{m0reg}, {ldsoff:#x}")
                if pre: pre()
            A(f"buffer_load_dwordx4 v{voff if same_v else voff+p}, s[{srdreg}:{srdreg+3}], s{soff} offen offset:{p*1024} {flags}lds")
            if p == 3 and post: post()
        return f
    return [mk(p) for p in range(4)]

def run(fs):
    for f in fs:
        if isinstance(f, str): A(f)
        else: f()

def rot_soff(dst, add, shift=None, mul=None, extra_sreg=None, plus=None, rot=S_ROT):
    A(f"s_add_u32 s{dst}, s{rot}, {add}")
    if extra_sreg is not None: A(f"s_add_u32 s{dst}, s{dst}, s{extra_sreg}")
    A(f"s_and_b32 s{dst}, s{dst}, 7")
    if shift is not None: A(f"s_lshl_b32 s{dst}, s{dst}, {shift}")
    else: A(f"s_mul_i32 s{dst}, s{dst}, {mul}")
    if plus is not None: A(f"s_add_u32 s{dst}, s{dst}, s{plus}")

def prologue():
    if OPT["stamps"] or OPT.get("cyc"): A("s_memtime s[98:99]")
    if OPT.get("fixrt") or OPT.get("probe") or OPT["stamps"]: A("s_memrealtime s[100:101]")
    A("s_cmp_ge_u32 s2, 256")
    A("s_cbranch_scc1 L_end")
    A(f"s_load_dwordx16 s[{KA}:{KA+15}], s[0:1], 0")
    A(f"s_load_dwordx16 s[{KA+16}:{KA+31}], s[0:1], 64")
    A("v_and_b32 v1, 63, v0")
    A("v_lshrrev_b32 v2, 6, v0")
    A(f"s_lshr_b32 s{S_SLOT}, s2, 3")
    A(f"v_readfirstlane_b32 s{S_WAVE}, v2")
    A(f"s_and_b32 s{ST}, s2, 3")
    A(f"s_lshl_b32 s{S_CHUNK}, s{ST}, 2")
    A(f"s_lshr_b32 s{ST+1}, s{S_SLOT}, 3")
    A(f"s_add_u32 s{S_CHUNK}, s{S_CHUNK}, s{ST+1}")
    A(f"s_and_b32 s{S_CG}, s{S_SLOT}, 7")
    A(f"s_lshl_b32 s{S_ROT}, s{ST+1}, 1")
    A(f"s_add_u32 s{S_ROT}, s{S_ROT}, s{S_CG}")
    A(f"s_and_b32 s{S_ROT}, s{S_ROT}, 7")
    rm = OPT["rotmode"]
    if rm == 8: A(f"s_mov_b32 s{S_ROT1}, s{S_ROT}")
    elif rm == 1: A(f"s_mov_b32 s{S_ROT1}, 0")
    elif rm == 3:
        A(f"s_add_u32 s{S_ROT1}, s{S_CG}, s{ST+1}")
        A(f"s_and_b32 s{S_ROT1}, s{S_ROT1}, 3")
        A(f"s_mul_i32 s{S_ROT1}, s{S_ROT1}, 3")
    else:
        A(f"s_add_u32 s{S_ROT1}, s{S_CG}, s{ST+1}")
        A(f"s_and_b32 s{S_ROT1}, s{S_ROT1}, {rm-1}")
        A(f"s_lshl_b32 s{S_ROT1}, s{S_ROT1}, {2 if rm == 2 else 1}")
    A(f"s_lshr_b32 s{S_RH}, s{S_WAVE}, 1")
    A(f"s_and_b32 s{S_CH}, s{S_WAVE}, 1")
    A(f"s_lshl_b32 s{S_M0W}, s{S_WAVE}, 12")
    slin(ST + 2, 0, (S_SLOT, 512), (S_WAVE, 128))
    A("v_and_b32 v7, 1, v0")
    A(f"v_lshl_add_u32 v7, v7, 14, s{ST+2}")
    A("v_lshrrev_b32 v3, 3, v1")
    A("v_and_b32 v4, 7, v1")
    A(f"v_and_b32 v{V_N}, 31, v1")
    A(f"v_lshrrev_b32 v{V_G}, 5, v1")
    if OPT["stamps"]: A("v_mov_b32 v255, 0")
    A("s_bitcmp0_b32 s2, 2" if OPT.get("swap", 1) else "s_bitcmp1_b32 s2, 2")
    if OPT.get("bfirst", 1):
        A("s_cbranch_scc0 L_roleA")
        CUT["P"] = len(A.out)
        A.label("L_roleA")
    else:
        A("s_cbranch_scc1 L_roleB")

WSO = OPT.get("wso", 0) << 20
def ws_shift():
    if WSO:
        A(f"s_add_u32 s{K_WS}, s{K_WS}, {WSO:#x}")
        A(f"s_addc_u32 s{K_WS+1}, s{K_WS+1}, 0")

TCHM = OPT.get("touchm", 0)
V_T3, V_T2, STC = 250, 251, 24
def touch_setup(role):
    A(f"s_and_b32 s{ST+2}, s{S_CHUNK}, 3")
    A(f"v_and_b32 v9, 15, v1")
    A(f"v_lshrrev_b32 v10, 4, v1")
    slin(ST, 0, (S_CHUNK, 1 << 17), (S_CG, 1 << 14))
    if role == "A":
        slin(ST + 1, 0, (S_CG, 1 << 16), (ST + 2, 1 << 14))
        A(f"s_cmp_eq_u32 s{S_WAVE}, 0")
        A(f"s_cselect_b32 s{ST}, s{ST}, s{ST+1}")
        A("v_lshlrev_b32 v9, 10, v9")
        A("v_lshl_add_u32 v9, v10, 7, v9")
        A(f"s_mov_b32 s{ST+3}, 128")
    else:
        slin(ST + 1, 0, (ST + 2, 16 * 3072), (S_CG, 128), (S_WAVE, 1024))
        A(f"s_cmp_eq_u32 s{S_WAVE}, 0")
        A(f"s_cselect_b32 s{ST}, s{ST}, s{ST+1}")
        A(f"s_mov_b32 s{ST+1}, 3072")
        A(f"s_mov_b32 s{ST+3}, 196608")
        A(f"s_cselect_b32 s{ST+1}, 1024, s{ST+1}")
        A(f"s_cselect_b32 s{ST+3}, 128, s{ST+3}")
        A(f"v_mul_lo_u32 v9, v9, s{ST+1}")
        A(f"v_mul_lo_u32 v10, v10, s{ST+3}")
        A("v_add_u32 v9, v9, v10")
    A(f"v_add_u32 v9, s{ST}, v9")
    A(f"v_mov_b32 v10, {OOB:#x}")
    A("v_cmp_gt_u32 vcc, 48, v1")
    A(f"v_cndmask_b32 v{V_T3}, v10, v9, vcc")
    A("v_cmp_gt_u32 vcc, 32, v1")
    A(f"v_cndmask_b32 v{V_T2}, v10, v9, vcc")
    A(f"s_mov_b32 s{S_CNT}, s{ST+3}")
def touch_srd(role):
    px, p1, p2 = (K_AX, K_BRE, K_BIM) if role == "A" else (K_BX, K_WQKV, K_WQKV)
    A(f"s_cmp_eq_u32 s{S_WAVE}, 1")
    A(f"s_cselect_b32 s{STC}, s{p1}, s{p2}")
    A(f"s_cselect_b32 s{STC+1}, s{p1+1}, s{p2+1}")
    A(f"s_mov_b32 s{STC+2}, {0x80000 if role == 'A' else 0x180000:#x}")
    A(f"s_cmp_eq_u32 s{S_WAVE}, 0")
    A(f"s_cselect_b32 s{STC}, s{px}, s{STC}")
    A(f"s_cselect_b32 s{STC+1}, s{px+1}, s{STC+1}")
    A(f"s_cselect_b32 s{STC+2}, 0x200000, s{STC+2}")
    A(f"s_cmp_eq_u32 s{S_WAVE}, 3")
    A(f"s_cselect_b32 s{STC+2}, 0, s{STC+2}")
    A(f"s_mov_b32 s{STC+3}, 0x20000")
def touch(k0, v):
    def f():
        A(f"s_mul_i32 s{ST+6}, s{S_CNT}, {k0}")
        A(f"buffer_load_dword v254, v{v}, s[{STC}:{STC+3}], s{ST+6} offen")
    return f

def cut(role):
    A(f"s_branch L_main{role}")
    CUT[role] = len(A.out)
    A.label(f"L_main{role}")

def role_rot(rm):
    if not rm: return
    if rm == 8: A(f"s_mov_b32 s{S_ROT1}, s{S_ROT}")
    elif rm == 1: A(f"s_mov_b32 s{S_ROT1}, 0")
    else:
        A(f"s_add_u32 s{S_ROT1}, s{S_CG}, s{ST+1}")
        A(f"s_and_b32 s{S_ROT1}, s{S_ROT1}, {rm-1}")
        A(f"s_lshl_b32 s{S_ROT1}, s{S_ROT1}, {2 if rm == 2 else 1}")

def code_prefetch():
    role_rot(OPT.get("rot" + ROLE[0], 0))
    A(f"s_getpc_b64 s[{ST+4}:{ST+5}]")
    A.label(f"L_pc{ROLE[0]}")
    A(f"s_add_u32 s{ST+4}, s{ST+4}, L_main{ROLE[0]}-L_pc{ROLE[0]}")
    A(f"s_addc_u32 s{ST+5}, s{ST+5}, 0")
    A(f"global_load_dword v254, v7, s[{ST+4}:{ST+5}]")

def common_setup(role):
    srd(SWS, K_WS, 0x10000000 - WSO)
    if TCHM: A(f"s_mov_b64 s[100:101], s[{K_OUT}:{K_OUT+1}]")
    else: srd(SOUT, K_OUT, 0x800000)
    A(f"s_lshl_b32 s{S_M0W2}, s{S_WAVE}, 13")
    A(f"s_mov_b32 s{S_MG}, 0")
    A(f"s_mov_b32 s{S_MG+1}, -1")
    A(f"s_sub_u32 s{S_MRH}, 0, s{S_RH}")
    A(f"s_mov_b32 s{S_MRH+1}, s{S_MRH}")
    A(f"s_mov_b32 s{S_L2E}, {LOG2E:#x}")
    A(f"s_mov_b32 s{S_L2E+1}, {LOG2E:#x}")
    A(f"s_mov_b32 s{S_M16}, 0xffff0000")
    A(f"s_mov_b32 s{S_M16+1}, 0xffff0000")
    A(f"s_add_u32 s{S_GRP}, s{S_CHUNK}, {0 if role == 'A' else 16}")
    slin(P_XCCB, WS_XCC, (S_GRP, 1024))
    if role == "A": A(f"s_mov_b32 s{S_MF}, 0")
    else: A(f"s_and_b32 s{S_MF}, s{S_CG}, 1")
    slin(P_OUT, 0 if role == "A" else 2048, (S_CHUNK, 1 << 19), (S_RH, 1 << 18), (S_CG, 256), (S_CH, 128), (S_MF, 1 << 17))
    A(f"s_xor_b32 s{P_OUT2}, s{P_OUT}, {1 << 17:#x}")
    slin(P_TAGSEL, 0, (S_CHUNK, 256), (S_CG, 16), (S_WAVE, 1))
    A(f"s_and_b32 s{ST}, s{S_CHUNK}, 3")
    A(f"s_lshl_b32 s{ST}, s{ST}, 1")
    A(f"s_mov_b32 s{KAP[0]}, s{S_CG}")
    for j in range(1, 8):
        A(f"s_add_u32 s{ST+1}, s{ST}, {j-1}")
        A(f"s_cmp_ge_u32 s{ST+1}, 7")
        A(f"s_addc_u32 s{ST+1}, s{ST+1}, 1")
        A(f"s_add_u32 s{ST+1}, s{ST+1}, s{S_CG}")
        A(f"s_and_b32 s{KAP[j]}, s{ST+1}, 7")
    if OPT.get("tlb", 0):
        A(f"v_and_b32 v9, 15, v{V_LANE}")
        A("v_lshlrev_b32 v9, 20, v9")
        A(f"buffer_load_dword v254, v9, s[{SWS}:{SWS+3}], 0 offen offset:2048")
        A(f"buffer_load_dword v254, v9, s[{SOUT}:{SOUT+3}], 0 offen")
        A(f"buffer_load_dword v254, v9, s[{SW2}:{SW2+3}], 0 offen")
    A(f"v_lshlrev_b32 v{V_LIN}, 4, v{V_LANE}")
    A(f"v_mov_b32 v{V_L0}, {OOB:#x}")
    A(f"v_cmp_eq_u32 vcc, 0, v{V_LANE}")
    if not HAND:
        A(f"v_lshlrev_b32 v{V_CHK}, 2, v{V_N}")
        slin(P_FLAGB, WS_FLAG, (S_GRP, 256))
        slin(P_FLW, 0, (S_CG, 16), (S_WAVE, 4), (P_FLAGB, 1))
        A(f"s_getreg_b32 s{S_XW}, hwreg(HW_REG_XCC_ID, 0, 4)")
    A(f"v_lshlrev_b32 v{V_XPO}, 7, v4")
    A(f"v_cndmask_b32_e64 v{V_L0}, v{V_L0}, 0, vcc")
    A(f"v_lshlrev_b32 v{V_OUTO}, 14, v{V_G}")
    A(f"v_lshl_add_u32 v{V_OUTO}, v{V_N}, 2, v{V_OUTO}")
    slin(P_FLAGO, 0, (S_CG, 128), (P_XCCB, 1))
    A("s_waitcnt lgkmcnt(0)")
    A(f"s_add_u32 s{S_TAG}, s{S_TAG}, 1")
    if OPT["stamps"]: A("s_mov_b32 s99, 0")
    if not HAND:
        A(f"s_lshl_b32 s{ST}, s{S_TAG}, 4")
        A(f"s_or_b32 s{S_XW}, s{S_XW}, s{ST}")
        A(f"v_mov_b32 v248, s{S_XW}")
        A(f"v_mov_b32 v249, {OOB:#x}")
        A("v_cmp_gt_u32 vcc, 32, v0")
        A(f"v_cndmask_b32 v249, v249, v{V_CHK}, vcc")
        A(f"buffer_store_dword v248, v249, s[{SWS}:{SWS+3}], s{P_FLAGO} offen sc1")

def lds_b128_addrs(base_reg, wave_off_sreg, const, nsets):
    A(f"v_bfe_u32 v9, v{V_N}, 1, 3")
    A(f"v_xor_b32 v9, v9, v{V_G}")
    A("v_lshlrev_b32 v9, 4, v9")
    A(f"v_lshl_add_u32 v9, v{V_N}, 7, v9")
    A(f"v_add_u32 v9, s{wave_off_sreg}, v9")
    if const: A(f"v_add_u32 v9, {const:#x}, v9")
    for ks in range(4):
        A(f"v_xor_b32 v{base_reg+ks}, {32*ks}, v9")
    for st in range(1, nsets):
        for ks in range(4): A(f"v_add_u32 v{base_reg+4*st+ks}, {st*0x10000:#x}, v{base_reg+ks}")

TCH = 250
def rdy_load(reg, dummy=9):
    A(f"buffer_load_dword v254, v{V_CHK}, s[{SWS}:{SWS+3}], s{P_FLAGB} offen offset:64 sc1")
    A(f"buffer_load_dword v{reg}, v{V_XPO}, s[{SWS}:{SWS+3}], s{P_XCCB} offen sc1")
def rdy_check(dst, reg):
    if HAND: A(f"v_xor_b32 v{dst}, s{S_TAG}, v{reg}")
    else:
        A(f"v_xor_b32 v{reg}, s{S_XW}, v{reg}")
        A(f"v_lshrrev_b32 v{dst}, 4, v{reg}")
def rdy_store():
    if HAND: A(f"buffer_store_dword v11, v{V_L0}, s[{SWS}:{SWS+3}], s{P_FLAGO} offen sc1")
def xcc_decide(reg):
    if HAND: return
    A(f"v_cmp_ne_u32 vcc, 0, v{reg}")
    A("s_cmp_lg_u64 vcc, 0")
    A(f"s_cselect_b32 s{S_SLOW}, 1, 0")
def flag_store(ph=0):
    slow, join = lab("slow"), lab("join")
    A(f"s_cmp_lg_u32 s{S_SLOW}, 0")
    A(f"s_cbranch_scc1 {slow}")
    A(f"buffer_store_dword v11, v{V_L0}, s[{SWS}:{SWS+3}], s{P_FLW} offen offset:{ph*128}")
    A.label(join)
    def later():
        A.label(slow)
        A(f"buffer_store_dword v11, v{V_L0}, s[{SWS}:{SWS+3}], s{P_FLW} offen offset:{ph*128} sc1")
        A(f"s_branch {join}")
    DEFER.append(later)
def flag_load(ph):
    A(f"buffer_load_dword v13, v{V_CHK}, s[{SWS}:{SWS+3}], s{P_FLAGB} offen offset:{ph*128} sc1")
def flag_cmp():
    A(f"v_cmp_ne_u32 s[{S_FAIL}:{S_FAIL+1}], s{S_TAG}, v13")
def flag_poll(ph=0):
    poll(lambda: flag_load(ph), flag_cmp)
def flag_check(ph):
    slow, back = lab("fslow"), lab("fback")
    flag_cmp()
    A(f"s_cmp_lg_u64 s[{S_FAIL}:{S_FAIL+1}], 0")
    A(f"s_cbranch_scc1 {slow}")
    A.label(back)
    def later():
        A.label(slow)
        A.hist = []
        flag_poll(ph)
        A(f"s_branch {back}")
    DEFER.append(later)

DEFER = []
def make_verify(pieces, slot, second):
    retry, back = lab("retry"), lab("back")
    def reads():
        A(f"v_add_u32 v9, {slot*SLOT:#x}, v{V_CHK}")
        A("ds_read_b32 v13, v9")
        A(f"ds_read_b32 v14, v9 offset:{second}")
    def cmp():
        A("v_max_u32 v13, v13, v14")
        A("v_cmp_eq_u32 vcc, -1, v13")
    def branch():
        A("s_cmp_lg_u64 vcc, 0")
        A(f"s_cbranch_scc1 {retry}")
        A.label(back)
    def later():
        top, done = lab("rl"), lab("rd")
        A.label(retry)
        A.hist = []
        A(f"s_mov_b32 s{S_SM0}, m0")
        A(f"s_mov_b32 s{S_CNT}, {SPIN_LIMIT}")
        A.label(top)
        run(pieces(S_RS))
        A("s_waitcnt vmcnt(0)")
        A("ds_read_b32 v13, v9")
        A(f"ds_read_b32 v14, v9 offset:{second}")
        A("s_waitcnt lgkmcnt(0)")
        cmp()
        A("s_cmp_eq_u64 vcc, 0")
        A(f"s_cbranch_scc1 {done}")
        A(f"s_sub_u32 s{S_CNT}, s{S_CNT}, 1")
        A(f"s_cbranch_scc0 {top}")
        A.label(done)
        if OPT["stamps"]:
            A(f"s_sub_u32 s{S_CNT}, {SPIN_LIMIT + 1}, s{S_CNT}")
            A(f"s_add_u32 s99, s99, s{S_CNT}")
        A(f"s_mov_b32 m0, s{S_SM0}")
        A(f"s_branch {back}")
    DEFER.append(later)
    return reads, cmp, branch

def tag_update(role):
    skip = lab("notag")
    A(f"s_cmp_eq_u32 s{P_TAGSEL}, {(15 if role == 'A' else 0) << 8}")
    A(f"s_cbranch_scc0 {skip}")
    A(f"buffer_store_dword v11, v{V_L0}, s[{SWS}:{SWS+3}], 0 offen offset:{WS_TAGA if role == 'A' else WS_TAGB} sc1")
    A.label(skip)

def out_stores(acc, ph):
    def mk(r):
        def f():
            row = 8 * (r >> 2) + (r & 3)
            A(f"s_add_u32 s{ST+1}, s{P_OUT+ph}, {row*4096}")
            A(f"buffer_store_dword v{acc+16*ph+r}, v{V_OUTO}, s[{SOUT}:{SOUT+3}], s{ST+1} offen {OUTF2 if ph else OUTF}")
        return f
    return [mk(r) for r in range(16)]

SCHED = {
    0: ({0: [2, 3], 1: [4], 2: [5], 3: [6], 4: [7]}, 5, {0: "all"}),
    1: ({i: [i + 2] for i in range(6)}, 6, {i: "front" for i in range(6)}),
    2: ({0: [2], 1: [3], 2: [4], 3: [5, 6], 4: [7]}, 5, {3: "all"}),
    3: ({0: [2], 1: [3], 2: [4, 5], 3: [6], 4: [7]}, 5, {2: "all"}),
    4: ({0: [2], 1: [3], 2: [4], 3: [5], 4: [6], 5: [7]}, 6, {2: "front", 3: "front", 4: "front", 5: "front"}),
    5: ({0: [2], 1: [3, 4], 2: [5], 3: [6], 4: [7]}, 5, {1: "all"}),
    6: ({i: [i + 3] for i in range(5)}, 5, {}),
    7: ({i: [i + 3] for i in range(5)}, 5, {0: "front", 1: "front"}),
    8: ({0: [2], 1: [3], 2: [4, 5], 3: [6], 4: [7]}, 5, {0: "late", 1: "late", 2: "all"}),
    9: ({0: [2], 1: [3, 4], 2: [5], 3: [6], 4: [7]}, 5, {0: "three", 1: "all", 2: "three"}),
}[OPT.get("sched", 6)]
EARLY = OPT.get("sched", 6) >= 6
NPRE = OPT.get("npre", 4)
NX = OPT.get("nx", 10)
XST = SCHED[1]
def g1_gaps(n, busy):
    i = n >> 2
    if SCHED[2].get(i) == "late": return (0, 1, 2, 3) if (n & 3) >= 2 else ((3,) if (n & 3) == 1 else ())
    if SCHED[2].get(i) == "three": return (1, 2, 3)
    if SCHED[2].get(i) in ("all", "front") or i in busy: return (0, 1, 2, 3)
    return (2, 3)
OUTF = {0: "sc1", 1: "sc1 nt", 2: "sc0 sc1", 3: "nt", 4: "", 5: "sc0 sc1 nt"}[OPT.get("outf", 0)]
OUTF2 = {0: "sc1", 3: "nt", 4: ""}[OPT.get("outf2", 0)]
XF = "nt " if OPT["xnt"] else ""
PLF = {0: "sc1 ", 1: "", 2: "sc0 ", 3: "nt "}[OPT.get("plf", 0)]

def role_A():
    V_AX, V_AW = 24, 32
    V_GO, V_SCW = 44, 3
    V_XF, V_WF = 48, 64
    URE, UIM = 80, 112
    ACC2 = 144
    HP = 176
    XS, DG, V_GE = 176, 192, 200
    V_PUB, V_XSO, V_HSO = 45, 46, 223
    P_MSK = P0 + 4
    C_LAM, C_M1, C_M2, C_L, C_MQ, C_LQ, C_C2 = 208, 210, 212, 214, 216, 218, 220
    C_DSK = 222
    T0 = 224
    P_SAB, P_SAO, P_XS0, P_XS1 = P0, P0 + 1, P0 + 2, P0 + 3
    code_prefetch()
    A("v_lshrrev_b32 v9, 1, v3")
    A("v_xor_b32 v9, v9, v4")
    A("v_lshlrev_b32 v9, 4, v9")
    A("v_lshrrev_b32 v10, 2, v3")
    A("v_lshlrev_b32 v10, 5, v10")
    A("v_and_b32 v11, 1, v3")
    A("v_lshl_add_u32 v10, v11, 4, v10")
    A("v_bfe_u32 v11, v3, 1, 1")
    A("v_add_u32 v10, v10, v11")
    A("v_lshl_add_u32 v10, v10, 10, v9")
    slin(ST, 0, (S_CHUNK, 1 << 17), (S_RH, 1 << 16), (S_CH, 1 << 13))
    A(f"v_add_u32 v{V_OX}, s{ST}, v10")
    A(f"v_xor_b32 v11, 64, v{V_OX}")
    A(f"v_add_u32 v{V_OX+1}, 1024, v11")
    A(f"v_add_u32 v{V_OX+2}, 2048, v{V_OX}")
    A(f"v_add_u32 v{V_OX+3}, 3072, v11")
    A("v_lshl_add_u32 v10, v3, 10, v9")
    slin(ST, 0, (S_CG, 1 << 16), (S_CH, 1 << 15))
    A(f"v_add_u32 v{V_OW}, s{ST}, v10")
    A(f"v_xor_b32 v11, 64, v{V_OW}")
    A(f"v_add_u32 v{V_OW+1}, 7168, v11")
    A(f"v_add_u32 v{V_OW+2}, {2*7168}, v{V_OW}")
    A(f"v_add_u32 v{V_OW+3}, {3*7168}, v11")
    slin(ST, 0, (S_CG, 128), (S_CH, 64))
    A(f"v_lshl_add_u32 v14, v{V_N}, 1, s{ST}")
    if TCHM: touch_setup("A")
    A(f"s_cmp_eq_u32 s{S_RH}, 0")
    A("s_waitcnt lgkmcnt(0)")
    A(f"s_cselect_b32 s{SW}, s{K_BRE}, s{K_BIM}")
    A(f"s_cselect_b32 s{SW+1}, s{K_BRE+1}, s{K_BIM+1}")
    A(f"s_cselect_b32 s{SW2}, s{K_CRE}, s{K_CIM}")
    A(f"s_cselect_b32 s{SW2+1}, s{K_CRE+1}, s{K_CIM+1}")
    A(f"s_mov_b32 s{SW+2}, 0x80000")
    A(f"s_mov_b32 s{SW+3}, 0x20000")
    stamp(1)
    ws_shift()
    A(f"s_load_dword s{S_TAG}, s[{K_WS}:{K_WS+1}], {WS_TAGA}")
    srd(SX, K_AX, 0x200000)
    tok = {}
    def g1_pieces(i):
        slot = i & 3
        return (dma_pieces(V_OW, SW, ST + 8, slot * SLOT, pre=lambda: rot_soff(ST + 8, i, shift=7, rot=S_ROT1)) +
                dma_pieces(V_OX, SX, ST + 8, slot * SLOT + 16384, post=lambda: tok.__setitem__(i, A.vm), flags=XF))
    CLDS = {1: 4 * SLOT, 2: 4 * SLOT + 16384, 0: 0, 3: 16384, 4: SLOT, 5: SLOT + 16384, 6: 2 * SLOT, 7: 2 * SLOT + 16384}
    CORD = [1, 2, 0, 3, 4, 5, 6, 7]
    CE = OPT.get('ce', 0)
    def c_pieces(st):
        if st in (0, 2) and OPT.get("cswap", 1):
            def pre():
                A(f"s_and_b32 s{ST+9}, s{S_CHUNK}, 3")
                A(f"s_cmp_eq_u32 s{ST+9}, 3")
                A(f"s_cselect_b32 s{ST+9}, {CLDS[2-st]:#x}, {CLDS[st]:#x}")
                A(f"s_cselect_b32 s{ST+7}, s{KAP[2-st]}, s{KAP[st]}")
                A(f"s_add_u32 m0, s{S_M0W}, s{ST+9}")
                A(f"s_lshl_b32 s{ST+9}, s{ST+7}, 7")
            return dma_pieces(V_OW, SW2, ST + 9, 0, pre=pre)
        return dma_pieces(V_OW, SW2, ST + 9, CLDS[st], pre=lambda: A(f"s_lshl_b32 s{ST+9}, s{KAP[st]}, 7"))
    ADL = OPT.get("adl", 1)
    SML = OPT.get("sml", 1) if not ADL else 0
    def small():
        A(f"global_load_ushort v{T0}, v14, s[{K_LRE}:{K_LRE+1}]")
        A(f"global_load_ushort v{T0+1}, v14, s[{K_LIM}:{K_LIM+1}]")
        A(f"global_load_ushort v{T0+2}, v14, s[{K_LDT}:{K_LDT+1}]")
        A(f"global_load_ushort v{C_DSK}, v14, s[{K_DSK}:{K_DSK+1}]")
    if not SML: small()
    tok_small = A.vm
    if ADL < 2: run(g1_pieces(0))
    A(f"s_mov_b32 s{SW2+2}, 0x80000")
    A(f"s_mov_b32 s{SW2+3}, 0x20000")
    late = g1_pieces(1)
    NA = OPT.get("nprea", 4) if not ADL else 0
    if ADL == 2: late = g1_pieces(0) + late
    if OPT.get("diagdelay"): late = [f"s_sleep {OPT['diagdelay']}"] + late
    if SML == 2: small()
    if TCHM:
        touch_srd("A"); touch(1, V_T3)()
        if TCHM == 1: late = late + [touch(4, V_T2)] + g1_pieces(2) + [touch(6, V_T2)]
    elif EARLY:
        run(late[:NA]); late = late[NA:] + g1_pieces(2)
    else:
        run(late); late = []
    if SML == 1: small()
    if OPT.get("wtouch", 0):
        slin(ST, 0, (S_CG, 1 << 16), (S_CHUNK, 4096), (S_CH, 2048))
        A(f"v_and_b32 v9, 15, v{V_LANE}")
        A("v_lshlrev_b32 v9, 7, v9")
        A(f"buffer_load_dword v254, v9, s[{SW2}:{SW2+3}], s{ST} offen")
    stamp(2)
    cut("A")
    A(f"s_lshl_b32 s{ST}, s{S_RH}, 13")
    lds_b128_addrs(V_AX, ST, 16384, 2)
    A(f"s_lshl_b32 s{ST}, s{S_CH}, 12")
    lds_b128_addrs(V_AW, ST, 0, 3)
    XLDS = OPT.get("xlds", 1)
    S_XI = 57
    if XLDS:
        V_XA = ACC2
        A(f"s_sub_u32 s{S_XI}, s{S_CG}, s{S_ROT1}")
        A(f"s_and_b32 s{S_XI}, s{S_XI}, 7")
        A(f"s_and_b32 s{ST+1}, s{S_XI}, 3")
        slin(ST, 16384, (ST + 1, SLOT), (S_RH, 8192))
        A(f"v_bfe_u32 v9, v{V_N}, 1, 2")
        A(f"v_and_b32 v10, 1, v{V_N}")
        A("v_lshl_add_u32 v9, v9, 2, v10")
        A(f"v_bfe_u32 v10, v{V_N}, 4, 1")
        A("v_lshl_add_u32 v10, v9, 1, v10")
        A(f"v_bfe_u32 v11, v{V_N}, 3, 1")
        A("v_lshl_add_u32 v10, v11, 5, v10")
        A("v_and_b32 v9, 7, v9")
        A(f"s_lshl_b32 s{ST+1}, s{S_CH}, 2")
        A(f"v_lshl_add_u32 v11, v{V_G}, 1, s{ST+1}")
        A("v_xor_b32 v9, v9, v11")
        A("v_lshlrev_b32 v9, 4, v9")
        A("v_lshl_add_u32 v9, v10, 7, v9")
        A(f"v_add_u32 v{V_XA}, s{ST}, v9")
        A(f"v_xor_b32 v{V_XA+1}, 16, v{V_XA}")
        A(f"v_xor_b32 v{V_XA+2}, 32, v{V_XA}")
        A(f"v_xor_b32 v{V_XA+3}, 48, v{V_XA}")
    if OPT.get("lateset", 1): A.cap = []
    common_setup("A")
    slin(P_SAB, WS_SA, (S_CG, 8192))
    A(f"s_sub_u32 s{ST}, 15, s{S_CHUNK}")
    slin(P_SAO, 0, (ST, 512), (S_CH, 256), (P_SAB, 1))
    A(f"s_mov_b32 s{P_MSK}, 0xffffff00")
    slin(P_XS0, 0, (S_CHUNK, 1 << 17), (S_RH, 1 << 16), (S_CG, 128), (S_CH, 64), (S_MF, 32768))
    A(f"s_xor_b32 s{P_XS1}, s{P_XS0}, 32768")
    slin(P_ACTW, WS_H, (S_CHUNK, 1 << 18), (S_CG, 1 << 15), (S_WAVE, 4096))
    slin(P_ACTR, WS_H, (S_CHUNK, 1 << 18), (S_WAVE, 4096), (S_MF, 16384))
    A(f"s_xor_b32 s{P_ACTR2}, s{P_ACTR}, 16384")
    A(f"v_lshlrev_b32 v9, 11, v{V_G}")
    A(f"v_lshl_add_u32 v{V_HSO}, v{V_N}, 4, v9")
    A(f"s_add_u32 s{P_ACTW2}, s{P_ACTW}, 16384")
    clears = [f"buffer_store_dwordx4 {vr(T0+24,4)}, v{V_HSO}, s[{SWS}:{SWS+3}], s{P_ACTW} offen offset:{k*512} sc1" for k in range(8)]
    A(f"s_and_b32 s{ST}, s{S_TAG}, 0xff")
    A(f"v_mov_b32 v{V_TAG}, s{ST}")
    A(f"v_mov_b32 v11, s{S_TAG}")
    A(f"v_lshlrev_b32 v{V_XSO}, 10, v{V_N}")
    A(f"v_lshl_add_u32 v{V_XSO}, v{V_G}, 5, v{V_XSO}")
    SCR = 3 * SLOT
    slin(ST, SCR, (S_CH, 256))
    A(f"v_lshl_add_u32 v4, v{V_N}, 3, s{ST}")
    A(f"s_lshl_b32 s{ST}, s{S_RH}, 10")
    A(f"v_lshl_add_u32 v3, v{V_G}, 9, v4")
    A(f"v_add_u32 v3, s{ST}, v3")
    A(f"v_lshlrev_b32 v13, 3, v{V_N}")
    A(f"v_mov_b32 v14, {OOB:#x}")
    A(f"s_or_b64 s[{ST+2}:{ST+3}], s[{S_MG}:{S_MG+1}], s[{S_MRH}:{S_MRH+1}]")
    A(f"v_cndmask_b32_e64 v{V_PUB}, v13, v14, s[{ST+2}:{ST+3}]")
    if OPT.get("prew", 1):
        for k in range(2): A(f"v_subrev_u32 v{T0+20+k}, 1, v{V_TAG}")
        A(f"buffer_store_dwordx2 {vr(T0+20,2)}, v{V_PUB}, s[{SWS}:{SWS+3}], s{P_SAO} offen sc1")
    A(f"s_sub_u32 s{ST+4}, 16, s{S_CHUNK}")
    A(f"v_lshlrev_b32 v9, 3, v{V_G}")
    A(f"v_add_u32 v9, s{ST+4}, v9")
    A(f"s_lshl_b32 s{ST+4}, s{S_CH}, 8")
    A(f"v_add_u32 v13, s{ST+4}, v13")
    A(f"v_lshl_add_u32 v{V_GO}, v9, 9, v13")
    for i in range(8):
        A(f"v_cmp_gt_u32 vcc, {16-i}, v9")
        A(f"v_cndmask_b32_e64 v{V_GE+i}, 0, v{V_TAG}, vcc")
    if SML: A.cap.append("@consts")
    if ADL: A.cap.append("@small")
    A.wait_vm(tok_small)
    lre, lim, ldt = T0, T0 + 1, T0 + 2
    A(f"v_and_b32 v9, 1, v{V_N}")
    A("v_lshlrev_b32 v9, 4, v9")
    A(f"v_lshlrev_b32 v{C_DSK}, v9, v{C_DSK}")
    A(f"v_lshrrev_b32 v9, 1, v{V_N}")
    A(f"v_lshlrev_b32 v13, 3, v{V_G}")
    A("v_sub_u32 v9, v9, v13")
    for q in range(8):
        A(f"v_cmp_eq_u32 vcc, {q}, v9")
        A(f"v_cndmask_b32_e64 v{DG+q}, 0, v{C_DSK}, vcc")
    for r in (lre, lim, ldt): A(f"v_lshlrev_b32 v{r}, 16, v{r}")
    A(f"v_mul_f32 v{ldt}, s{S_L2E}, v{ldt}")
    A(f"v_exp_f32 v{ldt}, v{ldt}")
    A(f"v_cvt_pk_bf16_f32 v{ldt}, v{ldt}, v{ldt}")
    A(f"v_lshlrev_b32 v{ldt}, 16, v{ldt}")
    A(f"v_mul_f32 v{T0+4}, v{ldt}, v{lre}")
    A(f"v_mul_f32 v{T0+5}, v{ldt}, v{lim}")
    A(f"v_mul_f32 v{T0+4}, s{S_L2E}, v{T0+4}")
    A(f"v_exp_f32 v{T0+4}, v{T0+4}")
    A(f"v_mul_f32 v{T0+5}, {INV2PI:#x}, v{T0+5}")
    A(f"v_rndne_f32 v{T0+6}, v{T0+5}")
    A(f"v_sub_f32 v{T0+5}, v{T0+5}, v{T0+6}")
    A(f"v_cos_f32 v{T0+6}, v{T0+5}")
    A(f"v_sin_f32 v{T0+7}, v{T0+5}")
    A(f"v_mul_f32 v{C_LAM}, v{T0+4}, v{T0+6}")
    A(f"v_mul_f32 v{C_LAM+1}, v{T0+4}, v{T0+7}")
    A(f"v_add_f32 v{T0+4}, -1.0, v{C_LAM}")
    A(f"v_mul_f32 v{T0+5}, v{lre}, v{lre}")
    A(f"v_fmac_f32 v{T0+5}, v{lim}, v{lim}")
    A(f"v_rcp_f32 v{T0+5}, v{T0+5}")
    A(f"v_mul_f32 v{T0+6}, v{T0+4}, v{lre}")
    A(f"v_fmac_f32 v{T0+6}, v{C_LAM+1}, v{lim}")
    A(f"v_mul_f32 v{T0+7}, v{C_LAM+1}, v{lre}")
    A(f"v_fma_f32 v{T0+7}, -v{T0+4}, v{lim}, v{T0+7}")
    A(f"v_add_f32 v{T0+5}, v{T0+5}, v{T0+5}")
    A(f"v_mul_f32 v{C_C2}, v{T0+6}, v{T0+5}")
    A(f"v_mul_f32 v{C_C2+1}, v{T0+7}, v{T0+5}")
    pa, pb, tt = T0 + 8, T0 + 10, T0 + 12
    cmul(pa, C_LAM, C_LAM, tt)
    cmul(pb, pa, pa, tt)
    cmul(pa, pb, pb, tt)
    cmul(C_M1, pa, pa, tt)
    cmul(C_M2, C_M1, C_M1, tt)
    cmul(pa, C_M2, C_M2, tt)
    cmul(C_L, pa, pa, tt)
    def sel_pair(dst, src, mask):
        A(f"v_cndmask_b32_e64 v{dst}, 1.0, v{src}, s[{mask}:{mask+1}]")
        A(f"v_cndmask_b32_e64 v{dst+1}, 0, v{src+1}, s[{mask}:{mask+1}]")
    sel_pair(T0 + 14, C_M2, S_MG)
    sel_pair(T0 + 16, pa, S_MRH)
    cmul(C_MQ, T0 + 14, T0 + 16, tt)
    cmul(pa, C_L, C_L, tt)
    cmul(pb, pa, pa, tt)
    cmul(pa, pb, pb, tt)
    sel_pair(C_LQ, pa, S_MG)
    SET, A.cap = (A.cap or []), None
    LATEV = [x for x in SET if x.startswith("buffer_")]
    SET = [x for x in SET if not x.startswith("buffer_")]
    if ADL: A.wait_vm(tok_small) if False else None
    for _ in range(OPT.get("pset", 0) if not ADL else 1000):
        if not SET or SET[0] == "@consts": break
        if SET[0] == "@small":
            SET.pop(0); A.wait_vm(tok_small); continue
        if SET[0].startswith(f"s_add_u32 s{S_TAG},"): A("s_waitcnt lgkmcnt(0)")
        A(SET.pop(0))
    while SET and (SET[0].startswith("s_addc") or SET[0].startswith("s_cselect")): A(SET.pop(0))
    if "@consts" in SET:
        k_ = SET.index("@consts")
        SET = SET[:k_] + ["@hold"] + SET[k_+1:]
    stamp(3)
    run(late)
    def rd(n):
        i, ks = n >> 2, n & 3
        slot, buf = i & 3, n & 1
        s2_, off = slot >> 1, (slot & 1) * SLOT
        x = [f"ds_read_b128 {vr(V_XF+buf*8+m*4,4)}, v{V_AX+4*s2_+ks} offset:{off+m*4096}" for m in range(2)]
        w = [f"ds_read_b128 {vr(V_WF+buf*8+ri*4,4)}, v{V_AW+4*s2_+ks} offset:{off+ri*8192}" for ri in range(2)]
        return [x[0], w[0], w[1], x[1]]
    def mm(n):
        buf = n & 1
        r = []
        for m, ri in ((0, 0), (0, 1), (1, 1), (1, 0)):
            d = vr((URE, UIM)[ri] + 16 * m, 16)
            r.append(mf(d, vr(V_XF + buf * 8 + m * 4, 4), vr(V_WF + buf * 8 + ri * 4, 4), d if n else "0"))
        return r
    fill = []
    hook = []
    def xs_load(m, s):
        return lambda: A(f"buffer_load_dwordx4 {vr(XS+8*m+4*s,4)}, v{V_XSO}, s[{SX}:{SX+3}], s{P_XS0+m} offen offset:{16*s}")
    def xs_lds(i):
        sk = lab("nx")
        A(f"s_cmp_eq_u32 s{S_XI}, {i}")
        A(f"s_cbranch_scc0 {sk}")
        for m in range(2):
            for s_ in range(2):
                A(f"ds_read_b128 {vr(XS+8*m+4*s_,4)}, v{V_XA+2*m+s_} offset:{m*512}")
        A.label(sk)
    def on_step(n):
        i, ks = n >> 2, n & 3
        if XLDS and ks == 1: hook.append(lambda: xs_lds(i))
        if ks == 0 and OPT.get("g1st") and i: stamp(16 + i)
        if ks == 0:
            if TCHM == 2 and i < 2: fill.append(touch(4 + 2 * i, V_T2))
            for st in SCHED[0].get(i, []): fill.extend(g1_pieces(st))
            XL = [xs_load(m, s) for m in range(2) for s in range(2)] if not XLDS else []
            XO = OPT.get("xso", 1)
            if i == XST:
                if XO == 1: fill.extend(LATEV + XL)
                fill.extend(c_pieces(1) + c_pieces(2))
            elif i == XST + 1:
                if XO == 0: fill.extend(LATEV + XL)
                if CE >= 4: fill.extend(c_pieces(0) + c_pieces(3))
            elif i == 7:
                if CE == 2: fill.extend(c_pieces(0) + c_pieces(3))
                if CE >= 4: fill.extend(c_pieces(4) + c_pieces(5))
                if OPT.get("ptouch", 0):
                    fill.extend([f"buffer_load_dword v254, v{V_GO+k}, s[{SWS}:{SWS+3}], s{P_SAB} offen sc1" for k in range(4)])
                    fill.append(lambda: rdy_load(254, 254))
    A.wait_vm(tok[0])
    A("s_barrier")
    stamp(4)
    gemm_loop(32, rd, mm, lambda n: tok[n >> 2] if (n & 3) == 0 else None, (2, 2, 0, 0), lambda n: g1_gaps(n, (5,) if OPT.get('xall', 0) else ()), fill, on_step, end_barrier=True, extra=SET, nextra=lambda n, g: NX, hook=hook)
    assert not SET
    assert not fill
    stamp(5)
    if TCHM: srd(SOUT, 100, 0x800000)
    P = [T0, T0 + 4]
    def lam_bc(hi): return f"op_sel:[{hi},0,0] op_sel_hi:[{hi},1,1]"
    NEG = "neg_lo:[1,0,0] neg_hi:[1,0,0]"
    cur_re, cur_im = URE, UIM
    for s in range(1, 16):
        d = P[s & 1]
        A(f"v_pk_fma_f32 {vr(d,2)}, {vr(C_LAM,2)}, {vr(cur_im,2)}, {vr(URE+2*s,2)} {lam_bc(1)} {NEG}")
        A(f"v_pk_fma_f32 {vr(d+2,2)}, {vr(C_LAM,2)}, {vr(cur_re,2)}, {vr(UIM+2*s,2)} {lam_bc(1)}")
        A(f"v_pk_fma_f32 {vr(d,2)}, {vr(C_LAM,2)}, {vr(cur_re,2)}, {vr(d,2)} {lam_bc(0)}")
        A(f"v_pk_fma_f32 {vr(d+2,2)}, {vr(C_LAM,2)}, {vr(cur_im,2)}, {vr(d+2,2)} {lam_bc(0)}")
        cur_re, cur_im = d, d + 2
    A0, BQ = T0 + 8, T0 + 10
    A(f"v_fma_f32 v{BQ}, v{C_M1}, v{cur_re}, v{cur_re+1}")
    A(f"v_fma_f32 v{BQ+1}, v{C_M1}, v{cur_im}, v{cur_im+1}")
    A(f"v_fma_f32 v{BQ}, -v{C_M1+1}, v{cur_im}, v{BQ}")
    A(f"v_fma_f32 v{BQ+1}, v{C_M1+1}, v{cur_re}, v{BQ+1}")
    A(f"ds_write_b64 v3, {vr(BQ,2)}")
    A(f"v_mov_b32 v{A0}, v{cur_re}")
    A(f"v_mov_b32 v{A0+1}, v{cur_im}")
    P2, P3, SS, tt = T0 + 20, T0 + 22, T0 + 24, T0 + 28
    def c2_bc(hi, n=3):
        return f"op_sel:[{hi},0,0] op_sel_hi:[{hi},1,1]" if n == 3 else f"op_sel:[{hi},0] op_sel_hi:[{hi},1]"
    cm = []
    for s in range(16):
        re, im, t = URE + 2 * s, UIM + 2 * s, T0 + 2 + 2 * (s & 1)
        cm += [f"v_pk_mul_f32 {vr(t,2)}, {vr(C_C2,2)}, {vr(re,2)} {c2_bc(1,2)} neg_lo:[1,0] neg_hi:[1,0]",
               f"v_pk_mul_f32 {vr(re,2)}, {vr(C_C2,2)}, {vr(re,2)} {c2_bc(0,2)}",
               f"v_pk_fma_f32 {vr(re,2)}, {vr(C_C2,2)}, {vr(im,2)}, {vr(re,2)} {c2_bc(1)} {NEG}",
               f"v_pk_fma_f32 {vr(im,2)}, {vr(C_C2,2)}, {vr(im,2)}, {vr(t,2)} {c2_bc(0)} {NEG}"]
    emit(cm[:8])
    if HAND: A.wait_both(tok["clr"], A.lg)
    else: A("s_waitcnt lgkmcnt(0)")
    A("s_barrier")
    B0 = T0 + 12
    for q in range(4):
        A(f"ds_read_b64 {vr(B0+2*q,2)}, v4 offset:{q*512}")
    emit(cm[8:24])
    A("s_waitcnt lgkmcnt(0)")
    cfma(P2, C_M2, B0, B0 + 2, tt)
    cfma(P3, C_M2, P2, B0 + 4, tt)
    cfma(tt, C_M2, P3, B0 + 6, tt)
    A(f"v_and_or_b32 v{SS}, v{tt}, s{P_MSK}, v{V_TAG}")
    A(f"v_and_or_b32 v{SS+1}, v{tt+1}, s{P_MSK}, v{V_TAG}")
    A(f"buffer_store_dwordx2 {vr(SS,2)}, v{V_PUB}, s[{SWS}:{SWS+3}], s{P_SAO} offen sc1")
    rdy_store()
    stamp(6)
    emit(cm[24:])
    LOC = T0 + 0
    for e in range(2):
        A(f"v_cndmask_b32_e64 v{T0+2+e}, 0, v{B0+e}, s[{S_MG}:{S_MG+1}]")
        A(f"v_cndmask_b32_e64 v{T0+4+e}, v{P2+e}, v{P3+e}, s[{S_MG}:{S_MG+1}]")
        A(f"v_cndmask_b32_e64 v{LOC+e}, v{T0+2+e}, v{T0+4+e}, s[{S_MRH}:{S_MRH+1}]")
    E0, F0, E1, F1 = T0 + 12, T0 + 14, T0 + 16, T0 + 18
    cfma(P2, C_M1, LOC, A0, tt)
    cmul(F1, C_C2, P2, tt)
    cmul(F0, C_C2, LOC, tt)
    cmul(E0, C_C2, C_MQ, tt)
    cmul(E1, E0, C_M1, tt)
    V_AH = V_AX
    A(f"v_bfe_u32 v9, v{V_LANE}, 4, 1")
    A(f"v_bfe_u32 v13, v{V_LANE}, 1, 1")
    A("v_lshl_add_u32 v9, v9, 1, v13")
    A(f"v_bfe_u32 v13, v{V_LANE}, 2, 2")
    A(f"v_lshl_add_u32 v13, v{V_G}, 3, v13")
    A("v_lshlrev_b32 v14, 2, v9")
    A("v_xor_b32 v13, v13, v14")
    A("v_lshlrev_b32 v13, 4, v13")
    A("v_lshl_add_u32 v13, v9, 9, v13")
    A(f"v_and_b32 v14, 1, v{V_LANE}")
    A("v_lshl_add_u32 v13, v14, 3, v13")
    A(f"s_lshl_b32 s{ST+2}, s{S_RH}, 13")
    A(f"v_add_u32 v{V_AH}, s{ST+2}, v13")
    A(f"v_xor_b32 v{V_AH+1}, 64, v{V_AH}")
    for st in (1, 2):
        A(f"v_add_u32 v{V_AH+2*st}, {st*0x10000:#x}, v{V_AH}")
        A(f"v_add_u32 v{V_AH+2*st+1}, {st*0x10000:#x}, v{V_AH+1}")
    V_SO = T0 + 24
    for o in range(1, 4):
        A(f"v_xor_b32 v{V_SO+o}, {o*64}, v{V_HSO}")
    CPRE = 8
    A(f"s_add_u32 s{SW}, s{SWS}, s{P_SAB}")
    A(f"s_addc_u32 s{SW+1}, s{SWS+1}, 0")
    A(f"s_mov_b32 s{SW+2}, 8192")
    GD = 48
    def loads():
        for i in range(8):
            A(f"buffer_load_dwordx2 {vr(GD+2*i,2)}, v{V_GO}, s[{SW}:{SW+3}], 0 offen offset:{i*512} sc1")
        rdy_load(14)
    def check():
        A(f"v_xor_b32 v13, v{GD}, v{V_GE}")
        for i in range(1, 8):
            A(f"v_bitop3_b32 v13, v{GD+2*i}, v{V_GE+i}, v13 bitop3:0xbe")
        rdy_check(9, 14)
        A("v_and_b32 v13, 0xff, v13")
        A("v_or_b32 v13, v13, v9")
        A(f"v_cmp_ne_u32 s[{S_FAIL}:{S_FAIL+1}], 0, v13")
    CM = min(8, 2 + CE + OPT.get("cmid", 3))
    for st in CORD[2+CE:CM]: run(c_pieces(st))
    loads()
    tok_p = A.vm
    CPOST = OPT.get("cpost", 0)
    for st in CORD[CM:8-CPOST]: run(c_pieces(st))
    tok_c = A.vm
    stamp(7)
    ok = lab("ok1")
    A.wait_vm(tok_p)
    for m in range(2):
        d = vr(ACC2 + 16 * m, 16)
        A(mf(d, vr(XS + 8 * m, 4), vr(DG, 4), "0"))
    check()
    A(f"s_cmp_eq_u64 s[{S_FAIL}:{S_FAIL+1}], 0")
    A(f"s_cbranch_scc1 {ok}")
    vm_keep = A.vm
    poll(loads, check)
    A.vm = vm_keep
    A.label(ok)
    stamp(8)
    h1, h2 = T0 + 20, T0 + 22
    cur = GD + 14
    for i in range(6, -1, -1):
        d = (h1, h2)[i & 1]
        cfma(d, C_L, cur, GD + 2 * i, tt)
        cur = d
    CQ = GD
    cmul(CQ, C_LQ, cur, tt)
    for e in range(2): A(f"v_mov_b32 v{CQ+2+e}, v{CQ+e}")
    for e in range(2): A(f"v_permlane32_swap_b32 v{CQ+e}, v{CQ+2+e}")
    A(f"v_pk_add_f32 {vr(CQ,2)}, {vr(CQ,2)}, {vr(CQ+2,2)}")
    def c_reads(st):
        s2_, off = CLDS[st] >> 16, CLDS[st] & 0xffff
        r = [None] * 8
        for ks in range(4):
            for ri in range(2):
                kap = (ks >> 1) * 4 + ri * 2 + (ks & 1)
                r[kap] = f"ds_read_b128 {ar((st*8+kap)*4,4)}, v{V_AW+4*s2_+ks} offset:{off+ri*8192}"
        return r
    for m in range(2):
        d = vr(ACC2 + 16 * m, 16)
        A(mf(d, vr(XS + 8 * m + 4, 4), vr(DG + 4, 4), d))
    HR, HI = T0 + 20, T0 + 22
    A(f"v_fma_f32 v{HR}, v{E0}, v{CQ}, v{F0}")
    A(f"v_fma_f32 v{HR+1}, v{E1}, v{CQ}, v{F1}")
    A(f"v_fma_f32 v{HI}, -v{E0}, v{CQ+1}, -v{F0+1}")
    A(f"v_fma_f32 v{HI+1}, -v{E1}, v{CQ+1}, -v{F1+1}")
    A(f"v_fma_f32 v{HR}, -v{E0+1}, v{CQ+1}, v{HR}")
    A(f"v_fma_f32 v{HR+1}, -v{E1+1}, v{CQ+1}, v{HR+1}")
    A(f"v_fma_f32 v{HI}, -v{E0+1}, v{CQ}, v{HI}")
    A(f"v_fma_f32 v{HI+1}, -v{E1+1}, v{CQ}, v{HI+1}")
    pr, pi_ = HR, HI
    def hstore(ph, o):
        A(f"buffer_store_dwordx4 {vr(HP+16*ph+4*o,4)}, v{V_SO+o if o else V_HSO}, s[{SWS}:{SWS+3}], s{P_ACTW+ph} offen offset:{o*512} sc1")
    for hf in range(2):
        for s in range(8 * hf, 8 * hf + 8):
            re, im = URE + 2 * s, UIM + 2 * s
            emit([f"v_pk_fma_f32 {vr(re,2)}, {vr(C_LAM,2)}, {vr(pi_,2)}, {vr(re,2)} {lam_bc(1)}",
                  f"v_pk_fma_f32 {vr(im,2)}, {vr(C_LAM,2)}, {vr(pr,2)}, {vr(im,2)} {lam_bc(1)} {NEG}",
                  f"v_pk_fma_f32 {vr(re,2)}, {vr(C_LAM,2)}, {vr(pr,2)}, {vr(re,2)} {lam_bc(0)}",
                  f"v_pk_fma_f32 {vr(im,2)}, {vr(C_LAM,2)}, {vr(pi_,2)}, {vr(im,2)} {lam_bc(0)}"])
            pr, pi_ = re, im
        for z in range(2):
            o = 2 * z + hf
            for ri in range(2):
                U = (URE, UIM)[ri]
                for u in range(4):
                    s0 = 8 * hf + 2 * u
                    A(f"v_cvt_pk_bf16_f32 v{HP+(ri*4+o)*4+u}, v{U+2*s0+z}, v{U+2*s0+2+z}")
            for u in range(4):
                A(f"v_permlane32_swap_b32 v{HP+o*4+u}, v{HP+16+o*4+u}")
            hstore(0, o)
    tok_a = A.vm
    for o in range(4): hstore(1, o)
    tok_h = A.vm
    stamp(9)
    for st in CORD[8-CPOST:] if CPOST else []: run(c_pieces(st))
    tok_c2 = A.vm
    HS = [3, 4, 0, 1, 3, 4, 0, 1]
    def h_pieces(G):
        r = []
        for sub in range(2):
            pos, ph = SEQ[2 * G + sub]
            r += dma_pieces(V_LIN, SWS, ST + 8, HS[G] * SLOT + sub * 16384,
                            pre=lambda pos=pos, ph=ph: (A(f"s_lshl_b32 s{ST+8}, s{KAP[pos]}, 15"), A(f"s_add_u32 s{ST+8}, s{ST+8}, s{P_ACTR+ph}")),
                            post=(lambda: tok.__setitem__(("h", G), A.vm)) if sub else None, flags=PLF, same_v=True)
        return r
    assert CPRE == 8
    call = sum([c_reads(st) for st in [0, 1, 2, 3, 4, 5, 6, 7]], [])
    HF = 48
    def rd2(n):
        G, q = n >> 2, n & 3
        slot, buf = HS[G], n & 1
        r = []
        for h in range(4):
            kap = 4 * (q & 1) + h
            off = (slot & 1) * SLOT + (q >> 1) * 16384 + (kap >> 2) * 4096 + ((kap >> 1) & 1) * 2048 + (kap & 1) * 256
            for j in range(2):
                if True:
                    r.append(f"ds_read_b64_tr_b16 {vr(HF+buf*16+h*4+2*j,2)}, v{V_AH+2*(slot>>1)+j} offset:{off}")
        return r
    def mm2(n):
        buf = n & 1
        pos, ph = SEQ[n >> 1]
        d = vr(ACC2 + 16 * ph, 16)
        return [mf(d, vr(HF + buf * 16 + h * 4, 4), ar((8 * pos + 4 * (n & 1) + h) * 4, 4), d) for h in range(4)]
    xcc_decide(14)
    A.wait_vm(tok_c)
    A("s_barrier")
    slin(ST + 2, 3 * SLOT, (S_WAVE, 4096))
    A(f"v_add_u32 v{V_GO}, s{ST+2}, v{V_HSO}")
    for o in range(1, 4): A(f"v_xor_b32 v{V_GO+o}, {o*64}, v{V_GO}")
    for p in range(8):
        A(f"ds_write_b128 v{V_GO+(p&3)}, {vr(HP+4*p,4)} offset:{(p>>2)*16384+(p&3)*512}")
    emit(call[:8])
    A("s_waitcnt lgkmcnt(0)")
    A("s_barrier")
    cf = call[8:32]
    gemm_loop(4, rd2, mm2, lambda n: None, (3, 3, 2, 0), (2, 3), cf)
    A.wait_vm(tok_a)
    flag_store(0)
    emit(cf)
    if CPOST:
        A.wait_vm(tok_h)
        flag_store(1)
        A.wait_both(tok_c2, A.lg)
        A("s_barrier")
        stamp(10)
    else:
        A("s_waitcnt lgkmcnt(0)")
        A("s_barrier")
        stamp(10)
        A.wait_vm(tok_h)
        flag_store(1)
    flag_poll(0)
    stamp(11)
    run(h_pieces(1))
    weave(call[32:], h_pieces(2), 4)
    if OPT.get("btouch", 0):
        A(f"v_lshlrev_b32 v9, 7, v{V_N}")
        A(f"buffer_load_dword v254, v9, s[{SWS}:{SWS+3}], s{P_ACTW2} offen sc1")
    stamp(12)
    fill = []
    h4 = h_pieces(4)
    def on_step2(n):
        G, q = n >> 2, n & 3
        if q == 0 and OPT.get("g2st") and G > 1: stamp(15 + G)
        if n == 7:
            A.wait_vm(tok["fb"])
            flag_check(1)
        fb = [lambda: (flag_load(1), tok.__setitem__("fb", A.vm))]
        if q == 0 and G2S == 0:
            if G == 1: fill.extend(fb + h_pieces(3) + h4[:4])
            elif G == 2: fill.extend(h4[4:] + h_pieces(5))
            elif G + 3 < 8: fill.extend(h_pieces(G + 3))
            elif G == 5: fill.extend(out_stores(ACC2, 0))
        elif q == 0 and G2S in (1, 2):
            if G == 1: fill.extend(fb)
            if G + 2 < 8: fill.extend(h_pieces(G + 2))
            elif G == 6: fill.extend(out_stores(ACC2, 0))
        elif q == 0:
            if G == 1: fill.extend(fb + h_pieces(3))
            elif G == 2: fill.extend(h_pieces(4) + h_pieces(5)[:4])
            elif G == 3: fill.extend(h_pieces(5)[4:] + h_pieces(6))
            elif G == 4: fill.extend(h_pieces(7))
            elif G == 5: fill.extend(out_stores(ACC2, 0))
    G2S = OPT.get("g2s", 2)
    def gaps2(n):
        if G2S == 0: return (0, 1, 2, 3) if n < 12 else (2, 3)
        if G2S == 1: return (0, 1, 2, 3) if n < 24 else (2, 3)
        if G2S == 2: return (1, 2, 3) if n < 24 else (2, 3)
        return (1, 2, 3) if n < 16 else (2, 3)
    A.wait_both(tok[("h", 1)], A.lg)
    A("s_barrier")
    stamp(13)
    gemm_loop(32, rd2, mm2, lambda n: tok[("h", n >> 2)] if (n & 3) == 0 else None, (3, 3, 2, 0),
              gaps2, fill, on_step2, start=4)
    assert not fill
    stamp(14)
    run(out_stores(ACC2, 1))
    tag_update("A")
    stamp(15)
    finish()

def role_B():
    V_OO = 24
    V_AX, V_AT = 28, 36
    V_SW, V_SR, V_P2, V_G2B, V_PB0, V_PB1, V_G1, V_GZ, V_G2, V_P2Z = 39, 40, 41, 42, 43, 44, 45, 46, 47, 253
    S_WPH, V_WPO = P0 + 12, 252
    IDF = 240
    V_WF = 48
    KACC, VACC, PK, KV, WPH = 64, 96, 128, 192, 224
    T0 = 232
    P_P1O, P_P1G, P_P2O, P_P2G, P_MSK = P0 + 1, P0 + 2, P0 + 8, P0 + 9, P0 + 10
    S_PART = 57
    SL = 768 if OPT.get('sl768', 0) else 640
    ZS = 7 if SL == 768 else 6
    NS = 16 if OPT.get('p16', 1) else 32
    WPS = OPT.get('wps', 1)
    QE = OPT.get('qe', 3)
    code_prefetch()
    A("v_lshrrev_b32 v9, 1, v3")
    A("v_xor_b32 v9, v9, v4")
    A("v_lshlrev_b32 v9, 4, v9")
    A("v_lshl_add_u32 v10, v3, 10, v9")
    slin(ST, 0, (S_CHUNK, 1 << 17), (S_WAVE, 1 << 15))
    A(f"v_add_u32 v{V_OX}, s{ST}, v10")
    A(f"v_xor_b32 v11, 64, v{V_OX}")
    A(f"v_add_u32 v{V_OX+1}, 7168, v11")
    A(f"v_add_u32 v{V_OX+2}, {2*7168}, v{V_OX}")
    A(f"v_add_u32 v{V_OX+3}, {3*7168}, v11")
    A("v_bfe_u32 v9, v3, 1, 1")
    A("v_lshlrev_b32 v9, 2, v9")
    A("v_xor_b32 v9, v9, v4")
    A("v_lshlrev_b32 v9, 4, v9")
    A(f"s_lshl_b32 s{ST}, s{S_CG}, 7")
    A(f"v_add_u32 v9, s{ST}, v9")
    A(f"s_lshl_b32 s{ST+1}, s{S_CH}, 5")
    A(f"v_add_u32 v10, s{ST+1}, v3")
    A("v_mul_u32_u24 v11, 3072, v10")
    A(f"v_add_u32 v{V_OW}, v11, v9")
    for p in range(1, 4): A(f"v_add_u32 v{V_OW+p}, {p*(8*3072-1024)}, v{V_OW}")
    A(f"v_lshl_add_u32 v{V_OO}, v10, 10, v9")
    slin(S_PART, 1024, (S_RH, 1024))
    if TCHM: touch_setup("B")
    A("s_waitcnt lgkmcnt(0)")
    srd(SW, K_WQKV, 0x180000)
    stamp(1)
    ws_shift()
    A(f"s_load_dword s{S_TAG}, s[{K_WS}:{K_WS+1}], {WS_TAGB}")
    srd(SX, K_BX, 0x200000)
    tok = {}
    def g1_pieces(i):
        slot = i & 3
        return (dma_pieces(V_OW, SW, ST + 8, slot * SLOT, pre=lambda: rot_soff(ST + 8, i, mul=196608, plus=S_PART, rot=S_ROT1)) +
                dma_pieces(V_OX, SX, ST + 10, slot * SLOT + 16384, pre=lambda: rot_soff(ST + 10, i, shift=7, rot=S_ROT1),
                           post=lambda: tok.__setitem__(i, A.vm), flags=XF))
    QSLOT = [4, 0]; OSLOT = [1, 2]
    def q_pieces(st):
        if OPT.get("qdyn", 0):
            def pre():
                A(f"s_add_u32 s{ST+9}, s{S_CHUNK}, {st}")
                A(f"s_lshr_b32 s{ST+7}, s{S_ROT1}, 1")
                A(f"s_sub_u32 s{ST+7}, s{ST+9}, s{ST+7}")
                A(f"s_and_b32 s{ST+7}, s{ST+7}, 3")
                A(f"s_xor_b32 s{ST+7}, s{ST+7}, 2")
                A(f"s_bitcmp1_b32 s{ST+7}, 1")
                A(f"s_cselect_b32 s{ST+5}, {0x20000 - 0x8000:#x}, 0")
                A(f"s_lshl_b32 s{ST+7}, s{ST+7}, 14")
                A(f"s_add_u32 s{ST+7}, s{ST+7}, s{ST+5}")
                A(f"s_add_u32 m0, s{S_M0W}, s{ST+7}")
                A(f"s_and_b32 s{ST+9}, s{ST+9}, 3")
                A(f"s_lshl_b32 s{ST+9}, s{ST+9}, 1")
                A(f"s_add_u32 s{ST+9}, s{ST+9}, s{S_RH}")
                A(f"s_mul_i32 s{ST+9}, s{ST+9}, 196608")
            return dma_pieces(V_OW, SW, ST + 9, 0, pre=pre, post=lambda: tok.__setitem__(("q", st), A.vm))
        return dma_pieces(V_OW, SW, ST + 9, QSLOT[st >> 1] * SLOT + (st & 1) * 16384,
                          pre=lambda: rot_soff(ST + 9, 2 * st, mul=196608, extra_sreg=S_RH, rot=S_ROT1), post=lambda: tok.__setitem__(("q", st), A.vm))
    OPAIR = [(1, 2), (0, 3), (4, 5), (6, 7)]
    OLDS = {}
    for st_, pr_ in enumerate(OPAIR):
        for e_ in range(2): OLDS[pr_[e_]] = OSLOT[st_ >> 1] * SLOT + (st_ & 1) * 16384 + e_ * 8192
    def o_pieces(st):
        def pre():
            A(f"s_cmp_eq_u32 s{S_RH}, 0")
            A(f"s_cselect_b32 s{ST+9}, s{KAP[OPAIR[st][0]]}, s{KAP[OPAIR[st][1]]}")
            A(f"s_lshl_b32 s{ST+9}, s{ST+9}, 16")
        return dma_pieces(V_OO, SW2, ST + 9, OSLOT[st >> 1] * SLOT + (st & 1) * 16384, pre=pre)
    run(g1_pieces(0))
    WPL = 4 * SLOT
    srd(SW2, K_WPHI, 0x4000)
    A(f"v_lshlrev_b32 v{V_LIN}, 4, v{V_LANE}")
    slin(ST, 0, (S_CG, 2048), (S_CH, 1024))
    A(f"s_lshl_b32 s{ST+1}, s{S_WAVE}, 10")
    A(f"s_add_u32 m0, s{ST+1}, {WPL:#x}")
    A(f"buffer_load_dwordx4 v{V_LIN}, s[{SW2}:{SW2+3}], s{ST} offen lds")
    late = g1_pieces(1)
    if TCHM:
        touch_srd("B"); touch(1, V_T3)()
        if TCHM == 1: late = late + [touch(4, V_T2)] + g1_pieces(2) + [touch(6, V_T2)]
    elif EARLY:
        run(late[:NPRE]); late = late[NPRE:] + g1_pieces(2)
    else:
        run(late); late = []
    if OPT.get("wtouch", 0):
        slin(ST, 0, (S_CHUNK, 32), (S_WAVE, 8))
        A(f"v_add_u32 v9, s{ST}, v4")
        A("v_mul_u32_u24 v10, 3072, v9")
        A("v_lshlrev_b32 v9, 10, v9")
        A(f"s_lshl_b32 s{ST}, s{S_CG}, 7")
        A(f"buffer_load_dword v254, v10, s[{SW}:{SW+3}], s{ST} offen")
        A(f"buffer_load_dword v254, v9, s[{SW2}:{SW2+3}], s{ST} offen")
    stamp(2)
    cut("B")
    A(f"s_lshl_b32 s{ST}, s{S_RH}, 13")
    lds_b128_addrs(V_AX, ST, 16384, 2)
    A(f"v_bfe_u32 v9, v{V_LANE}, 4, 1")
    A(f"v_bfe_u32 v13, v{V_LANE}, 1, 1")
    A("v_lshl_add_u32 v10, v9, 1, v13")
    A(f"v_bfe_u32 v13, v{V_LANE}, 3, 1")
    A(f"v_xor_b32 v13, s{S_CH}, v13")
    A("v_lshl_add_u32 v9, v13, 2, v10")
    A("v_lshlrev_b32 v9, 4, v9")
    A(f"v_and_b32 v10, 1, v{V_LANE}")
    A("v_lshl_add_u32 v9, v10, 3, v9")
    A(f"v_bfe_u32 v14, v{V_LANE}, 2, 2")
    A(f"v_lshl_add_u32 v13, v{V_G}, 3, v14")
    A(f"v_lshl_add_u32 v{V_AT}, v13, 7, v9")
    A(f"v_add_u32 v{V_AT+1}, 0x10000, v{V_AT}")
    A(f"v_add_u32 v{V_AT+2}, 0x20000, v{V_AT}")
    if OPT.get("lateset", 1): A.cap = []
    srd(SW2, K_WO, 0x80000)
    common_setup("B")
    for p in range(1, 4): A(f"v_add_u32 v{V_OO+p}, {p*7168}, v{V_OO}")
    A(f"v_bfe_u32 v9, v{V_LANE}, 4, 1")
    A(f"v_bfe_u32 v13, v{V_LANE}, 1, 1")
    A("v_lshl_add_u32 v9, v9, 1, v13")
    A("v_lshlrev_b32 v9, 3, v9")
    A(f"v_bfe_u32 v13, v{V_LANE}, 2, 2")
    A(f"v_lshl_add_u32 v13, v{V_G}, 2, v13")
    A("v_lshl_add_u32 v9, v13, 5, v9")
    slin(ST, WPL, (S_WAVE, 1024))
    A(f"v_add_u32 v{V_WPO}, s{ST}, v9")
    if NS == 32: slin(ST, 0, (S_CG, 512), (S_CH, 256), (S_CHUNK, 2), (S_RH, 1))
    else:
        slin(ST, 0, (S_CG, 256), (S_CH, 128), (S_RH, 32), (S_CHUNK, 1))
    slin(P_P1O, WS_P1, (ST, SL))
    slin(ST, 0, (S_CG, 16), (S_CHUNK, 1))
    slin(P_P2O, WS_P2, (ST, SL))
    slin(P_P1G, WS_P1, (ST, NS * SL))
    for k in range(1, 4): A(f"s_add_u32 s{P_P1G+k}, s{P_P1G}, {8*k*SL}")
    slin(ST, 0, (S_CG, 16), (S_CH, 8))
    slin(P_P2G, WS_P2, (ST, SL))
    A(f"s_mov_b32 s{P_MSK}, 0xffffff00")
    slin(P_ACTW, WS_O, (S_CHUNK, 1 << 17), (S_CG, 1 << 14), (S_RH, 1 << 12), (S_CH, 1 << 11))
    A(f"s_add_u32 s{P_ACTW2}, s{P_ACTW}, 8192")
    slin(P_ACTR, WS_O, (S_CHUNK, 1 << 17), (S_MF, 8192), (S_WAVE, 2048))
    A(f"s_lshl_b32 s{S_M0W2}, s{S_WAVE}, 11")
    A(f"s_xor_b32 s{P_ACTR2}, s{P_ACTR}, 8192")
    clears = [f"buffer_store_dwordx4 {vr(T0+16,4)}, v{V_LIN}, s[{SWS}:{SWS+3}], s{P_ACTW+(k>>1)} offen offset:{(k&1)*1024} sc1" for k in range(4)]
    A(f"s_and_b32 s{ST}, s{S_TAG}, 0xff")
    A(f"v_mov_b32 v{V_TAG}, s{ST}")
    A(f"v_mov_b32 v11, s{S_TAG}")
    A(f"v_and_b32 v9, 1, v{V_N}")
    A("v_lshlrev_b32 v9, 4, v9")
    A("v_mov_b32 v13, 0x3f80")
    A("v_lshlrev_b32 v13, v9, v13")
    A(f"v_lshrrev_b32 v9, 1, v{V_N}")
    A(f"v_lshlrev_b32 v14, 3, v{V_G}")
    A("v_sub_u32 v9, v9, v14")
    for q in range(8):
        A(f"v_cmp_eq_u32 vcc, {q}, v9")
        A(f"v_cndmask_b32_e64 v{IDF+q}, 0, v13, vcc")
    A(f"v_and_b32 v9, 15, v{V_LANE}")
    A(f"v_cmp_gt_u32 vcc, {1 << (ZS-4)}, v9")
    A("v_lshlrev_b32 v9, 4, v9")
    A(f"v_lshl_add_u32 v13, v{V_G}, {ZS}, v9")
    A("v_add_u32 v13, 512, v13")
    A(f"v_lshl_add_u32 v9, v{V_G}, 8, v9")
    A(f"v_mov_b32 v14, {OOB:#x}")
    A("v_cndmask_b32 v13, v14, v13, vcc")
    A(f"v_cndmask_b32_e64 v{V_PB0}, v9, v13, s[{S_M16}:{S_M16+1}]")
    A(f"v_cndmask_b32_e64 v{V_PB1}, v13, v9, s[{S_M16}:{S_M16+1}]")
    A(f"v_cndmask_b32_e64 v13, v13, v14, s[{S_M16}:{S_M16+1}]")
    A(f"s_cmp_eq_u32 s{S_WAVE}, 0")
    A(f"s_cselect_b64 vcc, -1, 0")
    A(f"v_cndmask_b32 v{V_P2Z}, v14, v13, vcc")
    A(f"v_and_b32 v9, 7, v{V_LANE}")
    A(f"s_lshl_b32 s{ST}, s{S_WAVE}, 7")
    A(f"v_lshl_add_u32 v9, v9, 4, s{ST}")
    A(f"v_lshrrev_b32 v13, 3, v{V_LANE}")
    A(f"v_mul_u32_u24 v13, {SL}, v13")
    A(f"v_add_u32 v{V_G1}, v9, v13")
    A(f"v_cmp_gt_u32 vcc, 8, v{V_LANE}")
    A(f"v_and_b32 v13, {NS-1}, v{V_N}")
    A(f"v_mul_u32_u24 v{V_GZ}, {SL}, v13")
    if NS == 16:
        slin(ST, 3 * SLOT, (S_WAVE, 4096))
        A(f"v_add_u32 v{V_SW}, s{ST}, v{V_LIN}")
        A(f"v_xor_b32 v{V_SR}, 0x2000, v{V_SW}")
    A(f"v_lshl_add_u32 v{V_GZ}, v{V_G}, {ZS}, v{V_GZ}")
    A(f"v_cndmask_b32 v{V_P2}, v14, v9, vcc")
    A(f"v_bfe_u32 v9, v{V_N}, 2, 1")
    A("v_lshlrev_b32 v9, 3, v9")
    A(f"v_bfe_u32 v13, v{V_N}, 3, 1")
    A("v_lshl_add_u32 v9, v13, 2, v9")
    A(f"v_and_b32 v13, 3, v{V_N}")
    A("v_add_u32 v9, v9, v13")
    A(f"v_cndmask_b32_e64 v9, v9, 32, s[{S_M16}:{S_M16+1}]")
    A("v_lshlrev_b32 v9, 4, v9")
    A(f"v_mul_u32_u24 v13, {2*SL}, v{V_G}")
    A(f"v_add_u32 v{V_G2}, v9, v13")
    A("v_mov_b32 v9, 0x100")
    A(f"v_mov_b32 v13, {1 << ZS}")
    A(f"v_cndmask_b32_e64 v9, v9, v13, s[{S_M16}:{S_M16+1}]")
    A(f"v_add_u32 v{V_G2B}, v{V_G2}, v9")
    if OPT.get("prew", 1):
        for r in range(4): A(f"v_subrev_u32 v{T0+4+r}, 1, v{V_TAG}")
        A(f"buffer_store_dwordx4 {vr(T0+4,4)}, v{V_P2Z}, s[{SWS}:{SWS+3}], s{P_P2O} offen sc1")
        A(f"buffer_store_dwordx4 {vr(T0+4,4)}, v{V_P2}, s[{SWS}:{SWS+3}], s{P_P2O} offen sc1")
    A("v_mov_b32 v3, 0x3f803f80")
    A(f"v_bfe_u32 v4, v{V_LANE}, 2, 1")
    A("v_mul_u32_u24 v4, 0x8000, v4")
    A("v_lshl_or_b32 v4, v4, 16, v4")
    SET, A.cap = (A.cap or []), None
    LATEV = [x for x in SET if x.startswith("buffer_")]
    SET = [x for x in SET if not x.startswith("buffer_")]
    for _ in range(OPT.get("pset", 0)):
        if not SET or SET[0] == "@consts": break
        if SET[0].startswith(f"s_add_u32 s{S_TAG},"): A("s_waitcnt lgkmcnt(0)")
        A(SET.pop(0))
    while SET and (SET[0].startswith("s_addc") or SET[0].startswith("s_cselect")): A(SET.pop(0))
    if "@consts" in SET:
        k_ = SET.index("@consts")
        SET = SET[:k_] + ["@hold"] + SET[k_+1:]
    stamp(3)
    run(late)
    def trfrag(dst, ldsoff, kind="v"):
        s_, off = ldsoff >> 16, ldsoff & 0xffff
        return [f"ds_read_b64_tr_b16 {vr(dst+2*j,2,kind)}, v{V_AT+s_} offset:{off+j*512}" for j in range(2)]
    def rd(n):
        i, ks = n >> 2, n & 3
        slot, buf = i & 3, n & 1
        s2_, off = slot >> 1, (slot & 1) * SLOT
        x = [f"ds_read_b128 {ar(n*8+m*4,4)}, v{V_AX+4*s2_+ks} offset:{off+m*4096}" for m in range(2)]
        w = [trfrag(V_WF + buf * 8 + part * 4, slot * SLOT + part * 8192 + ks * 2048) for part in range(2)]
        return [x[0]] + w[0] + [x[1]] + w[1]
    def mm(n):
        buf = n & 1
        r = []
        for part, m in ((0, 0), (0, 1), (1, 0), (1, 1)):
            x, w = ar(n * 8 + m * 4, 4), vr(V_WF + buf * 8 + part * 4, 4)
            d = vr((KACC, VACC)[part] + 16 * m, 16)
            r.append(mf(d, w, x, d if n else "0") if part == 0 else mf(d, x, w, d if n else "0"))
        return r
    fill = []
    def on_step(n):
        i, ks = n >> 2, n & 3
        if ks == 0 and OPT.get("g1st") and i: stamp(16 + i)
        if ks == 0:
            if TCHM == 2 and i < 2: fill.append(touch(4 + 2 * i, V_T2))
            for st in SCHED[0].get(i, []): fill.extend(g1_pieces(st))
            if i == 5: fill.extend((LATEV + q_pieces(0)) if OPT.get('lvf', 0) else (q_pieces(0) + LATEV))
            if i == 6:
                fill.extend(q_pieces(1) if QE == 3 else o_pieces(0))
                if OPT.get("ptouch", 0):
                    fill.extend([f"buffer_load_dword v254, v{V_G1}, s[{SWS}:{SWS+3}], s{P_P1G+k} offen sc1" for k in range(4)])
                    fill.append(f"buffer_load_dword v254, v{V_GZ}, s[{SWS}:{SWS+3}], s{P_P1G} offen sc1")
                    fill.extend([f"buffer_load_dword v254, v{V_G2}, s[{SWS}:{SWS+3}], s{P_P2G} offen offset:{(hh*4+jp)*640} sc1" for hh in range(2) for jp in range(2)])
                    fill.append(lambda: rdy_load(254, 254))
            elif i == 7:
                fill.extend(o_pieces(0) if QE == 3 else o_pieces(1))
                fill.append(lambda: emit([f"v_xor_b32 v{WPH+r}, v4, v{WPH+r}" for r in range(4)]))
                fill.append(lambda: emit([f"v_xor_b32 v{WPH+r}, v4, v{WPH+r}" for r in range(4, 8)]))
        if n == OPT.get('wpn', 7):
            SET.extend([f"ds_read_b64_tr_b16 {vr(WPH+4*hh+2*j,2)}, v{V_WPO} offset:{hh*512+j*256}" for hh in range(2) for j in range(2)])
    A.wait_vm(tok[0])
    A("s_barrier")
    stamp(4)
    gemm_loop(32, rd, mm, lambda n: tok[n >> 2] if (n & 3) == 0 else None, (3, 3, 0, 0), lambda n: g1_gaps(n, (7,) if QE == 1 else ()), fill, on_step, end_barrier=True, extra=SET, nextra=lambda n, g: NX)
    assert not SET
    assert not fill
    stamp(5)
    if TCHM: srd(SOUT, 100, 0x800000)
    def feat(acc):
        for m in range(2):
            for u in range(8):
                A(f"v_cvt_pk_bf16_f32 v{acc+16*m+u}, v{acc+16*m+2*u}, v{acc+16*m+2*u+1}")
            for hh in range(2):
                A(mf(vr(PK + (m * 2 + hh) * 16, 16), vr(WPH + 4 * hh, 4), vr(acc + 16 * m + 4 * hh, 4), "0"))
    def softmax_l(x, dst):
        mx, sm = T0, T0 + 2
        l = [f"v_max3_f32 v{mx}, v{x}, v{x+1}, v{x+2}"]
        for u in range(3, 15, 2):
            l.append(f"v_max3_f32 v{mx}, v{mx}, v{x+u}, v{x+u+1}")
        l.append(f"v_max_f32 v{mx}, v{mx}, v{x+15}")
        l.append(f"v_mul_f32 v{mx}, s{S_L2E}, v{mx}")
        for u in range(8):
            l.append(f"v_pk_fma_f32 {vr(x+2*u,2)}, {vr(x+2*u,2)}, s[{S_L2E}:{S_L2E+1}], {vr(mx,2)} op_sel_hi:[1,1,0] neg_lo:[0,0,1] neg_hi:[0,0,1]")
        for u in range(16):
            l.append(f"v_exp_f32 v{x+u}, v{x+u}")
        l.append(f"v_pk_add_f32 {vr(sm,2)}, {vr(x,2)}, {vr(x+2,2)}")
        for u in range(2, 8):
            l.append(f"v_pk_add_f32 {vr(sm,2)}, {vr(sm,2)}, {vr(x+2*u,2)}")
        l.append(f"v_add_f32 v{sm}, v{sm}, v{sm+1}")
        l.append(f"v_rcp_f32 v{sm}, v{sm}")
        for u in range(8):
            l.append(f"v_pk_mul_f32 {vr(x+2*u,2)}, {vr(x+2*u,2)}, {vr(sm,2)} op_sel_hi:[1,0]")
        for u in range(8):
            l.append(f"v_cvt_pk_bf16_f32 v{dst+u}, v{x+2*u}, v{x+2*u+1}")
        return l
    feat(KACC)
    for m in range(2):
        for u in range(8):
            A(f"v_cvt_pk_bf16_f32 v{VACC+16*m+u}, v{VACC+16*m+2*u}, v{VACC+16*m+2*u+1}")
    for m in range(2):
        for u in range(8):
            A(f"v_cndmask_b32_e64 v{VACC+16*m+8+u}, v3, v{VACC+16*m+u}, s[{S_M16}:{S_M16+1}]")
            A(f"v_cndmask_b32_e64 v{VACC+16*m+u}, v{VACC+16*m+u}, v3, s[{S_M16}:{S_M16+1}]")
    nbstamp(0)
    PH = [KACC + 8, KACC + 24]
    ID = T0 + 8
    def tmm(blk):
        d = vr(PK + 16 * blk, 16)
        return [mf(d, vr(PH[blk & 1] + 4 * jp, 4), vr(ID + 4 * jp, 4), d if jp else "0") for jp in range(2)]
    def tcvt(blk):
        t = PK + 16 * blk
        return [f"v_cvt_pk_bf16_f32 v{t+u}, v{t+2*u}, v{t+2*u+1}" for u in range(8)]
    def kvmm(blk):
        m, hh = blk >> 1, blk & 1
        d = vr(KV + 16 * hh, 16)
        return [mf(d, vr(PK + 16 * blk + 4 * mm_, 4), vr(VACC + 16 * m + 8 * hh + 4 * mm_, 4), d if (m or mm_) else "0") for mm_ in range(2)]
    for blk in range(4):
        l = softmax_l(PK + blk * 16, PH[blk & 1])
        if blk:
            t, kv = tmm(blk - 1), kvmm(blk - 1)
            qp = q_pieces(blk) if not QE else (q_pieces(blk + 1) if blk < 3 else o_pieces(1))
            l = l[:17] + [t[0], qp[0]] + l[17:21] + [t[1], qp[1]] + l[21:33] + tcvt(blk - 1) + l[33:50] + [kv[0], qp[2]] + l[50:58] + [kv[1], qp[3]]
        run([x for x in l if x is not None])
        nbstamp(1 + blk)
    TS = 4 if OPT.get("tag1", 1) else 1
    def tagit(r, n):
        for e in range(0, n, TS):
            A(f"v_and_or_b32 v{r+e}, v{r+e}, s{P_MSK}, v{V_TAG}")
    def pub(hh, oc):
        A(f"s_add_u32 s{ST+3}, s{P_P1O}, {(hh*4+oc)*32*SL}")
        A(f"buffer_store_dwordx4 {vr(KV+16*hh+4*oc,4)}, v{V_PB0+hh}, s[{SWS}:{SWS+3}], s{ST+3} offen sc1")
    if NS == 32:
        emit(tmm(3))
        tagit(KV, 16)
        pub(0, 0); pub(0, 1)
        emit(tcvt(3))
        emit(kvmm(3))
        nbstamp(5)
        pub(0, 2); pub(0, 3)
        tagit(KV + 16, 16)
        for oc in range(4): pub(1, oc)
    else:
        RB = PK
        def tail(rh):
            keep, send = 8 * rh, 8 - 8 * rh
            emit(tmm(3))
            for u in range(2): A(f"ds_write_b128 v{V_SW}, {vr(KV+send+4*u,4)} offset:{u*1024}")
            emit(tcvt(3))
            emit(kvmm(3))
            for u in range(2): A(f"ds_write_b128 v{V_SW}, {vr(KV+16+send+4*u,4)} offset:{(2+u)*1024}")
            A("s_waitcnt lgkmcnt(0)")
            A("s_barrier")
            for u in range(4): A(f"ds_read_b128 {vr(RB+4*u,4)}, v{V_SR} offset:{u*1024}")
            for hh in range(2):
                for jj in range(2):
                    r = KV + 16 * hh + keep + 4 * jj
                    A(f"s_add_u32 s{ST+3}, s{P_P1O}, {(hh*4+jj)*16*SL}")
                    A(f"s_waitcnt lgkmcnt({3-2*hh-jj})")
                    for u in range(2):
                        A(f"v_pk_add_f32 {vr(r+2*u,2)}, {vr(r+2*u,2)}, {vr(RB+8*hh+4*jj+2*u,2)}")
                    tagit(r, 4)
                    A(f"buffer_store_dwordx4 {vr(r,4)}, v{V_PB0+hh}, s[{SWS}:{SWS+3}], s{ST+3} offen sc1")
        l1, l2 = lab("rh1"), lab("rhj")
        A(f"s_cmp_lg_u32 s{S_RH}, 0")
        A(f"s_cbranch_scc1 {l1}")
        st_ = (A.vm, A.lg, list(A.hist))
        tail(0)
        A(f"s_branch {l2}")
        A.label(l1)
        A.vm, A.lg, A.hist = st_[0], st_[1], list(st_[2])
        tail(1)
        A.label(l2)
    QACC = KACC
    def qaddr(n):
        i, ks = n >> 2, n & 3
        return QSLOT[i >> 2] * SLOT + (i & 3) * 8192 + ks * 2048
    def rdq(n):
        return trfrag(V_WF + (n & 1) * 8, qaddr(2 * n)) + trfrag(V_WF + (n & 1) * 8 + 4, qaddr(2 * n + 1))
    def mmq(n):
        r = []
        for h in range(2):
            for m in range(2):
                d = vr(QACC + 16 * m, 16)
                r.append(mf(d, vr(V_WF + (n & 1) * 8 + 4 * h, 4), ar((2 * n + h) * 8 + m * 4, 4), d if (n or h) else "0"))
        if n == 15: r = [r[0], r[2], r[1], r[3]]
        return r
    stamp(6)
    nbflush()
    GD = VACC
    GZ = GD + 16
    g1l = [f"buffer_load_dwordx4 {vr(GD+4*k,4)}, v{V_G1}, s[{SWS}:{SWS+3}], s{P_P1G+k} offen sc1" for k in range(NS // 8)]
    g1l.append(f"buffer_load_dwordx4 {vr(GZ,4)}, v{V_GZ}, s[{SWS}:{SWS+3}], s{P_P1G} offen offset:512 sc1")
    S_D1, S_RET = P0 + 11, ST + 6
    A(f"s_mov_b32 s{S_D1}, 0")
    def try1a(block=False):
        skip = lab("sk")
        if block:
            A(f"s_cmp_lg_u32 s{S_D1}, 0")
        else:
            A(f"s_getreg_b32 s{ST+5}, hwreg(HW_REG_IB_STS, 0, 4)")
            A(f"s_or_b32 s{ST+5}, s{ST+5}, s{S_D1}")
        A(f"s_cbranch_scc1 {skip}")
        A(f"s_call_b64 s[{S_RET}:{S_RET+1}], L_try1a")
        A.label(skip)
    def sub_try1a():
        A.label("L_try1a")
        A.hist = []
        A("s_waitcnt vmcnt(0)")
        A(f"v_xor_b32 v13, v{GD}, v{V_TAG}")
        for s in [x for x in range(TS, 20, TS) if x < NS // 2 or x >= 16]:
            A(f"v_bitop3_b32 v13, v{GD+s}, v{V_TAG}, v13 bitop3:0xbe")
        A("v_and_b32 v13, 0xff, v13")
        A(f"v_cmp_ne_u32 s[{S_FAIL}:{S_FAIL+1}], 0, v13")
        A(f"s_cmp_eq_u64 s[{S_FAIL}:{S_FAIL+1}], 0")
        A("s_cbranch_scc1 L_try1a_ok")
        emit(g1l)
        A(f"s_setpc_b64 s[{S_RET}:{S_RET+1}]")
        A.label("L_try1a_ok")
        DPP = "row_mask:0xf bank_mask:0xf"
        A(f"v_permlane16_swap_b32 v{GZ}, v{GZ+2}")
        A(f"v_permlane16_swap_b32 v{GZ+1}, v{GZ+3}")
        if NS == 32:
            for u in range(0, 8, 2):
                A(f"v_pk_add_f32 {vr(GD+u,2)}, {vr(GD+u,2)}, {vr(GD+8+u,2)}")
            A(f"v_pk_add_f32 {vr(GZ,2)}, {vr(GZ,2)}, {vr(GZ+2,2)}")
        for u in range(0, 4, 2):
            A(f"v_pk_add_f32 {vr(GD+u,2)}, {vr(GD+u,2)}, {vr(GD+4+u,2)}")
        def zror(k):
            for e in range(2): A(f"v_add_f32_dpp v{GZ+e}, v{GZ+e}, v{GZ+e} row_ror:{k} {DPP}")
        zror(1)
        A(f"v_permlane32_swap_b32 v{GD}, v{GD+1}")
        A(f"v_permlane32_swap_b32 v{GD+2}, v{GD+3}")
        zror(2)
        A(f"v_add_f32 v{GD}, v{GD}, v{GD+1}")
        A(f"v_add_f32 v{GD+2}, v{GD+2}, v{GD+3}")
        zror(4)
        A(f"v_permlane16_swap_b32 v{GD}, v{GD+2}")
        A(f"v_add_f32 v{GD}, v{GD}, v{GD+2}")
        zror(8)
        A(f"v_add_f32_dpp v{GD}, v{GD}, v{GD} row_ror:8 {DPP}")
        for e in range(2): A(f"v_and_or_b32 v{GZ+e}, v{GZ+e}, s{P_MSK}, v{V_TAG}")
        A(f"v_and_or_b32 v{GD}, v{GD}, s{P_MSK}, v{V_TAG}")
        for e in range(2): A(f"v_mov_b32 v{GZ+2+e}, v{GZ+e}")
        A(f"v_mov_b32 v{GD+1}, v{GD}")
        A(f"v_permlane16_swap_b32 v{GZ}, v{GZ+2}")
        A(f"v_permlane16_swap_b32 v{GZ+1}, v{GZ+3}")
        A(f"v_permlane32_swap_b32 v{GD}, v{GD+1}")
        A(f"buffer_store_dwordx4 {vr(GZ,4)}, v{V_P2Z}, s[{SWS}:{SWS+3}], s{P_P2O} offen sc1")
        A(f"v_mov_b32 v{GD+2}, v{GD}")
        A(f"v_mov_b32 v{GD+3}, v{GD+1}")
        A(f"v_permlane16_swap_b32 v{GD}, v{GD+2}")
        A(f"v_permlane16_swap_b32 v{GD+1}, v{GD+3}")
        A(f"buffer_store_dwordx4 {vr(GD,4)}, v{V_P2}, s[{SWS}:{SWS+3}], s{P_P2O} offen sc1")
        stamp(8)
        A(f"s_mov_b32 s{S_D1}, 1")
        A(f"s_setpc_b64 s[{S_RET}:{S_RET+1}]")
    DEFER.append(sub_try1a)
    fill = []
    G1AT = OPT.get('g1at', 6)
    def on_stepq(n):
        if n == 0: fill.extend((o_pieces(1) if QE == 1 else (q_pieces(2) + q_pieces(3) if QE == 2 else [])) + o_pieces(2) + o_pieces(3) + [lambda: (rdy_load(14), tok.__setitem__('wo', A.vm))])
        if n == G1AT: fill.extend(g1l + [None])
        if n >= G1AT + 4: fill.extend([None, try1a])
    if QE == 2:
        run(q_pieces(1))
        A.wait_vm(tok[("q", 0)])
        qb = lambda n: tok[("q", n >> 2)] if n in (4, 8, 12) else None
    else:
        A.wait_vm(tok[("q", 3)])
        qb = lambda n: None
    A("s_barrier")
    stamp(26)
    gemm_loop(16, rdq, mmq, qb, (2, 2, 0, 0), lambda n: (0, 1, 2, 3) if (QE == 2 and n < 2) else (2, 3), fill, on_stepq)
    assert not fill
    stamp(7)
    feat(QACC)
    def wait1a():
        top, done = lab("w1a"), lab("w1d")
        A(f"s_mov_b32 s{S_CNT}, {SPIN_LIMIT}")
        A.label(top)
        try1a(block=True)
        A(f"s_cmp_lg_u32 s{S_D1}, 0")
        A(f"s_cbranch_scc1 {done}")
        A(f"s_sub_u32 s{S_CNT}, s{S_CNT}, 1")
        A(f"s_cbranch_scc0 {top}")
        A.label(done)
    B1 = OPT.get("blk1a", 0)
    if B1 == 0: wait1a()
    S_D2 = ST + 4
    A(f"s_mov_b32 s{S_D2}, 0")
    PHQ = KV
    FD = PK
    def loads2(rdy=True):
        for hh in range(2):
            for jp in range(2):
                r = FD + (hh * 2 + jp) * 8
                off = (hh * 4 + jp) * SL
                A(f"buffer_load_dwordx4 {vr(r,4)}, v{V_G2}, s[{SWS}:{SWS+3}], s{P_P2G} offen offset:{off} sc1")
                A(f"buffer_load_dwordx4 {vr(r+4,4)}, v{V_G2B}, s[{SWS}:{SWS+3}], s{P_P2G} offen offset:{off} sc1")
        if rdy: rdy_load(14)
    def check2():
        A(f"v_xor_b32 v13, v{FD}, v{V_TAG}")
        for s in range(1, 32):
            A(f"v_bitop3_b32 v13, v{FD+s}, v{V_TAG}, v13 bitop3:0xbe")
        rdy_check(9, 14)
        A("v_and_b32 v13, 0xff, v13")
        A("v_or_b32 v13, v13, v9")
        A(f"v_cmp_ne_u32 s[{S_FAIL}:{S_FAIL+1}], 0, v13")
    for blk in range(4):
        if blk == OPT.get("l2at", 3): loads2(False)
        emit(softmax_l(PK + blk * 16, PHQ + 8 * blk))
        if blk + 1 == B1: wait1a()
    A("s_barrier")
    stamp(9)
    KVF = VACC + 16
    ODR = [KACC, KACC + 16, PK + 32, PK + 48]
    A(f"s_lshl_b32 s{ST+5}, s{S_RH}, 12")
    A(f"v_add_u32 v{V_AX}, s{ST+5}, v{V_LIN}")
    A(f"v_add_u32 v{V_AX+1}, 0x10000, v{V_AX}")
    A(f"v_add_u32 v{V_AX+2}, 0x20000, v{V_AX}")
    slin(ST + 5, 3 * SLOT, (S_MF, 8192), (S_M0W2, 1))
    A(f"v_add_u32 v{V_AX+3}, s{ST+5}, v{V_LIN}")
    A(f"v_xor_b32 v{V_AX+4}, 0x2000, v{V_AX+3}")
    wor = []
    for n in range(32):
        wor += trfrag(n * 4, OLDS[n >> 2] + (n & 3) * 2048, "a")
    NW = OPT.get('nw', 8)
    emit(wor[:NW])
    def check2m():
        chk = [f"v_xor_b32 v13, v{FD}, v{V_TAG}"] + [f"v_bitop3_b32 v13, v{FD+s}, v{V_TAG}, v13 bitop3:0xbe" for s in range(TS, 32, TS)]
        for hh in range(2):
            for q in (2 * hh, 2 * hh + 1):
                for u in range(4):
                    A(f"v_cvt_pk_bf16_f32 v{KVF+4*q+u}, v{FD+8*q+2*u}, v{FD+8*q+2*u+1}")
            for m in range(2):
                blk = 2 * m + hh
                d = vr(ODR[blk], 16)
                for jp in range(2):
                    A(mf(d, vr(KVF + (hh * 2 + jp) * 4, 4), vr(PHQ + 8 * blk + 4 * jp, 4), d if jp else "0"))
                    k = 3 if hh == 0 else 5
                    emit(chk[:k]); chk = chk[k:]
        assert not chk
        rdy_check(9, 14)
        A("v_and_b32 v13, 0xff, v13")
        A("v_or_b32 v13, v13, v9")
        A(f"v_cmp_ne_u32 s[{S_FAIL}:{S_FAIL+1}], 0, v13")
    poll_pre(loads2, check2m)
    stamp(10)
    A("s_nop 2")
    for blk in (0, 2, 1, 3):
        m, hh = blk >> 1, blk & 1
        o = ODR[blk]
        A(f"v_add_f32 v{o+8}, 0x358637bd, v{o+8}")
        A(f"v_rcp_f32 v{o+8}, v{o+8}")
        for u in range(4):
            A(f"v_pk_mul_f32 {vr(o+2*u,2)}, {vr(o+2*u,2)}, {vr(o+8,2)} op_sel_hi:[1,0]")
        for u in range(4):
            A(f"v_cvt_pk_bf16_f32 v{o+12+u}, v{o+2*u}, v{o+2*u+1}")
        A(f"buffer_store_dwordx4 {vr(o+12,4)}, v{V_LIN}, s[{SWS}:{SWS+3}], s{P_ACTW+m} offen offset:{hh*1024} sc1")
    tok_o = A.vm
    xcc_decide(14)
    for blk in range(4):
        A(f"ds_write_b128 v{V_AX+3+(blk>>1)}, {vr(ODR[blk]+12,4)} offset:{(blk&1)*1024}")
    stamp(11)
    ELDS = [(3, 4, 0, 1)[e >> 2] * SLOT + (e & 3) * 8192 for e in range(16)]
    def of_pieces(e):
        pos, ph = SEQ[e]
        def p0():
            A(f"s_add_u32 m0, s{S_M0W2}, {ELDS[e]:#x}")
            A(f"s_lshl_b32 s{ST+8}, s{KAP[pos]}, 14")
            A(f"s_add_u32 s{ST+8}, s{ST+8}, s{P_ACTR+ph}")
            A(f"buffer_load_dwordx4 v{V_LIN}, s[{SWS}:{SWS+3}], s{ST+8} offen {PLF}lds")
        def p1():
            A(f"buffer_load_dwordx4 v{V_LIN}, s[{SWS}:{SWS+3}], s{ST+8} offen offset:1024 {PLF}lds")
            tok[("of", e)] = A.vm
        return [p0, p1]
    OF = PK
    OACC = VACC
    def rd4(n):
        return [f"ds_read_b128 {vr(OF+(n&1)*16+h*4,4)}, v{V_AX+(ELDS[n]>>16)} offset:{(ELDS[n]&0xffff)+h*1024}" for h in range(4)]
    def mm4(n):
        pos, ph = SEQ[n]
        d = vr(OACC + 16 * ph, 16)
        return [mf(d, vr(OF + (n & 1) * 16 + h * 4, 4), ar((4 * pos + h) * 4, 4), d if (pos or h) else "0") for h in range(4)]
    A("s_waitcnt lgkmcnt(0)")
    A("s_barrier")
    wf = wor[NW:]
    def two():
        for _ in range(2): A(wf.pop(0))
    gemm_loop(2, rd4, mm4, lambda n: None, (2, 2, 0, 0), (2, 3), [two] * 4)
    emit(wf[:16]); wf = wf[16:]
    A.wait_vm(tok_o)
    flag_store()
    emit(wf)
    flag_poll()
    stamp(12)
    for e in range(2, 7): run(of_pieces(e))
    fill = []
    def on_step4(n):
        if OPT.get("g2st") and n in (4, 7, 10, 13): stamp(16 + n // 3)
        if n == 2:
            for e in range(7, 16): fill.extend(of_pieces(e))
        if n == 10: fill.extend(out_stores(OACC, 0))
    A.wait_both(tok[("of", 3)], A.lg)
    A("s_barrier")
    stamp(13)
    BND = {4: 6, 7: 9, 10: 12, 13: 15}
    gemm_loop(16, rd4, mm4, lambda n: tok[("of", BND[n])] if n in BND else None, (2, 2, 0, 0),
              lambda n: (1, 2, 3) if n >= 10 else (0, 1, 2, 3), fill, on_step4, start=2)
    assert not fill
    stamp(14)
    run(out_stores(OACC, 1))
    tag_update("B")
    stamp(15)
    finish()

prologue()
vm0, lg0 = A.vm, A.lg
role_A()
for f in DEFER: f()
DEFER.clear()
A.label("L_roleB")
ROLE[0] = "B"
A.vm, A.lg = vm0, lg0
A.hist = []
role_B()
for f in DEFER: f()
A.label("L_end")
A("s_endpgm")

iB = A.out.index("L_roleB:")
iE = A.out.index("L_end:")
if OPT.get("bfirst", 1):
    lines = A.out[:CUT["P"]] + A.out[iB:CUT["B"]] + A.out[CUT["P"]:CUT["A"]] + A.out[CUT["B"]:iE] + A.out[CUT["A"]:iB] + A.out[iE:]
else:
    lines = A.out[:CUT["A"]] + A.out[iB:CUT["B"]] + A.out[CUT["A"]:iB] + A.out[CUT["B"]:]
if OPT["align"]:
    lines, nw, nn = align(lines, min_nop=OPT.get('minnop', 12))
    print("align: widened", nw, "nops", nn)
HEAD = open("cdna_kernels/" + NAME + ".s.ref").read().split("; Override launch geometry")[0]
src = HEAD + f"""; @launch grid=(256,1,1) block=(256,1,1) lds=163840
; One persistent launch, one workgroup per CU (generated by a Python script; all instruction streams hand scheduled).
;   role A (128 WGs): U = x.B^T (MFMA) -> chunked complex scan with a cross-workgroup carry exchange -> y = h.C^T + x*Dskip
;   role B (128 WGs): k,v,q projections -> dual softmax features -> kv/z reduce-scatter + all-gather -> o -> o.wo
; Hand-offs go through d_ws with write-through stores and launch-unique tags (tag = word found in d_ws on entry + 1);
; every wait is bounded.
.amdgcn_target "amdgcn-amd-amdhsa--gfx950"
.text
.globl {NAME}_kernel
.p2align 8
.type {NAME}_kernel,@function
{NAME}_kernel:
""" + "\n".join(lines) + f"""
.fill 8192, 4, 0xBF810000
.section .rodata,"a"
.p2align 6
.amdhsa_kernel {NAME}_kernel
  .amdhsa_next_free_vgpr 512
  .amdhsa_next_free_sgpr 102
  .amdhsa_accum_offset 256
  .amdhsa_group_segment_fixed_size 0
  .amdhsa_kernarg_size 128
  .amdhsa_user_sgpr_count 2
  .amdhsa_user_sgpr_kernarg_segment_ptr 1
  .amdhsa_system_sgpr_workgroup_id_x 1
.end_amdhsa_kernel
"""
open(sys.argv[1], "w").write(src)
print("hazard nops:", A.nnop, "lines:", len(lines))
```

```python
import sys
from dsl import Asm, vr, ar, sr
from align import align

NAME = "concat_heads__ssm_conv_s5__linear_kernel_hedgehog__prompt"
OPT = dict(stamps=False, rotmode=2, align=1, xnt=0, hwait=8, owait=4, hand=0)
for a_ in sys.argv[2:]:
    k_, _, v_ = a_.partition("=")
    OPT[k_] = int(v_) if v_ else True

WS_TAGA, WS_TAGB = 0x0, 0x80
WS_XCC = 0x8000
WS_FLAG = 0x2000
WS_SA = 0x10000
WS_P1 = 0x100000
WS_P2 = 0x3C0000
WS_H = 0x400000
WS_O = 0x800000
WS_STAMP = 0xA00000
OOB = 0x40000000
SPIN_LIMIT = 1 << 14
LOG2E = 0x3FB8AA3B
INV2PI = 0x3E22F983

S_WAVE, S_CHUNK, S_CG, S_ROT, S_TAG = 3, 4, 5, 6, 7
SX, SW, SW2, SWS, SOUT = 8, 12, 16, 20, 24
S_RH, S_CH, S_SLOT, S_GRP = 28, 29, 30, 31
ST = 32
S_M0W, S_M0W2 = 48, 49
S_MG = 50
S_MRH = 52
S_L2E = 54
S_CNT = 56
S_FAIL = 58
S_M16 = 60
S_SM0, S_RS = 62, 63
S_XW, S_SLOW, P_FLW = 91, 92, 93
S_ROT1 = 47
KAP = [62, 63, 44, 45, 86, 87, 94, 95]
SEQ = [(0, 0), (0, 1)] + [(j, 0) for j in range(1, 8)] + [(j, 1) for j in range(1, 8)]
HAND = OPT['hand']
KA = 64
K_AX, K_LRE, K_LIM, K_BRE, K_BIM, K_CRE, K_CIM, K_LDT, K_DSK, K_BX, K_WQKV, K_WPHI, K_WO, K_OUT, K_DBG, K_WS = [KA + 2 * i for i in range(16)]
P_FLAGB, P_FLAGO, P_XCCB, P_TAGSEL, P_OUT, P_OUT2, P_ACTR, P_ACTR2 = range(64, 72)
P_ACTW, P_ACTW2, S_MF = 88, 89, 90
P0 = 72
S_STAMP = 96
V_LANE, V_OUTO, V_N, V_G, V_LIN, V_TAG, V_L0, V_CHK, V_XPO = 1, 2, 5, 6, 7, 8, 10, 12, 15
V_OX, V_OW = 16, 20
SLOT = 32768

A = Asm()
CUT = {}
nlab = [0]

def srd(dst, ptr, nbytes):
    A(f"s_mov_b32 s{dst}, s{ptr}")
    A(f"s_mov_b32 s{dst+1}, s{ptr+1}")
    A(f"s_mov_b32 s{dst+2}, {nbytes:#x}")
    A(f"s_mov_b32 s{dst+3}, 0x20000")

def slin(dst, const, *terms):
    first = True
    for reg, mul in terms:
        t = dst if first else ST + 14
        if mul == 1:
            if first: A(f"s_mov_b32 s{dst}, s{reg}")
            else: t = reg
        elif mul & (mul - 1) == 0: A(f"s_lshl_b32 s{t}, s{reg}, {mul.bit_length()-1}")
        else: A(f"s_mul_i32 s{t}, s{reg}, {mul}")
        if not first: A(f"s_add_u32 s{dst}, s{dst}, s{t}")
        first = False
    if const: A(f"s_add_u32 s{dst}, s{dst}, {const:#x}")

ROLE = ["A"]
def stamp(idx):
    if OPT.get("probe") == idx + (0 if ROLE[0] == "A" else 100):
        if OPT.get("cyc"):
            A("s_memtime s[96:97]")
            A("s_waitcnt lgkmcnt(0)")
            A("s_sub_u32 s99, s96, s98")
            A("s_lshr_b32 s99, s99, 4")
        else:
            A("s_memrealtime s[96:97]")
            A("s_waitcnt lgkmcnt(0)")
            A("s_sub_u32 s99, s96, s100")
    if not OPT["stamps"]: return
    A(f"s_memtime s[{S_STAMP}:{S_STAMP+1}]")
    A("s_waitcnt lgkmcnt(0)")
    A(f"s_sub_u32 s{S_STAMP}, s{S_STAMP}, s98")
    A(f"v_writelane_b32 v255, s{S_STAMP}, {idx}")
    if OPT.get("rt") and idx <= 16:
        A(f"s_memrealtime s[{S_STAMP}:{S_STAMP+1}]")
        A("s_waitcnt lgkmcnt(0)")
        A(f"s_sub_u32 s{S_STAMP}, s{S_STAMP}, s100")
        A(f"v_writelane_b32 v255, s{S_STAMP}, {idx+44}")

NB = [32, 36, 38, 42, 58, 56]
nbuse = []
def nbstamp(k):
    if OPT.get("nb") and OPT["stamps"]:
        A(f"s_memtime s[{NB[k]}:{NB[k]+1}]"); nbuse.append(k)
def nbflush():
    if OPT.get("nb") and OPT["stamps"]:
        A("s_waitcnt lgkmcnt(0)")
        for k in nbuse:
            A(f"s_sub_u32 s{NB[k]}, s{NB[k]}, s98")
            A(f"v_writelane_b32 v255, s{NB[k]}, {17+k}")
        nbuse.clear()

def lab(n):
    nlab[0] += 1
    return f"L_{n}_{nlab[0]}"

def finish():
    if OPT.get("probe") and (OPT["probe"] >= 100) == (ROLE[0] == "B"):
        if OPT["probe"] % 100 == 16:
            A("s_waitcnt vmcnt(0)")
            stamp(16)
        l = lab("pr")
        A("s_lshl_b32 s99, s99, 1")
        A("s_add_u32 s99, s99, 2500")
        A.label(l)
        A("s_memrealtime s[96:97]")
        A("s_waitcnt lgkmcnt(0)")
        A("s_sub_u32 s96, s96, s100")
        A("s_cmp_lt_u32 s96, s99")
        A(f"s_cbranch_scc1 {l}")
    if OPT.get("fixrt"):
        l = lab("rt")
        A.label(l)
        A("s_memrealtime s[96:97]")
        A("s_waitcnt lgkmcnt(0)")
        A("s_sub_u32 s96, s96, s100")
        A(f"s_cmp_lt_u32 s96, {OPT['fixrt']}")
        A(f"s_cbranch_scc1 {l}")
    if OPT["stamps"]:
        A("s_waitcnt vmcnt(0)")
        stamp(16)
        A("v_writelane_b32 v255, s99, 30")
        A("s_memrealtime s[96:97]")
        A("v_writelane_b32 v255, s100, 40")
        A("s_waitcnt lgkmcnt(0)")
        A("v_writelane_b32 v255, s96, 41")
        slin(ST, WS_STAMP, (2, 1024), (S_WAVE, 256))
        A(f"v_lshlrev_b32 v254, 2, v{V_LANE}")
        A(f"buffer_store_dword v255, v254, s[{SWS}:{SWS+3}], s{ST} offen")
    A("s_endpgm")

def mf(d, a, b, c):
    return f"v_mfma_f32_32x32x16_bf16 {d}, {a}, {b}, {c}"

def poll(loads, check):
    top, done = lab("poll"), lab("ok")
    A(f"s_mov_b32 s{S_CNT}, {SPIN_LIMIT}")
    A.label(top)
    loads()
    A("s_waitcnt vmcnt(0)")
    check()
    A(f"s_cmp_eq_u64 s[{S_FAIL}:{S_FAIL+1}], 0")
    A(f"s_cbranch_scc1 {done}")
    A(f"s_sub_u32 s{S_CNT}, s{S_CNT}, 1")
    A(f"s_cbranch_scc0 {top}")
    A.label(done)

def poll_pre(loads, check):
    top, done = lab("poll"), lab("ok")
    A(f"s_mov_b32 s{S_CNT}, {SPIN_LIMIT}")
    A.label(top)
    A("s_waitcnt vmcnt(0)")
    check()
    A(f"s_cmp_eq_u64 s[{S_FAIL}:{S_FAIL+1}], 0")
    A(f"s_cbranch_scc1 {done}")
    loads()
    A(f"s_sub_u32 s{S_CNT}, s{S_CNT}, 1")
    A(f"s_cbranch_scc0 {top}")
    A("s_waitcnt vmcnt(0)")
    A.label(done)

def cfma_l(d, a, b, c, t):
    return [f"v_pk_fma_f32 {vr(t,2)}, {vr(a,2)}, {vr(b,2)}, {vr(c,2)} op_sel:[1,1,0] op_sel_hi:[1,0,1] neg_lo:[1,0,0]",
            f"v_pk_fma_f32 {vr(d,2)}, {vr(a,2)}, {vr(b,2)}, {vr(t,2)} op_sel:[0,0,0] op_sel_hi:[0,1,1]"]
def cmul_l(d, a, b, t):
    return [f"v_pk_mul_f32 {vr(t,2)}, {vr(a,2)}, {vr(b,2)} op_sel:[1,1] op_sel_hi:[1,0] neg_lo:[1,0]",
            f"v_pk_fma_f32 {vr(d,2)}, {vr(a,2)}, {vr(b,2)}, {vr(t,2)} op_sel:[0,0,0] op_sel_hi:[0,1,1]"]
def emit(l):
    for x in l: A(x)
def cfma(*a): emit(cfma_l(*a))
def cmul(*a): emit(cmul_l(*a))

def weave(main, fillers, every, start=0):
    for i, x in enumerate(main):
        A(x)
        if i >= start and (i - start) % every == every - 1 and fillers:
            f = fillers.pop(0)
            if isinstance(f, str): A(f)
            elif f: f()

def gemm_loop(nsteps, reads, mfmas, boundary, split, fill_gaps, fillers, on_step=None, end_barrier=False, verify=None, start=0, extra=None, nextra=None, hook=None):
    for r in reads(start): A(r)
    for n in range(start, nsteps):
        if on_step: on_step(n)
        last = n == nsteps - 1
        b = None if last else boundary(n + 1)
        b2 = boundary(n + 2) if (verify and n + 2 < nsteps) else None
        if b2 is not None: A.wait_both(b2, A.lg)
        elif b is not None and not verify: A.wait_both(b, A.lg)
        else: A("s_waitcnt lgkmcnt(0)")
        if b is not None and verify: verify(n + 1)[1]()
        rs = [] if last else list(reads(n + 1))
        ms = mfmas(n)
        for g in range(4):
            A(ms[g])
            if g == 0 and b2 is not None: verify(n + 2)[0]()
            if g == 0 and b is not None and verify: verify(n + 1)[2]()
            if g == 0 and (b is not None or (last and end_barrier)): A("s_barrier")
            for _ in range(split[g]):
                if rs: A(rs.pop(0))
            if hook and g == 1: hook.pop(0)()
            if g in (fill_gaps(n) if callable(fill_gaps) else fill_gaps) and fillers:
                f = fillers.pop(0)
                if isinstance(f, str): A(f)
                elif f: f()
            if extra:
                k = nextra(n, g) if not extra[0].startswith('ds_') else (2 if g == 2 else 0)
                while extra and k > 0:
                    if extra[0] == "@hold":
                        if n < 3: break
                        extra.pop(0); continue
                    x = extra.pop(0); A(x); k -= 1
                    if x.startswith("s_cmp") and k == 0: k = 1
        assert not rs

def dma_pieces(voff, srdreg, soff, ldsoff, pre=None, post=None, flags="", m0reg=S_M0W, same_v=False):
    def mk(p):
        def f():
            if p == 0:
                A(f"s_add_u32 m0, s{m0reg}, {ldsoff:#x}")
                if pre: pre()
            A(f"buffer_load_dwordx4 v{voff if same_v else voff+p}, s[{srdreg}:{srdreg+3}], s{soff} offen offset:{p*1024} {flags}lds")
            if p == 3 and post: post()
        return f
    return [mk(p) for p in range(4)]

def run(fs):
    for f in fs:
        if isinstance(f, str): A(f)
        else: f()

def rot_soff(dst, add, shift=None, mul=None, extra_sreg=None, plus=None, rot=S_ROT):
    A(f"s_add_u32 s{dst}, s{rot}, {add}")
    if extra_sreg is not None: A(f"s_add_u32 s{dst}, s{dst}, s{extra_sreg}")
    A(f"s_and_b32 s{dst}, s{dst}, 7")
    if shift is not None: A(f"s_lshl_b32 s{dst}, s{dst}, {shift}")
    else: A(f"s_mul_i32 s{dst}, s{dst}, {mul}")
    if plus is not None: A(f"s_add_u32 s{dst}, s{dst}, s{plus}")

def prologue():
    if OPT["stamps"] or OPT.get("cyc"): A("s_memtime s[98:99]")
    if OPT.get("fixrt") or OPT.get("probe") or OPT["stamps"]: A("s_memrealtime s[100:101]")
    A("s_cmp_ge_u32 s2, 256")
    A("s_cbranch_scc1 L_end")
    A(f"s_load_dwordx16 s[{KA}:{KA+15}], s[0:1], 0")
    A(f"s_load_dwordx16 s[{KA+16}:{KA+31}], s[0:1], 64")
    A("v_and_b32 v1, 63, v0")
    A("v_lshrrev_b32 v2, 6, v0")
    A(f"s_lshr_b32 s{S_SLOT}, s2, 3")
    A(f"v_readfirstlane_b32 s{S_WAVE}, v2")
    A(f"s_and_b32 s{ST}, s2, 3")
    A(f"s_lshl_b32 s{S_CHUNK}, s{ST}, 2")
    A(f"s_lshr_b32 s{ST+1}, s{S_SLOT}, 3")
    A(f"s_add_u32 s{S_CHUNK}, s{S_CHUNK}, s{ST+1}")
    A(f"s_and_b32 s{S_CG}, s{S_SLOT}, 7")
    A(f"s_lshl_b32 s{S_ROT}, s{ST+1}, 1")
    A(f"s_add_u32 s{S_ROT}, s{S_ROT}, s{S_CG}")
    A(f"s_and_b32 s{S_ROT}, s{S_ROT}, 7")
    rm = OPT["rotmode"]
    if rm == 8: A(f"s_mov_b32 s{S_ROT1}, s{S_ROT}")
    elif rm == 1: A(f"s_mov_b32 s{S_ROT1}, 0")
    elif rm == 3:
        A(f"s_add_u32 s{S_ROT1}, s{S_CG}, s{ST+1}")
        A(f"s_and_b32 s{S_ROT1}, s{S_ROT1}, 3")
        A(f"s_mul_i32 s{S_ROT1}, s{S_ROT1}, 3")
    else:
        A(f"s_add_u32 s{S_ROT1}, s{S_CG}, s{ST+1}")
        A(f"s_and_b32 s{S_ROT1}, s{S_ROT1}, {rm-1}")
        A(f"s_lshl_b32 s{S_ROT1}, s{S_ROT1}, {2 if rm == 2 else 1}")
    A(f"s_lshr_b32 s{S_RH}, s{S_WAVE}, 1")
    A(f"s_and_b32 s{S_CH}, s{S_WAVE}, 1")
    A(f"s_lshl_b32 s{S_M0W}, s{S_WAVE}, 12")
    slin(ST + 2, 0, (S_SLOT, 512), (S_WAVE, 128))
    A("v_and_b32 v7, 1, v0")
    A(f"v_lshl_add_u32 v7, v7, 14, s{ST+2}")
    A("v_lshrrev_b32 v3, 3, v1")
    A("v_and_b32 v4, 7, v1")
    A(f"v_and_b32 v{V_N}, 31, v1")
    A(f"v_lshrrev_b32 v{V_G}, 5, v1")
    if OPT["stamps"]: A("v_mov_b32 v255, 0")
    A("s_bitcmp0_b32 s2, 2" if OPT.get("swap", 1) else "s_bitcmp1_b32 s2, 2")
    if OPT.get("bfirst", 1):
        A("s_cbranch_scc0 L_roleA")
        CUT["P"] = len(A.out)
        A.label("L_roleA")
    else:
        A("s_cbranch_scc1 L_roleB")

WSO = OPT.get("wso", 0) << 20
def ws_shift():
    if WSO:
        A(f"s_add_u32 s{K_WS}, s{K_WS}, {WSO:#x}")
        A(f"s_addc_u32 s{K_WS+1}, s{K_WS+1}, 0")

TCHM = OPT.get("touchm", 0)
V_T3, V_T2, STC = 250, 251, 24
def touch_setup(role):
    A(f"s_and_b32 s{ST+2}, s{S_CHUNK}, 3")
    A(f"v_and_b32 v9, 15, v1")
    A(f"v_lshrrev_b32 v10, 4, v1")
    slin(ST, 0, (S_CHUNK, 1 << 17), (S_CG, 1 << 14))
    if role == "A":
        slin(ST + 1, 0, (S_CG, 1 << 16), (ST + 2, 1 << 14))
        A(f"s_cmp_eq_u32 s{S_WAVE}, 0")
        A(f"s_cselect_b32 s{ST}, s{ST}, s{ST+1}")
        A("v_lshlrev_b32 v9, 10, v9")
        A("v_lshl_add_u32 v9, v10, 7, v9")
        A(f"s_mov_b32 s{ST+3}, 128")
    else:
        slin(ST + 1, 0, (ST + 2, 16 * 3072), (S_CG, 128), (S_WAVE, 1024))
        A(f"s_cmp_eq_u32 s{S_WAVE}, 0")
        A(f"s_cselect_b32 s{ST}, s{ST}, s{ST+1}")
        A(f"s_mov_b32 s{ST+1}, 3072")
        A(f"s_mov_b32 s{ST+3}, 196608")
        A(f"s_cselect_b32 s{ST+1}, 1024, s{ST+1}")
        A(f"s_cselect_b32 s{ST+3}, 128, s{ST+3}")
        A(f"v_mul_lo_u32 v9, v9, s{ST+1}")
        A(f"v_mul_lo_u32 v10, v10, s{ST+3}")
        A("v_add_u32 v9, v9, v10")
    A(f"v_add_u32 v9, s{ST}, v9")
    A(f"v_mov_b32 v10, {OOB:#x}")
    A("v_cmp_gt_u32 vcc, 48, v1")
    A(f"v_cndmask_b32 v{V_T3}, v10, v9, vcc")
    A("v_cmp_gt_u32 vcc, 32, v1")
    A(f"v_cndmask_b32 v{V_T2}, v10, v9, vcc")
    A(f"s_mov_b32 s{S_CNT}, s{ST+3}")
def touch_srd(role):
    px, p1, p2 = (K_AX, K_BRE, K_BIM) if role == "A" else (K_BX, K_WQKV, K_WQKV)
    A(f"s_cmp_eq_u32 s{S_WAVE}, 1")
    A(f"s_cselect_b32 s{STC}, s{p1}, s{p2}")
    A(f"s_cselect_b32 s{STC+1}, s{p1+1}, s{p2+1}")
    A(f"s_mov_b32 s{STC+2}, {0x80000 if role == 'A' else 0x180000:#x}")
    A(f"s_cmp_eq_u32 s{S_WAVE}, 0")
    A(f"s_cselect_b32 s{STC}, s{px}, s{STC}")
    A(f"s_cselect_b32 s{STC+1}, s{px+1}, s{STC+1}")
    A(f"s_cselect_b32 s{STC+2}, 0x200000, s{STC+2}")
    A(f"s_cmp_eq_u32 s{S_WAVE}, 3")
    A(f"s_cselect_b32 s{STC+2}, 0, s{STC+2}")
    A(f"s_mov_b32 s{STC+3}, 0x20000")
def touch(k0, v):
    def f():
        A(f"s_mul_i32 s{ST+6}, s{S_CNT}, {k0}")
        A(f"buffer_load_dword v254, v{v}, s[{STC}:{STC+3}], s{ST+6} offen")
    return f

def cut(role):
    A(f"s_branch L_main{role}")
    CUT[role] = len(A.out)
    A.label(f"L_main{role}")

def role_rot(rm):
    if not rm: return
    if rm == 8: A(f"s_mov_b32 s{S_ROT1}, s{S_ROT}")
    elif rm == 1: A(f"s_mov_b32 s{S_ROT1}, 0")
    else:
        A(f"s_add_u32 s{S_ROT1}, s{S_CG}, s{ST+1}")
        A(f"s_and_b32 s{S_ROT1}, s{S_ROT1}, {rm-1}")
        A(f"s_lshl_b32 s{S_ROT1}, s{S_ROT1}, {2 if rm == 2 else 1}")

def code_prefetch():
    role_rot(OPT.get("rot" + ROLE[0], 0))
    A(f"s_getpc_b64 s[{ST+4}:{ST+5}]")
    A.label(f"L_pc{ROLE[0]}")
    A(f"s_add_u32 s{ST+4}, s{ST+4}, L_main{ROLE[0]}-L_pc{ROLE[0]}")
    A(f"s_addc_u32 s{ST+5}, s{ST+5}, 0")
    A(f"global_load_dword v254, v7, s[{ST+4}:{ST+5}]")

def common_setup(role):
    srd(SWS, K_WS, 0x10000000 - WSO)
    if TCHM: A(f"s_mov_b64 s[100:101], s[{K_OUT}:{K_OUT+1}]")
    else: srd(SOUT, K_OUT, 0x800000)
    A(f"s_lshl_b32 s{S_M0W2}, s{S_WAVE}, 13")
    A(f"s_mov_b32 s{S_MG}, 0")
    A(f"s_mov_b32 s{S_MG+1}, -1")
    A(f"s_sub_u32 s{S_MRH}, 0, s{S_RH}")
    A(f"s_mov_b32 s{S_MRH+1}, s{S_MRH}")
    A(f"s_mov_b32 s{S_L2E}, {LOG2E:#x}")
    A(f"s_mov_b32 s{S_L2E+1}, {LOG2E:#x}")
    A(f"s_mov_b32 s{S_M16}, 0xffff0000")
    A(f"s_mov_b32 s{S_M16+1}, 0xffff0000")
    A(f"s_add_u32 s{S_GRP}, s{S_CHUNK}, {0 if role == 'A' else 16}")
    slin(P_XCCB, WS_XCC, (S_GRP, 1024))
    if role == "A": A(f"s_mov_b32 s{S_MF}, 0")
    else: A(f"s_and_b32 s{S_MF}, s{S_CG}, 1")
    slin(P_OUT, 0 if role == "A" else 2048, (S_CHUNK, 1 << 19), (S_RH, 1 << 18), (S_CG, 256), (S_CH, 128), (S_MF, 1 << 17))
    A(f"s_xor_b32 s{P_OUT2}, s{P_OUT}, {1 << 17:#x}")
    slin(P_TAGSEL, 0, (S_CHUNK, 256), (S_CG, 16), (S_WAVE, 1))
    A(f"s_and_b32 s{ST}, s{S_CHUNK}, 3")
    A(f"s_lshl_b32 s{ST}, s{ST}, 1")
    A(f"s_mov_b32 s{KAP[0]}, s{S_CG}")
    for j in range(1, 8):
        A(f"s_add_u32 s{ST+1}, s{ST}, {j-1}")
        A(f"s_cmp_ge_u32 s{ST+1}, 7")
        A(f"s_addc_u32 s{ST+1}, s{ST+1}, 1")
        A(f"s_add_u32 s{ST+1}, s{ST+1}, s{S_CG}")
        A(f"s_and_b32 s{KAP[j]}, s{ST+1}, 7")
    if OPT.get("tlb", 0):
        A(f"v_and_b32 v9, 15, v{V_LANE}")
        A("v_lshlrev_b32 v9, 20, v9")
        A(f"buffer_load_dword v254, v9, s[{SWS}:{SWS+3}], 0 offen offset:2048")
        A(f"buffer_load_dword v254, v9, s[{SOUT}:{SOUT+3}], 0 offen")
        A(f"buffer_load_dword v254, v9, s[{SW2}:{SW2+3}], 0 offen")
    A(f"v_lshlrev_b32 v{V_LIN}, 4, v{V_LANE}")
    A(f"v_mov_b32 v{V_L0}, {OOB:#x}")
    A(f"v_cmp_eq_u32 vcc, 0, v{V_LANE}")
    if not HAND:
        A(f"v_lshlrev_b32 v{V_CHK}, 2, v{V_N}")
        slin(P_FLAGB, WS_FLAG, (S_GRP, 256))
        slin(P_FLW, 0, (S_CG, 16), (S_WAVE, 4), (P_FLAGB, 1))
        A(f"s_getreg_b32 s{S_XW}, hwreg(HW_REG_XCC_ID, 0, 4)")
    A(f"v_lshlrev_b32 v{V_XPO}, 7, v4")
    A(f"v_cndmask_b32_e64 v{V_L0}, v{V_L0}, 0, vcc")
    A(f"v_lshlrev_b32 v{V_OUTO}, 14, v{V_G}")
    A(f"v_lshl_add_u32 v{V_OUTO}, v{V_N}, 2, v{V_OUTO}")
    slin(P_FLAGO, 0, (S_CG, 128), (P_XCCB, 1))
    A("s_waitcnt lgkmcnt(0)")
    A(f"s_add_u32 s{S_TAG}, s{S_TAG}, 1")
    if OPT["stamps"]: A("s_mov_b32 s99, 0")
    if not HAND:
        A(f"s_lshl_b32 s{ST}, s{S_TAG}, 4")
        A(f"s_or_b32 s{S_XW}, s{S_XW}, s{ST}")
        A(f"v_mov_b32 v248, s{S_XW}")
        A(f"v_mov_b32 v249, {OOB:#x}")
        A("v_cmp_gt_u32 vcc, 32, v0")
        A(f"v_cndmask_b32 v249, v249, v{V_CHK}, vcc")
        A(f"buffer_store_dword v248, v249, s[{SWS}:{SWS+3}], s{P_FLAGO} offen sc1")

def lds_b128_addrs(base_reg, wave_off_sreg, const, nsets):
    A(f"v_bfe_u32 v9, v{V_N}, 1, 3")
    A(f"v_xor_b32 v9, v9, v{V_G}")
    A("v_lshlrev_b32 v9, 4, v9")
    A(f"v_lshl_add_u32 v9, v{V_N}, 7, v9")
    A(f"v_add_u32 v9, s{wave_off_sreg}, v9")
    if const: A(f"v_add_u32 v9, {const:#x}, v9")
    for ks in range(4):
        A(f"v_xor_b32 v{base_reg+ks}, {32*ks}, v9")
    for st in range(1, nsets):
        for ks in range(4): A(f"v_add_u32 v{base_reg+4*st+ks}, {st*0x10000:#x}, v{base_reg+ks}")

TCH = 250
def rdy_load(reg, dummy=9):
    A(f"buffer_load_dword v254, v{V_CHK}, s[{SWS}:{SWS+3}], s{P_FLAGB} offen offset:64 sc1")
    A(f"buffer_load_dword v{reg}, v{V_XPO}, s[{SWS}:{SWS+3}], s{P_XCCB} offen sc1")
def rdy_check(dst, reg):
    if HAND: A(f"v_xor_b32 v{dst}, s{S_TAG}, v{reg}")
    else:
        A(f"v_xor_b32 v{reg}, s{S_XW}, v{reg}")
        A(f"v_lshrrev_b32 v{dst}, 4, v{reg}")
def rdy_store():
    if HAND: A(f"buffer_store_dword v11, v{V_L0}, s[{SWS}:{SWS+3}], s{P_FLAGO} offen sc1")
def xcc_decide(reg):
    if HAND: return
    A(f"v_cmp_ne_u32 vcc, 0, v{reg}")
    A("s_cmp_lg_u64 vcc, 0")
    A(f"s_cselect_b32 s{S_SLOW}, 1, 0")
def flag_store(ph=0):
    slow, join = lab("slow"), lab("join")
    A(f"s_cmp_lg_u32 s{S_SLOW}, 0")
    A(f"s_cbranch_scc1 {slow}")
    A(f"buffer_store_dword v11, v{V_L0}, s[{SWS}:{SWS+3}], s{P_FLW} offen offset:{ph*128}")
    A.label(join)
    def later():
        A.label(slow)
        A(f"buffer_store_dword v11, v{V_L0}, s[{SWS}:{SWS+3}], s{P_FLW} offen offset:{ph*128} sc1")
        A(f"s_branch {join}")
    DEFER.append(later)
def flag_load(ph):
    A(f"buffer_load_dword v13, v{V_CHK}, s[{SWS}:{SWS+3}], s{P_FLAGB} offen offset:{ph*128} sc1")
def flag_cmp():
    A(f"v_cmp_ne_u32 s[{S_FAIL}:{S_FAIL+1}], s{S_TAG}, v13")
def flag_poll(ph=0):
    poll(lambda: flag_load(ph), flag_cmp)
def flag_check(ph):
    slow, back = lab("fslow"), lab("fback")
    flag_cmp()
    A(f"s_cmp_lg_u64 s[{S_FAIL}:{S_FAIL+1}], 0")
    A(f"s_cbranch_scc1 {slow}")
    A.label(back)
    def later():
        A.label(slow)
        A.hist = []
        flag_poll(ph)
        A(f"s_branch {back}")
    DEFER.append(later)

DEFER = []
def make_verify(pieces, slot, second):
    retry, back = lab("retry"), lab("back")
    def reads():
        A(f"v_add_u32 v9, {slot*SLOT:#x}, v{V_CHK}")
        A("ds_read_b32 v13, v9")
        A(f"ds_read_b32 v14, v9 offset:{second}")
    def cmp():
        A("v_max_u32 v13, v13, v14")
        A("v_cmp_eq_u32 vcc, -1, v13")
    def branch():
        A("s_cmp_lg_u64 vcc, 0")
        A(f"s_cbranch_scc1 {retry}")
        A.label(back)
    def later():
        top, done = lab("rl"), lab("rd")
        A.label(retry)
        A.hist = []
        A(f"s_mov_b32 s{S_SM0}, m0")
        A(f"s_mov_b32 s{S_CNT}, {SPIN_LIMIT}")
        A.label(top)
        run(pieces(S_RS))
        A("s_waitcnt vmcnt(0)")
        A("ds_read_b32 v13, v9")
        A(f"ds_read_b32 v14, v9 offset:{second}")
        A("s_waitcnt lgkmcnt(0)")
        cmp()
        A("s_cmp_eq_u64 vcc, 0")
        A(f"s_cbranch_scc1 {done}")
        A(f"s_sub_u32 s{S_CNT}, s{S_CNT}, 1")
        A(f"s_cbranch_scc0 {top}")
        A.label(done)
        if OPT["stamps"]:
            A(f"s_sub_u32 s{S_CNT}, {SPIN_LIMIT + 1}, s{S_CNT}")
            A(f"s_add_u32 s99, s99, s{S_CNT}")
        A(f"s_mov_b32 m0, s{S_SM0}")
        A(f"s_branch {back}")
    DEFER.append(later)
    return reads, cmp, branch

def tag_update(role):
    skip = lab("notag")
    A(f"s_cmp_eq_u32 s{P_TAGSEL}, {(15 if role == 'A' else 0) << 8}")
    A(f"s_cbranch_scc0 {skip}")
    A(f"buffer_store_dword v11, v{V_L0}, s[{SWS}:{SWS+3}], 0 offen offset:{WS_TAGA if role == 'A' else WS_TAGB} sc1")
    A.label(skip)

def out_stores(acc, ph):
    def mk(r):
        def f():
            row = 8 * (r >> 2) + (r & 3)
            A(f"s_add_u32 s{ST+1}, s{P_OUT+ph}, {row*4096}")
            A(f"buffer_store_dword v{acc+16*ph+r}, v{V_OUTO}, s[{SOUT}:{SOUT+3}], s{ST+1} offen {OUTF2 if ph else OUTF}")
        return f
    return [mk(r) for r in range(16)]

SCHED = {
    0: ({0: [2, 3], 1: [4], 2: [5], 3: [6], 4: [7]}, 5, {0: "all"}),
    1: ({i: [i + 2] for i in range(6)}, 6, {i: "front" for i in range(6)}),
    2: ({0: [2], 1: [3], 2: [4], 3: [5, 6], 4: [7]}, 5, {3: "all"}),
    3: ({0: [2], 1: [3], 2: [4, 5], 3: [6], 4: [7]}, 5, {2: "all"}),
    4: ({0: [2], 1: [3], 2: [4], 3: [5], 4: [6], 5: [7]}, 6, {2: "front", 3: "front", 4: "front", 5: "front"}),
    5: ({0: [2], 1: [3, 4], 2: [5], 3: [6], 4: [7]}, 5, {1: "all"}),
    6: ({i: [i + 3] for i in range(5)}, 5, {}),
    7: ({i: [i + 3] for i in range(5)}, 5, {0: "front", 1: "front"}),
    8: ({0: [2], 1: [3], 2: [4, 5], 3: [6], 4: [7]}, 5, {0: "late", 1: "late", 2: "all"}),
    9: ({0: [2], 1: [3, 4], 2: [5], 3: [6], 4: [7]}, 5, {0: "three", 1: "all", 2: "three"}),
}[OPT.get("sched", 6)]
EARLY = OPT.get("sched", 6) >= 6
NPRE = OPT.get("npre", 4)
NX = OPT.get("nx", 10)
XST = SCHED[1]
def g1_gaps(n, busy):
    i = n >> 2
    if SCHED[2].get(i) == "late": return (0, 1, 2, 3) if (n & 3) >= 2 else ((3,) if (n & 3) == 1 else ())
    if SCHED[2].get(i) == "three": return (1, 2, 3)
    if SCHED[2].get(i) in ("all", "front") or i in busy: return (0, 1, 2, 3)
    return (2, 3)
OUTF = {0: "sc1", 1: "sc1 nt", 2: "sc0 sc1", 3: "nt", 4: "", 5: "sc0 sc1 nt"}[OPT.get("outf", 0)]
OUTF2 = {0: "sc1", 3: "nt", 4: ""}[OPT.get("outf2", 0)]
XF = "nt " if OPT["xnt"] else ""
PLF = {0: "sc1 ", 1: "", 2: "sc0 ", 3: "nt "}[OPT.get("plf", 0)]

def role_A():
    V_AX, V_AW = 24, 32
    V_GO, V_SCW = 44, 3
    V_XF, V_WF = 48, 64
    URE, UIM = 80, 112
    ACC2 = 144
    HP = 176
    XS, DG, V_GE = 176, 192, 200
    V_PUB, V_XSO, V_HSO = 45, 46, 223
    P_MSK = P0 + 4
    C_LAM, C_M1, C_M2, C_L, C_MQ, C_LQ, C_C2 = 208, 210, 212, 214, 216, 218, 220
    C_DSK = 222
    T0 = 224
    P_SAB, P_SAO, P_XS0, P_XS1 = P0, P0 + 1, P0 + 2, P0 + 3
    code_prefetch()
    A("v_lshrrev_b32 v9, 1, v3")
    A("v_xor_b32 v9, v9, v4")
    A("v_lshlrev_b32 v9, 4, v9")
    A("v_lshrrev_b32 v10, 2, v3")
    A("v_lshlrev_b32 v10, 5, v10")
    A("v_and_b32 v11, 1, v3")
    A("v_lshl_add_u32 v10, v11, 4, v10")
    A("v_bfe_u32 v11, v3, 1, 1")
    A("v_add_u32 v10, v10, v11")
    A("v_lshl_add_u32 v10, v10, 10, v9")
    slin(ST, 0, (S_CHUNK, 1 << 17), (S_RH, 1 << 16), (S_CH, 1 << 13))
    A(f"v_add_u32 v{V_OX}, s{ST}, v10")
    A(f"v_xor_b32 v11, 64, v{V_OX}")
    A(f"v_add_u32 v{V_OX+1}, 1024, v11")
    A(f"v_add_u32 v{V_OX+2}, 2048, v{V_OX}")
    A(f"v_add_u32 v{V_OX+3}, 3072, v11")
    A("v_lshl_add_u32 v10, v3, 10, v9")
    slin(ST, 0, (S_CG, 1 << 16), (S_CH, 1 << 15))
    A(f"v_add_u32 v{V_OW}, s{ST}, v10")
    A(f"v_xor_b32 v11, 64, v{V_OW}")
    A(f"v_add_u32 v{V_OW+1}, 7168, v11")
    A(f"v_add_u32 v{V_OW+2}, {2*7168}, v{V_OW}")
    A(f"v_add_u32 v{V_OW+3}, {3*7168}, v11")
    slin(ST, 0, (S_CG, 128), (S_CH, 64))
    A(f"v_lshl_add_u32 v14, v{V_N}, 1, s{ST}")
    if TCHM: touch_setup("A")
    A(f"s_cmp_eq_u32 s{S_RH}, 0")
    A("s_waitcnt lgkmcnt(0)")
    A(f"s_cselect_b32 s{SW}, s{K_BRE}, s{K_BIM}")
    A(f"s_cselect_b32 s{SW+1}, s{K_BRE+1}, s{K_BIM+1}")
    A(f"s_cselect_b32 s{SW2}, s{K_CRE}, s{K_CIM}")
    A(f"s_cselect_b32 s{SW2+1}, s{K_CRE+1}, s{K_CIM+1}")
    A(f"s_mov_b32 s{SW+2}, 0x80000")
    A(f"s_mov_b32 s{SW+3}, 0x20000")
    stamp(1)
    ws_shift()
    A(f"s_load_dword s{S_TAG}, s[{K_WS}:{K_WS+1}], {WS_TAGA}")
    srd(SX, K_AX, 0x200000)
    tok = {}
    def g1_pieces(i):
        slot = i & 3
        return (dma_pieces(V_OW, SW, ST + 8, slot * SLOT, pre=lambda: rot_soff(ST + 8, i, shift=7, rot=S_ROT1)) +
                dma_pieces(V_OX, SX, ST + 8, slot * SLOT + 16384, post=lambda: tok.__setitem__(i, A.vm), flags=XF))
    CLDS = {1: 4 * SLOT, 2: 4 * SLOT + 16384, 0: 0, 3: 16384, 4: SLOT, 5: SLOT + 16384, 6: 2 * SLOT, 7: 2 * SLOT + 16384}
    CORD = [1, 2, 0, 3, 4, 5, 6, 7]
    CE = OPT.get('ce', 0)
    def c_pieces(st):
        if st in (0, 2) and OPT.get("cswap", 1):
            def pre():
                A(f"s_and_b32 s{ST+9}, s{S_CHUNK}, 3")
                A(f"s_cmp_eq_u32 s{ST+9}, 3")
                A(f"s_cselect_b32 s{ST+9}, {CLDS[2-st]:#x}, {CLDS[st]:#x}")
                A(f"s_cselect_b32 s{ST+7}, s{KAP[2-st]}, s{KAP[st]}")
                A(f"s_add_u32 m0, s{S_M0W}, s{ST+9}")
                A(f"s_lshl_b32 s{ST+9}, s{ST+7}, 7")
            return dma_pieces(V_OW, SW2, ST + 9, 0, pre=pre)
        return dma_pieces(V_OW, SW2, ST + 9, CLDS[st], pre=lambda: A(f"s_lshl_b32 s{ST+9}, s{KAP[st]}, 7"))
    ADL = OPT.get("adl", 1)
    SML = OPT.get("sml", 1) if not ADL else 0
    def small():
        A(f"global_load_ushort v{T0}, v14, s[{K_LRE}:{K_LRE+1}]")
        A(f"global_load_ushort v{T0+1}, v14, s[{K_LIM}:{K_LIM+1}]")
        A(f"global_load_ushort v{T0+2}, v14, s[{K_LDT}:{K_LDT+1}]")
        A(f"global_load_ushort v{C_DSK}, v14, s[{K_DSK}:{K_DSK+1}]")
    if not SML: small()
    tok_small = A.vm
    if ADL < 2: run(g1_pieces(0))
    A(f"s_mov_b32 s{SW2+2}, 0x80000")
    A(f"s_mov_b32 s{SW2+3}, 0x20000")
    late = g1_pieces(1)
    NA = OPT.get("nprea", 4) if not ADL else 0
    if ADL == 2: late = g1_pieces(0) + late
    if OPT.get("diagdelay"): late = [f"s_sleep {OPT['diagdelay']}"] + late
    if SML == 2: small()
    if TCHM:
        touch_srd("A"); touch(1, V_T3)()
        if TCHM == 1: late = late + [touch(4, V_T2)] + g1_pieces(2) + [touch(6, V_T2)]
    elif EARLY:
        run(late[:NA]); late = late[NA:] + g1_pieces(2)
    else:
        run(late); late = []
    if SML == 1: small()
    if OPT.get("wtouch", 0):
        slin(ST, 0, (S_CG, 1 << 16), (S_CHUNK, 4096), (S_CH, 2048))
        A(f"v_and_b32 v9, 15, v{V_LANE}")
        A("v_lshlrev_b32 v9, 7, v9")
        A(f"buffer_load_dword v254, v9, s[{SW2}:{SW2+3}], s{ST} offen")
    stamp(2)
    cut("A")
    A(f"s_lshl_b32 s{ST}, s{S_RH}, 13")
    lds_b128_addrs(V_AX, ST, 16384, 2)
    A(f"s_lshl_b32 s{ST}, s{S_CH}, 12")
    lds_b128_addrs(V_AW, ST, 0, 3)
    XLDS = OPT.get("xlds", 1)
    S_XI = 57
    if XLDS:
        V_XA = ACC2
        A(f"s_sub_u32 s{S_XI}, s{S_CG}, s{S_ROT1}")
        A(f"s_and_b32 s{S_XI}, s{S_XI}, 7")
        A(f"s_and_b32 s{ST+1}, s{S_XI}, 3")
        slin(ST, 16384, (ST + 1, SLOT), (S_RH, 8192))
        A(f"v_bfe_u32 v9, v{V_N}, 1, 2")
        A(f"v_and_b32 v10, 1, v{V_N}")
        A("v_lshl_add_u32 v9, v9, 2, v10")
        A(f"v_bfe_u32 v10, v{V_N}, 4, 1")
        A("v_lshl_add_u32 v10, v9, 1, v10")
        A(f"v_bfe_u32 v11, v{V_N}, 3, 1")
        A("v_lshl_add_u32 v10, v11, 5, v10")
        A("v_and_b32 v9, 7, v9")
        A(f"s_lshl_b32 s{ST+1}, s{S_CH}, 2")
        A(f"v_lshl_add_u32 v11, v{V_G}, 1, s{ST+1}")
        A("v_xor_b32 v9, v9, v11")
        A("v_lshlrev_b32 v9, 4, v9")
        A("v_lshl_add_u32 v9, v10, 7, v9")
        A(f"v_add_u32 v{V_XA}, s{ST}, v9")
        A(f"v_xor_b32 v{V_XA+1}, 16, v{V_XA}")
        A(f"v_xor_b32 v{V_XA+2}, 32, v{V_XA}")
        A(f"v_xor_b32 v{V_XA+3}, 48, v{V_XA}")
    if OPT.get("lateset", 1): A.cap = []
    common_setup("A")
    slin(P_SAB, WS_SA, (S_CG, 8192))
    A(f"s_sub_u32 s{ST}, 15, s{S_CHUNK}")
    slin(P_SAO, 0, (ST, 512), (S_CH, 256), (P_SAB, 1))
    A(f"s_mov_b32 s{P_MSK}, 0xffffff00")
    slin(P_XS0, 0, (S_CHUNK, 1 << 17), (S_RH, 1 << 16), (S_CG, 128), (S_CH, 64), (S_MF, 32768))
    A(f"s_xor_b32 s{P_XS1}, s{P_XS0}, 32768")
    slin(P_ACTW, WS_H, (S_CHUNK, 1 << 18), (S_CG, 1 << 15), (S_WAVE, 4096))
    slin(P_ACTR, WS_H, (S_CHUNK, 1 << 18), (S_WAVE, 4096), (S_MF, 16384))
    A(f"s_xor_b32 s{P_ACTR2}, s{P_ACTR}, 16384")
    A(f"v_lshlrev_b32 v9, 11, v{V_G}")
    A(f"v_lshl_add_u32 v{V_HSO}, v{V_N}, 4, v9")
    A(f"s_add_u32 s{P_ACTW2}, s{P_ACTW}, 16384")
    clears = [f"buffer_store_dwordx4 {vr(T0+24,4)}, v{V_HSO}, s[{SWS}:{SWS+3}], s{P_ACTW} offen offset:{k*512} sc1" for k in range(8)]
    A(f"s_and_b32 s{ST}, s{S_TAG}, 0xff")
    A(f"v_mov_b32 v{V_TAG}, s{ST}")
    A(f"v_mov_b32 v11, s{S_TAG}")
    A(f"v_lshlrev_b32 v{V_XSO}, 10, v{V_N}")
    A(f"v_lshl_add_u32 v{V_XSO}, v{V_G}, 5, v{V_XSO}")
    SCR = 3 * SLOT
    slin(ST, SCR, (S_CH, 256))
    A(f"v_lshl_add_u32 v4, v{V_N}, 3, s{ST}")
    A(f"s_lshl_b32 s{ST}, s{S_RH}, 10")
    A(f"v_lshl_add_u32 v3, v{V_G}, 9, v4")
    A(f"v_add_u32 v3, s{ST}, v3")
    A(f"v_lshlrev_b32 v13, 3, v{V_N}")
    A(f"v_mov_b32 v14, {OOB:#x}")
    A(f"s_or_b64 s[{ST+2}:{ST+3}], s[{S_MG}:{S_MG+1}], s[{S_MRH}:{S_MRH+1}]")
    A(f"v_cndmask_b32_e64 v{V_PUB}, v13, v14, s[{ST+2}:{ST+3}]")
    if OPT.get("prew", 1):
        for k in range(2): A(f"v_subrev_u32 v{T0+20+k}, 1, v{V_TAG}")
        A(f"buffer_store_dwordx2 {vr(T0+20,2)}, v{V_PUB}, s[{SWS}:{SWS+3}], s{P_SAO} offen sc1")
    A(f"s_sub_u32 s{ST+4}, 16, s{S_CHUNK}")
    A(f"v_lshlrev_b32 v9, 3, v{V_G}")
    A(f"v_add_u32 v9, s{ST+4}, v9")
    A(f"s_lshl_b32 s{ST+4}, s{S_CH}, 8")
    A(f"v_add_u32 v13, s{ST+4}, v13")
    A(f"v_lshl_add_u32 v{V_GO}, v9, 9, v13")
    for i in range(8):
        A(f"v_cmp_gt_u32 vcc, {16-i}, v9")
        A(f"v_cndmask_b32_e64 v{V_GE+i}, 0, v{V_TAG}, vcc")
    if SML: A.cap.append("@consts")
    if ADL: A.cap.append("@small")
    A.wait_vm(tok_small)
    lre, lim, ldt = T0, T0 + 1, T0 + 2
    A(f"v_and_b32 v9, 1, v{V_N}")
    A("v_lshlrev_b32 v9, 4, v9")
    A(f"v_lshlrev_b32 v{C_DSK}, v9, v{C_DSK}")
    A(f"v_lshrrev_b32 v9, 1, v{V_N}")
    A(f"v_lshlrev_b32 v13, 3, v{V_G}")
    A("v_sub_u32 v9, v9, v13")
    for q in range(8):
        A(f"v_cmp_eq_u32 vcc, {q}, v9")
        A(f"v_cndmask_b32_e64 v{DG+q}, 0, v{C_DSK}, vcc")
    for r in (lre, lim, ldt): A(f"v_lshlrev_b32 v{r}, 16, v{r}")
    A(f"v_mul_f32 v{ldt}, s{S_L2E}, v{ldt}")
    A(f"v_exp_f32 v{ldt}, v{ldt}")
    A(f"v_cvt_pk_bf16_f32 v{ldt}, v{ldt}, v{ldt}")
    A(f"v_lshlrev_b32 v{ldt}, 16, v{ldt}")
    A(f"v_mul_f32 v{T0+4}, v{ldt}, v{lre}")
    A(f"v_mul_f32 v{T0+5}, v{ldt}, v{lim}")
    A(f"v_mul_f32 v{T0+4}, s{S_L2E}, v{T0+4}")
    A(f"v_exp_f32 v{T0+4}, v{T0+4}")
    A(f"v_mul_f32 v{T0+5}, {INV2PI:#x}, v{T0+5}")
    A(f"v_rndne_f32 v{T0+6}, v{T0+5}")
    A(f"v_sub_f32 v{T0+5}, v{T0+5}, v{T0+6}")
    A(f"v_cos_f32 v{T0+6}, v{T0+5}")
    A(f"v_sin_f32 v{T0+7}, v{T0+5}")
    A(f"v_mul_f32 v{C_LAM}, v{T0+4}, v{T0+6}")
    A(f"v_mul_f32 v{C_LAM+1}, v{T0+4}, v{T0+7}")
    A(f"v_add_f32 v{T0+4}, -1.0, v{C_LAM}")
    A(f"v_mul_f32 v{T0+5}, v{lre}, v{lre}")
    A(f"v_fmac_f32 v{T0+5}, v{lim}, v{lim}")
    A(f"v_rcp_f32 v{T0+5}, v{T0+5}")
    A(f"v_mul_f32 v{T0+6}, v{T0+4}, v{lre}")
    A(f"v_fmac_f32 v{T0+6}, v{C_LAM+1}, v{lim}")
    A(f"v_mul_f32 v{T0+7}, v{C_LAM+1}, v{lre}")
    A(f"v_fma_f32 v{T0+7}, -v{T0+4}, v{lim}, v{T0+7}")
    A(f"v_add_f32 v{T0+5}, v{T0+5}, v{T0+5}")
    A(f"v_mul_f32 v{C_C2}, v{T0+6}, v{T0+5}")
    A(f"v_mul_f32 v{C_C2+1}, v{T0+7}, v{T0+5}")
    pa, pb, tt = T0 + 8, T0 + 10, T0 + 12
    cmul(pa, C_LAM, C_LAM, tt)
    cmul(pb, pa, pa, tt)
    cmul(pa, pb, pb, tt)
    cmul(C_M1, pa, pa, tt)
    cmul(C_M2, C_M1, C_M1, tt)
    cmul(pa, C_M2, C_M2, tt)
    cmul(C_L, pa, pa, tt)
    def sel_pair(dst, src, mask):
        A(f"v_cndmask_b32_e64 v{dst}, 1.0, v{src}, s[{mask}:{mask+1}]")
        A(f"v_cndmask_b32_e64 v{dst+1}, 0, v{src+1}, s[{mask}:{mask+1}]")
    sel_pair(T0 + 14, C_M2, S_MG)
    sel_pair(T0 + 16, pa, S_MRH)
    cmul(C_MQ, T0 + 14, T0 + 16, tt)
    cmul(pa, C_L, C_L, tt)
    cmul(pb, pa, pa, tt)
    cmul(pa, pb, pb, tt)
    sel_pair(C_LQ, pa, S_MG)
    SET, A.cap = (A.cap or []), None
    LATEV = [x for x in SET if x.startswith("buffer_")]
    SET = [x for x in SET if not x.startswith("buffer_")]
    if ADL: A.wait_vm(tok_small) if False else None
    for _ in range(OPT.get("pset", 0) if not ADL else 1000):
        if not SET or SET[0] == "@consts": break
        if SET[0] == "@small":
            SET.pop(0); A.wait_vm(tok_small); continue
        if SET[0].startswith(f"s_add_u32 s{S_TAG},"): A("s_waitcnt lgkmcnt(0)")
        A(SET.pop(0))
    while SET and (SET[0].startswith("s_addc") or SET[0].startswith("s_cselect")): A(SET.pop(0))
    if "@consts" in SET:
        k_ = SET.index("@consts")
        SET = SET[:k_] + ["@hold"] + SET[k_+1:]
    stamp(3)
    run(late)
    def rd(n):
        i, ks = n >> 2, n & 3
        slot, buf = i & 3, n & 1
        s2_, off = slot >> 1, (slot & 1) * SLOT
        x = [f"ds_read_b128 {vr(V_XF+buf*8+m*4,4)}, v{V_AX+4*s2_+ks} offset:{off+m*4096}" for m in range(2)]
        w = [f"ds_read_b128 {vr(V_WF+buf*8+ri*4,4)}, v{V_AW+4*s2_+ks} offset:{off+ri*8192}" for ri in range(2)]
        return [x[0], w[0], w[1], x[1]]
    def mm(n):
        buf = n & 1
        r = []
        for m, ri in ((0, 0), (0, 1), (1, 1), (1, 0)):
            d = vr((URE, UIM)[ri] + 16 * m, 16)
            r.append(mf(d, vr(V_XF + buf * 8 + m * 4, 4), vr(V_WF + buf * 8 + ri * 4, 4), d if n else "0"))
        return r
    fill = []
    hook = []
    def xs_load(m, s):
        return lambda: A(f"buffer_load_dwordx4 {vr(XS+8*m+4*s,4)}, v{V_XSO}, s[{SX}:{SX+3}], s{P_XS0+m} offen offset:{16*s}")
    def xs_lds(i):
        sk = lab("nx")
        A(f"s_cmp_eq_u32 s{S_XI}, {i}")
        A(f"s_cbranch_scc0 {sk}")
        for m in range(2):
            for s_ in range(2):
                A(f"ds_read_b128 {vr(XS+8*m+4*s_,4)}, v{V_XA+2*m+s_} offset:{m*512}")
        A.label(sk)
    def on_step(n):
        i, ks = n >> 2, n & 3
        if XLDS and ks == 1: hook.append(lambda: xs_lds(i))
        if ks == 0 and OPT.get("g1st") and i: stamp(16 + i)
        if ks == 0:
            if TCHM == 2 and i < 2: fill.append(touch(4 + 2 * i, V_T2))
            for st in SCHED[0].get(i, []): fill.extend(g1_pieces(st))
            XL = [xs_load(m, s) for m in range(2) for s in range(2)] if not XLDS else []
            XO = OPT.get("xso", 1)
            if i == XST:
                if XO == 1: fill.extend(LATEV + XL)
                fill.extend(c_pieces(1) + c_pieces(2))
            elif i == XST + 1:
                if XO == 0: fill.extend(LATEV + XL)
                if CE >= 4: fill.extend(c_pieces(0) + c_pieces(3))
            elif i == 7:
                if CE == 2: fill.extend(c_pieces(0) + c_pieces(3))
                if CE >= 4: fill.extend(c_pieces(4) + c_pieces(5))
                if OPT.get("ptouch", 0):
                    fill.extend([f"buffer_load_dword v254, v{V_GO+k}, s[{SWS}:{SWS+3}], s{P_SAB} offen sc1" for k in range(4)])
                    fill.append(lambda: rdy_load(254, 254))
    A.wait_vm(tok[0])
    A("s_barrier")
    stamp(4)
    gemm_loop(32, rd, mm, lambda n: tok[n >> 2] if (n & 3) == 0 else None, (2, 2, 0, 0), lambda n: g1_gaps(n, (5,) if OPT.get('xall', 0) else ()), fill, on_step, end_barrier=True, extra=SET, nextra=lambda n, g: NX, hook=hook)
    assert not SET
    assert not fill
    stamp(5)
    if TCHM: srd(SOUT, 100, 0x800000)
    P = [T0, T0 + 4]
    def lam_bc(hi): return f"op_sel:[{hi},0,0] op_sel_hi:[{hi},1,1]"
    NEG = "neg_lo:[1,0,0] neg_hi:[1,0,0]"
    cur_re, cur_im = URE, UIM
    for s in range(1, 16):
        d = P[s & 1]
        A(f"v_pk_fma_f32 {vr(d,2)}, {vr(C_LAM,2)}, {vr(cur_im,2)}, {vr(URE+2*s,2)} {lam_bc(1)} {NEG}")
        A(f"v_pk_fma_f32 {vr(d+2,2)}, {vr(C_LAM,2)}, {vr(cur_re,2)}, {vr(UIM+2*s,2)} {lam_bc(1)}")
        A(f"v_pk_fma_f32 {vr(d,2)}, {vr(C_LAM,2)}, {vr(cur_re,2)}, {vr(d,2)} {lam_bc(0)}")
        A(f"v_pk_fma_f32 {vr(d+2,2)}, {vr(C_LAM,2)}, {vr(cur_im,2)}, {vr(d+2,2)} {lam_bc(0)}")
        cur_re, cur_im = d, d + 2
    A0, BQ = T0 + 8, T0 + 10
    A(f"v_fma_f32 v{BQ}, v{C_M1}, v{cur_re}, v{cur_re+1}")
    A(f"v_fma_f32 v{BQ+1}, v{C_M1}, v{cur_im}, v{cur_im+1}")
    A(f"v_fma_f32 v{BQ}, -v{C_M1+1}, v{cur_im}, v{BQ}")
    A(f"v_fma_f32 v{BQ+1}, v{C_M1+1}, v{cur_re}, v{BQ+1}")
    A(f"ds_write_b64 v3, {vr(BQ,2)}")
    A(f"v_mov_b32 v{A0}, v{cur_re}")
    A(f"v_mov_b32 v{A0+1}, v{cur_im}")
    P2, P3, SS, tt = T0 + 20, T0 + 22, T0 + 24, T0 + 28
    def c2_bc(hi, n=3):
        return f"op_sel:[{hi},0,0] op_sel_hi:[{hi},1,1]" if n == 3 else f"op_sel:[{hi},0] op_sel_hi:[{hi},1]"
    cm = []
    for s in range(16):
        re, im, t = URE + 2 * s, UIM + 2 * s, T0 + 2 + 2 * (s & 1)
        cm += [f"v_pk_mul_f32 {vr(t,2)}, {vr(C_C2,2)}, {vr(re,2)} {c2_bc(1,2)} neg_lo:[1,0] neg_hi:[1,0]",
               f"v_pk_mul_f32 {vr(re,2)}, {vr(C_C2,2)}, {vr(re,2)} {c2_bc(0,2)}",
               f"v_pk_fma_f32 {vr(re,2)}, {vr(C_C2,2)}, {vr(im,2)}, {vr(re,2)} {c2_bc(1)} {NEG}",
               f"v_pk_fma_f32 {vr(im,2)}, {vr(C_C2,2)}, {vr(im,2)}, {vr(t,2)} {c2_bc(0)} {NEG}"]
    emit(cm[:8])
    if HAND: A.wait_both(tok["clr"], A.lg)
    else: A("s_waitcnt lgkmcnt(0)")
    A("s_barrier")
    B0 = T0 + 12
    for q in range(4):
        A(f"ds_read_b64 {vr(B0+2*q,2)}, v4 offset:{q*512}")
    emit(cm[8:24])
    A("s_waitcnt lgkmcnt(0)")
    cfma(P2, C_M2, B0, B0 + 2, tt)
    cfma(P3, C_M2, P2, B0 + 4, tt)
    cfma(tt, C_M2, P3, B0 + 6, tt)
    A(f"v_and_or_b32 v{SS}, v{tt}, s{P_MSK}, v{V_TAG}")
    A(f"v_and_or_b32 v{SS+1}, v{tt+1}, s{P_MSK}, v{V_TAG}")
    A(f"buffer_store_dwordx2 {vr(SS,2)}, v{V_PUB}, s[{SWS}:{SWS+3}], s{P_SAO} offen sc1")
    rdy_store()
    stamp(6)
    emit(cm[24:])
    LOC = T0 + 0
    for e in range(2):
        A(f"v_cndmask_b32_e64 v{T0+2+e}, 0, v{B0+e}, s[{S_MG}:{S_MG+1}]")
        A(f"v_cndmask_b32_e64 v{T0+4+e}, v{P2+e}, v{P3+e}, s[{S_MG}:{S_MG+1}]")
        A(f"v_cndmask_b32_e64 v{LOC+e}, v{T0+2+e}, v{T0+4+e}, s[{S_MRH}:{S_MRH+1}]")
    E0, F0, E1, F1 = T0 + 12, T0 + 14, T0 + 16, T0 + 18
    cfma(P2, C_M1, LOC, A0, tt)
    cmul(F1, C_C2, P2, tt)
    cmul(F0, C_C2, LOC, tt)
    cmul(E0, C_C2, C_MQ, tt)
    cmul(E1, E0, C_M1, tt)
    V_AH = V_AX
    A(f"v_bfe_u32 v9, v{V_LANE}, 4, 1")
    A(f"v_bfe_u32 v13, v{V_LANE}, 1, 1")
    A("v_lshl_add_u32 v9, v9, 1, v13")
    A(f"v_bfe_u32 v13, v{V_LANE}, 2, 2")
    A(f"v_lshl_add_u32 v13, v{V_G}, 3, v13")
    A("v_lshlrev_b32 v14, 2, v9")
    A("v_xor_b32 v13, v13, v14")
    A("v_lshlrev_b32 v13, 4, v13")
    A("v_lshl_add_u32 v13, v9, 9, v13")
    A(f"v_and_b32 v14, 1, v{V_LANE}")
    A("v_lshl_add_u32 v13, v14, 3, v13")
    A(f"s_lshl_b32 s{ST+2}, s{S_RH}, 13")
    A(f"v_add_u32 v{V_AH}, s{ST+2}, v13")
    A(f"v_xor_b32 v{V_AH+1}, 64, v{V_AH}")
    for st in (1, 2):
        A(f"v_add_u32 v{V_AH+2*st}, {st*0x10000:#x}, v{V_AH}")
        A(f"v_add_u32 v{V_AH+2*st+1}, {st*0x10000:#x}, v{V_AH+1}")
    V_SO = T0 + 24
    for o in range(1, 4):
        A(f"v_xor_b32 v{V_SO+o}, {o*64}, v{V_HSO}")
    CPRE = 8
    A(f"s_add_u32 s{SW}, s{SWS}, s{P_SAB}")
    A(f"s_addc_u32 s{SW+1}, s{SWS+1}, 0")
    A(f"s_mov_b32 s{SW+2}, 8192")
    GD = 48
    def loads():
        for i in range(8):
            A(f"buffer_load_dwordx2 {vr(GD+2*i,2)}, v{V_GO}, s[{SW}:{SW+3}], 0 offen offset:{i*512} sc1")
        rdy_load(14)
    def check():
        A(f"v_xor_b32 v13, v{GD}, v{V_GE}")
        for i in range(1, 8):
            A(f"v_bitop3_b32 v13, v{GD+2*i}, v{V_GE+i}, v13 bitop3:0xbe")
        rdy_check(9, 14)
        A("v_and_b32 v13, 0xff, v13")
        A("v_or_b32 v13, v13, v9")
        A(f"v_cmp_ne_u32 s[{S_FAIL}:{S_FAIL+1}], 0, v13")
    CM = min(8, 2 + CE + OPT.get("cmid", 3))
    for st in CORD[2+CE:CM]: run(c_pieces(st))
    loads()
    tok_p = A.vm
    CPOST = OPT.get("cpost", 0)
    for st in CORD[CM:8-CPOST]: run(c_pieces(st))
    tok_c = A.vm
    stamp(7)
    ok = lab("ok1")
    A.wait_vm(tok_p)
    for m in range(2):
        d = vr(ACC2 + 16 * m, 16)
        A(mf(d, vr(XS + 8 * m, 4), vr(DG, 4), "0"))
    check()
    A(f"s_cmp_eq_u64 s[{S_FAIL}:{S_FAIL+1}], 0")
    A(f"s_cbranch_scc1 {ok}")
    vm_keep = A.vm
    poll(loads, check)
    A.vm = vm_keep
    A.label(ok)
    stamp(8)
    h1, h2 = T0 + 20, T0 + 22
    cur = GD + 14
    for i in range(6, -1, -1):
        d = (h1, h2)[i & 1]
        cfma(d, C_L, cur, GD + 2 * i, tt)
        cur = d
    CQ = GD
    cmul(CQ, C_LQ, cur, tt)
    for e in range(2): A(f"v_mov_b32 v{CQ+2+e}, v{CQ+e}")
    for e in range(2): A(f"v_permlane32_swap_b32 v{CQ+e}, v{CQ+2+e}")
    A(f"v_pk_add_f32 {vr(CQ,2)}, {vr(CQ,2)}, {vr(CQ+2,2)}")
    def c_reads(st):
        s2_, off = CLDS[st] >> 16, CLDS[st] & 0xffff
        r = [None] * 8
        for ks in range(4):
            for ri in range(2):
                kap = (ks >> 1) * 4 + ri * 2 + (ks & 1)
                r[kap] = f"ds_read_b128 {ar((st*8+kap)*4,4)}, v{V_AW+4*s2_+ks} offset:{off+ri*8192}"
        return r
    for m in range(2):
        d = vr(ACC2 + 16 * m, 16)
        A(mf(d, vr(XS + 8 * m + 4, 4), vr(DG + 4, 4), d))
    HR, HI = T0 + 20, T0 + 22
    A(f"v_fma_f32 v{HR}, v{E0}, v{CQ}, v{F0}")
    A(f"v_fma_f32 v{HR+1}, v{E1}, v{CQ}, v{F1}")
    A(f"v_fma_f32 v{HI}, -v{E0}, v{CQ+1}, -v{F0+1}")
    A(f"v_fma_f32 v{HI+1}, -v{E1}, v{CQ+1}, -v{F1+1}")
    A(f"v_fma_f32 v{HR}, -v{E0+1}, v{CQ+1}, v{HR}")
    A(f"v_fma_f32 v{HR+1}, -v{E1+1}, v{CQ+1}, v{HR+1}")
    A(f"v_fma_f32 v{HI}, -v{E0+1}, v{CQ}, v{HI}")
    A(f"v_fma_f32 v{HI+1}, -v{E1+1}, v{CQ}, v{HI+1}")
    pr, pi_ = HR, HI
    def hstore(ph, o):
        A(f"buffer_store_dwordx4 {vr(HP+16*ph+4*o,4)}, v{V_SO+o if o else V_HSO}, s[{SWS}:{SWS+3}], s{P_ACTW+ph} offen offset:{o*512} sc1")
    for hf in range(2):
        for s in range(8 * hf, 8 * hf + 8):
            re, im = URE + 2 * s, UIM + 2 * s
            emit([f"v_pk_fma_f32 {vr(re,2)}, {vr(C_LAM,2)}, {vr(pi_,2)}, {vr(re,2)} {lam_bc(1)}",
                  f"v_pk_fma_f32 {vr(im,2)}, {vr(C_LAM,2)}, {vr(pr,2)}, {vr(im,2)} {lam_bc(1)} {NEG}",
                  f"v_pk_fma_f32 {vr(re,2)}, {vr(C_LAM,2)}, {vr(pr,2)}, {vr(re,2)} {lam_bc(0)}",
                  f"v_pk_fma_f32 {vr(im,2)}, {vr(C_LAM,2)}, {vr(pi_,2)}, {vr(im,2)} {lam_bc(0)}"])
            pr, pi_ = re, im
        for z in range(2):
            o = 2 * z + hf
            for ri in range(2):
                U = (URE, UIM)[ri]
                for u in range(4):
                    s0 = 8 * hf + 2 * u
                    A(f"v_cvt_pk_bf16_f32 v{HP+(ri*4+o)*4+u}, v{U+2*s0+z}, v{U+2*s0+2+z}")
            for u in range(4):
                A(f"v_permlane32_swap_b32 v{HP+o*4+u}, v{HP+16+o*4+u}")
            hstore(0, o)
    tok_a = A.vm
    for o in range(4): hstore(1, o)
    tok_h = A.vm
    stamp(9)
    for st in CORD[8-CPOST:] if CPOST else []: run(c_pieces(st))
    tok_c2 = A.vm
    HS = [3, 4, 0, 1, 3, 4, 0, 1]
    def h_pieces(G):
        r = []
        for sub in range(2):
            pos, ph = SEQ[2 * G + sub]
            r += dma_pieces(V_LIN, SWS, ST + 8, HS[G] * SLOT + sub * 16384,
                            pre=lambda pos=pos, ph=ph: (A(f"s_lshl_b32 s{ST+8}, s{KAP[pos]}, 15"), A(f"s_add_u32 s{ST+8}, s{ST+8}, s{P_ACTR+ph}")),
                            post=(lambda sub=sub: tok.__setitem__(("h", G) if sub else ("h0", G), A.vm)), flags=PLF, same_v=True)
        return r
    assert CPRE == 8
    call = sum([c_reads(st) for st in [0, 1, 2, 3, 4, 5, 6, 7]], [])
    HF = 48
    def rd2(n):
        G, q = n >> 2, n & 3
        slot, buf = HS[G], n & 1
        r = []
        for h in range(4):
            kap = 4 * (q & 1) + h
            off = (slot & 1) * SLOT + (q >> 1) * 16384 + (kap >> 2) * 4096 + ((kap >> 1) & 1) * 2048 + (kap & 1) * 256
            for j in range(2):
                if True:
                    r.append(f"ds_read_b64_tr_b16 {vr(HF+buf*16+h*4+2*j,2)}, v{V_AH+2*(slot>>1)+j} offset:{off}")
        return r
    def mm2(n):
        buf = n & 1
        pos, ph = SEQ[n >> 1]
        d = vr(ACC2 + 16 * ph, 16)
        return [mf(d, vr(HF + buf * 16 + h * 4, 4), ar((8 * pos + 4 * (n & 1) + h) * 4, 4), d) for h in range(4)]
    xcc_decide(14)
    A.wait_vm(tok_c)
    A("s_barrier")
    slin(ST + 2, 3 * SLOT, (S_WAVE, 4096))
    A(f"v_add_u32 v{V_GO}, s{ST+2}, v{V_HSO}")
    for o in range(1, 4): A(f"v_xor_b32 v{V_GO+o}, {o*64}, v{V_GO}")
    for p in range(8):
        A(f"ds_write_b128 v{V_GO+(p&3)}, {vr(HP+4*p,4)} offset:{(p>>2)*16384+(p&3)*512}")
    emit(call[:8])
    A("s_waitcnt lgkmcnt(0)")
    A("s_barrier")
    cf = call[8:32]
    gemm_loop(4, rd2, mm2, lambda n: None, (3, 3, 2, 0), (2, 3), cf)
    A.wait_vm(tok_a)
    flag_store(0)
    emit(cf)
    if CPOST:
        A.wait_vm(tok_h)
        flag_store(1)
        A.wait_both(tok_c2, A.lg)
        A("s_barrier")
        stamp(10)
    else:
        A("s_waitcnt lgkmcnt(0)")
        A("s_barrier")
        stamp(10)
        A.wait_vm(tok_h)
        flag_store(1)
    flag_poll(0)
    stamp(11)
    run(h_pieces(1))
    weave(call[32:], h_pieces(2), 4)
    if OPT.get("btouch", 0):
        A(f"v_lshlrev_b32 v9, 7, v{V_N}")
        A(f"buffer_load_dword v254, v9, s[{SWS}:{SWS+3}], s{P_ACTW2} offen sc1")
    stamp(12)
    fill = []
    h4 = h_pieces(4)
    def on_step2(n):
        G, q = n >> 2, n & 3
        if q == 0 and OPT.get("g2st") and G > 1: stamp(15 + G)
        if n == 7:
            A.wait_vm(tok["fb"])
            flag_check(1)
        fb = [lambda: (flag_load(1), tok.__setitem__("fb", A.vm))]
        if q == 0 and G2S == 0:
            if G == 1: fill.extend(fb + h_pieces(3) + h4[:4])
            elif G == 2: fill.extend(h4[4:] + h_pieces(5))
            elif G + 3 < 8: fill.extend(h_pieces(G + 3))
            elif G == 5: fill.extend(out_stores(ACC2, 0))
        elif q == 0 and G2S in (1, 2):
            if G == 1: fill.extend(fb)
            if G + 2 < 8: fill.extend(h_pieces(G + 2))
            elif G == 6: fill.extend(out_stores(ACC2, 0))
        elif q == 0:
            if G == 1: fill.extend(fb + h_pieces(3))
            elif G == 2: fill.extend(h_pieces(4) + h_pieces(5)[:4])
            elif G == 3: fill.extend(h_pieces(5)[4:] + h_pieces(6))
            elif G == 4: fill.extend(h_pieces(7))
            elif G == 5: fill.extend(out_stores(ACC2, 0))
    G2S = OPT.get("g2s", 2)
    def gaps2(n):
        if G2S == 0: return (0, 1, 2, 3) if n < 12 else (2, 3)
        if G2S == 1: return (0, 1, 2, 3) if n < 24 else (2, 3)
        if G2S == 2: return (1, 2, 3) if n < 24 else (2, 3)
        return (1, 2, 3) if n < 16 else (2, 3)
    FINE = OPT.get("fineb", 1)
    A.wait_both(tok[("h0", 1) if FINE else ("h", 1)], A.lg)
    A("s_barrier")
    stamp(13)
    gemm_loop(32, rd2, mm2, lambda n: tok[("h", n >> 2)] if ((n & 3) == 0 or (FINE and n == 6)) else None, (3, 3, 2, 0),
              gaps2, fill, on_step2, start=4)
    assert not fill
    stamp(14)
    run(out_stores(ACC2, 1))
    tag_update("A")
    stamp(15)
    finish()

def role_B():
    V_OO = 24
    V_AX, V_AT = 28, 36
    V_SW, V_SR, V_P2, V_G2B, V_PB0, V_PB1, V_G1, V_GZ, V_G2, V_P2Z = 39, 40, 41, 42, 43, 44, 45, 46, 47, 253
    S_WPH, V_WPO = P0 + 12, 252
    IDF = 240
    V_WF = 48
    KACC, VACC, PK, KV, WPH = 64, 96, 128, 192, 224
    T0 = 232
    P_P1O, P_P1G, P_P2O, P_P2G, P_MSK = P0 + 1, P0 + 2, P0 + 8, P0 + 9, P0 + 10
    S_PART = 57
    SL = 768 if OPT.get('sl768', 0) else 640
    ZS = 7 if SL == 768 else 6
    NS = 16 if OPT.get('p16', 1) else 32
    WPS = OPT.get('wps', 1)
    QE = OPT.get('qe', 3)
    code_prefetch()
    A("v_lshrrev_b32 v9, 1, v3")
    A("v_xor_b32 v9, v9, v4")
    A("v_lshlrev_b32 v9, 4, v9")
    A("v_lshl_add_u32 v10, v3, 10, v9")
    slin(ST, 0, (S_CHUNK, 1 << 17), (S_WAVE, 1 << 15))
    A(f"v_add_u32 v{V_OX}, s{ST}, v10")
    A(f"v_xor_b32 v11, 64, v{V_OX}")
    A(f"v_add_u32 v{V_OX+1}, 7168, v11")
    A(f"v_add_u32 v{V_OX+2}, {2*7168}, v{V_OX}")
    A(f"v_add_u32 v{V_OX+3}, {3*7168}, v11")
    A("v_bfe_u32 v9, v3, 1, 1")
    A("v_lshlrev_b32 v9, 2, v9")
    A("v_xor_b32 v9, v9, v4")
    A("v_lshlrev_b32 v9, 4, v9")
    A(f"s_lshl_b32 s{ST}, s{S_CG}, 7")
    A(f"v_add_u32 v9, s{ST}, v9")
    A(f"s_lshl_b32 s{ST+1}, s{S_CH}, 5")
    A(f"v_add_u32 v10, s{ST+1}, v3")
    A("v_mul_u32_u24 v11, 3072, v10")
    A(f"v_add_u32 v{V_OW}, v11, v9")
    for p in range(1, 4): A(f"v_add_u32 v{V_OW+p}, {p*(8*3072-1024)}, v{V_OW}")
    A(f"v_lshl_add_u32 v{V_OO}, v10, 10, v9")
    slin(S_PART, 1024, (S_RH, 1024))
    if TCHM: touch_setup("B")
    A("s_waitcnt lgkmcnt(0)")
    srd(SW, K_WQKV, 0x180000)
    stamp(1)
    ws_shift()
    A(f"s_load_dword s{S_TAG}, s[{K_WS}:{K_WS+1}], {WS_TAGB}")
    srd(SX, K_BX, 0x200000)
    tok = {}
    def g1_pieces(i):
        slot = i & 3
        return (dma_pieces(V_OW, SW, ST + 8, slot * SLOT, pre=lambda: rot_soff(ST + 8, i, mul=196608, plus=S_PART, rot=S_ROT1)) +
                dma_pieces(V_OX, SX, ST + 10, slot * SLOT + 16384, pre=lambda: rot_soff(ST + 10, i, shift=7, rot=S_ROT1),
                           post=lambda: tok.__setitem__(i, A.vm), flags=XF))
    QSLOT = [4, 0]; OSLOT = [1, 2]
    def q_pieces(st):
        if OPT.get("qdyn", 0):
            def pre():
                A(f"s_add_u32 s{ST+9}, s{S_CHUNK}, {st}")
                A(f"s_lshr_b32 s{ST+7}, s{S_ROT1}, 1")
                A(f"s_sub_u32 s{ST+7}, s{ST+9}, s{ST+7}")
                A(f"s_and_b32 s{ST+7}, s{ST+7}, 3")
                A(f"s_xor_b32 s{ST+7}, s{ST+7}, 2")
                A(f"s_bitcmp1_b32 s{ST+7}, 1")
                A(f"s_cselect_b32 s{ST+5}, {0x20000 - 0x8000:#x}, 0")
                A(f"s_lshl_b32 s{ST+7}, s{ST+7}, 14")
                A(f"s_add_u32 s{ST+7}, s{ST+7}, s{ST+5}")
                A(f"s_add_u32 m0, s{S_M0W}, s{ST+7}")
                A(f"s_and_b32 s{ST+9}, s{ST+9}, 3")
                A(f"s_lshl_b32 s{ST+9}, s{ST+9}, 1")
                A(f"s_add_u32 s{ST+9}, s{ST+9}, s{S_RH}")
                A(f"s_mul_i32 s{ST+9}, s{ST+9}, 196608")
            return dma_pieces(V_OW, SW, ST + 9, 0, pre=pre, post=lambda: tok.__setitem__(("q", st), A.vm))
        return dma_pieces(V_OW, SW, ST + 9, QSLOT[st >> 1] * SLOT + (st & 1) * 16384,
                          pre=lambda: rot_soff(ST + 9, 2 * st, mul=196608, extra_sreg=S_RH, rot=S_ROT1), post=lambda: tok.__setitem__(("q", st), A.vm))
    OPAIR = [(1, 2), (0, 3), (4, 5), (6, 7)]
    OLDS = {}
    for st_, pr_ in enumerate(OPAIR):
        for e_ in range(2): OLDS[pr_[e_]] = OSLOT[st_ >> 1] * SLOT + (st_ & 1) * 16384 + e_ * 8192
    def o_pieces(st):
        def pre():
            A(f"s_cmp_eq_u32 s{S_RH}, 0")
            A(f"s_cselect_b32 s{ST+9}, s{KAP[OPAIR[st][0]]}, s{KAP[OPAIR[st][1]]}")
            A(f"s_lshl_b32 s{ST+9}, s{ST+9}, 16")
        return dma_pieces(V_OO, SW2, ST + 9, OSLOT[st >> 1] * SLOT + (st & 1) * 16384, pre=pre)
    run(g1_pieces(0))
    WPL = 4 * SLOT
    srd(SW2, K_WPHI, 0x4000)
    A(f"v_lshlrev_b32 v{V_LIN}, 4, v{V_LANE}")
    slin(ST, 0, (S_CG, 2048), (S_CH, 1024))
    A(f"s_lshl_b32 s{ST+1}, s{S_WAVE}, 10")
    A(f"s_add_u32 m0, s{ST+1}, {WPL:#x}")
    A(f"buffer_load_dwordx4 v{V_LIN}, s[{SW2}:{SW2+3}], s{ST} offen lds")
    late = g1_pieces(1)
    if TCHM:
        touch_srd("B"); touch(1, V_T3)()
        if TCHM == 1: late = late + [touch(4, V_T2)] + g1_pieces(2) + [touch(6, V_T2)]
    elif EARLY:
        run(late[:NPRE]); late = late[NPRE:] + g1_pieces(2)
    else:
        run(late); late = []
    if OPT.get("wtouch", 0):
        slin(ST, 0, (S_CHUNK, 32), (S_WAVE, 8))
        A(f"v_add_u32 v9, s{ST}, v4")
        A("v_mul_u32_u24 v10, 3072, v9")
        A("v_lshlrev_b32 v9, 10, v9")
        A(f"s_lshl_b32 s{ST}, s{S_CG}, 7")
        A(f"buffer_load_dword v254, v10, s[{SW}:{SW+3}], s{ST} offen")
        A(f"buffer_load_dword v254, v9, s[{SW2}:{SW2+3}], s{ST} offen")
    stamp(2)
    cut("B")
    A(f"s_lshl_b32 s{ST}, s{S_RH}, 13")
    lds_b128_addrs(V_AX, ST, 16384, 2)
    A(f"v_bfe_u32 v9, v{V_LANE}, 4, 1")
    A(f"v_bfe_u32 v13, v{V_LANE}, 1, 1")
    A("v_lshl_add_u32 v10, v9, 1, v13")
    A(f"v_bfe_u32 v13, v{V_LANE}, 3, 1")
    A(f"v_xor_b32 v13, s{S_CH}, v13")
    A("v_lshl_add_u32 v9, v13, 2, v10")
    A("v_lshlrev_b32 v9, 4, v9")
    A(f"v_and_b32 v10, 1, v{V_LANE}")
    A("v_lshl_add_u32 v9, v10, 3, v9")
    A(f"v_bfe_u32 v14, v{V_LANE}, 2, 2")
    A(f"v_lshl_add_u32 v13, v{V_G}, 3, v14")
    A(f"v_lshl_add_u32 v{V_AT}, v13, 7, v9")
    A(f"v_add_u32 v{V_AT+1}, 0x10000, v{V_AT}")
    A(f"v_add_u32 v{V_AT+2}, 0x20000, v{V_AT}")
    if OPT.get("lateset", 1): A.cap = []
    srd(SW2, K_WO, 0x80000)
    common_setup("B")
    for p in range(1, 4): A(f"v_add_u32 v{V_OO+p}, {p*7168}, v{V_OO}")
    A(f"v_bfe_u32 v9, v{V_LANE}, 4, 1")
    A(f"v_bfe_u32 v13, v{V_LANE}, 1, 1")
    A("v_lshl_add_u32 v9, v9, 1, v13")
    A("v_lshlrev_b32 v9, 3, v9")
    A(f"v_bfe_u32 v13, v{V_LANE}, 2, 2")
    A(f"v_lshl_add_u32 v13, v{V_G}, 2, v13")
    A("v_lshl_add_u32 v9, v13, 5, v9")
    slin(ST, WPL, (S_WAVE, 1024))
    A(f"v_add_u32 v{V_WPO}, s{ST}, v9")
    if NS == 32: slin(ST, 0, (S_CG, 512), (S_CH, 256), (S_CHUNK, 2), (S_RH, 1))
    else:
        slin(ST, 0, (S_CG, 256), (S_CH, 128), (S_RH, 32), (S_CHUNK, 1))
    slin(P_P1O, WS_P1, (ST, SL))
    slin(ST, 0, (S_CG, 16), (S_CHUNK, 1))
    slin(P_P2O, WS_P2, (ST, SL))
    slin(P_P1G, WS_P1, (ST, NS * SL))
    for k in range(1, 4): A(f"s_add_u32 s{P_P1G+k}, s{P_P1G}, {8*k*SL}")
    slin(ST, 0, (S_CG, 16), (S_CH, 8))
    slin(P_P2G, WS_P2, (ST, SL))
    A(f"s_mov_b32 s{P_MSK}, 0xffffff00")
    slin(P_ACTW, WS_O, (S_CHUNK, 1 << 17), (S_CG, 1 << 14), (S_RH, 1 << 12), (S_CH, 1 << 11))
    A(f"s_add_u32 s{P_ACTW2}, s{P_ACTW}, 8192")
    slin(P_ACTR, WS_O, (S_CHUNK, 1 << 17), (S_MF, 8192), (S_WAVE, 2048))
    A(f"s_lshl_b32 s{S_M0W2}, s{S_WAVE}, 11")
    A(f"s_xor_b32 s{P_ACTR2}, s{P_ACTR}, 8192")
    clears = [f"buffer_store_dwordx4 {vr(T0+16,4)}, v{V_LIN}, s[{SWS}:{SWS+3}], s{P_ACTW+(k>>1)} offen offset:{(k&1)*1024} sc1" for k in range(4)]
    A(f"s_and_b32 s{ST}, s{S_TAG}, 0xff")
    A(f"v_mov_b32 v{V_TAG}, s{ST}")
    A(f"v_mov_b32 v11, s{S_TAG}")
    A(f"v_and_b32 v9, 1, v{V_N}")
    A("v_lshlrev_b32 v9, 4, v9")
    A("v_mov_b32 v13, 0x3f80")
    A("v_lshlrev_b32 v13, v9, v13")
    A(f"v_lshrrev_b32 v9, 1, v{V_N}")
    A(f"v_lshlrev_b32 v14, 3, v{V_G}")
    A("v_sub_u32 v9, v9, v14")
    for q in range(8):
        A(f"v_cmp_eq_u32 vcc, {q}, v9")
        A(f"v_cndmask_b32_e64 v{IDF+q}, 0, v13, vcc")
    A(f"v_and_b32 v9, 15, v{V_LANE}")
    A(f"v_cmp_gt_u32 vcc, {1 << (ZS-4)}, v9")
    A("v_lshlrev_b32 v9, 4, v9")
    A(f"v_lshl_add_u32 v13, v{V_G}, {ZS}, v9")
    A("v_add_u32 v13, 512, v13")
    A(f"v_lshl_add_u32 v9, v{V_G}, 8, v9")
    A(f"v_mov_b32 v14, {OOB:#x}")
    A("v_cndmask_b32 v13, v14, v13, vcc")
    A(f"v_cndmask_b32_e64 v{V_PB0}, v9, v13, s[{S_M16}:{S_M16+1}]")
    A(f"v_cndmask_b32_e64 v{V_PB1}, v13, v9, s[{S_M16}:{S_M16+1}]")
    A(f"v_cndmask_b32_e64 v13, v13, v14, s[{S_M16}:{S_M16+1}]")
    A(f"s_cmp_eq_u32 s{S_WAVE}, 0")
    A(f"s_cselect_b64 vcc, -1, 0")
    A(f"v_cndmask_b32 v{V_P2Z}, v14, v13, vcc")
    A(f"v_and_b32 v9, 7, v{V_LANE}")
    A(f"s_lshl_b32 s{ST}, s{S_WAVE}, 7")
    A(f"v_lshl_add_u32 v9, v9, 4, s{ST}")
    A(f"v_lshrrev_b32 v13, 3, v{V_LANE}")
    A(f"v_mul_u32_u24 v13, {SL}, v13")
    A(f"v_add_u32 v{V_G1}, v9, v13")
    A(f"v_cmp_gt_u32 vcc, 8, v{V_LANE}")
    A(f"v_and_b32 v13, {NS-1}, v{V_N}")
    A(f"v_mul_u32_u24 v{V_GZ}, {SL}, v13")
    if NS == 16:
        slin(ST, 3 * SLOT, (S_WAVE, 4096))
        A(f"v_add_u32 v{V_SW}, s{ST}, v{V_LIN}")
        A(f"v_xor_b32 v{V_SR}, 0x2000, v{V_SW}")
    A(f"v_lshl_add_u32 v{V_GZ}, v{V_G}, {ZS}, v{V_GZ}")
    A(f"v_cndmask_b32 v{V_P2}, v14, v9, vcc")
    A(f"v_bfe_u32 v9, v{V_N}, 2, 1")
    A("v_lshlrev_b32 v9, 3, v9")
    A(f"v_bfe_u32 v13, v{V_N}, 3, 1")
    A("v_lshl_add_u32 v9, v13, 2, v9")
    A(f"v_and_b32 v13, 3, v{V_N}")
    A("v_add_u32 v9, v9, v13")
    A(f"v_cndmask_b32_e64 v9, v9, 32, s[{S_M16}:{S_M16+1}]")
    A("v_lshlrev_b32 v9, 4, v9")
    A(f"v_mul_u32_u24 v13, {2*SL}, v{V_G}")
    A(f"v_add_u32 v{V_G2}, v9, v13")
    A("v_mov_b32 v9, 0x100")
    A(f"v_mov_b32 v13, {1 << ZS}")
    A(f"v_cndmask_b32_e64 v9, v9, v13, s[{S_M16}:{S_M16+1}]")
    A(f"v_add_u32 v{V_G2B}, v{V_G2}, v9")
    if OPT.get("prew", 1):
        for r in range(4): A(f"v_subrev_u32 v{T0+4+r}, 1, v{V_TAG}")
        A(f"buffer_store_dwordx4 {vr(T0+4,4)}, v{V_P2Z}, s[{SWS}:{SWS+3}], s{P_P2O} offen sc1")
        A(f"buffer_store_dwordx4 {vr(T0+4,4)}, v{V_P2}, s[{SWS}:{SWS+3}], s{P_P2O} offen sc1")
    A("v_mov_b32 v3, 0x3f803f80")
    A(f"v_bfe_u32 v4, v{V_LANE}, 2, 1")
    A("v_mul_u32_u24 v4, 0x8000, v4")
    A("v_lshl_or_b32 v4, v4, 16, v4")
    SET, A.cap = (A.cap or []), None
    LATEV = [x for x in SET if x.startswith("buffer_")]
    SET = [x for x in SET if not x.startswith("buffer_")]
    for _ in range(OPT.get("pset", 0)):
        if not SET or SET[0] == "@consts": break
        if SET[0].startswith(f"s_add_u32 s{S_TAG},"): A("s_waitcnt lgkmcnt(0)")
        A(SET.pop(0))
    while SET and (SET[0].startswith("s_addc") or SET[0].startswith("s_cselect")): A(SET.pop(0))
    if "@consts" in SET:
        k_ = SET.index("@consts")
        SET = SET[:k_] + ["@hold"] + SET[k_+1:]
    stamp(3)
    run(late)
    def trfrag(dst, ldsoff, kind="v"):
        s_, off = ldsoff >> 16, ldsoff & 0xffff
        return [f"ds_read_b64_tr_b16 {vr(dst+2*j,2,kind)}, v{V_AT+s_} offset:{off+j*512}" for j in range(2)]
    def rd(n):
        i, ks = n >> 2, n & 3
        slot, buf = i & 3, n & 1
        s2_, off = slot >> 1, (slot & 1) * SLOT
        x = [f"ds_read_b128 {ar(n*8+m*4,4)}, v{V_AX+4*s2_+ks} offset:{off+m*4096}" for m in range(2)]
        w = [trfrag(V_WF + buf * 8 + part * 4, slot * SLOT + part * 8192 + ks * 2048) for part in range(2)]
        return [x[0]] + w[0] + [x[1]] + w[1]
    def mm(n):
        buf = n & 1
        r = []
        for part, m in ((0, 0), (0, 1), (1, 0), (1, 1)):
            x, w = ar(n * 8 + m * 4, 4), vr(V_WF + buf * 8 + part * 4, 4)
            d = vr((KACC, VACC)[part] + 16 * m, 16)
            r.append(mf(d, w, x, d if n else "0") if part == 0 else mf(d, x, w, d if n else "0"))
        return r
    fill = []
    def on_step(n):
        i, ks = n >> 2, n & 3
        if ks == 0 and OPT.get("g1st") and i: stamp(16 + i)
        if ks == 0:
            if TCHM == 2 and i < 2: fill.append(touch(4 + 2 * i, V_T2))
            for st in SCHED[0].get(i, []): fill.extend(g1_pieces(st))
            if i == 5: fill.extend((LATEV + q_pieces(0)) if OPT.get('lvf', 0) else (q_pieces(0) + LATEV))
            if i == 6:
                fill.extend(q_pieces(1) if QE == 3 else o_pieces(0))
                if OPT.get("ptouch", 0):
                    fill.extend([f"buffer_load_dword v254, v{V_G1}, s[{SWS}:{SWS+3}], s{P_P1G+k} offen sc1" for k in range(4)])
                    fill.append(f"buffer_load_dword v254, v{V_GZ}, s[{SWS}:{SWS+3}], s{P_P1G} offen sc1")
                    fill.extend([f"buffer_load_dword v254, v{V_G2}, s[{SWS}:{SWS+3}], s{P_P2G} offen offset:{(hh*4+jp)*640} sc1" for hh in range(2) for jp in range(2)])
                    fill.append(lambda: rdy_load(254, 254))
            elif i == 7:
                fill.extend(o_pieces(0) if QE == 3 else o_pieces(1))
                fill.append(lambda: emit([f"v_xor_b32 v{WPH+r}, v4, v{WPH+r}" for r in range(4)]))
                fill.append(lambda: emit([f"v_xor_b32 v{WPH+r}, v4, v{WPH+r}" for r in range(4, 8)]))
        if n == OPT.get('wpn', 7):
            SET.extend([f"ds_read_b64_tr_b16 {vr(WPH+4*hh+2*j,2)}, v{V_WPO} offset:{hh*512+j*256}" for hh in range(2) for j in range(2)])
    A.wait_vm(tok[0])
    A("s_barrier")
    stamp(4)
    gemm_loop(32, rd, mm, lambda n: tok[n >> 2] if (n & 3) == 0 else None, (3, 3, 0, 0), lambda n: g1_gaps(n, (7,) if QE == 1 else ()), fill, on_step, end_barrier=True, extra=SET, nextra=lambda n, g: NX)
    assert not SET
    assert not fill
    stamp(5)
    if TCHM: srd(SOUT, 100, 0x800000)
    def feat(acc):
        for m in range(2):
            for u in range(8):
                A(f"v_cvt_pk_bf16_f32 v{acc+16*m+u}, v{acc+16*m+2*u}, v{acc+16*m+2*u+1}")
            for hh in range(2):
                A(mf(vr(PK + (m * 2 + hh) * 16, 16), vr(WPH + 4 * hh, 4), vr(acc + 16 * m + 4 * hh, 4), "0"))
    def softmax_l(x, dst):
        mx, sm = T0, T0 + 2
        l = [f"v_max3_f32 v{mx}, v{x}, v{x+1}, v{x+2}"]
        for u in range(3, 15, 2):
            l.append(f"v_max3_f32 v{mx}, v{mx}, v{x+u}, v{x+u+1}")
        l.append(f"v_max_f32 v{mx}, v{mx}, v{x+15}")
        l.append(f"v_mul_f32 v{mx}, s{S_L2E}, v{mx}")
        for u in range(8):
            l.append(f"v_pk_fma_f32 {vr(x+2*u,2)}, {vr(x+2*u,2)}, s[{S_L2E}:{S_L2E+1}], {vr(mx,2)} op_sel_hi:[1,1,0] neg_lo:[0,0,1] neg_hi:[0,0,1]")
        for u in range(16):
            l.append(f"v_exp_f32 v{x+u}, v{x+u}")
        l.append(f"v_pk_add_f32 {vr(sm,2)}, {vr(x,2)}, {vr(x+2,2)}")
        for u in range(2, 8):
            l.append(f"v_pk_add_f32 {vr(sm,2)}, {vr(sm,2)}, {vr(x+2*u,2)}")
        l.append(f"v_add_f32 v{sm}, v{sm}, v{sm+1}")
        l.append(f"v_rcp_f32 v{sm}, v{sm}")
        for u in range(8):
            l.append(f"v_pk_mul_f32 {vr(x+2*u,2)}, {vr(x+2*u,2)}, {vr(sm,2)} op_sel_hi:[1,0]")
        for u in range(8):
            l.append(f"v_cvt_pk_bf16_f32 v{dst+u}, v{x+2*u}, v{x+2*u+1}")
        return l
    feat(KACC)
    for m in range(2):
        for u in range(8):
            A(f"v_cvt_pk_bf16_f32 v{VACC+16*m+u}, v{VACC+16*m+2*u}, v{VACC+16*m+2*u+1}")
    for m in range(2):
        for u in range(8):
            A(f"v_cndmask_b32_e64 v{VACC+16*m+8+u}, v3, v{VACC+16*m+u}, s[{S_M16}:{S_M16+1}]")
            A(f"v_cndmask_b32_e64 v{VACC+16*m+u}, v{VACC+16*m+u}, v3, s[{S_M16}:{S_M16+1}]")
    nbstamp(0)
    PH = [KACC + 8, KACC + 24]
    ID = T0 + 8
    def tmm(blk):
        d = vr(PK + 16 * blk, 16)
        return [mf(d, vr(PH[blk & 1] + 4 * jp, 4), vr(ID + 4 * jp, 4), d if jp else "0") for jp in range(2)]
    def tcvt(blk):
        t = PK + 16 * blk
        return [f"v_cvt_pk_bf16_f32 v{t+u}, v{t+2*u}, v{t+2*u+1}" for u in range(8)]
    def kvmm(blk):
        m, hh = blk >> 1, blk & 1
        d = vr(KV + 16 * hh, 16)
        return [mf(d, vr(PK + 16 * blk + 4 * mm_, 4), vr(VACC + 16 * m + 8 * hh + 4 * mm_, 4), d if (m or mm_) else "0") for mm_ in range(2)]
    for blk in range(4):
        l = softmax_l(PK + blk * 16, PH[blk & 1])
        if blk:
            t, kv = tmm(blk - 1), kvmm(blk - 1)
            qp = q_pieces(blk) if not QE else (q_pieces(blk + 1) if blk < 3 else o_pieces(1))
            l = l[:17] + [t[0], qp[0]] + l[17:21] + [t[1], qp[1]] + l[21:33] + tcvt(blk - 1) + l[33:50] + [kv[0], qp[2]] + l[50:58] + [kv[1], qp[3]]
        run([x for x in l if x is not None])
        nbstamp(1 + blk)
    TS = 4 if OPT.get("tag1", 1) else 1
    def tagit(r, n):
        for e in range(0, n, TS):
            A(f"v_and_or_b32 v{r+e}, v{r+e}, s{P_MSK}, v{V_TAG}")
    def pub(hh, oc):
        A(f"s_add_u32 s{ST+3}, s{P_P1O}, {(hh*4+oc)*32*SL}")
        A(f"buffer_store_dwordx4 {vr(KV+16*hh+4*oc,4)}, v{V_PB0+hh}, s[{SWS}:{SWS+3}], s{ST+3} offen sc1")
    if NS == 32:
        emit(tmm(3))
        tagit(KV, 16)
        pub(0, 0); pub(0, 1)
        emit(tcvt(3))
        emit(kvmm(3))
        nbstamp(5)
        pub(0, 2); pub(0, 3)
        tagit(KV + 16, 16)
        for oc in range(4): pub(1, oc)
    else:
        RB = PK
        def tail(rh):
            keep, send = 8 * rh, 8 - 8 * rh
            emit(tmm(3))
            for u in range(2): A(f"ds_write_b128 v{V_SW}, {vr(KV+send+4*u,4)} offset:{u*1024}")
            emit(tcvt(3))
            emit(kvmm(3))
            for u in range(2): A(f"ds_write_b128 v{V_SW}, {vr(KV+16+send+4*u,4)} offset:{(2+u)*1024}")
            A("s_waitcnt lgkmcnt(0)")
            A("s_barrier")
            for u in range(4): A(f"ds_read_b128 {vr(RB+4*u,4)}, v{V_SR} offset:{u*1024}")
            for hh in range(2):
                for jj in range(2):
                    r = KV + 16 * hh + keep + 4 * jj
                    A(f"s_add_u32 s{ST+3}, s{P_P1O}, {(hh*4+jj)*16*SL}")
                    A(f"s_waitcnt lgkmcnt({3-2*hh-jj})")
                    for u in range(2):
                        A(f"v_pk_add_f32 {vr(r+2*u,2)}, {vr(r+2*u,2)}, {vr(RB+8*hh+4*jj+2*u,2)}")
                    tagit(r, 4)
                    A(f"buffer_store_dwordx4 {vr(r,4)}, v{V_PB0+hh}, s[{SWS}:{SWS+3}], s{ST+3} offen sc1")
        l1, l2 = lab("rh1"), lab("rhj")
        A(f"s_cmp_lg_u32 s{S_RH}, 0")
        A(f"s_cbranch_scc1 {l1}")
        st_ = (A.vm, A.lg, list(A.hist))
        tail(0)
        A(f"s_branch {l2}")
        A.label(l1)
        A.vm, A.lg, A.hist = st_[0], st_[1], list(st_[2])
        tail(1)
        A.label(l2)
    QACC = KACC
    def qaddr(n):
        i, ks = n >> 2, n & 3
        return QSLOT[i >> 2] * SLOT + (i & 3) * 8192 + ks * 2048
    def rdq(n):
        return trfrag(V_WF + (n & 1) * 8, qaddr(2 * n)) + trfrag(V_WF + (n & 1) * 8 + 4, qaddr(2 * n + 1))
    def mmq(n):
        r = []
        for h in range(2):
            for m in range(2):
                d = vr(QACC + 16 * m, 16)
                r.append(mf(d, vr(V_WF + (n & 1) * 8 + 4 * h, 4), ar((2 * n + h) * 8 + m * 4, 4), d if (n or h) else "0"))
        if n == 15: r = [r[0], r[2], r[1], r[3]]
        return r
    stamp(6)
    nbflush()
    GD = VACC
    GZ = GD + 16
    g1l = [f"buffer_load_dwordx4 {vr(GD+4*k,4)}, v{V_G1}, s[{SWS}:{SWS+3}], s{P_P1G+k} offen sc1" for k in range(NS // 8)]
    g1l.append(f"buffer_load_dwordx4 {vr(GZ,4)}, v{V_GZ}, s[{SWS}:{SWS+3}], s{P_P1G} offen offset:512 sc1")
    S_D1, S_RET = P0 + 11, ST + 6
    A(f"s_mov_b32 s{S_D1}, 0")
    def try1a(block=False):
        skip = lab("sk")
        if block:
            A(f"s_cmp_lg_u32 s{S_D1}, 0")
        else:
            A(f"s_getreg_b32 s{ST+5}, hwreg(HW_REG_IB_STS, 0, 4)")
            A(f"s_or_b32 s{ST+5}, s{ST+5}, s{S_D1}")
        A(f"s_cbranch_scc1 {skip}")
        A(f"s_call_b64 s[{S_RET}:{S_RET+1}], L_try1a")
        A.label(skip)
    def sub_try1a():
        A.label("L_try1a")
        A.hist = []
        A("s_waitcnt vmcnt(0)")
        A(f"v_xor_b32 v13, v{GD}, v{V_TAG}")
        for s in [x for x in range(TS, 20, TS) if x < NS // 2 or x >= 16]:
            A(f"v_bitop3_b32 v13, v{GD+s}, v{V_TAG}, v13 bitop3:0xbe")
        A("v_and_b32 v13, 0xff, v13")
        A(f"v_cmp_ne_u32 s[{S_FAIL}:{S_FAIL+1}], 0, v13")
        A(f"s_cmp_eq_u64 s[{S_FAIL}:{S_FAIL+1}], 0")
        A("s_cbranch_scc1 L_try1a_ok")
        emit(g1l)
        A(f"s_setpc_b64 s[{S_RET}:{S_RET+1}]")
        A.label("L_try1a_ok")
        DPP = "row_mask:0xf bank_mask:0xf"
        A(f"v_permlane16_swap_b32 v{GZ}, v{GZ+2}")
        A(f"v_permlane16_swap_b32 v{GZ+1}, v{GZ+3}")
        if NS == 32:
            for u in range(0, 8, 2):
                A(f"v_pk_add_f32 {vr(GD+u,2)}, {vr(GD+u,2)}, {vr(GD+8+u,2)}")
            A(f"v_pk_add_f32 {vr(GZ,2)}, {vr(GZ,2)}, {vr(GZ+2,2)}")
        for u in range(0, 4, 2):
            A(f"v_pk_add_f32 {vr(GD+u,2)}, {vr(GD+u,2)}, {vr(GD+4+u,2)}")
        def zror(k):
            for e in range(2): A(f"v_add_f32_dpp v{GZ+e}, v{GZ+e}, v{GZ+e} row_ror:{k} {DPP}")
        zror(1)
        A(f"v_permlane32_swap_b32 v{GD}, v{GD+1}")
        A(f"v_permlane32_swap_b32 v{GD+2}, v{GD+3}")
        zror(2)
        A(f"v_add_f32 v{GD}, v{GD}, v{GD+1}")
        A(f"v_add_f32 v{GD+2}, v{GD+2}, v{GD+3}")
        zror(4)
        A(f"v_permlane16_swap_b32 v{GD}, v{GD+2}")
        A(f"v_add_f32 v{GD}, v{GD}, v{GD+2}")
        zror(8)
        A(f"v_add_f32_dpp v{GD}, v{GD}, v{GD} row_ror:8 {DPP}")
        for e in range(2): A(f"v_and_or_b32 v{GZ+e}, v{GZ+e}, s{P_MSK}, v{V_TAG}")
        A(f"v_and_or_b32 v{GD}, v{GD}, s{P_MSK}, v{V_TAG}")
        for e in range(2): A(f"v_mov_b32 v{GZ+2+e}, v{GZ+e}")
        A(f"v_mov_b32 v{GD+1}, v{GD}")
        A(f"v_permlane16_swap_b32 v{GZ}, v{GZ+2}")
        A(f"v_permlane16_swap_b32 v{GZ+1}, v{GZ+3}")
        A(f"v_permlane32_swap_b32 v{GD}, v{GD+1}")
        A(f"buffer_store_dwordx4 {vr(GZ,4)}, v{V_P2Z}, s[{SWS}:{SWS+3}], s{P_P2O} offen sc1")
        A(f"v_mov_b32 v{GD+2}, v{GD}")
        A(f"v_mov_b32 v{GD+3}, v{GD+1}")
        A(f"v_permlane16_swap_b32 v{GD}, v{GD+2}")
        A(f"v_permlane16_swap_b32 v{GD+1}, v{GD+3}")
        A(f"buffer_store_dwordx4 {vr(GD,4)}, v{V_P2}, s[{SWS}:{SWS+3}], s{P_P2O} offen sc1")
        stamp(8)
        A(f"s_mov_b32 s{S_D1}, 1")
        A(f"s_setpc_b64 s[{S_RET}:{S_RET+1}]")
    DEFER.append(sub_try1a)
    fill = []
    G1AT = OPT.get('g1at', 6)
    def on_stepq(n):
        if n == 0: fill.extend((o_pieces(1) if QE == 1 else (q_pieces(2) + q_pieces(3) if QE == 2 else [])) + o_pieces(2) + o_pieces(3) + [lambda: (rdy_load(14), tok.__setitem__('wo', A.vm))])
        if n == G1AT: fill.extend(g1l + [None])
        if n >= G1AT + 4: fill.extend([None, try1a])
    if QE == 2:
        run(q_pieces(1))
        A.wait_vm(tok[("q", 0)])
        qb = lambda n: tok[("q", n >> 2)] if n in (4, 8, 12) else None
    else:
        A.wait_vm(tok[("q", 3)])
        qb = lambda n: None
    A("s_barrier")
    stamp(26)
    gemm_loop(16, rdq, mmq, qb, (2, 2, 0, 0), lambda n: (0, 1, 2, 3) if (QE == 2 and n < 2) else (2, 3), fill, on_stepq)
    assert not fill
    stamp(7)
    feat(QACC)
    def wait1a():
        top, done = lab("w1a"), lab("w1d")
        A(f"s_mov_b32 s{S_CNT}, {SPIN_LIMIT}")
        A.label(top)
        try1a(block=True)
        A(f"s_cmp_lg_u32 s{S_D1}, 0")
        A(f"s_cbranch_scc1 {done}")
        A(f"s_sub_u32 s{S_CNT}, s{S_CNT}, 1")
        A(f"s_cbranch_scc0 {top}")
        A.label(done)
    B1 = OPT.get("blk1a", 0)
    if B1 == 0: wait1a()
    S_D2 = ST + 4
    A(f"s_mov_b32 s{S_D2}, 0")
    PHQ = KV
    FD = PK
    def loads2(rdy=True):
        for hh in range(2):
            for jp in range(2):
                r = FD + (hh * 2 + jp) * 8
                off = (hh * 4 + jp) * SL
                A(f"buffer_load_dwordx4 {vr(r,4)}, v{V_G2}, s[{SWS}:{SWS+3}], s{P_P2G} offen offset:{off} sc1")
                A(f"buffer_load_dwordx4 {vr(r+4,4)}, v{V_G2B}, s[{SWS}:{SWS+3}], s{P_P2G} offen offset:{off} sc1")
        if rdy: rdy_load(14)
    def check2():
        A(f"v_xor_b32 v13, v{FD}, v{V_TAG}")
        for s in range(1, 32):
            A(f"v_bitop3_b32 v13, v{FD+s}, v{V_TAG}, v13 bitop3:0xbe")
        rdy_check(9, 14)
        A("v_and_b32 v13, 0xff, v13")
        A("v_or_b32 v13, v13, v9")
        A(f"v_cmp_ne_u32 s[{S_FAIL}:{S_FAIL+1}], 0, v13")
    for blk in range(4):
        if blk == OPT.get("l2at", 3): loads2(False)
        emit(softmax_l(PK + blk * 16, PHQ + 8 * blk))
        if blk + 1 == B1: wait1a()
    A("s_barrier")
    stamp(9)
    KVF = VACC + 16
    ODR = [KACC, KACC + 16, PK + 32, PK + 48]
    A(f"s_lshl_b32 s{ST+5}, s{S_RH}, 12")
    A(f"v_add_u32 v{V_AX}, s{ST+5}, v{V_LIN}")
    A(f"v_add_u32 v{V_AX+1}, 0x10000, v{V_AX}")
    A(f"v_add_u32 v{V_AX+2}, 0x20000, v{V_AX}")
    slin(ST + 5, 3 * SLOT, (S_MF, 8192), (S_M0W2, 1))
    A(f"v_add_u32 v{V_AX+3}, s{ST+5}, v{V_LIN}")
    A(f"v_xor_b32 v{V_AX+4}, 0x2000, v{V_AX+3}")
    wor = []
    for n in range(32):
        wor += trfrag(n * 4, OLDS[n >> 2] + (n & 3) * 2048, "a")
    NW = OPT.get('nw', 8)
    emit(wor[:NW])
    def check2m():
        chk = [f"v_xor_b32 v13, v{FD}, v{V_TAG}"] + [f"v_bitop3_b32 v13, v{FD+s}, v{V_TAG}, v13 bitop3:0xbe" for s in range(TS, 32, TS)]
        for hh in range(2):
            for q in (2 * hh, 2 * hh + 1):
                for u in range(4):
                    A(f"v_cvt_pk_bf16_f32 v{KVF+4*q+u}, v{FD+8*q+2*u}, v{FD+8*q+2*u+1}")
            for m in range(2):
                blk = 2 * m + hh
                d = vr(ODR[blk], 16)
                for jp in range(2):
                    A(mf(d, vr(KVF + (hh * 2 + jp) * 4, 4), vr(PHQ + 8 * blk + 4 * jp, 4), d if jp else "0"))
                    k = 3 if hh == 0 else 5
                    emit(chk[:k]); chk = chk[k:]
        assert not chk
        rdy_check(9, 14)
        A("v_and_b32 v13, 0xff, v13")
        A("v_or_b32 v13, v13, v9")
        A(f"v_cmp_ne_u32 s[{S_FAIL}:{S_FAIL+1}], 0, v13")
    poll_pre(loads2, check2m)
    stamp(10)
    A("s_nop 2")
    for blk in (0, 2, 1, 3):
        m, hh = blk >> 1, blk & 1
        o = ODR[blk]
        A(f"v_add_f32 v{o+8}, 0x358637bd, v{o+8}")
        A(f"v_rcp_f32 v{o+8}, v{o+8}")
        for u in range(4):
            A(f"v_pk_mul_f32 {vr(o+2*u,2)}, {vr(o+2*u,2)}, {vr(o+8,2)} op_sel_hi:[1,0]")
        for u in range(4):
            A(f"v_cvt_pk_bf16_f32 v{o+12+u}, v{o+2*u}, v{o+2*u+1}")
        A(f"buffer_store_dwordx4 {vr(o+12,4)}, v{V_LIN}, s[{SWS}:{SWS+3}], s{P_ACTW+m} offen offset:{hh*1024} sc1")
    tok_o = A.vm
    xcc_decide(14)
    for blk in range(4):
        A(f"ds_write_b128 v{V_AX+3+(blk>>1)}, {vr(ODR[blk]+12,4)} offset:{(blk&1)*1024}")
    stamp(11)
    ELDS = [(3, 4, 0, 1)[e >> 2] * SLOT + (e & 3) * 8192 for e in range(16)]
    def of_pieces(e):
        pos, ph = SEQ[e]
        def p0():
            A(f"s_add_u32 m0, s{S_M0W2}, {ELDS[e]:#x}")
            A(f"s_lshl_b32 s{ST+8}, s{KAP[pos]}, 14")
            A(f"s_add_u32 s{ST+8}, s{ST+8}, s{P_ACTR+ph}")
            A(f"buffer_load_dwordx4 v{V_LIN}, s[{SWS}:{SWS+3}], s{ST+8} offen {PLF}lds")
        def p1():
            A(f"buffer_load_dwordx4 v{V_LIN}, s[{SWS}:{SWS+3}], s{ST+8} offen offset:1024 {PLF}lds")
            tok[("of", e)] = A.vm
        return [p0, p1]
    OF = PK
    OACC = VACC
    def rd4(n):
        return [f"ds_read_b128 {vr(OF+(n&1)*16+h*4,4)}, v{V_AX+(ELDS[n]>>16)} offset:{(ELDS[n]&0xffff)+h*1024}" for h in range(4)]
    def mm4(n):
        pos, ph = SEQ[n]
        d = vr(OACC + 16 * ph, 16)
        return [mf(d, vr(OF + (n & 1) * 16 + h * 4, 4), ar((4 * pos + h) * 4, 4), d if (pos or h) else "0") for h in range(4)]
    A("s_waitcnt lgkmcnt(0)")
    A("s_barrier")
    wf = wor[NW:]
    def two():
        for _ in range(2): A(wf.pop(0))
    gemm_loop(2, rd4, mm4, lambda n: None, (2, 2, 0, 0), (2, 3), [two] * 4)
    emit(wf[:16]); wf = wf[16:]
    A.wait_vm(tok_o)
    flag_store()
    emit(wf)
    flag_poll()
    stamp(12)
    for e in range(2, 7): run(of_pieces(e))
    fill = []
    def on_step4(n):
        if OPT.get("g2st") and n in (4, 7, 10, 13): stamp(16 + n // 3)
        if n == 2:
            for e in range(7, 16): fill.extend(of_pieces(e))
        if n == 10: fill.extend(out_stores(OACC, 0))
    A.wait_both(tok[("of", 2 if OPT.get("fineb", 1) else 3)], A.lg)
    A("s_barrier")
    stamp(13)
    BND = {4: 6, 7: 9, 10: 12, 13: 15} if not OPT.get("fineb", 1) else {3: 4, 5: 6, 7: 9, 10: 12, 13: 15}
    gemm_loop(16, rd4, mm4, lambda n: tok[("of", BND[n])] if n in BND else None, (2, 2, 0, 0),
              lambda n: (1, 2, 3) if n >= 10 else (0, 1, 2, 3), fill, on_step4, start=2)
    assert not fill
    stamp(14)
    run(out_stores(OACC, 1))
    tag_update("B")
    stamp(15)
    finish()

prologue()
vm0, lg0 = A.vm, A.lg
role_A()
for f in DEFER: f()
DEFER.clear()
A.label("L_roleB")
ROLE[0] = "B"
A.vm, A.lg = vm0, lg0
A.hist = []
role_B()
for f in DEFER: f()
A.label("L_end")
A("s_endpgm")

iB = A.out.index("L_roleB:")
iE = A.out.index("L_end:")
if OPT.get("bfirst", 1):
    lines = A.out[:CUT["P"]] + A.out[iB:CUT["B"]] + A.out[CUT["P"]:CUT["A"]] + A.out[CUT["B"]:iE] + A.out[CUT["A"]:iB] + A.out[iE:]
else:
    lines = A.out[:CUT["A"]] + A.out[iB:CUT["B"]] + A.out[CUT["A"]:iB] + A.out[CUT["B"]:]
if OPT["align"]:
    lines, nw, nn = align(lines, min_nop=OPT.get('minnop', 12))
    print("align: widened", nw, "nops", nn)
HEAD = open("cdna_kernels/" + NAME + ".s.ref").read().split("; Override launch geometry")[0]
src = HEAD + f"""; @launch grid=(256,1,1) block=(256,1,1) lds=163840
; One persistent launch, one workgroup per CU (generated by a Python script; all instruction streams hand scheduled).
;   role A (128 WGs): U = x.B^T (MFMA) -> chunked complex scan with a cross-workgroup carry exchange -> y = h.C^T + x*Dskip
;   role B (128 WGs): k,v,q projections -> dual softmax features -> kv/z reduce-scatter + all-gather -> o -> o.wo
; Hand-offs go through d_ws with write-through stores and launch-unique tags (tag = word found in d_ws on entry + 1);
; every wait is bounded.
.amdgcn_target "amdgcn-amd-amdhsa--gfx950"
.text
.globl {NAME}_kernel
.p2align 8
.type {NAME}_kernel,@function
{NAME}_kernel:
""" + "\n".join(lines) + f"""
.fill 8192, 4, 0xBF810000
.section .rodata,"a"
.p2align 6
.amdhsa_kernel {NAME}_kernel
  .amdhsa_next_free_vgpr 512
  .amdhsa_next_free_sgpr 102
  .amdhsa_accum_offset 256
  .amdhsa_group_segment_fixed_size 0
  .amdhsa_kernarg_size 128
  .amdhsa_user_sgpr_count 2
  .amdhsa_user_sgpr_kernarg_segment_ptr 1
  .amdhsa_system_sgpr_workgroup_id_x 1
.end_amdhsa_kernel
"""
open(sys.argv[1], "w").write(src)
print("hazard nops:", A.nnop, "lines:", len(lines))
```

```python
import re

TRANS = ("v_exp_f32", "v_log_f32", "v_rcp_f32", "v_rsq_f32", "v_sqrt_f32", "v_sin_f32", "v_cos_f32")
_reg = re.compile(r"^(-|abs\()?([vas])(?:(\d+)|\[(\d+):(\d+)\])\)?$")

def regs_of(tok):
    tok = tok.strip()
    if tok in ("vcc", "exec"):
        return {("s", tok)}
    if tok == "m0":
        return {("s", "m0")}
    m = _reg.match(tok)
    if not m:
        return set()
    k = m.group(2)
    if m.group(3) is not None:
        return {(k, int(m.group(3)))}
    return {(k, i) for i in range(int(m.group(4)), int(m.group(5)) + 1)}

def vr(a, n=1, k="v"):
    return f"{k}{a}" if n == 1 else f"{k}[{a}:{a+n-1}]"
def ar(a, n=1): return vr(a, n, "a")
def sr(a, n=1): return vr(a, n, "s")

class Ins:
    __slots__ = ("text", "op", "kind", "w", "r", "srcc", "srcab", "slots", "dpp", "wide_store")

class Asm:
    def __init__(self):
        self.out = []
        self.hist = []
        self.vm = 0
        self.lg = 0
        self.nnop = 0
        self.cap = None
        self.skiplist = None

    def raw(self, t):
        self.out.append(t)

    def label(self, name):
        self.out.append(name + ":")

    def comment(self, t):
        self.out.append("; " + t)

    def _parse(self, text):
        ins = Ins()
        ins.text = text
        parts = text.split(None, 1)
        op = parts[0]
        ins.op = op
        rest = parts[1] if len(parts) > 1 else ""
        ops, depth, cur = [], 0, ""
        for chh in rest:
            if chh == "[": depth += 1
            if chh == "]": depth -= 1
            if chh == "," and depth == 0:
                ops.append(cur.strip()); cur = ""
            else:
                cur += chh
        if cur.strip(): ops.append(cur.strip())
        mods = ""
        if ops:
            last = ops[-1].split(None, 1)
            ops[-1] = last[0]
            mods = last[1] if len(last) > 1 else ""
        R = [regs_of(o) for o in ops]
        ins.w, ins.r, ins.srcc, ins.srcab = set(), set(), set(), set()
        ins.slots = 1
        ins.dpp = ("_dpp" in op) or ("row_" in mods) or ("quad_perm" in mods)
        ins.wide_store = set()
        base = op.replace("_e32", "").replace("_e64", "").replace("_dpp", "")
        if op.startswith("v_mfma"):
            ins.kind = "mfma"; ins.w = R[0]; ins.srcab = R[1] | R[2]; ins.srcc = R[3]; ins.r = ins.srcab | ins.srcc
        elif op.startswith("v_"):
            ins.kind = "trans" if base in TRANS else "valu"
            if op.startswith("v_permlane") and "swap" in op:
                ins.w = R[0] | R[1]; ins.r = R[0] | R[1]; ins.kind = "permlane"
            elif base in ("v_add_co_u32", "v_addc_co_u32", "v_sub_co_u32", "v_subb_co_u32"):
                ins.w = R[0] | R[1]; ins.r = set().union(*R[2:])
            else:
                ins.w = R[0]; ins.r = set().union(*R[1:]) if len(R) > 1 else set()
                if base in ("v_fmac_f32", "v_pk_fmac_f16") or "d16" in op: ins.r |= R[0]
                if base in ("v_readfirstlane_b32", "v_readlane_b32"): ins.kind = "readlane"
        elif op.startswith("ds_"):
            ins.kind = "ds"
            if op.startswith("ds_read") or op.startswith("ds_bpermute") or op.startswith("ds_swizzle"):
                ins.w = R[0]; ins.r = set().union(*R[1:])
            else:
                ins.r = set().union(*R)
        elif op.startswith("buffer_") or op.startswith("global_"):
            ins.kind = "vmem"
            is_lds = bool(re.search(r"\blds\b", mods))
            if "_load" in op and not is_lds:
                ins.w = R[0]; ins.r = set().union(*R[1:])
            else:
                ins.r = set().union(*R) if R else set()
                if is_lds: ins.r |= {("s", "m0")}; ins.kind = "dma"
                if "store" in op and ("x4" in op or "x3" in op):
                    ins.wide_store = R[0] if op.startswith("buffer_") else R[1]
        elif op == "s_nop":
            ins.kind = "nop"; ins.slots = int(ops[0], 0) + 1
        elif op.startswith("s_"):
            ins.kind = "salu"
            if op.startswith("s_cmp") or op.startswith("s_cbranch") or op in ("s_branch", "s_barrier", "s_waitcnt", "s_endpgm", "s_sleep", "s_setprio", "s_setpc_b64"):
                ins.r = set().union(*R) if R else set()
            else:
                ins.w = R[0] if R else set(); ins.r = set().union(*R[1:]) if len(R) > 1 else set()
        else:
            raise ValueError("unknown op " + text)
        return ins

    def _need(self, p, c):
        VAL = ("valu", "trans", "permlane", "readlane")
        n = 0
        pv = p.kind in VAL
        cv = c.kind in VAL
        pw_v = {x for x in p.w if x[0] != "s"}
        pw_s = {x for x in p.w if x[0] == "s"}
        if pv and c.kind == "mfma" and (pw_v & c.r): n = max(n, 2)
        if p.kind == "mfma":
            if c.kind == "mfma":
                if p.w & c.srcab: n = max(n, 12)
                if (p.w & c.srcc) and p.w != c.srcc: n = max(n, 10)
                if (p.w & c.w) and not (p.w == c.w and c.srcc == c.w): n = max(n, 12)
            elif c.kind != "salu" and c.kind != "nop":
                if p.w & (c.r | c.w): n = max(n, 12)
            if cv and (p.srcc & c.w): n = max(n, 7)
        if p.kind == "trans" and c.kind not in ("salu", "nop", "trans") and (pw_v & c.r): n = max(n, 1)
        if pv and pw_s:
            if cv and (pw_s & c.r): n = max(n, 4 if c.kind == "readlane" else 2)
            if c.kind in ("vmem", "dma") and (pw_s & c.r): n = max(n, 5)
            if c.kind == "salu" and (pw_s & c.r): n = max(n, 1)
        if pv and c.kind == "readlane" and (pw_v & c.r): n = max(n, 1)
        if pv and (c.dpp or c.kind == "permlane") and (pw_v & c.r): n = max(n, 2)
        if p.kind == "salu" and ("s", "m0") in p.w and c.kind == "dma": n = max(n, 1)
        if p.wide_store and (p.wide_store & c.w): n = max(n, 2)
        return n

    def __call__(self, text):
        for t in text.split("\n"):
            t = t.strip()
            if not t: continue
            if self.cap is not None:
                if not t.startswith("s_waitcnt"): self.cap.append(t)
            else: self._emit(t)

    def _emit(self, text):
        ins = self._parse(text)
        dist, pad = 0, 0
        for p in reversed(self.hist):
            need = self._need(p, ins)
            if need > dist: pad = max(pad, need - dist)
            dist += p.slots
            if dist >= 14: break
        if pad:
            self.nnop += 1
            nop = self._parse(f"s_nop {pad-1}")
            self.hist.append(nop); self.out.append("    " + nop.text)
            if self.skiplist is not None: self.skiplist.append(nop)
        if self.skiplist is not None: self.skiplist.append(ins)
        self.hist.append(ins)
        if len(self.hist) > 400: self.hist = self.hist[-200:]
        self.out.append("    " + text)
        if ins.kind in ("vmem", "dma"): self.vm += 1
        if ins.kind == "ds": self.lg += 1
        return ins

    def skip_begin(self):
        prev, self.skiplist = self.skiplist, []
        return prev
    def skip_end(self, prev):
        for i in self.skiplist: i.slots = 0
        if prev is not None: prev.extend(self.skiplist)
        self.skiplist = prev

    def wait_vm(self, tok):
        n = self.vm - tok
        assert n >= 0
        self(f"s_waitcnt vmcnt({min(n, 63)})")
    def wait_lg(self, tok):
        n = self.lg - tok
        assert 0 <= n
        self(f"s_waitcnt lgkmcnt({min(n, 15)})")
    def wait_both(self, vtok, ltok):
        self(f"s_waitcnt vmcnt({min(self.vm - vtok, 63)}) lgkmcnt({min(self.lg - ltok, 15)})")

    def text(self):
        return "\n".join(self.out)
```

```python
import sys
from dsl import Asm, vr, ar, sr
from align import align

NAME = "concat_heads__ssm_conv_s5__linear_kernel_hedgehog__prompt"
OPT = dict(stamps=False, rotmode=2, align=1, xnt=0, hwait=8, owait=4, hand=0)
for a_ in sys.argv[2:]:
    k_, _, v_ = a_.partition("=")
    OPT[k_] = int(v_) if v_ else True

WS_TAGA, WS_TAGB = 0x0, 0x80
WS_XCC = 0x8000
WS_FLAG = 0x2000
WS_SA = 0x10000
WS_P1 = 0x100000
WS_P2 = 0x3C0000
WS_H = 0x400000
WS_O = 0x800000
WS_STAMP = 0xA00000
OOB = 0x40000000
SPIN_LIMIT = 1 << 14
LOG2E = 0x3FB8AA3B
INV2PI = 0x3E22F983

S_WAVE, S_CHUNK, S_CG, S_ROT, S_TAG = 3, 4, 5, 6, 7
SX, SW, SW2, SWS, SOUT = 8, 12, 16, 20, 24
S_RH, S_CH, S_SLOT, S_GRP = 28, 29, 30, 31
ST = 32
S_M0W, S_M0W2 = 48, 49
S_MG = 50
S_MRH = 52
S_L2E = 54
S_CNT = 56
S_FAIL = 58
S_M16 = 60
S_SM0, S_RS = 62, 63
S_XW, S_SLOW, P_FLW = 91, 92, 93
S_ROT1 = 47
KAP = [62, 63, 44, 45, 86, 87, 94, 95]
SEQ = [(0, 0), (0, 1)] + [(j, 0) for j in range(1, 8)] + [(j, 1) for j in range(1, 8)]
HAND = OPT['hand']
KA = 64
K_AX, K_LRE, K_LIM, K_BRE, K_BIM, K_CRE, K_CIM, K_LDT, K_DSK, K_BX, K_WQKV, K_WPHI, K_WO, K_OUT, K_DBG, K_WS = [KA + 2 * i for i in range(16)]
P_FLAGB, P_FLAGO, P_XCCB, P_TAGSEL, P_OUT, P_OUT2, P_ACTR, P_ACTR2 = range(64, 72)
P_ACTW, P_ACTW2, S_MF = 88, 89, 90
P0 = 72
S_STAMP = 96
V_LANE, V_OUTO, V_N, V_G, V_LIN, V_TAG, V_L0, V_CHK, V_XPO = 1, 2, 5, 6, 7, 8, 10, 12, 15
V_OX, V_OW = 16, 20
SLOT = 32768

A = Asm()
CUT = {}
nlab = [0]

def srd(dst, ptr, nbytes):
    A(f"s_mov_b32 s{dst}, s{ptr}")
    A(f"s_mov_b32 s{dst+1}, s{ptr+1}")
    A(f"s_mov_b32 s{dst+2}, {nbytes:#x}")
    A(f"s_mov_b32 s{dst+3}, 0x20000")

def slin(dst, const, *terms):
    first = True
    for reg, mul in terms:
        t = dst if first else ST + 14
        if mul == 1:
            if first: A(f"s_mov_b32 s{dst}, s{reg}")
            else: t = reg
        elif mul & (mul - 1) == 0: A(f"s_lshl_b32 s{t}, s{reg}, {mul.bit_length()-1}")
        else: A(f"s_mul_i32 s{t}, s{reg}, {mul}")
        if not first: A(f"s_add_u32 s{dst}, s{dst}, s{t}")
        first = False
    if const: A(f"s_add_u32 s{dst}, s{dst}, {const:#x}")

ROLE = ["A"]
def stamp(idx):
    if OPT.get("probe") == idx + (0 if ROLE[0] == "A" else 100):
        if OPT.get("cyc"):
            A("s_memtime s[96:97]")
            A("s_waitcnt lgkmcnt(0)")
            A("s_sub_u32 s99, s96, s98")
            A("s_lshr_b32 s99, s99, 4")
        else:
            A("s_memrealtime s[96:97]")
            A("s_waitcnt lgkmcnt(0)")
            A("s_sub_u32 s99, s96, s100")
    if not OPT["stamps"]: return
    A(f"s_memtime s[{S_STAMP}:{S_STAMP+1}]")
    A("s_waitcnt lgkmcnt(0)")
    A(f"s_sub_u32 s{S_STAMP}, s{S_STAMP}, s98")
    A(f"v_writelane_b32 v255, s{S_STAMP}, {idx}")
    if OPT.get("rt") and idx <= 16:
        A(f"s_memrealtime s[{S_STAMP}:{S_STAMP+1}]")
        A("s_waitcnt lgkmcnt(0)")
        A(f"s_sub_u32 s{S_STAMP}, s{S_STAMP}, s100")
        A(f"v_writelane_b32 v255, s{S_STAMP}, {idx+44}")

NB = [32, 36, 38, 42, 58, 56]
nbuse = []
def nbstamp(k):
    if OPT.get("nb") and OPT["stamps"]:
        A(f"s_memtime s[{NB[k]}:{NB[k]+1}]"); nbuse.append(k)
def nbflush():
    if OPT.get("nb") and OPT["stamps"]:
        A("s_waitcnt lgkmcnt(0)")
        for k in nbuse:
            A(f"s_sub_u32 s{NB[k]}, s{NB[k]}, s98")
            A(f"v_writelane_b32 v255, s{NB[k]}, {17+k}")
        nbuse.clear()

def lab(n):
    nlab[0] += 1
    return f"L_{n}_{nlab[0]}"

def finish():
    if OPT.get("probe") and (OPT["probe"] >= 100) == (ROLE[0] == "B"):
        if OPT["probe"] % 100 == 16:
            A("s_waitcnt vmcnt(0)")
            stamp(16)
        l = lab("pr")
        A("s_lshl_b32 s99, s99, 1")
        A("s_add_u32 s99, s99, 2500")
        A.label(l)
        A("s_memrealtime s[96:97]")
        A("s_waitcnt lgkmcnt(0)")
        A("s_sub_u32 s96, s96, s100")
        A("s_cmp_lt_u32 s96, s99")
        A(f"s_cbranch_scc1 {l}")
    if OPT.get("fixrt"):
        l = lab("rt")
        A.label(l)
        A("s_memrealtime s[96:97]")
        A("s_waitcnt lgkmcnt(0)")
        A("s_sub_u32 s96, s96, s100")
        A(f"s_cmp_lt_u32 s96, {OPT['fixrt']}")
        A(f"s_cbranch_scc1 {l}")
    if OPT["stamps"]:
        A("s_waitcnt vmcnt(0)")
        stamp(16)
        A("v_writelane_b32 v255, s99, 30")
        A("s_memrealtime s[96:97]")
        A("v_writelane_b32 v255, s100, 40")
        A("s_waitcnt lgkmcnt(0)")
        A("v_writelane_b32 v255, s96, 41")
        slin(ST, WS_STAMP, (2, 1024), (S_WAVE, 256))
        A(f"v_lshlrev_b32 v254, 2, v{V_LANE}")
        A(f"buffer_store_dword v255, v254, s[{SWS}:{SWS+3}], s{ST} offen")
    A("s_endpgm")

def mf(d, a, b, c):
    return f"v_mfma_f32_32x32x16_bf16 {d}, {a}, {b}, {c}"

def poll(loads, check):
    top, done = lab("poll"), lab("ok")
    A(f"s_mov_b32 s{S_CNT}, {SPIN_LIMIT}")
    A.label(top)
    loads()
    A("s_waitcnt vmcnt(0)")
    check()
    A(f"s_cmp_eq_u64 s[{S_FAIL}:{S_FAIL+1}], 0")
    A(f"s_cbranch_scc1 {done}")
    sk_ = A.skip_begin()
    A(f"s_sub_u32 s{S_CNT}, s{S_CNT}, 1")
    A(f"s_cbranch_scc0 {top}")
    A.skip_end(sk_)
    A.label(done)

def poll_pre(loads, check):
    top, done = lab("poll"), lab("ok")
    A(f"s_mov_b32 s{S_CNT}, {SPIN_LIMIT}")
    A.label(top)
    A("s_waitcnt vmcnt(0)")
    check()
    A(f"s_cmp_eq_u64 s[{S_FAIL}:{S_FAIL+1}], 0")
    A(f"s_cbranch_scc1 {done}")
    sk_ = A.skip_begin()
    loads()
    A(f"s_sub_u32 s{S_CNT}, s{S_CNT}, 1")
    A(f"s_cbranch_scc0 {top}")
    A("s_waitcnt vmcnt(0)")
    A.skip_end(sk_)
    A.label(done)

def cfma_l(d, a, b, c, t):
    return [f"v_pk_fma_f32 {vr(t,2)}, {vr(a,2)}, {vr(b,2)}, {vr(c,2)} op_sel:[1,1,0] op_sel_hi:[1,0,1] neg_lo:[1,0,0]",
            f"v_pk_fma_f32 {vr(d,2)}, {vr(a,2)}, {vr(b,2)}, {vr(t,2)} op_sel:[0,0,0] op_sel_hi:[0,1,1]"]
def cmul_l(d, a, b, t):
    return [f"v_pk_mul_f32 {vr(t,2)}, {vr(a,2)}, {vr(b,2)} op_sel:[1,1] op_sel_hi:[1,0] neg_lo:[1,0]",
            f"v_pk_fma_f32 {vr(d,2)}, {vr(a,2)}, {vr(b,2)}, {vr(t,2)} op_sel:[0,0,0] op_sel_hi:[0,1,1]"]
def emit(l):
    for x in l: A(x)
def cfma(*a): emit(cfma_l(*a))
def cmul(*a): emit(cmul_l(*a))

def weave(main, fillers, every, start=0):
    for i, x in enumerate(main):
        A(x)
        if i >= start and (i - start) % every == every - 1 and fillers:
            f = fillers.pop(0)
            if isinstance(f, str): A(f)
            elif f: f()

def gemm_loop(nsteps, reads, mfmas, boundary, split, fill_gaps, fillers, on_step=None, end_barrier=False, verify=None, start=0, extra=None, nextra=None, hook=None):
    for r in reads(start): A(r)
    for n in range(start, nsteps):
        if on_step: on_step(n)
        last = n == nsteps - 1
        b = None if last else boundary(n + 1)
        b2 = boundary(n + 2) if (verify and n + 2 < nsteps) else None
        if b2 is not None: A.wait_both(b2, A.lg)
        elif b is not None and not verify: A.wait_both(b, A.lg)
        else: A("s_waitcnt lgkmcnt(0)")
        if b is not None and verify: verify(n + 1)[1]()
        rs = [] if last else list(reads(n + 1))
        ms = mfmas(n)
        for g in range(4):
            A(ms[g])
            if g == 0 and b2 is not None: verify(n + 2)[0]()
            if g == 0 and b is not None and verify: verify(n + 1)[2]()
            if g == 0 and (b is not None or (last and end_barrier)): A("s_barrier")
            for _ in range(split[g]):
                if rs: A(rs.pop(0))
            if hook and g == 1: hook.pop(0)()
            if g in (fill_gaps(n) if callable(fill_gaps) else fill_gaps) and fillers:
                f = fillers.pop(0)
                if isinstance(f, str): A(f)
                elif f: f()
            if extra:
                k = nextra(n, g) if not extra[0].startswith('ds_') else (2 if g == 2 else 0)
                while extra and k > 0:
                    if extra[0] == "@hold":
                        if n < 3: break
                        extra.pop(0); continue
                    x = extra.pop(0); A(x); k -= 1
                    if x.startswith("s_cmp") and k == 0: k = 1
        assert not rs

def dma_pieces(voff, srdreg, soff, ldsoff, pre=None, post=None, flags="", m0reg=S_M0W, same_v=False):
    def mk(p):
        def f():
            if p == 0:
                A(f"s_add_u32 m0, s{m0reg}, {ldsoff:#x}")
                if pre: pre()
            A(f"buffer_load_dwordx4 v{voff if same_v else voff+p}, s[{srdreg}:{srdreg+3}], s{soff} offen offset:{p*1024} {flags}lds")
            if p == 3 and post: post()
        return f
    return [mk(p) for p in range(4)]

def run(fs):
    for f in fs:
        if isinstance(f, str): A(f)
        else: f()

def rot_soff(dst, add, shift=None, mul=None, extra_sreg=None, plus=None, rot=S_ROT):
    A(f"s_add_u32 s{dst}, s{rot}, {add}")
    if extra_sreg is not None: A(f"s_add_u32 s{dst}, s{dst}, s{extra_sreg}")
    A(f"s_and_b32 s{dst}, s{dst}, 7")
    if shift is not None: A(f"s_lshl_b32 s{dst}, s{dst}, {shift}")
    else: A(f"s_mul_i32 s{dst}, s{dst}, {mul}")
    if plus is not None: A(f"s_add_u32 s{dst}, s{dst}, s{plus}")

def prologue():
    if OPT["stamps"] or OPT.get("cyc"): A("s_memtime s[98:99]")
    if OPT.get("fixrt") or OPT.get("probe") or OPT["stamps"]: A("s_memrealtime s[100:101]")
    A("s_cmp_ge_u32 s2, 256")
    A("s_cbranch_scc1 L_end")
    A(f"s_load_dwordx16 s[{KA}:{KA+15}], s[0:1], 0")
    A(f"s_load_dwordx16 s[{KA+16}:{KA+31}], s[0:1], 64")
    A("v_and_b32 v1, 63, v0")
    A("v_lshrrev_b32 v2, 6, v0")
    A(f"s_lshr_b32 s{S_SLOT}, s2, 3")
    A(f"v_readfirstlane_b32 s{S_WAVE}, v2")
    A(f"s_and_b32 s{ST}, s2, 3")
    A(f"s_lshl_b32 s{S_CHUNK}, s{ST}, 2")
    A(f"s_lshr_b32 s{ST+1}, s{S_SLOT}, 3")
    A(f"s_add_u32 s{S_CHUNK}, s{S_CHUNK}, s{ST+1}")
    A(f"s_and_b32 s{S_CG}, s{S_SLOT}, 7")
    A(f"s_lshl_b32 s{S_ROT}, s{ST+1}, 1")
    A(f"s_add_u32 s{S_ROT}, s{S_ROT}, s{S_CG}")
    A(f"s_and_b32 s{S_ROT}, s{S_ROT}, 7")
    rm = OPT["rotmode"]
    if rm == 8: A(f"s_mov_b32 s{S_ROT1}, s{S_ROT}")
    elif rm == 1: A(f"s_mov_b32 s{S_ROT1}, 0")
    elif rm == 3:
        A(f"s_add_u32 s{S_ROT1}, s{S_CG}, s{ST+1}")
        A(f"s_and_b32 s{S_ROT1}, s{S_ROT1}, 3")
        A(f"s_mul_i32 s{S_ROT1}, s{S_ROT1}, 3")
    else:
        A(f"s_add_u32 s{S_ROT1}, s{S_CG}, s{ST+1}")
        A(f"s_and_b32 s{S_ROT1}, s{S_ROT1}, {rm-1}")
        A(f"s_lshl_b32 s{S_ROT1}, s{S_ROT1}, {2 if rm == 2 else 1}")
    A(f"s_lshr_b32 s{S_RH}, s{S_WAVE}, 1")
    A(f"s_and_b32 s{S_CH}, s{S_WAVE}, 1")
    A(f"s_lshl_b32 s{S_M0W}, s{S_WAVE}, 12")
    slin(ST + 2, 0, (S_SLOT, 512), (S_WAVE, 128))
    A("v_and_b32 v7, 1, v0")
    A(f"v_lshl_add_u32 v7, v7, 14, s{ST+2}")
    A("v_lshrrev_b32 v3, 3, v1")
    A("v_and_b32 v4, 7, v1")
    A(f"v_and_b32 v{V_N}, 31, v1")
    A(f"v_lshrrev_b32 v{V_G}, 5, v1")
    if OPT["stamps"]: A("v_mov_b32 v255, 0")
    A("s_bitcmp0_b32 s2, 2" if OPT.get("swap", 1) else "s_bitcmp1_b32 s2, 2")
    if OPT.get("bfirst", 1):
        A("s_cbranch_scc0 L_roleA")
        CUT["P"] = len(A.out)
        A.label("L_roleA")
    else:
        A("s_cbranch_scc1 L_roleB")

WSO = OPT.get("wso", 0) << 20
def ws_shift():
    if WSO:
        A(f"s_add_u32 s{K_WS}, s{K_WS}, {WSO:#x}")
        A(f"s_addc_u32 s{K_WS+1}, s{K_WS+1}, 0")

TCHM = OPT.get("touchm", 0)
V_T3, V_T2, STC = 250, 251, 24
def touch_setup(role):
    A(f"s_and_b32 s{ST+2}, s{S_CHUNK}, 3")
    A(f"v_and_b32 v9, 15, v1")
    A(f"v_lshrrev_b32 v10, 4, v1")
    slin(ST, 0, (S_CHUNK, 1 << 17), (S_CG, 1 << 14))
    if role == "A":
        slin(ST + 1, 0, (S_CG, 1 << 16), (ST + 2, 1 << 14))
        A(f"s_cmp_eq_u32 s{S_WAVE}, 0")
        A(f"s_cselect_b32 s{ST}, s{ST}, s{ST+1}")
        A("v_lshlrev_b32 v9, 10, v9")
        A("v_lshl_add_u32 v9, v10, 7, v9")
        A(f"s_mov_b32 s{ST+3}, 128")
    else:
        slin(ST + 1, 0, (ST + 2, 16 * 3072), (S_CG, 128), (S_WAVE, 1024))
        A(f"s_cmp_eq_u32 s{S_WAVE}, 0")
        A(f"s_cselect_b32 s{ST}, s{ST}, s{ST+1}")
        A(f"s_mov_b32 s{ST+1}, 3072")
        A(f"s_mov_b32 s{ST+3}, 196608")
        A(f"s_cselect_b32 s{ST+1}, 1024, s{ST+1}")
        A(f"s_cselect_b32 s{ST+3}, 128, s{ST+3}")
        A(f"v_mul_lo_u32 v9, v9, s{ST+1}")
        A(f"v_mul_lo_u32 v10, v10, s{ST+3}")
        A("v_add_u32 v9, v9, v10")
    A(f"v_add_u32 v9, s{ST}, v9")
    A(f"v_mov_b32 v10, {OOB:#x}")
    A("v_cmp_gt_u32 vcc, 48, v1")
    A(f"v_cndmask_b32 v{V_T3}, v10, v9, vcc")
    A("v_cmp_gt_u32 vcc, 32, v1")
    A(f"v_cndmask_b32 v{V_T2}, v10, v9, vcc")
    A(f"s_mov_b32 s{S_CNT}, s{ST+3}")
def touch_srd(role):
    px, p1, p2 = (K_AX, K_BRE, K_BIM) if role == "A" else (K_BX, K_WQKV, K_WQKV)
    A(f"s_cmp_eq_u32 s{S_WAVE}, 1")
    A(f"s_cselect_b32 s{STC}, s{p1}, s{p2}")
    A(f"s_cselect_b32 s{STC+1}, s{p1+1}, s{p2+1}")
    A(f"s_mov_b32 s{STC+2}, {0x80000 if role == 'A' else 0x180000:#x}")
    A(f"s_cmp_eq_u32 s{S_WAVE}, 0")
    A(f"s_cselect_b32 s{STC}, s{px}, s{STC}")
    A(f"s_cselect_b32 s{STC+1}, s{px+1}, s{STC+1}")
    A(f"s_cselect_b32 s{STC+2}, 0x200000, s{STC+2}")
    A(f"s_cmp_eq_u32 s{S_WAVE}, 3")
    A(f"s_cselect_b32 s{STC+2}, 0, s{STC+2}")
    A(f"s_mov_b32 s{STC+3}, 0x20000")
def touch(k0, v):
    def f():
        A(f"s_mul_i32 s{ST+6}, s{S_CNT}, {k0}")
        A(f"buffer_load_dword v254, v{v}, s[{STC}:{STC+3}], s{ST+6} offen")
    return f

def cut(role):
    A(f"s_branch L_main{role}")
    CUT[role] = len(A.out)
    A.label(f"L_main{role}")

def role_rot(rm):
    if not rm: return
    if rm == 8: A(f"s_mov_b32 s{S_ROT1}, s{S_ROT}")
    elif rm == 1: A(f"s_mov_b32 s{S_ROT1}, 0")
    else:
        A(f"s_add_u32 s{S_ROT1}, s{S_CG}, s{ST+1}")
        A(f"s_and_b32 s{S_ROT1}, s{S_ROT1}, {rm-1}")
        A(f"s_lshl_b32 s{S_ROT1}, s{S_ROT1}, {2 if rm == 2 else 1}")

def code_prefetch():
    role_rot(OPT.get("rot" + ROLE[0], 0))
    A(f"s_getpc_b64 s[{ST+4}:{ST+5}]")
    A.label(f"L_pc{ROLE[0]}")
    A(f"s_add_u32 s{ST+4}, s{ST+4}, L_main{ROLE[0]}-L_pc{ROLE[0]}")
    A(f"s_addc_u32 s{ST+5}, s{ST+5}, 0")
    A(f"global_load_dword v254, v7, s[{ST+4}:{ST+5}]")

def common_setup(role):
    srd(SWS, K_WS, 0x10000000 - WSO)
    if TCHM: A(f"s_mov_b64 s[100:101], s[{K_OUT}:{K_OUT+1}]")
    else: srd(SOUT, K_OUT, 0x800000)
    A(f"s_lshl_b32 s{S_M0W2}, s{S_WAVE}, 13")
    A(f"s_mov_b32 s{S_MG}, 0")
    A(f"s_mov_b32 s{S_MG+1}, -1")
    A(f"s_sub_u32 s{S_MRH}, 0, s{S_RH}")
    A(f"s_mov_b32 s{S_MRH+1}, s{S_MRH}")
    A(f"s_mov_b32 s{S_L2E}, {LOG2E:#x}")
    A(f"s_mov_b32 s{S_L2E+1}, {LOG2E:#x}")
    A(f"s_mov_b32 s{S_M16}, 0xffff0000")
    A(f"s_mov_b32 s{S_M16+1}, 0xffff0000")
    A(f"s_add_u32 s{S_GRP}, s{S_CHUNK}, {0 if role == 'A' else 16}")
    slin(P_XCCB, WS_XCC, (S_GRP, 1024))
    if role == "A": A(f"s_mov_b32 s{S_MF}, 0")
    else: A(f"s_and_b32 s{S_MF}, s{S_CG}, 1")
    slin(P_OUT, 0 if role == "A" else 2048, (S_CHUNK, 1 << 19), (S_RH, 1 << 18), (S_CG, 256), (S_CH, 128), (S_MF, 1 << 17))
    A(f"s_xor_b32 s{P_OUT2}, s{P_OUT}, {1 << 17:#x}")
    slin(P_TAGSEL, 0, (S_CHUNK, 256), (S_CG, 16), (S_WAVE, 1))
    A(f"s_and_b32 s{ST}, s{S_CHUNK}, 3")
    A(f"s_lshl_b32 s{ST}, s{ST}, 1")
    A(f"s_mov_b32 s{KAP[0]}, s{S_CG}")
    for j in range(1, 8):
        A(f"s_add_u32 s{ST+1}, s{ST}, {j-1}")
        A(f"s_cmp_ge_u32 s{ST+1}, 7")
        A(f"s_addc_u32 s{ST+1}, s{ST+1}, 1")
        A(f"s_add_u32 s{ST+1}, s{ST+1}, s{S_CG}")
        A(f"s_and_b32 s{KAP[j]}, s{ST+1}, 7")
    if OPT.get("tlb", 0):
        A(f"v_and_b32 v9, 15, v{V_LANE}")
        A("v_lshlrev_b32 v9, 20, v9")
        A(f"buffer_load_dword v254, v9, s[{SWS}:{SWS+3}], 0 offen offset:2048")
        A(f"buffer_load_dword v254, v9, s[{SOUT}:{SOUT+3}], 0 offen")
        A(f"buffer_load_dword v254, v9, s[{SW2}:{SW2+3}], 0 offen")
    A(f"v_lshlrev_b32 v{V_LIN}, 4, v{V_LANE}")
    A(f"v_mov_b32 v{V_L0}, {OOB:#x}")
    A(f"v_cmp_eq_u32 vcc, 0, v{V_LANE}")
    if not HAND:
        A(f"v_lshlrev_b32 v{V_CHK}, 2, v{V_N}")
        slin(P_FLAGB, WS_FLAG, (S_GRP, 256))
        slin(P_FLW, 0, (S_CG, 16), (S_WAVE, 4), (P_FLAGB, 1))
        A(f"s_getreg_b32 s{S_XW}, hwreg(HW_REG_XCC_ID, 0, 4)")
    A(f"v_lshlrev_b32 v{V_XPO}, 7, v4")
    A(f"v_cndmask_b32_e64 v{V_L0}, v{V_L0}, 0, vcc")
    A(f"v_lshlrev_b32 v{V_OUTO}, 14, v{V_G}")
    A(f"v_lshl_add_u32 v{V_OUTO}, v{V_N}, 2, v{V_OUTO}")
    slin(P_FLAGO, 0, (S_CG, 128), (P_XCCB, 1))
    A("s_waitcnt lgkmcnt(0)")
    A(f"s_add_u32 s{S_TAG}, s{S_TAG}, 1")
    if OPT["stamps"]: A("s_mov_b32 s99, 0")
    if not HAND:
        A(f"s_lshl_b32 s{ST}, s{S_TAG}, 4")
        A(f"s_or_b32 s{S_XW}, s{S_XW}, s{ST}")
        A(f"v_mov_b32 v248, s{S_XW}")
        A(f"v_mov_b32 v249, {OOB:#x}")
        A("v_cmp_gt_u32 vcc, 32, v0")
        A(f"v_cndmask_b32 v249, v249, v{V_CHK}, vcc")
        A(f"buffer_store_dword v248, v249, s[{SWS}:{SWS+3}], s{P_FLAGO} offen sc1")

def lds_b128_addrs(base_reg, wave_off_sreg, const, nsets):
    A(f"v_bfe_u32 v9, v{V_N}, 1, 3")
    A(f"v_xor_b32 v9, v9, v{V_G}")
    A("v_lshlrev_b32 v9, 4, v9")
    A(f"v_lshl_add_u32 v9, v{V_N}, 7, v9")
    A(f"v_add_u32 v9, s{wave_off_sreg}, v9")
    if const: A(f"v_add_u32 v9, {const:#x}, v9")
    for ks in range(4):
        A(f"v_xor_b32 v{base_reg+ks}, {32*ks}, v9")
    for st in range(1, nsets):
        for ks in range(4): A(f"v_add_u32 v{base_reg+4*st+ks}, {st*0x10000:#x}, v{base_reg+ks}")

TCH = 250
def rdy_load(reg, dummy=9):
    A(f"buffer_load_dword v254, v{V_CHK}, s[{SWS}:{SWS+3}], s{P_FLAGB} offen offset:64 sc1")
    A(f"buffer_load_dword v{reg}, v{V_XPO}, s[{SWS}:{SWS+3}], s{P_XCCB} offen sc1")
def rdy_check(dst, reg):
    if HAND: A(f"v_xor_b32 v{dst}, s{S_TAG}, v{reg}")
    else:
        A(f"v_xor_b32 v{reg}, s{S_XW}, v{reg}")
        A(f"v_lshrrev_b32 v{dst}, 4, v{reg}")
def rdy_store():
    if HAND: A(f"buffer_store_dword v11, v{V_L0}, s[{SWS}:{SWS+3}], s{P_FLAGO} offen sc1")
def xcc_decide(reg):
    if HAND: return
    A(f"v_cmp_ne_u32 vcc, 0, v{reg}")
    A("s_cmp_lg_u64 vcc, 0")
    A(f"s_cselect_b32 s{S_SLOW}, 1, 0")
def flag_store(ph=0):
    slow, join = lab("slow"), lab("join")
    A(f"s_cmp_lg_u32 s{S_SLOW}, 0")
    A(f"s_cbranch_scc1 {slow}")
    A(f"buffer_store_dword v11, v{V_L0}, s[{SWS}:{SWS+3}], s{P_FLW} offen offset:{ph*128}")
    A.label(join)
    def later():
        A.label(slow)
        A(f"buffer_store_dword v11, v{V_L0}, s[{SWS}:{SWS+3}], s{P_FLW} offen offset:{ph*128} sc1")
        A(f"s_branch {join}")
    DEFER.append(later)
def flag_load(ph):
    A(f"buffer_load_dword v13, v{V_CHK}, s[{SWS}:{SWS+3}], s{P_FLAGB} offen offset:{ph*128} sc1")
def flag_cmp():
    A(f"v_cmp_ne_u32 s[{S_FAIL}:{S_FAIL+1}], s{S_TAG}, v13")
def flag_poll(ph=0):
    poll(lambda: flag_load(ph), flag_cmp)
def flag_check(ph):
    slow, back = lab("fslow"), lab("fback")
    flag_cmp()
    A(f"s_cmp_lg_u64 s[{S_FAIL}:{S_FAIL+1}], 0")
    A(f"s_cbranch_scc1 {slow}")
    A.label(back)
    def later():
        A.label(slow)
        A.hist = []
        flag_poll(ph)
        A(f"s_branch {back}")
    DEFER.append(later)

DEFER = []
def make_verify(pieces, slot, second):
    retry, back = lab("retry"), lab("back")
    def reads():
        A(f"v_add_u32 v9, {slot*SLOT:#x}, v{V_CHK}")
        A("ds_read_b32 v13, v9")
        A(f"ds_read_b32 v14, v9 offset:{second}")
    def cmp():
        A("v_max_u32 v13, v13, v14")
        A("v_cmp_eq_u32 vcc, -1, v13")
    def branch():
        A("s_cmp_lg_u64 vcc, 0")
        A(f"s_cbranch_scc1 {retry}")
        A.label(back)
    def later():
        top, done = lab("rl"), lab("rd")
        A.label(retry)
        A.hist = []
        A(f"s_mov_b32 s{S_SM0}, m0")
        A(f"s_mov_b32 s{S_CNT}, {SPIN_LIMIT}")
        A.label(top)
        run(pieces(S_RS))
        A("s_waitcnt vmcnt(0)")
        A("ds_read_b32 v13, v9")
        A(f"ds_read_b32 v14, v9 offset:{second}")
        A("s_waitcnt lgkmcnt(0)")
        cmp()
        A("s_cmp_eq_u64 vcc, 0")
        A(f"s_cbranch_scc1 {done}")
        A(f"s_sub_u32 s{S_CNT}, s{S_CNT}, 1")
        A(f"s_cbranch_scc0 {top}")
        A.label(done)
        if OPT["stamps"]:
            A(f"s_sub_u32 s{S_CNT}, {SPIN_LIMIT + 1}, s{S_CNT}")
            A(f"s_add_u32 s99, s99, s{S_CNT}")
        A(f"s_mov_b32 m0, s{S_SM0}")
        A(f"s_branch {back}")
    DEFER.append(later)
    return reads, cmp, branch

def tag_update(role):
    skip = lab("notag")
    A(f"s_cmp_eq_u32 s{P_TAGSEL}, {(15 if role == 'A' else 0) << 8}")
    A(f"s_cbranch_scc0 {skip}")
    A(f"buffer_store_dword v11, v{V_L0}, s[{SWS}:{SWS+3}], 0 offen offset:{WS_TAGA if role == 'A' else WS_TAGB} sc1")
    A.label(skip)

def out_stores(acc, ph):
    def mk(r):
        def f():
            row = 8 * (r >> 2) + (r & 3)
            A(f"s_add_u32 s{ST+1}, s{P_OUT+ph}, {row*4096}")
            A(f"buffer_store_dword v{acc+16*ph+r}, v{V_OUTO}, s[{SOUT}:{SOUT+3}], s{ST+1} offen {OUTF2 if ph else OUTF}")
        return f
    return [mk(r) for r in range(16)]

SCHED = {
    0: ({0: [2, 3], 1: [4], 2: [5], 3: [6], 4: [7]}, 5, {0: "all"}),
    1: ({i: [i + 2] for i in range(6)}, 6, {i: "front" for i in range(6)}),
    2: ({0: [2], 1: [3], 2: [4], 3: [5, 6], 4: [7]}, 5, {3: "all"}),
    3: ({0: [2], 1: [3], 2: [4, 5], 3: [6], 4: [7]}, 5, {2: "all"}),
    4: ({0: [2], 1: [3], 2: [4], 3: [5], 4: [6], 5: [7]}, 6, {2: "front", 3: "front", 4: "front", 5: "front"}),
    5: ({0: [2], 1: [3, 4], 2: [5], 3: [6], 4: [7]}, 5, {1: "all"}),
    6: ({i: [i + 3] for i in range(5)}, 5, {}),
    7: ({i: [i + 3] for i in range(5)}, 5, {0: "front", 1: "front"}),
    8: ({0: [2], 1: [3], 2: [4, 5], 3: [6], 4: [7]}, 5, {0: "late", 1: "late", 2: "all"}),
    9: ({0: [2], 1: [3, 4], 2: [5], 3: [6], 4: [7]}, 5, {0: "three", 1: "all", 2: "three"}),
}[OPT.get("sched", 6)]
EARLY = OPT.get("sched", 6) >= 6
NPRE = OPT.get("npre", 4)
NX = OPT.get("nx", 10)
XST = SCHED[1]
def g1_gaps(n, busy):
    i = n >> 2
    if SCHED[2].get(i) == "late": return (0, 1, 2, 3) if (n & 3) >= 2 else ((3,) if (n & 3) == 1 else ())
    if SCHED[2].get(i) == "three": return (1, 2, 3)
    if SCHED[2].get(i) in ("all", "front") or i in busy: return (0, 1, 2, 3)
    return (2, 3)
OUTF = {0: "sc1", 1: "sc1 nt", 2: "sc0 sc1", 3: "nt", 4: "", 5: "sc0 sc1 nt"}[OPT.get("outf", 0)]
OUTF2 = {0: "sc1", 3: "nt", 4: ""}[OPT.get("outf2", 0)]
XF = "nt " if OPT["xnt"] else ""
PLF = {0: "sc1 ", 1: "", 2: "sc0 ", 3: "nt "}[OPT.get("plf", 0)]

def role_A():
    V_AX, V_AW = 24, 32
    V_GO, V_SCW = 44, 3
    V_XF, V_WF = 48, 64
    URE, UIM = 80, 112
    ACC2 = 144
    HP = 176
    XS, DG, V_GE = 176, 192, 200
    V_PUB, V_XSO, V_HSO = 45, 46, 223
    P_MSK = P0 + 4
    C_LAM, C_M1, C_M2, C_L, C_MQ, C_LQ, C_C2 = 208, 210, 212, 214, 216, 218, 220
    C_DSK = 222
    T0 = 224
    P_SAB, P_SAO, P_XS0, P_XS1 = P0, P0 + 1, P0 + 2, P0 + 3
    code_prefetch()
    A("v_lshrrev_b32 v9, 1, v3")
    A("v_xor_b32 v9, v9, v4")
    A("v_lshlrev_b32 v9, 4, v9")
    A("v_lshrrev_b32 v10, 2, v3")
    A("v_lshlrev_b32 v10, 5, v10")
    A("v_and_b32 v11, 1, v3")
    A("v_lshl_add_u32 v10, v11, 4, v10")
    A("v_bfe_u32 v11, v3, 1, 1")
    A("v_add_u32 v10, v10, v11")
    A("v_lshl_add_u32 v10, v10, 10, v9")
    slin(ST, 0, (S_CHUNK, 1 << 17), (S_RH, 1 << 16), (S_CH, 1 << 13))
    A(f"v_add_u32 v{V_OX}, s{ST}, v10")
    A(f"v_xor_b32 v11, 64, v{V_OX}")
    A(f"v_add_u32 v{V_OX+1}, 1024, v11")
    A(f"v_add_u32 v{V_OX+2}, 2048, v{V_OX}")
    A(f"v_add_u32 v{V_OX+3}, 3072, v11")
    A("v_lshl_add_u32 v10, v3, 10, v9")
    slin(ST, 0, (S_CG, 1 << 16), (S_CH, 1 << 15))
    A(f"v_add_u32 v{V_OW}, s{ST}, v10")
    A(f"v_xor_b32 v11, 64, v{V_OW}")
    A(f"v_add_u32 v{V_OW+1}, 7168, v11")
    A(f"v_add_u32 v{V_OW+2}, {2*7168}, v{V_OW}")
    A(f"v_add_u32 v{V_OW+3}, {3*7168}, v11")
    slin(ST, 0, (S_CG, 128), (S_CH, 64))
    A(f"v_lshl_add_u32 v14, v{V_N}, 1, s{ST}")
    if TCHM: touch_setup("A")
    A(f"s_cmp_eq_u32 s{S_RH}, 0")
    A("s_waitcnt lgkmcnt(0)")
    A(f"s_cselect_b32 s{SW}, s{K_BRE}, s{K_BIM}")
    A(f"s_cselect_b32 s{SW+1}, s{K_BRE+1}, s{K_BIM+1}")
    A(f"s_cselect_b32 s{SW2}, s{K_CRE}, s{K_CIM}")
    A(f"s_cselect_b32 s{SW2+1}, s{K_CRE+1}, s{K_CIM+1}")
    A(f"s_mov_b32 s{SW+2}, 0x80000")
    A(f"s_mov_b32 s{SW+3}, 0x20000")
    stamp(1)
    ws_shift()
    A(f"s_load_dword s{S_TAG}, s[{K_WS}:{K_WS+1}], {WS_TAGA}")
    srd(SX, K_AX, 0x200000)
    tok = {}
    def g1_pieces(i):
        slot = i & 3
        return (dma_pieces(V_OW, SW, ST + 8, slot * SLOT, pre=lambda: rot_soff(ST + 8, i, shift=7, rot=S_ROT1)) +
                dma_pieces(V_OX, SX, ST + 8, slot * SLOT + 16384, post=lambda: tok.__setitem__(i, A.vm), flags=XF))
    CLDS = {1: 4 * SLOT, 2: 4 * SLOT + 16384, 0: 0, 3: 16384, 4: SLOT, 5: SLOT + 16384, 6: 2 * SLOT, 7: 2 * SLOT + 16384}
    CORD = [1, 2, 0, 3, 4, 5, 6, 7]
    CE = OPT.get('ce', 0)
    def c_pieces(st):
        if st in (0, 2) and OPT.get("cswap", 1):
            def pre():
                A(f"s_and_b32 s{ST+9}, s{S_CHUNK}, 3")
                A(f"s_cmp_eq_u32 s{ST+9}, 3")
                A(f"s_cselect_b32 s{ST+9}, {CLDS[2-st]:#x}, {CLDS[st]:#x}")
                A(f"s_cselect_b32 s{ST+7}, s{KAP[2-st]}, s{KAP[st]}")
                A(f"s_add_u32 m0, s{S_M0W}, s{ST+9}")
                A(f"s_lshl_b32 s{ST+9}, s{ST+7}, 7")
            return dma_pieces(V_OW, SW2, ST + 9, 0, pre=pre)
        return dma_pieces(V_OW, SW2, ST + 9, CLDS[st], pre=lambda: A(f"s_lshl_b32 s{ST+9}, s{KAP[st]}, 7"))
    ADL = OPT.get("adl", 1)
    SML = OPT.get("sml", 1) if not ADL else 0
    def small():
        A(f"global_load_ushort v{T0}, v14, s[{K_LRE}:{K_LRE+1}]")
        A(f"global_load_ushort v{T0+1}, v14, s[{K_LIM}:{K_LIM+1}]")
        A(f"global_load_ushort v{T0+2}, v14, s[{K_LDT}:{K_LDT+1}]")
        A(f"global_load_ushort v{C_DSK}, v14, s[{K_DSK}:{K_DSK+1}]")
    if not SML: small()
    tok_small = A.vm
    if ADL < 2: run(g1_pieces(0))
    A(f"s_mov_b32 s{SW2+2}, 0x80000")
    A(f"s_mov_b32 s{SW2+3}, 0x20000")
    late = g1_pieces(1)
    NA = OPT.get("nprea", 4) if not ADL else 0
    if ADL == 2: late = g1_pieces(0) + late
    if OPT.get("diagdelay"): late = [f"s_sleep {OPT['diagdelay']}"] + late
    if SML == 2: small()
    if TCHM:
        touch_srd("A"); touch(1, V_T3)()
        if TCHM == 1: late = late + [touch(4, V_T2)] + g1_pieces(2) + [touch(6, V_T2)]
    elif EARLY:
        run(late[:NA]); late = late[NA:] + g1_pieces(2)
    else:
        run(late); late = []
    if SML == 1: small()
    if OPT.get("wtouch", 0):
        slin(ST, 0, (S_CG, 1 << 16), (S_CHUNK, 4096), (S_CH, 2048))
        A(f"v_and_b32 v9, 15, v{V_LANE}")
        A("v_lshlrev_b32 v9, 7, v9")
        A(f"buffer_load_dword v254, v9, s[{SW2}:{SW2+3}], s{ST} offen")
    stamp(2)
    cut("A")
    A(f"s_lshl_b32 s{ST}, s{S_RH}, 13")
    lds_b128_addrs(V_AX, ST, 16384, 2)
    A(f"s_lshl_b32 s{ST}, s{S_CH}, 12")
    lds_b128_addrs(V_AW, ST, 0, 3)
    XLDS = OPT.get("xlds", 1)
    S_XI = 57
    if XLDS:
        V_XA = ACC2
        A(f"s_sub_u32 s{S_XI}, s{S_CG}, s{S_ROT1}")
        A(f"s_and_b32 s{S_XI}, s{S_XI}, 7")
        A(f"s_and_b32 s{ST+1}, s{S_XI}, 3")
        slin(ST, 16384, (ST + 1, SLOT), (S_RH, 8192))
        A(f"v_bfe_u32 v9, v{V_N}, 1, 2")
        A(f"v_and_b32 v10, 1, v{V_N}")
        A("v_lshl_add_u32 v9, v9, 2, v10")
        A(f"v_bfe_u32 v10, v{V_N}, 4, 1")
        A("v_lshl_add_u32 v10, v9, 1, v10")
        A(f"v_bfe_u32 v11, v{V_N}, 3, 1")
        A("v_lshl_add_u32 v10, v11, 5, v10")
        A("v_and_b32 v9, 7, v9")
        A(f"s_lshl_b32 s{ST+1}, s{S_CH}, 2")
        A(f"v_lshl_add_u32 v11, v{V_G}, 1, s{ST+1}")
        A("v_xor_b32 v9, v9, v11")
        A("v_lshlrev_b32 v9, 4, v9")
        A("v_lshl_add_u32 v9, v10, 7, v9")
        A(f"v_add_u32 v{V_XA}, s{ST}, v9")
        A(f"v_xor_b32 v{V_XA+1}, 16, v{V_XA}")
        A(f"v_xor_b32 v{V_XA+2}, 32, v{V_XA}")
        A(f"v_xor_b32 v{V_XA+3}, 48, v{V_XA}")
    if OPT.get("lateset", 1): A.cap = []
    common_setup("A")
    slin(P_SAB, WS_SA, (S_CG, 8192))
    A(f"s_sub_u32 s{ST}, 15, s{S_CHUNK}")
    slin(P_SAO, 0, (ST, 512), (S_CH, 256), (P_SAB, 1))
    A(f"s_mov_b32 s{P_MSK}, 0xffffff00")
    slin(P_XS0, 0, (S_CHUNK, 1 << 17), (S_RH, 1 << 16), (S_CG, 128), (S_CH, 64), (S_MF, 32768))
    A(f"s_xor_b32 s{P_XS1}, s{P_XS0}, 32768")
    slin(P_ACTW, WS_H, (S_CHUNK, 1 << 18), (S_CG, 1 << 15), (S_WAVE, 4096))
    slin(P_ACTR, WS_H, (S_CHUNK, 1 << 18), (S_WAVE, 4096), (S_MF, 16384))
    A(f"s_xor_b32 s{P_ACTR2}, s{P_ACTR}, 16384")
    A(f"v_lshlrev_b32 v9, 11, v{V_G}")
    A(f"v_lshl_add_u32 v{V_HSO}, v{V_N}, 4, v9")
    A(f"s_add_u32 s{P_ACTW2}, s{P_ACTW}, 16384")
    clears = [f"buffer_store_dwordx4 {vr(T0+24,4)}, v{V_HSO}, s[{SWS}:{SWS+3}], s{P_ACTW} offen offset:{k*512} sc1" for k in range(8)]
    A(f"s_and_b32 s{ST}, s{S_TAG}, 0xff")
    A(f"v_mov_b32 v{V_TAG}, s{ST}")
    A(f"v_mov_b32 v11, s{S_TAG}")
    A(f"v_lshlrev_b32 v{V_XSO}, 10, v{V_N}")
    A(f"v_lshl_add_u32 v{V_XSO}, v{V_G}, 5, v{V_XSO}")
    SCR = 3 * SLOT
    slin(ST, SCR, (S_CH, 256))
    A(f"v_lshl_add_u32 v4, v{V_N}, 3, s{ST}")
    A(f"s_lshl_b32 s{ST}, s{S_RH}, 10")
    A(f"v_lshl_add_u32 v3, v{V_G}, 9, v4")
    A(f"v_add_u32 v3, s{ST}, v3")
    A(f"v_lshlrev_b32 v13, 3, v{V_N}")
    A(f"v_mov_b32 v14, {OOB:#x}")
    A(f"s_or_b64 s[{ST+2}:{ST+3}], s[{S_MG}:{S_MG+1}], s[{S_MRH}:{S_MRH+1}]")
    A(f"v_cndmask_b32_e64 v{V_PUB}, v13, v14, s[{ST+2}:{ST+3}]")
    if OPT.get("prew", 1):
        for k in range(2): A(f"v_subrev_u32 v{T0+20+k}, 1, v{V_TAG}")
        A(f"buffer_store_dwordx2 {vr(T0+20,2)}, v{V_PUB}, s[{SWS}:{SWS+3}], s{P_SAO} offen sc1")
    A(f"s_sub_u32 s{ST+4}, 16, s{S_CHUNK}")
    A(f"v_lshlrev_b32 v9, 3, v{V_G}")
    A(f"v_add_u32 v9, s{ST+4}, v9")
    A(f"s_lshl_b32 s{ST+4}, s{S_CH}, 8")
    A(f"v_add_u32 v13, s{ST+4}, v13")
    A(f"v_lshl_add_u32 v{V_GO}, v9, 9, v13")
    for i in range(8):
        A(f"v_cmp_gt_u32 vcc, {16-i}, v9")
        A(f"v_cndmask_b32_e64 v{V_GE+i}, 0, v{V_TAG}, vcc")
    if SML: A.cap.append("@consts")
    if ADL: A.cap.append("@small")
    A.wait_vm(tok_small)
    lre, lim, ldt = T0, T0 + 1, T0 + 2
    A(f"v_and_b32 v9, 1, v{V_N}")
    A("v_lshlrev_b32 v9, 4, v9")
    A(f"v_lshlrev_b32 v{C_DSK}, v9, v{C_DSK}")
    A(f"v_lshrrev_b32 v9, 1, v{V_N}")
    A(f"v_lshlrev_b32 v13, 3, v{V_G}")
    A("v_sub_u32 v9, v9, v13")
    for q in range(8):
        A(f"v_cmp_eq_u32 vcc, {q}, v9")
        A(f"v_cndmask_b32_e64 v{DG+q}, 0, v{C_DSK}, vcc")
    for r in (lre, lim, ldt): A(f"v_lshlrev_b32 v{r}, 16, v{r}")
    A(f"v_mul_f32 v{ldt}, s{S_L2E}, v{ldt}")
    A(f"v_exp_f32 v{ldt}, v{ldt}")
    A(f"v_cvt_pk_bf16_f32 v{ldt}, v{ldt}, v{ldt}")
    A(f"v_lshlrev_b32 v{ldt}, 16, v{ldt}")
    A(f"v_mul_f32 v{T0+4}, v{ldt}, v{lre}")
    A(f"v_mul_f32 v{T0+5}, v{ldt}, v{lim}")
    A(f"v_mul_f32 v{T0+4}, s{S_L2E}, v{T0+4}")
    A(f"v_exp_f32 v{T0+4}, v{T0+4}")
    A(f"v_mul_f32 v{T0+5}, {INV2PI:#x}, v{T0+5}")
    A(f"v_rndne_f32 v{T0+6}, v{T0+5}")
    A(f"v_sub_f32 v{T0+5}, v{T0+5}, v{T0+6}")
    A(f"v_cos_f32 v{T0+6}, v{T0+5}")
    A(f"v_sin_f32 v{T0+7}, v{T0+5}")
    A(f"v_mul_f32 v{C_LAM}, v{T0+4}, v{T0+6}")
    A(f"v_mul_f32 v{C_LAM+1}, v{T0+4}, v{T0+7}")
    A(f"v_add_f32 v{T0+4}, -1.0, v{C_LAM}")
    A(f"v_mul_f32 v{T0+5}, v{lre}, v{lre}")
    A(f"v_fmac_f32 v{T0+5}, v{lim}, v{lim}")
    A(f"v_rcp_f32 v{T0+5}, v{T0+5}")
    A(f"v_mul_f32 v{T0+6}, v{T0+4}, v{lre}")
    A(f"v_fmac_f32 v{T0+6}, v{C_LAM+1}, v{lim}")
    A(f"v_mul_f32 v{T0+7}, v{C_LAM+1}, v{lre}")
    A(f"v_fma_f32 v{T0+7}, -v{T0+4}, v{lim}, v{T0+7}")
    A(f"v_add_f32 v{T0+5}, v{T0+5}, v{T0+5}")
    A(f"v_mul_f32 v{C_C2}, v{T0+6}, v{T0+5}")
    A(f"v_mul_f32 v{C_C2+1}, v{T0+7}, v{T0+5}")
    pa, pb, tt = T0 + 8, T0 + 10, T0 + 12
    cmul(pa, C_LAM, C_LAM, tt)
    cmul(pb, pa, pa, tt)
    cmul(pa, pb, pb, tt)
    cmul(C_M1, pa, pa, tt)
    cmul(C_M2, C_M1, C_M1, tt)
    cmul(pa, C_M2, C_M2, tt)
    cmul(C_L, pa, pa, tt)
    def sel_pair(dst, src, mask):
        A(f"v_cndmask_b32_e64 v{dst}, 1.0, v{src}, s[{mask}:{mask+1}]")
        A(f"v_cndmask_b32_e64 v{dst+1}, 0, v{src+1}, s[{mask}:{mask+1}]")
    sel_pair(T0 + 14, C_M2, S_MG)
    sel_pair(T0 + 16, pa, S_MRH)
    cmul(C_MQ, T0 + 14, T0 + 16, tt)
    cmul(pa, C_L, C_L, tt)
    cmul(pb, pa, pa, tt)
    cmul(pa, pb, pb, tt)
    sel_pair(C_LQ, pa, S_MG)
    SET, A.cap = (A.cap or []), None
    LATEV = [x for x in SET if x.startswith("buffer_")]
    SET = [x for x in SET if not x.startswith("buffer_")]
    if ADL: A.wait_vm(tok_small) if False else None
    for _ in range(OPT.get("pset", 0) if not ADL else 1000):
        if not SET or SET[0] == "@consts": break
        if SET[0] == "@small":
            SET.pop(0); A.wait_vm(tok_small); continue
        if SET[0].startswith(f"s_add_u32 s{S_TAG},"): A("s_waitcnt lgkmcnt(0)")
        A(SET.pop(0))
    while SET and (SET[0].startswith("s_addc") or SET[0].startswith("s_cselect")): A(SET.pop(0))
    if "@consts" in SET:
        k_ = SET.index("@consts")
        SET = SET[:k_] + ["@hold"] + SET[k_+1:]
    stamp(3)
    run(late)
    def rd(n):
        i, ks = n >> 2, n & 3
        slot, buf = i & 3, n & 1
        s2_, off = slot >> 1, (slot & 1) * SLOT
        x = [f"ds_read_b128 {vr(V_XF+buf*8+m*4,4)}, v{V_AX+4*s2_+ks} offset:{off+m*4096}" for m in range(2)]
        w = [f"ds_read_b128 {vr(V_WF+buf*8+ri*4,4)}, v{V_AW+4*s2_+ks} offset:{off+ri*8192}" for ri in range(2)]
        return [x[0], w[0], w[1], x[1]]
    def mm(n):
        buf = n & 1
        r = []
        for m, ri in ((0, 0), (0, 1), (1, 1), (1, 0)):
            d = vr((URE, UIM)[ri] + 16 * m, 16)
            r.append(mf(d, vr(V_XF + buf * 8 + m * 4, 4), vr(V_WF + buf * 8 + ri * 4, 4), d if n else "0"))
        return r
    fill = []
    hook = []
    def xs_load(m, s):
        return lambda: A(f"buffer_load_dwordx4 {vr(XS+8*m+4*s,4)}, v{V_XSO}, s[{SX}:{SX+3}], s{P_XS0+m} offen offset:{16*s}")
    def xs_lds(i):
        sk = lab("nx")
        A(f"s_cmp_eq_u32 s{S_XI}, {i}")
        A(f"s_cbranch_scc0 {sk}")
        sk_ = A.skip_begin()
        for m in range(2):
            for s_ in range(2):
                A(f"ds_read_b128 {vr(XS+8*m+4*s_,4)}, v{V_XA+2*m+s_} offset:{m*512}")
        A.skip_end(sk_)
        A.label(sk)
    def on_step(n):
        i, ks = n >> 2, n & 3
        if XLDS and ks == 1: hook.append(lambda: xs_lds(i))
        if ks == 0 and OPT.get("g1st") and i: stamp(16 + i)
        if ks == 0:
            if TCHM == 2 and i < 2: fill.append(touch(4 + 2 * i, V_T2))
            for st in SCHED[0].get(i, []): fill.extend(g1_pieces(st))
            XL = [xs_load(m, s) for m in range(2) for s in range(2)] if not XLDS else []
            XO = OPT.get("xso", 1)
            if i == XST:
                if XO == 1: fill.extend(LATEV + XL)
                fill.extend(c_pieces(1) + c_pieces(2))
            elif i == XST + 1:
                if XO == 0: fill.extend(LATEV + XL)
                if CE >= 4: fill.extend(c_pieces(0) + c_pieces(3))
            elif i == 7:
                if CE == 2: fill.extend(c_pieces(0) + c_pieces(3))
                if CE >= 4: fill.extend(c_pieces(4) + c_pieces(5))
                if OPT.get("ptouch", 0):
                    fill.extend([f"buffer_load_dword v254, v{V_GO+k}, s[{SWS}:{SWS+3}], s{P_SAB} offen sc1" for k in range(4)])
                    fill.append(lambda: rdy_load(254, 254))
    A.wait_vm(tok[0])
    A("s_barrier")
    stamp(4)
    gemm_loop(32, rd, mm, lambda n: tok[n >> 2] if (n & 3) == 0 else None, (2, 2, 0, 0), lambda n: g1_gaps(n, (5,) if OPT.get('xall', 0) else ()), fill, on_step, end_barrier=True, extra=SET, nextra=lambda n, g: NX, hook=hook)
    assert not SET
    assert not fill
    stamp(5)
    if TCHM: srd(SOUT, 100, 0x800000)
    P = [T0, T0 + 4]
    def lam_bc(hi): return f"op_sel:[{hi},0,0] op_sel_hi:[{hi},1,1]"
    NEG = "neg_lo:[1,0,0] neg_hi:[1,0,0]"
    cur_re, cur_im = URE, UIM
    for s in range(1, 16):
        d = P[s & 1]
        A(f"v_pk_fma_f32 {vr(d,2)}, {vr(C_LAM,2)}, {vr(cur_im,2)}, {vr(URE+2*s,2)} {lam_bc(1)} {NEG}")
        A(f"v_pk_fma_f32 {vr(d+2,2)}, {vr(C_LAM,2)}, {vr(cur_re,2)}, {vr(UIM+2*s,2)} {lam_bc(1)}")
        A(f"v_pk_fma_f32 {vr(d,2)}, {vr(C_LAM,2)}, {vr(cur_re,2)}, {vr(d,2)} {lam_bc(0)}")
        A(f"v_pk_fma_f32 {vr(d+2,2)}, {vr(C_LAM,2)}, {vr(cur_im,2)}, {vr(d+2,2)} {lam_bc(0)}")
        cur_re, cur_im = d, d + 2
    A0, BQ = T0 + 8, T0 + 10
    A(f"v_fma_f32 v{BQ}, v{C_M1}, v{cur_re}, v{cur_re+1}")
    A(f"v_fma_f32 v{BQ+1}, v{C_M1}, v{cur_im}, v{cur_im+1}")
    A(f"v_fma_f32 v{BQ}, -v{C_M1+1}, v{cur_im}, v{BQ}")
    A(f"v_fma_f32 v{BQ+1}, v{C_M1+1}, v{cur_re}, v{BQ+1}")
    A(f"ds_write_b64 v3, {vr(BQ,2)}")
    A(f"v_mov_b32 v{A0}, v{cur_re}")
    A(f"v_mov_b32 v{A0+1}, v{cur_im}")
    P2, P3, SS, tt = T0 + 20, T0 + 22, T0 + 24, T0 + 28
    def c2_bc(hi, n=3):
        return f"op_sel:[{hi},0,0] op_sel_hi:[{hi},1,1]" if n == 3 else f"op_sel:[{hi},0] op_sel_hi:[{hi},1]"
    cm = []
    for s in range(16):
        re, im, t = URE + 2 * s, UIM + 2 * s, T0 + 2 + 2 * (s & 1)
        cm += [f"v_pk_mul_f32 {vr(t,2)}, {vr(C_C2,2)}, {vr(re,2)} {c2_bc(1,2)} neg_lo:[1,0] neg_hi:[1,0]",
               f"v_pk_mul_f32 {vr(re,2)}, {vr(C_C2,2)}, {vr(re,2)} {c2_bc(0,2)}",
               f"v_pk_fma_f32 {vr(re,2)}, {vr(C_C2,2)}, {vr(im,2)}, {vr(re,2)} {c2_bc(1)} {NEG}",
               f"v_pk_fma_f32 {vr(im,2)}, {vr(C_C2,2)}, {vr(im,2)}, {vr(t,2)} {c2_bc(0)} {NEG}"]
    emit(cm[:8])
    if HAND: A.wait_both(tok["clr"], A.lg)
    else: A("s_waitcnt lgkmcnt(0)")
    A("s_barrier")
    B0 = T0 + 12
    for q in range(4):
        A(f"ds_read_b64 {vr(B0+2*q,2)}, v4 offset:{q*512}")
    emit(cm[8:24])
    A("s_waitcnt lgkmcnt(0)")
    cfma(P2, C_M2, B0, B0 + 2, tt)
    cfma(P3, C_M2, P2, B0 + 4, tt)
    cfma(tt, C_M2, P3, B0 + 6, tt)
    A(f"v_and_or_b32 v{SS}, v{tt}, s{P_MSK}, v{V_TAG}")
    A(f"v_and_or_b32 v{SS+1}, v{tt+1}, s{P_MSK}, v{V_TAG}")
    A(f"buffer_store_dwordx2 {vr(SS,2)}, v{V_PUB}, s[{SWS}:{SWS+3}], s{P_SAO} offen sc1")
    rdy_store()
    stamp(6)
    emit(cm[24:])
    LOC = T0 + 0
    for e in range(2):
        A(f"v_cndmask_b32_e64 v{T0+2+e}, 0, v{B0+e}, s[{S_MG}:{S_MG+1}]")
        A(f"v_cndmask_b32_e64 v{T0+4+e}, v{P2+e}, v{P3+e}, s[{S_MG}:{S_MG+1}]")
        A(f"v_cndmask_b32_e64 v{LOC+e}, v{T0+2+e}, v{T0+4+e}, s[{S_MRH}:{S_MRH+1}]")
    E0, F0, E1, F1 = T0 + 12, T0 + 14, T0 + 16, T0 + 18
    cfma(P2, C_M1, LOC, A0, tt)
    cmul(F1, C_C2, P2, tt)
    cmul(F0, C_C2, LOC, tt)
    cmul(E0, C_C2, C_MQ, tt)
    cmul(E1, E0, C_M1, tt)
    V_AH = V_AX
    A(f"v_bfe_u32 v9, v{V_LANE}, 4, 1")
    A(f"v_bfe_u32 v13, v{V_LANE}, 1, 1")
    A("v_lshl_add_u32 v9, v9, 1, v13")
    A(f"v_bfe_u32 v13, v{V_LANE}, 2, 2")
    A(f"v_lshl_add_u32 v13, v{V_G}, 3, v13")
    A("v_lshlrev_b32 v14, 2, v9")
    A("v_xor_b32 v13, v13, v14")
    A("v_lshlrev_b32 v13, 4, v13")
    A("v_lshl_add_u32 v13, v9, 9, v13")
    A(f"v_and_b32 v14, 1, v{V_LANE}")
    A("v_lshl_add_u32 v13, v14, 3, v13")
    A(f"s_lshl_b32 s{ST+2}, s{S_RH}, 13")
    A(f"v_add_u32 v{V_AH}, s{ST+2}, v13")
    A(f"v_xor_b32 v{V_AH+1}, 64, v{V_AH}")
    for st in (1, 2):
        A(f"v_add_u32 v{V_AH+2*st}, {st*0x10000:#x}, v{V_AH}")
        A(f"v_add_u32 v{V_AH+2*st+1}, {st*0x10000:#x}, v{V_AH+1}")
    V_SO = T0 + 24
    for o in range(1, 4):
        A(f"v_xor_b32 v{V_SO+o}, {o*64}, v{V_HSO}")
    CPRE = 8
    A(f"s_add_u32 s{SW}, s{SWS}, s{P_SAB}")
    A(f"s_addc_u32 s{SW+1}, s{SWS+1}, 0")
    A(f"s_mov_b32 s{SW+2}, 8192")
    GD = 48
    def loads():
        for i in range(8):
            A(f"buffer_load_dwordx2 {vr(GD+2*i,2)}, v{V_GO}, s[{SW}:{SW+3}], 0 offen offset:{i*512} sc1")
        rdy_load(14)
    def check():
        A(f"v_xor_b32 v13, v{GD}, v{V_GE}")
        for i in range(1, 8):
            A(f"v_bitop3_b32 v13, v{GD+2*i}, v{V_GE+i}, v13 bitop3:0xbe")
        rdy_check(9, 14)
        A("v_and_b32 v13, 0xff, v13")
        A("v_or_b32 v13, v13, v9")
        A(f"v_cmp_ne_u32 s[{S_FAIL}:{S_FAIL+1}], 0, v13")
    CM = min(8, 2 + CE + OPT.get("cmid", 3))
    assert XLDS
    for st in CORD[2+CE:CM]: run(c_pieces(st))
    for s_ in range(2):
        for m in range(2):
            d = vr(ACC2 + 16 * m, 16)
            A(mf(d, vr(XS + 8 * m + 4 * s_, 4), vr(DG + 4 * s_, 4), d if s_ else "0"))
    loads()
    tok_p = A.vm
    CPOST = OPT.get("cpost", 0)
    for st in CORD[CM:8-CPOST]: run(c_pieces(st))
    tok_c = A.vm
    stamp(7)
    ok = lab("ok1")
    A.wait_vm(tok_p)
    check()
    A(f"s_cmp_eq_u64 s[{S_FAIL}:{S_FAIL+1}], 0")
    A(f"s_cbranch_scc1 {ok}")
    vm_keep = A.vm
    sk_ = A.skip_begin()
    poll(loads, check)
    A.skip_end(sk_)
    A.vm = vm_keep
    A.label(ok)
    stamp(8)
    h1, h2 = T0 + 20, T0 + 22
    cur = GD + 14
    for i in range(6, -1, -1):
        d = (h1, h2)[i & 1]
        cfma(d, C_L, cur, GD + 2 * i, tt)
        cur = d
    CQ = GD
    cmul(CQ, C_LQ, cur, tt)
    for e in range(2): A(f"v_mov_b32 v{CQ+2+e}, v{CQ+e}")
    for e in range(2): A(f"v_permlane32_swap_b32 v{CQ+e}, v{CQ+2+e}")
    A(f"v_pk_add_f32 {vr(CQ,2)}, {vr(CQ,2)}, {vr(CQ+2,2)}")
    def c_reads(st):
        s2_, off = CLDS[st] >> 16, CLDS[st] & 0xffff
        r = [None] * 8
        for ks in range(4):
            for ri in range(2):
                kap = (ks >> 1) * 4 + ri * 2 + (ks & 1)
                r[kap] = f"ds_read_b128 {ar((st*8+kap)*4,4)}, v{V_AW+4*s2_+ks} offset:{off+ri*8192}"
        return r
    HR, HI = T0 + 20, T0 + 22
    A(f"v_fma_f32 v{HR}, v{E0}, v{CQ}, v{F0}")
    A(f"v_fma_f32 v{HR+1}, v{E1}, v{CQ}, v{F1}")
    A(f"v_fma_f32 v{HI}, -v{E0}, v{CQ+1}, -v{F0+1}")
    A(f"v_fma_f32 v{HI+1}, -v{E1}, v{CQ+1}, -v{F1+1}")
    A(f"v_fma_f32 v{HR}, -v{E0+1}, v{CQ+1}, v{HR}")
    A(f"v_fma_f32 v{HR+1}, -v{E1+1}, v{CQ+1}, v{HR+1}")
    A(f"v_fma_f32 v{HI}, -v{E0+1}, v{CQ}, v{HI}")
    A(f"v_fma_f32 v{HI+1}, -v{E1+1}, v{CQ}, v{HI+1}")
    pr, pi_ = HR, HI
    def hstore(ph, o):
        A(f"buffer_store_dwordx4 {vr(HP+16*ph+4*o,4)}, v{V_SO+o if o else V_HSO}, s[{SWS}:{SWS+3}], s{P_ACTW+ph} offen offset:{o*512} sc1")
    for hf in range(2):
        for s in range(8 * hf, 8 * hf + 8):
            re, im = URE + 2 * s, UIM + 2 * s
            emit([f"v_pk_fma_f32 {vr(re,2)}, {vr(C_LAM,2)}, {vr(pi_,2)}, {vr(re,2)} {lam_bc(1)}",
                  f"v_pk_fma_f32 {vr(im,2)}, {vr(C_LAM,2)}, {vr(pr,2)}, {vr(im,2)} {lam_bc(1)} {NEG}",
                  f"v_pk_fma_f32 {vr(re,2)}, {vr(C_LAM,2)}, {vr(pr,2)}, {vr(re,2)} {lam_bc(0)}",
                  f"v_pk_fma_f32 {vr(im,2)}, {vr(C_LAM,2)}, {vr(pi_,2)}, {vr(im,2)} {lam_bc(0)}"])
            pr, pi_ = re, im
        for z in range(2):
            o = 2 * z + hf
            for ri in range(2):
                U = (URE, UIM)[ri]
                for u in range(4):
                    s0 = 8 * hf + 2 * u
                    A(f"v_cvt_pk_bf16_f32 v{HP+(ri*4+o)*4+u}, v{U+2*s0+z}, v{U+2*s0+2+z}")
            for u in range(4):
                A(f"v_permlane32_swap_b32 v{HP+o*4+u}, v{HP+16+o*4+u}")
            hstore(0, o)
    tok_a = A.vm
    for o in range(4): hstore(1, o)
    tok_h = A.vm
    stamp(9)
    for st in CORD[8-CPOST:] if CPOST else []: run(c_pieces(st))
    tok_c2 = A.vm
    HS = [3, 4, 0, 1, 3, 4, 0, 1]
    def h_pieces(G):
        r = []
        for sub in range(2):
            pos, ph = SEQ[2 * G + sub]
            r += dma_pieces(V_LIN, SWS, ST + 8, HS[G] * SLOT + sub * 16384,
                            pre=lambda pos=pos, ph=ph: (A(f"s_lshl_b32 s{ST+8}, s{KAP[pos]}, 15"), A(f"s_add_u32 s{ST+8}, s{ST+8}, s{P_ACTR+ph}")),
                            post=(lambda sub=sub: tok.__setitem__(("h", G) if sub else ("h0", G), A.vm)), flags=PLF, same_v=True)
        return r
    assert CPRE == 8
    call = sum([c_reads(st) for st in [0, 1, 2, 3, 4, 5, 6, 7]], [])
    HF = 48
    def rd2(n):
        G, q = n >> 2, n & 3
        slot, buf = HS[G], n & 1
        r = []
        for h in range(4):
            kap = 4 * (q & 1) + h
            off = (slot & 1) * SLOT + (q >> 1) * 16384 + (kap >> 2) * 4096 + ((kap >> 1) & 1) * 2048 + (kap & 1) * 256
            for j in range(2):
                if True:
                    r.append(f"ds_read_b64_tr_b16 {vr(HF+buf*16+h*4+2*j,2)}, v{V_AH+2*(slot>>1)+j} offset:{off}")
        return r
    def mm2(n):
        buf = n & 1
        pos, ph = SEQ[n >> 1]
        d = vr(ACC2 + 16 * ph, 16)
        return [mf(d, vr(HF + buf * 16 + h * 4, 4), ar((8 * pos + 4 * (n & 1) + h) * 4, 4), d) for h in range(4)]
    xcc_decide(14)
    A.wait_vm(tok_c)
    A("s_barrier")
    slin(ST + 2, 3 * SLOT, (S_WAVE, 4096))
    A(f"v_add_u32 v{V_GO}, s{ST+2}, v{V_HSO}")
    for o in range(1, 4): A(f"v_xor_b32 v{V_GO+o}, {o*64}, v{V_GO}")
    for p in range(8):
        A(f"ds_write_b128 v{V_GO+(p&3)}, {vr(HP+4*p,4)} offset:{(p>>2)*16384+(p&3)*512}")
    emit(call[:8])
    A("s_waitcnt lgkmcnt(0)")
    A("s_barrier")
    cf = call[8:32]
    gemm_loop(4, rd2, mm2, lambda n: None, (3, 3, 2, 0), (2, 3), cf)
    A.wait_vm(tok_a)
    flag_store(0)
    emit(cf)
    if CPOST:
        A.wait_vm(tok_h)
        flag_store(1)
        A.wait_both(tok_c2, A.lg)
        A("s_barrier")
        stamp(10)
    else:
        A("s_waitcnt lgkmcnt(0)")
        A("s_barrier")
        stamp(10)
        A.wait_vm(tok_h)
        flag_store(1)
    flag_poll(0)
    stamp(11)
    run(h_pieces(1))
    weave(call[32:], h_pieces(2), 4)
    if OPT.get("btouch", 0):
        A(f"v_lshlrev_b32 v9, 7, v{V_N}")
        A(f"buffer_load_dword v254, v9, s[{SWS}:{SWS+3}], s{P_ACTW2} offen sc1")
    stamp(12)
    fill = []
    h4 = h_pieces(4)
    def on_step2(n):
        G, q = n >> 2, n & 3
        if q == 0 and OPT.get("g2st") and G > 1: stamp(15 + G)
        if n == 7:
            A.wait_vm(tok["fb"])
            flag_check(1)
        fb = [lambda: (flag_load(1), tok.__setitem__("fb", A.vm))]
        if q == 0 and G2S == 0:
            if G == 1: fill.extend(fb + h_pieces(3) + h4[:4])
            elif G == 2: fill.extend(h4[4:] + h_pieces(5))
            elif G + 3 < 8: fill.extend(h_pieces(G + 3))
            elif G == 5: fill.extend(out_stores(ACC2, 0))
        elif q == 0 and G2S in (1, 2):
            if G == 1: fill.extend(fb)
            if G + 2 < 8: fill.extend(h_pieces(G + 2))
            elif G == 6: fill.extend(out_stores(ACC2, 0))
        elif q == 0:
            if G == 1: fill.extend(fb + h_pieces(3))
            elif G == 2: fill.extend(h_pieces(4) + h_pieces(5)[:4])
            elif G == 3: fill.extend(h_pieces(5)[4:] + h_pieces(6))
            elif G == 4: fill.extend(h_pieces(7))
            elif G == 5: fill.extend(out_stores(ACC2, 0))
    G2S = OPT.get("g2s", 2)
    def gaps2(n):
        if G2S == 0: return (0, 1, 2, 3) if n < 12 else (2, 3)
        if G2S == 1: return (0, 1, 2, 3) if n < 24 else (2, 3)
        if G2S == 2: return (1, 2, 3) if n < 24 else (2, 3)
        return (1, 2, 3) if n < 16 else (2, 3)
    FINE = OPT.get("fineb", 1)
    A.wait_both(tok[("h0", 1) if FINE else ("h", 1)], A.lg)
    A("s_barrier")
    stamp(13)
    gemm_loop(32, rd2, mm2, lambda n: tok[("h", n >> 2)] if ((n & 3) == 0 or (FINE and n == 6)) else None, (3, 3, 2, 0),
              gaps2, fill, on_step2, start=4)
    assert not fill
    stamp(14)
    run(out_stores(ACC2, 1))
    tag_update("A")
    stamp(15)
    finish()

def role_B():
    V_OO = 24
    V_AX, V_AT = 28, 36
    V_SW, V_SR, V_P2, V_G2B, V_PB0, V_PB1, V_G1, V_GZ, V_G2, V_P2Z = 39, 40, 41, 42, 43, 44, 45, 46, 47, 253
    S_WPH, V_WPO = P0 + 12, 252
    IDF = 240
    V_WF = 48
    KACC, VACC, PK, KV, WPH = 64, 96, 128, 192, 224
    T0 = 232
    P_P1O, P_P1G, P_P2O, P_P2G, P_MSK = P0 + 1, P0 + 2, P0 + 8, P0 + 9, P0 + 10
    S_PART = 57
    SL = 768 if OPT.get('sl768', 0) else 640
    ZS = 7 if SL == 768 else 6
    NS = 16 if OPT.get('p16', 1) else 32
    WPS = OPT.get('wps', 1)
    QE = OPT.get('qe', 3)
    code_prefetch()
    A("v_lshrrev_b32 v9, 1, v3")
    A("v_xor_b32 v9, v9, v4")
    A("v_lshlrev_b32 v9, 4, v9")
    A("v_lshl_add_u32 v10, v3, 10, v9")
    slin(ST, 0, (S_CHUNK, 1 << 17), (S_WAVE, 1 << 15))
    A(f"v_add_u32 v{V_OX}, s{ST}, v10")
    A(f"v_xor_b32 v11, 64, v{V_OX}")
    A(f"v_add_u32 v{V_OX+1}, 7168, v11")
    A(f"v_add_u32 v{V_OX+2}, {2*7168}, v{V_OX}")
    A(f"v_add_u32 v{V_OX+3}, {3*7168}, v11")
    A("v_bfe_u32 v9, v3, 1, 1")
    A("v_lshlrev_b32 v9, 2, v9")
    A("v_xor_b32 v9, v9, v4")
    A("v_lshlrev_b32 v9, 4, v9")
    A(f"s_lshl_b32 s{ST}, s{S_CG}, 7")
    A(f"v_add_u32 v9, s{ST}, v9")
    A(f"s_lshl_b32 s{ST+1}, s{S_CH}, 5")
    A(f"v_add_u32 v10, s{ST+1}, v3")
    A("v_mul_u32_u24 v11, 3072, v10")
    A(f"v_add_u32 v{V_OW}, v11, v9")
    for p in range(1, 4): A(f"v_add_u32 v{V_OW+p}, {p*(8*3072-1024)}, v{V_OW}")
    A(f"v_lshl_add_u32 v{V_OO}, v10, 10, v9")
    slin(S_PART, 1024, (S_RH, 1024))
    if TCHM: touch_setup("B")
    A("s_waitcnt lgkmcnt(0)")
    srd(SW, K_WQKV, 0x180000)
    stamp(1)
    ws_shift()
    A(f"s_load_dword s{S_TAG}, s[{K_WS}:{K_WS+1}], {WS_TAGB}")
    srd(SX, K_BX, 0x200000)
    tok = {}
    def g1_pieces(i):
        slot = i & 3
        return (dma_pieces(V_OW, SW, ST + 8, slot * SLOT, pre=lambda: rot_soff(ST + 8, i, mul=196608, plus=S_PART, rot=S_ROT1)) +
                dma_pieces(V_OX, SX, ST + 10, slot * SLOT + 16384, pre=lambda: rot_soff(ST + 10, i, shift=7, rot=S_ROT1),
                           post=lambda: tok.__setitem__(i, A.vm), flags=XF))
    QSLOT = [4, 0]; OSLOT = [1, 2]
    def q_pieces(st):
        if OPT.get("qdyn", 0):
            def pre():
                A(f"s_add_u32 s{ST+9}, s{S_CHUNK}, {st}")
                A(f"s_lshr_b32 s{ST+7}, s{S_ROT1}, 1")
                A(f"s_sub_u32 s{ST+7}, s{ST+9}, s{ST+7}")
                A(f"s_and_b32 s{ST+7}, s{ST+7}, 3")
                A(f"s_xor_b32 s{ST+7}, s{ST+7}, 2")
                A(f"s_bitcmp1_b32 s{ST+7}, 1")
                A(f"s_cselect_b32 s{ST+5}, {0x20000 - 0x8000:#x}, 0")
                A(f"s_lshl_b32 s{ST+7}, s{ST+7}, 14")
                A(f"s_add_u32 s{ST+7}, s{ST+7}, s{ST+5}")
                A(f"s_add_u32 m0, s{S_M0W}, s{ST+7}")
                A(f"s_and_b32 s{ST+9}, s{ST+9}, 3")
                A(f"s_lshl_b32 s{ST+9}, s{ST+9}, 1")
                A(f"s_add_u32 s{ST+9}, s{ST+9}, s{S_RH}")
                A(f"s_mul_i32 s{ST+9}, s{ST+9}, 196608")
            return dma_pieces(V_OW, SW, ST + 9, 0, pre=pre, post=lambda: tok.__setitem__(("q", st), A.vm))
        return dma_pieces(V_OW, SW, ST + 9, QSLOT[st >> 1] * SLOT + (st & 1) * 16384,
                          pre=lambda: rot_soff(ST + 9, 2 * st, mul=196608, extra_sreg=S_RH, rot=S_ROT1), post=lambda: tok.__setitem__(("q", st), A.vm))
    OPAIR = [(1, 2), (0, 3), (4, 5), (6, 7)]
    OLDS = {}
    for st_, pr_ in enumerate(OPAIR):
        for e_ in range(2): OLDS[pr_[e_]] = OSLOT[st_ >> 1] * SLOT + (st_ & 1) * 16384 + e_ * 8192
    def o_pieces(st):
        def pre():
            A(f"s_cmp_eq_u32 s{S_RH}, 0")
            A(f"s_cselect_b32 s{ST+9}, s{KAP[OPAIR[st][0]]}, s{KAP[OPAIR[st][1]]}")
            A(f"s_lshl_b32 s{ST+9}, s{ST+9}, 16")
        return dma_pieces(V_OO, SW2, ST + 9, OSLOT[st >> 1] * SLOT + (st & 1) * 16384, pre=pre)
    run(g1_pieces(0))
    WPL = 4 * SLOT
    srd(SW2, K_WPHI, 0x4000)
    A(f"v_lshlrev_b32 v{V_LIN}, 4, v{V_LANE}")
    slin(ST, 0, (S_CG, 2048), (S_CH, 1024))
    A(f"s_lshl_b32 s{ST+1}, s{S_WAVE}, 10")
    A(f"s_add_u32 m0, s{ST+1}, {WPL:#x}")
    A(f"buffer_load_dwordx4 v{V_LIN}, s[{SW2}:{SW2+3}], s{ST} offen lds")
    late = g1_pieces(1)
    if TCHM:
        touch_srd("B"); touch(1, V_T3)()
        if TCHM == 1: late = late + [touch(4, V_T2)] + g1_pieces(2) + [touch(6, V_T2)]
    elif EARLY:
        run(late[:NPRE]); late = late[NPRE:] + g1_pieces(2)
    else:
        run(late); late = []
    if OPT.get("wtouch", 0):
        slin(ST, 0, (S_CHUNK, 32), (S_WAVE, 8))
        A(f"v_add_u32 v9, s{ST}, v4")
        A("v_mul_u32_u24 v10, 3072, v9")
        A("v_lshlrev_b32 v9, 10, v9")
        A(f"s_lshl_b32 s{ST}, s{S_CG}, 7")
        A(f"buffer_load_dword v254, v10, s[{SW}:{SW+3}], s{ST} offen")
        A(f"buffer_load_dword v254, v9, s[{SW2}:{SW2+3}], s{ST} offen")
    stamp(2)
    cut("B")
    A(f"s_lshl_b32 s{ST}, s{S_RH}, 13")
    lds_b128_addrs(V_AX, ST, 16384, 2)
    A(f"v_bfe_u32 v9, v{V_LANE}, 4, 1")
    A(f"v_bfe_u32 v13, v{V_LANE}, 1, 1")
    A("v_lshl_add_u32 v10, v9, 1, v13")
    A(f"v_bfe_u32 v13, v{V_LANE}, 3, 1")
    A(f"v_xor_b32 v13, s{S_CH}, v13")
    A("v_lshl_add_u32 v9, v13, 2, v10")
    A("v_lshlrev_b32 v9, 4, v9")
    A(f"v_and_b32 v10, 1, v{V_LANE}")
    A("v_lshl_add_u32 v9, v10, 3, v9")
    A(f"v_bfe_u32 v14, v{V_LANE}, 2, 2")
    A(f"v_lshl_add_u32 v13, v{V_G}, 3, v14")
    A(f"v_lshl_add_u32 v{V_AT}, v13, 7, v9")
    A(f"v_add_u32 v{V_AT+1}, 0x10000, v{V_AT}")
    A(f"v_add_u32 v{V_AT+2}, 0x20000, v{V_AT}")
    if OPT.get("lateset", 1): A.cap = []
    srd(SW2, K_WO, 0x80000)
    common_setup("B")
    for p in range(1, 4): A(f"v_add_u32 v{V_OO+p}, {p*7168}, v{V_OO}")
    A(f"v_bfe_u32 v9, v{V_LANE}, 4, 1")
    A(f"v_bfe_u32 v13, v{V_LANE}, 1, 1")
    A("v_lshl_add_u32 v9, v9, 1, v13")
    A("v_lshlrev_b32 v9, 3, v9")
    A(f"v_bfe_u32 v13, v{V_LANE}, 2, 2")
    A(f"v_lshl_add_u32 v13, v{V_G}, 2, v13")
    A("v_lshl_add_u32 v9, v13, 5, v9")
    slin(ST, WPL, (S_WAVE, 1024))
    A(f"v_add_u32 v{V_WPO}, s{ST}, v9")
    if NS == 32: slin(ST, 0, (S_CG, 512), (S_CH, 256), (S_CHUNK, 2), (S_RH, 1))
    else:
        slin(ST, 0, (S_CG, 256), (S_CH, 128), (S_RH, 32), (S_CHUNK, 1))
    slin(P_P1O, WS_P1, (ST, SL))
    slin(ST, 0, (S_CG, 16), (S_CHUNK, 1))
    slin(P_P2O, WS_P2, (ST, SL))
    slin(P_P1G, WS_P1, (ST, NS * SL))
    for k in range(1, 4): A(f"s_add_u32 s{P_P1G+k}, s{P_P1G}, {8*k*SL}")
    slin(ST, 0, (S_CG, 16), (S_CH, 8))
    slin(P_P2G, WS_P2, (ST, SL))
    A(f"s_mov_b32 s{P_MSK}, 0xffffff00")
    slin(P_ACTW, WS_O, (S_CHUNK, 1 << 17), (S_CG, 1 << 14), (S_RH, 1 << 12), (S_CH, 1 << 11))
    A(f"s_add_u32 s{P_ACTW2}, s{P_ACTW}, 8192")
    slin(P_ACTR, WS_O, (S_CHUNK, 1 << 17), (S_MF, 8192), (S_WAVE, 2048))
    A(f"s_lshl_b32 s{S_M0W2}, s{S_WAVE}, 11")
    A(f"s_xor_b32 s{P_ACTR2}, s{P_ACTR}, 8192")
    clears = [f"buffer_store_dwordx4 {vr(T0+16,4)}, v{V_LIN}, s[{SWS}:{SWS+3}], s{P_ACTW+(k>>1)} offen offset:{(k&1)*1024} sc1" for k in range(4)]
    A(f"s_and_b32 s{ST}, s{S_TAG}, 0xff")
    A(f"v_mov_b32 v{V_TAG}, s{ST}")
    A(f"v_mov_b32 v11, s{S_TAG}")
    A(f"v_and_b32 v9, 1, v{V_N}")
    A("v_lshlrev_b32 v9, 4, v9")
    A("v_mov_b32 v13, 0x3f80")
    A("v_lshlrev_b32 v13, v9, v13")
    A(f"v_lshrrev_b32 v9, 1, v{V_N}")
    A(f"v_lshlrev_b32 v14, 3, v{V_G}")
    A("v_sub_u32 v9, v9, v14")
    for q in range(8):
        A(f"v_cmp_eq_u32 vcc, {q}, v9")
        A(f"v_cndmask_b32_e64 v{IDF+q}, 0, v13, vcc")
    A(f"v_and_b32 v9, 15, v{V_LANE}")
    A(f"v_cmp_gt_u32 vcc, {1 << (ZS-4)}, v9")
    A("v_lshlrev_b32 v9, 4, v9")
    A(f"v_lshl_add_u32 v13, v{V_G}, {ZS}, v9")
    A("v_add_u32 v13, 512, v13")
    A(f"v_lshl_add_u32 v9, v{V_G}, 8, v9")
    A(f"v_mov_b32 v14, {OOB:#x}")
    A("v_cndmask_b32 v13, v14, v13, vcc")
    A(f"v_cndmask_b32_e64 v{V_PB0}, v9, v13, s[{S_M16}:{S_M16+1}]")
    A(f"v_cndmask_b32_e64 v{V_PB1}, v13, v9, s[{S_M16}:{S_M16+1}]")
    A(f"v_cndmask_b32_e64 v13, v13, v14, s[{S_M16}:{S_M16+1}]")
    A(f"s_cmp_eq_u32 s{S_WAVE}, 0")
    A(f"s_cselect_b64 vcc, -1, 0")
    A(f"v_cndmask_b32 v{V_P2Z}, v14, v13, vcc")
    A(f"v_and_b32 v9, 7, v{V_LANE}")
    A(f"s_lshl_b32 s{ST}, s{S_WAVE}, 7")
    A(f"v_lshl_add_u32 v9, v9, 4, s{ST}")
    A(f"v_lshrrev_b32 v13, 3, v{V_LANE}")
    A(f"v_mul_u32_u24 v13, {SL}, v13")
    A(f"v_add_u32 v{V_G1}, v9, v13")
    A(f"v_cmp_gt_u32 vcc, 8, v{V_LANE}")
    A(f"v_and_b32 v13, {NS-1}, v{V_N}")
    A(f"v_mul_u32_u24 v{V_GZ}, {SL}, v13")
    if NS == 16:
        slin(ST, 3 * SLOT, (S_WAVE, 4096))
        A(f"v_add_u32 v{V_SW}, s{ST}, v{V_LIN}")
        A(f"v_xor_b32 v{V_SR}, 0x2000, v{V_SW}")
    A(f"v_lshl_add_u32 v{V_GZ}, v{V_G}, {ZS}, v{V_GZ}")
    A(f"v_cndmask_b32 v{V_P2}, v14, v9, vcc")
    A(f"v_bfe_u32 v9, v{V_N}, 2, 1")
    A("v_lshlrev_b32 v9, 3, v9")
    A(f"v_bfe_u32 v13, v{V_N}, 3, 1")
    A("v_lshl_add_u32 v9, v13, 2, v9")
    A(f"v_and_b32 v13, 3, v{V_N}")
    A("v_add_u32 v9, v9, v13")
    A(f"v_cndmask_b32_e64 v9, v9, 32, s[{S_M16}:{S_M16+1}]")
    A("v_lshlrev_b32 v9, 4, v9")
    A(f"v_mul_u32_u24 v13, {2*SL}, v{V_G}")
    A(f"v_add_u32 v{V_G2}, v9, v13")
    A("v_mov_b32 v9, 0x100")
    A(f"v_mov_b32 v13, {1 << ZS}")
    A(f"v_cndmask_b32_e64 v9, v9, v13, s[{S_M16}:{S_M16+1}]")
    A(f"v_add_u32 v{V_G2B}, v{V_G2}, v9")
    if OPT.get("prew", 1):
        for r in range(4): A(f"v_subrev_u32 v{T0+4+r}, 1, v{V_TAG}")
        A(f"buffer_store_dwordx4 {vr(T0+4,4)}, v{V_P2Z}, s[{SWS}:{SWS+3}], s{P_P2O} offen sc1")
        A(f"buffer_store_dwordx4 {vr(T0+4,4)}, v{V_P2}, s[{SWS}:{SWS+3}], s{P_P2O} offen sc1")
    A("v_mov_b32 v3, 0x3f803f80")
    A(f"v_bfe_u32 v4, v{V_LANE}, 2, 1")
    A("v_mul_u32_u24 v4, 0x8000, v4")
    A("v_lshl_or_b32 v4, v4, 16, v4")
    SET, A.cap = (A.cap or []), None
    LATEV = [x for x in SET if x.startswith("buffer_")]
    SET = [x for x in SET if not x.startswith("buffer_")]
    for _ in range(OPT.get("pset", 0)):
        if not SET or SET[0] == "@consts": break
        if SET[0].startswith(f"s_add_u32 s{S_TAG},"): A("s_waitcnt lgkmcnt(0)")
        A(SET.pop(0))
    while SET and (SET[0].startswith("s_addc") or SET[0].startswith("s_cselect")): A(SET.pop(0))
    if "@consts" in SET:
        k_ = SET.index("@consts")
        SET = SET[:k_] + ["@hold"] + SET[k_+1:]
    stamp(3)
    run(late)
    def trfrag(dst, ldsoff, kind="v"):
        s_, off = ldsoff >> 16, ldsoff & 0xffff
        return [f"ds_read_b64_tr_b16 {vr(dst+2*j,2,kind)}, v{V_AT+s_} offset:{off+j*512}" for j in range(2)]
    def rd(n):
        i, ks = n >> 2, n & 3
        slot, buf = i & 3, n & 1
        s2_, off = slot >> 1, (slot & 1) * SLOT
        x = [f"ds_read_b128 {ar(n*8+m*4,4)}, v{V_AX+4*s2_+ks} offset:{off+m*4096}" for m in range(2)]
        w = [trfrag(V_WF + buf * 8 + part * 4, slot * SLOT + part * 8192 + ks * 2048) for part in range(2)]
        return [x[0]] + w[0] + [x[1]] + w[1]
    def mm(n):
        buf = n & 1
        r = []
        for part, m in ((0, 0), (0, 1), (1, 0), (1, 1)):
            x, w = ar(n * 8 + m * 4, 4), vr(V_WF + buf * 8 + part * 4, 4)
            d = vr((KACC, VACC)[part] + 16 * m, 16)
            r.append(mf(d, w, x, d if n else "0") if part == 0 else mf(d, x, w, d if n else "0"))
        return r
    fill = []
    def on_step(n):
        i, ks = n >> 2, n & 3
        if ks == 0 and OPT.get("g1st") and i: stamp(16 + i)
        if ks == 0:
            if TCHM == 2 and i < 2: fill.append(touch(4 + 2 * i, V_T2))
            for st in SCHED[0].get(i, []): fill.extend(g1_pieces(st))
            if i == 5: fill.extend((LATEV + q_pieces(0)) if OPT.get('lvf', 0) else (q_pieces(0) + LATEV))
            if i == 6:
                fill.extend(q_pieces(1) if QE == 3 else o_pieces(0))
                if OPT.get("ptouch", 0):
                    fill.extend([f"buffer_load_dword v254, v{V_G1}, s[{SWS}:{SWS+3}], s{P_P1G+k} offen sc1" for k in range(4)])
                    fill.append(f"buffer_load_dword v254, v{V_GZ}, s[{SWS}:{SWS+3}], s{P_P1G} offen sc1")
                    fill.extend([f"buffer_load_dword v254, v{V_G2}, s[{SWS}:{SWS+3}], s{P_P2G} offen offset:{(hh*4+jp)*640} sc1" for hh in range(2) for jp in range(2)])
                    fill.append(lambda: rdy_load(254, 254))
            elif i == 7:
                fill.extend(o_pieces(0) if QE == 3 else o_pieces(1))
                fill.append(lambda: emit([f"v_xor_b32 v{WPH+r}, v4, v{WPH+r}" for r in range(4)]))
                fill.append(lambda: emit([f"v_xor_b32 v{WPH+r}, v4, v{WPH+r}" for r in range(4, 8)]))
        if n == OPT.get('wpn', 7):
            SET.extend([f"ds_read_b64_tr_b16 {vr(WPH+4*hh+2*j,2)}, v{V_WPO} offset:{hh*512+j*256}" for hh in range(2) for j in range(2)])
    A.wait_vm(tok[0])
    A("s_barrier")
    stamp(4)
    gemm_loop(32, rd, mm, lambda n: tok[n >> 2] if (n & 3) == 0 else None, (3, 3, 0, 0), lambda n: g1_gaps(n, (7,) if QE == 1 else ()), fill, on_step, end_barrier=True, extra=SET, nextra=lambda n, g: NX)
    assert not SET
    assert not fill
    stamp(5)
    if TCHM: srd(SOUT, 100, 0x800000)
    def feat(acc):
        for m in range(2):
            for u in range(8):
                A(f"v_cvt_pk_bf16_f32 v{acc+16*m+u}, v{acc+16*m+2*u}, v{acc+16*m+2*u+1}")
            for hh in range(2):
                A(mf(vr(PK + (m * 2 + hh) * 16, 16), vr(WPH + 4 * hh, 4), vr(acc + 16 * m + 4 * hh, 4), "0"))
    def softmax_l(x, dst):
        mx, sm = T0, T0 + 2
        l = [f"v_max3_f32 v{mx}, v{x}, v{x+1}, v{x+2}"]
        for u in range(3, 15, 2):
            l.append(f"v_max3_f32 v{mx}, v{mx}, v{x+u}, v{x+u+1}")
        l.append(f"v_max_f32 v{mx}, v{mx}, v{x+15}")
        l.append(f"v_mul_f32 v{mx}, s{S_L2E}, v{mx}")
        for u in range(8):
            l.append(f"v_pk_fma_f32 {vr(x+2*u,2)}, {vr(x+2*u,2)}, s[{S_L2E}:{S_L2E+1}], {vr(mx,2)} op_sel_hi:[1,1,0] neg_lo:[0,0,1] neg_hi:[0,0,1]")
        for u in range(16):
            l.append(f"v_exp_f32 v{x+u}, v{x+u}")
        l.append(f"v_pk_add_f32 {vr(sm,2)}, {vr(x,2)}, {vr(x+2,2)}")
        for u in range(2, 8):
            l.append(f"v_pk_add_f32 {vr(sm,2)}, {vr(sm,2)}, {vr(x+2*u,2)}")
        l.append(f"v_add_f32 v{sm}, v{sm}, v{sm+1}")
        l.append(f"v_rcp_f32 v{sm}, v{sm}")
        for u in range(8):
            l.append(f"v_pk_mul_f32 {vr(x+2*u,2)}, {vr(x+2*u,2)}, {vr(sm,2)} op_sel_hi:[1,0]")
        for u in range(8):
            l.append(f"v_cvt_pk_bf16_f32 v{dst+u}, v{x+2*u}, v{x+2*u+1}")
        return l
    feat(KACC)
    for m in range(2):
        for u in range(8):
            A(f"v_cvt_pk_bf16_f32 v{VACC+16*m+u}, v{VACC+16*m+2*u}, v{VACC+16*m+2*u+1}")
    for m in range(2):
        for u in range(8):
            A(f"v_cndmask_b32_e64 v{VACC+16*m+8+u}, v3, v{VACC+16*m+u}, s[{S_M16}:{S_M16+1}]")
            A(f"v_cndmask_b32_e64 v{VACC+16*m+u}, v{VACC+16*m+u}, v3, s[{S_M16}:{S_M16+1}]")
    nbstamp(0)
    PH = [KACC + 8, KACC + 24]
    ID = T0 + 8
    def tmm(blk):
        d = vr(PK + 16 * blk, 16)
        return [mf(d, vr(PH[blk & 1] + 4 * jp, 4), vr(ID + 4 * jp, 4), d if jp else "0") for jp in range(2)]
    def tcvt(blk):
        t = PK + 16 * blk
        return [f"v_cvt_pk_bf16_f32 v{t+u}, v{t+2*u}, v{t+2*u+1}" for u in range(8)]
    def kvmm(blk):
        m, hh = blk >> 1, blk & 1
        d = vr(KV + 16 * hh, 16)
        return [mf(d, vr(PK + 16 * blk + 4 * mm_, 4), vr(VACC + 16 * m + 8 * hh + 4 * mm_, 4), d if (m or mm_) else "0") for mm_ in range(2)]
    for blk in range(4):
        l = softmax_l(PK + blk * 16, PH[blk & 1])
        if blk:
            t, kv = tmm(blk - 1), kvmm(blk - 1)
            qp = q_pieces(blk) if not QE else (q_pieces(blk + 1) if blk < 3 else o_pieces(1))
            l = l[:17] + [t[0], qp[0]] + l[17:21] + [t[1], qp[1]] + l[21:33] + tcvt(blk - 1) + l[33:50] + [kv[0], qp[2]] + l[50:58] + [kv[1], qp[3]]
        run([x for x in l if x is not None])
        nbstamp(1 + blk)
    TS = 4 if OPT.get("tag1", 1) else 1
    def tagit(r, n):
        for e in range(0, n, TS):
            A(f"v_and_or_b32 v{r+e}, v{r+e}, s{P_MSK}, v{V_TAG}")
    def pub(hh, oc):
        A(f"s_add_u32 s{ST+3}, s{P_P1O}, {(hh*4+oc)*32*SL}")
        A(f"buffer_store_dwordx4 {vr(KV+16*hh+4*oc,4)}, v{V_PB0+hh}, s[{SWS}:{SWS+3}], s{ST+3} offen sc1")
    if NS == 32:
        emit(tmm(3))
        tagit(KV, 16)
        pub(0, 0); pub(0, 1)
        emit(tcvt(3))
        emit(kvmm(3))
        nbstamp(5)
        pub(0, 2); pub(0, 3)
        tagit(KV + 16, 16)
        for oc in range(4): pub(1, oc)
    else:
        RB = PK
        def tail(rh):
            keep, send = 8 * rh, 8 - 8 * rh
            emit(tmm(3))
            for u in range(2): A(f"ds_write_b128 v{V_SW}, {vr(KV+send+4*u,4)} offset:{u*1024}")
            emit(tcvt(3))
            emit(kvmm(3))
            for u in range(2): A(f"ds_write_b128 v{V_SW}, {vr(KV+16+send+4*u,4)} offset:{(2+u)*1024}")
            A("s_waitcnt lgkmcnt(0)")
            A("s_barrier")
            for u in range(4): A(f"ds_read_b128 {vr(RB+4*u,4)}, v{V_SR} offset:{u*1024}")
            for hh in range(2):
                for jj in range(2):
                    r = KV + 16 * hh + keep + 4 * jj
                    A(f"s_add_u32 s{ST+3}, s{P_P1O}, {(hh*4+jj)*16*SL}")
                    A(f"s_waitcnt lgkmcnt({3-2*hh-jj})")
                    for u in range(2):
                        A(f"v_pk_add_f32 {vr(r+2*u,2)}, {vr(r+2*u,2)}, {vr(RB+8*hh+4*jj+2*u,2)}")
                    tagit(r, 4)
                    A(f"buffer_store_dwordx4 {vr(r,4)}, v{V_PB0+hh}, s[{SWS}:{SWS+3}], s{ST+3} offen sc1")
        l1, l2 = lab("rh1"), lab("rhj")
        A(f"s_cmp_lg_u32 s{S_RH}, 0")
        A(f"s_cbranch_scc1 {l1}")
        st_ = (A.vm, A.lg, list(A.hist))
        tail(0)
        A(f"s_branch {l2}")
        A.label(l1)
        A.vm, A.lg, A.hist = st_[0], st_[1], list(st_[2])
        tail(1)
        A.label(l2)
    QACC = KACC
    def qaddr(n):
        i, ks = n >> 2, n & 3
        return QSLOT[i >> 2] * SLOT + (i & 3) * 8192 + ks * 2048
    def rdq(n):
        return trfrag(V_WF + (n & 1) * 8, qaddr(2 * n)) + trfrag(V_WF + (n & 1) * 8 + 4, qaddr(2 * n + 1))
    def mmq(n):
        r = []
        for h in range(2):
            for m in range(2):
                d = vr(QACC + 16 * m, 16)
                r.append(mf(d, vr(V_WF + (n & 1) * 8 + 4 * h, 4), ar((2 * n + h) * 8 + m * 4, 4), d if (n or h) else "0"))
        if n == 15: r = [r[0], r[2], r[1], r[3]]
        return r
    stamp(6)
    nbflush()
    GD = VACC
    GZ = GD + 16
    g1l = [f"buffer_load_dwordx4 {vr(GD+4*k,4)}, v{V_G1}, s[{SWS}:{SWS+3}], s{P_P1G+k} offen sc1" for k in range(NS // 8)]
    g1l.append(f"buffer_load_dwordx4 {vr(GZ,4)}, v{V_GZ}, s[{SWS}:{SWS+3}], s{P_P1G} offen offset:512 sc1")
    S_D1, S_RET = P0 + 11, ST + 6
    A(f"s_mov_b32 s{S_D1}, 0")
    def try1a(block=False):
        skip = lab("sk")
        if block:
            A(f"s_cmp_lg_u32 s{S_D1}, 0")
        else:
            A(f"s_getreg_b32 s{ST+5}, hwreg(HW_REG_IB_STS, 0, 4)")
            A(f"s_or_b32 s{ST+5}, s{ST+5}, s{S_D1}")
        A(f"s_cbranch_scc1 {skip}")
        sk_ = A.skip_begin()
        A(f"s_call_b64 s[{S_RET}:{S_RET+1}], L_try1a")
        A.skip_end(sk_)
        A.label(skip)
    def sub_try1a():
        A.label("L_try1a")
        A.hist = []
        A("s_waitcnt vmcnt(0)")
        A(f"v_xor_b32 v13, v{GD}, v{V_TAG}")
        for s in [x for x in range(TS, 20, TS) if x < NS // 2 or x >= 16]:
            A(f"v_bitop3_b32 v13, v{GD+s}, v{V_TAG}, v13 bitop3:0xbe")
        A("v_and_b32 v13, 0xff, v13")
        A(f"v_cmp_ne_u32 s[{S_FAIL}:{S_FAIL+1}], 0, v13")
        A(f"s_cmp_eq_u64 s[{S_FAIL}:{S_FAIL+1}], 0")
        A("s_cbranch_scc1 L_try1a_ok")
        sk_ = A.skip_begin()
        emit(g1l)
        A(f"s_setpc_b64 s[{S_RET}:{S_RET+1}]")
        A.skip_end(sk_)
        A.label("L_try1a_ok")
        DPP = "row_mask:0xf bank_mask:0xf"
        A(f"v_permlane16_swap_b32 v{GZ}, v{GZ+2}")
        A(f"v_permlane16_swap_b32 v{GZ+1}, v{GZ+3}")
        if NS == 32:
            for u in range(0, 8, 2):
                A(f"v_pk_add_f32 {vr(GD+u,2)}, {vr(GD+u,2)}, {vr(GD+8+u,2)}")
            A(f"v_pk_add_f32 {vr(GZ,2)}, {vr(GZ,2)}, {vr(GZ+2,2)}")
        for u in range(0, 4, 2):
            A(f"v_pk_add_f32 {vr(GD+u,2)}, {vr(GD+u,2)}, {vr(GD+4+u,2)}")
        def zror(k):
            for e in range(2): A(f"v_add_f32_dpp v{GZ+e}, v{GZ+e}, v{GZ+e} row_ror:{k} {DPP}")
        zror(1)
        A(f"v_permlane32_swap_b32 v{GD}, v{GD+1}")
        A(f"v_permlane32_swap_b32 v{GD+2}, v{GD+3}")
        zror(2)
        A(f"v_add_f32 v{GD}, v{GD}, v{GD+1}")
        A(f"v_add_f32 v{GD+2}, v{GD+2}, v{GD+3}")
        zror(4)
        A(f"v_permlane16_swap_b32 v{GD}, v{GD+2}")
        A(f"v_add_f32 v{GD}, v{GD}, v{GD+2}")
        zror(8)
        A(f"v_add_f32_dpp v{GD}, v{GD}, v{GD} row_ror:8 {DPP}")
        for e in range(2): A(f"v_and_or_b32 v{GZ+e}, v{GZ+e}, s{P_MSK}, v{V_TAG}")
        A(f"v_and_or_b32 v{GD}, v{GD}, s{P_MSK}, v{V_TAG}")
        for e in range(2): A(f"v_mov_b32 v{GZ+2+e}, v{GZ+e}")
        A(f"v_mov_b32 v{GD+1}, v{GD}")
        A(f"v_permlane16_swap_b32 v{GZ}, v{GZ+2}")
        A(f"v_permlane16_swap_b32 v{GZ+1}, v{GZ+3}")
        A(f"v_permlane32_swap_b32 v{GD}, v{GD+1}")
        A(f"buffer_store_dwordx4 {vr(GZ,4)}, v{V_P2Z}, s[{SWS}:{SWS+3}], s{P_P2O} offen sc1")
        A(f"v_mov_b32 v{GD+2}, v{GD}")
        A(f"v_mov_b32 v{GD+3}, v{GD+1}")
        A(f"v_permlane16_swap_b32 v{GD}, v{GD+2}")
        A(f"v_permlane16_swap_b32 v{GD+1}, v{GD+3}")
        A(f"buffer_store_dwordx4 {vr(GD,4)}, v{V_P2}, s[{SWS}:{SWS+3}], s{P_P2O} offen sc1")
        stamp(8)
        A(f"s_mov_b32 s{S_D1}, 1")
        A(f"s_setpc_b64 s[{S_RET}:{S_RET+1}]")
    DEFER.append(sub_try1a)
    fill = []
    G1AT = OPT.get('g1at', 6)
    def on_stepq(n):
        if n == 0: fill.extend((o_pieces(1) if QE == 1 else (q_pieces(2) + q_pieces(3) if QE == 2 else [])) + o_pieces(2) + o_pieces(3) + [lambda: (rdy_load(14), tok.__setitem__('wo', A.vm))])
        if n == G1AT: fill.extend(g1l + [None])
        if n >= G1AT + 4: fill.extend([None, try1a])
    if QE == 2:
        run(q_pieces(1))
        A.wait_vm(tok[("q", 0)])
        qb = lambda n: tok[("q", n >> 2)] if n in (4, 8, 12) else None
    else:
        A.wait_vm(tok[("q", 3)])
        qb = lambda n: None
    A("s_barrier")
    stamp(26)
    gemm_loop(16, rdq, mmq, qb, (2, 2, 0, 0), lambda n: (0, 1, 2, 3) if (QE == 2 and n < 2) else (2, 3), fill, on_stepq)
    assert not fill
    stamp(7)
    feat(QACC)
    def wait1a():
        top, done = lab("w1a"), lab("w1d")
        A(f"s_mov_b32 s{S_CNT}, {SPIN_LIMIT}")
        A.label(top)
        try1a(block=True)
        A(f"s_cmp_lg_u32 s{S_D1}, 0")
        A(f"s_cbranch_scc1 {done}")
        sk_ = A.skip_begin()
        A(f"s_sub_u32 s{S_CNT}, s{S_CNT}, 1")
        A(f"s_cbranch_scc0 {top}")
        A.skip_end(sk_)
        A.label(done)
    B1 = OPT.get("blk1a", 0)
    if B1 == 0: wait1a()
    S_D2 = ST + 4
    A(f"s_mov_b32 s{S_D2}, 0")
    PHQ = KV
    FD = PK
    def loads2(rdy=True):
        for hh in range(2):
            for jp in range(2):
                r = FD + (hh * 2 + jp) * 8
                off = (hh * 4 + jp) * SL
                A(f"buffer_load_dwordx4 {vr(r,4)}, v{V_G2}, s[{SWS}:{SWS+3}], s{P_P2G} offen offset:{off} sc1")
                A(f"buffer_load_dwordx4 {vr(r+4,4)}, v{V_G2B}, s[{SWS}:{SWS+3}], s{P_P2G} offen offset:{off} sc1")
        if rdy: rdy_load(14)
    def check2():
        A(f"v_xor_b32 v13, v{FD}, v{V_TAG}")
        for s in range(1, 32):
            A(f"v_bitop3_b32 v13, v{FD+s}, v{V_TAG}, v13 bitop3:0xbe")
        rdy_check(9, 14)
        A("v_and_b32 v13, 0xff, v13")
        A("v_or_b32 v13, v13, v9")
        A(f"v_cmp_ne_u32 s[{S_FAIL}:{S_FAIL+1}], 0, v13")
    for blk in range(4):
        if blk == OPT.get("l2at", 3): loads2(False)
        emit(softmax_l(PK + blk * 16, PHQ + 8 * blk))
        if blk + 1 == B1: wait1a()
    A("s_barrier")
    stamp(9)
    KVF = VACC + 16
    ODR = [KACC, KACC + 16, PK + 32, PK + 48]
    A(f"s_lshl_b32 s{ST+5}, s{S_RH}, 12")
    A(f"v_add_u32 v{V_AX}, s{ST+5}, v{V_LIN}")
    A(f"v_add_u32 v{V_AX+1}, 0x10000, v{V_AX}")
    A(f"v_add_u32 v{V_AX+2}, 0x20000, v{V_AX}")
    slin(ST + 5, 3 * SLOT, (S_MF, 8192), (S_M0W2, 1))
    A(f"v_add_u32 v{V_AX+3}, s{ST+5}, v{V_LIN}")
    A(f"v_xor_b32 v{V_AX+4}, 0x2000, v{V_AX+3}")
    wor = []
    for n in range(32):
        wor += trfrag(n * 4, OLDS[n >> 2] + (n & 3) * 2048, "a")
    NW = OPT.get('nw', 8)
    emit(wor[:NW])
    def check2m():
        chk = [f"v_xor_b32 v13, v{FD}, v{V_TAG}"] + [f"v_bitop3_b32 v13, v{FD+s}, v{V_TAG}, v13 bitop3:0xbe" for s in range(TS, 32, TS)]
        for hh in range(2):
            for q in (2 * hh, 2 * hh + 1):
                for u in range(4):
                    A(f"v_cvt_pk_bf16_f32 v{KVF+4*q+u}, v{FD+8*q+2*u}, v{FD+8*q+2*u+1}")
            for m in range(2):
                blk = 2 * m + hh
                d = vr(ODR[blk], 16)
                for jp in range(2):
                    A(mf(d, vr(KVF + (hh * 2 + jp) * 4, 4), vr(PHQ + 8 * blk + 4 * jp, 4), d if jp else "0"))
                    k = 3 if hh == 0 else 5
                    emit(chk[:k]); chk = chk[k:]
        assert not chk
        rdy_check(9, 14)
        A("v_and_b32 v13, 0xff, v13")
        A("v_or_b32 v13, v13, v9")
        A(f"v_cmp_ne_u32 s[{S_FAIL}:{S_FAIL+1}], 0, v13")
    poll_pre(loads2, check2m)
    stamp(10)
    for blk in (0, 2, 1, 3):
        m, hh = blk >> 1, blk & 1
        o = ODR[blk]
        A(f"v_add_f32 v{o+8}, 0x358637bd, v{o+8}")
        A(f"v_rcp_f32 v{o+8}, v{o+8}")
        for u in range(4):
            A(f"v_pk_mul_f32 {vr(o+2*u,2)}, {vr(o+2*u,2)}, {vr(o+8,2)} op_sel_hi:[1,0]")
        for u in range(4):
            A(f"v_cvt_pk_bf16_f32 v{o+12+u}, v{o+2*u}, v{o+2*u+1}")
        A(f"buffer_store_dwordx4 {vr(o+12,4)}, v{V_LIN}, s[{SWS}:{SWS+3}], s{P_ACTW+m} offen offset:{hh*1024} sc1")
    tok_o = A.vm
    xcc_decide(14)
    for blk in range(4):
        A(f"ds_write_b128 v{V_AX+3+(blk>>1)}, {vr(ODR[blk]+12,4)} offset:{(blk&1)*1024}")
    stamp(11)
    ELDS = [(3, 4, 0, 1)[e >> 2] * SLOT + (e & 3) * 8192 for e in range(16)]
    def of_pieces(e):
        pos, ph = SEQ[e]
        def p0():
            A(f"s_add_u32 m0, s{S_M0W2}, {ELDS[e]:#x}")
            A(f"s_lshl_b32 s{ST+8}, s{KAP[pos]}, 14")
            A(f"s_add_u32 s{ST+8}, s{ST+8}, s{P_ACTR+ph}")
            A(f"buffer_load_dwordx4 v{V_LIN}, s[{SWS}:{SWS+3}], s{ST+8} offen {PLF}lds")
        def p1():
            A(f"buffer_load_dwordx4 v{V_LIN}, s[{SWS}:{SWS+3}], s{ST+8} offen offset:1024 {PLF}lds")
            tok[("of", e)] = A.vm
        return [p0, p1]
    OF = PK
    OACC = VACC
    def rd4(n):
        return [f"ds_read_b128 {vr(OF+(n&1)*16+h*4,4)}, v{V_AX+(ELDS[n]>>16)} offset:{(ELDS[n]&0xffff)+h*1024}" for h in range(4)]
    def mm4(n):
        pos, ph = SEQ[n]
        d = vr(OACC + 16 * ph, 16)
        return [mf(d, vr(OF + (n & 1) * 16 + h * 4, 4), ar((4 * pos + h) * 4, 4), d if (pos or h) else "0") for h in range(4)]
    A("s_waitcnt lgkmcnt(0)")
    A("s_barrier")
    wf = wor[NW:]
    def two():
        for _ in range(2): A(wf.pop(0))
    gemm_loop(2, rd4, mm4, lambda n: None, (2, 2, 0, 0), (2, 3), [two] * 4)
    emit(wf[:16]); wf = wf[16:]
    A.wait_vm(tok_o)
    flag_store()
    emit(wf)
    flag_poll()
    stamp(12)
    for e in range(2, 7): run(of_pieces(e))
    fill = []
    def on_step4(n):
        if OPT.get("g2st") and n in (4, 7, 10, 13): stamp(16 + n // 3)
        if n == 2:
            for e in range(7, 16): fill.extend(of_pieces(e))
        if n == 10: fill.extend(out_stores(OACC, 0))
    A.wait_both(tok[("of", 2 if OPT.get("fineb", 1) else 3)], A.lg)
    A("s_barrier")
    stamp(13)
    BND = {4: 6, 7: 9, 10: 12, 13: 15} if not OPT.get("fineb", 1) else {3: 4, 5: 6, 7: 9, 10: 12, 13: 15}
    gemm_loop(16, rd4, mm4, lambda n: tok[("of", BND[n])] if n in BND else None, (2, 2, 0, 0),
              lambda n: (1, 2, 3) if n >= 10 else (0, 1, 2, 3), fill, on_step4, start=2)
    assert not fill
    stamp(14)
    run(out_stores(OACC, 1))
    tag_update("B")
    stamp(15)
    finish()

prologue()
vm0, lg0 = A.vm, A.lg
role_A()
for f in DEFER: f()
DEFER.clear()
A.label("L_roleB")
ROLE[0] = "B"
A.vm, A.lg = vm0, lg0
A.hist = []
role_B()
for f in DEFER: f()
A.label("L_end")
A("s_endpgm")

iB = A.out.index("L_roleB:")
iE = A.out.index("L_end:")
if OPT.get("bfirst", 1):
    lines = A.out[:CUT["P"]] + A.out[iB:CUT["B"]] + A.out[CUT["P"]:CUT["A"]] + A.out[CUT["B"]:iE] + A.out[CUT["A"]:iB] + A.out[iE:]
else:
    lines = A.out[:CUT["A"]] + A.out[iB:CUT["B"]] + A.out[CUT["A"]:iB] + A.out[CUT["B"]:]
if OPT["align"]:
    lines, nw, nn = align(lines, min_nop=OPT.get('minnop', 12))
    print("align: widened", nw, "nops", nn)
HEAD = open("cdna_kernels/" + NAME + ".s.ref").read().split("; Override launch geometry")[0]
src = HEAD + f"""; @launch grid=(256,1,1) block=(256,1,1) lds=163840
; One persistent launch, one workgroup per CU (generated by a Python script; all instruction streams hand scheduled).
;   role A (128 WGs): U = x.B^T (MFMA) -> chunked complex scan with a cross-workgroup carry exchange -> y = h.C^T + x*Dskip
;   role B (128 WGs): k,v,q projections -> dual softmax features -> kv/z reduce-scatter + all-gather -> o -> o.wo
; Hand-offs go through d_ws with write-through stores and launch-unique tags (tag = word found in d_ws on entry + 1);
; every wait is bounded.
.amdgcn_target "amdgcn-amd-amdhsa--gfx950"
.text
.globl {NAME}_kernel
.p2align 8
.type {NAME}_kernel,@function
{NAME}_kernel:
""" + "\n".join(lines) + f"""
.fill 8192, 4, 0xBF810000
.section .rodata,"a"
.p2align 6
.amdhsa_kernel {NAME}_kernel
  .amdhsa_next_free_vgpr 512
  .amdhsa_next_free_sgpr 102
  .amdhsa_accum_offset 256
  .amdhsa_group_segment_fixed_size 0
  .amdhsa_kernarg_size 128
  .amdhsa_user_sgpr_count 2
  .amdhsa_user_sgpr_kernarg_segment_ptr 1
  .amdhsa_system_sgpr_workgroup_id_x 1
.end_amdhsa_kernel
"""
open(sys.argv[1], "w").write(src)
print("hazard nops:", A.nnop, "lines:", len(lines))
```

```python
NAME = "concat_heads__ssm_conv_s5__linear_kernel_hedgehog__prompt_kernel"
def wrap(body, grid=256, block=256, lds=0, vgpr=256, accum=256):
    return f"""; @launch grid=({grid},1,1) block=({block},1,1) lds={lds}
.amdgcn_target "amdgcn-amd-amdhsa--gfx950"
.text
.globl {NAME}
.p2align 8
.type {NAME},@function
{NAME}:
{body}
s_endpgm
.section .rodata,"a"
.p2align 6
.amdhsa_kernel {NAME}
  .amdhsa_next_free_vgpr {vgpr}
  .amdhsa_next_free_sgpr 102
  .amdhsa_accum_offset {accum}
  .amdhsa_group_segment_fixed_size 0
  .amdhsa_kernarg_size 128
  .amdhsa_user_sgpr_count 2
  .amdhsa_user_sgpr_kernarg_segment_ptr 1
  .amdhsa_system_sgpr_workgroup_id_x 1
.end_amdhsa_kernel
"""
if __name__ == "__main__":
    b = []
    b.append("s_memtime s[20:21]")
    b.append("s_memrealtime s[22:23]")
    b.append("s_load_dwordx2 s[4:5], s[0:1], 120")
    import sys
    if len(sys.argv) > 1:
        b.append("s_getpc_b64 s[6:7]")
        b.append("v_lshlrev_b32 v30, 4, v0")
        for i in range(5):
            b.append(f"global_load_dwordx4 v[{32+4*i}:{35+4*i}], v30, s[6:7]")
            b.append(f"v_add_u32 v30, 4096, v30")
    b.append("s_waitcnt lgkmcnt(0)")
    b.append("s_memtime s[24:25]")
    b.append("s_mov_b32 s3, 0")
    b.append("v_mov_b32 v1, 0")
    b.append("v_mov_b32 v2, 1")
    b.append("s_mov_b32 s8, s4\ns_mov_b32 s9, s5\ns_mov_b32 s10, 0x10000000\ns_mov_b32 s11, 0x20000")
    b.append("s_lshl_b32 s12, s2, 8")
    b.append("L_loop:")
    NSEG = 8
    for seg in range(NSEG):
        b.append(f"s_memtime s[{30+2*seg}:{31+2*seg}]")
        for i in range(256):
            b.append(f"v_add3_u32 v{3+(i%8)}, v1, v2, v2")
    b.append(f"s_memtime s[{30+2*NSEG}:{31+2*NSEG}]")
    b.append("s_waitcnt lgkmcnt(0)")
    b.append("v_cmp_eq_u32 vcc, 0, v0")
    b.append("s_and_saveexec_b64 s[60:61], vcc")
    b.append("s_cbranch_execz L_skip")
    b.append("s_lshl_b32 s13, s3, 6")
    b.append("s_add_u32 s13, s13, s12")
    b.append("v_mov_b32 v20, s13")
    for seg in range(NSEG+1):
        b.append(f"v_mov_b32 v21, s{30+2*seg}")
        b.append(f"buffer_store_dword v21, v20, s[8:11], 0 offen offset:{16+4*seg}")
    b.append("v_mov_b32 v21, s20\nbuffer_store_dword v21, v20, s[8:11], 0 offen offset:0")
    b.append("v_mov_b32 v21, s22\nbuffer_store_dword v21, v20, s[8:11], 0 offen offset:4")
    b.append("v_mov_b32 v21, s24\nbuffer_store_dword v21, v20, s[8:11], 0 offen offset:8")
    b.append("L_skip:")
    b.append("s_mov_b64 exec, s[60:61]")
    b.append("s_add_u32 s3, s3, 1")
    b.append("s_cmp_lt_u32 s3, 2")
    b.append("s_cbranch_scc1 L_loop")
    open("t1.s" if len(sys.argv) == 1 else "t1p.s", "w").write(wrap("\n".join(b)))
```

```python
from gen_t1 import wrap
def gen(fname, KB=32, mode="dw", flags="", spin=0, pre=0, toout=False):
    b = []
    A = b.append
    A("s_memtime s[40:41]")
    A("s_load_dwordx2 s[6:7], s[0:1], 120")
    A("v_lshrrev_b32 v1, 6, v0")
    A("v_and_b32 v2, 63, v0")
    A("v_readfirstlane_b32 s16, v1")
    A("s_load_dwordx2 s[60:61], s[0:1], 104")
    A("s_waitcnt lgkmcnt(0)")
    if pre:
        A(f"s_mov_b32 s62, {pre}")
        A("L_pre:")
        for i in range(8): A("v_mfma_f32_32x32x16_bf16 v[32:47], v[0:3], v[4:7], v[32:47]")
        A("s_sub_u32 s62, s62, 1"); A("s_cmp_lg_u32 s62, 0"); A("s_cbranch_scc1 L_pre")
    A("s_memtime s[42:43]")
    A("s_mov_b32 s24, s6\ns_mov_b32 s25, s7\ns_mov_b32 s26, 0x10000000\ns_mov_b32 s27, 0x20000")
    A(f"s_mul_i32 s32, s2, {KB*1024}")
    A("s_add_u32 s32, s32, 0x1000000")
    A(f"s_mul_i32 s33, s16, {KB*256}")
    A("s_add_u32 s32, s32, s33")
    for r in range(8, 12): A(f"v_mov_b32 v{r}, {r}")
    A("s_mov_b32 s28, s24\ns_mov_b32 s29, s25\ns_mov_b32 s30, s26\ns_mov_b32 s31, 0x20000")
    if toout:
        A("s_mov_b32 s28, s60\ns_mov_b32 s29, s61\ns_mov_b32 s30, 0x800000")
        A("s_sub_u32 s32, s32, 0x1000000")
    if mode == "x4":
        A("v_lshlrev_b32 v3, 4, v2"); n = KB // 4; step = 1024
    else:
        A("v_lshlrev_b32 v3, 2, v2"); n = KB; step = 256
    for i in range(n):
        if mode == "x4":
            A(f"buffer_store_dwordx4 v[8:11], v3, s[28:31], s32 offen {flags}")
        else:
            A(f"buffer_store_dword v8, v3, s[28:31], s32 offen {flags}")
        A(f"s_add_u32 s32, s32, {step}")
    A("s_memtime s[44:45]")
    A("s_waitcnt vmcnt(0)")
    A("s_memtime s[46:47]")
    A("s_barrier")
    A("s_memtime s[48:49]")
    if spin:
        A(f"s_mov_b32 s60, {spin}")
        A("L_spin:")
        for i in range(16): A("v_add_u32 v9, v9, v9")
        A("s_sub_u32 s60, s60, 1"); A("s_cmp_lg_u32 s60, 0"); A("s_cbranch_scc1 L_spin")
    A("s_memtime s[50:51]")
    A("s_waitcnt lgkmcnt(0)")
    A("s_lshl_b32 s12, s2, 8")
    A("v_mov_b32 v80, s12")
    A("v_cmp_eq_u32 vcc, 0, v0")
    A("s_and_saveexec_b64 s[90:91], vcc")
    A("s_cbranch_execz L_skip")
    for t in range(6):
        A(f"s_sub_u32 s13, s{40+2*t}, s40")
        A(f"v_mov_b32 v81, s13")
        A(f"buffer_store_dword v81, v80, s[24:27], 0 offen offset:{4*t}")
    A("L_skip:")
    open(fname, "w").write(wrap("\n".join(b), block=256, vgpr=128, accum=128, lds=163840))
import sys
L = []
for nm, kw in [("c", dict(KB=32, flags="sc1")), ("f", dict(KB=32, mode="x4", flags="sc1")), ("m", dict(KB=32, mode="x4", flags="sc1", pre=40)), ("o", dict(KB=32, mode="x4", flags="sc1", toout=True)), ("p", dict(KB=32, mode="x4", flags="sc1", toout=True, pre=40))]:
    gen(f"t5{nm}.s", **kw); L.append(f"t5{nm}.s")
print(" ".join(L))
open("post_t5.py", "w").write("""
print("   drain per iteration:", [int(np.median(x.reshape(256, 64).astype(np.int64)[:, 3] - x.reshape(256, 64).astype(np.int64)[:, 1])) for x in stamp0])
""")
```
